```python
import torch

def _softmax(x, axis=-1):
    return torch.softmax(x, dim=axis)
def _gelu(x):
    return torch.nn.functional.gelu(x, approximate="tanh")
def _silu(x):
    return torch.nn.functional.silu(x)
def _sigmoid(x):
    return torch.sigmoid(x)
def _layernorm(x, axis=-1, eps=1e-5):
    m = x.mean(dim=axis, keepdim=True)
    v = x.var(dim=axis, keepdim=True, unbiased=False)
    return (x - m) / torch.sqrt(v + eps)
def _scatter_add(tgt, idx, src, axis=0):
    return tgt.clone().index_add_(axis, idx, src)
def _segment_sum(src, seg, n):
    out = torch.zeros((n,) + src.shape[1:], dtype=src.dtype)
    return out.index_add_(0, seg, src)
def _pad(x, pw):
    flat = tuple(v for pair in reversed(pw) for v in pair)
    return torch.nn.functional.pad(x, flat)

kernel_name = 'parallel_sum__grouped_kv_mqa__glu_gated_swiglu__prompt'

def setup_inputs():

    _w = (lambda a: (lambda t: t.to(torch.bfloat16) if t.is_floating_point() else t)(torch.as_tensor(a)))
    def _A_setup():
        B, S, D, H = 1, 2048, 640, 32
        Dh = D // H
        return {
            "x": _w((lambda *s: torch.randn(*s, dtype=torch.bfloat16) * 0.05)(B, S, D)),
            "wq": _w((lambda *s: torch.randn(*s, dtype=torch.bfloat16) * 0.05)(D, H * Dh)),
            "wk": _w((lambda *s: torch.randn(*s, dtype=torch.bfloat16) * 0.05)(D, Dh)),
            "wv": _w((lambda *s: torch.randn(*s, dtype=torch.bfloat16) * 0.05)(D, Dh)),
            "wo": _w((lambda *s: torch.randn(*s, dtype=torch.bfloat16) * 0.05)(H * Dh, D)),
        }
    _A_in = _A_setup()

    def _B_setup():
        B, S, D, F = 1, 2048, 640, 1536
        return {
            "x": _w((lambda *s: torch.randn(*s, dtype=torch.bfloat16) * 0.05)(B, S, D)),
            "w1": _w((lambda *s: torch.randn(*s, dtype=torch.bfloat16) * 0.4)(D, F) * (2.0 / D) ** 0.5),
            "w3": _w((lambda *s: torch.randn(*s, dtype=torch.bfloat16) * 0.4)(D, F) * (2.0 / D) ** 0.5),
            "w2": _w((lambda *s: torch.randn(*s, dtype=torch.bfloat16) * 0.4)(F, D) * (2.0 / F) ** 0.5),
        }
    _B_in = _B_setup()

    return {
        "A_x": _A_in["x"],
        "A_wq": _A_in["wq"],
        "A_wk": _A_in["wk"],
        "A_wv": _A_in["wv"],
        "A_wo": _A_in["wo"],
        "B_x": _B_in["x"],
        "B_w1": _B_in["w1"],
        "B_w3": _B_in["w3"],
        "B_w2": _B_in["w2"],
    }

def reference(A_x, A_wq, A_wk, A_wv, A_wo, B_x, B_w1, B_w3, B_w2):
    def _A_ref(x, wq, wk, wv, wo):
        B, S, D = x.shape
        H = 32
        Dh = D // H
        q = (lambda x, *d: x.permute(*d))((x @ wq).reshape(B, S, H, Dh), 0, 2, 1, 3)
        k = x @ wk
        v = x @ wv
        scores = torch.einsum("bhqd,bkd->bhqk", q, k) * (Dh ** -0.5)
        p = _softmax(scores, axis=-1)
        o = torch.einsum("bhqk,bkd->bhqd", p, v)
        return (lambda x, *d: x.permute(*d))(o, 0, 2, 1, 3).reshape(B, S, H * Dh) @ wo

    def _B_ref(x, w1, w3, w2):
        gate = torch.einsum("bsd,df->bsf", x, w1)
        up = torch.einsum("bsd,df->bsf", x, w3)
        h = _silu(gate) * up
        out = torch.einsum("bsf,fd->bsd", h, w2)
        return out

    x = A_x
    xn = _layernorm(x, axis=-1)
    return x + _A_ref(xn, A_wq, A_wk, A_wv, A_wo) + _B_ref(xn, B_w1, B_w3, B_w2)
```

```python
import re

TRANS = ("v_exp_f32", "v_log_f32", "v_rcp_f32", "v_rsq_f32", "v_sqrt_f32", "v_sin_f32", "v_cos_f32",
         "v_exp_f16", "v_log_f16", "v_rcp_f16", "v_rsq_f16", "v_sqrt_f16", "v_rcp_iflag_f32")

_reg_re = re.compile(r"^(-|\|)?(abs\()?([vsa])(?:(\d+)|\[(\d+):(\d+)\])\)?\|?$")


def parse_reg(tok):
    tok = tok.strip()
    if tok in ("vcc", "exec", "m0", "scc", "vcc_lo", "vcc_hi", "exec_lo", "exec_hi"):
        base = tok.split("_")[0]
        return {(base, 0)}
    m = _reg_re.match(tok)
    if not m:
        return set()
    k = m.group(3)
    if m.group(4) is not None:
        return {(k, int(m.group(4)))}
    return {(k, i) for i in range(int(m.group(5)), int(m.group(6)) + 1)}


def split_ops(s):
    out, depth, cur = [], 0, ""
    for ch in s:
        if ch in "[(":
            depth += 1
        if ch in "])":
            depth -= 1
        if ch == "," and depth == 0:
            out.append(cur.strip())
            cur = ""
        else:
            cur += ch
    if cur.strip():
        out.append(cur.strip())
    return out


class Ins:
    __slots__ = ("text", "mn", "kind", "wr", "rd", "passes", "srcc", "srcab", "ws", "target", "is_label",
                 "store_data", "lds_dma", "lanesel", "dpp", "sdwa", "comment", "dot_ab")

    def __init__(self, text):
        self.text = text
        self.is_label = False
        self.target = None
        self.wr = set()
        self.rd = set()
        self.passes = 0
        self.srcc = set()
        self.srcab = set()
        self.ws = 1
        self.store_data = set()
        self.lds_dma = False
        self.lanesel = set()
        self.dpp = False
        self.sdwa = False
        self.dot_ab = set()
        body = text.split(";")[0].strip()
        if body.endswith(":"):
            self.is_label = True
            self.mn = body[:-1]
            self.kind = "label"
            self.ws = 0
            return
        if body == "" or body.startswith("."):
            self.mn = ""
            self.kind = "dir"
            self.ws = 0
            return
        parts = body.split(None, 1)
        mn = parts[0]
        self.mn = mn
        rest = parts[1] if len(parts) > 1 else ""
        ops = split_ops(rest)
        mods = []
        if ops:
            last = ops[-1].split()
            ops[-1] = last[0] if last else ""
            mods = last[1:]
        regs = [parse_reg(o) for o in ops]
        if mn == "s_nop":
            self.kind = "nop"
            self.ws = int(ops[0], 0) + 1
            return
        if mn.startswith("s_cbranch") or mn == "s_branch":
            self.kind = "branch"
            self.target = ops[0]
            return
        if mn.startswith("v_mfma") or mn.startswith("v_smfmac"):
            self.kind = "mfma"
            if "32x32x16" in mn or "32x32x8" in mn:
                self.passes = 8
            elif "16x16x32" in mn or "16x16x16" in mn:
                self.passes = 4
            else:
                raise ValueError("unknown mfma " + mn)
            self.wr = regs[0]
            self.srcab = regs[1] | regs[2]
            self.srcc = regs[3]
            self.rd = self.srcab | self.srcc
            return
        if mn.startswith("v_"):
            self.kind = "valu"
            self.dpp = any(m.startswith(("row_", "quad_perm", "wave_", "row_bcast")) for m in mods) or mn.endswith("_dpp")
            self.sdwa = mn.endswith("_sdwa") or any(m.startswith("op_sel") for m in mods)
            base = mn.replace("_e32", "").replace("_e64", "")
            if base.startswith("v_cmpx"):
                self.wr = regs[0] | {("exec", 0)}
                self.rd = set().union(*regs[1:])
            elif base.startswith("v_cmp"):
                self.wr = regs[0]
                self.rd = set().union(*regs[1:])
            elif base.startswith("v_permlane") and "swap" in base:
                self.wr = regs[0] | regs[1]
                self.rd = regs[0] | regs[1]
            elif base in ("v_add_co_u32", "v_sub_co_u32", "v_subrev_co_u32", "v_addc_co_u32", "v_subb_co_u32",
                          "v_mad_u64_u32", "v_div_scale_f32"):
                self.wr = regs[0] | regs[1]
                self.rd = set().union(*regs[2:])
            elif base in ("v_readlane_b32", "v_writelane_b32"):
                self.wr = regs[0]
                self.rd = set().union(*regs[1:])
                self.lanesel = regs[2]
                if base == "v_writelane_b32":
                    self.rd |= regs[0]
            elif base == "v_nop":
                pass
            else:
                self.wr = regs[0]
                self.rd = set().union(*regs[1:]) if len(regs) > 1 else set()
                if base.startswith(("v_fmac", "v_pk_fmac", "v_dot2c", "v_dot4c", "v_mac")):
                    self.rd |= regs[0]
                if base == "v_cndmask_b32" and len(ops) == 3:
                    self.rd |= {("vcc", 0)}
                if self.dpp or self.sdwa:
                    self.rd |= regs[0]
                if base.startswith("v_dot"):
                    self.dot_ab = regs[1] | regs[2]
            return
        if mn.startswith(("buffer_", "global_", "flat_", "scratch_")):
            self.kind = "vmem"
            lds = "lds" in mods or "_lds_" in mn
            if lds:
                self.lds_dma = True
                self.rd = set().union(*regs) | {("m0", 0)}
            elif "_load" in mn:
                self.wr = regs[0]
                self.rd = set().union(*regs[1:])
            elif "_store" in mn:
                self.rd = set().union(*regs)
                data = regs[0] if mn.startswith("buffer_") else regs[1]
                if "x3" in mn or "x4" in mn:
                    self.store_data = data
            elif "_atomic" in mn:
                self.rd = set().union(*regs)
                if "sc0" in mods:
                    self.wr = regs[0]
            else:
                pass
            return
        if mn.startswith("ds_"):
            self.kind = "ds"
            if mn.startswith(("ds_read", "ds_bpermute", "ds_permute", "ds_swizzle")) or "_rtn" in mn:
                self.wr = regs[0]
                self.rd = set().union(*regs[1:]) if len(regs) > 1 else set()
            else:
                self.rd = set().union(*regs)
            return
        if mn.startswith(("s_load", "s_buffer_load", "s_memtime", "s_memrealtime", "s_atomic")):
            self.kind = "smem"
            self.wr = regs[0] if regs else set()
            self.rd = set().union(*regs[1:]) if len(regs) > 1 else set()
            return
        if mn.startswith("s_"):
            self.kind = "salu"
            if mn.startswith(("s_cmp", "s_waitcnt", "s_barrier", "s_setprio", "s_endpgm", "s_sleep", "s_bitcmp")):
                self.rd = set().union(*regs) if regs else set()
            else:
                self.wr = regs[0] if regs else set()
                self.rd = set().union(*regs[1:]) if len(regs) > 1 else set()
                if "saveexec" in mn:
                    self.wr |= {("exec", 0)}
            return
        raise ValueError("unknown instruction: " + text)


def _vg(s):
    return {r for r in s if r[0] in ("v", "a")}


def _sg(s):
    return {r for r in s if r[0] in ("s", "vcc")}


def need(p, c):
    n = 0
    if p.kind == "valu":
        pv = _vg(p.wr)
        ps = _sg(p.wr)
        if c.kind == "mfma" and pv & c.rd:
            n = max(n, 2)
        if c.kind == "valu":
            base = c.mn
            if base.startswith(("v_readlane", "v_readfirstlane")) and pv & c.rd:
                n = max(n, 1)
            if base.startswith("v_permlane") and pv & c.rd:
                n = max(n, 2)
            if c.dpp and pv & c.rd:
                n = max(n, 2)
            if ps & c.rd:
                n = max(n, 2)
            if ps & c.lanesel:
                n = max(n, 4)
            if p.mn.replace("_e32", "").replace("_e64", "") in TRANS and pv & (c.rd | c.wr):
                n = max(n, 1)
            if p.sdwa and pv & (c.rd | c.wr):
                n = max(n, 1)
            if ("exec", 0) in p.wr:
                n = max(n, 5 if c.dpp else 4)
            if p.mn.startswith("v_dot") and pv & (c.rd | c.wr):
                if c.mn != p.mn:
                    n = max(n, 3)
                elif pv & c.dot_ab:
                    n = max(n, 3)
        if p.mn.startswith("v_dot") and c.kind in ("vmem", "ds", "mfma") and pv & c.rd:
            n = max(n, 3)
        if c.kind in ("vmem", "ds"):
            if ps & c.rd:
                n = max(n, 5)
            if p.mn in TRANS and pv & c.rd:
                n = max(n, 1)
        if c.kind == "salu" and ps & c.rd:
            n = max(n, 1)
        if c.kind == "mfma" and ("exec", 0) in p.wr:
            n = max(n, 4)
    elif p.kind == "mfma":
        big = {4: 8, 8: 12}[p.passes]
        ovl = {4: 6, 8: 10}[p.passes]
        if c.kind == "mfma":
            if p.wr & c.srcab:
                n = max(n, big)
            if p.wr & c.srcc:
                if not (p.wr == c.srcc and p.passes == c.passes):
                    n = max(n, ovl)
            elif p.wr & c.wr:
                n = max(n, ovl)
        elif c.kind == "valu":
            if p.wr & (c.rd | c.wr):
                n = max(n, big)
            if p.srcc & c.wr:
                n = max(n, {4: 3, 8: 7}[p.passes])
        elif c.kind in ("vmem", "ds"):
            if p.wr & (c.rd | c.wr):
                n = max(n, big)
            if p.srcc & c.wr:
                n = max(n, {4: 3, 8: 7}[p.passes])
    elif p.kind == "salu":
        if ("m0", 0) in p.wr and (c.lds_dma or "addtid" in c.mn):
            n = max(n, 1)
    elif p.kind == "vmem":
        if p.store_data:
            if c.kind in ("valu", "mfma") and p.store_data & c.wr:
                n = max(n, 2)
            elif p.store_data & c.wr:
                n = max(n, 1)
    return n


MAXD = 14


class Asm:
    def __init__(self):
        self.ins = []

    def __call__(self, text):
        for line in text.split("\n"):
            if line.strip() == "":
                continue
            self.ins.append(Ins("    " + line.strip()))

    def label(self, name):
        self.ins.append(Ins(name + ":"))

    def raw(self, text):
        i = Ins("")
        i.text = text
        self.ins.append(i)

    def comment(self, text):
        self.raw("    ; " + text)

    def _deficit(self, hist, c):
        d = 0
        worst = 0
        for p in reversed(hist):
            if d >= MAXD:
                break
            if p.ws == 0:
                continue
            k = need(p, c)
            if k > d:
                worst = max(worst, k - d)
            d += p.ws
        return worst

    def finish(self):
        changed = True
        it = 0
        while changed:
            it += 1
            assert it < 20
            changed = False
            out = []
            for c in self.ins:
                if c.ws and c.kind != "nop":
                    hist = []
                    for p in reversed(out):
                        if p.mn in ("s_branch", "s_endpgm"):
                            break
                        hist.append(p)
                        if len(hist) > 40:
                            break
                    hist.reverse()
                    k = self._deficit(hist, c)
                    if k:
                        out.append(Ins(f"    s_nop {k - 1}"))
                        changed = True
                out.append(c)
            self.ins = out
            labels = {x.mn: i for i, x in enumerate(self.ins) if x.is_label}
            out = []
            for i, c in enumerate(self.ins):
                if c.kind == "branch":
                    j = labels[c.target]
                    hist = []
                    for p in reversed(out):
                        if p.mn in ("s_branch", "s_endpgm"):
                            break
                        hist.append(p)
                        if len(hist) > 40:
                            break
                    hist.reverse()
                    hist.append(c)
                    worst = 0
                    d = 0
                    seq = list(hist)
                    for t in self.ins[j:j + 60]:
                        if d >= MAXD:
                            break
                        if t.ws and t.kind != "nop":
                            worst = max(worst, self._deficit(seq, t))
                        seq.append(t)
                        d += t.ws
                        if t.mn in ("s_branch", "s_endpgm"):
                            break
                    if worst:
                        out.append(Ins(f"    s_nop {worst - 1}"))
                        changed = True
                out.append(c)
            self.ins = out
        return "\n".join(x.text for x in self.ins) + "\n"
```

```python
import math
import struct
import sys

from asmlib import Asm

XF = 0x0
QF = 0x280000
KF = 0x500000
VF = 0x514000
KN = 0x52A000
OF = 0x530000
HF = 0x800000
FP = 0x1000000
WS_END = 0x2400000
TS = 0x2300000
import os
STAMP = os.environ.get("STAMP", "")


_stamp_n = {}


def stamp(a, name, vreg=255):
    if name in STAMP.split(","):
        i = _stamp_n.get(name, 0)
        _stamp_n[name] = i + 1
        a("s_memtime s[100:101]")
        a("s_waitcnt lgkmcnt(0)")
        a(f"v_writelane_b32 v{vreg}, s100, {i}")


def stamp_begin(a, name, vreg=255):
    if name in STAMP.split(","):
        a("s_memrealtime s[98:99]")
        a("s_waitcnt lgkmcnt(0)")
        a(f"v_writelane_b32 v{vreg}, s98, 14")
    stamp(a, name, vreg)


def stamp_end(a, name, sws, s_w, vtmp, s_wg=2, vreg=255):
    if name in STAMP.split(","):
        a("s_waitcnt vmcnt(0) lgkmcnt(0)")
        stamp(a, name, vreg)
        a("s_memrealtime s[98:99]")
        a("s_waitcnt lgkmcnt(0)")
        a(f"v_writelane_b32 v{vreg}, s98, 15")
        a(f"s_lshl_b32 s94, s{s_wg}, 2")
        a(f"s_add_u32 s94, s94, s{s_w}")
        a("s_lshl_b32 s94, s94, 6")
        a(f"s_add_u32 s94, s94, {TS}")
        a(f"v_and_b32 v{vtmp}, 63, v0")
        a(f"v_lshlrev_b32 v{vtmp}, 2, v{vtmp}")
        a("s_mov_b64 s[98:99], exec")
        a("s_mov_b64 exec, 0xffff")
        a(f"buffer_store_dword v{vreg}, v{vtmp}, s[{sws}:{sws+3}], s94 offen")
        a("s_mov_b64 exec, s[98:99]")


QSCALE = (20 ** -0.5) * math.log2(math.e)


def f2u(x):
    return struct.unpack("<I", struct.pack("<f", x))[0]


def hx(x):
    return "0x%x" % x


def srd(a, d, base, size):
    a(f"s_mov_b32 s{d}, s{base}")
    a(f"s_and_b32 s{d+1}, s{base+1}, 0xffff")
    a(f"s_mov_b32 s{d+2}, {hx(size)}")
    a(f"s_mov_b32 s{d+3}, 0x00020000")


def vr(b, n=1):
    return f"v{b}" if n == 1 else f"v[{b}:{b+n-1}]"


def mfma32(a, d, x, y, c=None):
    cs = vr(d, 16) if c is None else c
    a(f"v_mfma_f32_32x32x16_bf16 {vr(d,16)}, {vr(x,4)}, {vr(y,4)}, {cs}")


def kernel_header(name):
    return f""".globl {name}
.p2align 8
.type {name},@function
"""


def kernel_desc(name, vgprs, sgprs=102):
    acc = (vgprs + 3) // 4 * 4
    return f""".p2align 6
.amdhsa_kernel {name}
  .amdhsa_next_free_vgpr {vgprs}
  .amdhsa_next_free_sgpr {sgprs}
  .amdhsa_accum_offset {acc}
  .amdhsa_group_segment_fixed_size 0
  .amdhsa_kernarg_size 96
  .amdhsa_user_sgpr_count 2
  .amdhsa_user_sgpr_kernarg_segment_ptr 1
  .amdhsa_system_sgpr_workgroup_id_x 1
.end_amdhsa_kernel
"""


K_X = 16
K_ACC = 96
K_A = 192
K_T = 216
WAVE_LDS = 30720
LDS_STG = 8192


def typek_mfma_phase(a, vtr, zero=True):
    def reads(s, buf):
        for ct in range(3):
            o = (3 * s + ct) * 1024
            r = K_A + buf * 12 + ct * 4
            a(f"ds_read_b64_tr_b16 {vr(r,2)}, v{vtr} offset:{o}")
            a(f"ds_read_b64_tr_b16 {vr(r+2,2)}, v{vtr} offset:{o+256}")
    reads(0, 0)
    for s in range(10):
        if s + 1 < 10:
            reads(s + 1, (s + 1) & 1)
            a("s_waitcnt lgkmcnt(6)")
        else:
            a("s_waitcnt lgkmcnt(0)")
        for ct in range(3):
            for rt in range(2):
                d = K_ACC + (rt * 3 + ct) * 16
                mfma32(a, d, K_A + (s & 1) * 12 + ct * 4, K_X + rt * 40 + s * 4, "0" if (s == 0 and zero) else None)


def typek_reduce(a, vslab, vrd, s_w):
    for rt in range(2):
        for ct in range(3):
            for g in range(4):
                r = K_ACC + (rt * 3 + ct) * 16 + g * 4
                a(f"ds_write_b128 v{vslab}, {vr(r,4)} offset:{rt*12800 + ct*128 + g*32}")
    a("s_waitcnt lgkmcnt(0)")
    a("s_barrier")
    for j in range(4):
        for rt in range(2):
            for ct in range(3):
                t = rt * 3 + ct
                base = LDS_STG + j * WAVE_LDS + rt * 12800 + ct * 128
                if j < 2:
                    a(f"ds_read_b128 {vr(K_ACC+(j*6+t)*4,4)}, v{vrd} offset:{base}")
                else:
                    a(f"ds_read_b128 {vr(K_ACC+(j*6+t)*4,4)}, v{vrd+1} offset:{base-2*WAVE_LDS}")
    a("s_waitcnt lgkmcnt(0)")
    for t in range(6):
        for e in range(0, 4, 2):
            r0 = K_ACC + t * 4 + e
            a(f"v_pk_add_f32 {vr(r0,2)}, {vr(r0,2)}, {vr(r0+24,2)}")
            a(f"v_pk_add_f32 {vr(r0+48,2)}, {vr(r0+48,2)}, {vr(r0+72,2)}")
    for t in range(6):
        for e in range(0, 4, 2):
            r0 = K_ACC + t * 4 + e
            a(f"v_pk_add_f32 {vr(K_X+t*4+e,2)}, {vr(r0,2)}, {vr(r0+48,2)}")


def lane_setup(a, T, vLane, vN, vH, s_w):
    a(f"v_and_b32 v{vLane}, 63, v0")
    a(f"v_lshrrev_b32 v{T}, 6, v0")
    a(f"v_readfirstlane_b32 s{s_w}, v{T}")
    a(f"v_and_b32 v{vN}, 31, v0")
    a(f"v_bfe_u32 v{vH}, v0, 5, 1")


def tr_base(a, vTr, T, vLane, vH, hshift):
    a(f"v_lshlrev_b32 v{vTr}, {hshift}, v{vH}")
    a(f"v_bfe_u32 v{T}, v{vLane}, 2, 2")
    a(f"v_lshl_add_u32 v{vTr}, v{T}, 6, v{vTr}")
    a(f"v_bfe_u32 v{T}, v{vLane}, 4, 1")
    a(f"v_lshl_add_u32 v{vTr}, v{T}, 5, v{vTr}")
    a(f"v_and_b32 v{T}, 3, v{vLane}")
    a(f"v_lshl_add_u32 v{vTr}, v{T}, 3, v{vTr}")


def gen_qkv():
    a = Asm()
    a.label("qkv_kernel")
    ST = 0
    NB = 4096
    MX = 6144
    s_w, s_rb, s_cb = 32, 33, 34
    SX, SW, SKV, SWS = 16, 20, 24, 28
    vLane, vN, vH = 1, 2, 3
    vXo, vWo, vKo, vTr, vSlab, vRd = 4, 5, 6, 7, 8, 9
    vSt = 11
    T = K_T
    a("s_cmp_ge_u32 s2, 256")
    a("s_cbranch_scc1 qkv_end")
    stamp_begin(a, "qkv")
    a("s_load_dwordx4 s[4:7], s[0:1], 0")
    a("s_load_dwordx4 s[8:11], s[0:1], 16")
    a("s_load_dwordx2 s[12:13], s[0:1], 88")
    lane_setup(a, T, vLane, vN, vH, s_w)
    a("s_and_b32 s3, s2, 7")
    a("s_lshr_b32 s35, s2, 3")
    a("s_and_b32 s36, s35, 3")
    a("s_lshl_b32 s3, s3, 2")
    a(f"s_add_u32 s{s_rb}, s3, s36")
    a(f"s_lshr_b32 s{s_cb}, s35, 2")
    a(f"v_mul_u32_u24 v{vXo}, 1280, v{vN}")
    a(f"v_lshl_add_u32 v{vXo}, v{vH}, 4, v{vXo}")
    a(f"v_lshrrev_b32 v{T}, 2, v{vLane}")
    a(f"v_mul_u32_u24 v{vWo}, 1280, v{T}")
    a(f"v_and_b32 v{T}, 3, v{vLane}")
    a(f"v_lshl_add_u32 v{vWo}, v{T}, 4, v{vWo}")
    a(f"v_lshrrev_b32 v{T}, 4, v{vLane}")
    a(f"v_mul_u32_u24 v{vKo}, 40, v{T}")
    a(f"v_and_b32 v{T}, 15, v{vLane}")
    a(f"v_lshl_add_u32 v{vKo}, v{T}, 2, v{vKo}")
    tr_base(a, vTr, T, vLane, vH, 9)
    a(f"s_mul_i32 s37, s{s_w}, {WAVE_LDS}")
    a(f"s_add_u32 s37, s37, {LDS_STG}")
    a(f"v_add_u32 v{vTr}, s37, v{vTr}")
    a(f"v_mul_u32_u24 v{vRd}, 400, v{vN}")
    a(f"v_lshl_add_u32 v{vRd}, v{vH}, 4, v{vRd}")
    a(f"v_add_u32 v{vSlab}, s37, v{vRd}")
    a(f"s_lshl_b32 s38, s{s_w}, 5")
    a(f"v_add_u32 v{vRd}, s38, v{vRd}")
    a(f"v_add_u32 v{vRd+1}, {2*WAVE_LDS}, v{vRd}")
    a("s_waitcnt lgkmcnt(0)")
    srd(a, SX, 4, 2621440)
    srd(a, SW, 6, 819200)
    srd(a, SWS, 12, WS_END)
    a(f"s_cmp_eq_u32 s{s_cb}, 7")
    a("s_cselect_b32 s8, s10, s8")
    a("s_cselect_b32 s9, s11, s9")
    srd(a, SKV, 8, 25600)
    a(f"s_mul_i32 s39, s{s_rb}, {64*1280}")
    a(f"s_mul_i32 s40, s{s_w}, 320")
    a("s_add_u32 s39, s39, s40")
    a(f"s_add_u32 s40, s39, {32*1280}")
    for rt in range(2):
        for s in range(10):
            a(f"buffer_load_dwordx4 {vr(K_X+rt*40+s*4,4)}, v{vXo}, s[{SX}:{SX+3}], s{39+rt} offen offset:{32*s}")
    a(f"s_mul_i32 s41, s{s_w}, {160*1280}")
    a(f"s_mul_i32 s42, s{s_cb}, 192")
    a("s_add_u32 s41, s41, s42")
    a(f"s_mul_i32 s43, s{s_w}, {160*40}")

    def wq_dma(cts):
        for s in range(10):
            for ct in cts:
                a(f"s_add_u32 m0, s37, {(3*s+ct)*1024}")
                a(f"s_add_u32 s44, s41, {s*16*1280 + ct*64}")
                a(f"buffer_load_dwordx4 v{vWo}, s[{SW}:{SW+3}], s44 offen lds")

    def kv_dma(ct):
        for s in range(10):
            for qd in range(4):
                a(f"s_add_u32 m0, s37, {(3*s+ct)*1024 + qd*256}")
                a(f"s_add_u32 s44, s43, {(16*s+4*qd)*40}")
                a(f"buffer_load_dword v{vKo}, s[{SKV}:{SKV+3}], s44 offen lds")
    a(f"s_cmp_ge_u32 s{s_cb}, 6")
    a("s_cbranch_scc1 qkv_dma_b")
    wq_dma([0, 1, 2])
    a("s_waitcnt vmcnt(30)")
    a("s_branch qkv_dma_done")
    a.label("qkv_dma_b")
    a(f"s_cmp_eq_u32 s{s_cb}, 7")
    a("s_cbranch_scc1 qkv_dma_c")
    wq_dma([0, 1])
    kv_dma(2)
    a("s_waitcnt vmcnt(60)")
    a("s_branch qkv_dma_done")
    a.label("qkv_dma_c")
    kv_dma(0)
    a("s_waitcnt vmcnt(40)")
    a.label("qkv_dma_done")
    stamp(a, "qkv")
    vOne = T
    a(f"v_mov_b32 v{vOne}, 0x3f803f80")
    for i in range(8):
        a(f"v_mov_b32 v{T+2+i}, 0")
    for i in range(40):
        for rt in range(2):
            x = K_X + rt * 40 + i
            b = T + 2 + rt * 4 + (i & 1) * 2
            a(f"v_dot2_f32_bf16 v{b}, v{x}, v{vOne}, v{b}")
            a(f"v_dot2_f32_bf16 v{b+1}, v{x}, v{x}, v{b+1}")
    for rt in range(2):
        b = T + 2 + rt * 4
        a(f"v_pk_add_f32 {vr(b,2)}, {vr(b,2)}, {vr(b+2,2)}")
    a(f"v_lshlrev_b32 v{vSt}, 6, v{vN}")
    a(f"v_lshl_add_u32 v{T+10}, v{vH}, 3, v{vSt}")
    a(f"s_lshl_b32 s38, s{s_w}, 4")
    a(f"v_add_u32 v{T+10}, s38, v{T+10}")
    for rt in range(2):
        a(f"ds_write_b64 v{T+10}, {vr(T+2+rt*4,2)} offset:{ST + rt*2048}")
    a(f"v_mov_b32 v{T+11}, 0")
    a(f"ds_write_b32 v{T+11}, v{T+11} offset:{MX}")
    a("s_waitcnt lgkmcnt(0)")
    a("s_barrier")
    R = K_ACC
    for rt in range(2):
        for q in range(4):
            a(f"ds_read_b128 {vr(R+rt*16+q*4,4)}, v{vSt} offset:{ST + rt*2048 + q*16}")
    a("s_waitcnt lgkmcnt(0)")
    a(f"s_mov_b32 s45, {hx(f2u(1.0/640))}")
    a(f"s_mov_b32 s46, {hx(f2u(1e-5))}")
    for rt in range(2):
        b = R + rt * 16
        for step in (8, 4, 2):
            for e in range(0, step, 2):
                a(f"v_pk_add_f32 {vr(b+e,2)}, {vr(b+e,2)}, {vr(b+e+step,2)}")
        mu, sq, m_b, t0 = b, b + 1, b + 2, b + 3
        rr = T + 12 + rt * 4
        a(f"v_mul_f32 v{mu}, s45, v{mu}")
        a(f"v_mul_f32 v{sq}, s45, v{sq}")
        a(f"v_fma_f32 v{sq}, -v{mu}, v{mu}, v{sq}")
        a(f"v_max_f32 v{sq}, 0, v{sq}")
        a(f"v_cvt_pk_bf16_f32 v{m_b}, v{mu}, v{sq}")
        a(f"v_and_b32 v{t0}, 0xffff0000, v{m_b}")
        a(f"v_lshlrev_b32 v{m_b}, 16, v{m_b}")
        a(f"v_add_f32 v{t0}, s46, v{t0}")
        a(f"v_cvt_pk_bf16_f32 v{t0}, v{t0}, v{t0}")
        a(f"v_lshlrev_b32 v{t0}, 16, v{t0}")
        a(f"v_sqrt_f32 v{t0}, v{t0}")
        a(f"v_cvt_pk_bf16_f32 v{t0}, v{t0}, v{t0}")
        a(f"v_lshlrev_b32 v{t0}, 16, v{t0}")
        a(f"v_rcp_f32 v{rr}, v{t0}")
        a(f"v_mov_b32 v{rr+1}, v{rr}")
        a(f"v_mul_f32 v{rr+2}, -v{m_b}, v{rr}" if False else f"v_mul_f32_e64 v{rr+2}, -v{m_b}, v{rr}")
        a(f"v_mov_b32 v{rr+3}, v{rr+2}")
    stamp(a, "qkv")
    a("s_mov_b32 s47, 0xffff0000")
    for rt in range(2):
        rr = T + 12 + rt * 4
        for i in range(40):
            x = K_X + rt * 40 + i
            u = T + 20 + (i & 3) * 2
            a(f"v_lshlrev_b32 v{u}, 16, v{x}")
            a(f"v_and_b32 v{u+1}, s47, v{x}")
            a(f"v_pk_fma_f32 {vr(u,2)}, {vr(u,2)}, {vr(rr,2)}, {vr(rr+2,2)}")
            a(f"v_cvt_pk_bf16_f32 v{x}, v{u}, v{u+1}")
    stamp(a, "qkv")
    a("s_waitcnt vmcnt(0)")
    stamp(a, "qkv")
    a(f"s_cmp_lg_u32 s{s_cb}, 7")
    a("s_cbranch_scc1 qkv_noxn")
    a(f"v_lshlrev_b32 v{T}, 4, v{vLane}")
    a(f"s_mul_i32 s39, s{s_rb}, {2*40*1024}")
    a(f"s_mul_i32 s40, s{s_w}, {10*1024}")
    a("s_add_u32 s39, s39, s40")
    for rt in range(2):
        for s in range(10):
            a(f"s_add_u32 s44, s39, {XF + rt*40*1024 + s*1024}")
            a(f"buffer_store_dwordx4 {vr(K_X+rt*40+s*4,4)}, v{T}, s[{SWS}:{SWS+3}], s44 offen")
    a.label("qkv_noxn")
    typek_mfma_phase(a, vTr)
    stamp(a, "qkv")
    typek_reduce(a, vSlab, vRd, s_w)
    stamp(a, "qkv")
    vC0, vHead, vD0, vOff, vA = T, T + 1, T + 2, T + 3, T + 4
    a(f"s_mov_b32 s45, {hx(f2u(QSCALE))}")
    a("s_mov_b32 s46, 3277")
    a(f"s_mul_i32 s38, s{s_cb}, 96")
    a(f"s_lshl_b32 s39, s{s_w}, 3")
    a("s_add_u32 s38, s38, s39")
    a(f"s_mul_i32 s48, s{s_rb}, {2*32*1280}")
    a(f"s_add_u32 s48, s48, {QF}")
    a(f"s_add_u32 s49, s48, {32*1280}")
    a(f"s_mul_i32 s50, s{s_cb}, 3")

    def frag_off(vD0, vOff):
        a(f"v_lshrrev_b32 v{vA}, 3, v{vD0}")
        a(f"v_lshlrev_b32 v{vA}, 9, v{vA}")
        a(f"v_lshl_add_u32 v{vA}, v{vN}, 4, v{vA}")
        a(f"v_and_b32 v{vA+1}, 4, v{vD0}")
        a(f"v_lshl_add_u32 v{vA}, v{vA+1}, 1, v{vA}")
        a(f"v_lshlrev_b32 v{vA+1}, 3, v{vN}")
        a(f"v_add_u32 v{vA+1}, 1024, v{vA+1}")
        a(f"v_cmp_gt_u32 vcc, 16, v{vD0}")
        a(f"v_cndmask_b32 v{vA}, v{vA+1}, v{vA}, vcc")
        a(f"v_add_u32 v{vOff}, v{vOff}, v{vA}")

    for ct in range(3):
        a(f"s_add_u32 s51, s50, {ct}")
        a("s_cmp_ge_u32 s51, 20")
        a(f"s_cbranch_scc1 qkv_notq{ct}")
        a(f"v_lshlrev_b32 v{vC0}, 2, v{vH}")
        a(f"v_add_u32 v{vC0}, s38, v{vC0}")
        if ct:
            a(f"v_add_u32 v{vC0}, {32*ct}, v{vC0}")
        a(f"v_mul_u32_u24 v{vHead}, s46, v{vC0}")
        a(f"v_lshrrev_b32 v{vHead}, 16, v{vHead}")
        a(f"v_mul_u32_u24 v{vD0}, 20, v{vHead}")
        a(f"v_sub_u32 v{vD0}, v{vC0}, v{vD0}")
        a(f"v_mul_u32_u24 v{vOff}, 1280, v{vHead}")
        frag_off(vD0, vOff)
        for rt in range(2):
            r = K_X + (rt * 3 + ct) * 4
            for e in range(4):
                a(f"v_mul_f32 v{r+e}, s45, v{r+e}")
            a(f"v_cvt_pk_bf16_f32 v{r}, v{r}, v{r+1}")
            a(f"v_cvt_pk_bf16_f32 v{r+1}, v{r+2}, v{r+3}")
            a(f"buffer_store_dwordx2 {vr(r,2)}, v{vOff}, s[{SWS}:{SWS+3}], s{48+rt} offen")
        a.label(f"qkv_notq{ct}")
    stamp_end(a, "qkv", SWS, s_w, 240)
    a(f"s_cmp_lt_u32 s{s_cb}, 6")
    a("s_cbranch_scc1 qkv_end")
    P = T + 8
    a(f"s_cmp_eq_u32 s{s_cb}, 7")
    a("s_cbranch_scc1 qkv_mvv")
    for rt in range(2):
        for e in range(4):
            a(f"v_mov_b32 v{P+rt*4+e}, v{K_X+(rt*3+2)*4+e}")
    a("s_branch qkv_mvd")
    a.label("qkv_mvv")
    for rt in range(2):
        for e in range(4):
            a(f"v_mov_b32 v{P+rt*4+e}, v{K_X+(rt*3+0)*4+e}")
    a.label("qkv_mvd")
    a(f"v_lshlrev_b32 v{vD0}, 2, v{vH}")
    a(f"v_add_u32 v{vD0}, s39, v{vD0}")
    a(f"v_cmp_gt_u32 s[52:53], 20, v{vD0}")
    a(f"v_lshlrev_b32 v{vA}, 5, v{vN}")
    a(f"v_add_u32 v{vA}, v{vA}, v{vD0}")
    for rt in range(2):
        q = T + 16 + rt
        a(f"v_mul_f32 v{q}, v{P+rt*4}, v{P+rt*4}")
        for e in range(1, 4):
            a(f"v_fmac_f32 v{q}, v{P+rt*4+e}, v{P+rt*4+e}")
        a(f"v_cndmask_b32 v{q}, 0, v{q}, s[52:53]")
        a(f"ds_write_b32 v{vA}, v{q} offset:{NB + rt*1024}")
    for rt in range(2):
        r = P + rt * 4
        a(f"v_cvt_pk_bf16_f32 v{r}, v{r}, v{r+1}")
        a(f"v_cvt_pk_bf16_f32 v{r+1}, v{r+2}, v{r+3}")
    a("s_mov_b64 s[54:55], exec")
    a("s_and_b64 exec, exec, s[52:53]")
    a("s_cbranch_execz qkv_kvst_done")
    a(f"s_mul_i32 s48, s{s_rb}, {2*1280}")
    a(f"s_cmp_eq_u32 s{s_cb}, 7")
    a("s_cbranch_scc1 qkv_vst")
    a(f"s_add_u32 s48, s48, {KF}")
    a("s_add_u32 s49, s48, 1280")
    a(f"v_mov_b32 v{vOff}, 0")
    frag_off(vD0, vOff)
    for rt in range(2):
        a(f"buffer_store_dwordx2 {vr(P+rt*4,2)}, v{vOff}, s[{SWS}:{SWS+3}], s{48+rt} offen")
    a("s_branch qkv_kvst_done")
    a.label("qkv_vst")
    a(f"s_mul_i32 s48, s{s_rb}, {2*1344}")
    a(f"s_add_u32 s48, s48, {VF}")
    a("s_add_u32 s49, s48, 1344")
    a(f"v_lshrrev_b32 v{vA}, 4, v{vN}")
    a(f"v_lshlrev_b32 v{vA}, 1, v{vA}")
    a(f"v_bfe_u32 v{vA+1}, v{vN}, 2, 1")
    a(f"v_add_u32 v{vA}, v{vA}, v{vA+1}")
    a(f"v_mul_u32_u24 v{vA}, 21, v{vA}")
    a(f"v_add_u32 v{vA}, v{vA}, v{vD0}")
    a(f"v_lshlrev_b32 v{vOff}, 4, v{vA}")
    a(f"v_and_b32 v{vA}, 3, v{vN}")
    a(f"v_lshl_add_u32 v{vOff}, v{vA}, 1, v{vOff}")
    a(f"v_bfe_u32 v{vA}, v{vN}, 3, 1")
    a(f"v_lshl_add_u32 v{vOff}, v{vA}, 3, v{vOff}")
    for rt in range(2):
        r = P + rt * 4
        a(f"buffer_store_short v{r}, v{vOff}, s[{SWS}:{SWS+3}], s{48+rt} offen")
        a(f"buffer_store_short_d16_hi v{r}, v{vOff}, s[{SWS}:{SWS+3}], s{48+rt} offen offset:16")
        a(f"buffer_store_short v{r+1}, v{vOff}, s[{SWS}:{SWS+3}], s{48+rt} offen offset:32")
        a(f"buffer_store_short_d16_hi v{r+1}, v{vOff}, s[{SWS}:{SWS+3}], s{48+rt} offen offset:48")
    a.label("qkv_kvst_done")
    a("s_mov_b64 exec, s[54:55]")
    a(f"s_cmp_lg_u32 s{s_cb}, 7")
    a("s_cbranch_scc1 qkv_noones")
    a(f"s_cmp_lg_u32 s{s_w}, 3")
    a("s_cbranch_scc1 qkv_noones")
    a(f"s_mul_i32 s48, s{s_rb}, {2*1344}")
    a(f"s_add_u32 s48, s48, {VF + 320}")
    a(f"v_mul_u32_u24 v{vOff}, 336, v{vLane}")
    for e in range(4):
        a(f"v_mov_b32 v{P+e}, 0x3f803f80")
    a("s_mov_b64 exec, 0xff")
    a(f"buffer_store_dwordx4 {vr(P,4)}, v{vOff}, s[{SWS}:{SWS+3}], s48 offen")
    a("s_mov_b64 exec, s[54:55]")
    a.label("qkv_noones")
    a("s_waitcnt lgkmcnt(0)")
    a("s_barrier")
    a(f"s_cmp_lg_u32 s{s_w}, 0")
    a("s_cbranch_scc1 qkv_end")
    a(f"v_lshlrev_b32 v{vA}, 5, v{vLane}")
    a(f"ds_read_b128 {vr(P,4)}, v{vA} offset:{NB}")
    a(f"ds_read_b128 {vr(P+4,4)}, v{vA} offset:{NB+16}")
    a("s_waitcnt lgkmcnt(0)")
    for e in range(1, 8):
        a(f"v_add_f32 v{P}, v{P}, v{P+e}")
    a(f"v_mov_b32 v{vA}, 0")
    a(f"ds_max_u32 v{vA}, v{P} offset:{MX}")
    a("s_waitcnt lgkmcnt(0)")
    a(f"ds_read_b32 v{P}, v{vA} offset:{MX}")
    a(f"s_sub_u32 s48, s{s_cb}, 6")
    a("s_lshl_b32 s48, s48, 5")
    a(f"s_add_u32 s48, s48, s{s_rb}")
    a("s_lshl_b32 s48, s48, 2")
    a(f"s_add_u32 s48, s48, {KN}")
    a("s_waitcnt lgkmcnt(0)")
    a(f"buffer_store_dword v{P}, v{vA}, s[{SWS}:{SWS+3}], s48 offen")
    a.label("qkv_end")
    a("s_endpgm")
    return a.finish(), ("qkv_kernel", 256, 256, 131072, 256)


A_Q, A_O, A_S, A_P, A_K, A_V, A_M = 16, 48, 112, 144, 160, 176, 192
A_T = 196
OOB = 0x80000000


def gen_attn_body(a, pfx, s_wg):
    s_w, s_rt, s_kh, s_hd = 32, 33, 34, 35
    SWS = 28
    vLane, vN, vH = 1, 2, 3
    vK1, vK2, vV = 4, 5, 6
    T = A_T
    a("s_load_dwordx2 s[12:13], s[0:1], 88")
    lane_setup(a, T, vLane, vN, vH, s_w)
    a(f"s_lshr_b32 s{s_rt}, s{s_wg}, 2")
    a(f"s_and_b32 s3, s{s_wg}, 3")
    a(f"s_and_b32 s{s_kh}, s{s_w}, 1")
    a(f"s_lshr_b32 s36, s{s_w}, 1")
    a("s_lshl_b32 s3, s3, 3")
    a("s_lshl_b32 s36, s36, 2")
    a(f"s_add_u32 s{s_hd}, s3, s36")
    a(f"v_lshlrev_b32 v{vK1}, 4, v{vLane}")
    a(f"v_lshlrev_b32 v{vK2}, 3, v{vN}")
    a(f"v_add_u32 v{vK2}, 1024, v{vK2}")
    a(f"v_mov_b32 v{T}, {hx(OOB)}")
    a(f"v_cmp_eq_u32 vcc, 0, v{vH}")
    a(f"v_cndmask_b32 v{vK2}, v{T}, v{vK2}, vcc")
    a(f"v_mul_u32_u24 v{vV}, 21, v{vH}")
    a(f"v_add_u32 v{vV}, v{vV}, v{vN}")
    a(f"v_lshlrev_b32 v{vV}, 4, v{vV}")
    a(f"v_cmp_gt_u32 vcc, 21, v{vN}")
    a(f"v_cndmask_b32 v{vV}, v{T}, v{vV}, vcc")
    a("s_waitcnt lgkmcnt(0)")
    srd(a, SWS, 12, WS_END)
    a(f"s_add_u32 s12, s12, {KN}")
    a("s_addc_u32 s13, s13, 0")
    a("s_load_dwordx16 s[64:79], s[12:13], 0")
    a("s_load_dwordx16 s[80:95], s[12:13], 64")
    a("s_load_dwordx16 s[44:59], s[12:13], 128")
    a(f"s_lshl_b32 s36, s{s_rt}, 5")
    a(f"s_add_u32 s36, s36, s{s_hd}")
    a("s_mul_i32 s36, s36, 1280")
    a(f"s_add_u32 s36, s36, {QF}")
    for i in range(4):
        a(f"buffer_load_dwordx4 {vr(A_Q+8*i,4)}, v{vK1}, s[{SWS}:{SWS+3}], s36 offen")
        a(f"buffer_load_dwordx2 {vr(A_Q+8*i+4,2)}, v{vK2}, s[{SWS}:{SWS+3}], s36 offen")
        if i < 3:
            a("s_add_u32 s36, s36, 1280")
    s_kp, s_vp = 37, 38
    a(f"s_mul_i32 s{s_kp}, s{s_kh}, {32*1280}")
    a(f"s_add_u32 s{s_kp}, s{s_kp}, {KF}")
    a(f"s_mul_i32 s{s_vp}, s{s_kh}, {32*1344}")
    a(f"s_add_u32 s{s_vp}, s{s_vp}, {VF}")

    def loadK(st):
        a(f"buffer_load_dwordx4 {vr(A_K+8*st,4)}, v{vK1}, s[{SWS}:{SWS+3}], s{s_kp} offen")
        a(f"buffer_load_dwordx2 {vr(A_K+8*st+4,2)}, v{vK2}, s[{SWS}:{SWS+3}], s{s_kp} offen")
        a(f"s_add_u32 s{s_kp}, s{s_kp}, 1280")

    def loadV(st):
        a(f"buffer_load_dwordx4 {vr(A_V+8*st,4)}, v{vV}, s[{SWS}:{SWS+3}], s{s_vp} offen")
        a(f"buffer_load_dwordx4 {vr(A_V+8*st+4,4)}, v{vV}, s[{SWS}:{SWS+3}], s{s_vp} offen offset:672")
        a(f"s_add_u32 s{s_vp}, s{s_vp}, 1344")
    loadK(0)
    loadV(0)
    loadK(1)
    for i in range(4):
        a(f"v_mov_b32 v{A_Q+8*i+6}, 0")
        a(f"v_mov_b32 v{A_Q+8*i+7}, 0")
    for st in range(2):
        a(f"v_mov_b32 v{A_K+8*st+6}, 0")
        a(f"v_mov_b32 v{A_K+8*st+7}, 0")
    for r in range(64):
        a(f"v_mov_b32 v{A_O+r}, 0")
    for r in range(16):
        a(f"v_mov_b32 v{A_P+r}, 0")
    for r in range(8):
        a(f"v_mov_b32 v{A_V+8+r}, 0")
    for r in range(4):
        a(f"v_mov_b32 v{A_M+r}, 0")
    a("s_waitcnt lgkmcnt(0)")
    for r in range(65, 96):
        a(f"s_max_u32 s64, s64, s{r}")
    for r in range(45, 60):
        a(f"s_max_u32 s44, s44, s{r}")
    a("s_load_dwordx16 s[80:95], s[12:13], 192")
    a("s_waitcnt lgkmcnt(0)")
    for r in range(80, 96):
        a(f"s_max_u32 s44, s44, s{r}")
    a("s_waitcnt vmcnt(6)")
    for i in range(4):
        a(f"v_mov_b32 v{T+i}, 0")
    for r in range(6):
        for i in range(4):
            a(f"v_dot2_f32_bf16 v{T+i}, v{A_Q+8*i+r}, v{A_Q+8*i+r}, v{T+i}")
    for i in range(4):
        a(f"v_mov_b32 v{T+4+i}, v{T+i}")
    for i in range(4):
        a(f"v_permlane32_swap_b32 v{T+i}, v{T+4+i}")
    for i in range(4):
        a(f"v_add_f32 v{T+i}, v{T+i}, v{T+4+i}")
    a(f"v_max3_f32 v{T}, v{T}, v{T+1}, v{T+2}")
    a(f"v_max_f32 v{T}, v{T}, v{T+3}")
    a(f"v_mul_f32 v{T}, s64, v{T}")
    a(f"v_mov_b32 v{T+1}, {hx(f2u(3600.0/1.05))}")
    a(f"v_cmp_nle_f32 vcc, v{T}, v{T+1}")
    a(f"s_cmp_gt_u32 s44, {hx(f2u(2.0**80))}")
    a(f"s_cbranch_scc1 {pfx}_slow")
    a(f"s_cbranch_vccnz {pfx}_slow")

    def qk(m, sb, ks, i):
        if m == 0:
            mfma32(a, A_S + 16 * sb, A_K + 8 * ks, A_Q + 8 * i, "0")
        else:
            mfma32(a, A_S + 16 * sb, A_K + 8 * ks + 4, A_Q + 8 * i + 4)

    def pv(m, pb, vs, i):
        mfma32(a, A_O + 16 * i, A_V + 8 * vs + 4 * m, A_P + 8 * pb + 4 * m)

    a("s_waitcnt vmcnt(4)")
    qk(0, 0, 0, 0)
    qk(1, 0, 0, 0)
    stamp(a, "attn")
    a("s_mov_b32 s39, 16")
    a("s_nop 10")
    a.raw(".p2align 6")
    a.label(f"{pfx}_loop")
    for kk in range(2):
        for i in range(4):
            cur = i & 1
            S = A_S + 16 * cur
            P = A_P + 8 * cur
            nks, ni = (kk, i + 1) if i < 3 else (kk ^ 1, 0)
            pvs, pi = (kk, i - 1) if i > 0 else (kk ^ 1, 3)
            if i == 1:
                a("s_waitcnt vmcnt(2)")
            if i == 3:
                a("s_waitcnt vmcnt(2)")
            qk(0, cur ^ 1, nks, ni)
            for e in range(0, 4):
                a(f"v_exp_f32 v{S+e}, v{S+e}")
            qk(1, cur ^ 1, nks, ni)
            if i == 1:
                loadV(kk ^ 1)
            if i == 3:
                loadK(kk)
            for e in range(4, 8):
                a(f"v_exp_f32 v{S+e}, v{S+e}")
            pv(0, cur ^ 1, pvs, pi)
            for e in range(8, 12):
                a(f"v_exp_f32 v{S+e}, v{S+e}")
            for j in range(0, 2):
                a(f"v_cvt_pk_bf16_f32 v{P+j}, v{S+2*j}, v{S+2*j+1}")
            pv(1, cur ^ 1, pvs, pi)
            for e in range(12, 16):
                a(f"v_exp_f32 v{S+e}, v{S+e}")
            for j in range(2, 8):
                a(f"v_cvt_pk_bf16_f32 v{P+j}, v{S+2*j}, v{S+2*j+1}")
    a("s_sub_u32 s39, s39, 1")
    a("s_cmp_lg_u32 s39, 0")
    a(f"s_cbranch_scc1 {pfx}_loop")
    pv(0, 1, 1, 3)
    pv(1, 1, 1, 3)
    stamp(a, "attn")
    a(f"s_branch {pfx}_epi")

    a.label(f"{pfx}_slow")
    for r in range(4):
        a(f"v_mov_b32 v{A_M+r}, {hx(f2u(-1e30))}")
    a("s_mov_b32 s39, 32")
    a(f"s_sub_u32 s{s_kp}, s{s_kp}, 1280")
    a.label(f"{pfx}_sloop")
    a("s_waitcnt vmcnt(0)")
    for i in range(4):
        S, P, M = A_S, A_P, A_M + i
        qk(0, 0, 0, i)
        qk(1, 0, 0, i)
        a(f"v_max3_f32 v{T}, v{S}, v{S+1}, v{S+2}")
        for e in range(3, 15, 2):
            a(f"v_max3_f32 v{T}, v{T}, v{S+e}, v{S+e+1}")
        a(f"v_max_f32 v{T}, v{T}, v{S+15}")
        a(f"v_mov_b32 v{T+1}, v{T}")
        a(f"v_permlane32_swap_b32 v{T}, v{T+1}")
        a(f"v_max3_f32 v{T}, v{T}, v{T+1}, v{M}")
        a(f"v_sub_f32 v{T+1}, v{M}, v{T}")
        a(f"v_exp_f32 v{T+1}, v{T+1}")
        a(f"v_mov_b32 v{M}, v{T}")
        for e in range(16):
            a(f"v_sub_f32 v{S+e}, v{S+e}, v{T}")
            a(f"v_exp_f32 v{S+e}, v{S+e}")
        for j in range(8):
            a(f"v_cvt_pk_bf16_f32 v{P+j}, v{S+2*j}, v{S+2*j+1}")
        for e in range(16):
            a(f"v_mul_f32 v{A_O+16*i+e}, v{A_O+16*i+e}, v{T+1}")
        pv(0, 0, 0, i)
        pv(1, 0, 0, i)
    loadK(0)
    loadV(0)
    a("s_sub_u32 s39, s39, 1")
    a("s_cmp_lg_u32 s39, 0")
    a(f"s_cbranch_scc1 {pfx}_sloop")

    a.label(f"{pfx}_epi")
    a("s_waitcnt vmcnt(0)")
    vW, vR = T, T + 1
    a(f"s_mul_i32 s40, s{s_w}, 6656")
    a(f"s_xor_b32 s41, s{s_w}, 1")
    a("s_mul_i32 s41, s41, 6656")
    a(f"v_add_u32 v{vW}, s40, v{vK1}")
    a(f"v_add_u32 v{vR}, s41, v{vK1}")
    a(f"v_lshlrev_b32 v{T+2}, 2, v{vLane}")
    a(f"v_add_u32 v{T+3}, s41, v{T+2}")
    a(f"v_add_u32 v{T+2}, s40, v{T+2}")
    a(f"s_cmp_eq_u32 s{s_kh}, 0")
    a(f"s_cbranch_scc1 {pfx}_e0")
    for t in range(2):
        for q in range(3):
            a(f"ds_write_b128 v{vW}, {vr(A_O+16*t+4*q,4)} offset:{(t*3+q)*1024}")
        a(f"ds_write_b32 v{T+2}, v{A_M+t} offset:{6144+t*256}")
    a("s_waitcnt lgkmcnt(0)")
    for t in range(2):
        for e in range(12):
            a(f"v_mov_b32 v{A_O+16*t+e}, v{A_O+16*(t+2)+e}")
        a(f"v_mov_b32 v{A_M+t}, v{A_M+t+2}")
    a(f"s_add_u32 s{s_hd}, s{s_hd}, 2")
    a(f"s_branch {pfx}_e1")
    a.label(f"{pfx}_e0")
    for t in range(2):
        for q in range(3):
            a(f"ds_write_b128 v{vW}, {vr(A_O+16*(t+2)+4*q,4)} offset:{(t*3+q)*1024}")
        a(f"ds_write_b32 v{T+2}, v{A_M+t+2} offset:{6144+t*256}")
    a("s_waitcnt lgkmcnt(0)")
    a.label(f"{pfx}_e1")
    a("s_barrier")
    for t in range(2):
        for q in range(3):
            a(f"ds_read_b128 {vr(A_S+16*t+4*q,4)}, v{vR} offset:{(t*3+q)*1024}")
        a(f"ds_read_b32 v{A_M+2+t}, v{T+3} offset:{6144+t*256}")
    a("s_waitcnt lgkmcnt(0)")
    a(f"s_mul_i32 s40, s{s_rt}, {40*1024}")
    a(f"s_add_u32 s40, s40, {OF}")
    a(f"v_mov_b32 v{T+12}, {hx(OOB)}")
    a(f"v_cmp_eq_u32 s[42:43], 0, v{vH}")
    for t in range(2):
        O, Pz, Ma, Mp = A_O + 16 * t, A_S + 16 * t, A_M + t, A_M + 2 + t
        a(f"v_max_f32 v{T+4}, v{Ma}, v{Mp}")
        a(f"v_sub_f32 v{T+5}, v{Ma}, v{T+4}")
        a(f"v_sub_f32 v{T+6}, v{Mp}, v{T+4}")
        a(f"v_exp_f32 v{T+5}, v{T+5}")
        a(f"v_exp_f32 v{T+6}, v{T+6}")
        for e in range(12):
            a(f"v_mul_f32 v{O+e}, v{O+e}, v{T+5}")
            a(f"v_fmac_f32 v{O+e}, v{Pz+e}, v{T+6}")
        a(f"v_mov_b32 v{T+7}, v{O+8}")
        a(f"v_mov_b32 v{T+8}, v{O+8}")
        a(f"v_permlane32_swap_b32 v{T+7}, v{T+8}")
        a(f"v_rcp_f32 v{T+8}, v{T+8}")
        for e in range(12):
            a(f"v_mul_f32 v{O+e}, v{O+e}, v{T+8}")
        for q in range(3):
            a(f"v_cvt_pk_bf16_f32 v{O+4*q}, v{O+4*q}, v{O+4*q+1}")
            a(f"v_cvt_pk_bf16_f32 v{O+4*q+1}, v{O+4*q+2}, v{O+4*q+3}")
        a(f"s_add_u32 s41, s{s_hd}, {t}")
        a("s_mul_i32 s41, s41, 20")
        for q in range(3):
            k, off = T + 9, T + 10
            a(f"v_lshlrev_b32 v{k}, 2, v{vH}")
            a(f"v_add_u32 v{k}, s41, v{k}")
            if q:
                a(f"v_add_u32 v{k}, {8*q}, v{k}")
            a(f"v_lshrrev_b32 v{off}, 3, v{k}")
            a(f"v_lshlrev_b32 v{off}, 9, v{off}")
            a(f"v_lshl_add_u32 v{off}, v{vN}, 4, v{off}")
            a(f"v_and_b32 v{k}, 4, v{k}")
            a(f"v_lshl_add_u32 v{off}, v{k}, 1, v{off}")
            if q == 2:
                a(f"v_cndmask_b32 v{off}, v{T+12}, v{off}, s[42:43]")
            a(f"buffer_store_dwordx2 {vr(O+4*q,2)}, v{off}, s[{SWS}:{SWS+3}], s40 offen")


def gen_attn():
    a = Asm()
    a.label("attn_kernel")
    a("s_cmp_ge_u32 s2, 256")
    a("s_cbranch_scc1 attn_end")
    stamp_begin(a, "attn")
    gen_attn_body(a, "attn", 2)
    stamp_end(a, "attn", 28, 32, 200)
    a.label("attn_end")
    a("s_endpgm")
    return a.finish(), ("attn_kernel", 256, 256, 26624, 256 if STAMP else 216)


R_ACC, R_A, R_B, R_T = 16, 112, 160, 208


def typer_core(a, pfx, NT, NS, vTr, vWo, vB, s_w, srd_of_tile, goff, s_bp, SWS, tr2):
    SLOT = 4 * NT * 1024
    s_g0, s_g1, gstep = goff
    s_m = 60

    def dma(stage):
        slot = stage % 3
        for t in range(NT):
            sr, grp, tt = srd_of_tile(t)
            a(f"s_add_u32 m0, s{s_m}, {slot*SLOT + t*1024}")
            a(f"s_add_u32 s61, s{s_g0 if grp == 0 else s_g1}, {stage*gstep + tt*64}")
            a(f"buffer_load_dwordx4 v{vWo}, s[{sr}:{sr+3}], s61 offen lds")

    def bload(stage):
        st = stage % 3
        a(f"s_add_u32 s61, s{s_bp}, {stage*4096}")
        for j in range(4):
            a(f"buffer_load_dwordx4 {vr(R_B+st*16+j*4,4)}, v{vB}, s[{SWS}:{SWS+3}], s61 offen offset:{j*1024}")

    def reads(stage, j):
        buf = (stage * 4 + j) & 1
        slot = stage % 3
        base = (slot & 1) * SLOT + j * NT * 1024
        va = vTr + (slot >> 1)
        out = []
        for t in range(NT):
            r = R_A + buf * 24 + t * 4
            out.append(f"ds_read_b64_tr_b16 {vr(r,2)}, v{va} offset:{base + t*1024}")
            out.append(f"ds_read_b64_tr_b16 {vr(r+2,2)}, v{va} offset:{base + t*1024 + tr2}")
        return out

    def mfmas(stage, j, inter):
        buf = (stage * 4 + j) & 1
        inter = list(inter)
        for t in range(NT):
            first = stage == 0 and j == 0
            mfma32(a, R_ACC + 16 * t, R_A + buf * 24 + t * 4, R_B + (stage % 3) * 16 + j * 4, "0" if first else None)
            for _ in range(2):
                if inter:
                    a(inter.pop(0))
        for x in inter:
            a(x)

    a(f"s_mul_i32 s{s_m}, s{s_w}, {NT*1024}")
    a(f"v_add_u32 v{vTr+1}, {2*SLOT}, v{vTr}")
    per = NT + 4
    for st in range(3):
        dma(st)
        bload(st)
    a(f"s_waitcnt vmcnt({2*per})")
    a("s_barrier")
    for x in reads(0, 0):
        a(x)
    for i in range(NS):
        for j in range(3):
            a("s_waitcnt lgkmcnt(0)")
            mfmas(i, j, reads(i, j + 1))
        a("s_waitcnt lgkmcnt(0)")
        if i + 1 < NS:
            if i + 2 < NS:
                a(f"s_waitcnt vmcnt({per})")
            else:
                a("s_waitcnt vmcnt(0)")
            a("s_barrier")
            if i + 3 < NS:
                dma(i + 3)
            mfmas(i, 3, reads(i + 1, 0))
            if i + 3 < NS:
                bload(i + 3)
        else:
            mfmas(i, 3, [])


def gen_gateup_body(a, pfx, s_wg):
    s_w, s_rb, s_cb = 32, 33, 34
    SW1, SW3, SWS = 16, 20, 28
    vLane, vN, vH, vWo, vB, vTr = 1, 2, 3, 4, 5, 6
    T = R_T
    a("s_load_dwordx4 s[4:7], s[0:1], 48")
    a("s_load_dwordx2 s[12:13], s[0:1], 88")
    lane_setup(a, T, vLane, vN, vH, s_w)
    a(f"s_and_b32 s3, s{s_wg}, 7")
    a(f"s_lshr_b32 s35, s{s_wg}, 3")
    a("s_and_b32 s36, s3, 1")
    a("s_lshl_b32 s36, s36, 3")
    a("s_and_b32 s37, s35, 7")
    a(f"s_add_u32 s{s_rb}, s36, s37")
    a("s_lshr_b32 s36, s3, 1")
    a("s_lshl_b32 s36, s36, 2")
    a("s_lshr_b32 s37, s35, 3")
    a(f"s_add_u32 s{s_cb}, s36, s37")
    a(f"v_lshrrev_b32 v{T}, 2, v{vLane}")
    a(f"v_mul_u32_u24 v{vWo}, 3072, v{T}")
    a(f"v_and_b32 v{T}, 3, v{vLane}")
    a(f"v_lshl_add_u32 v{vWo}, v{T}, 4, v{vWo}")
    tr_base(a, vTr, T, vLane, vH, 9)
    a(f"v_lshlrev_b32 v{vB}, 4, v{vLane}")
    a(f"s_mul_i32 s40, s{s_w}, {16*3072}")
    a(f"s_mul_i32 s41, s{s_cb}, 192")
    a("s_add_u32 s40, s40, s41")
    a(f"s_lshl_b32 s42, s{s_rb}, 2")
    a(f"s_add_u32 s42, s42, s{s_w}")
    a(f"s_mul_i32 s43, s42, {40*1024}")
    if XF:
        a(f"s_add_u32 s43, s43, {XF}")
    a("s_waitcnt lgkmcnt(0)")
    srd(a, SW1, 4, 1966080)
    srd(a, SW3, 6, 1966080)
    srd(a, SWS, 12, WS_END)
    typer_core(a, pfx, 6, 10, vTr, vWo, vB, s_w,
               lambda t: (SW1, 0, t) if t < 3 else (SW3, 0, t - 3), (40, 40, 64 * 3072), 43, SWS, 256)
    a(f"s_mov_b32 s44, {hx(f2u(-math.log2(math.e)))}")
    a(f"s_mul_i32 s45, s42, {96*1024}")
    a(f"s_mul_i32 s46, s{s_cb}, {6*1024}")
    a("s_add_u32 s45, s45, s46")
    a(f"s_add_u32 s45, s45, {HF}")
    for t in range(3):
        g, u = R_ACC + 16 * t, R_ACC + 16 * (t + 3)
        E = R_A
        for e in range(16):
            a(f"v_mul_f32 v{E+e}, s44, v{g+e}")
        for e in range(16):
            a(f"v_exp_f32 v{E+e}, v{E+e}")
        for e in range(16):
            a(f"v_add_f32 v{E+e}, 1.0, v{E+e}")
        for e in range(16):
            a(f"v_rcp_f32 v{E+e}, v{E+e}")
        for e in range(16):
            a(f"v_mul_f32 v{g+e}, v{g+e}, v{u+e}")
        for e in range(16):
            a(f"v_mul_f32 v{g+e}, v{g+e}, v{E+e}")
        for j in range(8):
            a(f"v_cvt_pk_bf16_f32 v{u+j}, v{g+2*j}, v{g+2*j+1}")
        for hf in range(2):
            o = (2 * t + hf) * 1024
            if o < 4096:
                a(f"buffer_store_dwordx4 {vr(u+4*hf,4)}, v{vB}, s[{SWS}:{SWS+3}], s45 offen offset:{o}")
            else:
                a(f"s_add_u32 s46, s45, {o}")
                a(f"buffer_store_dwordx4 {vr(u+4*hf,4)}, v{vB}, s[{SWS}:{SWS+3}], s46 offen")


def gen_gateup():
    a = Asm()
    a.label("gateup_kernel")
    a("s_cmp_ge_u32 s2, 256")
    a("s_cbranch_scc1 gateup_end")
    stamp_begin(a, "gateup")
    gen_gateup_body(a, "gu", 2)
    stamp_end(a, "gateup", 28, 32, 240)
    a.label("gateup_end")
    a("s_endpgm")
    return a.finish(), ("gateup_kernel", 256, 256, 73728, 256 if STAMP else 216)


def gen_down_body(a, pfx, s_wg):
    s_w, s_rb, s_cb, s_kq = 32, 33, 34, 35
    SW, SWS = 16, 28
    vLane, vN, vH, vWo, vB, vTr = 1, 2, 3, 4, 5, 6
    T = R_T
    a("s_load_dwordx2 s[4:5], s[0:1], 64")
    a("s_load_dwordx2 s[12:13], s[0:1], 88")
    lane_setup(a, T, vLane, vN, vH, s_w)
    a(f"s_and_b32 s3, s{s_wg}, 7")
    a(f"s_lshr_b32 s38, s{s_wg}, 3")
    a("s_and_b32 s36, s3, 1")
    a("s_lshl_b32 s36, s36, 3")
    a("s_and_b32 s37, s38, 7")
    a(f"s_add_u32 s{s_rb}, s36, s37")
    a(f"s_lshr_b32 s{s_kq}, s3, 1")
    a(f"s_lshr_b32 s{s_cb}, s38, 3")
    a(f"v_lshrrev_b32 v{T}, 2, v{vLane}")
    a(f"v_mul_u32_u24 v{vWo}, 1280, v{T}")
    a(f"v_and_b32 v{T}, 3, v{vLane}")
    a(f"v_lshl_add_u32 v{vWo}, v{T}, 4, v{vWo}")
    tr_base(a, vTr, T, vLane, vH, 8)
    a(f"v_lshlrev_b32 v{vB}, 4, v{vLane}")
    a(f"s_mul_i32 s40, s{s_kq}, {384*1280}")
    a(f"s_mul_i32 s41, s{s_w}, {16*1280}")
    a("s_add_u32 s40, s40, s41")
    a(f"s_mul_i32 s41, s{s_cb}, 320")
    a("s_add_u32 s40, s40, s41")
    a(f"s_lshl_b32 s42, s{s_rb}, 2")
    a(f"s_add_u32 s42, s42, s{s_w}")
    a(f"s_mul_i32 s43, s42, {96*1024}")
    a(f"s_mul_i32 s41, s{s_kq}, {24*1024}")
    a("s_add_u32 s43, s43, s41")
    a(f"s_add_u32 s43, s43, {HF}")
    a("s_waitcnt lgkmcnt(0)")
    srd(a, SW, 4, 1966080)
    srd(a, SWS, 12, WS_END)
    typer_core(a, pfx, 5, 6, vTr, vWo, vB, s_w, lambda t: (SW, 0, t), (40, 40, 64 * 1280), 43, SWS, 512)
    a(f"s_lshl_b32 s45, s{s_kq}, 6")
    a("s_add_u32 s45, s45, s42")
    a("s_mul_i32 s45, s45, 20")
    a(f"s_mul_i32 s46, s{s_cb}, 5")
    a("s_add_u32 s45, s45, s46")
    a("s_lshl_b32 s45, s45, 12")
    a(f"s_add_u32 s45, s45, {FP}")
    for t in range(5):
        for g in range(4):
            a(f"buffer_store_dwordx4 {vr(R_ACC+16*t+4*g,4)}, v{vB}, s[{SWS}:{SWS+3}], s45 offen offset:{g*1024}")
        if t < 4:
            a("s_add_u32 s45, s45, 4096")


def gen_down():
    a = Asm()
    a.label("down_kernel")
    a("s_cmp_ge_u32 s2, 256")
    a("s_cbranch_scc1 down_end")
    stamp_begin(a, "down")
    gen_down_body(a, "dn", 2)
    stamp_end(a, "down", 28, 32, 240)
    a.label("down_end")
    a("s_endpgm")
    return a.finish(), ("down_kernel", 256, 256, 61440, 256 if STAMP else 216)


def gen_final():
    a = Asm()
    a.label("final_kernel")
    s_w, s_rb, s_cb = 32, 33, 34
    SX, SW, SO, SWS = 16, 20, 24, 28
    vLane, vN, vH = 1, 2, 3
    vB, vWo, vXo, vTr, vSlab, vRd = 4, 5, 6, 7, 8, 9
    T = K_T
    a("s_cmp_ge_u32 s2, 224")
    a("s_cbranch_scc1 final_end")
    stamp_begin(a, "final")
    a("s_load_dwordx2 s[4:5], s[0:1], 0")
    a("s_load_dwordx2 s[6:7], s[0:1], 32")
    a("s_load_dwordx2 s[8:9], s[0:1], 72")
    a("s_load_dwordx2 s[12:13], s[0:1], 88")
    lane_setup(a, T, vLane, vN, vH, s_w)
    a("s_and_b32 s3, s2, 7")
    a("s_lshr_b32 s35, s2, 3")
    a("s_and_b32 s36, s35, 3")
    a("s_lshl_b32 s3, s3, 2")
    a(f"s_add_u32 s{s_rb}, s3, s36")
    a(f"s_lshr_b32 s{s_cb}, s35, 2")
    a(f"v_lshlrev_b32 v{vB}, 4, v{vLane}")
    a(f"v_lshrrev_b32 v{T}, 2, v{vLane}")
    a(f"v_mul_u32_u24 v{vWo}, 1280, v{T}")
    a(f"v_and_b32 v{T}, 3, v{vLane}")
    a(f"v_lshl_add_u32 v{vWo}, v{T}, 4, v{vWo}")
    a(f"v_mul_u32_u24 v{vXo}, 1280, v{vN}")
    a(f"v_lshl_add_u32 v{vXo}, v{vH}, 3, v{vXo}")
    tr_base(a, vTr, T, vLane, vH, 9)
    a(f"s_mul_i32 s37, s{s_w}, {WAVE_LDS}")
    a(f"s_add_u32 s37, s37, {LDS_STG}")
    a(f"v_add_u32 v{vTr}, s37, v{vTr}")
    a(f"v_mul_u32_u24 v{vRd}, 400, v{vN}")
    a(f"v_lshl_add_u32 v{vRd}, v{vH}, 4, v{vRd}")
    a(f"v_add_u32 v{vSlab}, s37, v{vRd}")
    a(f"s_lshl_b32 s38, s{s_w}, 5")
    a(f"v_add_u32 v{vRd}, s38, v{vRd}")
    a(f"v_add_u32 v{vRd+1}, {2*WAVE_LDS}, v{vRd}")
    a("s_waitcnt lgkmcnt(0)")
    srd(a, SX, 4, 2621440)
    srd(a, SW, 6, 819200)
    srd(a, SO, 8, 2621440)
    srd(a, SWS, 12, WS_END)
    a(f"s_mul_i32 s39, s{s_rb}, {2*40*1024}")
    a(f"s_mul_i32 s40, s{s_w}, {10*1024}")
    a("s_add_u32 s39, s39, s40")
    a(f"s_add_u32 s39, s39, {OF}")
    a(f"s_mul_i32 s41, s{s_w}, {160*1280}")
    a(f"s_mul_i32 s42, s{s_cb}, 192")
    a("s_add_u32 s41, s41, s42")
    for s in range(10):
        for ct in range(3):
            a(f"s_add_u32 m0, s37, {(3*s+ct)*1024}")
            a(f"s_add_u32 s44, s41, {s*16*1280 + ct*64}")
            a(f"buffer_load_dwordx4 v{vWo}, s[{SW}:{SW+3}], s44 offen lds")
        for rt in range(2):
            a(f"s_add_u32 s44, s39, {rt*40*1024 + s*1024}")
            a(f"buffer_load_dwordx4 {vr(K_X+rt*40+s*4,4)}, v{vB}, s[{SWS}:{SWS+3}], s44 offen")
    a(f"s_lshl_b32 s45, s{s_w}, 6")
    a(f"s_lshl_b32 s46, s{s_rb}, 1")
    a("s_add_u32 s45, s45, s46")
    a("s_mul_i32 s45, s45, 20")
    a(f"s_mul_i32 s46, s{s_cb}, 3")
    a("s_add_u32 s45, s45, s46")
    a("s_lshl_b32 s45, s45, 12")
    a(f"s_add_u32 s45, s45, {FP}")
    for rt in range(2):
        for ct in range(3):
            a(f"s_add_u32 s44, s45, {(rt*20+ct)*4096}")
            for g in range(4):
                a(f"buffer_load_dwordx4 {vr(K_ACC+(rt*3+ct)*16+4*g,4)}, v{vB}, s[{SWS}:{SWS+3}], s44 offen offset:{g*1024}")
    a(f"s_mul_i32 s47, s{s_rb}, {64*1280}")
    a("s_add_u32 s47, s47, s42")
    a(f"s_lshl_b32 s46, s{s_w}, 4")
    a("s_add_u32 s47, s47, s46")
    a(f"s_add_u32 s48, s47, {32*1280}")
    XR = T + 4
    for rt in range(2):
        for ct in range(3):
            a(f"buffer_load_dwordx2 {vr(XR+(rt*3+ct)*2,2)}, v{vXo}, s[{SX}:{SX+3}], s{47+rt} offen offset:{ct*64}")
    a("s_waitcnt vmcnt(0)")
    stamp(a, "final")
    typek_mfma_phase(a, vTr, zero=False)
    stamp(a, "final")
    typek_reduce(a, vSlab, vRd, s_w)
    stamp(a, "final")
    a("s_mov_b32 s49, 0xffff0000")
    for ct in range(3):
        if ct == 2:
            a(f"s_cmp_eq_u32 s{s_cb}, 6")
            a("s_cbranch_scc1 final_skip")
        for rt in range(2):
            r = K_X + (rt * 3 + ct) * 4
            xr = XR + (rt * 3 + ct) * 2
            for e in range(2):
                a(f"v_lshlrev_b32 v{T}, 16, v{xr+e}")
                a(f"v_and_b32 v{T+1}, s49, v{xr+e}")
                a(f"v_pk_add_f32 {vr(r+2*e,2)}, {vr(r+2*e,2)}, {vr(T,2)}")
            a(f"v_cvt_pk_bf16_f32 v{r}, v{r}, v{r+1}")
            a(f"v_cvt_pk_bf16_f32 v{r+1}, v{r+2}, v{r+3}")
            a(f"buffer_store_dwordx2 {vr(r,2)}, v{vXo}, s[{SO}:{SO+3}], s{47+rt} offen offset:{ct*64}")
    a.label("final_skip")
    stamp_end(a, "final", SWS, s_w, 240)
    a.label("final_end")
    a("s_endpgm")
    return a.finish(), ("final_kernel", 224, 256, 131072, 256)


KERNELS = {"qkv": gen_qkv, "gateup": gen_gateup, "attn": gen_attn, "down": gen_down, "final": gen_final}
HEADER = open("parallel_sum__grouped_kv_mqa__glu_gated_swiglu__prompt.s.ref").read().split("; Override launch")[0] if False else ""


def build(order):
    texts, launches = {}, []
    for k in order:
        t, info = KERNELS[k]()
        texts[info[0]] = (t, info)
        launches.append(info)
    out = "; generated by dev/gen.py -- LN + MQA attention + SwiGLU block for gfx950\n"
    for name, grid, block, lds, vg in launches:
        out += f"; @launch kernel={name} grid=({grid},1,1) block=({block},1,1) lds={lds}\n"
    out += '.amdgcn_target "amdgcn-amd-amdhsa--gfx950"\n.text\n'
    for name, (t, info) in texts.items():
        out += kernel_header(name) + t
    out += '.section .rodata,"a"\n'
    for name, (t, info) in texts.items():
        out += kernel_desc(name, info[4])
    return out


if __name__ == "__main__":
    order = sys.argv[2].split(",") if len(sys.argv) > 2 else list(KERNELS)
    open(sys.argv[1], "w").write(build(order))
```

```python
import math
import struct
import sys

from asmlib import Asm

XF = 0x0
QF = 0x280000
KF = 0x500000
VF = 0x514000
KN = 0x52A000
OF = 0x530000
HF = 0x800000
FP = 0x1000000
WS_END = 0x2500000
TS = 0x2400000
import os
STAMP = os.environ.get("STAMP", "")


_stamp_n = {}


def stamp(a, name, vreg=255):
    if name in STAMP.split(","):
        i = _stamp_n.get(name, 0)
        _stamp_n[name] = i + 1
        a("s_memtime s[100:101]")
        a("s_waitcnt lgkmcnt(0)")
        a(f"v_writelane_b32 v{vreg}, s100, {i}")


def stamp_begin(a, name, vreg=255):
    if name in STAMP.split(","):
        a("s_memrealtime s[98:99]")
        a("s_waitcnt lgkmcnt(0)")
        a(f"v_writelane_b32 v{vreg}, s98, 14")
    stamp(a, name, vreg)


def stamp_end(a, name, sws, s_w, vtmp, s_wg=2, vreg=255):
    if name in STAMP.split(","):
        a("s_waitcnt vmcnt(0) lgkmcnt(0)")
        stamp(a, name, vreg)
        a("s_memrealtime s[98:99]")
        a("s_waitcnt lgkmcnt(0)")
        a(f"v_writelane_b32 v{vreg}, s98, 15")
        a(f"s_lshl_b32 s94, s{s_wg}, 2")
        a(f"s_add_u32 s94, s94, s{s_w}")
        a("s_lshl_b32 s94, s94, 6")
        a(f"s_add_u32 s94, s94, {TS}")
        a(f"v_and_b32 v{vtmp}, 63, v0")
        a(f"v_lshlrev_b32 v{vtmp}, 2, v{vtmp}")
        a("s_mov_b64 s[98:99], exec")
        a("s_mov_b64 exec, 0xffff")
        a(f"buffer_store_dword v{vreg}, v{vtmp}, s[{sws}:{sws+3}], s94 offen")
        a("s_mov_b64 exec, s[98:99]")


QSCALE = (20 ** -0.5) * math.log2(math.e)


def f2u(x):
    return struct.unpack("<I", struct.pack("<f", x))[0]


def hx(x):
    return "0x%x" % x


def srd(a, d, base, size):
    a(f"s_mov_b32 s{d}, s{base}")
    a(f"s_and_b32 s{d+1}, s{base+1}, 0xffff")
    a(f"s_mov_b32 s{d+2}, {hx(size)}")
    a(f"s_mov_b32 s{d+3}, 0x00020000")


def vr(b, n=1):
    return f"v{b}" if n == 1 else f"v[{b}:{b+n-1}]"


def mfma32(a, d, x, y, c=None):
    cs = vr(d, 16) if c is None else c
    a(f"v_mfma_f32_32x32x16_bf16 {vr(d,16)}, {vr(x,4)}, {vr(y,4)}, {cs}")


def kernel_header(name):
    return f""".globl {name}
.p2align 8
.type {name},@function
"""


def kernel_desc(name, vgprs, sgprs=102):
    acc = (vgprs + 3) // 4 * 4
    return f""".p2align 6
.amdhsa_kernel {name}
  .amdhsa_next_free_vgpr {vgprs}
  .amdhsa_next_free_sgpr {sgprs}
  .amdhsa_accum_offset {acc}
  .amdhsa_group_segment_fixed_size 0
  .amdhsa_kernarg_size 96
  .amdhsa_user_sgpr_count 2
  .amdhsa_user_sgpr_kernarg_segment_ptr 1
  .amdhsa_system_sgpr_workgroup_id_x 1
.end_amdhsa_kernel
"""


K_X = 16
K_ACC = 96
K_A = 192
K_T = 216
WAVE_LDS = 30720
LDS_STG = 8192


def typek_mfma_phase(a, vtr, zero=True):
    def reads(s, buf):
        for ct in range(3):
            o = (3 * s + ct) * 1024
            r = K_A + buf * 12 + ct * 4
            a(f"ds_read_b64_tr_b16 {vr(r,2)}, v{vtr} offset:{o}")
            a(f"ds_read_b64_tr_b16 {vr(r+2,2)}, v{vtr} offset:{o+256}")
    reads(0, 0)
    for s in range(10):
        if s + 1 < 10:
            reads(s + 1, (s + 1) & 1)
            a("s_waitcnt lgkmcnt(6)")
        else:
            a("s_waitcnt lgkmcnt(0)")
        for ct in range(3):
            for rt in range(2):
                d = K_ACC + (rt * 3 + ct) * 16
                mfma32(a, d, K_A + (s & 1) * 12 + ct * 4, K_X + rt * 40 + s * 4, "0" if (s == 0 and zero) else None)


def typek_reduce(a, vslab, vrd, s_w):
    for rt in range(2):
        for ct in range(3):
            for g in range(4):
                r = K_ACC + (rt * 3 + ct) * 16 + g * 4
                a(f"ds_write_b128 v{vslab}, {vr(r,4)} offset:{rt*12800 + ct*128 + g*32}")
    a("s_waitcnt lgkmcnt(0)")
    a("s_barrier")
    for j in range(4):
        for rt in range(2):
            for ct in range(3):
                t = rt * 3 + ct
                base = LDS_STG + j * WAVE_LDS + rt * 12800 + ct * 128
                if j < 2:
                    a(f"ds_read_b128 {vr(K_ACC+(j*6+t)*4,4)}, v{vrd} offset:{base}")
                else:
                    a(f"ds_read_b128 {vr(K_ACC+(j*6+t)*4,4)}, v{vrd+1} offset:{base-2*WAVE_LDS}")
    a("s_waitcnt lgkmcnt(0)")
    for t in range(6):
        for e in range(0, 4, 2):
            r0 = K_ACC + t * 4 + e
            a(f"v_pk_add_f32 {vr(r0,2)}, {vr(r0,2)}, {vr(r0+24,2)}")
            a(f"v_pk_add_f32 {vr(r0+48,2)}, {vr(r0+48,2)}, {vr(r0+72,2)}")
    for t in range(6):
        for e in range(0, 4, 2):
            r0 = K_ACC + t * 4 + e
            a(f"v_pk_add_f32 {vr(K_X+t*4+e,2)}, {vr(r0,2)}, {vr(r0+48,2)}")


def lane_setup(a, T, vLane, vN, vH, s_w):
    a(f"v_and_b32 v{vLane}, 63, v0")
    a(f"v_lshrrev_b32 v{T}, 6, v0")
    a(f"v_readfirstlane_b32 s{s_w}, v{T}")
    a(f"v_and_b32 v{vN}, 31, v0")
    a(f"v_bfe_u32 v{vH}, v0, 5, 1")


def tr_base(a, vTr, T, vLane, vH, hshift):
    a(f"v_lshlrev_b32 v{vTr}, {hshift}, v{vH}")
    a(f"v_bfe_u32 v{T}, v{vLane}, 2, 2")
    a(f"v_lshl_add_u32 v{vTr}, v{T}, 6, v{vTr}")
    a(f"v_bfe_u32 v{T}, v{vLane}, 4, 1")
    a(f"v_lshl_add_u32 v{vTr}, v{T}, 5, v{vTr}")
    a(f"v_and_b32 v{T}, 3, v{vLane}")
    a(f"v_lshl_add_u32 v{vTr}, v{T}, 3, v{vTr}")


def gen_qkv():
    a = Asm()
    a.label("qkv_kernel")
    ST = 0
    NB = 4096
    MX = 6144
    s_w, s_rb, s_cb = 32, 33, 34
    SX, SW, SKV, SWS = 16, 20, 24, 28
    vLane, vN, vH = 1, 2, 3
    vXo, vWo, vKo, vTr, vSlab, vRd = 4, 5, 6, 7, 8, 9
    vSt = 11
    T = K_T
    a("s_cmp_ge_u32 s2, 256")
    a("s_cbranch_scc1 qkv_end")
    stamp_begin(a, "qkv")
    a("s_load_dwordx4 s[4:7], s[0:1], 0")
    a("s_load_dwordx4 s[8:11], s[0:1], 16")
    a("s_load_dwordx2 s[12:13], s[0:1], 88")
    lane_setup(a, T, vLane, vN, vH, s_w)
    a("s_and_b32 s3, s2, 7")
    a("s_lshr_b32 s35, s2, 3")
    a("s_and_b32 s36, s35, 3")
    a("s_lshl_b32 s3, s3, 2")
    a(f"s_add_u32 s{s_rb}, s3, s36")
    a(f"s_lshr_b32 s{s_cb}, s35, 2")
    a(f"v_mul_u32_u24 v{vXo}, 1280, v{vN}")
    a(f"v_lshl_add_u32 v{vXo}, v{vH}, 4, v{vXo}")
    a(f"v_lshrrev_b32 v{T}, 2, v{vLane}")
    a(f"v_mul_u32_u24 v{vWo}, 1280, v{T}")
    a(f"v_and_b32 v{T}, 3, v{vLane}")
    a(f"v_lshl_add_u32 v{vWo}, v{T}, 4, v{vWo}")
    a(f"v_lshrrev_b32 v{T}, 4, v{vLane}")
    a(f"v_mul_u32_u24 v{vKo}, 40, v{T}")
    a(f"v_and_b32 v{T}, 15, v{vLane}")
    a(f"v_lshl_add_u32 v{vKo}, v{T}, 2, v{vKo}")
    tr_base(a, vTr, T, vLane, vH, 9)
    a(f"s_mul_i32 s37, s{s_w}, {WAVE_LDS}")
    a(f"s_add_u32 s37, s37, {LDS_STG}")
    a(f"v_add_u32 v{vTr}, s37, v{vTr}")
    a(f"v_mul_u32_u24 v{vRd}, 400, v{vN}")
    a(f"v_lshl_add_u32 v{vRd}, v{vH}, 4, v{vRd}")
    a(f"v_add_u32 v{vSlab}, s37, v{vRd}")
    a(f"s_lshl_b32 s38, s{s_w}, 5")
    a(f"v_add_u32 v{vRd}, s38, v{vRd}")
    a(f"v_add_u32 v{vRd+1}, {2*WAVE_LDS}, v{vRd}")
    a("s_waitcnt lgkmcnt(0)")
    srd(a, SX, 4, 2621440)
    srd(a, SW, 6, 819200)
    srd(a, SWS, 12, WS_END)
    a(f"s_cmp_eq_u32 s{s_cb}, 7")
    a("s_cselect_b32 s8, s10, s8")
    a("s_cselect_b32 s9, s11, s9")
    srd(a, SKV, 8, 25600)
    a(f"s_mul_i32 s39, s{s_rb}, {64*1280}")
    a(f"s_mul_i32 s40, s{s_w}, 320")
    a("s_add_u32 s39, s39, s40")
    a(f"s_add_u32 s40, s39, {32*1280}")
    for rt in range(2):
        for s in range(10):
            a(f"buffer_load_dwordx4 {vr(K_X+rt*40+s*4,4)}, v{vXo}, s[{SX}:{SX+3}], s{39+rt} offen offset:{32*s}")
    a(f"s_mul_i32 s41, s{s_w}, {160*1280}")
    a(f"s_mul_i32 s42, s{s_cb}, 192")
    a("s_add_u32 s41, s41, s42")
    a(f"s_mul_i32 s43, s{s_w}, {160*40}")

    def wq_dma(cts):
        for s in range(10):
            for ct in cts:
                a(f"s_add_u32 m0, s37, {(3*s+ct)*1024}")
                a(f"s_add_u32 s44, s41, {s*16*1280 + ct*64}")
                a(f"buffer_load_dwordx4 v{vWo}, s[{SW}:{SW+3}], s44 offen lds")

    def kv_dma(ct):
        for s in range(10):
            for qd in range(4):
                a(f"s_add_u32 m0, s37, {(3*s+ct)*1024 + qd*256}")
                a(f"s_add_u32 s44, s43, {(16*s+4*qd)*40}")
                a(f"buffer_load_dword v{vKo}, s[{SKV}:{SKV+3}], s44 offen lds")
    a(f"s_cmp_ge_u32 s{s_cb}, 6")
    a("s_cbranch_scc1 qkv_dma_b")
    wq_dma([0, 1, 2])
    a("s_waitcnt vmcnt(30)")
    a("s_branch qkv_dma_done")
    a.label("qkv_dma_b")
    a(f"s_cmp_eq_u32 s{s_cb}, 7")
    a("s_cbranch_scc1 qkv_dma_c")
    wq_dma([0, 1])
    kv_dma(2)
    a("s_waitcnt vmcnt(60)")
    a("s_branch qkv_dma_done")
    a.label("qkv_dma_c")
    kv_dma(0)
    a("s_waitcnt vmcnt(40)")
    a.label("qkv_dma_done")
    stamp(a, "qkv")
    vOne = T
    a(f"v_mov_b32 v{vOne}, 0x3f803f80")
    for i in range(8):
        a(f"v_mov_b32 v{T+2+i}, 0")
    for i in range(40):
        for rt in range(2):
            x = K_X + rt * 40 + i
            b = T + 2 + rt * 4 + (i & 1) * 2
            a(f"v_dot2_f32_bf16 v{b}, v{x}, v{vOne}, v{b}")
            a(f"v_dot2_f32_bf16 v{b+1}, v{x}, v{x}, v{b+1}")
    for rt in range(2):
        b = T + 2 + rt * 4
        a(f"v_pk_add_f32 {vr(b,2)}, {vr(b,2)}, {vr(b+2,2)}")
    a(f"v_lshlrev_b32 v{vSt}, 6, v{vN}")
    a(f"v_lshl_add_u32 v{T+10}, v{vH}, 3, v{vSt}")
    a(f"s_lshl_b32 s38, s{s_w}, 4")
    a(f"v_add_u32 v{T+10}, s38, v{T+10}")
    for rt in range(2):
        a(f"ds_write_b64 v{T+10}, {vr(T+2+rt*4,2)} offset:{ST + rt*2048}")
    a(f"v_mov_b32 v{T+11}, 0")
    a(f"ds_write_b32 v{T+11}, v{T+11} offset:{MX}")
    a("s_waitcnt lgkmcnt(0)")
    a("s_barrier")
    R = K_ACC
    for rt in range(2):
        for q in range(4):
            a(f"ds_read_b128 {vr(R+rt*16+q*4,4)}, v{vSt} offset:{ST + rt*2048 + q*16}")
    a("s_waitcnt lgkmcnt(0)")
    a(f"s_mov_b32 s45, {hx(f2u(1.0/640))}")
    a(f"s_mov_b32 s46, {hx(f2u(1e-5))}")
    for rt in range(2):
        b = R + rt * 16
        for step in (8, 4, 2):
            for e in range(0, step, 2):
                a(f"v_pk_add_f32 {vr(b+e,2)}, {vr(b+e,2)}, {vr(b+e+step,2)}")
        mu, sq, m_b, t0 = b, b + 1, b + 2, b + 3
        rr = T + 12 + rt * 4
        a(f"v_mul_f32 v{mu}, s45, v{mu}")
        a(f"v_mul_f32 v{sq}, s45, v{sq}")
        a(f"v_fma_f32 v{sq}, -v{mu}, v{mu}, v{sq}")
        a(f"v_max_f32 v{sq}, 0, v{sq}")
        a(f"v_cvt_pk_bf16_f32 v{m_b}, v{mu}, v{sq}")
        a(f"v_and_b32 v{t0}, 0xffff0000, v{m_b}")
        a(f"v_lshlrev_b32 v{m_b}, 16, v{m_b}")
        a(f"v_add_f32 v{t0}, s46, v{t0}")
        a(f"v_cvt_pk_bf16_f32 v{t0}, v{t0}, v{t0}")
        a(f"v_lshlrev_b32 v{t0}, 16, v{t0}")
        a(f"v_sqrt_f32 v{t0}, v{t0}")
        a(f"v_cvt_pk_bf16_f32 v{t0}, v{t0}, v{t0}")
        a(f"v_lshlrev_b32 v{t0}, 16, v{t0}")
        a(f"v_rcp_f32 v{rr}, v{t0}")
        a(f"v_mov_b32 v{rr+1}, v{rr}")
        a(f"v_mul_f32 v{rr+2}, -v{m_b}, v{rr}" if False else f"v_mul_f32_e64 v{rr+2}, -v{m_b}, v{rr}")
        a(f"v_mov_b32 v{rr+3}, v{rr+2}")
    stamp(a, "qkv")
    a("s_mov_b32 s47, 0xffff0000")
    for rt in range(2):
        rr = T + 12 + rt * 4
        for i in range(40):
            x = K_X + rt * 40 + i
            u = T + 20 + (i & 3) * 2
            a(f"v_lshlrev_b32 v{u}, 16, v{x}")
            a(f"v_and_b32 v{u+1}, s47, v{x}")
            a(f"v_pk_fma_f32 {vr(u,2)}, {vr(u,2)}, {vr(rr,2)}, {vr(rr+2,2)}")
            a(f"v_cvt_pk_bf16_f32 v{x}, v{u}, v{u+1}")
    stamp(a, "qkv")
    a("s_waitcnt vmcnt(0)")
    stamp(a, "qkv")
    a(f"s_cmp_lg_u32 s{s_cb}, 7")
    a("s_cbranch_scc1 qkv_noxn")
    a(f"v_lshlrev_b32 v{T}, 4, v{vLane}")
    a(f"s_mul_i32 s39, s{s_rb}, {2*40*1024}")
    a(f"s_mul_i32 s40, s{s_w}, {10*1024}")
    a("s_add_u32 s39, s39, s40")
    for rt in range(2):
        for s in range(10):
            a(f"s_add_u32 s44, s39, {XF + rt*40*1024 + s*1024}")
            a(f"buffer_store_dwordx4 {vr(K_X+rt*40+s*4,4)}, v{T}, s[{SWS}:{SWS+3}], s44 offen")
    a.label("qkv_noxn")
    typek_mfma_phase(a, vTr)
    stamp(a, "qkv")
    typek_reduce(a, vSlab, vRd, s_w)
    stamp(a, "qkv")
    vC0, vHead, vD0, vOff, vA = T, T + 1, T + 2, T + 3, T + 4
    a(f"s_mov_b32 s45, {hx(f2u(QSCALE))}")
    a("s_mov_b32 s46, 3277")
    a(f"s_mul_i32 s38, s{s_cb}, 96")
    a(f"s_lshl_b32 s39, s{s_w}, 3")
    a("s_add_u32 s38, s38, s39")
    a(f"s_mul_i32 s48, s{s_rb}, {2*32*1280}")
    a(f"s_add_u32 s48, s48, {QF}")
    a(f"s_add_u32 s49, s48, {32*1280}")
    a(f"s_mul_i32 s50, s{s_cb}, 3")

    def frag_off(vD0, vOff):
        a(f"v_lshrrev_b32 v{vA}, 3, v{vD0}")
        a(f"v_lshlrev_b32 v{vA}, 9, v{vA}")
        a(f"v_lshl_add_u32 v{vA}, v{vN}, 4, v{vA}")
        a(f"v_and_b32 v{vA+1}, 4, v{vD0}")
        a(f"v_lshl_add_u32 v{vA}, v{vA+1}, 1, v{vA}")
        a(f"v_lshlrev_b32 v{vA+1}, 3, v{vN}")
        a(f"v_add_u32 v{vA+1}, 1024, v{vA+1}")
        a(f"v_cmp_gt_u32 vcc, 16, v{vD0}")
        a(f"v_cndmask_b32 v{vA}, v{vA+1}, v{vA}, vcc")
        a(f"v_add_u32 v{vOff}, v{vOff}, v{vA}")

    for ct in range(3):
        a(f"s_add_u32 s51, s50, {ct}")
        a("s_cmp_ge_u32 s51, 20")
        a(f"s_cbranch_scc1 qkv_notq{ct}")
        a(f"v_lshlrev_b32 v{vC0}, 2, v{vH}")
        a(f"v_add_u32 v{vC0}, s38, v{vC0}")
        if ct:
            a(f"v_add_u32 v{vC0}, {32*ct}, v{vC0}")
        a(f"v_mul_u32_u24 v{vHead}, s46, v{vC0}")
        a(f"v_lshrrev_b32 v{vHead}, 16, v{vHead}")
        a(f"v_mul_u32_u24 v{vD0}, 20, v{vHead}")
        a(f"v_sub_u32 v{vD0}, v{vC0}, v{vD0}")
        a(f"v_mul_u32_u24 v{vOff}, 1280, v{vHead}")
        frag_off(vD0, vOff)
        for rt in range(2):
            r = K_X + (rt * 3 + ct) * 4
            for e in range(4):
                a(f"v_mul_f32 v{r+e}, s45, v{r+e}")
            a(f"v_cvt_pk_bf16_f32 v{r}, v{r}, v{r+1}")
            a(f"v_cvt_pk_bf16_f32 v{r+1}, v{r+2}, v{r+3}")
            a(f"buffer_store_dwordx2 {vr(r,2)}, v{vOff}, s[{SWS}:{SWS+3}], s{48+rt} offen")
        a.label(f"qkv_notq{ct}")
    stamp_end(a, "qkv", SWS, s_w, 240)
    a(f"s_cmp_lt_u32 s{s_cb}, 6")
    a("s_cbranch_scc1 qkv_end")
    P = T + 8
    a(f"s_cmp_eq_u32 s{s_cb}, 7")
    a("s_cbranch_scc1 qkv_mvv")
    for rt in range(2):
        for e in range(4):
            a(f"v_mov_b32 v{P+rt*4+e}, v{K_X+(rt*3+2)*4+e}")
    a("s_branch qkv_mvd")
    a.label("qkv_mvv")
    for rt in range(2):
        for e in range(4):
            a(f"v_mov_b32 v{P+rt*4+e}, v{K_X+(rt*3+0)*4+e}")
    a.label("qkv_mvd")
    a(f"v_lshlrev_b32 v{vD0}, 2, v{vH}")
    a(f"v_add_u32 v{vD0}, s39, v{vD0}")
    a(f"v_cmp_gt_u32 s[52:53], 20, v{vD0}")
    a(f"v_lshlrev_b32 v{vA}, 5, v{vN}")
    a(f"v_add_u32 v{vA}, v{vA}, v{vD0}")
    for rt in range(2):
        q = T + 16 + rt
        a(f"v_mul_f32 v{q}, v{P+rt*4}, v{P+rt*4}")
        for e in range(1, 4):
            a(f"v_fmac_f32 v{q}, v{P+rt*4+e}, v{P+rt*4+e}")
        a(f"v_cndmask_b32 v{q}, 0, v{q}, s[52:53]")
        a(f"ds_write_b32 v{vA}, v{q} offset:{NB + rt*1024}")
    for rt in range(2):
        r = P + rt * 4
        a(f"v_cvt_pk_bf16_f32 v{r}, v{r}, v{r+1}")
        a(f"v_cvt_pk_bf16_f32 v{r+1}, v{r+2}, v{r+3}")
    a("s_mov_b64 s[54:55], exec")
    a("s_and_b64 exec, exec, s[52:53]")
    a("s_cbranch_execz qkv_kvst_done")
    a(f"s_mul_i32 s48, s{s_rb}, {2*1280}")
    a(f"s_cmp_eq_u32 s{s_cb}, 7")
    a("s_cbranch_scc1 qkv_vst")
    a(f"s_add_u32 s48, s48, {KF}")
    a("s_add_u32 s49, s48, 1280")
    a(f"v_mov_b32 v{vOff}, 0")
    frag_off(vD0, vOff)
    for rt in range(2):
        a(f"buffer_store_dwordx2 {vr(P+rt*4,2)}, v{vOff}, s[{SWS}:{SWS+3}], s{48+rt} offen")
    a("s_branch qkv_kvst_done")
    a.label("qkv_vst")
    a(f"s_mul_i32 s48, s{s_rb}, {2*1344}")
    a(f"s_add_u32 s48, s48, {VF}")
    a("s_add_u32 s49, s48, 1344")
    a(f"v_lshrrev_b32 v{vA}, 4, v{vN}")
    a(f"v_lshlrev_b32 v{vA}, 1, v{vA}")
    a(f"v_bfe_u32 v{vA+1}, v{vN}, 2, 1")
    a(f"v_add_u32 v{vA}, v{vA}, v{vA+1}")
    a(f"v_mul_u32_u24 v{vA}, 21, v{vA}")
    a(f"v_add_u32 v{vA}, v{vA}, v{vD0}")
    a(f"v_lshlrev_b32 v{vOff}, 4, v{vA}")
    a(f"v_and_b32 v{vA}, 3, v{vN}")
    a(f"v_lshl_add_u32 v{vOff}, v{vA}, 1, v{vOff}")
    a(f"v_bfe_u32 v{vA}, v{vN}, 3, 1")
    a(f"v_lshl_add_u32 v{vOff}, v{vA}, 3, v{vOff}")
    for rt in range(2):
        r = P + rt * 4
        a(f"buffer_store_short v{r}, v{vOff}, s[{SWS}:{SWS+3}], s{48+rt} offen")
        a(f"buffer_store_short_d16_hi v{r}, v{vOff}, s[{SWS}:{SWS+3}], s{48+rt} offen offset:16")
        a(f"buffer_store_short v{r+1}, v{vOff}, s[{SWS}:{SWS+3}], s{48+rt} offen offset:32")
        a(f"buffer_store_short_d16_hi v{r+1}, v{vOff}, s[{SWS}:{SWS+3}], s{48+rt} offen offset:48")
    a.label("qkv_kvst_done")
    a("s_mov_b64 exec, s[54:55]")
    a(f"s_cmp_lg_u32 s{s_cb}, 7")
    a("s_cbranch_scc1 qkv_noones")
    a(f"s_cmp_lg_u32 s{s_w}, 3")
    a("s_cbranch_scc1 qkv_noones")
    a(f"s_mul_i32 s48, s{s_rb}, {2*1344}")
    a(f"s_add_u32 s48, s48, {VF + 320}")
    a(f"v_mul_u32_u24 v{vOff}, 336, v{vLane}")
    for e in range(4):
        a(f"v_mov_b32 v{P+e}, 0x3f803f80")
    a("s_mov_b64 exec, 0xff")
    a(f"buffer_store_dwordx4 {vr(P,4)}, v{vOff}, s[{SWS}:{SWS+3}], s48 offen")
    a("s_mov_b64 exec, s[54:55]")
    a.label("qkv_noones")
    a("s_waitcnt lgkmcnt(0)")
    a("s_barrier")
    a(f"s_cmp_lg_u32 s{s_w}, 0")
    a("s_cbranch_scc1 qkv_end")
    a(f"v_lshlrev_b32 v{vA}, 5, v{vLane}")
    a(f"ds_read_b128 {vr(P,4)}, v{vA} offset:{NB}")
    a(f"ds_read_b128 {vr(P+4,4)}, v{vA} offset:{NB+16}")
    a("s_waitcnt lgkmcnt(0)")
    for e in range(1, 8):
        a(f"v_add_f32 v{P}, v{P}, v{P+e}")
    a(f"v_mov_b32 v{vA}, 0")
    a(f"ds_max_u32 v{vA}, v{P} offset:{MX}")
    a("s_waitcnt lgkmcnt(0)")
    a(f"ds_read_b32 v{P}, v{vA} offset:{MX}")
    a(f"s_sub_u32 s48, s{s_cb}, 6")
    a("s_lshl_b32 s48, s48, 5")
    a(f"s_add_u32 s48, s48, s{s_rb}")
    a("s_lshl_b32 s48, s48, 2")
    a(f"s_add_u32 s48, s48, {KN}")
    a("s_waitcnt lgkmcnt(0)")
    a(f"buffer_store_dword v{P}, v{vA}, s[{SWS}:{SWS+3}], s48 offen")
    a.label("qkv_end")
    a("s_endpgm")
    return a.finish(), ("qkv_kernel", 256, 256, 131072, 256)


A_Q, A_O, A_S, A_P, A_K, A_V, A_M = 16, 48, 112, 144, 160, 176, 192
A_T = 196
OOB = 0x80000000


def gen_attn_body(a, pfx, s_wg):
    s_w, s_rt, s_kh, s_hd = 32, 33, 34, 35
    SWS = 28
    vLane, vN, vH = 1, 2, 3
    vK1, vK2, vV = 4, 5, 6
    T = A_T
    a("s_load_dwordx2 s[12:13], s[0:1], 88")
    lane_setup(a, T, vLane, vN, vH, s_w)
    a(f"s_lshr_b32 s{s_rt}, s{s_wg}, 2")
    a(f"s_and_b32 s3, s{s_wg}, 3")
    a(f"s_and_b32 s{s_kh}, s{s_w}, 1")
    a(f"s_lshr_b32 s36, s{s_w}, 1")
    a("s_lshl_b32 s3, s3, 3")
    a("s_lshl_b32 s36, s36, 2")
    a(f"s_add_u32 s{s_hd}, s3, s36")
    a(f"v_lshlrev_b32 v{vK1}, 4, v{vLane}")
    a(f"v_lshlrev_b32 v{vK2}, 3, v{vN}")
    a(f"v_add_u32 v{vK2}, 1024, v{vK2}")
    a(f"v_mov_b32 v{T}, {hx(OOB)}")
    a(f"v_cmp_eq_u32 vcc, 0, v{vH}")
    a(f"v_cndmask_b32 v{vK2}, v{T}, v{vK2}, vcc")
    a(f"v_mul_u32_u24 v{vV}, 21, v{vH}")
    a(f"v_add_u32 v{vV}, v{vV}, v{vN}")
    a(f"v_lshlrev_b32 v{vV}, 4, v{vV}")
    a(f"v_cmp_gt_u32 vcc, 21, v{vN}")
    a(f"v_cndmask_b32 v{vV}, v{T}, v{vV}, vcc")
    a("s_waitcnt lgkmcnt(0)")
    srd(a, SWS, 12, WS_END)
    a(f"s_add_u32 s12, s12, {KN}")
    a("s_addc_u32 s13, s13, 0")
    a("s_load_dwordx16 s[64:79], s[12:13], 0")
    a("s_load_dwordx16 s[80:95], s[12:13], 64")
    a("s_load_dwordx16 s[44:59], s[12:13], 128")
    a(f"s_lshl_b32 s36, s{s_rt}, 5")
    a(f"s_add_u32 s36, s36, s{s_hd}")
    a("s_mul_i32 s36, s36, 1280")
    a(f"s_add_u32 s36, s36, {QF}")
    for i in range(4):
        a(f"buffer_load_dwordx4 {vr(A_Q+8*i,4)}, v{vK1}, s[{SWS}:{SWS+3}], s36 offen")
        a(f"buffer_load_dwordx2 {vr(A_Q+8*i+4,2)}, v{vK2}, s[{SWS}:{SWS+3}], s36 offen")
        if i < 3:
            a("s_add_u32 s36, s36, 1280")
    s_kp, s_vp = 37, 38
    a(f"s_mul_i32 s{s_kp}, s{s_kh}, {32*1280}")
    a(f"s_add_u32 s{s_kp}, s{s_kp}, {KF}")
    a(f"s_mul_i32 s{s_vp}, s{s_kh}, {32*1344}")
    a(f"s_add_u32 s{s_vp}, s{s_vp}, {VF}")

    def loadK(st):
        a(f"buffer_load_dwordx4 {vr(A_K+8*st,4)}, v{vK1}, s[{SWS}:{SWS+3}], s{s_kp} offen")
        a(f"buffer_load_dwordx2 {vr(A_K+8*st+4,2)}, v{vK2}, s[{SWS}:{SWS+3}], s{s_kp} offen")
        a(f"s_add_u32 s{s_kp}, s{s_kp}, 1280")

    def loadV(st):
        a(f"buffer_load_dwordx4 {vr(A_V+8*st,4)}, v{vV}, s[{SWS}:{SWS+3}], s{s_vp} offen")
        a(f"buffer_load_dwordx4 {vr(A_V+8*st+4,4)}, v{vV}, s[{SWS}:{SWS+3}], s{s_vp} offen offset:672")
        a(f"s_add_u32 s{s_vp}, s{s_vp}, 1344")
    loadK(0)
    loadV(0)
    loadK(1)
    for i in range(4):
        a(f"v_mov_b32 v{A_Q+8*i+6}, 0")
        a(f"v_mov_b32 v{A_Q+8*i+7}, 0")
    for st in range(2):
        a(f"v_mov_b32 v{A_K+8*st+6}, 0")
        a(f"v_mov_b32 v{A_K+8*st+7}, 0")
    for r in range(64):
        a(f"v_mov_b32 v{A_O+r}, 0")
    for r in range(16):
        a(f"v_mov_b32 v{A_P+r}, 0")
    for r in range(8):
        a(f"v_mov_b32 v{A_V+8+r}, 0")
    for r in range(4):
        a(f"v_mov_b32 v{A_M+r}, 0")
    a("s_waitcnt lgkmcnt(0)")
    for r in range(65, 96):
        a(f"s_max_u32 s64, s64, s{r}")
    for r in range(45, 60):
        a(f"s_max_u32 s44, s44, s{r}")
    a("s_load_dwordx16 s[80:95], s[12:13], 192")
    a("s_waitcnt lgkmcnt(0)")
    for r in range(80, 96):
        a(f"s_max_u32 s44, s44, s{r}")
    a("s_waitcnt vmcnt(6)")
    for i in range(4):
        a(f"v_mov_b32 v{T+i}, 0")
    for r in range(6):
        for i in range(4):
            a(f"v_dot2_f32_bf16 v{T+i}, v{A_Q+8*i+r}, v{A_Q+8*i+r}, v{T+i}")
    for i in range(4):
        a(f"v_mov_b32 v{T+4+i}, v{T+i}")
    for i in range(4):
        a(f"v_permlane32_swap_b32 v{T+i}, v{T+4+i}")
    for i in range(4):
        a(f"v_add_f32 v{T+i}, v{T+i}, v{T+4+i}")
    a(f"v_max3_f32 v{T}, v{T}, v{T+1}, v{T+2}")
    a(f"v_max_f32 v{T}, v{T}, v{T+3}")
    a(f"v_mul_f32 v{T}, s64, v{T}")
    a(f"v_mov_b32 v{T+1}, {hx(f2u(3600.0/1.05))}")
    a(f"v_cmp_nle_f32 vcc, v{T}, v{T+1}")
    a(f"s_cmp_gt_u32 s44, {hx(f2u(2.0**80))}")
    a(f"s_cbranch_scc1 {pfx}_slow")
    a(f"s_cbranch_vccnz {pfx}_slow")

    def qk(m, sb, ks, i):
        if m == 0:
            mfma32(a, A_S + 16 * sb, A_K + 8 * ks, A_Q + 8 * i, "0")
        else:
            mfma32(a, A_S + 16 * sb, A_K + 8 * ks + 4, A_Q + 8 * i + 4)

    def pv(m, pb, vs, i):
        mfma32(a, A_O + 16 * i, A_V + 8 * vs + 4 * m, A_P + 8 * pb + 4 * m)

    a("s_waitcnt vmcnt(4)")
    qk(0, 0, 0, 0)
    qk(1, 0, 0, 0)
    stamp(a, "attn")
    a("s_mov_b32 s39, 16")
    a("s_nop 10")
    a.raw(".p2align 6")
    a.label(f"{pfx}_loop")
    for kk in range(2):
        for i in range(4):
            cur = i & 1
            S = A_S + 16 * cur
            P = A_P + 8 * cur
            nks, ni = (kk, i + 1) if i < 3 else (kk ^ 1, 0)
            pvs, pi = (kk, i - 1) if i > 0 else (kk ^ 1, 3)
            if i == 1:
                a("s_waitcnt vmcnt(2)")
            if i == 3:
                a("s_waitcnt vmcnt(2)")
            qk(0, cur ^ 1, nks, ni)
            for e in range(0, 4):
                a(f"v_exp_f32 v{S+e}, v{S+e}")
            qk(1, cur ^ 1, nks, ni)
            if i == 1:
                loadV(kk ^ 1)
            if i == 3:
                loadK(kk)
            for e in range(4, 8):
                a(f"v_exp_f32 v{S+e}, v{S+e}")
            pv(0, cur ^ 1, pvs, pi)
            for e in range(8, 12):
                a(f"v_exp_f32 v{S+e}, v{S+e}")
            for j in range(0, 2):
                a(f"v_cvt_pk_bf16_f32 v{P+j}, v{S+2*j}, v{S+2*j+1}")
            pv(1, cur ^ 1, pvs, pi)
            for e in range(12, 16):
                a(f"v_exp_f32 v{S+e}, v{S+e}")
            for j in range(2, 8):
                a(f"v_cvt_pk_bf16_f32 v{P+j}, v{S+2*j}, v{S+2*j+1}")
    a("s_sub_u32 s39, s39, 1")
    a("s_cmp_lg_u32 s39, 0")
    a(f"s_cbranch_scc1 {pfx}_loop")
    pv(0, 1, 1, 3)
    pv(1, 1, 1, 3)
    stamp(a, "attn")
    a(f"s_branch {pfx}_epi")

    a.label(f"{pfx}_slow")
    for r in range(4):
        a(f"v_mov_b32 v{A_M+r}, {hx(f2u(-1e30))}")
    a("s_mov_b32 s39, 32")
    a(f"s_sub_u32 s{s_kp}, s{s_kp}, 1280")
    a.label(f"{pfx}_sloop")
    a("s_waitcnt vmcnt(0)")
    for i in range(4):
        S, P, M = A_S, A_P, A_M + i
        qk(0, 0, 0, i)
        qk(1, 0, 0, i)
        a(f"v_max3_f32 v{T}, v{S}, v{S+1}, v{S+2}")
        for e in range(3, 15, 2):
            a(f"v_max3_f32 v{T}, v{T}, v{S+e}, v{S+e+1}")
        a(f"v_max_f32 v{T}, v{T}, v{S+15}")
        a(f"v_mov_b32 v{T+1}, v{T}")
        a(f"v_permlane32_swap_b32 v{T}, v{T+1}")
        a(f"v_max3_f32 v{T}, v{T}, v{T+1}, v{M}")
        a(f"v_sub_f32 v{T+1}, v{M}, v{T}")
        a(f"v_exp_f32 v{T+1}, v{T+1}")
        a(f"v_mov_b32 v{M}, v{T}")
        for e in range(16):
            a(f"v_sub_f32 v{S+e}, v{S+e}, v{T}")
            a(f"v_exp_f32 v{S+e}, v{S+e}")
        for j in range(8):
            a(f"v_cvt_pk_bf16_f32 v{P+j}, v{S+2*j}, v{S+2*j+1}")
        for e in range(16):
            a(f"v_mul_f32 v{A_O+16*i+e}, v{A_O+16*i+e}, v{T+1}")
        pv(0, 0, 0, i)
        pv(1, 0, 0, i)
    loadK(0)
    loadV(0)
    a("s_sub_u32 s39, s39, 1")
    a("s_cmp_lg_u32 s39, 0")
    a(f"s_cbranch_scc1 {pfx}_sloop")

    a.label(f"{pfx}_epi")
    a("s_waitcnt vmcnt(0)")
    vW, vR = T, T + 1
    a(f"s_mul_i32 s40, s{s_w}, 6656")
    a(f"s_xor_b32 s41, s{s_w}, 1")
    a("s_mul_i32 s41, s41, 6656")
    a(f"v_add_u32 v{vW}, s40, v{vK1}")
    a(f"v_add_u32 v{vR}, s41, v{vK1}")
    a(f"v_lshlrev_b32 v{T+2}, 2, v{vLane}")
    a(f"v_add_u32 v{T+3}, s41, v{T+2}")
    a(f"v_add_u32 v{T+2}, s40, v{T+2}")
    a(f"s_cmp_eq_u32 s{s_kh}, 0")
    a(f"s_cbranch_scc1 {pfx}_e0")
    for t in range(2):
        for q in range(3):
            a(f"ds_write_b128 v{vW}, {vr(A_O+16*t+4*q,4)} offset:{(t*3+q)*1024}")
        a(f"ds_write_b32 v{T+2}, v{A_M+t} offset:{6144+t*256}")
    a("s_waitcnt lgkmcnt(0)")
    for t in range(2):
        for e in range(12):
            a(f"v_mov_b32 v{A_O+16*t+e}, v{A_O+16*(t+2)+e}")
        a(f"v_mov_b32 v{A_M+t}, v{A_M+t+2}")
    a(f"s_add_u32 s{s_hd}, s{s_hd}, 2")
    a(f"s_branch {pfx}_e1")
    a.label(f"{pfx}_e0")
    for t in range(2):
        for q in range(3):
            a(f"ds_write_b128 v{vW}, {vr(A_O+16*(t+2)+4*q,4)} offset:{(t*3+q)*1024}")
        a(f"ds_write_b32 v{T+2}, v{A_M+t+2} offset:{6144+t*256}")
    a("s_waitcnt lgkmcnt(0)")
    a.label(f"{pfx}_e1")
    a("s_barrier")
    for t in range(2):
        for q in range(3):
            a(f"ds_read_b128 {vr(A_S+16*t+4*q,4)}, v{vR} offset:{(t*3+q)*1024}")
        a(f"ds_read_b32 v{A_M+2+t}, v{T+3} offset:{6144+t*256}")
    a("s_waitcnt lgkmcnt(0)")
    a(f"s_mul_i32 s40, s{s_rt}, {40*1024}")
    a(f"s_add_u32 s40, s40, {OF}")
    a(f"v_mov_b32 v{T+12}, {hx(OOB)}")
    a(f"v_cmp_eq_u32 s[42:43], 0, v{vH}")
    for t in range(2):
        O, Pz, Ma, Mp = A_O + 16 * t, A_S + 16 * t, A_M + t, A_M + 2 + t
        a(f"v_max_f32 v{T+4}, v{Ma}, v{Mp}")
        a(f"v_sub_f32 v{T+5}, v{Ma}, v{T+4}")
        a(f"v_sub_f32 v{T+6}, v{Mp}, v{T+4}")
        a(f"v_exp_f32 v{T+5}, v{T+5}")
        a(f"v_exp_f32 v{T+6}, v{T+6}")
        for e in range(12):
            a(f"v_mul_f32 v{O+e}, v{O+e}, v{T+5}")
            a(f"v_fmac_f32 v{O+e}, v{Pz+e}, v{T+6}")
        a(f"v_mov_b32 v{T+7}, v{O+8}")
        a(f"v_mov_b32 v{T+8}, v{O+8}")
        a(f"v_permlane32_swap_b32 v{T+7}, v{T+8}")
        a(f"v_rcp_f32 v{T+8}, v{T+8}")
        for e in range(12):
            a(f"v_mul_f32 v{O+e}, v{O+e}, v{T+8}")
        for q in range(3):
            a(f"v_cvt_pk_bf16_f32 v{O+4*q}, v{O+4*q}, v{O+4*q+1}")
            a(f"v_cvt_pk_bf16_f32 v{O+4*q+1}, v{O+4*q+2}, v{O+4*q+3}")
        a(f"s_add_u32 s41, s{s_hd}, {t}")
        a("s_mul_i32 s41, s41, 20")
        for q in range(3):
            k, off = T + 9, T + 10
            a(f"v_lshlrev_b32 v{k}, 2, v{vH}")
            a(f"v_add_u32 v{k}, s41, v{k}")
            if q:
                a(f"v_add_u32 v{k}, {8*q}, v{k}")
            a(f"v_lshrrev_b32 v{off}, 3, v{k}")
            a(f"v_lshlrev_b32 v{off}, 9, v{off}")
            a(f"v_lshl_add_u32 v{off}, v{vN}, 4, v{off}")
            a(f"v_and_b32 v{k}, 4, v{k}")
            a(f"v_lshl_add_u32 v{off}, v{k}, 1, v{off}")
            if q == 2:
                a(f"v_cndmask_b32 v{off}, v{T+12}, v{off}, s[42:43]")
            a(f"buffer_store_dwordx2 {vr(O+4*q,2)}, v{off}, s[{SWS}:{SWS+3}], s40 offen")


def gen_attn():
    a = Asm()
    a.label("attn_kernel")
    a("s_cmp_ge_u32 s2, 256")
    a("s_cbranch_scc1 attn_end")
    stamp_begin(a, "attn")
    gen_attn_body(a, "attn", 2)
    stamp_end(a, "attn", 28, 32, 200)
    a.label("attn_end")
    a("s_endpgm")
    return a.finish(), ("attn_kernel", 256, 256, 26624, 256 if STAMP else 216)


R_ACC, R_A, R_B, R_T = 16, 112, 160, 208


def typer_core(a, pfx, NT, NS, vTr, vWo, vB, s_w, srd_of_tile, goff, s_bp, SWS, tr2):
    SLOT = 4 * NT * 1024
    sname = {"gu": "gateup", "dn": "down"}[pfx]
    s_g0, s_g1, gstep = goff
    s_m = 60

    def dma(stage):
        slot = stage % 3
        for t in range(NT):
            sr, grp, tt = srd_of_tile(t)
            a(f"s_add_u32 m0, s{s_m}, {slot*SLOT + t*1024}")
            a(f"s_add_u32 s61, s{s_g0 if grp == 0 else s_g1}, {stage*gstep + tt*64}")
            a(f"buffer_load_dwordx4 v{vWo}, s[{sr}:{sr+3}], s61 offen lds")

    def bload(stage):
        st = stage % 3
        a(f"s_add_u32 s61, s{s_bp}, {stage*4096}")
        for j in range(4):
            a(f"buffer_load_dwordx4 {vr(R_B+st*16+j*4,4)}, v{vB}, s[{SWS}:{SWS+3}], s61 offen offset:{j*1024}")

    def reads(stage, j):
        buf = (stage * 4 + j) & 1
        slot = stage % 3
        base = (slot & 1) * SLOT + j * NT * 1024
        va = vTr + (slot >> 1)
        out = []
        for t in range(NT):
            r = R_A + buf * 24 + t * 4
            out.append(f"ds_read_b64_tr_b16 {vr(r,2)}, v{va} offset:{base + t*1024}")
            out.append(f"ds_read_b64_tr_b16 {vr(r+2,2)}, v{va} offset:{base + t*1024 + tr2}")
        return out

    def mfmas(stage, j, inter):
        buf = (stage * 4 + j) & 1
        inter = list(inter)
        for t in range(NT):
            first = stage == 0 and j == 0
            mfma32(a, R_ACC + 16 * t, R_A + buf * 24 + t * 4, R_B + (stage % 3) * 16 + j * 4, "0" if first else None)
            for _ in range(2):
                if inter:
                    a(inter.pop(0))
        for x in inter:
            a(x)

    a(f"s_mul_i32 s{s_m}, s{s_w}, {NT*1024}")
    a(f"v_add_u32 v{vTr+1}, {2*SLOT}, v{vTr}")
    per = NT + 4
    for st in range(3):
        dma(st)
        bload(st)
    stamp(a, sname)
    a(f"s_waitcnt vmcnt({2*per})")
    a("s_barrier")
    stamp(a, sname)
    for x in reads(0, 0):
        a(x)
    for i in range(NS):
        if i in (1, 2, 4):
            stamp(a, sname)
        for j in range(3):
            a("s_waitcnt lgkmcnt(0)")
            mfmas(i, j, reads(i, j + 1))
        a("s_waitcnt lgkmcnt(0)")
        if i + 1 < NS:
            if i + 2 < NS:
                a(f"s_waitcnt vmcnt({per})")
            else:
                a("s_waitcnt vmcnt(0)")
            a("s_barrier")
            if i + 3 < NS:
                dma(i + 3)
            mfmas(i, 3, reads(i + 1, 0))
            if i + 3 < NS:
                bload(i + 3)
        else:
            mfmas(i, 3, [])


def gen_gateup_body(a, pfx, s_wg):
    s_w, s_rb, s_cb = 32, 33, 34
    SW1, SW3, SWS = 16, 20, 28
    vLane, vN, vH, vWo, vB, vTr = 1, 2, 3, 4, 5, 6
    T = R_T
    a("s_load_dwordx4 s[4:7], s[0:1], 48")
    a("s_load_dwordx2 s[12:13], s[0:1], 88")
    lane_setup(a, T, vLane, vN, vH, s_w)
    a(f"s_and_b32 s3, s{s_wg}, 7")
    a(f"s_lshr_b32 s35, s{s_wg}, 3")
    a("s_and_b32 s36, s3, 1")
    a("s_lshl_b32 s36, s36, 3")
    a("s_and_b32 s37, s35, 7")
    a(f"s_add_u32 s{s_rb}, s36, s37")
    a("s_lshr_b32 s36, s3, 1")
    a("s_lshl_b32 s36, s36, 2")
    a("s_lshr_b32 s37, s35, 3")
    a(f"s_add_u32 s{s_cb}, s36, s37")
    a(f"v_lshrrev_b32 v{T}, 2, v{vLane}")
    a(f"v_mul_u32_u24 v{vWo}, 3072, v{T}")
    a(f"v_and_b32 v{T}, 3, v{vLane}")
    a(f"v_lshl_add_u32 v{vWo}, v{T}, 4, v{vWo}")
    tr_base(a, vTr, T, vLane, vH, 9)
    a(f"v_lshlrev_b32 v{vB}, 4, v{vLane}")
    a(f"s_mul_i32 s40, s{s_w}, {16*3072}")
    a(f"s_mul_i32 s41, s{s_cb}, 192")
    a("s_add_u32 s40, s40, s41")
    a(f"s_lshl_b32 s42, s{s_rb}, 2")
    a(f"s_add_u32 s42, s42, s{s_w}")
    a(f"s_mul_i32 s43, s42, {40*1024}")
    if XF:
        a(f"s_add_u32 s43, s43, {XF}")
    a("s_waitcnt lgkmcnt(0)")
    srd(a, SW1, 4, 1966080)
    srd(a, SW3, 6, 1966080)
    srd(a, SWS, 12, WS_END)
    typer_core(a, pfx, 6, 10, vTr, vWo, vB, s_w,
               lambda t: (SW1, 0, t) if t < 3 else (SW3, 0, t - 3), (40, 40, 64 * 3072), 43, SWS, 256)
    stamp(a, "gateup")
    a(f"s_mov_b32 s44, {hx(f2u(-math.log2(math.e)))}")
    a(f"s_mul_i32 s45, s42, {96*1024}")
    a(f"s_mul_i32 s46, s{s_cb}, {6*1024}")
    a("s_add_u32 s45, s45, s46")
    a(f"s_add_u32 s45, s45, {HF}")
    for t in range(3):
        g, u = R_ACC + 16 * t, R_ACC + 16 * (t + 3)
        E = R_A
        for e in range(16):
            a(f"v_mul_f32 v{E+e}, s44, v{g+e}")
        for e in range(16):
            a(f"v_exp_f32 v{E+e}, v{E+e}")
        for e in range(16):
            a(f"v_add_f32 v{E+e}, 1.0, v{E+e}")
        for e in range(16):
            a(f"v_rcp_f32 v{E+e}, v{E+e}")
        for e in range(16):
            a(f"v_mul_f32 v{g+e}, v{g+e}, v{u+e}")
        for e in range(16):
            a(f"v_mul_f32 v{g+e}, v{g+e}, v{E+e}")
        for j in range(8):
            a(f"v_cvt_pk_bf16_f32 v{u+j}, v{g+2*j}, v{g+2*j+1}")
        for hf in range(2):
            o = (2 * t + hf) * 1024
            if o < 4096:
                a(f"buffer_store_dwordx4 {vr(u+4*hf,4)}, v{vB}, s[{SWS}:{SWS+3}], s45 offen offset:{o}")
            else:
                a(f"s_add_u32 s46, s45, {o}")
                a(f"buffer_store_dwordx4 {vr(u+4*hf,4)}, v{vB}, s[{SWS}:{SWS+3}], s46 offen")


def gen_gateup():
    a = Asm()
    a.label("gateup_kernel")
    a("s_cmp_ge_u32 s2, 256")
    a("s_cbranch_scc1 gateup_end")
    stamp_begin(a, "gateup")
    gen_gateup_body(a, "gu", 2)
    stamp_end(a, "gateup", 28, 32, 240)
    a.label("gateup_end")
    a("s_endpgm")
    return a.finish(), ("gateup_kernel", 256, 256, 73728, 256 if STAMP else 216)


def gen_down_body(a, pfx, s_wg):
    s_w, s_rb, s_cb, s_kq = 32, 33, 34, 35
    SW, SWS = 16, 28
    vLane, vN, vH, vWo, vB, vTr = 1, 2, 3, 4, 5, 6
    T = R_T
    a("s_load_dwordx2 s[4:5], s[0:1], 64")
    a("s_load_dwordx2 s[12:13], s[0:1], 88")
    lane_setup(a, T, vLane, vN, vH, s_w)
    a(f"s_and_b32 s3, s{s_wg}, 7")
    a(f"s_lshr_b32 s38, s{s_wg}, 3")
    a("s_and_b32 s36, s3, 1")
    a("s_lshl_b32 s36, s36, 3")
    a("s_and_b32 s37, s38, 7")
    a(f"s_add_u32 s{s_rb}, s36, s37")
    a(f"s_lshr_b32 s{s_kq}, s3, 1")
    a(f"s_lshr_b32 s{s_cb}, s38, 3")
    a(f"v_lshrrev_b32 v{T}, 2, v{vLane}")
    a(f"v_mul_u32_u24 v{vWo}, 1280, v{T}")
    a(f"v_and_b32 v{T}, 3, v{vLane}")
    a(f"v_lshl_add_u32 v{vWo}, v{T}, 4, v{vWo}")
    tr_base(a, vTr, T, vLane, vH, 8)
    a(f"v_lshlrev_b32 v{vB}, 4, v{vLane}")
    a(f"s_mul_i32 s40, s{s_kq}, {384*1280}")
    a(f"s_mul_i32 s41, s{s_w}, {16*1280}")
    a("s_add_u32 s40, s40, s41")
    a(f"s_mul_i32 s41, s{s_cb}, 320")
    a("s_add_u32 s40, s40, s41")
    a(f"s_lshl_b32 s42, s{s_rb}, 2")
    a(f"s_add_u32 s42, s42, s{s_w}")
    a(f"s_mul_i32 s43, s42, {96*1024}")
    a(f"s_mul_i32 s41, s{s_kq}, {24*1024}")
    a("s_add_u32 s43, s43, s41")
    a(f"s_add_u32 s43, s43, {HF}")
    a("s_waitcnt lgkmcnt(0)")
    srd(a, SW, 4, 1966080)
    srd(a, SWS, 12, WS_END)
    typer_core(a, pfx, 5, 6, vTr, vWo, vB, s_w, lambda t: (SW, 0, t), (40, 40, 64 * 1280), 43, SWS, 512)
    stamp(a, "down")
    a(f"s_lshl_b32 s45, s{s_kq}, 6")
    a("s_add_u32 s45, s45, s42")
    a("s_mul_i32 s45, s45, 20")
    a(f"s_mul_i32 s46, s{s_cb}, 5")
    a("s_add_u32 s45, s45, s46")
    a("s_lshl_b32 s45, s45, 12")
    a(f"s_add_u32 s45, s45, {FP}")
    for t in range(5):
        for g in range(4):
            a(f"buffer_store_dwordx4 {vr(R_ACC+16*t+4*g,4)}, v{vB}, s[{SWS}:{SWS+3}], s45 offen offset:{g*1024}")
        if t < 4:
            a("s_add_u32 s45, s45, 4096")


def gen_down():
    a = Asm()
    a.label("down_kernel")
    a("s_cmp_ge_u32 s2, 256")
    a("s_cbranch_scc1 down_end")
    stamp_begin(a, "down")
    gen_down_body(a, "dn", 2)
    stamp_end(a, "down", 28, 32, 240)
    a.label("down_end")
    a("s_endpgm")
    return a.finish(), ("down_kernel", 256, 256, 61440, 256 if STAMP else 216)


def gen_final():
    a = Asm()
    a.label("final_kernel")
    s_w, s_rb, s_cb = 32, 33, 34
    SX, SW, SO, SWS = 16, 20, 24, 28
    vLane, vN, vH = 1, 2, 3
    vB, vWo, vXo, vTr, vSlab, vRd = 4, 5, 6, 7, 8, 9
    T = K_T
    a("s_cmp_ge_u32 s2, 224")
    a("s_cbranch_scc1 final_end")
    stamp_begin(a, "final")
    a("s_load_dwordx2 s[4:5], s[0:1], 0")
    a("s_load_dwordx2 s[6:7], s[0:1], 32")
    a("s_load_dwordx2 s[8:9], s[0:1], 72")
    a("s_load_dwordx2 s[12:13], s[0:1], 88")
    lane_setup(a, T, vLane, vN, vH, s_w)
    a("s_and_b32 s3, s2, 7")
    a("s_lshr_b32 s35, s2, 3")
    a("s_and_b32 s36, s35, 3")
    a("s_lshl_b32 s3, s3, 2")
    a(f"s_add_u32 s{s_rb}, s3, s36")
    a(f"s_lshr_b32 s{s_cb}, s35, 2")
    a(f"v_lshlrev_b32 v{vB}, 4, v{vLane}")
    a(f"v_lshrrev_b32 v{T}, 2, v{vLane}")
    a(f"v_mul_u32_u24 v{vWo}, 1280, v{T}")
    a(f"v_and_b32 v{T}, 3, v{vLane}")
    a(f"v_lshl_add_u32 v{vWo}, v{T}, 4, v{vWo}")
    a(f"v_mul_u32_u24 v{vXo}, 1280, v{vN}")
    a(f"v_lshl_add_u32 v{vXo}, v{vH}, 3, v{vXo}")
    tr_base(a, vTr, T, vLane, vH, 9)
    a(f"s_mul_i32 s37, s{s_w}, {WAVE_LDS}")
    a(f"s_add_u32 s37, s37, {LDS_STG}")
    a(f"v_add_u32 v{vTr}, s37, v{vTr}")
    a(f"v_mul_u32_u24 v{vRd}, 400, v{vN}")
    a(f"v_lshl_add_u32 v{vRd}, v{vH}, 4, v{vRd}")
    a(f"v_add_u32 v{vSlab}, s37, v{vRd}")
    a(f"s_lshl_b32 s38, s{s_w}, 5")
    a(f"v_add_u32 v{vRd}, s38, v{vRd}")
    a(f"v_add_u32 v{vRd+1}, {2*WAVE_LDS}, v{vRd}")
    a("s_waitcnt lgkmcnt(0)")
    srd(a, SX, 4, 2621440)
    srd(a, SW, 6, 819200)
    srd(a, SO, 8, 2621440)
    srd(a, SWS, 12, WS_END)
    a(f"s_mul_i32 s39, s{s_rb}, {2*40*1024}")
    a(f"s_mul_i32 s40, s{s_w}, {10*1024}")
    a("s_add_u32 s39, s39, s40")
    a(f"s_add_u32 s39, s39, {OF}")
    a(f"s_mul_i32 s41, s{s_w}, {160*1280}")
    a(f"s_mul_i32 s42, s{s_cb}, 192")
    a("s_add_u32 s41, s41, s42")
    for s in range(10):
        for ct in range(3):
            a(f"s_add_u32 m0, s37, {(3*s+ct)*1024}")
            a(f"s_add_u32 s44, s41, {s*16*1280 + ct*64}")
            a(f"buffer_load_dwordx4 v{vWo}, s[{SW}:{SW+3}], s44 offen lds")
        for rt in range(2):
            a(f"s_add_u32 s44, s39, {rt*40*1024 + s*1024}")
            a(f"buffer_load_dwordx4 {vr(K_X+rt*40+s*4,4)}, v{vB}, s[{SWS}:{SWS+3}], s44 offen")
    a(f"s_lshl_b32 s45, s{s_w}, 6")
    a(f"s_lshl_b32 s46, s{s_rb}, 1")
    a("s_add_u32 s45, s45, s46")
    a("s_mul_i32 s45, s45, 20")
    a(f"s_mul_i32 s46, s{s_cb}, 3")
    a("s_add_u32 s45, s45, s46")
    a("s_lshl_b32 s45, s45, 12")
    a(f"s_add_u32 s45, s45, {FP}")
    for rt in range(2):
        for ct in range(3):
            a(f"s_add_u32 s44, s45, {(rt*20+ct)*4096}")
            for g in range(4):
                a(f"buffer_load_dwordx4 {vr(K_ACC+(rt*3+ct)*16+4*g,4)}, v{vB}, s[{SWS}:{SWS+3}], s44 offen offset:{g*1024}")
    a(f"s_mul_i32 s47, s{s_rb}, {64*1280}")
    a("s_add_u32 s47, s47, s42")
    a(f"s_lshl_b32 s46, s{s_w}, 4")
    a("s_add_u32 s47, s47, s46")
    a(f"s_add_u32 s48, s47, {32*1280}")
    XR = T + 4
    for rt in range(2):
        for ct in range(3):
            a(f"buffer_load_dwordx2 {vr(XR+(rt*3+ct)*2,2)}, v{vXo}, s[{SX}:{SX+3}], s{47+rt} offen offset:{ct*64}")
    a("s_waitcnt vmcnt(0)")
    stamp(a, "final")
    typek_mfma_phase(a, vTr, zero=False)
    stamp(a, "final")
    typek_reduce(a, vSlab, vRd, s_w)
    stamp(a, "final")
    a("s_mov_b32 s49, 0xffff0000")
    for ct in range(3):
        if ct == 2:
            a(f"s_cmp_eq_u32 s{s_cb}, 6")
            a("s_cbranch_scc1 final_skip")
        for rt in range(2):
            r = K_X + (rt * 3 + ct) * 4
            xr = XR + (rt * 3 + ct) * 2
            for e in range(2):
                a(f"v_lshlrev_b32 v{T}, 16, v{xr+e}")
                a(f"v_and_b32 v{T+1}, s49, v{xr+e}")
                a(f"v_pk_add_f32 {vr(r+2*e,2)}, {vr(r+2*e,2)}, {vr(T,2)}")
            a(f"v_cvt_pk_bf16_f32 v{r}, v{r}, v{r+1}")
            a(f"v_cvt_pk_bf16_f32 v{r+1}, v{r+2}, v{r+3}")
            a(f"buffer_store_dwordx2 {vr(r,2)}, v{vXo}, s[{SO}:{SO+3}], s{47+rt} offen offset:{ct*64}")
    a.label("final_skip")
    stamp_end(a, "final", SWS, s_w, 240)
    a.label("final_end")
    a("s_endpgm")
    return a.finish(), ("final_kernel", 224, 256, 131072, 256)


def gen_empty():
    a = Asm()
    a.label("empty_kernel")
    a("s_endpgm")
    return a.finish(), ("empty_kernel", 256, 256, 65536, 256)


KERNELS = {"empty": gen_empty, "qkv": gen_qkv, "gateup": gen_gateup, "attn": gen_attn, "down": gen_down, "final": gen_final}
HEADER = open("parallel_sum__grouped_kv_mqa__glu_gated_swiglu__prompt.s.ref").read().split("; Override launch")[0] if False else ""


DEFAULT = ["qkv", "gateup", "attn", "down", "final"]


def build(order):
    texts, launches = {}, []
    for k in order:
        t, info = KERNELS[k]()
        texts[info[0]] = (t, info)
        launches.append(info)
    out = "; generated by dev/gen.py -- LN + MQA attention + SwiGLU block for gfx950\n"
    for name, grid, block, lds, vg in launches:
        out += f"; @launch kernel={name} grid=({grid},1,1) block=({block},1,1) lds={lds}\n"
    out += '.amdgcn_target "amdgcn-amd-amdhsa--gfx950"\n.text\n'
    for name, (t, info) in texts.items():
        out += kernel_header(name) + t
    out += '.section .rodata,"a"\n'
    for name, (t, info) in texts.items():
        out += kernel_desc(name, info[4])
    return out


if __name__ == "__main__":
    order = sys.argv[2].split(",") if len(sys.argv) > 2 else DEFAULT
    open(sys.argv[1], "w").write(build(order))
```

```python
import math
import struct
import sys

from asmlib import Asm

XF = 0x0
QF = 0x280000
KF = 0x500000
VF = 0x514000
KN = 0x52A000
OF = 0x530000
HF = 0x800000
FP = 0x1000000
WS_END = 0x2500000
TS = 0x2400000
import os
STAMP = os.environ.get("STAMP", "")


_stamp_n = {}


def stamp(a, name, vreg=255):
    if name in STAMP.split(","):
        i = _stamp_n.get(name, 0)
        _stamp_n[name] = i + 1
        a("s_memtime s[100:101]")
        a("s_waitcnt lgkmcnt(0)")
        a(f"v_writelane_b32 v{vreg}, s100, {i}")


def stamp_begin(a, name, vreg=255):
    if name in STAMP.split(","):
        a("s_memrealtime s[98:99]")
        a("s_waitcnt lgkmcnt(0)")
        a(f"v_writelane_b32 v{vreg}, s98, 14")
    stamp(a, name, vreg)


def stamp_end(a, name, sws, s_w, vtmp, s_wg=2, vreg=255):
    if name in STAMP.split(","):
        a("s_waitcnt vmcnt(0) lgkmcnt(0)")
        stamp(a, name, vreg)
        a("s_memrealtime s[98:99]")
        a("s_waitcnt lgkmcnt(0)")
        a(f"v_writelane_b32 v{vreg}, s98, 15")
        a(f"s_lshl_b32 s94, s{s_wg}, 2")
        a(f"s_add_u32 s94, s94, s{s_w}")
        a("s_lshl_b32 s94, s94, 6")
        a(f"s_add_u32 s94, s94, {TS}")
        a(f"v_and_b32 v{vtmp}, 63, v0")
        a(f"v_lshlrev_b32 v{vtmp}, 2, v{vtmp}")
        a("s_mov_b64 s[98:99], exec")
        a("s_mov_b64 exec, 0xffff")
        a(f"buffer_store_dword v{vreg}, v{vtmp}, s[{sws}:{sws+3}], s94 offen")
        a("s_mov_b64 exec, s[98:99]")


QSCALE = (20 ** -0.5) * math.log2(math.e)


def f2u(x):
    return struct.unpack("<I", struct.pack("<f", x))[0]


def hx(x):
    return "0x%x" % x


def srd(a, d, base, size):
    a(f"s_mov_b32 s{d}, s{base}")
    a(f"s_and_b32 s{d+1}, s{base+1}, 0xffff")
    a(f"s_mov_b32 s{d+2}, {hx(size)}")
    a(f"s_mov_b32 s{d+3}, 0x00020000")


def vr(b, n=1):
    return f"v{b}" if n == 1 else f"v[{b}:{b+n-1}]"


def mfma32(a, d, x, y, c=None):
    cs = vr(d, 16) if c is None else c
    a(f"v_mfma_f32_32x32x16_bf16 {vr(d,16)}, {vr(x,4)}, {vr(y,4)}, {cs}")


def kernel_header(name):
    return f""".globl {name}
.p2align 8
.type {name},@function
"""


def kernel_desc(name, vgprs, sgprs=102):
    acc = (vgprs + 3) // 4 * 4
    return f""".p2align 6
.amdhsa_kernel {name}
  .amdhsa_next_free_vgpr {vgprs}
  .amdhsa_next_free_sgpr {sgprs}
  .amdhsa_accum_offset {acc}
  .amdhsa_group_segment_fixed_size 0
  .amdhsa_kernarg_size 96
  .amdhsa_user_sgpr_count 2
  .amdhsa_user_sgpr_kernarg_segment_ptr 1
  .amdhsa_system_sgpr_workgroup_id_x 1
.end_amdhsa_kernel
"""


K_X = 16
K_ACC = 96
K_A = 192
K_T = 216
WAVE_LDS = 30720
LDS_STG = 8192


def typek_mfma_phase(a, vtr, zero=True):
    def reads(s, buf):
        for ct in range(3):
            o = (3 * s + ct) * 1024
            r = K_A + buf * 12 + ct * 4
            a(f"ds_read_b64_tr_b16 {vr(r,2)}, v{vtr} offset:{o}")
            a(f"ds_read_b64_tr_b16 {vr(r+2,2)}, v{vtr} offset:{o+256}")
    reads(0, 0)
    for s in range(10):
        if s + 1 < 10:
            reads(s + 1, (s + 1) & 1)
            a("s_waitcnt lgkmcnt(6)")
        else:
            a("s_waitcnt lgkmcnt(0)")
        for ct in range(3):
            for rt in range(2):
                d = K_ACC + (rt * 3 + ct) * 16
                mfma32(a, d, K_A + (s & 1) * 12 + ct * 4, K_X + rt * 40 + s * 4, "0" if (s == 0 and zero) else None)


def typek_reduce(a, vslab, vrd, s_w):
    for rt in range(2):
        for ct in range(3):
            for g in range(4):
                r = K_ACC + (rt * 3 + ct) * 16 + g * 4
                a(f"ds_write_b128 v{vslab}, {vr(r,4)} offset:{rt*12800 + ct*128 + g*32}")
    a("s_waitcnt lgkmcnt(0)")
    a("s_barrier")
    for j in range(4):
        for rt in range(2):
            for ct in range(3):
                t = rt * 3 + ct
                base = LDS_STG + j * WAVE_LDS + rt * 12800 + ct * 128
                if j < 2:
                    a(f"ds_read_b128 {vr(K_ACC+(j*6+t)*4,4)}, v{vrd} offset:{base}")
                else:
                    a(f"ds_read_b128 {vr(K_ACC+(j*6+t)*4,4)}, v{vrd+1} offset:{base-2*WAVE_LDS}")
    a("s_waitcnt lgkmcnt(0)")
    for t in range(6):
        for e in range(0, 4, 2):
            r0 = K_ACC + t * 4 + e
            a(f"v_pk_add_f32 {vr(r0,2)}, {vr(r0,2)}, {vr(r0+24,2)}")
            a(f"v_pk_add_f32 {vr(r0+48,2)}, {vr(r0+48,2)}, {vr(r0+72,2)}")
    for t in range(6):
        for e in range(0, 4, 2):
            r0 = K_ACC + t * 4 + e
            a(f"v_pk_add_f32 {vr(K_X+t*4+e,2)}, {vr(r0,2)}, {vr(r0+48,2)}")


def lane_setup(a, T, vLane, vN, vH, s_w):
    a(f"v_and_b32 v{vLane}, 63, v0")
    a(f"v_lshrrev_b32 v{T}, 6, v0")
    a(f"v_readfirstlane_b32 s{s_w}, v{T}")
    a(f"v_and_b32 v{vN}, 31, v0")
    a(f"v_bfe_u32 v{vH}, v0, 5, 1")


def tr_base(a, vTr, T, vLane, vH, hshift):
    a(f"v_lshlrev_b32 v{vTr}, {hshift}, v{vH}")
    a(f"v_bfe_u32 v{T}, v{vLane}, 2, 2")
    a(f"v_lshl_add_u32 v{vTr}, v{T}, 6, v{vTr}")
    a(f"v_bfe_u32 v{T}, v{vLane}, 4, 1")
    a(f"v_lshl_add_u32 v{vTr}, v{T}, 5, v{vTr}")
    a(f"v_and_b32 v{T}, 3, v{vLane}")
    a(f"v_lshl_add_u32 v{vTr}, v{T}, 3, v{vTr}")


def gen_qkv():
    a = Asm()
    a.label("qkv_kernel")
    ST = 0
    NB = 4096
    MX = 6144
    s_w, s_rb, s_cb = 32, 33, 34
    SX, SW, SKV, SWS = 16, 20, 24, 28
    vLane, vN, vH = 1, 2, 3
    vXo, vWo, vKo, vTr, vSlab, vRd = 4, 5, 6, 7, 8, 9
    vSt = 11
    T = K_T
    a("s_cmp_ge_u32 s2, 256")
    a("s_cbranch_scc1 qkv_end")
    stamp_begin(a, "qkv")
    a("s_load_dwordx4 s[4:7], s[0:1], 0")
    a("s_load_dwordx4 s[8:11], s[0:1], 16")
    a("s_load_dwordx2 s[12:13], s[0:1], 88")
    lane_setup(a, T, vLane, vN, vH, s_w)
    a("s_and_b32 s3, s2, 7")
    a("s_lshr_b32 s35, s2, 3")
    a("s_and_b32 s36, s35, 3")
    a("s_lshl_b32 s3, s3, 2")
    a(f"s_add_u32 s{s_rb}, s3, s36")
    a(f"s_lshr_b32 s{s_cb}, s35, 2")
    a(f"v_mul_u32_u24 v{vXo}, 1280, v{vN}")
    a(f"v_lshl_add_u32 v{vXo}, v{vH}, 4, v{vXo}")
    a(f"v_lshrrev_b32 v{T}, 2, v{vLane}")
    a(f"v_mul_u32_u24 v{vWo}, 1280, v{T}")
    a(f"v_and_b32 v{T}, 3, v{vLane}")
    a(f"v_lshl_add_u32 v{vWo}, v{T}, 4, v{vWo}")
    a(f"v_lshrrev_b32 v{T}, 4, v{vLane}")
    a(f"v_mul_u32_u24 v{vKo}, 40, v{T}")
    a(f"v_and_b32 v{T}, 15, v{vLane}")
    a(f"v_lshl_add_u32 v{vKo}, v{T}, 2, v{vKo}")
    tr_base(a, vTr, T, vLane, vH, 9)
    a(f"s_mul_i32 s37, s{s_w}, {WAVE_LDS}")
    a(f"s_add_u32 s37, s37, {LDS_STG}")
    a(f"v_add_u32 v{vTr}, s37, v{vTr}")
    a(f"v_mul_u32_u24 v{vRd}, 400, v{vN}")
    a(f"v_lshl_add_u32 v{vRd}, v{vH}, 4, v{vRd}")
    a(f"v_add_u32 v{vSlab}, s37, v{vRd}")
    a(f"s_lshl_b32 s38, s{s_w}, 5")
    a(f"v_add_u32 v{vRd}, s38, v{vRd}")
    a(f"v_add_u32 v{vRd+1}, {2*WAVE_LDS}, v{vRd}")
    a("s_waitcnt lgkmcnt(0)")
    srd(a, SX, 4, 2621440)
    srd(a, SW, 6, 819200)
    srd(a, SWS, 12, WS_END)
    a(f"s_cmp_eq_u32 s{s_cb}, 7")
    a("s_cselect_b32 s8, s10, s8")
    a("s_cselect_b32 s9, s11, s9")
    srd(a, SKV, 8, 25600)
    a(f"s_mul_i32 s39, s{s_rb}, {64*1280}")
    a(f"s_mul_i32 s40, s{s_w}, 320")
    a("s_add_u32 s39, s39, s40")
    a(f"s_add_u32 s40, s39, {32*1280}")
    for rt in range(2):
        for s in range(10):
            a(f"buffer_load_dwordx4 {vr(K_X+rt*40+s*4,4)}, v{vXo}, s[{SX}:{SX+3}], s{39+rt} offen offset:{32*s}")
    a(f"s_mul_i32 s41, s{s_w}, {160*1280}")
    a(f"s_mul_i32 s42, s{s_cb}, 192")
    a("s_add_u32 s41, s41, s42")
    a(f"s_mul_i32 s43, s{s_w}, {160*40}")

    def wq_dma(cts):
        for s in range(10):
            for ct in cts:
                a(f"s_add_u32 m0, s37, {(3*s+ct)*1024}")
                a(f"s_add_u32 s44, s41, {s*16*1280 + ct*64}")
                a(f"buffer_load_dwordx4 v{vWo}, s[{SW}:{SW+3}], s44 offen lds")

    def kv_dma(ct):
        for s in range(10):
            for qd in range(4):
                a(f"s_add_u32 m0, s37, {(3*s+ct)*1024 + qd*256}")
                a(f"s_add_u32 s44, s43, {(16*s+4*qd)*40}")
                a(f"buffer_load_dword v{vKo}, s[{SKV}:{SKV+3}], s44 offen lds")
    a(f"s_cmp_ge_u32 s{s_cb}, 6")
    a("s_cbranch_scc1 qkv_dma_b")
    wq_dma([0, 1, 2])
    a("s_waitcnt vmcnt(30)")
    a("s_branch qkv_dma_done")
    a.label("qkv_dma_b")
    a(f"s_cmp_eq_u32 s{s_cb}, 7")
    a("s_cbranch_scc1 qkv_dma_c")
    wq_dma([0, 1])
    kv_dma(2)
    a("s_waitcnt vmcnt(60)")
    a("s_branch qkv_dma_done")
    a.label("qkv_dma_c")
    kv_dma(0)
    a("s_waitcnt vmcnt(40)")
    a.label("qkv_dma_done")
    stamp(a, "qkv")
    vOne = T
    a(f"v_mov_b32 v{vOne}, 0x3f803f80")
    for i in range(8):
        a(f"v_mov_b32 v{T+2+i}, 0")
    for i in range(40):
        for rt in range(2):
            x = K_X + rt * 40 + i
            b = T + 2 + rt * 4 + (i & 1) * 2
            a(f"v_dot2_f32_bf16 v{b}, v{x}, v{vOne}, v{b}")
            a(f"v_dot2_f32_bf16 v{b+1}, v{x}, v{x}, v{b+1}")
    for rt in range(2):
        b = T + 2 + rt * 4
        a(f"v_pk_add_f32 {vr(b,2)}, {vr(b,2)}, {vr(b+2,2)}")
    a(f"v_lshlrev_b32 v{vSt}, 6, v{vN}")
    a(f"v_lshl_add_u32 v{T+10}, v{vH}, 3, v{vSt}")
    a(f"s_lshl_b32 s38, s{s_w}, 4")
    a(f"v_add_u32 v{T+10}, s38, v{T+10}")
    for rt in range(2):
        a(f"ds_write_b64 v{T+10}, {vr(T+2+rt*4,2)} offset:{ST + rt*2048}")
    a(f"v_mov_b32 v{T+11}, 0")
    a(f"ds_write_b32 v{T+11}, v{T+11} offset:{MX}")
    a("s_waitcnt lgkmcnt(0)")
    a("s_barrier")
    R = K_ACC
    for rt in range(2):
        for q in range(4):
            a(f"ds_read_b128 {vr(R+rt*16+q*4,4)}, v{vSt} offset:{ST + rt*2048 + q*16}")
    a("s_waitcnt lgkmcnt(0)")
    a(f"s_mov_b32 s45, {hx(f2u(1.0/640))}")
    a(f"s_mov_b32 s46, {hx(f2u(1e-5))}")
    for rt in range(2):
        b = R + rt * 16
        for step in (8, 4, 2):
            for e in range(0, step, 2):
                a(f"v_pk_add_f32 {vr(b+e,2)}, {vr(b+e,2)}, {vr(b+e+step,2)}")
        mu, sq, m_b, t0 = b, b + 1, b + 2, b + 3
        rr = T + 12 + rt * 4
        a(f"v_mul_f32 v{mu}, s45, v{mu}")
        a(f"v_mul_f32 v{sq}, s45, v{sq}")
        a(f"v_fma_f32 v{sq}, -v{mu}, v{mu}, v{sq}")
        a(f"v_max_f32 v{sq}, 0, v{sq}")
        a(f"v_cvt_pk_bf16_f32 v{m_b}, v{mu}, v{sq}")
        a(f"v_and_b32 v{t0}, 0xffff0000, v{m_b}")
        a(f"v_lshlrev_b32 v{m_b}, 16, v{m_b}")
        a(f"v_add_f32 v{t0}, s46, v{t0}")
        a(f"v_cvt_pk_bf16_f32 v{t0}, v{t0}, v{t0}")
        a(f"v_lshlrev_b32 v{t0}, 16, v{t0}")
        a(f"v_sqrt_f32 v{t0}, v{t0}")
        a(f"v_cvt_pk_bf16_f32 v{t0}, v{t0}, v{t0}")
        a(f"v_lshlrev_b32 v{t0}, 16, v{t0}")
        a(f"v_rcp_f32 v{rr}, v{t0}")
        a(f"v_mov_b32 v{rr+1}, v{rr}")
        a(f"v_mul_f32 v{rr+2}, -v{m_b}, v{rr}" if False else f"v_mul_f32_e64 v{rr+2}, -v{m_b}, v{rr}")
        a(f"v_mov_b32 v{rr+3}, v{rr+2}")
    stamp(a, "qkv")
    a("s_mov_b32 s47, 0xffff0000")
    for rt in range(2):
        rr = T + 12 + rt * 4
        for i in range(40):
            x = K_X + rt * 40 + i
            u = T + 20 + (i & 3) * 2
            a(f"v_lshlrev_b32 v{u}, 16, v{x}")
            a(f"v_and_b32 v{u+1}, s47, v{x}")
            a(f"v_pk_fma_f32 {vr(u,2)}, {vr(u,2)}, {vr(rr,2)}, {vr(rr+2,2)}")
            a(f"v_cvt_pk_bf16_f32 v{x}, v{u}, v{u+1}")
    stamp(a, "qkv")
    a("s_waitcnt vmcnt(0)")
    stamp(a, "qkv")
    a(f"s_cmp_lg_u32 s{s_cb}, 7")
    a("s_cbranch_scc1 qkv_noxn")
    a(f"v_lshlrev_b32 v{T}, 4, v{vLane}")
    a(f"s_mul_i32 s39, s{s_rb}, {2*40*1024}")
    a(f"s_mul_i32 s40, s{s_w}, {10*1024}")
    a("s_add_u32 s39, s39, s40")
    for rt in range(2):
        for s in range(10):
            a(f"s_add_u32 s44, s39, {XF + rt*40*1024 + s*1024}")
            a(f"buffer_store_dwordx4 {vr(K_X+rt*40+s*4,4)}, v{T}, s[{SWS}:{SWS+3}], s44 offen")
    a.label("qkv_noxn")
    typek_mfma_phase(a, vTr)
    stamp(a, "qkv")
    typek_reduce(a, vSlab, vRd, s_w)
    stamp(a, "qkv")
    vC0, vHead, vD0, vOff, vA = T, T + 1, T + 2, T + 3, T + 4
    a(f"s_mov_b32 s45, {hx(f2u(QSCALE))}")
    a("s_mov_b32 s46, 3277")
    a(f"s_mul_i32 s38, s{s_cb}, 96")
    a(f"s_lshl_b32 s39, s{s_w}, 3")
    a("s_add_u32 s38, s38, s39")
    a(f"s_mul_i32 s48, s{s_rb}, {2*32*1280}")
    a(f"s_add_u32 s48, s48, {QF}")
    a(f"s_add_u32 s49, s48, {32*1280}")
    a(f"s_mul_i32 s50, s{s_cb}, 3")

    def frag_off(vD0, vOff):
        a(f"v_lshrrev_b32 v{vA}, 3, v{vD0}")
        a(f"v_lshlrev_b32 v{vA}, 9, v{vA}")
        a(f"v_lshl_add_u32 v{vA}, v{vN}, 4, v{vA}")
        a(f"v_and_b32 v{vA+1}, 4, v{vD0}")
        a(f"v_lshl_add_u32 v{vA}, v{vA+1}, 1, v{vA}")
        a(f"v_lshlrev_b32 v{vA+1}, 3, v{vN}")
        a(f"v_add_u32 v{vA+1}, 1024, v{vA+1}")
        a(f"v_cmp_gt_u32 vcc, 16, v{vD0}")
        a(f"v_cndmask_b32 v{vA}, v{vA+1}, v{vA}, vcc")
        a(f"v_add_u32 v{vOff}, v{vOff}, v{vA}")

    for ct in range(3):
        a(f"s_add_u32 s51, s50, {ct}")
        a("s_cmp_ge_u32 s51, 20")
        a(f"s_cbranch_scc1 qkv_notq{ct}")
        a(f"v_lshlrev_b32 v{vC0}, 2, v{vH}")
        a(f"v_add_u32 v{vC0}, s38, v{vC0}")
        if ct:
            a(f"v_add_u32 v{vC0}, {32*ct}, v{vC0}")
        a(f"v_mul_u32_u24 v{vHead}, s46, v{vC0}")
        a(f"v_lshrrev_b32 v{vHead}, 16, v{vHead}")
        a(f"v_mul_u32_u24 v{vD0}, 20, v{vHead}")
        a(f"v_sub_u32 v{vD0}, v{vC0}, v{vD0}")
        a(f"v_mul_u32_u24 v{vOff}, 1280, v{vHead}")
        frag_off(vD0, vOff)
        for rt in range(2):
            r = K_X + (rt * 3 + ct) * 4
            for e in range(4):
                a(f"v_mul_f32 v{r+e}, s45, v{r+e}")
            a(f"v_cvt_pk_bf16_f32 v{r}, v{r}, v{r+1}")
            a(f"v_cvt_pk_bf16_f32 v{r+1}, v{r+2}, v{r+3}")
            a(f"buffer_store_dwordx2 {vr(r,2)}, v{vOff}, s[{SWS}:{SWS+3}], s{48+rt} offen")
        a.label(f"qkv_notq{ct}")
    stamp_end(a, "qkv", SWS, s_w, 240)
    a(f"s_cmp_lt_u32 s{s_cb}, 6")
    a("s_cbranch_scc1 qkv_end")
    P = T + 8
    a(f"s_cmp_eq_u32 s{s_cb}, 7")
    a("s_cbranch_scc1 qkv_mvv")
    for rt in range(2):
        for e in range(4):
            a(f"v_mov_b32 v{P+rt*4+e}, v{K_X+(rt*3+2)*4+e}")
    a("s_branch qkv_mvd")
    a.label("qkv_mvv")
    for rt in range(2):
        for e in range(4):
            a(f"v_mov_b32 v{P+rt*4+e}, v{K_X+(rt*3+0)*4+e}")
    a.label("qkv_mvd")
    a(f"v_lshlrev_b32 v{vD0}, 2, v{vH}")
    a(f"v_add_u32 v{vD0}, s39, v{vD0}")
    a(f"v_cmp_gt_u32 s[52:53], 20, v{vD0}")
    a(f"v_lshlrev_b32 v{vA}, 5, v{vN}")
    a(f"v_add_u32 v{vA}, v{vA}, v{vD0}")
    for rt in range(2):
        q = T + 16 + rt
        a(f"v_mul_f32 v{q}, v{P+rt*4}, v{P+rt*4}")
        for e in range(1, 4):
            a(f"v_fmac_f32 v{q}, v{P+rt*4+e}, v{P+rt*4+e}")
        a(f"v_cndmask_b32 v{q}, 0, v{q}, s[52:53]")
        a(f"ds_write_b32 v{vA}, v{q} offset:{NB + rt*1024}")
    for rt in range(2):
        r = P + rt * 4
        a(f"v_cvt_pk_bf16_f32 v{r}, v{r}, v{r+1}")
        a(f"v_cvt_pk_bf16_f32 v{r+1}, v{r+2}, v{r+3}")
    a("s_mov_b64 s[54:55], exec")
    a("s_and_b64 exec, exec, s[52:53]")
    a("s_cbranch_execz qkv_kvst_done")
    a(f"s_mul_i32 s48, s{s_rb}, {2*1280}")
    a(f"s_cmp_eq_u32 s{s_cb}, 7")
    a("s_cbranch_scc1 qkv_vst")
    a(f"s_add_u32 s48, s48, {KF}")
    a("s_add_u32 s49, s48, 1280")
    a(f"v_mov_b32 v{vOff}, 0")
    frag_off(vD0, vOff)
    for rt in range(2):
        a(f"buffer_store_dwordx2 {vr(P+rt*4,2)}, v{vOff}, s[{SWS}:{SWS+3}], s{48+rt} offen")
    a("s_branch qkv_kvst_done")
    a.label("qkv_vst")
    a(f"s_mul_i32 s48, s{s_rb}, {2*1344}")
    a(f"s_add_u32 s48, s48, {VF}")
    a("s_add_u32 s49, s48, 1344")
    a(f"v_lshrrev_b32 v{vA}, 4, v{vN}")
    a(f"v_lshlrev_b32 v{vA}, 1, v{vA}")
    a(f"v_bfe_u32 v{vA+1}, v{vN}, 2, 1")
    a(f"v_add_u32 v{vA}, v{vA}, v{vA+1}")
    a(f"v_mul_u32_u24 v{vA}, 21, v{vA}")
    a(f"v_add_u32 v{vA}, v{vA}, v{vD0}")
    a(f"v_lshlrev_b32 v{vOff}, 4, v{vA}")
    a(f"v_and_b32 v{vA}, 3, v{vN}")
    a(f"v_lshl_add_u32 v{vOff}, v{vA}, 1, v{vOff}")
    a(f"v_bfe_u32 v{vA}, v{vN}, 3, 1")
    a(f"v_lshl_add_u32 v{vOff}, v{vA}, 3, v{vOff}")
    for rt in range(2):
        r = P + rt * 4
        a(f"buffer_store_short v{r}, v{vOff}, s[{SWS}:{SWS+3}], s{48+rt} offen")
        a(f"buffer_store_short_d16_hi v{r}, v{vOff}, s[{SWS}:{SWS+3}], s{48+rt} offen offset:16")
        a(f"buffer_store_short v{r+1}, v{vOff}, s[{SWS}:{SWS+3}], s{48+rt} offen offset:32")
        a(f"buffer_store_short_d16_hi v{r+1}, v{vOff}, s[{SWS}:{SWS+3}], s{48+rt} offen offset:48")
    a.label("qkv_kvst_done")
    a("s_mov_b64 exec, s[54:55]")
    a(f"s_cmp_lg_u32 s{s_cb}, 7")
    a("s_cbranch_scc1 qkv_noones")
    a(f"s_cmp_lg_u32 s{s_w}, 3")
    a("s_cbranch_scc1 qkv_noones")
    a(f"s_mul_i32 s48, s{s_rb}, {2*1344}")
    a(f"s_add_u32 s48, s48, {VF + 320}")
    a(f"v_mul_u32_u24 v{vOff}, 336, v{vLane}")
    for e in range(4):
        a(f"v_mov_b32 v{P+e}, 0x3f803f80")
    a("s_mov_b64 exec, 0xff")
    a(f"buffer_store_dwordx4 {vr(P,4)}, v{vOff}, s[{SWS}:{SWS+3}], s48 offen")
    a("s_mov_b64 exec, s[54:55]")
    a.label("qkv_noones")
    a("s_waitcnt lgkmcnt(0)")
    a("s_barrier")
    a(f"s_cmp_lg_u32 s{s_w}, 0")
    a("s_cbranch_scc1 qkv_end")
    a(f"v_lshlrev_b32 v{vA}, 5, v{vLane}")
    a(f"ds_read_b128 {vr(P,4)}, v{vA} offset:{NB}")
    a(f"ds_read_b128 {vr(P+4,4)}, v{vA} offset:{NB+16}")
    a("s_waitcnt lgkmcnt(0)")
    for e in range(1, 8):
        a(f"v_add_f32 v{P}, v{P}, v{P+e}")
    a(f"v_mov_b32 v{vA}, 0")
    a(f"ds_max_u32 v{vA}, v{P} offset:{MX}")
    a("s_waitcnt lgkmcnt(0)")
    a(f"ds_read_b32 v{P}, v{vA} offset:{MX}")
    a(f"s_sub_u32 s48, s{s_cb}, 6")
    a("s_lshl_b32 s48, s48, 5")
    a(f"s_add_u32 s48, s48, s{s_rb}")
    a("s_lshl_b32 s48, s48, 2")
    a(f"s_add_u32 s48, s48, {KN}")
    a("s_waitcnt lgkmcnt(0)")
    a(f"buffer_store_dword v{P}, v{vA}, s[{SWS}:{SWS+3}], s48 offen")
    a.label("qkv_end")
    a("s_endpgm")
    return a.finish(), ("qkv_kernel", 256, 256, 131072, 256)


A_Q, A_O, A_S, A_P, A_K, A_V, A_M = 16, 48, 112, 144, 160, 176, 192
A_T = 196
OOB = 0x80000000


def gen_attn_body(a, pfx, s_wg):
    s_w, s_rt, s_kh, s_hd = 32, 33, 34, 35
    SWS = 28
    vLane, vN, vH = 1, 2, 3
    vK1, vK2, vV = 4, 5, 6
    T = A_T
    a("s_load_dwordx2 s[12:13], s[0:1], 88")
    lane_setup(a, T, vLane, vN, vH, s_w)
    a(f"s_lshr_b32 s{s_rt}, s{s_wg}, 2")
    a(f"s_and_b32 s3, s{s_wg}, 3")
    a(f"s_and_b32 s{s_kh}, s{s_w}, 1")
    a(f"s_lshr_b32 s36, s{s_w}, 1")
    a("s_lshl_b32 s3, s3, 3")
    a("s_lshl_b32 s36, s36, 2")
    a(f"s_add_u32 s{s_hd}, s3, s36")
    a(f"v_lshlrev_b32 v{vK1}, 4, v{vLane}")
    a(f"v_lshlrev_b32 v{vK2}, 3, v{vN}")
    a(f"v_add_u32 v{vK2}, 1024, v{vK2}")
    a(f"v_mov_b32 v{T}, {hx(OOB)}")
    a(f"v_cmp_eq_u32 vcc, 0, v{vH}")
    a(f"v_cndmask_b32 v{vK2}, v{T}, v{vK2}, vcc")
    a(f"v_mul_u32_u24 v{vV}, 21, v{vH}")
    a(f"v_add_u32 v{vV}, v{vV}, v{vN}")
    a(f"v_lshlrev_b32 v{vV}, 4, v{vV}")
    a(f"v_cmp_gt_u32 vcc, 21, v{vN}")
    a(f"v_cndmask_b32 v{vV}, v{T}, v{vV}, vcc")
    a("s_waitcnt lgkmcnt(0)")
    srd(a, SWS, 12, WS_END)
    a(f"s_add_u32 s12, s12, {KN}")
    a("s_addc_u32 s13, s13, 0")
    a("s_load_dwordx16 s[64:79], s[12:13], 0")
    a("s_load_dwordx16 s[80:95], s[12:13], 64")
    a("s_load_dwordx16 s[44:59], s[12:13], 128")
    a(f"s_lshl_b32 s36, s{s_rt}, 5")
    a(f"s_add_u32 s36, s36, s{s_hd}")
    a("s_mul_i32 s36, s36, 1280")
    a(f"s_add_u32 s36, s36, {QF}")
    for i in range(4):
        a(f"buffer_load_dwordx4 {vr(A_Q+8*i,4)}, v{vK1}, s[{SWS}:{SWS+3}], s36 offen")
        a(f"buffer_load_dwordx2 {vr(A_Q+8*i+4,2)}, v{vK2}, s[{SWS}:{SWS+3}], s36 offen")
        if i < 3:
            a("s_add_u32 s36, s36, 1280")
    s_kp, s_vp = 37, 38
    a(f"s_mul_i32 s{s_kp}, s{s_kh}, {32*1280}")
    a(f"s_add_u32 s{s_kp}, s{s_kp}, {KF}")
    a(f"s_mul_i32 s{s_vp}, s{s_kh}, {32*1344}")
    a(f"s_add_u32 s{s_vp}, s{s_vp}, {VF}")

    def loadK(st):
        a(f"buffer_load_dwordx4 {vr(A_K+8*st,4)}, v{vK1}, s[{SWS}:{SWS+3}], s{s_kp} offen")
        a(f"buffer_load_dwordx2 {vr(A_K+8*st+4,2)}, v{vK2}, s[{SWS}:{SWS+3}], s{s_kp} offen")
        a(f"s_add_u32 s{s_kp}, s{s_kp}, 1280")

    def loadV(st):
        a(f"buffer_load_dwordx4 {vr(A_V+8*st,4)}, v{vV}, s[{SWS}:{SWS+3}], s{s_vp} offen")
        a(f"buffer_load_dwordx4 {vr(A_V+8*st+4,4)}, v{vV}, s[{SWS}:{SWS+3}], s{s_vp} offen offset:672")
        a(f"s_add_u32 s{s_vp}, s{s_vp}, 1344")
    loadK(0)
    loadV(0)
    loadK(1)
    for i in range(4):
        a(f"v_mov_b32 v{A_Q+8*i+6}, 0")
        a(f"v_mov_b32 v{A_Q+8*i+7}, 0")
    for st in range(2):
        a(f"v_mov_b32 v{A_K+8*st+6}, 0")
        a(f"v_mov_b32 v{A_K+8*st+7}, 0")
    for r in range(64):
        a(f"v_mov_b32 v{A_O+r}, 0")
    for r in range(16):
        a(f"v_mov_b32 v{A_P+r}, 0")
    for r in range(8):
        a(f"v_mov_b32 v{A_V+8+r}, 0")
    for r in range(4):
        a(f"v_mov_b32 v{A_M+r}, 0")
    a("s_waitcnt lgkmcnt(0)")
    for r in range(65, 96):
        a(f"s_max_u32 s64, s64, s{r}")
    for r in range(45, 60):
        a(f"s_max_u32 s44, s44, s{r}")
    a("s_load_dwordx16 s[80:95], s[12:13], 192")
    a("s_waitcnt lgkmcnt(0)")
    for r in range(80, 96):
        a(f"s_max_u32 s44, s44, s{r}")
    a("s_waitcnt vmcnt(6)")
    for i in range(4):
        a(f"v_mov_b32 v{T+i}, 0")
    for r in range(6):
        for i in range(4):
            a(f"v_dot2_f32_bf16 v{T+i}, v{A_Q+8*i+r}, v{A_Q+8*i+r}, v{T+i}")
    for i in range(4):
        a(f"v_mov_b32 v{T+4+i}, v{T+i}")
    for i in range(4):
        a(f"v_permlane32_swap_b32 v{T+i}, v{T+4+i}")
    for i in range(4):
        a(f"v_add_f32 v{T+i}, v{T+i}, v{T+4+i}")
    a(f"v_max3_f32 v{T}, v{T}, v{T+1}, v{T+2}")
    a(f"v_max_f32 v{T}, v{T}, v{T+3}")
    a(f"v_mul_f32 v{T}, s64, v{T}")
    a(f"v_mov_b32 v{T+1}, {hx(f2u(3600.0/1.05))}")
    a(f"v_cmp_nle_f32 vcc, v{T}, v{T+1}")
    a(f"s_cmp_gt_u32 s44, {hx(f2u(2.0**80))}")
    a(f"s_cbranch_scc1 {pfx}_slow")
    a(f"s_cbranch_vccnz {pfx}_slow")

    def qk(m, sb, ks, i):
        if m == 0:
            mfma32(a, A_S + 16 * sb, A_K + 8 * ks, A_Q + 8 * i, "0")
        else:
            mfma32(a, A_S + 16 * sb, A_K + 8 * ks + 4, A_Q + 8 * i + 4)

    def pv(m, pb, vs, i):
        mfma32(a, A_O + 16 * i, A_V + 8 * vs + 4 * m, A_P + 8 * pb + 4 * m)

    a("s_waitcnt vmcnt(4)")
    qk(0, 0, 0, 0)
    qk(1, 0, 0, 0)
    stamp(a, "attn")
    a("s_mov_b32 s39, 16")
    a("s_nop 10")
    a.raw(".p2align 6")
    a.label(f"{pfx}_loop")
    for kk in range(2):
        for i in range(4):
            cur = i & 1
            S = A_S + 16 * cur
            P = A_P + 8 * cur
            nks, ni = (kk, i + 1) if i < 3 else (kk ^ 1, 0)
            pvs, pi = (kk, i - 1) if i > 0 else (kk ^ 1, 3)
            if i == 1:
                a("s_waitcnt vmcnt(2)")
            if i == 3:
                a("s_waitcnt vmcnt(2)")
            qk(0, cur ^ 1, nks, ni)
            for e in range(0, 4):
                a(f"v_exp_f32 v{S+e}, v{S+e}")
            qk(1, cur ^ 1, nks, ni)
            if i == 1:
                loadV(kk ^ 1)
            if i == 3:
                loadK(kk)
            for e in range(4, 8):
                a(f"v_exp_f32 v{S+e}, v{S+e}")
            pv(0, cur ^ 1, pvs, pi)
            for e in range(8, 12):
                a(f"v_exp_f32 v{S+e}, v{S+e}")
            for j in range(0, 2):
                a(f"v_cvt_pk_bf16_f32 v{P+j}, v{S+2*j}, v{S+2*j+1}")
            pv(1, cur ^ 1, pvs, pi)
            for e in range(12, 16):
                a(f"v_exp_f32 v{S+e}, v{S+e}")
            for j in range(2, 8):
                a(f"v_cvt_pk_bf16_f32 v{P+j}, v{S+2*j}, v{S+2*j+1}")
    a("s_sub_u32 s39, s39, 1")
    a("s_cmp_lg_u32 s39, 0")
    a(f"s_cbranch_scc1 {pfx}_loop")
    pv(0, 1, 1, 3)
    pv(1, 1, 1, 3)
    stamp(a, "attn")
    a(f"s_branch {pfx}_epi")

    a.label(f"{pfx}_slow")
    for r in range(4):
        a(f"v_mov_b32 v{A_M+r}, {hx(f2u(-1e30))}")
    a("s_mov_b32 s39, 32")
    a(f"s_sub_u32 s{s_kp}, s{s_kp}, 1280")
    a.label(f"{pfx}_sloop")
    a("s_waitcnt vmcnt(0)")
    for i in range(4):
        S, P, M = A_S, A_P, A_M + i
        qk(0, 0, 0, i)
        qk(1, 0, 0, i)
        a(f"v_max3_f32 v{T}, v{S}, v{S+1}, v{S+2}")
        for e in range(3, 15, 2):
            a(f"v_max3_f32 v{T}, v{T}, v{S+e}, v{S+e+1}")
        a(f"v_max_f32 v{T}, v{T}, v{S+15}")
        a(f"v_mov_b32 v{T+1}, v{T}")
        a(f"v_permlane32_swap_b32 v{T}, v{T+1}")
        a(f"v_max3_f32 v{T}, v{T}, v{T+1}, v{M}")
        a(f"v_sub_f32 v{T+1}, v{M}, v{T}")
        a(f"v_exp_f32 v{T+1}, v{T+1}")
        a(f"v_mov_b32 v{M}, v{T}")
        for e in range(16):
            a(f"v_sub_f32 v{S+e}, v{S+e}, v{T}")
            a(f"v_exp_f32 v{S+e}, v{S+e}")
        for j in range(8):
            a(f"v_cvt_pk_bf16_f32 v{P+j}, v{S+2*j}, v{S+2*j+1}")
        for e in range(16):
            a(f"v_mul_f32 v{A_O+16*i+e}, v{A_O+16*i+e}, v{T+1}")
        pv(0, 0, 0, i)
        pv(1, 0, 0, i)
    loadK(0)
    loadV(0)
    a("s_sub_u32 s39, s39, 1")
    a("s_cmp_lg_u32 s39, 0")
    a(f"s_cbranch_scc1 {pfx}_sloop")

    a.label(f"{pfx}_epi")
    a("s_waitcnt vmcnt(0)")
    vW, vR = T, T + 1
    a(f"s_mul_i32 s40, s{s_w}, 6656")
    a(f"s_xor_b32 s41, s{s_w}, 1")
    a("s_mul_i32 s41, s41, 6656")
    a(f"v_add_u32 v{vW}, s40, v{vK1}")
    a(f"v_add_u32 v{vR}, s41, v{vK1}")
    a(f"v_lshlrev_b32 v{T+2}, 2, v{vLane}")
    a(f"v_add_u32 v{T+3}, s41, v{T+2}")
    a(f"v_add_u32 v{T+2}, s40, v{T+2}")
    a(f"s_cmp_eq_u32 s{s_kh}, 0")
    a(f"s_cbranch_scc1 {pfx}_e0")
    for t in range(2):
        for q in range(3):
            a(f"ds_write_b128 v{vW}, {vr(A_O+16*t+4*q,4)} offset:{(t*3+q)*1024}")
        a(f"ds_write_b32 v{T+2}, v{A_M+t} offset:{6144+t*256}")
    a("s_waitcnt lgkmcnt(0)")
    for t in range(2):
        for e in range(12):
            a(f"v_mov_b32 v{A_O+16*t+e}, v{A_O+16*(t+2)+e}")
        a(f"v_mov_b32 v{A_M+t}, v{A_M+t+2}")
    a(f"s_add_u32 s{s_hd}, s{s_hd}, 2")
    a(f"s_branch {pfx}_e1")
    a.label(f"{pfx}_e0")
    for t in range(2):
        for q in range(3):
            a(f"ds_write_b128 v{vW}, {vr(A_O+16*(t+2)+4*q,4)} offset:{(t*3+q)*1024}")
        a(f"ds_write_b32 v{T+2}, v{A_M+t+2} offset:{6144+t*256}")
    a("s_waitcnt lgkmcnt(0)")
    a.label(f"{pfx}_e1")
    a("s_barrier")
    for t in range(2):
        for q in range(3):
            a(f"ds_read_b128 {vr(A_S+16*t+4*q,4)}, v{vR} offset:{(t*3+q)*1024}")
        a(f"ds_read_b32 v{A_M+2+t}, v{T+3} offset:{6144+t*256}")
    a("s_waitcnt lgkmcnt(0)")
    a(f"s_mul_i32 s40, s{s_rt}, {40*1024}")
    a(f"s_add_u32 s40, s40, {OF}")
    a(f"v_mov_b32 v{T+12}, {hx(OOB)}")
    a(f"v_cmp_eq_u32 s[42:43], 0, v{vH}")
    for t in range(2):
        O, Pz, Ma, Mp = A_O + 16 * t, A_S + 16 * t, A_M + t, A_M + 2 + t
        a(f"v_max_f32 v{T+4}, v{Ma}, v{Mp}")
        a(f"v_sub_f32 v{T+5}, v{Ma}, v{T+4}")
        a(f"v_sub_f32 v{T+6}, v{Mp}, v{T+4}")
        a(f"v_exp_f32 v{T+5}, v{T+5}")
        a(f"v_exp_f32 v{T+6}, v{T+6}")
        for e in range(12):
            a(f"v_mul_f32 v{O+e}, v{O+e}, v{T+5}")
            a(f"v_fmac_f32 v{O+e}, v{Pz+e}, v{T+6}")
        a(f"v_mov_b32 v{T+7}, v{O+8}")
        a(f"v_mov_b32 v{T+8}, v{O+8}")
        a(f"v_permlane32_swap_b32 v{T+7}, v{T+8}")
        a(f"v_rcp_f32 v{T+8}, v{T+8}")
        for e in range(12):
            a(f"v_mul_f32 v{O+e}, v{O+e}, v{T+8}")
        for q in range(3):
            a(f"v_cvt_pk_bf16_f32 v{O+4*q}, v{O+4*q}, v{O+4*q+1}")
            a(f"v_cvt_pk_bf16_f32 v{O+4*q+1}, v{O+4*q+2}, v{O+4*q+3}")
        a(f"s_add_u32 s41, s{s_hd}, {t}")
        a("s_mul_i32 s41, s41, 20")
        for q in range(3):
            k, off = T + 9, T + 10
            a(f"v_lshlrev_b32 v{k}, 2, v{vH}")
            a(f"v_add_u32 v{k}, s41, v{k}")
            if q:
                a(f"v_add_u32 v{k}, {8*q}, v{k}")
            a(f"v_lshrrev_b32 v{off}, 3, v{k}")
            a(f"v_lshlrev_b32 v{off}, 9, v{off}")
            a(f"v_lshl_add_u32 v{off}, v{vN}, 4, v{off}")
            a(f"v_and_b32 v{k}, 4, v{k}")
            a(f"v_lshl_add_u32 v{off}, v{k}, 1, v{off}")
            if q == 2:
                a(f"v_cndmask_b32 v{off}, v{T+12}, v{off}, s[42:43]")
            a(f"buffer_store_dwordx2 {vr(O+4*q,2)}, v{off}, s[{SWS}:{SWS+3}], s40 offen")


def gen_attn():
    a = Asm()
    a.label("attn_kernel")
    a("s_cmp_ge_u32 s2, 256")
    a("s_cbranch_scc1 attn_end")
    stamp_begin(a, "attn")
    gen_attn_body(a, "attn", 2)
    stamp_end(a, "attn", 28, 32, 200)
    a.label("attn_end")
    a("s_endpgm")
    return a.finish(), ("attn_kernel", 256, 256, 26624, 256 if STAMP else 216)


R_ACC, R_A, R_B, R_T = 16, 112, 160, 208


class TypeR:
    def __init__(self, a, pfx, NT, NS, vTr, vWo, vB, s_w, srd_of_tile, goff, s_bp, SWS, tr2, bmods=""):
        self.__dict__.update(locals())
        self.SLOT = 4 * NT * 1024
        self.sname = {"gu": "gateup", "dn": "down"}[pfx[:2]]
        self.s_m = 60
        self.per = NT + 4

    def dma_ops(self, stage):
        slot = stage % 3
        s_g0, s_g1, gstep = self.goff
        out = []
        for t in range(self.NT):
            sr, grp, tt = self.srd_of_tile(t)
            out.append([f"s_add_u32 m0, s{self.s_m}, {slot*self.SLOT + t*1024}",
                        f"s_add_u32 s61, s{s_g0 if grp == 0 else s_g1}, {stage*gstep + tt*64}",
                        f"buffer_load_dwordx4 v{self.vWo}, s[{sr}:{sr+3}], s61 offen lds"])
        return out

    def b_ops(self, stage):
        slot = stage % 3
        bl = []
        for j in range(4):
            g = []
            if j == 0:
                g.append(f"s_add_u32 s62, s{self.s_bp}, {stage*4096}")
            g.append(f"buffer_load_dwordx4 {vr(R_B+slot*16+j*4,4)}, v{self.vB}, s[{self.SWS}:{self.SWS+3}], s62 offen offset:{j*1024}{self.bmods}")
            bl.append(g)
        return bl

    def vm_ops(self, stage):
        out, bl, res = self.dma_ops(stage), self.b_ops(stage), []
        while out or bl:
            if out:
                res.append(out.pop(0))
            if bl and len(res) > 1:
                res.append(bl.pop(0))
        return res

    def emit(self, groups):
        for g in groups:
            for x in g:
                self.a(x)

    def reads(self, stage, j):
        buf = (stage * 4 + j) & 1
        slot = stage % 3
        base = (slot & 1) * self.SLOT + j * self.NT * 1024
        va = self.vTr + (slot >> 1)
        out = []
        for t in range(self.NT):
            r = R_A + buf * 24 + t * 4
            out.append(f"ds_read_b64_tr_b16 {vr(r,2)}, v{va} offset:{base + t*1024}")
            out.append(f"ds_read_b64_tr_b16 {vr(r+2,2)}, v{va} offset:{base + t*1024 + self.tr2}")
        return out

    def mf(self, stage, j, t):
        buf = (stage * 4 + j) & 1
        first = stage == 0 and j == 0
        mfma32(self.a, R_ACC + 16 * t, R_A + buf * 24 + t * 4, R_B + (stage % 3) * 16 + j * 4, "0" if first else None)

    def setup(self):
        a = self.a
        a(f"s_mul_i32 s{self.s_m}, s{self.s_w}, {self.NT*1024}")
        a(f"v_add_u32 v{self.vTr+1}, {2*self.SLOT}, v{self.vTr}")

    def main(self, first_wait):
        a, NT, NS = self.a, self.NT, self.NS
        stamp(a, self.sname)
        a(f"s_waitcnt vmcnt({first_wait})")
        a("s_barrier")
        stamp(a, self.sname)
        for x in self.reads(0, 0):
            a(x)
        for i in range(NS):
            if i in (1, 2, 4):
                stamp(a, self.sname)
            ops = self.vm_ops(i + 2) if i + 2 < NS else []
            nslots = 3 * NT
            place = {}
            for k, g in enumerate(ops):
                place[(k * nslots) // len(ops)] = g
            for j in range(3):
                rd = self.reads(i, j + 1)
                for t in range(NT):
                    a(f"s_waitcnt lgkmcnt({2*(NT-1)})")
                    self.mf(i, j, t)
                    a(rd[2 * t])
                    a(rd[2 * t + 1])
                    if j * NT + t in place:
                        self.emit([place[j * NT + t]])
            last = i + 1 == NS
            H = NT if last else (NT + 1) // 2
            for t in range(H):
                a(f"s_waitcnt lgkmcnt({2*(NT-1-t)})")
                self.mf(i, 3, t)
            if not last:
                a(f"s_waitcnt vmcnt({self.per if ops else 0}) lgkmcnt(0)")
                a("s_barrier")
                rd = self.reads(i + 1, 0)
                n = NT - H
                for k, t in enumerate(range(H, NT)):
                    self.mf(i, 3, t)
                    for x in rd[(k * len(rd)) // n:((k + 1) * len(rd)) // n]:
                        a(x)


def gen_gateup_body(a, pfx, s_wg, mid_hook=None, smods=''):
    s_w, s_rb, s_cb = 32, 33, 34
    SW1, SW3, SWS = 16, 20, 28
    vLane, vN, vH, vWo, vB, vTr = 1, 2, 3, 4, 5, 6
    T = R_T
    a("s_load_dwordx4 s[4:7], s[0:1], 48")
    a("s_load_dwordx2 s[12:13], s[0:1], 88")
    lane_setup(a, T, vLane, vN, vH, s_w)
    a(f"s_and_b32 s3, s{s_wg}, 7")
    a(f"s_lshr_b32 s35, s{s_wg}, 3")
    a("s_and_b32 s36, s3, 1")
    a("s_lshl_b32 s36, s36, 3")
    a("s_and_b32 s37, s35, 7")
    a(f"s_add_u32 s{s_rb}, s36, s37")
    a("s_lshr_b32 s36, s3, 1")
    a("s_lshl_b32 s36, s36, 2")
    a("s_lshr_b32 s37, s35, 3")
    a(f"s_add_u32 s{s_cb}, s36, s37")
    a(f"v_lshrrev_b32 v{T}, 2, v{vLane}")
    a(f"v_mul_u32_u24 v{vWo}, 3072, v{T}")
    a(f"v_and_b32 v{T}, 3, v{vLane}")
    a(f"v_lshl_add_u32 v{vWo}, v{T}, 4, v{vWo}")
    tr_base(a, vTr, T, vLane, vH, 9)
    a(f"v_lshlrev_b32 v{vB}, 4, v{vLane}")
    a(f"s_mul_i32 s40, s{s_w}, {16*3072}")
    a(f"s_mul_i32 s41, s{s_cb}, 192")
    a("s_add_u32 s40, s40, s41")
    a(f"s_lshl_b32 s42, s{s_rb}, 2")
    a(f"s_add_u32 s42, s42, s{s_w}")
    a(f"s_mul_i32 s43, s42, {40*1024}")
    if XF:
        a(f"s_add_u32 s43, s43, {XF}")
    a("s_waitcnt lgkmcnt(0)")
    srd(a, SW1, 4, 1966080)
    srd(a, SW3, 6, 1966080)
    srd(a, SWS, 12, WS_END)
    R = TypeR(a, pfx, 6, 10, vTr, vWo, vB, s_w,
              lambda t: (SW1, 0, t) if t < 3 else (SW3, 0, t - 3), (40, 40, 64 * 3072), 43, SWS, 256)
    R.setup()
    R.emit(R.vm_ops(0) + R.vm_ops(1))
    R.main(R.per)
    if mid_hook:
        mid_hook()
    stamp(a, "gateup")
    a(f"s_mov_b32 s44, {hx(f2u(-math.log2(math.e)))}")
    a(f"s_mul_i32 s45, s42, {96*1024}")
    a(f"s_mul_i32 s46, s{s_cb}, {6*1024}")
    a("s_add_u32 s45, s45, s46")
    a(f"s_add_u32 s45, s45, {HF}")
    for t in range(3):
        g, u = R_ACC + 16 * t, R_ACC + 16 * (t + 3)
        E = R_A
        for e in range(16):
            a(f"v_mul_f32 v{E+e}, s44, v{g+e}")
        for e in range(16):
            a(f"v_exp_f32 v{E+e}, v{E+e}")
        for e in range(16):
            a(f"v_add_f32 v{E+e}, 1.0, v{E+e}")
        for e in range(16):
            a(f"v_rcp_f32 v{E+e}, v{E+e}")
        for e in range(16):
            a(f"v_mul_f32 v{g+e}, v{g+e}, v{u+e}")
        for e in range(16):
            a(f"v_mul_f32 v{g+e}, v{g+e}, v{E+e}")
        for j in range(8):
            a(f"v_cvt_pk_bf16_f32 v{u+j}, v{g+2*j}, v{g+2*j+1}")
        for hf in range(2):
            o = (2 * t + hf) * 1024
            if o < 4096:
                a(f"buffer_store_dwordx4 {vr(u+4*hf,4)}, v{vB}, s[{SWS}:{SWS+3}], s45 offen offset:{o}{smods}")
            else:
                a(f"s_add_u32 s46, s45, {o}")
                a(f"buffer_store_dwordx4 {vr(u+4*hf,4)}, v{vB}, s[{SWS}:{SWS+3}], s46 offen{smods}")


def gen_gateup():
    a = Asm()
    a.label("gateup_kernel")
    a("s_cmp_ge_u32 s2, 256")
    a("s_cbranch_scc1 gateup_end")
    stamp_begin(a, "gateup")
    gen_gateup_body(a, "gu", 2)
    stamp_end(a, "gateup", 28, 32, 240)
    a.label("gateup_end")
    a("s_endpgm")
    return a.finish(), ("gateup_kernel", 256, 256, 73728, 256 if STAMP else 216)


def gen_down_setup(a, pfx, s_wg, standalone, bmods=""):
    s_w = 32
    s_rb, s_cb, s_kq = 63, 64, 65
    SW, SWS = 24, 28
    vLane, vN, vH, vWo, vB, vTr = 1, 2, 3, 8, 5, 9
    T = R_T
    a("s_load_dwordx2 s[8:9], s[0:1], 64")
    if standalone:
        a("s_load_dwordx2 s[12:13], s[0:1], 88")
        lane_setup(a, T, vLane, vN, vH, s_w)
        a(f"v_lshlrev_b32 v{vB}, 4, v{vLane}")
    a(f"s_and_b32 s3, s{s_wg}, 7")
    a(f"s_lshr_b32 s38, s{s_wg}, 3")
    a("s_and_b32 s36, s3, 1")
    a("s_lshl_b32 s36, s36, 3")
    a("s_and_b32 s37, s38, 7")
    a(f"s_add_u32 s{s_rb}, s36, s37")
    a(f"s_lshr_b32 s{s_kq}, s3, 1")
    a(f"s_lshr_b32 s{s_cb}, s38, 3")
    a(f"v_lshrrev_b32 v{T}, 2, v{vLane}")
    a(f"v_mul_u32_u24 v{vWo}, 1280, v{T}")
    a(f"v_and_b32 v{T}, 3, v{vLane}")
    a(f"v_lshl_add_u32 v{vWo}, v{T}, 4, v{vWo}")
    tr_base(a, vTr, T, vLane, vH, 8)
    a(f"s_mul_i32 s66, s{s_kq}, {384*1280}")
    a(f"s_mul_i32 s37, s{s_w}, {16*1280}")
    a("s_add_u32 s66, s66, s37")
    a(f"s_mul_i32 s37, s{s_cb}, 320")
    a("s_add_u32 s66, s66, s37")
    a(f"s_lshl_b32 s67, s{s_rb}, 2")
    a(f"s_add_u32 s67, s67, s{s_w}")
    a(f"s_mul_i32 s68, s67, {96*1024}")
    a(f"s_mul_i32 s37, s{s_kq}, {24*1024}")
    a("s_add_u32 s68, s68, s37")
    a(f"s_add_u32 s68, s68, {HF}")
    a("s_waitcnt lgkmcnt(0)")
    srd(a, SW, 8, 1966080)
    if standalone:
        srd(a, SWS, 12, WS_END)
    R = TypeR(a, pfx, 5, 6, vTr, vWo, vB, s_w, lambda t: (SW, 0, t), (66, 66, 64 * 1280), 68, SWS, 512, bmods)
    R.setup()
    return R


def gen_down_store(a):
    s_cb, s_kq, SWS, vB = 64, 65, 28, 5
    stamp(a, "down")
    a(f"s_lshl_b32 s45, s{s_kq}, 6")
    a("s_add_u32 s45, s45, s67")
    a("s_mul_i32 s45, s45, 20")
    a(f"s_mul_i32 s46, s{s_cb}, 5")
    a("s_add_u32 s45, s45, s46")
    a("s_lshl_b32 s45, s45, 11")
    a(f"s_add_u32 s45, s45, {FP}")
    for t in range(5):
        r = R_ACC + 16 * t
        for q in range(8):
            a(f"v_cvt_pk_bf16_f32 v{R_A+8*t+q}, v{r+2*q}, v{r+2*q+1}")
        if t == 2 or t == 4:
            a("s_add_u32 s45, s45, 4096")
        for hf in range(2):
            a(f"buffer_store_dwordx4 {vr(R_A+8*t+4*hf,4)}, v{vB}, s[{SWS}:{SWS+3}], s45 offen offset:{((t&1)*2+hf)*1024}")


def gen_down():
    a = Asm()
    a.label("down_kernel")
    a("s_cmp_ge_u32 s2, 256")
    a("s_cbranch_scc1 down_end")
    stamp_begin(a, "down")
    R = gen_down_setup(a, "dn", 2, True)
    R.emit(R.vm_ops(0) + R.vm_ops(1))
    R.main(R.per)
    gen_down_store(a)
    stamp_end(a, "down", 28, 32, 240)
    a.label("down_end")
    a("s_endpgm")
    return a.finish(), ("down_kernel", 256, 256, 61440, 256 if STAMP else 216)


def gen_main():
    a = Asm()
    a.label("main_kernel")
    a("s_cmp_ge_u32 s2, 512")
    a("s_cbranch_scc1 main_end")
    a("s_cmp_ge_u32 s2, 256")
    a("s_cbranch_scc1 main_ffn")
    if PRIO_ATTN:
        a(f"s_setprio {PRIO_ATTN}")
    stamp_begin(a, "mattn")
    gen_attn_body(a, "ma", 2)
    stamp_end(a, "mattn", 28, 32, 200)
    a("s_endpgm")
    a.label("main_ffn")
    if PRIO_FFN:
        a(f"s_setprio {PRIO_FFN}")
    a("s_sub_u32 s69, s2, 256")
    a("s_load_dwordx2 s[10:11], s[0:1], 80")
    stamp_begin(a, "mffn")
    st = {}

    def mid():
        stamp(a, "mffn")
        a("s_barrier")
        st["R"] = gen_down_setup(a, "dn", 69, False, " sc1")
        st["R"].emit(st["R"].dma_ops(0) + st["R"].dma_ops(1))
    gen_gateup_body(a, "gu", 69, mid, " sc1")
    R = st["R"]
    SD = 72
    srd(a, SD, 10, 256)
    a("s_lshl_b32 s70, s63, 2")
    a("s_add_u32 s70, s70, s65")
    a("s_lshl_b32 s70, s70, 2")
    a("s_waitcnt vmcnt(0)")
    a("s_barrier")
    stamp(a, "mffn")
    a("s_cmp_lg_u32 s32, 0")
    a("s_cbranch_scc1 main_polled")
    a(f"v_mov_b32 v{R_T}, 0")
    a(f"v_mov_b32 v{R_T+1}, 1")
    a("s_mov_b64 exec, 1")
    a(f"buffer_atomic_add v{R_T+1}, v{R_T}, s[{SD}:{SD+3}], s70 offen sc1")
    a.label("main_poll")
    a(f"buffer_load_dword v{R_T+2}, v{R_T}, s[{SD}:{SD+3}], s70 offen sc1")
    a("s_waitcnt vmcnt(0)")
    a(f"v_readfirstlane_b32 s71, v{R_T+2}")
    a("s_cmp_ge_u32 s71, 4")
    a("s_cbranch_scc1 main_pdone")
    a("s_sleep 4")
    a("s_branch main_poll")
    a.label("main_pdone")
    a("s_mov_b64 exec, -1")
    a.label("main_polled")
    a("s_barrier")
    stamp(a, "mffn")
    R.emit(R.b_ops(0) + R.b_ops(1))
    R.main(4)
    stamp(a, "mffn")
    gen_down_store(a)
    stamp_end(a, "mffn", 28, 32, 240, 69)
    a.label("main_end")
    a("s_endpgm")
    return a.finish(), ("main_kernel", 512, 256, 73728, 256 if STAMP else 216)


PRIO_ATTN = int(os.environ.get("PRIO_ATTN", "0"))
PRIO_FFN = int(os.environ.get("PRIO_FFN", "0"))


def gen_final():
    a = Asm()
    a.label("final_kernel")
    s_w, s_rb, s_cb = 32, 33, 34
    SX, SW, SO, SWS = 16, 20, 24, 28
    vLane, vN, vH = 1, 2, 3
    vB, vWo, vXo, vTr, vSlab, vRd = 4, 5, 6, 7, 8, 9
    T = K_T
    a("s_cmp_ge_u32 s2, 224")
    a("s_cbranch_scc1 final_end")
    stamp_begin(a, "final")
    a("s_load_dwordx2 s[4:5], s[0:1], 0")
    a("s_load_dwordx2 s[6:7], s[0:1], 32")
    a("s_load_dwordx2 s[8:9], s[0:1], 72")
    a("s_load_dwordx2 s[12:13], s[0:1], 88")
    lane_setup(a, T, vLane, vN, vH, s_w)
    a("s_and_b32 s3, s2, 7")
    a("s_lshr_b32 s35, s2, 3")
    a("s_and_b32 s36, s35, 3")
    a("s_lshl_b32 s3, s3, 2")
    a(f"s_add_u32 s{s_rb}, s3, s36")
    a(f"s_lshr_b32 s{s_cb}, s35, 2")
    a(f"v_lshlrev_b32 v{vB}, 4, v{vLane}")
    a(f"v_lshrrev_b32 v{T}, 2, v{vLane}")
    a(f"v_mul_u32_u24 v{vWo}, 1280, v{T}")
    a(f"v_and_b32 v{T}, 3, v{vLane}")
    a(f"v_lshl_add_u32 v{vWo}, v{T}, 4, v{vWo}")
    a(f"v_mul_u32_u24 v{vXo}, 1280, v{vN}")
    a(f"v_lshl_add_u32 v{vXo}, v{vH}, 3, v{vXo}")
    tr_base(a, vTr, T, vLane, vH, 9)
    a(f"s_mul_i32 s37, s{s_w}, {WAVE_LDS}")
    a(f"s_add_u32 s37, s37, {LDS_STG}")
    a(f"v_add_u32 v{vTr}, s37, v{vTr}")
    a(f"v_mul_u32_u24 v{vRd}, 400, v{vN}")
    a(f"v_lshl_add_u32 v{vRd}, v{vH}, 4, v{vRd}")
    a(f"v_add_u32 v{vSlab}, s37, v{vRd}")
    a(f"s_lshl_b32 s38, s{s_w}, 5")
    a(f"v_add_u32 v{vRd}, s38, v{vRd}")
    a(f"v_add_u32 v{vRd+1}, {2*WAVE_LDS}, v{vRd}")
    a("s_waitcnt lgkmcnt(0)")
    srd(a, SX, 4, 2621440)
    srd(a, SW, 6, 819200)
    srd(a, SO, 8, 2621440)
    srd(a, SWS, 12, WS_END)
    a(f"s_mul_i32 s39, s{s_rb}, {2*40*1024}")
    a(f"s_mul_i32 s40, s{s_w}, {10*1024}")
    a("s_add_u32 s39, s39, s40")
    a(f"s_add_u32 s39, s39, {OF}")
    a(f"s_mul_i32 s41, s{s_w}, {160*1280}")
    a(f"s_mul_i32 s42, s{s_cb}, 192")
    a("s_add_u32 s41, s41, s42")
    for s in range(10):
        for ct in range(3):
            a(f"s_add_u32 m0, s37, {(3*s+ct)*1024}")
            a(f"s_add_u32 s44, s41, {s*16*1280 + ct*64}")
            a(f"buffer_load_dwordx4 v{vWo}, s[{SW}:{SW+3}], s44 offen lds")
        for rt in range(2):
            a(f"s_add_u32 s44, s39, {rt*40*1024 + s*1024}")
            a(f"buffer_load_dwordx4 {vr(K_X+rt*40+s*4,4)}, v{vB}, s[{SWS}:{SWS+3}], s44 offen")
    a(f"s_lshl_b32 s45, s{s_w}, 6")
    a(f"s_lshl_b32 s46, s{s_rb}, 1")
    a("s_add_u32 s45, s45, s46")
    a("s_mul_i32 s45, s45, 20")
    a(f"s_mul_i32 s46, s{s_cb}, 3")
    a("s_add_u32 s45, s45, s46")
    a("s_lshl_b32 s45, s45, 11")
    a(f"s_add_u32 s45, s45, {FP}")
    for rt in range(2):
        for ct in range(3):
            a(f"s_add_u32 s44, s45, {(rt*20+ct)*2048}")
            for hf in range(2):
                a(f"buffer_load_dwordx4 {vr(K_ACC+(rt*3+ct)*16+8+4*hf,4)}, v{vB}, s[{SWS}:{SWS+3}], s44 offen offset:{hf*1024}")
    a(f"s_mul_i32 s47, s{s_rb}, {64*1280}")
    a("s_add_u32 s47, s47, s42")
    a(f"s_lshl_b32 s46, s{s_w}, 4")
    a("s_add_u32 s47, s47, s46")
    a(f"s_add_u32 s48, s47, {32*1280}")
    XR = T + 4
    for rt in range(2):
        for ct in range(3):
            a(f"buffer_load_dwordx2 {vr(XR+(rt*3+ct)*2,2)}, v{vXo}, s[{SX}:{SX+3}], s{47+rt} offen offset:{ct*64}")
    a("s_mov_b32 s49, 0xffff0000")
    a("s_waitcnt vmcnt(0)")
    stamp(a, "final")
    for t in range(6):
        b = K_ACC + t * 16
        for q in range(8):
            a(f"v_lshlrev_b32 v{b+2*q}, 16, v{b+8+q}")
            a(f"v_and_b32 v{b+2*q+1}, s49, v{b+8+q}")
    typek_mfma_phase(a, vTr, zero=False)
    stamp(a, "final")
    typek_reduce(a, vSlab, vRd, s_w)
    stamp(a, "final")
    a("s_mov_b32 s49, 0xffff0000")
    for ct in range(3):
        if ct == 2:
            a(f"s_cmp_eq_u32 s{s_cb}, 6")
            a("s_cbranch_scc1 final_skip")
        for rt in range(2):
            r = K_X + (rt * 3 + ct) * 4
            xr = XR + (rt * 3 + ct) * 2
            for e in range(2):
                a(f"v_lshlrev_b32 v{T}, 16, v{xr+e}")
                a(f"v_and_b32 v{T+1}, s49, v{xr+e}")
                a(f"v_pk_add_f32 {vr(r+2*e,2)}, {vr(r+2*e,2)}, {vr(T,2)}")
            a(f"v_cvt_pk_bf16_f32 v{r}, v{r}, v{r+1}")
            a(f"v_cvt_pk_bf16_f32 v{r+1}, v{r+2}, v{r+3}")
            a(f"buffer_store_dwordx2 {vr(r,2)}, v{vXo}, s[{SO}:{SO+3}], s{47+rt} offen offset:{ct*64}")
    a.label("final_skip")
    stamp_end(a, "final", SWS, s_w, 240)
    a.label("final_end")
    a("s_endpgm")
    return a.finish(), ("final_kernel", 224, 256, 131072, 256)


def gen_empty():
    a = Asm()
    a.label("empty_kernel")
    a("s_endpgm")
    return a.finish(), ("empty_kernel", 256, 256, 65536, 256)


KERNELS = {"empty": gen_empty, "main": gen_main, "qkv": gen_qkv, "gateup": gen_gateup, "attn": gen_attn, "down": gen_down, "final": gen_final}
HEADER = open("parallel_sum__grouped_kv_mqa__glu_gated_swiglu__prompt.s.ref").read().split("; Override launch")[0] if False else ""


DEFAULT = ["qkv", "main", "final"]


def build(order):
    texts, launches = {}, []
    for k in order:
        t, info = KERNELS[k]()
        texts[info[0]] = (t, info)
        launches.append(info)
    out = "; generated by dev/gen.py -- LN + MQA attention + SwiGLU block for gfx950\n"
    for name, grid, block, lds, vg in launches:
        out += f"; @launch kernel={name} grid=({grid},1,1) block=({block},1,1) lds={lds}\n"
    out += '.amdgcn_target "amdgcn-amd-amdhsa--gfx950"\n.text\n'
    for name, (t, info) in texts.items():
        out += kernel_header(name) + t
    out += '.section .rodata,"a"\n'
    for name, (t, info) in texts.items():
        out += kernel_desc(name, info[4])
    return out


if __name__ == "__main__":
    order = sys.argv[2].split(",") if len(sys.argv) > 2 else DEFAULT
    open(sys.argv[1], "w").write(build(order))
```

```python
import math
import struct
import sys

from asmlib import Asm

XF = 0x0
QF = 0x280000
KF = 0x500000
VF = 0x514000
KN = 0x52A000
OF = 0x530000
HF = 0x800000
FP = 0x1000000
WS_END = 0x2500000
TS = 0x2400000
import os
STAMP = os.environ.get("STAMP", "")


_stamp_n = {}


def stamp(a, name, vreg=255):
    if name in STAMP.split(","):
        i = _stamp_n.get(name, 0)
        _stamp_n[name] = i + 1
        a("s_memtime s[100:101]")
        a("s_waitcnt lgkmcnt(0)")
        a(f"v_writelane_b32 v{vreg}, s100, {i}")


def stamp_begin(a, name, vreg=255):
    if name in STAMP.split(","):
        a("s_memrealtime s[98:99]")
        a("s_waitcnt lgkmcnt(0)")
        a(f"v_writelane_b32 v{vreg}, s98, 14")
    stamp(a, name, vreg)


def stamp_end(a, name, sws, s_w, vtmp, s_wg=2, vreg=255):
    if name in STAMP.split(","):
        a("s_waitcnt vmcnt(0) lgkmcnt(0)")
        stamp(a, name, vreg)
        a("s_memrealtime s[98:99]")
        a("s_waitcnt lgkmcnt(0)")
        a(f"v_writelane_b32 v{vreg}, s98, 15")
        a(f"s_lshl_b32 s94, s{s_wg}, 2")
        a(f"s_add_u32 s94, s94, s{s_w}")
        a("s_lshl_b32 s94, s94, 6")
        a(f"s_add_u32 s94, s94, {TS}")
        a(f"v_and_b32 v{vtmp}, 63, v0")
        a(f"v_lshlrev_b32 v{vtmp}, 2, v{vtmp}")
        a("s_mov_b64 s[98:99], exec")
        a("s_mov_b64 exec, 0xffff")
        a(f"buffer_store_dword v{vreg}, v{vtmp}, s[{sws}:{sws+3}], s94 offen")
        a("s_mov_b64 exec, s[98:99]")


QSCALE = (20 ** -0.5) * math.log2(math.e)


def f2u(x):
    return struct.unpack("<I", struct.pack("<f", x))[0]


def hx(x):
    return "0x%x" % x


def srd(a, d, base, size):
    a(f"s_mov_b32 s{d}, s{base}")
    a(f"s_and_b32 s{d+1}, s{base+1}, 0xffff")
    a(f"s_mov_b32 s{d+2}, {hx(size)}")
    a(f"s_mov_b32 s{d+3}, 0x00020000")


def vr(b, n=1):
    return f"v{b}" if n == 1 else f"v[{b}:{b+n-1}]"


def mfma32(a, d, x, y, c=None):
    cs = vr(d, 16) if c is None else c
    a(f"v_mfma_f32_32x32x16_bf16 {vr(d,16)}, {vr(x,4)}, {vr(y,4)}, {cs}")


def kernel_header(name):
    return f""".globl {name}
.p2align 8
.type {name},@function
"""


def kernel_desc(name, vgprs, sgprs=102):
    acc = (vgprs + 3) // 4 * 4
    return f""".p2align 6
.amdhsa_kernel {name}
  .amdhsa_next_free_vgpr {vgprs}
  .amdhsa_next_free_sgpr {sgprs}
  .amdhsa_accum_offset {acc}
  .amdhsa_group_segment_fixed_size 0
  .amdhsa_kernarg_size 96
  .amdhsa_user_sgpr_count 2
  .amdhsa_user_sgpr_kernarg_segment_ptr 1
  .amdhsa_system_sgpr_workgroup_id_x 1
.end_amdhsa_kernel
"""


K_X = 16
K_ACC = 96
K_A = 192
K_T = 216
WAVE_LDS = 30720
LDS_STG = 8192


K_R = K_A


def typek_mfma_phase(a, vtr, zero=True, vm_after=None, extra=None):
    def reads(s, buf):
        for ct in range(3):
            o = (3 * s + ct) * 1024
            r = K_A + buf * 12 + ct * 4
            a(f"ds_read_b64_tr_b16 {vr(r,2)}, v{vtr} offset:{o}")
            a(f"ds_read_b64_tr_b16 {vr(r+2,2)}, v{vtr} offset:{o+256}")
    if vm_after:
        a(f"s_waitcnt vmcnt({vm_after(0)})")
    reads(0, 0)
    for s in range(10):
        if s + 1 < 10:
            if vm_after:
                a(f"s_waitcnt vmcnt({vm_after(s+1)})")
            reads(s + 1, (s + 1) & 1)
            a("s_waitcnt lgkmcnt(6)")
        else:
            a("s_waitcnt lgkmcnt(0)")
        ex = list(extra(s)) if extra else []
        n = len(ex)
        k = 0
        for ct in range(3):
            for rt in range(2):
                d = K_ACC + (rt * 3 + ct) * 16
                mfma32(a, d, K_A + (s & 1) * 12 + ct * 4, K_X + rt * 40 + s * 4, "0" if (s == 0 and zero) else None)
                k += 1
                for x in ex[((k - 1) * n) // 6:(k * n) // 6]:
                    a(x)


def typek_reduce(a, vslab, vrd, s_w, pfx, pre_barrier=None):
    for rt in range(2):
        for ct in range(3):
            for g in range(4):
                r = K_ACC + (rt * 3 + ct) * 16 + g * 4
                a(f"ds_write_b128 v{vslab}, {vr(r,4)} offset:{rt*12800 + ct*128 + g*32}")
    if pre_barrier:
        pre_barrier()
    a("s_waitcnt lgkmcnt(0)")
    a("s_barrier")
    for j in range(4):
        for rt in range(2):
            for ct in range(3):
                t = rt * 3 + ct
                base = LDS_STG + j * WAVE_LDS + rt * 12800 + ct * 128
                if j < 2:
                    a(f"ds_read_b128 {vr(K_ACC+(j*6+t)*4,4)}, v{vrd} offset:{base}")
                else:
                    a(f"ds_read_b128 {vr(K_ACC+(j*6+t)*4,4)}, v{vrd+1} offset:{base-2*WAVE_LDS}")


def typek_reduce_sum(a):
    for t in range(6):
        for e in range(0, 4, 2):
            r0 = K_ACC + t * 4 + e
            a(f"v_pk_add_f32 {vr(r0,2)}, {vr(r0,2)}, {vr(r0+24,2)}")
            a(f"v_pk_add_f32 {vr(r0+48,2)}, {vr(r0+48,2)}, {vr(r0+72,2)}")
    for t in range(6):
        for e in range(0, 4, 2):
            r0 = K_ACC + t * 4 + e
            a(f"v_pk_add_f32 {vr(K_R+t*4+e,2)}, {vr(r0,2)}, {vr(r0+48,2)}")


def lane_setup(a, T, vLane, vN, vH, s_w):
    a(f"v_and_b32 v{vLane}, 63, v0")
    a(f"v_lshrrev_b32 v{T}, 6, v0")
    a(f"v_readfirstlane_b32 s{s_w}, v{T}")
    a(f"v_and_b32 v{vN}, 31, v0")
    a(f"v_bfe_u32 v{vH}, v0, 5, 1")


def tr_base(a, vTr, T, vLane, vH, hshift):
    a(f"v_lshlrev_b32 v{vTr}, {hshift}, v{vH}")
    a(f"v_bfe_u32 v{T}, v{vLane}, 2, 2")
    a(f"v_lshl_add_u32 v{vTr}, v{T}, 6, v{vTr}")
    a(f"v_bfe_u32 v{T}, v{vLane}, 4, 1")
    a(f"v_lshl_add_u32 v{vTr}, v{T}, 5, v{vTr}")
    a(f"v_and_b32 v{T}, 3, v{vLane}")
    a(f"v_lshl_add_u32 v{vTr}, v{T}, 3, v{vTr}")


def gen_qkv():
    a = Asm()
    a.label("qkv_kernel")
    ST = 0
    NB = 4096
    MX = 6144
    s_w, s_rb, s_cb = 32, 33, 34
    SX, SWS = 16, 28
    SWT = [72, 76, 80]
    vLane, vN, vH = 1, 2, 3
    vXg, vXr, vTr, vSlab, vRd = 4, 5, 7, 8, 9
    vSt = 11
    vWo = [12, 13, 14]
    vCs = 6
    T = K_T
    XO = 9216
    a("s_cmp_ge_u32 s2, 256")
    a("s_cbranch_scc1 qkv_end")
    stamp_begin(a, "qkv")
    a("s_load_dwordx4 s[4:7], s[0:1], 0")
    a("s_load_dwordx4 s[8:11], s[0:1], 16")
    a("s_load_dwordx2 s[12:13], s[0:1], 88")
    lane_setup(a, T, vLane, vN, vH, s_w)
    a("s_and_b32 s3, s2, 7")
    a("s_lshr_b32 s35, s2, 3")
    a("s_and_b32 s36, s35, 3")
    a("s_lshl_b32 s3, s3, 2")
    a(f"s_add_u32 s{s_rb}, s3, s36")
    a(f"s_lshr_b32 s{s_cb}, s35, 2")
    a(f"v_mul_u32_u24 v{T}, 49, v{vLane}")
    a(f"v_lshrrev_b32 v{T}, 10, v{T}")
    a(f"v_mul_u32_u24 v{T+1}, 21, v{T}")
    a(f"v_sub_u32 v{T+1}, v{vLane}, v{T+1}")
    a(f"v_mul_u32_u24 v{vXg}, 1280, v{T}")
    a(f"v_lshl_add_u32 v{vXg}, v{T+1}, 4, v{vXg}")
    a(f"s_mul_i32 s37, s{s_w}, {WAVE_LDS}")
    a(f"s_add_u32 s37, s37, {LDS_STG}")
    a(f"v_mul_u32_u24 v{vXr}, 336, v{vN}")
    a(f"v_lshl_add_u32 v{vXr}, v{vH}, 4, v{vXr}")
    a(f"v_add_u32 v{vXr}, s37, v{vXr}")
    a(f"s_mul_i32 s39, s{s_rb}, {64*1280}")
    a(f"s_mul_i32 s40, s{s_w}, 320")
    a("s_add_u32 s39, s39, s40")
    a("s_waitcnt lgkmcnt(0)")
    srd(a, SX, 4, 2621440)
    a("s_mov_b32 s52, -1")
    a("s_mov_b32 s53, 0x7fffffff")
    a("s_mov_b64 exec, s[52:53]")
    for jx in range(22):
        if jx == 21:
            a("s_mov_b64 exec, 0x1fffff")
        a(f"s_add_u32 m0, s37, {XO + jx*1008}")
        a(f"s_add_u32 s44, s39, {jx*3840}")
        a(f"buffer_load_dwordx4 v{vXg}, s[{SX}:{SX+3}], s44 offen lds")
    a("s_mov_b64 exec, -1")
    a(f"v_lshrrev_b32 v{T}, 2, v{vLane}")
    a(f"v_and_b32 v{T+1}, 3, v{vLane}")
    a(f"v_lshlrev_b32 v{T+1}, 4, v{T+1}")
    a(f"v_mad_u32_u24 v{T+2}, v{T}, 40, v{T+1}")
    a(f"s_movk_i32 s38, 1280")
    a(f"v_mad_u32_u24 v{T+3}, v{T}, s38, v{T+1}")
    a(f"s_mul_i32 s50, s{s_cb}, 3")
    a(f"s_mul_i32 s41, s{s_w}, {160*1280}")
    a(f"s_mul_i32 s43, s{s_w}, {160*40}")
    for ct in range(3):
        d = SWT[ct]
        a(f"s_add_u32 s51, s50, {ct}")
        a("s_cmp_eq_u32 s51, 21")
        a(f"s_cselect_b32 s{d}, s10, s8")
        a(f"s_cselect_b32 s{d+1}, s11, s9")
        a("s_cmp_lt_u32 s51, 22")
        a(f"s_cselect_b32 s{d+2}, 25600, 0")
        a("s_lshl_b32 s45, s51, 6")
        a("s_add_u32 s45, s45, s41")
        a("s_cmp_lt_u32 s51, 20")
        a(f"s_cselect_b32 s{d}, s6, s{d}")
        a(f"s_cselect_b32 s{d+1}, s7, s{d+1}")
        a(f"s_cselect_b32 s{d+2}, 819200, s{d+2}")
        a(f"s_mov_b32 s{d+3}, 0x00020000")
        a(f"s_cselect_b32 s{84+ct}, s45, s43")
        a(f"s_movk_i32 s{87+ct}, {16*40}")
        a(f"s_cselect_b32 s{87+ct}, {16*1280}, s{87+ct}")
        a("s_cselect_b64 vcc, -1, 0")
        a(f"s_and_b32 s{d+1}, s{d+1}, 0xffff")
        a(f"v_cndmask_b32 v{vWo[ct]}, v{T+2}, v{T+3}, vcc")

    def w_dma(s):
        for ct in range(3):
            a(f"s_add_u32 m0, s37, {(3*s+ct)*1024}")
            a(f"buffer_load_dwordx4 v{vWo[ct]}, s[{SWT[ct]}:{SWT[ct]+3}], s{84+ct} offen lds")
            a(f"s_add_u32 s{84+ct}, s{84+ct}, s{87+ct}")
    for s in range(3):
        w_dma(s)
    srd(a, SWS, 12, WS_END)
    tr_base(a, vTr, T, vLane, vH, 9)
    a(f"v_add_u32 v{vTr}, s37, v{vTr}")
    a(f"v_mul_u32_u24 v{vRd}, 400, v{vN}")
    a(f"v_lshl_add_u32 v{vRd}, v{vH}, 4, v{vRd}")
    a(f"v_add_u32 v{vSlab}, s37, v{vRd}")
    a(f"s_lshl_b32 s38, s{s_w}, 5")
    a(f"v_add_u32 v{vRd}, s38, v{vRd}")
    a(f"v_add_u32 v{vRd+1}, {2*WAVE_LDS}, v{vRd}")
    a(f"v_lshlrev_b32 v{vCs}, 2, v{vN}")
    a(f"v_add_u32 v{vCs}, s37, v{vCs}")
    a(f"v_lshlrev_b32 v{vSt}, 6, v{vN}")
    vOne = T
    SA = T + 2
    a(f"v_mov_b32 v{vOne}, 0x3f803f80")
    for i in range(11):
        a(f"v_mov_b32 v{SA+i}, 0")
    a(f"ds_write_b32 v{SA}, v{SA} offset:{MX}")
    a("s_waitcnt vmcnt(9)")
    stamp(a, "qkv")
    for rt in range(2):
        for s in range(10):
            a(f"ds_read_b128 {vr(K_X+rt*40+s*4,4)}, v{vXr} offset:{XO + rt*10752 + s*32}")
    a("s_waitcnt lgkmcnt(0)")
    xs = []
    for i in range(40):
        for rt in range(2):
            x = K_X + rt * 40 + i
            b = SA + rt * 4 + (i & 1) * 2
            xs.append(f"v_dot2_f32_bf16 v{b}, v{x}, v{vOne}, v{b}")
            xs.append(f"v_dot2_f32_bf16 v{b+1}, v{x}, v{x}, v{b+1}")
    for s in range(3, 10):
        w_dma(s)
        for x in xs[((s - 3) * 160) // 7:((s - 2) * 160) // 7]:
            a(x)
    stamp(a, "qkv")

    def stats(s):
        out = []
        for q in range(4):
            for ct in range(3):
                out.append(f"v_dot2_f32_bf16 v{SA+8+ct}, v{K_A+(s&1)*12+ct*4+q}, v{vOne}, v{SA+8+ct}")
        return out
    typek_mfma_phase(a, vTr, True, lambda s: 3 * (9 - s), stats)
    stamp(a, "qkv")

    def pre_barrier():
        for rt in range(2):
            b = SA + rt * 4
            a(f"v_pk_add_f32 {vr(b,2)}, {vr(b,2)}, {vr(b+2,2)}")
        a(f"v_lshl_add_u32 v{T+14}, v{vH}, 3, v{vSt}")
        a(f"s_lshl_b32 s38, s{s_w}, 4")
        a(f"v_add_u32 v{T+14}, s38, v{T+14}")
        for rt in range(2):
            a(f"ds_write_b64 v{T+14}, {vr(SA+rt*4,2)} offset:{ST + rt*2048}")
        for ct in range(3):
            a(f"v_mov_b32 v{T+16+ct}, v{SA+8+ct}")
        for ct in range(3):
            a(f"v_permlane32_swap_b32 v{SA+8+ct}, v{T+16+ct}")
        for ct in range(3):
            a(f"v_add_f32 v{SA+8+ct}, v{SA+8+ct}, v{T+16+ct}")
            a(f"ds_write_b32 v{vCs}, v{SA+8+ct} offset:{25600 + ct*128}")
    typek_reduce(a, vSlab, vRd, s_w, "qkv", pre_barrier)
    R0 = T + 4
    CS = T + 20
    RR = T + 32
    a(f"v_lshlrev_b32 v{T}, 4, v{vH}")
    a(f"s_lshl_b32 s38, s{s_w}, 5")
    a(f"v_add_u32 v{T}, s38, v{T}")
    a(f"v_add_u32 v{T+1}, {2*WAVE_LDS}, v{T}")
    a(f"s_mov_b32 s45, {hx(f2u(1.0/640))}")
    a(f"s_mov_b32 s46, {hx(f2u(1e-5))}")
    a("s_waitcnt lgkmcnt(0)")
    typek_reduce_sum(a)
    for jw in range(4):
        for ct in range(3):
            base = LDS_STG + (jw & 1) * WAVE_LDS + 25600 + ct * 128
            a(f"ds_read_b128 {vr(K_ACC+(jw*3+ct)*4,4)}, v{T+(jw>>1)} offset:{base}")
    for rt in range(2):
        for q in range(4):
            a(f"ds_read_b128 {vr(K_ACC+48+rt*16+q*4,4)}, v{vSt} offset:{ST + rt*2048 + q*16}")
    a("s_waitcnt lgkmcnt(0)")
    for e in range(0, 12, 2):
        a(f"v_pk_add_f32 {vr(K_ACC+e,2)}, {vr(K_ACC+e,2)}, {vr(K_ACC+12+e,2)}")
        a(f"v_pk_add_f32 {vr(K_ACC+24+e,2)}, {vr(K_ACC+24+e,2)}, {vr(K_ACC+36+e,2)}")
    for e in range(0, 12, 2):
        a(f"v_pk_add_f32 {vr(CS+e,2)}, {vr(K_ACC+e,2)}, {vr(K_ACC+24+e,2)}")
    for rt in range(2):
        b = K_ACC + 48 + rt * 16
        for step in (8, 4, 2):
            for e in range(0, step, 2):
                a(f"v_pk_add_f32 {vr(b+e,2)}, {vr(b+e,2)}, {vr(b+e+step,2)}")
        mu, sq, t0 = b, b + 1, b + 3
        m_b, rr = RR + rt * 2, RR + rt * 2 + 1
        a(f"v_mul_f32 v{mu}, s45, v{mu}")
        a(f"v_mul_f32 v{sq}, s45, v{sq}")
        a(f"v_fma_f32 v{sq}, -v{mu}, v{mu}, v{sq}")
        a(f"v_max_f32 v{sq}, 0, v{sq}")
        a(f"v_cvt_pk_bf16_f32 v{m_b}, v{mu}, v{sq}")
        a(f"v_and_b32 v{t0}, 0xffff0000, v{m_b}")
        a(f"v_lshlrev_b32 v{m_b}, 16, v{m_b}")
        a(f"v_add_f32 v{t0}, s46, v{t0}")
        a(f"v_cvt_pk_bf16_f32 v{t0}, v{t0}, v{t0}")
        a(f"v_lshlrev_b32 v{t0}, 16, v{t0}")
        a(f"v_sqrt_f32 v{t0}, v{t0}")
        a(f"v_cvt_pk_bf16_f32 v{t0}, v{t0}, v{t0}")
        a(f"v_lshlrev_b32 v{t0}, 16, v{t0}")
        a(f"v_rcp_f32 v{rr}, v{t0}")
    for rt in range(2):
        m_b, rr = RR + rt * 2, RR + rt * 2 + 1
        for ct in range(3):
            for e in range(4):
                r = K_R + (rt * 3 + ct) * 4 + e
                a(f"v_fma_f32 v{r}, -v{m_b}, v{CS+ct*4+e}, v{r}")
                a(f"v_mul_f32 v{r}, v{r}, v{rr}")
    stamp(a, "qkv")
    a("s_mov_b32 s47, 0xffff0000")
    a(f"v_lshlrev_b32 v{T}, 4, v{vLane}")
    a(f"s_mul_i32 s39, s{s_rb}, {2*40*1024}")
    a(f"s_mul_i32 s40, s{s_w}, {10*1024}")
    a("s_add_u32 s39, s39, s40")
    for rt in range(2):
        m_b, rr = RR + rt * 2, RR + rt * 2 + 1
        PR = K_ACC + rt * 4
        a(f"v_mov_b32 v{PR}, v{rr}")
        a(f"v_mov_b32 v{PR+1}, v{rr}")
        a(f"v_mul_f32_e64 v{PR+2}, -v{m_b}, v{rr}")
        a(f"v_mov_b32 v{PR+3}, v{PR+2}")
    for c in range(8):
        a(f"s_cmp_lg_u32 s{s_cb}, {c}")
        a(f"s_cbranch_scc1 qkv_xn{c}")
        for f in range(c, 20, 8):
            rt, sx = divmod(f, 10)
            PR = K_ACC + rt * 4
            for q in range(4):
                x = K_X + rt * 40 + sx * 4 + q
                u = K_ACC + 8 + q * 2
                a(f"v_lshlrev_b32 v{u}, 16, v{x}")
                a(f"v_and_b32 v{u+1}, s47, v{x}")
                a(f"v_pk_fma_f32 {vr(u,2)}, {vr(u,2)}, {vr(PR,2)}, {vr(PR+2,2)}")
                a(f"v_cvt_pk_bf16_f32 v{x}, v{u}, v{u+1}")
            a(f"s_add_u32 s44, s39, {XF + rt*40*1024 + sx*1024}")
            a(f"buffer_store_dwordx4 {vr(K_X+rt*40+sx*4,4)}, v{T}, s[{SWS}:{SWS+3}], s44 offen")
        a.label(f"qkv_xn{c}")
    vC0, vHead, vD0, vOff, vA = T, T + 1, T + 2, T + 3, T + 4
    a(f"s_mov_b32 s45, {hx(f2u(QSCALE))}")
    a("s_mov_b32 s46, 3277")
    a(f"s_mul_i32 s38, s{s_cb}, 96")
    a(f"s_lshl_b32 s39, s{s_w}, 3")
    a("s_add_u32 s38, s38, s39")
    a(f"s_mul_i32 s48, s{s_rb}, {2*32*1280}")
    a(f"s_add_u32 s48, s48, {QF}")
    a(f"s_add_u32 s49, s48, {32*1280}")
    a(f"s_mul_i32 s50, s{s_cb}, 3")

    def frag_off(vD0, vOff):
        a(f"v_lshrrev_b32 v{vA}, 3, v{vD0}")
        a(f"v_lshlrev_b32 v{vA}, 9, v{vA}")
        a(f"v_lshl_add_u32 v{vA}, v{vN}, 4, v{vA}")
        a(f"v_and_b32 v{vA+1}, 4, v{vD0}")
        a(f"v_lshl_add_u32 v{vA}, v{vA+1}, 1, v{vA}")
        a(f"v_lshlrev_b32 v{vA+1}, 3, v{vN}")
        a(f"v_add_u32 v{vA+1}, 1024, v{vA+1}")
        a(f"v_cmp_gt_u32 vcc, 16, v{vD0}")
        a(f"v_cndmask_b32 v{vA}, v{vA+1}, v{vA}, vcc")
        a(f"v_add_u32 v{vOff}, v{vOff}, v{vA}")

    for ct in range(3):
        a(f"s_add_u32 s51, s50, {ct}")
        a("s_cmp_ge_u32 s51, 20")
        a(f"s_cbranch_scc1 qkv_notq{ct}")
        a(f"v_lshlrev_b32 v{vC0}, 2, v{vH}")
        a(f"v_add_u32 v{vC0}, s38, v{vC0}")
        if ct:
            a(f"v_add_u32 v{vC0}, {32*ct}, v{vC0}")
        a(f"v_mul_u32_u24 v{vHead}, s46, v{vC0}")
        a(f"v_lshrrev_b32 v{vHead}, 16, v{vHead}")
        a(f"v_mul_u32_u24 v{vD0}, 20, v{vHead}")
        a(f"v_sub_u32 v{vD0}, v{vC0}, v{vD0}")
        a(f"v_mul_u32_u24 v{vOff}, 1280, v{vHead}")
        frag_off(vD0, vOff)
        for rt in range(2):
            r = K_R + (rt * 3 + ct) * 4
            for e in range(4):
                a(f"v_mul_f32 v{r+e}, s45, v{r+e}")
            a(f"v_cvt_pk_bf16_f32 v{r}, v{r}, v{r+1}")
            a(f"v_cvt_pk_bf16_f32 v{r+1}, v{r+2}, v{r+3}")
            a(f"buffer_store_dwordx2 {vr(r,2)}, v{vOff}, s[{SWS}:{SWS+3}], s{48+rt} offen")
        a.label(f"qkv_notq{ct}")
    stamp_end(a, "qkv", SWS, s_w, 240)
    a(f"s_cmp_lt_u32 s{s_cb}, 6")
    a("s_cbranch_scc1 qkv_end")
    P = T + 8
    a(f"s_cmp_eq_u32 s{s_cb}, 7")
    a("s_cbranch_scc1 qkv_mvv")
    for rt in range(2):
        for e in range(4):
            a(f"v_mov_b32 v{P+rt*4+e}, v{K_R+(rt*3+2)*4+e}")
    a("s_branch qkv_mvd")
    a.label("qkv_mvv")
    for rt in range(2):
        for e in range(4):
            a(f"v_mov_b32 v{P+rt*4+e}, v{K_R+(rt*3+0)*4+e}")
    a.label("qkv_mvd")
    a(f"v_lshlrev_b32 v{vD0}, 2, v{vH}")
    a(f"v_add_u32 v{vD0}, s39, v{vD0}")
    a(f"v_cmp_gt_u32 s[52:53], 20, v{vD0}")
    a(f"v_lshlrev_b32 v{vA}, 5, v{vN}")
    a(f"v_add_u32 v{vA}, v{vA}, v{vD0}")
    for rt in range(2):
        q = T + 16 + rt
        a(f"v_mul_f32 v{q}, v{P+rt*4}, v{P+rt*4}")
        for e in range(1, 4):
            a(f"v_fmac_f32 v{q}, v{P+rt*4+e}, v{P+rt*4+e}")
        a(f"v_cndmask_b32 v{q}, 0, v{q}, s[52:53]")
        a(f"ds_write_b32 v{vA}, v{q} offset:{NB + rt*1024}")
    for rt in range(2):
        r = P + rt * 4
        a(f"v_cvt_pk_bf16_f32 v{r}, v{r}, v{r+1}")
        a(f"v_cvt_pk_bf16_f32 v{r+1}, v{r+2}, v{r+3}")
    a("s_mov_b64 s[54:55], exec")
    a("s_and_b64 exec, exec, s[52:53]")
    a("s_cbranch_execz qkv_kvst_done")
    a(f"s_mul_i32 s48, s{s_rb}, {2*1280}")
    a(f"s_cmp_eq_u32 s{s_cb}, 7")
    a("s_cbranch_scc1 qkv_vst")
    a(f"s_add_u32 s48, s48, {KF}")
    a("s_add_u32 s49, s48, 1280")
    a(f"v_mov_b32 v{vOff}, 0")
    frag_off(vD0, vOff)
    for rt in range(2):
        a(f"buffer_store_dwordx2 {vr(P+rt*4,2)}, v{vOff}, s[{SWS}:{SWS+3}], s{48+rt} offen")
    a("s_branch qkv_kvst_done")
    a.label("qkv_vst")
    a(f"s_mul_i32 s48, s{s_rb}, {2*1344}")
    a(f"s_add_u32 s48, s48, {VF}")
    a("s_add_u32 s49, s48, 1344")
    a(f"v_lshrrev_b32 v{vA}, 4, v{vN}")
    a(f"v_lshlrev_b32 v{vA}, 1, v{vA}")
    a(f"v_bfe_u32 v{vA+1}, v{vN}, 2, 1")
    a(f"v_add_u32 v{vA}, v{vA}, v{vA+1}")
    a(f"v_mul_u32_u24 v{vA}, 21, v{vA}")
    a(f"v_add_u32 v{vA}, v{vA}, v{vD0}")
    a(f"v_lshlrev_b32 v{vOff}, 4, v{vA}")
    a(f"v_and_b32 v{vA}, 3, v{vN}")
    a(f"v_lshl_add_u32 v{vOff}, v{vA}, 1, v{vOff}")
    a(f"v_bfe_u32 v{vA}, v{vN}, 3, 1")
    a(f"v_lshl_add_u32 v{vOff}, v{vA}, 3, v{vOff}")
    for rt in range(2):
        r = P + rt * 4
        a(f"buffer_store_short v{r}, v{vOff}, s[{SWS}:{SWS+3}], s{48+rt} offen")
        a(f"buffer_store_short_d16_hi v{r}, v{vOff}, s[{SWS}:{SWS+3}], s{48+rt} offen offset:16")
        a(f"buffer_store_short v{r+1}, v{vOff}, s[{SWS}:{SWS+3}], s{48+rt} offen offset:32")
        a(f"buffer_store_short_d16_hi v{r+1}, v{vOff}, s[{SWS}:{SWS+3}], s{48+rt} offen offset:48")
    a.label("qkv_kvst_done")
    a("s_mov_b64 exec, s[54:55]")
    a(f"s_cmp_lg_u32 s{s_cb}, 7")
    a("s_cbranch_scc1 qkv_noones")
    a(f"s_cmp_lg_u32 s{s_w}, 3")
    a("s_cbranch_scc1 qkv_noones")
    a(f"s_mul_i32 s48, s{s_rb}, {2*1344}")
    a(f"s_add_u32 s48, s48, {VF + 320}")
    a(f"v_mul_u32_u24 v{vOff}, 336, v{vLane}")
    for e in range(4):
        a(f"v_mov_b32 v{P+e}, 0x3f803f80")
    a("s_mov_b64 exec, 0xff")
    a(f"buffer_store_dwordx4 {vr(P,4)}, v{vOff}, s[{SWS}:{SWS+3}], s48 offen")
    a("s_mov_b64 exec, s[54:55]")
    a.label("qkv_noones")
    a("s_waitcnt lgkmcnt(0)")
    a("s_barrier")
    a(f"s_cmp_lg_u32 s{s_w}, 0")
    a("s_cbranch_scc1 qkv_end")
    a(f"v_lshlrev_b32 v{vA}, 5, v{vLane}")
    a(f"ds_read_b128 {vr(P,4)}, v{vA} offset:{NB}")
    a(f"ds_read_b128 {vr(P+4,4)}, v{vA} offset:{NB+16}")
    a("s_waitcnt lgkmcnt(0)")
    for e in range(1, 8):
        a(f"v_add_f32 v{P}, v{P}, v{P+e}")
    a(f"v_mov_b32 v{vA}, 0")
    a(f"ds_max_u32 v{vA}, v{P} offset:{MX}")
    a("s_waitcnt lgkmcnt(0)")
    a(f"ds_read_b32 v{P}, v{vA} offset:{MX}")
    a(f"s_sub_u32 s48, s{s_cb}, 6")
    a("s_lshl_b32 s48, s48, 5")
    a(f"s_add_u32 s48, s48, s{s_rb}")
    a("s_lshl_b32 s48, s48, 2")
    a(f"s_add_u32 s48, s48, {KN}")
    a("s_waitcnt lgkmcnt(0)")
    a(f"buffer_store_dword v{P}, v{vA}, s[{SWS}:{SWS+3}], s48 offen")
    a.label("qkv_end")
    a("s_endpgm")
    return a.finish(), ("qkv_kernel", 256, 256, 131072, 256)


A_Q, A_O, A_S, A_P, A_K, A_V, A_M = 16, 48, 112, 144, 160, 192, 224
A_T = 228
NSET = 4
OOB = 0x80000000


def gen_attn_body(a, pfx, s_wg):
    s_w, s_rt, s_kh, s_hd = 32, 33, 34, 35
    SWS = 28
    vLane, vN, vH = 1, 2, 3
    vK1, vK2, vV = 4, 5, 6
    T = A_T
    a("s_load_dwordx2 s[12:13], s[0:1], 88")
    lane_setup(a, T, vLane, vN, vH, s_w)
    a(f"s_lshr_b32 s{s_rt}, s{s_wg}, 2")
    a(f"s_and_b32 s3, s{s_wg}, 3")
    a(f"s_and_b32 s{s_kh}, s{s_w}, 1")
    a(f"s_lshr_b32 s36, s{s_w}, 1")
    a("s_lshl_b32 s3, s3, 3")
    a("s_lshl_b32 s36, s36, 2")
    a(f"s_add_u32 s{s_hd}, s3, s36")
    a(f"v_lshlrev_b32 v{vK1}, 4, v{vLane}")
    a(f"v_lshlrev_b32 v{vK2}, 3, v{vN}")
    a(f"v_add_u32 v{vK2}, 1024, v{vK2}")
    a(f"v_mov_b32 v{T}, {hx(OOB)}")
    a(f"v_cmp_eq_u32 vcc, 0, v{vH}")
    a(f"v_cndmask_b32 v{vK2}, v{T}, v{vK2}, vcc")
    a(f"v_mul_u32_u24 v{vV}, 21, v{vH}")
    a(f"v_add_u32 v{vV}, v{vV}, v{vN}")
    a(f"v_lshlrev_b32 v{vV}, 4, v{vV}")
    a(f"v_cmp_gt_u32 vcc, 21, v{vN}")
    a(f"v_cndmask_b32 v{vV}, v{T}, v{vV}, vcc")
    a("s_waitcnt lgkmcnt(0)")
    srd(a, SWS, 12, WS_END)
    a(f"s_add_u32 s12, s12, {KN}")
    a("s_addc_u32 s13, s13, 0")
    a("s_load_dwordx16 s[64:79], s[12:13], 0")
    a("s_load_dwordx16 s[80:95], s[12:13], 64")
    a("s_load_dwordx16 s[44:59], s[12:13], 128")
    a(f"s_lshl_b32 s36, s{s_rt}, 5")
    a(f"s_add_u32 s36, s36, s{s_hd}")
    a("s_mul_i32 s36, s36, 1280")
    a(f"s_add_u32 s36, s36, {QF}")
    for i in range(4):
        a(f"buffer_load_dwordx4 {vr(A_Q+8*i,4)}, v{vK1}, s[{SWS}:{SWS+3}], s36 offen")
        a(f"buffer_load_dwordx2 {vr(A_Q+8*i+4,2)}, v{vK2}, s[{SWS}:{SWS+3}], s36 offen")
        if i < 3:
            a("s_add_u32 s36, s36, 1280")
    s_kp, s_vp = 37, 38
    a(f"s_mul_i32 s{s_kp}, s{s_kh}, {32*1280}")
    a(f"s_add_u32 s{s_kp}, s{s_kp}, {KF}")
    a(f"s_mul_i32 s{s_vp}, s{s_kh}, {32*1344}")
    a(f"s_add_u32 s{s_vp}, s{s_vp}, {VF}")

    def loadK(st):
        a(f"buffer_load_dwordx4 {vr(A_K+8*st,4)}, v{vK1}, s[{SWS}:{SWS+3}], s{s_kp} offen")
        a(f"buffer_load_dwordx2 {vr(A_K+8*st+4,2)}, v{vK2}, s[{SWS}:{SWS+3}], s{s_kp} offen")
        a(f"s_add_u32 s{s_kp}, s{s_kp}, 1280")

    def loadV(st):
        a(f"buffer_load_dwordx4 {vr(A_V+8*st,4)}, v{vV}, s[{SWS}:{SWS+3}], s{s_vp} offen")
        a(f"buffer_load_dwordx4 {vr(A_V+8*st+4,4)}, v{vV}, s[{SWS}:{SWS+3}], s{s_vp} offen offset:672")
        a(f"s_add_u32 s{s_vp}, s{s_vp}, 1344")
    for st in range(NSET - 1):
        loadK(st)
        loadV(st)
    loadK(NSET - 1)
    for i in range(4):
        a(f"v_mov_b32 v{A_Q+8*i+6}, 0")
        a(f"v_mov_b32 v{A_Q+8*i+7}, 0")
    for st in range(NSET):
        a(f"v_mov_b32 v{A_K+8*st+6}, 0")
        a(f"v_mov_b32 v{A_K+8*st+7}, 0")
    for r in range(64):
        a(f"v_mov_b32 v{A_O+r}, 0")
    for r in range(16):
        a(f"v_mov_b32 v{A_P+r}, 0")
    for r in range(8):
        a(f"v_mov_b32 v{A_V+8*(NSET-1)+r}, 0")
    for r in range(4):
        a(f"v_mov_b32 v{A_M+r}, 0")
    a("s_waitcnt lgkmcnt(0)")
    for r in range(65, 96):
        a(f"s_max_u32 s64, s64, s{r}")
    for r in range(45, 60):
        a(f"s_max_u32 s44, s44, s{r}")
    a("s_load_dwordx16 s[80:95], s[12:13], 192")
    a("s_waitcnt lgkmcnt(0)")
    for r in range(80, 96):
        a(f"s_max_u32 s44, s44, s{r}")
    a(f"s_waitcnt vmcnt({4*NSET-2})")
    for i in range(4):
        a(f"v_mov_b32 v{T+i}, 0")
    for r in range(6):
        for i in range(4):
            a(f"v_dot2_f32_bf16 v{T+i}, v{A_Q+8*i+r}, v{A_Q+8*i+r}, v{T+i}")
    for i in range(4):
        a(f"v_mov_b32 v{T+4+i}, v{T+i}")
    for i in range(4):
        a(f"v_permlane32_swap_b32 v{T+i}, v{T+4+i}")
    for i in range(4):
        a(f"v_add_f32 v{T+i}, v{T+i}, v{T+4+i}")
    a(f"v_max3_f32 v{T}, v{T}, v{T+1}, v{T+2}")
    a(f"v_max_f32 v{T}, v{T}, v{T+3}")
    a(f"v_mul_f32 v{T}, s64, v{T}")
    a(f"v_mov_b32 v{T+1}, {hx(f2u(3600.0/1.05))}")
    a(f"v_cmp_nle_f32 vcc, v{T}, v{T+1}")
    a(f"s_cmp_gt_u32 s44, {hx(f2u(2.0**80))}")
    a(f"s_cbranch_scc1 {pfx}_slow")
    a(f"s_cbranch_vccnz {pfx}_slow")

    def qk(m, sb, ks, i):
        if m == 0:
            mfma32(a, A_S + 16 * sb, A_K + 8 * ks, A_Q + 8 * i, "0")
        else:
            mfma32(a, A_S + 16 * sb, A_K + 8 * ks + 4, A_Q + 8 * i + 4)

    def pv(m, pb, vs, i):
        mfma32(a, A_O + 16 * i, A_V + 8 * vs + 4 * m, A_P + 8 * pb + 4 * m)

    a(f"s_waitcnt vmcnt({4*NSET-4})")
    qk(0, 0, 0, 0)
    qk(1, 0, 0, 0)
    stamp(a, "attn")
    a(f"s_mov_b32 s39, {32//NSET}")
    a("s_nop 10")
    a.raw(".p2align 6")
    a.label(f"{pfx}_loop")
    for kk in range(NSET):
        for i in range(4):
            cur = i & 1
            S = A_S + 16 * cur
            P = A_P + 8 * cur
            nks, ni = (kk, i + 1) if i < 3 else ((kk + 1) % NSET, 0)
            pvs, pi = (kk, i - 1) if i > 0 else ((kk - 1) % NSET, 3)
            if i in (1, 3) and not os.environ.get("NOWAIT"):
                a(f"s_waitcnt vmcnt({4*NSET-6})")
            qk(0, cur ^ 1, nks, ni)
            for e in range(0, 4):
                a(f"v_exp_f32 v{S+e}, v{S+e}")
            qk(1, cur ^ 1, nks, ni)
            if i == 1 and not os.environ.get("NOKV"):
                loadV((kk - 1) % NSET)
            if i == 3 and not os.environ.get("NOKV"):
                loadK(kk)
            for e in range(4, 8):
                a(f"v_exp_f32 v{S+e}, v{S+e}")
            pv(0, cur ^ 1, pvs, pi)
            for e in range(8, 12):
                a(f"v_exp_f32 v{S+e}, v{S+e}")
            for j in range(0, 2):
                a(f"v_cvt_pk_bf16_f32 v{P+j}, v{S+2*j}, v{S+2*j+1}")
            pv(1, cur ^ 1, pvs, pi)
            for e in range(12, 16):
                a(f"v_exp_f32 v{S+e}, v{S+e}")
            for j in range(2, 8):
                a(f"v_cvt_pk_bf16_f32 v{P+j}, v{S+2*j}, v{S+2*j+1}")
    a("s_sub_u32 s39, s39, 1")
    a("s_cmp_lg_u32 s39, 0")
    a(f"s_cbranch_scc1 {pfx}_loop")
    pv(0, 1, NSET - 1, 3)
    pv(1, 1, NSET - 1, 3)
    stamp(a, "attn")
    a(f"s_branch {pfx}_epi")

    a.label(f"{pfx}_slow")
    for r in range(4):
        a(f"v_mov_b32 v{A_M+r}, {hx(f2u(-1e30))}")
    a("s_mov_b32 s39, 32")
    a(f"s_sub_u32 s{s_kp}, s{s_kp}, {1280*(NSET-1)}")
    a(f"s_sub_u32 s{s_vp}, s{s_vp}, {1344*(NSET-2)}")
    a.label(f"{pfx}_sloop")
    a("s_waitcnt vmcnt(0)")
    for i in range(4):
        S, P, M = A_S, A_P, A_M + i
        qk(0, 0, 0, i)
        qk(1, 0, 0, i)
        a(f"v_max3_f32 v{T}, v{S}, v{S+1}, v{S+2}")
        for e in range(3, 15, 2):
            a(f"v_max3_f32 v{T}, v{T}, v{S+e}, v{S+e+1}")
        a(f"v_max_f32 v{T}, v{T}, v{S+15}")
        a(f"v_mov_b32 v{T+1}, v{T}")
        a(f"v_permlane32_swap_b32 v{T}, v{T+1}")
        a(f"v_max3_f32 v{T}, v{T}, v{T+1}, v{M}")
        a(f"v_sub_f32 v{T+1}, v{M}, v{T}")
        a(f"v_exp_f32 v{T+1}, v{T+1}")
        a(f"v_mov_b32 v{M}, v{T}")
        for e in range(16):
            a(f"v_sub_f32 v{S+e}, v{S+e}, v{T}")
            a(f"v_exp_f32 v{S+e}, v{S+e}")
        for j in range(8):
            a(f"v_cvt_pk_bf16_f32 v{P+j}, v{S+2*j}, v{S+2*j+1}")
        for e in range(16):
            a(f"v_mul_f32 v{A_O+16*i+e}, v{A_O+16*i+e}, v{T+1}")
        pv(0, 0, 0, i)
        pv(1, 0, 0, i)
    loadK(0)
    loadV(0)
    a("s_sub_u32 s39, s39, 1")
    a("s_cmp_lg_u32 s39, 0")
    a(f"s_cbranch_scc1 {pfx}_sloop")

    a.label(f"{pfx}_epi")
    a("s_waitcnt vmcnt(0)")
    vW, vR = T, T + 1
    a(f"s_mul_i32 s40, s{s_w}, 6656")
    a(f"s_xor_b32 s41, s{s_w}, 1")
    a("s_mul_i32 s41, s41, 6656")
    a(f"v_add_u32 v{vW}, s40, v{vK1}")
    a(f"v_add_u32 v{vR}, s41, v{vK1}")
    a(f"v_lshlrev_b32 v{T+2}, 2, v{vLane}")
    a(f"v_add_u32 v{T+3}, s41, v{T+2}")
    a(f"v_add_u32 v{T+2}, s40, v{T+2}")
    a(f"s_cmp_eq_u32 s{s_kh}, 0")
    a(f"s_cbranch_scc1 {pfx}_e0")
    for t in range(2):
        for q in range(3):
            a(f"ds_write_b128 v{vW}, {vr(A_O+16*t+4*q,4)} offset:{(t*3+q)*1024}")
        a(f"ds_write_b32 v{T+2}, v{A_M+t} offset:{6144+t*256}")
    a("s_waitcnt lgkmcnt(0)")
    for t in range(2):
        for e in range(12):
            a(f"v_mov_b32 v{A_O+16*t+e}, v{A_O+16*(t+2)+e}")
        a(f"v_mov_b32 v{A_M+t}, v{A_M+t+2}")
    a(f"s_add_u32 s{s_hd}, s{s_hd}, 2")
    a(f"s_branch {pfx}_e1")
    a.label(f"{pfx}_e0")
    for t in range(2):
        for q in range(3):
            a(f"ds_write_b128 v{vW}, {vr(A_O+16*(t+2)+4*q,4)} offset:{(t*3+q)*1024}")
        a(f"ds_write_b32 v{T+2}, v{A_M+t+2} offset:{6144+t*256}")
    a("s_waitcnt lgkmcnt(0)")
    a.label(f"{pfx}_e1")
    a("s_barrier")
    for t in range(2):
        for q in range(3):
            a(f"ds_read_b128 {vr(A_S+16*t+4*q,4)}, v{vR} offset:{(t*3+q)*1024}")
        a(f"ds_read_b32 v{A_M+2+t}, v{T+3} offset:{6144+t*256}")
    a("s_waitcnt lgkmcnt(0)")
    a(f"s_mul_i32 s40, s{s_rt}, {40*1024}")
    a(f"s_add_u32 s40, s40, {OF}")
    a(f"v_mov_b32 v{T+12}, {hx(OOB)}")
    a(f"v_cmp_eq_u32 s[42:43], 0, v{vH}")
    for t in range(2):
        O, Pz, Ma, Mp = A_O + 16 * t, A_S + 16 * t, A_M + t, A_M + 2 + t
        a(f"v_max_f32 v{T+4}, v{Ma}, v{Mp}")
        a(f"v_sub_f32 v{T+5}, v{Ma}, v{T+4}")
        a(f"v_sub_f32 v{T+6}, v{Mp}, v{T+4}")
        a(f"v_exp_f32 v{T+5}, v{T+5}")
        a(f"v_exp_f32 v{T+6}, v{T+6}")
        for e in range(12):
            a(f"v_mul_f32 v{O+e}, v{O+e}, v{T+5}")
            a(f"v_fmac_f32 v{O+e}, v{Pz+e}, v{T+6}")
        a(f"v_mov_b32 v{T+7}, v{O+8}")
        a(f"v_mov_b32 v{T+8}, v{O+8}")
        a(f"v_permlane32_swap_b32 v{T+7}, v{T+8}")
        a(f"v_rcp_f32 v{T+8}, v{T+8}")
        for e in range(12):
            a(f"v_mul_f32 v{O+e}, v{O+e}, v{T+8}")
        for q in range(3):
            a(f"v_cvt_pk_bf16_f32 v{O+4*q}, v{O+4*q}, v{O+4*q+1}")
            a(f"v_cvt_pk_bf16_f32 v{O+4*q+1}, v{O+4*q+2}, v{O+4*q+3}")
        a(f"s_add_u32 s41, s{s_hd}, {t}")
        a("s_mul_i32 s41, s41, 20")
        for q in range(3):
            k, off = T + 9, T + 10
            a(f"v_lshlrev_b32 v{k}, 2, v{vH}")
            a(f"v_add_u32 v{k}, s41, v{k}")
            if q:
                a(f"v_add_u32 v{k}, {8*q}, v{k}")
            a(f"v_lshrrev_b32 v{off}, 3, v{k}")
            a(f"v_lshlrev_b32 v{off}, 9, v{off}")
            a(f"v_lshl_add_u32 v{off}, v{vN}, 4, v{off}")
            a(f"v_and_b32 v{k}, 4, v{k}")
            a(f"v_lshl_add_u32 v{off}, v{k}, 1, v{off}")
            if q == 2:
                a(f"v_cndmask_b32 v{off}, v{T+12}, v{off}, s[42:43]")
            a(f"buffer_store_dwordx2 {vr(O+4*q,2)}, v{off}, s[{SWS}:{SWS+3}], s40 offen")


def gen_attn():
    a = Asm()
    a.label("attn_kernel")
    a("s_cmp_ge_u32 s2, 256")
    a("s_cbranch_scc1 attn_end")
    stamp_begin(a, "attn")
    gen_attn_body(a, "attn", 2)
    stamp_end(a, "attn", 28, 32, 250)
    a.label("attn_end")
    a("s_endpgm")
    return a.finish(), ("attn_kernel", 256, 256, 26624, 256 if STAMP else 248)


R_ACC, R_A, R_B, R_T = 16, 112, 160, 208


class TypeR:
    def __init__(self, a, pfx, NT, NS, vTr, vWo, vB, s_w, srd_of_tile, goff, s_bp, SWS, tr2, bmods=""):
        self.__dict__.update(locals())
        self.SLOT = 4 * NT * 1024
        self.sname = {"gu": "gateup", "dn": "down"}[pfx[:2]]
        self.s_m = 60
        self.per = NT + 4

    def dma_ops(self, stage):
        slot = stage % 3
        s_g0, s_g1, gstep = self.goff
        out = []
        for t in range(self.NT):
            sr, grp, tt = self.srd_of_tile(t)
            out.append([f"s_add_u32 m0, s{self.s_m}, {slot*self.SLOT + t*1024}",
                        f"s_add_u32 s61, s{s_g0 if grp == 0 else s_g1}, {stage*gstep + tt*64}",
                        f"buffer_load_dwordx4 v{self.vWo}, s[{sr}:{sr+3}], s61 offen lds"])
        return out

    def b_ops(self, stage):
        slot = stage % 3
        bl = []
        for j in range(4):
            g = []
            if j == 0:
                g.append(f"s_add_u32 s62, s{self.s_bp}, {stage*4096}")
            g.append(f"buffer_load_dwordx4 {vr(R_B+slot*16+j*4,4)}, v{self.vB}, s[{self.SWS}:{self.SWS+3}], s62 offen offset:{j*1024}{self.bmods}")
            bl.append(g)
        return bl

    def vm_ops(self, stage):
        out, bl, res = self.dma_ops(stage), self.b_ops(stage), []
        while out or bl:
            if out:
                res.append(out.pop(0))
            if bl and len(res) > 1:
                res.append(bl.pop(0))
        return res

    def emit(self, groups):
        for g in groups:
            for x in g:
                self.a(x)

    def reads(self, stage, j):
        buf = (stage * 4 + j) & 1
        slot = stage % 3
        base = (slot & 1) * self.SLOT + j * self.NT * 1024
        va = self.vTr + (slot >> 1)
        out = []
        for t in range(self.NT):
            r = R_A + buf * 24 + t * 4
            out.append(f"ds_read_b64_tr_b16 {vr(r,2)}, v{va} offset:{base + t*1024}")
            out.append(f"ds_read_b64_tr_b16 {vr(r+2,2)}, v{va} offset:{base + t*1024 + self.tr2}")
        return out

    def mf(self, stage, j, t):
        buf = (stage * 4 + j) & 1
        first = stage == 0 and j == 0
        mfma32(self.a, R_ACC + 16 * t, R_A + buf * 24 + t * 4, R_B + (stage % 3) * 16 + j * 4, "0" if first else None)

    def setup(self):
        a = self.a
        a(f"s_mul_i32 s{self.s_m}, s{self.s_w}, {self.NT*1024}")
        a(f"v_add_u32 v{self.vTr+1}, {2*self.SLOT}, v{self.vTr}")

    def main(self, first_wait):
        a, NT, NS = self.a, self.NT, self.NS
        stamp(a, self.sname)
        a(f"s_waitcnt vmcnt({first_wait})")
        a("s_barrier")
        stamp(a, self.sname)
        for x in self.reads(0, 0):
            a(x)
        for i in range(NS):
            if i in (1, 2, 4):
                stamp(a, self.sname)
            ops = self.vm_ops(i + 2) if i + 2 < NS else []
            nslots = 3 * NT
            place = {}
            for k, g in enumerate(ops):
                place[(k * nslots) // len(ops)] = g
            for j in range(3):
                rd = self.reads(i, j + 1)
                for t in range(NT):
                    a(f"s_waitcnt lgkmcnt({2*(NT-1)})")
                    self.mf(i, j, t)
                    a(rd[2 * t])
                    a(rd[2 * t + 1])
                    if j * NT + t in place:
                        self.emit([place[j * NT + t]])
            last = i + 1 == NS
            H = NT if last else (NT + 1) // 2
            for t in range(H):
                a(f"s_waitcnt lgkmcnt({2*(NT-1-t)})")
                self.mf(i, 3, t)
            if not last:
                a(f"s_waitcnt vmcnt({self.per if ops else 0}) lgkmcnt(0)")
                a("s_barrier")
                rd = self.reads(i + 1, 0)
                n = NT - H
                for k, t in enumerate(range(H, NT)):
                    self.mf(i, 3, t)
                    for x in rd[(k * len(rd)) // n:((k + 1) * len(rd)) // n]:
                        a(x)


def gen_gateup_body(a, pfx, s_wg, mid_hook=None, smods=''):
    s_w, s_rb, s_cb = 32, 33, 34
    SW1, SW3, SWS = 16, 20, 28
    vLane, vN, vH, vWo, vB, vTr = 1, 2, 3, 4, 5, 6
    T = R_T
    a("s_load_dwordx4 s[4:7], s[0:1], 48")
    a("s_load_dwordx2 s[12:13], s[0:1], 88")
    lane_setup(a, T, vLane, vN, vH, s_w)
    a(f"s_and_b32 s3, s{s_wg}, 7")
    a(f"s_lshr_b32 s35, s{s_wg}, 3")
    a("s_and_b32 s36, s3, 1")
    a("s_lshl_b32 s36, s36, 3")
    a("s_and_b32 s37, s35, 7")
    a(f"s_add_u32 s{s_rb}, s36, s37")
    a("s_lshr_b32 s36, s3, 1")
    a("s_lshl_b32 s36, s36, 2")
    a("s_lshr_b32 s37, s35, 3")
    a(f"s_add_u32 s{s_cb}, s36, s37")
    a(f"v_lshrrev_b32 v{T}, 2, v{vLane}")
    a(f"v_mul_u32_u24 v{vWo}, 3072, v{T}")
    a(f"v_and_b32 v{T}, 3, v{vLane}")
    a(f"v_lshl_add_u32 v{vWo}, v{T}, 4, v{vWo}")
    tr_base(a, vTr, T, vLane, vH, 9)
    a(f"v_lshlrev_b32 v{vB}, 4, v{vLane}")
    a(f"s_mul_i32 s40, s{s_w}, {16*3072}")
    a(f"s_mul_i32 s41, s{s_cb}, 192")
    a("s_add_u32 s40, s40, s41")
    a(f"s_lshl_b32 s42, s{s_rb}, 2")
    a(f"s_add_u32 s42, s42, s{s_w}")
    a(f"s_mul_i32 s43, s42, {40*1024}")
    if XF:
        a(f"s_add_u32 s43, s43, {XF}")
    a("s_waitcnt lgkmcnt(0)")
    srd(a, SW1, 4, 1966080)
    srd(a, SW3, 6, 1966080)
    srd(a, SWS, 12, WS_END)
    R = TypeR(a, pfx, 6, 10, vTr, vWo, vB, s_w,
              lambda t: (SW1, 0, t) if t < 3 else (SW3, 0, t - 3), (40, 40, 64 * 3072), 43, SWS, 256)
    R.setup()
    R.emit(R.vm_ops(0) + R.vm_ops(1))
    R.main(R.per)
    if mid_hook:
        mid_hook()
    stamp(a, "gateup")
    a(f"s_mov_b32 s44, {hx(f2u(-math.log2(math.e)))}")
    a(f"s_mul_i32 s45, s42, {96*1024}")
    a(f"s_mul_i32 s46, s{s_cb}, {6*1024}")
    a("s_add_u32 s45, s45, s46")
    a(f"s_add_u32 s45, s45, {HF}")
    a(f"v_mov_b32 v{T}, s44")
    a(f"v_mov_b32 v{T+1}, s44")
    a(f"v_mov_b32 v{T+2}, 1.0")
    a(f"v_mov_b32 v{T+3}, 1.0")
    for t in range(3):
        g, u = R_ACC + 16 * t, R_ACC + 16 * (t + 3)
        E = R_A
        for e in range(0, 16, 2):
            a(f"v_pk_mul_f32 {vr(E+e,2)}, {vr(g+e,2)}, {vr(T,2)}")
        for e in range(16):
            a(f"v_exp_f32 v{E+e}, v{E+e}")
        for e in range(0, 16, 2):
            a(f"v_pk_add_f32 {vr(E+e,2)}, {vr(E+e,2)}, {vr(T+2,2)}")
        for e in range(16):
            a(f"v_rcp_f32 v{E+e}, v{E+e}")
        for e in range(0, 16, 2):
            a(f"v_pk_mul_f32 {vr(g+e,2)}, {vr(g+e,2)}, {vr(u+e,2)}")
        for e in range(0, 16, 2):
            a(f"v_pk_mul_f32 {vr(g+e,2)}, {vr(g+e,2)}, {vr(E+e,2)}")
        for j in range(8):
            a(f"v_cvt_pk_bf16_f32 v{u+j}, v{g+2*j}, v{g+2*j+1}")
        for hf in range(2):
            o = (2 * t + hf) * 1024
            if o < 4096:
                a(f"buffer_store_dwordx4 {vr(u+4*hf,4)}, v{vB}, s[{SWS}:{SWS+3}], s45 offen offset:{o}{smods}")
            else:
                a(f"s_add_u32 s46, s45, {o}")
                a(f"buffer_store_dwordx4 {vr(u+4*hf,4)}, v{vB}, s[{SWS}:{SWS+3}], s46 offen{smods}")


def gen_gateup():
    a = Asm()
    a.label("gateup_kernel")
    a("s_cmp_ge_u32 s2, 256")
    a("s_cbranch_scc1 gateup_end")
    stamp_begin(a, "gateup")
    gen_gateup_body(a, "gu", 2)
    stamp_end(a, "gateup", 28, 32, 240)
    a.label("gateup_end")
    a("s_endpgm")
    return a.finish(), ("gateup_kernel", 256, 256, 73728, 256 if STAMP else 216)


def gen_down_setup(a, pfx, s_wg, standalone, bmods=""):
    s_w = 32
    s_rb, s_cb, s_kq = 63, 64, 65
    SW, SWS = 24, 28
    vLane, vN, vH, vWo, vB, vTr = 1, 2, 3, 8, 5, 9
    T = R_T
    a("s_load_dwordx2 s[8:9], s[0:1], 64")
    if standalone:
        a("s_load_dwordx2 s[12:13], s[0:1], 88")
        lane_setup(a, T, vLane, vN, vH, s_w)
        a(f"v_lshlrev_b32 v{vB}, 4, v{vLane}")
    a(f"s_and_b32 s3, s{s_wg}, 7")
    a(f"s_lshr_b32 s38, s{s_wg}, 3")
    a("s_and_b32 s36, s3, 1")
    a("s_lshl_b32 s36, s36, 3")
    a("s_and_b32 s37, s38, 7")
    a(f"s_add_u32 s{s_rb}, s36, s37")
    a(f"s_lshr_b32 s{s_kq}, s3, 1")
    a(f"s_lshr_b32 s{s_cb}, s38, 3")
    a(f"v_lshrrev_b32 v{T}, 2, v{vLane}")
    a(f"v_mul_u32_u24 v{vWo}, 1280, v{T}")
    a(f"v_and_b32 v{T}, 3, v{vLane}")
    a(f"v_lshl_add_u32 v{vWo}, v{T}, 4, v{vWo}")
    tr_base(a, vTr, T, vLane, vH, 8)
    a(f"s_mul_i32 s66, s{s_kq}, {384*1280}")
    a(f"s_mul_i32 s37, s{s_w}, {16*1280}")
    a("s_add_u32 s66, s66, s37")
    a(f"s_mul_i32 s37, s{s_cb}, 320")
    a("s_add_u32 s66, s66, s37")
    a(f"s_lshl_b32 s67, s{s_rb}, 2")
    a(f"s_add_u32 s67, s67, s{s_w}")
    a(f"s_mul_i32 s68, s67, {96*1024}")
    a(f"s_mul_i32 s37, s{s_kq}, {24*1024}")
    a("s_add_u32 s68, s68, s37")
    a(f"s_add_u32 s68, s68, {HF}")
    a("s_waitcnt lgkmcnt(0)")
    srd(a, SW, 8, 1966080)
    if standalone:
        srd(a, SWS, 12, WS_END)
    R = TypeR(a, pfx, 5, 6, vTr, vWo, vB, s_w, lambda t: (SW, 0, t), (66, 66, 64 * 1280), 68, SWS, 512, bmods)
    R.setup()
    return R


def gen_down_store(a):
    s_cb, s_kq, SWS, vB = 64, 65, 28, 5
    stamp(a, "down")
    a(f"s_lshl_b32 s45, s{s_kq}, 6")
    a("s_add_u32 s45, s45, s67")
    a("s_mul_i32 s45, s45, 20")
    a(f"s_mul_i32 s46, s{s_cb}, 5")
    a("s_add_u32 s45, s45, s46")
    a("s_lshl_b32 s45, s45, 11")
    a(f"s_add_u32 s45, s45, {FP}")
    for t in range(5):
        r = R_ACC + 16 * t
        for q in range(8):
            a(f"v_cvt_pk_bf16_f32 v{R_A+8*t+q}, v{r+2*q}, v{r+2*q+1}")
        if t == 2 or t == 4:
            a("s_add_u32 s45, s45, 4096")
        for hf in range(2):
            a(f"buffer_store_dwordx4 {vr(R_A+8*t+4*hf,4)}, v{vB}, s[{SWS}:{SWS+3}], s45 offen offset:{((t&1)*2+hf)*1024}")


def gen_down():
    a = Asm()
    a.label("down_kernel")
    a("s_cmp_ge_u32 s2, 256")
    a("s_cbranch_scc1 down_end")
    stamp_begin(a, "down")
    R = gen_down_setup(a, "dn", 2, True)
    R.emit(R.vm_ops(0) + R.vm_ops(1))
    R.main(R.per)
    gen_down_store(a)
    stamp_end(a, "down", 28, 32, 240)
    a.label("down_end")
    a("s_endpgm")
    return a.finish(), ("down_kernel", 256, 256, 61440, 256 if STAMP else 216)


def gen_main():
    a = Asm()
    a.label("main_kernel")
    a("s_cmp_ge_u32 s2, 512")
    a("s_cbranch_scc1 main_end")
    a("s_cmp_ge_u32 s2, 256")
    a("s_cbranch_scc1 main_ffn")
    if PRIO_ATTN:
        a(f"s_setprio {PRIO_ATTN}")
    stamp_begin(a, "mattn")
    gen_attn_body(a, "ma", 2)
    stamp_end(a, "mattn", 28, 32, 250)
    a("s_endpgm")
    a.label("main_ffn")
    if PRIO_FFN:
        a(f"s_setprio {PRIO_FFN}")
    a("s_sub_u32 s69, s2, 256")
    a("s_load_dwordx2 s[10:11], s[0:1], 80")
    stamp_begin(a, "mffn")
    st = {}

    def mid():
        stamp(a, "mffn")
        a("s_setprio 2")
        a("s_barrier")
        st["R"] = gen_down_setup(a, "dn", 69, False, " sc1")
        st["R"].emit(st["R"].dma_ops(0) + st["R"].dma_ops(1))
    gen_gateup_body(a, "gu", 69, mid, " sc1")
    R = st["R"]
    SD = 72
    srd(a, SD, 10, 256)
    a("s_lshl_b32 s70, s63, 2")
    a("s_add_u32 s70, s70, s65")
    a("s_lshl_b32 s70, s70, 2")
    a("s_waitcnt vmcnt(0)")
    a("s_barrier")
    stamp(a, "mffn")
    a("s_cmp_lg_u32 s32, 0")
    a("s_cbranch_scc1 main_polled")
    a(f"v_mov_b32 v{R_T}, 0")
    a(f"v_mov_b32 v{R_T+1}, 1")
    a("s_mov_b64 exec, 1")
    a(f"buffer_atomic_add v{R_T+1}, v{R_T}, s[{SD}:{SD+3}], s70 offen sc1")
    a.label("main_poll")
    a(f"buffer_load_dword v{R_T+2}, v{R_T}, s[{SD}:{SD+3}], s70 offen sc1")
    a("s_waitcnt vmcnt(0)")
    a(f"v_readfirstlane_b32 s71, v{R_T+2}")
    a("s_cmp_ge_u32 s71, 4")
    a("s_cbranch_scc1 main_pdone")
    a("s_sleep 4")
    a("s_branch main_poll")
    a.label("main_pdone")
    a("s_mov_b64 exec, -1")
    a.label("main_polled")
    a("s_barrier")
    stamp(a, "mffn")
    R.emit(R.b_ops(0) + R.b_ops(1))
    a(f"s_setprio {PRIO_FFN}")
    R.main(4)
    stamp(a, "mffn")
    a("s_setprio 2")
    gen_down_store(a)
    stamp_end(a, "mffn", 28, 32, 240, 69)
    a.label("main_end")
    a("s_endpgm")
    return a.finish(), ("main_kernel", 512, 256, 73728, 256 if STAMP else 248)


PRIO_ATTN = int(os.environ.get("PRIO_ATTN", "0"))
PRIO_FFN = int(os.environ.get("PRIO_FFN", "0"))


def gen_final():
    a = Asm()
    a.label("final_kernel")
    s_w, s_rb, s_cb = 32, 33, 34
    SX, SW, SO, SWS = 16, 20, 24, 28
    vLane, vN, vH = 1, 2, 3
    vB, vWo, vXo, vTr, vSlab, vRd = 4, 5, 6, 7, 8, 9
    T = K_T
    a("s_cmp_ge_u32 s2, 224")
    a("s_cbranch_scc1 final_end")
    stamp_begin(a, "final")
    a("s_load_dwordx2 s[4:5], s[0:1], 0")
    a("s_load_dwordx2 s[6:7], s[0:1], 32")
    a("s_load_dwordx2 s[8:9], s[0:1], 72")
    a("s_load_dwordx2 s[12:13], s[0:1], 88")
    lane_setup(a, T, vLane, vN, vH, s_w)
    a("s_and_b32 s3, s2, 7")
    a("s_lshr_b32 s35, s2, 3")
    a("s_and_b32 s36, s35, 3")
    a("s_lshl_b32 s3, s3, 2")
    a(f"s_add_u32 s{s_rb}, s3, s36")
    a(f"s_lshr_b32 s{s_cb}, s35, 2")
    a(f"v_lshlrev_b32 v{vB}, 4, v{vLane}")
    a(f"v_lshrrev_b32 v{T}, 2, v{vLane}")
    a(f"v_mul_u32_u24 v{vWo}, 1280, v{T}")
    a(f"v_and_b32 v{T}, 3, v{vLane}")
    a(f"v_lshl_add_u32 v{vWo}, v{T}, 4, v{vWo}")
    a(f"v_mul_u32_u24 v{vXo}, 1280, v{vN}")
    a(f"v_lshl_add_u32 v{vXo}, v{vH}, 3, v{vXo}")
    tr_base(a, vTr, T, vLane, vH, 9)
    a(f"s_mul_i32 s37, s{s_w}, {WAVE_LDS}")
    a(f"s_add_u32 s37, s37, {LDS_STG}")
    a(f"v_add_u32 v{vTr}, s37, v{vTr}")
    a(f"v_mul_u32_u24 v{vRd}, 400, v{vN}")
    a(f"v_lshl_add_u32 v{vRd}, v{vH}, 4, v{vRd}")
    a(f"v_add_u32 v{vSlab}, s37, v{vRd}")
    a(f"s_lshl_b32 s38, s{s_w}, 5")
    a(f"v_add_u32 v{vRd}, s38, v{vRd}")
    a(f"v_add_u32 v{vRd+1}, {2*WAVE_LDS}, v{vRd}")
    a("s_waitcnt lgkmcnt(0)")
    srd(a, SX, 4, 2621440)
    srd(a, SW, 6, 819200)
    srd(a, SO, 8, 2621440)
    srd(a, SWS, 12, WS_END)
    a(f"s_mul_i32 s39, s{s_rb}, {2*40*1024}")
    a(f"s_mul_i32 s40, s{s_w}, {10*1024}")
    a("s_add_u32 s39, s39, s40")
    a(f"s_add_u32 s39, s39, {OF}")
    a(f"s_mul_i32 s41, s{s_w}, {160*1280}")
    a(f"s_mul_i32 s42, s{s_cb}, 192")
    a("s_add_u32 s41, s41, s42")
    a(f"s_lshl_b32 s45, s{s_w}, 6")
    a(f"s_lshl_b32 s46, s{s_rb}, 1")
    a("s_add_u32 s45, s45, s46")
    a("s_mul_i32 s45, s45, 20")
    a(f"s_mul_i32 s46, s{s_cb}, 3")
    a("s_add_u32 s45, s45, s46")
    a("s_lshl_b32 s45, s45, 11")
    a(f"s_add_u32 s45, s45, {FP}")
    for rt in range(2):
        for ct in range(3):
            a(f"s_add_u32 s44, s45, {(rt*20+ct)*2048}")
            for hf in range(2):
                a(f"buffer_load_dwordx4 {vr(K_ACC+(rt*3+ct)*16+8+4*hf,4)}, v{vB}, s[{SWS}:{SWS+3}], s44 offen offset:{hf*1024}")
    a(f"s_mul_i32 s47, s{s_rb}, {64*1280}")
    a("s_add_u32 s47, s47, s42")
    a(f"s_lshl_b32 s46, s{s_w}, 4")
    a("s_add_u32 s47, s47, s46")
    a(f"s_add_u32 s48, s47, {32*1280}")
    XR = T + 4
    for rt in range(2):
        for ct in range(3):
            a(f"buffer_load_dwordx2 {vr(XR+(rt*3+ct)*2,2)}, v{vXo}, s[{SX}:{SX+3}], s{47+rt} offen offset:{ct*64}")
    for s in range(10):
        for ct in range(3):
            a(f"s_add_u32 m0, s37, {(3*s+ct)*1024}")
            a(f"s_add_u32 s44, s41, {s*16*1280 + ct*64}")
            a(f"buffer_load_dwordx4 v{vWo}, s[{SW}:{SW+3}], s44 offen lds")
        for rt in range(2):
            a(f"s_add_u32 s44, s39, {rt*40*1024 + s*1024}")
            a(f"buffer_load_dwordx4 {vr(K_X+rt*40+s*4,4)}, v{vB}, s[{SWS}:{SWS+3}], s44 offen")
    a("s_mov_b32 s49, 0xffff0000")
    a("s_waitcnt vmcnt(50)")
    stamp(a, "final")
    for t in range(6):
        b = K_ACC + t * 16
        for q in range(8):
            a(f"v_lshlrev_b32 v{b+2*q}, 16, v{b+8+q}")
            a(f"v_and_b32 v{b+2*q+1}, s49, v{b+8+q}")
    typek_mfma_phase(a, vTr, False, lambda s: 5 * (9 - s))
    stamp(a, "final")
    typek_reduce(a, vSlab, vRd, s_w, "final")
    a("s_waitcnt lgkmcnt(0)")
    typek_reduce_sum(a)
    stamp(a, "final")
    a("s_mov_b32 s49, 0xffff0000")
    for ct in range(3):
        if ct == 2:
            a(f"s_cmp_eq_u32 s{s_cb}, 6")
            a("s_cbranch_scc1 final_skip")
        for rt in range(2):
            r = K_R + (rt * 3 + ct) * 4
            xr = XR + (rt * 3 + ct) * 2
            for e in range(2):
                a(f"v_lshlrev_b32 v{T}, 16, v{xr+e}")
                a(f"v_and_b32 v{T+1}, s49, v{xr+e}")
                a(f"v_pk_add_f32 {vr(r+2*e,2)}, {vr(r+2*e,2)}, {vr(T,2)}")
            a(f"v_cvt_pk_bf16_f32 v{r}, v{r}, v{r+1}")
            a(f"v_cvt_pk_bf16_f32 v{r+1}, v{r+2}, v{r+3}")
            a(f"buffer_store_dwordx2 {vr(r,2)}, v{vXo}, s[{SO}:{SO+3}], s{47+rt} offen offset:{ct*64}")
    a.label("final_skip")
    stamp_end(a, "final", SWS, s_w, 240)
    a.label("final_end")
    a("s_endpgm")
    return a.finish(), ("final_kernel", 224, 256, 131072, 256)


def gen_empty():
    a = Asm()
    a.label("empty_kernel")
    a("s_endpgm")
    return a.finish(), ("empty_kernel", 256, 256, 65536, 256)


KERNELS = {"empty": gen_empty, "main": gen_main, "qkv": gen_qkv, "gateup": gen_gateup, "attn": gen_attn, "down": gen_down, "final": gen_final}
HEADER = open("parallel_sum__grouped_kv_mqa__glu_gated_swiglu__prompt.s.ref").read().split("; Override launch")[0] if False else ""


DEFAULT = ["qkv", "main", "final"]


def build(order):
    texts, launches = {}, []
    for k in order:
        t, info = KERNELS[k]()
        texts[info[0]] = (t, info)
        launches.append(info)
    out = "; generated by dev/gen.py -- LN + MQA attention + SwiGLU block for gfx950\n"
    for name, grid, block, lds, vg in launches:
        out += f"; @launch kernel={name} grid=({grid},1,1) block=({block},1,1) lds={lds}\n"
    out += '.amdgcn_target "amdgcn-amd-amdhsa--gfx950"\n.text\n'
    for name, (t, info) in texts.items():
        out += kernel_header(name) + t
    out += '.section .rodata,"a"\n'
    for name, (t, info) in texts.items():
        out += kernel_desc(name, info[4])
    return out


if __name__ == "__main__":
    order = sys.argv[2].split(",") if len(sys.argv) > 2 else DEFAULT
    open(sys.argv[1], "w").write(build(order))
```

```python
import math
import struct
import sys

from asmlib import Asm

XF = 0x0
QF = 0x280000
KF = 0x500000
VF = 0x514000
KN = 0x52A000
OF = 0x530000
HF = 0x800000
FP = 0x1000000
WS_END = 0x2500000
TS = 0x2400000
import os
STAMP = os.environ.get("STAMP", "")


_stamp_n = {}


def stamp(a, name, vreg=255):
    if name in STAMP.split(","):
        i = _stamp_n.get(name, 0)
        _stamp_n[name] = i + 1
        a("s_memtime s[100:101]")
        a("s_waitcnt lgkmcnt(0)")
        a(f"v_writelane_b32 v{vreg}, s100, {i}")


def stamp_begin(a, name, vreg=255):
    if name in STAMP.split(","):
        a("s_memrealtime s[98:99]")
        a("s_waitcnt lgkmcnt(0)")
        a(f"v_writelane_b32 v{vreg}, s98, 14")
    stamp(a, name, vreg)


def stamp_end(a, name, sws, s_w, vtmp, s_wg=2, vreg=255):
    if name in STAMP.split(","):
        a("s_waitcnt vmcnt(0) lgkmcnt(0)")
        stamp(a, name, vreg)
        a("s_memrealtime s[98:99]")
        a("s_waitcnt lgkmcnt(0)")
        a(f"v_writelane_b32 v{vreg}, s98, 15")
        a(f"s_lshl_b32 s94, s{s_wg}, 2")
        a(f"s_add_u32 s94, s94, s{s_w}")
        a("s_lshl_b32 s94, s94, 6")
        a(f"s_add_u32 s94, s94, {TS + STAMP.split(',').index(name) * 0x20000}")
        a(f"v_and_b32 v{vtmp}, 63, v0")
        a(f"v_lshlrev_b32 v{vtmp}, 2, v{vtmp}")
        a("s_mov_b64 s[98:99], exec")
        a("s_mov_b64 exec, 0xffff")
        a(f"buffer_store_dword v{vreg}, v{vtmp}, s[{sws}:{sws+3}], s94 offen")
        a("s_mov_b64 exec, s[98:99]")


QSCALE = (20 ** -0.5) * math.log2(math.e)


def f2u(x):
    return struct.unpack("<I", struct.pack("<f", x))[0]


def hx(x):
    return "0x%x" % x


def srd(a, d, base, size):
    a(f"s_mov_b32 s{d}, s{base}")
    a(f"s_and_b32 s{d+1}, s{base+1}, 0xffff")
    a(f"s_mov_b32 s{d+2}, {hx(size)}")
    a(f"s_mov_b32 s{d+3}, 0x00020000")


def vr(b, n=1):
    return f"v{b}" if n == 1 else f"v[{b}:{b+n-1}]"


def mfma32(a, d, x, y, c=None):
    cs = vr(d, 16) if c is None else c
    a(f"v_mfma_f32_32x32x16_bf16 {vr(d,16)}, {vr(x,4)}, {vr(y,4)}, {cs}")


def kernel_header(name):
    return f""".globl {name}
.p2align 8
.type {name},@function
"""


def kernel_desc(name, vgprs, sgprs=102):
    acc = (vgprs + 3) // 4 * 4
    return f""".p2align 6
.amdhsa_kernel {name}
  .amdhsa_next_free_vgpr {vgprs}
  .amdhsa_next_free_sgpr {sgprs}
  .amdhsa_accum_offset {acc}
  .amdhsa_group_segment_fixed_size 0
  .amdhsa_kernarg_size 96
  .amdhsa_user_sgpr_count 2
  .amdhsa_user_sgpr_kernarg_segment_ptr 1
  .amdhsa_system_sgpr_workgroup_id_x 1
.end_amdhsa_kernel
"""


K_X = 16
K_ACC = 96
K_A = 192
K_T = 216
WAVE_LDS = 30720
LDS_STG = 8192


K_R = K_A


def typek_mfma_phase(a, vtr, zero=True, vm_after=None, extra=None):
    def reads(s, buf):
        for ct in range(3):
            o = (3 * s + ct) * 1024
            r = K_A + buf * 12 + ct * 4
            a(f"ds_read_b64_tr_b16 {vr(r,2)}, v{vtr} offset:{o}")
            a(f"ds_read_b64_tr_b16 {vr(r+2,2)}, v{vtr} offset:{o+256}")
    if vm_after:
        a(f"s_waitcnt vmcnt({vm_after(0)})")
    reads(0, 0)
    for s in range(10):
        if s + 1 < 10:
            if vm_after:
                a(f"s_waitcnt vmcnt({vm_after(s+1)})")
            reads(s + 1, (s + 1) & 1)
            a("s_waitcnt lgkmcnt(6)")
        else:
            a("s_waitcnt lgkmcnt(0)")
        ex = list(extra(s)) if extra else []
        n = len(ex)
        k = 0
        for ct in range(3):
            for rt in range(2):
                d = K_ACC + (rt * 3 + ct) * 16
                mfma32(a, d, K_A + (s & 1) * 12 + ct * 4, K_X + rt * 40 + s * 4, "0" if (s == 0 and zero) else None)
                k += 1
                for x in ex[((k - 1) * n) // 6:(k * n) // 6]:
                    a(x)


def typek_reduce(a, vslab, vrd, s_w, pfx, pre_barrier=None):
    for rt in range(2):
        for ct in range(3):
            for g in range(4):
                r = K_ACC + (rt * 3 + ct) * 16 + g * 4
                a(f"ds_write_b128 v{vslab}, {vr(r,4)} offset:{rt*12800 + ct*128 + g*32}")
    if pre_barrier:
        pre_barrier()
    a("s_waitcnt lgkmcnt(0)")
    a("s_barrier")
    for j in range(4):
        for rt in range(2):
            for ct in range(3):
                t = rt * 3 + ct
                base = LDS_STG + j * WAVE_LDS + rt * 12800 + ct * 128
                if j < 2:
                    a(f"ds_read_b128 {vr(K_ACC+(j*6+t)*4,4)}, v{vrd} offset:{base}")
                else:
                    a(f"ds_read_b128 {vr(K_ACC+(j*6+t)*4,4)}, v{vrd+1} offset:{base-2*WAVE_LDS}")


def typek_reduce_sum(a):
    for t in range(6):
        for e in range(0, 4, 2):
            r0 = K_ACC + t * 4 + e
            a(f"v_pk_add_f32 {vr(r0,2)}, {vr(r0,2)}, {vr(r0+24,2)}")
            a(f"v_pk_add_f32 {vr(r0+48,2)}, {vr(r0+48,2)}, {vr(r0+72,2)}")
    for t in range(6):
        for e in range(0, 4, 2):
            r0 = K_ACC + t * 4 + e
            a(f"v_pk_add_f32 {vr(K_R+t*4+e,2)}, {vr(r0,2)}, {vr(r0+48,2)}")


def lane_setup(a, T, vLane, vN, vH, s_w):
    a(f"v_and_b32 v{vLane}, 63, v0")
    a(f"v_lshrrev_b32 v{T}, 6, v0")
    a(f"v_readfirstlane_b32 s{s_w}, v{T}")
    a(f"v_and_b32 v{vN}, 31, v0")
    a(f"v_bfe_u32 v{vH}, v0, 5, 1")


def tr_base(a, vTr, T, vLane, vH, hshift):
    a(f"v_lshlrev_b32 v{vTr}, {hshift}, v{vH}")
    a(f"v_bfe_u32 v{T}, v{vLane}, 2, 2")
    a(f"v_lshl_add_u32 v{vTr}, v{T}, 6, v{vTr}")
    a(f"v_bfe_u32 v{T}, v{vLane}, 4, 1")
    a(f"v_lshl_add_u32 v{vTr}, v{T}, 5, v{vTr}")
    a(f"v_and_b32 v{T}, 3, v{vLane}")
    a(f"v_lshl_add_u32 v{vTr}, v{T}, 3, v{vTr}")


def gen_qkv():
    a = Asm()
    a.label("qkv_kernel")
    ST = 0
    NB = 4096
    MX = 6144
    s_w, s_rb, s_cb = 32, 33, 34
    SX, SWS = 16, 28
    SWT = [72, 76, 80]
    vLane, vN, vH = 1, 2, 3
    vXg, vXr, vTr, vSlab, vRd = 4, 5, 7, 8, 9
    vSt = 11
    vWo = [12, 13, 14]
    vCs = 6
    T = K_T
    XO = 9216
    a("s_cmp_ge_u32 s2, 256")
    a("s_cbranch_scc1 qkv_end")
    stamp_begin(a, "qkv")
    a("s_load_dwordx4 s[4:7], s[0:1], 0")
    a("s_load_dwordx4 s[8:11], s[0:1], 16")
    a("s_load_dwordx2 s[12:13], s[0:1], 88")
    lane_setup(a, T, vLane, vN, vH, s_w)
    a("s_and_b32 s3, s2, 7")
    a("s_lshr_b32 s35, s2, 3")
    a("s_and_b32 s36, s35, 3")
    a("s_lshl_b32 s3, s3, 2")
    a(f"s_add_u32 s{s_rb}, s3, s36")
    a(f"s_lshr_b32 s{s_cb}, s35, 2")
    a(f"v_mul_u32_u24 v{T}, 49, v{vLane}")
    a(f"v_lshrrev_b32 v{T}, 10, v{T}")
    a(f"v_mul_u32_u24 v{T+1}, 21, v{T}")
    a(f"v_sub_u32 v{T+1}, v{vLane}, v{T+1}")
    a(f"v_mul_u32_u24 v{vXg}, 1280, v{T}")
    a(f"v_lshl_add_u32 v{vXg}, v{T+1}, 4, v{vXg}")
    a(f"s_mul_i32 s37, s{s_w}, {WAVE_LDS}")
    a(f"s_add_u32 s37, s37, {LDS_STG}")
    a(f"v_mul_u32_u24 v{vXr}, 336, v{vN}")
    a(f"v_lshl_add_u32 v{vXr}, v{vH}, 4, v{vXr}")
    a(f"v_add_u32 v{vXr}, s37, v{vXr}")
    a(f"s_mul_i32 s39, s{s_rb}, {64*1280}")
    a(f"s_mul_i32 s40, s{s_w}, 320")
    a("s_add_u32 s39, s39, s40")
    a("s_waitcnt lgkmcnt(0)")
    srd(a, SX, 4, 2621440)
    a("s_mov_b32 s52, -1")
    a("s_mov_b32 s53, 0x7fffffff")
    a("s_mov_b64 exec, s[52:53]")
    for jx in range(22):
        if jx == 21:
            a("s_mov_b64 exec, 0x1fffff")
        a(f"s_add_u32 m0, s37, {XO + jx*1008}")
        a(f"s_add_u32 s44, s39, {jx*3840}")
        a(f"buffer_load_dwordx4 v{vXg}, s[{SX}:{SX+3}], s44 offen lds")
    a("s_mov_b64 exec, -1")
    a(f"v_lshrrev_b32 v{T}, 2, v{vLane}")
    a(f"v_and_b32 v{T+1}, 3, v{vLane}")
    a(f"v_lshlrev_b32 v{T+1}, 4, v{T+1}")
    a(f"v_mad_u32_u24 v{T+2}, v{T}, 40, v{T+1}")
    a(f"s_movk_i32 s38, 1280")
    a(f"v_mad_u32_u24 v{T+3}, v{T}, s38, v{T+1}")
    a(f"s_mul_i32 s50, s{s_cb}, 3")
    a(f"s_mul_i32 s41, s{s_w}, {160*1280}")
    a(f"s_mul_i32 s43, s{s_w}, {160*40}")
    for ct in range(3):
        d = SWT[ct]
        a(f"s_add_u32 s51, s50, {ct}")
        a("s_cmp_eq_u32 s51, 21")
        a(f"s_cselect_b32 s{d}, s10, s8")
        a(f"s_cselect_b32 s{d+1}, s11, s9")
        a("s_cmp_lt_u32 s51, 22")
        a(f"s_cselect_b32 s{d+2}, 25600, 0")
        a("s_lshl_b32 s45, s51, 6")
        a("s_add_u32 s45, s45, s41")
        a("s_cmp_lt_u32 s51, 20")
        a(f"s_cselect_b32 s{d}, s6, s{d}")
        a(f"s_cselect_b32 s{d+1}, s7, s{d+1}")
        a(f"s_cselect_b32 s{d+2}, 819200, s{d+2}")
        a(f"s_mov_b32 s{d+3}, 0x00020000")
        a(f"s_cselect_b32 s{84+ct}, s45, s43")
        a(f"s_movk_i32 s{87+ct}, {16*40}")
        a(f"s_cselect_b32 s{87+ct}, {16*1280}, s{87+ct}")
        a("s_cselect_b64 vcc, -1, 0")
        a(f"s_and_b32 s{d+1}, s{d+1}, 0xffff")
        a(f"v_cndmask_b32 v{vWo[ct]}, v{T+2}, v{T+3}, vcc")

    def w_dma(s):
        for ct in range(3):
            a(f"s_add_u32 m0, s37, {(3*s+ct)*1024}")
            a(f"buffer_load_dwordx4 v{vWo[ct]}, s[{SWT[ct]}:{SWT[ct]+3}], s{84+ct} offen lds")
            a(f"s_add_u32 s{84+ct}, s{84+ct}, s{87+ct}")
    for s in range(3):
        w_dma(s)
    srd(a, SWS, 12, WS_END)
    tr_base(a, vTr, T, vLane, vH, 9)
    a(f"v_add_u32 v{vTr}, s37, v{vTr}")
    a(f"v_mul_u32_u24 v{vRd}, 400, v{vN}")
    a(f"v_lshl_add_u32 v{vRd}, v{vH}, 4, v{vRd}")
    a(f"v_add_u32 v{vSlab}, s37, v{vRd}")
    a(f"s_lshl_b32 s38, s{s_w}, 5")
    a(f"v_add_u32 v{vRd}, s38, v{vRd}")
    a(f"v_add_u32 v{vRd+1}, {2*WAVE_LDS}, v{vRd}")
    a(f"v_lshlrev_b32 v{vCs}, 2, v{vN}")
    a(f"v_add_u32 v{vCs}, s37, v{vCs}")
    a(f"v_lshlrev_b32 v{vSt}, 6, v{vN}")
    vOne = T
    SA = T + 2
    a(f"v_mov_b32 v{vOne}, 0x3f803f80")
    for i in range(11):
        a(f"v_mov_b32 v{SA+i}, 0")
    a(f"ds_write_b32 v{SA}, v{SA} offset:{MX}")
    a("s_waitcnt vmcnt(9)")
    stamp(a, "qkv")
    for rt in range(2):
        for s in range(10):
            a(f"ds_read_b128 {vr(K_X+rt*40+s*4,4)}, v{vXr} offset:{XO + rt*10752 + s*32}")
    a("s_waitcnt lgkmcnt(0)")
    xs = []
    for i in range(40):
        for rt in range(2):
            x = K_X + rt * 40 + i
            b = SA + rt * 4 + (i & 1) * 2
            xs.append(f"v_dot2_f32_bf16 v{b}, v{x}, v{vOne}, v{b}")
            xs.append(f"v_dot2_f32_bf16 v{b+1}, v{x}, v{x}, v{b+1}")
    for s in range(3, 10):
        w_dma(s)
        for x in xs[((s - 3) * 160) // 7:((s - 2) * 160) // 7]:
            a(x)
    stamp(a, "qkv")

    def stats(s):
        out = []
        for q in range(4):
            for ct in range(3):
                out.append(f"v_dot2_f32_bf16 v{SA+8+ct}, v{K_A+(s&1)*12+ct*4+q}, v{vOne}, v{SA+8+ct}")
        return out
    typek_mfma_phase(a, vTr, True, lambda s: 3 * (9 - s), stats)
    stamp(a, "qkv")

    def pre_barrier():
        for rt in range(2):
            b = SA + rt * 4
            a(f"v_pk_add_f32 {vr(b,2)}, {vr(b,2)}, {vr(b+2,2)}")
        a(f"v_lshl_add_u32 v{T+14}, v{vH}, 3, v{vSt}")
        a(f"s_lshl_b32 s38, s{s_w}, 4")
        a(f"v_add_u32 v{T+14}, s38, v{T+14}")
        for rt in range(2):
            a(f"ds_write_b64 v{T+14}, {vr(SA+rt*4,2)} offset:{ST + rt*2048}")
        for ct in range(3):
            a(f"v_mov_b32 v{T+16+ct}, v{SA+8+ct}")
        for ct in range(3):
            a(f"v_permlane32_swap_b32 v{SA+8+ct}, v{T+16+ct}")
        for ct in range(3):
            a(f"v_add_f32 v{SA+8+ct}, v{SA+8+ct}, v{T+16+ct}")
            a(f"ds_write_b32 v{vCs}, v{SA+8+ct} offset:{25600 + ct*128}")
    typek_reduce(a, vSlab, vRd, s_w, "qkv", pre_barrier)
    R0 = T + 4
    CS = T + 20
    RR = T + 32
    a(f"v_lshlrev_b32 v{T}, 4, v{vH}")
    a(f"s_lshl_b32 s38, s{s_w}, 5")
    a(f"v_add_u32 v{T}, s38, v{T}")
    a(f"v_add_u32 v{T+1}, {2*WAVE_LDS}, v{T}")
    a(f"s_mov_b32 s45, {hx(f2u(1.0/640))}")
    a(f"s_mov_b32 s46, {hx(f2u(1e-5))}")
    a("s_waitcnt lgkmcnt(0)")
    typek_reduce_sum(a)
    for jw in range(4):
        for ct in range(3):
            base = LDS_STG + (jw & 1) * WAVE_LDS + 25600 + ct * 128
            a(f"ds_read_b128 {vr(K_ACC+(jw*3+ct)*4,4)}, v{T+(jw>>1)} offset:{base}")
    for rt in range(2):
        for q in range(4):
            a(f"ds_read_b128 {vr(K_ACC+48+rt*16+q*4,4)}, v{vSt} offset:{ST + rt*2048 + q*16}")
    a("s_waitcnt lgkmcnt(0)")
    for e in range(0, 12, 2):
        a(f"v_pk_add_f32 {vr(K_ACC+e,2)}, {vr(K_ACC+e,2)}, {vr(K_ACC+12+e,2)}")
        a(f"v_pk_add_f32 {vr(K_ACC+24+e,2)}, {vr(K_ACC+24+e,2)}, {vr(K_ACC+36+e,2)}")
    for e in range(0, 12, 2):
        a(f"v_pk_add_f32 {vr(CS+e,2)}, {vr(K_ACC+e,2)}, {vr(K_ACC+24+e,2)}")
    for rt in range(2):
        b = K_ACC + 48 + rt * 16
        for step in (8, 4, 2):
            for e in range(0, step, 2):
                a(f"v_pk_add_f32 {vr(b+e,2)}, {vr(b+e,2)}, {vr(b+e+step,2)}")
        mu, sq, t0 = b, b + 1, b + 3
        m_b, rr = RR + rt * 2, RR + rt * 2 + 1
        a(f"v_mul_f32 v{mu}, s45, v{mu}")
        a(f"v_mul_f32 v{sq}, s45, v{sq}")
        a(f"v_fma_f32 v{sq}, -v{mu}, v{mu}, v{sq}")
        a(f"v_max_f32 v{sq}, 0, v{sq}")
        a(f"v_cvt_pk_bf16_f32 v{m_b}, v{mu}, v{sq}")
        a(f"v_and_b32 v{t0}, 0xffff0000, v{m_b}")
        a(f"v_lshlrev_b32 v{m_b}, 16, v{m_b}")
        a(f"v_add_f32 v{t0}, s46, v{t0}")
        a(f"v_cvt_pk_bf16_f32 v{t0}, v{t0}, v{t0}")
        a(f"v_lshlrev_b32 v{t0}, 16, v{t0}")
        a(f"v_sqrt_f32 v{t0}, v{t0}")
        a(f"v_cvt_pk_bf16_f32 v{t0}, v{t0}, v{t0}")
        a(f"v_lshlrev_b32 v{t0}, 16, v{t0}")
        a(f"v_rcp_f32 v{rr}, v{t0}")
    for rt in range(2):
        m_b, rr = RR + rt * 2, RR + rt * 2 + 1
        for ct in range(3):
            for e in range(4):
                r = K_R + (rt * 3 + ct) * 4 + e
                a(f"v_fma_f32 v{r}, -v{m_b}, v{CS+ct*4+e}, v{r}")
                a(f"v_mul_f32 v{r}, v{r}, v{rr}")
    stamp(a, "qkv")
    a("s_mov_b32 s47, 0xffff0000")
    a(f"v_lshlrev_b32 v{T}, 4, v{vLane}")
    a(f"s_mul_i32 s39, s{s_rb}, {2*40*1024}")
    a(f"s_mul_i32 s40, s{s_w}, {10*1024}")
    a("s_add_u32 s39, s39, s40")
    for rt in range(2):
        m_b, rr = RR + rt * 2, RR + rt * 2 + 1
        PR = K_ACC + rt * 4
        a(f"v_mov_b32 v{PR}, v{rr}")
        a(f"v_mov_b32 v{PR+1}, v{rr}")
        a(f"v_mul_f32_e64 v{PR+2}, -v{m_b}, v{rr}")
        a(f"v_mov_b32 v{PR+3}, v{PR+2}")
    for c in range(8):
        a(f"s_cmp_lg_u32 s{s_cb}, {c}")
        a(f"s_cbranch_scc1 qkv_xn{c}")
        for f in range(c, 20, 8):
            rt, sx = divmod(f, 10)
            PR = K_ACC + rt * 4
            for q in range(4):
                x = K_X + rt * 40 + sx * 4 + q
                u = K_ACC + 8 + q * 2
                a(f"v_lshlrev_b32 v{u}, 16, v{x}")
                a(f"v_and_b32 v{u+1}, s47, v{x}")
                a(f"v_pk_fma_f32 {vr(u,2)}, {vr(u,2)}, {vr(PR,2)}, {vr(PR+2,2)}")
                a(f"v_cvt_pk_bf16_f32 v{x}, v{u}, v{u+1}")
            a(f"s_add_u32 s44, s39, {XF + rt*40*1024 + sx*1024}")
            a(f"buffer_store_dwordx4 {vr(K_X+rt*40+sx*4,4)}, v{T}, s[{SWS}:{SWS+3}], s44 offen")
        a.label(f"qkv_xn{c}")
    vC0, vHead, vD0, vOff, vA = T, T + 1, T + 2, T + 3, T + 4
    a(f"s_mov_b32 s45, {hx(f2u(QSCALE))}")
    a("s_mov_b32 s46, 3277")
    a(f"s_mul_i32 s38, s{s_cb}, 96")
    a(f"s_lshl_b32 s39, s{s_w}, 3")
    a("s_add_u32 s38, s38, s39")
    a(f"s_mul_i32 s48, s{s_rb}, {2*32*1280}")
    a(f"s_add_u32 s48, s48, {QF}")
    a(f"s_add_u32 s49, s48, {32*1280}")
    a(f"s_mul_i32 s50, s{s_cb}, 3")

    def frag_off(vD0, vOff):
        a(f"v_lshrrev_b32 v{vA}, 3, v{vD0}")
        a(f"v_lshlrev_b32 v{vA}, 9, v{vA}")
        a(f"v_lshl_add_u32 v{vA}, v{vN}, 4, v{vA}")
        a(f"v_and_b32 v{vA+1}, 4, v{vD0}")
        a(f"v_lshl_add_u32 v{vA}, v{vA+1}, 1, v{vA}")
        a(f"v_lshlrev_b32 v{vA+1}, 3, v{vN}")
        a(f"v_add_u32 v{vA+1}, 1024, v{vA+1}")
        a(f"v_cmp_gt_u32 vcc, 16, v{vD0}")
        a(f"v_cndmask_b32 v{vA}, v{vA+1}, v{vA}, vcc")
        a(f"v_add_u32 v{vOff}, v{vOff}, v{vA}")

    for ct in range(3):
        a(f"s_add_u32 s51, s50, {ct}")
        a("s_cmp_ge_u32 s51, 20")
        a(f"s_cbranch_scc1 qkv_notq{ct}")
        a(f"v_lshlrev_b32 v{vC0}, 2, v{vH}")
        a(f"v_add_u32 v{vC0}, s38, v{vC0}")
        if ct:
            a(f"v_add_u32 v{vC0}, {32*ct}, v{vC0}")
        a(f"v_mul_u32_u24 v{vHead}, s46, v{vC0}")
        a(f"v_lshrrev_b32 v{vHead}, 16, v{vHead}")
        a(f"v_mul_u32_u24 v{vD0}, 20, v{vHead}")
        a(f"v_sub_u32 v{vD0}, v{vC0}, v{vD0}")
        a(f"v_mul_u32_u24 v{vOff}, 1280, v{vHead}")
        frag_off(vD0, vOff)
        for rt in range(2):
            r = K_R + (rt * 3 + ct) * 4
            for e in range(4):
                a(f"v_mul_f32 v{r+e}, s45, v{r+e}")
            a(f"v_cvt_pk_bf16_f32 v{r}, v{r}, v{r+1}")
            a(f"v_cvt_pk_bf16_f32 v{r+1}, v{r+2}, v{r+3}")
            a(f"buffer_store_dwordx2 {vr(r,2)}, v{vOff}, s[{SWS}:{SWS+3}], s{48+rt} offen")
        a.label(f"qkv_notq{ct}")
    stamp_end(a, "qkv", SWS, s_w, 240)
    a(f"s_cmp_lt_u32 s{s_cb}, 6")
    a("s_cbranch_scc1 qkv_end")
    P = T + 8
    a(f"s_cmp_eq_u32 s{s_cb}, 7")
    a("s_cbranch_scc1 qkv_mvv")
    for rt in range(2):
        for e in range(4):
            a(f"v_mov_b32 v{P+rt*4+e}, v{K_R+(rt*3+2)*4+e}")
    a("s_branch qkv_mvd")
    a.label("qkv_mvv")
    for rt in range(2):
        for e in range(4):
            a(f"v_mov_b32 v{P+rt*4+e}, v{K_R+(rt*3+0)*4+e}")
    a.label("qkv_mvd")
    a(f"v_lshlrev_b32 v{vD0}, 2, v{vH}")
    a(f"v_add_u32 v{vD0}, s39, v{vD0}")
    a(f"v_cmp_gt_u32 s[52:53], 20, v{vD0}")
    a(f"v_lshlrev_b32 v{vA}, 5, v{vN}")
    a(f"v_add_u32 v{vA}, v{vA}, v{vD0}")
    for rt in range(2):
        q = T + 16 + rt
        a(f"v_mul_f32 v{q}, v{P+rt*4}, v{P+rt*4}")
        for e in range(1, 4):
            a(f"v_fmac_f32 v{q}, v{P+rt*4+e}, v{P+rt*4+e}")
        a(f"v_cndmask_b32 v{q}, 0, v{q}, s[52:53]")
        a(f"ds_write_b32 v{vA}, v{q} offset:{NB + rt*1024}")
    for rt in range(2):
        r = P + rt * 4
        a(f"v_cvt_pk_bf16_f32 v{r}, v{r}, v{r+1}")
        a(f"v_cvt_pk_bf16_f32 v{r+1}, v{r+2}, v{r+3}")
    a("s_mov_b64 s[54:55], exec")
    a("s_and_b64 exec, exec, s[52:53]")
    a("s_cbranch_execz qkv_kvst_done")
    a(f"s_mul_i32 s48, s{s_rb}, {2*1280}")
    a(f"s_cmp_eq_u32 s{s_cb}, 7")
    a("s_cbranch_scc1 qkv_vst")
    a(f"s_add_u32 s48, s48, {KF}")
    a("s_add_u32 s49, s48, 1280")
    a(f"v_mov_b32 v{vOff}, 0")
    frag_off(vD0, vOff)
    for rt in range(2):
        a(f"buffer_store_dwordx2 {vr(P+rt*4,2)}, v{vOff}, s[{SWS}:{SWS+3}], s{48+rt} offen")
    a("s_branch qkv_kvst_done")
    a.label("qkv_vst")
    a(f"s_mul_i32 s48, s{s_rb}, {2*1344}")
    a(f"s_add_u32 s48, s48, {VF}")
    a("s_add_u32 s49, s48, 1344")
    a(f"v_lshrrev_b32 v{vA}, 4, v{vN}")
    a(f"v_lshlrev_b32 v{vA}, 1, v{vA}")
    a(f"v_bfe_u32 v{vA+1}, v{vN}, 2, 1")
    a(f"v_add_u32 v{vA}, v{vA}, v{vA+1}")
    a(f"v_mul_u32_u24 v{vA}, 21, v{vA}")
    a(f"v_add_u32 v{vA}, v{vA}, v{vD0}")
    a(f"v_lshlrev_b32 v{vOff}, 4, v{vA}")
    a(f"v_and_b32 v{vA}, 3, v{vN}")
    a(f"v_lshl_add_u32 v{vOff}, v{vA}, 1, v{vOff}")
    a(f"v_bfe_u32 v{vA}, v{vN}, 3, 1")
    a(f"v_lshl_add_u32 v{vOff}, v{vA}, 3, v{vOff}")
    for rt in range(2):
        r = P + rt * 4
        a(f"buffer_store_short v{r}, v{vOff}, s[{SWS}:{SWS+3}], s{48+rt} offen")
        a(f"buffer_store_short_d16_hi v{r}, v{vOff}, s[{SWS}:{SWS+3}], s{48+rt} offen offset:16")
        a(f"buffer_store_short v{r+1}, v{vOff}, s[{SWS}:{SWS+3}], s{48+rt} offen offset:32")
        a(f"buffer_store_short_d16_hi v{r+1}, v{vOff}, s[{SWS}:{SWS+3}], s{48+rt} offen offset:48")
    a.label("qkv_kvst_done")
    a("s_mov_b64 exec, s[54:55]")
    a(f"s_cmp_lg_u32 s{s_cb}, 7")
    a("s_cbranch_scc1 qkv_noones")
    a(f"s_cmp_lg_u32 s{s_w}, 3")
    a("s_cbranch_scc1 qkv_noones")
    a(f"s_mul_i32 s48, s{s_rb}, {2*1344}")
    a(f"s_add_u32 s48, s48, {VF + 320}")
    a(f"v_mul_u32_u24 v{vOff}, 336, v{vLane}")
    for e in range(4):
        a(f"v_mov_b32 v{P+e}, 0x3f803f80")
    a("s_mov_b64 exec, 0xff")
    a(f"buffer_store_dwordx4 {vr(P,4)}, v{vOff}, s[{SWS}:{SWS+3}], s48 offen")
    a("s_mov_b64 exec, s[54:55]")
    a.label("qkv_noones")
    a("s_waitcnt lgkmcnt(0)")
    a("s_barrier")
    a(f"s_cmp_lg_u32 s{s_w}, 0")
    a("s_cbranch_scc1 qkv_end")
    a(f"v_lshlrev_b32 v{vA}, 5, v{vLane}")
    a(f"ds_read_b128 {vr(P,4)}, v{vA} offset:{NB}")
    a(f"ds_read_b128 {vr(P+4,4)}, v{vA} offset:{NB+16}")
    a("s_waitcnt lgkmcnt(0)")
    for e in range(1, 8):
        a(f"v_add_f32 v{P}, v{P}, v{P+e}")
    a(f"v_mov_b32 v{vA}, 0")
    a(f"ds_max_u32 v{vA}, v{P} offset:{MX}")
    a("s_waitcnt lgkmcnt(0)")
    a(f"ds_read_b32 v{P}, v{vA} offset:{MX}")
    a(f"s_sub_u32 s48, s{s_cb}, 6")
    a("s_lshl_b32 s48, s48, 5")
    a(f"s_add_u32 s48, s48, s{s_rb}")
    a("s_lshl_b32 s48, s48, 2")
    a(f"s_add_u32 s48, s48, {KN}")
    a("s_waitcnt lgkmcnt(0)")
    a(f"buffer_store_dword v{P}, v{vA}, s[{SWS}:{SWS+3}], s48 offen")
    a.label("qkv_end")
    a("s_endpgm")
    return a.finish(), ("qkv_kernel", 256, 256, 131072, 256)


A_Q, A_O, A_S, A_P, A_K, A_V, A_M = 16, 48, 112, 144, 160, 192, 224
A_T = 228
NSET = 4
OOB = 0x80000000


def gen_attn_body(a, pfx, s_wg):
    s_w, s_rt, s_kh, s_hd = 32, 33, 34, 35
    SWS = 28
    vLane, vN, vH = 1, 2, 3
    vK1, vK2, vV = 4, 5, 6
    T = A_T
    a("s_load_dwordx2 s[12:13], s[0:1], 88")
    lane_setup(a, T, vLane, vN, vH, s_w)
    a(f"s_and_b32 s3, s{s_wg}, 7")
    a(f"s_lshr_b32 s36, s{s_wg}, 5")
    a("s_lshl_b32 s3, s3, 3")
    a(f"s_add_u32 s{s_rt}, s3, s36")
    a(f"s_bfe_u32 s3, s{s_wg}, 0x20003")
    a(f"s_and_b32 s{s_kh}, s{s_w}, 1")
    a(f"s_lshr_b32 s36, s{s_w}, 1")
    a("s_lshl_b32 s3, s3, 3")
    a("s_lshl_b32 s36, s36, 2")
    a(f"s_add_u32 s{s_hd}, s3, s36")
    a(f"v_lshlrev_b32 v{vK1}, 4, v{vLane}")
    a(f"v_lshlrev_b32 v{vK2}, 3, v{vN}")
    a(f"v_add_u32 v{vK2}, 1024, v{vK2}")
    a(f"v_mov_b32 v{T}, {hx(OOB)}")
    a(f"v_cmp_eq_u32 vcc, 0, v{vH}")
    a(f"v_cndmask_b32 v{vK2}, v{T}, v{vK2}, vcc")
    a(f"v_mul_u32_u24 v{vV}, 21, v{vH}")
    a(f"v_add_u32 v{vV}, v{vV}, v{vN}")
    a(f"v_lshlrev_b32 v{vV}, 4, v{vV}")
    a(f"v_cmp_gt_u32 vcc, 21, v{vN}")
    a(f"v_cndmask_b32 v{vV}, v{T}, v{vV}, vcc")
    a("s_waitcnt lgkmcnt(0)")
    srd(a, SWS, 12, WS_END)
    a(f"s_add_u32 s12, s12, {KN}")
    a("s_addc_u32 s13, s13, 0")
    a("s_load_dwordx16 s[64:79], s[12:13], 0")
    a("s_load_dwordx16 s[80:95], s[12:13], 64")
    a("s_load_dwordx16 s[44:59], s[12:13], 128")
    a(f"s_lshl_b32 s36, s{s_rt}, 5")
    a(f"s_add_u32 s36, s36, s{s_hd}")
    a("s_mul_i32 s36, s36, 1280")
    a(f"s_add_u32 s36, s36, {QF}")
    for i in range(4):
        a(f"buffer_load_dwordx4 {vr(A_Q+8*i,4)}, v{vK1}, s[{SWS}:{SWS+3}], s36 offen")
        a(f"buffer_load_dwordx2 {vr(A_Q+8*i+4,2)}, v{vK2}, s[{SWS}:{SWS+3}], s36 offen")
        if i < 3:
            a("s_add_u32 s36, s36, 1280")
    s_kp, s_vp = 37, 38
    a(f"s_mul_i32 s{s_kp}, s{s_kh}, {32*1280}")
    a(f"s_add_u32 s{s_kp}, s{s_kp}, {KF}")
    a(f"s_mul_i32 s{s_vp}, s{s_kh}, {32*1344}")
    a(f"s_add_u32 s{s_vp}, s{s_vp}, {VF}")

    def loadK(st):
        a(f"buffer_load_dwordx4 {vr(A_K+8*st,4)}, v{vK1}, s[{SWS}:{SWS+3}], s{s_kp} offen")
        a(f"buffer_load_dwordx2 {vr(A_K+8*st+4,2)}, v{vK2}, s[{SWS}:{SWS+3}], s{s_kp} offen")
        a(f"s_add_u32 s{s_kp}, s{s_kp}, 1280")

    def loadV(st):
        a(f"buffer_load_dwordx4 {vr(A_V+8*st,4)}, v{vV}, s[{SWS}:{SWS+3}], s{s_vp} offen")
        a(f"buffer_load_dwordx4 {vr(A_V+8*st+4,4)}, v{vV}, s[{SWS}:{SWS+3}], s{s_vp} offen offset:672")
        a(f"s_add_u32 s{s_vp}, s{s_vp}, 1344")
    for st in range(NSET - 1):
        loadK(st)
        loadV(st)
    loadK(NSET - 1)
    for i in range(4):
        a(f"v_mov_b32 v{A_Q+8*i+6}, 0")
        a(f"v_mov_b32 v{A_Q+8*i+7}, 0")
    for st in range(NSET):
        a(f"v_mov_b32 v{A_K+8*st+6}, 0")
        a(f"v_mov_b32 v{A_K+8*st+7}, 0")
    for r in range(64):
        a(f"v_mov_b32 v{A_O+r}, 0")
    for r in range(16):
        a(f"v_mov_b32 v{A_P+r}, 0")
    for r in range(8):
        a(f"v_mov_b32 v{A_V+8*(NSET-1)+r}, 0")
    for r in range(4):
        a(f"v_mov_b32 v{A_M+r}, 0")
    a("s_waitcnt lgkmcnt(0)")
    for r in range(65, 96):
        a(f"s_max_u32 s64, s64, s{r}")
    for r in range(45, 60):
        a(f"s_max_u32 s44, s44, s{r}")
    a("s_load_dwordx16 s[80:95], s[12:13], 192")
    a("s_waitcnt lgkmcnt(0)")
    for r in range(80, 96):
        a(f"s_max_u32 s44, s44, s{r}")
    a(f"s_waitcnt vmcnt({4*NSET-2})")
    for i in range(4):
        a(f"v_mov_b32 v{T+i}, 0")
    for r in range(6):
        for i in range(4):
            a(f"v_dot2_f32_bf16 v{T+i}, v{A_Q+8*i+r}, v{A_Q+8*i+r}, v{T+i}")
    for i in range(4):
        a(f"v_mov_b32 v{T+4+i}, v{T+i}")
    for i in range(4):
        a(f"v_permlane32_swap_b32 v{T+i}, v{T+4+i}")
    for i in range(4):
        a(f"v_add_f32 v{T+i}, v{T+i}, v{T+4+i}")
    a(f"v_max3_f32 v{T}, v{T}, v{T+1}, v{T+2}")
    a(f"v_max_f32 v{T}, v{T}, v{T+3}")
    a(f"v_mul_f32 v{T}, s64, v{T}")
    a(f"v_mov_b32 v{T+1}, {hx(f2u(3600.0/1.05))}")
    a(f"v_cmp_nle_f32 vcc, v{T}, v{T+1}")
    a(f"s_cmp_gt_u32 s44, {hx(f2u(2.0**80))}")
    a(f"s_cbranch_scc1 {pfx}_slow")
    a(f"s_cbranch_vccnz {pfx}_slow")

    def qk(m, sb, ks, i):
        if m == 0:
            mfma32(a, A_S + 16 * sb, A_K + 8 * ks, A_Q + 8 * i, "0")
        else:
            mfma32(a, A_S + 16 * sb, A_K + 8 * ks + 4, A_Q + 8 * i + 4)

    def pv(m, pb, vs, i):
        mfma32(a, A_O + 16 * i, A_V + 8 * vs + 4 * m, A_P + 8 * pb + 4 * m)

    a(f"s_waitcnt vmcnt({4*NSET-4})")
    qk(0, 0, 0, 0)
    qk(1, 0, 0, 0)
    stamp(a, "attn")
    a(f"s_mov_b32 s39, {32//NSET}")
    a("s_nop 10")
    a.raw(".p2align 6")
    a.label(f"{pfx}_loop")
    for kk in range(NSET):
        for i in range(4):
            cur = i & 1
            S = A_S + 16 * cur
            P = A_P + 8 * cur
            nks, ni = (kk, i + 1) if i < 3 else ((kk + 1) % NSET, 0)
            pvs, pi = (kk, i - 1) if i > 0 else ((kk - 1) % NSET, 3)
            if i in (1, 3) and not os.environ.get("NOWAIT"):
                a(f"s_waitcnt vmcnt({4*NSET-6})")
            qk(0, cur ^ 1, nks, ni)
            for e in range(0, 4):
                a(f"v_exp_f32 v{S+e}, v{S+e}")
            qk(1, cur ^ 1, nks, ni)
            if i == 1 and not os.environ.get("NOKV"):
                loadV((kk - 1) % NSET)
            if i == 3 and not os.environ.get("NOKV"):
                loadK(kk)
            for e in range(4, 8):
                a(f"v_exp_f32 v{S+e}, v{S+e}")
            pv(0, cur ^ 1, pvs, pi)
            for e in range(8, 12):
                a(f"v_exp_f32 v{S+e}, v{S+e}")
            for j in range(0, 2):
                a(f"v_cvt_pk_bf16_f32 v{P+j}, v{S+2*j}, v{S+2*j+1}")
            pv(1, cur ^ 1, pvs, pi)
            for e in range(12, 16):
                a(f"v_exp_f32 v{S+e}, v{S+e}")
            for j in range(2, 8):
                a(f"v_cvt_pk_bf16_f32 v{P+j}, v{S+2*j}, v{S+2*j+1}")
    a("s_sub_u32 s39, s39, 1")
    a("s_cmp_lg_u32 s39, 0")
    a(f"s_cbranch_scc1 {pfx}_loop")
    pv(0, 1, NSET - 1, 3)
    pv(1, 1, NSET - 1, 3)
    stamp(a, "attn")
    a(f"s_branch {pfx}_epi")

    a.label(f"{pfx}_slow")
    for r in range(4):
        a(f"v_mov_b32 v{A_M+r}, {hx(f2u(-1e30))}")
    a("s_mov_b32 s39, 32")
    a(f"s_sub_u32 s{s_kp}, s{s_kp}, {1280*(NSET-1)}")
    a(f"s_sub_u32 s{s_vp}, s{s_vp}, {1344*(NSET-2)}")
    a.label(f"{pfx}_sloop")
    a("s_waitcnt vmcnt(0)")
    for i in range(4):
        S, P, M = A_S, A_P, A_M + i
        qk(0, 0, 0, i)
        qk(1, 0, 0, i)
        a(f"v_max3_f32 v{T}, v{S}, v{S+1}, v{S+2}")
        for e in range(3, 15, 2):
            a(f"v_max3_f32 v{T}, v{T}, v{S+e}, v{S+e+1}")
        a(f"v_max_f32 v{T}, v{T}, v{S+15}")
        a(f"v_mov_b32 v{T+1}, v{T}")
        a(f"v_permlane32_swap_b32 v{T}, v{T+1}")
        a(f"v_max3_f32 v{T}, v{T}, v{T+1}, v{M}")
        a(f"v_sub_f32 v{T+1}, v{M}, v{T}")
        a(f"v_exp_f32 v{T+1}, v{T+1}")
        a(f"v_mov_b32 v{M}, v{T}")
        for e in range(16):
            a(f"v_sub_f32 v{S+e}, v{S+e}, v{T}")
            a(f"v_exp_f32 v{S+e}, v{S+e}")
        for j in range(8):
            a(f"v_cvt_pk_bf16_f32 v{P+j}, v{S+2*j}, v{S+2*j+1}")
        for e in range(16):
            a(f"v_mul_f32 v{A_O+16*i+e}, v{A_O+16*i+e}, v{T+1}")
        pv(0, 0, 0, i)
        pv(1, 0, 0, i)
    loadK(0)
    loadV(0)
    a("s_sub_u32 s39, s39, 1")
    a("s_cmp_lg_u32 s39, 0")
    a(f"s_cbranch_scc1 {pfx}_sloop")

    a.label(f"{pfx}_epi")
    a("s_waitcnt vmcnt(0)")
    vW, vR = T, T + 1
    a(f"s_mul_i32 s40, s{s_w}, 6656")
    a(f"s_xor_b32 s41, s{s_w}, 1")
    a("s_mul_i32 s41, s41, 6656")
    a(f"v_add_u32 v{vW}, s40, v{vK1}")
    a(f"v_add_u32 v{vR}, s41, v{vK1}")
    a(f"v_lshlrev_b32 v{T+2}, 2, v{vLane}")
    a(f"v_add_u32 v{T+3}, s41, v{T+2}")
    a(f"v_add_u32 v{T+2}, s40, v{T+2}")
    a(f"s_cmp_eq_u32 s{s_kh}, 0")
    a(f"s_cbranch_scc1 {pfx}_e0")
    for t in range(2):
        for q in range(3):
            a(f"ds_write_b128 v{vW}, {vr(A_O+16*t+4*q,4)} offset:{(t*3+q)*1024}")
        a(f"ds_write_b32 v{T+2}, v{A_M+t} offset:{6144+t*256}")
    a("s_waitcnt lgkmcnt(0)")
    for t in range(2):
        for e in range(12):
            a(f"v_mov_b32 v{A_O+16*t+e}, v{A_O+16*(t+2)+e}")
        a(f"v_mov_b32 v{A_M+t}, v{A_M+t+2}")
    a(f"s_add_u32 s{s_hd}, s{s_hd}, 2")
    a(f"s_branch {pfx}_e1")
    a.label(f"{pfx}_e0")
    for t in range(2):
        for q in range(3):
            a(f"ds_write_b128 v{vW}, {vr(A_O+16*(t+2)+4*q,4)} offset:{(t*3+q)*1024}")
        a(f"ds_write_b32 v{T+2}, v{A_M+t+2} offset:{6144+t*256}")
    a("s_waitcnt lgkmcnt(0)")
    a.label(f"{pfx}_e1")
    a("s_barrier")
    for t in range(2):
        for q in range(3):
            a(f"ds_read_b128 {vr(A_S+16*t+4*q,4)}, v{vR} offset:{(t*3+q)*1024}")
        a(f"ds_read_b32 v{A_M+2+t}, v{T+3} offset:{6144+t*256}")
    a("s_waitcnt lgkmcnt(0)")
    a(f"s_mul_i32 s40, s{s_rt}, {40*1024}")
    a(f"s_add_u32 s40, s40, {OF}")
    a(f"v_mov_b32 v{T+12}, {hx(OOB)}")
    a(f"v_cmp_eq_u32 s[42:43], 0, v{vH}")
    for t in range(2):
        O, Pz, Ma, Mp = A_O + 16 * t, A_S + 16 * t, A_M + t, A_M + 2 + t
        a(f"v_max_f32 v{T+4}, v{Ma}, v{Mp}")
        a(f"v_sub_f32 v{T+5}, v{Ma}, v{T+4}")
        a(f"v_sub_f32 v{T+6}, v{Mp}, v{T+4}")
        a(f"v_exp_f32 v{T+5}, v{T+5}")
        a(f"v_exp_f32 v{T+6}, v{T+6}")
        for e in range(12):
            a(f"v_mul_f32 v{O+e}, v{O+e}, v{T+5}")
            a(f"v_fmac_f32 v{O+e}, v{Pz+e}, v{T+6}")
        a(f"v_mov_b32 v{T+7}, v{O+8}")
        a(f"v_mov_b32 v{T+8}, v{O+8}")
        a(f"v_permlane32_swap_b32 v{T+7}, v{T+8}")
        a(f"v_rcp_f32 v{T+8}, v{T+8}")
        for e in range(12):
            a(f"v_mul_f32 v{O+e}, v{O+e}, v{T+8}")
        for q in range(3):
            a(f"v_cvt_pk_bf16_f32 v{O+4*q}, v{O+4*q}, v{O+4*q+1}")
            a(f"v_cvt_pk_bf16_f32 v{O+4*q+1}, v{O+4*q+2}, v{O+4*q+3}")
        a(f"s_add_u32 s41, s{s_hd}, {t}")
        a("s_mul_i32 s41, s41, 20")
        for q in range(3):
            k, off = T + 9, T + 10
            a(f"v_lshlrev_b32 v{k}, 2, v{vH}")
            a(f"v_add_u32 v{k}, s41, v{k}")
            if q:
                a(f"v_add_u32 v{k}, {8*q}, v{k}")
            a(f"v_lshrrev_b32 v{off}, 3, v{k}")
            a(f"v_lshlrev_b32 v{off}, 9, v{off}")
            a(f"v_lshl_add_u32 v{off}, v{vN}, 4, v{off}")
            a(f"v_and_b32 v{k}, 4, v{k}")
            a(f"v_lshl_add_u32 v{off}, v{k}, 1, v{off}")
            if q == 2:
                a(f"v_cndmask_b32 v{off}, v{T+12}, v{off}, s[42:43]")
            a(f"buffer_store_dwordx2 {vr(O+4*q,2)}, v{off}, s[{SWS}:{SWS+3}], s40 offen")


def gen_attn():
    a = Asm()
    a.label("attn_kernel")
    a("s_cmp_ge_u32 s2, 256")
    a("s_cbranch_scc1 attn_end")
    stamp_begin(a, "attn")
    gen_attn_body(a, "attn", 2)
    stamp_end(a, "attn", 28, 32, 250)
    a.label("attn_end")
    a("s_endpgm")
    return a.finish(), ("attn_kernel", 256, 256, 26624, 256 if STAMP else 248)


R_ACC, R_A, R_B, R_T = 16, 112, 160, 208


class TypeR:
    def __init__(self, a, pfx, NT, NS, vTr, vWo, vB, s_w, srd_of_tile, goff, s_bp, SWS, tr2, bmods=""):
        self.__dict__.update(locals())
        self.SLOT = 4 * NT * 1024
        self.sname = {"gu": "gateup", "dn": "down"}[pfx[:2]]
        self.s_m = 60
        self.per = NT + 4

    def dma_ops(self, stage):
        slot = stage % 3
        s_g0, s_g1, gstep = self.goff
        out = []
        for t in range(self.NT):
            sr, grp, tt = self.srd_of_tile(t)
            out.append([f"s_add_u32 m0, s{self.s_m}, {slot*self.SLOT + t*1024}",
                        f"s_add_u32 s61, s{s_g0 if grp == 0 else s_g1}, {stage*gstep + tt*64}",
                        f"buffer_load_dwordx4 v{self.vWo}, s[{sr}:{sr+3}], s61 offen lds"])
        return out

    def b_ops(self, stage):
        slot = stage % 3
        bl = []
        for j in range(4):
            g = []
            if j == 0:
                g.append(f"s_add_u32 s62, s{self.s_bp}, {stage*4096}")
            g.append(f"buffer_load_dwordx4 {vr(R_B+slot*16+j*4,4)}, v{self.vB}, s[{self.SWS}:{self.SWS+3}], s62 offen offset:{j*1024}{self.bmods}")
            bl.append(g)
        return bl

    def vm_ops(self, stage):
        out, bl, res = self.dma_ops(stage), self.b_ops(stage), []
        while out or bl:
            if out:
                res.append(out.pop(0))
            if bl and len(res) > 1:
                res.append(bl.pop(0))
        return res

    def emit(self, groups):
        for g in groups:
            for x in g:
                self.a(x)

    def reads(self, stage, j):
        buf = (stage * 4 + j) & 1
        slot = stage % 3
        base = (slot & 1) * self.SLOT + j * self.NT * 1024
        va = self.vTr + (slot >> 1)
        out = []
        for t in range(self.NT):
            r = R_A + buf * 24 + t * 4
            out.append(f"ds_read_b64_tr_b16 {vr(r,2)}, v{va} offset:{base + t*1024}")
            out.append(f"ds_read_b64_tr_b16 {vr(r+2,2)}, v{va} offset:{base + t*1024 + self.tr2}")
        return out

    def mf(self, stage, j, t):
        buf = (stage * 4 + j) & 1
        first = stage == 0 and j == 0
        mfma32(self.a, R_ACC + 16 * t, R_A + buf * 24 + t * 4, R_B + (stage % 3) * 16 + j * 4, "0" if first else None)

    def setup(self):
        a = self.a
        a(f"s_mul_i32 s{self.s_m}, s{self.s_w}, {self.NT*1024}")
        a(f"v_add_u32 v{self.vTr+1}, {2*self.SLOT}, v{self.vTr}")

    def main(self, first_wait):
        a, NT, NS = self.a, self.NT, self.NS
        stamp(a, self.sname)
        a(f"s_waitcnt vmcnt({first_wait})")
        a("s_barrier")
        stamp(a, self.sname)
        for x in self.reads(0, 0):
            a(x)
        for i in range(NS):
            if i in (1, 2, 4):
                stamp(a, self.sname)
            ops = self.vm_ops(i + 2) if i + 2 < NS else []
            nslots = 3 * NT
            place = {}
            for k, g in enumerate(ops):
                place[(k * nslots) // len(ops)] = g
            for j in range(3):
                rd = self.reads(i, j + 1)
                for t in range(NT):
                    a(f"s_waitcnt lgkmcnt({2*(NT-1)})")
                    self.mf(i, j, t)
                    a(rd[2 * t])
                    a(rd[2 * t + 1])
                    if j * NT + t in place:
                        self.emit([place[j * NT + t]])
            last = i + 1 == NS
            H = NT if last else (NT + 1) // 2
            for t in range(H):
                a(f"s_waitcnt lgkmcnt({2*(NT-1-t)})")
                self.mf(i, 3, t)
            if not last:
                a(f"s_waitcnt vmcnt({self.per if ops else 0}) lgkmcnt(0)")
                a("s_barrier")
                rd = self.reads(i + 1, 0)
                n = NT - H
                for k, t in enumerate(range(H, NT)):
                    self.mf(i, 3, t)
                    for x in rd[(k * len(rd)) // n:((k + 1) * len(rd)) // n]:
                        a(x)


def gen_gateup_body(a, pfx, s_wg, mid_hook=None, smods=''):
    s_w, s_rb, s_cb = 32, 33, 34
    SW1, SW3, SWS = 16, 20, 28
    vLane, vN, vH, vWo, vB, vTr = 1, 2, 3, 4, 5, 6
    T = R_T
    a("s_load_dwordx4 s[4:7], s[0:1], 48")
    a("s_load_dwordx2 s[12:13], s[0:1], 88")
    lane_setup(a, T, vLane, vN, vH, s_w)
    a(f"s_and_b32 s3, s{s_wg}, 7")
    a("s_lshl_b32 s3, s3, 1")
    a(f"s_bfe_u32 s36, s{s_wg}, 0x10003")
    a(f"s_add_u32 s{s_rb}, s3, s36")
    a(f"s_lshr_b32 s{s_cb}, s{s_wg}, 4")
    a(f"v_lshrrev_b32 v{T}, 2, v{vLane}")
    a(f"v_mul_u32_u24 v{vWo}, 3072, v{T}")
    a(f"v_and_b32 v{T}, 3, v{vLane}")
    a(f"v_lshl_add_u32 v{vWo}, v{T}, 4, v{vWo}")
    tr_base(a, vTr, T, vLane, vH, 9)
    a(f"v_lshlrev_b32 v{vB}, 4, v{vLane}")
    a(f"s_mul_i32 s40, s{s_w}, {16*3072}")
    a(f"s_mul_i32 s41, s{s_cb}, 192")
    a("s_add_u32 s40, s40, s41")
    a(f"s_lshl_b32 s42, s{s_rb}, 2")
    a(f"s_add_u32 s42, s42, s{s_w}")
    a(f"s_mul_i32 s43, s42, {40*1024}")
    if XF:
        a(f"s_add_u32 s43, s43, {XF}")
    a("s_waitcnt lgkmcnt(0)")
    srd(a, SW1, 4, 1966080)
    srd(a, SW3, 6, 1966080)
    srd(a, SWS, 12, WS_END)
    R = TypeR(a, pfx, 6, 10, vTr, vWo, vB, s_w,
              lambda t: (SW1, 0, t) if t < 3 else (SW3, 0, t - 3), (40, 40, 64 * 3072), 43, SWS, 256)
    R.setup()
    R.emit(R.vm_ops(0) + R.vm_ops(1))
    R.main(R.per)
    if mid_hook:
        mid_hook()
    stamp(a, "gateup")
    a(f"s_mov_b32 s44, {hx(f2u(-math.log2(math.e)))}")
    a(f"s_mul_i32 s45, s42, {96*1024}")
    a(f"s_mul_i32 s46, s{s_cb}, {6*1024}")
    a("s_add_u32 s45, s45, s46")
    a(f"s_add_u32 s45, s45, {HF}")
    a(f"v_mov_b32 v{T}, s44")
    a(f"v_mov_b32 v{T+1}, s44")
    a(f"v_mov_b32 v{T+2}, 1.0")
    a(f"v_mov_b32 v{T+3}, 1.0")
    for t in range(3):
        g, u = R_ACC + 16 * t, R_ACC + 16 * (t + 3)
        E = R_A
        for e in range(0, 16, 2):
            a(f"v_pk_mul_f32 {vr(E+e,2)}, {vr(g+e,2)}, {vr(T,2)}")
        for e in range(16):
            a(f"v_exp_f32 v{E+e}, v{E+e}")
        for e in range(0, 16, 2):
            a(f"v_pk_add_f32 {vr(E+e,2)}, {vr(E+e,2)}, {vr(T+2,2)}")
        for e in range(16):
            a(f"v_rcp_f32 v{E+e}, v{E+e}")
        for e in range(0, 16, 2):
            a(f"v_pk_mul_f32 {vr(g+e,2)}, {vr(g+e,2)}, {vr(u+e,2)}")
        for e in range(0, 16, 2):
            a(f"v_pk_mul_f32 {vr(g+e,2)}, {vr(g+e,2)}, {vr(E+e,2)}")
        for j in range(8):
            a(f"v_cvt_pk_bf16_f32 v{u+j}, v{g+2*j}, v{g+2*j+1}")
        for hf in range(2):
            o = (2 * t + hf) * 1024
            if o < 4096:
                a(f"buffer_store_dwordx4 {vr(u+4*hf,4)}, v{vB}, s[{SWS}:{SWS+3}], s45 offen offset:{o}{smods}")
            else:
                a(f"s_add_u32 s46, s45, {o}")
                a(f"buffer_store_dwordx4 {vr(u+4*hf,4)}, v{vB}, s[{SWS}:{SWS+3}], s46 offen{smods}")


def gen_gateup():
    a = Asm()
    a.label("gateup_kernel")
    a("s_cmp_ge_u32 s2, 256")
    a("s_cbranch_scc1 gateup_end")
    stamp_begin(a, "gateup")
    gen_gateup_body(a, "gu", 2)
    stamp_end(a, "gateup", 28, 32, 240)
    a.label("gateup_end")
    a("s_endpgm")
    return a.finish(), ("gateup_kernel", 256, 256, 73728, 256 if STAMP else 216)


def gen_down_setup(a, pfx, s_wg, standalone, bmods=""):
    s_w = 32
    s_rb, s_cb, s_kq = 63, 64, 65
    SW, SWS = 24, 28
    vLane, vN, vH, vWo, vB, vTr = 1, 2, 3, 8, 5, 9
    T = R_T
    a("s_load_dwordx2 s[8:9], s[0:1], 64")
    if standalone:
        a("s_load_dwordx2 s[12:13], s[0:1], 88")
        lane_setup(a, T, vLane, vN, vH, s_w)
        a(f"v_lshlrev_b32 v{vB}, 4, v{vLane}")
    a(f"s_and_b32 s3, s{s_wg}, 7")
    a("s_lshl_b32 s3, s3, 1")
    a(f"s_bfe_u32 s36, s{s_wg}, 0x10003")
    a(f"s_add_u32 s{s_rb}, s3, s36")
    a(f"s_lshr_b32 s{s_kq}, s{s_wg}, 6")
    a(f"s_bfe_u32 s{s_cb}, s{s_wg}, 0x20004")
    a(f"v_lshrrev_b32 v{T}, 2, v{vLane}")
    a(f"v_mul_u32_u24 v{vWo}, 1280, v{T}")
    a(f"v_and_b32 v{T}, 3, v{vLane}")
    a(f"v_lshl_add_u32 v{vWo}, v{T}, 4, v{vWo}")
    tr_base(a, vTr, T, vLane, vH, 8)
    a(f"s_mul_i32 s66, s{s_kq}, {384*1280}")
    a(f"s_mul_i32 s37, s{s_w}, {16*1280}")
    a("s_add_u32 s66, s66, s37")
    a(f"s_mul_i32 s37, s{s_cb}, 320")
    a("s_add_u32 s66, s66, s37")
    a(f"s_lshl_b32 s67, s{s_rb}, 2")
    a(f"s_add_u32 s67, s67, s{s_w}")
    a(f"s_mul_i32 s68, s67, {96*1024}")
    a(f"s_mul_i32 s37, s{s_kq}, {24*1024}")
    a("s_add_u32 s68, s68, s37")
    a(f"s_add_u32 s68, s68, {HF}")
    a("s_waitcnt lgkmcnt(0)")
    srd(a, SW, 8, 1966080)
    if standalone:
        srd(a, SWS, 12, WS_END)
    R = TypeR(a, pfx, 5, 6, vTr, vWo, vB, s_w, lambda t: (SW, 0, t), (66, 66, 64 * 1280), 68, SWS, 512, bmods)
    R.setup()
    return R


def gen_down_store(a):
    s_cb, s_kq, SWS, vB = 64, 65, 28, 5
    stamp(a, "down")
    a(f"s_lshl_b32 s45, s{s_kq}, 6")
    a("s_add_u32 s45, s45, s67")
    a("s_mul_i32 s45, s45, 20")
    a(f"s_mul_i32 s46, s{s_cb}, 5")
    a("s_add_u32 s45, s45, s46")
    a("s_lshl_b32 s45, s45, 11")
    a(f"s_add_u32 s45, s45, {FP}")
    for t in range(5):
        r = R_ACC + 16 * t
        for q in range(8):
            a(f"v_cvt_pk_bf16_f32 v{R_A+8*t+q}, v{r+2*q}, v{r+2*q+1}")
        if t == 2 or t == 4:
            a("s_add_u32 s45, s45, 4096")
        for hf in range(2):
            a(f"buffer_store_dwordx4 {vr(R_A+8*t+4*hf,4)}, v{vB}, s[{SWS}:{SWS+3}], s45 offen offset:{((t&1)*2+hf)*1024}")


def gen_down():
    a = Asm()
    a.label("down_kernel")
    a("s_cmp_ge_u32 s2, 256")
    a("s_cbranch_scc1 down_end")
    stamp_begin(a, "down")
    R = gen_down_setup(a, "dn", 2, True)
    R.emit(R.vm_ops(0) + R.vm_ops(1))
    R.main(R.per)
    gen_down_store(a)
    stamp_end(a, "down", 28, 32, 240)
    a.label("down_end")
    a("s_endpgm")
    return a.finish(), ("down_kernel", 256, 256, 61440, 256 if STAMP else 216)


def gen_main():
    a = Asm()
    a.label("main_kernel")
    a("s_cmp_ge_u32 s2, 512")
    a("s_cbranch_scc1 main_end")
    a("s_cmp_ge_u32 s2, 256")
    a("s_cbranch_scc1 main_ffn")
    if PRIO_ATTN:
        a(f"s_setprio {PRIO_ATTN}")
    stamp_begin(a, "mattn")
    gen_attn_body(a, "ma", 2)
    stamp_end(a, "mattn", 28, 32, 250)
    a("s_endpgm")
    a.label("main_ffn")
    if PRIO_FFN:
        a(f"s_setprio {PRIO_FFN}")
    a("s_sub_u32 s69, s2, 256")
    a("s_load_dwordx2 s[10:11], s[0:1], 80")
    stamp_begin(a, "mffn")
    st = {}

    def mid():
        stamp(a, "mffn")
        a("s_setprio 2")
        a("s_barrier")
        st["R"] = gen_down_setup(a, "dn", 69, False, " sc1")
        st["R"].emit(st["R"].dma_ops(0) + st["R"].dma_ops(1))
    gen_gateup_body(a, "gu", 69, mid, " sc1")
    R = st["R"]
    SD = 72
    srd(a, SD, 10, 256)
    a("s_lshl_b32 s70, s63, 2")
    a("s_add_u32 s70, s70, s65")
    a("s_lshl_b32 s70, s70, 2")
    a("s_waitcnt vmcnt(0)")
    a("s_barrier")
    stamp(a, "mffn")
    a("s_cmp_lg_u32 s32, 0")
    a("s_cbranch_scc1 main_polled")
    a(f"v_mov_b32 v{R_T}, 0")
    a(f"v_mov_b32 v{R_T+1}, 1")
    a("s_mov_b64 exec, 1")
    a(f"buffer_atomic_add v{R_T+1}, v{R_T}, s[{SD}:{SD+3}], s70 offen sc1")
    a.label("main_poll")
    a(f"buffer_load_dword v{R_T+2}, v{R_T}, s[{SD}:{SD+3}], s70 offen sc1")
    a("s_waitcnt vmcnt(0)")
    a(f"v_readfirstlane_b32 s71, v{R_T+2}")
    a("s_cmp_ge_u32 s71, 4")
    a("s_cbranch_scc1 main_pdone")
    a("s_sleep 4")
    a("s_branch main_poll")
    a.label("main_pdone")
    a("s_mov_b64 exec, -1")
    a.label("main_polled")
    a("s_barrier")
    stamp(a, "mffn")
    R.emit(R.b_ops(0) + R.b_ops(1))
    a(f"s_setprio {PRIO_FFN}")
    R.main(4)
    stamp(a, "mffn")
    a("s_setprio 2")
    gen_down_store(a)
    stamp_end(a, "mffn", 28, 32, 240, 69)
    a.label("main_end")
    a("s_endpgm")
    return a.finish(), ("main_kernel", 512, 256, 73728, 256 if STAMP else 248)


PRIO_ATTN = int(os.environ.get("PRIO_ATTN", "0"))
PRIO_FFN = int(os.environ.get("PRIO_FFN", "0"))


def gen_final():
    a = Asm()
    a.label("final_kernel")
    s_w, s_rb, s_cb = 32, 33, 34
    SX, SW, SO, SWS = 16, 20, 24, 28
    vLane, vN, vH = 1, 2, 3
    vB, vWo, vXo, vTr, vSlab, vRd = 4, 5, 6, 7, 8, 9
    T = K_T
    a("s_cmp_ge_u32 s2, 224")
    a("s_cbranch_scc1 final_end")
    stamp_begin(a, "final")
    a("s_load_dwordx2 s[4:5], s[0:1], 0")
    a("s_load_dwordx2 s[6:7], s[0:1], 32")
    a("s_load_dwordx2 s[8:9], s[0:1], 72")
    a("s_load_dwordx2 s[12:13], s[0:1], 88")
    lane_setup(a, T, vLane, vN, vH, s_w)
    a("s_and_b32 s3, s2, 7")
    a("s_lshr_b32 s35, s2, 3")
    a("s_and_b32 s36, s35, 3")
    a("s_lshl_b32 s3, s3, 2")
    a(f"s_add_u32 s{s_rb}, s3, s36")
    a(f"s_lshr_b32 s{s_cb}, s35, 2")
    a(f"v_lshlrev_b32 v{vB}, 4, v{vLane}")
    a(f"v_lshrrev_b32 v{T}, 2, v{vLane}")
    a(f"v_mul_u32_u24 v{vWo}, 1280, v{T}")
    a(f"v_and_b32 v{T}, 3, v{vLane}")
    a(f"v_lshl_add_u32 v{vWo}, v{T}, 4, v{vWo}")
    a(f"v_mul_u32_u24 v{vXo}, 1280, v{vN}")
    a(f"v_lshl_add_u32 v{vXo}, v{vH}, 3, v{vXo}")
    tr_base(a, vTr, T, vLane, vH, 9)
    a(f"s_mul_i32 s37, s{s_w}, {WAVE_LDS}")
    a(f"s_add_u32 s37, s37, {LDS_STG}")
    a(f"v_add_u32 v{vTr}, s37, v{vTr}")
    a(f"v_mul_u32_u24 v{vRd}, 400, v{vN}")
    a(f"v_lshl_add_u32 v{vRd}, v{vH}, 4, v{vRd}")
    a(f"v_add_u32 v{vSlab}, s37, v{vRd}")
    a(f"s_lshl_b32 s38, s{s_w}, 5")
    a(f"v_add_u32 v{vRd}, s38, v{vRd}")
    a(f"v_add_u32 v{vRd+1}, {2*WAVE_LDS}, v{vRd}")
    a("s_waitcnt lgkmcnt(0)")
    srd(a, SX, 4, 2621440)
    srd(a, SW, 6, 819200)
    srd(a, SO, 8, 2621440)
    srd(a, SWS, 12, WS_END)
    a(f"s_mul_i32 s39, s{s_rb}, {2*40*1024}")
    a(f"s_mul_i32 s40, s{s_w}, {10*1024}")
    a("s_add_u32 s39, s39, s40")
    a(f"s_add_u32 s39, s39, {OF}")
    a(f"s_mul_i32 s41, s{s_w}, {160*1280}")
    a(f"s_mul_i32 s42, s{s_cb}, 192")
    a("s_add_u32 s41, s41, s42")
    a(f"s_lshl_b32 s45, s{s_w}, 6")
    a(f"s_lshl_b32 s46, s{s_rb}, 1")
    a("s_add_u32 s45, s45, s46")
    a("s_mul_i32 s45, s45, 20")
    a(f"s_mul_i32 s46, s{s_cb}, 3")
    a("s_add_u32 s45, s45, s46")
    a("s_lshl_b32 s45, s45, 11")
    a(f"s_add_u32 s45, s45, {FP}")
    for rt in range(2):
        for ct in range(3):
            a(f"s_add_u32 s44, s45, {(rt*20+ct)*2048}")
            for hf in range(2):
                a(f"buffer_load_dwordx4 {vr(K_ACC+(rt*3+ct)*16+8+4*hf,4)}, v{vB}, s[{SWS}:{SWS+3}], s44 offen offset:{hf*1024}")
    a(f"s_mul_i32 s47, s{s_rb}, {64*1280}")
    a("s_add_u32 s47, s47, s42")
    a(f"s_lshl_b32 s46, s{s_w}, 4")
    a("s_add_u32 s47, s47, s46")
    a(f"s_add_u32 s48, s47, {32*1280}")
    XR = T + 4
    for rt in range(2):
        for ct in range(3):
            a(f"buffer_load_dwordx2 {vr(XR+(rt*3+ct)*2,2)}, v{vXo}, s[{SX}:{SX+3}], s{47+rt} offen offset:{ct*64}")
    for s in range(10):
        for ct in range(3):
            a(f"s_add_u32 m0, s37, {(3*s+ct)*1024}")
            a(f"s_add_u32 s44, s41, {s*16*1280 + ct*64}")
            a(f"buffer_load_dwordx4 v{vWo}, s[{SW}:{SW+3}], s44 offen lds")
        for rt in range(2):
            a(f"s_add_u32 s44, s39, {rt*40*1024 + s*1024}")
            a(f"buffer_load_dwordx4 {vr(K_X+rt*40+s*4,4)}, v{vB}, s[{SWS}:{SWS+3}], s44 offen")
    a("s_mov_b32 s49, 0xffff0000")
    a("s_waitcnt vmcnt(50)")
    stamp(a, "final")
    for t in range(6):
        b = K_ACC + t * 16
        for q in range(8):
            a(f"v_lshlrev_b32 v{b+2*q}, 16, v{b+8+q}")
            a(f"v_and_b32 v{b+2*q+1}, s49, v{b+8+q}")
    typek_mfma_phase(a, vTr, False, lambda s: 5 * (9 - s))
    stamp(a, "final")
    typek_reduce(a, vSlab, vRd, s_w, "final")
    a("s_waitcnt lgkmcnt(0)")
    typek_reduce_sum(a)
    stamp(a, "final")
    a("s_mov_b32 s49, 0xffff0000")
    for ct in range(3):
        if ct == 2:
            a(f"s_cmp_eq_u32 s{s_cb}, 6")
            a("s_cbranch_scc1 final_skip")
        for rt in range(2):
            r = K_R + (rt * 3 + ct) * 4
            xr = XR + (rt * 3 + ct) * 2
            for e in range(2):
                a(f"v_lshlrev_b32 v{T}, 16, v{xr+e}")
                a(f"v_and_b32 v{T+1}, s49, v{xr+e}")
                a(f"v_pk_add_f32 {vr(r+2*e,2)}, {vr(r+2*e,2)}, {vr(T,2)}")
            a(f"v_cvt_pk_bf16_f32 v{r}, v{r}, v{r+1}")
            a(f"v_cvt_pk_bf16_f32 v{r+1}, v{r+2}, v{r+3}")
            a(f"buffer_store_dwordx2 {vr(r,2)}, v{vXo}, s[{SO}:{SO+3}], s{47+rt} offen offset:{ct*64}")
    a.label("final_skip")
    stamp_end(a, "final", SWS, s_w, 240)
    a.label("final_end")
    a("s_endpgm")
    return a.finish(), ("final_kernel", 224, 256, 131072, 256)


def gen_empty():
    a = Asm()
    a.label("empty_kernel")
    a("s_endpgm")
    return a.finish(), ("empty_kernel", 256, 256, 65536, 256)


KERNELS = {"empty": gen_empty, "main": gen_main, "qkv": gen_qkv, "gateup": gen_gateup, "attn": gen_attn, "down": gen_down, "final": gen_final}
HEADER = open("parallel_sum__grouped_kv_mqa__glu_gated_swiglu__prompt.s.ref").read().split("; Override launch")[0] if False else ""


DEFAULT = ["qkv", "main", "final"]


def build(order):
    texts, launches = {}, []
    for k in order:
        t, info = KERNELS[k]()
        texts[info[0]] = (t, info)
        launches.append(info)
    out = "; generated by dev/gen.py -- LN + MQA attention + SwiGLU block for gfx950\n"
    for name, grid, block, lds, vg in launches:
        out += f"; @launch kernel={name} grid=({grid},1,1) block=({block},1,1) lds={lds}\n"
    out += '.amdgcn_target "amdgcn-amd-amdhsa--gfx950"\n.text\n'
    for name, (t, info) in texts.items():
        out += kernel_header(name) + t
    out += '.section .rodata,"a"\n'
    for name, (t, info) in texts.items():
        out += kernel_desc(name, info[4])
    return out


if __name__ == "__main__":
    order = sys.argv[2].split(",") if len(sys.argv) > 2 else DEFAULT
    open(sys.argv[1], "w").write(build(order))
```

```python
import math
import struct
import sys

from asmlib import Asm

XF = 0x0
QF = 0x280000
KF = 0x500000
VF = 0x514000
KN = 0x52A000
OF = 0x530000
HF = 0x800000
FP = 0x1000000
YF = 0x1000000
WS_END = 0x2500000
TS = 0x2400000
import os
STAMP = os.environ.get("STAMP", "")


_stamp_n = {}


def stamp(a, name, vreg=255):
    if name in STAMP.split(","):
        i = _stamp_n.get(name, 0)
        _stamp_n[name] = i + 1
        a("s_memtime s[100:101]")
        a("s_waitcnt lgkmcnt(0)")
        a(f"v_writelane_b32 v{vreg}, s100, {i}")


def stamp_begin(a, name, vreg=255):
    if name in STAMP.split(","):
        a("s_memrealtime s[98:99]")
        a("s_waitcnt lgkmcnt(0)")
        a(f"v_writelane_b32 v{vreg}, s98, 14")
    stamp(a, name, vreg)


def stamp_end(a, name, sws, s_w, vtmp, s_wg=2, vreg=255):
    if name in STAMP.split(","):
        a("s_waitcnt vmcnt(0) lgkmcnt(0)")
        stamp(a, name, vreg)
        a("s_memrealtime s[98:99]")
        a("s_waitcnt lgkmcnt(0)")
        a(f"v_writelane_b32 v{vreg}, s98, 15")
        a(f"s_lshl_b32 s94, s{s_wg}, 2")
        a(f"s_add_u32 s94, s94, s{s_w}")
        a("s_lshl_b32 s94, s94, 6")
        a(f"s_add_u32 s94, s94, {TS + STAMP.split(',').index(name) * 0x20000}")
        a(f"v_and_b32 v{vtmp}, 63, v0")
        a(f"v_lshlrev_b32 v{vtmp}, 2, v{vtmp}")
        a("s_mov_b64 s[98:99], exec")
        a("s_mov_b64 exec, 0xffff")
        a(f"buffer_store_dword v{vreg}, v{vtmp}, s[{sws}:{sws+3}], s94 offen")
        a("s_mov_b64 exec, s[98:99]")


QSCALE = (20 ** -0.5) * math.log2(math.e)


def f2u(x):
    return struct.unpack("<I", struct.pack("<f", x))[0]


def hx(x):
    return "0x%x" % x


def srd(a, d, base, size):
    a(f"s_mov_b32 s{d}, s{base}")
    a(f"s_and_b32 s{d+1}, s{base+1}, 0xffff")
    a(f"s_mov_b32 s{d+2}, {hx(size)}")
    a(f"s_mov_b32 s{d+3}, 0x00020000")


def vr(b, n=1):
    return f"v{b}" if n == 1 else f"v[{b}:{b+n-1}]"


def mfma32(a, d, x, y, c=None):
    cs = vr(d, 16) if c is None else c
    a(f"v_mfma_f32_32x32x16_bf16 {vr(d,16)}, {vr(x,4)}, {vr(y,4)}, {cs}")


def kernel_header(name):
    return f""".globl {name}
.p2align 8
.type {name},@function
"""


def kernel_desc(name, vgprs, sgprs=102):
    acc = (vgprs + 3) // 4 * 4
    return f""".p2align 6
.amdhsa_kernel {name}
  .amdhsa_next_free_vgpr {vgprs}
  .amdhsa_next_free_sgpr {sgprs}
  .amdhsa_accum_offset {acc}
  .amdhsa_group_segment_fixed_size 0
  .amdhsa_kernarg_size 96
  .amdhsa_user_sgpr_count 2
  .amdhsa_user_sgpr_kernarg_segment_ptr 1
  .amdhsa_system_sgpr_workgroup_id_x 1
.end_amdhsa_kernel
"""


K_X = 16
K_ACC = 96
K_A = 192
K_T = 216
WAVE_LDS = 30720
LDS_STG = 8192


K_R = K_A


def typek_mfma_phase(a, vtr, zero=True, vm_after=None, extra=None):
    def reads(s, buf):
        for ct in range(3):
            o = (3 * s + ct) * 1024
            r = K_A + buf * 12 + ct * 4
            a(f"ds_read_b64_tr_b16 {vr(r,2)}, v{vtr} offset:{o}")
            a(f"ds_read_b64_tr_b16 {vr(r+2,2)}, v{vtr} offset:{o+256}")
    if vm_after:
        a(f"s_waitcnt vmcnt({vm_after(0)})")
    reads(0, 0)
    for s in range(10):
        if s + 1 < 10:
            if vm_after:
                a(f"s_waitcnt vmcnt({vm_after(s+1)})")
            reads(s + 1, (s + 1) & 1)
            a("s_waitcnt lgkmcnt(6)")
        else:
            a("s_waitcnt lgkmcnt(0)")
        ex = list(extra(s)) if extra else []
        n = len(ex)
        k = 0
        for ct in range(3):
            for rt in range(2):
                d = K_ACC + (rt * 3 + ct) * 16
                mfma32(a, d, K_A + (s & 1) * 12 + ct * 4, K_X + rt * 40 + s * 4, "0" if (s == 0 and zero) else None)
                k += 1
                for x in ex[((k - 1) * n) // 6:(k * n) // 6]:
                    a(x)


def reduce4(a, pfx, ACC, RES, TMP, vL16, vT, s_w, s_base, base0, stride, pre_barrier=None, post_reads=None):
    for g in range(4):
        a(f"s_cmp_eq_u32 s{s_w}, {g}")
        a(f"s_cbranch_scc1 {pfx}_rw{g}")
        a(f"s_sub_u32 s90, {g+3}, s{s_w}")
        a("s_and_b32 s90, s90, 3")
        a("s_mul_i32 s90, s90, 6144")
        a(f"s_add_u32 s90, s90, s{s_base}")
        a(f"v_add_u32 v{vT}, s90, v{vL16}")
        for t in range(6):
            a(f"ds_write_b128 v{vT}, {vr(ACC+t*16+g*4,4)} offset:{t*1024}")
        a.label(f"{pfx}_rw{g}")
    if pre_barrier:
        pre_barrier()
    for jj in range(3):
        a(f"s_add_u32 s90, s{s_w}, {jj+1}")
        a("s_and_b32 s90, s90, 3")
        a(f"s_mul_i32 s90, s90, {stride}")
        a(f"s_add_u32 s90, s90, {base0 + (2-jj)*6144}")
        a(f"v_add_u32 v{vT+1+jj}, s90, v{vL16}")
    for g in range(4):
        a(f"s_cmp_lg_u32 s{s_w}, {g}")
        a(f"s_cbranch_scc1 {pfx}_ro{g}")
        for t in range(6):
            for e in range(4):
                a(f"v_mov_b32 v{RES+t*4+e}, v{ACC+t*16+g*4+e}")
        a.label(f"{pfx}_ro{g}")
    a("s_waitcnt lgkmcnt(0)")
    a("s_barrier")
    for jj in range(3):
        for t in range(6):
            a(f"ds_read_b128 {vr(TMP+(jj*6+t)*4,4)}, v{vT+1+jj} offset:{t*1024}")
    n_extra = post_reads() if post_reads else 0
    for jj in range(3):
        a(f"s_waitcnt lgkmcnt({min(15, (2-jj)*6 + n_extra)})")
        for e in range(0, 24, 2):
            a(f"v_pk_add_f32 {vr(RES+e,2)}, {vr(RES+e,2)}, {vr(TMP+jj*24+e,2)}")


class TypeK:
    def __init__(self, a, KS, RD, RB, ACC, AF, BF, vTr, tr2, vWo, SW, s_g, gstep, s_ring, vB, SB, s_b0, s_b1, bmods=""):
        self.__dict__.update(locals())

    def dma(self, s):
        out = []
        for ct in range(3):
            out.append([f"s_add_u32 m0, s{self.s_ring}, {((s % self.RD)*3+ct)*1024}",
                        f"s_add_u32 s91, s{self.s_g}, {s*self.gstep + ct*64}",
                        f"buffer_load_dwordx4 v{self.vWo}, s[{self.SW}:{self.SW+3}], s91 offen lds"])
        return out

    def bl(self, s):
        out = []
        for rt in range(2):
            sb = self.s_b0 if rt == 0 else self.s_b1
            g = []
            if s % 4 == 0 and s:
                g.append(f"s_add_u32 s{sb}, s{sb}, 4096")
            g.append(f"buffer_load_dwordx4 {vr(self.BF+(s%self.RB)*8+rt*4,4)}, v{self.vB}, s[{self.SB}:{self.SB+3}], s{sb} offen offset:{(s%4)*1024}{self.bmods}")
            out.append(g)
        return out

    def emit(self, groups):
        for g in groups:
            for x in g:
                self.a(x)

    def reads(self, s):
        out = []
        for ct in range(3):
            o = ((s % self.RD) * 3 + ct) * 1024
            r = self.AF + (s & 1) * 12 + ct * 4
            out.append(f"ds_read_b64_tr_b16 {vr(r,2)}, v{self.vTr} offset:{o}")
            out.append(f"ds_read_b64_tr_b16 {vr(r+2,2)}, v{self.vTr} offset:{o+self.tr2}")
        return out

    def main(self, order):
        a, KS, RD, RB = self.a, self.KS, self.RD, self.RB
        order = list(order)

        def wait_for(s):
            last = max(i for i, o in enumerate(order) if o in (("d", s), ("b", s)))
            a(f"s_waitcnt vmcnt({min(63, len(order) - 1 - last)})")
        wait_for(0)
        for x in self.reads(0):
            a(x)
        for s in range(KS):
            if s + 1 < KS:
                wait_for(s + 1)
                for x in self.reads(s + 1):
                    a(x)
                a("s_waitcnt lgkmcnt(6)")
            else:
                a("s_waitcnt lgkmcnt(0)")
            dm = self.dma(s + RD) if s + RD < KS else []
            k = 0
            for ct in range(3):
                for rt in range(2):
                    mfma32(a, self.ACC + (rt * 3 + ct) * 16, self.AF + (s & 1) * 12 + ct * 4,
                           self.BF + (s % RB) * 8 + rt * 4, "0" if s == 0 else None)
                    if k % 2 == 0 and dm:
                        self.emit([dm.pop(0)])
                        order.append(("d", s + RD))
                    k += 1
            if s + RB < KS:
                self.emit(self.bl(s + RB))
                order += [("b", s + RB)] * 2


def lane_setup(a, T, vLane, vN, vH, s_w):
    a(f"v_and_b32 v{vLane}, 63, v0")
    a(f"v_lshrrev_b32 v{T}, 6, v0")
    a(f"v_readfirstlane_b32 s{s_w}, v{T}")
    a(f"v_and_b32 v{vN}, 31, v0")
    a(f"v_bfe_u32 v{vH}, v0, 5, 1")


def tr_base(a, vTr, T, vLane, vH, hshift):
    a(f"v_lshlrev_b32 v{vTr}, {hshift}, v{vH}")
    a(f"v_bfe_u32 v{T}, v{vLane}, 2, 2")
    a(f"v_lshl_add_u32 v{vTr}, v{T}, 6, v{vTr}")
    a(f"v_bfe_u32 v{T}, v{vLane}, 4, 1")
    a(f"v_lshl_add_u32 v{vTr}, v{T}, 5, v{vTr}")
    a(f"v_and_b32 v{T}, 3, v{vLane}")
    a(f"v_lshl_add_u32 v{vTr}, v{T}, 3, v{vTr}")


def gen_qkv():
    a = Asm()
    a.label("qkv_kernel")
    ST = 0
    NB = 4096
    MX = 6144
    s_w, s_rb, s_cb = 32, 33, 34
    SX, SWS = 16, 28
    SWT = [72, 76, 80]
    vLane, vN, vH = 1, 2, 3
    vXg, vXr, vTr, vSlab, vRd = 4, 5, 7, 8, 9
    vSt = 11
    vWo = [12, 13, 14]
    vCs = 6
    T = K_T
    XO = 9216
    a("s_cmp_ge_u32 s2, 256")
    a("s_cbranch_scc1 qkv_end")
    stamp_begin(a, "qkv")
    a("s_load_dwordx4 s[4:7], s[0:1], 0")
    a("s_load_dwordx4 s[8:11], s[0:1], 16")
    a("s_load_dwordx2 s[12:13], s[0:1], 88")
    lane_setup(a, T, vLane, vN, vH, s_w)
    a("s_and_b32 s3, s2, 7")
    a("s_lshr_b32 s35, s2, 3")
    a("s_and_b32 s36, s35, 3")
    a("s_lshl_b32 s3, s3, 2")
    a(f"s_add_u32 s{s_rb}, s3, s36")
    a(f"s_lshr_b32 s{s_cb}, s35, 2")
    a(f"v_mul_u32_u24 v{T}, 49, v{vLane}")
    a(f"v_lshrrev_b32 v{T}, 10, v{T}")
    a(f"v_mul_u32_u24 v{T+1}, 21, v{T}")
    a(f"v_sub_u32 v{T+1}, v{vLane}, v{T+1}")
    a(f"v_mul_u32_u24 v{vXg}, 1280, v{T}")
    a(f"v_lshl_add_u32 v{vXg}, v{T+1}, 4, v{vXg}")
    a(f"s_mul_i32 s37, s{s_w}, {WAVE_LDS}")
    a(f"s_add_u32 s37, s37, {LDS_STG}")
    a(f"v_mul_u32_u24 v{vXr}, 336, v{vN}")
    a(f"v_lshl_add_u32 v{vXr}, v{vH}, 4, v{vXr}")
    a(f"v_add_u32 v{vXr}, s37, v{vXr}")
    a(f"s_mul_i32 s39, s{s_rb}, {64*1280}")
    a(f"s_mul_i32 s40, s{s_w}, 320")
    a("s_add_u32 s39, s39, s40")
    a("s_waitcnt lgkmcnt(0)")
    srd(a, SX, 4, 2621440)
    a("s_mov_b32 s52, -1")
    a("s_mov_b32 s53, 0x7fffffff")
    a("s_mov_b64 exec, s[52:53]")
    for jx in range(22):
        if jx == 21:
            a("s_mov_b64 exec, 0x1fffff")
        a(f"s_add_u32 m0, s37, {XO + jx*1008}")
        a(f"s_add_u32 s44, s39, {jx*3840}")
        a(f"buffer_load_dwordx4 v{vXg}, s[{SX}:{SX+3}], s44 offen lds")
    a("s_mov_b64 exec, -1")
    a(f"v_lshrrev_b32 v{T}, 2, v{vLane}")
    a(f"v_and_b32 v{T+1}, 3, v{vLane}")
    a(f"v_lshlrev_b32 v{T+1}, 4, v{T+1}")
    a(f"v_mad_u32_u24 v{T+2}, v{T}, 40, v{T+1}")
    a(f"s_movk_i32 s38, 1280")
    a(f"v_mad_u32_u24 v{T+3}, v{T}, s38, v{T+1}")
    a(f"s_mul_i32 s50, s{s_cb}, 3")
    a(f"s_mul_i32 s41, s{s_w}, {160*1280}")
    a(f"s_mul_i32 s43, s{s_w}, {160*40}")
    for ct in range(3):
        d = SWT[ct]
        a(f"s_add_u32 s51, s50, {ct}")
        a("s_cmp_eq_u32 s51, 21")
        a(f"s_cselect_b32 s{d}, s10, s8")
        a(f"s_cselect_b32 s{d+1}, s11, s9")
        a("s_cmp_lt_u32 s51, 22")
        a(f"s_cselect_b32 s{d+2}, 25600, 0")
        a("s_lshl_b32 s45, s51, 6")
        a("s_add_u32 s45, s45, s41")
        a("s_cmp_lt_u32 s51, 20")
        a(f"s_cselect_b32 s{d}, s6, s{d}")
        a(f"s_cselect_b32 s{d+1}, s7, s{d+1}")
        a(f"s_cselect_b32 s{d+2}, 819200, s{d+2}")
        a(f"s_mov_b32 s{d+3}, 0x00020000")
        a(f"s_cselect_b32 s{84+ct}, s45, s43")
        a(f"s_movk_i32 s{87+ct}, {16*40}")
        a(f"s_cselect_b32 s{87+ct}, {16*1280}, s{87+ct}")
        a("s_cselect_b64 vcc, -1, 0")
        a(f"s_and_b32 s{d+1}, s{d+1}, 0xffff")
        a(f"v_cndmask_b32 v{vWo[ct]}, v{T+2}, v{T+3}, vcc")

    def w_dma(s):
        for ct in range(3):
            a(f"s_add_u32 m0, s37, {(3*s+ct)*1024}")
            a(f"buffer_load_dwordx4 v{vWo[ct]}, s[{SWT[ct]}:{SWT[ct]+3}], s{84+ct} offen lds")
            a(f"s_add_u32 s{84+ct}, s{84+ct}, s{87+ct}")
    for s in range(3):
        w_dma(s)
    srd(a, SWS, 12, WS_END)
    tr_base(a, vTr, T, vLane, vH, 9)
    a(f"v_add_u32 v{vTr}, s37, v{vTr}")
    a(f"v_lshlrev_b32 v{vSlab}, 4, v{vLane}")
    a(f"s_mul_i32 s38, s{s_w}, 384")
    a(f"v_lshlrev_b32 v{vCs}, 2, v{vN}")
    a(f"v_add_u32 v{vCs}, s38, v{vCs}")
    a(f"v_lshlrev_b32 v{vSt}, 6, v{vN}")
    vOne = T
    SA = T + 2
    a(f"v_mov_b32 v{vOne}, 0x3f803f80")
    for i in range(11):
        a(f"v_mov_b32 v{SA+i}, 0")
    a(f"ds_write_b32 v{SA}, v{SA} offset:{MX}")
    a("s_waitcnt vmcnt(9)")
    stamp(a, "qkv")
    for rt in range(2):
        for s in range(10):
            a(f"ds_read_b128 {vr(K_X+rt*40+s*4,4)}, v{vXr} offset:{XO + rt*10752 + s*32}")
    a("s_waitcnt lgkmcnt(0)")
    xs = []
    for i in range(40):
        for rt in range(2):
            x = K_X + rt * 40 + i
            b = SA + rt * 4 + (i & 1) * 2
            xs.append(f"v_dot2_f32_bf16 v{b}, v{x}, v{vOne}, v{b}")
            xs.append(f"v_dot2_f32_bf16 v{b+1}, v{x}, v{x}, v{b+1}")
    for s in range(3, 10):
        w_dma(s)
        for x in xs[((s - 3) * 160) // 7:((s - 2) * 160) // 7]:
            a(x)
    stamp(a, "qkv")

    def stats(s):
        out = []
        for q in range(4):
            for ct in range(3):
                out.append(f"v_dot2_f32_bf16 v{SA+8+ct}, v{K_A+(s&1)*12+ct*4+q}, v{vOne}, v{SA+8+ct}")
        return out
    typek_mfma_phase(a, vTr, True, lambda s: 3 * (9 - s), stats)
    stamp(a, "qkv")

    CSA = 6400

    def pre_barrier():
        for rt in range(2):
            b = SA + rt * 4
            a(f"v_pk_add_f32 {vr(b,2)}, {vr(b,2)}, {vr(b+2,2)}")
        a(f"v_lshl_add_u32 v{T+14}, v{vH}, 3, v{vSt}")
        a(f"s_lshl_b32 s38, s{s_w}, 4")
        a(f"v_add_u32 v{T+14}, s38, v{T+14}")
        for rt in range(2):
            a(f"ds_write_b64 v{T+14}, {vr(SA+rt*4,2)} offset:{ST + rt*2048}")
        for ct in range(3):
            a(f"v_mov_b32 v{T+16+ct}, v{SA+8+ct}")
        for ct in range(3):
            a(f"v_permlane32_swap_b32 v{SA+8+ct}, v{T+16+ct}")
        for ct in range(3):
            a(f"v_add_f32 v{SA+8+ct}, v{SA+8+ct}, v{T+16+ct}")
            a(f"ds_write_b32 v{vCs}, v{SA+8+ct} offset:{CSA + ct*128}")
        a(f"v_lshlrev_b32 v{vRd}, 4, v{vH}")
        a(f"s_lshl_b32 s38, s{s_w}, 5")
        a(f"v_add_u32 v{vRd}, s38, v{vRd}")
    CS = T + 20
    RR = T + 32
    a(f"s_mov_b32 s45, {hx(f2u(1.0/640))}")
    a(f"s_mov_b32 s46, {hx(f2u(1e-5))}")
    reduce4(a, "qkv", K_ACC, K_R, K_ACC, vSlab, T + 20, s_w, 37, LDS_STG, WAVE_LDS, pre_barrier)
    for jw in range(4):
        for ct in range(3):
            a(f"ds_read_b128 {vr(K_ACC+(jw*3+ct)*4,4)}, v{vRd} offset:{CSA + jw*384 + ct*128}")
    for rt in range(2):
        for q in range(4):
            a(f"ds_read_b128 {vr(K_ACC+48+rt*16+q*4,4)}, v{vSt} offset:{ST + rt*2048 + q*16}")
    a("s_waitcnt lgkmcnt(0)")
    for e in range(0, 12, 2):
        a(f"v_pk_add_f32 {vr(K_ACC+e,2)}, {vr(K_ACC+e,2)}, {vr(K_ACC+12+e,2)}")
        a(f"v_pk_add_f32 {vr(K_ACC+24+e,2)}, {vr(K_ACC+24+e,2)}, {vr(K_ACC+36+e,2)}")
    for e in range(0, 12, 2):
        a(f"v_pk_add_f32 {vr(CS+e,2)}, {vr(K_ACC+e,2)}, {vr(K_ACC+24+e,2)}")
    for rt in range(2):
        b = K_ACC + 48 + rt * 16
        for step in (8, 4, 2):
            for e in range(0, step, 2):
                a(f"v_pk_add_f32 {vr(b+e,2)}, {vr(b+e,2)}, {vr(b+e+step,2)}")
        mu, sq, t0 = b, b + 1, b + 3
        m_b, rr = RR + rt * 2, RR + rt * 2 + 1
        a(f"v_mul_f32 v{mu}, s45, v{mu}")
        a(f"v_mul_f32 v{sq}, s45, v{sq}")
        a(f"v_fma_f32 v{sq}, -v{mu}, v{mu}, v{sq}")
        a(f"v_max_f32 v{sq}, 0, v{sq}")
        a(f"v_cvt_pk_bf16_f32 v{m_b}, v{mu}, v{sq}")
        a(f"v_and_b32 v{t0}, 0xffff0000, v{m_b}")
        a(f"v_lshlrev_b32 v{m_b}, 16, v{m_b}")
        a(f"v_add_f32 v{t0}, s46, v{t0}")
        a(f"v_cvt_pk_bf16_f32 v{t0}, v{t0}, v{t0}")
        a(f"v_lshlrev_b32 v{t0}, 16, v{t0}")
        a(f"v_sqrt_f32 v{t0}, v{t0}")
        a(f"v_cvt_pk_bf16_f32 v{t0}, v{t0}, v{t0}")
        a(f"v_lshlrev_b32 v{t0}, 16, v{t0}")
        a(f"v_rcp_f32 v{rr}, v{t0}")
    for rt in range(2):
        m_b, rr = RR + rt * 2, RR + rt * 2 + 1
        for ct in range(3):
            for e in range(4):
                r = K_R + (rt * 3 + ct) * 4 + e
                a(f"v_fma_f32 v{r}, -v{m_b}, v{CS+ct*4+e}, v{r}")
                a(f"v_mul_f32 v{r}, v{r}, v{rr}")
    stamp(a, "qkv")
    a("s_mov_b32 s47, 0xffff0000")
    a(f"v_lshlrev_b32 v{T}, 4, v{vLane}")
    a(f"s_mul_i32 s39, s{s_rb}, {2*40*1024}")
    a(f"s_mul_i32 s40, s{s_w}, {10*1024}")
    a("s_add_u32 s39, s39, s40")
    for rt in range(2):
        m_b, rr = RR + rt * 2, RR + rt * 2 + 1
        PR = K_ACC + rt * 4
        a(f"v_mov_b32 v{PR}, v{rr}")
        a(f"v_mov_b32 v{PR+1}, v{rr}")
        a(f"v_mul_f32_e64 v{PR+2}, -v{m_b}, v{rr}")
        a(f"v_mov_b32 v{PR+3}, v{PR+2}")
    for c in range(8):
        a(f"s_cmp_lg_u32 s{s_cb}, {c}")
        a(f"s_cbranch_scc1 qkv_xn{c}")
        for f in range(c, 20, 8):
            rt, sx = divmod(f, 10)
            PR = K_ACC + rt * 4
            for q in range(4):
                x = K_X + rt * 40 + sx * 4 + q
                u = K_ACC + 8 + q * 2
                a(f"v_lshlrev_b32 v{u}, 16, v{x}")
                a(f"v_and_b32 v{u+1}, s47, v{x}")
                a(f"v_pk_fma_f32 {vr(u,2)}, {vr(u,2)}, {vr(PR,2)}, {vr(PR+2,2)}")
                a(f"v_cvt_pk_bf16_f32 v{x}, v{u}, v{u+1}")
            a(f"s_add_u32 s44, s39, {XF + rt*40*1024 + sx*1024}")
            a(f"buffer_store_dwordx4 {vr(K_X+rt*40+sx*4,4)}, v{T}, s[{SWS}:{SWS+3}], s44 offen")
        a.label(f"qkv_xn{c}")
    vC0, vHead, vD0, vOff, vA = T, T + 1, T + 2, T + 3, T + 4
    a(f"s_mov_b32 s45, {hx(f2u(QSCALE))}")
    a("s_mov_b32 s46, 3277")
    a(f"s_mul_i32 s38, s{s_cb}, 96")
    a(f"s_lshl_b32 s39, s{s_w}, 3")
    a("s_add_u32 s38, s38, s39")
    a(f"s_mul_i32 s48, s{s_rb}, {2*32*1280}")
    a(f"s_add_u32 s48, s48, {QF}")
    a(f"s_add_u32 s49, s48, {32*1280}")
    a(f"s_mul_i32 s50, s{s_cb}, 3")

    def frag_off(vD0, vOff):
        a(f"v_lshrrev_b32 v{vA}, 3, v{vD0}")
        a(f"v_lshlrev_b32 v{vA}, 9, v{vA}")
        a(f"v_lshl_add_u32 v{vA}, v{vN}, 4, v{vA}")
        a(f"v_and_b32 v{vA+1}, 4, v{vD0}")
        a(f"v_lshl_add_u32 v{vA}, v{vA+1}, 1, v{vA}")
        a(f"v_lshlrev_b32 v{vA+1}, 3, v{vN}")
        a(f"v_add_u32 v{vA+1}, 1024, v{vA+1}")
        a(f"v_cmp_gt_u32 vcc, 16, v{vD0}")
        a(f"v_cndmask_b32 v{vA}, v{vA+1}, v{vA}, vcc")
        a(f"v_add_u32 v{vOff}, v{vOff}, v{vA}")

    for ct in range(3):
        a(f"s_add_u32 s51, s50, {ct}")
        a("s_cmp_ge_u32 s51, 20")
        a(f"s_cbranch_scc1 qkv_notq{ct}")
        a(f"v_lshlrev_b32 v{vC0}, 2, v{vH}")
        a(f"v_add_u32 v{vC0}, s38, v{vC0}")
        if ct:
            a(f"v_add_u32 v{vC0}, {32*ct}, v{vC0}")
        a(f"v_mul_u32_u24 v{vHead}, s46, v{vC0}")
        a(f"v_lshrrev_b32 v{vHead}, 16, v{vHead}")
        a(f"v_mul_u32_u24 v{vD0}, 20, v{vHead}")
        a(f"v_sub_u32 v{vD0}, v{vC0}, v{vD0}")
        a(f"v_mul_u32_u24 v{vOff}, 1280, v{vHead}")
        frag_off(vD0, vOff)
        for rt in range(2):
            r = K_R + (rt * 3 + ct) * 4
            for e in range(4):
                a(f"v_mul_f32 v{r+e}, s45, v{r+e}")
            a(f"v_cvt_pk_bf16_f32 v{r}, v{r}, v{r+1}")
            a(f"v_cvt_pk_bf16_f32 v{r+1}, v{r+2}, v{r+3}")
            a(f"buffer_store_dwordx2 {vr(r,2)}, v{vOff}, s[{SWS}:{SWS+3}], s{48+rt} offen")
        a.label(f"qkv_notq{ct}")
    stamp_end(a, "qkv", SWS, s_w, 240)
    a(f"s_cmp_lt_u32 s{s_cb}, 6")
    a("s_cbranch_scc1 qkv_end")
    P = T + 8
    a(f"s_cmp_eq_u32 s{s_cb}, 7")
    a("s_cbranch_scc1 qkv_mvv")
    for rt in range(2):
        for e in range(4):
            a(f"v_mov_b32 v{P+rt*4+e}, v{K_R+(rt*3+2)*4+e}")
    a("s_branch qkv_mvd")
    a.label("qkv_mvv")
    for rt in range(2):
        for e in range(4):
            a(f"v_mov_b32 v{P+rt*4+e}, v{K_R+(rt*3+0)*4+e}")
    a.label("qkv_mvd")
    a(f"v_lshlrev_b32 v{vD0}, 2, v{vH}")
    a(f"v_add_u32 v{vD0}, s39, v{vD0}")
    a(f"v_cmp_gt_u32 s[52:53], 20, v{vD0}")
    a(f"v_lshlrev_b32 v{vA}, 5, v{vN}")
    a(f"v_add_u32 v{vA}, v{vA}, v{vD0}")
    for rt in range(2):
        q = T + 16 + rt
        a(f"v_mul_f32 v{q}, v{P+rt*4}, v{P+rt*4}")
        for e in range(1, 4):
            a(f"v_fmac_f32 v{q}, v{P+rt*4+e}, v{P+rt*4+e}")
        a(f"v_cndmask_b32 v{q}, 0, v{q}, s[52:53]")
        a(f"ds_write_b32 v{vA}, v{q} offset:{NB + rt*1024}")
    for rt in range(2):
        r = P + rt * 4
        a(f"v_cvt_pk_bf16_f32 v{r}, v{r}, v{r+1}")
        a(f"v_cvt_pk_bf16_f32 v{r+1}, v{r+2}, v{r+3}")
    a("s_mov_b64 s[54:55], exec")
    a("s_and_b64 exec, exec, s[52:53]")
    a("s_cbranch_execz qkv_kvst_done")
    a(f"s_mul_i32 s48, s{s_rb}, {2*1280}")
    a(f"s_cmp_eq_u32 s{s_cb}, 7")
    a("s_cbranch_scc1 qkv_vst")
    a(f"s_add_u32 s48, s48, {KF}")
    a("s_add_u32 s49, s48, 1280")
    a(f"v_mov_b32 v{vOff}, 0")
    frag_off(vD0, vOff)
    for rt in range(2):
        a(f"buffer_store_dwordx2 {vr(P+rt*4,2)}, v{vOff}, s[{SWS}:{SWS+3}], s{48+rt} offen")
    a("s_branch qkv_kvst_done")
    a.label("qkv_vst")
    a(f"s_mul_i32 s48, s{s_rb}, {2*1344}")
    a(f"s_add_u32 s48, s48, {VF}")
    a("s_add_u32 s49, s48, 1344")
    a(f"v_lshrrev_b32 v{vA}, 4, v{vN}")
    a(f"v_lshlrev_b32 v{vA}, 1, v{vA}")
    a(f"v_bfe_u32 v{vA+1}, v{vN}, 2, 1")
    a(f"v_add_u32 v{vA}, v{vA}, v{vA+1}")
    a(f"v_mul_u32_u24 v{vA}, 21, v{vA}")
    a(f"v_add_u32 v{vA}, v{vA}, v{vD0}")
    a(f"v_lshlrev_b32 v{vOff}, 4, v{vA}")
    a(f"v_and_b32 v{vA}, 3, v{vN}")
    a(f"v_lshl_add_u32 v{vOff}, v{vA}, 1, v{vOff}")
    a(f"v_bfe_u32 v{vA}, v{vN}, 3, 1")
    a(f"v_lshl_add_u32 v{vOff}, v{vA}, 3, v{vOff}")
    for rt in range(2):
        r = P + rt * 4
        a(f"buffer_store_short v{r}, v{vOff}, s[{SWS}:{SWS+3}], s{48+rt} offen")
        a(f"buffer_store_short_d16_hi v{r}, v{vOff}, s[{SWS}:{SWS+3}], s{48+rt} offen offset:16")
        a(f"buffer_store_short v{r+1}, v{vOff}, s[{SWS}:{SWS+3}], s{48+rt} offen offset:32")
        a(f"buffer_store_short_d16_hi v{r+1}, v{vOff}, s[{SWS}:{SWS+3}], s{48+rt} offen offset:48")
    a.label("qkv_kvst_done")
    a("s_mov_b64 exec, s[54:55]")
    a(f"s_cmp_lg_u32 s{s_cb}, 7")
    a("s_cbranch_scc1 qkv_noones")
    a(f"s_cmp_lg_u32 s{s_w}, 3")
    a("s_cbranch_scc1 qkv_noones")
    a(f"s_mul_i32 s48, s{s_rb}, {2*1344}")
    a(f"s_add_u32 s48, s48, {VF + 320}")
    a(f"v_mul_u32_u24 v{vOff}, 336, v{vLane}")
    for e in range(4):
        a(f"v_mov_b32 v{P+e}, 0x3f803f80")
    a("s_mov_b64 exec, 0xff")
    a(f"buffer_store_dwordx4 {vr(P,4)}, v{vOff}, s[{SWS}:{SWS+3}], s48 offen")
    a("s_mov_b64 exec, s[54:55]")
    a.label("qkv_noones")
    a("s_waitcnt lgkmcnt(0)")
    a("s_barrier")
    a(f"s_cmp_lg_u32 s{s_w}, 0")
    a("s_cbranch_scc1 qkv_end")
    a(f"v_lshlrev_b32 v{vA}, 5, v{vLane}")
    a(f"ds_read_b128 {vr(P,4)}, v{vA} offset:{NB}")
    a(f"ds_read_b128 {vr(P+4,4)}, v{vA} offset:{NB+16}")
    a("s_waitcnt lgkmcnt(0)")
    for e in range(1, 8):
        a(f"v_add_f32 v{P}, v{P}, v{P+e}")
    a(f"v_mov_b32 v{vA}, 0")
    a(f"ds_max_u32 v{vA}, v{P} offset:{MX}")
    a("s_waitcnt lgkmcnt(0)")
    a(f"ds_read_b32 v{P}, v{vA} offset:{MX}")
    a(f"s_sub_u32 s48, s{s_cb}, 6")
    a("s_lshl_b32 s48, s48, 5")
    a(f"s_add_u32 s48, s48, s{s_rb}")
    a("s_lshl_b32 s48, s48, 2")
    a(f"s_add_u32 s48, s48, {KN}")
    a("s_waitcnt lgkmcnt(0)")
    a(f"buffer_store_dword v{P}, v{vA}, s[{SWS}:{SWS+3}], s48 offen")
    a.label("qkv_end")
    a("s_endpgm")
    return a.finish(), ("qkv_kernel", 256, 256, 131072, 256)


A_Q, A_O, A_S, A_P, A_K, A_V, A_M = 16, 48, 112, 144, 160, 192, 224
A_T = 228
NSET = 4
OOB = 0x80000000


def gen_attn_body(a, pfx, s_wg):
    s_w, s_rt, s_kh, s_hd = 32, 33, 34, 35
    SWS = 28
    vLane, vN, vH = 1, 2, 3
    vK1, vK2, vV = 4, 5, 6
    T = A_T
    a("s_load_dwordx2 s[12:13], s[0:1], 88")
    lane_setup(a, T, vLane, vN, vH, s_w)
    a(f"s_and_b32 s3, s{s_wg}, 7")
    a(f"s_lshr_b32 s36, s{s_wg}, 5")
    a("s_lshl_b32 s3, s3, 3")
    a(f"s_add_u32 s{s_rt}, s3, s36")
    a(f"s_bfe_u32 s3, s{s_wg}, 0x20003")
    a(f"s_and_b32 s{s_kh}, s{s_w}, 1")
    a(f"s_lshr_b32 s36, s{s_w}, 1")
    a("s_lshl_b32 s3, s3, 3")
    a("s_lshl_b32 s36, s36, 2")
    a(f"s_add_u32 s{s_hd}, s3, s36")
    a(f"v_lshlrev_b32 v{vK1}, 4, v{vLane}")
    a(f"v_lshlrev_b32 v{vK2}, 3, v{vN}")
    a(f"v_add_u32 v{vK2}, 1024, v{vK2}")
    a(f"v_mov_b32 v{T}, {hx(OOB)}")
    a(f"v_cmp_eq_u32 vcc, 0, v{vH}")
    a(f"v_cndmask_b32 v{vK2}, v{T}, v{vK2}, vcc")
    a(f"v_mul_u32_u24 v{vV}, 21, v{vH}")
    a(f"v_add_u32 v{vV}, v{vV}, v{vN}")
    a(f"v_lshlrev_b32 v{vV}, 4, v{vV}")
    a(f"v_cmp_gt_u32 vcc, 21, v{vN}")
    a(f"v_cndmask_b32 v{vV}, v{T}, v{vV}, vcc")
    a("s_waitcnt lgkmcnt(0)")
    srd(a, SWS, 12, WS_END)
    a(f"s_add_u32 s12, s12, {KN}")
    a("s_addc_u32 s13, s13, 0")
    a("s_load_dwordx16 s[64:79], s[12:13], 0")
    a("s_load_dwordx16 s[80:95], s[12:13], 64")
    a("s_load_dwordx16 s[44:59], s[12:13], 128")
    a(f"s_lshl_b32 s36, s{s_rt}, 5")
    a(f"s_add_u32 s36, s36, s{s_hd}")
    a("s_mul_i32 s36, s36, 1280")
    a(f"s_add_u32 s36, s36, {QF}")
    for i in range(4):
        a(f"buffer_load_dwordx4 {vr(A_Q+8*i,4)}, v{vK1}, s[{SWS}:{SWS+3}], s36 offen")
        a(f"buffer_load_dwordx2 {vr(A_Q+8*i+4,2)}, v{vK2}, s[{SWS}:{SWS+3}], s36 offen")
        if i < 3:
            a("s_add_u32 s36, s36, 1280")
    s_kp, s_vp = 37, 38
    a(f"s_mul_i32 s{s_kp}, s{s_kh}, {32*1280}")
    a(f"s_add_u32 s{s_kp}, s{s_kp}, {KF}")
    a(f"s_mul_i32 s{s_vp}, s{s_kh}, {32*1344}")
    a(f"s_add_u32 s{s_vp}, s{s_vp}, {VF}")

    def loadK(st):
        a(f"buffer_load_dwordx4 {vr(A_K+8*st,4)}, v{vK1}, s[{SWS}:{SWS+3}], s{s_kp} offen")
        a(f"buffer_load_dwordx2 {vr(A_K+8*st+4,2)}, v{vK2}, s[{SWS}:{SWS+3}], s{s_kp} offen")
        a(f"s_add_u32 s{s_kp}, s{s_kp}, 1280")

    def loadV(st):
        a(f"buffer_load_dwordx4 {vr(A_V+8*st,4)}, v{vV}, s[{SWS}:{SWS+3}], s{s_vp} offen")
        a(f"buffer_load_dwordx4 {vr(A_V+8*st+4,4)}, v{vV}, s[{SWS}:{SWS+3}], s{s_vp} offen offset:672")
        a(f"s_add_u32 s{s_vp}, s{s_vp}, 1344")
    for st in range(NSET - 1):
        loadK(st)
        loadV(st)
    loadK(NSET - 1)
    for i in range(4):
        a(f"v_mov_b32 v{A_Q+8*i+6}, 0")
        a(f"v_mov_b32 v{A_Q+8*i+7}, 0")
    for st in range(NSET):
        a(f"v_mov_b32 v{A_K+8*st+6}, 0")
        a(f"v_mov_b32 v{A_K+8*st+7}, 0")
    for r in range(64):
        a(f"v_mov_b32 v{A_O+r}, 0")
    for r in range(16):
        a(f"v_mov_b32 v{A_P+r}, 0")
    for r in range(8):
        a(f"v_mov_b32 v{A_V+8*(NSET-1)+r}, 0")
    for r in range(4):
        a(f"v_mov_b32 v{A_M+r}, 0")
    a("s_waitcnt lgkmcnt(0)")
    for r in range(65, 96):
        a(f"s_max_u32 s64, s64, s{r}")
    for r in range(45, 60):
        a(f"s_max_u32 s44, s44, s{r}")
    a("s_load_dwordx16 s[80:95], s[12:13], 192")
    a("s_waitcnt lgkmcnt(0)")
    for r in range(80, 96):
        a(f"s_max_u32 s44, s44, s{r}")
    a(f"s_waitcnt vmcnt({4*NSET-2})")
    for i in range(4):
        a(f"v_mov_b32 v{T+i}, 0")
    for r in range(6):
        for i in range(4):
            a(f"v_dot2_f32_bf16 v{T+i}, v{A_Q+8*i+r}, v{A_Q+8*i+r}, v{T+i}")
    for i in range(4):
        a(f"v_mov_b32 v{T+4+i}, v{T+i}")
    for i in range(4):
        a(f"v_permlane32_swap_b32 v{T+i}, v{T+4+i}")
    for i in range(4):
        a(f"v_add_f32 v{T+i}, v{T+i}, v{T+4+i}")
    a(f"v_max3_f32 v{T}, v{T}, v{T+1}, v{T+2}")
    a(f"v_max_f32 v{T}, v{T}, v{T+3}")
    a(f"v_mul_f32 v{T}, s64, v{T}")
    a(f"v_mov_b32 v{T+1}, {hx(f2u(3600.0/1.05))}")
    a(f"v_cmp_nle_f32 vcc, v{T}, v{T+1}")
    a(f"s_cmp_gt_u32 s44, {hx(f2u(2.0**80))}")
    a(f"s_cbranch_scc1 {pfx}_slow")
    a(f"s_cbranch_vccnz {pfx}_slow")

    def qk(m, sb, ks, i):
        if m == 0:
            mfma32(a, A_S + 16 * sb, A_K + 8 * ks, A_Q + 8 * i, "0")
        else:
            mfma32(a, A_S + 16 * sb, A_K + 8 * ks + 4, A_Q + 8 * i + 4)

    def pv(m, pb, vs, i):
        mfma32(a, A_O + 16 * i, A_V + 8 * vs + 4 * m, A_P + 8 * pb + 4 * m)

    a(f"s_waitcnt vmcnt({4*NSET-4})")
    qk(0, 0, 0, 0)
    qk(1, 0, 0, 0)
    stamp(a, "attn")
    a(f"s_mov_b32 s39, {32//NSET}")
    a("s_nop 10")
    a.raw(".p2align 6")
    a.label(f"{pfx}_loop")
    for kk in range(NSET):
        for i in range(4):
            cur = i & 1
            S = A_S + 16 * cur
            P = A_P + 8 * cur
            nks, ni = (kk, i + 1) if i < 3 else ((kk + 1) % NSET, 0)
            pvs, pi = (kk, i - 1) if i > 0 else ((kk - 1) % NSET, 3)
            if i in (1, 3) and not os.environ.get("NOWAIT"):
                a(f"s_waitcnt vmcnt({4*NSET-6})")
            qk(0, cur ^ 1, nks, ni)
            for e in range(0, 4):
                a(f"v_exp_f32 v{S+e}, v{S+e}")
            qk(1, cur ^ 1, nks, ni)
            if i == 1 and not os.environ.get("NOKV"):
                loadV((kk - 1) % NSET)
            if i == 3 and not os.environ.get("NOKV"):
                loadK(kk)
            for e in range(4, 8):
                a(f"v_exp_f32 v{S+e}, v{S+e}")
            pv(0, cur ^ 1, pvs, pi)
            for e in range(8, 12):
                a(f"v_exp_f32 v{S+e}, v{S+e}")
            for j in range(0, 2):
                a(f"v_cvt_pk_bf16_f32 v{P+j}, v{S+2*j}, v{S+2*j+1}")
            pv(1, cur ^ 1, pvs, pi)
            for e in range(12, 16):
                a(f"v_exp_f32 v{S+e}, v{S+e}")
            for j in range(2, 8):
                a(f"v_cvt_pk_bf16_f32 v{P+j}, v{S+2*j}, v{S+2*j+1}")
    a("s_sub_u32 s39, s39, 1")
    a("s_cmp_lg_u32 s39, 0")
    a(f"s_cbranch_scc1 {pfx}_loop")
    pv(0, 1, NSET - 1, 3)
    pv(1, 1, NSET - 1, 3)
    stamp(a, "attn")
    a(f"s_branch {pfx}_epi")

    a.label(f"{pfx}_slow")
    for r in range(4):
        a(f"v_mov_b32 v{A_M+r}, {hx(f2u(-1e30))}")
    a("s_mov_b32 s39, 32")
    a(f"s_sub_u32 s{s_kp}, s{s_kp}, {1280*(NSET-1)}")
    a(f"s_sub_u32 s{s_vp}, s{s_vp}, {1344*(NSET-2)}")
    a.label(f"{pfx}_sloop")
    a("s_waitcnt vmcnt(0)")
    for i in range(4):
        S, P, M = A_S, A_P, A_M + i
        qk(0, 0, 0, i)
        qk(1, 0, 0, i)
        a(f"v_max3_f32 v{T}, v{S}, v{S+1}, v{S+2}")
        for e in range(3, 15, 2):
            a(f"v_max3_f32 v{T}, v{T}, v{S+e}, v{S+e+1}")
        a(f"v_max_f32 v{T}, v{T}, v{S+15}")
        a(f"v_mov_b32 v{T+1}, v{T}")
        a(f"v_permlane32_swap_b32 v{T}, v{T+1}")
        a(f"v_max3_f32 v{T}, v{T}, v{T+1}, v{M}")
        a(f"v_sub_f32 v{T+1}, v{M}, v{T}")
        a(f"v_exp_f32 v{T+1}, v{T+1}")
        a(f"v_mov_b32 v{M}, v{T}")
        for e in range(16):
            a(f"v_sub_f32 v{S+e}, v{S+e}, v{T}")
            a(f"v_exp_f32 v{S+e}, v{S+e}")
        for j in range(8):
            a(f"v_cvt_pk_bf16_f32 v{P+j}, v{S+2*j}, v{S+2*j+1}")
        for e in range(16):
            a(f"v_mul_f32 v{A_O+16*i+e}, v{A_O+16*i+e}, v{T+1}")
        pv(0, 0, 0, i)
        pv(1, 0, 0, i)
    loadK(0)
    loadV(0)
    a("s_sub_u32 s39, s39, 1")
    a("s_cmp_lg_u32 s39, 0")
    a(f"s_cbranch_scc1 {pfx}_sloop")

    a.label(f"{pfx}_epi")
    a("s_waitcnt vmcnt(0)")
    vW, vR = T, T + 1
    a(f"s_mul_i32 s40, s{s_w}, 6656")
    a(f"s_xor_b32 s41, s{s_w}, 1")
    a("s_mul_i32 s41, s41, 6656")
    a(f"v_add_u32 v{vW}, s40, v{vK1}")
    a(f"v_add_u32 v{vR}, s41, v{vK1}")
    a(f"v_lshlrev_b32 v{T+2}, 2, v{vLane}")
    a(f"v_add_u32 v{T+3}, s41, v{T+2}")
    a(f"v_add_u32 v{T+2}, s40, v{T+2}")
    a(f"s_cmp_eq_u32 s{s_kh}, 0")
    a(f"s_cbranch_scc1 {pfx}_e0")
    for t in range(2):
        for q in range(3):
            a(f"ds_write_b128 v{vW}, {vr(A_O+16*t+4*q,4)} offset:{(t*3+q)*1024}")
        a(f"ds_write_b32 v{T+2}, v{A_M+t} offset:{6144+t*256}")
    a("s_waitcnt lgkmcnt(0)")
    for t in range(2):
        for e in range(12):
            a(f"v_mov_b32 v{A_O+16*t+e}, v{A_O+16*(t+2)+e}")
        a(f"v_mov_b32 v{A_M+t}, v{A_M+t+2}")
    a(f"s_add_u32 s{s_hd}, s{s_hd}, 2")
    a(f"s_branch {pfx}_e1")
    a.label(f"{pfx}_e0")
    for t in range(2):
        for q in range(3):
            a(f"ds_write_b128 v{vW}, {vr(A_O+16*(t+2)+4*q,4)} offset:{(t*3+q)*1024}")
        a(f"ds_write_b32 v{T+2}, v{A_M+t+2} offset:{6144+t*256}")
    a("s_waitcnt lgkmcnt(0)")
    a.label(f"{pfx}_e1")
    a("s_barrier")
    for t in range(2):
        for q in range(3):
            a(f"ds_read_b128 {vr(A_S+16*t+4*q,4)}, v{vR} offset:{(t*3+q)*1024}")
        a(f"ds_read_b32 v{A_M+2+t}, v{T+3} offset:{6144+t*256}")
    a("s_waitcnt lgkmcnt(0)")
    a(f"s_mul_i32 s40, s{s_rt}, {40*1024}")
    a(f"s_add_u32 s40, s40, {OF}")
    a(f"v_mov_b32 v{T+12}, {hx(OOB)}")
    a(f"v_cmp_eq_u32 s[42:43], 0, v{vH}")
    for t in range(2):
        O, Pz, Ma, Mp = A_O + 16 * t, A_S + 16 * t, A_M + t, A_M + 2 + t
        a(f"v_max_f32 v{T+4}, v{Ma}, v{Mp}")
        a(f"v_sub_f32 v{T+5}, v{Ma}, v{T+4}")
        a(f"v_sub_f32 v{T+6}, v{Mp}, v{T+4}")
        a(f"v_exp_f32 v{T+5}, v{T+5}")
        a(f"v_exp_f32 v{T+6}, v{T+6}")
        for e in range(12):
            a(f"v_mul_f32 v{O+e}, v{O+e}, v{T+5}")
            a(f"v_fmac_f32 v{O+e}, v{Pz+e}, v{T+6}")
        a(f"v_mov_b32 v{T+7}, v{O+8}")
        a(f"v_mov_b32 v{T+8}, v{O+8}")
        a(f"v_permlane32_swap_b32 v{T+7}, v{T+8}")
        a(f"v_rcp_f32 v{T+8}, v{T+8}")
        for e in range(12):
            a(f"v_mul_f32 v{O+e}, v{O+e}, v{T+8}")
        for q in range(3):
            a(f"v_cvt_pk_bf16_f32 v{O+4*q}, v{O+4*q}, v{O+4*q+1}")
            a(f"v_cvt_pk_bf16_f32 v{O+4*q+1}, v{O+4*q+2}, v{O+4*q+3}")
        a(f"s_add_u32 s41, s{s_hd}, {t}")
        a("s_mul_i32 s41, s41, 20")
        for q in range(3):
            k, off = T + 9, T + 10
            a(f"v_lshlrev_b32 v{k}, 2, v{vH}")
            a(f"v_add_u32 v{k}, s41, v{k}")
            if q:
                a(f"v_add_u32 v{k}, {8*q}, v{k}")
            a(f"v_lshrrev_b32 v{off}, 3, v{k}")
            a(f"v_lshlrev_b32 v{off}, 9, v{off}")
            a(f"v_lshl_add_u32 v{off}, v{vN}, 4, v{off}")
            a(f"v_and_b32 v{k}, 4, v{k}")
            a(f"v_lshl_add_u32 v{off}, v{k}, 1, v{off}")
            if q == 2:
                a(f"v_cndmask_b32 v{off}, v{T+12}, v{off}, s[42:43]")
            a(f"buffer_store_dwordx2 {vr(O+4*q,2)}, v{off}, s[{SWS}:{SWS+3}], s40 offen")


def gen_attn():
    a = Asm()
    a.label("attn_kernel")
    a("s_cmp_ge_u32 s2, 256")
    a("s_cbranch_scc1 attn_end")
    stamp_begin(a, "attn")
    gen_attn_body(a, "attn", 2)
    stamp_end(a, "attn", 28, 32, 250)
    a.label("attn_end")
    a("s_endpgm")
    return a.finish(), ("attn_kernel", 256, 256, 26624, 256 if STAMP else 248)


R_ACC, R_A, R_B, R_T = 16, 112, 160, 208


class TypeR:
    def __init__(self, a, pfx, NT, NS, vTr, vWo, vB, s_w, srd_of_tile, goff, s_bp, SWS, tr2, bmods=""):
        self.__dict__.update(locals())
        self.SLOT = 4 * NT * 1024
        self.sname = {"gu": "gateup", "dn": "down"}[pfx[:2]]
        self.s_m = 60
        self.per = NT + 4

    def dma_ops(self, stage):
        slot = stage % 3
        s_g0, s_g1, gstep = self.goff
        out = []
        for t in range(self.NT):
            sr, grp, tt = self.srd_of_tile(t)
            out.append([f"s_add_u32 m0, s{self.s_m}, {slot*self.SLOT + t*1024}",
                        f"s_add_u32 s61, s{s_g0 if grp == 0 else s_g1}, {stage*gstep + tt*64}",
                        f"buffer_load_dwordx4 v{self.vWo}, s[{sr}:{sr+3}], s61 offen lds"])
        return out

    def b_ops(self, stage):
        slot = stage % 3
        bl = []
        for j in range(4):
            g = []
            if j == 0:
                g.append(f"s_add_u32 s62, s{self.s_bp}, {stage*4096}")
            g.append(f"buffer_load_dwordx4 {vr(R_B+slot*16+j*4,4)}, v{self.vB}, s[{self.SWS}:{self.SWS+3}], s62 offen offset:{j*1024}{self.bmods}")
            bl.append(g)
        return bl

    def vm_ops(self, stage):
        out, bl, res = self.dma_ops(stage), self.b_ops(stage), []
        while out or bl:
            if out:
                res.append(out.pop(0))
            if bl and len(res) > 1:
                res.append(bl.pop(0))
        return res

    def emit(self, groups):
        for g in groups:
            for x in g:
                self.a(x)

    def reads(self, stage, j):
        buf = (stage * 4 + j) & 1
        slot = stage % 3
        base = (slot & 1) * self.SLOT + j * self.NT * 1024
        va = self.vTr + (slot >> 1)
        out = []
        for t in range(self.NT):
            r = R_A + buf * 24 + t * 4
            out.append(f"ds_read_b64_tr_b16 {vr(r,2)}, v{va} offset:{base + t*1024}")
            out.append(f"ds_read_b64_tr_b16 {vr(r+2,2)}, v{va} offset:{base + t*1024 + self.tr2}")
        return out

    def mf(self, stage, j, t):
        buf = (stage * 4 + j) & 1
        first = stage == 0 and j == 0
        mfma32(self.a, R_ACC + 16 * t, R_A + buf * 24 + t * 4, R_B + (stage % 3) * 16 + j * 4, "0" if first else None)

    def setup(self):
        a = self.a
        a(f"s_mul_i32 s{self.s_m}, s{self.s_w}, {self.NT*1024}")
        a(f"v_add_u32 v{self.vTr+1}, {2*self.SLOT}, v{self.vTr}")

    def main(self, first_wait):
        a, NT, NS = self.a, self.NT, self.NS
        stamp(a, self.sname)
        a(f"s_waitcnt vmcnt({first_wait})")
        a("s_barrier")
        stamp(a, self.sname)
        for x in self.reads(0, 0):
            a(x)
        for i in range(NS):
            if i in (1, 2, 4):
                stamp(a, self.sname)
            ops = self.vm_ops(i + 2) if i + 2 < NS else []
            nslots = 3 * NT
            place = {}
            for k, g in enumerate(ops):
                place[(k * nslots) // len(ops)] = g
            for j in range(3):
                rd = self.reads(i, j + 1)
                for t in range(NT):
                    a(f"s_waitcnt lgkmcnt({2*(NT-1)})")
                    self.mf(i, j, t)
                    a(rd[2 * t])
                    a(rd[2 * t + 1])
                    if j * NT + t in place:
                        self.emit([place[j * NT + t]])
            last = i + 1 == NS
            H = NT if last else (NT + 1) // 2
            for t in range(H):
                a(f"s_waitcnt lgkmcnt({2*(NT-1-t)})")
                self.mf(i, 3, t)
            if not last:
                a(f"s_waitcnt vmcnt({self.per if ops else 0}) lgkmcnt(0)")
                a("s_barrier")
                rd = self.reads(i + 1, 0)
                n = NT - H
                for k, t in enumerate(range(H, NT)):
                    self.mf(i, 3, t)
                    for x in rd[(k * len(rd)) // n:((k + 1) * len(rd)) // n]:
                        a(x)


def gen_gateup_body(a, pfx, s_wg, mid_hook=None, smods=''):
    s_w, s_rb, s_cb = 32, 33, 34
    SW1, SW3, SWS = 16, 20, 28
    vLane, vN, vH, vWo, vB, vTr = 1, 2, 3, 4, 5, 6
    T = R_T
    a("s_load_dwordx4 s[4:7], s[0:1], 48")
    a("s_load_dwordx2 s[12:13], s[0:1], 88")
    lane_setup(a, T, vLane, vN, vH, s_w)
    a(f"s_and_b32 s3, s{s_wg}, 7")
    a(f"s_lshr_b32 s35, s{s_wg}, 3")
    a("s_and_b32 s36, s3, 1")
    a("s_lshl_b32 s36, s36, 3")
    a("s_and_b32 s37, s35, 7")
    a(f"s_add_u32 s{s_rb}, s36, s37")
    a("s_lshr_b32 s36, s3, 1")
    a("s_lshl_b32 s36, s36, 2")
    a("s_lshr_b32 s37, s35, 3")
    a(f"s_add_u32 s{s_cb}, s36, s37")
    a(f"v_lshrrev_b32 v{T}, 2, v{vLane}")
    a(f"v_mul_u32_u24 v{vWo}, 3072, v{T}")
    a(f"v_and_b32 v{T}, 3, v{vLane}")
    a(f"v_lshl_add_u32 v{vWo}, v{T}, 4, v{vWo}")
    tr_base(a, vTr, T, vLane, vH, 9)
    a(f"v_lshlrev_b32 v{vB}, 4, v{vLane}")
    a(f"s_mul_i32 s40, s{s_w}, {16*3072}")
    a(f"s_mul_i32 s41, s{s_cb}, 192")
    a("s_add_u32 s40, s40, s41")
    a(f"s_lshl_b32 s42, s{s_rb}, 2")
    a(f"s_add_u32 s42, s42, s{s_w}")
    a(f"s_mul_i32 s43, s42, {40*1024}")
    if XF:
        a(f"s_add_u32 s43, s43, {XF}")
    a("s_waitcnt lgkmcnt(0)")
    srd(a, SW1, 4, 1966080)
    srd(a, SW3, 6, 1966080)
    srd(a, SWS, 12, WS_END)
    R = TypeR(a, pfx, 6, 10, vTr, vWo, vB, s_w,
              lambda t: (SW1, 0, t) if t < 3 else (SW3, 0, t - 3), (40, 40, 64 * 3072), 43, SWS, 256)
    R.setup()
    R.emit(R.vm_ops(0) + R.vm_ops(1))
    R.main(R.per)
    if mid_hook:
        mid_hook()
    stamp(a, "gateup")
    a(f"s_mov_b32 s44, {hx(f2u(-math.log2(math.e)))}")
    a(f"s_mul_i32 s45, s42, {96*1024}")
    a(f"s_mul_i32 s46, s{s_cb}, {6*1024}")
    a("s_add_u32 s45, s45, s46")
    a(f"s_add_u32 s45, s45, {HF}")
    a(f"v_mov_b32 v{T}, s44")
    a(f"v_mov_b32 v{T+1}, s44")
    a(f"v_mov_b32 v{T+2}, 1.0")
    a(f"v_mov_b32 v{T+3}, 1.0")
    for t in range(3):
        g, u = R_ACC + 16 * t, R_ACC + 16 * (t + 3)
        E = R_A
        for e in range(0, 16, 2):
            a(f"v_pk_mul_f32 {vr(E+e,2)}, {vr(g+e,2)}, {vr(T,2)}")
        for e in range(16):
            a(f"v_exp_f32 v{E+e}, v{E+e}")
        for e in range(0, 16, 2):
            a(f"v_pk_add_f32 {vr(E+e,2)}, {vr(E+e,2)}, {vr(T+2,2)}")
        for e in range(16):
            a(f"v_rcp_f32 v{E+e}, v{E+e}")
        for e in range(0, 16, 2):
            a(f"v_pk_mul_f32 {vr(g+e,2)}, {vr(g+e,2)}, {vr(u+e,2)}")
        for e in range(0, 16, 2):
            a(f"v_pk_mul_f32 {vr(g+e,2)}, {vr(g+e,2)}, {vr(E+e,2)}")
        for j in range(8):
            a(f"v_cvt_pk_bf16_f32 v{u+j}, v{g+2*j}, v{g+2*j+1}")
        for hf in range(2):
            o = (2 * t + hf) * 1024
            if o < 4096:
                a(f"buffer_store_dwordx4 {vr(u+4*hf,4)}, v{vB}, s[{SWS}:{SWS+3}], s45 offen offset:{o}{smods}")
            else:
                a(f"s_add_u32 s46, s45, {o}")
                a(f"buffer_store_dwordx4 {vr(u+4*hf,4)}, v{vB}, s[{SWS}:{SWS+3}], s46 offen{smods}")


def gen_gateup():
    a = Asm()
    a.label("gateup_kernel")
    a("s_cmp_ge_u32 s2, 256")
    a("s_cbranch_scc1 gateup_end")
    stamp_begin(a, "gateup")
    gen_gateup_body(a, "gu", 2)
    stamp_end(a, "gateup", 28, 32, 240)
    a.label("gateup_end")
    a("s_endpgm")
    return a.finish(), ("gateup_kernel", 256, 256, 73728, 256 if STAMP else 216)


D_AF, D_BF, D_RES, D_XR, D_T = 112, 136, 184, 212, 224
RING = 18432


def tile64_setup(a, s_wg, s_rb, s_cb):
    a(f"s_and_b32 s3, s{s_wg}, 7")
    a("s_lshl_b32 s3, s3, 2")
    a(f"s_bfe_u32 s36, s{s_wg}, 0x20003")
    a(f"s_add_u32 s{s_rb}, s3, s36")
    a(f"s_lshr_b32 s{s_cb}, s{s_wg}, 5")


def gen_down_setup(a, s_wg, standalone, bmods=""):
    s_w = 32
    s_rb, s_cb = 63, 64
    SW, SWS, SX = 24, 28, 76
    vLane, vN, vH, vWo, vB, vTr, vXo = 1, 2, 3, 8, 5, 9, 10
    T = D_T
    a("s_load_dwordx2 s[8:9], s[0:1], 64")
    a("s_load_dwordx2 s[14:15], s[0:1], 0")
    if standalone:
        a("s_load_dwordx2 s[12:13], s[0:1], 88")
        lane_setup(a, T, vLane, vN, vH, s_w)
        a(f"v_lshlrev_b32 v{vB}, 4, v{vLane}")
    tile64_setup(a, s_wg, s_rb, s_cb)
    a(f"v_lshrrev_b32 v{T}, 2, v{vLane}")
    a(f"v_mul_u32_u24 v{vWo}, 1280, v{T}")
    a(f"v_and_b32 v{T}, 3, v{vLane}")
    a(f"v_lshl_add_u32 v{vWo}, v{T}, 4, v{vWo}")
    tr_base(a, vTr, T, vLane, vH, 8)
    a(f"s_mul_i32 s67, s{s_w}, {RING}")
    a(f"v_add_u32 v{vTr}, s67, v{vTr}")
    a(f"v_mul_u32_u24 v{vXo}, 1280, v{vN}")
    a(f"v_lshl_add_u32 v{vXo}, v{vH}, 3, v{vXo}")
    a(f"s_mul_i32 s66, s{s_w}, {384*1280}")
    a(f"s_mul_i32 s37, s{s_cb}, 192")
    a("s_add_u32 s66, s66, s37")
    a(f"s_mul_i32 s68, s{s_rb}, {2*96*1024}")
    a(f"s_mul_i32 s36, s{s_w}, {24*1024}")
    a("s_add_u32 s68, s68, s36")
    a(f"s_add_u32 s68, s68, {HF}")
    a(f"s_add_u32 s65, s68, {96*1024}")
    a(f"s_mul_i32 s70, s{s_rb}, {64*1280}")
    a("s_add_u32 s70, s70, s37")
    a(f"s_lshl_b32 s36, s{s_w}, 4")
    a("s_add_u32 s70, s70, s36")
    a(f"s_add_u32 s71, s70, {32*1280}")
    a("s_waitcnt lgkmcnt(0)")
    srd(a, SW, 8, 1966080)
    srd(a, SX, 14, 2621440)
    if standalone:
        srd(a, SWS, 12, WS_END)
    K = TypeK(a, 24, 6, 6, R_ACC, D_AF, D_BF, vTr, 512, vWo, SW, 66, 16 * 1280, 67, vB, SWS, 68, 65, bmods)
    for rt in range(2):
        for ct in range(3):
            a(f"buffer_load_dwordx2 {vr(D_XR+(rt*3+ct)*2,2)}, v{vXo}, s[{SX}:{SX+3}], s{70+rt} offen offset:{ct*64}")
    order = [("x",)] * 6
    for s in range(6):
        K.emit(K.dma(s))
        order += [("d", s)] * 3
    return K, order


def gen_down_rest(a, K, order):
    s_w, s_rb, s_cb, SWS, vB, vLane = 32, 63, 64, 28, 5, 1
    T = D_T
    for s in range(6):
        K.emit(K.bl(s))
        order = order + [("b", s)] * 2
    K.main(order)
    stamp(a, "mffn")
    stamp(a, "down")
    a("s_setprio 2")
    reduce4(a, "dn", R_ACC, D_RES, R_ACC, vB, T, s_w, 67, 0, RING)
    a("s_mov_b32 s49, 0xffff0000")
    a(f"s_mul_i32 s45, s{s_rb}, 40")
    a(f"s_mul_i32 s46, s{s_cb}, 3")
    a("s_add_u32 s45, s45, s46")
    a("s_lshl_b32 s45, s45, 11")
    a(f"s_lshl_b32 s46, s{s_w}, 9")
    a("s_add_u32 s45, s45, s46")
    a(f"s_add_u32 s45, s45, {YF}")
    a(f"v_lshlrev_b32 v{T+4}, 3, v{vLane}")
    for ct in range(3):
        if ct == 2:
            a(f"s_cmp_eq_u32 s{s_cb}, 6")
            a("s_cbranch_scc1 dn_skip")
        for rt in range(2):
            r = D_RES + (rt * 3 + ct) * 4
            xr = D_XR + (rt * 3 + ct) * 2
            for e in range(2):
                a(f"v_lshlrev_b32 v{T}, 16, v{xr+e}")
                a(f"v_and_b32 v{T+1}, s49, v{xr+e}")
                a(f"v_pk_add_f32 {vr(r+2*e,2)}, {vr(r+2*e,2)}, {vr(T,2)}")
            a(f"v_cvt_pk_bf16_f32 v{r}, v{r}, v{r+1}")
            a(f"v_cvt_pk_bf16_f32 v{r+1}, v{r+2}, v{r+3}")
            a(f"s_add_u32 s46, s45, {(rt*20+ct)*2048}")
            a(f"buffer_store_dwordx2 {vr(r,2)}, v{T+4}, s[{SWS}:{SWS+3}], s46 offen")
    a.label("dn_skip")


def gen_down():
    a = Asm()
    a.label("down_kernel")
    a("s_cmp_ge_u32 s2, 224")
    a("s_cbranch_scc1 down_end")
    stamp_begin(a, "down")
    K, order = gen_down_setup(a, 2, True)
    stamp(a, "down")
    gen_down_rest(a, K, order)
    stamp_end(a, "down", 28, 32, 240)
    a.label("down_end")
    a("s_endpgm")
    return a.finish(), ("down_kernel", 224, 256, 73728, 256 if STAMP else 232)


def gen_main():
    a = Asm()
    a.label("main_kernel")
    a("s_cmp_ge_u32 s2, 512")
    a("s_cbranch_scc1 main_end")
    a("s_cmp_ge_u32 s2, 256")
    a("s_cbranch_scc1 main_ffn")
    if PRIO_ATTN:
        a(f"s_setprio {PRIO_ATTN}")
    stamp_begin(a, "mattn")
    gen_attn_body(a, "ma", 2)
    stamp_end(a, "mattn", 28, 32, 250)
    a("s_endpgm")
    a.label("main_ffn")
    if PRIO_FFN:
        a(f"s_setprio {PRIO_FFN}")
    a("s_sub_u32 s69, s2, 256")
    a("s_load_dwordx2 s[10:11], s[0:1], 80")
    stamp_begin(a, "mffn")
    st = {}

    def mid():
        stamp(a, "mffn")
        a("s_setprio 2")
        a("s_barrier")
        a("s_cmp_ge_u32 s69, 224")
        a("s_cbranch_scc1 main_nodn")
        st["K"] = gen_down_setup(a, 69, False, " sc1")
        a.label("main_nodn")
    gen_gateup_body(a, "gu", 69, mid, " sc1")
    K, order = st["K"]
    SD = 72
    srd(a, SD, 10, 256)
    a("s_lshl_b32 s92, s33, 2")
    a("s_lshr_b32 s93, s63, 1")
    a("s_lshl_b32 s93, s93, 2")
    a("s_waitcnt vmcnt(0)")
    a("s_barrier")
    stamp(a, "mffn")
    a("s_cmp_lg_u32 s32, 0")
    a("s_cbranch_scc1 main_polled")
    a(f"v_mov_b32 v{D_T}, 0")
    a(f"v_mov_b32 v{D_T+1}, 1")
    a("s_mov_b64 exec, 1")
    a(f"buffer_atomic_add v{D_T+1}, v{D_T}, s[{SD}:{SD+3}], s92 offen sc1")
    a("s_cmp_ge_u32 s69, 224")
    a("s_cbranch_scc1 main_pdone")
    a.label("main_poll")
    a(f"buffer_load_dword v{D_T+2}, v{D_T}, s[{SD}:{SD+3}], s93 offen sc1")
    a("s_waitcnt vmcnt(0)")
    a(f"v_readfirstlane_b32 s95, v{D_T+2}")
    a("s_cmp_ge_u32 s95, 16")
    a("s_cbranch_scc1 main_pdone")
    a("s_sleep 4")
    a("s_branch main_poll")
    a.label("main_pdone")
    a("s_mov_b64 exec, -1")
    a.label("main_polled")
    a("s_cmp_ge_u32 s69, 224")
    a("s_cbranch_scc1 main_end")
    a("s_barrier")
    stamp(a, "mffn")
    a(f"s_setprio {PRIO_FFN}")
    gen_down_rest(a, K, [("d", s) for s in range(6)])
    stamp_end(a, "mffn", 28, 32, 240, 69)
    a.label("main_end")
    a("s_endpgm")
    return a.finish(), ("main_kernel", 512, 256, 73728, 256 if STAMP else 248)


PRIO_ATTN = int(os.environ.get("PRIO_ATTN", "0"))
PRIO_FFN = int(os.environ.get("PRIO_FFN", "0"))


def gen_final():
    a = Asm()
    a.label("final_kernel")
    s_w, s_rb, s_cb = 32, 63, 64
    SW, SO, SWS = 20, 24, 28
    vLane, vN, vH = 1, 2, 3
    vB, vWo, vXo, vTr = 5, 8, 10, 9
    T = D_T
    a("s_cmp_ge_u32 s2, 224")
    a("s_cbranch_scc1 final_end")
    stamp_begin(a, "final")
    a("s_load_dwordx2 s[6:7], s[0:1], 32")
    a("s_load_dwordx2 s[8:9], s[0:1], 72")
    a("s_load_dwordx2 s[12:13], s[0:1], 88")
    lane_setup(a, T, vLane, vN, vH, s_w)
    tile64_setup(a, 2, s_rb, s_cb)
    a(f"v_lshlrev_b32 v{vB}, 4, v{vLane}")
    a(f"v_lshrrev_b32 v{T}, 2, v{vLane}")
    a(f"v_mul_u32_u24 v{vWo}, 1280, v{T}")
    a(f"v_and_b32 v{T}, 3, v{vLane}")
    a(f"v_lshl_add_u32 v{vWo}, v{T}, 4, v{vWo}")
    a(f"v_mul_u32_u24 v{vXo}, 1280, v{vN}")
    a(f"v_lshl_add_u32 v{vXo}, v{vH}, 3, v{vXo}")
    tr_base(a, vTr, T, vLane, vH, 9)
    a(f"s_mul_i32 s67, s{s_w}, {RING}")
    a(f"v_add_u32 v{vTr}, s67, v{vTr}")
    a(f"s_mul_i32 s66, s{s_w}, {160*1280}")
    a(f"s_mul_i32 s37, s{s_cb}, 192")
    a("s_add_u32 s66, s66, s37")
    a(f"s_mul_i32 s68, s{s_rb}, {2*40*1024}")
    a(f"s_mul_i32 s36, s{s_w}, {10*1024}")
    a("s_add_u32 s68, s68, s36")
    a(f"s_add_u32 s68, s68, {OF}")
    a(f"s_add_u32 s65, s68, {40*1024}")
    a(f"s_mul_i32 s70, s{s_rb}, {64*1280}")
    a("s_add_u32 s70, s70, s37")
    a(f"s_lshl_b32 s36, s{s_w}, 4")
    a("s_add_u32 s70, s70, s36")
    a(f"s_add_u32 s71, s70, {32*1280}")
    a(f"s_mul_i32 s45, s{s_rb}, 40")
    a(f"s_mul_i32 s46, s{s_cb}, 3")
    a("s_add_u32 s45, s45, s46")
    a("s_lshl_b32 s45, s45, 11")
    a(f"s_lshl_b32 s46, s{s_w}, 9")
    a("s_add_u32 s45, s45, s46")
    a(f"s_add_u32 s45, s45, {YF}")
    a(f"v_lshlrev_b32 v{T+4}, 3, v{vLane}")
    a("s_waitcnt lgkmcnt(0)")
    srd(a, SW, 6, 819200)
    srd(a, SO, 8, 2621440)
    srd(a, SWS, 12, WS_END)
    K = TypeK(a, 10, 6, 6, R_ACC, D_AF, D_BF, vTr, 256, vWo, SW, 66, 16 * 1280, 67, vB, SWS, 68, 65)
    order = []
    for s in range(6):
        K.emit(K.bl(s))
        K.emit(K.dma(s))
        order += [("b", s)] * 2 + [("d", s)] * 3
        if s == 2:
            for rt in range(2):
                for ct in range(3):
                    a(f"s_add_u32 s46, s45, {(rt*20+ct)*2048}")
                    a(f"buffer_load_dwordx2 {vr(D_XR+(rt*3+ct)*2,2)}, v{T+4}, s[{SWS}:{SWS+3}], s46 offen")
            order += [("x",)] * 6
    stamp(a, "final")
    K.main(order)
    stamp(a, "final")
    reduce4(a, "fin", R_ACC, D_RES, R_ACC, vB, T, s_w, 67, 0, RING)
    stamp(a, "final")
    a("s_mov_b32 s49, 0xffff0000")
    for ct in range(3):
        if ct == 2:
            a(f"s_cmp_eq_u32 s{s_cb}, 6")
            a("s_cbranch_scc1 final_skip")
        for rt in range(2):
            r = D_RES + (rt * 3 + ct) * 4
            xr = D_XR + (rt * 3 + ct) * 2
            for e in range(2):
                a(f"v_lshlrev_b32 v{T}, 16, v{xr+e}")
                a(f"v_and_b32 v{T+1}, s49, v{xr+e}")
                a(f"v_pk_add_f32 {vr(r+2*e,2)}, {vr(r+2*e,2)}, {vr(T,2)}")
            a(f"v_cvt_pk_bf16_f32 v{r}, v{r}, v{r+1}")
            a(f"v_cvt_pk_bf16_f32 v{r+1}, v{r+2}, v{r+3}")
            a(f"buffer_store_dwordx2 {vr(r,2)}, v{vXo}, s[{SO}:{SO+3}], s{70+rt} offen offset:{ct*64}")
    a.label("final_skip")
    stamp_end(a, "final", SWS, s_w, 240)
    a.label("final_end")
    a("s_endpgm")
    return a.finish(), ("final_kernel", 224, 256, 73728, 256 if STAMP else 232)


def gen_empty():
    a = Asm()
    a.label("empty_kernel")
    a("s_endpgm")
    return a.finish(), ("empty_kernel", 256, 256, 65536, 256)


KERNELS = {"empty": gen_empty, "main": gen_main, "qkv": gen_qkv, "gateup": gen_gateup, "attn": gen_attn, "down": gen_down, "final": gen_final}
HEADER = open("parallel_sum__grouped_kv_mqa__glu_gated_swiglu__prompt.s.ref").read().split("; Override launch")[0] if False else ""


DEFAULT = ["qkv", "main", "final"]


def build(order):
    texts, launches = {}, []
    for k in order:
        t, info = KERNELS[k]()
        texts[info[0]] = (t, info)
        launches.append(info)
    out = "; generated by dev/gen.py -- LN + MQA attention + SwiGLU block for gfx950\n"
    for name, grid, block, lds, vg in launches:
        out += f"; @launch kernel={name} grid=({grid},1,1) block=({block},1,1) lds={lds}\n"
    out += '.amdgcn_target "amdgcn-amd-amdhsa--gfx950"\n.text\n'
    for name, (t, info) in texts.items():
        out += kernel_header(name) + t
    out += '.section .rodata,"a"\n'
    for name, (t, info) in texts.items():
        out += kernel_desc(name, info[4])
    return out


if __name__ == "__main__":
    order = sys.argv[2].split(",") if len(sys.argv) > 2 else DEFAULT
    open(sys.argv[1], "w").write(build(order))
```

```python
import math
import struct
import sys

from asmlib import Asm

XF = 0x0
QF = 0x280000
KF = 0x500000
VF = 0x514000
KN = 0x52A000
CT = 0x52C000
OF = 0x530000
HF = 0x800000
FP = 0x1000000
YF = 0x1000000
WS_END = 0x2500000
TS = 0x2400000
import os
STAMP = os.environ.get("STAMP", "")


_stamp_n = {}


def stamp(a, name, vreg=255):
    if name in STAMP.split(","):
        i = _stamp_n.get(name, 0)
        _stamp_n[name] = i + 1
        a("s_memtime s[100:101]")
        a("s_waitcnt lgkmcnt(0)")
        a(f"v_writelane_b32 v{vreg}, s100, {i}")


def stamp_begin(a, name, vreg=255):
    if name in STAMP.split(","):
        a("s_memrealtime s[98:99]")
        a("s_waitcnt lgkmcnt(0)")
        a(f"v_writelane_b32 v{vreg}, s98, 14")
    stamp(a, name, vreg)


def stamp_end(a, name, sws, s_w, vtmp, s_wg=2, vreg=255):
    if name in STAMP.split(","):
        a("s_waitcnt vmcnt(0) lgkmcnt(0)")
        stamp(a, name, vreg)
        a("s_memrealtime s[98:99]")
        a("s_waitcnt lgkmcnt(0)")
        a(f"v_writelane_b32 v{vreg}, s98, 15")
        a(f"s_lshl_b32 s94, s{s_wg}, 2")
        a(f"s_add_u32 s94, s94, s{s_w}")
        a("s_lshl_b32 s94, s94, 6")
        a(f"s_add_u32 s94, s94, {TS + STAMP.split(',').index(name) * 0x20000}")
        a(f"v_and_b32 v{vtmp}, 63, v0")
        a(f"v_lshlrev_b32 v{vtmp}, 2, v{vtmp}")
        a("s_mov_b64 s[98:99], exec")
        a("s_mov_b64 exec, 0xffff")
        a(f"buffer_store_dword v{vreg}, v{vtmp}, s[{sws}:{sws+3}], s94 offen")
        a("s_mov_b64 exec, s[98:99]")


QSCALE = (20 ** -0.5) * math.log2(math.e)


def f2u(x):
    return struct.unpack("<I", struct.pack("<f", x))[0]


def hx(x):
    return "0x%x" % x


def srd(a, d, base, size):
    a(f"s_mov_b32 s{d}, s{base}")
    a(f"s_and_b32 s{d+1}, s{base+1}, 0xffff")
    a(f"s_mov_b32 s{d+2}, {hx(size)}")
    a(f"s_mov_b32 s{d+3}, 0x00020000")


def vr(b, n=1):
    return f"v{b}" if n == 1 else f"v[{b}:{b+n-1}]"


def mfma32(a, d, x, y, c=None):
    cs = vr(d, 16) if c is None else c
    a(f"v_mfma_f32_32x32x16_bf16 {vr(d,16)}, {vr(x,4)}, {vr(y,4)}, {cs}")


def kernel_header(name):
    return f""".globl {name}
.p2align 8
.type {name},@function
"""


def kernel_desc(name, vgprs, sgprs=102):
    acc = (vgprs + 3) // 4 * 4
    return f""".p2align 6
.amdhsa_kernel {name}
  .amdhsa_next_free_vgpr {vgprs}
  .amdhsa_next_free_sgpr {sgprs}
  .amdhsa_accum_offset {acc}
  .amdhsa_group_segment_fixed_size 0
  .amdhsa_kernarg_size 96
  .amdhsa_user_sgpr_count 2
  .amdhsa_user_sgpr_kernarg_segment_ptr 1
  .amdhsa_system_sgpr_workgroup_id_x 1
.end_amdhsa_kernel
"""


K_X = 16
K_ACC = 96
K_A = 192
K_T = 216
WAVE_LDS = 30720
LDS_STG = 8192


K_R = K_A


def typek_mfma_phase(a, vtr, zero=True, vm_after=None, extra=None):
    def reads(s, buf):
        for ct in range(3):
            o = (3 * s + ct) * 1024
            r = K_A + buf * 12 + ct * 4
            a(f"ds_read_b64_tr_b16 {vr(r,2)}, v{vtr} offset:{o}")
            a(f"ds_read_b64_tr_b16 {vr(r+2,2)}, v{vtr} offset:{o+256}")
    if vm_after:
        a(f"s_waitcnt vmcnt({vm_after(0)})")
    reads(0, 0)
    for s in range(10):
        if s + 1 < 10:
            if vm_after:
                a(f"s_waitcnt vmcnt({vm_after(s+1)})")
            reads(s + 1, (s + 1) & 1)
            a("s_waitcnt lgkmcnt(6)")
        else:
            a("s_waitcnt lgkmcnt(0)")
        ex = list(extra(s)) if extra else []
        n = len(ex)
        k = 0
        for ct in range(3):
            for rt in range(2):
                d = K_ACC + (rt * 3 + ct) * 16
                mfma32(a, d, K_A + (s & 1) * 12 + ct * 4, K_X + rt * 40 + s * 4, "0" if (s == 0 and zero) else None)
                k += 1
                for x in ex[((k - 1) * n) // 6:(k * n) // 6]:
                    a(x)


def reduce4(a, pfx, ACC, RES, TMP, vL16, vT, s_w, s_base, base0, stride, pre_barrier=None, post_reads=None):
    for g in range(4):
        a(f"s_cmp_eq_u32 s{s_w}, {g}")
        a(f"s_cbranch_scc1 {pfx}_rw{g}")
        a(f"s_sub_u32 s90, {g+3}, s{s_w}")
        a("s_and_b32 s90, s90, 3")
        a("s_mul_i32 s90, s90, 6144")
        a(f"s_add_u32 s90, s90, s{s_base}")
        a(f"v_add_u32 v{vT}, s90, v{vL16}")
        for t in range(6):
            a(f"ds_write_b128 v{vT}, {vr(ACC+t*16+g*4,4)} offset:{t*1024}")
        a.label(f"{pfx}_rw{g}")
    if pre_barrier:
        pre_barrier()
    for jj in range(3):
        a(f"s_add_u32 s90, s{s_w}, {jj+1}")
        a("s_and_b32 s90, s90, 3")
        a(f"s_mul_i32 s90, s90, {stride}")
        a(f"s_add_u32 s90, s90, {base0 + (2-jj)*6144}")
        a(f"v_add_u32 v{vT+1+jj}, s90, v{vL16}")
    for g in range(4):
        a(f"s_cmp_lg_u32 s{s_w}, {g}")
        a(f"s_cbranch_scc1 {pfx}_ro{g}")
        for t in range(6):
            for e in range(4):
                a(f"v_mov_b32 v{RES+t*4+e}, v{ACC+t*16+g*4+e}")
        a.label(f"{pfx}_ro{g}")
    a("s_waitcnt lgkmcnt(0)")
    a("s_barrier")
    for jj in range(3):
        for t in range(6):
            a(f"ds_read_b128 {vr(TMP+(jj*6+t)*4,4)}, v{vT+1+jj} offset:{t*1024}")
    n_extra = post_reads() if post_reads else 0
    for jj in range(3):
        a(f"s_waitcnt lgkmcnt({min(15, (2-jj)*6 + n_extra)})")
        for e in range(0, 24, 2):
            a(f"v_pk_add_f32 {vr(RES+e,2)}, {vr(RES+e,2)}, {vr(TMP+jj*24+e,2)}")


class TypeK:
    def __init__(self, a, KS, RD, RB, ACC, AF, BF, vTr, tr2, vWo, SW, s_g, gstep, s_ring, vB, SB, s_b0, s_b1, bmods=""):
        self.__dict__.update(locals())

    def dma(self, s):
        out = []
        for ct in range(3):
            out.append([f"s_add_u32 m0, s{self.s_ring}, {((s % self.RD)*3+ct)*1024}",
                        f"s_add_u32 s91, s{self.s_g}, {s*self.gstep + ct*64}",
                        f"buffer_load_dwordx4 v{self.vWo}, s[{self.SW}:{self.SW+3}], s91 offen lds"])
        return out

    def bl(self, s):
        out = []
        for rt in range(2):
            sb = self.s_b0 if rt == 0 else self.s_b1
            g = []
            if s % 4 == 0 and s:
                g.append(f"s_add_u32 s{sb}, s{sb}, 4096")
            g.append(f"buffer_load_dwordx4 {vr(self.BF+(s%self.RB)*8+rt*4,4)}, v{self.vB}, s[{self.SB}:{self.SB+3}], s{sb} offen offset:{(s%4)*1024}{self.bmods}")
            out.append(g)
        return out

    def emit(self, groups):
        for g in groups:
            for x in g:
                self.a(x)

    def reads(self, s):
        out = []
        for ct in range(3):
            o = ((s % self.RD) * 3 + ct) * 1024
            r = self.AF + (s & 1) * 12 + ct * 4
            out.append(f"ds_read_b64_tr_b16 {vr(r,2)}, v{self.vTr} offset:{o}")
            out.append(f"ds_read_b64_tr_b16 {vr(r+2,2)}, v{self.vTr} offset:{o+self.tr2}")
        return out

    def main(self, order):
        a, KS, RD, RB = self.a, self.KS, self.RD, self.RB
        order = list(order)

        def wait_for(s):
            last = max(i for i, o in enumerate(order) if o in (("d", s), ("b", s)))
            a(f"s_waitcnt vmcnt({min(63, len(order) - 1 - last)})")
        wait_for(0)
        for x in self.reads(0):
            a(x)
        for s in range(KS):
            if s + 1 < KS:
                wait_for(s + 1)
                for x in self.reads(s + 1):
                    a(x)
                a("s_waitcnt lgkmcnt(6)")
            else:
                a("s_waitcnt lgkmcnt(0)")
            dm = self.dma(s + RD) if s + RD < KS else []
            k = 0
            for ct in range(3):
                for rt in range(2):
                    mfma32(a, self.ACC + (rt * 3 + ct) * 16, self.AF + (s & 1) * 12 + ct * 4,
                           self.BF + (s % RB) * 8 + rt * 4, "0" if s == 0 else None)
                    if k % 2 == 0 and dm:
                        self.emit([dm.pop(0)])
                        order.append(("d", s + RD))
                    k += 1
            if s + RB < KS:
                self.emit(self.bl(s + RB))
                order += [("b", s + RB)] * 2


def lane_setup(a, T, vLane, vN, vH, s_w):
    a(f"v_and_b32 v{vLane}, 63, v0")
    a(f"v_lshrrev_b32 v{T}, 6, v0")
    a(f"v_readfirstlane_b32 s{s_w}, v{T}")
    a(f"v_and_b32 v{vN}, 31, v0")
    a(f"v_bfe_u32 v{vH}, v0, 5, 1")


def tr_base(a, vTr, T, vLane, vH, hshift):
    a(f"v_lshlrev_b32 v{vTr}, {hshift}, v{vH}")
    a(f"v_bfe_u32 v{T}, v{vLane}, 2, 2")
    a(f"v_lshl_add_u32 v{vTr}, v{T}, 6, v{vTr}")
    a(f"v_bfe_u32 v{T}, v{vLane}, 4, 1")
    a(f"v_lshl_add_u32 v{vTr}, v{T}, 5, v{vTr}")
    a(f"v_and_b32 v{T}, 3, v{vLane}")
    a(f"v_lshl_add_u32 v{vTr}, v{T}, 3, v{vTr}")


def gen_qkv():
    a = Asm()
    a.label("qkv_kernel")
    ST = 0
    NB = 4096
    MX = 6144
    s_w, s_rb, s_cb = 32, 33, 34
    SX, SWS = 16, 28
    SWT = [72, 76, 80]
    vLane, vN, vH = 1, 2, 3
    vXg, vXr, vTr, vSlab, vRd = 4, 5, 7, 8, 9
    vSt = 11
    vWo = [12, 13, 14]
    vCs = 6
    T = K_T
    XO = 9216
    a("s_cmp_ge_u32 s2, 256")
    a("s_cbranch_scc1 qkv_end")
    stamp_begin(a, "qkv")
    a("s_load_dwordx4 s[4:7], s[0:1], 0")
    a("s_load_dwordx4 s[8:11], s[0:1], 16")
    a("s_load_dwordx2 s[12:13], s[0:1], 88")
    lane_setup(a, T, vLane, vN, vH, s_w)
    a("s_and_b32 s3, s2, 7")
    a("s_lshr_b32 s35, s2, 3")
    a("s_and_b32 s36, s35, 3")
    a("s_lshl_b32 s3, s3, 2")
    a(f"s_add_u32 s{s_rb}, s3, s36")
    a(f"s_lshr_b32 s{s_cb}, s35, 2")
    a(f"v_mul_u32_u24 v{T}, 49, v{vLane}")
    a(f"v_lshrrev_b32 v{T}, 10, v{T}")
    a(f"v_mul_u32_u24 v{T+1}, 21, v{T}")
    a(f"v_sub_u32 v{T+1}, v{vLane}, v{T+1}")
    a(f"v_mul_u32_u24 v{vXg}, 1280, v{T}")
    a(f"v_lshl_add_u32 v{vXg}, v{T+1}, 4, v{vXg}")
    a(f"s_mul_i32 s37, s{s_w}, {WAVE_LDS}")
    a(f"s_add_u32 s37, s37, {LDS_STG}")
    a(f"v_mul_u32_u24 v{vXr}, 336, v{vN}")
    a(f"v_lshl_add_u32 v{vXr}, v{vH}, 4, v{vXr}")
    a(f"v_add_u32 v{vXr}, s37, v{vXr}")
    a(f"s_mul_i32 s39, s{s_rb}, {64*1280}")
    a(f"s_mul_i32 s40, s{s_w}, 320")
    a("s_add_u32 s39, s39, s40")
    a("s_waitcnt lgkmcnt(0)")
    srd(a, SX, 4, 2621440)
    a("s_mov_b32 s52, -1")
    a("s_mov_b32 s53, 0x7fffffff")
    a("s_mov_b64 exec, s[52:53]")
    for jx in range(22):
        if jx == 21:
            a("s_mov_b64 exec, 0x1fffff")
        a(f"s_add_u32 m0, s37, {XO + jx*1008}")
        a(f"s_add_u32 s44, s39, {jx*3840}")
        a(f"buffer_load_dwordx4 v{vXg}, s[{SX}:{SX+3}], s44 offen lds")
    a("s_mov_b64 exec, -1")
    a(f"v_lshrrev_b32 v{T}, 2, v{vLane}")
    a(f"v_and_b32 v{T+1}, 3, v{vLane}")
    a(f"v_lshlrev_b32 v{T+1}, 4, v{T+1}")
    a(f"v_mad_u32_u24 v{T+2}, v{T}, 40, v{T+1}")
    a(f"s_movk_i32 s38, 1280")
    a(f"v_mad_u32_u24 v{T+3}, v{T}, s38, v{T+1}")
    a(f"s_mul_i32 s50, s{s_cb}, 3")
    a(f"s_mul_i32 s41, s{s_w}, {160*1280}")
    a(f"s_mul_i32 s43, s{s_w}, {160*40}")
    for ct in range(3):
        d = SWT[ct]
        a(f"s_add_u32 s51, s50, {ct}")
        a("s_cmp_eq_u32 s51, 21")
        a(f"s_cselect_b32 s{d}, s10, s8")
        a(f"s_cselect_b32 s{d+1}, s11, s9")
        a("s_cmp_lt_u32 s51, 22")
        a(f"s_cselect_b32 s{d+2}, 25600, 0")
        a("s_lshl_b32 s45, s51, 6")
        a("s_add_u32 s45, s45, s41")
        a("s_cmp_lt_u32 s51, 20")
        a(f"s_cselect_b32 s{d}, s6, s{d}")
        a(f"s_cselect_b32 s{d+1}, s7, s{d+1}")
        a(f"s_cselect_b32 s{d+2}, 819200, s{d+2}")
        a(f"s_mov_b32 s{d+3}, 0x00020000")
        a(f"s_cselect_b32 s{84+ct}, s45, s43")
        a(f"s_movk_i32 s{87+ct}, {16*40}")
        a(f"s_cselect_b32 s{87+ct}, {16*1280}, s{87+ct}")
        a("s_cselect_b64 vcc, -1, 0")
        a(f"s_and_b32 s{d+1}, s{d+1}, 0xffff")
        a(f"v_cndmask_b32 v{vWo[ct]}, v{T+2}, v{T+3}, vcc")

    def w_dma(s):
        for ct in range(3):
            a(f"s_add_u32 m0, s37, {(3*s+ct)*1024}")
            a(f"buffer_load_dwordx4 v{vWo[ct]}, s[{SWT[ct]}:{SWT[ct]+3}], s{84+ct} offen lds")
            a(f"s_add_u32 s{84+ct}, s{84+ct}, s{87+ct}")
    for s in range(3):
        w_dma(s)
    srd(a, SWS, 12, WS_END)
    a("s_cmp_lg_u32 s2, 255")
    a("s_cbranch_scc1 qkv_noct")
    a(f"s_cmp_lg_u32 s{s_w}, 3")
    a("s_cbranch_scc1 qkv_noct")
    a(f"v_lshlrev_b32 v{T}, 8, v{vLane}")
    a(f"v_mov_b32 v{T+1}, 0")
    a(f"s_mov_b32 s44, {CT}")
    a("s_mov_b64 exec, 0xffff")
    a(f"buffer_store_dword v{T+1}, v{T}, s[{SWS}:{SWS+3}], s44 offen")
    a("s_mov_b64 exec, -1")
    a("s_waitcnt vmcnt(0)")
    a.label("qkv_noct")
    tr_base(a, vTr, T, vLane, vH, 9)
    a(f"v_add_u32 v{vTr}, s37, v{vTr}")
    a(f"v_lshlrev_b32 v{vSlab}, 4, v{vLane}")
    a(f"s_mul_i32 s38, s{s_w}, 384")
    a(f"v_lshlrev_b32 v{vCs}, 2, v{vN}")
    a(f"v_add_u32 v{vCs}, s38, v{vCs}")
    a(f"v_lshlrev_b32 v{vSt}, 6, v{vN}")
    vOne = T
    SA = T + 2
    a(f"v_mov_b32 v{vOne}, 0x3f803f80")
    for i in range(11):
        a(f"v_mov_b32 v{SA+i}, 0")
    a(f"ds_write_b32 v{SA}, v{SA} offset:{MX}")
    a("s_waitcnt vmcnt(9)")
    stamp(a, "qkv")
    for rt in range(2):
        for s in range(10):
            a(f"ds_read_b128 {vr(K_X+rt*40+s*4,4)}, v{vXr} offset:{XO + rt*10752 + s*32}")
    a("s_waitcnt lgkmcnt(0)")
    xs = []
    for i in range(40):
        for rt in range(2):
            x = K_X + rt * 40 + i
            b = SA + rt * 4 + (i & 1) * 2
            xs.append(f"v_dot2_f32_bf16 v{b}, v{x}, v{vOne}, v{b}")
            xs.append(f"v_dot2_f32_bf16 v{b+1}, v{x}, v{x}, v{b+1}")
    for s in range(3, 10):
        w_dma(s)
        for x in xs[((s - 3) * 160) // 7:((s - 2) * 160) // 7]:
            a(x)
    stamp(a, "qkv")

    def stats(s):
        out = []
        for q in range(4):
            for ct in range(3):
                out.append(f"v_dot2_f32_bf16 v{SA+8+ct}, v{K_A+(s&1)*12+ct*4+q}, v{vOne}, v{SA+8+ct}")
        return out
    typek_mfma_phase(a, vTr, True, lambda s: 3 * (9 - s), stats)
    stamp(a, "qkv")

    CSA = 6400

    def pre_barrier():
        for rt in range(2):
            b = SA + rt * 4
            a(f"v_pk_add_f32 {vr(b,2)}, {vr(b,2)}, {vr(b+2,2)}")
        a(f"v_lshl_add_u32 v{T+14}, v{vH}, 3, v{vSt}")
        a(f"s_lshl_b32 s38, s{s_w}, 4")
        a(f"v_add_u32 v{T+14}, s38, v{T+14}")
        for rt in range(2):
            a(f"ds_write_b64 v{T+14}, {vr(SA+rt*4,2)} offset:{ST + rt*2048}")
        for ct in range(3):
            a(f"v_mov_b32 v{T+16+ct}, v{SA+8+ct}")
        for ct in range(3):
            a(f"v_permlane32_swap_b32 v{SA+8+ct}, v{T+16+ct}")
        for ct in range(3):
            a(f"v_add_f32 v{SA+8+ct}, v{SA+8+ct}, v{T+16+ct}")
            a(f"ds_write_b32 v{vCs}, v{SA+8+ct} offset:{CSA + ct*128}")
        a(f"v_lshlrev_b32 v{vRd}, 4, v{vH}")
        a(f"s_lshl_b32 s38, s{s_w}, 5")
        a(f"v_add_u32 v{vRd}, s38, v{vRd}")
    CS = T + 20
    RR = T + 32
    a(f"s_mov_b32 s45, {hx(f2u(1.0/640))}")
    a(f"s_mov_b32 s46, {hx(f2u(1e-5))}")
    reduce4(a, "qkv", K_ACC, K_R, K_ACC, vSlab, T + 20, s_w, 37, LDS_STG, WAVE_LDS, pre_barrier)
    for jw in range(4):
        for ct in range(3):
            a(f"ds_read_b128 {vr(K_ACC+(jw*3+ct)*4,4)}, v{vRd} offset:{CSA + jw*384 + ct*128}")
    for rt in range(2):
        for q in range(4):
            a(f"ds_read_b128 {vr(K_ACC+48+rt*16+q*4,4)}, v{vSt} offset:{ST + rt*2048 + q*16}")
    a("s_waitcnt lgkmcnt(0)")
    for e in range(0, 12, 2):
        a(f"v_pk_add_f32 {vr(K_ACC+e,2)}, {vr(K_ACC+e,2)}, {vr(K_ACC+12+e,2)}")
        a(f"v_pk_add_f32 {vr(K_ACC+24+e,2)}, {vr(K_ACC+24+e,2)}, {vr(K_ACC+36+e,2)}")
    for e in range(0, 12, 2):
        a(f"v_pk_add_f32 {vr(CS+e,2)}, {vr(K_ACC+e,2)}, {vr(K_ACC+24+e,2)}")
    for rt in range(2):
        b = K_ACC + 48 + rt * 16
        for step in (8, 4, 2):
            for e in range(0, step, 2):
                a(f"v_pk_add_f32 {vr(b+e,2)}, {vr(b+e,2)}, {vr(b+e+step,2)}")
        mu, sq, t0 = b, b + 1, b + 3
        m_b, rr = RR + rt * 2, RR + rt * 2 + 1
        a(f"v_mul_f32 v{mu}, s45, v{mu}")
        a(f"v_mul_f32 v{sq}, s45, v{sq}")
        a(f"v_fma_f32 v{sq}, -v{mu}, v{mu}, v{sq}")
        a(f"v_max_f32 v{sq}, 0, v{sq}")
        a(f"v_cvt_pk_bf16_f32 v{m_b}, v{mu}, v{sq}")
        a(f"v_and_b32 v{t0}, 0xffff0000, v{m_b}")
        a(f"v_lshlrev_b32 v{m_b}, 16, v{m_b}")
        a(f"v_add_f32 v{t0}, s46, v{t0}")
        a(f"v_cvt_pk_bf16_f32 v{t0}, v{t0}, v{t0}")
        a(f"v_lshlrev_b32 v{t0}, 16, v{t0}")
        a(f"v_sqrt_f32 v{t0}, v{t0}")
        a(f"v_cvt_pk_bf16_f32 v{t0}, v{t0}, v{t0}")
        a(f"v_lshlrev_b32 v{t0}, 16, v{t0}")
        a(f"v_rcp_f32 v{rr}, v{t0}")
    for rt in range(2):
        m_b, rr = RR + rt * 2, RR + rt * 2 + 1
        for ct in range(3):
            for e in range(4):
                r = K_R + (rt * 3 + ct) * 4 + e
                a(f"v_fma_f32 v{r}, -v{m_b}, v{CS+ct*4+e}, v{r}")
                a(f"v_mul_f32 v{r}, v{r}, v{rr}")
    stamp(a, "qkv")
    a("s_mov_b32 s47, 0xffff0000")
    a(f"v_lshlrev_b32 v{T}, 4, v{vLane}")
    a(f"s_mul_i32 s39, s{s_rb}, {2*40*1024}")
    a(f"s_mul_i32 s40, s{s_w}, {10*1024}")
    a("s_add_u32 s39, s39, s40")
    for rt in range(2):
        m_b, rr = RR + rt * 2, RR + rt * 2 + 1
        PR = K_ACC + rt * 4
        a(f"v_mov_b32 v{PR}, v{rr}")
        a(f"v_mov_b32 v{PR+1}, v{rr}")
        a(f"v_mul_f32_e64 v{PR+2}, -v{m_b}, v{rr}")
        a(f"v_mov_b32 v{PR+3}, v{PR+2}")
    for c in range(8):
        a(f"s_cmp_lg_u32 s{s_cb}, {c}")
        a(f"s_cbranch_scc1 qkv_xn{c}")
        for f in range(c, 20, 8):
            rt, sx = divmod(f, 10)
            PR = K_ACC + rt * 4
            for q in range(4):
                x = K_X + rt * 40 + sx * 4 + q
                u = K_ACC + 8 + q * 2
                a(f"v_lshlrev_b32 v{u}, 16, v{x}")
                a(f"v_and_b32 v{u+1}, s47, v{x}")
                a(f"v_pk_fma_f32 {vr(u,2)}, {vr(u,2)}, {vr(PR,2)}, {vr(PR+2,2)}")
                a(f"v_cvt_pk_bf16_f32 v{x}, v{u}, v{u+1}")
            a(f"s_add_u32 s44, s39, {XF + rt*40*1024 + sx*1024}")
            a(f"buffer_store_dwordx4 {vr(K_X+rt*40+sx*4,4)}, v{T}, s[{SWS}:{SWS+3}], s44 offen")
        a.label(f"qkv_xn{c}")
    vC0, vHead, vD0, vOff, vA = T, T + 1, T + 2, T + 3, T + 4
    a(f"s_mov_b32 s45, {hx(f2u(QSCALE))}")
    a("s_mov_b32 s46, 3277")
    a(f"s_mul_i32 s38, s{s_cb}, 96")
    a(f"s_lshl_b32 s39, s{s_w}, 3")
    a("s_add_u32 s38, s38, s39")
    a(f"s_mul_i32 s48, s{s_rb}, {2*32*1280}")
    a(f"s_add_u32 s48, s48, {QF}")
    a(f"s_add_u32 s49, s48, {32*1280}")
    a(f"s_mul_i32 s50, s{s_cb}, 3")

    def frag_off(vD0, vOff):
        a(f"v_lshrrev_b32 v{vA}, 3, v{vD0}")
        a(f"v_lshlrev_b32 v{vA}, 9, v{vA}")
        a(f"v_lshl_add_u32 v{vA}, v{vN}, 4, v{vA}")
        a(f"v_and_b32 v{vA+1}, 4, v{vD0}")
        a(f"v_lshl_add_u32 v{vA}, v{vA+1}, 1, v{vA}")
        a(f"v_lshlrev_b32 v{vA+1}, 3, v{vN}")
        a(f"v_add_u32 v{vA+1}, 1024, v{vA+1}")
        a(f"v_cmp_gt_u32 vcc, 16, v{vD0}")
        a(f"v_cndmask_b32 v{vA}, v{vA+1}, v{vA}, vcc")
        a(f"v_add_u32 v{vOff}, v{vOff}, v{vA}")

    for ct in range(3):
        a(f"s_add_u32 s51, s50, {ct}")
        a("s_cmp_ge_u32 s51, 20")
        a(f"s_cbranch_scc1 qkv_notq{ct}")
        a(f"v_lshlrev_b32 v{vC0}, 2, v{vH}")
        a(f"v_add_u32 v{vC0}, s38, v{vC0}")
        if ct:
            a(f"v_add_u32 v{vC0}, {32*ct}, v{vC0}")
        a(f"v_mul_u32_u24 v{vHead}, s46, v{vC0}")
        a(f"v_lshrrev_b32 v{vHead}, 16, v{vHead}")
        a(f"v_mul_u32_u24 v{vD0}, 20, v{vHead}")
        a(f"v_sub_u32 v{vD0}, v{vC0}, v{vD0}")
        a(f"v_mul_u32_u24 v{vOff}, 1280, v{vHead}")
        frag_off(vD0, vOff)
        for rt in range(2):
            r = K_R + (rt * 3 + ct) * 4
            for e in range(4):
                a(f"v_mul_f32 v{r+e}, s45, v{r+e}")
            a(f"v_cvt_pk_bf16_f32 v{r}, v{r}, v{r+1}")
            a(f"v_cvt_pk_bf16_f32 v{r+1}, v{r+2}, v{r+3}")
            a(f"buffer_store_dwordx2 {vr(r,2)}, v{vOff}, s[{SWS}:{SWS+3}], s{48+rt} offen")
        a.label(f"qkv_notq{ct}")
    stamp_end(a, "qkv", SWS, s_w, 240)
    a(f"s_cmp_lt_u32 s{s_cb}, 6")
    a("s_cbranch_scc1 qkv_end")
    P = T + 8
    a(f"s_cmp_eq_u32 s{s_cb}, 7")
    a("s_cbranch_scc1 qkv_mvv")
    for rt in range(2):
        for e in range(4):
            a(f"v_mov_b32 v{P+rt*4+e}, v{K_R+(rt*3+2)*4+e}")
    a("s_branch qkv_mvd")
    a.label("qkv_mvv")
    for rt in range(2):
        for e in range(4):
            a(f"v_mov_b32 v{P+rt*4+e}, v{K_R+(rt*3+0)*4+e}")
    a.label("qkv_mvd")
    a(f"v_lshlrev_b32 v{vD0}, 2, v{vH}")
    a(f"v_add_u32 v{vD0}, s39, v{vD0}")
    a(f"v_cmp_gt_u32 s[52:53], 20, v{vD0}")
    a(f"v_lshlrev_b32 v{vA}, 5, v{vN}")
    a(f"v_add_u32 v{vA}, v{vA}, v{vD0}")
    for rt in range(2):
        q = T + 16 + rt
        a(f"v_mul_f32 v{q}, v{P+rt*4}, v{P+rt*4}")
        for e in range(1, 4):
            a(f"v_fmac_f32 v{q}, v{P+rt*4+e}, v{P+rt*4+e}")
        a(f"v_cndmask_b32 v{q}, 0, v{q}, s[52:53]")
        a(f"ds_write_b32 v{vA}, v{q} offset:{NB + rt*1024}")
    for rt in range(2):
        r = P + rt * 4
        a(f"v_cvt_pk_bf16_f32 v{r}, v{r}, v{r+1}")
        a(f"v_cvt_pk_bf16_f32 v{r+1}, v{r+2}, v{r+3}")
    a("s_mov_b64 s[54:55], exec")
    a("s_and_b64 exec, exec, s[52:53]")
    a("s_cbranch_execz qkv_kvst_done")
    a(f"s_mul_i32 s48, s{s_rb}, {2*1280}")
    a(f"s_cmp_eq_u32 s{s_cb}, 7")
    a("s_cbranch_scc1 qkv_vst")
    a(f"s_add_u32 s48, s48, {KF}")
    a("s_add_u32 s49, s48, 1280")
    a(f"v_mov_b32 v{vOff}, 0")
    frag_off(vD0, vOff)
    for rt in range(2):
        a(f"buffer_store_dwordx2 {vr(P+rt*4,2)}, v{vOff}, s[{SWS}:{SWS+3}], s{48+rt} offen")
    a("s_branch qkv_kvst_done")
    a.label("qkv_vst")
    a(f"s_mul_i32 s48, s{s_rb}, {2*1344}")
    a(f"s_add_u32 s48, s48, {VF}")
    a("s_add_u32 s49, s48, 1344")
    a(f"v_lshrrev_b32 v{vA}, 4, v{vN}")
    a(f"v_lshlrev_b32 v{vA}, 1, v{vA}")
    a(f"v_bfe_u32 v{vA+1}, v{vN}, 2, 1")
    a(f"v_add_u32 v{vA}, v{vA}, v{vA+1}")
    a(f"v_mul_u32_u24 v{vA}, 21, v{vA}")
    a(f"v_add_u32 v{vA}, v{vA}, v{vD0}")
    a(f"v_lshlrev_b32 v{vOff}, 4, v{vA}")
    a(f"v_and_b32 v{vA}, 3, v{vN}")
    a(f"v_lshl_add_u32 v{vOff}, v{vA}, 1, v{vOff}")
    a(f"v_bfe_u32 v{vA}, v{vN}, 3, 1")
    a(f"v_lshl_add_u32 v{vOff}, v{vA}, 3, v{vOff}")
    for rt in range(2):
        r = P + rt * 4
        a(f"buffer_store_short v{r}, v{vOff}, s[{SWS}:{SWS+3}], s{48+rt} offen")
        a(f"buffer_store_short_d16_hi v{r}, v{vOff}, s[{SWS}:{SWS+3}], s{48+rt} offen offset:16")
        a(f"buffer_store_short v{r+1}, v{vOff}, s[{SWS}:{SWS+3}], s{48+rt} offen offset:32")
        a(f"buffer_store_short_d16_hi v{r+1}, v{vOff}, s[{SWS}:{SWS+3}], s{48+rt} offen offset:48")
    a.label("qkv_kvst_done")
    a("s_mov_b64 exec, s[54:55]")
    a(f"s_cmp_lg_u32 s{s_cb}, 7")
    a("s_cbranch_scc1 qkv_noones")
    a(f"s_cmp_lg_u32 s{s_w}, 3")
    a("s_cbranch_scc1 qkv_noones")
    a(f"s_mul_i32 s48, s{s_rb}, {2*1344}")
    a(f"s_add_u32 s48, s48, {VF + 320}")
    a(f"v_mul_u32_u24 v{vOff}, 336, v{vLane}")
    for e in range(4):
        a(f"v_mov_b32 v{P+e}, 0x3f803f80")
    a("s_mov_b64 exec, 0xff")
    a(f"buffer_store_dwordx4 {vr(P,4)}, v{vOff}, s[{SWS}:{SWS+3}], s48 offen")
    a("s_mov_b64 exec, s[54:55]")
    a.label("qkv_noones")
    a("s_waitcnt lgkmcnt(0)")
    a("s_barrier")
    a(f"s_cmp_lg_u32 s{s_w}, 0")
    a("s_cbranch_scc1 qkv_end")
    a(f"v_lshlrev_b32 v{vA}, 5, v{vLane}")
    a(f"ds_read_b128 {vr(P,4)}, v{vA} offset:{NB}")
    a(f"ds_read_b128 {vr(P+4,4)}, v{vA} offset:{NB+16}")
    a("s_waitcnt lgkmcnt(0)")
    for e in range(1, 8):
        a(f"v_add_f32 v{P}, v{P}, v{P+e}")
    a(f"v_mov_b32 v{vA}, 0")
    a(f"ds_max_u32 v{vA}, v{P} offset:{MX}")
    a("s_waitcnt lgkmcnt(0)")
    a(f"ds_read_b32 v{P}, v{vA} offset:{MX}")
    a(f"s_sub_u32 s48, s{s_cb}, 6")
    a("s_lshl_b32 s48, s48, 5")
    a(f"s_add_u32 s48, s48, s{s_rb}")
    a("s_lshl_b32 s48, s48, 2")
    a(f"s_add_u32 s48, s48, {KN}")
    a("s_waitcnt lgkmcnt(0)")
    a(f"buffer_store_dword v{P}, v{vA}, s[{SWS}:{SWS+3}], s48 offen")
    a.label("qkv_end")
    a("s_endpgm")
    return a.finish(), ("qkv_kernel", 256, 256, 131072, 256)


A_Q, A_O, A_S, A_P, A_K, A_V, A_M = 16, 48, 112, 144, 160, 192, 224
A_T = 228
NSET = 4
OOB = 0x80000000


def gen_attn_body(a, pfx, s_wg):
    s_w, s_rt, s_kh, s_hd = 32, 33, 34, 35
    SWS = 28
    vLane, vN, vH = 1, 2, 3
    vK1, vK2, vV = 4, 5, 6
    T = A_T
    a("s_load_dwordx2 s[12:13], s[0:1], 88")
    lane_setup(a, T, vLane, vN, vH, s_w)
    a(f"s_and_b32 s3, s{s_wg}, 7")
    a(f"s_lshr_b32 s36, s{s_wg}, 5")
    a("s_lshl_b32 s3, s3, 3")
    a(f"s_add_u32 s{s_rt}, s3, s36")
    a(f"s_bfe_u32 s3, s{s_wg}, 0x20003")
    a(f"s_and_b32 s{s_kh}, s{s_w}, 1")
    a(f"s_lshr_b32 s36, s{s_w}, 1")
    a("s_lshl_b32 s3, s3, 3")
    a("s_lshl_b32 s36, s36, 2")
    a(f"s_add_u32 s{s_hd}, s3, s36")
    a(f"v_lshlrev_b32 v{vK1}, 4, v{vLane}")
    a(f"v_lshlrev_b32 v{vK2}, 3, v{vN}")
    a(f"v_add_u32 v{vK2}, 1024, v{vK2}")
    a(f"v_mov_b32 v{T}, {hx(OOB)}")
    a(f"v_cmp_eq_u32 vcc, 0, v{vH}")
    a(f"v_cndmask_b32 v{vK2}, v{T}, v{vK2}, vcc")
    a(f"v_mul_u32_u24 v{vV}, 21, v{vH}")
    a(f"v_add_u32 v{vV}, v{vV}, v{vN}")
    a(f"v_lshlrev_b32 v{vV}, 4, v{vV}")
    a(f"v_cmp_gt_u32 vcc, 21, v{vN}")
    a(f"v_cndmask_b32 v{vV}, v{T}, v{vV}, vcc")
    a("s_waitcnt lgkmcnt(0)")
    srd(a, SWS, 12, WS_END)
    a(f"s_add_u32 s12, s12, {KN}")
    a("s_addc_u32 s13, s13, 0")
    a("s_load_dwordx16 s[64:79], s[12:13], 0")
    a("s_load_dwordx16 s[80:95], s[12:13], 64")
    a("s_load_dwordx16 s[44:59], s[12:13], 128")
    a(f"s_lshl_b32 s36, s{s_rt}, 5")
    a(f"s_add_u32 s36, s36, s{s_hd}")
    a("s_mul_i32 s36, s36, 1280")
    a(f"s_add_u32 s36, s36, {QF}")
    for i in range(4):
        a(f"buffer_load_dwordx4 {vr(A_Q+8*i,4)}, v{vK1}, s[{SWS}:{SWS+3}], s36 offen")
        a(f"buffer_load_dwordx2 {vr(A_Q+8*i+4,2)}, v{vK2}, s[{SWS}:{SWS+3}], s36 offen")
        if i < 3:
            a("s_add_u32 s36, s36, 1280")
    s_kp, s_vp = 37, 38
    a(f"s_mul_i32 s{s_kp}, s{s_kh}, {32*1280}")
    a(f"s_add_u32 s{s_kp}, s{s_kp}, {KF}")
    a(f"s_mul_i32 s{s_vp}, s{s_kh}, {32*1344}")
    a(f"s_add_u32 s{s_vp}, s{s_vp}, {VF}")

    def loadK(st):
        a(f"buffer_load_dwordx4 {vr(A_K+8*st,4)}, v{vK1}, s[{SWS}:{SWS+3}], s{s_kp} offen")
        a(f"buffer_load_dwordx2 {vr(A_K+8*st+4,2)}, v{vK2}, s[{SWS}:{SWS+3}], s{s_kp} offen")
        a(f"s_add_u32 s{s_kp}, s{s_kp}, 1280")

    def loadV(st):
        a(f"buffer_load_dwordx4 {vr(A_V+8*st,4)}, v{vV}, s[{SWS}:{SWS+3}], s{s_vp} offen")
        a(f"buffer_load_dwordx4 {vr(A_V+8*st+4,4)}, v{vV}, s[{SWS}:{SWS+3}], s{s_vp} offen offset:672")
        a(f"s_add_u32 s{s_vp}, s{s_vp}, 1344")
    for st in range(NSET - 1):
        loadK(st)
        loadV(st)
    loadK(NSET - 1)
    for i in range(4):
        a(f"v_mov_b32 v{A_Q+8*i+6}, 0")
        a(f"v_mov_b32 v{A_Q+8*i+7}, 0")
    for st in range(NSET):
        a(f"v_mov_b32 v{A_K+8*st+6}, 0")
        a(f"v_mov_b32 v{A_K+8*st+7}, 0")
    for r in range(64):
        a(f"v_mov_b32 v{A_O+r}, 0")
    for r in range(16):
        a(f"v_mov_b32 v{A_P+r}, 0")
    for r in range(8):
        a(f"v_mov_b32 v{A_V+8*(NSET-1)+r}, 0")
    for r in range(4):
        a(f"v_mov_b32 v{A_M+r}, 0")
    a("s_waitcnt lgkmcnt(0)")
    for r in range(65, 96):
        a(f"s_max_u32 s64, s64, s{r}")
    for r in range(45, 60):
        a(f"s_max_u32 s44, s44, s{r}")
    a("s_load_dwordx16 s[80:95], s[12:13], 192")
    a("s_waitcnt lgkmcnt(0)")
    for r in range(80, 96):
        a(f"s_max_u32 s44, s44, s{r}")
    a(f"s_waitcnt vmcnt({4*NSET-2})")
    for i in range(4):
        a(f"v_mov_b32 v{T+i}, 0")
    for r in range(6):
        for i in range(4):
            a(f"v_dot2_f32_bf16 v{T+i}, v{A_Q+8*i+r}, v{A_Q+8*i+r}, v{T+i}")
    for i in range(4):
        a(f"v_mov_b32 v{T+4+i}, v{T+i}")
    for i in range(4):
        a(f"v_permlane32_swap_b32 v{T+i}, v{T+4+i}")
    for i in range(4):
        a(f"v_add_f32 v{T+i}, v{T+i}, v{T+4+i}")
    a(f"v_max3_f32 v{T}, v{T}, v{T+1}, v{T+2}")
    a(f"v_max_f32 v{T}, v{T}, v{T+3}")
    a(f"v_mul_f32 v{T}, s64, v{T}")
    a(f"v_mov_b32 v{T+1}, {hx(f2u(3600.0/1.05))}")
    a(f"v_cmp_nle_f32 vcc, v{T}, v{T+1}")
    a(f"s_cmp_gt_u32 s44, {hx(f2u(2.0**80))}")
    a(f"s_cbranch_scc1 {pfx}_slow")
    a(f"s_cbranch_vccnz {pfx}_slow")

    def qk(m, sb, ks, i):
        if m == 0:
            mfma32(a, A_S + 16 * sb, A_K + 8 * ks, A_Q + 8 * i, "0")
        else:
            mfma32(a, A_S + 16 * sb, A_K + 8 * ks + 4, A_Q + 8 * i + 4)

    def pv(m, pb, vs, i):
        mfma32(a, A_O + 16 * i, A_V + 8 * vs + 4 * m, A_P + 8 * pb + 4 * m)

    a(f"s_waitcnt vmcnt({4*NSET-4})")
    qk(0, 0, 0, 0)
    qk(1, 0, 0, 0)
    stamp(a, "attn")
    a(f"s_mov_b32 s39, {32//NSET}")
    a("s_nop 10")
    a.raw(".p2align 6")
    a.label(f"{pfx}_loop")
    for kk in range(NSET):
        for i in range(4):
            cur = i & 1
            S = A_S + 16 * cur
            P = A_P + 8 * cur
            nks, ni = (kk, i + 1) if i < 3 else ((kk + 1) % NSET, 0)
            pvs, pi = (kk, i - 1) if i > 0 else ((kk - 1) % NSET, 3)
            if i in (1, 3) and not os.environ.get("NOWAIT"):
                a(f"s_waitcnt vmcnt({4*NSET-6})")
            qk(0, cur ^ 1, nks, ni)
            for e in range(0, 4):
                a(f"v_exp_f32 v{S+e}, v{S+e}")
            qk(1, cur ^ 1, nks, ni)
            if i == 1 and not os.environ.get("NOKV"):
                loadV((kk - 1) % NSET)
            if i == 3 and not os.environ.get("NOKV"):
                loadK(kk)
            for e in range(4, 8):
                a(f"v_exp_f32 v{S+e}, v{S+e}")
            pv(0, cur ^ 1, pvs, pi)
            for e in range(8, 12):
                a(f"v_exp_f32 v{S+e}, v{S+e}")
            for j in range(0, 2):
                a(f"v_cvt_pk_bf16_f32 v{P+j}, v{S+2*j}, v{S+2*j+1}")
            pv(1, cur ^ 1, pvs, pi)
            for e in range(12, 16):
                a(f"v_exp_f32 v{S+e}, v{S+e}")
            for j in range(2, 8):
                a(f"v_cvt_pk_bf16_f32 v{P+j}, v{S+2*j}, v{S+2*j+1}")
    a("s_sub_u32 s39, s39, 1")
    a("s_cmp_lg_u32 s39, 0")
    a(f"s_cbranch_scc1 {pfx}_loop")
    pv(0, 1, NSET - 1, 3)
    pv(1, 1, NSET - 1, 3)
    stamp(a, "attn")
    a(f"s_branch {pfx}_epi")

    a.label(f"{pfx}_slow")
    for r in range(4):
        a(f"v_mov_b32 v{A_M+r}, {hx(f2u(-1e30))}")
    a("s_mov_b32 s39, 32")
    a(f"s_sub_u32 s{s_kp}, s{s_kp}, {1280*(NSET-1)}")
    a(f"s_sub_u32 s{s_vp}, s{s_vp}, {1344*(NSET-2)}")
    a.label(f"{pfx}_sloop")
    a("s_waitcnt vmcnt(0)")
    for i in range(4):
        S, P, M = A_S, A_P, A_M + i
        qk(0, 0, 0, i)
        qk(1, 0, 0, i)
        a(f"v_max3_f32 v{T}, v{S}, v{S+1}, v{S+2}")
        for e in range(3, 15, 2):
            a(f"v_max3_f32 v{T}, v{T}, v{S+e}, v{S+e+1}")
        a(f"v_max_f32 v{T}, v{T}, v{S+15}")
        a(f"v_mov_b32 v{T+1}, v{T}")
        a(f"v_permlane32_swap_b32 v{T}, v{T+1}")
        a(f"v_max3_f32 v{T}, v{T}, v{T+1}, v{M}")
        a(f"v_sub_f32 v{T+1}, v{M}, v{T}")
        a(f"v_exp_f32 v{T+1}, v{T+1}")
        a(f"v_mov_b32 v{M}, v{T}")
        for e in range(16):
            a(f"v_sub_f32 v{S+e}, v{S+e}, v{T}")
            a(f"v_exp_f32 v{S+e}, v{S+e}")
        for j in range(8):
            a(f"v_cvt_pk_bf16_f32 v{P+j}, v{S+2*j}, v{S+2*j+1}")
        for e in range(16):
            a(f"v_mul_f32 v{A_O+16*i+e}, v{A_O+16*i+e}, v{T+1}")
        pv(0, 0, 0, i)
        pv(1, 0, 0, i)
    loadK(0)
    loadV(0)
    a("s_sub_u32 s39, s39, 1")
    a("s_cmp_lg_u32 s39, 0")
    a(f"s_cbranch_scc1 {pfx}_sloop")

    a.label(f"{pfx}_epi")
    a("s_waitcnt vmcnt(0)")
    vW, vR = T, T + 1
    a(f"s_mul_i32 s40, s{s_w}, 6656")
    a(f"s_xor_b32 s41, s{s_w}, 1")
    a("s_mul_i32 s41, s41, 6656")
    a(f"v_add_u32 v{vW}, s40, v{vK1}")
    a(f"v_add_u32 v{vR}, s41, v{vK1}")
    a(f"v_lshlrev_b32 v{T+2}, 2, v{vLane}")
    a(f"v_add_u32 v{T+3}, s41, v{T+2}")
    a(f"v_add_u32 v{T+2}, s40, v{T+2}")
    a(f"s_cmp_eq_u32 s{s_kh}, 0")
    a(f"s_cbranch_scc1 {pfx}_e0")
    for t in range(2):
        for q in range(3):
            a(f"ds_write_b128 v{vW}, {vr(A_O+16*t+4*q,4)} offset:{(t*3+q)*1024}")
        a(f"ds_write_b32 v{T+2}, v{A_M+t} offset:{6144+t*256}")
    a("s_waitcnt lgkmcnt(0)")
    for t in range(2):
        for e in range(12):
            a(f"v_mov_b32 v{A_O+16*t+e}, v{A_O+16*(t+2)+e}")
        a(f"v_mov_b32 v{A_M+t}, v{A_M+t+2}")
    a(f"s_add_u32 s{s_hd}, s{s_hd}, 2")
    a(f"s_branch {pfx}_e1")
    a.label(f"{pfx}_e0")
    for t in range(2):
        for q in range(3):
            a(f"ds_write_b128 v{vW}, {vr(A_O+16*(t+2)+4*q,4)} offset:{(t*3+q)*1024}")
        a(f"ds_write_b32 v{T+2}, v{A_M+t+2} offset:{6144+t*256}")
    a("s_waitcnt lgkmcnt(0)")
    a.label(f"{pfx}_e1")
    a("s_barrier")
    for t in range(2):
        for q in range(3):
            a(f"ds_read_b128 {vr(A_S+16*t+4*q,4)}, v{vR} offset:{(t*3+q)*1024}")
        a(f"ds_read_b32 v{A_M+2+t}, v{T+3} offset:{6144+t*256}")
    a("s_waitcnt lgkmcnt(0)")
    a(f"s_mul_i32 s40, s{s_rt}, {40*1024}")
    a(f"s_add_u32 s40, s40, {OF}")
    a(f"v_mov_b32 v{T+12}, {hx(OOB)}")
    a(f"v_cmp_eq_u32 s[42:43], 0, v{vH}")
    for t in range(2):
        O, Pz, Ma, Mp = A_O + 16 * t, A_S + 16 * t, A_M + t, A_M + 2 + t
        a(f"v_max_f32 v{T+4}, v{Ma}, v{Mp}")
        a(f"v_sub_f32 v{T+5}, v{Ma}, v{T+4}")
        a(f"v_sub_f32 v{T+6}, v{Mp}, v{T+4}")
        a(f"v_exp_f32 v{T+5}, v{T+5}")
        a(f"v_exp_f32 v{T+6}, v{T+6}")
        for e in range(12):
            a(f"v_mul_f32 v{O+e}, v{O+e}, v{T+5}")
            a(f"v_fmac_f32 v{O+e}, v{Pz+e}, v{T+6}")
        a(f"v_mov_b32 v{T+7}, v{O+8}")
        a(f"v_mov_b32 v{T+8}, v{O+8}")
        a(f"v_permlane32_swap_b32 v{T+7}, v{T+8}")
        a(f"v_rcp_f32 v{T+8}, v{T+8}")
        for e in range(12):
            a(f"v_mul_f32 v{O+e}, v{O+e}, v{T+8}")
        for q in range(3):
            a(f"v_cvt_pk_bf16_f32 v{O+4*q}, v{O+4*q}, v{O+4*q+1}")
            a(f"v_cvt_pk_bf16_f32 v{O+4*q+1}, v{O+4*q+2}, v{O+4*q+3}")
        a(f"s_add_u32 s41, s{s_hd}, {t}")
        a("s_mul_i32 s41, s41, 20")
        for q in range(3):
            k, off = T + 9, T + 10
            a(f"v_lshlrev_b32 v{k}, 2, v{vH}")
            a(f"v_add_u32 v{k}, s41, v{k}")
            if q:
                a(f"v_add_u32 v{k}, {8*q}, v{k}")
            a(f"v_lshrrev_b32 v{off}, 3, v{k}")
            a(f"v_lshlrev_b32 v{off}, 9, v{off}")
            a(f"v_lshl_add_u32 v{off}, v{vN}, 4, v{off}")
            a(f"v_and_b32 v{k}, 4, v{k}")
            a(f"v_lshl_add_u32 v{off}, v{k}, 1, v{off}")
            if q == 2:
                a(f"v_cndmask_b32 v{off}, v{T+12}, v{off}, s[42:43]")
            a(f"buffer_store_dwordx2 {vr(O+4*q,2)}, v{off}, s[{SWS}:{SWS+3}], s40 offen")


def gen_attn():
    a = Asm()
    a.label("attn_kernel")
    a("s_cmp_ge_u32 s2, 256")
    a("s_cbranch_scc1 attn_end")
    stamp_begin(a, "attn")
    gen_attn_body(a, "attn", 2)
    stamp_end(a, "attn", 28, 32, 250)
    a.label("attn_end")
    a("s_endpgm")
    return a.finish(), ("attn_kernel", 256, 256, 26624, 256 if STAMP else 248)


R_ACC, R_A, R_B, R_T = 16, 112, 160, 208


class TypeR:
    def __init__(self, a, pfx, NT, NS, vTr, vWo, vB, s_w, srd_of_tile, goff, s_bp, SWS, tr2, bmods=""):
        self.__dict__.update(locals())
        self.SLOT = 4 * NT * 1024
        self.sname = {"gu": "gateup", "dn": "down"}[pfx[:2]]
        self.s_m = 60
        self.per = NT + 4

    def dma_ops(self, stage):
        slot = stage % 3
        s_g0, s_g1, gstep = self.goff
        out = []
        for t in range(self.NT):
            sr, grp, tt = self.srd_of_tile(t)
            out.append([f"s_add_u32 m0, s{self.s_m}, {slot*self.SLOT + t*1024}",
                        f"s_add_u32 s61, s{s_g0 if grp == 0 else s_g1}, {stage*gstep + tt*64}",
                        f"buffer_load_dwordx4 v{self.vWo}, s[{sr}:{sr+3}], s61 offen lds"])
        return out

    def b_ops(self, stage):
        slot = stage % 3
        bl = []
        for j in range(4):
            g = []
            if j == 0:
                g.append(f"s_add_u32 s62, s{self.s_bp}, {stage*4096}")
            g.append(f"buffer_load_dwordx4 {vr(R_B+slot*16+j*4,4)}, v{self.vB}, s[{self.SWS}:{self.SWS+3}], s62 offen offset:{j*1024}{self.bmods}")
            bl.append(g)
        return bl

    def vm_ops(self, stage):
        out, bl, res = self.dma_ops(stage), self.b_ops(stage), []
        while out or bl:
            if out:
                res.append(out.pop(0))
            if bl and len(res) > 1:
                res.append(bl.pop(0))
        return res

    def emit(self, groups):
        for g in groups:
            for x in g:
                self.a(x)

    def reads(self, stage, j):
        buf = (stage * 4 + j) & 1
        slot = stage % 3
        base = (slot & 1) * self.SLOT + j * self.NT * 1024
        va = self.vTr + (slot >> 1)
        out = []
        for t in range(self.NT):
            r = R_A + buf * 24 + t * 4
            out.append(f"ds_read_b64_tr_b16 {vr(r,2)}, v{va} offset:{base + t*1024}")
            out.append(f"ds_read_b64_tr_b16 {vr(r+2,2)}, v{va} offset:{base + t*1024 + self.tr2}")
        return out

    def mf(self, stage, j, t):
        buf = (stage * 4 + j) & 1
        first = stage == 0 and j == 0
        mfma32(self.a, R_ACC + 16 * t, R_A + buf * 24 + t * 4, R_B + (stage % 3) * 16 + j * 4, "0" if first else None)

    def setup(self):
        a = self.a
        a(f"s_mul_i32 s{self.s_m}, s{self.s_w}, {self.NT*1024}")
        a(f"v_add_u32 v{self.vTr+1}, {2*self.SLOT}, v{self.vTr}")

    def main(self, first_wait):
        a, NT, NS = self.a, self.NT, self.NS
        stamp(a, self.sname)
        a(f"s_waitcnt vmcnt({first_wait})")
        a("s_barrier")
        stamp(a, self.sname)
        for x in self.reads(0, 0):
            a(x)
        for i in range(NS):
            if i in (1, 2, 4):
                stamp(a, self.sname)
            ops = self.vm_ops(i + 2) if i + 2 < NS else []
            nslots = 3 * NT
            place = {}
            for k, g in enumerate(ops):
                place[(k * nslots) // len(ops)] = g
            for j in range(3):
                rd = self.reads(i, j + 1)
                for t in range(NT):
                    a(f"s_waitcnt lgkmcnt({2*(NT-1)})")
                    self.mf(i, j, t)
                    a(rd[2 * t])
                    a(rd[2 * t + 1])
                    if j * NT + t in place:
                        self.emit([place[j * NT + t]])
            last = i + 1 == NS
            H = NT if last else (NT + 1) // 2
            for t in range(H):
                a(f"s_waitcnt lgkmcnt({2*(NT-1-t)})")
                self.mf(i, 3, t)
            if not last:
                a(f"s_waitcnt vmcnt({self.per if ops else 0}) lgkmcnt(0)")
                a("s_barrier")
                rd = self.reads(i + 1, 0)
                n = NT - H
                for k, t in enumerate(range(H, NT)):
                    self.mf(i, 3, t)
                    for x in rd[(k * len(rd)) // n:((k + 1) * len(rd)) // n]:
                        a(x)


def gen_gateup_body(a, pfx, s_wg, mid_hook=None, smods=''):
    s_w, s_rb, s_cb = 32, 33, 34
    SW1, SW3, SWS = 16, 20, 28
    vLane, vN, vH, vWo, vB, vTr = 1, 2, 3, 4, 5, 6
    T = R_T
    a("s_load_dwordx4 s[4:7], s[0:1], 48")
    a("s_load_dwordx2 s[12:13], s[0:1], 88")
    lane_setup(a, T, vLane, vN, vH, s_w)
    a(f"s_and_b32 s3, s{s_wg}, 7")
    a(f"s_lshr_b32 s35, s{s_wg}, 3")
    a("s_and_b32 s36, s3, 1")
    a("s_lshl_b32 s36, s36, 3")
    a("s_and_b32 s37, s35, 7")
    a(f"s_add_u32 s{s_rb}, s36, s37")
    a("s_lshr_b32 s36, s3, 1")
    a("s_lshl_b32 s36, s36, 2")
    a("s_lshr_b32 s37, s35, 3")
    a(f"s_add_u32 s{s_cb}, s36, s37")
    a(f"v_lshrrev_b32 v{T}, 2, v{vLane}")
    a(f"v_mul_u32_u24 v{vWo}, 3072, v{T}")
    a(f"v_and_b32 v{T}, 3, v{vLane}")
    a(f"v_lshl_add_u32 v{vWo}, v{T}, 4, v{vWo}")
    tr_base(a, vTr, T, vLane, vH, 9)
    a(f"v_lshlrev_b32 v{vB}, 4, v{vLane}")
    a(f"s_mul_i32 s40, s{s_w}, {16*3072}")
    a(f"s_mul_i32 s41, s{s_cb}, 192")
    a("s_add_u32 s40, s40, s41")
    a(f"s_lshl_b32 s42, s{s_rb}, 2")
    a(f"s_add_u32 s42, s42, s{s_w}")
    a(f"s_mul_i32 s43, s42, {40*1024}")
    if XF:
        a(f"s_add_u32 s43, s43, {XF}")
    a("s_waitcnt lgkmcnt(0)")
    srd(a, SW1, 4, 1966080)
    srd(a, SW3, 6, 1966080)
    srd(a, SWS, 12, WS_END)
    R = TypeR(a, pfx, 6, 10, vTr, vWo, vB, s_w,
              lambda t: (SW1, 0, t) if t < 3 else (SW3, 0, t - 3), (40, 40, 64 * 3072), 43, SWS, 256)
    R.setup()
    R.emit(R.vm_ops(0) + R.vm_ops(1))
    R.main(R.per)
    if mid_hook:
        mid_hook()
    stamp(a, "gateup")
    a(f"s_mov_b32 s44, {hx(f2u(-math.log2(math.e)))}")
    a(f"s_mul_i32 s45, s42, {96*1024}")
    a(f"s_mul_i32 s46, s{s_cb}, {6*1024}")
    a("s_add_u32 s45, s45, s46")
    a(f"s_add_u32 s45, s45, {HF}")
    a(f"v_mov_b32 v{T}, s44")
    a(f"v_mov_b32 v{T+1}, s44")
    a(f"v_mov_b32 v{T+2}, 1.0")
    a(f"v_mov_b32 v{T+3}, 1.0")
    for t in range(3):
        g, u = R_ACC + 16 * t, R_ACC + 16 * (t + 3)
        E = R_A
        for e in range(0, 16, 2):
            a(f"v_pk_mul_f32 {vr(E+e,2)}, {vr(g+e,2)}, {vr(T,2)}")
        for e in range(16):
            a(f"v_exp_f32 v{E+e}, v{E+e}")
        for e in range(0, 16, 2):
            a(f"v_pk_add_f32 {vr(E+e,2)}, {vr(E+e,2)}, {vr(T+2,2)}")
        for e in range(16):
            a(f"v_rcp_f32 v{E+e}, v{E+e}")
        for e in range(0, 16, 2):
            a(f"v_pk_mul_f32 {vr(g+e,2)}, {vr(g+e,2)}, {vr(u+e,2)}")
        for e in range(0, 16, 2):
            a(f"v_pk_mul_f32 {vr(g+e,2)}, {vr(g+e,2)}, {vr(E+e,2)}")
        for j in range(8):
            a(f"v_cvt_pk_bf16_f32 v{u+j}, v{g+2*j}, v{g+2*j+1}")
        for hf in range(2):
            o = (2 * t + hf) * 1024
            if o < 4096:
                a(f"buffer_store_dwordx4 {vr(u+4*hf,4)}, v{vB}, s[{SWS}:{SWS+3}], s45 offen offset:{o}{smods}")
            else:
                a(f"s_add_u32 s46, s45, {o}")
                a(f"buffer_store_dwordx4 {vr(u+4*hf,4)}, v{vB}, s[{SWS}:{SWS+3}], s46 offen{smods}")


def gen_gateup():
    a = Asm()
    a.label("gateup_kernel")
    a("s_cmp_ge_u32 s2, 256")
    a("s_cbranch_scc1 gateup_end")
    stamp_begin(a, "gateup")
    gen_gateup_body(a, "gu", 2)
    stamp_end(a, "gateup", 28, 32, 240)
    a.label("gateup_end")
    a("s_endpgm")
    return a.finish(), ("gateup_kernel", 256, 256, 73728, 256 if STAMP else 216)


D_AF, D_BF, D_RES, D_XR, D_T = 112, 136, 184, 212, 224
RING = 18432


def tile64_setup(a, s_wg, s_rb, s_cb):
    a(f"s_and_b32 s3, s{s_wg}, 7")
    a("s_lshl_b32 s3, s3, 2")
    a(f"s_bfe_u32 s36, s{s_wg}, 0x20003")
    a(f"s_add_u32 s{s_rb}, s3, s36")
    a(f"s_lshr_b32 s{s_cb}, s{s_wg}, 5")


def gen_down_setup(a, s_wg, standalone, bmods=""):
    s_w = 32
    s_rb, s_cb = 63, 64
    SW, SWS, SX = 24, 28, 76
    vLane, vN, vH, vWo, vB, vTr, vXo = 1, 2, 3, 8, 5, 9, 10
    T = D_T
    a("s_load_dwordx2 s[8:9], s[0:1], 64")
    a("s_load_dwordx2 s[14:15], s[0:1], 0")
    if standalone:
        a("s_load_dwordx2 s[12:13], s[0:1], 88")
        lane_setup(a, T, vLane, vN, vH, s_w)
        a(f"v_lshlrev_b32 v{vB}, 4, v{vLane}")
    tile64_setup(a, s_wg, s_rb, s_cb)
    a(f"v_lshrrev_b32 v{T}, 2, v{vLane}")
    a(f"v_mul_u32_u24 v{vWo}, 1280, v{T}")
    a(f"v_and_b32 v{T}, 3, v{vLane}")
    a(f"v_lshl_add_u32 v{vWo}, v{T}, 4, v{vWo}")
    tr_base(a, vTr, T, vLane, vH, 8)
    a(f"s_mul_i32 s67, s{s_w}, {RING}")
    a(f"v_add_u32 v{vTr}, s67, v{vTr}")
    a(f"v_mul_u32_u24 v{vXo}, 1280, v{vN}")
    a(f"v_lshl_add_u32 v{vXo}, v{vH}, 3, v{vXo}")
    a(f"s_mul_i32 s66, s{s_w}, {384*1280}")
    a(f"s_mul_i32 s37, s{s_cb}, 192")
    a("s_add_u32 s66, s66, s37")
    a(f"s_mul_i32 s68, s{s_rb}, {2*96*1024}")
    a(f"s_mul_i32 s36, s{s_w}, {24*1024}")
    a("s_add_u32 s68, s68, s36")
    a(f"s_add_u32 s68, s68, {HF}")
    a(f"s_add_u32 s65, s68, {96*1024}")
    a(f"s_mul_i32 s70, s{s_rb}, {64*1280}")
    a("s_add_u32 s70, s70, s37")
    a(f"s_lshl_b32 s36, s{s_w}, 4")
    a("s_add_u32 s70, s70, s36")
    a(f"s_add_u32 s71, s70, {32*1280}")
    a("s_waitcnt lgkmcnt(0)")
    srd(a, SW, 8, 1966080)
    srd(a, SX, 14, 2621440)
    if standalone:
        srd(a, SWS, 12, WS_END)
    K = TypeK(a, 24, 6, 6, R_ACC, D_AF, D_BF, vTr, 512, vWo, SW, 66, 16 * 1280, 67, vB, SWS, 68, 65, bmods)
    for rt in range(2):
        for ct in range(3):
            a(f"buffer_load_dwordx2 {vr(D_XR+(rt*3+ct)*2,2)}, v{vXo}, s[{SX}:{SX+3}], s{70+rt} offen offset:{ct*64}")
    order = [("x",)] * 6
    for s in range(6):
        K.emit(K.dma(s))
        order += [("d", s)] * 3
    return K, order


def gen_down_rest(a, K, order):
    s_w, s_rb, s_cb, SWS, vB, vLane = 32, 63, 64, 28, 5, 1
    T = D_T
    for s in range(6):
        K.emit(K.bl(s))
        order = order + [("b", s)] * 2
    K.main(order)
    stamp(a, "mffn")
    stamp(a, "down")
    a("s_setprio 2")
    reduce4(a, "dn", R_ACC, D_RES, R_ACC, vB, T, s_w, 67, 0, RING)
    a("s_mov_b32 s49, 0xffff0000")
    a(f"s_mul_i32 s45, s{s_rb}, 40")
    a(f"s_mul_i32 s46, s{s_cb}, 3")
    a("s_add_u32 s45, s45, s46")
    a("s_lshl_b32 s45, s45, 11")
    a(f"s_lshl_b32 s46, s{s_w}, 9")
    a("s_add_u32 s45, s45, s46")
    a(f"s_add_u32 s45, s45, {YF}")
    a(f"v_lshlrev_b32 v{T+4}, 3, v{vLane}")
    for ct in range(3):
        if ct == 2:
            a(f"s_cmp_eq_u32 s{s_cb}, 6")
            a("s_cbranch_scc1 dn_skip")
        for rt in range(2):
            r = D_RES + (rt * 3 + ct) * 4
            xr = D_XR + (rt * 3 + ct) * 2
            for e in range(2):
                a(f"v_lshlrev_b32 v{T}, 16, v{xr+e}")
                a(f"v_and_b32 v{T+1}, s49, v{xr+e}")
                a(f"v_pk_add_f32 {vr(r+2*e,2)}, {vr(r+2*e,2)}, {vr(T,2)}")
            a(f"v_cvt_pk_bf16_f32 v{r}, v{r}, v{r+1}")
            a(f"v_cvt_pk_bf16_f32 v{r+1}, v{r+2}, v{r+3}")
            a(f"s_add_u32 s46, s45, {(rt*20+ct)*2048}")
            a(f"buffer_store_dwordx2 {vr(r,2)}, v{T+4}, s[{SWS}:{SWS+3}], s46 offen")
    a.label("dn_skip")


def gen_down():
    a = Asm()
    a.label("down_kernel")
    a("s_cmp_ge_u32 s2, 224")
    a("s_cbranch_scc1 down_end")
    stamp_begin(a, "down")
    K, order = gen_down_setup(a, 2, True)
    stamp(a, "down")
    gen_down_rest(a, K, order)
    stamp_end(a, "down", 28, 32, 240)
    a.label("down_end")
    a("s_endpgm")
    return a.finish(), ("down_kernel", 224, 256, 73728, 256 if STAMP else 232)


def gen_main():
    a = Asm()
    a.label("main_kernel")
    a("s_cmp_ge_u32 s2, 512")
    a("s_cbranch_scc1 main_end")
    a("s_cmp_ge_u32 s2, 256")
    a("s_cbranch_scc1 main_ffn")
    if PRIO_ATTN:
        a(f"s_setprio {PRIO_ATTN}")
    stamp_begin(a, "mattn")
    gen_attn_body(a, "ma", 2)
    stamp_end(a, "mattn", 28, 32, 250)
    a("s_endpgm")
    a.label("main_ffn")
    if PRIO_FFN:
        a(f"s_setprio {PRIO_FFN}")
    a("s_sub_u32 s69, s2, 256")
    stamp_begin(a, "mffn")
    st = {}

    def mid():
        stamp(a, "mffn")
        a("s_barrier")
        a("s_cmp_ge_u32 s69, 224")
        a("s_cbranch_scc1 main_nodn")
        st["K"] = gen_down_setup(a, 69, False, " sc1")
        a.label("main_nodn")
        a("s_setprio 2")
    gen_gateup_body(a, "gu", 69, mid, " sc1")
    K, order = st["K"]
    SD = 28
    a("s_setprio 0")
    a("s_lshl_b32 s92, s33, 8")
    a(f"s_add_u32 s92, s92, {CT}")
    a("s_lshr_b32 s93, s63, 1")
    a("s_lshl_b32 s93, s93, 8")
    a(f"s_add_u32 s93, s93, {CT}")
    a("s_waitcnt vmcnt(0)")
    a("s_barrier")
    stamp(a, "mffn")
    a("s_cmp_lg_u32 s32, 0")
    a("s_cbranch_scc1 main_polled")
    a(f"v_mov_b32 v{D_T}, 0")
    a(f"v_mov_b32 v{D_T+1}, 1")
    a("s_mov_b64 exec, 1")
    a(f"buffer_atomic_add v{D_T+1}, v{D_T}, s[{SD}:{SD+3}], s92 offen sc1")
    a("s_cmp_ge_u32 s69, 224")
    a("s_cbranch_scc1 main_pdone")
    a.label("main_poll")
    a(f"buffer_load_dword v{D_T+2}, v{D_T}, s[{SD}:{SD+3}], s93 offen sc1")
    a("s_waitcnt vmcnt(0)")
    a(f"v_readfirstlane_b32 s95, v{D_T+2}")
    a("s_cmp_ge_u32 s95, 16")
    a("s_cbranch_scc1 main_pdone")
    a(f"s_sleep {os.environ.get('SLEEP', '8')}")
    a("s_branch main_poll")
    a.label("main_pdone")
    a("s_mov_b64 exec, -1")
    a.label("main_polled")
    a("s_cmp_ge_u32 s69, 224")
    a("s_cbranch_scc1 main_end")
    a("s_barrier")
    stamp(a, "mffn")
    a(f"s_setprio {PRIO_FFN}")
    gen_down_rest(a, K, [("d", s) for s in range(6)])
    stamp_end(a, "mffn", 28, 32, 240, 69)
    a.label("main_end")
    a("s_endpgm")
    return a.finish(), ("main_kernel", 512, 256, 73728, 256 if STAMP else 248)


PRIO_ATTN = int(os.environ.get("PRIO_ATTN", "0"))
PRIO_FFN = int(os.environ.get("PRIO_FFN", "0"))


def gen_final():
    a = Asm()
    a.label("final_kernel")
    s_w, s_rb, s_cb = 32, 63, 64
    SW, SO, SWS = 20, 24, 28
    vLane, vN, vH = 1, 2, 3
    vB, vWo, vXo, vTr = 5, 8, 10, 9
    T = D_T
    a("s_cmp_ge_u32 s2, 224")
    a("s_cbranch_scc1 final_end")
    stamp_begin(a, "final")
    a("s_load_dwordx2 s[6:7], s[0:1], 32")
    a("s_load_dwordx2 s[8:9], s[0:1], 72")
    a("s_load_dwordx2 s[12:13], s[0:1], 88")
    lane_setup(a, T, vLane, vN, vH, s_w)
    tile64_setup(a, 2, s_rb, s_cb)
    a(f"v_lshlrev_b32 v{vB}, 4, v{vLane}")
    a(f"v_lshrrev_b32 v{T}, 2, v{vLane}")
    a(f"v_mul_u32_u24 v{vWo}, 1280, v{T}")
    a(f"v_and_b32 v{T}, 3, v{vLane}")
    a(f"v_lshl_add_u32 v{vWo}, v{T}, 4, v{vWo}")
    a(f"v_mul_u32_u24 v{vXo}, 1280, v{vN}")
    a(f"v_lshl_add_u32 v{vXo}, v{vH}, 3, v{vXo}")
    tr_base(a, vTr, T, vLane, vH, 9)
    a(f"s_mul_i32 s67, s{s_w}, {RING}")
    a(f"v_add_u32 v{vTr}, s67, v{vTr}")
    a(f"s_mul_i32 s66, s{s_w}, {160*1280}")
    a(f"s_mul_i32 s37, s{s_cb}, 192")
    a("s_add_u32 s66, s66, s37")
    a(f"s_mul_i32 s68, s{s_rb}, {2*40*1024}")
    a(f"s_mul_i32 s36, s{s_w}, {10*1024}")
    a("s_add_u32 s68, s68, s36")
    a(f"s_add_u32 s68, s68, {OF}")
    a(f"s_add_u32 s65, s68, {40*1024}")
    a(f"s_mul_i32 s70, s{s_rb}, {64*1280}")
    a("s_add_u32 s70, s70, s37")
    a(f"s_lshl_b32 s36, s{s_w}, 4")
    a("s_add_u32 s70, s70, s36")
    a(f"s_add_u32 s71, s70, {32*1280}")
    a(f"s_mul_i32 s45, s{s_rb}, 40")
    a(f"s_mul_i32 s46, s{s_cb}, 3")
    a("s_add_u32 s45, s45, s46")
    a("s_lshl_b32 s45, s45, 11")
    a(f"s_lshl_b32 s46, s{s_w}, 9")
    a("s_add_u32 s45, s45, s46")
    a(f"s_add_u32 s45, s45, {YF}")
    a(f"v_lshlrev_b32 v{T+4}, 3, v{vLane}")
    a("s_waitcnt lgkmcnt(0)")
    srd(a, SW, 6, 819200)
    srd(a, SO, 8, 2621440)
    srd(a, SWS, 12, WS_END)
    K = TypeK(a, 10, 6, 6, R_ACC, D_AF, D_BF, vTr, 256, vWo, SW, 66, 16 * 1280, 67, vB, SWS, 68, 65)
    order = []
    for s in range(6):
        K.emit(K.bl(s))
        K.emit(K.dma(s))
        order += [("b", s)] * 2 + [("d", s)] * 3
        if s == 2:
            for rt in range(2):
                for ct in range(3):
                    a(f"s_add_u32 s46, s45, {(rt*20+ct)*2048}")
                    a(f"buffer_load_dwordx2 {vr(D_XR+(rt*3+ct)*2,2)}, v{T+4}, s[{SWS}:{SWS+3}], s46 offen")
            order += [("x",)] * 6
    stamp(a, "final")
    K.main(order)
    stamp(a, "final")
    reduce4(a, "fin", R_ACC, D_RES, R_ACC, vB, T, s_w, 67, 0, RING)
    stamp(a, "final")
    a("s_mov_b32 s49, 0xffff0000")
    for ct in range(3):
        if ct == 2:
            a(f"s_cmp_eq_u32 s{s_cb}, 6")
            a("s_cbranch_scc1 final_skip")
        for rt in range(2):
            r = D_RES + (rt * 3 + ct) * 4
            xr = D_XR + (rt * 3 + ct) * 2
            for e in range(2):
                a(f"v_lshlrev_b32 v{T}, 16, v{xr+e}")
                a(f"v_and_b32 v{T+1}, s49, v{xr+e}")
                a(f"v_pk_add_f32 {vr(r+2*e,2)}, {vr(r+2*e,2)}, {vr(T,2)}")
            a(f"v_cvt_pk_bf16_f32 v{r}, v{r}, v{r+1}")
            a(f"v_cvt_pk_bf16_f32 v{r+1}, v{r+2}, v{r+3}")
            a(f"buffer_store_dwordx2 {vr(r,2)}, v{vXo}, s[{SO}:{SO+3}], s{70+rt} offen offset:{ct*64}")
    a.label("final_skip")
    stamp_end(a, "final", SWS, s_w, 240)
    a.label("final_end")
    a("s_endpgm")
    return a.finish(), ("final_kernel", 224, 256, 73728, 256 if STAMP else 232)


def gen_empty():
    a = Asm()
    a.label("empty_kernel")
    a("s_endpgm")
    return a.finish(), ("empty_kernel", 256, 256, 65536, 256)


KERNELS = {"empty": gen_empty, "main": gen_main, "qkv": gen_qkv, "gateup": gen_gateup, "attn": gen_attn, "down": gen_down, "final": gen_final}
HEADER = open("parallel_sum__grouped_kv_mqa__glu_gated_swiglu__prompt.s.ref").read().split("; Override launch")[0] if False else ""


DEFAULT = ["qkv", "main", "final"]


def build(order):
    texts, launches = {}, []
    for k in order:
        t, info = KERNELS[k]()
        texts[info[0]] = (t, info)
        launches.append(info)
    out = "; generated by dev/gen.py -- LN + MQA attention + SwiGLU block for gfx950\n"
    for name, grid, block, lds, vg in launches:
        out += f"; @launch kernel={name} grid=({grid},1,1) block=({block},1,1) lds={lds}\n"
    out += '.amdgcn_target "amdgcn-amd-amdhsa--gfx950"\n.text\n'
    for name, (t, info) in texts.items():
        out += kernel_header(name) + t
    out += '.section .rodata,"a"\n'
    for name, (t, info) in texts.items():
        out += kernel_desc(name, info[4])
    return out


if __name__ == "__main__":
    order = sys.argv[2].split(",") if len(sys.argv) > 2 else DEFAULT
    open(sys.argv[1], "w").write(build(order))
```

```python
import math
import struct
import sys

from asmlib import Asm

XF = 0x0
QF = 0x280000
KF = 0x500000
VF = 0x514000
KN = 0x52A000
CT = 0x52C000
OF = 0x530000
HF = 0x800000
FP = 0x1000000
YF = 0x1000000
WS_END = 0x2500000
TS = 0x2400000
import os
STAMP = os.environ.get("STAMP", "")


_stamp_n = {}


def stamp(a, name, vreg=255):
    if name in STAMP.split(","):
        i = _stamp_n.get(name, 0)
        _stamp_n[name] = i + 1
        a("s_memtime s[100:101]")
        a("s_waitcnt lgkmcnt(0)")
        a(f"v_writelane_b32 v{vreg}, s100, {i}")


def stamp_begin(a, name, vreg=255):
    if name in STAMP.split(","):
        a("s_memrealtime s[98:99]")
        a("s_waitcnt lgkmcnt(0)")
        a(f"v_writelane_b32 v{vreg}, s98, 14")
    stamp(a, name, vreg)


def stamp_end(a, name, sws, s_w, vtmp, s_wg=2, vreg=255):
    if name in STAMP.split(","):
        a("s_waitcnt vmcnt(0) lgkmcnt(0)")
        stamp(a, name, vreg)
        a("s_memrealtime s[98:99]")
        a("s_waitcnt lgkmcnt(0)")
        a(f"v_writelane_b32 v{vreg}, s98, 15")
        a(f"s_lshl_b32 s94, s{s_wg}, 2")
        a(f"s_add_u32 s94, s94, s{s_w}")
        a("s_lshl_b32 s94, s94, 6")
        a(f"s_add_u32 s94, s94, {TS + STAMP.split(',').index(name) * 0x20000}")
        a(f"v_and_b32 v{vtmp}, 63, v0")
        a(f"v_lshlrev_b32 v{vtmp}, 2, v{vtmp}")
        a("s_mov_b64 s[98:99], exec")
        a("s_mov_b64 exec, 0xffff")
        a(f"buffer_store_dword v{vreg}, v{vtmp}, s[{sws}:{sws+3}], s94 offen")
        a("s_mov_b64 exec, s[98:99]")


QSCALE = (20 ** -0.5) * math.log2(math.e)


def f2u(x):
    return struct.unpack("<I", struct.pack("<f", x))[0]


def hx(x):
    return "0x%x" % x


def srd(a, d, base, size):
    a(f"s_mov_b32 s{d}, s{base}")
    a(f"s_and_b32 s{d+1}, s{base+1}, 0xffff")
    a(f"s_mov_b32 s{d+2}, {hx(size)}")
    a(f"s_mov_b32 s{d+3}, 0x00020000")


def vr(b, n=1):
    return f"v{b}" if n == 1 else f"v[{b}:{b+n-1}]"


def mfma32(a, d, x, y, c=None):
    cs = vr(d, 16) if c is None else c
    a(f"v_mfma_f32_32x32x16_bf16 {vr(d,16)}, {vr(x,4)}, {vr(y,4)}, {cs}")


def kernel_header(name):
    return f""".globl {name}
.p2align 8
.type {name},@function
"""


def kernel_desc(name, vgprs, sgprs=102):
    acc = (vgprs + 3) // 4 * 4
    return f""".p2align 6
.amdhsa_kernel {name}
  .amdhsa_next_free_vgpr {vgprs}
  .amdhsa_next_free_sgpr {sgprs}
  .amdhsa_accum_offset {acc}
  .amdhsa_group_segment_fixed_size 0
  .amdhsa_kernarg_size 96
  .amdhsa_user_sgpr_count 2
  .amdhsa_user_sgpr_kernarg_segment_ptr 1
  .amdhsa_system_sgpr_workgroup_id_x 1
.end_amdhsa_kernel
"""


K_X = 16
K_ACC = 96
K_A = 192
K_T = 216
WAVE_LDS = 30720
LDS_STG = 8192


K_R = K_A


def typek_mfma_phase(a, vtr, zero=True, vm_after=None, extra=None):
    def reads(s, buf):
        for ct in range(3):
            o = (3 * s + ct) * 1024
            r = K_A + buf * 12 + ct * 4
            a(f"ds_read_b64_tr_b16 {vr(r,2)}, v{vtr} offset:{o}")
            a(f"ds_read_b64_tr_b16 {vr(r+2,2)}, v{vtr} offset:{o+256}")
    if vm_after:
        a(f"s_waitcnt vmcnt({vm_after(0)})")
    reads(0, 0)
    for s in range(10):
        if s + 1 < 10:
            if vm_after:
                a(f"s_waitcnt vmcnt({vm_after(s+1)})")
            reads(s + 1, (s + 1) & 1)
            a("s_waitcnt lgkmcnt(6)")
        else:
            a("s_waitcnt lgkmcnt(0)")
        ex = list(extra(s)) if extra else []
        n = len(ex)
        k = 0
        for ct in range(3):
            for rt in range(2):
                d = K_ACC + (rt * 3 + ct) * 16
                mfma32(a, d, K_A + (s & 1) * 12 + ct * 4, K_X + rt * 40 + s * 4, "0" if (s == 0 and zero) else None)
                k += 1
                for x in ex[((k - 1) * n) // 6:(k * n) // 6]:
                    a(x)


def reduce4(a, pfx, ACC, RES, TMP, vL16, vT, s_w, s_base, base0, stride, pre_barrier=None, post_reads=None):
    for g in range(4):
        a(f"s_cmp_eq_u32 s{s_w}, {g}")
        a(f"s_cbranch_scc1 {pfx}_rw{g}")
        a(f"s_sub_u32 s90, {g+3}, s{s_w}")
        a("s_and_b32 s90, s90, 3")
        a("s_mul_i32 s90, s90, 6144")
        a(f"s_add_u32 s90, s90, s{s_base}")
        a(f"v_add_u32 v{vT}, s90, v{vL16}")
        for t in range(6):
            a(f"ds_write_b128 v{vT}, {vr(ACC+t*16+g*4,4)} offset:{t*1024}")
        a.label(f"{pfx}_rw{g}")
    if pre_barrier:
        pre_barrier()
    for jj in range(3):
        a(f"s_add_u32 s90, s{s_w}, {jj+1}")
        a("s_and_b32 s90, s90, 3")
        a(f"s_mul_i32 s90, s90, {stride}")
        a(f"s_add_u32 s90, s90, {base0 + (2-jj)*6144}")
        a(f"v_add_u32 v{vT+1+jj}, s90, v{vL16}")
    for g in range(4):
        a(f"s_cmp_lg_u32 s{s_w}, {g}")
        a(f"s_cbranch_scc1 {pfx}_ro{g}")
        for t in range(6):
            for e in range(4):
                a(f"v_mov_b32 v{RES+t*4+e}, v{ACC+t*16+g*4+e}")
        a.label(f"{pfx}_ro{g}")
    a("s_waitcnt lgkmcnt(0)")
    a("s_barrier")
    for jj in range(3):
        for t in range(6):
            a(f"ds_read_b128 {vr(TMP+(jj*6+t)*4,4)}, v{vT+1+jj} offset:{t*1024}")
    n_extra = post_reads() if post_reads else 0
    for jj in range(3):
        a(f"s_waitcnt lgkmcnt({min(15, (2-jj)*6 + n_extra)})")
        for e in range(0, 24, 2):
            a(f"v_pk_add_f32 {vr(RES+e,2)}, {vr(RES+e,2)}, {vr(TMP+jj*24+e,2)}")


class TypeK:
    def __init__(self, a, KS, RD, RB, ACC, AF, BF, vTr, tr2, vWo, SW, s_g, gstep, s_ring, vB, SB, s_b0, s_b1, bmods=""):
        self.__dict__.update(locals())

    def dma(self, s):
        out = []
        for ct in range(3):
            out.append([f"s_add_u32 m0, s{self.s_ring}, {((s % self.RD)*3+ct)*1024}",
                        f"s_add_u32 s91, s{self.s_g}, {s*self.gstep + ct*64}",
                        f"buffer_load_dwordx4 v{self.vWo}, s[{self.SW}:{self.SW+3}], s91 offen lds"])
        return out

    def bl(self, s):
        out = []
        for rt in range(2):
            sb = self.s_b0 if rt == 0 else self.s_b1
            g = []
            if s % 4 == 0 and s:
                g.append(f"s_add_u32 s{sb}, s{sb}, 4096")
            g.append(f"buffer_load_dwordx4 {vr(self.BF+(s%self.RB)*8+rt*4,4)}, v{self.vB}, s[{self.SB}:{self.SB+3}], s{sb} offen offset:{(s%4)*1024}{self.bmods}")
            out.append(g)
        return out

    def emit(self, groups):
        for g in groups:
            for x in g:
                self.a(x)

    def reads(self, s):
        out = []
        for ct in range(3):
            o = ((s % self.RD) * 3 + ct) * 1024
            r = self.AF + (s & 1) * 12 + ct * 4
            out.append(f"ds_read_b64_tr_b16 {vr(r,2)}, v{self.vTr} offset:{o}")
            out.append(f"ds_read_b64_tr_b16 {vr(r+2,2)}, v{self.vTr} offset:{o+self.tr2}")
        return out

    def main(self, order):
        a, KS, RD, RB = self.a, self.KS, self.RD, self.RB
        order = list(order)

        def wait_for(s):
            last = max(i for i, o in enumerate(order) if o in (("d", s), ("b", s)))
            a(f"s_waitcnt vmcnt({min(63, len(order) - 1 - last)})")
        wait_for(0)
        for x in self.reads(0):
            a(x)
        for s in range(KS):
            if s + 1 < KS:
                wait_for(s + 1)
                for x in self.reads(s + 1):
                    a(x)
                a("s_waitcnt lgkmcnt(6)")
            else:
                a("s_waitcnt lgkmcnt(0)")
            dm = self.dma(s + RD) if s + RD < KS else []
            k = 0
            for ct in range(3):
                for rt in range(2):
                    mfma32(a, self.ACC + (rt * 3 + ct) * 16, self.AF + (s & 1) * 12 + ct * 4,
                           self.BF + (s % RB) * 8 + rt * 4, "0" if s == 0 else None)
                    if k % 2 == 0 and dm:
                        self.emit([dm.pop(0)])
                        order.append(("d", s + RD))
                    k += 1
            if s + RB < KS:
                self.emit(self.bl(s + RB))
                order += [("b", s + RB)] * 2


def lane_setup(a, T, vLane, vN, vH, s_w):
    a(f"v_and_b32 v{vLane}, 63, v0")
    a(f"v_lshrrev_b32 v{T}, 6, v0")
    a(f"v_readfirstlane_b32 s{s_w}, v{T}")
    a(f"v_and_b32 v{vN}, 31, v0")
    a(f"v_bfe_u32 v{vH}, v0, 5, 1")


def tr_base(a, vTr, T, vLane, vH, hshift):
    a(f"v_lshlrev_b32 v{vTr}, {hshift}, v{vH}")
    a(f"v_bfe_u32 v{T}, v{vLane}, 2, 2")
    a(f"v_lshl_add_u32 v{vTr}, v{T}, 6, v{vTr}")
    a(f"v_bfe_u32 v{T}, v{vLane}, 4, 1")
    a(f"v_lshl_add_u32 v{vTr}, v{T}, 5, v{vTr}")
    a(f"v_and_b32 v{T}, 3, v{vLane}")
    a(f"v_lshl_add_u32 v{vTr}, v{T}, 3, v{vTr}")


def gen_qkv():
    a = Asm()
    a.label("qkv_kernel")
    ST = 0
    NB = 4096
    MX = 6144
    s_w, s_rb, s_cb = 32, 33, 34
    SX, SWS = 16, 28
    SWT = [72, 76, 80]
    vLane, vN, vH = 1, 2, 3
    vXg, vXr, vTr, vSlab, vRd = 4, 5, 7, 8, 9
    vSt = 11
    vWo = [12, 13, 14]
    vCs = 6
    T = K_T
    XO = 9216
    a("s_cmp_ge_u32 s2, 256")
    a("s_cbranch_scc1 qkv_end")
    stamp_begin(a, "qkv")
    a("s_load_dwordx4 s[4:7], s[0:1], 0")
    a("s_load_dwordx4 s[8:11], s[0:1], 16")
    a("s_load_dwordx2 s[12:13], s[0:1], 88")
    a("s_load_dwordx4 s[56:59], s[0:1], 48")
    lane_setup(a, T, vLane, vN, vH, s_w)
    a("s_and_b32 s3, s2, 7")
    a("s_lshr_b32 s35, s2, 3")
    a("s_and_b32 s36, s35, 3")
    a("s_lshl_b32 s3, s3, 2")
    a(f"s_add_u32 s{s_rb}, s3, s36")
    a(f"s_lshr_b32 s{s_cb}, s35, 2")
    a(f"v_mul_u32_u24 v{T}, 49, v{vLane}")
    a(f"v_lshrrev_b32 v{T}, 10, v{T}")
    a(f"v_mul_u32_u24 v{T+1}, 21, v{T}")
    a(f"v_sub_u32 v{T+1}, v{vLane}, v{T+1}")
    a(f"v_mul_u32_u24 v{vXg}, 1280, v{T}")
    a(f"v_lshl_add_u32 v{vXg}, v{T+1}, 4, v{vXg}")
    a(f"s_mul_i32 s37, s{s_w}, {WAVE_LDS}")
    a(f"s_add_u32 s37, s37, {LDS_STG}")
    a(f"v_mul_u32_u24 v{vXr}, 336, v{vN}")
    a(f"v_lshl_add_u32 v{vXr}, v{vH}, 4, v{vXr}")
    a(f"v_add_u32 v{vXr}, s37, v{vXr}")
    a(f"s_mul_i32 s39, s{s_rb}, {64*1280}")
    a(f"s_mul_i32 s40, s{s_w}, 320")
    a("s_add_u32 s39, s39, s40")
    a("s_waitcnt lgkmcnt(0)")
    srd(a, SX, 4, 2621440)
    a("s_mov_b32 s52, -1")
    a("s_mov_b32 s53, 0x7fffffff")
    a("s_mov_b64 exec, s[52:53]")
    for jx in range(22):
        if jx == 21:
            a("s_mov_b64 exec, 0x1fffff")
        a(f"s_add_u32 m0, s37, {XO + jx*1008}")
        a(f"s_add_u32 s44, s39, {jx*3840}")
        a(f"buffer_load_dwordx4 v{vXg}, s[{SX}:{SX+3}], s44 offen lds")
    a("s_mov_b64 exec, -1")
    a(f"v_lshrrev_b32 v{T}, 2, v{vLane}")
    a(f"v_and_b32 v{T+1}, 3, v{vLane}")
    a(f"v_lshlrev_b32 v{T+1}, 4, v{T+1}")
    a(f"v_mad_u32_u24 v{T+2}, v{T}, 40, v{T+1}")
    a(f"s_movk_i32 s38, 1280")
    a(f"v_mad_u32_u24 v{T+3}, v{T}, s38, v{T+1}")
    a(f"s_mul_i32 s50, s{s_cb}, 3")
    a(f"s_mul_i32 s41, s{s_w}, {160*1280}")
    a(f"s_mul_i32 s43, s{s_w}, {160*40}")
    for ct in range(3):
        d = SWT[ct]
        a(f"s_add_u32 s51, s50, {ct}")
        a("s_cmp_eq_u32 s51, 21")
        a(f"s_cselect_b32 s{d}, s10, s8")
        a(f"s_cselect_b32 s{d+1}, s11, s9")
        a("s_cmp_lt_u32 s51, 22")
        a(f"s_cselect_b32 s{d+2}, 25600, 0")
        a("s_lshl_b32 s45, s51, 6")
        a("s_add_u32 s45, s45, s41")
        a("s_cmp_lt_u32 s51, 20")
        a(f"s_cselect_b32 s{d}, s6, s{d}")
        a(f"s_cselect_b32 s{d+1}, s7, s{d+1}")
        a(f"s_cselect_b32 s{d+2}, 819200, s{d+2}")
        a(f"s_mov_b32 s{d+3}, 0x00020000")
        a(f"s_cselect_b32 s{84+ct}, s45, s43")
        a(f"s_movk_i32 s{87+ct}, {16*40}")
        a(f"s_cselect_b32 s{87+ct}, {16*1280}, s{87+ct}")
        a("s_cselect_b64 vcc, -1, 0")
        a(f"s_and_b32 s{d+1}, s{d+1}, 0xffff")
        a(f"v_cndmask_b32 v{vWo[ct]}, v{T+2}, v{T+3}, vcc")

    def w_dma(s):
        for ct in range(3):
            a(f"s_add_u32 m0, s37, {(3*s+ct)*1024}")
            a(f"buffer_load_dwordx4 v{vWo[ct]}, s[{SWT[ct]}:{SWT[ct]+3}], s{84+ct} offen lds")
            a(f"s_add_u32 s{84+ct}, s{84+ct}, s{87+ct}")
    for s in range(3):
        w_dma(s)
    srd(a, SWS, 12, WS_END)
    a("s_cmp_lg_u32 s2, 255")
    a("s_cbranch_scc1 qkv_noct")
    a(f"s_cmp_lg_u32 s{s_w}, 3")
    a("s_cbranch_scc1 qkv_noct")
    a(f"v_lshlrev_b32 v{T}, 8, v{vLane}")
    a(f"v_mov_b32 v{T+1}, 0")
    a(f"s_mov_b32 s44, {CT}")
    a("s_mov_b64 exec, 0xffff")
    a(f"buffer_store_dword v{T+1}, v{T}, s[{SWS}:{SWS+3}], s44 offen")
    a("s_mov_b64 exec, -1")
    a("s_waitcnt vmcnt(0)")
    a.label("qkv_noct")
    tr_base(a, vTr, T, vLane, vH, 9)
    a(f"v_add_u32 v{vTr}, s37, v{vTr}")
    a(f"v_lshlrev_b32 v{vSlab}, 4, v{vLane}")
    a(f"s_mul_i32 s38, s{s_w}, 384")
    a(f"v_lshlrev_b32 v{vCs}, 2, v{vN}")
    a(f"v_add_u32 v{vCs}, s38, v{vCs}")
    a(f"v_lshlrev_b32 v{vSt}, 6, v{vN}")
    vOne = T
    SA = T + 2
    a(f"v_mov_b32 v{vOne}, 0x3f803f80")
    for i in range(11):
        a(f"v_mov_b32 v{SA+i}, 0")
    a(f"ds_write_b32 v{SA}, v{SA} offset:{MX}")
    a("s_waitcnt vmcnt(9)")
    stamp(a, "qkv")
    for rt in range(2):
        for s in range(10):
            a(f"ds_read_b128 {vr(K_X+rt*40+s*4,4)}, v{vXr} offset:{XO + rt*10752 + s*32}")
    a("s_waitcnt lgkmcnt(0)")
    xs = []
    for i in range(40):
        for rt in range(2):
            x = K_X + rt * 40 + i
            b = SA + rt * 4 + (i & 1) * 2
            xs.append(f"v_dot2_f32_bf16 v{b}, v{x}, v{vOne}, v{b}")
            xs.append(f"v_dot2_f32_bf16 v{b+1}, v{x}, v{x}, v{b+1}")
    for s in range(3, 10):
        w_dma(s)
        for x in xs[((s - 3) * 160) // 7:((s - 2) * 160) // 7]:
            a(x)
    stamp(a, "qkv")

    def stats(s):
        out = []
        for q in range(4):
            for ct in range(3):
                out.append(f"v_dot2_f32_bf16 v{SA+8+ct}, v{K_A+(s&1)*12+ct*4+q}, v{vOne}, v{SA+8+ct}")
        return out
    typek_mfma_phase(a, vTr, True, lambda s: 3 * (9 - s), stats)
    stamp(a, "qkv")
    if PREFETCH:
        srd(a, 60, 56, 1966080)
        srd(a, 64, 58, 1966080)
        a(f"v_mul_u32_u24 v{T+24}, 43, v{vLane}")
        a(f"v_lshrrev_b32 v{T+24}, 9, v{T+24}")
        a(f"v_mul_u32_u24 v{T+25}, 12, v{T+24}")
        a(f"v_sub_u32 v{T+25}, v{vLane}, v{T+25}")
        a(f"v_mul_u32_u24 v{T+24}, 3072, v{T+24}")
        a(f"v_lshl_add_u32 v{T+24}, v{T+25}, 6, v{T+24}")
        a("s_lshr_b32 s44, s2, 3")
        a("s_lshl_b32 s44, s44, 2")
        a(f"s_add_u32 s44, s44, s{s_w}")
        a(f"s_mul_i32 s44, s44, {5*3072}")
        a("s_bfe_u32 s38, s2, 0x20001")
        a("s_mul_i32 s38, s38, 768")
        a("s_add_u32 s44, s44, s38")
        a("s_mov_b32 s52, -1")
        a("s_mov_b32 s53, 0x0fffffff")
        a("s_mov_b64 exec, s[52:53]")
        a(f"buffer_load_dword v{T+36}, v{T+24}, s[60:63], s44 offen")
        a(f"buffer_load_dword v{T+37}, v{T+24}, s[64:67], s44 offen")
        a("s_mov_b64 exec, -1")

    CSA = 6400

    def pre_barrier():
        for rt in range(2):
            b = SA + rt * 4
            a(f"v_pk_add_f32 {vr(b,2)}, {vr(b,2)}, {vr(b+2,2)}")
        a(f"v_lshl_add_u32 v{T+14}, v{vH}, 3, v{vSt}")
        a(f"s_lshl_b32 s38, s{s_w}, 4")
        a(f"v_add_u32 v{T+14}, s38, v{T+14}")
        for rt in range(2):
            a(f"ds_write_b64 v{T+14}, {vr(SA+rt*4,2)} offset:{ST + rt*2048}")
        for ct in range(3):
            a(f"v_mov_b32 v{T+16+ct}, v{SA+8+ct}")
        for ct in range(3):
            a(f"v_permlane32_swap_b32 v{SA+8+ct}, v{T+16+ct}")
        for ct in range(3):
            a(f"v_add_f32 v{SA+8+ct}, v{SA+8+ct}, v{T+16+ct}")
            a(f"ds_write_b32 v{vCs}, v{SA+8+ct} offset:{CSA + ct*128}")
        a(f"v_lshlrev_b32 v{vRd}, 4, v{vH}")
        a(f"s_lshl_b32 s38, s{s_w}, 5")
        a(f"v_add_u32 v{vRd}, s38, v{vRd}")
    CS = T + 20
    RR = T + 32
    a(f"s_mov_b32 s45, {hx(f2u(1.0/640))}")
    a(f"s_mov_b32 s46, {hx(f2u(1e-5))}")
    reduce4(a, "qkv", K_ACC, K_R, K_ACC, vSlab, T + 20, s_w, 37, LDS_STG, WAVE_LDS, pre_barrier)
    for jw in range(4):
        for ct in range(3):
            a(f"ds_read_b128 {vr(K_ACC+(jw*3+ct)*4,4)}, v{vRd} offset:{CSA + jw*384 + ct*128}")
    for rt in range(2):
        for q in range(4):
            a(f"ds_read_b128 {vr(K_ACC+48+rt*16+q*4,4)}, v{vSt} offset:{ST + rt*2048 + q*16}")
    a("s_waitcnt lgkmcnt(0)")
    for e in range(0, 12, 2):
        a(f"v_pk_add_f32 {vr(K_ACC+e,2)}, {vr(K_ACC+e,2)}, {vr(K_ACC+12+e,2)}")
        a(f"v_pk_add_f32 {vr(K_ACC+24+e,2)}, {vr(K_ACC+24+e,2)}, {vr(K_ACC+36+e,2)}")
    for e in range(0, 12, 2):
        a(f"v_pk_add_f32 {vr(CS+e,2)}, {vr(K_ACC+e,2)}, {vr(K_ACC+24+e,2)}")
    for rt in range(2):
        b = K_ACC + 48 + rt * 16
        for step in (8, 4, 2):
            for e in range(0, step, 2):
                a(f"v_pk_add_f32 {vr(b+e,2)}, {vr(b+e,2)}, {vr(b+e+step,2)}")
        mu, sq, t0 = b, b + 1, b + 3
        m_b, rr = RR + rt * 2, RR + rt * 2 + 1
        a(f"v_mul_f32 v{mu}, s45, v{mu}")
        a(f"v_mul_f32 v{sq}, s45, v{sq}")
        a(f"v_fma_f32 v{sq}, -v{mu}, v{mu}, v{sq}")
        a(f"v_max_f32 v{sq}, 0, v{sq}")
        a(f"v_cvt_pk_bf16_f32 v{m_b}, v{mu}, v{sq}")
        a(f"v_and_b32 v{t0}, 0xffff0000, v{m_b}")
        a(f"v_lshlrev_b32 v{m_b}, 16, v{m_b}")
        a(f"v_add_f32 v{t0}, s46, v{t0}")
        a(f"v_cvt_pk_bf16_f32 v{t0}, v{t0}, v{t0}")
        a(f"v_lshlrev_b32 v{t0}, 16, v{t0}")
        a(f"v_sqrt_f32 v{t0}, v{t0}")
        a(f"v_cvt_pk_bf16_f32 v{t0}, v{t0}, v{t0}")
        a(f"v_lshlrev_b32 v{t0}, 16, v{t0}")
        a(f"v_rcp_f32 v{rr}, v{t0}")
    for rt in range(2):
        m_b, rr = RR + rt * 2, RR + rt * 2 + 1
        for ct in range(3):
            for e in range(4):
                r = K_R + (rt * 3 + ct) * 4 + e
                a(f"v_fma_f32 v{r}, -v{m_b}, v{CS+ct*4+e}, v{r}")
                a(f"v_mul_f32 v{r}, v{r}, v{rr}")
    stamp(a, "qkv")
    a("s_mov_b32 s47, 0xffff0000")
    a(f"v_lshlrev_b32 v{T}, 4, v{vLane}")
    a(f"s_mul_i32 s39, s{s_rb}, {2*40*1024}")
    a(f"s_mul_i32 s40, s{s_w}, {10*1024}")
    a("s_add_u32 s39, s39, s40")
    for rt in range(2):
        m_b, rr = RR + rt * 2, RR + rt * 2 + 1
        PR = K_ACC + rt * 4
        a(f"v_mov_b32 v{PR}, v{rr}")
        a(f"v_mov_b32 v{PR+1}, v{rr}")
        a(f"v_mul_f32_e64 v{PR+2}, -v{m_b}, v{rr}")
        a(f"v_mov_b32 v{PR+3}, v{PR+2}")
    for c in range(8):
        a(f"s_cmp_lg_u32 s{s_cb}, {c}")
        a(f"s_cbranch_scc1 qkv_xn{c}")
        for f in range(c, 20, 8):
            rt, sx = divmod(f, 10)
            PR = K_ACC + rt * 4
            for q in range(4):
                x = K_X + rt * 40 + sx * 4 + q
                u = K_ACC + 8 + q * 2
                a(f"v_lshlrev_b32 v{u}, 16, v{x}")
                a(f"v_and_b32 v{u+1}, s47, v{x}")
                a(f"v_pk_fma_f32 {vr(u,2)}, {vr(u,2)}, {vr(PR,2)}, {vr(PR+2,2)}")
                a(f"v_cvt_pk_bf16_f32 v{x}, v{u}, v{u+1}")
            a(f"s_add_u32 s44, s39, {XF + rt*40*1024 + sx*1024}")
            a(f"buffer_store_dwordx4 {vr(K_X+rt*40+sx*4,4)}, v{T}, s[{SWS}:{SWS+3}], s44 offen")
        a.label(f"qkv_xn{c}")
    vC0, vHead, vD0, vOff, vA = T, T + 1, T + 2, T + 3, T + 4
    a(f"s_mov_b32 s45, {hx(f2u(QSCALE))}")
    a("s_mov_b32 s46, 3277")
    a(f"s_mul_i32 s38, s{s_cb}, 96")
    a(f"s_lshl_b32 s39, s{s_w}, 3")
    a("s_add_u32 s38, s38, s39")
    a(f"s_mul_i32 s48, s{s_rb}, {2*32*1280}")
    a(f"s_add_u32 s48, s48, {QF}")
    a(f"s_add_u32 s49, s48, {32*1280}")
    a(f"s_mul_i32 s50, s{s_cb}, 3")

    def frag_off(vD0, vOff):
        a(f"v_lshrrev_b32 v{vA}, 3, v{vD0}")
        a(f"v_lshlrev_b32 v{vA}, 9, v{vA}")
        a(f"v_lshl_add_u32 v{vA}, v{vN}, 4, v{vA}")
        a(f"v_and_b32 v{vA+1}, 4, v{vD0}")
        a(f"v_lshl_add_u32 v{vA}, v{vA+1}, 1, v{vA}")
        a(f"v_lshlrev_b32 v{vA+1}, 3, v{vN}")
        a(f"v_add_u32 v{vA+1}, 1024, v{vA+1}")
        a(f"v_cmp_gt_u32 vcc, 16, v{vD0}")
        a(f"v_cndmask_b32 v{vA}, v{vA+1}, v{vA}, vcc")
        a(f"v_add_u32 v{vOff}, v{vOff}, v{vA}")

    for ct in range(3):
        a(f"s_add_u32 s51, s50, {ct}")
        a("s_cmp_ge_u32 s51, 20")
        a(f"s_cbranch_scc1 qkv_notq{ct}")
        a(f"v_lshlrev_b32 v{vC0}, 2, v{vH}")
        a(f"v_add_u32 v{vC0}, s38, v{vC0}")
        if ct:
            a(f"v_add_u32 v{vC0}, {32*ct}, v{vC0}")
        a(f"v_mul_u32_u24 v{vHead}, s46, v{vC0}")
        a(f"v_lshrrev_b32 v{vHead}, 16, v{vHead}")
        a(f"v_mul_u32_u24 v{vD0}, 20, v{vHead}")
        a(f"v_sub_u32 v{vD0}, v{vC0}, v{vD0}")
        a(f"v_mul_u32_u24 v{vOff}, 1280, v{vHead}")
        frag_off(vD0, vOff)
        for rt in range(2):
            r = K_R + (rt * 3 + ct) * 4
            for e in range(4):
                a(f"v_mul_f32 v{r+e}, s45, v{r+e}")
            a(f"v_cvt_pk_bf16_f32 v{r}, v{r}, v{r+1}")
            a(f"v_cvt_pk_bf16_f32 v{r+1}, v{r+2}, v{r+3}")
            a(f"buffer_store_dwordx2 {vr(r,2)}, v{vOff}, s[{SWS}:{SWS+3}], s{48+rt} offen")
        a.label(f"qkv_notq{ct}")
    stamp_end(a, "qkv", SWS, s_w, 240)
    a(f"s_cmp_lt_u32 s{s_cb}, 6")
    a("s_cbranch_scc1 qkv_end")
    P = T + 8
    a(f"s_cmp_eq_u32 s{s_cb}, 7")
    a("s_cbranch_scc1 qkv_mvv")
    for rt in range(2):
        for e in range(4):
            a(f"v_mov_b32 v{P+rt*4+e}, v{K_R+(rt*3+2)*4+e}")
    a("s_branch qkv_mvd")
    a.label("qkv_mvv")
    for rt in range(2):
        for e in range(4):
            a(f"v_mov_b32 v{P+rt*4+e}, v{K_R+(rt*3+0)*4+e}")
    a.label("qkv_mvd")
    a(f"v_lshlrev_b32 v{vD0}, 2, v{vH}")
    a(f"v_add_u32 v{vD0}, s39, v{vD0}")
    a(f"v_cmp_gt_u32 s[52:53], 20, v{vD0}")
    a(f"v_lshlrev_b32 v{vA}, 5, v{vN}")
    a(f"v_add_u32 v{vA}, v{vA}, v{vD0}")
    for rt in range(2):
        q = T + 16 + rt
        a(f"v_mul_f32 v{q}, v{P+rt*4}, v{P+rt*4}")
        for e in range(1, 4):
            a(f"v_fmac_f32 v{q}, v{P+rt*4+e}, v{P+rt*4+e}")
        a(f"v_cndmask_b32 v{q}, 0, v{q}, s[52:53]")
        a(f"ds_write_b32 v{vA}, v{q} offset:{NB + rt*1024}")
    for rt in range(2):
        r = P + rt * 4
        a(f"v_cvt_pk_bf16_f32 v{r}, v{r}, v{r+1}")
        a(f"v_cvt_pk_bf16_f32 v{r+1}, v{r+2}, v{r+3}")
    a("s_mov_b64 s[54:55], exec")
    a("s_and_b64 exec, exec, s[52:53]")
    a("s_cbranch_execz qkv_kvst_done")
    a(f"s_mul_i32 s48, s{s_rb}, {2*1280}")
    a(f"s_cmp_eq_u32 s{s_cb}, 7")
    a("s_cbranch_scc1 qkv_vst")
    a(f"s_add_u32 s48, s48, {KF}")
    a("s_add_u32 s49, s48, 1280")
    a(f"v_mov_b32 v{vOff}, 0")
    frag_off(vD0, vOff)
    for rt in range(2):
        a(f"buffer_store_dwordx2 {vr(P+rt*4,2)}, v{vOff}, s[{SWS}:{SWS+3}], s{48+rt} offen")
    a("s_branch qkv_kvst_done")
    a.label("qkv_vst")
    a(f"s_mul_i32 s48, s{s_rb}, {2*1344}")
    a(f"s_add_u32 s48, s48, {VF}")
    a("s_add_u32 s49, s48, 1344")
    a(f"v_lshrrev_b32 v{vA}, 4, v{vN}")
    a(f"v_lshlrev_b32 v{vA}, 1, v{vA}")
    a(f"v_bfe_u32 v{vA+1}, v{vN}, 2, 1")
    a(f"v_add_u32 v{vA}, v{vA}, v{vA+1}")
    a(f"v_mul_u32_u24 v{vA}, 21, v{vA}")
    a(f"v_add_u32 v{vA}, v{vA}, v{vD0}")
    a(f"v_lshlrev_b32 v{vOff}, 4, v{vA}")
    a(f"v_and_b32 v{vA}, 3, v{vN}")
    a(f"v_lshl_add_u32 v{vOff}, v{vA}, 1, v{vOff}")
    a(f"v_bfe_u32 v{vA}, v{vN}, 3, 1")
    a(f"v_lshl_add_u32 v{vOff}, v{vA}, 3, v{vOff}")
    for rt in range(2):
        r = P + rt * 4
        a(f"buffer_store_short v{r}, v{vOff}, s[{SWS}:{SWS+3}], s{48+rt} offen")
        a(f"buffer_store_short_d16_hi v{r}, v{vOff}, s[{SWS}:{SWS+3}], s{48+rt} offen offset:16")
        a(f"buffer_store_short v{r+1}, v{vOff}, s[{SWS}:{SWS+3}], s{48+rt} offen offset:32")
        a(f"buffer_store_short_d16_hi v{r+1}, v{vOff}, s[{SWS}:{SWS+3}], s{48+rt} offen offset:48")
    a.label("qkv_kvst_done")
    a("s_mov_b64 exec, s[54:55]")
    a(f"s_cmp_lg_u32 s{s_cb}, 7")
    a("s_cbranch_scc1 qkv_noones")
    a(f"s_cmp_lg_u32 s{s_w}, 3")
    a("s_cbranch_scc1 qkv_noones")
    a(f"s_mul_i32 s48, s{s_rb}, {2*1344}")
    a(f"s_add_u32 s48, s48, {VF + 320}")
    a(f"v_mul_u32_u24 v{vOff}, 336, v{vLane}")
    for e in range(4):
        a(f"v_mov_b32 v{P+e}, 0x3f803f80")
    a("s_mov_b64 exec, 0xff")
    a(f"buffer_store_dwordx4 {vr(P,4)}, v{vOff}, s[{SWS}:{SWS+3}], s48 offen")
    a("s_mov_b64 exec, s[54:55]")
    a.label("qkv_noones")
    a("s_waitcnt lgkmcnt(0)")
    a("s_barrier")
    a(f"s_cmp_lg_u32 s{s_w}, 0")
    a("s_cbranch_scc1 qkv_end")
    a(f"v_lshlrev_b32 v{vA}, 5, v{vLane}")
    a(f"ds_read_b128 {vr(P,4)}, v{vA} offset:{NB}")
    a(f"ds_read_b128 {vr(P+4,4)}, v{vA} offset:{NB+16}")
    a("s_waitcnt lgkmcnt(0)")
    for e in range(1, 8):
        a(f"v_add_f32 v{P}, v{P}, v{P+e}")
    a(f"v_mov_b32 v{vA}, 0")
    a(f"ds_max_u32 v{vA}, v{P} offset:{MX}")
    a("s_waitcnt lgkmcnt(0)")
    a(f"ds_read_b32 v{P}, v{vA} offset:{MX}")
    a(f"s_sub_u32 s48, s{s_cb}, 6")
    a("s_lshl_b32 s48, s48, 5")
    a(f"s_add_u32 s48, s48, s{s_rb}")
    a("s_lshl_b32 s48, s48, 2")
    a(f"s_add_u32 s48, s48, {KN}")
    a("s_waitcnt lgkmcnt(0)")
    a(f"buffer_store_dword v{P}, v{vA}, s[{SWS}:{SWS+3}], s48 offen")
    a.label("qkv_end")
    a("s_endpgm")
    return a.finish(), ("qkv_kernel", 256, 256, 131072, 256)


A_Q, A_O, A_S, A_P, A_K, A_V, A_M = 16, 48, 112, 144, 160, 192, 224
A_T = 228
NSET = 4
OOB = 0x80000000


def gen_attn_body(a, pfx, s_wg):
    s_w, s_rt, s_kh, s_hd = 32, 33, 34, 35
    SWS = 28
    vLane, vN, vH = 1, 2, 3
    vK1, vK2, vV = 4, 5, 6
    T = A_T
    a("s_load_dwordx2 s[12:13], s[0:1], 88")
    a("s_load_dwordx2 s[14:15], s[0:1], 32")
    lane_setup(a, T, vLane, vN, vH, s_w)
    a(f"s_and_b32 s3, s{s_wg}, 7")
    a(f"s_lshr_b32 s36, s{s_wg}, 5")
    a("s_lshl_b32 s3, s3, 3")
    a(f"s_add_u32 s{s_rt}, s3, s36")
    a(f"s_bfe_u32 s3, s{s_wg}, 0x20003")
    a(f"s_and_b32 s{s_kh}, s{s_w}, 1")
    a(f"s_lshr_b32 s36, s{s_w}, 1")
    a("s_lshl_b32 s3, s3, 3")
    a("s_lshl_b32 s36, s36, 2")
    a(f"s_add_u32 s{s_hd}, s3, s36")
    a(f"v_lshlrev_b32 v{vK1}, 4, v{vLane}")
    a(f"v_lshlrev_b32 v{vK2}, 3, v{vN}")
    a(f"v_add_u32 v{vK2}, 1024, v{vK2}")
    a(f"v_mov_b32 v{T}, {hx(OOB)}")
    a(f"v_cmp_eq_u32 vcc, 0, v{vH}")
    a(f"v_cndmask_b32 v{vK2}, v{T}, v{vK2}, vcc")
    a(f"v_mul_u32_u24 v{vV}, 21, v{vH}")
    a(f"v_add_u32 v{vV}, v{vV}, v{vN}")
    a(f"v_lshlrev_b32 v{vV}, 4, v{vV}")
    a(f"v_cmp_gt_u32 vcc, 21, v{vN}")
    a(f"v_cndmask_b32 v{vV}, v{T}, v{vV}, vcc")
    a("s_waitcnt lgkmcnt(0)")
    srd(a, SWS, 12, WS_END)
    a(f"s_add_u32 s12, s12, {KN}")
    a("s_addc_u32 s13, s13, 0")
    a("s_load_dwordx16 s[64:79], s[12:13], 0")
    a("s_load_dwordx16 s[80:95], s[12:13], 64")
    a("s_load_dwordx16 s[44:59], s[12:13], 128")
    a(f"s_lshl_b32 s36, s{s_rt}, 5")
    a(f"s_add_u32 s36, s36, s{s_hd}")
    a("s_mul_i32 s36, s36, 1280")
    a(f"s_add_u32 s36, s36, {QF}")
    for i in range(4):
        a(f"buffer_load_dwordx4 {vr(A_Q+8*i,4)}, v{vK1}, s[{SWS}:{SWS+3}], s36 offen")
        a(f"buffer_load_dwordx2 {vr(A_Q+8*i+4,2)}, v{vK2}, s[{SWS}:{SWS+3}], s36 offen")
        if i < 3:
            a("s_add_u32 s36, s36, 1280")
    s_kp, s_vp = 37, 38
    a(f"s_mul_i32 s{s_kp}, s{s_kh}, {32*1280}")
    a(f"s_add_u32 s{s_kp}, s{s_kp}, {KF}")
    a(f"s_mul_i32 s{s_vp}, s{s_kh}, {32*1344}")
    a(f"s_add_u32 s{s_vp}, s{s_vp}, {VF}")

    def loadK(st):
        a(f"buffer_load_dwordx4 {vr(A_K+8*st,4)}, v{vK1}, s[{SWS}:{SWS+3}], s{s_kp} offen")
        a(f"buffer_load_dwordx2 {vr(A_K+8*st+4,2)}, v{vK2}, s[{SWS}:{SWS+3}], s{s_kp} offen")
        a(f"s_add_u32 s{s_kp}, s{s_kp}, 1280")

    def loadV(st):
        a(f"buffer_load_dwordx4 {vr(A_V+8*st,4)}, v{vV}, s[{SWS}:{SWS+3}], s{s_vp} offen")
        a(f"buffer_load_dwordx4 {vr(A_V+8*st+4,4)}, v{vV}, s[{SWS}:{SWS+3}], s{s_vp} offen offset:672")
        a(f"s_add_u32 s{s_vp}, s{s_vp}, 1344")
    for st in range(NSET - 1):
        loadK(st)
        loadV(st)
    loadK(NSET - 1)
    for i in range(4):
        a(f"v_mov_b32 v{A_Q+8*i+6}, 0")
        a(f"v_mov_b32 v{A_Q+8*i+7}, 0")
    for st in range(NSET):
        a(f"v_mov_b32 v{A_K+8*st+6}, 0")
        a(f"v_mov_b32 v{A_K+8*st+7}, 0")
    for r in range(64):
        a(f"v_mov_b32 v{A_O+r}, 0")
    for r in range(16):
        a(f"v_mov_b32 v{A_P+r}, 0")
    for r in range(8):
        a(f"v_mov_b32 v{A_V+8*(NSET-1)+r}, 0")
    for r in range(4):
        a(f"v_mov_b32 v{A_M+r}, 0")
    a("s_waitcnt lgkmcnt(0)")
    for r in range(65, 96):
        a(f"s_max_u32 s64, s64, s{r}")
    for r in range(45, 60):
        a(f"s_max_u32 s44, s44, s{r}")
    a("s_load_dwordx16 s[80:95], s[12:13], 192")
    a("s_waitcnt lgkmcnt(0)")
    for r in range(80, 96):
        a(f"s_max_u32 s44, s44, s{r}")
    a(f"s_waitcnt vmcnt({4*NSET-2})")
    for i in range(4):
        a(f"v_mov_b32 v{T+i}, 0")
    for r in range(6):
        for i in range(4):
            a(f"v_dot2_f32_bf16 v{T+i}, v{A_Q+8*i+r}, v{A_Q+8*i+r}, v{T+i}")
    for i in range(4):
        a(f"v_mov_b32 v{T+4+i}, v{T+i}")
    for i in range(4):
        a(f"v_permlane32_swap_b32 v{T+i}, v{T+4+i}")
    for i in range(4):
        a(f"v_add_f32 v{T+i}, v{T+i}, v{T+4+i}")
    a(f"v_max3_f32 v{T}, v{T}, v{T+1}, v{T+2}")
    a(f"v_max_f32 v{T}, v{T}, v{T+3}")
    a(f"v_mul_f32 v{T}, s64, v{T}")
    a(f"v_mov_b32 v{T+1}, {hx(f2u(3600.0/1.05))}")
    a(f"v_cmp_nle_f32 vcc, v{T}, v{T+1}")
    a(f"s_cmp_gt_u32 s44, {hx(f2u(2.0**80))}")
    a(f"s_cbranch_scc1 {pfx}_slow")
    a(f"s_cbranch_vccnz {pfx}_slow")

    def qk(m, sb, ks, i):
        if m == 0:
            mfma32(a, A_S + 16 * sb, A_K + 8 * ks, A_Q + 8 * i, "0")
        else:
            mfma32(a, A_S + 16 * sb, A_K + 8 * ks + 4, A_Q + 8 * i + 4)

    def pv(m, pb, vs, i):
        mfma32(a, A_O + 16 * i, A_V + 8 * vs + 4 * m, A_P + 8 * pb + 4 * m)

    a(f"s_waitcnt vmcnt({4*NSET-4})")
    qk(0, 0, 0, 0)
    qk(1, 0, 0, 0)
    stamp(a, "attn")
    a(f"s_mov_b32 s39, {32//NSET}")
    a("s_nop 10")
    a.raw(".p2align 6")
    a.label(f"{pfx}_loop")
    for kk in range(NSET):
        for i in range(4):
            cur = i & 1
            S = A_S + 16 * cur
            P = A_P + 8 * cur
            nks, ni = (kk, i + 1) if i < 3 else ((kk + 1) % NSET, 0)
            pvs, pi = (kk, i - 1) if i > 0 else ((kk - 1) % NSET, 3)
            if i in (1, 3) and not os.environ.get("NOWAIT"):
                a(f"s_waitcnt vmcnt({4*NSET-6})")
            qk(0, cur ^ 1, nks, ni)
            for e in range(0, 4):
                a(f"v_exp_f32 v{S+e}, v{S+e}")
            qk(1, cur ^ 1, nks, ni)
            if i == 1 and not os.environ.get("NOKV"):
                loadV((kk - 1) % NSET)
            if i == 3 and not os.environ.get("NOKV"):
                loadK(kk)
            for e in range(4, 8):
                a(f"v_exp_f32 v{S+e}, v{S+e}")
            pv(0, cur ^ 1, pvs, pi)
            for e in range(8, 12):
                a(f"v_exp_f32 v{S+e}, v{S+e}")
            for j in range(0, 2):
                a(f"v_cvt_pk_bf16_f32 v{P+j}, v{S+2*j}, v{S+2*j+1}")
            pv(1, cur ^ 1, pvs, pi)
            for e in range(12, 16):
                a(f"v_exp_f32 v{S+e}, v{S+e}")
            for j in range(2, 8):
                a(f"v_cvt_pk_bf16_f32 v{P+j}, v{S+2*j}, v{S+2*j+1}")
    a("s_sub_u32 s39, s39, 1")
    a("s_cmp_lg_u32 s39, 0")
    a(f"s_cbranch_scc1 {pfx}_loop")
    pv(0, 1, NSET - 1, 3)
    pv(1, 1, NSET - 1, 3)
    stamp(a, "attn")
    a(f"s_branch {pfx}_epi")

    a.label(f"{pfx}_slow")
    for r in range(4):
        a(f"v_mov_b32 v{A_M+r}, {hx(f2u(-1e30))}")
    a("s_mov_b32 s39, 32")
    a(f"s_sub_u32 s{s_kp}, s{s_kp}, {1280*(NSET-1)}")
    a(f"s_sub_u32 s{s_vp}, s{s_vp}, {1344*(NSET-2)}")
    a.label(f"{pfx}_sloop")
    a("s_waitcnt vmcnt(0)")
    for i in range(4):
        S, P, M = A_S, A_P, A_M + i
        qk(0, 0, 0, i)
        qk(1, 0, 0, i)
        a(f"v_max3_f32 v{T}, v{S}, v{S+1}, v{S+2}")
        for e in range(3, 15, 2):
            a(f"v_max3_f32 v{T}, v{T}, v{S+e}, v{S+e+1}")
        a(f"v_max_f32 v{T}, v{T}, v{S+15}")
        a(f"v_mov_b32 v{T+1}, v{T}")
        a(f"v_permlane32_swap_b32 v{T}, v{T+1}")
        a(f"v_max3_f32 v{T}, v{T}, v{T+1}, v{M}")
        a(f"v_sub_f32 v{T+1}, v{M}, v{T}")
        a(f"v_exp_f32 v{T+1}, v{T+1}")
        a(f"v_mov_b32 v{M}, v{T}")
        for e in range(16):
            a(f"v_sub_f32 v{S+e}, v{S+e}, v{T}")
            a(f"v_exp_f32 v{S+e}, v{S+e}")
        for j in range(8):
            a(f"v_cvt_pk_bf16_f32 v{P+j}, v{S+2*j}, v{S+2*j+1}")
        for e in range(16):
            a(f"v_mul_f32 v{A_O+16*i+e}, v{A_O+16*i+e}, v{T+1}")
        pv(0, 0, 0, i)
        pv(1, 0, 0, i)
    loadK(0)
    loadV(0)
    a("s_sub_u32 s39, s39, 1")
    a("s_cmp_lg_u32 s39, 0")
    a(f"s_cbranch_scc1 {pfx}_sloop")

    a.label(f"{pfx}_epi")
    a("s_waitcnt vmcnt(0)")
    if PREFETCH:
        srd(a, 16, 14, 819200)
        a(f"s_lshr_b32 s40, s{s_wg}, 3")
        a("s_lshl_b32 s40, s40, 2")
        a(f"s_add_u32 s40, s40, s{s_w}")
        a("s_mul_i32 s40, s40, 6400")
        a(f"v_lshlrev_b32 v{T+14}, 6, v{vLane}")
        a(f"buffer_load_dword v{T+15}, v{T+14}, s[16:19], s40 offen")
        a("s_add_u32 s40, s40, 4096")
        a(f"buffer_load_dword v{T+15}, v{T+14}, s[16:19], s40 offen")
    vW, vR = T, T + 1
    a(f"s_mul_i32 s40, s{s_w}, 6656")
    a(f"s_xor_b32 s41, s{s_w}, 1")
    a("s_mul_i32 s41, s41, 6656")
    a(f"v_add_u32 v{vW}, s40, v{vK1}")
    a(f"v_add_u32 v{vR}, s41, v{vK1}")
    a(f"v_lshlrev_b32 v{T+2}, 2, v{vLane}")
    a(f"v_add_u32 v{T+3}, s41, v{T+2}")
    a(f"v_add_u32 v{T+2}, s40, v{T+2}")
    a(f"s_cmp_eq_u32 s{s_kh}, 0")
    a(f"s_cbranch_scc1 {pfx}_e0")
    for t in range(2):
        for q in range(3):
            a(f"ds_write_b128 v{vW}, {vr(A_O+16*t+4*q,4)} offset:{(t*3+q)*1024}")
        a(f"ds_write_b32 v{T+2}, v{A_M+t} offset:{6144+t*256}")
    a("s_waitcnt lgkmcnt(0)")
    for t in range(2):
        for e in range(12):
            a(f"v_mov_b32 v{A_O+16*t+e}, v{A_O+16*(t+2)+e}")
        a(f"v_mov_b32 v{A_M+t}, v{A_M+t+2}")
    a(f"s_add_u32 s{s_hd}, s{s_hd}, 2")
    a(f"s_branch {pfx}_e1")
    a.label(f"{pfx}_e0")
    for t in range(2):
        for q in range(3):
            a(f"ds_write_b128 v{vW}, {vr(A_O+16*(t+2)+4*q,4)} offset:{(t*3+q)*1024}")
        a(f"ds_write_b32 v{T+2}, v{A_M+t+2} offset:{6144+t*256}")
    a("s_waitcnt lgkmcnt(0)")
    a.label(f"{pfx}_e1")
    a("s_barrier")
    for t in range(2):
        for q in range(3):
            a(f"ds_read_b128 {vr(A_S+16*t+4*q,4)}, v{vR} offset:{(t*3+q)*1024}")
        a(f"ds_read_b32 v{A_M+2+t}, v{T+3} offset:{6144+t*256}")
    a("s_waitcnt lgkmcnt(0)")
    a(f"s_mul_i32 s40, s{s_rt}, {40*1024}")
    a(f"s_add_u32 s40, s40, {OF}")
    a(f"v_mov_b32 v{T+12}, {hx(OOB)}")
    a(f"v_cmp_eq_u32 s[42:43], 0, v{vH}")
    for t in range(2):
        O, Pz, Ma, Mp = A_O + 16 * t, A_S + 16 * t, A_M + t, A_M + 2 + t
        a(f"v_max_f32 v{T+4}, v{Ma}, v{Mp}")
        a(f"v_sub_f32 v{T+5}, v{Ma}, v{T+4}")
        a(f"v_sub_f32 v{T+6}, v{Mp}, v{T+4}")
        a(f"v_exp_f32 v{T+5}, v{T+5}")
        a(f"v_exp_f32 v{T+6}, v{T+6}")
        for e in range(12):
            a(f"v_mul_f32 v{O+e}, v{O+e}, v{T+5}")
            a(f"v_fmac_f32 v{O+e}, v{Pz+e}, v{T+6}")
        a(f"v_mov_b32 v{T+7}, v{O+8}")
        a(f"v_mov_b32 v{T+8}, v{O+8}")
        a(f"v_permlane32_swap_b32 v{T+7}, v{T+8}")
        a(f"v_rcp_f32 v{T+8}, v{T+8}")
        for e in range(12):
            a(f"v_mul_f32 v{O+e}, v{O+e}, v{T+8}")
        for q in range(3):
            a(f"v_cvt_pk_bf16_f32 v{O+4*q}, v{O+4*q}, v{O+4*q+1}")
            a(f"v_cvt_pk_bf16_f32 v{O+4*q+1}, v{O+4*q+2}, v{O+4*q+3}")
        a(f"s_add_u32 s41, s{s_hd}, {t}")
        a("s_mul_i32 s41, s41, 20")
        for q in range(3):
            k, off = T + 9, T + 10
            a(f"v_lshlrev_b32 v{k}, 2, v{vH}")
            a(f"v_add_u32 v{k}, s41, v{k}")
            if q:
                a(f"v_add_u32 v{k}, {8*q}, v{k}")
            a(f"v_lshrrev_b32 v{off}, 3, v{k}")
            a(f"v_lshlrev_b32 v{off}, 9, v{off}")
            a(f"v_lshl_add_u32 v{off}, v{vN}, 4, v{off}")
            a(f"v_and_b32 v{k}, 4, v{k}")
            a(f"v_lshl_add_u32 v{off}, v{k}, 1, v{off}")
            if q == 2:
                a(f"v_cndmask_b32 v{off}, v{T+12}, v{off}, s[42:43]")
            a(f"buffer_store_dwordx2 {vr(O+4*q,2)}, v{off}, s[{SWS}:{SWS+3}], s40 offen")


def gen_attn():
    a = Asm()
    a.label("attn_kernel")
    a("s_cmp_ge_u32 s2, 256")
    a("s_cbranch_scc1 attn_end")
    stamp_begin(a, "attn")
    gen_attn_body(a, "attn", 2)
    stamp_end(a, "attn", 28, 32, 250)
    a.label("attn_end")
    a("s_endpgm")
    return a.finish(), ("attn_kernel", 256, 256, 26624, 256 if STAMP else 248)


R_ACC, R_A, R_B, R_T = 16, 112, 160, 208


class TypeR:
    def __init__(self, a, pfx, NT, NS, vTr, vWo, vB, s_w, srd_of_tile, goff, s_bp, SWS, tr2, bmods=""):
        self.__dict__.update(locals())
        self.SLOT = 4 * NT * 1024
        self.sname = {"gu": "gateup", "dn": "down"}[pfx[:2]]
        self.s_m = 60
        self.per = NT + 4

    def dma_ops(self, stage):
        slot = stage % 3
        s_g0, s_g1, gstep = self.goff
        out = []
        for t in range(self.NT):
            sr, grp, tt = self.srd_of_tile(t)
            out.append([f"s_add_u32 m0, s{self.s_m}, {slot*self.SLOT + t*1024}",
                        f"s_add_u32 s61, s{s_g0 if grp == 0 else s_g1}, {stage*gstep + tt*64}",
                        f"buffer_load_dwordx4 v{self.vWo}, s[{sr}:{sr+3}], s61 offen lds"])
        return out

    def b_ops(self, stage):
        slot = stage % 3
        bl = []
        for j in range(4):
            g = []
            if j == 0:
                g.append(f"s_add_u32 s62, s{self.s_bp}, {stage*4096}")
            g.append(f"buffer_load_dwordx4 {vr(R_B+slot*16+j*4,4)}, v{self.vB}, s[{self.SWS}:{self.SWS+3}], s62 offen offset:{j*1024}{self.bmods}")
            bl.append(g)
        return bl

    def vm_ops(self, stage):
        out, bl, res = self.dma_ops(stage), self.b_ops(stage), []
        while out or bl:
            if out:
                res.append(out.pop(0))
            if bl and len(res) > 1:
                res.append(bl.pop(0))
        return res

    def emit(self, groups):
        for g in groups:
            for x in g:
                self.a(x)

    def reads(self, stage, j):
        buf = (stage * 4 + j) & 1
        slot = stage % 3
        base = (slot & 1) * self.SLOT + j * self.NT * 1024
        va = self.vTr + (slot >> 1)
        out = []
        for t in range(self.NT):
            r = R_A + buf * 24 + t * 4
            out.append(f"ds_read_b64_tr_b16 {vr(r,2)}, v{va} offset:{base + t*1024}")
            out.append(f"ds_read_b64_tr_b16 {vr(r+2,2)}, v{va} offset:{base + t*1024 + self.tr2}")
        return out

    def mf(self, stage, j, t):
        buf = (stage * 4 + j) & 1
        first = stage == 0 and j == 0
        mfma32(self.a, R_ACC + 16 * t, R_A + buf * 24 + t * 4, R_B + (stage % 3) * 16 + j * 4, "0" if first else None)

    def setup(self):
        a = self.a
        a(f"s_mul_i32 s{self.s_m}, s{self.s_w}, {self.NT*1024}")
        a(f"v_add_u32 v{self.vTr+1}, {2*self.SLOT}, v{self.vTr}")

    def main(self, first_wait):
        a, NT, NS = self.a, self.NT, self.NS
        stamp(a, self.sname)
        a(f"s_waitcnt vmcnt({first_wait})")
        a("s_barrier")
        stamp(a, self.sname)
        for x in self.reads(0, 0):
            a(x)
        for i in range(NS):
            if i in (1, 2, 4):
                stamp(a, self.sname)
            ops = self.vm_ops(i + 2) if i + 2 < NS else []
            nslots = 3 * NT
            place = {}
            for k, g in enumerate(ops):
                place[(k * nslots) // len(ops)] = g
            for j in range(3):
                rd = self.reads(i, j + 1)
                for t in range(NT):
                    a(f"s_waitcnt lgkmcnt({2*(NT-1)})")
                    self.mf(i, j, t)
                    a(rd[2 * t])
                    a(rd[2 * t + 1])
                    if j * NT + t in place:
                        self.emit([place[j * NT + t]])
            last = i + 1 == NS
            H = NT if last else (NT + 1) // 2
            for t in range(H):
                a(f"s_waitcnt lgkmcnt({2*(NT-1-t)})")
                self.mf(i, 3, t)
            if not last:
                a(f"s_waitcnt vmcnt({self.per if ops else 0}) lgkmcnt(0)")
                a("s_barrier")
                rd = self.reads(i + 1, 0)
                n = NT - H
                for k, t in enumerate(range(H, NT)):
                    self.mf(i, 3, t)
                    for x in rd[(k * len(rd)) // n:((k + 1) * len(rd)) // n]:
                        a(x)


def gen_gateup_body(a, pfx, s_wg, mid_hook=None, smods=''):
    s_w, s_rb, s_cb = 32, 33, 34
    SW1, SW3, SWS = 16, 20, 28
    vLane, vN, vH, vWo, vB, vTr = 1, 2, 3, 4, 5, 6
    T = R_T
    a("s_load_dwordx4 s[4:7], s[0:1], 48")
    a("s_load_dwordx2 s[12:13], s[0:1], 88")
    lane_setup(a, T, vLane, vN, vH, s_w)
    a(f"s_and_b32 s3, s{s_wg}, 7")
    a(f"s_lshr_b32 s35, s{s_wg}, 3")
    a("s_and_b32 s36, s3, 1")
    a("s_lshl_b32 s36, s36, 3")
    a("s_and_b32 s37, s35, 7")
    a(f"s_add_u32 s{s_rb}, s36, s37")
    a("s_lshr_b32 s36, s3, 1")
    a("s_lshl_b32 s36, s36, 2")
    a("s_lshr_b32 s37, s35, 3")
    a(f"s_add_u32 s{s_cb}, s36, s37")
    a(f"v_lshrrev_b32 v{T}, 2, v{vLane}")
    a(f"v_mul_u32_u24 v{vWo}, 3072, v{T}")
    a(f"v_and_b32 v{T}, 3, v{vLane}")
    a(f"v_lshl_add_u32 v{vWo}, v{T}, 4, v{vWo}")
    tr_base(a, vTr, T, vLane, vH, 9)
    a(f"v_lshlrev_b32 v{vB}, 4, v{vLane}")
    a(f"s_mul_i32 s40, s{s_w}, {16*3072}")
    a(f"s_mul_i32 s41, s{s_cb}, 192")
    a("s_add_u32 s40, s40, s41")
    a(f"s_lshl_b32 s42, s{s_rb}, 2")
    a(f"s_add_u32 s42, s42, s{s_w}")
    a(f"s_mul_i32 s43, s42, {40*1024}")
    if XF:
        a(f"s_add_u32 s43, s43, {XF}")
    a("s_waitcnt lgkmcnt(0)")
    srd(a, SW1, 4, 1966080)
    srd(a, SW3, 6, 1966080)
    srd(a, SWS, 12, WS_END)
    R = TypeR(a, pfx, 6, 10, vTr, vWo, vB, s_w,
              lambda t: (SW1, 0, t) if t < 3 else (SW3, 0, t - 3), (40, 40, 64 * 3072), 43, SWS, 256)
    R.setup()
    R.emit(R.vm_ops(0) + R.vm_ops(1))
    R.main(R.per)
    if mid_hook:
        mid_hook()
    stamp(a, "gateup")
    a(f"s_mov_b32 s44, {hx(f2u(-math.log2(math.e)))}")
    a(f"s_mul_i32 s45, s42, {96*1024}")
    a(f"s_mul_i32 s46, s{s_cb}, {6*1024}")
    a("s_add_u32 s45, s45, s46")
    a(f"s_add_u32 s45, s45, {HF}")
    a(f"v_mov_b32 v{T}, s44")
    a(f"v_mov_b32 v{T+1}, s44")
    a(f"v_mov_b32 v{T+2}, 1.0")
    a(f"v_mov_b32 v{T+3}, 1.0")
    for t in range(3):
        g, u = R_ACC + 16 * t, R_ACC + 16 * (t + 3)
        E = R_A
        for e in range(0, 16, 2):
            a(f"v_pk_mul_f32 {vr(E+e,2)}, {vr(g+e,2)}, {vr(T,2)}")
        for e in range(16):
            a(f"v_exp_f32 v{E+e}, v{E+e}")
        for e in range(0, 16, 2):
            a(f"v_pk_add_f32 {vr(E+e,2)}, {vr(E+e,2)}, {vr(T+2,2)}")
        for e in range(16):
            a(f"v_rcp_f32 v{E+e}, v{E+e}")
        for e in range(0, 16, 2):
            a(f"v_pk_mul_f32 {vr(g+e,2)}, {vr(g+e,2)}, {vr(u+e,2)}")
        for e in range(0, 16, 2):
            a(f"v_pk_mul_f32 {vr(g+e,2)}, {vr(g+e,2)}, {vr(E+e,2)}")
        for j in range(8):
            a(f"v_cvt_pk_bf16_f32 v{u+j}, v{g+2*j}, v{g+2*j+1}")
        for hf in range(2):
            o = (2 * t + hf) * 1024
            if o < 4096:
                a(f"buffer_store_dwordx4 {vr(u+4*hf,4)}, v{vB}, s[{SWS}:{SWS+3}], s45 offen offset:{o}{smods}")
            else:
                a(f"s_add_u32 s46, s45, {o}")
                a(f"buffer_store_dwordx4 {vr(u+4*hf,4)}, v{vB}, s[{SWS}:{SWS+3}], s46 offen{smods}")


def gen_gateup():
    a = Asm()
    a.label("gateup_kernel")
    a("s_cmp_ge_u32 s2, 256")
    a("s_cbranch_scc1 gateup_end")
    stamp_begin(a, "gateup")
    gen_gateup_body(a, "gu", 2)
    stamp_end(a, "gateup", 28, 32, 240)
    a.label("gateup_end")
    a("s_endpgm")
    return a.finish(), ("gateup_kernel", 256, 256, 73728, 256 if STAMP else 216)


D_AF, D_BF, D_RES, D_XR, D_T = 112, 136, 184, 212, 224
RING = 18432


def tile64_setup(a, s_wg, s_rb, s_cb):
    a(f"s_and_b32 s3, s{s_wg}, 7")
    a("s_lshl_b32 s3, s3, 2")
    a(f"s_bfe_u32 s36, s{s_wg}, 0x20003")
    a(f"s_add_u32 s{s_rb}, s3, s36")
    a(f"s_lshr_b32 s{s_cb}, s{s_wg}, 5")


def gen_down_setup(a, s_wg, standalone, bmods=""):
    s_w = 32
    s_rb, s_cb = 63, 64
    SW, SWS, SX = 24, 28, 76
    vLane, vN, vH, vWo, vB, vTr, vXo = 1, 2, 3, 8, 5, 9, 10
    T = D_T
    a("s_load_dwordx2 s[8:9], s[0:1], 64")
    a("s_load_dwordx2 s[14:15], s[0:1], 0")
    if standalone:
        a("s_load_dwordx2 s[12:13], s[0:1], 88")
        lane_setup(a, T, vLane, vN, vH, s_w)
        a(f"v_lshlrev_b32 v{vB}, 4, v{vLane}")
    tile64_setup(a, s_wg, s_rb, s_cb)
    a(f"v_lshrrev_b32 v{T}, 2, v{vLane}")
    a(f"v_mul_u32_u24 v{vWo}, 1280, v{T}")
    a(f"v_and_b32 v{T}, 3, v{vLane}")
    a(f"v_lshl_add_u32 v{vWo}, v{T}, 4, v{vWo}")
    tr_base(a, vTr, T, vLane, vH, 8)
    a(f"s_mul_i32 s67, s{s_w}, {RING}")
    a(f"v_add_u32 v{vTr}, s67, v{vTr}")
    a(f"v_mul_u32_u24 v{vXo}, 1280, v{vN}")
    a(f"v_lshl_add_u32 v{vXo}, v{vH}, 3, v{vXo}")
    a(f"s_mul_i32 s66, s{s_w}, {384*1280}")
    a(f"s_mul_i32 s37, s{s_cb}, 192")
    a("s_add_u32 s66, s66, s37")
    a(f"s_mul_i32 s68, s{s_rb}, {2*96*1024}")
    a(f"s_mul_i32 s36, s{s_w}, {24*1024}")
    a("s_add_u32 s68, s68, s36")
    a(f"s_add_u32 s68, s68, {HF}")
    a(f"s_add_u32 s65, s68, {96*1024}")
    a(f"s_mul_i32 s70, s{s_rb}, {64*1280}")
    a("s_add_u32 s70, s70, s37")
    a(f"s_lshl_b32 s36, s{s_w}, 4")
    a("s_add_u32 s70, s70, s36")
    a(f"s_add_u32 s71, s70, {32*1280}")
    a("s_waitcnt lgkmcnt(0)")
    srd(a, SW, 8, 1966080)
    srd(a, SX, 14, 2621440)
    if standalone:
        srd(a, SWS, 12, WS_END)
    K = TypeK(a, 24, 6, 6, R_ACC, D_AF, D_BF, vTr, 512, vWo, SW, 66, 16 * 1280, 67, vB, SWS, 68, 65, bmods)
    return K


def gen_down_issue(a, K):
    SX, vXo = 76, 10
    for rt in range(2):
        for ct in range(3):
            a(f"buffer_load_dwordx2 {vr(D_XR+(rt*3+ct)*2,2)}, v{vXo}, s[{SX}:{SX+3}], s{70+rt} offen offset:{ct*64}")
    order = [("x",)] * 6
    for s in range(6):
        K.emit(K.dma(s))
        order += [("d", s)] * 3
    return K, order


def gen_down_rest(a, K, order):
    s_w, s_rb, s_cb, SWS, vB, vLane = 32, 63, 64, 28, 5, 1
    T = D_T
    for s in range(6):
        K.emit(K.bl(s))
        order = order + [("b", s)] * 2
    K.main(order)
    stamp(a, "mffn")
    stamp(a, "down")
    a("s_setprio 2")
    reduce4(a, "dn", R_ACC, D_RES, R_ACC, vB, T, s_w, 67, 0, RING)
    a("s_mov_b32 s49, 0xffff0000")
    a(f"s_mul_i32 s45, s{s_rb}, 40")
    a(f"s_mul_i32 s46, s{s_cb}, 3")
    a("s_add_u32 s45, s45, s46")
    a("s_lshl_b32 s45, s45, 11")
    a(f"s_lshl_b32 s46, s{s_w}, 9")
    a("s_add_u32 s45, s45, s46")
    a(f"s_add_u32 s45, s45, {YF}")
    a(f"v_lshlrev_b32 v{T+4}, 3, v{vLane}")
    for ct in range(3):
        if ct == 2:
            a(f"s_cmp_eq_u32 s{s_cb}, 6")
            a("s_cbranch_scc1 dn_skip")
        for rt in range(2):
            r = D_RES + (rt * 3 + ct) * 4
            xr = D_XR + (rt * 3 + ct) * 2
            for e in range(2):
                a(f"v_lshlrev_b32 v{T}, 16, v{xr+e}")
                a(f"v_and_b32 v{T+1}, s49, v{xr+e}")
                a(f"v_pk_add_f32 {vr(r+2*e,2)}, {vr(r+2*e,2)}, {vr(T,2)}")
            a(f"v_cvt_pk_bf16_f32 v{r}, v{r}, v{r+1}")
            a(f"v_cvt_pk_bf16_f32 v{r+1}, v{r+2}, v{r+3}")
            a(f"s_add_u32 s46, s45, {(rt*20+ct)*2048}")
            a(f"buffer_store_dwordx2 {vr(r,2)}, v{T+4}, s[{SWS}:{SWS+3}], s46 offen")
    a.label("dn_skip")


def gen_down():
    a = Asm()
    a.label("down_kernel")
    a("s_cmp_ge_u32 s2, 224")
    a("s_cbranch_scc1 down_end")
    stamp_begin(a, "down")
    K, order = gen_down_issue(a, gen_down_setup(a, 2, True))
    stamp(a, "down")
    gen_down_rest(a, K, order)
    stamp_end(a, "down", 28, 32, 240)
    a.label("down_end")
    a("s_endpgm")
    return a.finish(), ("down_kernel", 224, 256, 73728, 256 if STAMP else 232)


def gen_main():
    a = Asm()
    a.label("main_kernel")
    a("s_cmp_ge_u32 s2, 512")
    a("s_cbranch_scc1 main_end")
    a("s_cmp_ge_u32 s2, 256")
    a("s_cbranch_scc1 main_ffn")
    if PRIO_ATTN:
        a(f"s_setprio {PRIO_ATTN}")
    stamp_begin(a, "mattn")
    gen_attn_body(a, "ma", 2)
    stamp_end(a, "mattn", 28, 32, 250)
    a("s_endpgm")
    a.label("main_ffn")
    if PRIO_FFN:
        a(f"s_setprio {PRIO_FFN}")
    a("s_sub_u32 s69, s2, 256")
    stamp_begin(a, "mffn")
    st = {}
    K0 = gen_down_setup(a, 69, True, " sc1")
    if PREFETCH:
        a("s_lshr_b32 s36, s69, 3")
        a("s_lshl_b32 s36, s36, 2")
        a("s_add_u32 s36, s36, s32")
        a("s_lshl_b32 s36, s36, 14")
        a(f"v_lshlrev_b32 v{D_T}, 6, v1")
        for q in range(4):
            a(f"s_add_u32 s37, s36, {q*4096}")
            a(f"buffer_load_dword v{D_T+1}, v{D_T}, s[24:27], s37 offen")

    def mid():
        stamp(a, "mffn")
        a("s_barrier")
        a("s_cmp_ge_u32 s69, 224")
        a("s_cbranch_scc1 main_nodn")
        st["K"] = gen_down_issue(a, K0)
        a.label("main_nodn")
        a("s_setprio 2")
    gen_gateup_body(a, "gu", 69, mid, " sc1")
    K, order = st["K"]
    SD = 28
    a("s_setprio 0")
    a("s_lshl_b32 s92, s33, 8")
    a(f"s_add_u32 s92, s92, {CT}")
    a("s_lshr_b32 s93, s63, 1")
    a("s_lshl_b32 s93, s93, 8")
    a(f"s_add_u32 s93, s93, {CT}")
    a("s_waitcnt vmcnt(0)")
    a("s_barrier")
    stamp(a, "mffn")
    a("s_cmp_lg_u32 s32, 0")
    a("s_cbranch_scc1 main_polled")
    a(f"v_mov_b32 v{D_T}, 0")
    a(f"v_mov_b32 v{D_T+1}, 1")
    a("s_mov_b64 exec, 1")
    a(f"buffer_atomic_add v{D_T+1}, v{D_T}, s[{SD}:{SD+3}], s92 offen sc1")
    a("s_cmp_ge_u32 s69, 224")
    a("s_cbranch_scc1 main_pdone")
    a.label("main_poll")
    a(f"buffer_load_dword v{D_T+2}, v{D_T}, s[{SD}:{SD+3}], s93 offen sc1")
    a("s_waitcnt vmcnt(0)")
    a(f"v_readfirstlane_b32 s95, v{D_T+2}")
    a("s_cmp_ge_u32 s95, 16")
    a("s_cbranch_scc1 main_pdone")
    a(f"s_sleep {os.environ.get('SLEEP', '8')}")
    a("s_branch main_poll")
    a.label("main_pdone")
    a("s_mov_b64 exec, -1")
    a.label("main_polled")
    a("s_cmp_ge_u32 s69, 224")
    a("s_cbranch_scc1 main_end")
    a("s_barrier")
    stamp(a, "mffn")
    a(f"s_setprio {PRIO_FFN}")
    gen_down_rest(a, K, [("d", s) for s in range(6)])
    stamp_end(a, "mffn", 28, 32, 240, 69)
    a.label("main_end")
    a("s_endpgm")
    return a.finish(), ("main_kernel", 512, 256, 73728, 256 if STAMP else 248)


PREFETCH = int(os.environ.get("PREFETCH", "1"))
PRIO_ATTN = int(os.environ.get("PRIO_ATTN", "0"))
PRIO_FFN = int(os.environ.get("PRIO_FFN", "0"))


def gen_final():
    a = Asm()
    a.label("final_kernel")
    s_w, s_rb, s_cb = 32, 63, 64
    SW, SO, SWS = 20, 24, 28
    vLane, vN, vH = 1, 2, 3
    vB, vWo, vXo, vTr = 5, 8, 10, 9
    T = D_T
    a("s_cmp_ge_u32 s2, 224")
    a("s_cbranch_scc1 final_end")
    stamp_begin(a, "final")
    a("s_load_dwordx2 s[6:7], s[0:1], 32")
    a("s_load_dwordx2 s[8:9], s[0:1], 72")
    a("s_load_dwordx2 s[12:13], s[0:1], 88")
    lane_setup(a, T, vLane, vN, vH, s_w)
    tile64_setup(a, 2, s_rb, s_cb)
    a(f"v_lshlrev_b32 v{vB}, 4, v{vLane}")
    a(f"v_lshrrev_b32 v{T}, 2, v{vLane}")
    a(f"v_mul_u32_u24 v{vWo}, 1280, v{T}")
    a(f"v_and_b32 v{T}, 3, v{vLane}")
    a(f"v_lshl_add_u32 v{vWo}, v{T}, 4, v{vWo}")
    a(f"v_mul_u32_u24 v{vXo}, 1280, v{vN}")
    a(f"v_lshl_add_u32 v{vXo}, v{vH}, 3, v{vXo}")
    tr_base(a, vTr, T, vLane, vH, 9)
    a(f"s_mul_i32 s67, s{s_w}, {RING}")
    a(f"v_add_u32 v{vTr}, s67, v{vTr}")
    a(f"s_mul_i32 s66, s{s_w}, {160*1280}")
    a(f"s_mul_i32 s37, s{s_cb}, 192")
    a("s_add_u32 s66, s66, s37")
    a(f"s_mul_i32 s68, s{s_rb}, {2*40*1024}")
    a(f"s_mul_i32 s36, s{s_w}, {10*1024}")
    a("s_add_u32 s68, s68, s36")
    a(f"s_add_u32 s68, s68, {OF}")
    a(f"s_add_u32 s65, s68, {40*1024}")
    a(f"s_mul_i32 s70, s{s_rb}, {64*1280}")
    a("s_add_u32 s70, s70, s37")
    a(f"s_lshl_b32 s36, s{s_w}, 4")
    a("s_add_u32 s70, s70, s36")
    a(f"s_add_u32 s71, s70, {32*1280}")
    a(f"s_mul_i32 s45, s{s_rb}, 40")
    a(f"s_mul_i32 s46, s{s_cb}, 3")
    a("s_add_u32 s45, s45, s46")
    a("s_lshl_b32 s45, s45, 11")
    a(f"s_lshl_b32 s46, s{s_w}, 9")
    a("s_add_u32 s45, s45, s46")
    a(f"s_add_u32 s45, s45, {YF}")
    a(f"v_lshlrev_b32 v{T+4}, 3, v{vLane}")
    a("s_waitcnt lgkmcnt(0)")
    srd(a, SW, 6, 819200)
    srd(a, SO, 8, 2621440)
    srd(a, SWS, 12, WS_END)
    K = TypeK(a, 10, 6, 6, R_ACC, D_AF, D_BF, vTr, 256, vWo, SW, 66, 16 * 1280, 67, vB, SWS, 68, 65)
    order = []
    for s in range(6):
        K.emit(K.bl(s))
        K.emit(K.dma(s))
        order += [("b", s)] * 2 + [("d", s)] * 3
        if s == 2:
            for rt in range(2):
                for ct in range(3):
                    a(f"s_add_u32 s46, s45, {(rt*20+ct)*2048}")
                    a(f"buffer_load_dwordx2 {vr(D_XR+(rt*3+ct)*2,2)}, v{T+4}, s[{SWS}:{SWS+3}], s46 offen")
            order += [("x",)] * 6
    stamp(a, "final")
    K.main(order)
    stamp(a, "final")
    reduce4(a, "fin", R_ACC, D_RES, R_ACC, vB, T, s_w, 67, 0, RING)
    stamp(a, "final")
    a("s_mov_b32 s49, 0xffff0000")
    for ct in range(3):
        if ct == 2:
            a(f"s_cmp_eq_u32 s{s_cb}, 6")
            a("s_cbranch_scc1 final_skip")
        for rt in range(2):
            r = D_RES + (rt * 3 + ct) * 4
            xr = D_XR + (rt * 3 + ct) * 2
            for e in range(2):
                a(f"v_lshlrev_b32 v{T}, 16, v{xr+e}")
                a(f"v_and_b32 v{T+1}, s49, v{xr+e}")
                a(f"v_pk_add_f32 {vr(r+2*e,2)}, {vr(r+2*e,2)}, {vr(T,2)}")
            a(f"v_cvt_pk_bf16_f32 v{r}, v{r}, v{r+1}")
            a(f"v_cvt_pk_bf16_f32 v{r+1}, v{r+2}, v{r+3}")
            a(f"buffer_store_dwordx2 {vr(r,2)}, v{vXo}, s[{SO}:{SO+3}], s{70+rt} offen offset:{ct*64}")
    a.label("final_skip")
    stamp_end(a, "final", SWS, s_w, 240)
    a.label("final_end")
    a("s_endpgm")
    return a.finish(), ("final_kernel", 224, 256, 73728, 256 if STAMP else 232)


def gen_empty():
    a = Asm()
    a.label("empty_kernel")
    a("s_endpgm")
    return a.finish(), ("empty_kernel", 256, 256, 65536, 256)


KERNELS = {"empty": gen_empty, "main": gen_main, "qkv": gen_qkv, "gateup": gen_gateup, "attn": gen_attn, "down": gen_down, "final": gen_final}
HEADER = open("parallel_sum__grouped_kv_mqa__glu_gated_swiglu__prompt.s.ref").read().split("; Override launch")[0] if False else ""


DEFAULT = ["qkv", "main", "final"]


def build(order):
    texts, launches = {}, []
    for k in order:
        t, info = KERNELS[k]()
        texts[info[0]] = (t, info)
        launches.append(info)
    out = "; generated by dev/gen.py -- LN + MQA attention + SwiGLU block for gfx950\n"
    for name, grid, block, lds, vg in launches:
        out += f"; @launch kernel={name} grid=({grid},1,1) block=({block},1,1) lds={lds}\n"
    out += '.amdgcn_target "amdgcn-amd-amdhsa--gfx950"\n.text\n'
    for name, (t, info) in texts.items():
        out += kernel_header(name) + t
    out += '.section .rodata,"a"\n'
    for name, (t, info) in texts.items():
        out += kernel_desc(name, info[4])
    return out


if __name__ == "__main__":
    order = sys.argv[2].split(",") if len(sys.argv) > 2 else DEFAULT
    open(sys.argv[1], "w").write(build(order))
```

```python
import math
import struct
import sys

from asmlib import Asm

XF = 0x0
QF = 0x280000
KF = 0x500000
VF = 0x514000
KN = 0x52A000
CT = 0x52C000
OF = 0x530000
HF = 0x800000
FP = 0x1000000
YF = 0x1000000
WS_END = 0x2500000
TS = 0x2400000
import os
STAMP = os.environ.get("STAMP", "")


_stamp_n = {}


def stamp(a, name, vreg=255):
    if name in STAMP.split(","):
        i = _stamp_n.get(name, 0)
        _stamp_n[name] = i + 1
        a("s_memtime s[100:101]")
        a("s_waitcnt lgkmcnt(0)")
        a(f"v_writelane_b32 v{vreg}, s100, {i}")


def stamp_begin(a, name, vreg=255):
    if name in STAMP.split(","):
        a("s_memrealtime s[98:99]")
        a("s_waitcnt lgkmcnt(0)")
        a(f"v_writelane_b32 v{vreg}, s98, 14")
    stamp(a, name, vreg)


def stamp_end(a, name, sws, s_w, vtmp, s_wg=2, vreg=255):
    if name in STAMP.split(","):
        a("s_waitcnt vmcnt(0) lgkmcnt(0)")
        stamp(a, name, vreg)
        a("s_memrealtime s[98:99]")
        a("s_waitcnt lgkmcnt(0)")
        a(f"v_writelane_b32 v{vreg}, s98, 15")
        a(f"s_lshl_b32 s94, s{s_wg}, 2")
        a(f"s_add_u32 s94, s94, s{s_w}")
        a("s_lshl_b32 s94, s94, 6")
        a(f"s_add_u32 s94, s94, {TS + STAMP.split(',').index(name) * 0x20000}")
        a(f"v_and_b32 v{vtmp}, 63, v0")
        a(f"v_lshlrev_b32 v{vtmp}, 2, v{vtmp}")
        a("s_mov_b64 s[98:99], exec")
        a("s_mov_b64 exec, 0xffff")
        a(f"buffer_store_dword v{vreg}, v{vtmp}, s[{sws}:{sws+3}], s94 offen")
        a("s_mov_b64 exec, s[98:99]")


QSCALE = (20 ** -0.5) * math.log2(math.e)


def f2u(x):
    return struct.unpack("<I", struct.pack("<f", x))[0]


def hx(x):
    return "0x%x" % x


def srd(a, d, base, size):
    a(f"s_mov_b32 s{d}, s{base}")
    a(f"s_and_b32 s{d+1}, s{base+1}, 0xffff")
    a(f"s_mov_b32 s{d+2}, {hx(size)}")
    a(f"s_mov_b32 s{d+3}, 0x00020000")


def vr(b, n=1):
    return f"v{b}" if n == 1 else f"v[{b}:{b+n-1}]"


def mfma32(a, d, x, y, c=None):
    cs = vr(d, 16) if c is None else c
    a(f"v_mfma_f32_32x32x16_bf16 {vr(d,16)}, {vr(x,4)}, {vr(y,4)}, {cs}")


def kernel_header(name):
    return f""".globl {name}
.p2align 8
.type {name},@function
"""


def kernel_desc(name, vgprs, sgprs=102):
    acc = (vgprs + 3) // 4 * 4
    return f""".p2align 6
.amdhsa_kernel {name}
  .amdhsa_next_free_vgpr {vgprs}
  .amdhsa_next_free_sgpr {sgprs}
  .amdhsa_accum_offset {acc}
  .amdhsa_group_segment_fixed_size 0
  .amdhsa_kernarg_size 96
  .amdhsa_user_sgpr_count 2
  .amdhsa_user_sgpr_kernarg_segment_ptr 1
  .amdhsa_system_sgpr_workgroup_id_x 1
.end_amdhsa_kernel
"""


K_X = 16
K_ACC = 96
K_A = 192
K_T = 216
WAVE_LDS = 30720
LDS_STG = 8192


K_R = K_A


def typek_mfma_phase(a, vtr, zero=True, vm_after=None, extra=None):
    def reads(s, buf):
        for ct in range(3):
            o = (3 * s + ct) * 1024
            r = K_A + buf * 12 + ct * 4
            a(f"ds_read_b64_tr_b16 {vr(r,2)}, v{vtr} offset:{o}")
            a(f"ds_read_b64_tr_b16 {vr(r+2,2)}, v{vtr} offset:{o+256}")
    if vm_after:
        a(f"s_waitcnt vmcnt({vm_after(0)})")
    reads(0, 0)
    for s in range(10):
        if s + 1 < 10:
            if vm_after:
                a(f"s_waitcnt vmcnt({vm_after(s+1)})")
            reads(s + 1, (s + 1) & 1)
            a("s_waitcnt lgkmcnt(6)")
        else:
            a("s_waitcnt lgkmcnt(0)")
        ex = list(extra(s)) if extra else []
        n = len(ex)
        k = 0
        for ct in range(3):
            for rt in range(2):
                d = K_ACC + (rt * 3 + ct) * 16
                mfma32(a, d, K_A + (s & 1) * 12 + ct * 4, K_X + rt * 40 + s * 4, "0" if (s == 0 and zero) else None)
                k += 1
                for x in ex[((k - 1) * n) // 6:(k * n) // 6]:
                    a(x)


def reduce4(a, pfx, ACC, RES, TMP, vL16, vT, s_w, s_base, base0, stride, pre_barrier=None, post_reads=None):
    for g in range(4):
        a(f"s_cmp_eq_u32 s{s_w}, {g}")
        a(f"s_cbranch_scc1 {pfx}_rw{g}")
        a(f"s_sub_u32 s90, {g+3}, s{s_w}")
        a("s_and_b32 s90, s90, 3")
        a("s_mul_i32 s90, s90, 6144")
        a(f"s_add_u32 s90, s90, s{s_base}")
        a(f"v_add_u32 v{vT}, s90, v{vL16}")
        for t in range(6):
            a(f"ds_write_b128 v{vT}, {vr(ACC+t*16+g*4,4)} offset:{t*1024}")
        a.label(f"{pfx}_rw{g}")
    if pre_barrier:
        pre_barrier()
    for jj in range(3):
        a(f"s_add_u32 s90, s{s_w}, {jj+1}")
        a("s_and_b32 s90, s90, 3")
        a(f"s_mul_i32 s90, s90, {stride}")
        a(f"s_add_u32 s90, s90, {base0 + (2-jj)*6144}")
        a(f"v_add_u32 v{vT+1+jj}, s90, v{vL16}")
    for g in range(4):
        a(f"s_cmp_lg_u32 s{s_w}, {g}")
        a(f"s_cbranch_scc1 {pfx}_ro{g}")
        for t in range(6):
            for e in range(4):
                a(f"v_mov_b32 v{RES+t*4+e}, v{ACC+t*16+g*4+e}")
        a.label(f"{pfx}_ro{g}")
    a("s_waitcnt lgkmcnt(0)")
    a("s_barrier")
    for jj in range(3):
        for t in range(6):
            a(f"ds_read_b128 {vr(TMP+(jj*6+t)*4,4)}, v{vT+1+jj} offset:{t*1024}")
    n_extra = post_reads() if post_reads else 0
    for jj in range(3):
        a(f"s_waitcnt lgkmcnt({min(15, (2-jj)*6 + n_extra)})")
        for e in range(0, 24, 2):
            a(f"v_pk_add_f32 {vr(RES+e,2)}, {vr(RES+e,2)}, {vr(TMP+jj*24+e,2)}")


class TypeK:
    def __init__(self, a, KS, RD, RB, ACC, AF, BF, vTr, tr2, vWo, SW, s_g, gstep, s_ring, vB, SB, s_b0, s_b1, bmods=""):
        self.__dict__.update(locals())

    def dma(self, s):
        out = []
        for ct in range(3):
            out.append([f"s_add_u32 m0, s{self.s_ring}, {((s % self.RD)*3+ct)*1024}",
                        f"s_add_u32 s91, s{self.s_g}, {s*self.gstep + ct*64}",
                        f"buffer_load_dwordx4 v{self.vWo}, s[{self.SW}:{self.SW+3}], s91 offen lds"])
        return out

    def bl(self, s):
        out = []
        for rt in range(2):
            sb = self.s_b0 if rt == 0 else self.s_b1
            g = []
            if s % 4 == 0 and s:
                g.append(f"s_add_u32 s{sb}, s{sb}, 4096")
            g.append(f"buffer_load_dwordx4 {vr(self.BF+(s%self.RB)*8+rt*4,4)}, v{self.vB}, s[{self.SB}:{self.SB+3}], s{sb} offen offset:{(s%4)*1024}{self.bmods}")
            out.append(g)
        return out

    def emit(self, groups):
        for g in groups:
            for x in g:
                self.a(x)

    def reads(self, s):
        out = []
        for ct in range(3):
            o = ((s % self.RD) * 3 + ct) * 1024
            r = self.AF + (s & 1) * 12 + ct * 4
            out.append(f"ds_read_b64_tr_b16 {vr(r,2)}, v{self.vTr} offset:{o}")
            out.append(f"ds_read_b64_tr_b16 {vr(r+2,2)}, v{self.vTr} offset:{o+self.tr2}")
        return out

    def main(self, order):
        a, KS, RD, RB = self.a, self.KS, self.RD, self.RB
        order = list(order)

        def wait_for(s):
            last = max(i for i, o in enumerate(order) if o in (("d", s), ("b", s)))
            a(f"s_waitcnt vmcnt({min(63, len(order) - 1 - last)})")
        wait_for(0)
        for x in self.reads(0):
            a(x)
        for s in range(KS):
            if s + 1 < KS:
                wait_for(s + 1)
                for x in self.reads(s + 1):
                    a(x)
                a("s_waitcnt lgkmcnt(6)")
            else:
                a("s_waitcnt lgkmcnt(0)")
            dm = self.dma(s + RD) if s + RD < KS else []
            k = 0
            for ct in range(3):
                for rt in range(2):
                    mfma32(a, self.ACC + (rt * 3 + ct) * 16, self.AF + (s & 1) * 12 + ct * 4,
                           self.BF + (s % RB) * 8 + rt * 4, "0" if s == 0 else None)
                    if k % 2 == 0 and dm:
                        self.emit([dm.pop(0)])
                        order.append(("d", s + RD))
                    k += 1
            if s + RB < KS:
                self.emit(self.bl(s + RB))
                order += [("b", s + RB)] * 2


def lane_setup(a, T, vLane, vN, vH, s_w):
    a(f"v_and_b32 v{vLane}, 63, v0")
    a(f"v_lshrrev_b32 v{T}, 6, v0")
    a(f"v_readfirstlane_b32 s{s_w}, v{T}")
    a(f"v_and_b32 v{vN}, 31, v0")
    a(f"v_bfe_u32 v{vH}, v0, 5, 1")


def tr_base(a, vTr, T, vLane, vH, hshift):
    a(f"v_lshlrev_b32 v{vTr}, {hshift}, v{vH}")
    a(f"v_bfe_u32 v{T}, v{vLane}, 2, 2")
    a(f"v_lshl_add_u32 v{vTr}, v{T}, 6, v{vTr}")
    a(f"v_bfe_u32 v{T}, v{vLane}, 4, 1")
    a(f"v_lshl_add_u32 v{vTr}, v{T}, 5, v{vTr}")
    a(f"v_and_b32 v{T}, 3, v{vLane}")
    a(f"v_lshl_add_u32 v{vTr}, v{T}, 3, v{vTr}")


def gen_qkv():
    a = Asm()
    a.label("qkv_kernel")
    ST = 0
    NB = 4096
    MX = 6144
    s_w, s_rb, s_cb = 32, 33, 34
    SX, SWS = 16, 28
    SWT = [72, 76, 80]
    vLane, vN, vH = 1, 2, 3
    vXg, vXr, vTr, vSlab, vRd = 4, 5, 7, 8, 9
    vSt = 11
    vWo = [12, 13, 14]
    vCs = 6
    T = K_T
    XO = 9216
    a("s_cmp_ge_u32 s2, 256")
    a("s_cbranch_scc1 qkv_end")
    stamp_begin(a, "qkv")
    a("s_load_dwordx4 s[4:7], s[0:1], 0")
    a("s_load_dwordx4 s[8:11], s[0:1], 16")
    a("s_load_dwordx2 s[12:13], s[0:1], 88")
    a("s_load_dwordx4 s[56:59], s[0:1], 48")
    lane_setup(a, T, vLane, vN, vH, s_w)
    a("s_and_b32 s3, s2, 7")
    a("s_lshr_b32 s35, s2, 3")
    a("s_and_b32 s36, s35, 3")
    a("s_lshl_b32 s3, s3, 2")
    a(f"s_add_u32 s{s_rb}, s3, s36")
    a(f"s_lshr_b32 s{s_cb}, s35, 2")
    a(f"v_mul_u32_u24 v{T}, 49, v{vLane}")
    a(f"v_lshrrev_b32 v{T}, 10, v{T}")
    a(f"v_mul_u32_u24 v{T+1}, 21, v{T}")
    a(f"v_sub_u32 v{T+1}, v{vLane}, v{T+1}")
    a(f"v_mul_u32_u24 v{vXg}, 1280, v{T}")
    a(f"v_lshl_add_u32 v{vXg}, v{T+1}, 4, v{vXg}")
    a(f"s_mul_i32 s37, s{s_w}, {WAVE_LDS}")
    a(f"s_add_u32 s37, s37, {LDS_STG}")
    a(f"v_mul_u32_u24 v{vXr}, 336, v{vN}")
    a(f"v_lshl_add_u32 v{vXr}, v{vH}, 4, v{vXr}")
    a(f"v_add_u32 v{vXr}, s37, v{vXr}")
    a(f"s_mul_i32 s39, s{s_rb}, {64*1280}")
    a(f"s_mul_i32 s40, s{s_w}, 320")
    a("s_add_u32 s39, s39, s40")
    a("s_waitcnt lgkmcnt(0)")
    srd(a, SX, 4, 2621440)
    a("s_mov_b32 s52, -1")
    a("s_mov_b32 s53, 0x7fffffff")
    a("s_mov_b64 exec, s[52:53]")
    for jx in range(22):
        if jx == 21:
            a("s_mov_b64 exec, 0x1fffff")
        a(f"s_add_u32 m0, s37, {XO + jx*1008}")
        a(f"s_add_u32 s44, s39, {jx*3840}")
        a(f"buffer_load_dwordx4 v{vXg}, s[{SX}:{SX+3}], s44 offen lds")
    a("s_mov_b64 exec, -1")
    a(f"v_lshrrev_b32 v{T}, 2, v{vLane}")
    a(f"v_and_b32 v{T+1}, 3, v{vLane}")
    a(f"v_lshlrev_b32 v{T+1}, 4, v{T+1}")
    a(f"v_mad_u32_u24 v{T+2}, v{T}, 40, v{T+1}")
    a(f"s_movk_i32 s38, 1280")
    a(f"v_mad_u32_u24 v{T+3}, v{T}, s38, v{T+1}")
    a(f"s_mul_i32 s50, s{s_cb}, 3")
    a(f"s_mul_i32 s41, s{s_w}, {160*1280}")
    a(f"s_mul_i32 s43, s{s_w}, {160*40}")
    for ct in range(3):
        d = SWT[ct]
        a(f"s_add_u32 s51, s50, {ct}")
        a("s_cmp_eq_u32 s51, 21")
        a(f"s_cselect_b32 s{d}, s10, s8")
        a(f"s_cselect_b32 s{d+1}, s11, s9")
        a("s_cmp_lt_u32 s51, 22")
        a(f"s_cselect_b32 s{d+2}, 25600, 0")
        a("s_lshl_b32 s45, s51, 6")
        a("s_add_u32 s45, s45, s41")
        a("s_cmp_lt_u32 s51, 20")
        a(f"s_cselect_b32 s{d}, s6, s{d}")
        a(f"s_cselect_b32 s{d+1}, s7, s{d+1}")
        a(f"s_cselect_b32 s{d+2}, 819200, s{d+2}")
        a(f"s_mov_b32 s{d+3}, 0x00020000")
        a(f"s_cselect_b32 s{84+ct}, s45, s43")
        a(f"s_movk_i32 s{87+ct}, {16*40}")
        a(f"s_cselect_b32 s{87+ct}, {16*1280}, s{87+ct}")
        a("s_cselect_b64 vcc, -1, 0")
        a(f"s_and_b32 s{d+1}, s{d+1}, 0xffff")
        a(f"v_cndmask_b32 v{vWo[ct]}, v{T+2}, v{T+3}, vcc")

    def w_dma(s):
        for ct in range(3):
            a(f"s_add_u32 m0, s37, {(3*s+ct)*1024}")
            a(f"buffer_load_dwordx4 v{vWo[ct]}, s[{SWT[ct]}:{SWT[ct]+3}], s{84+ct} offen lds")
            a(f"s_add_u32 s{84+ct}, s{84+ct}, s{87+ct}")
    for s in range(3):
        w_dma(s)
    srd(a, SWS, 12, WS_END)
    a("s_cmp_lg_u32 s2, 255")
    a("s_cbranch_scc1 qkv_noct")
    a(f"s_cmp_lg_u32 s{s_w}, 3")
    a("s_cbranch_scc1 qkv_noct")
    a(f"v_lshlrev_b32 v{T}, 8, v{vLane}")
    a(f"v_mov_b32 v{T+1}, 0")
    a(f"s_mov_b32 s44, {CT}")
    a("s_mov_b64 exec, 0xffff")
    a(f"buffer_store_dword v{T+1}, v{T}, s[{SWS}:{SWS+3}], s44 offen")
    a("s_mov_b64 exec, -1")
    a("s_waitcnt vmcnt(0)")
    a.label("qkv_noct")
    tr_base(a, vTr, T, vLane, vH, 9)
    a(f"v_add_u32 v{vTr}, s37, v{vTr}")
    a(f"v_lshlrev_b32 v{vSlab}, 4, v{vLane}")
    a(f"s_mul_i32 s38, s{s_w}, 384")
    a(f"v_lshlrev_b32 v{vCs}, 2, v{vN}")
    a(f"v_add_u32 v{vCs}, s38, v{vCs}")
    a(f"v_lshlrev_b32 v{vSt}, 6, v{vN}")
    vOne = T
    SA = T + 2
    a(f"v_mov_b32 v{vOne}, 0x3f803f80")
    for i in range(11):
        a(f"v_mov_b32 v{SA+i}, 0")
    a(f"ds_write_b32 v{SA}, v{SA} offset:{MX}")
    a("s_waitcnt vmcnt(9)")
    stamp(a, "qkv")
    for rt in range(2):
        for s in range(10):
            a(f"ds_read_b128 {vr(K_X+rt*40+s*4,4)}, v{vXr} offset:{XO + rt*10752 + s*32}")
    a("s_waitcnt lgkmcnt(0)")
    xs = []
    for i in range(40):
        for rt in range(2):
            x = K_X + rt * 40 + i
            b = SA + rt * 4 + (i & 1) * 2
            xs.append(f"v_dot2_f32_bf16 v{b}, v{x}, v{vOne}, v{b}")
            xs.append(f"v_dot2_f32_bf16 v{b+1}, v{x}, v{x}, v{b+1}")
    for s in range(3, 10):
        w_dma(s)
        for x in xs[((s - 3) * 160) // 7:((s - 2) * 160) // 7]:
            a(x)
    stamp(a, "qkv")

    def stats(s):
        out = []
        for q in range(4):
            for ct in range(3):
                out.append(f"v_dot2_f32_bf16 v{SA+8+ct}, v{K_A+(s&1)*12+ct*4+q}, v{vOne}, v{SA+8+ct}")
        return out
    typek_mfma_phase(a, vTr, True, lambda s: 3 * (9 - s), stats)
    stamp(a, "qkv")
    if PREFETCH:
        srd(a, 60, 56, 1966080)
        srd(a, 64, 58, 1966080)
        a(f"v_mul_u32_u24 v{T+24}, 43, v{vLane}")
        a(f"v_lshrrev_b32 v{T+24}, 9, v{T+24}")
        a(f"v_mul_u32_u24 v{T+25}, 12, v{T+24}")
        a(f"v_sub_u32 v{T+25}, v{vLane}, v{T+25}")
        a(f"v_mul_u32_u24 v{T+24}, 3072, v{T+24}")
        a(f"v_lshl_add_u32 v{T+24}, v{T+25}, 6, v{T+24}")
        a("s_lshr_b32 s44, s2, 3")
        a("s_lshl_b32 s44, s44, 2")
        a(f"s_add_u32 s44, s44, s{s_w}")
        a(f"s_mul_i32 s44, s44, {5*3072}")
        a("s_bfe_u32 s38, s2, 0x20001")
        a("s_mul_i32 s38, s38, 768")
        a("s_add_u32 s44, s44, s38")
        a("s_mov_b32 s52, -1")
        a("s_mov_b32 s53, 0x0fffffff")
        a("s_mov_b64 exec, s[52:53]")
        a(f"buffer_load_dword v{T+36}, v{T+24}, s[60:63], s44 offen")
        a(f"buffer_load_dword v{T+37}, v{T+24}, s[64:67], s44 offen")
        a("s_mov_b64 exec, -1")

    CSA = 6400

    def pre_barrier():
        for rt in range(2):
            b = SA + rt * 4
            a(f"v_pk_add_f32 {vr(b,2)}, {vr(b,2)}, {vr(b+2,2)}")
        a(f"v_lshl_add_u32 v{T+14}, v{vH}, 3, v{vSt}")
        a(f"s_lshl_b32 s38, s{s_w}, 4")
        a(f"v_add_u32 v{T+14}, s38, v{T+14}")
        for rt in range(2):
            a(f"ds_write_b64 v{T+14}, {vr(SA+rt*4,2)} offset:{ST + rt*2048}")
        for ct in range(3):
            a(f"v_mov_b32 v{T+16+ct}, v{SA+8+ct}")
        for ct in range(3):
            a(f"v_permlane32_swap_b32 v{SA+8+ct}, v{T+16+ct}")
        for ct in range(3):
            a(f"v_add_f32 v{SA+8+ct}, v{SA+8+ct}, v{T+16+ct}")
            a(f"ds_write_b32 v{vCs}, v{SA+8+ct} offset:{CSA + ct*128}")
        a(f"v_lshlrev_b32 v{vRd}, 4, v{vH}")
        a(f"s_lshl_b32 s38, s{s_w}, 5")
        a(f"v_add_u32 v{vRd}, s38, v{vRd}")
    CS = T + 20
    RR = T + 32
    a(f"s_mov_b32 s45, {hx(f2u(1.0/640))}")
    a(f"s_mov_b32 s46, {hx(f2u(1e-5))}")
    reduce4(a, "qkv", K_ACC, K_R, K_ACC, vSlab, T + 20, s_w, 37, LDS_STG, WAVE_LDS, pre_barrier)
    for jw in range(4):
        for ct in range(3):
            a(f"ds_read_b128 {vr(K_ACC+(jw*3+ct)*4,4)}, v{vRd} offset:{CSA + jw*384 + ct*128}")
    for rt in range(2):
        for q in range(4):
            a(f"ds_read_b128 {vr(K_ACC+48+rt*16+q*4,4)}, v{vSt} offset:{ST + rt*2048 + q*16}")
    a("s_waitcnt lgkmcnt(0)")
    for e in range(0, 12, 2):
        a(f"v_pk_add_f32 {vr(K_ACC+e,2)}, {vr(K_ACC+e,2)}, {vr(K_ACC+12+e,2)}")
        a(f"v_pk_add_f32 {vr(K_ACC+24+e,2)}, {vr(K_ACC+24+e,2)}, {vr(K_ACC+36+e,2)}")
    for e in range(0, 12, 2):
        a(f"v_pk_add_f32 {vr(CS+e,2)}, {vr(K_ACC+e,2)}, {vr(K_ACC+24+e,2)}")
    for rt in range(2):
        b = K_ACC + 48 + rt * 16
        for step in (8, 4, 2):
            for e in range(0, step, 2):
                a(f"v_pk_add_f32 {vr(b+e,2)}, {vr(b+e,2)}, {vr(b+e+step,2)}")
        mu, sq, t0 = b, b + 1, b + 3
        m_b, rr = RR + rt * 2, RR + rt * 2 + 1
        a(f"v_mul_f32 v{mu}, s45, v{mu}")
        a(f"v_mul_f32 v{sq}, s45, v{sq}")
        a(f"v_fma_f32 v{sq}, -v{mu}, v{mu}, v{sq}")
        a(f"v_max_f32 v{sq}, 0, v{sq}")
        a(f"v_cvt_pk_bf16_f32 v{m_b}, v{mu}, v{sq}")
        a(f"v_and_b32 v{t0}, 0xffff0000, v{m_b}")
        a(f"v_lshlrev_b32 v{m_b}, 16, v{m_b}")
        a(f"v_add_f32 v{t0}, s46, v{t0}")
        a(f"v_cvt_pk_bf16_f32 v{t0}, v{t0}, v{t0}")
        a(f"v_lshlrev_b32 v{t0}, 16, v{t0}")
        a(f"v_sqrt_f32 v{t0}, v{t0}")
        a(f"v_cvt_pk_bf16_f32 v{t0}, v{t0}, v{t0}")
        a(f"v_lshlrev_b32 v{t0}, 16, v{t0}")
        a(f"v_rcp_f32 v{rr}, v{t0}")
    for rt in range(2):
        m_b, rr = RR + rt * 2, RR + rt * 2 + 1
        for ct in range(3):
            for e in range(4):
                r = K_R + (rt * 3 + ct) * 4 + e
                a(f"v_fma_f32 v{r}, -v{m_b}, v{CS+ct*4+e}, v{r}")
                a(f"v_mul_f32 v{r}, v{r}, v{rr}")
    stamp(a, "qkv")
    a("s_mov_b32 s47, 0xffff0000")
    a(f"v_lshlrev_b32 v{T}, 4, v{vLane}")
    a(f"s_mul_i32 s39, s{s_rb}, {2*40*1024}")
    a(f"s_mul_i32 s40, s{s_w}, {10*1024}")
    a("s_add_u32 s39, s39, s40")
    for rt in range(2):
        m_b, rr = RR + rt * 2, RR + rt * 2 + 1
        PR = K_ACC + rt * 4
        a(f"v_mov_b32 v{PR}, v{rr}")
        a(f"v_mov_b32 v{PR+1}, v{rr}")
        a(f"v_mul_f32_e64 v{PR+2}, -v{m_b}, v{rr}")
        a(f"v_mov_b32 v{PR+3}, v{PR+2}")
    for c in range(8):
        a(f"s_cmp_lg_u32 s{s_cb}, {c}")
        a(f"s_cbranch_scc1 qkv_xn{c}")
        for f in range(c, 20, 8):
            rt, sx = divmod(f, 10)
            PR = K_ACC + rt * 4
            for q in range(4):
                x = K_X + rt * 40 + sx * 4 + q
                u = K_ACC + 8 + q * 2
                a(f"v_lshlrev_b32 v{u}, 16, v{x}")
                a(f"v_and_b32 v{u+1}, s47, v{x}")
                a(f"v_pk_fma_f32 {vr(u,2)}, {vr(u,2)}, {vr(PR,2)}, {vr(PR+2,2)}")
                a(f"v_cvt_pk_bf16_f32 v{x}, v{u}, v{u+1}")
            a(f"s_add_u32 s44, s39, {XF + rt*40*1024 + sx*1024}")
            a(f"buffer_store_dwordx4 {vr(K_X+rt*40+sx*4,4)}, v{T}, s[{SWS}:{SWS+3}], s44 offen")
        a.label(f"qkv_xn{c}")
    vC0, vHead, vD0, vOff, vA = T, T + 1, T + 2, T + 3, T + 4
    a(f"s_mov_b32 s45, {hx(f2u(QSCALE))}")
    a("s_mov_b32 s46, 3277")
    a(f"s_mul_i32 s38, s{s_cb}, 96")
    a(f"s_lshl_b32 s39, s{s_w}, 3")
    a("s_add_u32 s38, s38, s39")
    a(f"s_mul_i32 s48, s{s_rb}, {2*32*1280}")
    a(f"s_add_u32 s48, s48, {QF}")
    a(f"s_add_u32 s49, s48, {32*1280}")
    a(f"s_mul_i32 s50, s{s_cb}, 3")

    def frag_off(vD0, vOff):
        a(f"v_lshrrev_b32 v{vA}, 3, v{vD0}")
        a(f"v_lshlrev_b32 v{vA}, 9, v{vA}")
        a(f"v_lshl_add_u32 v{vA}, v{vN}, 4, v{vA}")
        a(f"v_and_b32 v{vA+1}, 4, v{vD0}")
        a(f"v_lshl_add_u32 v{vA}, v{vA+1}, 1, v{vA}")
        a(f"v_lshlrev_b32 v{vA+1}, 3, v{vN}")
        a(f"v_add_u32 v{vA+1}, 1024, v{vA+1}")
        a(f"v_cmp_gt_u32 vcc, 16, v{vD0}")
        a(f"v_cndmask_b32 v{vA}, v{vA+1}, v{vA}, vcc")
        a(f"v_add_u32 v{vOff}, v{vOff}, v{vA}")

    for ct in range(3):
        a(f"s_add_u32 s51, s50, {ct}")
        a("s_cmp_ge_u32 s51, 20")
        a(f"s_cbranch_scc1 qkv_notq{ct}")
        a(f"v_lshlrev_b32 v{vC0}, 2, v{vH}")
        a(f"v_add_u32 v{vC0}, s38, v{vC0}")
        if ct:
            a(f"v_add_u32 v{vC0}, {32*ct}, v{vC0}")
        a(f"v_mul_u32_u24 v{vHead}, s46, v{vC0}")
        a(f"v_lshrrev_b32 v{vHead}, 16, v{vHead}")
        a(f"v_mul_u32_u24 v{vD0}, 20, v{vHead}")
        a(f"v_sub_u32 v{vD0}, v{vC0}, v{vD0}")
        a(f"v_mul_u32_u24 v{vOff}, 1280, v{vHead}")
        frag_off(vD0, vOff)
        for rt in range(2):
            r = K_R + (rt * 3 + ct) * 4
            for e in range(4):
                a(f"v_mul_f32 v{r+e}, s45, v{r+e}")
            a(f"v_cvt_pk_bf16_f32 v{r}, v{r}, v{r+1}")
            a(f"v_cvt_pk_bf16_f32 v{r+1}, v{r+2}, v{r+3}")
            a(f"buffer_store_dwordx2 {vr(r,2)}, v{vOff}, s[{SWS}:{SWS+3}], s{48+rt} offen")
        a.label(f"qkv_notq{ct}")
    stamp_end(a, "qkv", SWS, s_w, 240)
    a(f"s_cmp_lt_u32 s{s_cb}, 6")
    a("s_cbranch_scc1 qkv_end")
    P = T + 8
    a(f"s_cmp_eq_u32 s{s_cb}, 7")
    a("s_cbranch_scc1 qkv_mvv")
    for rt in range(2):
        for e in range(4):
            a(f"v_mov_b32 v{P+rt*4+e}, v{K_R+(rt*3+2)*4+e}")
    a("s_branch qkv_mvd")
    a.label("qkv_mvv")
    for rt in range(2):
        for e in range(4):
            a(f"v_mov_b32 v{P+rt*4+e}, v{K_R+(rt*3+0)*4+e}")
    a.label("qkv_mvd")
    a(f"v_lshlrev_b32 v{vD0}, 2, v{vH}")
    a(f"v_add_u32 v{vD0}, s39, v{vD0}")
    a(f"v_cmp_gt_u32 s[52:53], 20, v{vD0}")
    a(f"v_lshlrev_b32 v{vA}, 5, v{vN}")
    a(f"v_add_u32 v{vA}, v{vA}, v{vD0}")
    for rt in range(2):
        q = T + 16 + rt
        a(f"v_mul_f32 v{q}, v{P+rt*4}, v{P+rt*4}")
        for e in range(1, 4):
            a(f"v_fmac_f32 v{q}, v{P+rt*4+e}, v{P+rt*4+e}")
        a(f"v_cndmask_b32 v{q}, 0, v{q}, s[52:53]")
        a(f"ds_write_b32 v{vA}, v{q} offset:{NB + rt*1024}")
    for rt in range(2):
        r = P + rt * 4
        a(f"v_cvt_pk_bf16_f32 v{r}, v{r}, v{r+1}")
        a(f"v_cvt_pk_bf16_f32 v{r+1}, v{r+2}, v{r+3}")
    a("s_mov_b64 s[54:55], exec")
    a("s_and_b64 exec, exec, s[52:53]")
    a("s_cbranch_execz qkv_kvst_done")
    a(f"s_mul_i32 s48, s{s_rb}, {2*1280}")
    a(f"s_cmp_eq_u32 s{s_cb}, 7")
    a("s_cbranch_scc1 qkv_vst")
    a(f"s_add_u32 s48, s48, {KF}")
    a("s_add_u32 s49, s48, 1280")
    a(f"v_mov_b32 v{vOff}, 0")
    frag_off(vD0, vOff)
    for rt in range(2):
        a(f"buffer_store_dwordx2 {vr(P+rt*4,2)}, v{vOff}, s[{SWS}:{SWS+3}], s{48+rt} offen")
    a("s_branch qkv_kvst_done")
    a.label("qkv_vst")
    a(f"s_mul_i32 s48, s{s_rb}, {2*1344}")
    a(f"s_add_u32 s48, s48, {VF}")
    a("s_add_u32 s49, s48, 1344")
    a(f"v_lshrrev_b32 v{vA}, 4, v{vN}")
    a(f"v_lshlrev_b32 v{vA}, 1, v{vA}")
    a(f"v_bfe_u32 v{vA+1}, v{vN}, 2, 1")
    a(f"v_add_u32 v{vA}, v{vA}, v{vA+1}")
    a(f"v_mul_u32_u24 v{vA}, 21, v{vA}")
    a(f"v_add_u32 v{vA}, v{vA}, v{vD0}")
    a(f"v_lshlrev_b32 v{vOff}, 4, v{vA}")
    a(f"v_and_b32 v{vA}, 3, v{vN}")
    a(f"v_lshl_add_u32 v{vOff}, v{vA}, 1, v{vOff}")
    a(f"v_bfe_u32 v{vA}, v{vN}, 3, 1")
    a(f"v_lshl_add_u32 v{vOff}, v{vA}, 3, v{vOff}")
    for rt in range(2):
        r = P + rt * 4
        a(f"buffer_store_short v{r}, v{vOff}, s[{SWS}:{SWS+3}], s{48+rt} offen")
        a(f"buffer_store_short_d16_hi v{r}, v{vOff}, s[{SWS}:{SWS+3}], s{48+rt} offen offset:16")
        a(f"buffer_store_short v{r+1}, v{vOff}, s[{SWS}:{SWS+3}], s{48+rt} offen offset:32")
        a(f"buffer_store_short_d16_hi v{r+1}, v{vOff}, s[{SWS}:{SWS+3}], s{48+rt} offen offset:48")
    a.label("qkv_kvst_done")
    a("s_mov_b64 exec, s[54:55]")
    a(f"s_cmp_lg_u32 s{s_cb}, 7")
    a("s_cbranch_scc1 qkv_noones")
    a(f"s_cmp_lg_u32 s{s_w}, 3")
    a("s_cbranch_scc1 qkv_noones")
    a(f"s_mul_i32 s48, s{s_rb}, {2*1344}")
    a(f"s_add_u32 s48, s48, {VF + 320}")
    a(f"v_mul_u32_u24 v{vOff}, 336, v{vLane}")
    for e in range(4):
        a(f"v_mov_b32 v{P+e}, 0x3f803f80")
    a("s_mov_b64 exec, 0xff")
    a(f"buffer_store_dwordx4 {vr(P,4)}, v{vOff}, s[{SWS}:{SWS+3}], s48 offen")
    a("s_mov_b64 exec, s[54:55]")
    a.label("qkv_noones")
    a("s_waitcnt lgkmcnt(0)")
    a("s_barrier")
    a(f"s_cmp_lg_u32 s{s_w}, 0")
    a("s_cbranch_scc1 qkv_end")
    a(f"v_lshlrev_b32 v{vA}, 5, v{vLane}")
    a(f"ds_read_b128 {vr(P,4)}, v{vA} offset:{NB}")
    a(f"ds_read_b128 {vr(P+4,4)}, v{vA} offset:{NB+16}")
    a("s_waitcnt lgkmcnt(0)")
    for e in range(1, 8):
        a(f"v_add_f32 v{P}, v{P}, v{P+e}")
    a(f"v_mov_b32 v{vA}, 0")
    a(f"ds_max_u32 v{vA}, v{P} offset:{MX}")
    a("s_waitcnt lgkmcnt(0)")
    a(f"ds_read_b32 v{P}, v{vA} offset:{MX}")
    a(f"s_sub_u32 s48, s{s_cb}, 6")
    a("s_lshl_b32 s48, s48, 5")
    a(f"s_add_u32 s48, s48, s{s_rb}")
    a("s_lshl_b32 s48, s48, 2")
    a(f"s_add_u32 s48, s48, {KN}")
    a("s_waitcnt lgkmcnt(0)")
    a(f"buffer_store_dword v{P}, v{vA}, s[{SWS}:{SWS+3}], s48 offen")
    a.label("qkv_end")
    a("s_endpgm")
    return a.finish(), ("qkv_kernel", 256, 256, 131072, 256)


A_Q, A_O, A_S, A_P, A_K, A_V, A_M = 16, 48, 112, 144, 160, 192, 224
A_T = 228
NSET = 4
OOB = 0x80000000


def gen_attn_body(a, pfx, s_wg):
    s_w, s_rt, s_kh, s_hd = 32, 33, 34, 35
    SWS = 28
    vLane, vN, vH = 1, 2, 3
    vK1, vK2, vV = 4, 5, 6
    T = A_T
    a("s_load_dwordx2 s[12:13], s[0:1], 88")
    a("s_load_dwordx2 s[14:15], s[0:1], 32")
    lane_setup(a, T, vLane, vN, vH, s_w)
    a(f"s_and_b32 s3, s{s_wg}, 7")
    a(f"s_lshr_b32 s36, s{s_wg}, 5")
    a("s_lshl_b32 s3, s3, 3")
    a(f"s_add_u32 s{s_rt}, s3, s36")
    a(f"s_bfe_u32 s3, s{s_wg}, 0x20003")
    a(f"s_and_b32 s{s_kh}, s{s_w}, 1")
    a(f"s_lshr_b32 s36, s{s_w}, 1")
    a("s_lshl_b32 s3, s3, 3")
    a("s_lshl_b32 s36, s36, 2")
    a(f"s_add_u32 s{s_hd}, s3, s36")
    a(f"v_lshlrev_b32 v{vK1}, 4, v{vLane}")
    a(f"v_lshlrev_b32 v{vK2}, 3, v{vN}")
    a(f"v_add_u32 v{vK2}, 1024, v{vK2}")
    a(f"v_mov_b32 v{T}, {hx(OOB)}")
    a(f"v_cmp_eq_u32 vcc, 0, v{vH}")
    a(f"v_cndmask_b32 v{vK2}, v{T}, v{vK2}, vcc")
    a(f"v_mul_u32_u24 v{vV}, 21, v{vH}")
    a(f"v_add_u32 v{vV}, v{vV}, v{vN}")
    a(f"v_lshlrev_b32 v{vV}, 4, v{vV}")
    a(f"v_cmp_gt_u32 vcc, 21, v{vN}")
    a(f"v_cndmask_b32 v{vV}, v{T}, v{vV}, vcc")
    a("s_waitcnt lgkmcnt(0)")
    srd(a, SWS, 12, WS_END)
    a(f"s_add_u32 s12, s12, {KN}")
    a("s_addc_u32 s13, s13, 0")
    a("s_load_dwordx16 s[64:79], s[12:13], 0")
    a("s_load_dwordx16 s[80:95], s[12:13], 64")
    a("s_load_dwordx16 s[44:59], s[12:13], 128")
    a(f"s_lshl_b32 s36, s{s_rt}, 5")
    a(f"s_add_u32 s36, s36, s{s_hd}")
    a("s_mul_i32 s36, s36, 1280")
    a(f"s_add_u32 s36, s36, {QF}")
    for i in range(4):
        a(f"buffer_load_dwordx4 {vr(A_Q+8*i,4)}, v{vK1}, s[{SWS}:{SWS+3}], s36 offen")
        a(f"buffer_load_dwordx2 {vr(A_Q+8*i+4,2)}, v{vK2}, s[{SWS}:{SWS+3}], s36 offen")
        if i < 3:
            a("s_add_u32 s36, s36, 1280")
    s_kp, s_vp = 37, 38
    a(f"s_mul_i32 s{s_kp}, s{s_kh}, {32*1280}")
    a(f"s_add_u32 s{s_kp}, s{s_kp}, {KF}")
    a(f"s_mul_i32 s{s_vp}, s{s_kh}, {32*1344}")
    a(f"s_add_u32 s{s_vp}, s{s_vp}, {VF}")

    def loadK(st):
        a(f"buffer_load_dwordx4 {vr(A_K+8*st,4)}, v{vK1}, s[{SWS}:{SWS+3}], s{s_kp} offen")
        a(f"buffer_load_dwordx2 {vr(A_K+8*st+4,2)}, v{vK2}, s[{SWS}:{SWS+3}], s{s_kp} offen")
        a(f"s_add_u32 s{s_kp}, s{s_kp}, 1280")

    def loadV(st):
        a(f"buffer_load_dwordx4 {vr(A_V+8*st,4)}, v{vV}, s[{SWS}:{SWS+3}], s{s_vp} offen")
        a(f"buffer_load_dwordx4 {vr(A_V+8*st+4,4)}, v{vV}, s[{SWS}:{SWS+3}], s{s_vp} offen offset:672")
        a(f"s_add_u32 s{s_vp}, s{s_vp}, 1344")
    for st in range(NSET - 1):
        loadK(st)
        loadV(st)
    loadK(NSET - 1)
    for i in range(4):
        a(f"v_mov_b32 v{A_Q+8*i+6}, 0")
        a(f"v_mov_b32 v{A_Q+8*i+7}, 0")
    for st in range(NSET):
        a(f"v_mov_b32 v{A_K+8*st+6}, 0")
        a(f"v_mov_b32 v{A_K+8*st+7}, 0")
    for r in range(64):
        a(f"v_mov_b32 v{A_O+r}, 0")
    for r in range(16):
        a(f"v_mov_b32 v{A_P+r}, 0")
    for r in range(8):
        a(f"v_mov_b32 v{A_V+8*(NSET-1)+r}, 0")
    for r in range(4):
        a(f"v_mov_b32 v{A_M+r}, 0")
    a("s_waitcnt lgkmcnt(0)")
    for r in range(65, 96):
        a(f"s_max_u32 s64, s64, s{r}")
    for r in range(45, 60):
        a(f"s_max_u32 s44, s44, s{r}")
    a("s_load_dwordx16 s[80:95], s[12:13], 192")
    a("s_waitcnt lgkmcnt(0)")
    for r in range(80, 96):
        a(f"s_max_u32 s44, s44, s{r}")
    a(f"s_waitcnt vmcnt({4*NSET-2})")
    for i in range(4):
        a(f"v_mov_b32 v{T+i}, 0")
    for r in range(6):
        for i in range(4):
            a(f"v_dot2_f32_bf16 v{T+i}, v{A_Q+8*i+r}, v{A_Q+8*i+r}, v{T+i}")
    for i in range(4):
        a(f"v_mov_b32 v{T+4+i}, v{T+i}")
    for i in range(4):
        a(f"v_permlane32_swap_b32 v{T+i}, v{T+4+i}")
    for i in range(4):
        a(f"v_add_f32 v{T+i}, v{T+i}, v{T+4+i}")
    a(f"v_max3_f32 v{T}, v{T}, v{T+1}, v{T+2}")
    a(f"v_max_f32 v{T}, v{T}, v{T+3}")
    a(f"v_mul_f32 v{T}, s64, v{T}")
    a(f"v_mov_b32 v{T+1}, {hx(f2u(3600.0/1.05))}")
    a(f"v_cmp_nle_f32 vcc, v{T}, v{T+1}")
    a(f"s_cmp_gt_u32 s44, {hx(f2u(2.0**80))}")
    a(f"s_cbranch_scc1 {pfx}_slow")
    a(f"s_cbranch_vccnz {pfx}_slow")

    def qk(m, sb, ks, i):
        if m == 0:
            mfma32(a, A_S + 16 * sb, A_K + 8 * ks, A_Q + 8 * i, "0")
        else:
            mfma32(a, A_S + 16 * sb, A_K + 8 * ks + 4, A_Q + 8 * i + 4)

    def pv(m, pb, vs, i):
        mfma32(a, A_O + 16 * i, A_V + 8 * vs + 4 * m, A_P + 8 * pb + 4 * m)

    a(f"s_waitcnt vmcnt({4*NSET-4})")
    qk(0, 0, 0, 0)
    qk(1, 0, 0, 0)
    stamp(a, "attn")
    a(f"s_mov_b32 s39, {32//NSET}")
    a("s_nop 10")
    a.raw(".p2align 6")
    a.label(f"{pfx}_loop")
    for kk in range(NSET):
        for i in range(4):
            cur = i & 1
            S = A_S + 16 * cur
            P = A_P + 8 * cur
            nks, ni = (kk, i + 1) if i < 3 else ((kk + 1) % NSET, 0)
            pvs, pi = (kk, i - 1) if i > 0 else ((kk - 1) % NSET, 3)
            if i in (1, 3) and not os.environ.get("NOWAIT"):
                a(f"s_waitcnt vmcnt({4*NSET-6})")
            qk(0, cur ^ 1, nks, ni)
            for e in range(0, 4):
                a(f"v_exp_f32 v{S+e}, v{S+e}")
            qk(1, cur ^ 1, nks, ni)
            if i == 1 and not os.environ.get("NOKV"):
                loadV((kk - 1) % NSET)
            if i == 3 and not os.environ.get("NOKV"):
                loadK(kk)
            for e in range(4, 8):
                a(f"v_exp_f32 v{S+e}, v{S+e}")
            pv(0, cur ^ 1, pvs, pi)
            for e in range(8, 12):
                a(f"v_exp_f32 v{S+e}, v{S+e}")
            for j in range(0, 2):
                a(f"v_cvt_pk_bf16_f32 v{P+j}, v{S+2*j}, v{S+2*j+1}")
            pv(1, cur ^ 1, pvs, pi)
            for e in range(12, 16):
                a(f"v_exp_f32 v{S+e}, v{S+e}")
            for j in range(2, 8):
                a(f"v_cvt_pk_bf16_f32 v{P+j}, v{S+2*j}, v{S+2*j+1}")
    a("s_sub_u32 s39, s39, 1")
    a("s_cmp_lg_u32 s39, 0")
    a(f"s_cbranch_scc1 {pfx}_loop")
    pv(0, 1, NSET - 1, 3)
    pv(1, 1, NSET - 1, 3)
    stamp(a, "attn")
    a(f"s_branch {pfx}_epi")

    a.label(f"{pfx}_slow")
    for r in range(4):
        a(f"v_mov_b32 v{A_M+r}, {hx(f2u(-1e30))}")
    a("s_mov_b32 s39, 32")
    a(f"s_sub_u32 s{s_kp}, s{s_kp}, {1280*(NSET-1)}")
    a(f"s_sub_u32 s{s_vp}, s{s_vp}, {1344*(NSET-2)}")
    a.label(f"{pfx}_sloop")
    a("s_waitcnt vmcnt(0)")
    for i in range(4):
        S, P, M = A_S, A_P, A_M + i
        qk(0, 0, 0, i)
        qk(1, 0, 0, i)
        a(f"v_max3_f32 v{T}, v{S}, v{S+1}, v{S+2}")
        for e in range(3, 15, 2):
            a(f"v_max3_f32 v{T}, v{T}, v{S+e}, v{S+e+1}")
        a(f"v_max_f32 v{T}, v{T}, v{S+15}")
        a(f"v_mov_b32 v{T+1}, v{T}")
        a(f"v_permlane32_swap_b32 v{T}, v{T+1}")
        a(f"v_max3_f32 v{T}, v{T}, v{T+1}, v{M}")
        a(f"v_sub_f32 v{T+1}, v{M}, v{T}")
        a(f"v_exp_f32 v{T+1}, v{T+1}")
        a(f"v_mov_b32 v{M}, v{T}")
        for e in range(16):
            a(f"v_sub_f32 v{S+e}, v{S+e}, v{T}")
            a(f"v_exp_f32 v{S+e}, v{S+e}")
        for j in range(8):
            a(f"v_cvt_pk_bf16_f32 v{P+j}, v{S+2*j}, v{S+2*j+1}")
        for e in range(16):
            a(f"v_mul_f32 v{A_O+16*i+e}, v{A_O+16*i+e}, v{T+1}")
        pv(0, 0, 0, i)
        pv(1, 0, 0, i)
    loadK(0)
    loadV(0)
    a("s_sub_u32 s39, s39, 1")
    a("s_cmp_lg_u32 s39, 0")
    a(f"s_cbranch_scc1 {pfx}_sloop")

    a.label(f"{pfx}_epi")
    a("s_waitcnt vmcnt(0)")
    if PREFETCH:
        srd(a, 16, 14, 819200)
        a(f"s_lshr_b32 s40, s{s_wg}, 3")
        a("s_lshl_b32 s40, s40, 2")
        a(f"s_add_u32 s40, s40, s{s_w}")
        a("s_mul_i32 s40, s40, 6400")
        a(f"v_lshlrev_b32 v{T+14}, 6, v{vLane}")
        a(f"buffer_load_dword v{T+15}, v{T+14}, s[16:19], s40 offen")
        a("s_add_u32 s40, s40, 4096")
        a(f"buffer_load_dword v{T+15}, v{T+14}, s[16:19], s40 offen")
    vW, vR = T, T + 1
    a(f"s_mul_i32 s40, s{s_w}, 6656")
    a(f"s_xor_b32 s41, s{s_w}, 1")
    a("s_mul_i32 s41, s41, 6656")
    a(f"v_add_u32 v{vW}, s40, v{vK1}")
    a(f"v_add_u32 v{vR}, s41, v{vK1}")
    a(f"v_lshlrev_b32 v{T+2}, 2, v{vLane}")
    a(f"v_add_u32 v{T+3}, s41, v{T+2}")
    a(f"v_add_u32 v{T+2}, s40, v{T+2}")
    a(f"s_cmp_eq_u32 s{s_kh}, 0")
    a(f"s_cbranch_scc1 {pfx}_e0")
    for t in range(2):
        for q in range(3):
            a(f"ds_write_b128 v{vW}, {vr(A_O+16*t+4*q,4)} offset:{(t*3+q)*1024}")
        a(f"ds_write_b32 v{T+2}, v{A_M+t} offset:{6144+t*256}")
    a("s_waitcnt lgkmcnt(0)")
    for t in range(2):
        for e in range(12):
            a(f"v_mov_b32 v{A_O+16*t+e}, v{A_O+16*(t+2)+e}")
        a(f"v_mov_b32 v{A_M+t}, v{A_M+t+2}")
    a(f"s_add_u32 s{s_hd}, s{s_hd}, 2")
    a(f"s_branch {pfx}_e1")
    a.label(f"{pfx}_e0")
    for t in range(2):
        for q in range(3):
            a(f"ds_write_b128 v{vW}, {vr(A_O+16*(t+2)+4*q,4)} offset:{(t*3+q)*1024}")
        a(f"ds_write_b32 v{T+2}, v{A_M+t+2} offset:{6144+t*256}")
    a("s_waitcnt lgkmcnt(0)")
    a.label(f"{pfx}_e1")
    a("s_barrier")
    for t in range(2):
        for q in range(3):
            a(f"ds_read_b128 {vr(A_S+16*t+4*q,4)}, v{vR} offset:{(t*3+q)*1024}")
        a(f"ds_read_b32 v{A_M+2+t}, v{T+3} offset:{6144+t*256}")
    a("s_waitcnt lgkmcnt(0)")
    a(f"s_mul_i32 s40, s{s_rt}, {40*1024}")
    a(f"s_add_u32 s40, s40, {OF}")
    a(f"v_mov_b32 v{T+12}, {hx(OOB)}")
    a(f"v_cmp_eq_u32 s[42:43], 0, v{vH}")
    for t in range(2):
        O, Pz, Ma, Mp = A_O + 16 * t, A_S + 16 * t, A_M + t, A_M + 2 + t
        a(f"v_max_f32 v{T+4}, v{Ma}, v{Mp}")
        a(f"v_sub_f32 v{T+5}, v{Ma}, v{T+4}")
        a(f"v_sub_f32 v{T+6}, v{Mp}, v{T+4}")
        a(f"v_exp_f32 v{T+5}, v{T+5}")
        a(f"v_exp_f32 v{T+6}, v{T+6}")
        for e in range(12):
            a(f"v_mul_f32 v{O+e}, v{O+e}, v{T+5}")
            a(f"v_fmac_f32 v{O+e}, v{Pz+e}, v{T+6}")
        a(f"v_mov_b32 v{T+7}, v{O+8}")
        a(f"v_mov_b32 v{T+8}, v{O+8}")
        a(f"v_permlane32_swap_b32 v{T+7}, v{T+8}")
        a(f"v_rcp_f32 v{T+8}, v{T+8}")
        for e in range(12):
            a(f"v_mul_f32 v{O+e}, v{O+e}, v{T+8}")
        for q in range(3):
            a(f"v_cvt_pk_bf16_f32 v{O+4*q}, v{O+4*q}, v{O+4*q+1}")
            a(f"v_cvt_pk_bf16_f32 v{O+4*q+1}, v{O+4*q+2}, v{O+4*q+3}")
        a(f"s_add_u32 s41, s{s_hd}, {t}")
        a("s_mul_i32 s41, s41, 20")
        for q in range(3):
            k, off = T + 9, T + 10
            a(f"v_lshlrev_b32 v{k}, 2, v{vH}")
            a(f"v_add_u32 v{k}, s41, v{k}")
            if q:
                a(f"v_add_u32 v{k}, {8*q}, v{k}")
            a(f"v_lshrrev_b32 v{off}, 3, v{k}")
            a(f"v_lshlrev_b32 v{off}, 9, v{off}")
            a(f"v_lshl_add_u32 v{off}, v{vN}, 4, v{off}")
            a(f"v_and_b32 v{k}, 4, v{k}")
            a(f"v_lshl_add_u32 v{off}, v{k}, 1, v{off}")
            if q == 2:
                a(f"v_cndmask_b32 v{off}, v{T+12}, v{off}, s[42:43]")
            a(f"buffer_store_dwordx2 {vr(O+4*q,2)}, v{off}, s[{SWS}:{SWS+3}], s40 offen")


def gen_attn():
    a = Asm()
    a.label("attn_kernel")
    a("s_cmp_ge_u32 s2, 256")
    a("s_cbranch_scc1 attn_end")
    stamp_begin(a, "attn")
    gen_attn_body(a, "attn", 2)
    stamp_end(a, "attn", 28, 32, 250)
    a.label("attn_end")
    a("s_endpgm")
    return a.finish(), ("attn_kernel", 256, 256, 26624, 256 if STAMP else 248)


R_ACC, R_A, R_B, R_T = 16, 112, 160, 208


class TypeR:
    def __init__(self, a, pfx, NT, NS, vTr, vWo, vB, s_w, srd_of_tile, goff, s_bp, SWS, tr2, bmods=""):
        self.__dict__.update(locals())
        self.SLOT = 4 * NT * 1024
        self.sname = {"gu": "gateup", "dn": "down"}[pfx[:2]]
        self.s_m = 60
        self.per = NT + 4

    def dma_ops(self, stage):
        slot = stage % 3
        s_g0, s_g1, gstep = self.goff
        out = []
        for t in range(self.NT):
            sr, grp, tt = self.srd_of_tile(t)
            out.append([f"s_add_u32 m0, s{self.s_m}, {slot*self.SLOT + t*1024}",
                        f"s_add_u32 s61, s{s_g0 if grp == 0 else s_g1}, {stage*gstep + tt*64}",
                        f"buffer_load_dwordx4 v{self.vWo}, s[{sr}:{sr+3}], s61 offen lds"])
        return out

    def b_ops(self, stage):
        slot = stage % 3
        bl = []
        for j in range(4):
            g = []
            if j == 0:
                g.append(f"s_add_u32 s62, s{self.s_bp}, {stage*4096}")
            g.append(f"buffer_load_dwordx4 {vr(R_B+slot*16+j*4,4)}, v{self.vB}, s[{self.SWS}:{self.SWS+3}], s62 offen offset:{j*1024}{self.bmods}")
            bl.append(g)
        return bl

    def vm_ops(self, stage):
        out, bl, res = self.dma_ops(stage), self.b_ops(stage), []
        while out or bl:
            if out:
                res.append(out.pop(0))
            if bl and len(res) > 1:
                res.append(bl.pop(0))
        return res

    def emit(self, groups):
        for g in groups:
            for x in g:
                self.a(x)

    def reads(self, stage, j):
        buf = (stage * 4 + j) & 1
        slot = stage % 3
        base = (slot & 1) * self.SLOT + j * self.NT * 1024
        va = self.vTr + (slot >> 1)
        out = []
        for t in range(self.NT):
            r = R_A + buf * 24 + t * 4
            out.append(f"ds_read_b64_tr_b16 {vr(r,2)}, v{va} offset:{base + t*1024}")
            out.append(f"ds_read_b64_tr_b16 {vr(r+2,2)}, v{va} offset:{base + t*1024 + self.tr2}")
        return out

    def mf(self, stage, j, t):
        buf = (stage * 4 + j) & 1
        first = stage == 0 and j == 0
        mfma32(self.a, R_ACC + 16 * t, R_A + buf * 24 + t * 4, R_B + (stage % 3) * 16 + j * 4, "0" if first else None)

    def setup(self):
        a = self.a
        a(f"s_mul_i32 s{self.s_m}, s{self.s_w}, {self.NT*1024}")
        a(f"v_add_u32 v{self.vTr+1}, {2*self.SLOT}, v{self.vTr}")

    def main(self, first_wait, extra_vm=None):
        a, NT, NS = self.a, self.NT, self.NS
        extra_vm = extra_vm or {}
        order = [0] * self.per + [1] * self.per
        stamp(a, self.sname)
        a(f"s_waitcnt vmcnt({first_wait})")
        a("s_barrier")
        stamp(a, self.sname)
        for x in self.reads(0, 0):
            a(x)
        for i in range(NS):
            if i in (1, 2, 4):
                stamp(a, self.sname)
            ops = self.vm_ops(i + 2) if i + 2 < NS else []
            order += [i + 2] * len(ops)
            ops = ops + extra_vm.get(i, [])
            order += [-1] * len(extra_vm.get(i, []))
            nslots = 3 * NT
            place = {}
            for k, g in enumerate(ops):
                place[(k * nslots) // len(ops)] = g
            for j in range(3):
                rd = self.reads(i, j + 1)
                for t in range(NT):
                    a(f"s_waitcnt lgkmcnt({2*(NT-1)})")
                    self.mf(i, j, t)
                    a(rd[2 * t])
                    a(rd[2 * t + 1])
                    if j * NT + t in place:
                        self.emit([place[j * NT + t]])
            last = i + 1 == NS
            H = NT if last else (NT + 1) // 2
            for t in range(H):
                a(f"s_waitcnt lgkmcnt({2*(NT-1-t)})")
                self.mf(i, 3, t)
            if not last:
                lastidx = max(k for k, o in enumerate(order) if o == i + 1)
                a(f"s_waitcnt vmcnt({len(order) - 1 - lastidx}) lgkmcnt(0)")
                a("s_barrier")
                rd = self.reads(i + 1, 0)
                n = NT - H
                for k, t in enumerate(range(H, NT)):
                    self.mf(i, 3, t)
                    for x in rd[(k * len(rd)) // n:((k + 1) * len(rd)) // n]:
                        a(x)


def gen_gateup_body(a, pfx, s_wg, mid_hook=None, smods='', extra_vm=None):
    s_w, s_rb, s_cb = 32, 33, 34
    SW1, SW3, SWS = 16, 20, 28
    vLane, vN, vH, vWo, vB, vTr = 1, 2, 3, 4, 5, 6
    T = R_T
    a("s_load_dwordx4 s[4:7], s[0:1], 48")
    a("s_load_dwordx2 s[12:13], s[0:1], 88")
    lane_setup(a, T, vLane, vN, vH, s_w)
    a(f"s_and_b32 s3, s{s_wg}, 7")
    a(f"s_lshr_b32 s35, s{s_wg}, 3")
    a("s_and_b32 s36, s3, 1")
    a("s_lshl_b32 s36, s36, 3")
    a("s_and_b32 s37, s35, 7")
    a(f"s_add_u32 s{s_rb}, s36, s37")
    a("s_lshr_b32 s36, s3, 1")
    a("s_lshl_b32 s36, s36, 2")
    a("s_lshr_b32 s37, s35, 3")
    a(f"s_add_u32 s{s_cb}, s36, s37")
    a(f"v_lshrrev_b32 v{T}, 2, v{vLane}")
    a(f"v_mul_u32_u24 v{vWo}, 3072, v{T}")
    a(f"v_and_b32 v{T}, 3, v{vLane}")
    a(f"v_lshl_add_u32 v{vWo}, v{T}, 4, v{vWo}")
    tr_base(a, vTr, T, vLane, vH, 9)
    a(f"v_lshlrev_b32 v{vB}, 4, v{vLane}")
    a(f"s_mul_i32 s40, s{s_w}, {16*3072}")
    a(f"s_mul_i32 s41, s{s_cb}, 192")
    a("s_add_u32 s40, s40, s41")
    a(f"s_lshl_b32 s42, s{s_rb}, 2")
    a(f"s_add_u32 s42, s42, s{s_w}")
    a(f"s_mul_i32 s43, s42, {40*1024}")
    if XF:
        a(f"s_add_u32 s43, s43, {XF}")
    a("s_waitcnt lgkmcnt(0)")
    srd(a, SW1, 4, 1966080)
    srd(a, SW3, 6, 1966080)
    srd(a, SWS, 12, WS_END)
    R = TypeR(a, pfx, 6, 10, vTr, vWo, vB, s_w,
              lambda t: (SW1, 0, t) if t < 3 else (SW3, 0, t - 3), (40, 40, 64 * 3072), 43, SWS, 256)
    R.setup()
    R.emit(R.vm_ops(0) + R.vm_ops(1))
    R.main(R.per, extra_vm)
    if mid_hook:
        mid_hook()
    stamp(a, "gateup")
    a(f"s_mov_b32 s44, {hx(f2u(-math.log2(math.e)))}")
    a(f"s_mul_i32 s45, s42, {96*1024}")
    a(f"s_mul_i32 s46, s{s_cb}, {6*1024}")
    a("s_add_u32 s45, s45, s46")
    a(f"s_add_u32 s45, s45, {HF}")
    a(f"v_mov_b32 v{T}, s44")
    a(f"v_mov_b32 v{T+1}, s44")
    a(f"v_mov_b32 v{T+2}, 1.0")
    a(f"v_mov_b32 v{T+3}, 1.0")
    for t in range(3):
        g, u = R_ACC + 16 * t, R_ACC + 16 * (t + 3)
        E = R_A
        for e in range(0, 16, 2):
            a(f"v_pk_mul_f32 {vr(E+e,2)}, {vr(g+e,2)}, {vr(T,2)}")
        for e in range(16):
            a(f"v_exp_f32 v{E+e}, v{E+e}")
        for e in range(0, 16, 2):
            a(f"v_pk_add_f32 {vr(E+e,2)}, {vr(E+e,2)}, {vr(T+2,2)}")
        for e in range(16):
            a(f"v_rcp_f32 v{E+e}, v{E+e}")
        for e in range(0, 16, 2):
            a(f"v_pk_mul_f32 {vr(g+e,2)}, {vr(g+e,2)}, {vr(u+e,2)}")
        for e in range(0, 16, 2):
            a(f"v_pk_mul_f32 {vr(g+e,2)}, {vr(g+e,2)}, {vr(E+e,2)}")
        for j in range(8):
            a(f"v_cvt_pk_bf16_f32 v{u+j}, v{g+2*j}, v{g+2*j+1}")
        for hf in range(2):
            o = (2 * t + hf) * 1024
            if o < 4096:
                a(f"buffer_store_dwordx4 {vr(u+4*hf,4)}, v{vB}, s[{SWS}:{SWS+3}], s45 offen offset:{o}{smods}")
            else:
                a(f"s_add_u32 s46, s45, {o}")
                a(f"buffer_store_dwordx4 {vr(u+4*hf,4)}, v{vB}, s[{SWS}:{SWS+3}], s46 offen{smods}")


def gen_gateup():
    a = Asm()
    a.label("gateup_kernel")
    a("s_cmp_ge_u32 s2, 256")
    a("s_cbranch_scc1 gateup_end")
    stamp_begin(a, "gateup")
    gen_gateup_body(a, "gu", 2)
    stamp_end(a, "gateup", 28, 32, 240)
    a.label("gateup_end")
    a("s_endpgm")
    return a.finish(), ("gateup_kernel", 256, 256, 73728, 256 if STAMP else 216)


D_AF, D_BF, D_RES, D_XR, D_T = 112, 136, 184, 212, 224
RING = 18432


def tile64_setup(a, s_wg, s_rb, s_cb):
    a(f"s_and_b32 s3, s{s_wg}, 7")
    a("s_lshl_b32 s3, s3, 2")
    a(f"s_bfe_u32 s36, s{s_wg}, 0x20003")
    a(f"s_add_u32 s{s_rb}, s3, s36")
    a(f"s_lshr_b32 s{s_cb}, s{s_wg}, 5")


def gen_down_setup(a, s_wg, standalone, bmods=""):
    s_w = 32
    s_rb, s_cb = 63, 64
    SW, SWS, SX = 24, 28, 76
    vLane, vN, vH, vWo, vB, vTr, vXo = 1, 2, 3, 8, 5, 9, 10
    T = D_T
    a("s_load_dwordx2 s[8:9], s[0:1], 64")
    a("s_load_dwordx2 s[14:15], s[0:1], 0")
    if standalone:
        a("s_load_dwordx2 s[12:13], s[0:1], 88")
        lane_setup(a, T, vLane, vN, vH, s_w)
        a(f"v_lshlrev_b32 v{vB}, 4, v{vLane}")
    tile64_setup(a, s_wg, s_rb, s_cb)
    a(f"v_lshrrev_b32 v{T}, 2, v{vLane}")
    a(f"v_mul_u32_u24 v{vWo}, 1280, v{T}")
    a(f"v_and_b32 v{T}, 3, v{vLane}")
    a(f"v_lshl_add_u32 v{vWo}, v{T}, 4, v{vWo}")
    tr_base(a, vTr, T, vLane, vH, 8)
    a(f"s_mul_i32 s67, s{s_w}, {RING}")
    a(f"v_add_u32 v{vTr}, s67, v{vTr}")
    a(f"v_mul_u32_u24 v{vXo}, 1280, v{vN}")
    a(f"v_lshl_add_u32 v{vXo}, v{vH}, 3, v{vXo}")
    a(f"s_mul_i32 s66, s{s_w}, {384*1280}")
    a(f"s_mul_i32 s37, s{s_cb}, 192")
    a("s_add_u32 s66, s66, s37")
    a(f"s_mul_i32 s68, s{s_rb}, {2*96*1024}")
    a(f"s_mul_i32 s36, s{s_w}, {24*1024}")
    a("s_add_u32 s68, s68, s36")
    a(f"s_add_u32 s68, s68, {HF}")
    a(f"s_add_u32 s65, s68, {96*1024}")
    a(f"s_mul_i32 s70, s{s_rb}, {64*1280}")
    a("s_add_u32 s70, s70, s37")
    a(f"s_lshl_b32 s36, s{s_w}, 4")
    a("s_add_u32 s70, s70, s36")
    a(f"s_add_u32 s71, s70, {32*1280}")
    a("s_waitcnt lgkmcnt(0)")
    srd(a, SW, 8, 1966080)
    srd(a, SX, 14, 2621440)
    if standalone:
        srd(a, SWS, 12, WS_END)
    K = TypeK(a, 24, 6, 6, R_ACC, D_AF, D_BF, vTr, 512, vWo, SW, 66, 16 * 1280, 67, vB, SWS, 68, 65, bmods)
    return K


def gen_down_issue(a, K):
    SX, vXo = 76, 10
    for rt in range(2):
        for ct in range(3):
            a(f"buffer_load_dwordx2 {vr(D_XR+(rt*3+ct)*2,2)}, v{vXo}, s[{SX}:{SX+3}], s{70+rt} offen offset:{ct*64}")
    order = [("x",)] * 6
    for s in range(6):
        K.emit(K.dma(s))
        order += [("d", s)] * 3
    return K, order


def gen_down_rest(a, K, order):
    s_w, s_rb, s_cb, SWS, vB, vLane = 32, 63, 64, 28, 5, 1
    T = D_T
    for s in range(6):
        K.emit(K.bl(s))
        order = order + [("b", s)] * 2
    K.main(order)
    stamp(a, "mffn")
    stamp(a, "down")
    a("s_setprio 2")
    reduce4(a, "dn", R_ACC, D_RES, R_ACC, vB, T, s_w, 67, 0, RING)
    a("s_mov_b32 s49, 0xffff0000")
    a(f"s_mul_i32 s45, s{s_rb}, 40")
    a(f"s_mul_i32 s46, s{s_cb}, 3")
    a("s_add_u32 s45, s45, s46")
    a("s_lshl_b32 s45, s45, 11")
    a(f"s_lshl_b32 s46, s{s_w}, 9")
    a("s_add_u32 s45, s45, s46")
    a(f"s_add_u32 s45, s45, {YF}")
    a(f"v_lshlrev_b32 v{T+4}, 3, v{vLane}")
    for ct in range(3):
        if ct == 2:
            a(f"s_cmp_eq_u32 s{s_cb}, 6")
            a("s_cbranch_scc1 dn_skip")
        for rt in range(2):
            r = D_RES + (rt * 3 + ct) * 4
            xr = D_XR + (rt * 3 + ct) * 2
            for e in range(2):
                a(f"v_lshlrev_b32 v{T}, 16, v{xr+e}")
                a(f"v_and_b32 v{T+1}, s49, v{xr+e}")
                a(f"v_pk_add_f32 {vr(r+2*e,2)}, {vr(r+2*e,2)}, {vr(T,2)}")
            a(f"v_cvt_pk_bf16_f32 v{r}, v{r}, v{r+1}")
            a(f"v_cvt_pk_bf16_f32 v{r+1}, v{r+2}, v{r+3}")
            a(f"s_add_u32 s46, s45, {(rt*20+ct)*2048}")
            a(f"buffer_store_dwordx2 {vr(r,2)}, v{T+4}, s[{SWS}:{SWS+3}], s46 offen")
    a.label("dn_skip")


def gen_down():
    a = Asm()
    a.label("down_kernel")
    a("s_cmp_ge_u32 s2, 224")
    a("s_cbranch_scc1 down_end")
    stamp_begin(a, "down")
    K, order = gen_down_issue(a, gen_down_setup(a, 2, True))
    stamp(a, "down")
    gen_down_rest(a, K, order)
    stamp_end(a, "down", 28, 32, 240)
    a.label("down_end")
    a("s_endpgm")
    return a.finish(), ("down_kernel", 224, 256, 73728, 256 if STAMP else 232)


def gen_main():
    a = Asm()
    a.label("main_kernel")
    a("s_cmp_ge_u32 s2, 512")
    a("s_cbranch_scc1 main_end")
    a("s_cmp_ge_u32 s2, 256")
    a("s_cbranch_scc1 main_ffn")
    if PRIO_ATTN:
        a(f"s_setprio {PRIO_ATTN}")
    stamp_begin(a, "mattn")
    gen_attn_body(a, "ma", 2)
    stamp_end(a, "mattn", 28, 32, 250)
    a("s_endpgm")
    a.label("main_ffn")
    if PRIO_FFN:
        a(f"s_setprio {PRIO_FFN}")
    a("s_sub_u32 s69, s2, 256")
    stamp_begin(a, "mffn")
    st = {}
    K0 = gen_down_setup(a, 69, True, " sc1")
    xvm = {}
    if PREFETCH and PF0 >= 0:
        a("s_lshr_b32 s96, s69, 3")
        a("s_lshl_b32 s96, s96, 2")
        a("s_add_u32 s96, s96, s32")
        a("s_lshl_b32 s96, s96, 14")
        a(f"v_lshlrev_b32 v11, 6, v1")
        for q in range(4):
            xvm[PF0 + q] = [[f"s_add_u32 s97, s96, {q*4096}",
                             f"buffer_load_dword v12, v11, s[24:27], s97 offen"]]

    def mid():
        stamp(a, "mffn")
        a("s_barrier")
        a("s_cmp_ge_u32 s69, 224")
        a("s_cbranch_scc1 main_nodn")
        st["K"] = gen_down_issue(a, K0)
        a.label("main_nodn")
        a("s_setprio 2")
    gen_gateup_body(a, "gu", 69, mid, " sc1", xvm)
    K, order = st["K"]
    SD = 28
    a("s_setprio 0")
    a("s_lshl_b32 s92, s33, 8")
    a(f"s_add_u32 s92, s92, {CT}")
    a("s_lshr_b32 s93, s63, 1")
    a("s_lshl_b32 s93, s93, 8")
    a(f"s_add_u32 s93, s93, {CT}")
    a("s_waitcnt vmcnt(0)")
    a("s_barrier")
    stamp(a, "mffn")
    a("s_cmp_lg_u32 s32, 0")
    a("s_cbranch_scc1 main_polled")
    a(f"v_mov_b32 v{D_T}, 0")
    a(f"v_mov_b32 v{D_T+1}, 1")
    a("s_mov_b64 exec, 1")
    a(f"buffer_atomic_add v{D_T+1}, v{D_T}, s[{SD}:{SD+3}], s92 offen sc1")
    a("s_cmp_ge_u32 s69, 224")
    a("s_cbranch_scc1 main_pdone")
    a.label("main_poll")
    a(f"buffer_load_dword v{D_T+2}, v{D_T}, s[{SD}:{SD+3}], s93 offen sc1")
    a("s_waitcnt vmcnt(0)")
    a(f"v_readfirstlane_b32 s95, v{D_T+2}")
    a("s_cmp_ge_u32 s95, 16")
    a("s_cbranch_scc1 main_pdone")
    a(f"s_sleep {os.environ.get('SLEEP', '8')}")
    a("s_branch main_poll")
    a.label("main_pdone")
    a("s_mov_b64 exec, -1")
    a.label("main_polled")
    a("s_cmp_ge_u32 s69, 224")
    a("s_cbranch_scc1 main_end")
    a("s_barrier")
    stamp(a, "mffn")
    a(f"s_setprio {PRIO_FFN}")
    gen_down_rest(a, K, [("d", s) for s in range(6)])
    stamp_end(a, "mffn", 28, 32, 240, 69)
    a.label("main_end")
    a("s_endpgm")
    return a.finish(), ("main_kernel", 512, 256, 73728, 256 if STAMP else 248)


PREFETCH = int(os.environ.get("PREFETCH", "1"))
PF0 = int(os.environ.get("PF0", "5"))
PRIO_ATTN = int(os.environ.get("PRIO_ATTN", "0"))
PRIO_FFN = int(os.environ.get("PRIO_FFN", "0"))


def gen_final():
    a = Asm()
    a.label("final_kernel")
    s_w, s_rb, s_cb = 32, 63, 64
    SW, SO, SWS = 20, 24, 28
    vLane, vN, vH = 1, 2, 3
    vB, vWo, vXo, vTr = 5, 8, 10, 9
    T = D_T
    a("s_cmp_ge_u32 s2, 224")
    a("s_cbranch_scc1 final_end")
    stamp_begin(a, "final")
    a("s_load_dwordx2 s[6:7], s[0:1], 32")
    a("s_load_dwordx2 s[8:9], s[0:1], 72")
    a("s_load_dwordx2 s[12:13], s[0:1], 88")
    lane_setup(a, T, vLane, vN, vH, s_w)
    tile64_setup(a, 2, s_rb, s_cb)
    a(f"v_lshlrev_b32 v{vB}, 4, v{vLane}")
    a(f"v_lshrrev_b32 v{T}, 2, v{vLane}")
    a(f"v_mul_u32_u24 v{vWo}, 1280, v{T}")
    a(f"v_and_b32 v{T}, 3, v{vLane}")
    a(f"v_lshl_add_u32 v{vWo}, v{T}, 4, v{vWo}")
    a(f"v_mul_u32_u24 v{vXo}, 1280, v{vN}")
    a(f"v_lshl_add_u32 v{vXo}, v{vH}, 3, v{vXo}")
    tr_base(a, vTr, T, vLane, vH, 9)
    a(f"s_mul_i32 s67, s{s_w}, {RING}")
    a(f"v_add_u32 v{vTr}, s67, v{vTr}")
    a(f"s_mul_i32 s66, s{s_w}, {160*1280}")
    a(f"s_mul_i32 s37, s{s_cb}, 192")
    a("s_add_u32 s66, s66, s37")
    a(f"s_mul_i32 s68, s{s_rb}, {2*40*1024}")
    a(f"s_mul_i32 s36, s{s_w}, {10*1024}")
    a("s_add_u32 s68, s68, s36")
    a(f"s_add_u32 s68, s68, {OF}")
    a(f"s_add_u32 s65, s68, {40*1024}")
    a(f"s_mul_i32 s70, s{s_rb}, {64*1280}")
    a("s_add_u32 s70, s70, s37")
    a(f"s_lshl_b32 s36, s{s_w}, 4")
    a("s_add_u32 s70, s70, s36")
    a(f"s_add_u32 s71, s70, {32*1280}")
    a(f"s_mul_i32 s45, s{s_rb}, 40")
    a(f"s_mul_i32 s46, s{s_cb}, 3")
    a("s_add_u32 s45, s45, s46")
    a("s_lshl_b32 s45, s45, 11")
    a(f"s_lshl_b32 s46, s{s_w}, 9")
    a("s_add_u32 s45, s45, s46")
    a(f"s_add_u32 s45, s45, {YF}")
    a(f"v_lshlrev_b32 v{T+4}, 3, v{vLane}")
    a("s_waitcnt lgkmcnt(0)")
    srd(a, SW, 6, 819200)
    srd(a, SO, 8, 2621440)
    srd(a, SWS, 12, WS_END)
    K = TypeK(a, 10, 6, 6, R_ACC, D_AF, D_BF, vTr, 256, vWo, SW, 66, 16 * 1280, 67, vB, SWS, 68, 65)
    order = []
    for s in range(6):
        K.emit(K.bl(s))
        K.emit(K.dma(s))
        order += [("b", s)] * 2 + [("d", s)] * 3
        if s == 2:
            for rt in range(2):
                for ct in range(3):
                    a(f"s_add_u32 s46, s45, {(rt*20+ct)*2048}")
                    a(f"buffer_load_dwordx2 {vr(D_XR+(rt*3+ct)*2,2)}, v{T+4}, s[{SWS}:{SWS+3}], s46 offen")
            order += [("x",)] * 6
    stamp(a, "final")
    K.main(order)
    stamp(a, "final")
    reduce4(a, "fin", R_ACC, D_RES, R_ACC, vB, T, s_w, 67, 0, RING)
    stamp(a, "final")
    a("s_mov_b32 s49, 0xffff0000")
    for ct in range(3):
        if ct == 2:
            a(f"s_cmp_eq_u32 s{s_cb}, 6")
            a("s_cbranch_scc1 final_skip")
        for rt in range(2):
            r = D_RES + (rt * 3 + ct) * 4
            xr = D_XR + (rt * 3 + ct) * 2
            for e in range(2):
                a(f"v_lshlrev_b32 v{T}, 16, v{xr+e}")
                a(f"v_and_b32 v{T+1}, s49, v{xr+e}")
                a(f"v_pk_add_f32 {vr(r+2*e,2)}, {vr(r+2*e,2)}, {vr(T,2)}")
            a(f"v_cvt_pk_bf16_f32 v{r}, v{r}, v{r+1}")
            a(f"v_cvt_pk_bf16_f32 v{r+1}, v{r+2}, v{r+3}")
            a(f"buffer_store_dwordx2 {vr(r,2)}, v{vXo}, s[{SO}:{SO+3}], s{70+rt} offen offset:{ct*64}")
    a.label("final_skip")
    stamp_end(a, "final", SWS, s_w, 240)
    a.label("final_end")
    a("s_endpgm")
    return a.finish(), ("final_kernel", 224, 256, 73728, 256 if STAMP else 232)


def gen_empty():
    a = Asm()
    a.label("empty_kernel")
    a("s_endpgm")
    return a.finish(), ("empty_kernel", 256, 256, 65536, 256)


KERNELS = {"empty": gen_empty, "main": gen_main, "qkv": gen_qkv, "gateup": gen_gateup, "attn": gen_attn, "down": gen_down, "final": gen_final}
HEADER = open("parallel_sum__grouped_kv_mqa__glu_gated_swiglu__prompt.s.ref").read().split("; Override launch")[0] if False else ""


DEFAULT = ["qkv", "main", "final"]


def build(order):
    texts, launches = {}, []
    for k in order:
        t, info = KERNELS[k]()
        texts[info[0]] = (t, info)
        launches.append(info)
    out = "; generated by dev/gen.py -- LN + MQA attention + SwiGLU block for gfx950\n"
    for name, grid, block, lds, vg in launches:
        out += f"; @launch kernel={name} grid=({grid},1,1) block=({block},1,1) lds={lds}\n"
    out += '.amdgcn_target "amdgcn-amd-amdhsa--gfx950"\n.text\n'
    for name, (t, info) in texts.items():
        out += kernel_header(name) + t
    out += '.section .rodata,"a"\n'
    for name, (t, info) in texts.items():
        out += kernel_desc(name, info[4])
    return out


if __name__ == "__main__":
    order = sys.argv[2].split(",") if len(sys.argv) > 2 else DEFAULT
    open(sys.argv[1], "w").write(build(order))
```

```python
import math
import struct
import sys

from asmlib import Asm

XF = 0x0
QF = 0x280000
KF = 0x500000
VF = 0x514000
KN = 0x52A000
CT = 0x52C000
OF = 0x530000
HF = 0x800000
FP = 0x1000000
YF = 0x1000000
WS_END = 0x2500000
TS = 0x2400000
import os
STAMP = os.environ.get("STAMP", "")


_stamp_n = {}


def stamp(a, name, vreg=255):
    if name in STAMP.split(","):
        i = _stamp_n.get(name, 0)
        _stamp_n[name] = i + 1
        a("s_memtime s[100:101]")
        a("s_waitcnt lgkmcnt(0)")
        a(f"v_writelane_b32 v{vreg}, s100, {i}")


def stamp_begin(a, name, vreg=255):
    if name in STAMP.split(","):
        a("s_memrealtime s[98:99]")
        a("s_waitcnt lgkmcnt(0)")
        a(f"v_writelane_b32 v{vreg}, s98, 14")
    stamp(a, name, vreg)


def stamp_end(a, name, sws, s_w, vtmp, s_wg=2, vreg=255):
    if name in STAMP.split(","):
        a("s_waitcnt vmcnt(0) lgkmcnt(0)")
        stamp(a, name, vreg)
        a("s_memrealtime s[98:99]")
        a("s_waitcnt lgkmcnt(0)")
        a(f"v_writelane_b32 v{vreg}, s98, 15")
        a(f"s_lshl_b32 s94, s{s_wg}, 2")
        a(f"s_add_u32 s94, s94, s{s_w}")
        a("s_lshl_b32 s94, s94, 6")
        a(f"s_add_u32 s94, s94, {TS + STAMP.split(',').index(name) * 0x20000}")
        a(f"v_and_b32 v{vtmp}, 63, v0")
        a(f"v_lshlrev_b32 v{vtmp}, 2, v{vtmp}")
        a("s_mov_b64 s[98:99], exec")
        a("s_mov_b64 exec, 0xffff")
        a(f"buffer_store_dword v{vreg}, v{vtmp}, s[{sws}:{sws+3}], s94 offen")
        a("s_mov_b64 exec, s[98:99]")


QSCALE = (20 ** -0.5) * math.log2(math.e)


def f2u(x):
    return struct.unpack("<I", struct.pack("<f", x))[0]


def hx(x):
    return "0x%x" % x


def srd(a, d, base, size):
    a(f"s_mov_b32 s{d}, s{base}")
    a(f"s_and_b32 s{d+1}, s{base+1}, 0xffff")
    a(f"s_mov_b32 s{d+2}, {hx(size)}")
    a(f"s_mov_b32 s{d+3}, 0x00020000")


def vr(b, n=1):
    return f"v{b}" if n == 1 else f"v[{b}:{b+n-1}]"


def mfma32(a, d, x, y, c=None):
    cs = vr(d, 16) if c is None else c
    a(f"v_mfma_f32_32x32x16_bf16 {vr(d,16)}, {vr(x,4)}, {vr(y,4)}, {cs}")


def kernel_header(name):
    return f""".globl {name}
.p2align 8
.type {name},@function
"""


def kernel_desc(name, vgprs, sgprs=102):
    acc = (vgprs + 3) // 4 * 4
    return f""".p2align 6
.amdhsa_kernel {name}
  .amdhsa_next_free_vgpr {vgprs}
  .amdhsa_next_free_sgpr {sgprs}
  .amdhsa_accum_offset {acc}
  .amdhsa_group_segment_fixed_size 0
  .amdhsa_kernarg_size 96
  .amdhsa_user_sgpr_count 2
  .amdhsa_user_sgpr_kernarg_segment_ptr 1
  .amdhsa_system_sgpr_workgroup_id_x 1
.end_amdhsa_kernel
"""


K_X = 16
K_ACC = 96
K_A = 192
K_T = 216
WAVE_LDS = 30720
LDS_STG = 8192


K_R = K_A


def typek_mfma_phase(a, vtr, zero=True, vm_after=None, extra=None):
    def reads(s, buf):
        for ct in range(3):
            o = (3 * s + ct) * 1024
            r = K_A + buf * 12 + ct * 4
            a(f"ds_read_b64_tr_b16 {vr(r,2)}, v{vtr} offset:{o}")
            a(f"ds_read_b64_tr_b16 {vr(r+2,2)}, v{vtr} offset:{o+256}")
    if vm_after:
        a(f"s_waitcnt vmcnt({vm_after(0)})")
    reads(0, 0)
    for s in range(10):
        if s + 1 < 10:
            if vm_after:
                a(f"s_waitcnt vmcnt({vm_after(s+1)})")
            reads(s + 1, (s + 1) & 1)
            a("s_waitcnt lgkmcnt(6)")
        else:
            a("s_waitcnt lgkmcnt(0)")
        ex = list(extra(s)) if extra else []
        n = len(ex)
        k = 0
        for ct in range(3):
            for rt in range(2):
                d = K_ACC + (rt * 3 + ct) * 16
                mfma32(a, d, K_A + (s & 1) * 12 + ct * 4, K_X + rt * 40 + s * 4, "0" if (s == 0 and zero) else None)
                k += 1
                for x in ex[((k - 1) * n) // 6:(k * n) // 6]:
                    a(x)


def reduce4(a, pfx, ACC, RES, TMP, vL16, vT, s_w, s_base, base0, stride, pre_barrier=None, post_reads=None):
    for g in range(4):
        a(f"s_cmp_eq_u32 s{s_w}, {g}")
        a(f"s_cbranch_scc1 {pfx}_rw{g}")
        a(f"s_sub_u32 s90, {g+3}, s{s_w}")
        a("s_and_b32 s90, s90, 3")
        a("s_mul_i32 s90, s90, 6144")
        a(f"s_add_u32 s90, s90, s{s_base}")
        a(f"v_add_u32 v{vT}, s90, v{vL16}")
        for t in range(6):
            a(f"ds_write_b128 v{vT}, {vr(ACC+t*16+g*4,4)} offset:{t*1024}")
        a.label(f"{pfx}_rw{g}")
    if pre_barrier:
        pre_barrier()
    for jj in range(3):
        a(f"s_add_u32 s90, s{s_w}, {jj+1}")
        a("s_and_b32 s90, s90, 3")
        a(f"s_mul_i32 s90, s90, {stride}")
        a(f"s_add_u32 s90, s90, {base0 + (2-jj)*6144}")
        a(f"v_add_u32 v{vT+1+jj}, s90, v{vL16}")
    for g in range(4):
        a(f"s_cmp_lg_u32 s{s_w}, {g}")
        a(f"s_cbranch_scc1 {pfx}_ro{g}")
        for t in range(6):
            for e in range(4):
                a(f"v_mov_b32 v{RES+t*4+e}, v{ACC+t*16+g*4+e}")
        a.label(f"{pfx}_ro{g}")
    a("s_waitcnt lgkmcnt(0)")
    a("s_barrier")
    for jj in range(3):
        for t in range(6):
            a(f"ds_read_b128 {vr(TMP+(jj*6+t)*4,4)}, v{vT+1+jj} offset:{t*1024}")
    n_extra = post_reads() if post_reads else 0
    for jj in range(3):
        a(f"s_waitcnt lgkmcnt({min(15, (2-jj)*6 + n_extra)})")
        for e in range(0, 24, 2):
            a(f"v_pk_add_f32 {vr(RES+e,2)}, {vr(RES+e,2)}, {vr(TMP+jj*24+e,2)}")


class TypeK:
    def __init__(self, a, KS, RD, RB, ACC, AF, BF, vTr, tr2, vWo, SW, s_g, gstep, s_ring, vB, SB, s_b0, s_b1, bmods=""):
        self.__dict__.update(locals())

    def dma(self, s):
        out = []
        for ct in range(3):
            out.append([f"s_add_u32 m0, s{self.s_ring}, {((s % self.RD)*3+ct)*1024}",
                        f"s_add_u32 s91, s{self.s_g}, {s*self.gstep + ct*64}",
                        f"buffer_load_dwordx4 v{self.vWo}, s[{self.SW}:{self.SW+3}], s91 offen lds"])
        return out

    def bl(self, s):
        out = []
        for rt in range(2):
            sb = self.s_b0 if rt == 0 else self.s_b1
            g = []
            if s % 4 == 0 and s:
                g.append(f"s_add_u32 s{sb}, s{sb}, 4096")
            g.append(f"buffer_load_dwordx4 {vr(self.BF+(s%self.RB)*8+rt*4,4)}, v{self.vB}, s[{self.SB}:{self.SB+3}], s{sb} offen offset:{(s%4)*1024}{self.bmods}")
            out.append(g)
        return out

    def emit(self, groups):
        for g in groups:
            for x in g:
                self.a(x)

    def reads(self, s):
        out = []
        for ct in range(3):
            o = ((s % self.RD) * 3 + ct) * 1024
            r = self.AF + (s & 1) * 12 + ct * 4
            out.append(f"ds_read_b64_tr_b16 {vr(r,2)}, v{self.vTr} offset:{o}")
            out.append(f"ds_read_b64_tr_b16 {vr(r+2,2)}, v{self.vTr} offset:{o+self.tr2}")
        return out

    def main(self, order):
        a, KS, RD, RB = self.a, self.KS, self.RD, self.RB
        order = list(order)

        def wait_for(s):
            last = max(i for i, o in enumerate(order) if o in (("d", s), ("b", s)))
            a(f"s_waitcnt vmcnt({min(63, len(order) - 1 - last)})")
        wait_for(0)
        for x in self.reads(0):
            a(x)
        for s in range(KS):
            if s + 1 < KS:
                wait_for(s + 1)
                for x in self.reads(s + 1):
                    a(x)
                a("s_waitcnt lgkmcnt(6)")
            else:
                a("s_waitcnt lgkmcnt(0)")
            dm = self.dma(s + RD) if s + RD < KS else []
            k = 0
            for ct in range(3):
                for rt in range(2):
                    mfma32(a, self.ACC + (rt * 3 + ct) * 16, self.AF + (s & 1) * 12 + ct * 4,
                           self.BF + (s % RB) * 8 + rt * 4, "0" if s == 0 else None)
                    if k % 2 == 0 and dm:
                        self.emit([dm.pop(0)])
                        order.append(("d", s + RD))
                    k += 1
            if s + RB < KS:
                self.emit(self.bl(s + RB))
                order += [("b", s + RB)] * 2


def lane_setup(a, T, vLane, vN, vH, s_w):
    a(f"v_and_b32 v{vLane}, 63, v0")
    a(f"v_lshrrev_b32 v{T}, 6, v0")
    a(f"v_readfirstlane_b32 s{s_w}, v{T}")
    a(f"v_and_b32 v{vN}, 31, v0")
    a(f"v_bfe_u32 v{vH}, v0, 5, 1")


def tr_base(a, vTr, T, vLane, vH, hshift):
    a(f"v_lshlrev_b32 v{vTr}, {hshift}, v{vH}")
    a(f"v_bfe_u32 v{T}, v{vLane}, 2, 2")
    a(f"v_lshl_add_u32 v{vTr}, v{T}, 6, v{vTr}")
    a(f"v_bfe_u32 v{T}, v{vLane}, 4, 1")
    a(f"v_lshl_add_u32 v{vTr}, v{T}, 5, v{vTr}")
    a(f"v_and_b32 v{T}, 3, v{vLane}")
    a(f"v_lshl_add_u32 v{vTr}, v{T}, 3, v{vTr}")


def gen_qkv():
    a = Asm()
    a.label("qkv_kernel")
    ST = 0
    NB = 4096
    MX = 6144
    s_w, s_rb, s_cb = 32, 33, 34
    SX, SWS = 16, 28
    SWT = [72, 76, 80]
    vLane, vN, vH = 1, 2, 3
    vXg, vXr, vTr, vSlab, vRd = 4, 5, 7, 8, 9
    vSt = 11
    vWo = [12, 13, 14]
    vCs = 6
    T = K_T
    XO = 9216
    a("s_cmp_ge_u32 s2, 256")
    a("s_cbranch_scc1 qkv_end")
    stamp_begin(a, "qkv")
    a("s_load_dwordx4 s[4:7], s[0:1], 0")
    a("s_load_dwordx4 s[8:11], s[0:1], 16")
    a("s_load_dwordx2 s[12:13], s[0:1], 88")
    a("s_load_dwordx4 s[56:59], s[0:1], 48")
    lane_setup(a, T, vLane, vN, vH, s_w)
    a("s_and_b32 s3, s2, 7")
    a("s_lshr_b32 s35, s2, 3")
    a("s_and_b32 s36, s35, 3")
    a("s_lshl_b32 s3, s3, 2")
    a(f"s_add_u32 s{s_rb}, s3, s36")
    a(f"s_lshr_b32 s{s_cb}, s35, 2")
    a(f"v_mul_u32_u24 v{T}, 49, v{vLane}")
    a(f"v_lshrrev_b32 v{T}, 10, v{T}")
    a(f"v_mul_u32_u24 v{T+1}, 21, v{T}")
    a(f"v_sub_u32 v{T+1}, v{vLane}, v{T+1}")
    a(f"v_mul_u32_u24 v{vXg}, 1280, v{T}")
    a(f"v_lshl_add_u32 v{vXg}, v{T+1}, 4, v{vXg}")
    a(f"s_mul_i32 s37, s{s_w}, {WAVE_LDS}")
    a(f"s_add_u32 s37, s37, {LDS_STG}")
    a(f"v_mul_u32_u24 v{vXr}, 336, v{vN}")
    a(f"v_lshl_add_u32 v{vXr}, v{vH}, 4, v{vXr}")
    a(f"v_add_u32 v{vXr}, s37, v{vXr}")
    a(f"s_mul_i32 s39, s{s_rb}, {64*1280}")
    a(f"s_mul_i32 s40, s{s_w}, 320")
    a("s_add_u32 s39, s39, s40")
    a("s_waitcnt lgkmcnt(0)")
    srd(a, SX, 4, 2621440)
    a("s_mov_b32 s52, -1")
    a("s_mov_b32 s53, 0x7fffffff")
    a("s_mov_b64 exec, s[52:53]")
    for jx in range(22):
        if jx == 21:
            a("s_mov_b64 exec, 0x1fffff")
        a(f"s_add_u32 m0, s37, {XO + jx*1008}")
        a(f"s_add_u32 s44, s39, {jx*3840}")
        a(f"buffer_load_dwordx4 v{vXg}, s[{SX}:{SX+3}], s44 offen lds")
    a("s_mov_b64 exec, -1")
    a(f"v_lshrrev_b32 v{T}, 2, v{vLane}")
    a(f"v_and_b32 v{T+1}, 3, v{vLane}")
    a(f"v_lshlrev_b32 v{T+1}, 4, v{T+1}")
    a(f"v_mad_u32_u24 v{T+2}, v{T}, 40, v{T+1}")
    a(f"s_movk_i32 s38, 1280")
    a(f"v_mad_u32_u24 v{T+3}, v{T}, s38, v{T+1}")
    a(f"s_mul_i32 s50, s{s_cb}, 3")
    a(f"s_mul_i32 s41, s{s_w}, {160*1280}")
    a(f"s_mul_i32 s43, s{s_w}, {160*40}")
    for ct in range(3):
        d = SWT[ct]
        a(f"s_add_u32 s51, s50, {ct}")
        a("s_cmp_eq_u32 s51, 21")
        a(f"s_cselect_b32 s{d}, s10, s8")
        a(f"s_cselect_b32 s{d+1}, s11, s9")
        a("s_cmp_lt_u32 s51, 22")
        a(f"s_cselect_b32 s{d+2}, 25600, 0")
        a("s_lshl_b32 s45, s51, 6")
        a("s_add_u32 s45, s45, s41")
        a("s_cmp_lt_u32 s51, 20")
        a(f"s_cselect_b32 s{d}, s6, s{d}")
        a(f"s_cselect_b32 s{d+1}, s7, s{d+1}")
        a(f"s_cselect_b32 s{d+2}, 819200, s{d+2}")
        a(f"s_mov_b32 s{d+3}, 0x00020000")
        a(f"s_cselect_b32 s{84+ct}, s45, s43")
        a(f"s_movk_i32 s{87+ct}, {16*40}")
        a(f"s_cselect_b32 s{87+ct}, {16*1280}, s{87+ct}")
        a("s_cselect_b64 vcc, -1, 0")
        a(f"s_and_b32 s{d+1}, s{d+1}, 0xffff")
        a(f"v_cndmask_b32 v{vWo[ct]}, v{T+2}, v{T+3}, vcc")

    def w_dma(s):
        for ct in range(3):
            a(f"s_add_u32 m0, s37, {(3*s+ct)*1024}")
            a(f"buffer_load_dwordx4 v{vWo[ct]}, s[{SWT[ct]}:{SWT[ct]+3}], s{84+ct} offen lds")
            a(f"s_add_u32 s{84+ct}, s{84+ct}, s{87+ct}")
    for s in range(3):
        w_dma(s)
    srd(a, SWS, 12, WS_END)
    a("s_cmp_lg_u32 s2, 255")
    a("s_cbranch_scc1 qkv_noct")
    a(f"s_cmp_lg_u32 s{s_w}, 3")
    a("s_cbranch_scc1 qkv_noct")
    a(f"v_lshlrev_b32 v{T}, 8, v{vLane}")
    a(f"v_mov_b32 v{T+1}, 0")
    a(f"s_mov_b32 s44, {CT}")
    a("s_mov_b64 exec, 0xffff")
    a(f"buffer_store_dword v{T+1}, v{T}, s[{SWS}:{SWS+3}], s44 offen")
    a("s_mov_b64 exec, -1")
    a("s_waitcnt vmcnt(0)")
    a.label("qkv_noct")
    tr_base(a, vTr, T, vLane, vH, 9)
    a(f"v_add_u32 v{vTr}, s37, v{vTr}")
    a(f"v_lshlrev_b32 v{vSlab}, 4, v{vLane}")
    a(f"s_mul_i32 s38, s{s_w}, 384")
    a(f"v_lshlrev_b32 v{vCs}, 2, v{vN}")
    a(f"v_add_u32 v{vCs}, s38, v{vCs}")
    a(f"v_lshlrev_b32 v{vSt}, 6, v{vN}")
    vOne = T
    SA = T + 2
    a(f"v_mov_b32 v{vOne}, 0x3f803f80")
    for i in range(11):
        a(f"v_mov_b32 v{SA+i}, 0")
    a(f"ds_write_b32 v{SA}, v{SA} offset:{MX}")
    a("s_waitcnt vmcnt(9)")
    stamp(a, "qkv")
    for rt in range(2):
        for s in range(10):
            a(f"ds_read_b128 {vr(K_X+rt*40+s*4,4)}, v{vXr} offset:{XO + rt*10752 + s*32}")
    a("s_waitcnt lgkmcnt(0)")
    xs = []
    for i in range(40):
        for rt in range(2):
            x = K_X + rt * 40 + i
            b = SA + rt * 4 + (i & 1) * 2
            xs.append(f"v_dot2_f32_bf16 v{b}, v{x}, v{vOne}, v{b}")
            xs.append(f"v_dot2_f32_bf16 v{b+1}, v{x}, v{x}, v{b+1}")
    for s in range(3, 10):
        w_dma(s)
        for x in xs[((s - 3) * 160) // 7:((s - 2) * 160) // 7]:
            a(x)
    stamp(a, "qkv")

    def stats(s):
        out = []
        for q in range(4):
            for ct in range(3):
                out.append(f"v_dot2_f32_bf16 v{SA+8+ct}, v{K_A+(s&1)*12+ct*4+q}, v{vOne}, v{SA+8+ct}")
        return out
    typek_mfma_phase(a, vTr, True, lambda s: 3 * (9 - s), stats)
    stamp(a, "qkv")
    if PREFETCH:
        srd(a, 60, 56, 1966080)
        srd(a, 64, 58, 1966080)
        a(f"v_mul_u32_u24 v{T+24}, 43, v{vLane}")
        a(f"v_lshrrev_b32 v{T+24}, 9, v{T+24}")
        a(f"v_mul_u32_u24 v{T+25}, 12, v{T+24}")
        a(f"v_sub_u32 v{T+25}, v{vLane}, v{T+25}")
        a(f"v_mul_u32_u24 v{T+24}, 3072, v{T+24}")
        a(f"v_lshl_add_u32 v{T+24}, v{T+25}, 6, v{T+24}")
        a("s_lshr_b32 s44, s2, 3")
        a("s_lshl_b32 s44, s44, 2")
        a(f"s_add_u32 s44, s44, s{s_w}")
        a(f"s_mul_i32 s44, s44, {5*3072}")
        a("s_bfe_u32 s38, s2, 0x20001")
        a("s_mul_i32 s38, s38, 768")
        a("s_add_u32 s44, s44, s38")
        a("s_mov_b32 s52, -1")
        a("s_mov_b32 s53, 0x0fffffff")
        a("s_mov_b64 exec, s[52:53]")
        a(f"buffer_load_dword v{T+36}, v{T+24}, s[60:63], s44 offen")
        a(f"buffer_load_dword v{T+37}, v{T+24}, s[64:67], s44 offen")
        a("s_mov_b64 exec, -1")

    CSA = 6400

    def pre_barrier():
        for rt in range(2):
            b = SA + rt * 4
            a(f"v_pk_add_f32 {vr(b,2)}, {vr(b,2)}, {vr(b+2,2)}")
        a(f"v_lshl_add_u32 v{T+14}, v{vH}, 3, v{vSt}")
        a(f"s_lshl_b32 s38, s{s_w}, 4")
        a(f"v_add_u32 v{T+14}, s38, v{T+14}")
        for rt in range(2):
            a(f"ds_write_b64 v{T+14}, {vr(SA+rt*4,2)} offset:{ST + rt*2048}")
        for ct in range(3):
            a(f"v_mov_b32 v{T+16+ct}, v{SA+8+ct}")
        for ct in range(3):
            a(f"v_permlane32_swap_b32 v{SA+8+ct}, v{T+16+ct}")
        for ct in range(3):
            a(f"v_add_f32 v{SA+8+ct}, v{SA+8+ct}, v{T+16+ct}")
            a(f"ds_write_b32 v{vCs}, v{SA+8+ct} offset:{CSA + ct*128}")
        a(f"v_lshlrev_b32 v{vRd}, 4, v{vH}")
        a(f"s_lshl_b32 s38, s{s_w}, 5")
        a(f"v_add_u32 v{vRd}, s38, v{vRd}")
    CS = T + 20
    RR = T + 32
    a(f"s_mov_b32 s45, {hx(f2u(1.0/640))}")
    a(f"s_mov_b32 s46, {hx(f2u(1e-5))}")
    reduce4(a, "qkv", K_ACC, K_R, K_ACC, vSlab, T + 20, s_w, 37, LDS_STG, WAVE_LDS, pre_barrier)
    for jw in range(4):
        for ct in range(3):
            a(f"ds_read_b128 {vr(K_ACC+(jw*3+ct)*4,4)}, v{vRd} offset:{CSA + jw*384 + ct*128}")
    for rt in range(2):
        for q in range(4):
            a(f"ds_read_b128 {vr(K_ACC+48+rt*16+q*4,4)}, v{vSt} offset:{ST + rt*2048 + q*16}")
    a("s_waitcnt lgkmcnt(0)")
    for e in range(0, 12, 2):
        a(f"v_pk_add_f32 {vr(K_ACC+e,2)}, {vr(K_ACC+e,2)}, {vr(K_ACC+12+e,2)}")
        a(f"v_pk_add_f32 {vr(K_ACC+24+e,2)}, {vr(K_ACC+24+e,2)}, {vr(K_ACC+36+e,2)}")
    for e in range(0, 12, 2):
        a(f"v_pk_add_f32 {vr(CS+e,2)}, {vr(K_ACC+e,2)}, {vr(K_ACC+24+e,2)}")
    for rt in range(2):
        b = K_ACC + 48 + rt * 16
        for step in (8, 4, 2):
            for e in range(0, step, 2):
                a(f"v_pk_add_f32 {vr(b+e,2)}, {vr(b+e,2)}, {vr(b+e+step,2)}")
        mu, sq, t0 = b, b + 1, b + 3
        m_b, rr = RR + rt * 2, RR + rt * 2 + 1
        a(f"v_mul_f32 v{mu}, s45, v{mu}")
        a(f"v_mul_f32 v{sq}, s45, v{sq}")
        a(f"v_fma_f32 v{sq}, -v{mu}, v{mu}, v{sq}")
        a(f"v_max_f32 v{sq}, 0, v{sq}")
        a(f"v_cvt_pk_bf16_f32 v{m_b}, v{mu}, v{sq}")
        a(f"v_and_b32 v{t0}, 0xffff0000, v{m_b}")
        a(f"v_lshlrev_b32 v{m_b}, 16, v{m_b}")
        a(f"v_add_f32 v{t0}, s46, v{t0}")
        a(f"v_cvt_pk_bf16_f32 v{t0}, v{t0}, v{t0}")
        a(f"v_lshlrev_b32 v{t0}, 16, v{t0}")
        a(f"v_sqrt_f32 v{t0}, v{t0}")
        a(f"v_cvt_pk_bf16_f32 v{t0}, v{t0}, v{t0}")
        a(f"v_lshlrev_b32 v{t0}, 16, v{t0}")
        a(f"v_rcp_f32 v{rr}, v{t0}")
    for rt in range(2):
        m_b, rr = RR + rt * 2, RR + rt * 2 + 1
        for ct in range(3):
            for e in range(4):
                r = K_R + (rt * 3 + ct) * 4 + e
                a(f"v_fma_f32 v{r}, -v{m_b}, v{CS+ct*4+e}, v{r}")
                a(f"v_mul_f32 v{r}, v{r}, v{rr}")
    stamp(a, "qkv")
    a("s_mov_b32 s47, 0xffff0000")
    a(f"v_lshlrev_b32 v{T}, 4, v{vLane}")
    a(f"s_mul_i32 s39, s{s_rb}, {2*40*1024}")
    a(f"s_mul_i32 s40, s{s_w}, {10*1024}")
    a("s_add_u32 s39, s39, s40")
    for rt in range(2):
        m_b, rr = RR + rt * 2, RR + rt * 2 + 1
        PR = K_ACC + rt * 4
        a(f"v_mov_b32 v{PR}, v{rr}")
        a(f"v_mov_b32 v{PR+1}, v{rr}")
        a(f"v_mul_f32_e64 v{PR+2}, -v{m_b}, v{rr}")
        a(f"v_mov_b32 v{PR+3}, v{PR+2}")
    for c in range(8):
        a(f"s_cmp_lg_u32 s{s_cb}, {c}")
        a(f"s_cbranch_scc1 qkv_xn{c}")
        for f in range(c, 20, 8):
            rt, sx = divmod(f, 10)
            PR = K_ACC + rt * 4
            for q in range(4):
                x = K_X + rt * 40 + sx * 4 + q
                u = K_ACC + 8 + q * 2
                a(f"v_lshlrev_b32 v{u}, 16, v{x}")
                a(f"v_and_b32 v{u+1}, s47, v{x}")
                a(f"v_pk_fma_f32 {vr(u,2)}, {vr(u,2)}, {vr(PR,2)}, {vr(PR+2,2)}")
                a(f"v_cvt_pk_bf16_f32 v{x}, v{u}, v{u+1}")
            a(f"s_add_u32 s44, s39, {XF + rt*40*1024 + sx*1024}")
            a(f"buffer_store_dwordx4 {vr(K_X+rt*40+sx*4,4)}, v{T}, s[{SWS}:{SWS+3}], s44 offen")
        a.label(f"qkv_xn{c}")
    vC0, vHead, vD0, vOff, vA = T, T + 1, T + 2, T + 3, T + 4
    a(f"s_mov_b32 s45, {hx(f2u(QSCALE))}")
    a("s_mov_b32 s46, 3277")
    a(f"s_mul_i32 s38, s{s_cb}, 96")
    a(f"s_lshl_b32 s39, s{s_w}, 3")
    a("s_add_u32 s38, s38, s39")
    a(f"s_mul_i32 s48, s{s_rb}, {2*32*1280}")
    a(f"s_add_u32 s48, s48, {QF}")
    a(f"s_add_u32 s49, s48, {32*1280}")
    a(f"s_mul_i32 s50, s{s_cb}, 3")

    def frag_off(vD0, vOff):
        a(f"v_lshrrev_b32 v{vA}, 3, v{vD0}")
        a(f"v_lshlrev_b32 v{vA}, 9, v{vA}")
        a(f"v_lshl_add_u32 v{vA}, v{vN}, 4, v{vA}")
        a(f"v_and_b32 v{vA+1}, 4, v{vD0}")
        a(f"v_lshl_add_u32 v{vA}, v{vA+1}, 1, v{vA}")
        a(f"v_lshlrev_b32 v{vA+1}, 3, v{vN}")
        a(f"v_add_u32 v{vA+1}, 1024, v{vA+1}")
        a(f"v_cmp_gt_u32 vcc, 16, v{vD0}")
        a(f"v_cndmask_b32 v{vA}, v{vA+1}, v{vA}, vcc")
        a(f"v_add_u32 v{vOff}, v{vOff}, v{vA}")

    for ct in range(3):
        a(f"s_add_u32 s51, s50, {ct}")
        a("s_cmp_ge_u32 s51, 20")
        a(f"s_cbranch_scc1 qkv_notq{ct}")
        a(f"v_lshlrev_b32 v{vC0}, 2, v{vH}")
        a(f"v_add_u32 v{vC0}, s38, v{vC0}")
        if ct:
            a(f"v_add_u32 v{vC0}, {32*ct}, v{vC0}")
        a(f"v_mul_u32_u24 v{vHead}, s46, v{vC0}")
        a(f"v_lshrrev_b32 v{vHead}, 16, v{vHead}")
        a(f"v_mul_u32_u24 v{vD0}, 20, v{vHead}")
        a(f"v_sub_u32 v{vD0}, v{vC0}, v{vD0}")
        a(f"v_mul_u32_u24 v{vOff}, 1280, v{vHead}")
        frag_off(vD0, vOff)
        for rt in range(2):
            r = K_R + (rt * 3 + ct) * 4
            for e in range(4):
                a(f"v_mul_f32 v{r+e}, s45, v{r+e}")
            a(f"v_cvt_pk_bf16_f32 v{r}, v{r}, v{r+1}")
            a(f"v_cvt_pk_bf16_f32 v{r+1}, v{r+2}, v{r+3}")
            a(f"buffer_store_dwordx2 {vr(r,2)}, v{vOff}, s[{SWS}:{SWS+3}], s{48+rt} offen")
        a.label(f"qkv_notq{ct}")
    stamp_end(a, "qkv", SWS, s_w, 240)
    a(f"s_cmp_lt_u32 s{s_cb}, 6")
    a("s_cbranch_scc1 qkv_end")
    P = T + 8
    a(f"s_cmp_eq_u32 s{s_cb}, 7")
    a("s_cbranch_scc1 qkv_mvv")
    for rt in range(2):
        for e in range(4):
            a(f"v_mov_b32 v{P+rt*4+e}, v{K_R+(rt*3+2)*4+e}")
    a("s_branch qkv_mvd")
    a.label("qkv_mvv")
    for rt in range(2):
        for e in range(4):
            a(f"v_mov_b32 v{P+rt*4+e}, v{K_R+(rt*3+0)*4+e}")
    a.label("qkv_mvd")
    a(f"v_lshlrev_b32 v{vD0}, 2, v{vH}")
    a(f"v_add_u32 v{vD0}, s39, v{vD0}")
    a(f"v_cmp_gt_u32 s[52:53], 20, v{vD0}")
    a(f"v_lshlrev_b32 v{vA}, 5, v{vN}")
    a(f"v_add_u32 v{vA}, v{vA}, v{vD0}")
    for rt in range(2):
        q = T + 16 + rt
        a(f"v_mul_f32 v{q}, v{P+rt*4}, v{P+rt*4}")
        for e in range(1, 4):
            a(f"v_fmac_f32 v{q}, v{P+rt*4+e}, v{P+rt*4+e}")
        a(f"v_cndmask_b32 v{q}, 0, v{q}, s[52:53]")
        a(f"ds_write_b32 v{vA}, v{q} offset:{NB + rt*1024}")
    for rt in range(2):
        r = P + rt * 4
        a(f"v_cvt_pk_bf16_f32 v{r}, v{r}, v{r+1}")
        a(f"v_cvt_pk_bf16_f32 v{r+1}, v{r+2}, v{r+3}")
    a("s_mov_b64 s[54:55], exec")
    a("s_and_b64 exec, exec, s[52:53]")
    a("s_cbranch_execz qkv_kvst_done")
    a(f"s_mul_i32 s48, s{s_rb}, {2*1280}")
    a(f"s_cmp_eq_u32 s{s_cb}, 7")
    a("s_cbranch_scc1 qkv_vst")
    a(f"s_add_u32 s48, s48, {KF}")
    a("s_add_u32 s49, s48, 1280")
    a(f"v_mov_b32 v{vOff}, 0")
    frag_off(vD0, vOff)
    for rt in range(2):
        a(f"buffer_store_dwordx2 {vr(P+rt*4,2)}, v{vOff}, s[{SWS}:{SWS+3}], s{48+rt} offen")
    a("s_branch qkv_kvst_done")
    a.label("qkv_vst")
    a(f"s_mul_i32 s48, s{s_rb}, {2*1344}")
    a(f"s_add_u32 s48, s48, {VF}")
    a("s_add_u32 s49, s48, 1344")
    a(f"v_lshrrev_b32 v{vA}, 4, v{vN}")
    a(f"v_lshlrev_b32 v{vA}, 1, v{vA}")
    a(f"v_bfe_u32 v{vA+1}, v{vN}, 2, 1")
    a(f"v_add_u32 v{vA}, v{vA}, v{vA+1}")
    a(f"v_mul_u32_u24 v{vA}, 21, v{vA}")
    a(f"v_add_u32 v{vA}, v{vA}, v{vD0}")
    a(f"v_lshlrev_b32 v{vOff}, 4, v{vA}")
    a(f"v_and_b32 v{vA}, 3, v{vN}")
    a(f"v_lshl_add_u32 v{vOff}, v{vA}, 1, v{vOff}")
    a(f"v_bfe_u32 v{vA}, v{vN}, 3, 1")
    a(f"v_lshl_add_u32 v{vOff}, v{vA}, 3, v{vOff}")
    for rt in range(2):
        r = P + rt * 4
        a(f"buffer_store_short v{r}, v{vOff}, s[{SWS}:{SWS+3}], s{48+rt} offen")
        a(f"buffer_store_short_d16_hi v{r}, v{vOff}, s[{SWS}:{SWS+3}], s{48+rt} offen offset:16")
        a(f"buffer_store_short v{r+1}, v{vOff}, s[{SWS}:{SWS+3}], s{48+rt} offen offset:32")
        a(f"buffer_store_short_d16_hi v{r+1}, v{vOff}, s[{SWS}:{SWS+3}], s{48+rt} offen offset:48")
    a.label("qkv_kvst_done")
    a("s_mov_b64 exec, s[54:55]")
    a(f"s_cmp_lg_u32 s{s_cb}, 7")
    a("s_cbranch_scc1 qkv_noones")
    a(f"s_cmp_lg_u32 s{s_w}, 3")
    a("s_cbranch_scc1 qkv_noones")
    a(f"s_mul_i32 s48, s{s_rb}, {2*1344}")
    a(f"s_add_u32 s48, s48, {VF + 320}")
    a(f"v_mul_u32_u24 v{vOff}, 336, v{vLane}")
    for e in range(4):
        a(f"v_mov_b32 v{P+e}, 0x3f803f80")
    a("s_mov_b64 exec, 0xff")
    a(f"buffer_store_dwordx4 {vr(P,4)}, v{vOff}, s[{SWS}:{SWS+3}], s48 offen")
    a("s_mov_b64 exec, s[54:55]")
    a.label("qkv_noones")
    a("s_waitcnt lgkmcnt(0)")
    a("s_barrier")
    a(f"s_cmp_lg_u32 s{s_w}, 0")
    a("s_cbranch_scc1 qkv_end")
    a(f"v_lshlrev_b32 v{vA}, 5, v{vLane}")
    a(f"ds_read_b128 {vr(P,4)}, v{vA} offset:{NB}")
    a(f"ds_read_b128 {vr(P+4,4)}, v{vA} offset:{NB+16}")
    a("s_waitcnt lgkmcnt(0)")
    for e in range(1, 8):
        a(f"v_add_f32 v{P}, v{P}, v{P+e}")
    a(f"v_mov_b32 v{vA}, 0")
    a(f"ds_max_u32 v{vA}, v{P} offset:{MX}")
    a("s_waitcnt lgkmcnt(0)")
    a(f"ds_read_b32 v{P}, v{vA} offset:{MX}")
    a(f"s_sub_u32 s48, s{s_cb}, 6")
    a("s_lshl_b32 s48, s48, 5")
    a(f"s_add_u32 s48, s48, s{s_rb}")
    a("s_lshl_b32 s48, s48, 2")
    a(f"s_add_u32 s48, s48, {KN}")
    a("s_waitcnt lgkmcnt(0)")
    a(f"buffer_store_dword v{P}, v{vA}, s[{SWS}:{SWS+3}], s48 offen")
    a.label("qkv_end")
    a("s_endpgm")
    return a.finish(), ("qkv_kernel", 256, 256, 131072, 256)


A_Q, A_O, A_S, A_P, A_K, A_V, A_M = 16, 48, 112, 144, 160, 192, 224
A_T = 228
NSET = 4
OOB = 0x80000000


def gen_attn_body(a, pfx, s_wg):
    s_w, s_rt, s_kh, s_hd = 32, 33, 34, 35
    SWS = 28
    vLane, vN, vH = 1, 2, 3
    vK1, vK2, vV = 4, 5, 6
    T = A_T
    a("s_load_dwordx2 s[12:13], s[0:1], 88")
    a("s_load_dwordx2 s[14:15], s[0:1], 32")
    lane_setup(a, T, vLane, vN, vH, s_w)
    a(f"s_and_b32 s3, s{s_wg}, 7")
    a(f"s_lshr_b32 s36, s{s_wg}, 5")
    a("s_lshl_b32 s3, s3, 3")
    a(f"s_add_u32 s{s_rt}, s3, s36")
    a(f"s_bfe_u32 s3, s{s_wg}, 0x20003")
    a(f"s_and_b32 s{s_kh}, s{s_w}, 1")
    a(f"s_lshr_b32 s36, s{s_w}, 1")
    a("s_lshl_b32 s3, s3, 3")
    a("s_lshl_b32 s36, s36, 2")
    a(f"s_add_u32 s{s_hd}, s3, s36")
    a(f"v_lshlrev_b32 v{vK1}, 4, v{vLane}")
    a(f"v_lshlrev_b32 v{vK2}, 3, v{vN}")
    a(f"v_add_u32 v{vK2}, 1024, v{vK2}")
    a(f"v_mov_b32 v{T}, {hx(OOB)}")
    a(f"v_cmp_eq_u32 vcc, 0, v{vH}")
    a(f"v_cndmask_b32 v{vK2}, v{T}, v{vK2}, vcc")
    a(f"v_mul_u32_u24 v{vV}, 21, v{vH}")
    a(f"v_add_u32 v{vV}, v{vV}, v{vN}")
    a(f"v_lshlrev_b32 v{vV}, 4, v{vV}")
    a(f"v_cmp_gt_u32 vcc, 21, v{vN}")
    a(f"v_cndmask_b32 v{vV}, v{T}, v{vV}, vcc")
    a("s_waitcnt lgkmcnt(0)")
    srd(a, SWS, 12, WS_END)
    a(f"s_add_u32 s12, s12, {KN}")
    a("s_addc_u32 s13, s13, 0")
    a("s_load_dwordx16 s[64:79], s[12:13], 0")
    a("s_load_dwordx16 s[80:95], s[12:13], 64")
    a("s_load_dwordx16 s[44:59], s[12:13], 128")
    a(f"s_lshl_b32 s36, s{s_rt}, 5")
    a(f"s_add_u32 s36, s36, s{s_hd}")
    a("s_mul_i32 s36, s36, 1280")
    a(f"s_add_u32 s36, s36, {QF}")
    for i in range(4):
        a(f"buffer_load_dwordx4 {vr(A_Q+8*i,4)}, v{vK1}, s[{SWS}:{SWS+3}], s36 offen")
        a(f"buffer_load_dwordx2 {vr(A_Q+8*i+4,2)}, v{vK2}, s[{SWS}:{SWS+3}], s36 offen")
        if i < 3:
            a("s_add_u32 s36, s36, 1280")
    s_kp, s_vp = 37, 38
    a(f"s_mul_i32 s{s_kp}, s{s_kh}, {32*1280}")
    a(f"s_add_u32 s{s_kp}, s{s_kp}, {KF}")
    a(f"s_mul_i32 s{s_vp}, s{s_kh}, {32*1344}")
    a(f"s_add_u32 s{s_vp}, s{s_vp}, {VF}")

    def loadK(st):
        a(f"buffer_load_dwordx4 {vr(A_K+8*st,4)}, v{vK1}, s[{SWS}:{SWS+3}], s{s_kp} offen")
        a(f"buffer_load_dwordx2 {vr(A_K+8*st+4,2)}, v{vK2}, s[{SWS}:{SWS+3}], s{s_kp} offen")
        a(f"s_add_u32 s{s_kp}, s{s_kp}, 1280")

    def loadV(st):
        a(f"buffer_load_dwordx4 {vr(A_V+8*st,4)}, v{vV}, s[{SWS}:{SWS+3}], s{s_vp} offen")
        a(f"buffer_load_dwordx4 {vr(A_V+8*st+4,4)}, v{vV}, s[{SWS}:{SWS+3}], s{s_vp} offen offset:672")
        a(f"s_add_u32 s{s_vp}, s{s_vp}, 1344")
    for st in range(NSET - 1):
        loadK(st)
        loadV(st)
    loadK(NSET - 1)
    for i in range(4):
        a(f"v_mov_b32 v{A_Q+8*i+6}, 0")
        a(f"v_mov_b32 v{A_Q+8*i+7}, 0")
    for st in range(NSET):
        a(f"v_mov_b32 v{A_K+8*st+6}, 0")
        a(f"v_mov_b32 v{A_K+8*st+7}, 0")
    for r in range(64):
        a(f"v_mov_b32 v{A_O+r}, 0")
    for r in range(16):
        a(f"v_mov_b32 v{A_P+r}, 0")
    for r in range(8):
        a(f"v_mov_b32 v{A_V+8*(NSET-1)+r}, 0")
    for r in range(4):
        a(f"v_mov_b32 v{A_M+r}, 0")
    a("s_waitcnt lgkmcnt(0)")
    for r in range(65, 96):
        a(f"s_max_u32 s64, s64, s{r}")
    for r in range(45, 60):
        a(f"s_max_u32 s44, s44, s{r}")
    a("s_load_dwordx16 s[80:95], s[12:13], 192")
    a("s_waitcnt lgkmcnt(0)")
    for r in range(80, 96):
        a(f"s_max_u32 s44, s44, s{r}")
    a(f"s_waitcnt vmcnt({4*NSET-2})")
    for i in range(4):
        a(f"v_mov_b32 v{T+i}, 0")
    for r in range(6):
        for i in range(4):
            a(f"v_dot2_f32_bf16 v{T+i}, v{A_Q+8*i+r}, v{A_Q+8*i+r}, v{T+i}")
    for i in range(4):
        a(f"v_mov_b32 v{T+4+i}, v{T+i}")
    for i in range(4):
        a(f"v_permlane32_swap_b32 v{T+i}, v{T+4+i}")
    for i in range(4):
        a(f"v_add_f32 v{T+i}, v{T+i}, v{T+4+i}")
    a(f"v_max3_f32 v{T}, v{T}, v{T+1}, v{T+2}")
    a(f"v_max_f32 v{T}, v{T}, v{T+3}")
    a(f"v_mul_f32 v{T}, s64, v{T}")
    a(f"v_mov_b32 v{T+1}, {hx(f2u(3600.0/1.05))}")
    a(f"v_cmp_nle_f32 vcc, v{T}, v{T+1}")
    a(f"s_cmp_gt_u32 s44, {hx(f2u(2.0**80))}")
    a(f"s_cbranch_scc1 {pfx}_slow")
    a(f"s_cbranch_vccnz {pfx}_slow")

    def qk(m, sb, ks, i):
        if m == 0:
            mfma32(a, A_S + 16 * sb, A_K + 8 * ks, A_Q + 8 * i, "0")
        else:
            mfma32(a, A_S + 16 * sb, A_K + 8 * ks + 4, A_Q + 8 * i + 4)

    def pv(m, pb, vs, i):
        mfma32(a, A_O + 16 * i, A_V + 8 * vs + 4 * m, A_P + 8 * pb + 4 * m)

    a(f"s_waitcnt vmcnt({4*NSET-4})")
    qk(0, 0, 0, 0)
    qk(1, 0, 0, 0)
    stamp(a, "attn")
    a(f"s_mov_b32 s39, {32//NSET}")
    a("s_nop 10")
    a.raw(".p2align 6")
    a.label(f"{pfx}_loop")
    for kk in range(NSET):
        for i in range(4):
            cur = i & 1
            S = A_S + 16 * cur
            P = A_P + 8 * cur
            nks, ni = (kk, i + 1) if i < 3 else ((kk + 1) % NSET, 0)
            pvs, pi = (kk, i - 1) if i > 0 else ((kk - 1) % NSET, 3)
            if i in (1, 3) and not os.environ.get("NOWAIT"):
                a(f"s_waitcnt vmcnt({4*NSET-6})")
            qk(0, cur ^ 1, nks, ni)
            for e in range(0, 4):
                a(f"v_exp_f32 v{S+e}, v{S+e}")
            qk(1, cur ^ 1, nks, ni)
            if i == 1 and not os.environ.get("NOKV"):
                loadV((kk - 1) % NSET)
            if i == 3 and not os.environ.get("NOKV"):
                loadK(kk)
            for e in range(4, 8):
                a(f"v_exp_f32 v{S+e}, v{S+e}")
            pv(0, cur ^ 1, pvs, pi)
            for e in range(8, 12):
                a(f"v_exp_f32 v{S+e}, v{S+e}")
            for j in range(0, 2):
                a(f"v_cvt_pk_bf16_f32 v{P+j}, v{S+2*j}, v{S+2*j+1}")
            pv(1, cur ^ 1, pvs, pi)
            for e in range(12, 16):
                a(f"v_exp_f32 v{S+e}, v{S+e}")
            for j in range(2, 8):
                a(f"v_cvt_pk_bf16_f32 v{P+j}, v{S+2*j}, v{S+2*j+1}")
    a("s_sub_u32 s39, s39, 1")
    a("s_cmp_lg_u32 s39, 0")
    a(f"s_cbranch_scc1 {pfx}_loop")
    pv(0, 1, NSET - 1, 3)
    pv(1, 1, NSET - 1, 3)
    stamp(a, "attn")
    a(f"s_branch {pfx}_epi")

    a.label(f"{pfx}_slow")
    for r in range(4):
        a(f"v_mov_b32 v{A_M+r}, {hx(f2u(-1e30))}")
    a("s_mov_b32 s39, 32")
    a(f"s_sub_u32 s{s_kp}, s{s_kp}, {1280*(NSET-1)}")
    a(f"s_sub_u32 s{s_vp}, s{s_vp}, {1344*(NSET-2)}")
    a.label(f"{pfx}_sloop")
    a("s_waitcnt vmcnt(0)")
    for i in range(4):
        S, P, M = A_S, A_P, A_M + i
        qk(0, 0, 0, i)
        qk(1, 0, 0, i)
        a(f"v_max3_f32 v{T}, v{S}, v{S+1}, v{S+2}")
        for e in range(3, 15, 2):
            a(f"v_max3_f32 v{T}, v{T}, v{S+e}, v{S+e+1}")
        a(f"v_max_f32 v{T}, v{T}, v{S+15}")
        a(f"v_mov_b32 v{T+1}, v{T}")
        a(f"v_permlane32_swap_b32 v{T}, v{T+1}")
        a(f"v_max3_f32 v{T}, v{T}, v{T+1}, v{M}")
        a(f"v_sub_f32 v{T+1}, v{M}, v{T}")
        a(f"v_exp_f32 v{T+1}, v{T+1}")
        a(f"v_mov_b32 v{M}, v{T}")
        for e in range(16):
            a(f"v_sub_f32 v{S+e}, v{S+e}, v{T}")
            a(f"v_exp_f32 v{S+e}, v{S+e}")
        for j in range(8):
            a(f"v_cvt_pk_bf16_f32 v{P+j}, v{S+2*j}, v{S+2*j+1}")
        for e in range(16):
            a(f"v_mul_f32 v{A_O+16*i+e}, v{A_O+16*i+e}, v{T+1}")
        pv(0, 0, 0, i)
        pv(1, 0, 0, i)
    loadK(0)
    loadV(0)
    a("s_sub_u32 s39, s39, 1")
    a("s_cmp_lg_u32 s39, 0")
    a(f"s_cbranch_scc1 {pfx}_sloop")

    a.label(f"{pfx}_epi")
    a("s_waitcnt vmcnt(0)")
    if PREFETCH:
        srd(a, 16, 14, 819200)
        a(f"s_lshr_b32 s40, s{s_wg}, 3")
        a("s_lshl_b32 s40, s40, 2")
        a(f"s_add_u32 s40, s40, s{s_w}")
        a("s_mul_i32 s40, s40, 6400")
        a(f"v_lshlrev_b32 v{T+14}, 6, v{vLane}")
        a(f"buffer_load_dword v{T+15}, v{T+14}, s[16:19], s40 offen")
        a("s_add_u32 s40, s40, 4096")
        a(f"buffer_load_dword v{T+15}, v{T+14}, s[16:19], s40 offen")
    vW, vR = T, T + 1
    a(f"s_mul_i32 s40, s{s_w}, 6656")
    a(f"s_xor_b32 s41, s{s_w}, 1")
    a("s_mul_i32 s41, s41, 6656")
    a(f"v_add_u32 v{vW}, s40, v{vK1}")
    a(f"v_add_u32 v{vR}, s41, v{vK1}")
    a(f"v_lshlrev_b32 v{T+2}, 2, v{vLane}")
    a(f"v_add_u32 v{T+3}, s41, v{T+2}")
    a(f"v_add_u32 v{T+2}, s40, v{T+2}")
    a(f"s_cmp_eq_u32 s{s_kh}, 0")
    a(f"s_cbranch_scc1 {pfx}_e0")
    for t in range(2):
        for q in range(3):
            a(f"ds_write_b128 v{vW}, {vr(A_O+16*t+4*q,4)} offset:{(t*3+q)*1024}")
        a(f"ds_write_b32 v{T+2}, v{A_M+t} offset:{6144+t*256}")
    a("s_waitcnt lgkmcnt(0)")
    for t in range(2):
        for e in range(12):
            a(f"v_mov_b32 v{A_O+16*t+e}, v{A_O+16*(t+2)+e}")
        a(f"v_mov_b32 v{A_M+t}, v{A_M+t+2}")
    a(f"s_add_u32 s{s_hd}, s{s_hd}, 2")
    a(f"s_branch {pfx}_e1")
    a.label(f"{pfx}_e0")
    for t in range(2):
        for q in range(3):
            a(f"ds_write_b128 v{vW}, {vr(A_O+16*(t+2)+4*q,4)} offset:{(t*3+q)*1024}")
        a(f"ds_write_b32 v{T+2}, v{A_M+t+2} offset:{6144+t*256}")
    a("s_waitcnt lgkmcnt(0)")
    a.label(f"{pfx}_e1")
    a("s_barrier")
    for t in range(2):
        for q in range(3):
            a(f"ds_read_b128 {vr(A_S+16*t+4*q,4)}, v{vR} offset:{(t*3+q)*1024}")
        a(f"ds_read_b32 v{A_M+2+t}, v{T+3} offset:{6144+t*256}")
    a("s_waitcnt lgkmcnt(0)")
    a(f"s_mul_i32 s40, s{s_rt}, {40*1024}")
    a(f"s_add_u32 s40, s40, {OF}")
    a(f"v_mov_b32 v{T+12}, {hx(OOB)}")
    a(f"v_cmp_eq_u32 s[42:43], 0, v{vH}")
    for t in range(2):
        O, Pz, Ma, Mp = A_O + 16 * t, A_S + 16 * t, A_M + t, A_M + 2 + t
        a(f"v_max_f32 v{T+4}, v{Ma}, v{Mp}")
        a(f"v_sub_f32 v{T+5}, v{Ma}, v{T+4}")
        a(f"v_sub_f32 v{T+6}, v{Mp}, v{T+4}")
        a(f"v_exp_f32 v{T+5}, v{T+5}")
        a(f"v_exp_f32 v{T+6}, v{T+6}")
        for e in range(12):
            a(f"v_mul_f32 v{O+e}, v{O+e}, v{T+5}")
            a(f"v_fmac_f32 v{O+e}, v{Pz+e}, v{T+6}")
        a(f"v_mov_b32 v{T+7}, v{O+8}")
        a(f"v_mov_b32 v{T+8}, v{O+8}")
        a(f"v_permlane32_swap_b32 v{T+7}, v{T+8}")
        a(f"v_rcp_f32 v{T+8}, v{T+8}")
        for e in range(12):
            a(f"v_mul_f32 v{O+e}, v{O+e}, v{T+8}")
        for q in range(3):
            a(f"v_cvt_pk_bf16_f32 v{O+4*q}, v{O+4*q}, v{O+4*q+1}")
            a(f"v_cvt_pk_bf16_f32 v{O+4*q+1}, v{O+4*q+2}, v{O+4*q+3}")
        a(f"s_add_u32 s41, s{s_hd}, {t}")
        a("s_mul_i32 s41, s41, 20")
        for q in range(3):
            k, off = T + 9, T + 10
            a(f"v_lshlrev_b32 v{k}, 2, v{vH}")
            a(f"v_add_u32 v{k}, s41, v{k}")
            if q:
                a(f"v_add_u32 v{k}, {8*q}, v{k}")
            a(f"v_lshrrev_b32 v{off}, 3, v{k}")
            a(f"v_lshlrev_b32 v{off}, 9, v{off}")
            a(f"v_lshl_add_u32 v{off}, v{vN}, 4, v{off}")
            a(f"v_and_b32 v{k}, 4, v{k}")
            a(f"v_lshl_add_u32 v{off}, v{k}, 1, v{off}")
            if q == 2:
                a(f"v_cndmask_b32 v{off}, v{T+12}, v{off}, s[42:43]")
            a(f"buffer_store_dwordx2 {vr(O+4*q,2)}, v{off}, s[{SWS}:{SWS+3}], s40 offen")


def gen_attn():
    a = Asm()
    a.label("attn_kernel")
    a("s_cmp_ge_u32 s2, 256")
    a("s_cbranch_scc1 attn_end")
    stamp_begin(a, "attn")
    gen_attn_body(a, "attn", 2)
    stamp_end(a, "attn", 28, 32, 250)
    a.label("attn_end")
    a("s_endpgm")
    return a.finish(), ("attn_kernel", 256, 256, 26624, 256 if STAMP else 248)


R_ACC, R_A, R_B, R_T = 16, 112, 160, 208


class TypeR:
    def __init__(self, a, pfx, NT, NS, vTr, vWo, vB, s_w, srd_of_tile, goff, s_bp, SWS, tr2, bmods=""):
        self.__dict__.update(locals())
        self.SLOT = 4 * NT * 1024
        self.sname = {"gu": "gateup", "dn": "down", "fi": "final"}[pfx[:2]]
        self.s_m = 60
        self.per = NT + 4

    def dma_ops(self, stage):
        slot = stage % 3
        s_g0, s_g1, gstep = self.goff
        out = []
        for t in range(self.NT):
            sr, grp, tt = self.srd_of_tile(t)
            out.append([f"s_add_u32 m0, s{self.s_m}, {slot*self.SLOT + t*1024}",
                        f"s_add_u32 s61, s{s_g0 if grp == 0 else s_g1}, {stage*gstep + tt*64}",
                        f"buffer_load_dwordx4 v{self.vWo}, s[{sr}:{sr+3}], s61 offen lds"])
        return out

    def b_ops(self, stage):
        slot = stage % 3
        bl = []
        for j in range(4):
            g = []
            if j == 0:
                g.append(f"s_add_u32 s62, s{self.s_bp}, {stage*4096}")
            g.append(f"buffer_load_dwordx4 {vr(R_B+slot*16+j*4,4)}, v{self.vB}, s[{self.SWS}:{self.SWS+3}], s62 offen offset:{j*1024}{self.bmods}")
            bl.append(g)
        return bl

    def vm_ops(self, stage):
        out, bl, res = self.dma_ops(stage), self.b_ops(stage), []
        while out or bl:
            if out:
                res.append(out.pop(0))
            if bl and len(res) > 1:
                res.append(bl.pop(0))
        return res

    def emit(self, groups):
        for g in groups:
            for x in g:
                self.a(x)

    def reads(self, stage, j):
        buf = (stage * 4 + j) & 1
        slot = stage % 3
        base = (slot & 1) * self.SLOT + j * self.NT * 1024
        va = self.vTr + (slot >> 1)
        out = []
        for t in range(self.NT):
            r = R_A + buf * 24 + t * 4
            out.append(f"ds_read_b64_tr_b16 {vr(r,2)}, v{va} offset:{base + t*1024}")
            out.append(f"ds_read_b64_tr_b16 {vr(r+2,2)}, v{va} offset:{base + t*1024 + self.tr2}")
        return out

    def mf(self, stage, j, t):
        buf = (stage * 4 + j) & 1
        first = stage == 0 and j == 0
        mfma32(self.a, R_ACC + 16 * t, R_A + buf * 24 + t * 4, R_B + (stage % 3) * 16 + j * 4, "0" if first else None)

    def setup(self):
        a = self.a
        a(f"s_mul_i32 s{self.s_m}, s{self.s_w}, {self.NT*1024}")
        a(f"v_add_u32 v{self.vTr+1}, {2*self.SLOT}, v{self.vTr}")

    def main(self, first_wait, extra_vm=None):
        a, NT, NS = self.a, self.NT, self.NS
        extra_vm = extra_vm or {}
        order = [0] * self.per + [1] * self.per
        stamp(a, self.sname)
        a(f"s_waitcnt vmcnt({first_wait})")
        a("s_barrier")
        stamp(a, self.sname)
        for x in self.reads(0, 0):
            a(x)
        for i in range(NS):
            if i in (1, 2, 4):
                stamp(a, self.sname)
            ops = self.vm_ops(i + 2) if i + 2 < NS else []
            order += [i + 2] * len(ops)
            ops = ops + extra_vm.get(i, [])
            order += [-1] * len(extra_vm.get(i, []))
            nslots = 3 * NT
            place = {}
            for k, g in enumerate(ops):
                place.setdefault((k * nslots) // len(ops), []).append(g)
            for j in range(3):
                rd = self.reads(i, j + 1)
                for t in range(NT):
                    a(f"s_waitcnt lgkmcnt({2*(NT-1)})")
                    self.mf(i, j, t)
                    a(rd[2 * t])
                    a(rd[2 * t + 1])
                    if j * NT + t in place:
                        self.emit(place[j * NT + t])
            last = i + 1 == NS
            H = NT if last else (NT + 1) // 2
            for t in range(H):
                a(f"s_waitcnt lgkmcnt({2*(NT-1-t)})")
                self.mf(i, 3, t)
            if not last:
                lastidx = max(k for k, o in enumerate(order) if o == i + 1)
                a(f"s_waitcnt vmcnt({len(order) - 1 - lastidx}) lgkmcnt(0)")
                a("s_barrier")
                rd = self.reads(i + 1, 0)
                n = NT - H
                for k, t in enumerate(range(H, NT)):
                    self.mf(i, 3, t)
                    for x in rd[(k * len(rd)) // n:((k + 1) * len(rd)) // n]:
                        a(x)


def gen_gateup_body(a, pfx, s_wg, mid_hook=None, smods='', extra_vm=None):
    s_w, s_rb, s_cb = 32, 33, 34
    SW1, SW3, SWS = 16, 20, 28
    vLane, vN, vH, vWo, vB, vTr = 1, 2, 3, 4, 5, 6
    T = R_T
    a("s_load_dwordx4 s[4:7], s[0:1], 48")
    a("s_load_dwordx2 s[12:13], s[0:1], 88")
    lane_setup(a, T, vLane, vN, vH, s_w)
    a(f"s_and_b32 s3, s{s_wg}, 7")
    a(f"s_lshr_b32 s35, s{s_wg}, 3")
    a("s_and_b32 s36, s3, 1")
    a("s_lshl_b32 s36, s36, 3")
    a("s_and_b32 s37, s35, 7")
    a(f"s_add_u32 s{s_rb}, s36, s37")
    a("s_lshr_b32 s36, s3, 1")
    a("s_lshl_b32 s36, s36, 2")
    a("s_lshr_b32 s37, s35, 3")
    a(f"s_add_u32 s{s_cb}, s36, s37")
    a(f"v_lshrrev_b32 v{T}, 2, v{vLane}")
    a(f"v_mul_u32_u24 v{vWo}, 3072, v{T}")
    a(f"v_and_b32 v{T}, 3, v{vLane}")
    a(f"v_lshl_add_u32 v{vWo}, v{T}, 4, v{vWo}")
    tr_base(a, vTr, T, vLane, vH, 9)
    a(f"v_lshlrev_b32 v{vB}, 4, v{vLane}")
    a(f"s_mul_i32 s40, s{s_w}, {16*3072}")
    a(f"s_mul_i32 s41, s{s_cb}, 192")
    a("s_add_u32 s40, s40, s41")
    a(f"s_lshl_b32 s42, s{s_rb}, 2")
    a(f"s_add_u32 s42, s42, s{s_w}")
    a(f"s_mul_i32 s43, s42, {40*1024}")
    if XF:
        a(f"s_add_u32 s43, s43, {XF}")
    a("s_waitcnt lgkmcnt(0)")
    srd(a, SW1, 4, 1966080)
    srd(a, SW3, 6, 1966080)
    srd(a, SWS, 12, WS_END)
    R = TypeR(a, pfx, 6, 10, vTr, vWo, vB, s_w,
              lambda t: (SW1, 0, t) if t < 3 else (SW3, 0, t - 3), (40, 40, 64 * 3072), 43, SWS, 256)
    R.setup()
    R.emit(R.vm_ops(0) + R.vm_ops(1))
    R.main(R.per, extra_vm)
    if mid_hook:
        mid_hook()
    stamp(a, "gateup")
    a(f"s_mov_b32 s44, {hx(f2u(-math.log2(math.e)))}")
    a(f"s_mul_i32 s45, s42, {96*1024}")
    a(f"s_mul_i32 s46, s{s_cb}, {6*1024}")
    a("s_add_u32 s45, s45, s46")
    a(f"s_add_u32 s45, s45, {HF}")
    a(f"v_mov_b32 v{T}, s44")
    a(f"v_mov_b32 v{T+1}, s44")
    a(f"v_mov_b32 v{T+2}, 1.0")
    a(f"v_mov_b32 v{T+3}, 1.0")
    for t in range(3):
        g, u = R_ACC + 16 * t, R_ACC + 16 * (t + 3)
        E = R_A
        for e in range(0, 16, 2):
            a(f"v_pk_mul_f32 {vr(E+e,2)}, {vr(g+e,2)}, {vr(T,2)}")
        for e in range(16):
            a(f"v_exp_f32 v{E+e}, v{E+e}")
        for e in range(0, 16, 2):
            a(f"v_pk_add_f32 {vr(E+e,2)}, {vr(E+e,2)}, {vr(T+2,2)}")
        for e in range(16):
            a(f"v_rcp_f32 v{E+e}, v{E+e}")
        for e in range(0, 16, 2):
            a(f"v_pk_mul_f32 {vr(g+e,2)}, {vr(g+e,2)}, {vr(u+e,2)}")
        for e in range(0, 16, 2):
            a(f"v_pk_mul_f32 {vr(g+e,2)}, {vr(g+e,2)}, {vr(E+e,2)}")
        for j in range(8):
            a(f"v_cvt_pk_bf16_f32 v{u+j}, v{g+2*j}, v{g+2*j+1}")
        for hf in range(2):
            o = (2 * t + hf) * 1024
            if o < 4096:
                a(f"buffer_store_dwordx4 {vr(u+4*hf,4)}, v{vB}, s[{SWS}:{SWS+3}], s45 offen offset:{o}{smods}")
            else:
                a(f"s_add_u32 s46, s45, {o}")
                a(f"buffer_store_dwordx4 {vr(u+4*hf,4)}, v{vB}, s[{SWS}:{SWS+3}], s46 offen{smods}")


def gen_gateup():
    a = Asm()
    a.label("gateup_kernel")
    a("s_cmp_ge_u32 s2, 256")
    a("s_cbranch_scc1 gateup_end")
    stamp_begin(a, "gateup")
    gen_gateup_body(a, "gu", 2)
    stamp_end(a, "gateup", 28, 32, 240)
    a.label("gateup_end")
    a("s_endpgm")
    return a.finish(), ("gateup_kernel", 256, 256, 73728, 256 if STAMP else 216)


D_AF, D_BF, D_RES, D_XR, D_T = 112, 136, 184, 212, 224
RING = 18432


def tile64_setup(a, s_wg, s_rb, s_cb):
    a(f"s_and_b32 s3, s{s_wg}, 7")
    a("s_lshl_b32 s3, s3, 2")
    a(f"s_bfe_u32 s36, s{s_wg}, 0x20003")
    a(f"s_add_u32 s{s_rb}, s3, s36")
    a(f"s_lshr_b32 s{s_cb}, s{s_wg}, 5")


def gen_down_setup(a, s_wg, standalone, bmods=""):
    s_w = 32
    s_rb, s_cb = 63, 64
    SW, SWS, SX = 24, 28, 76
    vLane, vN, vH, vWo, vB, vTr, vXo = 1, 2, 3, 8, 5, 9, 10
    T = D_T
    a("s_load_dwordx2 s[8:9], s[0:1], 64")
    a("s_load_dwordx2 s[14:15], s[0:1], 0")
    if standalone:
        a("s_load_dwordx2 s[12:13], s[0:1], 88")
        lane_setup(a, T, vLane, vN, vH, s_w)
        a(f"v_lshlrev_b32 v{vB}, 4, v{vLane}")
    tile64_setup(a, s_wg, s_rb, s_cb)
    a(f"v_lshrrev_b32 v{T}, 2, v{vLane}")
    a(f"v_mul_u32_u24 v{vWo}, 1280, v{T}")
    a(f"v_and_b32 v{T}, 3, v{vLane}")
    a(f"v_lshl_add_u32 v{vWo}, v{T}, 4, v{vWo}")
    tr_base(a, vTr, T, vLane, vH, 8)
    a(f"s_mul_i32 s67, s{s_w}, {RING}")
    a(f"v_add_u32 v{vTr}, s67, v{vTr}")
    a(f"v_mul_u32_u24 v{vXo}, 1280, v{vN}")
    a(f"v_lshl_add_u32 v{vXo}, v{vH}, 3, v{vXo}")
    a(f"s_mul_i32 s66, s{s_w}, {384*1280}")
    a(f"s_mul_i32 s37, s{s_cb}, 192")
    a("s_add_u32 s66, s66, s37")
    a(f"s_mul_i32 s68, s{s_rb}, {2*96*1024}")
    a(f"s_mul_i32 s36, s{s_w}, {24*1024}")
    a("s_add_u32 s68, s68, s36")
    a(f"s_add_u32 s68, s68, {HF}")
    a(f"s_add_u32 s65, s68, {96*1024}")
    a(f"s_mul_i32 s70, s{s_rb}, {64*1280}")
    a("s_add_u32 s70, s70, s37")
    a(f"s_lshl_b32 s36, s{s_w}, 4")
    a("s_add_u32 s70, s70, s36")
    a(f"s_add_u32 s71, s70, {32*1280}")
    a("s_waitcnt lgkmcnt(0)")
    srd(a, SW, 8, 1966080)
    srd(a, SX, 14, 2621440)
    if standalone:
        srd(a, SWS, 12, WS_END)
    K = TypeK(a, 24, 6, 6, R_ACC, D_AF, D_BF, vTr, 512, vWo, SW, 66, 16 * 1280, 67, vB, SWS, 68, 65, bmods)
    return K


def gen_down_issue(a, K):
    SX, vXo = 76, 10
    for rt in range(2):
        for ct in range(3):
            a(f"buffer_load_dwordx2 {vr(D_XR+(rt*3+ct)*2,2)}, v{vXo}, s[{SX}:{SX+3}], s{70+rt} offen offset:{ct*64}")
    order = [("x",)] * 6
    for s in range(6):
        K.emit(K.dma(s))
        order += [("d", s)] * 3
    return K, order


def gen_down_rest(a, K, order):
    s_w, s_rb, s_cb, SWS, vB, vLane = 32, 63, 64, 28, 5, 1
    T = D_T
    for s in range(6):
        K.emit(K.bl(s))
        order = order + [("b", s)] * 2
    K.main(order)
    stamp(a, "mffn")
    stamp(a, "down")
    a("s_setprio 2")
    reduce4(a, "dn", R_ACC, D_RES, R_ACC, vB, T, s_w, 67, 0, RING)
    a("s_mov_b32 s49, 0xffff0000")
    a(f"s_mul_i32 s45, s{s_rb}, 40")
    a(f"s_mul_i32 s46, s{s_cb}, 3")
    a("s_add_u32 s45, s45, s46")
    a("s_lshl_b32 s45, s45, 11")
    a(f"s_lshr_b32 s46, s{s_w}, 1")
    a("s_lshl_b32 s46, s46, 10")
    a("s_add_u32 s45, s45, s46")
    a(f"s_and_b32 s46, s{s_w}, 1")
    a("s_lshl_b32 s46, s46, 3")
    a("s_add_u32 s45, s45, s46")
    a(f"s_add_u32 s45, s45, {YF}")
    for ct in range(3):
        if ct == 2:
            a(f"s_cmp_eq_u32 s{s_cb}, 6")
            a("s_cbranch_scc1 dn_skip")
        for rt in range(2):
            r = D_RES + (rt * 3 + ct) * 4
            xr = D_XR + (rt * 3 + ct) * 2
            for e in range(2):
                a(f"v_lshlrev_b32 v{T}, 16, v{xr+e}")
                a(f"v_and_b32 v{T+1}, s49, v{xr+e}")
                a(f"v_pk_add_f32 {vr(r+2*e,2)}, {vr(r+2*e,2)}, {vr(T,2)}")
            a(f"v_cvt_pk_bf16_f32 v{r}, v{r}, v{r+1}")
            a(f"v_cvt_pk_bf16_f32 v{r+1}, v{r+2}, v{r+3}")
            a(f"s_add_u32 s46, s45, {(rt*20+ct)*2048}")
            a(f"buffer_store_dwordx2 {vr(r,2)}, v{vB}, s[{SWS}:{SWS+3}], s46 offen")
    a.label("dn_skip")


def gen_down():
    a = Asm()
    a.label("down_kernel")
    a("s_cmp_ge_u32 s2, 224")
    a("s_cbranch_scc1 down_end")
    stamp_begin(a, "down")
    K, order = gen_down_issue(a, gen_down_setup(a, 2, True))
    stamp(a, "down")
    gen_down_rest(a, K, order)
    stamp_end(a, "down", 28, 32, 240)
    a.label("down_end")
    a("s_endpgm")
    return a.finish(), ("down_kernel", 224, 256, 73728, 256 if STAMP else 232)


def gen_main():
    a = Asm()
    a.label("main_kernel")
    a("s_cmp_ge_u32 s2, 512")
    a("s_cbranch_scc1 main_end")
    a("s_cmp_ge_u32 s2, 256")
    a("s_cbranch_scc1 main_ffn")
    if PRIO_ATTN:
        a(f"s_setprio {PRIO_ATTN}")
    stamp_begin(a, "mattn")
    gen_attn_body(a, "ma", 2)
    stamp_end(a, "mattn", 28, 32, 250)
    a("s_endpgm")
    a.label("main_ffn")
    if PRIO_FFN:
        a(f"s_setprio {PRIO_FFN}")
    a("s_sub_u32 s69, s2, 256")
    stamp_begin(a, "mffn")
    st = {}
    K0 = gen_down_setup(a, 69, True, " sc1")
    xvm = {}
    if PREFETCH and PF0 >= 0:
        a("s_lshr_b32 s96, s69, 3")
        a("s_lshl_b32 s96, s96, 2")
        a("s_add_u32 s96, s96, s32")
        a("s_lshl_b32 s96, s96, 14")
        a(f"v_lshlrev_b32 v11, 6, v1")
        for q in range(4):
            xvm[PF0 + q] = [[f"s_add_u32 s97, s96, {q*4096}",
                             f"buffer_load_dword v12, v11, s[24:27], s97 offen"]]

    def mid():
        stamp(a, "mffn")
        a("s_barrier")
        a("s_cmp_ge_u32 s69, 224")
        a("s_cbranch_scc1 main_nodn")
        st["K"] = gen_down_issue(a, K0)
        a.label("main_nodn")
        a("s_setprio 2")
    gen_gateup_body(a, "gu", 69, mid, " sc1", xvm)
    K, order = st["K"]
    SD = 28
    a("s_setprio 0")
    a("s_lshl_b32 s92, s33, 8")
    a(f"s_add_u32 s92, s92, {CT}")
    a("s_lshr_b32 s93, s63, 1")
    a("s_lshl_b32 s93, s93, 8")
    a(f"s_add_u32 s93, s93, {CT}")
    a("s_waitcnt vmcnt(0)")
    a("s_barrier")
    stamp(a, "mffn")
    a("s_cmp_lg_u32 s32, 0")
    a("s_cbranch_scc1 main_polled")
    a(f"v_mov_b32 v{D_T}, 0")
    a(f"v_mov_b32 v{D_T+1}, 1")
    a("s_mov_b64 exec, 1")
    a(f"buffer_atomic_add v{D_T+1}, v{D_T}, s[{SD}:{SD+3}], s92 offen sc1")
    a("s_cmp_ge_u32 s69, 224")
    a("s_cbranch_scc1 main_pdone")
    a.label("main_poll")
    a(f"buffer_load_dword v{D_T+2}, v{D_T}, s[{SD}:{SD+3}], s93 offen sc1")
    a("s_waitcnt vmcnt(0)")
    a(f"v_readfirstlane_b32 s95, v{D_T+2}")
    a("s_cmp_ge_u32 s95, 16")
    a("s_cbranch_scc1 main_pdone")
    a(f"s_sleep {os.environ.get('SLEEP', '8')}")
    a("s_branch main_poll")
    a.label("main_pdone")
    a("s_mov_b64 exec, -1")
    a.label("main_polled")
    a("s_cmp_ge_u32 s69, 224")
    a("s_cbranch_scc1 main_end")
    a("s_barrier")
    stamp(a, "mffn")
    a(f"s_setprio {PRIO_FFN}")
    gen_down_rest(a, K, [("d", s) for s in range(6)])
    stamp_end(a, "mffn", 28, 32, 240, 69)
    a.label("main_end")
    a("s_endpgm")
    return a.finish(), ("main_kernel", 512, 256, 73728, 256 if STAMP else 248)


PREFETCH = int(os.environ.get("PREFETCH", "1"))
PF0 = int(os.environ.get("PF0", "6"))
PRIO_ATTN = int(os.environ.get("PRIO_ATTN", "0"))
PRIO_FFN = int(os.environ.get("PRIO_FFN", "0"))


def gen_final():
    a = Asm()
    a.label("final_kernel")
    s_w, s_rb, s_cb = 32, 33, 34
    SW, SO, SWS = 20, 24, 28
    vLane, vN, vH, vWo, vB, vTr, vXo = 1, 2, 3, 4, 5, 6, 8
    T = R_T
    YR = R_ACC + 32
    a("s_cmp_ge_u32 s2, 160")
    a("s_cbranch_scc1 final_end")
    stamp_begin(a, "final")
    a("s_load_dwordx2 s[6:7], s[0:1], 32")
    a("s_load_dwordx2 s[8:9], s[0:1], 72")
    a("s_load_dwordx2 s[12:13], s[0:1], 88")
    lane_setup(a, T, vLane, vN, vH, s_w)
    a("s_and_b32 s3, s2, 7")
    a("s_lshl_b32 s3, s3, 1")
    a("s_bfe_u32 s36, s2, 0x10003")
    a(f"s_add_u32 s{s_rb}, s3, s36")
    a(f"s_lshr_b32 s{s_cb}, s2, 4")
    a(f"v_lshlrev_b32 v{vB}, 4, v{vLane}")
    a(f"v_lshrrev_b32 v{T}, 2, v{vLane}")
    a(f"v_mul_u32_u24 v{vWo}, 1280, v{T}")
    a(f"v_and_b32 v{T}, 3, v{vLane}")
    a(f"v_lshl_add_u32 v{vWo}, v{T}, 4, v{vWo}")
    a(f"v_mul_u32_u24 v{vXo}, 1280, v{vN}")
    a(f"v_lshl_add_u32 v{vXo}, v{vH}, 4, v{vXo}")
    tr_base(a, vTr, T, vLane, vH, 9)
    a(f"s_mul_i32 s40, s{s_w}, {16*1280}")
    a(f"s_lshl_b32 s41, s{s_cb}, 7")
    a("s_add_u32 s40, s40, s41")
    a(f"s_lshl_b32 s42, s{s_rb}, 2")
    a(f"s_add_u32 s42, s42, s{s_w}")
    a(f"s_mul_i32 s43, s42, {40*1024}")
    a(f"s_add_u32 s43, s43, {OF}")
    a("s_mul_i32 s45, s42, 20")
    a(f"s_lshl_b32 s46, s{s_cb}, 1")
    a("s_add_u32 s45, s45, s46")
    a("s_lshl_b32 s45, s45, 11")
    a(f"s_add_u32 s45, s45, {YF}")
    a(f"s_mul_i32 s47, s42, {32*1280}")
    a("s_add_u32 s47, s47, s41")
    a("s_waitcnt lgkmcnt(0)")
    srd(a, SW, 6, 819200)
    srd(a, SO, 8, 2621440)
    srd(a, SWS, 12, WS_END)
    R = TypeR(a, "fi", 2, 10, vTr, vWo, vB, s_w, lambda t: (SW, 0, t), (40, 40, 64 * 1280), 43, SWS, 256)
    R.setup()
    R.emit(R.vm_ops(0) + R.vm_ops(1))
    yl = [[f"buffer_load_dwordx4 {vr(YR+4*q,4)}, v{vB}, s[{SWS}:{SWS+3}], s45 offen offset:{q*1024}"] for q in range(4)]
    R.main(R.per, {4: yl})
    stamp(a, "final")
    a("s_mov_b32 s49, 0xffff0000")
    a("s_waitcnt vmcnt(0)")
    for t in range(2):
        r = R_ACC + 16 * t
        for q in range(8):
            a(f"v_lshlrev_b32 v{T+2*(q&1)}, 16, v{YR+8*t+q}")
            a(f"v_and_b32 v{T+2*(q&1)+1}, s49, v{YR+8*t+q}")
            a(f"v_pk_add_f32 {vr(r+2*q,2)}, {vr(r+2*q,2)}, {vr(T+2*(q&1),2)}")
        for q in range(8):
            a(f"v_cvt_pk_bf16_f32 v{r+q}, v{r+2*q}, v{r+2*q+1}")
        for gp in range(2):
            b = r + 4 * gp
            a(f"v_permlane32_swap_b32 v{b}, v{b+2}")
            a(f"v_permlane32_swap_b32 v{b+1}, v{b+3}")
            a(f"buffer_store_dwordx4 {vr(b,4)}, v{vXo}, s[{SO}:{SO+3}], s47 offen offset:{t*64 + gp*32}")
    stamp_end(a, "final", SWS, s_w, 240)
    a.label("final_end")
    a("s_endpgm")
    return a.finish(), ("final_kernel", 160, 256, 24576, 256 if STAMP else 216)


def gen_empty():
    a = Asm()
    a.label("empty_kernel")
    a("s_endpgm")
    return a.finish(), ("empty_kernel", 256, 256, 65536, 256)


KERNELS = {"empty": gen_empty, "main": gen_main, "qkv": gen_qkv, "gateup": gen_gateup, "attn": gen_attn, "down": gen_down, "final": gen_final}
HEADER = open("parallel_sum__grouped_kv_mqa__glu_gated_swiglu__prompt.s.ref").read().split("; Override launch")[0] if False else ""


DEFAULT = ["qkv", "main", "final"]


def build(order):
    texts, launches = {}, []
    for k in order:
        t, info = KERNELS[k]()
        texts[info[0]] = (t, info)
        launches.append(info)
    out = "; generated by dev/gen.py -- LN + MQA attention + SwiGLU block for gfx950\n"
    for name, grid, block, lds, vg in launches:
        out += f"; @launch kernel={name} grid=({grid},1,1) block=({block},1,1) lds={lds}\n"
    out += '.amdgcn_target "amdgcn-amd-amdhsa--gfx950"\n.text\n'
    for name, (t, info) in texts.items():
        out += kernel_header(name) + t
    out += '.section .rodata,"a"\n'
    for name, (t, info) in texts.items():
        out += kernel_desc(name, info[4])
    return out


if __name__ == "__main__":
    order = sys.argv[2].split(",") if len(sys.argv) > 2 else DEFAULT
    open(sys.argv[1], "w").write(build(order))
```

```python
import math
import struct
import sys

from asmlib import Asm

XF = 0x0
QF = 0x280000
KF = 0x500000
VF = 0x514000
KN = 0x52A000
CT = 0x52C000
OF = 0x530000
HF = 0x800000
FP = 0x1000000
YF = 0x1000000
WS_END = 0x2500000
TS = 0x2400000
import os
STAMP = os.environ.get("STAMP", "")


_stamp_n = {}


def stamp(a, name, vreg=255):
    if name in STAMP.split(","):
        i = _stamp_n.get(name, 0)
        _stamp_n[name] = i + 1
        a("s_memtime s[100:101]")
        a("s_waitcnt lgkmcnt(0)")
        a(f"v_writelane_b32 v{vreg}, s100, {i}")


def stamp_begin(a, name, vreg=255):
    if name in STAMP.split(","):
        a("s_memrealtime s[98:99]")
        a("s_waitcnt lgkmcnt(0)")
        a(f"v_writelane_b32 v{vreg}, s98, 14")
    stamp(a, name, vreg)


def stamp_end(a, name, sws, s_w, vtmp, s_wg=2, vreg=255):
    if name in STAMP.split(","):
        a("s_waitcnt vmcnt(0) lgkmcnt(0)")
        stamp(a, name, vreg)
        a("s_memrealtime s[98:99]")
        a("s_waitcnt lgkmcnt(0)")
        a(f"v_writelane_b32 v{vreg}, s98, 15")
        a(f"s_lshl_b32 s94, s{s_wg}, 2")
        a(f"s_add_u32 s94, s94, s{s_w}")
        a("s_lshl_b32 s94, s94, 6")
        a(f"s_add_u32 s94, s94, {TS + STAMP.split(',').index(name) * 0x20000}")
        a(f"v_and_b32 v{vtmp}, 63, v0")
        a(f"v_lshlrev_b32 v{vtmp}, 2, v{vtmp}")
        a("s_mov_b64 s[98:99], exec")
        a("s_mov_b64 exec, 0xffff")
        a(f"buffer_store_dword v{vreg}, v{vtmp}, s[{sws}:{sws+3}], s94 offen")
        a("s_mov_b64 exec, s[98:99]")


QSCALE = (20 ** -0.5) * math.log2(math.e)


def f2u(x):
    return struct.unpack("<I", struct.pack("<f", x))[0]


def hx(x):
    return "0x%x" % x


def srd(a, d, base, size):
    a(f"s_mov_b32 s{d}, s{base}")
    a(f"s_and_b32 s{d+1}, s{base+1}, 0xffff")
    a(f"s_mov_b32 s{d+2}, {hx(size)}")
    a(f"s_mov_b32 s{d+3}, 0x00020000")


def vr(b, n=1):
    return f"v{b}" if n == 1 else f"v[{b}:{b+n-1}]"


def mfma32(a, d, x, y, c=None):
    cs = vr(d, 16) if c is None else c
    a(f"v_mfma_f32_32x32x16_bf16 {vr(d,16)}, {vr(x,4)}, {vr(y,4)}, {cs}")


def kernel_header(name):
    return f""".globl {name}
.p2align 8
.type {name},@function
"""


def kernel_desc(name, vgprs, sgprs=102):
    acc = (vgprs + 3) // 4 * 4
    return f""".p2align 6
.amdhsa_kernel {name}
  .amdhsa_next_free_vgpr {vgprs}
  .amdhsa_next_free_sgpr {sgprs}
  .amdhsa_accum_offset {acc}
  .amdhsa_group_segment_fixed_size 0
  .amdhsa_kernarg_size 96
  .amdhsa_user_sgpr_count 2
  .amdhsa_user_sgpr_kernarg_segment_ptr 1
  .amdhsa_system_sgpr_workgroup_id_x 1
.end_amdhsa_kernel
"""


K_X = 16
K_ACC = 96
K_A = 192
K_T = 216
WAVE_LDS = 30720
LDS_STG = 8192


K_R = K_A


def typek_mfma_phase(a, vtr, zero=True, vm_after=None, extra=None):
    def reads(s, buf):
        for ct in range(3):
            o = (3 * s + ct) * 1024
            r = K_A + buf * 12 + ct * 4
            a(f"ds_read_b64_tr_b16 {vr(r,2)}, v{vtr} offset:{o}")
            a(f"ds_read_b64_tr_b16 {vr(r+2,2)}, v{vtr} offset:{o+256}")
    if vm_after:
        a(f"s_waitcnt vmcnt({vm_after(0)})")
    reads(0, 0)
    for s in range(10):
        if s + 1 < 10:
            if vm_after:
                a(f"s_waitcnt vmcnt({vm_after(s+1)})")
            reads(s + 1, (s + 1) & 1)
            a("s_waitcnt lgkmcnt(6)")
        else:
            a("s_waitcnt lgkmcnt(0)")
        ex = list(extra(s)) if extra else []
        n = len(ex)
        k = 0
        for ct in range(3):
            for rt in range(2):
                d = K_ACC + (rt * 3 + ct) * 16
                mfma32(a, d, K_A + (s & 1) * 12 + ct * 4, K_X + rt * 40 + s * 4, "0" if (s == 0 and zero) else None)
                k += 1
                for x in ex[((k - 1) * n) // 6:(k * n) // 6]:
                    a(x)


def reduce4(a, pfx, ACC, RES, TMP, vL16, vT, s_w, s_base, base0, stride, pre_barrier=None, post_reads=None):
    for g in range(4):
        a(f"s_cmp_eq_u32 s{s_w}, {g}")
        a(f"s_cbranch_scc1 {pfx}_rw{g}")
        a(f"s_sub_u32 s90, {g+3}, s{s_w}")
        a("s_and_b32 s90, s90, 3")
        a("s_mul_i32 s90, s90, 6144")
        a(f"s_add_u32 s90, s90, s{s_base}")
        a(f"v_add_u32 v{vT}, s90, v{vL16}")
        for t in range(6):
            a(f"ds_write_b128 v{vT}, {vr(ACC+t*16+g*4,4)} offset:{t*1024}")
        a.label(f"{pfx}_rw{g}")
    if pre_barrier:
        pre_barrier()
    for jj in range(3):
        a(f"s_add_u32 s90, s{s_w}, {jj+1}")
        a("s_and_b32 s90, s90, 3")
        a(f"s_mul_i32 s90, s90, {stride}")
        a(f"s_add_u32 s90, s90, {base0 + (2-jj)*6144}")
        a(f"v_add_u32 v{vT+1+jj}, s90, v{vL16}")
    for g in range(4):
        a(f"s_cmp_lg_u32 s{s_w}, {g}")
        a(f"s_cbranch_scc1 {pfx}_ro{g}")
        for t in range(6):
            for e in range(4):
                a(f"v_mov_b32 v{RES+t*4+e}, v{ACC+t*16+g*4+e}")
        a.label(f"{pfx}_ro{g}")
    a("s_waitcnt lgkmcnt(0)")
    a("s_barrier")
    for jj in range(3):
        for t in range(6):
            a(f"ds_read_b128 {vr(TMP+(jj*6+t)*4,4)}, v{vT+1+jj} offset:{t*1024}")
    n_extra = post_reads() if post_reads else 0
    for jj in range(3):
        a(f"s_waitcnt lgkmcnt({min(15, (2-jj)*6 + n_extra)})")
        for e in range(0, 24, 2):
            a(f"v_pk_add_f32 {vr(RES+e,2)}, {vr(RES+e,2)}, {vr(TMP+jj*24+e,2)}")


class TypeK:
    def __init__(self, a, KS, RD, RB, ACC, AF, BF, vTr, tr2, vWo, SW, s_g, gstep, s_ring, vB, SB, s_b0, s_b1, bmods=""):
        self.__dict__.update(locals())

    def dma(self, s):
        out = []
        for ct in range(3):
            out.append([f"s_add_u32 m0, s{self.s_ring}, {((s % self.RD)*3+ct)*1024}",
                        f"s_add_u32 s91, s{self.s_g}, {s*self.gstep + ct*64}",
                        f"buffer_load_dwordx4 v{self.vWo}, s[{self.SW}:{self.SW+3}], s91 offen lds"])
        return out

    def bl(self, s):
        out = []
        for rt in range(2):
            sb = self.s_b0 if rt == 0 else self.s_b1
            g = []
            if s % 4 == 0 and s:
                g.append(f"s_add_u32 s{sb}, s{sb}, 4096")
            g.append(f"buffer_load_dwordx4 {vr(self.BF+(s%self.RB)*8+rt*4,4)}, v{self.vB}, s[{self.SB}:{self.SB+3}], s{sb} offen offset:{(s%4)*1024}{self.bmods}")
            out.append(g)
        return out

    def emit(self, groups):
        for g in groups:
            for x in g:
                self.a(x)

    def reads(self, s):
        out = []
        for ct in range(3):
            o = ((s % self.RD) * 3 + ct) * 1024
            r = self.AF + (s & 1) * 12 + ct * 4
            out.append(f"ds_read_b64_tr_b16 {vr(r,2)}, v{self.vTr} offset:{o}")
            out.append(f"ds_read_b64_tr_b16 {vr(r+2,2)}, v{self.vTr} offset:{o+self.tr2}")
        return out

    def main(self, order):
        a, KS, RD, RB = self.a, self.KS, self.RD, self.RB
        order = list(order)

        def wait_for(s):
            last = max(i for i, o in enumerate(order) if o in (("d", s), ("b", s)))
            a(f"s_waitcnt vmcnt({min(63, len(order) - 1 - last)})")
        wait_for(0)
        for x in self.reads(0):
            a(x)
        for s in range(KS):
            if s + 1 < KS:
                wait_for(s + 1)
                for x in self.reads(s + 1):
                    a(x)
                a("s_waitcnt lgkmcnt(6)")
            else:
                a("s_waitcnt lgkmcnt(0)")
            dm = self.dma(s + RD) if s + RD < KS else []
            k = 0
            for ct in range(3):
                for rt in range(2):
                    mfma32(a, self.ACC + (rt * 3 + ct) * 16, self.AF + (s & 1) * 12 + ct * 4,
                           self.BF + (s % RB) * 8 + rt * 4, "0" if s == 0 else None)
                    if k % 2 == 0 and dm:
                        self.emit([dm.pop(0)])
                        order.append(("d", s + RD))
                    k += 1
            if s + RB < KS:
                self.emit(self.bl(s + RB))
                order += [("b", s + RB)] * 2


def lane_setup(a, T, vLane, vN, vH, s_w):
    a(f"v_and_b32 v{vLane}, 63, v0")
    a(f"v_lshrrev_b32 v{T}, 6, v0")
    a(f"v_readfirstlane_b32 s{s_w}, v{T}")
    a(f"v_and_b32 v{vN}, 31, v0")
    a(f"v_bfe_u32 v{vH}, v0, 5, 1")


def tr_base(a, vTr, T, vLane, vH, hshift):
    a(f"v_lshlrev_b32 v{vTr}, {hshift}, v{vH}")
    a(f"v_bfe_u32 v{T}, v{vLane}, 2, 2")
    a(f"v_lshl_add_u32 v{vTr}, v{T}, 6, v{vTr}")
    a(f"v_bfe_u32 v{T}, v{vLane}, 4, 1")
    a(f"v_lshl_add_u32 v{vTr}, v{T}, 5, v{vTr}")
    a(f"v_and_b32 v{T}, 3, v{vLane}")
    a(f"v_lshl_add_u32 v{vTr}, v{T}, 3, v{vTr}")


def gen_qkv():
    a = Asm()
    a.label("qkv_kernel")
    ST = 0
    NB = 4096
    MX = 6144
    s_w, s_rb, s_cb = 32, 33, 34
    SX, SWS = 16, 28
    SWT = [72, 76, 80]
    vLane, vN, vH = 1, 2, 3
    vXg, vXr, vTr, vSlab, vRd = 4, 5, 7, 8, 9
    vSt = 11
    vWo = [12, 13, 14]
    vCs = 6
    T = K_T
    XO = 9216
    a("s_cmp_ge_u32 s2, 256")
    a("s_cbranch_scc1 qkv_end")
    stamp_begin(a, "qkv")
    a("s_load_dwordx4 s[4:7], s[0:1], 0")
    a("s_load_dwordx4 s[8:11], s[0:1], 16")
    a("s_load_dwordx2 s[12:13], s[0:1], 88")
    a("s_load_dwordx4 s[56:59], s[0:1], 48")
    lane_setup(a, T, vLane, vN, vH, s_w)
    a("s_and_b32 s3, s2, 7")
    a("s_lshr_b32 s35, s2, 3")
    a("s_and_b32 s36, s35, 3")
    a("s_lshl_b32 s3, s3, 2")
    a(f"s_add_u32 s{s_rb}, s3, s36")
    a(f"s_lshr_b32 s{s_cb}, s35, 2")
    a(f"v_mul_u32_u24 v{T}, 49, v{vLane}")
    a(f"v_lshrrev_b32 v{T}, 10, v{T}")
    a(f"v_mul_u32_u24 v{T+1}, 21, v{T}")
    a(f"v_sub_u32 v{T+1}, v{vLane}, v{T+1}")
    a(f"v_mul_u32_u24 v{vXg}, 1280, v{T}")
    a(f"v_lshl_add_u32 v{vXg}, v{T+1}, 4, v{vXg}")
    a(f"s_mul_i32 s37, s{s_w}, {WAVE_LDS}")
    a(f"s_add_u32 s37, s37, {LDS_STG}")
    a(f"v_mul_u32_u24 v{vXr}, 336, v{vN}")
    a(f"v_lshl_add_u32 v{vXr}, v{vH}, 4, v{vXr}")
    a(f"v_add_u32 v{vXr}, s37, v{vXr}")
    a(f"s_mul_i32 s39, s{s_rb}, {64*1280}")
    a(f"s_mul_i32 s40, s{s_w}, 320")
    a("s_add_u32 s39, s39, s40")
    a("s_waitcnt lgkmcnt(0)")
    srd(a, SX, 4, 2621440)
    a("s_mov_b32 s52, -1")
    a("s_mov_b32 s53, 0x7fffffff")
    a("s_mov_b64 exec, s[52:53]")
    for jx in range(22):
        if jx == 21:
            a("s_mov_b64 exec, 0x1fffff")
        a(f"s_add_u32 m0, s37, {XO + jx*1008}")
        a(f"s_add_u32 s44, s39, {jx*3840}")
        a(f"buffer_load_dwordx4 v{vXg}, s[{SX}:{SX+3}], s44 offen lds")
    a("s_mov_b64 exec, -1")
    a(f"v_lshrrev_b32 v{T}, 2, v{vLane}")
    a(f"v_and_b32 v{T+1}, 3, v{vLane}")
    a(f"v_lshlrev_b32 v{T+1}, 4, v{T+1}")
    a(f"v_mad_u32_u24 v{T+2}, v{T}, 40, v{T+1}")
    a(f"s_movk_i32 s38, 1280")
    a(f"v_mad_u32_u24 v{T+3}, v{T}, s38, v{T+1}")
    a(f"s_mul_i32 s50, s{s_cb}, 3")
    a(f"s_mul_i32 s41, s{s_w}, {160*1280}")
    a(f"s_mul_i32 s43, s{s_w}, {160*40}")
    for ct in range(3):
        d = SWT[ct]
        a(f"s_add_u32 s51, s50, {ct}")
        a("s_cmp_eq_u32 s51, 21")
        a(f"s_cselect_b32 s{d}, s10, s8")
        a(f"s_cselect_b32 s{d+1}, s11, s9")
        a("s_cmp_lt_u32 s51, 22")
        a(f"s_cselect_b32 s{d+2}, 25600, 0")
        a("s_lshl_b32 s45, s51, 6")
        a("s_add_u32 s45, s45, s41")
        a("s_cmp_lt_u32 s51, 20")
        a(f"s_cselect_b32 s{d}, s6, s{d}")
        a(f"s_cselect_b32 s{d+1}, s7, s{d+1}")
        a(f"s_cselect_b32 s{d+2}, 819200, s{d+2}")
        a(f"s_mov_b32 s{d+3}, 0x00020000")
        a(f"s_cselect_b32 s{84+ct}, s45, s43")
        a(f"s_movk_i32 s{87+ct}, {16*40}")
        a(f"s_cselect_b32 s{87+ct}, {16*1280}, s{87+ct}")
        a("s_cselect_b64 vcc, -1, 0")
        a(f"s_and_b32 s{d+1}, s{d+1}, 0xffff")
        a(f"v_cndmask_b32 v{vWo[ct]}, v{T+2}, v{T+3}, vcc")

    def w_dma(s):
        for ct in range(3):
            a(f"s_add_u32 m0, s37, {(3*s+ct)*1024}")
            a(f"buffer_load_dwordx4 v{vWo[ct]}, s[{SWT[ct]}:{SWT[ct]+3}], s{84+ct} offen lds")
            a(f"s_add_u32 s{84+ct}, s{84+ct}, s{87+ct}")
    for s in range(3):
        w_dma(s)
    srd(a, SWS, 12, WS_END)
    a("s_cmp_lg_u32 s2, 255")
    a("s_cbranch_scc1 qkv_noct")
    a(f"s_cmp_lg_u32 s{s_w}, 3")
    a("s_cbranch_scc1 qkv_noct")
    a(f"v_lshlrev_b32 v{T}, 8, v{vLane}")
    a(f"v_mov_b32 v{T+1}, 0")
    a(f"s_mov_b32 s44, {CT}")
    a("s_mov_b64 exec, 0xffff")
    a(f"buffer_store_dword v{T+1}, v{T}, s[{SWS}:{SWS+3}], s44 offen")
    a("s_mov_b64 exec, -1")
    a("s_waitcnt vmcnt(0)")
    a.label("qkv_noct")
    tr_base(a, vTr, T, vLane, vH, 9)
    a(f"v_add_u32 v{vTr}, s37, v{vTr}")
    a(f"v_lshlrev_b32 v{vSlab}, 4, v{vLane}")
    a(f"s_mul_i32 s38, s{s_w}, 384")
    a(f"v_lshlrev_b32 v{vCs}, 2, v{vN}")
    a(f"v_add_u32 v{vCs}, s38, v{vCs}")
    a(f"v_lshlrev_b32 v{vSt}, 6, v{vN}")
    vOne = T
    SA = T + 2
    a(f"v_mov_b32 v{vOne}, 0x3f803f80")
    for i in range(11):
        a(f"v_mov_b32 v{SA+i}, 0")
    a(f"ds_write_b32 v{SA}, v{SA} offset:{MX}")
    a("s_waitcnt vmcnt(9)")
    stamp(a, "qkv")
    for rt in range(2):
        for s in range(10):
            a(f"ds_read_b128 {vr(K_X+rt*40+s*4,4)}, v{vXr} offset:{XO + rt*10752 + s*32}")
    a("s_waitcnt lgkmcnt(0)")
    xs = []
    for i in range(40):
        for rt in range(2):
            x = K_X + rt * 40 + i
            b = SA + rt * 4 + (i & 1) * 2
            xs.append(f"v_dot2_f32_bf16 v{b}, v{x}, v{vOne}, v{b}")
            xs.append(f"v_dot2_f32_bf16 v{b+1}, v{x}, v{x}, v{b+1}")
    for s in range(3, 10):
        w_dma(s)
        for x in xs[((s - 3) * 160) // 7:((s - 2) * 160) // 7]:
            a(x)
    stamp(a, "qkv")

    def stats(s):
        out = []
        for q in range(4):
            for ct in range(3):
                out.append(f"v_dot2_f32_bf16 v{SA+8+ct}, v{K_A+(s&1)*12+ct*4+q}, v{vOne}, v{SA+8+ct}")
        return out
    typek_mfma_phase(a, vTr, True, lambda s: 3 * (9 - s), stats)
    stamp(a, "qkv")
    if PREFETCH:
        srd(a, 60, 56, 1966080)
        srd(a, 64, 58, 1966080)
        a(f"v_mul_u32_u24 v{T+24}, 43, v{vLane}")
        a(f"v_lshrrev_b32 v{T+24}, 9, v{T+24}")
        a(f"v_mul_u32_u24 v{T+25}, 12, v{T+24}")
        a(f"v_sub_u32 v{T+25}, v{vLane}, v{T+25}")
        a(f"v_mul_u32_u24 v{T+24}, 3072, v{T+24}")
        a(f"v_lshl_add_u32 v{T+24}, v{T+25}, 6, v{T+24}")
        a("s_lshr_b32 s44, s2, 3")
        a("s_lshl_b32 s44, s44, 2")
        a(f"s_add_u32 s44, s44, s{s_w}")
        a(f"s_mul_i32 s44, s44, {5*3072}")
        a("s_bfe_u32 s38, s2, 0x20001")
        a("s_mul_i32 s38, s38, 768")
        a("s_add_u32 s44, s44, s38")
        a("s_mov_b32 s52, -1")
        a("s_mov_b32 s53, 0x0fffffff")
        a("s_mov_b64 exec, s[52:53]")
        a(f"buffer_load_dword v{T+36}, v{T+24}, s[60:63], s44 offen")
        a(f"buffer_load_dword v{T+37}, v{T+24}, s[64:67], s44 offen")
        a("s_mov_b64 exec, -1")
    if CODEPF and "main" in ORDER:
        a("s_getpc_b64 s[68:69]")
        a.label("qkv_pc")
        a("s_add_u32 s68, s68, main_kernel-qkv_pc")
        a("s_addc_u32 s69, s69, 0")
        a("s_lshr_b32 s44, s2, 3")
        a(f"s_lshl_b32 s44, s44, 2")
        a(f"s_add_u32 s44, s44, s{s_w}")
        a("s_lshl_b32 s44, s44, 12")
        a(f"s_cmp_ge_u32 s44, code_end-main_kernel")
        a("s_cbranch_scc1 qkv_nocpf")
        a(f"v_lshlrev_b32 v{T+24}, 6, v{vLane}")
        a(f"v_add_u32 v{T+24}, s44, v{T+24}")
        a(f"v_min_u32 v{T+24}, code_end-main_kernel-4, v{T+24}")
        a(f"global_load_dword v{T+38}, v{T+24}, s[68:69]")
        a.label("qkv_nocpf")

    CSA = 6400

    def pre_barrier():
        for rt in range(2):
            b = SA + rt * 4
            a(f"v_pk_add_f32 {vr(b,2)}, {vr(b,2)}, {vr(b+2,2)}")
        a(f"v_lshl_add_u32 v{T+14}, v{vH}, 3, v{vSt}")
        a(f"s_lshl_b32 s38, s{s_w}, 4")
        a(f"v_add_u32 v{T+14}, s38, v{T+14}")
        for rt in range(2):
            a(f"ds_write_b64 v{T+14}, {vr(SA+rt*4,2)} offset:{ST + rt*2048}")
        for ct in range(3):
            a(f"v_mov_b32 v{T+16+ct}, v{SA+8+ct}")
        for ct in range(3):
            a(f"v_permlane32_swap_b32 v{SA+8+ct}, v{T+16+ct}")
        for ct in range(3):
            a(f"v_add_f32 v{SA+8+ct}, v{SA+8+ct}, v{T+16+ct}")
            a(f"ds_write_b32 v{vCs}, v{SA+8+ct} offset:{CSA + ct*128}")
        a(f"v_lshlrev_b32 v{vRd}, 4, v{vH}")
        a(f"s_lshl_b32 s38, s{s_w}, 5")
        a(f"v_add_u32 v{vRd}, s38, v{vRd}")
    CS = T + 20
    RR = T + 32
    a(f"s_mov_b32 s45, {hx(f2u(1.0/640))}")
    a(f"s_mov_b32 s46, {hx(f2u(1e-5))}")
    reduce4(a, "qkv", K_ACC, K_R, K_ACC, vSlab, T + 20, s_w, 37, LDS_STG, WAVE_LDS, pre_barrier)
    for jw in range(4):
        for ct in range(3):
            a(f"ds_read_b128 {vr(K_ACC+(jw*3+ct)*4,4)}, v{vRd} offset:{CSA + jw*384 + ct*128}")
    for rt in range(2):
        for q in range(4):
            a(f"ds_read_b128 {vr(K_ACC+48+rt*16+q*4,4)}, v{vSt} offset:{ST + rt*2048 + q*16}")
    a("s_waitcnt lgkmcnt(0)")
    for e in range(0, 12, 2):
        a(f"v_pk_add_f32 {vr(K_ACC+e,2)}, {vr(K_ACC+e,2)}, {vr(K_ACC+12+e,2)}")
        a(f"v_pk_add_f32 {vr(K_ACC+24+e,2)}, {vr(K_ACC+24+e,2)}, {vr(K_ACC+36+e,2)}")
    for e in range(0, 12, 2):
        a(f"v_pk_add_f32 {vr(CS+e,2)}, {vr(K_ACC+e,2)}, {vr(K_ACC+24+e,2)}")
    for rt in range(2):
        b = K_ACC + 48 + rt * 16
        for step in (8, 4, 2):
            for e in range(0, step, 2):
                a(f"v_pk_add_f32 {vr(b+e,2)}, {vr(b+e,2)}, {vr(b+e+step,2)}")
        mu, sq, t0 = b, b + 1, b + 3
        m_b, rr = RR + rt * 2, RR + rt * 2 + 1
        a(f"v_mul_f32 v{mu}, s45, v{mu}")
        a(f"v_mul_f32 v{sq}, s45, v{sq}")
        a(f"v_fma_f32 v{sq}, -v{mu}, v{mu}, v{sq}")
        a(f"v_max_f32 v{sq}, 0, v{sq}")
        a(f"v_cvt_pk_bf16_f32 v{m_b}, v{mu}, v{sq}")
        a(f"v_and_b32 v{t0}, 0xffff0000, v{m_b}")
        a(f"v_lshlrev_b32 v{m_b}, 16, v{m_b}")
        a(f"v_add_f32 v{t0}, s46, v{t0}")
        a(f"v_cvt_pk_bf16_f32 v{t0}, v{t0}, v{t0}")
        a(f"v_lshlrev_b32 v{t0}, 16, v{t0}")
        a(f"v_sqrt_f32 v{t0}, v{t0}")
        a(f"v_cvt_pk_bf16_f32 v{t0}, v{t0}, v{t0}")
        a(f"v_lshlrev_b32 v{t0}, 16, v{t0}")
        a(f"v_rcp_f32 v{rr}, v{t0}")
    for rt in range(2):
        m_b, rr = RR + rt * 2, RR + rt * 2 + 1
        for ct in range(3):
            for e in range(4):
                r = K_R + (rt * 3 + ct) * 4 + e
                a(f"v_fma_f32 v{r}, -v{m_b}, v{CS+ct*4+e}, v{r}")
                a(f"v_mul_f32 v{r}, v{r}, v{rr}")
    stamp(a, "qkv")
    a("s_mov_b32 s47, 0xffff0000")
    a(f"v_lshlrev_b32 v{T}, 4, v{vLane}")
    a(f"s_mul_i32 s39, s{s_rb}, {2*40*1024}")
    a(f"s_mul_i32 s40, s{s_w}, {10*1024}")
    a("s_add_u32 s39, s39, s40")
    for rt in range(2):
        m_b, rr = RR + rt * 2, RR + rt * 2 + 1
        PR = K_ACC + rt * 4
        a(f"v_mov_b32 v{PR}, v{rr}")
        a(f"v_mov_b32 v{PR+1}, v{rr}")
        a(f"v_mul_f32_e64 v{PR+2}, -v{m_b}, v{rr}")
        a(f"v_mov_b32 v{PR+3}, v{PR+2}")
    for c in range(8):
        a(f"s_cmp_lg_u32 s{s_cb}, {c}")
        a(f"s_cbranch_scc1 qkv_xn{c}")
        for f in range(c, 20, 8):
            rt, sx = divmod(f, 10)
            PR = K_ACC + rt * 4
            for q in range(4):
                x = K_X + rt * 40 + sx * 4 + q
                u = K_ACC + 8 + q * 2
                a(f"v_lshlrev_b32 v{u}, 16, v{x}")
                a(f"v_and_b32 v{u+1}, s47, v{x}")
                a(f"v_pk_fma_f32 {vr(u,2)}, {vr(u,2)}, {vr(PR,2)}, {vr(PR+2,2)}")
                a(f"v_cvt_pk_bf16_f32 v{x}, v{u}, v{u+1}")
            a(f"s_add_u32 s44, s39, {XF + rt*40*1024 + sx*1024}")
            a(f"buffer_store_dwordx4 {vr(K_X+rt*40+sx*4,4)}, v{T}, s[{SWS}:{SWS+3}], s44 offen")
        a.label(f"qkv_xn{c}")
    vC0, vHead, vD0, vOff, vA = T, T + 1, T + 2, T + 3, T + 4
    a(f"s_mov_b32 s45, {hx(f2u(QSCALE))}")
    a("s_mov_b32 s46, 3277")
    a(f"s_mul_i32 s38, s{s_cb}, 96")
    a(f"s_lshl_b32 s39, s{s_w}, 3")
    a("s_add_u32 s38, s38, s39")
    a(f"s_mul_i32 s48, s{s_rb}, {2*32*1280}")
    a(f"s_add_u32 s48, s48, {QF}")
    a(f"s_add_u32 s49, s48, {32*1280}")
    a(f"s_mul_i32 s50, s{s_cb}, 3")

    def frag_off(vD0, vOff):
        a(f"v_lshrrev_b32 v{vA}, 3, v{vD0}")
        a(f"v_lshlrev_b32 v{vA}, 9, v{vA}")
        a(f"v_lshl_add_u32 v{vA}, v{vN}, 4, v{vA}")
        a(f"v_and_b32 v{vA+1}, 4, v{vD0}")
        a(f"v_lshl_add_u32 v{vA}, v{vA+1}, 1, v{vA}")
        a(f"v_lshlrev_b32 v{vA+1}, 3, v{vN}")
        a(f"v_add_u32 v{vA+1}, 1024, v{vA+1}")
        a(f"v_cmp_gt_u32 vcc, 16, v{vD0}")
        a(f"v_cndmask_b32 v{vA}, v{vA+1}, v{vA}, vcc")
        a(f"v_add_u32 v{vOff}, v{vOff}, v{vA}")

    for ct in range(3):
        a(f"s_add_u32 s51, s50, {ct}")
        a("s_cmp_ge_u32 s51, 20")
        a(f"s_cbranch_scc1 qkv_notq{ct}")
        a(f"v_lshlrev_b32 v{vC0}, 2, v{vH}")
        a(f"v_add_u32 v{vC0}, s38, v{vC0}")
        if ct:
            a(f"v_add_u32 v{vC0}, {32*ct}, v{vC0}")
        a(f"v_mul_u32_u24 v{vHead}, s46, v{vC0}")
        a(f"v_lshrrev_b32 v{vHead}, 16, v{vHead}")
        a(f"v_mul_u32_u24 v{vD0}, 20, v{vHead}")
        a(f"v_sub_u32 v{vD0}, v{vC0}, v{vD0}")
        a(f"v_mul_u32_u24 v{vOff}, 1280, v{vHead}")
        frag_off(vD0, vOff)
        for rt in range(2):
            r = K_R + (rt * 3 + ct) * 4
            for e in range(4):
                a(f"v_mul_f32 v{r+e}, s45, v{r+e}")
            a(f"v_cvt_pk_bf16_f32 v{r}, v{r}, v{r+1}")
            a(f"v_cvt_pk_bf16_f32 v{r+1}, v{r+2}, v{r+3}")
            a(f"buffer_store_dwordx2 {vr(r,2)}, v{vOff}, s[{SWS}:{SWS+3}], s{48+rt} offen")
        a.label(f"qkv_notq{ct}")
    stamp_end(a, "qkv", SWS, s_w, 240)
    a(f"s_cmp_lt_u32 s{s_cb}, 6")
    a("s_cbranch_scc1 qkv_end")
    P = T + 8
    a(f"s_cmp_eq_u32 s{s_cb}, 7")
    a("s_cbranch_scc1 qkv_mvv")
    for rt in range(2):
        for e in range(4):
            a(f"v_mov_b32 v{P+rt*4+e}, v{K_R+(rt*3+2)*4+e}")
    a("s_branch qkv_mvd")
    a.label("qkv_mvv")
    for rt in range(2):
        for e in range(4):
            a(f"v_mov_b32 v{P+rt*4+e}, v{K_R+(rt*3+0)*4+e}")
    a.label("qkv_mvd")
    a(f"v_lshlrev_b32 v{vD0}, 2, v{vH}")
    a(f"v_add_u32 v{vD0}, s39, v{vD0}")
    a(f"v_cmp_gt_u32 s[52:53], 20, v{vD0}")
    a(f"v_lshlrev_b32 v{vA}, 5, v{vN}")
    a(f"v_add_u32 v{vA}, v{vA}, v{vD0}")
    for rt in range(2):
        q = T + 16 + rt
        a(f"v_mul_f32 v{q}, v{P+rt*4}, v{P+rt*4}")
        for e in range(1, 4):
            a(f"v_fmac_f32 v{q}, v{P+rt*4+e}, v{P+rt*4+e}")
        a(f"v_cndmask_b32 v{q}, 0, v{q}, s[52:53]")
        a(f"ds_write_b32 v{vA}, v{q} offset:{NB + rt*1024}")
    for rt in range(2):
        r = P + rt * 4
        a(f"v_cvt_pk_bf16_f32 v{r}, v{r}, v{r+1}")
        a(f"v_cvt_pk_bf16_f32 v{r+1}, v{r+2}, v{r+3}")
    a("s_mov_b64 s[54:55], exec")
    a("s_and_b64 exec, exec, s[52:53]")
    a("s_cbranch_execz qkv_kvst_done")
    a(f"s_mul_i32 s48, s{s_rb}, {2*1280}")
    a(f"s_cmp_eq_u32 s{s_cb}, 7")
    a("s_cbranch_scc1 qkv_vst")
    a(f"s_add_u32 s48, s48, {KF}")
    a("s_add_u32 s49, s48, 1280")
    a(f"v_mov_b32 v{vOff}, 0")
    frag_off(vD0, vOff)
    for rt in range(2):
        a(f"buffer_store_dwordx2 {vr(P+rt*4,2)}, v{vOff}, s[{SWS}:{SWS+3}], s{48+rt} offen")
    a("s_branch qkv_kvst_done")
    a.label("qkv_vst")
    a(f"s_mul_i32 s48, s{s_rb}, {2*1344}")
    a(f"s_add_u32 s48, s48, {VF}")
    a("s_add_u32 s49, s48, 1344")
    a(f"v_lshrrev_b32 v{vA}, 4, v{vN}")
    a(f"v_lshlrev_b32 v{vA}, 1, v{vA}")
    a(f"v_bfe_u32 v{vA+1}, v{vN}, 2, 1")
    a(f"v_add_u32 v{vA}, v{vA}, v{vA+1}")
    a(f"v_mul_u32_u24 v{vA}, 21, v{vA}")
    a(f"v_add_u32 v{vA}, v{vA}, v{vD0}")
    a(f"v_lshlrev_b32 v{vOff}, 4, v{vA}")
    a(f"v_and_b32 v{vA}, 3, v{vN}")
    a(f"v_lshl_add_u32 v{vOff}, v{vA}, 1, v{vOff}")
    a(f"v_bfe_u32 v{vA}, v{vN}, 3, 1")
    a(f"v_lshl_add_u32 v{vOff}, v{vA}, 3, v{vOff}")
    for rt in range(2):
        r = P + rt * 4
        a(f"buffer_store_short v{r}, v{vOff}, s[{SWS}:{SWS+3}], s{48+rt} offen")
        a(f"buffer_store_short_d16_hi v{r}, v{vOff}, s[{SWS}:{SWS+3}], s{48+rt} offen offset:16")
        a(f"buffer_store_short v{r+1}, v{vOff}, s[{SWS}:{SWS+3}], s{48+rt} offen offset:32")
        a(f"buffer_store_short_d16_hi v{r+1}, v{vOff}, s[{SWS}:{SWS+3}], s{48+rt} offen offset:48")
    a.label("qkv_kvst_done")
    a("s_mov_b64 exec, s[54:55]")
    a(f"s_cmp_lg_u32 s{s_cb}, 7")
    a("s_cbranch_scc1 qkv_noones")
    a(f"s_cmp_lg_u32 s{s_w}, 3")
    a("s_cbranch_scc1 qkv_noones")
    a(f"s_mul_i32 s48, s{s_rb}, {2*1344}")
    a(f"s_add_u32 s48, s48, {VF + 320}")
    a(f"v_mul_u32_u24 v{vOff}, 336, v{vLane}")
    for e in range(4):
        a(f"v_mov_b32 v{P+e}, 0x3f803f80")
    a("s_mov_b64 exec, 0xff")
    a(f"buffer_store_dwordx4 {vr(P,4)}, v{vOff}, s[{SWS}:{SWS+3}], s48 offen")
    a("s_mov_b64 exec, s[54:55]")
    a.label("qkv_noones")
    a("s_waitcnt lgkmcnt(0)")
    a("s_barrier")
    a(f"s_cmp_lg_u32 s{s_w}, 0")
    a("s_cbranch_scc1 qkv_end")
    a(f"v_lshlrev_b32 v{vA}, 5, v{vLane}")
    a(f"ds_read_b128 {vr(P,4)}, v{vA} offset:{NB}")
    a(f"ds_read_b128 {vr(P+4,4)}, v{vA} offset:{NB+16}")
    a("s_waitcnt lgkmcnt(0)")
    for e in range(1, 8):
        a(f"v_add_f32 v{P}, v{P}, v{P+e}")
    a(f"v_mov_b32 v{vA}, 0")
    a(f"ds_max_u32 v{vA}, v{P} offset:{MX}")
    a("s_waitcnt lgkmcnt(0)")
    a(f"ds_read_b32 v{P}, v{vA} offset:{MX}")
    a(f"s_sub_u32 s48, s{s_cb}, 6")
    a("s_lshl_b32 s48, s48, 5")
    a(f"s_add_u32 s48, s48, s{s_rb}")
    a("s_lshl_b32 s48, s48, 2")
    a(f"s_add_u32 s48, s48, {KN}")
    a("s_waitcnt lgkmcnt(0)")
    a(f"buffer_store_dword v{P}, v{vA}, s[{SWS}:{SWS+3}], s48 offen")
    a.label("qkv_end")
    a("s_endpgm")
    return a.finish(), ("qkv_kernel", 256, 256, 131072, 256)


A_Q, A_O, A_S, A_P, A_K, A_V, A_M = 16, 48, 112, 144, 160, 192, 224
A_T = 228
NSET = 4
OOB = 0x80000000


def gen_attn_body(a, pfx, s_wg):
    s_w, s_rt, s_kh, s_hd = 32, 33, 34, 35
    SWS = 28
    vLane, vN, vH = 1, 2, 3
    vK1, vK2, vV = 4, 5, 6
    T = A_T
    a("s_load_dwordx2 s[12:13], s[0:1], 88")
    a("s_load_dwordx2 s[14:15], s[0:1], 32")
    lane_setup(a, T, vLane, vN, vH, s_w)
    a(f"s_and_b32 s3, s{s_wg}, 7")
    a(f"s_lshr_b32 s36, s{s_wg}, 5")
    a("s_lshl_b32 s3, s3, 3")
    a(f"s_add_u32 s{s_rt}, s3, s36")
    a(f"s_bfe_u32 s3, s{s_wg}, 0x20003")
    a(f"s_and_b32 s{s_kh}, s{s_w}, 1")
    a(f"s_lshr_b32 s36, s{s_w}, 1")
    a("s_lshl_b32 s3, s3, 3")
    a("s_lshl_b32 s36, s36, 2")
    a(f"s_add_u32 s{s_hd}, s3, s36")
    a(f"v_lshlrev_b32 v{vK1}, 4, v{vLane}")
    a(f"v_lshlrev_b32 v{vK2}, 3, v{vN}")
    a(f"v_add_u32 v{vK2}, 1024, v{vK2}")
    a(f"v_mov_b32 v{T}, {hx(OOB)}")
    a(f"v_cmp_eq_u32 vcc, 0, v{vH}")
    a(f"v_cndmask_b32 v{vK2}, v{T}, v{vK2}, vcc")
    a(f"v_mul_u32_u24 v{vV}, 21, v{vH}")
    a(f"v_add_u32 v{vV}, v{vV}, v{vN}")
    a(f"v_lshlrev_b32 v{vV}, 4, v{vV}")
    a(f"v_cmp_gt_u32 vcc, 21, v{vN}")
    a(f"v_cndmask_b32 v{vV}, v{T}, v{vV}, vcc")
    a("s_waitcnt lgkmcnt(0)")
    srd(a, SWS, 12, WS_END)
    a(f"s_add_u32 s12, s12, {KN}")
    a("s_addc_u32 s13, s13, 0")
    a("s_load_dwordx16 s[64:79], s[12:13], 0")
    a("s_load_dwordx16 s[80:95], s[12:13], 64")
    a("s_load_dwordx16 s[44:59], s[12:13], 128")
    a(f"s_lshl_b32 s36, s{s_rt}, 5")
    a(f"s_add_u32 s36, s36, s{s_hd}")
    a("s_mul_i32 s36, s36, 1280")
    a(f"s_add_u32 s36, s36, {QF}")
    for i in range(4):
        a(f"buffer_load_dwordx4 {vr(A_Q+8*i,4)}, v{vK1}, s[{SWS}:{SWS+3}], s36 offen")
        a(f"buffer_load_dwordx2 {vr(A_Q+8*i+4,2)}, v{vK2}, s[{SWS}:{SWS+3}], s36 offen")
        if i < 3:
            a("s_add_u32 s36, s36, 1280")
    s_kp, s_vp = 37, 38
    a(f"s_mul_i32 s{s_kp}, s{s_kh}, {32*1280}")
    a(f"s_add_u32 s{s_kp}, s{s_kp}, {KF}")
    a(f"s_mul_i32 s{s_vp}, s{s_kh}, {32*1344}")
    a(f"s_add_u32 s{s_vp}, s{s_vp}, {VF}")

    def loadK(st):
        a(f"buffer_load_dwordx4 {vr(A_K+8*st,4)}, v{vK1}, s[{SWS}:{SWS+3}], s{s_kp} offen")
        a(f"buffer_load_dwordx2 {vr(A_K+8*st+4,2)}, v{vK2}, s[{SWS}:{SWS+3}], s{s_kp} offen")
        a(f"s_add_u32 s{s_kp}, s{s_kp}, 1280")

    def loadV(st):
        a(f"buffer_load_dwordx4 {vr(A_V+8*st,4)}, v{vV}, s[{SWS}:{SWS+3}], s{s_vp} offen")
        a(f"buffer_load_dwordx4 {vr(A_V+8*st+4,4)}, v{vV}, s[{SWS}:{SWS+3}], s{s_vp} offen offset:672")
        a(f"s_add_u32 s{s_vp}, s{s_vp}, 1344")
    for st in range(NSET - 1):
        loadK(st)
        loadV(st)
    loadK(NSET - 1)
    for i in range(4):
        a(f"v_mov_b32 v{A_Q+8*i+6}, 0")
        a(f"v_mov_b32 v{A_Q+8*i+7}, 0")
    for st in range(NSET):
        a(f"v_mov_b32 v{A_K+8*st+6}, 0")
        a(f"v_mov_b32 v{A_K+8*st+7}, 0")
    for r in range(64):
        a(f"v_mov_b32 v{A_O+r}, 0")
    for r in range(16):
        a(f"v_mov_b32 v{A_P+r}, 0")
    for r in range(8):
        a(f"v_mov_b32 v{A_V+8*(NSET-1)+r}, 0")
    for r in range(4):
        a(f"v_mov_b32 v{A_M+r}, 0")
    a("s_waitcnt lgkmcnt(0)")
    for r in range(65, 96):
        a(f"s_max_u32 s64, s64, s{r}")
    for r in range(45, 60):
        a(f"s_max_u32 s44, s44, s{r}")
    a("s_load_dwordx16 s[80:95], s[12:13], 192")
    a("s_waitcnt lgkmcnt(0)")
    for r in range(80, 96):
        a(f"s_max_u32 s44, s44, s{r}")
    a(f"s_waitcnt vmcnt({4*NSET-2})")
    for i in range(4):
        a(f"v_mov_b32 v{T+i}, 0")
    for r in range(6):
        for i in range(4):
            a(f"v_dot2_f32_bf16 v{T+i}, v{A_Q+8*i+r}, v{A_Q+8*i+r}, v{T+i}")
    for i in range(4):
        a(f"v_mov_b32 v{T+4+i}, v{T+i}")
    for i in range(4):
        a(f"v_permlane32_swap_b32 v{T+i}, v{T+4+i}")
    for i in range(4):
        a(f"v_add_f32 v{T+i}, v{T+i}, v{T+4+i}")
    a(f"v_max3_f32 v{T}, v{T}, v{T+1}, v{T+2}")
    a(f"v_max_f32 v{T}, v{T}, v{T+3}")
    a(f"v_mul_f32 v{T}, s64, v{T}")
    a(f"v_mov_b32 v{T+1}, {hx(f2u(3600.0/1.05))}")
    a(f"v_cmp_nle_f32 vcc, v{T}, v{T+1}")
    a(f"s_cmp_gt_u32 s44, {hx(f2u(2.0**80))}")
    a(f"s_cbranch_scc1 {pfx}_slow")
    a(f"s_cbranch_vccnz {pfx}_slow")

    def qk(m, sb, ks, i):
        if m == 0:
            mfma32(a, A_S + 16 * sb, A_K + 8 * ks, A_Q + 8 * i, "0")
        else:
            mfma32(a, A_S + 16 * sb, A_K + 8 * ks + 4, A_Q + 8 * i + 4)

    def pv(m, pb, vs, i):
        mfma32(a, A_O + 16 * i, A_V + 8 * vs + 4 * m, A_P + 8 * pb + 4 * m)

    a(f"s_waitcnt vmcnt({4*NSET-4})")
    qk(0, 0, 0, 0)
    qk(1, 0, 0, 0)
    stamp(a, "attn")
    a(f"s_mov_b32 s39, {32//NSET}")
    a("s_nop 10")
    a.raw(".p2align 6")
    a.label(f"{pfx}_loop")
    for kk in range(NSET):
        for i in range(4):
            cur = i & 1
            S = A_S + 16 * cur
            P = A_P + 8 * cur
            nks, ni = (kk, i + 1) if i < 3 else ((kk + 1) % NSET, 0)
            pvs, pi = (kk, i - 1) if i > 0 else ((kk - 1) % NSET, 3)
            if i in (1, 3) and not os.environ.get("NOWAIT"):
                a(f"s_waitcnt vmcnt({4*NSET-6})")
            qk(0, cur ^ 1, nks, ni)
            for e in range(0, 4):
                a(f"v_exp_f32 v{S+e}, v{S+e}")
            qk(1, cur ^ 1, nks, ni)
            if i == 1 and not os.environ.get("NOKV"):
                loadV((kk - 1) % NSET)
            if i == 3 and not os.environ.get("NOKV"):
                loadK(kk)
            for e in range(4, 8):
                a(f"v_exp_f32 v{S+e}, v{S+e}")
            pv(0, cur ^ 1, pvs, pi)
            for e in range(8, 12):
                a(f"v_exp_f32 v{S+e}, v{S+e}")
            for j in range(0, 2):
                a(f"v_cvt_pk_bf16_f32 v{P+j}, v{S+2*j}, v{S+2*j+1}")
            pv(1, cur ^ 1, pvs, pi)
            for e in range(12, 16):
                a(f"v_exp_f32 v{S+e}, v{S+e}")
            for j in range(2, 8):
                a(f"v_cvt_pk_bf16_f32 v{P+j}, v{S+2*j}, v{S+2*j+1}")
    a("s_sub_u32 s39, s39, 1")
    a("s_cmp_lg_u32 s39, 0")
    a(f"s_cbranch_scc1 {pfx}_loop")
    pv(0, 1, NSET - 1, 3)
    pv(1, 1, NSET - 1, 3)
    stamp(a, "attn")
    a(f"s_branch {pfx}_epi")

    a.label(f"{pfx}_slow")
    for r in range(4):
        a(f"v_mov_b32 v{A_M+r}, {hx(f2u(-1e30))}")
    a("s_mov_b32 s39, 32")
    a(f"s_sub_u32 s{s_kp}, s{s_kp}, {1280*(NSET-1)}")
    a(f"s_sub_u32 s{s_vp}, s{s_vp}, {1344*(NSET-2)}")
    a.label(f"{pfx}_sloop")
    a("s_waitcnt vmcnt(0)")
    for i in range(4):
        S, P, M = A_S, A_P, A_M + i
        qk(0, 0, 0, i)
        qk(1, 0, 0, i)
        a(f"v_max3_f32 v{T}, v{S}, v{S+1}, v{S+2}")
        for e in range(3, 15, 2):
            a(f"v_max3_f32 v{T}, v{T}, v{S+e}, v{S+e+1}")
        a(f"v_max_f32 v{T}, v{T}, v{S+15}")
        a(f"v_mov_b32 v{T+1}, v{T}")
        a(f"v_permlane32_swap_b32 v{T}, v{T+1}")
        a(f"v_max3_f32 v{T}, v{T}, v{T+1}, v{M}")
        a(f"v_sub_f32 v{T+1}, v{M}, v{T}")
        a(f"v_exp_f32 v{T+1}, v{T+1}")
        a(f"v_mov_b32 v{M}, v{T}")
        for e in range(16):
            a(f"v_sub_f32 v{S+e}, v{S+e}, v{T}")
            a(f"v_exp_f32 v{S+e}, v{S+e}")
        for j in range(8):
            a(f"v_cvt_pk_bf16_f32 v{P+j}, v{S+2*j}, v{S+2*j+1}")
        for e in range(16):
            a(f"v_mul_f32 v{A_O+16*i+e}, v{A_O+16*i+e}, v{T+1}")
        pv(0, 0, 0, i)
        pv(1, 0, 0, i)
    loadK(0)
    loadV(0)
    a("s_sub_u32 s39, s39, 1")
    a("s_cmp_lg_u32 s39, 0")
    a(f"s_cbranch_scc1 {pfx}_sloop")

    a.label(f"{pfx}_epi")
    a("s_waitcnt vmcnt(0)")
    if PREFETCH:
        srd(a, 16, 14, 819200)
        a(f"s_lshr_b32 s40, s{s_wg}, 3")
        a("s_lshl_b32 s40, s40, 2")
        a(f"s_add_u32 s40, s40, s{s_w}")
        a("s_mul_i32 s40, s40, 6400")
        a(f"v_lshlrev_b32 v{T+14}, 6, v{vLane}")
        a(f"buffer_load_dword v{T+15}, v{T+14}, s[16:19], s40 offen")
        a("s_add_u32 s40, s40, 4096")
        a(f"buffer_load_dword v{T+15}, v{T+14}, s[16:19], s40 offen")
    vW, vR = T, T + 1
    a(f"s_mul_i32 s40, s{s_w}, 6656")
    a(f"s_xor_b32 s41, s{s_w}, 1")
    a("s_mul_i32 s41, s41, 6656")
    a(f"v_add_u32 v{vW}, s40, v{vK1}")
    a(f"v_add_u32 v{vR}, s41, v{vK1}")
    a(f"v_lshlrev_b32 v{T+2}, 2, v{vLane}")
    a(f"v_add_u32 v{T+3}, s41, v{T+2}")
    a(f"v_add_u32 v{T+2}, s40, v{T+2}")
    a(f"s_cmp_eq_u32 s{s_kh}, 0")
    a(f"s_cbranch_scc1 {pfx}_e0")
    for t in range(2):
        for q in range(3):
            a(f"ds_write_b128 v{vW}, {vr(A_O+16*t+4*q,4)} offset:{(t*3+q)*1024}")
        a(f"ds_write_b32 v{T+2}, v{A_M+t} offset:{6144+t*256}")
    a("s_waitcnt lgkmcnt(0)")
    for t in range(2):
        for e in range(12):
            a(f"v_mov_b32 v{A_O+16*t+e}, v{A_O+16*(t+2)+e}")
        a(f"v_mov_b32 v{A_M+t}, v{A_M+t+2}")
    a(f"s_add_u32 s{s_hd}, s{s_hd}, 2")
    a(f"s_branch {pfx}_e1")
    a.label(f"{pfx}_e0")
    for t in range(2):
        for q in range(3):
            a(f"ds_write_b128 v{vW}, {vr(A_O+16*(t+2)+4*q,4)} offset:{(t*3+q)*1024}")
        a(f"ds_write_b32 v{T+2}, v{A_M+t+2} offset:{6144+t*256}")
    a("s_waitcnt lgkmcnt(0)")
    a.label(f"{pfx}_e1")
    a("s_barrier")
    for t in range(2):
        for q in range(3):
            a(f"ds_read_b128 {vr(A_S+16*t+4*q,4)}, v{vR} offset:{(t*3+q)*1024}")
        a(f"ds_read_b32 v{A_M+2+t}, v{T+3} offset:{6144+t*256}")
    a("s_waitcnt lgkmcnt(0)")
    a(f"s_mul_i32 s40, s{s_rt}, {40*1024}")
    a(f"s_add_u32 s40, s40, {OF}")
    a(f"v_mov_b32 v{T+12}, {hx(OOB)}")
    a(f"v_cmp_eq_u32 s[42:43], 0, v{vH}")
    for t in range(2):
        O, Pz, Ma, Mp = A_O + 16 * t, A_S + 16 * t, A_M + t, A_M + 2 + t
        a(f"v_max_f32 v{T+4}, v{Ma}, v{Mp}")
        a(f"v_sub_f32 v{T+5}, v{Ma}, v{T+4}")
        a(f"v_sub_f32 v{T+6}, v{Mp}, v{T+4}")
        a(f"v_exp_f32 v{T+5}, v{T+5}")
        a(f"v_exp_f32 v{T+6}, v{T+6}")
        for e in range(12):
            a(f"v_mul_f32 v{O+e}, v{O+e}, v{T+5}")
            a(f"v_fmac_f32 v{O+e}, v{Pz+e}, v{T+6}")
        a(f"v_mov_b32 v{T+7}, v{O+8}")
        a(f"v_mov_b32 v{T+8}, v{O+8}")
        a(f"v_permlane32_swap_b32 v{T+7}, v{T+8}")
        a(f"v_rcp_f32 v{T+8}, v{T+8}")
        for e in range(12):
            a(f"v_mul_f32 v{O+e}, v{O+e}, v{T+8}")
        for q in range(3):
            a(f"v_cvt_pk_bf16_f32 v{O+4*q}, v{O+4*q}, v{O+4*q+1}")
            a(f"v_cvt_pk_bf16_f32 v{O+4*q+1}, v{O+4*q+2}, v{O+4*q+3}")
        a(f"s_add_u32 s41, s{s_hd}, {t}")
        a("s_mul_i32 s41, s41, 20")
        for q in range(3):
            k, off = T + 9, T + 10
            a(f"v_lshlrev_b32 v{k}, 2, v{vH}")
            a(f"v_add_u32 v{k}, s41, v{k}")
            if q:
                a(f"v_add_u32 v{k}, {8*q}, v{k}")
            a(f"v_lshrrev_b32 v{off}, 3, v{k}")
            a(f"v_lshlrev_b32 v{off}, 9, v{off}")
            a(f"v_lshl_add_u32 v{off}, v{vN}, 4, v{off}")
            a(f"v_and_b32 v{k}, 4, v{k}")
            a(f"v_lshl_add_u32 v{off}, v{k}, 1, v{off}")
            if q == 2:
                a(f"v_cndmask_b32 v{off}, v{T+12}, v{off}, s[42:43]")
            a(f"buffer_store_dwordx2 {vr(O+4*q,2)}, v{off}, s[{SWS}:{SWS+3}], s40 offen")


def gen_attn():
    a = Asm()
    a.label("attn_kernel")
    a("s_cmp_ge_u32 s2, 256")
    a("s_cbranch_scc1 attn_end")
    stamp_begin(a, "attn")
    gen_attn_body(a, "attn", 2)
    stamp_end(a, "attn", 28, 32, 250)
    a.label("attn_end")
    a("s_endpgm")
    return a.finish(), ("attn_kernel", 256, 256, 26624, 256 if STAMP else 248)


R_ACC, R_A, R_B, R_T = 16, 112, 160, 208


class TypeR:
    def __init__(self, a, pfx, NT, NS, vTr, vWo, vB, s_w, srd_of_tile, goff, s_bp, SWS, tr2, bmods=""):
        self.__dict__.update(locals())
        self.SLOT = 4 * NT * 1024
        self.sname = {"gu": "gateup", "dn": "down", "fi": "final"}[pfx[:2]]
        self.s_m = 60
        self.per = NT + 4

    def dma_ops(self, stage):
        slot = stage % 3
        s_g0, s_g1, gstep = self.goff
        out = []
        for t in range(self.NT):
            sr, grp, tt = self.srd_of_tile(t)
            out.append([f"s_add_u32 m0, s{self.s_m}, {slot*self.SLOT + t*1024}",
                        f"s_add_u32 s61, s{s_g0 if grp == 0 else s_g1}, {stage*gstep + tt*64}",
                        f"buffer_load_dwordx4 v{self.vWo}, s[{sr}:{sr+3}], s61 offen lds"])
        return out

    def b_ops(self, stage):
        slot = stage % 3
        bl = []
        for j in range(4):
            g = []
            if j == 0:
                g.append(f"s_add_u32 s62, s{self.s_bp}, {stage*4096}")
            g.append(f"buffer_load_dwordx4 {vr(R_B+slot*16+j*4,4)}, v{self.vB}, s[{self.SWS}:{self.SWS+3}], s62 offen offset:{j*1024}{self.bmods}")
            bl.append(g)
        return bl

    def vm_ops(self, stage):
        out, bl, res = self.dma_ops(stage), self.b_ops(stage), []
        while out or bl:
            if out:
                res.append(out.pop(0))
            if bl and len(res) > 1:
                res.append(bl.pop(0))
        return res

    def emit(self, groups):
        for g in groups:
            for x in g:
                self.a(x)

    def reads(self, stage, j):
        buf = (stage * 4 + j) & 1
        slot = stage % 3
        base = (slot & 1) * self.SLOT + j * self.NT * 1024
        va = self.vTr + (slot >> 1)
        out = []
        for t in range(self.NT):
            r = R_A + buf * 24 + t * 4
            out.append(f"ds_read_b64_tr_b16 {vr(r,2)}, v{va} offset:{base + t*1024}")
            out.append(f"ds_read_b64_tr_b16 {vr(r+2,2)}, v{va} offset:{base + t*1024 + self.tr2}")
        return out

    def mf(self, stage, j, t):
        buf = (stage * 4 + j) & 1
        first = stage == 0 and j == 0
        mfma32(self.a, R_ACC + 16 * t, R_A + buf * 24 + t * 4, R_B + (stage % 3) * 16 + j * 4, "0" if first else None)

    def setup(self):
        a = self.a
        a(f"s_mul_i32 s{self.s_m}, s{self.s_w}, {self.NT*1024}")
        a(f"v_add_u32 v{self.vTr+1}, {2*self.SLOT}, v{self.vTr}")

    def main(self, first_wait, extra_vm=None):
        a, NT, NS = self.a, self.NT, self.NS
        extra_vm = extra_vm or {}
        order = [0] * self.per + [1] * self.per
        stamp(a, self.sname)
        a(f"s_waitcnt vmcnt({first_wait})")
        a("s_barrier")
        stamp(a, self.sname)
        for x in self.reads(0, 0):
            a(x)
        for i in range(NS):
            if i in (1, 2, 4):
                stamp(a, self.sname)
            ops = self.vm_ops(i + 2) if i + 2 < NS else []
            order += [i + 2] * len(ops)
            ops = ops + extra_vm.get(i, [])
            order += [-1] * len(extra_vm.get(i, []))
            nslots = 3 * NT
            place = {}
            for k, g in enumerate(ops):
                place.setdefault((k * nslots) // len(ops), []).append(g)
            for j in range(3):
                rd = self.reads(i, j + 1)
                for t in range(NT):
                    a(f"s_waitcnt lgkmcnt({2*(NT-1)})")
                    self.mf(i, j, t)
                    a(rd[2 * t])
                    a(rd[2 * t + 1])
                    if j * NT + t in place:
                        self.emit(place[j * NT + t])
            last = i + 1 == NS
            H = NT if last else (NT + 1) // 2
            for t in range(H):
                a(f"s_waitcnt lgkmcnt({2*(NT-1-t)})")
                self.mf(i, 3, t)
            if not last:
                lastidx = max(k for k, o in enumerate(order) if o == i + 1)
                a(f"s_waitcnt vmcnt({len(order) - 1 - lastidx}) lgkmcnt(0)")
                a("s_barrier")
                rd = self.reads(i + 1, 0)
                n = NT - H
                for k, t in enumerate(range(H, NT)):
                    self.mf(i, 3, t)
                    for x in rd[(k * len(rd)) // n:((k + 1) * len(rd)) // n]:
                        a(x)


def gen_gateup_body(a, pfx, s_wg, mid_hook=None, smods='', extra_vm=None):
    s_w, s_rb, s_cb = 32, 33, 34
    SW1, SW3, SWS = 16, 20, 28
    vLane, vN, vH, vWo, vB, vTr = 1, 2, 3, 4, 5, 6
    T = R_T
    a("s_load_dwordx4 s[4:7], s[0:1], 48")
    a("s_load_dwordx2 s[12:13], s[0:1], 88")
    lane_setup(a, T, vLane, vN, vH, s_w)
    a(f"s_and_b32 s3, s{s_wg}, 7")
    a(f"s_lshr_b32 s35, s{s_wg}, 3")
    a("s_and_b32 s36, s3, 1")
    a("s_lshl_b32 s36, s36, 3")
    a("s_and_b32 s37, s35, 7")
    a(f"s_add_u32 s{s_rb}, s36, s37")
    a("s_lshr_b32 s36, s3, 1")
    a("s_lshl_b32 s36, s36, 2")
    a("s_lshr_b32 s37, s35, 3")
    a(f"s_add_u32 s{s_cb}, s36, s37")
    a(f"v_lshrrev_b32 v{T}, 2, v{vLane}")
    a(f"v_mul_u32_u24 v{vWo}, 3072, v{T}")
    a(f"v_and_b32 v{T}, 3, v{vLane}")
    a(f"v_lshl_add_u32 v{vWo}, v{T}, 4, v{vWo}")
    tr_base(a, vTr, T, vLane, vH, 9)
    a(f"v_lshlrev_b32 v{vB}, 4, v{vLane}")
    a(f"s_mul_i32 s40, s{s_w}, {16*3072}")
    a(f"s_mul_i32 s41, s{s_cb}, 192")
    a("s_add_u32 s40, s40, s41")
    a(f"s_lshl_b32 s42, s{s_rb}, 2")
    a(f"s_add_u32 s42, s42, s{s_w}")
    a(f"s_mul_i32 s43, s42, {40*1024}")
    if XF:
        a(f"s_add_u32 s43, s43, {XF}")
    a("s_waitcnt lgkmcnt(0)")
    srd(a, SW1, 4, 1966080)
    srd(a, SW3, 6, 1966080)
    srd(a, SWS, 12, WS_END)
    R = TypeR(a, pfx, 6, 10, vTr, vWo, vB, s_w,
              lambda t: (SW1, 0, t) if t < 3 else (SW3, 0, t - 3), (40, 40, 64 * 3072), 43, SWS, 256)
    R.setup()
    R.emit(R.vm_ops(0) + R.vm_ops(1))
    R.main(R.per, extra_vm)
    if mid_hook:
        mid_hook()
    stamp(a, "gateup")
    a(f"s_mov_b32 s44, {hx(f2u(-math.log2(math.e)))}")
    a(f"s_mul_i32 s45, s42, {96*1024}")
    a(f"s_mul_i32 s46, s{s_cb}, {6*1024}")
    a("s_add_u32 s45, s45, s46")
    a(f"s_add_u32 s45, s45, {HF}")
    a(f"v_mov_b32 v{T}, s44")
    a(f"v_mov_b32 v{T+1}, s44")
    a(f"v_mov_b32 v{T+2}, 1.0")
    a(f"v_mov_b32 v{T+3}, 1.0")
    for t in range(3):
        g, u = R_ACC + 16 * t, R_ACC + 16 * (t + 3)
        E = R_A
        for e in range(0, 16, 2):
            a(f"v_pk_mul_f32 {vr(E+e,2)}, {vr(g+e,2)}, {vr(T,2)}")
        for e in range(16):
            a(f"v_exp_f32 v{E+e}, v{E+e}")
        for e in range(0, 16, 2):
            a(f"v_pk_add_f32 {vr(E+e,2)}, {vr(E+e,2)}, {vr(T+2,2)}")
        for e in range(16):
            a(f"v_rcp_f32 v{E+e}, v{E+e}")
        for e in range(0, 16, 2):
            a(f"v_pk_mul_f32 {vr(g+e,2)}, {vr(g+e,2)}, {vr(u+e,2)}")
        for e in range(0, 16, 2):
            a(f"v_pk_mul_f32 {vr(g+e,2)}, {vr(g+e,2)}, {vr(E+e,2)}")
        for j in range(8):
            a(f"v_cvt_pk_bf16_f32 v{u+j}, v{g+2*j}, v{g+2*j+1}")
        for hf in range(2):
            o = (2 * t + hf) * 1024
            if o < 4096:
                a(f"buffer_store_dwordx4 {vr(u+4*hf,4)}, v{vB}, s[{SWS}:{SWS+3}], s45 offen offset:{o}{smods}")
            else:
                a(f"s_add_u32 s46, s45, {o}")
                a(f"buffer_store_dwordx4 {vr(u+4*hf,4)}, v{vB}, s[{SWS}:{SWS+3}], s46 offen{smods}")


def gen_gateup():
    a = Asm()
    a.label("gateup_kernel")
    a("s_cmp_ge_u32 s2, 256")
    a("s_cbranch_scc1 gateup_end")
    stamp_begin(a, "gateup")
    gen_gateup_body(a, "gu", 2)
    stamp_end(a, "gateup", 28, 32, 240)
    a.label("gateup_end")
    a("s_endpgm")
    return a.finish(), ("gateup_kernel", 256, 256, 73728, 256 if STAMP else 216)


D_AF, D_BF, D_RES, D_XR, D_T = 112, 136, 184, 212, 224
RING = 18432


def tile64_setup(a, s_wg, s_rb, s_cb):
    a(f"s_and_b32 s3, s{s_wg}, 7")
    a("s_lshl_b32 s3, s3, 2")
    a(f"s_bfe_u32 s36, s{s_wg}, 0x20003")
    a(f"s_add_u32 s{s_rb}, s3, s36")
    a(f"s_lshr_b32 s{s_cb}, s{s_wg}, 5")


def gen_down_setup(a, s_wg, standalone, bmods=""):
    s_w = 32
    s_rb, s_cb = 63, 64
    SW, SWS, SX = 24, 28, 76
    vLane, vN, vH, vWo, vB, vTr, vXo = 1, 2, 3, 8, 5, 9, 10
    T = D_T
    a("s_load_dwordx2 s[8:9], s[0:1], 64")
    a("s_load_dwordx2 s[14:15], s[0:1], 0")
    if standalone:
        a("s_load_dwordx2 s[12:13], s[0:1], 88")
        lane_setup(a, T, vLane, vN, vH, s_w)
        a(f"v_lshlrev_b32 v{vB}, 4, v{vLane}")
    tile64_setup(a, s_wg, s_rb, s_cb)
    a(f"v_lshrrev_b32 v{T}, 2, v{vLane}")
    a(f"v_mul_u32_u24 v{vWo}, 1280, v{T}")
    a(f"v_and_b32 v{T}, 3, v{vLane}")
    a(f"v_lshl_add_u32 v{vWo}, v{T}, 4, v{vWo}")
    tr_base(a, vTr, T, vLane, vH, 8)
    a(f"s_mul_i32 s67, s{s_w}, {RING}")
    a(f"v_add_u32 v{vTr}, s67, v{vTr}")
    a(f"v_mul_u32_u24 v{vXo}, 1280, v{vN}")
    a(f"v_lshl_add_u32 v{vXo}, v{vH}, 3, v{vXo}")
    a(f"s_mul_i32 s66, s{s_w}, {384*1280}")
    a(f"s_mul_i32 s37, s{s_cb}, 192")
    a("s_add_u32 s66, s66, s37")
    a(f"s_mul_i32 s68, s{s_rb}, {2*96*1024}")
    a(f"s_mul_i32 s36, s{s_w}, {24*1024}")
    a("s_add_u32 s68, s68, s36")
    a(f"s_add_u32 s68, s68, {HF}")
    a(f"s_add_u32 s65, s68, {96*1024}")
    a(f"s_mul_i32 s70, s{s_rb}, {64*1280}")
    a("s_add_u32 s70, s70, s37")
    a(f"s_lshl_b32 s36, s{s_w}, 4")
    a("s_add_u32 s70, s70, s36")
    a(f"s_add_u32 s71, s70, {32*1280}")
    a("s_waitcnt lgkmcnt(0)")
    srd(a, SW, 8, 1966080)
    srd(a, SX, 14, 2621440)
    if standalone:
        srd(a, SWS, 12, WS_END)
    K = TypeK(a, 24, 6, 6, R_ACC, D_AF, D_BF, vTr, 512, vWo, SW, 66, 16 * 1280, 67, vB, SWS, 68, 65, bmods)
    return K


def gen_down_issue(a, K):
    SX, vXo = 76, 10
    for rt in range(2):
        for ct in range(3):
            a(f"buffer_load_dwordx2 {vr(D_XR+(rt*3+ct)*2,2)}, v{vXo}, s[{SX}:{SX+3}], s{70+rt} offen offset:{ct*64}")
    order = [("x",)] * 6
    for s in range(6):
        K.emit(K.dma(s))
        order += [("d", s)] * 3
    return K, order


def gen_down_rest(a, K, order):
    s_w, s_rb, s_cb, SWS, vB, vLane = 32, 63, 64, 28, 5, 1
    T = D_T
    for s in range(6):
        K.emit(K.bl(s))
        order = order + [("b", s)] * 2
    K.main(order)
    stamp(a, "mffn")
    stamp(a, "down")
    a("s_setprio 2")
    reduce4(a, "dn", R_ACC, D_RES, R_ACC, vB, T, s_w, 67, 0, RING)
    a("s_mov_b32 s49, 0xffff0000")
    a(f"s_mul_i32 s45, s{s_rb}, 40")
    a(f"s_mul_i32 s46, s{s_cb}, 3")
    a("s_add_u32 s45, s45, s46")
    a("s_lshl_b32 s45, s45, 11")
    a(f"s_lshr_b32 s46, s{s_w}, 1")
    a("s_lshl_b32 s46, s46, 10")
    a("s_add_u32 s45, s45, s46")
    a(f"s_and_b32 s46, s{s_w}, 1")
    a("s_lshl_b32 s46, s46, 3")
    a("s_add_u32 s45, s45, s46")
    a(f"s_add_u32 s45, s45, {YF}")
    for ct in range(3):
        if ct == 2:
            a(f"s_cmp_eq_u32 s{s_cb}, 6")
            a("s_cbranch_scc1 dn_skip")
        for rt in range(2):
            r = D_RES + (rt * 3 + ct) * 4
            xr = D_XR + (rt * 3 + ct) * 2
            for e in range(2):
                a(f"v_lshlrev_b32 v{T}, 16, v{xr+e}")
                a(f"v_and_b32 v{T+1}, s49, v{xr+e}")
                a(f"v_pk_add_f32 {vr(r+2*e,2)}, {vr(r+2*e,2)}, {vr(T,2)}")
            a(f"v_cvt_pk_bf16_f32 v{r}, v{r}, v{r+1}")
            a(f"v_cvt_pk_bf16_f32 v{r+1}, v{r+2}, v{r+3}")
            a(f"s_add_u32 s46, s45, {(rt*20+ct)*2048}")
            a(f"buffer_store_dwordx2 {vr(r,2)}, v{vB}, s[{SWS}:{SWS+3}], s46 offen")
    a.label("dn_skip")


def gen_down():
    a = Asm()
    a.label("down_kernel")
    a("s_cmp_ge_u32 s2, 224")
    a("s_cbranch_scc1 down_end")
    stamp_begin(a, "down")
    K, order = gen_down_issue(a, gen_down_setup(a, 2, True))
    stamp(a, "down")
    gen_down_rest(a, K, order)
    stamp_end(a, "down", 28, 32, 240)
    a.label("down_end")
    a("s_endpgm")
    return a.finish(), ("down_kernel", 224, 256, 73728, 256 if STAMP else 232)


def gen_main():
    a = Asm()
    a.label("main_kernel")
    a("s_cmp_ge_u32 s2, 512")
    a("s_cbranch_scc1 main_end")
    a("s_cmp_ge_u32 s2, 256")
    a("s_cbranch_scc1 main_ffn")
    if PRIO_ATTN:
        a(f"s_setprio {PRIO_ATTN}")
    stamp_begin(a, "mattn")
    gen_attn_body(a, "ma", 2)
    stamp_end(a, "mattn", 28, 32, 250)
    a("s_endpgm")
    a.label("main_ffn")
    if PRIO_FFN:
        a(f"s_setprio {PRIO_FFN}")
    a("s_sub_u32 s69, s2, 256")
    stamp_begin(a, "mffn")
    st = {}
    K0 = gen_down_setup(a, 69, True, " sc1")
    xvm = {}
    if PREFETCH and PF0 >= 0:
        a("s_lshr_b32 s96, s69, 3")
        a("s_lshl_b32 s96, s96, 2")
        a("s_add_u32 s96, s96, s32")
        a("s_lshl_b32 s96, s96, 14")
        a(f"v_lshlrev_b32 v11, 6, v1")
        for q in range(4):
            xvm[PF0 + q] = [[f"s_add_u32 s97, s96, {q*4096}",
                             f"buffer_load_dword v12, v11, s[24:27], s97 offen"]]

    def mid():
        stamp(a, "mffn")
        a("s_barrier")
        a("s_cmp_ge_u32 s69, 224")
        a("s_cbranch_scc1 main_nodn")
        st["K"] = gen_down_issue(a, K0)
        a.label("main_nodn")
        a("s_setprio 2")
    gen_gateup_body(a, "gu", 69, mid, " sc1", xvm)
    K, order = st["K"]
    SD = 28
    a("s_setprio 0")
    a("s_lshl_b32 s92, s33, 8")
    a(f"s_add_u32 s92, s92, {CT}")
    a("s_lshr_b32 s93, s63, 1")
    a("s_lshl_b32 s93, s93, 8")
    a(f"s_add_u32 s93, s93, {CT}")
    a("s_waitcnt vmcnt(0)")
    a("s_barrier")
    stamp(a, "mffn")
    a("s_cmp_lg_u32 s32, 0")
    a("s_cbranch_scc1 main_polled")
    a(f"v_mov_b32 v{D_T}, 0")
    a(f"v_mov_b32 v{D_T+1}, 1")
    a("s_mov_b64 exec, 1")
    a(f"buffer_atomic_add v{D_T+1}, v{D_T}, s[{SD}:{SD+3}], s92 offen sc1")
    a("s_cmp_ge_u32 s69, 224")
    a("s_cbranch_scc1 main_pdone")
    a.label("main_poll")
    a(f"buffer_load_dword v{D_T+2}, v{D_T}, s[{SD}:{SD+3}], s93 offen sc1")
    a("s_waitcnt vmcnt(0)")
    a(f"v_readfirstlane_b32 s95, v{D_T+2}")
    a("s_cmp_ge_u32 s95, 16")
    a("s_cbranch_scc1 main_pdone")
    a(f"s_sleep {os.environ.get('SLEEP', '8')}")
    a("s_branch main_poll")
    a.label("main_pdone")
    a("s_mov_b64 exec, -1")
    a.label("main_polled")
    a("s_cmp_ge_u32 s69, 224")
    a("s_cbranch_scc1 main_end")
    a("s_barrier")
    stamp(a, "mffn")
    a(f"s_setprio {PRIO_FFN}")
    gen_down_rest(a, K, [("d", s) for s in range(6)])
    stamp_end(a, "mffn", 28, 32, 240, 69)
    a.label("main_end")
    a("s_endpgm")
    return a.finish(), ("main_kernel", 512, 256, 73728, 256 if STAMP else 248)


PREFETCH = int(os.environ.get("PREFETCH", "1"))
PF0 = int(os.environ.get("PF0", "6"))
CODEPF = int(os.environ.get("CODEPF", "1"))
ORDER = []
PRIO_ATTN = int(os.environ.get("PRIO_ATTN", "0"))
PRIO_FFN = int(os.environ.get("PRIO_FFN", "0"))


def gen_final():
    a = Asm()
    a.label("final_kernel")
    s_w, s_rb, s_cb = 32, 33, 34
    SW, SO, SWS = 20, 24, 28
    vLane, vN, vH, vWo, vB, vTr, vXo = 1, 2, 3, 4, 5, 6, 8
    T = R_T
    YR = R_ACC + 32
    a("s_cmp_ge_u32 s2, 160")
    a("s_cbranch_scc1 final_end")
    stamp_begin(a, "final")
    a("s_load_dwordx2 s[6:7], s[0:1], 32")
    a("s_load_dwordx2 s[8:9], s[0:1], 72")
    a("s_load_dwordx2 s[12:13], s[0:1], 88")
    lane_setup(a, T, vLane, vN, vH, s_w)
    a("s_and_b32 s3, s2, 7")
    a("s_lshl_b32 s3, s3, 1")
    a("s_bfe_u32 s36, s2, 0x10003")
    a(f"s_add_u32 s{s_rb}, s3, s36")
    a(f"s_lshr_b32 s{s_cb}, s2, 4")
    a(f"v_lshlrev_b32 v{vB}, 4, v{vLane}")
    a(f"v_lshrrev_b32 v{T}, 2, v{vLane}")
    a(f"v_mul_u32_u24 v{vWo}, 1280, v{T}")
    a(f"v_and_b32 v{T}, 3, v{vLane}")
    a(f"v_lshl_add_u32 v{vWo}, v{T}, 4, v{vWo}")
    a(f"v_mul_u32_u24 v{vXo}, 1280, v{vN}")
    a(f"v_lshl_add_u32 v{vXo}, v{vH}, 4, v{vXo}")
    tr_base(a, vTr, T, vLane, vH, 9)
    a(f"s_mul_i32 s40, s{s_w}, {16*1280}")
    a(f"s_lshl_b32 s41, s{s_cb}, 7")
    a("s_add_u32 s40, s40, s41")
    a(f"s_lshl_b32 s42, s{s_rb}, 2")
    a(f"s_add_u32 s42, s42, s{s_w}")
    a(f"s_mul_i32 s43, s42, {40*1024}")
    a(f"s_add_u32 s43, s43, {OF}")
    a("s_mul_i32 s45, s42, 20")
    a(f"s_lshl_b32 s46, s{s_cb}, 1")
    a("s_add_u32 s45, s45, s46")
    a("s_lshl_b32 s45, s45, 11")
    a(f"s_add_u32 s45, s45, {YF}")
    a(f"s_mul_i32 s47, s42, {32*1280}")
    a("s_add_u32 s47, s47, s41")
    a("s_waitcnt lgkmcnt(0)")
    srd(a, SW, 6, 819200)
    srd(a, SO, 8, 2621440)
    srd(a, SWS, 12, WS_END)
    R = TypeR(a, "fi", 2, 10, vTr, vWo, vB, s_w, lambda t: (SW, 0, t), (40, 40, 64 * 1280), 43, SWS, 256)
    R.setup()
    R.emit(R.vm_ops(0) + R.vm_ops(1))
    yl = [[f"buffer_load_dwordx4 {vr(YR+4*q,4)}, v{vB}, s[{SWS}:{SWS+3}], s45 offen offset:{q*1024}"] for q in range(4)]
    R.main(R.per, {4: yl})
    stamp(a, "final")
    a("s_mov_b32 s49, 0xffff0000")
    a("s_waitcnt vmcnt(0)")
    for t in range(2):
        r = R_ACC + 16 * t
        for q in range(8):
            a(f"v_lshlrev_b32 v{T+2*(q&1)}, 16, v{YR+8*t+q}")
            a(f"v_and_b32 v{T+2*(q&1)+1}, s49, v{YR+8*t+q}")
            a(f"v_pk_add_f32 {vr(r+2*q,2)}, {vr(r+2*q,2)}, {vr(T+2*(q&1),2)}")
        for q in range(8):
            a(f"v_cvt_pk_bf16_f32 v{r+q}, v{r+2*q}, v{r+2*q+1}")
        for gp in range(2):
            b = r + 4 * gp
            a(f"v_permlane32_swap_b32 v{b}, v{b+2}")
            a(f"v_permlane32_swap_b32 v{b+1}, v{b+3}")
            a(f"buffer_store_dwordx4 {vr(b,4)}, v{vXo}, s[{SO}:{SO+3}], s47 offen offset:{t*64 + gp*32}")
    stamp_end(a, "final", SWS, s_w, 240)
    a.label("final_end")
    a("s_endpgm")
    return a.finish(), ("final_kernel", 160, 256, 24576, 256 if STAMP else 216)


def gen_empty():
    a = Asm()
    a.label("empty_kernel")
    a("s_endpgm")
    return a.finish(), ("empty_kernel", 256, 256, 65536, 256)


KERNELS = {"empty": gen_empty, "main": gen_main, "qkv": gen_qkv, "gateup": gen_gateup, "attn": gen_attn, "down": gen_down, "final": gen_final}
HEADER = open("parallel_sum__grouped_kv_mqa__glu_gated_swiglu__prompt.s.ref").read().split("; Override launch")[0] if False else ""


DEFAULT = ["qkv", "main", "final"]


def build(order):
    texts, launches = {}, []
    ORDER[:] = order
    for k in order:
        t, info = KERNELS[k]()
        texts[info[0]] = (t, info)
        launches.append(info)
    out = "; generated by dev/gen.py -- LN + MQA attention + SwiGLU block for gfx950\n"
    for name, grid, block, lds, vg in launches:
        out += f"; @launch kernel={name} grid=({grid},1,1) block=({block},1,1) lds={lds}\n"
    out += '.amdgcn_target "amdgcn-amd-amdhsa--gfx950"\n.text\n'
    for name, (t, info) in texts.items():
        out += kernel_header(name) + t
    out += "code_end:\n"
    out += '.section .rodata,"a"\n'
    for name, (t, info) in texts.items():
        out += kernel_desc(name, info[4])
    return out


if __name__ == "__main__":
    order = sys.argv[2].split(",") if len(sys.argv) > 2 else DEFAULT
    open(sys.argv[1], "w").write(build(order))
```

```python
import math
import struct
import sys

from asmlib import Asm

XF = 0x0
QF = 0x280000
KF = 0x500000
VF = 0x514000
KN = 0x52A000
CT = 0x52C000
OF = 0x530000
HF = 0x800000
FP = 0x1000000
YF = 0x1000000
WS_END = 0x2500000
TS = 0x2400000
import os
STAMP = os.environ.get("STAMP", "")


_stamp_n = {}


def stamp(a, name, vreg=255):
    if name in STAMP.split(","):
        i = _stamp_n.get(name, 0)
        _stamp_n[name] = i + 1
        a("s_memtime s[100:101]")
        a("s_waitcnt lgkmcnt(0)")
        a(f"v_writelane_b32 v{vreg}, s100, {i}")


def stamp_begin(a, name, vreg=255):
    if name in STAMP.split(","):
        a("s_memrealtime s[98:99]")
        a("s_waitcnt lgkmcnt(0)")
        a(f"v_writelane_b32 v{vreg}, s98, 14")
    stamp(a, name, vreg)


def stamp_end(a, name, sws, s_w, vtmp, s_wg=2, vreg=255):
    if name in STAMP.split(","):
        a("s_waitcnt vmcnt(0) lgkmcnt(0)")
        stamp(a, name, vreg)
        a("s_memrealtime s[98:99]")
        a("s_waitcnt lgkmcnt(0)")
        a(f"v_writelane_b32 v{vreg}, s98, 15")
        a(f"s_lshl_b32 s94, s{s_wg}, 2")
        a(f"s_add_u32 s94, s94, s{s_w}")
        a("s_lshl_b32 s94, s94, 6")
        a(f"s_add_u32 s94, s94, {TS + STAMP.split(',').index(name) * 0x20000}")
        a(f"v_and_b32 v{vtmp}, 63, v0")
        a(f"v_lshlrev_b32 v{vtmp}, 2, v{vtmp}")
        a("s_mov_b64 s[98:99], exec")
        a("s_mov_b64 exec, 0xffff")
        a(f"buffer_store_dword v{vreg}, v{vtmp}, s[{sws}:{sws+3}], s94 offen")
        a("s_mov_b64 exec, s[98:99]")


QSCALE = (20 ** -0.5) * math.log2(math.e)


def f2u(x):
    return struct.unpack("<I", struct.pack("<f", x))[0]


def hx(x):
    return "0x%x" % x


def srd(a, d, base, size):
    a(f"s_mov_b32 s{d}, s{base}")
    a(f"s_and_b32 s{d+1}, s{base+1}, 0xffff")
    a(f"s_mov_b32 s{d+2}, {hx(size)}")
    a(f"s_mov_b32 s{d+3}, 0x00020000")


def vr(b, n=1):
    return f"v{b}" if n == 1 else f"v[{b}:{b+n-1}]"


def mfma32(a, d, x, y, c=None):
    cs = vr(d, 16) if c is None else c
    a(f"v_mfma_f32_32x32x16_bf16 {vr(d,16)}, {vr(x,4)}, {vr(y,4)}, {cs}")


def kernel_header(name):
    return f""".globl {name}
.p2align 8
.type {name},@function
"""


def kernel_desc(name, vgprs, sgprs=102):
    acc = (vgprs + 3) // 4 * 4
    return f""".p2align 6
.amdhsa_kernel {name}
  .amdhsa_next_free_vgpr {vgprs}
  .amdhsa_next_free_sgpr {sgprs}
  .amdhsa_accum_offset {acc}
  .amdhsa_group_segment_fixed_size 0
  .amdhsa_kernarg_size 96
  .amdhsa_user_sgpr_count 2
  .amdhsa_user_sgpr_kernarg_segment_ptr 1
  .amdhsa_system_sgpr_workgroup_id_x 1
.end_amdhsa_kernel
"""


K_X = 16
K_ACC = 96
K_A = 192
K_T = 216
WAVE_LDS = 30720
LDS_STG = 8192


K_R = K_A


def typek_mfma_phase(a, vtr, zero=True, vm_after=None, extra=None):
    def reads(s, buf):
        for ct in range(3):
            o = (3 * s + ct) * 1024
            r = K_A + buf * 12 + ct * 4
            a(f"ds_read_b64_tr_b16 {vr(r,2)}, v{vtr} offset:{o}")
            a(f"ds_read_b64_tr_b16 {vr(r+2,2)}, v{vtr} offset:{o+256}")
    if vm_after:
        a(f"s_waitcnt vmcnt({vm_after(0)})")
    reads(0, 0)
    for s in range(10):
        if s + 1 < 10:
            if vm_after:
                a(f"s_waitcnt vmcnt({vm_after(s+1)})")
            reads(s + 1, (s + 1) & 1)
            a("s_waitcnt lgkmcnt(6)")
        else:
            a("s_waitcnt lgkmcnt(0)")
        ex = list(extra(s)) if extra else []
        n = len(ex)
        k = 0
        for ct in range(3):
            for rt in range(2):
                d = K_ACC + (rt * 3 + ct) * 16
                mfma32(a, d, K_A + (s & 1) * 12 + ct * 4, K_X + rt * 40 + s * 4, "0" if (s == 0 and zero) else None)
                k += 1
                for x in ex[((k - 1) * n) // 6:(k * n) // 6]:
                    a(x)


def reduce4(a, pfx, ACC, RES, TMP, vL16, vT, s_w, s_base, base0, stride, pre_barrier=None, post_reads=None):
    for g in range(4):
        a(f"s_cmp_eq_u32 s{s_w}, {g}")
        a(f"s_cbranch_scc1 {pfx}_rw{g}")
        a(f"s_sub_u32 s90, {g+3}, s{s_w}")
        a("s_and_b32 s90, s90, 3")
        a("s_mul_i32 s90, s90, 6144")
        a(f"s_add_u32 s90, s90, s{s_base}")
        a(f"v_add_u32 v{vT}, s90, v{vL16}")
        for t in range(6):
            a(f"ds_write_b128 v{vT}, {vr(ACC+t*16+g*4,4)} offset:{t*1024}")
        a.label(f"{pfx}_rw{g}")
    if pre_barrier:
        pre_barrier()
    for jj in range(3):
        a(f"s_add_u32 s90, s{s_w}, {jj+1}")
        a("s_and_b32 s90, s90, 3")
        a(f"s_mul_i32 s90, s90, {stride}")
        a(f"s_add_u32 s90, s90, {base0 + (2-jj)*6144}")
        a(f"v_add_u32 v{vT+1+jj}, s90, v{vL16}")
    for g in range(4):
        a(f"s_cmp_lg_u32 s{s_w}, {g}")
        a(f"s_cbranch_scc1 {pfx}_ro{g}")
        for t in range(6):
            for e in range(4):
                a(f"v_mov_b32 v{RES+t*4+e}, v{ACC+t*16+g*4+e}")
        a.label(f"{pfx}_ro{g}")
    a("s_waitcnt lgkmcnt(0)")
    a("s_barrier")
    for jj in range(3):
        for t in range(6):
            a(f"ds_read_b128 {vr(TMP+(jj*6+t)*4,4)}, v{vT+1+jj} offset:{t*1024}")
    n_extra = post_reads() if post_reads else 0
    for jj in range(3):
        a(f"s_waitcnt lgkmcnt({min(15, (2-jj)*6 + n_extra)})")
        for e in range(0, 24, 2):
            a(f"v_pk_add_f32 {vr(RES+e,2)}, {vr(RES+e,2)}, {vr(TMP+jj*24+e,2)}")


class TypeK:
    def __init__(self, a, KS, RD, RB, ACC, AF, BF, vTr, tr2, vWo, SW, s_g, gstep, s_ring, vB, SB, s_b0, s_b1, bmods=""):
        self.__dict__.update(locals())

    def dma(self, s):
        out = []
        for ct in range(3):
            out.append([f"s_add_u32 m0, s{self.s_ring}, {((s % self.RD)*3+ct)*1024}",
                        f"s_add_u32 s91, s{self.s_g}, {s*self.gstep + ct*64}",
                        f"buffer_load_dwordx4 v{self.vWo}, s[{self.SW}:{self.SW+3}], s91 offen lds"])
        return out

    def bl(self, s):
        out = []
        for rt in range(2):
            sb = self.s_b0 if rt == 0 else self.s_b1
            g = []
            if s % 4 == 0 and s:
                g.append(f"s_add_u32 s{sb}, s{sb}, 4096")
            g.append(f"buffer_load_dwordx4 {vr(self.BF+(s%self.RB)*8+rt*4,4)}, v{self.vB}, s[{self.SB}:{self.SB+3}], s{sb} offen offset:{(s%4)*1024}{self.bmods}")
            out.append(g)
        return out

    def emit(self, groups):
        for g in groups:
            for x in g:
                self.a(x)

    def reads(self, s):
        out = []
        for ct in range(3):
            o = ((s % self.RD) * 3 + ct) * 1024
            r = self.AF + (s & 1) * 12 + ct * 4
            out.append(f"ds_read_b64_tr_b16 {vr(r,2)}, v{self.vTr} offset:{o}")
            out.append(f"ds_read_b64_tr_b16 {vr(r+2,2)}, v{self.vTr} offset:{o+self.tr2}")
        return out

    def main(self, order):
        a, KS, RD, RB = self.a, self.KS, self.RD, self.RB
        order = list(order)

        def wait_for(s):
            last = max(i for i, o in enumerate(order) if o in (("d", s), ("b", s)))
            a(f"s_waitcnt vmcnt({min(63, len(order) - 1 - last)})")
        wait_for(0)
        for x in self.reads(0):
            a(x)
        for s in range(KS):
            if s + 1 < KS:
                wait_for(s + 1)
                for x in self.reads(s + 1):
                    a(x)
                a("s_waitcnt lgkmcnt(6)")
            else:
                a("s_waitcnt lgkmcnt(0)")
            dm = self.dma(s + RD) if s + RD < KS else []
            k = 0
            for ct in range(3):
                for rt in range(2):
                    mfma32(a, self.ACC + (rt * 3 + ct) * 16, self.AF + (s & 1) * 12 + ct * 4,
                           self.BF + (s % RB) * 8 + rt * 4, "0" if s == 0 else None)
                    if k % 2 == 0 and dm:
                        self.emit([dm.pop(0)])
                        order.append(("d", s + RD))
                    k += 1
            if s + RB < KS:
                self.emit(self.bl(s + RB))
                order += [("b", s + RB)] * 2


def lane_setup(a, T, vLane, vN, vH, s_w):
    a(f"v_and_b32 v{vLane}, 63, v0")
    a(f"v_lshrrev_b32 v{T}, 6, v0")
    a(f"v_readfirstlane_b32 s{s_w}, v{T}")
    a(f"v_and_b32 v{vN}, 31, v0")
    a(f"v_bfe_u32 v{vH}, v0, 5, 1")


def tr_base(a, vTr, T, vLane, vH, hshift):
    a(f"v_lshlrev_b32 v{vTr}, {hshift}, v{vH}")
    a(f"v_bfe_u32 v{T}, v{vLane}, 2, 2")
    a(f"v_lshl_add_u32 v{vTr}, v{T}, 6, v{vTr}")
    a(f"v_bfe_u32 v{T}, v{vLane}, 4, 1")
    a(f"v_lshl_add_u32 v{vTr}, v{T}, 5, v{vTr}")
    a(f"v_and_b32 v{T}, 3, v{vLane}")
    a(f"v_lshl_add_u32 v{vTr}, v{T}, 3, v{vTr}")


def gen_qkv():
    a = Asm()
    a.label("qkv_kernel")
    ST, MX = 0, 1024
    XI, SL = 8192, 21504
    WR = XI + 4 * SL
    s_w, s_rb, s_cb, s_tg = 32, 33, 34, 35
    SX, SW, SWS = 16, 20, 28
    vLane, vN, vH = 1, 2, 3
    vXg, vXr, vTr, vWo = 4, 5, 7, 8
    AC, AF, BF, ONE, T = 16, 64, 72, 88, 92
    a("s_cmp_ge_u32 s2, 256")
    a("s_cbranch_scc1 qkv_end")
    stamp_begin(a, "qkv")
    a("s_load_dwordx4 s[4:7], s[0:1], 0")
    a("s_load_dwordx4 s[8:11], s[0:1], 16")
    a("s_load_dwordx2 s[12:13], s[0:1], 88")
    a("s_load_dwordx4 s[56:59], s[0:1], 48")
    lane_setup(a, T, vLane, vN, vH, s_w)
    a("s_and_b32 s3, s2, 7")
    a("s_lshl_b32 s3, s3, 2")
    a("s_bfe_u32 s36, s2, 0x20003")
    a(f"s_add_u32 s{s_rb}, s3, s36")
    a(f"s_lshr_b32 s{s_cb}, s2, 5")
    a(f"v_mul_u32_u24 v{T}, 49, v{vLane}")
    a(f"v_lshrrev_b32 v{T}, 10, v{T}")
    a(f"v_mul_u32_u24 v{T+1}, 21, v{T}")
    a(f"v_sub_u32 v{T+1}, v{vLane}, v{T+1}")
    a(f"v_mul_u32_u24 v{vXg}, 1280, v{T}")
    a(f"v_lshl_add_u32 v{vXg}, v{T+1}, 4, v{vXg}")
    a(f"s_mul_i32 s37, s{s_w}, {SL}")
    a(f"s_add_u32 s37, s37, {XI}")
    a(f"s_mul_i32 s39, s{s_rb}, {64*1280}")
    a(f"s_mul_i32 s40, s{s_w}, 320")
    a("s_add_u32 s39, s39, s40")
    a("s_mov_b32 s52, -1")
    a("s_mov_b32 s53, 0x7fffffff")
    a("s_mov_b32 s41, 21")
    a("s_waitcnt lgkmcnt(0)")
    srd(a, SX, 4, 2621440)
    a("s_mov_b64 exec, s[52:53]")
    a.label("qkv_xl")
    a("s_mov_b32 m0, s37")
    a("s_add_u32 s37, s37, 1008")
    a("s_sub_u32 s41, s41, 1")
    a(f"buffer_load_dwordx4 v{vXg}, s[{SX}:{SX+3}], s39 offen lds")
    a("s_add_u32 s39, s39, 3840")
    a("s_cmp_lg_u32 s41, 0")
    a("s_cbranch_scc1 qkv_xl")
    a("s_mov_b64 exec, 0x1fffff")
    a("s_mov_b32 m0, s37")
    a("s_nop 0")
    a(f"buffer_load_dwordx4 v{vXg}, s[{SX}:{SX+3}], s39 offen lds")
    a("s_mov_b64 exec, -1")
    srd(a, SWS, 12, WS_END)
    a(f"v_mul_u32_u24 v{vXr}, 336, v{vN}")
    a(f"v_lshl_add_u32 v{vXr}, v{vH}, 4, v{vXr}")
    a(f"v_add_u32 v{vXr}, {XI}, v{vXr}")
    a(f"s_cmp_eq_u32 s{s_w}, 3")
    a("s_cbranch_scc1 qkv_w3")
    a(f"s_mul_i32 s{s_tg}, s{s_cb}, 3")
    a(f"s_add_u32 s{s_tg}, s{s_tg}, s{s_w}")
    a(f"v_lshrrev_b32 v{T}, 2, v{vLane}")
    a(f"v_and_b32 v{T+1}, 3, v{vLane}")
    a(f"v_lshlrev_b32 v{T+1}, 4, v{T+1}")
    a(f"s_cmp_eq_u32 s{s_tg}, 21")
    a(f"s_cselect_b32 s{SW}, s10, s8")
    a(f"s_cselect_b32 s{SW+1}, s11, s9")
    a(f"s_cmp_lt_u32 s{s_tg}, 22")
    a(f"s_cselect_b32 s{SW+2}, 25600, 0")
    a(f"s_lshl_b32 s45, s{s_tg}, 6")
    a(f"s_cmp_lt_u32 s{s_tg}, 20")
    a(f"s_cselect_b32 s{SW}, s6, s{SW}")
    a(f"s_cselect_b32 s{SW+1}, s7, s{SW+1}")
    a(f"s_cselect_b32 s{SW+2}, 819200, s{SW+2}")
    a(f"s_mov_b32 s{SW+3}, 0x00020000")
    a("s_cselect_b32 s42, s45, 0")
    a("s_movk_i32 s38, 1280")
    a("s_cselect_b32 s38, s38, 40")
    a(f"s_and_b32 s{SW+1}, s{SW+1}, 0xffff")
    a(f"v_mad_u32_u24 v{vWo}, v{T}, s38, v{T+1}")
    a("s_lshl_b32 s43, s38, 4")
    a(f"s_mul_i32 s44, s{s_w}, 20480")
    a(f"s_add_u32 s44, s44, {WR}")
    a("s_mov_b32 s46, s44")
    a("s_mov_b32 s41, 20")
    a.label("qkv_wl")
    a("s_mov_b32 m0, s46")
    a("s_add_u32 s46, s46, 1024")
    a("s_sub_u32 s41, s41, 1")
    a(f"buffer_load_dwordx4 v{vWo}, s[{SW}:{SW+3}], s42 offen lds")
    a("s_add_u32 s42, s42, s43")
    a("s_cmp_lg_u32 s41, 0")
    a("s_cbranch_scc1 qkv_wl")
    tr_base(a, vTr, T, vLane, vH, 9)
    a(f"v_add_u32 v{vTr}, s44, v{vTr}")
    for e in range(4):
        a(f"v_mov_b32 v{ONE+e}, 0x3f803f80")
    for e in range(48):
        a(f"v_mov_b32 v{AC+e}, 0")
    a("s_waitcnt vmcnt(20)")
    a("s_barrier")
    stamp(a, "qkv")

    def rd(s, nxt):
        b = s & 1
        xa = vXr + 1 if nxt else vXr
        ta = vTr + 2 if nxt else vTr
        p = 0 if nxt else s
        a(f"ds_read_b64_tr_b16 {vr(AF+4*b,2)}, v{ta} offset:{p*1024}")
        a(f"ds_read_b64_tr_b16 {vr(AF+4*b+2,2)}, v{ta} offset:{p*1024+256}")
        a(f"ds_read_b128 {vr(BF+8*b,4)}, v{xa} offset:{p*32}")
        a(f"ds_read_b128 {vr(BF+8*b+4,4)}, v{xa} offset:{p*32+10752}")
    a("s_waitcnt vmcnt(19)")
    rd(0, False)
    a("s_mov_b32 s41, 4")
    a("s_mov_b32 s46, s44")
    a.label("qkv_loop")
    a(f"v_add_u32 v{vXr+1}, {SL}, v{vXr}")
    a("s_sub_u32 s47, s46, s44")
    a("s_xor_b32 s47, s47, 10240")
    a("s_sub_u32 s48, s44, s46")
    a("s_add_u32 s48, s48, s47")
    a(f"v_add_u32 v{vTr+2}, s48, v{vTr}")
    for sx in range(10):
        a("s_waitcnt vmcnt(18)")
        rd(sx + 1, sx == 9)
        a("s_waitcnt lgkmcnt(4)")
        a(f"s_add_u32 m0, s46, {sx*1024}")
        b = sx & 1
        mfma32(a, AC, AF + 4 * b, BF + 8 * b)
        a(f"buffer_load_dwordx4 v{vWo}, s[{SW}:{SW+3}], s42 offen lds")
        a("s_add_u32 s42, s42, s43")
        mfma32(a, AC + 16, AF + 4 * b, BF + 8 * b + 4)
        mfma32(a, AC + 32, AF + 4 * b, ONE)
    a(f"v_mov_b32 v{vXr}, v{vXr+1}")
    a(f"v_mov_b32 v{vTr}, v{vTr+2}")
    a("s_add_u32 s46, s44, s47")
    a("s_sub_u32 s41, s41, 1")
    a("s_cmp_lg_u32 s41, 0")
    a("s_cbranch_scc1 qkv_loop")
    stamp(a, "qkv")
    a("s_waitcnt lgkmcnt(0)")
    a("s_barrier")
    a(f"s_cmp_ge_u32 s{s_tg}, 22")
    a("s_cbranch_scc1 qkv_end")
    a(f"v_lshlrev_b32 v{T}, 3, v{vN}")
    a(f"ds_read_b64 {vr(T+2,2)}, v{T} offset:{ST}")
    a(f"ds_read_b64 {vr(T+4,2)}, v{T} offset:{ST+256}")
    a(f"s_mov_b32 s45, {hx(f2u(QSCALE))}")
    a(f"s_cmp_lt_u32 s{s_tg}, 20")
    a("s_cselect_b32 s45, s45, 1.0")
    a("s_waitcnt lgkmcnt(0)")
    for rt in range(2):
        a(f"v_mul_f32 v{T+3+2*rt}, s45, v{T+3+2*rt}")
    for rt in range(2):
        for e in range(16):
            r = AC + 16 * rt + e
            a(f"v_fma_f32 v{r}, -v{T+2+2*rt}, v{AC+32+e}, v{r}")
            a(f"v_mul_f32 v{r}, v{r}, v{T+3+2*rt}")
    stamp(a, "qkv")
    vC0, vHead, vD0, vOff, vA = T + 6, T + 7, T + 8, T + 9, T + 10

    def frag_off():
        a(f"v_lshrrev_b32 v{vA}, 3, v{vD0}")
        a(f"v_lshlrev_b32 v{vA}, 9, v{vA}")
        a(f"v_lshl_add_u32 v{vA}, v{vN}, 4, v{vA}")
        a(f"v_and_b32 v{vA+1}, 4, v{vD0}")
        a(f"v_lshl_add_u32 v{vA}, v{vA+1}, 1, v{vA}")
        a(f"v_lshlrev_b32 v{vA+1}, 3, v{vN}")
        a(f"v_add_u32 v{vA+1}, 1024, v{vA+1}")
        a(f"v_cmp_gt_u32 vcc, 16, v{vD0}")
        a(f"v_cndmask_b32 v{vA}, v{vA+1}, v{vA}, vcc")
        a(f"v_add_u32 v{vOff}, v{vOff}, v{vA}")
    a(f"s_cmp_ge_u32 s{s_tg}, 20")
    a("s_cbranch_scc1 qkv_kv")
    a("s_mov_b32 s46, 3277")
    a(f"s_lshl_b32 s38, s{s_tg}, 5")
    a(f"s_mul_i32 s48, s{s_rb}, {2*32*1280}")
    a(f"s_add_u32 s48, s48, {QF}")
    a(f"s_add_u32 s49, s48, {32*1280}")
    for g in range(4):
        a(f"v_lshlrev_b32 v{vC0}, 2, v{vH}")
        a(f"v_add_u32 v{vC0}, s38, v{vC0}")
        if g:
            a(f"v_add_u32 v{vC0}, {8*g}, v{vC0}")
        a(f"v_mul_u32_u24 v{vHead}, s46, v{vC0}")
        a(f"v_lshrrev_b32 v{vHead}, 16, v{vHead}")
        a(f"v_mul_u32_u24 v{vD0}, 20, v{vHead}")
        a(f"v_sub_u32 v{vD0}, v{vC0}, v{vD0}")
        a(f"v_mul_u32_u24 v{vOff}, 1280, v{vHead}")
        frag_off()
        for rt in range(2):
            r = AC + 16 * rt + 4 * g
            a(f"v_cvt_pk_bf16_f32 v{r}, v{r}, v{r+1}")
            a(f"v_cvt_pk_bf16_f32 v{r+1}, v{r+2}, v{r+3}")
            a(f"buffer_store_dwordx2 {vr(r,2)}, v{vOff}, s[{SWS}:{SWS+3}], s{48+rt} offen")
    a("s_branch qkv_fin")
    a.label("qkv_kv")
    a(f"v_cmp_eq_u32 s[54:55], 0, v{vH}")
    for rt in range(2):
        q = T + 12 + rt
        r = AC + 16 * rt
        a(f"v_mul_f32 v{q}, v{r+8}, v{r+8}")
        for e in range(9, 12):
            a(f"v_fmac_f32 v{q}, v{r+e}, v{r+e}")
        a(f"v_cndmask_b32 v{q}, 0, v{q}, s[54:55]")
        for e in range(8):
            a(f"v_fmac_f32 v{q}, v{r+e}, v{r+e}")
        a(f"v_mov_b32 v{q+2}, v{q}")
        a(f"v_permlane32_swap_b32 v{q}, v{q+2}")
        a(f"v_add_f32 v{q}, v{q}, v{q+2}")
        for g in range(3):
            a(f"v_cvt_pk_bf16_f32 v{r+4*g}, v{r+4*g}, v{r+4*g+1}")
            a(f"v_cvt_pk_bf16_f32 v{r+4*g+1}, v{r+4*g+2}, v{r+4*g+3}")
    a(f"v_max_u32 v{T+12}, v{T+12}, v{T+13}")
    a(f"v_mov_b32 v{T+13}, 0")
    a(f"ds_max_u32 v{T+13}, v{T+12} offset:{MX}")
    a(f"s_cmp_eq_u32 s{s_tg}, 21")
    a("s_cbranch_scc1 qkv_v")
    a(f"s_mul_i32 s48, s{s_rb}, {2*1280}")
    a(f"s_add_u32 s48, s48, {KF}")
    a("s_add_u32 s49, s48, 1280")
    for g in range(3):
        a(f"v_lshlrev_b32 v{vD0}, 2, v{vH}")
        if g:
            a(f"v_add_u32 v{vD0}, {8*g}, v{vD0}")
        a(f"v_mov_b32 v{vOff}, 0")
        frag_off()
        if g == 2:
            a("s_mov_b64 exec, 0xffffffff")
        for rt in range(2):
            a(f"buffer_store_dwordx2 {vr(AC+16*rt+4*g,2)}, v{vOff}, s[{SWS}:{SWS+3}], s{48+rt} offen")
    a("s_mov_b64 exec, -1")
    a("s_branch qkv_kn")
    a.label("qkv_v")
    a(f"s_mul_i32 s48, s{s_rb}, {2*1344}")
    a(f"s_add_u32 s48, s48, {VF}")
    a("s_add_u32 s49, s48, 1344")
    a(f"v_lshrrev_b32 v{vA}, 4, v{vN}")
    a(f"v_lshlrev_b32 v{vA}, 1, v{vA}")
    a(f"v_bfe_u32 v{vA+1}, v{vN}, 2, 1")
    a(f"v_add_u32 v{vA}, v{vA}, v{vA+1}")
    a(f"v_mul_u32_u24 v{vA}, 21, v{vA}")
    a(f"v_lshl_add_u32 v{vA}, v{vH}, 2, v{vA}")
    a(f"v_lshlrev_b32 v{vOff}, 4, v{vA}")
    a(f"v_and_b32 v{vA}, 3, v{vN}")
    a(f"v_lshl_add_u32 v{vOff}, v{vA}, 1, v{vOff}")
    a(f"v_bfe_u32 v{vA}, v{vN}, 3, 1")
    a(f"v_lshl_add_u32 v{vOff}, v{vA}, 3, v{vOff}")
    for g in range(3):
        if g == 2:
            a("s_mov_b64 exec, 0xffffffff")
        for rt in range(2):
            r = AC + 16 * rt + 4 * g
            o = g * 128
            a(f"buffer_store_short v{r}, v{vOff}, s[{SWS}:{SWS+3}], s{48+rt} offen offset:{o}")
            a(f"buffer_store_short_d16_hi v{r}, v{vOff}, s[{SWS}:{SWS+3}], s{48+rt} offen offset:{o+16}")
            a(f"buffer_store_short v{r+1}, v{vOff}, s[{SWS}:{SWS+3}], s{48+rt} offen offset:{o+32}")
            a(f"buffer_store_short_d16_hi v{r+1}, v{vOff}, s[{SWS}:{SWS+3}], s{48+rt} offen offset:{o+48}")
    a("s_add_u32 s48, s48, 320")
    a(f"v_mul_u32_u24 v{vOff}, 336, v{vLane}")
    a("s_mov_b64 exec, 0xff")
    a(f"buffer_store_dwordx4 {vr(ONE,4)}, v{vOff}, s[{SWS}:{SWS+3}], s48 offen")
    a("s_mov_b64 exec, -1")
    a.label("qkv_kn")
    a("s_waitcnt lgkmcnt(0)")
    a(f"ds_read_b32 v{T+12}, v{T+13} offset:{MX}")
    a(f"s_sub_u32 s48, s{s_tg}, 20")
    a("s_lshl_b32 s48, s48, 5")
    a(f"s_add_u32 s48, s48, s{s_rb}")
    a("s_lshl_b32 s48, s48, 2")
    a(f"s_add_u32 s48, s48, {KN}")
    a("s_waitcnt lgkmcnt(0)")
    a(f"buffer_store_dword v{T+12}, v{T+13}, s[{SWS}:{SWS+3}], s48 offen")
    a.label("qkv_fin")
    stamp_end(a, "qkv", SWS, s_w, 120)
    a("s_endpgm")
    _stamp_n["qkv"] = 1
    a.label("qkv_w3")
    X = AC
    a(f"v_mul_u32_u24 v{vTr}, 336, v{vLane}")
    a(f"v_add_u32 v{vTr}, {XI}, v{vTr}")
    a(f"v_mov_b32 v{T+8}, 0x3f803f80")
    for e in range(4):
        a(f"v_mov_b32 v{T+4+e}, 0")
    a(f"ds_write_b32 v{T+4}, v{T+4} offset:{MX}")
    a("s_waitcnt vmcnt(0) lgkmcnt(0)")
    a("s_barrier")
    stamp(a, "qkv")
    a("s_mov_b32 s41, 4")
    a.label("qkv_sl")
    for c in range(19):
        a(f"ds_read_b128 {vr(X+4*c,4)}, v{vTr} offset:{c*16}")
    a(f"ds_read_b128 {vr(T,4)}, v{vTr} offset:{19*16}")
    for c in range(20):
        a(f"s_waitcnt lgkmcnt({min(15, 19-c)})")
        for e in range(4):
            x = (X + 4 * c + e) if c < 19 else T + e
            b = T + 4 + (e & 1) * 2
            a(f"v_dot2_f32_bf16 v{b}, v{x}, v{T+8}, v{b}")
            a(f"v_dot2_f32_bf16 v{b+1}, v{x}, v{x}, v{b+1}")
    a(f"v_add_u32 v{vTr}, {SL}, v{vTr}")
    a("s_sub_u32 s41, s41, 1")
    a("s_cmp_lg_u32 s41, 0")
    a("s_cbranch_scc1 qkv_sl")
    a(f"s_mov_b32 s45, {hx(f2u(1.0/640))}")
    a(f"s_mov_b32 s46, {hx(f2u(1e-5))}")
    mu, sq, m_b, rr, t0 = T + 4, T + 5, T + 10, T + 11, T + 9
    a(f"v_pk_add_f32 {vr(mu,2)}, {vr(mu,2)}, {vr(mu+2,2)}")
    a(f"v_mul_f32 v{mu}, s45, v{mu}")
    a(f"v_mul_f32 v{sq}, s45, v{sq}")
    a(f"v_fma_f32 v{sq}, -v{mu}, v{mu}, v{sq}")
    a(f"v_max_f32 v{sq}, 0, v{sq}")
    a(f"v_cvt_pk_bf16_f32 v{m_b}, v{mu}, v{sq}")
    a(f"v_and_b32 v{t0}, 0xffff0000, v{m_b}")
    a(f"v_lshlrev_b32 v{m_b}, 16, v{m_b}")
    a(f"v_add_f32 v{t0}, s46, v{t0}")
    a(f"v_cvt_pk_bf16_f32 v{t0}, v{t0}, v{t0}")
    a(f"v_lshlrev_b32 v{t0}, 16, v{t0}")
    a(f"v_sqrt_f32 v{t0}, v{t0}")
    a(f"v_cvt_pk_bf16_f32 v{t0}, v{t0}, v{t0}")
    a(f"v_lshlrev_b32 v{t0}, 16, v{t0}")
    a(f"v_rcp_f32 v{rr}, v{t0}")
    a(f"v_lshlrev_b32 v{T}, 3, v{vLane}")
    a(f"ds_write_b64 v{T}, {vr(m_b,2)} offset:{ST}")
    a("s_waitcnt lgkmcnt(0)")
    stamp(a, "qkv")
    a("s_barrier")
    a(f"v_lshlrev_b32 v{T}, 3, v{vN}")
    a(f"ds_read_b64 {vr(T+2,2)}, v{T} offset:{ST}")
    a(f"ds_read_b64 {vr(T+4,2)}, v{T} offset:{ST+256}")
    for i in range(10):
        rt = i // 5
        a(f"s_add_u32 s41, s{s_cb}, {8*i - 40*rt}")
        a("s_mul_i32 s42, s41, 26")
        a("s_lshr_b32 s42, s42, 8")
        a(f"s_mul_i32 s43, s42, {SL - 320}")
        a("s_lshl_b32 s41, s41, 5")
        a("s_add_u32 s43, s43, s41")
        a(f"v_add_u32 v{T+6}, s43, v{vXr}")
        a(f"ds_read_b128 {vr(X+4*i,4)}, v{T+6} offset:{rt*10752}")
    a("s_waitcnt lgkmcnt(10)")
    PR = X + 40
    for rt in range(2):
        a(f"v_mov_b32 v{PR+4*rt}, v{T+3+2*rt}")
        a(f"v_mov_b32 v{PR+4*rt+1}, v{T+3+2*rt}")
        a(f"v_mul_f32_e64 v{PR+4*rt+2}, -v{T+2+2*rt}, v{T+3+2*rt}")
        a(f"v_mov_b32 v{PR+4*rt+3}, v{PR+4*rt+2}")
    a("s_mov_b32 s47, 0xffff0000")
    a(f"v_lshlrev_b32 v{T}, 4, v{vLane}")
    a(f"s_mul_i32 s39, s{s_rb}, 80")
    a(f"s_add_u32 s39, s39, s{s_cb}")
    a("s_lshl_b32 s39, s39, 10")
    if XF:
        a(f"s_add_u32 s39, s39, {XF}")
    for i in range(10):
        rt = i // 5
        a(f"s_waitcnt lgkmcnt({9-i})")
        for q in range(4):
            x = X + 4 * i + q
            u = X + 48 + q * 2
            a(f"v_lshlrev_b32 v{u}, 16, v{x}")
            a(f"v_and_b32 v{u+1}, s47, v{x}")
            a(f"v_pk_fma_f32 {vr(u,2)}, {vr(u,2)}, {vr(PR+4*rt,2)}, {vr(PR+4*rt+2,2)}")
            a(f"v_cvt_pk_bf16_f32 v{x}, v{u}, v{u+1}")
        a(f"buffer_store_dwordx4 {vr(X+4*i,4)}, v{T}, s[{SWS}:{SWS+3}], s39 offen")
        a("s_add_u32 s39, s39, 8192")
    if PREFETCH:
        srd(a, 60, 56, 1966080)
        srd(a, 64, 58, 1966080)
        a(f"v_mul_u32_u24 v{T+1}, 43, v{vLane}")
        a(f"v_lshrrev_b32 v{T+1}, 9, v{T+1}")
        a(f"v_mul_u32_u24 v{T+2}, 12, v{T+1}")
        a(f"v_sub_u32 v{T+2}, v{vLane}, v{T+2}")
        a(f"v_mul_u32_u24 v{T+1}, 3072, v{T+1}")
        a(f"v_lshl_add_u32 v{T+1}, v{T+2}, 6, v{T+1}")
        a("s_lshr_b32 s44, s2, 3")
        a(f"s_mul_i32 s44, s44, {20*3072}")
        a("s_bfe_u32 s38, s2, 0x20001")
        a("s_mul_i32 s38, s38, 768")
        a("s_add_u32 s44, s44, s38")
        a("s_mov_b32 s53, 0x0fffffff")
        a("s_mov_b64 exec, s[52:53]")
        for q in range(4):
            a(f"buffer_load_dword v{T+3}, v{T+1}, s[60:63], s44 offen")
            a(f"buffer_load_dword v{T+3}, v{T+1}, s[64:67], s44 offen")
            a(f"s_add_u32 s44, s44, {5*3072}")
        a("s_mov_b64 exec, -1")
    a("s_cmp_lg_u32 s2, 255")
    a("s_cbranch_scc1 qkv_noct")
    a(f"v_lshlrev_b32 v{T+4}, 8, v{vLane}")
    a(f"v_mov_b32 v{T+5}, 0")
    a(f"s_mov_b32 s44, {CT}")
    a("s_mov_b64 exec, 0xffff")
    a(f"buffer_store_dword v{T+5}, v{T+4}, s[{SWS}:{SWS+3}], s44 offen")
    a("s_mov_b64 exec, -1")
    a.label("qkv_noct")
    stamp(a, "qkv")
    stamp_end(a, "qkv", SWS, s_w, 120)
    a.label("qkv_end")
    a("s_endpgm")
    return a.finish(), ("qkv_kernel", 256, 256, WR + 61440, 256 if STAMP else 128)


A_Q, A_O, A_S, A_P, A_K, A_V, A_M = 16, 48, 112, 144, 160, 192, 224
A_T = 228
NSET = 4
OOB = 0x80000000


def gen_attn_body(a, pfx, s_wg):
    s_w, s_rt, s_kh, s_hd = 32, 33, 34, 35
    SWS = 28
    vLane, vN, vH = 1, 2, 3
    vK1, vK2, vV = 4, 5, 6
    T = A_T
    a("s_load_dwordx2 s[12:13], s[0:1], 88")
    a("s_load_dwordx2 s[14:15], s[0:1], 32")
    lane_setup(a, T, vLane, vN, vH, s_w)
    a(f"s_and_b32 s3, s{s_wg}, 7")
    a(f"s_lshr_b32 s36, s{s_wg}, 5")
    a("s_lshl_b32 s3, s3, 3")
    a(f"s_add_u32 s{s_rt}, s3, s36")
    a(f"s_bfe_u32 s3, s{s_wg}, 0x20003")
    a(f"s_and_b32 s{s_kh}, s{s_w}, 1")
    a(f"s_lshr_b32 s36, s{s_w}, 1")
    a("s_lshl_b32 s3, s3, 3")
    a("s_lshl_b32 s36, s36, 2")
    a(f"s_add_u32 s{s_hd}, s3, s36")
    a(f"v_lshlrev_b32 v{vK1}, 4, v{vLane}")
    a(f"v_lshlrev_b32 v{vK2}, 3, v{vN}")
    a(f"v_add_u32 v{vK2}, 1024, v{vK2}")
    a(f"v_mov_b32 v{T}, {hx(OOB)}")
    a(f"v_cmp_eq_u32 vcc, 0, v{vH}")
    a(f"v_cndmask_b32 v{vK2}, v{T}, v{vK2}, vcc")
    a(f"v_mul_u32_u24 v{vV}, 21, v{vH}")
    a(f"v_add_u32 v{vV}, v{vV}, v{vN}")
    a(f"v_lshlrev_b32 v{vV}, 4, v{vV}")
    a(f"v_cmp_gt_u32 vcc, 21, v{vN}")
    a(f"v_cndmask_b32 v{vV}, v{T}, v{vV}, vcc")
    a("s_waitcnt lgkmcnt(0)")
    srd(a, SWS, 12, WS_END)
    a(f"s_add_u32 s12, s12, {KN}")
    a("s_addc_u32 s13, s13, 0")
    a("s_load_dwordx16 s[64:79], s[12:13], 0")
    a("s_load_dwordx16 s[80:95], s[12:13], 64")
    a("s_load_dwordx16 s[44:59], s[12:13], 128")
    a(f"s_lshl_b32 s36, s{s_rt}, 5")
    a(f"s_add_u32 s36, s36, s{s_hd}")
    a("s_mul_i32 s36, s36, 1280")
    a(f"s_add_u32 s36, s36, {QF}")
    for i in range(4):
        a(f"buffer_load_dwordx4 {vr(A_Q+8*i,4)}, v{vK1}, s[{SWS}:{SWS+3}], s36 offen")
        a(f"buffer_load_dwordx2 {vr(A_Q+8*i+4,2)}, v{vK2}, s[{SWS}:{SWS+3}], s36 offen")
        if i < 3:
            a("s_add_u32 s36, s36, 1280")
    s_kp, s_vp = 37, 38
    a(f"s_mul_i32 s{s_kp}, s{s_kh}, {32*1280}")
    a(f"s_add_u32 s{s_kp}, s{s_kp}, {KF}")
    a(f"s_mul_i32 s{s_vp}, s{s_kh}, {32*1344}")
    a(f"s_add_u32 s{s_vp}, s{s_vp}, {VF}")

    def loadK(st):
        a(f"buffer_load_dwordx4 {vr(A_K+8*st,4)}, v{vK1}, s[{SWS}:{SWS+3}], s{s_kp} offen")
        a(f"buffer_load_dwordx2 {vr(A_K+8*st+4,2)}, v{vK2}, s[{SWS}:{SWS+3}], s{s_kp} offen")
        a(f"s_add_u32 s{s_kp}, s{s_kp}, 1280")

    def loadV(st):
        a(f"buffer_load_dwordx4 {vr(A_V+8*st,4)}, v{vV}, s[{SWS}:{SWS+3}], s{s_vp} offen")
        a(f"buffer_load_dwordx4 {vr(A_V+8*st+4,4)}, v{vV}, s[{SWS}:{SWS+3}], s{s_vp} offen offset:672")
        a(f"s_add_u32 s{s_vp}, s{s_vp}, 1344")
    for st in range(NSET - 1):
        loadK(st)
        loadV(st)
    loadK(NSET - 1)
    for i in range(4):
        a(f"v_mov_b32 v{A_Q+8*i+6}, 0")
        a(f"v_mov_b32 v{A_Q+8*i+7}, 0")
    for st in range(NSET):
        a(f"v_mov_b32 v{A_K+8*st+6}, 0")
        a(f"v_mov_b32 v{A_K+8*st+7}, 0")
    for r in range(64):
        a(f"v_mov_b32 v{A_O+r}, 0")
    for r in range(16):
        a(f"v_mov_b32 v{A_P+r}, 0")
    for r in range(8):
        a(f"v_mov_b32 v{A_V+8*(NSET-1)+r}, 0")
    for r in range(4):
        a(f"v_mov_b32 v{A_M+r}, 0")
    a("s_waitcnt lgkmcnt(0)")
    for r in range(65, 96):
        a(f"s_max_u32 s64, s64, s{r}")
    for r in range(45, 60):
        a(f"s_max_u32 s44, s44, s{r}")
    a("s_load_dwordx16 s[80:95], s[12:13], 192")
    a("s_waitcnt lgkmcnt(0)")
    for r in range(80, 96):
        a(f"s_max_u32 s44, s44, s{r}")
    a(f"s_waitcnt vmcnt({4*NSET-2})")
    for i in range(4):
        a(f"v_mov_b32 v{T+i}, 0")
    for r in range(6):
        for i in range(4):
            a(f"v_dot2_f32_bf16 v{T+i}, v{A_Q+8*i+r}, v{A_Q+8*i+r}, v{T+i}")
    for i in range(4):
        a(f"v_mov_b32 v{T+4+i}, v{T+i}")
    for i in range(4):
        a(f"v_permlane32_swap_b32 v{T+i}, v{T+4+i}")
    for i in range(4):
        a(f"v_add_f32 v{T+i}, v{T+i}, v{T+4+i}")
    a(f"v_max3_f32 v{T}, v{T}, v{T+1}, v{T+2}")
    a(f"v_max_f32 v{T}, v{T}, v{T+3}")
    a(f"v_mul_f32 v{T}, s64, v{T}")
    a(f"v_mov_b32 v{T+1}, {hx(f2u(3600.0/1.05))}")
    a(f"v_cmp_nle_f32 vcc, v{T}, v{T+1}")
    a(f"s_cmp_gt_u32 s44, {hx(f2u(2.0**80))}")
    a(f"s_cbranch_scc1 {pfx}_slow")
    a(f"s_cbranch_vccnz {pfx}_slow")

    def qk(m, sb, ks, i):
        if m == 0:
            mfma32(a, A_S + 16 * sb, A_K + 8 * ks, A_Q + 8 * i, "0")
        else:
            mfma32(a, A_S + 16 * sb, A_K + 8 * ks + 4, A_Q + 8 * i + 4)

    def pv(m, pb, vs, i):
        mfma32(a, A_O + 16 * i, A_V + 8 * vs + 4 * m, A_P + 8 * pb + 4 * m)

    a(f"s_waitcnt vmcnt({4*NSET-4})")
    qk(0, 0, 0, 0)
    qk(1, 0, 0, 0)
    stamp(a, "attn")
    a(f"s_mov_b32 s39, {32//NSET}")
    a("s_nop 10")
    a.raw(".p2align 6")
    a.label(f"{pfx}_loop")
    for kk in range(NSET):
        for i in range(4):
            cur = i & 1
            S = A_S + 16 * cur
            P = A_P + 8 * cur
            nks, ni = (kk, i + 1) if i < 3 else ((kk + 1) % NSET, 0)
            pvs, pi = (kk, i - 1) if i > 0 else ((kk - 1) % NSET, 3)
            if i in (1, 3) and not os.environ.get("NOWAIT"):
                a(f"s_waitcnt vmcnt({4*NSET-6})")
            qk(0, cur ^ 1, nks, ni)
            for e in range(0, 4):
                a(f"v_exp_f32 v{S+e}, v{S+e}")
            qk(1, cur ^ 1, nks, ni)
            if i == 1 and not os.environ.get("NOKV"):
                loadV((kk - 1) % NSET)
            if i == 3 and not os.environ.get("NOKV"):
                loadK(kk)
            for e in range(4, 8):
                a(f"v_exp_f32 v{S+e}, v{S+e}")
            pv(0, cur ^ 1, pvs, pi)
            for e in range(8, 12):
                a(f"v_exp_f32 v{S+e}, v{S+e}")
            for j in range(0, 2):
                a(f"v_cvt_pk_bf16_f32 v{P+j}, v{S+2*j}, v{S+2*j+1}")
            pv(1, cur ^ 1, pvs, pi)
            for e in range(12, 16):
                a(f"v_exp_f32 v{S+e}, v{S+e}")
            for j in range(2, 8):
                a(f"v_cvt_pk_bf16_f32 v{P+j}, v{S+2*j}, v{S+2*j+1}")
    a("s_sub_u32 s39, s39, 1")
    a("s_cmp_lg_u32 s39, 0")
    a(f"s_cbranch_scc1 {pfx}_loop")
    pv(0, 1, NSET - 1, 3)
    pv(1, 1, NSET - 1, 3)
    stamp(a, "attn")
    a(f"s_branch {pfx}_epi")

    a.label(f"{pfx}_slow")
    for r in range(4):
        a(f"v_mov_b32 v{A_M+r}, {hx(f2u(-1e30))}")
    a("s_mov_b32 s39, 32")
    a(f"s_sub_u32 s{s_kp}, s{s_kp}, {1280*(NSET-1)}")
    a(f"s_sub_u32 s{s_vp}, s{s_vp}, {1344*(NSET-2)}")
    a.label(f"{pfx}_sloop")
    a("s_waitcnt vmcnt(0)")
    for i in range(4):
        S, P, M = A_S, A_P, A_M + i
        qk(0, 0, 0, i)
        qk(1, 0, 0, i)
        a(f"v_max3_f32 v{T}, v{S}, v{S+1}, v{S+2}")
        for e in range(3, 15, 2):
            a(f"v_max3_f32 v{T}, v{T}, v{S+e}, v{S+e+1}")
        a(f"v_max_f32 v{T}, v{T}, v{S+15}")
        a(f"v_mov_b32 v{T+1}, v{T}")
        a(f"v_permlane32_swap_b32 v{T}, v{T+1}")
        a(f"v_max3_f32 v{T}, v{T}, v{T+1}, v{M}")
        a(f"v_sub_f32 v{T+1}, v{M}, v{T}")
        a(f"v_exp_f32 v{T+1}, v{T+1}")
        a(f"v_mov_b32 v{M}, v{T}")
        for e in range(16):
            a(f"v_sub_f32 v{S+e}, v{S+e}, v{T}")
            a(f"v_exp_f32 v{S+e}, v{S+e}")
        for j in range(8):
            a(f"v_cvt_pk_bf16_f32 v{P+j}, v{S+2*j}, v{S+2*j+1}")
        for e in range(16):
            a(f"v_mul_f32 v{A_O+16*i+e}, v{A_O+16*i+e}, v{T+1}")
        pv(0, 0, 0, i)
        pv(1, 0, 0, i)
    loadK(0)
    loadV(0)
    a("s_sub_u32 s39, s39, 1")
    a("s_cmp_lg_u32 s39, 0")
    a(f"s_cbranch_scc1 {pfx}_sloop")

    a.label(f"{pfx}_epi")
    a("s_waitcnt vmcnt(0)")
    if PREFETCH:
        srd(a, 16, 14, 819200)
        a(f"s_lshr_b32 s40, s{s_wg}, 3")
        a("s_lshl_b32 s40, s40, 2")
        a(f"s_add_u32 s40, s40, s{s_w}")
        a("s_mul_i32 s40, s40, 6400")
        a(f"v_lshlrev_b32 v{T+14}, 6, v{vLane}")
        a(f"buffer_load_dword v{T+15}, v{T+14}, s[16:19], s40 offen")
        a("s_add_u32 s40, s40, 4096")
        a(f"buffer_load_dword v{T+15}, v{T+14}, s[16:19], s40 offen")
    vW, vR = T, T + 1
    a(f"s_mul_i32 s40, s{s_w}, 6656")
    a(f"s_xor_b32 s41, s{s_w}, 1")
    a("s_mul_i32 s41, s41, 6656")
    a(f"v_add_u32 v{vW}, s40, v{vK1}")
    a(f"v_add_u32 v{vR}, s41, v{vK1}")
    a(f"v_lshlrev_b32 v{T+2}, 2, v{vLane}")
    a(f"v_add_u32 v{T+3}, s41, v{T+2}")
    a(f"v_add_u32 v{T+2}, s40, v{T+2}")
    a(f"s_cmp_eq_u32 s{s_kh}, 0")
    a(f"s_cbranch_scc1 {pfx}_e0")
    for t in range(2):
        for q in range(3):
            a(f"ds_write_b128 v{vW}, {vr(A_O+16*t+4*q,4)} offset:{(t*3+q)*1024}")
        a(f"ds_write_b32 v{T+2}, v{A_M+t} offset:{6144+t*256}")
    a("s_waitcnt lgkmcnt(0)")
    for t in range(2):
        for e in range(12):
            a(f"v_mov_b32 v{A_O+16*t+e}, v{A_O+16*(t+2)+e}")
        a(f"v_mov_b32 v{A_M+t}, v{A_M+t+2}")
    a(f"s_add_u32 s{s_hd}, s{s_hd}, 2")
    a(f"s_branch {pfx}_e1")
    a.label(f"{pfx}_e0")
    for t in range(2):
        for q in range(3):
            a(f"ds_write_b128 v{vW}, {vr(A_O+16*(t+2)+4*q,4)} offset:{(t*3+q)*1024}")
        a(f"ds_write_b32 v{T+2}, v{A_M+t+2} offset:{6144+t*256}")
    a("s_waitcnt lgkmcnt(0)")
    a.label(f"{pfx}_e1")
    a("s_barrier")
    for t in range(2):
        for q in range(3):
            a(f"ds_read_b128 {vr(A_S+16*t+4*q,4)}, v{vR} offset:{(t*3+q)*1024}")
        a(f"ds_read_b32 v{A_M+2+t}, v{T+3} offset:{6144+t*256}")
    a("s_waitcnt lgkmcnt(0)")
    a(f"s_mul_i32 s40, s{s_rt}, {40*1024}")
    a(f"s_add_u32 s40, s40, {OF}")
    a(f"v_mov_b32 v{T+12}, {hx(OOB)}")
    a(f"v_cmp_eq_u32 s[42:43], 0, v{vH}")
    for t in range(2):
        O, Pz, Ma, Mp = A_O + 16 * t, A_S + 16 * t, A_M + t, A_M + 2 + t
        a(f"v_max_f32 v{T+4}, v{Ma}, v{Mp}")
        a(f"v_sub_f32 v{T+5}, v{Ma}, v{T+4}")
        a(f"v_sub_f32 v{T+6}, v{Mp}, v{T+4}")
        a(f"v_exp_f32 v{T+5}, v{T+5}")
        a(f"v_exp_f32 v{T+6}, v{T+6}")
        for e in range(12):
            a(f"v_mul_f32 v{O+e}, v{O+e}, v{T+5}")
            a(f"v_fmac_f32 v{O+e}, v{Pz+e}, v{T+6}")
        a(f"v_mov_b32 v{T+7}, v{O+8}")
        a(f"v_mov_b32 v{T+8}, v{O+8}")
        a(f"v_permlane32_swap_b32 v{T+7}, v{T+8}")
        a(f"v_rcp_f32 v{T+8}, v{T+8}")
        for e in range(12):
            a(f"v_mul_f32 v{O+e}, v{O+e}, v{T+8}")
        for q in range(3):
            a(f"v_cvt_pk_bf16_f32 v{O+4*q}, v{O+4*q}, v{O+4*q+1}")
            a(f"v_cvt_pk_bf16_f32 v{O+4*q+1}, v{O+4*q+2}, v{O+4*q+3}")
        a(f"s_add_u32 s41, s{s_hd}, {t}")
        a("s_mul_i32 s41, s41, 20")
        for q in range(3):
            k, off = T + 9, T + 10
            a(f"v_lshlrev_b32 v{k}, 2, v{vH}")
            a(f"v_add_u32 v{k}, s41, v{k}")
            if q:
                a(f"v_add_u32 v{k}, {8*q}, v{k}")
            a(f"v_lshrrev_b32 v{off}, 3, v{k}")
            a(f"v_lshlrev_b32 v{off}, 9, v{off}")
            a(f"v_lshl_add_u32 v{off}, v{vN}, 4, v{off}")
            a(f"v_and_b32 v{k}, 4, v{k}")
            a(f"v_lshl_add_u32 v{off}, v{k}, 1, v{off}")
            if q == 2:
                a(f"v_cndmask_b32 v{off}, v{T+12}, v{off}, s[42:43]")
            a(f"buffer_store_dwordx2 {vr(O+4*q,2)}, v{off}, s[{SWS}:{SWS+3}], s40 offen")


def gen_attn():
    a = Asm()
    a.label("attn_kernel")
    a("s_cmp_ge_u32 s2, 256")
    a("s_cbranch_scc1 attn_end")
    stamp_begin(a, "attn")
    gen_attn_body(a, "attn", 2)
    stamp_end(a, "attn", 28, 32, 250)
    a.label("attn_end")
    a("s_endpgm")
    return a.finish(), ("attn_kernel", 256, 256, 26624, 256 if STAMP else 248)


R_ACC, R_A, R_B, R_T = 16, 112, 160, 208


class TypeR:
    def __init__(self, a, pfx, NT, NS, vTr, vWo, vB, s_w, srd_of_tile, goff, s_bp, SWS, tr2, bmods=""):
        self.__dict__.update(locals())
        self.SLOT = 4 * NT * 1024
        self.sname = {"gu": "gateup", "dn": "down", "fi": "final"}[pfx[:2]]
        self.s_m = 60
        self.per = NT + 4

    def dma_ops(self, stage):
        slot = stage % 3
        s_g0, s_g1, gstep = self.goff
        out = []
        for t in range(self.NT):
            sr, grp, tt = self.srd_of_tile(t)
            out.append([f"s_add_u32 m0, s{self.s_m}, {slot*self.SLOT + t*1024}",
                        f"s_add_u32 s61, s{s_g0 if grp == 0 else s_g1}, {stage*gstep + tt*64}",
                        f"buffer_load_dwordx4 v{self.vWo}, s[{sr}:{sr+3}], s61 offen lds"])
        return out

    def b_ops(self, stage):
        slot = stage % 3
        bl = []
        for j in range(4):
            g = []
            if j == 0:
                g.append(f"s_add_u32 s62, s{self.s_bp}, {stage*4096}")
            g.append(f"buffer_load_dwordx4 {vr(R_B+slot*16+j*4,4)}, v{self.vB}, s[{self.SWS}:{self.SWS+3}], s62 offen offset:{j*1024}{self.bmods}")
            bl.append(g)
        return bl

    def vm_ops(self, stage):
        out, bl, res = self.dma_ops(stage), self.b_ops(stage), []
        while out or bl:
            if out:
                res.append(out.pop(0))
            if bl and len(res) > 1:
                res.append(bl.pop(0))
        return res

    def emit(self, groups):
        for g in groups:
            for x in g:
                self.a(x)

    def reads(self, stage, j):
        buf = (stage * 4 + j) & 1
        slot = stage % 3
        base = (slot & 1) * self.SLOT + j * self.NT * 1024
        va = self.vTr + (slot >> 1)
        out = []
        for t in range(self.NT):
            r = R_A + buf * 24 + t * 4
            out.append(f"ds_read_b64_tr_b16 {vr(r,2)}, v{va} offset:{base + t*1024}")
            out.append(f"ds_read_b64_tr_b16 {vr(r+2,2)}, v{va} offset:{base + t*1024 + self.tr2}")
        return out

    def mf(self, stage, j, t):
        buf = (stage * 4 + j) & 1
        first = stage == 0 and j == 0
        mfma32(self.a, R_ACC + 16 * t, R_A + buf * 24 + t * 4, R_B + (stage % 3) * 16 + j * 4, "0" if first else None)

    def setup(self):
        a = self.a
        a(f"s_mul_i32 s{self.s_m}, s{self.s_w}, {self.NT*1024}")
        a(f"v_add_u32 v{self.vTr+1}, {2*self.SLOT}, v{self.vTr}")

    def main(self, first_wait, extra_vm=None):
        a, NT, NS = self.a, self.NT, self.NS
        extra_vm = extra_vm or {}
        order = [0] * self.per + [1] * self.per
        stamp(a, self.sname)
        a(f"s_waitcnt vmcnt({first_wait})")
        a("s_barrier")
        stamp(a, self.sname)
        for x in self.reads(0, 0):
            a(x)
        for i in range(NS):
            if i in (1, 2, 4):
                stamp(a, self.sname)
            ops = self.vm_ops(i + 2) if i + 2 < NS else []
            order += [i + 2] * len(ops)
            ops = ops + extra_vm.get(i, [])
            order += [-1] * len(extra_vm.get(i, []))
            nslots = 3 * NT
            place = {}
            for k, g in enumerate(ops):
                place.setdefault((k * nslots) // len(ops), []).append(g)
            for j in range(3):
                rd = self.reads(i, j + 1)
                for t in range(NT):
                    a(f"s_waitcnt lgkmcnt({2*(NT-1)})")
                    self.mf(i, j, t)
                    a(rd[2 * t])
                    a(rd[2 * t + 1])
                    if j * NT + t in place:
                        self.emit(place[j * NT + t])
            last = i + 1 == NS
            H = NT if last else (NT + 1) // 2
            for t in range(H):
                a(f"s_waitcnt lgkmcnt({2*(NT-1-t)})")
                self.mf(i, 3, t)
            if not last:
                lastidx = max(k for k, o in enumerate(order) if o == i + 1)
                a(f"s_waitcnt vmcnt({len(order) - 1 - lastidx}) lgkmcnt(0)")
                a("s_barrier")
                rd = self.reads(i + 1, 0)
                n = NT - H
                for k, t in enumerate(range(H, NT)):
                    self.mf(i, 3, t)
                    for x in rd[(k * len(rd)) // n:((k + 1) * len(rd)) // n]:
                        a(x)


def gen_gateup_body(a, pfx, s_wg, mid_hook=None, smods='', extra_vm=None):
    s_w, s_rb, s_cb = 32, 33, 34
    SW1, SW3, SWS = 16, 20, 28
    vLane, vN, vH, vWo, vB, vTr = 1, 2, 3, 4, 5, 6
    T = R_T
    a("s_load_dwordx4 s[4:7], s[0:1], 48")
    a("s_load_dwordx2 s[12:13], s[0:1], 88")
    lane_setup(a, T, vLane, vN, vH, s_w)
    a(f"s_and_b32 s3, s{s_wg}, 7")
    a(f"s_lshr_b32 s35, s{s_wg}, 3")
    a("s_and_b32 s36, s3, 1")
    a("s_lshl_b32 s36, s36, 3")
    a("s_and_b32 s37, s35, 7")
    a(f"s_add_u32 s{s_rb}, s36, s37")
    a("s_lshr_b32 s36, s3, 1")
    a("s_lshl_b32 s36, s36, 2")
    a("s_lshr_b32 s37, s35, 3")
    a(f"s_add_u32 s{s_cb}, s36, s37")
    a(f"v_lshrrev_b32 v{T}, 2, v{vLane}")
    a(f"v_mul_u32_u24 v{vWo}, 3072, v{T}")
    a(f"v_and_b32 v{T}, 3, v{vLane}")
    a(f"v_lshl_add_u32 v{vWo}, v{T}, 4, v{vWo}")
    tr_base(a, vTr, T, vLane, vH, 9)
    a(f"v_lshlrev_b32 v{vB}, 4, v{vLane}")
    a(f"s_mul_i32 s40, s{s_w}, {16*3072}")
    a(f"s_mul_i32 s41, s{s_cb}, 192")
    a("s_add_u32 s40, s40, s41")
    a(f"s_lshl_b32 s42, s{s_rb}, 2")
    a(f"s_add_u32 s42, s42, s{s_w}")
    a(f"s_mul_i32 s43, s42, {40*1024}")
    if XF:
        a(f"s_add_u32 s43, s43, {XF}")
    a("s_waitcnt lgkmcnt(0)")
    srd(a, SW1, 4, 1966080)
    srd(a, SW3, 6, 1966080)
    srd(a, SWS, 12, WS_END)
    R = TypeR(a, pfx, 6, 10, vTr, vWo, vB, s_w,
              lambda t: (SW1, 0, t) if t < 3 else (SW3, 0, t - 3), (40, 40, 64 * 3072), 43, SWS, 256)
    R.setup()
    R.emit(R.vm_ops(0) + R.vm_ops(1))
    R.main(R.per, extra_vm)
    if mid_hook:
        mid_hook()
    stamp(a, "gateup")
    a(f"s_mov_b32 s44, {hx(f2u(-math.log2(math.e)))}")
    a(f"s_mul_i32 s45, s42, {96*1024}")
    a(f"s_mul_i32 s46, s{s_cb}, {6*1024}")
    a("s_add_u32 s45, s45, s46")
    a(f"s_add_u32 s45, s45, {HF}")
    a(f"v_mov_b32 v{T}, s44")
    a(f"v_mov_b32 v{T+1}, s44")
    a(f"v_mov_b32 v{T+2}, 1.0")
    a(f"v_mov_b32 v{T+3}, 1.0")
    for t in range(3):
        g, u = R_ACC + 16 * t, R_ACC + 16 * (t + 3)
        E = R_A
        for e in range(0, 16, 2):
            a(f"v_pk_mul_f32 {vr(E+e,2)}, {vr(g+e,2)}, {vr(T,2)}")
        for e in range(16):
            a(f"v_exp_f32 v{E+e}, v{E+e}")
        for e in range(0, 16, 2):
            a(f"v_pk_add_f32 {vr(E+e,2)}, {vr(E+e,2)}, {vr(T+2,2)}")
        for e in range(16):
            a(f"v_rcp_f32 v{E+e}, v{E+e}")
        for e in range(0, 16, 2):
            a(f"v_pk_mul_f32 {vr(g+e,2)}, {vr(g+e,2)}, {vr(u+e,2)}")
        for e in range(0, 16, 2):
            a(f"v_pk_mul_f32 {vr(g+e,2)}, {vr(g+e,2)}, {vr(E+e,2)}")
        for j in range(8):
            a(f"v_cvt_pk_bf16_f32 v{u+j}, v{g+2*j}, v{g+2*j+1}")
        for hf in range(2):
            o = (2 * t + hf) * 1024
            if o < 4096:
                a(f"buffer_store_dwordx4 {vr(u+4*hf,4)}, v{vB}, s[{SWS}:{SWS+3}], s45 offen offset:{o}{smods}")
            else:
                a(f"s_add_u32 s46, s45, {o}")
                a(f"buffer_store_dwordx4 {vr(u+4*hf,4)}, v{vB}, s[{SWS}:{SWS+3}], s46 offen{smods}")


def gen_gateup():
    a = Asm()
    a.label("gateup_kernel")
    a("s_cmp_ge_u32 s2, 256")
    a("s_cbranch_scc1 gateup_end")
    stamp_begin(a, "gateup")
    gen_gateup_body(a, "gu", 2)
    stamp_end(a, "gateup", 28, 32, 240)
    a.label("gateup_end")
    a("s_endpgm")
    return a.finish(), ("gateup_kernel", 256, 256, 73728, 256 if STAMP else 216)


D_AF, D_BF, D_RES, D_XR, D_T = 112, 136, 184, 212, 224
RING = 18432


def tile64_setup(a, s_wg, s_rb, s_cb):
    a(f"s_and_b32 s3, s{s_wg}, 7")
    a("s_lshl_b32 s3, s3, 2")
    a(f"s_bfe_u32 s36, s{s_wg}, 0x20003")
    a(f"s_add_u32 s{s_rb}, s3, s36")
    a(f"s_lshr_b32 s{s_cb}, s{s_wg}, 5")


def gen_down_setup(a, s_wg, standalone, bmods=""):
    s_w = 32
    s_rb, s_cb = 63, 64
    SW, SWS, SX = 24, 28, 76
    vLane, vN, vH, vWo, vB, vTr, vXo = 1, 2, 3, 8, 5, 9, 10
    T = D_T
    a("s_load_dwordx2 s[8:9], s[0:1], 64")
    a("s_load_dwordx2 s[14:15], s[0:1], 0")
    if standalone:
        a("s_load_dwordx2 s[12:13], s[0:1], 88")
        lane_setup(a, T, vLane, vN, vH, s_w)
        a(f"v_lshlrev_b32 v{vB}, 4, v{vLane}")
    tile64_setup(a, s_wg, s_rb, s_cb)
    a(f"v_lshrrev_b32 v{T}, 2, v{vLane}")
    a(f"v_mul_u32_u24 v{vWo}, 1280, v{T}")
    a(f"v_and_b32 v{T}, 3, v{vLane}")
    a(f"v_lshl_add_u32 v{vWo}, v{T}, 4, v{vWo}")
    tr_base(a, vTr, T, vLane, vH, 8)
    a(f"s_mul_i32 s67, s{s_w}, {RING}")
    a(f"v_add_u32 v{vTr}, s67, v{vTr}")
    a(f"v_mul_u32_u24 v{vXo}, 1280, v{vN}")
    a(f"v_lshl_add_u32 v{vXo}, v{vH}, 3, v{vXo}")
    a(f"s_mul_i32 s66, s{s_w}, {384*1280}")
    a(f"s_mul_i32 s37, s{s_cb}, 192")
    a("s_add_u32 s66, s66, s37")
    a(f"s_mul_i32 s68, s{s_rb}, {2*96*1024}")
    a(f"s_mul_i32 s36, s{s_w}, {24*1024}")
    a("s_add_u32 s68, s68, s36")
    a(f"s_add_u32 s68, s68, {HF}")
    a(f"s_add_u32 s65, s68, {96*1024}")
    a(f"s_mul_i32 s70, s{s_rb}, {64*1280}")
    a("s_add_u32 s70, s70, s37")
    a(f"s_lshl_b32 s36, s{s_w}, 4")
    a("s_add_u32 s70, s70, s36")
    a(f"s_add_u32 s71, s70, {32*1280}")
    a("s_waitcnt lgkmcnt(0)")
    srd(a, SW, 8, 1966080)
    srd(a, SX, 14, 2621440)
    if standalone:
        srd(a, SWS, 12, WS_END)
    K = TypeK(a, 24, 6, 6, R_ACC, D_AF, D_BF, vTr, 512, vWo, SW, 66, 16 * 1280, 67, vB, SWS, 68, 65, bmods)
    return K


def gen_down_issue(a, K):
    SX, vXo = 76, 10
    for rt in range(2):
        for ct in range(3):
            a(f"buffer_load_dwordx2 {vr(D_XR+(rt*3+ct)*2,2)}, v{vXo}, s[{SX}:{SX+3}], s{70+rt} offen offset:{ct*64}")
    order = [("x",)] * 6
    for s in range(6):
        K.emit(K.dma(s))
        order += [("d", s)] * 3
    return K, order


def gen_down_rest(a, K, order):
    s_w, s_rb, s_cb, SWS, vB, vLane = 32, 63, 64, 28, 5, 1
    T = D_T
    for s in range(6):
        K.emit(K.bl(s))
        order = order + [("b", s)] * 2
    K.main(order)
    stamp(a, "mffn")
    stamp(a, "down")
    a("s_setprio 2")
    reduce4(a, "dn", R_ACC, D_RES, R_ACC, vB, T, s_w, 67, 0, RING)
    a("s_mov_b32 s49, 0xffff0000")
    a(f"s_mul_i32 s45, s{s_rb}, 40")
    a(f"s_mul_i32 s46, s{s_cb}, 3")
    a("s_add_u32 s45, s45, s46")
    a("s_lshl_b32 s45, s45, 11")
    a(f"s_lshr_b32 s46, s{s_w}, 1")
    a("s_lshl_b32 s46, s46, 10")
    a("s_add_u32 s45, s45, s46")
    a(f"s_and_b32 s46, s{s_w}, 1")
    a("s_lshl_b32 s46, s46, 3")
    a("s_add_u32 s45, s45, s46")
    a(f"s_add_u32 s45, s45, {YF}")
    for ct in range(3):
        if ct == 2:
            a(f"s_cmp_eq_u32 s{s_cb}, 6")
            a("s_cbranch_scc1 dn_skip")
        for rt in range(2):
            r = D_RES + (rt * 3 + ct) * 4
            xr = D_XR + (rt * 3 + ct) * 2
            for e in range(2):
                a(f"v_lshlrev_b32 v{T}, 16, v{xr+e}")
                a(f"v_and_b32 v{T+1}, s49, v{xr+e}")
                a(f"v_pk_add_f32 {vr(r+2*e,2)}, {vr(r+2*e,2)}, {vr(T,2)}")
            a(f"v_cvt_pk_bf16_f32 v{r}, v{r}, v{r+1}")
            a(f"v_cvt_pk_bf16_f32 v{r+1}, v{r+2}, v{r+3}")
            a(f"s_add_u32 s46, s45, {(rt*20+ct)*2048}")
            a(f"buffer_store_dwordx2 {vr(r,2)}, v{vB}, s[{SWS}:{SWS+3}], s46 offen")
    a.label("dn_skip")


def gen_down():
    a = Asm()
    a.label("down_kernel")
    a("s_cmp_ge_u32 s2, 224")
    a("s_cbranch_scc1 down_end")
    stamp_begin(a, "down")
    K, order = gen_down_issue(a, gen_down_setup(a, 2, True))
    stamp(a, "down")
    gen_down_rest(a, K, order)
    stamp_end(a, "down", 28, 32, 240)
    a.label("down_end")
    a("s_endpgm")
    return a.finish(), ("down_kernel", 224, 256, 73728, 256 if STAMP else 232)


def gen_main():
    a = Asm()
    a.label("main_kernel")
    a("s_cmp_ge_u32 s2, 512")
    a("s_cbranch_scc1 main_end")
    a("s_cmp_ge_u32 s2, 256")
    a("s_cbranch_scc1 main_ffn")
    if PRIO_ATTN:
        a(f"s_setprio {PRIO_ATTN}")
    stamp_begin(a, "mattn")
    gen_attn_body(a, "ma", 2)
    stamp_end(a, "mattn", 28, 32, 250)
    a("s_endpgm")
    a.label("main_ffn")
    if PRIO_FFN:
        a(f"s_setprio {PRIO_FFN}")
    a("s_sub_u32 s69, s2, 256")
    stamp_begin(a, "mffn")
    st = {}
    K0 = gen_down_setup(a, 69, True, " sc1")
    xvm = {}
    if PREFETCH and PF0 >= 0:
        a("s_lshr_b32 s96, s69, 3")
        a("s_lshl_b32 s96, s96, 2")
        a("s_add_u32 s96, s96, s32")
        a("s_lshl_b32 s96, s96, 14")
        a(f"v_lshlrev_b32 v11, 6, v1")
        for q in range(4):
            xvm[PF0 + q] = [[f"s_add_u32 s97, s96, {q*4096}",
                             f"buffer_load_dword v12, v11, s[24:27], s97 offen"]]

    def mid():
        stamp(a, "mffn")
        a("s_barrier")
        a("s_cmp_ge_u32 s69, 224")
        a("s_cbranch_scc1 main_nodn")
        st["K"] = gen_down_issue(a, K0)
        a.label("main_nodn")
        a("s_setprio 2")
    gen_gateup_body(a, "gu", 69, mid, " sc1", xvm)
    K, order = st["K"]
    SD = 28
    a("s_setprio 0")
    a("s_lshl_b32 s92, s33, 8")
    a(f"s_add_u32 s92, s92, {CT}")
    a("s_lshr_b32 s93, s63, 1")
    a("s_lshl_b32 s93, s93, 8")
    a(f"s_add_u32 s93, s93, {CT}")
    a("s_waitcnt vmcnt(0)")
    a("s_barrier")
    stamp(a, "mffn")
    a("s_cmp_lg_u32 s32, 0")
    a("s_cbranch_scc1 main_polled")
    a(f"v_mov_b32 v{D_T}, 0")
    a(f"v_mov_b32 v{D_T+1}, 1")
    a("s_mov_b64 exec, 1")
    a(f"buffer_atomic_add v{D_T+1}, v{D_T}, s[{SD}:{SD+3}], s92 offen sc1")
    a("s_cmp_ge_u32 s69, 224")
    a("s_cbranch_scc1 main_pdone")
    a.label("main_poll")
    a(f"buffer_load_dword v{D_T+2}, v{D_T}, s[{SD}:{SD+3}], s93 offen sc1")
    a("s_waitcnt vmcnt(0)")
    a(f"v_readfirstlane_b32 s95, v{D_T+2}")
    a("s_cmp_ge_u32 s95, 16")
    a("s_cbranch_scc1 main_pdone")
    a(f"s_sleep {os.environ.get('SLEEP', '8')}")
    a("s_branch main_poll")
    a.label("main_pdone")
    a("s_mov_b64 exec, -1")
    a.label("main_polled")
    a("s_cmp_ge_u32 s69, 224")
    a("s_cbranch_scc1 main_end")
    a("s_barrier")
    stamp(a, "mffn")
    a(f"s_setprio {PRIO_FFN}")
    gen_down_rest(a, K, [("d", s) for s in range(6)])
    stamp_end(a, "mffn", 28, 32, 240, 69)
    a.label("main_end")
    a("s_endpgm")
    return a.finish(), ("main_kernel", 512, 256, 73728, 256 if STAMP else 248)


PREFETCH = int(os.environ.get("PREFETCH", "1"))
PF0 = int(os.environ.get("PF0", "6"))
CODEPF = 0
ORDER = []
PRIO_ATTN = int(os.environ.get("PRIO_ATTN", "0"))
PRIO_FFN = int(os.environ.get("PRIO_FFN", "0"))


def gen_final():
    a = Asm()
    a.label("final_kernel")
    s_w, s_rb, s_cb = 32, 33, 34
    SW, SO, SWS = 20, 24, 28
    vLane, vN, vH, vWo, vB, vTr, vXo = 1, 2, 3, 4, 5, 6, 8
    T = R_T
    YR = R_ACC + 32
    a("s_cmp_ge_u32 s2, 160")
    a("s_cbranch_scc1 final_end")
    stamp_begin(a, "final")
    a("s_load_dwordx2 s[6:7], s[0:1], 32")
    a("s_load_dwordx2 s[8:9], s[0:1], 72")
    a("s_load_dwordx2 s[12:13], s[0:1], 88")
    lane_setup(a, T, vLane, vN, vH, s_w)
    a("s_and_b32 s3, s2, 7")
    a("s_lshl_b32 s3, s3, 1")
    a("s_bfe_u32 s36, s2, 0x10003")
    a(f"s_add_u32 s{s_rb}, s3, s36")
    a(f"s_lshr_b32 s{s_cb}, s2, 4")
    a(f"v_lshlrev_b32 v{vB}, 4, v{vLane}")
    a(f"v_lshrrev_b32 v{T}, 2, v{vLane}")
    a(f"v_mul_u32_u24 v{vWo}, 1280, v{T}")
    a(f"v_and_b32 v{T}, 3, v{vLane}")
    a(f"v_lshl_add_u32 v{vWo}, v{T}, 4, v{vWo}")
    a(f"v_mul_u32_u24 v{vXo}, 1280, v{vN}")
    a(f"v_lshl_add_u32 v{vXo}, v{vH}, 4, v{vXo}")
    tr_base(a, vTr, T, vLane, vH, 9)
    a(f"s_mul_i32 s40, s{s_w}, {16*1280}")
    a(f"s_lshl_b32 s41, s{s_cb}, 7")
    a("s_add_u32 s40, s40, s41")
    a(f"s_lshl_b32 s42, s{s_rb}, 2")
    a(f"s_add_u32 s42, s42, s{s_w}")
    a(f"s_mul_i32 s43, s42, {40*1024}")
    a(f"s_add_u32 s43, s43, {OF}")
    a("s_mul_i32 s45, s42, 20")
    a(f"s_lshl_b32 s46, s{s_cb}, 1")
    a("s_add_u32 s45, s45, s46")
    a("s_lshl_b32 s45, s45, 11")
    a(f"s_add_u32 s45, s45, {YF}")
    a(f"s_mul_i32 s47, s42, {32*1280}")
    a("s_add_u32 s47, s47, s41")
    a("s_waitcnt lgkmcnt(0)")
    srd(a, SW, 6, 819200)
    srd(a, SO, 8, 2621440)
    srd(a, SWS, 12, WS_END)
    R = TypeR(a, "fi", 2, 10, vTr, vWo, vB, s_w, lambda t: (SW, 0, t), (40, 40, 64 * 1280), 43, SWS, 256)
    R.setup()
    R.emit(R.vm_ops(0) + R.vm_ops(1))
    yl = [[f"buffer_load_dwordx4 {vr(YR+4*q,4)}, v{vB}, s[{SWS}:{SWS+3}], s45 offen offset:{q*1024}"] for q in range(4)]
    R.main(R.per, {4: yl})
    stamp(a, "final")
    a("s_mov_b32 s49, 0xffff0000")
    a("s_waitcnt vmcnt(0)")
    for t in range(2):
        r = R_ACC + 16 * t
        for q in range(8):
            a(f"v_lshlrev_b32 v{T+2*(q&1)}, 16, v{YR+8*t+q}")
            a(f"v_and_b32 v{T+2*(q&1)+1}, s49, v{YR+8*t+q}")
            a(f"v_pk_add_f32 {vr(r+2*q,2)}, {vr(r+2*q,2)}, {vr(T+2*(q&1),2)}")
        for q in range(8):
            a(f"v_cvt_pk_bf16_f32 v{r+q}, v{r+2*q}, v{r+2*q+1}")
        for gp in range(2):
            b = r + 4 * gp
            a(f"v_permlane32_swap_b32 v{b}, v{b+2}")
            a(f"v_permlane32_swap_b32 v{b+1}, v{b+3}")
            a(f"buffer_store_dwordx4 {vr(b,4)}, v{vXo}, s[{SO}:{SO+3}], s47 offen offset:{t*64 + gp*32}")
    stamp_end(a, "final", SWS, s_w, 240)
    a.label("final_end")
    a("s_endpgm")
    return a.finish(), ("final_kernel", 160, 256, 24576, 256 if STAMP else 216)


def gen_empty():
    a = Asm()
    a.label("empty_kernel")
    a("s_endpgm")
    return a.finish(), ("empty_kernel", 256, 256, 65536, 256)


KERNELS = {"empty": gen_empty, "main": gen_main, "qkv": gen_qkv, "gateup": gen_gateup, "attn": gen_attn, "down": gen_down, "final": gen_final}
HEADER = open("parallel_sum__grouped_kv_mqa__glu_gated_swiglu__prompt.s.ref").read().split("; Override launch")[0] if False else ""


DEFAULT = ["qkv", "main", "final"]


def build(order):
    texts, launches = {}, []
    ORDER[:] = order
    for k in order:
        t, info = KERNELS[k]()
        texts[info[0]] = (t, info)
        launches.append(info)
    out = "; generated by dev/gen.py -- LN + MQA attention + SwiGLU block for gfx950\n"
    for name, grid, block, lds, vg in launches:
        out += f"; @launch kernel={name} grid=({grid},1,1) block=({block},1,1) lds={lds}\n"
    out += '.amdgcn_target "amdgcn-amd-amdhsa--gfx950"\n.text\n'
    for name, (t, info) in texts.items():
        out += kernel_header(name) + t
    out += "code_end:\n"
    out += '.section .rodata,"a"\n'
    for name, (t, info) in texts.items():
        out += kernel_desc(name, info[4])
    return out


if __name__ == "__main__":
    order = sys.argv[2].split(",") if len(sys.argv) > 2 else DEFAULT
    open(sys.argv[1], "w").write(build(order))
```

```python
import math
import struct
import sys

from asmlib import Asm

XF = 0x0
QF = 0x280000
KF = 0x500000
VF = KF + 1280
KVS = 2624
KN = 0x52A000
CT = 0x52C000
OF = 0x530000
HF = 0x800000
FP = 0x1000000
YF = 0x1000000
WS_END = 0x2500000
TS = 0x2400000
import os
STAMP = os.environ.get("STAMP", "")


_stamp_n = {}


def stamp(a, name, vreg=255):
    if name in STAMP.split(","):
        i = _stamp_n.get(name, 0)
        _stamp_n[name] = i + 1
        a("s_memtime s[100:101]")
        a("s_waitcnt lgkmcnt(0)")
        a(f"v_writelane_b32 v{vreg}, s100, {i}")


def stamp_begin(a, name, vreg=255):
    if name in STAMP.split(","):
        a("s_memrealtime s[98:99]")
        a("s_waitcnt lgkmcnt(0)")
        a(f"v_writelane_b32 v{vreg}, s98, 14")
    stamp(a, name, vreg)


def stamp_end(a, name, sws, s_w, vtmp, s_wg=2, vreg=255):
    if name in STAMP.split(","):
        a("s_waitcnt vmcnt(0) lgkmcnt(0)")
        stamp(a, name, vreg)
        a("s_memrealtime s[98:99]")
        a("s_waitcnt lgkmcnt(0)")
        a(f"v_writelane_b32 v{vreg}, s98, 15")
        a(f"s_lshl_b32 s94, s{s_wg}, 2")
        a(f"s_add_u32 s94, s94, s{s_w}")
        a("s_lshl_b32 s94, s94, 6")
        a(f"s_add_u32 s94, s94, {TS + STAMP.split(',').index(name) * 0x20000}")
        a(f"v_and_b32 v{vtmp}, 63, v0")
        a(f"v_lshlrev_b32 v{vtmp}, 2, v{vtmp}")
        a("s_mov_b64 s[98:99], exec")
        a("s_mov_b64 exec, 0xffff")
        a(f"buffer_store_dword v{vreg}, v{vtmp}, s[{sws}:{sws+3}], s94 offen")
        a("s_mov_b64 exec, s[98:99]")


QSCALE = (20 ** -0.5) * math.log2(math.e)


def f2u(x):
    return struct.unpack("<I", struct.pack("<f", x))[0]


def hx(x):
    return "0x%x" % x


def srd(a, d, base, size):
    a(f"s_mov_b32 s{d}, s{base}")
    a(f"s_and_b32 s{d+1}, s{base+1}, 0xffff")
    a(f"s_mov_b32 s{d+2}, {hx(size)}")
    a(f"s_mov_b32 s{d+3}, 0x00020000")


def vr(b, n=1):
    return f"v{b}" if n == 1 else f"v[{b}:{b+n-1}]"


def mfma32(a, d, x, y, c=None):
    cs = vr(d, 16) if c is None else c
    a(f"v_mfma_f32_32x32x16_bf16 {vr(d,16)}, {vr(x,4)}, {vr(y,4)}, {cs}")


def kernel_header(name):
    return f""".globl {name}
.p2align 8
.type {name},@function
"""


def kernel_desc(name, vgprs, sgprs=102):
    acc = (vgprs + 3) // 4 * 4
    return f""".p2align 6
.amdhsa_kernel {name}
  .amdhsa_next_free_vgpr {vgprs}
  .amdhsa_next_free_sgpr {sgprs}
  .amdhsa_accum_offset {acc}
  .amdhsa_group_segment_fixed_size 0
  .amdhsa_kernarg_size 96
  .amdhsa_user_sgpr_count 2
  .amdhsa_user_sgpr_kernarg_segment_ptr 1
  .amdhsa_system_sgpr_workgroup_id_x 1
.end_amdhsa_kernel
"""


K_X = 16
K_ACC = 96
K_A = 192
K_T = 216
WAVE_LDS = 30720
LDS_STG = 8192


K_R = K_A


def typek_mfma_phase(a, vtr, zero=True, vm_after=None, extra=None):
    def reads(s, buf):
        for ct in range(3):
            o = (3 * s + ct) * 1024
            r = K_A + buf * 12 + ct * 4
            a(f"ds_read_b64_tr_b16 {vr(r,2)}, v{vtr} offset:{o}")
            a(f"ds_read_b64_tr_b16 {vr(r+2,2)}, v{vtr} offset:{o+256}")
    if vm_after:
        a(f"s_waitcnt vmcnt({vm_after(0)})")
    reads(0, 0)
    for s in range(10):
        if s + 1 < 10:
            if vm_after:
                a(f"s_waitcnt vmcnt({vm_after(s+1)})")
            reads(s + 1, (s + 1) & 1)
            a("s_waitcnt lgkmcnt(6)")
        else:
            a("s_waitcnt lgkmcnt(0)")
        ex = list(extra(s)) if extra else []
        n = len(ex)
        k = 0
        for ct in range(3):
            for rt in range(2):
                d = K_ACC + (rt * 3 + ct) * 16
                mfma32(a, d, K_A + (s & 1) * 12 + ct * 4, K_X + rt * 40 + s * 4, "0" if (s == 0 and zero) else None)
                k += 1
                for x in ex[((k - 1) * n) // 6:(k * n) // 6]:
                    a(x)


def reduce4(a, pfx, ACC, RES, TMP, vL16, vT, s_w, s_base, base0, stride, pre_barrier=None, post_reads=None):
    for g in range(4):
        a(f"s_cmp_eq_u32 s{s_w}, {g}")
        a(f"s_cbranch_scc1 {pfx}_rw{g}")
        a(f"s_sub_u32 s90, {g+3}, s{s_w}")
        a("s_and_b32 s90, s90, 3")
        a("s_mul_i32 s90, s90, 6144")
        a(f"s_add_u32 s90, s90, s{s_base}")
        a(f"v_add_u32 v{vT}, s90, v{vL16}")
        for t in range(6):
            a(f"ds_write_b128 v{vT}, {vr(ACC+t*16+g*4,4)} offset:{t*1024}")
        a.label(f"{pfx}_rw{g}")
    if pre_barrier:
        pre_barrier()
    for jj in range(3):
        a(f"s_add_u32 s90, s{s_w}, {jj+1}")
        a("s_and_b32 s90, s90, 3")
        a(f"s_mul_i32 s90, s90, {stride}")
        a(f"s_add_u32 s90, s90, {base0 + (2-jj)*6144}")
        a(f"v_add_u32 v{vT+1+jj}, s90, v{vL16}")
    for g in range(4):
        a(f"s_cmp_lg_u32 s{s_w}, {g}")
        a(f"s_cbranch_scc1 {pfx}_ro{g}")
        for t in range(6):
            for e in range(4):
                a(f"v_mov_b32 v{RES+t*4+e}, v{ACC+t*16+g*4+e}")
        a.label(f"{pfx}_ro{g}")
    a("s_waitcnt lgkmcnt(0)")
    a("s_barrier")
    for jj in range(3):
        for t in range(6):
            a(f"ds_read_b128 {vr(TMP+(jj*6+t)*4,4)}, v{vT+1+jj} offset:{t*1024}")
    n_extra = post_reads() if post_reads else 0
    for jj in range(3):
        a(f"s_waitcnt lgkmcnt({min(15, (2-jj)*6 + n_extra)})")
        for e in range(0, 24, 2):
            a(f"v_pk_add_f32 {vr(RES+e,2)}, {vr(RES+e,2)}, {vr(TMP+jj*24+e,2)}")


class TypeK:
    def __init__(self, a, KS, RD, RB, ACC, AF, BF, vTr, tr2, vWo, SW, s_g, gstep, s_ring, vB, SB, s_b0, s_b1, bmods=""):
        self.__dict__.update(locals())

    def dma(self, s):
        out = []
        for ct in range(3):
            out.append([f"s_add_u32 m0, s{self.s_ring}, {((s % self.RD)*3+ct)*1024}",
                        f"s_add_u32 s91, s{self.s_g}, {s*self.gstep + ct*64}",
                        f"buffer_load_dwordx4 v{self.vWo}, s[{self.SW}:{self.SW+3}], s91 offen lds"])
        return out

    def bl(self, s):
        out = []
        for rt in range(2):
            sb = self.s_b0 if rt == 0 else self.s_b1
            g = []
            if s % 4 == 0 and s:
                g.append(f"s_add_u32 s{sb}, s{sb}, 4096")
            g.append(f"buffer_load_dwordx4 {vr(self.BF+(s%self.RB)*8+rt*4,4)}, v{self.vB}, s[{self.SB}:{self.SB+3}], s{sb} offen offset:{(s%4)*1024}{self.bmods}")
            out.append(g)
        return out

    def emit(self, groups):
        for g in groups:
            for x in g:
                self.a(x)

    def reads(self, s):
        out = []
        for ct in range(3):
            o = ((s % self.RD) * 3 + ct) * 1024
            r = self.AF + (s & 1) * 12 + ct * 4
            out.append(f"ds_read_b64_tr_b16 {vr(r,2)}, v{self.vTr} offset:{o}")
            out.append(f"ds_read_b64_tr_b16 {vr(r+2,2)}, v{self.vTr} offset:{o+self.tr2}")
        return out

    def main(self, order):
        a, KS, RD, RB = self.a, self.KS, self.RD, self.RB
        order = list(order)

        def wait_for(s):
            last = max(i for i, o in enumerate(order) if o in (("d", s), ("b", s)))
            a(f"s_waitcnt vmcnt({min(63, len(order) - 1 - last)})")
        wait_for(0)
        for x in self.reads(0):
            a(x)
        for s in range(KS):
            if s + 1 < KS:
                wait_for(s + 1)
                for x in self.reads(s + 1):
                    a(x)
                a("s_waitcnt lgkmcnt(6)")
            else:
                a("s_waitcnt lgkmcnt(0)")
            dm = self.dma(s + RD) if s + RD < KS else []
            k = 0
            for ct in range(3):
                for rt in range(2):
                    mfma32(a, self.ACC + (rt * 3 + ct) * 16, self.AF + (s & 1) * 12 + ct * 4,
                           self.BF + (s % RB) * 8 + rt * 4, "0" if s == 0 else None)
                    if k % 2 == 0 and dm:
                        self.emit([dm.pop(0)])
                        order.append(("d", s + RD))
                    k += 1
            if s + RB < KS:
                self.emit(self.bl(s + RB))
                order += [("b", s + RB)] * 2


def lane_setup(a, T, vLane, vN, vH, s_w):
    a(f"v_and_b32 v{vLane}, 63, v0")
    a(f"v_lshrrev_b32 v{T}, 6, v0")
    a(f"v_readfirstlane_b32 s{s_w}, v{T}")
    a(f"v_and_b32 v{vN}, 31, v0")
    a(f"v_bfe_u32 v{vH}, v0, 5, 1")


def tr_base(a, vTr, T, vLane, vH, hshift):
    a(f"v_lshlrev_b32 v{vTr}, {hshift}, v{vH}")
    a(f"v_bfe_u32 v{T}, v{vLane}, 2, 2")
    a(f"v_lshl_add_u32 v{vTr}, v{T}, 6, v{vTr}")
    a(f"v_bfe_u32 v{T}, v{vLane}, 4, 1")
    a(f"v_lshl_add_u32 v{vTr}, v{T}, 5, v{vTr}")
    a(f"v_and_b32 v{T}, 3, v{vLane}")
    a(f"v_lshl_add_u32 v{vTr}, v{T}, 3, v{vTr}")


def gen_qkv():
    a = Asm()
    a.label("qkv_kernel")
    ST, MX = 0, 1024
    XI, SL = 8192, 21504
    WR = XI + 4 * SL
    s_w, s_rb, s_cb, s_tg = 32, 33, 34, 35
    SX, SW, SWS = 16, 20, 28
    vLane, vN, vH = 1, 2, 3
    vXg, vXr, vTr, vWo = 4, 5, 7, 8
    AC, AF, BF, ONE, T = 16, 64, 72, 88, 92
    a("s_cmp_ge_u32 s2, 256")
    a("s_cbranch_scc1 qkv_end")
    stamp_begin(a, "qkv")
    a("s_load_dwordx4 s[4:7], s[0:1], 0")
    a("s_load_dwordx4 s[8:11], s[0:1], 16")
    a("s_load_dwordx2 s[12:13], s[0:1], 88")
    a("s_load_dwordx4 s[56:59], s[0:1], 48")
    lane_setup(a, T, vLane, vN, vH, s_w)
    a("s_and_b32 s3, s2, 7")
    a("s_lshl_b32 s3, s3, 2")
    a("s_bfe_u32 s36, s2, 0x20003")
    a(f"s_add_u32 s{s_rb}, s3, s36")
    a(f"s_lshr_b32 s{s_cb}, s2, 5")
    a(f"v_mul_u32_u24 v{T}, 49, v{vLane}")
    a(f"v_lshrrev_b32 v{T}, 10, v{T}")
    a(f"v_mul_u32_u24 v{T+1}, 21, v{T}")
    a(f"v_sub_u32 v{T+1}, v{vLane}, v{T+1}")
    a(f"v_mul_u32_u24 v{vXg}, 1280, v{T}")
    a(f"v_lshl_add_u32 v{vXg}, v{T+1}, 4, v{vXg}")
    a(f"s_mul_i32 s37, s{s_w}, {SL}")
    a(f"s_add_u32 s37, s37, {XI}")
    a(f"s_mul_i32 s39, s{s_rb}, {64*1280}")
    a(f"s_mul_i32 s40, s{s_w}, 320")
    a("s_add_u32 s39, s39, s40")
    a("s_mov_b32 s52, -1")
    a("s_mov_b32 s53, 0x7fffffff")
    a("s_mov_b32 s41, 21")
    a("s_waitcnt lgkmcnt(0)")
    srd(a, SX, 4, 2621440)
    a("s_mov_b64 exec, s[52:53]")
    a.label("qkv_xl")
    a("s_mov_b32 m0, s37")
    a("s_add_u32 s37, s37, 1008")
    a("s_sub_u32 s41, s41, 1")
    a(f"buffer_load_dwordx4 v{vXg}, s[{SX}:{SX+3}], s39 offen lds")
    a("s_add_u32 s39, s39, 3840")
    a("s_cmp_lg_u32 s41, 0")
    a("s_cbranch_scc1 qkv_xl")
    a("s_mov_b64 exec, 0x1fffff")
    a("s_mov_b32 m0, s37")
    a("s_nop 0")
    a(f"buffer_load_dwordx4 v{vXg}, s[{SX}:{SX+3}], s39 offen lds")
    a("s_mov_b64 exec, -1")
    srd(a, SWS, 12, WS_END)
    a(f"v_mul_u32_u24 v{vXr}, 336, v{vN}")
    a(f"v_lshl_add_u32 v{vXr}, v{vH}, 4, v{vXr}")
    a(f"v_add_u32 v{vXr}, {XI}, v{vXr}")
    a(f"s_cmp_eq_u32 s{s_w}, 3")
    a("s_cbranch_scc1 qkv_w3")
    a(f"s_mul_i32 s{s_tg}, s{s_cb}, 3")
    a(f"s_add_u32 s{s_tg}, s{s_tg}, s{s_w}")
    a(f"v_lshrrev_b32 v{T}, 2, v{vLane}")
    a(f"v_and_b32 v{T+1}, 3, v{vLane}")
    a(f"v_lshlrev_b32 v{T+1}, 4, v{T+1}")
    a(f"s_cmp_eq_u32 s{s_tg}, 21")
    a(f"s_cselect_b32 s{SW}, s10, s8")
    a(f"s_cselect_b32 s{SW+1}, s11, s9")
    a(f"s_cmp_lt_u32 s{s_tg}, 22")
    a(f"s_cselect_b32 s{SW+2}, 25600, 0")
    a(f"s_lshl_b32 s45, s{s_tg}, 6")
    a(f"s_cmp_lt_u32 s{s_tg}, 20")
    a(f"s_cselect_b32 s{SW}, s6, s{SW}")
    a(f"s_cselect_b32 s{SW+1}, s7, s{SW+1}")
    a(f"s_cselect_b32 s{SW+2}, 819200, s{SW+2}")
    a(f"s_mov_b32 s{SW+3}, 0x00020000")
    a("s_cselect_b32 s42, s45, 0")
    a("s_movk_i32 s38, 1280")
    a("s_cselect_b32 s38, s38, 40")
    a(f"s_and_b32 s{SW+1}, s{SW+1}, 0xffff")
    a(f"v_mad_u32_u24 v{vWo}, v{T}, s38, v{T+1}")
    a("s_lshl_b32 s43, s38, 4")
    a(f"s_mul_i32 s44, s{s_w}, 20480")
    a(f"s_add_u32 s44, s44, {WR}")
    a("s_mov_b32 s46, s44")
    a("s_mov_b32 s41, 20")
    a.label("qkv_wl")
    a("s_mov_b32 m0, s46")
    a("s_add_u32 s46, s46, 1024")
    a("s_sub_u32 s41, s41, 1")
    a(f"buffer_load_dwordx4 v{vWo}, s[{SW}:{SW+3}], s42 offen lds")
    a("s_add_u32 s42, s42, s43")
    a("s_cmp_lg_u32 s41, 0")
    a("s_cbranch_scc1 qkv_wl")
    tr_base(a, vTr, T, vLane, vH, 9)
    a(f"v_add_u32 v{vTr}, s44, v{vTr}")
    for e in range(4):
        a(f"v_mov_b32 v{ONE+e}, 0x3f803f80")
    for e in range(48):
        a(f"v_mov_b32 v{AC+e}, 0")
    a("s_waitcnt vmcnt(20)")
    a("s_barrier")
    stamp(a, "qkv")

    def rd(s, nxt):
        b = s & 1
        xa = vXr + 1 if nxt else vXr
        ta = vTr + 2 if nxt else vTr
        p = 0 if nxt else s
        a(f"ds_read_b64_tr_b16 {vr(AF+4*b,2)}, v{ta} offset:{p*1024}")
        a(f"ds_read_b64_tr_b16 {vr(AF+4*b+2,2)}, v{ta} offset:{p*1024+256}")
        a(f"ds_read_b128 {vr(BF+8*b,4)}, v{xa} offset:{p*32}")
        a(f"ds_read_b128 {vr(BF+8*b+4,4)}, v{xa} offset:{p*32+10752}")
    a("s_waitcnt vmcnt(19)")
    rd(0, False)
    a("s_mov_b32 s41, 4")
    a("s_mov_b32 s46, s44")
    a.label("qkv_loop")
    a(f"v_add_u32 v{vXr+1}, {SL}, v{vXr}")
    a("s_sub_u32 s47, s46, s44")
    a("s_xor_b32 s47, s47, 10240")
    a("s_sub_u32 s48, s44, s46")
    a("s_add_u32 s48, s48, s47")
    a(f"v_add_u32 v{vTr+2}, s48, v{vTr}")
    for sx in range(10):
        a("s_waitcnt vmcnt(18)")
        rd(sx + 1, sx == 9)
        a("s_waitcnt lgkmcnt(4)")
        a(f"s_add_u32 m0, s46, {sx*1024}")
        b = sx & 1
        mfma32(a, AC, AF + 4 * b, BF + 8 * b)
        a(f"buffer_load_dwordx4 v{vWo}, s[{SW}:{SW+3}], s42 offen lds")
        a("s_add_u32 s42, s42, s43")
        mfma32(a, AC + 16, AF + 4 * b, BF + 8 * b + 4)
        mfma32(a, AC + 32, AF + 4 * b, ONE)
    a(f"v_mov_b32 v{vXr}, v{vXr+1}")
    a(f"v_mov_b32 v{vTr}, v{vTr+2}")
    a("s_add_u32 s46, s44, s47")
    a("s_sub_u32 s41, s41, 1")
    a("s_cmp_lg_u32 s41, 0")
    a("s_cbranch_scc1 qkv_loop")
    stamp(a, "qkv")
    a("s_waitcnt lgkmcnt(0)")
    a("s_barrier")
    a(f"s_cmp_ge_u32 s{s_tg}, 22")
    a("s_cbranch_scc1 qkv_end")
    a(f"v_lshlrev_b32 v{T}, 3, v{vN}")
    a(f"ds_read_b64 {vr(T+2,2)}, v{T} offset:{ST}")
    a(f"ds_read_b64 {vr(T+4,2)}, v{T} offset:{ST+256}")
    a(f"s_mov_b32 s45, {hx(f2u(QSCALE))}")
    a(f"s_cmp_lt_u32 s{s_tg}, 20")
    a("s_cselect_b32 s45, s45, 1.0")
    a("s_waitcnt lgkmcnt(0)")
    for rt in range(2):
        a(f"v_mul_f32 v{T+3+2*rt}, s45, v{T+3+2*rt}")
    for rt in range(2):
        for e in range(16):
            r = AC + 16 * rt + e
            a(f"v_fma_f32 v{r}, -v{T+2+2*rt}, v{AC+32+e}, v{r}")
            a(f"v_mul_f32 v{r}, v{r}, v{T+3+2*rt}")
    stamp(a, "qkv")
    vC0, vHead, vD0, vOff, vA = T + 6, T + 7, T + 8, T + 9, T + 10

    def frag_off():
        a(f"v_lshrrev_b32 v{vA}, 3, v{vD0}")
        a(f"v_lshlrev_b32 v{vA}, 9, v{vA}")
        a(f"v_lshl_add_u32 v{vA}, v{vN}, 4, v{vA}")
        a(f"v_and_b32 v{vA+1}, 4, v{vD0}")
        a(f"v_lshl_add_u32 v{vA}, v{vA+1}, 1, v{vA}")
        a(f"v_lshlrev_b32 v{vA+1}, 3, v{vN}")
        a(f"v_add_u32 v{vA+1}, 1024, v{vA+1}")
        a(f"v_cmp_gt_u32 vcc, 16, v{vD0}")
        a(f"v_cndmask_b32 v{vA}, v{vA+1}, v{vA}, vcc")
        a(f"v_add_u32 v{vOff}, v{vOff}, v{vA}")
    a(f"s_cmp_ge_u32 s{s_tg}, 20")
    a("s_cbranch_scc1 qkv_kv")
    a("s_mov_b32 s46, 3277")
    a(f"s_lshl_b32 s38, s{s_tg}, 5")
    a(f"s_mul_i32 s48, s{s_rb}, {2*32*1280}")
    a(f"s_add_u32 s48, s48, {QF}")
    a(f"s_add_u32 s49, s48, {32*1280}")
    for g in range(4):
        a(f"v_lshlrev_b32 v{vC0}, 2, v{vH}")
        a(f"v_add_u32 v{vC0}, s38, v{vC0}")
        if g:
            a(f"v_add_u32 v{vC0}, {8*g}, v{vC0}")
        a(f"v_mul_u32_u24 v{vHead}, s46, v{vC0}")
        a(f"v_lshrrev_b32 v{vHead}, 16, v{vHead}")
        a(f"v_mul_u32_u24 v{vD0}, 20, v{vHead}")
        a(f"v_sub_u32 v{vD0}, v{vC0}, v{vD0}")
        a(f"v_mul_u32_u24 v{vOff}, 1280, v{vHead}")
        frag_off()
        for rt in range(2):
            r = AC + 16 * rt + 4 * g
            a(f"v_cvt_pk_bf16_f32 v{r}, v{r}, v{r+1}")
            a(f"v_cvt_pk_bf16_f32 v{r+1}, v{r+2}, v{r+3}")
            a(f"buffer_store_dwordx2 {vr(r,2)}, v{vOff}, s[{SWS}:{SWS+3}], s{48+rt} offen")
    a("s_branch qkv_fin")
    a.label("qkv_kv")
    a(f"v_cmp_eq_u32 s[54:55], 0, v{vH}")
    for rt in range(2):
        q = T + 12 + rt
        r = AC + 16 * rt
        a(f"v_mul_f32 v{q}, v{r+8}, v{r+8}")
        for e in range(9, 12):
            a(f"v_fmac_f32 v{q}, v{r+e}, v{r+e}")
        a(f"v_cndmask_b32 v{q}, 0, v{q}, s[54:55]")
        for e in range(8):
            a(f"v_fmac_f32 v{q}, v{r+e}, v{r+e}")
        a(f"v_mov_b32 v{q+2}, v{q}")
        a(f"v_permlane32_swap_b32 v{q}, v{q+2}")
        a(f"v_add_f32 v{q}, v{q}, v{q+2}")
        for g in range(3):
            a(f"v_cvt_pk_bf16_f32 v{r+4*g}, v{r+4*g}, v{r+4*g+1}")
            a(f"v_cvt_pk_bf16_f32 v{r+4*g+1}, v{r+4*g+2}, v{r+4*g+3}")
    a(f"v_max_u32 v{T+12}, v{T+12}, v{T+13}")
    a(f"v_mov_b32 v{T+13}, 0")
    a(f"ds_max_u32 v{T+13}, v{T+12} offset:{MX}")
    a(f"s_cmp_eq_u32 s{s_tg}, 21")
    a("s_cbranch_scc1 qkv_v")
    a(f"s_mul_i32 s48, s{s_rb}, {2*KVS}")
    a(f"s_add_u32 s48, s48, {KF}")
    a(f"s_add_u32 s49, s48, {KVS}")
    for g in range(3):
        a(f"v_lshlrev_b32 v{vD0}, 2, v{vH}")
        if g:
            a(f"v_add_u32 v{vD0}, {8*g}, v{vD0}")
        a(f"v_mov_b32 v{vOff}, 0")
        frag_off()
        if g == 2:
            a("s_mov_b64 exec, 0xffffffff")
        for rt in range(2):
            a(f"buffer_store_dwordx2 {vr(AC+16*rt+4*g,2)}, v{vOff}, s[{SWS}:{SWS+3}], s{48+rt} offen")
    a("s_mov_b64 exec, -1")
    a("s_branch qkv_kn")
    a.label("qkv_v")
    a(f"s_mul_i32 s48, s{s_rb}, {2*KVS}")
    a(f"s_add_u32 s48, s48, {VF}")
    a(f"s_add_u32 s49, s48, {KVS}")
    a(f"v_lshrrev_b32 v{vA}, 4, v{vN}")
    a(f"v_lshlrev_b32 v{vA}, 1, v{vA}")
    a(f"v_bfe_u32 v{vA+1}, v{vN}, 2, 1")
    a(f"v_add_u32 v{vA}, v{vA}, v{vA+1}")
    a(f"v_mul_u32_u24 v{vA}, 21, v{vA}")
    a(f"v_lshl_add_u32 v{vA}, v{vH}, 2, v{vA}")
    a(f"v_lshlrev_b32 v{vOff}, 4, v{vA}")
    a(f"v_and_b32 v{vA}, 3, v{vN}")
    a(f"v_lshl_add_u32 v{vOff}, v{vA}, 1, v{vOff}")
    a(f"v_bfe_u32 v{vA}, v{vN}, 3, 1")
    a(f"v_lshl_add_u32 v{vOff}, v{vA}, 3, v{vOff}")
    for g in range(3):
        if g == 2:
            a("s_mov_b64 exec, 0xffffffff")
        for rt in range(2):
            r = AC + 16 * rt + 4 * g
            o = g * 128
            a(f"buffer_store_short v{r}, v{vOff}, s[{SWS}:{SWS+3}], s{48+rt} offen offset:{o}")
            a(f"buffer_store_short_d16_hi v{r}, v{vOff}, s[{SWS}:{SWS+3}], s{48+rt} offen offset:{o+16}")
            a(f"buffer_store_short v{r+1}, v{vOff}, s[{SWS}:{SWS+3}], s{48+rt} offen offset:{o+32}")
            a(f"buffer_store_short_d16_hi v{r+1}, v{vOff}, s[{SWS}:{SWS+3}], s{48+rt} offen offset:{o+48}")
    a("s_add_u32 s48, s48, 320")
    a(f"v_and_b32 v{vA}, 3, v{vLane}")
    a(f"v_mul_u32_u24 v{vOff}, 336, v{vA}")
    a(f"v_lshrrev_b32 v{vA}, 2, v{vLane}")
    a(f"v_mul_u32_u24 v{vA}, {KVS}, v{vA}")
    a(f"v_add_u32 v{vOff}, v{vOff}, v{vA}")
    a("s_mov_b64 exec, 0xff")
    a(f"buffer_store_dwordx4 {vr(ONE,4)}, v{vOff}, s[{SWS}:{SWS+3}], s48 offen")
    a("s_mov_b64 exec, -1")
    a.label("qkv_kn")
    a("s_waitcnt lgkmcnt(0)")
    a(f"ds_read_b32 v{T+12}, v{T+13} offset:{MX}")
    a(f"s_sub_u32 s48, s{s_tg}, 20")
    a("s_lshl_b32 s48, s48, 5")
    a(f"s_add_u32 s48, s48, s{s_rb}")
    a("s_lshl_b32 s48, s48, 2")
    a(f"s_add_u32 s48, s48, {KN}")
    a("s_waitcnt lgkmcnt(0)")
    a(f"buffer_store_dword v{T+12}, v{T+13}, s[{SWS}:{SWS+3}], s48 offen")
    a.label("qkv_fin")
    stamp_end(a, "qkv", SWS, s_w, 120)
    a("s_endpgm")
    _stamp_n["qkv"] = 1
    a.label("qkv_w3")
    X = AC
    a(f"v_mul_u32_u24 v{vTr}, 336, v{vLane}")
    a(f"v_add_u32 v{vTr}, {XI}, v{vTr}")
    a(f"v_mov_b32 v{T+8}, 0x3f803f80")
    for e in range(4):
        a(f"v_mov_b32 v{T+4+e}, 0")
    a(f"ds_write_b32 v{T+4}, v{T+4} offset:{MX}")
    a("s_waitcnt vmcnt(0) lgkmcnt(0)")
    a("s_barrier")
    stamp(a, "qkv")
    a("s_mov_b32 s41, 4")
    a.label("qkv_sl")
    for c in range(19):
        a(f"ds_read_b128 {vr(X+4*c,4)}, v{vTr} offset:{c*16}")
    a(f"ds_read_b128 {vr(T,4)}, v{vTr} offset:{19*16}")
    for c in range(20):
        a(f"s_waitcnt lgkmcnt({min(15, 19-c)})")
        for e in range(4):
            x = (X + 4 * c + e) if c < 19 else T + e
            b = T + 4 + (e & 1) * 2
            a(f"v_dot2_f32_bf16 v{b}, v{x}, v{T+8}, v{b}")
            a(f"v_dot2_f32_bf16 v{b+1}, v{x}, v{x}, v{b+1}")
    a(f"v_add_u32 v{vTr}, {SL}, v{vTr}")
    a("s_sub_u32 s41, s41, 1")
    a("s_cmp_lg_u32 s41, 0")
    a("s_cbranch_scc1 qkv_sl")
    a(f"s_mov_b32 s45, {hx(f2u(1.0/640))}")
    a(f"s_mov_b32 s46, {hx(f2u(1e-5))}")
    mu, sq, m_b, rr, t0 = T + 4, T + 5, T + 10, T + 11, T + 9
    a(f"v_pk_add_f32 {vr(mu,2)}, {vr(mu,2)}, {vr(mu+2,2)}")
    a(f"v_mul_f32 v{mu}, s45, v{mu}")
    a(f"v_mul_f32 v{sq}, s45, v{sq}")
    a(f"v_fma_f32 v{sq}, -v{mu}, v{mu}, v{sq}")
    a(f"v_max_f32 v{sq}, 0, v{sq}")
    a(f"v_cvt_pk_bf16_f32 v{m_b}, v{mu}, v{sq}")
    a(f"v_and_b32 v{t0}, 0xffff0000, v{m_b}")
    a(f"v_lshlrev_b32 v{m_b}, 16, v{m_b}")
    a(f"v_add_f32 v{t0}, s46, v{t0}")
    a(f"v_cvt_pk_bf16_f32 v{t0}, v{t0}, v{t0}")
    a(f"v_lshlrev_b32 v{t0}, 16, v{t0}")
    a(f"v_sqrt_f32 v{t0}, v{t0}")
    a(f"v_cvt_pk_bf16_f32 v{t0}, v{t0}, v{t0}")
    a(f"v_lshlrev_b32 v{t0}, 16, v{t0}")
    a(f"v_rcp_f32 v{rr}, v{t0}")
    a(f"v_lshlrev_b32 v{T}, 3, v{vLane}")
    a(f"ds_write_b64 v{T}, {vr(m_b,2)} offset:{ST}")
    a("s_waitcnt lgkmcnt(0)")
    stamp(a, "qkv")
    a("s_barrier")
    a(f"v_lshlrev_b32 v{T}, 3, v{vN}")
    a(f"ds_read_b64 {vr(T+2,2)}, v{T} offset:{ST}")
    a(f"ds_read_b64 {vr(T+4,2)}, v{T} offset:{ST+256}")
    for i in range(10):
        rt = i // 5
        a(f"s_add_u32 s41, s{s_cb}, {8*i - 40*rt}")
        a("s_mul_i32 s42, s41, 26")
        a("s_lshr_b32 s42, s42, 8")
        a(f"s_mul_i32 s43, s42, {SL - 320}")
        a("s_lshl_b32 s41, s41, 5")
        a("s_add_u32 s43, s43, s41")
        a(f"v_add_u32 v{T+6}, s43, v{vXr}")
        a(f"ds_read_b128 {vr(X+4*i,4)}, v{T+6} offset:{rt*10752}")
    a("s_waitcnt lgkmcnt(10)")
    PR = X + 40
    for rt in range(2):
        a(f"v_mov_b32 v{PR+4*rt}, v{T+3+2*rt}")
        a(f"v_mov_b32 v{PR+4*rt+1}, v{T+3+2*rt}")
        a(f"v_mul_f32_e64 v{PR+4*rt+2}, -v{T+2+2*rt}, v{T+3+2*rt}")
        a(f"v_mov_b32 v{PR+4*rt+3}, v{PR+4*rt+2}")
    a("s_mov_b32 s47, 0xffff0000")
    a(f"v_lshlrev_b32 v{T}, 4, v{vLane}")
    a(f"s_mul_i32 s39, s{s_rb}, 80")
    a(f"s_add_u32 s39, s39, s{s_cb}")
    a("s_lshl_b32 s39, s39, 10")
    if XF:
        a(f"s_add_u32 s39, s39, {XF}")
    for i in range(10):
        rt = i // 5
        a(f"s_waitcnt lgkmcnt({9-i})")
        for q in range(4):
            x = X + 4 * i + q
            u = X + 48 + q * 2
            a(f"v_lshlrev_b32 v{u}, 16, v{x}")
            a(f"v_and_b32 v{u+1}, s47, v{x}")
            a(f"v_pk_fma_f32 {vr(u,2)}, {vr(u,2)}, {vr(PR+4*rt,2)}, {vr(PR+4*rt+2,2)}")
            a(f"v_cvt_pk_bf16_f32 v{x}, v{u}, v{u+1}")
        a(f"buffer_store_dwordx4 {vr(X+4*i,4)}, v{T}, s[{SWS}:{SWS+3}], s39 offen")
        a("s_add_u32 s39, s39, 8192")
    if PREFETCH:
        srd(a, 60, 56, 1966080)
        srd(a, 64, 58, 1966080)
        a(f"v_mul_u32_u24 v{T+1}, 43, v{vLane}")
        a(f"v_lshrrev_b32 v{T+1}, 9, v{T+1}")
        a(f"v_mul_u32_u24 v{T+2}, 12, v{T+1}")
        a(f"v_sub_u32 v{T+2}, v{vLane}, v{T+2}")
        a(f"v_mul_u32_u24 v{T+1}, 3072, v{T+1}")
        a(f"v_lshl_add_u32 v{T+1}, v{T+2}, 6, v{T+1}")
        a("s_lshr_b32 s44, s2, 3")
        a(f"s_mul_i32 s44, s44, {20*3072}")
        a("s_bfe_u32 s38, s2, 0x20001")
        a("s_mul_i32 s38, s38, 768")
        a("s_add_u32 s44, s44, s38")
        a("s_mov_b32 s53, 0x0fffffff")
        a("s_mov_b64 exec, s[52:53]")
        for q in range(4):
            a(f"buffer_load_dword v{T+3}, v{T+1}, s[60:63], s44 offen")
            a(f"buffer_load_dword v{T+3}, v{T+1}, s[64:67], s44 offen")
            a(f"s_add_u32 s44, s44, {5*3072}")
        a("s_mov_b64 exec, -1")
    a("s_cmp_lg_u32 s2, 255")
    a("s_cbranch_scc1 qkv_noct")
    a(f"v_lshlrev_b32 v{T+4}, 8, v{vLane}")
    a(f"v_mov_b32 v{T+5}, 0")
    a(f"s_mov_b32 s44, {CT}")
    a("s_mov_b64 exec, 0xffff")
    a(f"buffer_store_dword v{T+5}, v{T+4}, s[{SWS}:{SWS+3}], s44 offen")
    a("s_mov_b64 exec, -1")
    a.label("qkv_noct")
    stamp(a, "qkv")
    stamp_end(a, "qkv", SWS, s_w, 120)
    a.label("qkv_end")
    a("s_endpgm")
    return a.finish(), ("qkv_kernel", 256, 256, WR + 61440, 256 if STAMP else 128)


A_Q, A_O, A_S, A_P, A_K, A_V, A_M = 16, 48, 112, 144, 160, 192, 224
A_T = 228
NSET = 4
OOB = 0x80000000


def gen_attn_body(a, pfx, s_wg):
    s_w, s_rt, s_kh, s_hd = 32, 33, 34, 35
    SWS = 28
    vLane, vN, vH = 1, 2, 3
    vK1, vK2, vV = 4, 5, 6
    T = A_T
    a("s_load_dwordx2 s[12:13], s[0:1], 88")
    a("s_load_dwordx2 s[14:15], s[0:1], 32")
    lane_setup(a, T, vLane, vN, vH, s_w)
    a(f"s_and_b32 s3, s{s_wg}, 7")
    a(f"s_lshr_b32 s36, s{s_wg}, 5")
    a("s_lshl_b32 s3, s3, 3")
    a(f"s_add_u32 s{s_rt}, s3, s36")
    a(f"s_bfe_u32 s3, s{s_wg}, 0x20003")
    a(f"s_and_b32 s{s_kh}, s{s_w}, 1")
    a(f"s_lshr_b32 s36, s{s_w}, 1")
    a("s_lshl_b32 s3, s3, 3")
    a("s_lshl_b32 s36, s36, 2")
    a(f"s_add_u32 s{s_hd}, s3, s36")
    a(f"v_lshlrev_b32 v{vK1}, 4, v{vLane}")
    a(f"v_lshlrev_b32 v{vK2}, 3, v{vN}")
    a(f"v_add_u32 v{vK2}, 1024, v{vK2}")
    a(f"v_mov_b32 v{T}, {hx(OOB)}")
    a(f"v_cmp_eq_u32 vcc, 0, v{vH}")
    a(f"v_cndmask_b32 v{vK2}, v{T}, v{vK2}, vcc")
    a(f"v_mul_u32_u24 v{vV}, 21, v{vH}")
    a(f"v_add_u32 v{vV}, v{vV}, v{vN}")
    a(f"v_lshlrev_b32 v{vV}, 4, v{vV}")
    a(f"v_cmp_gt_u32 vcc, 21, v{vN}")
    a(f"v_cndmask_b32 v{vV}, v{T}, v{vV}, vcc")
    a("s_waitcnt lgkmcnt(0)")
    srd(a, SWS, 12, WS_END)
    a(f"s_add_u32 s12, s12, {KN}")
    a("s_addc_u32 s13, s13, 0")
    a("s_load_dwordx16 s[64:79], s[12:13], 0")
    a("s_load_dwordx16 s[80:95], s[12:13], 64")
    a("s_load_dwordx16 s[44:59], s[12:13], 128")
    a(f"s_lshl_b32 s36, s{s_rt}, 5")
    a(f"s_add_u32 s36, s36, s{s_hd}")
    a("s_mul_i32 s36, s36, 1280")
    a(f"s_add_u32 s36, s36, {QF}")
    for i in range(4):
        a(f"buffer_load_dwordx4 {vr(A_Q+8*i,4)}, v{vK1}, s[{SWS}:{SWS+3}], s36 offen")
        a(f"buffer_load_dwordx2 {vr(A_Q+8*i+4,2)}, v{vK2}, s[{SWS}:{SWS+3}], s36 offen")
        if i < 3:
            a("s_add_u32 s36, s36, 1280")
    s_kp, s_vp = 37, 38
    a(f"s_mul_i32 s{s_kp}, s{s_kh}, {32*KVS}")
    a(f"s_add_u32 s{s_kp}, s{s_kp}, {KF}")
    a(f"s_add_u32 s{s_vp}, s{s_kp}, 1280")

    def loadK(st):
        a(f"buffer_load_dwordx4 {vr(A_K+8*st,4)}, v{vK1}, s[{SWS}:{SWS+3}], s{s_kp} offen")
        a(f"buffer_load_dwordx2 {vr(A_K+8*st+4,2)}, v{vK2}, s[{SWS}:{SWS+3}], s{s_kp} offen")
        a(f"s_add_u32 s{s_kp}, s{s_kp}, {KVS}")

    def loadV(st):
        a(f"buffer_load_dwordx4 {vr(A_V+8*st,4)}, v{vV}, s[{SWS}:{SWS+3}], s{s_vp} offen")
        a(f"buffer_load_dwordx4 {vr(A_V+8*st+4,4)}, v{vV}, s[{SWS}:{SWS+3}], s{s_vp} offen offset:672")
        a(f"s_add_u32 s{s_vp}, s{s_vp}, {KVS}")
    for st in range(NSET - 1):
        loadK(st)
        loadV(st)
    loadK(NSET - 1)
    for i in range(4):
        a(f"v_mov_b32 v{A_Q+8*i+6}, 0")
        a(f"v_mov_b32 v{A_Q+8*i+7}, 0")
    for st in range(NSET):
        a(f"v_mov_b32 v{A_K+8*st+6}, 0")
        a(f"v_mov_b32 v{A_K+8*st+7}, 0")
    for r in range(64):
        a(f"v_mov_b32 v{A_O+r}, 0")
    for r in range(16):
        a(f"v_mov_b32 v{A_P+r}, 0")
    for r in range(8):
        a(f"v_mov_b32 v{A_V+8*(NSET-1)+r}, 0")
    for r in range(4):
        a(f"v_mov_b32 v{A_M+r}, 0")
    a("s_waitcnt lgkmcnt(0)")
    for r in range(65, 96):
        a(f"s_max_u32 s64, s64, s{r}")
    for r in range(45, 60):
        a(f"s_max_u32 s44, s44, s{r}")
    a("s_load_dwordx16 s[80:95], s[12:13], 192")
    a("s_waitcnt lgkmcnt(0)")
    for r in range(80, 96):
        a(f"s_max_u32 s44, s44, s{r}")
    a(f"s_waitcnt vmcnt({4*NSET-2})")
    for i in range(4):
        a(f"v_mov_b32 v{T+i}, 0")
    for r in range(6):
        for i in range(4):
            a(f"v_dot2_f32_bf16 v{T+i}, v{A_Q+8*i+r}, v{A_Q+8*i+r}, v{T+i}")
    for i in range(4):
        a(f"v_mov_b32 v{T+4+i}, v{T+i}")
    for i in range(4):
        a(f"v_permlane32_swap_b32 v{T+i}, v{T+4+i}")
    for i in range(4):
        a(f"v_add_f32 v{T+i}, v{T+i}, v{T+4+i}")
    a(f"v_max3_f32 v{T}, v{T}, v{T+1}, v{T+2}")
    a(f"v_max_f32 v{T}, v{T}, v{T+3}")
    a(f"v_mul_f32 v{T}, s64, v{T}")
    a(f"v_mov_b32 v{T+1}, {hx(f2u(3600.0/1.05))}")
    a(f"v_cmp_nle_f32 vcc, v{T}, v{T+1}")
    a(f"s_cmp_gt_u32 s44, {hx(f2u(2.0**80))}")
    a(f"s_cbranch_scc1 {pfx}_slow")
    a(f"s_cbranch_vccnz {pfx}_slow")

    def qk(m, sb, ks, i):
        if m == 0:
            mfma32(a, A_S + 16 * sb, A_K + 8 * ks, A_Q + 8 * i, "0")
        else:
            mfma32(a, A_S + 16 * sb, A_K + 8 * ks + 4, A_Q + 8 * i + 4)

    def pv(m, pb, vs, i):
        mfma32(a, A_O + 16 * i, A_V + 8 * vs + 4 * m, A_P + 8 * pb + 4 * m)

    a(f"s_waitcnt vmcnt({4*NSET-4})")
    qk(0, 0, 0, 0)
    qk(1, 0, 0, 0)
    stamp(a, "attn")
    a(f"s_mov_b32 s39, {32//NSET}")
    a("s_nop 10")
    a.raw(".p2align 6")
    a.label(f"{pfx}_loop")
    for kk in range(NSET):
        for i in range(4):
            cur = i & 1
            S = A_S + 16 * cur
            P = A_P + 8 * cur
            nks, ni = (kk, i + 1) if i < 3 else ((kk + 1) % NSET, 0)
            pvs, pi = (kk, i - 1) if i > 0 else ((kk - 1) % NSET, 3)
            if i in (1, 3) and not os.environ.get("NOWAIT"):
                a(f"s_waitcnt vmcnt({4*NSET-6})")
            qk(0, cur ^ 1, nks, ni)
            for e in range(0, 4):
                a(f"v_exp_f32 v{S+e}, v{S+e}")
            qk(1, cur ^ 1, nks, ni)
            if i == 1 and not os.environ.get("NOKV"):
                loadV((kk - 1) % NSET)
            if i == 3 and not os.environ.get("NOKV"):
                loadK(kk)
            for e in range(4, 8):
                a(f"v_exp_f32 v{S+e}, v{S+e}")
            pv(0, cur ^ 1, pvs, pi)
            for e in range(8, 12):
                a(f"v_exp_f32 v{S+e}, v{S+e}")
            for j in range(0, 2):
                a(f"v_cvt_pk_bf16_f32 v{P+j}, v{S+2*j}, v{S+2*j+1}")
            pv(1, cur ^ 1, pvs, pi)
            for e in range(12, 16):
                a(f"v_exp_f32 v{S+e}, v{S+e}")
            for j in range(2, 8):
                a(f"v_cvt_pk_bf16_f32 v{P+j}, v{S+2*j}, v{S+2*j+1}")
    a("s_sub_u32 s39, s39, 1")
    a("s_cmp_lg_u32 s39, 0")
    a(f"s_cbranch_scc1 {pfx}_loop")
    pv(0, 1, NSET - 1, 3)
    pv(1, 1, NSET - 1, 3)
    stamp(a, "attn")
    a(f"s_branch {pfx}_epi")

    a.label(f"{pfx}_slow")
    for r in range(4):
        a(f"v_mov_b32 v{A_M+r}, {hx(f2u(-1e30))}")
    a("s_mov_b32 s39, 32")
    a(f"s_sub_u32 s{s_kp}, s{s_kp}, {KVS*(NSET-1)}")
    a(f"s_sub_u32 s{s_vp}, s{s_vp}, {KVS*(NSET-2)}")
    a.label(f"{pfx}_sloop")
    a("s_waitcnt vmcnt(0)")
    for i in range(4):
        S, P, M = A_S, A_P, A_M + i
        qk(0, 0, 0, i)
        qk(1, 0, 0, i)
        a(f"v_max3_f32 v{T}, v{S}, v{S+1}, v{S+2}")
        for e in range(3, 15, 2):
            a(f"v_max3_f32 v{T}, v{T}, v{S+e}, v{S+e+1}")
        a(f"v_max_f32 v{T}, v{T}, v{S+15}")
        a(f"v_mov_b32 v{T+1}, v{T}")
        a(f"v_permlane32_swap_b32 v{T}, v{T+1}")
        a(f"v_max3_f32 v{T}, v{T}, v{T+1}, v{M}")
        a(f"v_sub_f32 v{T+1}, v{M}, v{T}")
        a(f"v_exp_f32 v{T+1}, v{T+1}")
        a(f"v_mov_b32 v{M}, v{T}")
        for e in range(16):
            a(f"v_sub_f32 v{S+e}, v{S+e}, v{T}")
            a(f"v_exp_f32 v{S+e}, v{S+e}")
        for j in range(8):
            a(f"v_cvt_pk_bf16_f32 v{P+j}, v{S+2*j}, v{S+2*j+1}")
        for e in range(16):
            a(f"v_mul_f32 v{A_O+16*i+e}, v{A_O+16*i+e}, v{T+1}")
        pv(0, 0, 0, i)
        pv(1, 0, 0, i)
    loadK(0)
    loadV(0)
    a("s_sub_u32 s39, s39, 1")
    a("s_cmp_lg_u32 s39, 0")
    a(f"s_cbranch_scc1 {pfx}_sloop")

    a.label(f"{pfx}_epi")
    a("s_waitcnt vmcnt(0)")
    if PREFETCH:
        srd(a, 16, 14, 819200)
        a(f"s_lshr_b32 s40, s{s_wg}, 3")
        a("s_lshl_b32 s40, s40, 2")
        a(f"s_add_u32 s40, s40, s{s_w}")
        a("s_mul_i32 s40, s40, 6400")
        a(f"v_lshlrev_b32 v{T+14}, 6, v{vLane}")
        a(f"buffer_load_dword v{T+15}, v{T+14}, s[16:19], s40 offen")
        a("s_add_u32 s40, s40, 4096")
        a(f"buffer_load_dword v{T+15}, v{T+14}, s[16:19], s40 offen")
    vW, vR = T, T + 1
    a(f"s_mul_i32 s40, s{s_w}, 6656")
    a(f"s_xor_b32 s41, s{s_w}, 1")
    a("s_mul_i32 s41, s41, 6656")
    a(f"v_add_u32 v{vW}, s40, v{vK1}")
    a(f"v_add_u32 v{vR}, s41, v{vK1}")
    a(f"v_lshlrev_b32 v{T+2}, 2, v{vLane}")
    a(f"v_add_u32 v{T+3}, s41, v{T+2}")
    a(f"v_add_u32 v{T+2}, s40, v{T+2}")
    a(f"s_cmp_eq_u32 s{s_kh}, 0")
    a(f"s_cbranch_scc1 {pfx}_e0")
    for t in range(2):
        for q in range(3):
            a(f"ds_write_b128 v{vW}, {vr(A_O+16*t+4*q,4)} offset:{(t*3+q)*1024}")
        a(f"ds_write_b32 v{T+2}, v{A_M+t} offset:{6144+t*256}")
    a("s_waitcnt lgkmcnt(0)")
    for t in range(2):
        for e in range(12):
            a(f"v_mov_b32 v{A_O+16*t+e}, v{A_O+16*(t+2)+e}")
        a(f"v_mov_b32 v{A_M+t}, v{A_M+t+2}")
    a(f"s_add_u32 s{s_hd}, s{s_hd}, 2")
    a(f"s_branch {pfx}_e1")
    a.label(f"{pfx}_e0")
    for t in range(2):
        for q in range(3):
            a(f"ds_write_b128 v{vW}, {vr(A_O+16*(t+2)+4*q,4)} offset:{(t*3+q)*1024}")
        a(f"ds_write_b32 v{T+2}, v{A_M+t+2} offset:{6144+t*256}")
    a("s_waitcnt lgkmcnt(0)")
    a.label(f"{pfx}_e1")
    a("s_barrier")
    for t in range(2):
        for q in range(3):
            a(f"ds_read_b128 {vr(A_S+16*t+4*q,4)}, v{vR} offset:{(t*3+q)*1024}")
        a(f"ds_read_b32 v{A_M+2+t}, v{T+3} offset:{6144+t*256}")
    a("s_waitcnt lgkmcnt(0)")
    a(f"s_mul_i32 s40, s{s_rt}, {40*1024}")
    a(f"s_add_u32 s40, s40, {OF}")
    a(f"v_mov_b32 v{T+12}, {hx(OOB)}")
    a(f"v_cmp_eq_u32 s[42:43], 0, v{vH}")
    for t in range(2):
        O, Pz, Ma, Mp = A_O + 16 * t, A_S + 16 * t, A_M + t, A_M + 2 + t
        a(f"v_max_f32 v{T+4}, v{Ma}, v{Mp}")
        a(f"v_sub_f32 v{T+5}, v{Ma}, v{T+4}")
        a(f"v_sub_f32 v{T+6}, v{Mp}, v{T+4}")
        a(f"v_exp_f32 v{T+5}, v{T+5}")
        a(f"v_exp_f32 v{T+6}, v{T+6}")
        for e in range(12):
            a(f"v_mul_f32 v{O+e}, v{O+e}, v{T+5}")
            a(f"v_fmac_f32 v{O+e}, v{Pz+e}, v{T+6}")
        a(f"v_mov_b32 v{T+7}, v{O+8}")
        a(f"v_mov_b32 v{T+8}, v{O+8}")
        a(f"v_permlane32_swap_b32 v{T+7}, v{T+8}")
        a(f"v_rcp_f32 v{T+8}, v{T+8}")
        for e in range(12):
            a(f"v_mul_f32 v{O+e}, v{O+e}, v{T+8}")
        for q in range(3):
            a(f"v_cvt_pk_bf16_f32 v{O+4*q}, v{O+4*q}, v{O+4*q+1}")
            a(f"v_cvt_pk_bf16_f32 v{O+4*q+1}, v{O+4*q+2}, v{O+4*q+3}")
        a(f"s_add_u32 s41, s{s_hd}, {t}")
        a("s_mul_i32 s41, s41, 20")
        for q in range(3):
            k, off = T + 9, T + 10
            a(f"v_lshlrev_b32 v{k}, 2, v{vH}")
            a(f"v_add_u32 v{k}, s41, v{k}")
            if q:
                a(f"v_add_u32 v{k}, {8*q}, v{k}")
            a(f"v_lshrrev_b32 v{off}, 3, v{k}")
            a(f"v_lshlrev_b32 v{off}, 9, v{off}")
            a(f"v_lshl_add_u32 v{off}, v{vN}, 4, v{off}")
            a(f"v_and_b32 v{k}, 4, v{k}")
            a(f"v_lshl_add_u32 v{off}, v{k}, 1, v{off}")
            if q == 2:
                a(f"v_cndmask_b32 v{off}, v{T+12}, v{off}, s[42:43]")
            a(f"buffer_store_dwordx2 {vr(O+4*q,2)}, v{off}, s[{SWS}:{SWS+3}], s40 offen")


def gen_attn():
    a = Asm()
    a.label("attn_kernel")
    a("s_cmp_ge_u32 s2, 256")
    a("s_cbranch_scc1 attn_end")
    stamp_begin(a, "attn")
    gen_attn_body(a, "attn", 2)
    stamp_end(a, "attn", 28, 32, 250)
    a.label("attn_end")
    a("s_endpgm")
    return a.finish(), ("attn_kernel", 256, 256, 26624, 256 if STAMP else 248)


R_ACC, R_A, R_B, R_T = 16, 112, 160, 208


def typek_rolled(K, pfx):
    a, RD = K.a, K.RD
    assert K.RD == 6 and K.RB == 6 and K.KS % 6 == 0
    a("s_waitcnt vmcnt(10)")
    for x in K.reads(0):
        a(x)
    a(f"s_mov_b32 s59, {K.KS // 6}")
    a(f"s_add_u32 s{K.s_g}, s{K.s_g}, {6*K.gstep}")
    a.label(f"{pfx}_kl")
    for s in range(6):
        a(f"s_waitcnt vmcnt({min(22, 10 + 3*s)})")
        for x in K.reads(s + 1):
            a(x)
        a("s_waitcnt lgkmcnt(6)")
        k = 0
        for ct in range(3):
            for rt in range(2):
                mfma32(a, K.ACC + (rt * 3 + ct) * 16, K.AF + (s & 1) * 12 + ct * 4, K.BF + s * 8 + rt * 4)
                if k % 2 == 0:
                    c = k // 2
                    a(f"s_add_u32 m0, s{K.s_ring}, {(s*3+c)*1024}")
                    a(f"s_add_u32 s91, s{K.s_g}, {s*K.gstep + c*64}")
                    a(f"buffer_load_dwordx4 v{K.vWo}, s[{K.SW}:{K.SW+3}], s91 offen lds")
                k += 1
        for rt in range(2):
            sb = K.s_b0 if rt == 0 else K.s_b1
            a(f"s_add_u32 s91, s{sb}, {(s+6)*1024}")
            a(f"buffer_load_dwordx4 {vr(K.BF+s*8+rt*4,4)}, v{K.vB}, s[{K.SB}:{K.SB+3}], s91 offen{K.bmods}")
    a(f"s_add_u32 s{K.s_g}, s{K.s_g}, {6*K.gstep}")
    a(f"s_add_u32 s{K.s_b0}, s{K.s_b0}, 6144")
    a(f"s_add_u32 s{K.s_b1}, s{K.s_b1}, 6144")
    a("s_sub_u32 s59, s59, 1")
    a("s_cmp_lg_u32 s59, 0")
    a(f"s_cbranch_scc1 {pfx}_kl")
    a("s_waitcnt lgkmcnt(0)")


class TypeR:
    def __init__(self, a, pfx, NT, NS, vTr, vWo, vB, s_w, srd_of_tile, goff, s_bp, SWS, tr2, bmods=""):
        self.__dict__.update(locals())
        self.SLOT = 4 * NT * 1024
        self.sname = {"gu": "gateup", "dn": "down", "fi": "final"}[pfx[:2]]
        self.s_m = 60
        self.per = NT + 4

    def dma_ops(self, stage):
        slot = stage % 3
        s_g0, s_g1, gstep = self.goff
        out = []
        for t in range(self.NT):
            sr, grp, tt = self.srd_of_tile(t)
            out.append([f"s_add_u32 m0, s{self.s_m}, {slot*self.SLOT + t*1024}",
                        f"s_add_u32 s61, s{s_g0 if grp == 0 else s_g1}, {stage*gstep + tt*64}",
                        f"buffer_load_dwordx4 v{self.vWo}, s[{sr}:{sr+3}], s61 offen lds"])
        return out

    def b_ops(self, stage):
        slot = stage % 3
        bl = []
        for j in range(4):
            g = []
            if j == 0:
                g.append(f"s_add_u32 s62, s{self.s_bp}, {stage*4096}")
            g.append(f"buffer_load_dwordx4 {vr(R_B+slot*16+j*4,4)}, v{self.vB}, s[{self.SWS}:{self.SWS+3}], s62 offen offset:{j*1024}{self.bmods}")
            bl.append(g)
        return bl

    def vm_ops(self, stage):
        out, bl, res = self.dma_ops(stage), self.b_ops(stage), []
        while out or bl:
            if out:
                res.append(out.pop(0))
            if bl and len(res) > 1:
                res.append(bl.pop(0))
        return res

    def emit(self, groups):
        for g in groups:
            for x in g:
                self.a(x)

    def reads(self, stage, j):
        buf = (stage * 4 + j) & 1
        slot = stage % 3
        base = (slot & 1) * self.SLOT + j * self.NT * 1024
        va = self.vTr + (slot >> 1)
        out = []
        for t in range(self.NT):
            r = R_A + buf * 24 + t * 4
            out.append(f"ds_read_b64_tr_b16 {vr(r,2)}, v{va} offset:{base + t*1024}")
            out.append(f"ds_read_b64_tr_b16 {vr(r+2,2)}, v{va} offset:{base + t*1024 + self.tr2}")
        return out

    def mf(self, stage, j, t):
        buf = (stage * 4 + j) & 1
        first = stage == 0 and j == 0
        mfma32(self.a, R_ACC + 16 * t, R_A + buf * 24 + t * 4, R_B + (stage % 3) * 16 + j * 4, "0" if first else None)

    def setup(self):
        a = self.a
        a(f"s_mul_i32 s{self.s_m}, s{self.s_w}, {self.NT*1024}")
        a(f"v_add_u32 v{self.vTr+1}, {2*self.SLOT}, v{self.vTr}")

    def main(self, first_wait, extra_vm=None):
        a, NT, NS = self.a, self.NT, self.NS
        extra_vm = extra_vm or {}
        order = [0] * self.per + [1] * self.per
        stamp(a, self.sname)
        a(f"s_waitcnt vmcnt({first_wait})")
        a("s_barrier")
        stamp(a, self.sname)
        for x in self.reads(0, 0):
            a(x)
        for i in range(NS):
            if i in (1, 2, 4):
                stamp(a, self.sname)
            ops = self.vm_ops(i + 2) if i + 2 < NS else []
            order += [i + 2] * len(ops)
            ops = ops + extra_vm.get(i, [])
            order += [-1] * len(extra_vm.get(i, []))
            nslots = 3 * NT
            place = {}
            for k, g in enumerate(ops):
                place.setdefault((k * nslots) // len(ops), []).append(g)
            for j in range(3):
                rd = self.reads(i, j + 1)
                for t in range(NT):
                    a(f"s_waitcnt lgkmcnt({2*(NT-1)})")
                    self.mf(i, j, t)
                    a(rd[2 * t])
                    a(rd[2 * t + 1])
                    if j * NT + t in place:
                        self.emit(place[j * NT + t])
            last = i + 1 == NS
            H = NT if last else (NT + 1) // 2
            for t in range(H):
                a(f"s_waitcnt lgkmcnt({2*(NT-1-t)})")
                self.mf(i, 3, t)
            if not last:
                lastidx = max(k for k, o in enumerate(order) if o == i + 1)
                a(f"s_waitcnt vmcnt({len(order) - 1 - lastidx}) lgkmcnt(0)")
                a("s_barrier")
                rd = self.reads(i + 1, 0)
                n = NT - H
                for k, t in enumerate(range(H, NT)):
                    self.mf(i, 3, t)
                    for x in rd[(k * len(rd)) // n:((k + 1) * len(rd)) // n]:
                        a(x)


def typer_rolled(R, extra_vm=None):
    a, NT = R.a, R.NT
    assert R.NS == 10
    s_g0, s_g1, gstep = R.goff
    extra_vm = extra_vm or []
    a(f"s_waitcnt vmcnt({R.per})")
    a("s_barrier")
    stamp(a, R.sname)
    for x in R.reads(0, 0):
        a(x)
    a("s_mov_b32 s59, 3")
    a.label(f"{R.pfx}_rl")
    nx = len(extra_vm)

    def stage(i, ops, xtra, wait_n, last=False):
        ops = xtra + ops
        nslots = 3 * NT
        place = {}
        for k, g in enumerate(ops):
            place.setdefault((k * nslots) // len(ops), []).append(g)
        for j in range(3):
            rd = R.reads(i, j + 1)
            for t in range(NT):
                a(f"s_waitcnt lgkmcnt({2*(NT-1)})")
                R.mf(i + 3, j, t)
                a(rd[2 * t])
                a(rd[2 * t + 1])
                if j * NT + t in place:
                    R.emit(place[j * NT + t])
        H = NT if last else (NT + 1) // 2
        for t in range(H):
            a(f"s_waitcnt lgkmcnt({2*(NT-1-t)})")
            R.mf(i + 3, 3, t)
        if not last:
            a(f"s_waitcnt vmcnt({wait_n}) lgkmcnt(0)")
            a("s_barrier")
            rd = R.reads(i + 1, 0)
            n = NT - H
            for k, t in enumerate(range(H, NT)):
                R.mf(i + 3, 3, t)
                for x in rd[(k * len(rd)) // n:((k + 1) * len(rd)) // n]:
                    a(x)
    stage(0, R.vm_ops(2), extra_vm, R.per + nx)
    stage(1, R.vm_ops(3), [], R.per)
    stage(2, R.vm_ops(4), [], R.per)
    a(f"s_add_u32 s{s_g0}, s{s_g0}, {3*gstep}")
    if s_g1 != s_g0:
        a(f"s_add_u32 s{s_g1}, s{s_g1}, {3*gstep}")
    a(f"s_add_u32 s{R.s_bp}, s{R.s_bp}, {3*4096}")
    a("s_sub_u32 s59, s59, 1")
    a("s_cmp_lg_u32 s59, 0")
    a(f"s_cbranch_scc1 {R.pfx}_rl")
    stage(0, [], [], 0, last=True)


def gen_gateup_body(a, pfx, s_wg, mid_hook=None, smods='', extra_vm=None):
    s_w, s_rb, s_cb = 32, 33, 34
    SW1, SW3, SWS = 16, 20, 28
    vLane, vN, vH, vWo, vB, vTr = 1, 2, 3, 4, 5, 6
    T = R_T
    a("s_load_dwordx4 s[4:7], s[0:1], 48")
    a("s_load_dwordx2 s[12:13], s[0:1], 88")
    lane_setup(a, T, vLane, vN, vH, s_w)
    a(f"s_and_b32 s3, s{s_wg}, 7")
    a(f"s_lshr_b32 s35, s{s_wg}, 3")
    a("s_and_b32 s36, s3, 1")
    a("s_lshl_b32 s36, s36, 3")
    a("s_and_b32 s37, s35, 7")
    a(f"s_add_u32 s{s_rb}, s36, s37")
    a("s_lshr_b32 s36, s3, 1")
    a("s_lshl_b32 s36, s36, 2")
    a("s_lshr_b32 s37, s35, 3")
    a(f"s_add_u32 s{s_cb}, s36, s37")
    a(f"v_lshrrev_b32 v{T}, 2, v{vLane}")
    a(f"v_mul_u32_u24 v{vWo}, 3072, v{T}")
    a(f"v_and_b32 v{T}, 3, v{vLane}")
    a(f"v_lshl_add_u32 v{vWo}, v{T}, 4, v{vWo}")
    tr_base(a, vTr, T, vLane, vH, 9)
    a(f"v_lshlrev_b32 v{vB}, 4, v{vLane}")
    a(f"s_mul_i32 s40, s{s_w}, {16*3072}")
    a(f"s_mul_i32 s41, s{s_cb}, 192")
    a("s_add_u32 s40, s40, s41")
    a(f"s_lshl_b32 s42, s{s_rb}, 2")
    a(f"s_add_u32 s42, s42, s{s_w}")
    a(f"s_mul_i32 s43, s42, {40*1024}")
    if XF:
        a(f"s_add_u32 s43, s43, {XF}")
    a("s_waitcnt lgkmcnt(0)")
    srd(a, SW1, 4, 1966080)
    srd(a, SW3, 6, 1966080)
    srd(a, SWS, 12, WS_END)
    R = TypeR(a, pfx, 6, 10, vTr, vWo, vB, s_w,
              lambda t: (SW1, 0, t) if t < 3 else (SW3, 0, t - 3), (40, 40, 64 * 3072), 43, SWS, 256)
    R.setup()
    R.emit(R.vm_ops(0) + R.vm_ops(1))
    if ROLL:
        for e in range(96):
            a(f"v_mov_b32 v{R_ACC+e}, 0")
        typer_rolled(R, extra_vm)
    else:
        R.main(R.per, extra_vm)
    if mid_hook:
        mid_hook()
    stamp(a, "gateup")
    a(f"s_mov_b32 s44, {hx(f2u(-math.log2(math.e)))}")
    a(f"s_mul_i32 s45, s42, {96*1024}")
    a(f"s_mul_i32 s46, s{s_cb}, {6*1024}")
    a("s_add_u32 s45, s45, s46")
    a(f"s_add_u32 s45, s45, {HF}")
    a(f"v_mov_b32 v{T}, s44")
    a(f"v_mov_b32 v{T+1}, s44")
    a(f"v_mov_b32 v{T+2}, 1.0")
    a(f"v_mov_b32 v{T+3}, 1.0")
    for t in range(3):
        g, u = R_ACC + 16 * t, R_ACC + 16 * (t + 3)
        E = R_A
        for e in range(0, 16, 2):
            a(f"v_pk_mul_f32 {vr(E+e,2)}, {vr(g+e,2)}, {vr(T,2)}")
        for e in range(16):
            a(f"v_exp_f32 v{E+e}, v{E+e}")
        for e in range(0, 16, 2):
            a(f"v_pk_add_f32 {vr(E+e,2)}, {vr(E+e,2)}, {vr(T+2,2)}")
        for e in range(16):
            a(f"v_rcp_f32 v{E+e}, v{E+e}")
        for e in range(0, 16, 2):
            a(f"v_pk_mul_f32 {vr(g+e,2)}, {vr(g+e,2)}, {vr(u+e,2)}")
        for e in range(0, 16, 2):
            a(f"v_pk_mul_f32 {vr(g+e,2)}, {vr(g+e,2)}, {vr(E+e,2)}")
        for j in range(8):
            a(f"v_cvt_pk_bf16_f32 v{u+j}, v{g+2*j}, v{g+2*j+1}")
        for hf in range(2):
            o = (2 * t + hf) * 1024
            if o < 4096:
                a(f"buffer_store_dwordx4 {vr(u+4*hf,4)}, v{vB}, s[{SWS}:{SWS+3}], s45 offen offset:{o}{smods}")
            else:
                a(f"s_add_u32 s46, s45, {o}")
                a(f"buffer_store_dwordx4 {vr(u+4*hf,4)}, v{vB}, s[{SWS}:{SWS+3}], s46 offen{smods}")


def gen_gateup():
    a = Asm()
    a.label("gateup_kernel")
    a("s_cmp_ge_u32 s2, 256")
    a("s_cbranch_scc1 gateup_end")
    stamp_begin(a, "gateup")
    gen_gateup_body(a, "gu", 2)
    stamp_end(a, "gateup", 28, 32, 240)
    a.label("gateup_end")
    a("s_endpgm")
    return a.finish(), ("gateup_kernel", 256, 256, 73728, 256 if STAMP else 216)


D_AF, D_BF, D_RES, D_XR, D_T = 112, 136, 184, 212, 224
RING = 18432


def tile64_setup(a, s_wg, s_rb, s_cb):
    a(f"s_and_b32 s3, s{s_wg}, 7")
    a("s_lshl_b32 s3, s3, 2")
    a(f"s_bfe_u32 s36, s{s_wg}, 0x20003")
    a(f"s_add_u32 s{s_rb}, s3, s36")
    a(f"s_lshr_b32 s{s_cb}, s{s_wg}, 5")


def gen_down_setup(a, s_wg, standalone, bmods=""):
    s_w = 32
    s_rb, s_cb = 63, 64
    SW, SWS, SX = 24, 28, 76
    vLane, vN, vH, vWo, vB, vTr, vXo = 1, 2, 3, 8, 5, 9, 10
    T = D_T
    a("s_load_dwordx2 s[8:9], s[0:1], 64")
    a("s_load_dwordx2 s[14:15], s[0:1], 0")
    if standalone:
        a("s_load_dwordx2 s[12:13], s[0:1], 88")
        lane_setup(a, T, vLane, vN, vH, s_w)
        a(f"v_lshlrev_b32 v{vB}, 4, v{vLane}")
    tile64_setup(a, s_wg, s_rb, s_cb)
    a(f"v_lshrrev_b32 v{T}, 2, v{vLane}")
    a(f"v_mul_u32_u24 v{vWo}, 1280, v{T}")
    a(f"v_and_b32 v{T}, 3, v{vLane}")
    a(f"v_lshl_add_u32 v{vWo}, v{T}, 4, v{vWo}")
    tr_base(a, vTr, T, vLane, vH, 8)
    a(f"s_mul_i32 s67, s{s_w}, {RING}")
    a(f"v_add_u32 v{vTr}, s67, v{vTr}")
    a(f"v_mul_u32_u24 v{vXo}, 1280, v{vN}")
    a(f"v_lshl_add_u32 v{vXo}, v{vH}, 3, v{vXo}")
    a(f"s_mul_i32 s66, s{s_w}, {384*1280}")
    a(f"s_mul_i32 s37, s{s_cb}, 192")
    a("s_add_u32 s66, s66, s37")
    a(f"s_mul_i32 s68, s{s_rb}, {2*96*1024}")
    a(f"s_mul_i32 s36, s{s_w}, {24*1024}")
    a("s_add_u32 s68, s68, s36")
    a(f"s_add_u32 s68, s68, {HF}")
    a(f"s_add_u32 s65, s68, {96*1024}")
    a(f"s_mul_i32 s70, s{s_rb}, {64*1280}")
    a("s_add_u32 s70, s70, s37")
    a(f"s_lshl_b32 s36, s{s_w}, 4")
    a("s_add_u32 s70, s70, s36")
    a(f"s_add_u32 s71, s70, {32*1280}")
    a("s_waitcnt lgkmcnt(0)")
    srd(a, SW, 8, 1966080)
    srd(a, SX, 14, 2621440)
    if standalone:
        srd(a, SWS, 12, WS_END)
    K = TypeK(a, 24, 6, 6, R_ACC, D_AF, D_BF, vTr, 512, vWo, SW, 66, 16 * 1280, 67, vB, SWS, 68, 65, bmods)
    return K


def gen_down_issue(a, K):
    SX, vXo = 76, 10
    for rt in range(2):
        for ct in range(3):
            a(f"buffer_load_dwordx2 {vr(D_XR+(rt*3+ct)*2,2)}, v{vXo}, s[{SX}:{SX+3}], s{70+rt} offen offset:{ct*64}")
    order = [("x",)] * 6
    for s in range(6):
        K.emit(K.dma(s))
        order += [("d", s)] * 3
    return K, order


def gen_down_rest(a, K, order):
    s_w, s_rb, s_cb, SWS, vB, vLane = 32, 63, 64, 28, 5, 1
    T = D_T
    if ROLL:
        for s in range(6):
            for rt in range(2):
                sb = K.s_b0 if rt == 0 else K.s_b1
                a(f"s_add_u32 s91, s{sb}, {s*1024}")
                a(f"buffer_load_dwordx4 {vr(K.BF+s*8+rt*4,4)}, v{K.vB}, s[{K.SB}:{K.SB+3}], s91 offen{K.bmods}")
        for e in range(96):
            a(f"v_mov_b32 v{R_ACC+e}, 0")
        K.first_wait = 8
        typek_rolled(K, "dn")
    else:
        for s in range(6):
            K.emit(K.bl(s))
            order = order + [("b", s)] * 2
        K.main(order)
    stamp(a, "mffn")
    stamp(a, "down")
    a("s_setprio 2")
    reduce4(a, "dn", R_ACC, D_RES, R_ACC, vB, T, s_w, 67, 0, RING)
    a("s_mov_b32 s49, 0xffff0000")
    a(f"s_mul_i32 s45, s{s_rb}, 40")
    a(f"s_mul_i32 s46, s{s_cb}, 3")
    a("s_add_u32 s45, s45, s46")
    a("s_lshl_b32 s45, s45, 11")
    a(f"s_lshr_b32 s46, s{s_w}, 1")
    a("s_lshl_b32 s46, s46, 10")
    a("s_add_u32 s45, s45, s46")
    a(f"s_and_b32 s46, s{s_w}, 1")
    a("s_lshl_b32 s46, s46, 3")
    a("s_add_u32 s45, s45, s46")
    a(f"s_add_u32 s45, s45, {YF}")
    for ct in range(3):
        if ct == 2:
            a(f"s_cmp_eq_u32 s{s_cb}, 6")
            a("s_cbranch_scc1 dn_skip")
        for rt in range(2):
            r = D_RES + (rt * 3 + ct) * 4
            xr = D_XR + (rt * 3 + ct) * 2
            for e in range(2):
                a(f"v_lshlrev_b32 v{T}, 16, v{xr+e}")
                a(f"v_and_b32 v{T+1}, s49, v{xr+e}")
                a(f"v_pk_add_f32 {vr(r+2*e,2)}, {vr(r+2*e,2)}, {vr(T,2)}")
            a(f"v_cvt_pk_bf16_f32 v{r}, v{r}, v{r+1}")
            a(f"v_cvt_pk_bf16_f32 v{r+1}, v{r+2}, v{r+3}")
            a(f"s_add_u32 s46, s45, {(rt*20+ct)*2048}")
            a(f"buffer_store_dwordx2 {vr(r,2)}, v{vB}, s[{SWS}:{SWS+3}], s46 offen")
    a.label("dn_skip")


def gen_down():
    a = Asm()
    a.label("down_kernel")
    a("s_cmp_ge_u32 s2, 224")
    a("s_cbranch_scc1 down_end")
    stamp_begin(a, "down")
    K, order = gen_down_issue(a, gen_down_setup(a, 2, True))
    stamp(a, "down")
    gen_down_rest(a, K, order)
    stamp_end(a, "down", 28, 32, 240)
    a.label("down_end")
    a("s_endpgm")
    return a.finish(), ("down_kernel", 224, 256, 73728, 256 if STAMP else 232)


def gen_main():
    a = Asm()
    a.label("main_kernel")
    a("s_cmp_ge_u32 s2, 512")
    a("s_cbranch_scc1 main_end")
    a("s_cmp_ge_u32 s2, 256")
    a("s_cbranch_scc1 main_ffn")
    if PRIO_ATTN:
        a(f"s_setprio {PRIO_ATTN}")
    stamp_begin(a, "mattn")
    gen_attn_body(a, "ma", 2)
    stamp_end(a, "mattn", 28, 32, 250)
    a("s_endpgm")
    a.label("main_ffn")
    if PRIO_FFN:
        a(f"s_setprio {PRIO_FFN}")
    a("s_sub_u32 s69, s2, 256")
    stamp_begin(a, "mffn")
    st = {}
    K0 = gen_down_setup(a, 69, True, " sc1")
    xvm = {}
    if PREFETCH and PF0 >= 0:
        a("s_lshr_b32 s96, s69, 3")
        a("s_lshl_b32 s96, s96, 2")
        a("s_add_u32 s96, s96, s32")
        a("s_lshl_b32 s96, s96, 14")
        a(f"v_lshlrev_b32 v11, 6, v1")
        for q in range(4):
            xvm[PF0 + q] = [[f"s_add_u32 s97, s96, {q*4096}",
                             f"buffer_load_dword v12, v11, s[24:27], s97 offen"]]
        if ROLL:
            xvm = [["buffer_load_dword v12, v11, s[24:27], s96 offen", "s_add_u32 s96, s96, 2752"],
                   ["buffer_load_dword v12, v11, s[24:27], s96 offen", "s_add_u32 s96, s96, 2752"]]

    def mid():
        stamp(a, "mffn")
        a("s_barrier")
        a("s_cmp_ge_u32 s69, 224")
        a("s_cbranch_scc1 main_nodn")
        st["K"] = gen_down_issue(a, K0)
        a.label("main_nodn")
        a("s_setprio 2")
    gen_gateup_body(a, "gu", 69, mid, " sc1", xvm)
    K, order = st["K"]
    SD = 28
    a("s_setprio 0")
    a("s_lshl_b32 s92, s33, 8")
    a(f"s_add_u32 s92, s92, {CT}")
    a("s_lshr_b32 s93, s63, 1")
    a("s_lshl_b32 s93, s93, 8")
    a(f"s_add_u32 s93, s93, {CT}")
    a("s_waitcnt vmcnt(0)")
    a("s_barrier")
    stamp(a, "mffn")
    a("s_cmp_lg_u32 s32, 0")
    a("s_cbranch_scc1 main_polled")
    a(f"v_mov_b32 v{D_T}, 0")
    a(f"v_mov_b32 v{D_T+1}, 1")
    a("s_mov_b64 exec, 1")
    a(f"buffer_atomic_add v{D_T+1}, v{D_T}, s[{SD}:{SD+3}], s92 offen sc1")
    a("s_cmp_ge_u32 s69, 224")
    a("s_cbranch_scc1 main_pdone")
    a.label("main_poll")
    a(f"buffer_load_dword v{D_T+2}, v{D_T}, s[{SD}:{SD+3}], s93 offen sc1")
    a("s_waitcnt vmcnt(0)")
    a(f"v_readfirstlane_b32 s95, v{D_T+2}")
    a("s_cmp_ge_u32 s95, 16")
    a("s_cbranch_scc1 main_pdone")
    a(f"s_sleep {os.environ.get('SLEEP', '8')}")
    a("s_branch main_poll")
    a.label("main_pdone")
    a("s_mov_b64 exec, -1")
    a.label("main_polled")
    a("s_cmp_ge_u32 s69, 224")
    a("s_cbranch_scc1 main_end")
    a("s_barrier")
    stamp(a, "mffn")
    a(f"s_setprio {PRIO_FFN}")
    gen_down_rest(a, K, [("d", s) for s in range(6)])
    stamp_end(a, "mffn", 28, 32, 240, 69)
    a.label("main_end")
    a("s_endpgm")
    return a.finish(), ("main_kernel", 512, 256, 73728, 256 if STAMP else 248)


PREFETCH = int(os.environ.get("PREFETCH", "1"))
PF0 = int(os.environ.get("PF0", "6"))
CODEPF = 0
ORDER = []
ROLL = int(os.environ.get("ROLL", "1"))
PRIO_ATTN = int(os.environ.get("PRIO_ATTN", "0"))
PRIO_FFN = int(os.environ.get("PRIO_FFN", "0"))


def gen_final():
    a = Asm()
    a.label("final_kernel")
    s_w, s_rb, s_cb = 32, 33, 34
    SW, SO, SWS = 20, 24, 28
    vLane, vN, vH, vWo, vB, vTr, vXo = 1, 2, 3, 4, 5, 6, 8
    T = R_T
    YR = R_ACC + 32
    a("s_cmp_ge_u32 s2, 160")
    a("s_cbranch_scc1 final_end")
    stamp_begin(a, "final")
    a("s_load_dwordx2 s[6:7], s[0:1], 32")
    a("s_load_dwordx2 s[8:9], s[0:1], 72")
    a("s_load_dwordx2 s[12:13], s[0:1], 88")
    lane_setup(a, T, vLane, vN, vH, s_w)
    a("s_and_b32 s3, s2, 7")
    a("s_lshl_b32 s3, s3, 1")
    a("s_bfe_u32 s36, s2, 0x10003")
    a(f"s_add_u32 s{s_rb}, s3, s36")
    a(f"s_lshr_b32 s{s_cb}, s2, 4")
    a(f"v_lshlrev_b32 v{vB}, 4, v{vLane}")
    a(f"v_lshrrev_b32 v{T}, 2, v{vLane}")
    a(f"v_mul_u32_u24 v{vWo}, 1280, v{T}")
    a(f"v_and_b32 v{T}, 3, v{vLane}")
    a(f"v_lshl_add_u32 v{vWo}, v{T}, 4, v{vWo}")
    a(f"v_mul_u32_u24 v{vXo}, 1280, v{vN}")
    a(f"v_lshl_add_u32 v{vXo}, v{vH}, 4, v{vXo}")
    tr_base(a, vTr, T, vLane, vH, 9)
    a(f"s_mul_i32 s40, s{s_w}, {16*1280}")
    a(f"s_lshl_b32 s41, s{s_cb}, 7")
    a("s_add_u32 s40, s40, s41")
    a(f"s_lshl_b32 s42, s{s_rb}, 2")
    a(f"s_add_u32 s42, s42, s{s_w}")
    a(f"s_mul_i32 s43, s42, {40*1024}")
    a(f"s_add_u32 s43, s43, {OF}")
    a("s_mul_i32 s45, s42, 20")
    a(f"s_lshl_b32 s46, s{s_cb}, 1")
    a("s_add_u32 s45, s45, s46")
    a("s_lshl_b32 s45, s45, 11")
    a(f"s_add_u32 s45, s45, {YF}")
    a(f"s_mul_i32 s47, s42, {32*1280}")
    a("s_add_u32 s47, s47, s41")
    a("s_waitcnt lgkmcnt(0)")
    srd(a, SW, 6, 819200)
    srd(a, SO, 8, 2621440)
    srd(a, SWS, 12, WS_END)
    R = TypeR(a, "fi", 2, 10, vTr, vWo, vB, s_w, lambda t: (SW, 0, t), (40, 40, 64 * 1280), 43, SWS, 256)
    R.setup()
    R.emit(R.vm_ops(0) + R.vm_ops(1))
    yl = [[f"buffer_load_dwordx4 {vr(YR+4*q,4)}, v{vB}, s[{SWS}:{SWS+3}], s45 offen offset:{q*1024}"] for q in range(4)]
    R.main(R.per, {4: yl})
    stamp(a, "final")
    a("s_mov_b32 s49, 0xffff0000")
    a("s_waitcnt vmcnt(0)")
    for t in range(2):
        r = R_ACC + 16 * t
        for q in range(8):
            a(f"v_lshlrev_b32 v{T+2*(q&1)}, 16, v{YR+8*t+q}")
            a(f"v_and_b32 v{T+2*(q&1)+1}, s49, v{YR+8*t+q}")
            a(f"v_pk_add_f32 {vr(r+2*q,2)}, {vr(r+2*q,2)}, {vr(T+2*(q&1),2)}")
        for q in range(8):
            a(f"v_cvt_pk_bf16_f32 v{r+q}, v{r+2*q}, v{r+2*q+1}")
        for gp in range(2):
            b = r + 4 * gp
            a(f"v_permlane32_swap_b32 v{b}, v{b+2}")
            a(f"v_permlane32_swap_b32 v{b+1}, v{b+3}")
            a(f"buffer_store_dwordx4 {vr(b,4)}, v{vXo}, s[{SO}:{SO+3}], s47 offen offset:{t*64 + gp*32}")
    stamp_end(a, "final", SWS, s_w, 240)
    a.label("final_end")
    a("s_endpgm")
    return a.finish(), ("final_kernel", 160, 256, 24576, 256 if STAMP else 216)


def gen_empty():
    a = Asm()
    a.label("empty_kernel")
    a("s_endpgm")
    return a.finish(), ("empty_kernel", 256, 256, 65536, 256)


KERNELS = {"empty": gen_empty, "main": gen_main, "qkv": gen_qkv, "gateup": gen_gateup, "attn": gen_attn, "down": gen_down, "final": gen_final}
HEADER = open("parallel_sum__grouped_kv_mqa__glu_gated_swiglu__prompt.s.ref").read().split("; Override launch")[0] if False else ""


DEFAULT = ["qkv", "main", "final"]


def build(order):
    texts, launches = {}, []
    ORDER[:] = order
    for k in order:
        t, info = KERNELS[k]()
        texts[info[0]] = (t, info)
        launches.append(info)
    out = "; generated by dev/gen.py -- LN + MQA attention + SwiGLU block for gfx950\n"
    for name, grid, block, lds, vg in launches:
        out += f"; @launch kernel={name} grid=({grid},1,1) block=({block},1,1) lds={lds}\n"
    out += '.amdgcn_target "amdgcn-amd-amdhsa--gfx950"\n.text\n'
    for name, (t, info) in texts.items():
        out += kernel_header(name) + t
    out += "code_end:\n"
    out += '.section .rodata,"a"\n'
    for name, (t, info) in texts.items():
        out += kernel_desc(name, info[4])
    return out


if __name__ == "__main__":
    order = sys.argv[2].split(",") if len(sys.argv) > 2 else DEFAULT
    open(sys.argv[1], "w").write(build(order))
```

```python
import math
import struct
import sys

from asmlib import Asm

XF = 0x0
QF = 0x280000
KF = 0x500000
VF = KF + 1280
KVS = 2624
KN = 0x52A000
CT = 0x52C000
OF = 0x530000
HF = 0x800000
FP = 0x1000000
YF = 0x1000000
WS_END = 0x2500000
TS = 0x2400000
import os
STAMP = os.environ.get("STAMP", "")


_stamp_n = {}


def stamp(a, name, vreg=255):
    if name in STAMP.split(","):
        i = _stamp_n.get(name, 0)
        _stamp_n[name] = i + 1
        a("s_memtime s[100:101]")
        a("s_waitcnt lgkmcnt(0)")
        a(f"v_writelane_b32 v{vreg}, s100, {i}")


def stamp_begin(a, name, vreg=255):
    if name in STAMP.split(","):
        a("s_memrealtime s[98:99]")
        a("s_waitcnt lgkmcnt(0)")
        a(f"v_writelane_b32 v{vreg}, s98, 14")
    stamp(a, name, vreg)


def stamp_end(a, name, sws, s_w, vtmp, s_wg=2, vreg=255):
    if name in STAMP.split(","):
        a("s_waitcnt vmcnt(0) lgkmcnt(0)")
        stamp(a, name, vreg)
        a("s_memrealtime s[98:99]")
        a("s_waitcnt lgkmcnt(0)")
        a(f"v_writelane_b32 v{vreg}, s98, 15")
        a(f"s_lshl_b32 s94, s{s_wg}, 2")
        a(f"s_add_u32 s94, s94, s{s_w}")
        a("s_lshl_b32 s94, s94, 6")
        a(f"s_add_u32 s94, s94, {TS + STAMP.split(',').index(name) * 0x20000}")
        a(f"v_and_b32 v{vtmp}, 63, v0")
        a(f"v_lshlrev_b32 v{vtmp}, 2, v{vtmp}")
        a("s_mov_b64 s[98:99], exec")
        a("s_mov_b64 exec, 0xffff")
        a(f"buffer_store_dword v{vreg}, v{vtmp}, s[{sws}:{sws+3}], s94 offen")
        a("s_mov_b64 exec, s[98:99]")


QSCALE = (20 ** -0.5) * math.log2(math.e)


def f2u(x):
    return struct.unpack("<I", struct.pack("<f", x))[0]


def hx(x):
    return "0x%x" % x


def srd(a, d, base, size):
    a(f"s_mov_b32 s{d}, s{base}")
    a(f"s_and_b32 s{d+1}, s{base+1}, 0xffff")
    a(f"s_mov_b32 s{d+2}, {hx(size)}")
    a(f"s_mov_b32 s{d+3}, 0x00020000")


def vr(b, n=1):
    return f"v{b}" if n == 1 else f"v[{b}:{b+n-1}]"


def mfma32(a, d, x, y, c=None):
    cs = vr(d, 16) if c is None else c
    a(f"v_mfma_f32_32x32x16_bf16 {vr(d,16)}, {vr(x,4)}, {vr(y,4)}, {cs}")


def kernel_header(name):
    return f""".globl {name}
.p2align 8
.type {name},@function
"""


def kernel_desc(name, vgprs, sgprs=102):
    acc = (vgprs + 3) // 4 * 4
    return f""".p2align 6
.amdhsa_kernel {name}
  .amdhsa_next_free_vgpr {vgprs}
  .amdhsa_next_free_sgpr {sgprs}
  .amdhsa_accum_offset {acc}
  .amdhsa_group_segment_fixed_size 0
  .amdhsa_kernarg_size 96
  .amdhsa_user_sgpr_count 2
  .amdhsa_user_sgpr_kernarg_segment_ptr 1
  .amdhsa_system_sgpr_workgroup_id_x 1
.end_amdhsa_kernel
"""


K_X = 16
K_ACC = 96
K_A = 192
K_T = 216
WAVE_LDS = 30720
LDS_STG = 8192


K_R = K_A


def typek_mfma_phase(a, vtr, zero=True, vm_after=None, extra=None):
    def reads(s, buf):
        for ct in range(3):
            o = (3 * s + ct) * 1024
            r = K_A + buf * 12 + ct * 4
            a(f"ds_read_b64_tr_b16 {vr(r,2)}, v{vtr} offset:{o}")
            a(f"ds_read_b64_tr_b16 {vr(r+2,2)}, v{vtr} offset:{o+256}")
    if vm_after:
        a(f"s_waitcnt vmcnt({vm_after(0)})")
    reads(0, 0)
    for s in range(10):
        if s + 1 < 10:
            if vm_after:
                a(f"s_waitcnt vmcnt({vm_after(s+1)})")
            reads(s + 1, (s + 1) & 1)
            a("s_waitcnt lgkmcnt(6)")
        else:
            a("s_waitcnt lgkmcnt(0)")
        ex = list(extra(s)) if extra else []
        n = len(ex)
        k = 0
        for ct in range(3):
            for rt in range(2):
                d = K_ACC + (rt * 3 + ct) * 16
                mfma32(a, d, K_A + (s & 1) * 12 + ct * 4, K_X + rt * 40 + s * 4, "0" if (s == 0 and zero) else None)
                k += 1
                for x in ex[((k - 1) * n) // 6:(k * n) // 6]:
                    a(x)


def reduce4(a, pfx, ACC, RES, TMP, vL16, vT, s_w, s_base, base0, stride, pre_barrier=None, post_reads=None):
    for g in range(4):
        a(f"s_cmp_eq_u32 s{s_w}, {g}")
        a(f"s_cbranch_scc1 {pfx}_rw{g}")
        a(f"s_sub_u32 s90, {g+3}, s{s_w}")
        a("s_and_b32 s90, s90, 3")
        a("s_mul_i32 s90, s90, 6144")
        a(f"s_add_u32 s90, s90, s{s_base}")
        a(f"v_add_u32 v{vT}, s90, v{vL16}")
        for t in range(6):
            a(f"ds_write_b128 v{vT}, {vr(ACC+t*16+g*4,4)} offset:{t*1024}")
        a.label(f"{pfx}_rw{g}")
    if pre_barrier:
        pre_barrier()
    for jj in range(3):
        a(f"s_add_u32 s90, s{s_w}, {jj+1}")
        a("s_and_b32 s90, s90, 3")
        a(f"s_mul_i32 s90, s90, {stride}")
        a(f"s_add_u32 s90, s90, {base0 + (2-jj)*6144}")
        a(f"v_add_u32 v{vT+1+jj}, s90, v{vL16}")
    for g in range(4):
        a(f"s_cmp_lg_u32 s{s_w}, {g}")
        a(f"s_cbranch_scc1 {pfx}_ro{g}")
        for t in range(6):
            for e in range(4):
                a(f"v_mov_b32 v{RES+t*4+e}, v{ACC+t*16+g*4+e}")
        a.label(f"{pfx}_ro{g}")
    a("s_waitcnt lgkmcnt(0)")
    a("s_barrier")
    for jj in range(3):
        for t in range(6):
            a(f"ds_read_b128 {vr(TMP+(jj*6+t)*4,4)}, v{vT+1+jj} offset:{t*1024}")
    n_extra = post_reads() if post_reads else 0
    for jj in range(3):
        a(f"s_waitcnt lgkmcnt({min(15, (2-jj)*6 + n_extra)})")
        for e in range(0, 24, 2):
            a(f"v_pk_add_f32 {vr(RES+e,2)}, {vr(RES+e,2)}, {vr(TMP+jj*24+e,2)}")


class TypeK:
    def __init__(self, a, KS, RD, RB, ACC, AF, BF, vTr, tr2, vWo, SW, s_g, gstep, s_ring, vB, SB, s_b0, s_b1, bmods=""):
        self.__dict__.update(locals())

    def dma(self, s):
        out = []
        for ct in range(3):
            out.append([f"s_add_u32 m0, s{self.s_ring}, {((s % self.RD)*3+ct)*1024}",
                        f"s_add_u32 s91, s{self.s_g}, {s*self.gstep + ct*64}",
                        f"buffer_load_dwordx4 v{self.vWo}, s[{self.SW}:{self.SW+3}], s91 offen lds"])
        return out

    def bl(self, s):
        out = []
        for rt in range(2):
            sb = self.s_b0 if rt == 0 else self.s_b1
            g = []
            if s % 4 == 0 and s:
                g.append(f"s_add_u32 s{sb}, s{sb}, 4096")
            g.append(f"buffer_load_dwordx4 {vr(self.BF+(s%self.RB)*8+rt*4,4)}, v{self.vB}, s[{self.SB}:{self.SB+3}], s{sb} offen offset:{(s%4)*1024}{self.bmods}")
            out.append(g)
        return out

    def emit(self, groups):
        for g in groups:
            for x in g:
                self.a(x)

    def reads(self, s):
        out = []
        for ct in range(3):
            o = ((s % self.RD) * 3 + ct) * 1024
            r = self.AF + (s & 1) * 12 + ct * 4
            out.append(f"ds_read_b64_tr_b16 {vr(r,2)}, v{self.vTr} offset:{o}")
            out.append(f"ds_read_b64_tr_b16 {vr(r+2,2)}, v{self.vTr} offset:{o+self.tr2}")
        return out

    def main(self, order):
        a, KS, RD, RB = self.a, self.KS, self.RD, self.RB
        order = list(order)

        def wait_for(s):
            last = max(i for i, o in enumerate(order) if o in (("d", s), ("b", s)))
            a(f"s_waitcnt vmcnt({min(63, len(order) - 1 - last)})")
        wait_for(0)
        for x in self.reads(0):
            a(x)
        for s in range(KS):
            if s + 1 < KS:
                wait_for(s + 1)
                for x in self.reads(s + 1):
                    a(x)
                a("s_waitcnt lgkmcnt(6)")
            else:
                a("s_waitcnt lgkmcnt(0)")
            dm = self.dma(s + RD) if s + RD < KS else []
            k = 0
            for ct in range(3):
                for rt in range(2):
                    mfma32(a, self.ACC + (rt * 3 + ct) * 16, self.AF + (s & 1) * 12 + ct * 4,
                           self.BF + (s % RB) * 8 + rt * 4, "0" if s == 0 else None)
                    if k % 2 == 0 and dm:
                        self.emit([dm.pop(0)])
                        order.append(("d", s + RD))
                    k += 1
            if s + RB < KS:
                self.emit(self.bl(s + RB))
                order += [("b", s + RB)] * 2


def lane_setup(a, T, vLane, vN, vH, s_w):
    a(f"v_and_b32 v{vLane}, 63, v0")
    a(f"v_lshrrev_b32 v{T}, 6, v0")
    a(f"v_readfirstlane_b32 s{s_w}, v{T}")
    a(f"v_and_b32 v{vN}, 31, v0")
    a(f"v_bfe_u32 v{vH}, v0, 5, 1")


def tr_base(a, vTr, T, vLane, vH, hshift):
    a(f"v_lshlrev_b32 v{vTr}, {hshift}, v{vH}")
    a(f"v_bfe_u32 v{T}, v{vLane}, 2, 2")
    a(f"v_lshl_add_u32 v{vTr}, v{T}, 6, v{vTr}")
    a(f"v_bfe_u32 v{T}, v{vLane}, 4, 1")
    a(f"v_lshl_add_u32 v{vTr}, v{T}, 5, v{vTr}")
    a(f"v_and_b32 v{T}, 3, v{vLane}")
    a(f"v_lshl_add_u32 v{vTr}, v{T}, 3, v{vTr}")


def gen_qkv():
    a = Asm()
    a.label("qkv_kernel")
    ST, MX = 0, 1024
    XI, SL = 8192, 21504
    WR = XI + 4 * SL
    s_w, s_rb, s_cb, s_tg = 32, 33, 34, 35
    SX, SW, SWS = 16, 20, 28
    vLane, vN, vH = 1, 2, 3
    vXg, vXr, vTr, vWo = 4, 5, 7, 8
    AC, AF, BF, ONE, T = 16, 64, 72, 88, 92
    a("s_cmp_ge_u32 s2, 256")
    a("s_cbranch_scc1 qkv_end")
    stamp_begin(a, "qkv")
    a("s_load_dwordx4 s[4:7], s[0:1], 0")
    a("s_load_dwordx4 s[8:11], s[0:1], 16")
    a("s_load_dwordx2 s[12:13], s[0:1], 88")
    a("s_load_dwordx4 s[56:59], s[0:1], 48")
    lane_setup(a, T, vLane, vN, vH, s_w)
    a("s_and_b32 s3, s2, 7")
    a("s_lshl_b32 s3, s3, 2")
    a("s_bfe_u32 s36, s2, 0x20003")
    a(f"s_add_u32 s{s_rb}, s3, s36")
    a(f"s_lshr_b32 s{s_cb}, s2, 5")
    a(f"v_mul_u32_u24 v{T}, 49, v{vLane}")
    a(f"v_lshrrev_b32 v{T}, 10, v{T}")
    a(f"v_mul_u32_u24 v{T+1}, 21, v{T}")
    a(f"v_sub_u32 v{T+1}, v{vLane}, v{T+1}")
    a(f"v_mul_u32_u24 v{vXg}, 1280, v{T}")
    a(f"v_lshl_add_u32 v{vXg}, v{T+1}, 4, v{vXg}")
    a(f"s_mul_i32 s37, s{s_w}, {SL}")
    a(f"s_add_u32 s37, s37, {XI}")
    a(f"s_mul_i32 s39, s{s_rb}, {64*1280}")
    a(f"s_mul_i32 s40, s{s_w}, 320")
    a("s_add_u32 s39, s39, s40")
    a("s_mov_b32 s52, -1")
    a("s_mov_b32 s53, 0x7fffffff")
    a("s_mov_b32 s41, 21")
    a("s_waitcnt lgkmcnt(0)")
    stamp(a, "qkv")
    srd(a, SX, 4, 2621440)
    a("s_mov_b64 exec, s[52:53]")
    a.label("qkv_xl")
    a("s_mov_b32 m0, s37")
    a("s_add_u32 s37, s37, 1008")
    a("s_sub_u32 s41, s41, 1")
    a(f"buffer_load_dwordx4 v{vXg}, s[{SX}:{SX+3}], s39 offen lds")
    a("s_add_u32 s39, s39, 3840")
    a("s_cmp_lg_u32 s41, 0")
    a("s_cbranch_scc1 qkv_xl")
    a("s_mov_b64 exec, 0x1fffff")
    a("s_mov_b32 m0, s37")
    a("s_nop 0")
    a(f"buffer_load_dwordx4 v{vXg}, s[{SX}:{SX+3}], s39 offen lds")
    a("s_mov_b64 exec, -1")
    srd(a, SWS, 12, WS_END)
    a(f"v_mul_u32_u24 v{vXr}, 336, v{vN}")
    a(f"v_lshl_add_u32 v{vXr}, v{vH}, 4, v{vXr}")
    a(f"v_add_u32 v{vXr}, {XI}, v{vXr}")
    a(f"s_cmp_eq_u32 s{s_w}, 3")
    a("s_cbranch_scc1 qkv_w3")
    a(f"s_mul_i32 s{s_tg}, s{s_cb}, 3")
    a(f"s_add_u32 s{s_tg}, s{s_tg}, s{s_w}")
    a(f"v_lshrrev_b32 v{T}, 2, v{vLane}")
    a(f"v_and_b32 v{T+1}, 3, v{vLane}")
    a(f"v_lshlrev_b32 v{T+1}, 4, v{T+1}")
    a(f"s_cmp_eq_u32 s{s_tg}, 21")
    a(f"s_cselect_b32 s{SW}, s10, s8")
    a(f"s_cselect_b32 s{SW+1}, s11, s9")
    a(f"s_cmp_lt_u32 s{s_tg}, 22")
    a(f"s_cselect_b32 s{SW+2}, 25600, 0")
    a(f"s_lshl_b32 s45, s{s_tg}, 6")
    a(f"s_cmp_lt_u32 s{s_tg}, 20")
    a(f"s_cselect_b32 s{SW}, s6, s{SW}")
    a(f"s_cselect_b32 s{SW+1}, s7, s{SW+1}")
    a(f"s_cselect_b32 s{SW+2}, 819200, s{SW+2}")
    a(f"s_mov_b32 s{SW+3}, 0x00020000")
    a("s_cselect_b32 s42, s45, 0")
    a("s_movk_i32 s38, 1280")
    a("s_cselect_b32 s38, s38, 40")
    a(f"s_and_b32 s{SW+1}, s{SW+1}, 0xffff")
    a(f"v_mad_u32_u24 v{vWo}, v{T}, s38, v{T+1}")
    a("s_lshl_b32 s43, s38, 4")
    a(f"s_mul_i32 s44, s{s_w}, 20480")
    a(f"s_add_u32 s44, s44, {WR}")
    a("s_mov_b32 s46, s44")
    LA = int(os.environ.get("QLA", "12"))
    a(f"s_mov_b32 s41, {LA}")
    a.label("qkv_wl")
    a("s_mov_b32 m0, s46")
    a("s_add_u32 s46, s46, 1024")
    a("s_sub_u32 s41, s41, 1")
    a(f"buffer_load_dwordx4 v{vWo}, s[{SW}:{SW+3}], s42 offen lds")
    a("s_add_u32 s42, s42, s43")
    a("s_cmp_lg_u32 s41, 0")
    a("s_cbranch_scc1 qkv_wl")
    tr_base(a, vTr, T, vLane, vH, 9)
    a(f"v_add_u32 v{vTr}, s44, v{vTr}")
    for e in range(4):
        a(f"v_mov_b32 v{ONE+e}, 0x3f803f80")
    for e in range(48):
        a(f"v_mov_b32 v{AC+e}, 0")
    stamp(a, "qkv")
    a(f"s_waitcnt vmcnt({LA})")
    stamp(a, "qkv")
    a("s_barrier")
    stamp(a, "qkv")

    def rd(s, nxt):
        b = s & 1
        xa = vXr + 1 if nxt else vXr
        ta = vTr + 2 if nxt else vTr
        p = 0 if nxt else s
        a(f"ds_read_b64_tr_b16 {vr(AF+4*b,2)}, v{ta} offset:{p*1024}")
        a(f"ds_read_b64_tr_b16 {vr(AF+4*b+2,2)}, v{ta} offset:{p*1024+256}")
        a(f"ds_read_b128 {vr(BF+8*b,4)}, v{xa} offset:{p*32}")
        a(f"ds_read_b128 {vr(BF+8*b+4,4)}, v{xa} offset:{p*32+10752}")
    a(f"s_waitcnt vmcnt({LA-1})")
    rd(0, False)
    a("s_mov_b32 s41, 4")
    a("s_mov_b32 s46, s44")
    a.label("qkv_loop")
    a(f"v_add_u32 v{vXr+1}, {SL}, v{vXr}")
    a("s_sub_u32 s47, s46, s44")
    a("s_xor_b32 s47, s47, 10240")
    a("s_sub_u32 s48, s44, s46")
    a("s_add_u32 s48, s48, s47")
    a(f"v_add_u32 v{vTr+2}, s48, v{vTr}")
    a("s_add_u32 s49, s44, s47")
    for sx in range(10):
        a(f"s_waitcnt vmcnt({LA-2})")
        rd(sx + 1, sx == 9)
        p = sx + LA
        if p < 10 or p >= 20:
            a(f"s_add_u32 m0, s46, {(p % 20)*1024}")
        else:
            a(f"s_add_u32 m0, s49, {(p-10)*1024}")
        a("s_waitcnt lgkmcnt(4)")
        b = sx & 1
        mfma32(a, AC, AF + 4 * b, BF + 8 * b)
        a(f"buffer_load_dwordx4 v{vWo}, s[{SW}:{SW+3}], s42 offen lds")
        a("s_add_u32 s42, s42, s43")
        mfma32(a, AC + 16, AF + 4 * b, BF + 8 * b + 4)
        mfma32(a, AC + 32, AF + 4 * b, ONE)
    a(f"v_mov_b32 v{vXr}, v{vXr+1}")
    a(f"v_mov_b32 v{vTr}, v{vTr+2}")
    a("s_add_u32 s46, s44, s47")
    a("s_sub_u32 s41, s41, 1")
    a("s_cmp_lg_u32 s41, 0")
    a("s_cbranch_scc1 qkv_loop")
    stamp(a, "qkv")
    a("s_waitcnt lgkmcnt(0)")
    a("s_barrier")
    a(f"s_cmp_ge_u32 s{s_tg}, 22")
    a("s_cbranch_scc1 qkv_fin" if STAMP else "s_cbranch_scc1 qkv_end")
    a(f"v_lshlrev_b32 v{T}, 3, v{vN}")
    a(f"ds_read_b64 {vr(T+2,2)}, v{T} offset:{ST}")
    a(f"ds_read_b64 {vr(T+4,2)}, v{T} offset:{ST+256}")
    a(f"s_mov_b32 s45, {hx(f2u(QSCALE))}")
    a(f"s_cmp_lt_u32 s{s_tg}, 20")
    a("s_cselect_b32 s45, s45, 1.0")
    a("s_waitcnt lgkmcnt(0)")
    for rt in range(2):
        a(f"v_mul_f32 v{T+3+2*rt}, s45, v{T+3+2*rt}")
    for rt in range(2):
        for e in range(16):
            r = AC + 16 * rt + e
            a(f"v_fma_f32 v{r}, -v{T+2+2*rt}, v{AC+32+e}, v{r}")
            a(f"v_mul_f32 v{r}, v{r}, v{T+3+2*rt}")
    stamp(a, "qkv")
    vC0, vHead, vD0, vOff, vA = T + 6, T + 7, T + 8, T + 9, T + 10

    def frag_off():
        a(f"v_lshrrev_b32 v{vA}, 3, v{vD0}")
        a(f"v_lshlrev_b32 v{vA}, 9, v{vA}")
        a(f"v_lshl_add_u32 v{vA}, v{vN}, 4, v{vA}")
        a(f"v_and_b32 v{vA+1}, 4, v{vD0}")
        a(f"v_lshl_add_u32 v{vA}, v{vA+1}, 1, v{vA}")
        a(f"v_lshlrev_b32 v{vA+1}, 3, v{vN}")
        a(f"v_add_u32 v{vA+1}, 1024, v{vA+1}")
        a(f"v_cmp_gt_u32 vcc, 16, v{vD0}")
        a(f"v_cndmask_b32 v{vA}, v{vA+1}, v{vA}, vcc")
        a(f"v_add_u32 v{vOff}, v{vOff}, v{vA}")
    a(f"s_cmp_ge_u32 s{s_tg}, 20")
    a("s_cbranch_scc1 qkv_kv")
    a("s_mov_b32 s46, 3277")
    a(f"s_lshl_b32 s38, s{s_tg}, 5")
    a(f"s_mul_i32 s48, s{s_rb}, {2*32*1280}")
    a(f"s_add_u32 s48, s48, {QF}")
    a(f"s_add_u32 s49, s48, {32*1280}")
    for g in range(4):
        a(f"v_lshlrev_b32 v{vC0}, 2, v{vH}")
        a(f"v_add_u32 v{vC0}, s38, v{vC0}")
        if g:
            a(f"v_add_u32 v{vC0}, {8*g}, v{vC0}")
        a(f"v_mul_u32_u24 v{vHead}, s46, v{vC0}")
        a(f"v_lshrrev_b32 v{vHead}, 16, v{vHead}")
        a(f"v_mul_u32_u24 v{vD0}, 20, v{vHead}")
        a(f"v_sub_u32 v{vD0}, v{vC0}, v{vD0}")
        a(f"v_mul_u32_u24 v{vOff}, 1280, v{vHead}")
        frag_off()
        for rt in range(2):
            r = AC + 16 * rt + 4 * g
            a(f"v_cvt_pk_bf16_f32 v{r}, v{r}, v{r+1}")
            a(f"v_cvt_pk_bf16_f32 v{r+1}, v{r+2}, v{r+3}")
            a(f"buffer_store_dwordx2 {vr(r,2)}, v{vOff}, s[{SWS}:{SWS+3}], s{48+rt} offen")
    a("s_branch qkv_fin")
    a.label("qkv_kv")
    a(f"v_cmp_eq_u32 s[54:55], 0, v{vH}")
    for rt in range(2):
        q = T + 12 + rt
        r = AC + 16 * rt
        a(f"v_mul_f32 v{q}, v{r+8}, v{r+8}")
        for e in range(9, 12):
            a(f"v_fmac_f32 v{q}, v{r+e}, v{r+e}")
        a(f"v_cndmask_b32 v{q}, 0, v{q}, s[54:55]")
        for e in range(8):
            a(f"v_fmac_f32 v{q}, v{r+e}, v{r+e}")
        a(f"v_mov_b32 v{q+2}, v{q}")
        a(f"v_permlane32_swap_b32 v{q}, v{q+2}")
        a(f"v_add_f32 v{q}, v{q}, v{q+2}")
        for g in range(3):
            a(f"v_cvt_pk_bf16_f32 v{r+4*g}, v{r+4*g}, v{r+4*g+1}")
            a(f"v_cvt_pk_bf16_f32 v{r+4*g+1}, v{r+4*g+2}, v{r+4*g+3}")
    a(f"v_max_u32 v{T+12}, v{T+12}, v{T+13}")
    a(f"v_mov_b32 v{T+13}, 0")
    a(f"ds_max_u32 v{T+13}, v{T+12} offset:{MX}")
    a(f"s_cmp_eq_u32 s{s_tg}, 21")
    a("s_cbranch_scc1 qkv_v")
    a(f"s_mul_i32 s48, s{s_rb}, {2*KVS}")
    a(f"s_add_u32 s48, s48, {KF}")
    a(f"s_add_u32 s49, s48, {KVS}")
    for g in range(3):
        a(f"v_lshlrev_b32 v{vD0}, 2, v{vH}")
        if g:
            a(f"v_add_u32 v{vD0}, {8*g}, v{vD0}")
        a(f"v_mov_b32 v{vOff}, 0")
        frag_off()
        if g == 2:
            a("s_mov_b64 exec, 0xffffffff")
        for rt in range(2):
            a(f"buffer_store_dwordx2 {vr(AC+16*rt+4*g,2)}, v{vOff}, s[{SWS}:{SWS+3}], s{48+rt} offen")
    a("s_mov_b64 exec, -1")
    a("s_branch qkv_kn")
    a.label("qkv_v")
    a(f"s_mul_i32 s48, s{s_rb}, {2*KVS}")
    a(f"s_add_u32 s48, s48, {VF}")
    a(f"s_add_u32 s49, s48, {KVS}")
    a(f"v_lshrrev_b32 v{vA}, 4, v{vN}")
    a(f"v_lshlrev_b32 v{vA}, 1, v{vA}")
    a(f"v_bfe_u32 v{vA+1}, v{vN}, 2, 1")
    a(f"v_add_u32 v{vA}, v{vA}, v{vA+1}")
    a(f"v_mul_u32_u24 v{vA}, 21, v{vA}")
    a(f"v_lshl_add_u32 v{vA}, v{vH}, 2, v{vA}")
    a(f"v_lshlrev_b32 v{vOff}, 4, v{vA}")
    a(f"v_and_b32 v{vA}, 3, v{vN}")
    a(f"v_lshl_add_u32 v{vOff}, v{vA}, 1, v{vOff}")
    a(f"v_bfe_u32 v{vA}, v{vN}, 3, 1")
    a(f"v_lshl_add_u32 v{vOff}, v{vA}, 3, v{vOff}")
    for g in range(3):
        if g == 2:
            a("s_mov_b64 exec, 0xffffffff")
        for rt in range(2):
            r = AC + 16 * rt + 4 * g
            o = g * 128
            a(f"buffer_store_short v{r}, v{vOff}, s[{SWS}:{SWS+3}], s{48+rt} offen offset:{o}")
            a(f"buffer_store_short_d16_hi v{r}, v{vOff}, s[{SWS}:{SWS+3}], s{48+rt} offen offset:{o+16}")
            a(f"buffer_store_short v{r+1}, v{vOff}, s[{SWS}:{SWS+3}], s{48+rt} offen offset:{o+32}")
            a(f"buffer_store_short_d16_hi v{r+1}, v{vOff}, s[{SWS}:{SWS+3}], s{48+rt} offen offset:{o+48}")
    a("s_add_u32 s48, s48, 320")
    a(f"v_and_b32 v{vA}, 3, v{vLane}")
    a(f"v_mul_u32_u24 v{vOff}, 336, v{vA}")
    a(f"v_lshrrev_b32 v{vA}, 2, v{vLane}")
    a(f"v_mul_u32_u24 v{vA}, {KVS}, v{vA}")
    a(f"v_add_u32 v{vOff}, v{vOff}, v{vA}")
    a("s_mov_b64 exec, 0xff")
    a(f"buffer_store_dwordx4 {vr(ONE,4)}, v{vOff}, s[{SWS}:{SWS+3}], s48 offen")
    a("s_mov_b64 exec, -1")
    a.label("qkv_kn")
    a("s_waitcnt lgkmcnt(0)")
    a(f"ds_read_b32 v{T+12}, v{T+13} offset:{MX}")
    a(f"s_sub_u32 s48, s{s_tg}, 20")
    a("s_lshl_b32 s48, s48, 5")
    a(f"s_add_u32 s48, s48, s{s_rb}")
    a("s_lshl_b32 s48, s48, 2")
    a(f"s_add_u32 s48, s48, {KN}")
    a("s_waitcnt lgkmcnt(0)")
    a(f"buffer_store_dword v{T+12}, v{T+13}, s[{SWS}:{SWS+3}], s48 offen")
    a.label("qkv_fin")
    stamp_end(a, "qkv", SWS, s_w, 120)
    a("s_endpgm")
    _stamp_n["qkv"] = 2
    a.label("qkv_w3")
    X = AC
    a(f"v_mul_u32_u24 v{vTr}, 336, v{vLane}")
    a(f"v_add_u32 v{vTr}, {XI}, v{vTr}")
    a(f"v_mov_b32 v{T+8}, 0x3f803f80")
    for e in range(4):
        a(f"v_mov_b32 v{T+4+e}, 0")
    a(f"ds_write_b32 v{T+4}, v{T+4} offset:{MX}")
    stamp(a, "qkv")
    a("s_waitcnt vmcnt(0) lgkmcnt(0)")
    stamp(a, "qkv")
    a("s_barrier")
    stamp(a, "qkv")
    if PREFETCH:
        srd(a, 60, 56, 1966080)
        srd(a, 64, 58, 1966080)
        a(f"v_mul_u32_u24 v{T+12}, 43, v{vLane}")
        a(f"v_lshrrev_b32 v{T+12}, 9, v{T+12}")
        a(f"v_mul_u32_u24 v{T+13}, 12, v{T+12}")
        a(f"v_sub_u32 v{T+13}, v{vLane}, v{T+13}")
        a(f"v_mul_u32_u24 v{T+12}, 3072, v{T+12}")
        a(f"v_lshl_add_u32 v{T+12}, v{T+13}, 6, v{T+12}")
        a("s_lshr_b32 s44, s2, 3")
        a(f"s_mul_i32 s44, s44, {20*3072}")
        a("s_bfe_u32 s38, s2, 0x20001")
        a("s_mul_i32 s38, s38, 768")
        a("s_add_u32 s44, s44, s38")
        a("s_mov_b32 s53, 0x0fffffff")
        a("s_mov_b64 exec, s[52:53]")
        for q in range(4):
            a(f"buffer_load_dword v{T+14}, v{T+12}, s[60:63], s44 offen")
            a(f"buffer_load_dword v{T+14}, v{T+12}, s[64:67], s44 offen")
            a(f"s_add_u32 s44, s44, {5*3072}")
        a("s_mov_b64 exec, -1")
    a("s_mov_b32 s41, 4")
    a.label("qkv_sl")
    for c in range(19):
        a(f"ds_read_b128 {vr(X+4*c,4)}, v{vTr} offset:{c*16}")
    a(f"ds_read_b128 {vr(T,4)}, v{vTr} offset:{19*16}")
    for c in range(20):
        a(f"s_waitcnt lgkmcnt({min(15, 19-c)})")
        for e in range(4):
            x = (X + 4 * c + e) if c < 19 else T + e
            b = T + 4 + (e & 1) * 2
            a(f"v_dot2_f32_bf16 v{b}, v{x}, v{T+8}, v{b}")
            a(f"v_dot2_f32_bf16 v{b+1}, v{x}, v{x}, v{b+1}")
    a(f"v_add_u32 v{vTr}, {SL}, v{vTr}")
    a("s_sub_u32 s41, s41, 1")
    a("s_cmp_lg_u32 s41, 0")
    a("s_cbranch_scc1 qkv_sl")
    a(f"s_mov_b32 s45, {hx(f2u(1.0/640))}")
    a(f"s_mov_b32 s46, {hx(f2u(1e-5))}")
    mu, sq, m_b, rr, t0 = T + 4, T + 5, T + 10, T + 11, T + 9
    a(f"v_pk_add_f32 {vr(mu,2)}, {vr(mu,2)}, {vr(mu+2,2)}")
    a(f"v_mul_f32 v{mu}, s45, v{mu}")
    a(f"v_mul_f32 v{sq}, s45, v{sq}")
    a(f"v_fma_f32 v{sq}, -v{mu}, v{mu}, v{sq}")
    a(f"v_max_f32 v{sq}, 0, v{sq}")
    a(f"v_cvt_pk_bf16_f32 v{m_b}, v{mu}, v{sq}")
    a(f"v_and_b32 v{t0}, 0xffff0000, v{m_b}")
    a(f"v_lshlrev_b32 v{m_b}, 16, v{m_b}")
    a(f"v_add_f32 v{t0}, s46, v{t0}")
    a(f"v_cvt_pk_bf16_f32 v{t0}, v{t0}, v{t0}")
    a(f"v_lshlrev_b32 v{t0}, 16, v{t0}")
    a(f"v_sqrt_f32 v{t0}, v{t0}")
    a(f"v_cvt_pk_bf16_f32 v{t0}, v{t0}, v{t0}")
    a(f"v_lshlrev_b32 v{t0}, 16, v{t0}")
    a(f"v_rcp_f32 v{rr}, v{t0}")
    a(f"v_lshlrev_b32 v{T}, 3, v{vLane}")
    a(f"ds_write_b64 v{T}, {vr(m_b,2)} offset:{ST}")
    a("s_waitcnt lgkmcnt(0)")
    stamp(a, "qkv")
    a("s_barrier")
    a(f"v_lshlrev_b32 v{T}, 3, v{vN}")
    a(f"ds_read_b64 {vr(T+2,2)}, v{T} offset:{ST}")
    a(f"ds_read_b64 {vr(T+4,2)}, v{T} offset:{ST+256}")
    for i in range(10):
        rt = i // 5
        a(f"s_add_u32 s41, s{s_cb}, {8*i - 40*rt}")
        a("s_mul_i32 s42, s41, 26")
        a("s_lshr_b32 s42, s42, 8")
        a(f"s_mul_i32 s43, s42, {SL - 320}")
        a("s_lshl_b32 s41, s41, 5")
        a("s_add_u32 s43, s43, s41")
        a(f"v_add_u32 v{T+6}, s43, v{vXr}")
        a(f"ds_read_b128 {vr(X+4*i,4)}, v{T+6} offset:{rt*10752}")
    a("s_waitcnt lgkmcnt(10)")
    PR = X + 40
    for rt in range(2):
        a(f"v_mov_b32 v{PR+4*rt}, v{T+3+2*rt}")
        a(f"v_mov_b32 v{PR+4*rt+1}, v{T+3+2*rt}")
        a(f"v_mul_f32_e64 v{PR+4*rt+2}, -v{T+2+2*rt}, v{T+3+2*rt}")
        a(f"v_mov_b32 v{PR+4*rt+3}, v{PR+4*rt+2}")
    a("s_mov_b32 s47, 0xffff0000")
    a(f"v_lshlrev_b32 v{T}, 4, v{vLane}")
    a(f"s_mul_i32 s39, s{s_rb}, 80")
    a(f"s_add_u32 s39, s39, s{s_cb}")
    a("s_lshl_b32 s39, s39, 10")
    if XF:
        a(f"s_add_u32 s39, s39, {XF}")
    for i in range(10):
        rt = i // 5
        a(f"s_waitcnt lgkmcnt({9-i})")
        for q in range(4):
            x = X + 4 * i + q
            u = X + 48 + q * 2
            a(f"v_lshlrev_b32 v{u}, 16, v{x}")
            a(f"v_and_b32 v{u+1}, s47, v{x}")
            a(f"v_pk_fma_f32 {vr(u,2)}, {vr(u,2)}, {vr(PR+4*rt,2)}, {vr(PR+4*rt+2,2)}")
            a(f"v_cvt_pk_bf16_f32 v{x}, v{u}, v{u+1}")
        a(f"buffer_store_dwordx4 {vr(X+4*i,4)}, v{T}, s[{SWS}:{SWS+3}], s39 offen")
        a("s_add_u32 s39, s39, 8192")
    a("s_cmp_lg_u32 s2, 255")
    a("s_cbranch_scc1 qkv_noct")
    a(f"v_lshlrev_b32 v{T+4}, 8, v{vLane}")
    a(f"v_mov_b32 v{T+5}, 0")
    a(f"s_mov_b32 s44, {CT}")
    a("s_mov_b64 exec, 0xffff")
    a(f"buffer_store_dword v{T+5}, v{T+4}, s[{SWS}:{SWS+3}], s44 offen")
    a("s_mov_b64 exec, -1")
    a.label("qkv_noct")
    stamp(a, "qkv")
    stamp_end(a, "qkv", SWS, s_w, 120)
    a.label("qkv_end")
    a("s_endpgm")
    return a.finish(), ("qkv_kernel", 256, 256, WR + 61440, 256 if STAMP else 128)


A_Q, A_O, A_S, A_P, A_K, A_V, A_M = 16, 48, 112, 144, 160, 192, 224
A_T = 228
NSET = 4
OOB = 0x80000000


def gen_attn_body(a, pfx, s_wg):
    s_w, s_rt, s_kh, s_hd = 32, 33, 34, 35
    SWS = 28
    vLane, vN, vH = 1, 2, 3
    vK1, vK2, vV = 4, 5, 6
    T = A_T
    a("s_load_dwordx2 s[12:13], s[0:1], 88")
    a("s_load_dwordx2 s[14:15], s[0:1], 32")
    lane_setup(a, T, vLane, vN, vH, s_w)
    a(f"s_and_b32 s3, s{s_wg}, 7")
    a(f"s_lshr_b32 s36, s{s_wg}, 5")
    a("s_lshl_b32 s3, s3, 3")
    a(f"s_add_u32 s{s_rt}, s3, s36")
    a(f"s_bfe_u32 s3, s{s_wg}, 0x20003")
    a(f"s_and_b32 s{s_kh}, s{s_w}, 1")
    a(f"s_lshr_b32 s36, s{s_w}, 1")
    a("s_lshl_b32 s3, s3, 3")
    a("s_lshl_b32 s36, s36, 2")
    a(f"s_add_u32 s{s_hd}, s3, s36")
    a(f"v_lshlrev_b32 v{vK1}, 4, v{vLane}")
    a(f"v_lshlrev_b32 v{vK2}, 3, v{vN}")
    a(f"v_add_u32 v{vK2}, 1024, v{vK2}")
    a(f"v_mov_b32 v{T}, {hx(OOB)}")
    a(f"v_cmp_eq_u32 vcc, 0, v{vH}")
    a(f"v_cndmask_b32 v{vK2}, v{T}, v{vK2}, vcc")
    a(f"v_mul_u32_u24 v{vV}, 21, v{vH}")
    a(f"v_add_u32 v{vV}, v{vV}, v{vN}")
    a(f"v_lshlrev_b32 v{vV}, 4, v{vV}")
    a(f"v_cmp_gt_u32 vcc, 21, v{vN}")
    a(f"v_cndmask_b32 v{vV}, v{T}, v{vV}, vcc")
    a("s_waitcnt lgkmcnt(0)")
    srd(a, SWS, 12, WS_END)
    a(f"s_add_u32 s12, s12, {KN}")
    a("s_addc_u32 s13, s13, 0")
    a("s_load_dwordx16 s[64:79], s[12:13], 0")
    a("s_load_dwordx16 s[80:95], s[12:13], 64")
    a("s_load_dwordx16 s[44:59], s[12:13], 128")
    a(f"s_lshl_b32 s36, s{s_rt}, 5")
    a(f"s_add_u32 s36, s36, s{s_hd}")
    a("s_mul_i32 s36, s36, 1280")
    a(f"s_add_u32 s36, s36, {QF}")
    for i in range(4):
        a(f"buffer_load_dwordx4 {vr(A_Q+8*i,4)}, v{vK1}, s[{SWS}:{SWS+3}], s36 offen")
        a(f"buffer_load_dwordx2 {vr(A_Q+8*i+4,2)}, v{vK2}, s[{SWS}:{SWS+3}], s36 offen")
        if i < 3:
            a("s_add_u32 s36, s36, 1280")
    s_kp, s_vp = 37, 38
    a(f"s_mul_i32 s{s_kp}, s{s_kh}, {32*KVS}")
    a(f"s_add_u32 s{s_kp}, s{s_kp}, {KF}")
    a(f"s_add_u32 s{s_vp}, s{s_kp}, 1280")

    def loadK(st):
        a(f"buffer_load_dwordx4 {vr(A_K+8*st,4)}, v{vK1}, s[{SWS}:{SWS+3}], s{s_kp} offen")
        a(f"buffer_load_dwordx2 {vr(A_K+8*st+4,2)}, v{vK2}, s[{SWS}:{SWS+3}], s{s_kp} offen")
        a(f"s_add_u32 s{s_kp}, s{s_kp}, {KVS}")

    def loadV(st):
        a(f"buffer_load_dwordx4 {vr(A_V+8*st,4)}, v{vV}, s[{SWS}:{SWS+3}], s{s_vp} offen")
        a(f"buffer_load_dwordx4 {vr(A_V+8*st+4,4)}, v{vV}, s[{SWS}:{SWS+3}], s{s_vp} offen offset:672")
        a(f"s_add_u32 s{s_vp}, s{s_vp}, {KVS}")
    for st in range(NSET - 1):
        loadK(st)
        loadV(st)
    loadK(NSET - 1)
    for i in range(4):
        a(f"v_mov_b32 v{A_Q+8*i+6}, 0")
        a(f"v_mov_b32 v{A_Q+8*i+7}, 0")
    for st in range(NSET):
        a(f"v_mov_b32 v{A_K+8*st+6}, 0")
        a(f"v_mov_b32 v{A_K+8*st+7}, 0")
    for r in range(64):
        a(f"v_mov_b32 v{A_O+r}, 0")
    for r in range(16):
        a(f"v_mov_b32 v{A_P+r}, 0")
    for r in range(8):
        a(f"v_mov_b32 v{A_V+8*(NSET-1)+r}, 0")
    for r in range(4):
        a(f"v_mov_b32 v{A_M+r}, 0")
    a("s_waitcnt lgkmcnt(0)")
    for r in range(65, 96):
        a(f"s_max_u32 s64, s64, s{r}")
    for r in range(45, 60):
        a(f"s_max_u32 s44, s44, s{r}")
    a("s_load_dwordx16 s[80:95], s[12:13], 192")
    a("s_waitcnt lgkmcnt(0)")
    for r in range(80, 96):
        a(f"s_max_u32 s44, s44, s{r}")
    a(f"s_waitcnt vmcnt({4*NSET-2})")
    for i in range(4):
        a(f"v_mov_b32 v{T+i}, 0")
    for r in range(6):
        for i in range(4):
            a(f"v_dot2_f32_bf16 v{T+i}, v{A_Q+8*i+r}, v{A_Q+8*i+r}, v{T+i}")
    for i in range(4):
        a(f"v_mov_b32 v{T+4+i}, v{T+i}")
    for i in range(4):
        a(f"v_permlane32_swap_b32 v{T+i}, v{T+4+i}")
    for i in range(4):
        a(f"v_add_f32 v{T+i}, v{T+i}, v{T+4+i}")
    a(f"v_max3_f32 v{T}, v{T}, v{T+1}, v{T+2}")
    a(f"v_max_f32 v{T}, v{T}, v{T+3}")
    a(f"v_mul_f32 v{T}, s64, v{T}")
    a(f"v_mov_b32 v{T+1}, {hx(f2u(3600.0/1.05))}")
    a(f"v_cmp_nle_f32 vcc, v{T}, v{T+1}")
    a(f"s_cmp_gt_u32 s44, {hx(f2u(2.0**80))}")
    a(f"s_cbranch_scc1 {pfx}_slow")
    a(f"s_cbranch_vccnz {pfx}_slow")

    def qk(m, sb, ks, i):
        if m == 0:
            mfma32(a, A_S + 16 * sb, A_K + 8 * ks, A_Q + 8 * i, "0")
        else:
            mfma32(a, A_S + 16 * sb, A_K + 8 * ks + 4, A_Q + 8 * i + 4)

    def pv(m, pb, vs, i):
        mfma32(a, A_O + 16 * i, A_V + 8 * vs + 4 * m, A_P + 8 * pb + 4 * m)

    a(f"s_waitcnt vmcnt({4*NSET-4})")
    qk(0, 0, 0, 0)
    qk(1, 0, 0, 0)
    stamp(a, "attn")
    a(f"s_mov_b32 s39, {32//NSET}")
    a("s_nop 10")
    a.raw(".p2align 6")
    a.label(f"{pfx}_loop")
    for kk in range(NSET):
        for i in range(4):
            cur = i & 1
            S = A_S + 16 * cur
            P = A_P + 8 * cur
            nks, ni = (kk, i + 1) if i < 3 else ((kk + 1) % NSET, 0)
            pvs, pi = (kk, i - 1) if i > 0 else ((kk - 1) % NSET, 3)
            if i in (1, 3) and not os.environ.get("NOWAIT"):
                a(f"s_waitcnt vmcnt({4*NSET-6})")
            qk(0, cur ^ 1, nks, ni)
            for e in range(0, 4):
                a(f"v_exp_f32 v{S+e}, v{S+e}")
            qk(1, cur ^ 1, nks, ni)
            if i == 1 and not os.environ.get("NOKV"):
                loadV((kk - 1) % NSET)
            if i == 3 and not os.environ.get("NOKV"):
                loadK(kk)
            for e in range(4, 8):
                a(f"v_exp_f32 v{S+e}, v{S+e}")
            pv(0, cur ^ 1, pvs, pi)
            for e in range(8, 12):
                a(f"v_exp_f32 v{S+e}, v{S+e}")
            for j in range(0, 2):
                a(f"v_cvt_pk_bf16_f32 v{P+j}, v{S+2*j}, v{S+2*j+1}")
            pv(1, cur ^ 1, pvs, pi)
            for e in range(12, 16):
                a(f"v_exp_f32 v{S+e}, v{S+e}")
            for j in range(2, 8):
                a(f"v_cvt_pk_bf16_f32 v{P+j}, v{S+2*j}, v{S+2*j+1}")
    a("s_sub_u32 s39, s39, 1")
    a("s_cmp_lg_u32 s39, 0")
    a(f"s_cbranch_scc1 {pfx}_loop")
    pv(0, 1, NSET - 1, 3)
    pv(1, 1, NSET - 1, 3)
    stamp(a, "attn")
    a(f"s_branch {pfx}_epi")

    a.label(f"{pfx}_slow")
    for r in range(4):
        a(f"v_mov_b32 v{A_M+r}, {hx(f2u(-1e30))}")
    a("s_mov_b32 s39, 32")
    a(f"s_sub_u32 s{s_kp}, s{s_kp}, {KVS*(NSET-1)}")
    a(f"s_sub_u32 s{s_vp}, s{s_vp}, {KVS*(NSET-2)}")
    a.label(f"{pfx}_sloop")
    a("s_waitcnt vmcnt(0)")
    for i in range(4):
        S, P, M = A_S, A_P, A_M + i
        qk(0, 0, 0, i)
        qk(1, 0, 0, i)
        a(f"v_max3_f32 v{T}, v{S}, v{S+1}, v{S+2}")
        for e in range(3, 15, 2):
            a(f"v_max3_f32 v{T}, v{T}, v{S+e}, v{S+e+1}")
        a(f"v_max_f32 v{T}, v{T}, v{S+15}")
        a(f"v_mov_b32 v{T+1}, v{T}")
        a(f"v_permlane32_swap_b32 v{T}, v{T+1}")
        a(f"v_max3_f32 v{T}, v{T}, v{T+1}, v{M}")
        a(f"v_sub_f32 v{T+1}, v{M}, v{T}")
        a(f"v_exp_f32 v{T+1}, v{T+1}")
        a(f"v_mov_b32 v{M}, v{T}")
        for e in range(16):
            a(f"v_sub_f32 v{S+e}, v{S+e}, v{T}")
            a(f"v_exp_f32 v{S+e}, v{S+e}")
        for j in range(8):
            a(f"v_cvt_pk_bf16_f32 v{P+j}, v{S+2*j}, v{S+2*j+1}")
        for e in range(16):
            a(f"v_mul_f32 v{A_O+16*i+e}, v{A_O+16*i+e}, v{T+1}")
        pv(0, 0, 0, i)
        pv(1, 0, 0, i)
    loadK(0)
    loadV(0)
    a("s_sub_u32 s39, s39, 1")
    a("s_cmp_lg_u32 s39, 0")
    a(f"s_cbranch_scc1 {pfx}_sloop")

    a.label(f"{pfx}_epi")
    a("s_waitcnt vmcnt(0)")
    if PREFETCH:
        srd(a, 16, 14, 819200)
        a(f"s_lshr_b32 s40, s{s_wg}, 3")
        a("s_lshl_b32 s40, s40, 2")
        a(f"s_add_u32 s40, s40, s{s_w}")
        a("s_mul_i32 s40, s40, 6400")
        a(f"v_lshlrev_b32 v{T+14}, 6, v{vLane}")
        a(f"buffer_load_dword v{T+15}, v{T+14}, s[16:19], s40 offen")
        a("s_add_u32 s40, s40, 4096")
        a(f"buffer_load_dword v{T+15}, v{T+14}, s[16:19], s40 offen")
    vW, vR = T, T + 1
    a(f"s_mul_i32 s40, s{s_w}, 6656")
    a(f"s_xor_b32 s41, s{s_w}, 1")
    a("s_mul_i32 s41, s41, 6656")
    a(f"v_add_u32 v{vW}, s40, v{vK1}")
    a(f"v_add_u32 v{vR}, s41, v{vK1}")
    a(f"v_lshlrev_b32 v{T+2}, 2, v{vLane}")
    a(f"v_add_u32 v{T+3}, s41, v{T+2}")
    a(f"v_add_u32 v{T+2}, s40, v{T+2}")
    a(f"s_cmp_eq_u32 s{s_kh}, 0")
    a(f"s_cbranch_scc1 {pfx}_e0")
    for t in range(2):
        for q in range(3):
            a(f"ds_write_b128 v{vW}, {vr(A_O+16*t+4*q,4)} offset:{(t*3+q)*1024}")
        a(f"ds_write_b32 v{T+2}, v{A_M+t} offset:{6144+t*256}")
    a("s_waitcnt lgkmcnt(0)")
    for t in range(2):
        for e in range(12):
            a(f"v_mov_b32 v{A_O+16*t+e}, v{A_O+16*(t+2)+e}")
        a(f"v_mov_b32 v{A_M+t}, v{A_M+t+2}")
    a(f"s_add_u32 s{s_hd}, s{s_hd}, 2")
    a(f"s_branch {pfx}_e1")
    a.label(f"{pfx}_e0")
    for t in range(2):
        for q in range(3):
            a(f"ds_write_b128 v{vW}, {vr(A_O+16*(t+2)+4*q,4)} offset:{(t*3+q)*1024}")
        a(f"ds_write_b32 v{T+2}, v{A_M+t+2} offset:{6144+t*256}")
    a("s_waitcnt lgkmcnt(0)")
    a.label(f"{pfx}_e1")
    a("s_barrier")
    for t in range(2):
        for q in range(3):
            a(f"ds_read_b128 {vr(A_S+16*t+4*q,4)}, v{vR} offset:{(t*3+q)*1024}")
        a(f"ds_read_b32 v{A_M+2+t}, v{T+3} offset:{6144+t*256}")
    a("s_waitcnt lgkmcnt(0)")
    a(f"s_mul_i32 s40, s{s_rt}, {40*1024}")
    a(f"s_add_u32 s40, s40, {OF}")
    a(f"v_mov_b32 v{T+12}, {hx(OOB)}")
    a(f"v_cmp_eq_u32 s[42:43], 0, v{vH}")
    for t in range(2):
        O, Pz, Ma, Mp = A_O + 16 * t, A_S + 16 * t, A_M + t, A_M + 2 + t
        a(f"v_max_f32 v{T+4}, v{Ma}, v{Mp}")
        a(f"v_sub_f32 v{T+5}, v{Ma}, v{T+4}")
        a(f"v_sub_f32 v{T+6}, v{Mp}, v{T+4}")
        a(f"v_exp_f32 v{T+5}, v{T+5}")
        a(f"v_exp_f32 v{T+6}, v{T+6}")
        for e in range(12):
            a(f"v_mul_f32 v{O+e}, v{O+e}, v{T+5}")
            a(f"v_fmac_f32 v{O+e}, v{Pz+e}, v{T+6}")
        a(f"v_mov_b32 v{T+7}, v{O+8}")
        a(f"v_mov_b32 v{T+8}, v{O+8}")
        a(f"v_permlane32_swap_b32 v{T+7}, v{T+8}")
        a(f"v_rcp_f32 v{T+8}, v{T+8}")
        for e in range(12):
            a(f"v_mul_f32 v{O+e}, v{O+e}, v{T+8}")
        for q in range(3):
            a(f"v_cvt_pk_bf16_f32 v{O+4*q}, v{O+4*q}, v{O+4*q+1}")
            a(f"v_cvt_pk_bf16_f32 v{O+4*q+1}, v{O+4*q+2}, v{O+4*q+3}")
        a(f"s_add_u32 s41, s{s_hd}, {t}")
        a("s_mul_i32 s41, s41, 20")
        for q in range(3):
            k, off = T + 9, T + 10
            a(f"v_lshlrev_b32 v{k}, 2, v{vH}")
            a(f"v_add_u32 v{k}, s41, v{k}")
            if q:
                a(f"v_add_u32 v{k}, {8*q}, v{k}")
            a(f"v_lshrrev_b32 v{off}, 3, v{k}")
            a(f"v_lshlrev_b32 v{off}, 9, v{off}")
            a(f"v_lshl_add_u32 v{off}, v{vN}, 4, v{off}")
            a(f"v_and_b32 v{k}, 4, v{k}")
            a(f"v_lshl_add_u32 v{off}, v{k}, 1, v{off}")
            if q == 2:
                a(f"v_cndmask_b32 v{off}, v{T+12}, v{off}, s[42:43]")
            a(f"buffer_store_dwordx2 {vr(O+4*q,2)}, v{off}, s[{SWS}:{SWS+3}], s40 offen")


def gen_attn():
    a = Asm()
    a.label("attn_kernel")
    a("s_cmp_ge_u32 s2, 256")
    a("s_cbranch_scc1 attn_end")
    stamp_begin(a, "attn")
    gen_attn_body(a, "attn", 2)
    stamp_end(a, "attn", 28, 32, 250)
    a.label("attn_end")
    a("s_endpgm")
    return a.finish(), ("attn_kernel", 256, 256, 26624, 256 if STAMP else 248)


R_ACC, R_A, R_B, R_T = 16, 112, 160, 208


def zero_acc(a, acc, n, tmp):
    for e in range(4):
        a(f"v_mov_b32 v{tmp+e}, 0")
    for t in range(n):
        mfma32(a, acc + 16 * t, tmp, tmp, "0")


def typek_rolled(K, pfx):
    a, RD = K.a, K.RD
    assert K.RD == 6 and K.RB == 6 and K.KS % 6 == 0
    a("s_waitcnt vmcnt(10)")
    for x in K.reads(0):
        a(x)
    a(f"s_mov_b32 s59, {K.KS // 6}")
    a(f"s_add_u32 s{K.s_g}, s{K.s_g}, {6*K.gstep}")
    a.label(f"{pfx}_kl")
    for s in range(6):
        a(f"s_waitcnt vmcnt({min(22, 10 + 3*s)})")
        for x in K.reads(s + 1):
            a(x)
        a("s_waitcnt lgkmcnt(6)")
        k = 0
        for ct in range(3):
            for rt in range(2):
                mfma32(a, K.ACC + (rt * 3 + ct) * 16, K.AF + (s & 1) * 12 + ct * 4, K.BF + s * 8 + rt * 4)
                if k % 2 == 0:
                    c = k // 2
                    a(f"s_add_u32 m0, s{K.s_ring}, {(s*3+c)*1024}")
                    a(f"s_add_u32 s91, s{K.s_g}, {s*K.gstep + c*64}")
                    a(f"buffer_load_dwordx4 v{K.vWo}, s[{K.SW}:{K.SW+3}], s91 offen lds")
                k += 1
        for rt in range(2):
            sb = K.s_b0 if rt == 0 else K.s_b1
            a(f"s_add_u32 s91, s{sb}, {(s+6)*1024}")
            a(f"buffer_load_dwordx4 {vr(K.BF+s*8+rt*4,4)}, v{K.vB}, s[{K.SB}:{K.SB+3}], s91 offen{K.bmods}")
    a(f"s_add_u32 s{K.s_g}, s{K.s_g}, {6*K.gstep}")
    a(f"s_add_u32 s{K.s_b0}, s{K.s_b0}, 6144")
    a(f"s_add_u32 s{K.s_b1}, s{K.s_b1}, 6144")
    a("s_sub_u32 s59, s59, 1")
    a("s_cmp_lg_u32 s59, 0")
    a(f"s_cbranch_scc1 {pfx}_kl")
    a("s_waitcnt vmcnt(0) lgkmcnt(0)")


class TypeR:
    def __init__(self, a, pfx, NT, NS, vTr, vWo, vB, s_w, srd_of_tile, goff, s_bp, SWS, tr2, bmods=""):
        self.__dict__.update(locals())
        self.SLOT = 4 * NT * 1024
        self.sname = {"gu": "gateup", "dn": "down", "fi": "final"}[pfx[:2]]
        self.s_m = 60
        self.per = NT + 4

    def dma_ops(self, stage):
        slot = stage % 3
        s_g0, s_g1, gstep = self.goff
        out = []
        for t in range(self.NT):
            sr, grp, tt = self.srd_of_tile(t)
            out.append([f"s_add_u32 m0, s{self.s_m}, {slot*self.SLOT + t*1024}",
                        f"s_add_u32 s61, s{s_g0 if grp == 0 else s_g1}, {stage*gstep + tt*64}",
                        f"buffer_load_dwordx4 v{self.vWo}, s[{sr}:{sr+3}], s61 offen lds"])
        return out

    def b_ops(self, stage):
        slot = stage % 3
        bl = []
        for j in range(4):
            g = []
            if j == 0:
                g.append(f"s_add_u32 s62, s{self.s_bp}, {stage*4096}")
            g.append(f"buffer_load_dwordx4 {vr(R_B+slot*16+j*4,4)}, v{self.vB}, s[{self.SWS}:{self.SWS+3}], s62 offen offset:{j*1024}{self.bmods}")
            bl.append(g)
        return bl

    def vm_ops(self, stage):
        out, bl, res = self.dma_ops(stage), self.b_ops(stage), []
        while out or bl:
            if out:
                res.append(out.pop(0))
            if bl and len(res) > 1:
                res.append(bl.pop(0))
        return res

    def emit(self, groups):
        for g in groups:
            for x in g:
                self.a(x)

    def reads(self, stage, j):
        buf = (stage * 4 + j) & 1
        slot = stage % 3
        base = (slot & 1) * self.SLOT + j * self.NT * 1024
        va = self.vTr + (slot >> 1)
        out = []
        for t in range(self.NT):
            r = R_A + buf * 24 + t * 4
            out.append(f"ds_read_b64_tr_b16 {vr(r,2)}, v{va} offset:{base + t*1024}")
            out.append(f"ds_read_b64_tr_b16 {vr(r+2,2)}, v{va} offset:{base + t*1024 + self.tr2}")
        return out

    def mf(self, stage, j, t):
        buf = (stage * 4 + j) & 1
        first = stage == 0 and j == 0
        mfma32(self.a, R_ACC + 16 * t, R_A + buf * 24 + t * 4, R_B + (stage % 3) * 16 + j * 4, "0" if first else None)

    def setup(self):
        a = self.a
        a(f"s_mul_i32 s{self.s_m}, s{self.s_w}, {self.NT*1024}")
        a(f"v_add_u32 v{self.vTr+1}, {2*self.SLOT}, v{self.vTr}")

    def main(self, first_wait, extra_vm=None):
        a, NT, NS = self.a, self.NT, self.NS
        extra_vm = extra_vm or {}
        order = [0] * self.per + [1] * self.per
        stamp(a, self.sname)
        a(f"s_waitcnt vmcnt({first_wait})")
        a("s_barrier")
        stamp(a, self.sname)
        for x in self.reads(0, 0):
            a(x)
        for i in range(NS):
            if i in (1, 2, 4):
                stamp(a, self.sname)
            ops = self.vm_ops(i + 2) if i + 2 < NS else []
            order += [i + 2] * len(ops)
            ops = ops + extra_vm.get(i, [])
            order += [-1] * len(extra_vm.get(i, []))
            nslots = 3 * NT
            place = {}
            for k, g in enumerate(ops):
                place.setdefault((k * nslots) // len(ops), []).append(g)
            for j in range(3):
                rd = self.reads(i, j + 1)
                for t in range(NT):
                    a(f"s_waitcnt lgkmcnt({2*(NT-1)})")
                    self.mf(i, j, t)
                    a(rd[2 * t])
                    a(rd[2 * t + 1])
                    if j * NT + t in place:
                        self.emit(place[j * NT + t])
            last = i + 1 == NS
            H = NT if last else (NT + 1) // 2
            for t in range(H):
                a(f"s_waitcnt lgkmcnt({2*(NT-1-t)})")
                self.mf(i, 3, t)
            if not last:
                lastidx = max(k for k, o in enumerate(order) if o == i + 1)
                a(f"s_waitcnt vmcnt({len(order) - 1 - lastidx}) lgkmcnt(0)")
                a("s_barrier")
                rd = self.reads(i + 1, 0)
                n = NT - H
                for k, t in enumerate(range(H, NT)):
                    self.mf(i, 3, t)
                    for x in rd[(k * len(rd)) // n:((k + 1) * len(rd)) // n]:
                        a(x)


def typer_rolled(R, extra_vm=None):
    a, NT = R.a, R.NT
    assert R.NS == 10
    s_g0, s_g1, gstep = R.goff
    extra_vm = extra_vm or []
    a(f"s_waitcnt vmcnt({R.per})")
    a("s_barrier")
    stamp(a, R.sname)
    for x in R.reads(0, 0):
        a(x)
    a("s_mov_b32 s59, 3")
    a.label(f"{R.pfx}_rl")
    nx = len(extra_vm)

    def stage(i, ops, xtra, wait_n, last=False):
        ops = xtra + ops
        nslots = 3 * NT
        place = {}
        for k, g in enumerate(ops):
            place.setdefault((k * nslots) // len(ops), []).append(g)
        for j in range(3):
            rd = R.reads(i, j + 1)
            for t in range(NT):
                a(f"s_waitcnt lgkmcnt({2*(NT-1)})")
                R.mf(i + 3, j, t)
                a(rd[2 * t])
                a(rd[2 * t + 1])
                if j * NT + t in place:
                    R.emit(place[j * NT + t])
        H = NT if last else (NT + 1) // 2
        for t in range(H):
            a(f"s_waitcnt lgkmcnt({2*(NT-1-t)})")
            R.mf(i + 3, 3, t)
        if not last:
            a(f"s_waitcnt vmcnt({wait_n}) lgkmcnt(0)")
            a("s_barrier")
            rd = R.reads(i + 1, 0)
            n = NT - H
            for k, t in enumerate(range(H, NT)):
                R.mf(i + 3, 3, t)
                for x in rd[(k * len(rd)) // n:((k + 1) * len(rd)) // n]:
                    a(x)
    stage(0, R.vm_ops(2), extra_vm, R.per + nx)
    stage(1, R.vm_ops(3), [], R.per)
    stage(2, R.vm_ops(4), [], R.per)
    a(f"s_add_u32 s{s_g0}, s{s_g0}, {3*gstep}")
    if s_g1 != s_g0:
        a(f"s_add_u32 s{s_g1}, s{s_g1}, {3*gstep}")
    a(f"s_add_u32 s{R.s_bp}, s{R.s_bp}, {3*4096}")
    a("s_sub_u32 s59, s59, 1")
    a("s_cmp_lg_u32 s59, 0")
    a(f"s_cbranch_scc1 {R.pfx}_rl")
    stage(0, [], [], 0, last=True)


def gen_gateup_body(a, pfx, s_wg, mid_hook=None, smods='', extra_vm=None):
    s_w, s_rb, s_cb = 32, 33, 34
    SW1, SW3, SWS = 16, 20, 28
    vLane, vN, vH, vWo, vB, vTr = 1, 2, 3, 4, 5, 6
    T = R_T
    a("s_load_dwordx4 s[4:7], s[0:1], 48")
    a("s_load_dwordx2 s[12:13], s[0:1], 88")
    lane_setup(a, T, vLane, vN, vH, s_w)
    a(f"s_and_b32 s3, s{s_wg}, 7")
    a(f"s_lshr_b32 s35, s{s_wg}, 3")
    a("s_and_b32 s36, s3, 1")
    a("s_lshl_b32 s36, s36, 3")
    a("s_and_b32 s37, s35, 7")
    a(f"s_add_u32 s{s_rb}, s36, s37")
    a("s_lshr_b32 s36, s3, 1")
    a("s_lshl_b32 s36, s36, 2")
    a("s_lshr_b32 s37, s35, 3")
    a(f"s_add_u32 s{s_cb}, s36, s37")
    a(f"v_lshrrev_b32 v{T}, 2, v{vLane}")
    a(f"v_mul_u32_u24 v{vWo}, 3072, v{T}")
    a(f"v_and_b32 v{T}, 3, v{vLane}")
    a(f"v_lshl_add_u32 v{vWo}, v{T}, 4, v{vWo}")
    tr_base(a, vTr, T, vLane, vH, 9)
    a(f"v_lshlrev_b32 v{vB}, 4, v{vLane}")
    a(f"s_mul_i32 s40, s{s_w}, {16*3072}")
    a(f"s_mul_i32 s41, s{s_cb}, 192")
    a("s_add_u32 s40, s40, s41")
    a(f"s_lshl_b32 s42, s{s_rb}, 2")
    a(f"s_add_u32 s42, s42, s{s_w}")
    a(f"s_mul_i32 s43, s42, {40*1024}")
    if XF:
        a(f"s_add_u32 s43, s43, {XF}")
    a("s_waitcnt lgkmcnt(0)")
    srd(a, SW1, 4, 1966080)
    srd(a, SW3, 6, 1966080)
    srd(a, SWS, 12, WS_END)
    R = TypeR(a, pfx, 6, 10, vTr, vWo, vB, s_w,
              lambda t: (SW1, 0, t) if t < 3 else (SW3, 0, t - 3), (40, 40, 64 * 3072), 43, SWS, 256)
    R.setup()
    R.emit(R.vm_ops(0) + R.vm_ops(1))
    if ROLL:
        zero_acc(a, R_ACC, 6, R_A)
        typer_rolled(R, extra_vm)
    else:
        R.main(R.per, extra_vm)
    if mid_hook:
        mid_hook()
    stamp(a, "gateup")
    a(f"s_mov_b32 s44, {hx(f2u(-math.log2(math.e)))}")
    a(f"s_mul_i32 s45, s42, {96*1024}")
    a(f"s_mul_i32 s46, s{s_cb}, {6*1024}")
    a("s_add_u32 s45, s45, s46")
    a(f"s_add_u32 s45, s45, {HF}")
    a(f"v_mov_b32 v{T}, s44")
    a(f"v_mov_b32 v{T+1}, s44")
    a(f"v_mov_b32 v{T+2}, 1.0")
    a(f"v_mov_b32 v{T+3}, 1.0")
    for t in range(3):
        g, u = R_ACC + 16 * t, R_ACC + 16 * (t + 3)
        E = R_A
        for e in range(0, 16, 2):
            a(f"v_pk_mul_f32 {vr(E+e,2)}, {vr(g+e,2)}, {vr(T,2)}")
        for e in range(16):
            a(f"v_exp_f32 v{E+e}, v{E+e}")
        for e in range(0, 16, 2):
            a(f"v_pk_add_f32 {vr(E+e,2)}, {vr(E+e,2)}, {vr(T+2,2)}")
        for e in range(16):
            a(f"v_rcp_f32 v{E+e}, v{E+e}")
        for e in range(0, 16, 2):
            a(f"v_pk_mul_f32 {vr(g+e,2)}, {vr(g+e,2)}, {vr(u+e,2)}")
        for e in range(0, 16, 2):
            a(f"v_pk_mul_f32 {vr(g+e,2)}, {vr(g+e,2)}, {vr(E+e,2)}")
        for j in range(8):
            a(f"v_cvt_pk_bf16_f32 v{u+j}, v{g+2*j}, v{g+2*j+1}")
        for hf in range(2):
            o = (2 * t + hf) * 1024
            if o < 4096:
                a(f"buffer_store_dwordx4 {vr(u+4*hf,4)}, v{vB}, s[{SWS}:{SWS+3}], s45 offen offset:{o}{smods}")
            else:
                a(f"s_add_u32 s46, s45, {o}")
                a(f"buffer_store_dwordx4 {vr(u+4*hf,4)}, v{vB}, s[{SWS}:{SWS+3}], s46 offen{smods}")


def gen_gateup():
    a = Asm()
    a.label("gateup_kernel")
    a("s_cmp_ge_u32 s2, 256")
    a("s_cbranch_scc1 gateup_end")
    stamp_begin(a, "gateup")
    gen_gateup_body(a, "gu", 2)
    stamp_end(a, "gateup", 28, 32, 240)
    a.label("gateup_end")
    a("s_endpgm")
    return a.finish(), ("gateup_kernel", 256, 256, 73728, 256 if STAMP else 216)


D_AF, D_BF, D_RES, D_XR, D_T = 112, 136, 184, 212, 224
RING = 18432


def tile64_setup(a, s_wg, s_rb, s_cb):
    a(f"s_and_b32 s3, s{s_wg}, 7")
    a("s_lshl_b32 s3, s3, 2")
    a(f"s_bfe_u32 s36, s{s_wg}, 0x20003")
    a(f"s_add_u32 s{s_rb}, s3, s36")
    a(f"s_lshr_b32 s{s_cb}, s{s_wg}, 5")


def gen_down_setup(a, s_wg, standalone, bmods=""):
    s_w = 32
    s_rb, s_cb = 63, 64
    SW, SWS, SX = 24, 28, 76
    vLane, vN, vH, vWo, vB, vTr, vXo = 1, 2, 3, 8, 5, 9, 10
    T = D_T
    a("s_load_dwordx2 s[8:9], s[0:1], 64")
    a("s_load_dwordx2 s[14:15], s[0:1], 0")
    if standalone:
        a("s_load_dwordx2 s[12:13], s[0:1], 88")
        lane_setup(a, T, vLane, vN, vH, s_w)
        a(f"v_lshlrev_b32 v{vB}, 4, v{vLane}")
    tile64_setup(a, s_wg, s_rb, s_cb)
    a(f"v_lshrrev_b32 v{T}, 2, v{vLane}")
    a(f"v_mul_u32_u24 v{vWo}, 1280, v{T}")
    a(f"v_and_b32 v{T}, 3, v{vLane}")
    a(f"v_lshl_add_u32 v{vWo}, v{T}, 4, v{vWo}")
    tr_base(a, vTr, T, vLane, vH, 8)
    a(f"s_mul_i32 s67, s{s_w}, {RING}")
    a(f"v_add_u32 v{vTr}, s67, v{vTr}")
    a(f"v_mul_u32_u24 v{vXo}, 1280, v{vN}")
    a(f"v_lshl_add_u32 v{vXo}, v{vH}, 3, v{vXo}")
    a(f"s_mul_i32 s66, s{s_w}, {384*1280}")
    a(f"s_mul_i32 s37, s{s_cb}, 192")
    a("s_add_u32 s66, s66, s37")
    a(f"s_mul_i32 s68, s{s_rb}, {2*96*1024}")
    a(f"s_mul_i32 s36, s{s_w}, {24*1024}")
    a("s_add_u32 s68, s68, s36")
    a(f"s_add_u32 s68, s68, {HF}")
    a(f"s_add_u32 s65, s68, {96*1024}")
    a(f"s_mul_i32 s70, s{s_rb}, {64*1280}")
    a("s_add_u32 s70, s70, s37")
    a(f"s_lshl_b32 s36, s{s_w}, 4")
    a("s_add_u32 s70, s70, s36")
    a(f"s_add_u32 s71, s70, {32*1280}")
    a("s_waitcnt lgkmcnt(0)")
    srd(a, SW, 8, 1966080)
    srd(a, SX, 14, 2621440)
    if standalone:
        srd(a, SWS, 12, WS_END)
    K = TypeK(a, 24, 6, 6, R_ACC, D_AF, D_BF, vTr, 512, vWo, SW, 66, 16 * 1280, 67, vB, SWS, 68, 65, bmods)
    return K


def gen_down_issue(a, K):
    SX, vXo = 76, 10
    for rt in range(2):
        for ct in range(3):
            a(f"buffer_load_dwordx2 {vr(D_XR+(rt*3+ct)*2,2)}, v{vXo}, s[{SX}:{SX+3}], s{70+rt} offen offset:{ct*64}")
    order = [("x",)] * 6
    for s in range(6):
        K.emit(K.dma(s))
        order += [("d", s)] * 3
    return K, order


def gen_down_rest(a, K, order):
    s_w, s_rb, s_cb, SWS, vB, vLane = 32, 63, 64, 28, 5, 1
    T = D_T
    if ROLL:
        for s in range(6):
            for rt in range(2):
                sb = K.s_b0 if rt == 0 else K.s_b1
                a(f"s_add_u32 s91, s{sb}, {s*1024}")
                a(f"buffer_load_dwordx4 {vr(K.BF+s*8+rt*4,4)}, v{K.vB}, s[{K.SB}:{K.SB+3}], s91 offen{K.bmods}")
        zero_acc(a, R_ACC, 6, D_AF)
        typek_rolled(K, "dn")
    else:
        for s in range(6):
            K.emit(K.bl(s))
            order = order + [("b", s)] * 2
        K.main(order)
    stamp(a, "mffn")
    stamp(a, "down")
    a("s_setprio 2")
    reduce4(a, "dn", R_ACC, D_RES, R_ACC, vB, T, s_w, 67, 0, RING)
    a("s_mov_b32 s49, 0xffff0000")
    a(f"s_mul_i32 s45, s{s_rb}, 40")
    a(f"s_mul_i32 s46, s{s_cb}, 3")
    a("s_add_u32 s45, s45, s46")
    a("s_lshl_b32 s45, s45, 11")
    a(f"s_lshr_b32 s46, s{s_w}, 1")
    a("s_lshl_b32 s46, s46, 10")
    a("s_add_u32 s45, s45, s46")
    a(f"s_and_b32 s46, s{s_w}, 1")
    a("s_lshl_b32 s46, s46, 3")
    a("s_add_u32 s45, s45, s46")
    a(f"s_add_u32 s45, s45, {YF}")
    for ct in range(3):
        if ct == 2:
            a(f"s_cmp_eq_u32 s{s_cb}, 6")
            a("s_cbranch_scc1 dn_skip")
        for rt in range(2):
            r = D_RES + (rt * 3 + ct) * 4
            xr = D_XR + (rt * 3 + ct) * 2
            for e in range(2):
                a(f"v_lshlrev_b32 v{T}, 16, v{xr+e}")
                a(f"v_and_b32 v{T+1}, s49, v{xr+e}")
                a(f"v_pk_add_f32 {vr(r+2*e,2)}, {vr(r+2*e,2)}, {vr(T,2)}")
            a(f"v_cvt_pk_bf16_f32 v{r}, v{r}, v{r+1}")
            a(f"v_cvt_pk_bf16_f32 v{r+1}, v{r+2}, v{r+3}")
            a(f"s_add_u32 s46, s45, {(rt*20+ct)*2048}")
            a(f"buffer_store_dwordx2 {vr(r,2)}, v{vB}, s[{SWS}:{SWS+3}], s46 offen")
    a.label("dn_skip")


def gen_down():
    a = Asm()
    a.label("down_kernel")
    a("s_cmp_ge_u32 s2, 224")
    a("s_cbranch_scc1 down_end")
    stamp_begin(a, "down")
    K, order = gen_down_issue(a, gen_down_setup(a, 2, True))
    stamp(a, "down")
    gen_down_rest(a, K, order)
    stamp_end(a, "down", 28, 32, 240)
    a.label("down_end")
    a("s_endpgm")
    return a.finish(), ("down_kernel", 224, 256, 73728, 256 if STAMP else 232)


def gen_main():
    a = Asm()
    a.label("main_kernel")
    a("s_cmp_ge_u32 s2, 512")
    a("s_cbranch_scc1 main_end")
    a("s_cmp_ge_u32 s2, 256")
    a("s_cbranch_scc1 main_ffn")
    if PRIO_ATTN:
        a(f"s_setprio {PRIO_ATTN}")
    stamp_begin(a, "mattn")
    gen_attn_body(a, "ma", 2)
    stamp_end(a, "mattn", 28, 32, 250)
    a("s_endpgm")
    a.label("main_ffn")
    if PRIO_FFN:
        a(f"s_setprio {PRIO_FFN}")
    a("s_sub_u32 s69, s2, 256")
    stamp_begin(a, "mffn")
    st = {}
    K0 = gen_down_setup(a, 69, True, " sc1")
    xvm = {}
    if PREFETCH and PF0 >= 0:
        a("s_lshr_b32 s96, s69, 3")
        a("s_lshl_b32 s96, s96, 2")
        a("s_add_u32 s96, s96, s32")
        a("s_lshl_b32 s96, s96, 14")
        a(f"v_lshlrev_b32 v11, 6, v1")
        for q in range(4):
            xvm[PF0 + q] = [[f"s_add_u32 s97, s96, {q*4096}",
                             f"buffer_load_dword v12, v11, s[24:27], s97 offen"]]
        if ROLL:
            xvm = [["buffer_load_dword v12, v11, s[24:27], s96 offen", "s_add_u32 s96, s96, 2752"],
                   ["buffer_load_dword v12, v11, s[24:27], s96 offen", "s_add_u32 s96, s96, 2752"]]

    def mid():
        stamp(a, "mffn")
        a("s_barrier")
        a("s_cmp_ge_u32 s69, 224")
        a("s_cbranch_scc1 main_nodn")
        st["K"] = gen_down_issue(a, K0)
        a.label("main_nodn")
        a("s_setprio 2")
    gen_gateup_body(a, "gu", 69, mid, " sc1", xvm)
    K, order = st["K"]
    SD = 28
    a("s_setprio 0")
    a("s_lshl_b32 s92, s33, 8")
    a(f"s_add_u32 s92, s92, {CT}")
    a("s_lshr_b32 s93, s63, 1")
    a("s_lshl_b32 s93, s93, 8")
    a(f"s_add_u32 s93, s93, {CT}")
    a("s_waitcnt vmcnt(0)")
    a("s_barrier")
    stamp(a, "mffn")
    a("s_cmp_lg_u32 s32, 0")
    a("s_cbranch_scc1 main_polled")
    a(f"v_mov_b32 v{D_T}, 0")
    a(f"v_mov_b32 v{D_T+1}, 1")
    a("s_mov_b64 exec, 1")
    a(f"buffer_atomic_add v{D_T+1}, v{D_T}, s[{SD}:{SD+3}], s92 offen sc1")
    a("s_cmp_ge_u32 s69, 224")
    a("s_cbranch_scc1 main_pdone")
    a.label("main_poll")
    a(f"buffer_load_dword v{D_T+2}, v{D_T}, s[{SD}:{SD+3}], s93 offen sc1")
    a("s_waitcnt vmcnt(0)")
    a(f"v_readfirstlane_b32 s95, v{D_T+2}")
    a("s_cmp_ge_u32 s95, 16")
    a("s_cbranch_scc1 main_pdone")
    a(f"s_sleep {os.environ.get('SLEEP', '8')}")
    a("s_branch main_poll")
    a.label("main_pdone")
    a("s_mov_b64 exec, -1")
    a.label("main_polled")
    a("s_cmp_ge_u32 s69, 224")
    a("s_cbranch_scc1 main_end")
    a("s_barrier")
    stamp(a, "mffn")
    a(f"s_setprio {PRIO_FFN}")
    gen_down_rest(a, K, [("d", s) for s in range(6)])
    stamp_end(a, "mffn", 28, 32, 240, 69)
    a.label("main_end")
    a("s_endpgm")
    return a.finish(), ("main_kernel", 512, 256, 73728, 256 if STAMP else 248)


PREFETCH = int(os.environ.get("PREFETCH", "1"))
PF0 = int(os.environ.get("PF0", "6"))
CODEPF = 0
ORDER = []
ROLL = int(os.environ.get("ROLL", "0"))
PRIO_ATTN = int(os.environ.get("PRIO_ATTN", "0"))
PRIO_FFN = int(os.environ.get("PRIO_FFN", "0"))


def gen_final():
    a = Asm()
    a.label("final_kernel")
    s_w, s_rb, s_cb = 32, 33, 34
    SW, SO, SWS = 20, 24, 28
    vLane, vN, vH, vWo, vB, vTr, vXo = 1, 2, 3, 4, 5, 6, 8
    T = R_T
    YR = R_ACC + 32
    a("s_cmp_ge_u32 s2, 160")
    a("s_cbranch_scc1 final_end")
    stamp_begin(a, "final")
    a("s_load_dwordx2 s[6:7], s[0:1], 32")
    a("s_load_dwordx2 s[8:9], s[0:1], 72")
    a("s_load_dwordx2 s[12:13], s[0:1], 88")
    lane_setup(a, T, vLane, vN, vH, s_w)
    a("s_and_b32 s3, s2, 7")
    a("s_lshl_b32 s3, s3, 1")
    a("s_bfe_u32 s36, s2, 0x10003")
    a(f"s_add_u32 s{s_rb}, s3, s36")
    a(f"s_lshr_b32 s{s_cb}, s2, 4")
    a(f"v_lshlrev_b32 v{vB}, 4, v{vLane}")
    a(f"v_lshrrev_b32 v{T}, 2, v{vLane}")
    a(f"v_mul_u32_u24 v{vWo}, 1280, v{T}")
    a(f"v_and_b32 v{T}, 3, v{vLane}")
    a(f"v_lshl_add_u32 v{vWo}, v{T}, 4, v{vWo}")
    a(f"v_mul_u32_u24 v{vXo}, 1280, v{vN}")
    a(f"v_lshl_add_u32 v{vXo}, v{vH}, 4, v{vXo}")
    tr_base(a, vTr, T, vLane, vH, 9)
    a(f"s_mul_i32 s40, s{s_w}, {16*1280}")
    a(f"s_lshl_b32 s41, s{s_cb}, 7")
    a("s_add_u32 s40, s40, s41")
    a(f"s_lshl_b32 s42, s{s_rb}, 2")
    a(f"s_add_u32 s42, s42, s{s_w}")
    a(f"s_mul_i32 s43, s42, {40*1024}")
    a(f"s_add_u32 s43, s43, {OF}")
    a("s_mul_i32 s45, s42, 20")
    a(f"s_lshl_b32 s46, s{s_cb}, 1")
    a("s_add_u32 s45, s45, s46")
    a("s_lshl_b32 s45, s45, 11")
    a(f"s_add_u32 s45, s45, {YF}")
    a(f"s_mul_i32 s47, s42, {32*1280}")
    a("s_add_u32 s47, s47, s41")
    a("s_waitcnt lgkmcnt(0)")
    srd(a, SW, 6, 819200)
    srd(a, SO, 8, 2621440)
    srd(a, SWS, 12, WS_END)
    R = TypeR(a, "fi", 2, 10, vTr, vWo, vB, s_w, lambda t: (SW, 0, t), (40, 40, 64 * 1280), 43, SWS, 256)
    R.setup()
    R.emit(R.vm_ops(0) + R.vm_ops(1))
    yl = [[f"buffer_load_dwordx4 {vr(YR+4*q,4)}, v{vB}, s[{SWS}:{SWS+3}], s45 offen offset:{q*1024}"] for q in range(4)]
    R.main(R.per, {4: yl})
    stamp(a, "final")
    a("s_mov_b32 s49, 0xffff0000")
    a("s_waitcnt vmcnt(0)")
    for t in range(2):
        r = R_ACC + 16 * t
        for q in range(8):
            a(f"v_lshlrev_b32 v{T+2*(q&1)}, 16, v{YR+8*t+q}")
            a(f"v_and_b32 v{T+2*(q&1)+1}, s49, v{YR+8*t+q}")
            a(f"v_pk_add_f32 {vr(r+2*q,2)}, {vr(r+2*q,2)}, {vr(T+2*(q&1),2)}")
        for q in range(8):
            a(f"v_cvt_pk_bf16_f32 v{r+q}, v{r+2*q}, v{r+2*q+1}")
        for gp in range(2):
            b = r + 4 * gp
            a(f"v_permlane32_swap_b32 v{b}, v{b+2}")
            a(f"v_permlane32_swap_b32 v{b+1}, v{b+3}")
            a(f"buffer_store_dwordx4 {vr(b,4)}, v{vXo}, s[{SO}:{SO+3}], s47 offen offset:{t*64 + gp*32}")
    stamp_end(a, "final", SWS, s_w, 240)
    a.label("final_end")
    a("s_endpgm")
    return a.finish(), ("final_kernel", 160, 256, 24576, 256 if STAMP else 216)


def gen_empty():
    a = Asm()
    a.label("empty_kernel")
    a("s_endpgm")
    return a.finish(), ("empty_kernel", 256, 256, 65536, 256)


KERNELS = {"empty": gen_empty, "main": gen_main, "qkv": gen_qkv, "gateup": gen_gateup, "attn": gen_attn, "down": gen_down, "final": gen_final}
HEADER = open("parallel_sum__grouped_kv_mqa__glu_gated_swiglu__prompt.s.ref").read().split("; Override launch")[0] if False else ""


DEFAULT = ["qkv", "main", "final"]


def build(order):
    texts, launches = {}, []
    ORDER[:] = order
    for k in order:
        t, info = KERNELS[k]()
        texts[info[0]] = (t, info)
        launches.append(info)
    out = "; generated by dev/gen.py -- LN + MQA attention + SwiGLU block for gfx950\n"
    for name, grid, block, lds, vg in launches:
        out += f"; @launch kernel={name} grid=({grid},1,1) block=({block},1,1) lds={lds}\n"
    out += '.amdgcn_target "amdgcn-amd-amdhsa--gfx950"\n.text\n'
    for name, (t, info) in texts.items():
        out += kernel_header(name) + t
    out += "code_end:\n"
    out += '.section .rodata,"a"\n'
    for name, (t, info) in texts.items():
        out += kernel_desc(name, info[4])
    return out


if __name__ == "__main__":
    order = sys.argv[2].split(",") if len(sys.argv) > 2 else DEFAULT
    open(sys.argv[1], "w").write(build(order))
```

```python
import math
import struct
import sys

from asmlib import Asm

XF = 0x0
QF = 0x280000
KF = 0x500000
VF = KF + 1280
KVS = 2624
KN = 0x52A000
CT = 0x52C000
OF = 0x530000
HF = 0x800000
FP = 0x1000000
YF = 0x1000000
WS_END = 0x2500000
TS = 0x2400000
import os
STAMP = os.environ.get("STAMP", "")


_stamp_n = {}


def stamp(a, name, vreg=255):
    if name in STAMP.split(","):
        i = _stamp_n.get(name, 0)
        _stamp_n[name] = i + 1
        a("s_memtime s[100:101]")
        a("s_waitcnt lgkmcnt(0)")
        a(f"v_writelane_b32 v{vreg}, s100, {i}")


def stamp_begin(a, name, vreg=255):
    if name in STAMP.split(","):
        a("s_memrealtime s[98:99]")
        a("s_waitcnt lgkmcnt(0)")
        a(f"v_writelane_b32 v{vreg}, s98, 14")
    stamp(a, name, vreg)


def stamp_end(a, name, sws, s_w, vtmp, s_wg=2, vreg=255):
    if name in STAMP.split(","):
        a("s_waitcnt vmcnt(0) lgkmcnt(0)")
        stamp(a, name, vreg)
        a("s_memrealtime s[98:99]")
        a("s_waitcnt lgkmcnt(0)")
        a(f"v_writelane_b32 v{vreg}, s98, 15")
        a(f"s_lshl_b32 s94, s{s_wg}, 2")
        a(f"s_add_u32 s94, s94, s{s_w}")
        a("s_lshl_b32 s94, s94, 6")
        a(f"s_add_u32 s94, s94, {TS + STAMP.split(',').index(name) * 0x20000}")
        a(f"v_and_b32 v{vtmp}, 63, v0")
        a(f"v_lshlrev_b32 v{vtmp}, 2, v{vtmp}")
        a("s_mov_b64 s[98:99], exec")
        a("s_mov_b64 exec, 0xffff")
        a(f"buffer_store_dword v{vreg}, v{vtmp}, s[{sws}:{sws+3}], s94 offen")
        a("s_mov_b64 exec, s[98:99]")


QSCALE = (20 ** -0.5) * math.log2(math.e)


def f2u(x):
    return struct.unpack("<I", struct.pack("<f", x))[0]


def hx(x):
    return "0x%x" % x


def srd(a, d, base, size):
    a(f"s_mov_b32 s{d}, s{base}")
    a(f"s_and_b32 s{d+1}, s{base+1}, 0xffff")
    a(f"s_mov_b32 s{d+2}, {hx(size)}")
    a(f"s_mov_b32 s{d+3}, 0x00020000")


def vr(b, n=1):
    return f"v{b}" if n == 1 else f"v[{b}:{b+n-1}]"


def mfma32(a, d, x, y, c=None):
    cs = vr(d, 16) if c is None else c
    a(f"v_mfma_f32_32x32x16_bf16 {vr(d,16)}, {vr(x,4)}, {vr(y,4)}, {cs}")


def kernel_header(name):
    return f""".globl {name}
.p2align 8
.type {name},@function
"""


def kernel_desc(name, vgprs, sgprs=102):
    acc = (vgprs + 3) // 4 * 4
    return f""".p2align 6
.amdhsa_kernel {name}
  .amdhsa_next_free_vgpr {vgprs}
  .amdhsa_next_free_sgpr {sgprs}
  .amdhsa_accum_offset {acc}
  .amdhsa_group_segment_fixed_size 0
  .amdhsa_kernarg_size 96
  .amdhsa_user_sgpr_count 2
  .amdhsa_user_sgpr_kernarg_segment_ptr 1
  .amdhsa_system_sgpr_workgroup_id_x 1
.end_amdhsa_kernel
"""


K_X = 16
K_ACC = 96
K_A = 192
K_T = 216
WAVE_LDS = 30720
LDS_STG = 8192


K_R = K_A


def typek_mfma_phase(a, vtr, zero=True, vm_after=None, extra=None):
    def reads(s, buf):
        for ct in range(3):
            o = (3 * s + ct) * 1024
            r = K_A + buf * 12 + ct * 4
            a(f"ds_read_b64_tr_b16 {vr(r,2)}, v{vtr} offset:{o}")
            a(f"ds_read_b64_tr_b16 {vr(r+2,2)}, v{vtr} offset:{o+256}")
    if vm_after:
        a(f"s_waitcnt vmcnt({vm_after(0)})")
    reads(0, 0)
    for s in range(10):
        if s + 1 < 10:
            if vm_after:
                a(f"s_waitcnt vmcnt({vm_after(s+1)})")
            reads(s + 1, (s + 1) & 1)
            a("s_waitcnt lgkmcnt(6)")
        else:
            a("s_waitcnt lgkmcnt(0)")
        ex = list(extra(s)) if extra else []
        n = len(ex)
        k = 0
        for ct in range(3):
            for rt in range(2):
                d = K_ACC + (rt * 3 + ct) * 16
                mfma32(a, d, K_A + (s & 1) * 12 + ct * 4, K_X + rt * 40 + s * 4, "0" if (s == 0 and zero) else None)
                k += 1
                for x in ex[((k - 1) * n) // 6:(k * n) // 6]:
                    a(x)


def reduce4(a, pfx, ACC, RES, TMP, vL16, vT, s_w, s_base, base0, stride, pre_barrier=None, post_reads=None):
    for g in range(4):
        a(f"s_cmp_eq_u32 s{s_w}, {g}")
        a(f"s_cbranch_scc1 {pfx}_rw{g}")
        a(f"s_sub_u32 s90, {g+3}, s{s_w}")
        a("s_and_b32 s90, s90, 3")
        a("s_mul_i32 s90, s90, 6144")
        a(f"s_add_u32 s90, s90, s{s_base}")
        a(f"v_add_u32 v{vT}, s90, v{vL16}")
        for t in range(6):
            a(f"ds_write_b128 v{vT}, {vr(ACC+t*16+g*4,4)} offset:{t*1024}")
        a.label(f"{pfx}_rw{g}")
    if pre_barrier:
        pre_barrier()
    for jj in range(3):
        a(f"s_add_u32 s90, s{s_w}, {jj+1}")
        a("s_and_b32 s90, s90, 3")
        a(f"s_mul_i32 s90, s90, {stride}")
        a(f"s_add_u32 s90, s90, {base0 + (2-jj)*6144}")
        a(f"v_add_u32 v{vT+1+jj}, s90, v{vL16}")
    for g in range(4):
        a(f"s_cmp_lg_u32 s{s_w}, {g}")
        a(f"s_cbranch_scc1 {pfx}_ro{g}")
        for t in range(6):
            for e in range(4):
                a(f"v_mov_b32 v{RES+t*4+e}, v{ACC+t*16+g*4+e}")
        a.label(f"{pfx}_ro{g}")
    a("s_waitcnt lgkmcnt(0)")
    a("s_barrier")
    for jj in range(3):
        for t in range(6):
            a(f"ds_read_b128 {vr(TMP+(jj*6+t)*4,4)}, v{vT+1+jj} offset:{t*1024}")
    n_extra = post_reads() if post_reads else 0
    for jj in range(3):
        a(f"s_waitcnt lgkmcnt({min(15, (2-jj)*6 + n_extra)})")
        for e in range(0, 24, 2):
            a(f"v_pk_add_f32 {vr(RES+e,2)}, {vr(RES+e,2)}, {vr(TMP+jj*24+e,2)}")


class TypeK:
    def __init__(self, a, KS, RD, RB, ACC, AF, BF, vTr, tr2, vWo, SW, s_g, gstep, s_ring, vB, SB, s_b0, s_b1, bmods=""):
        self.__dict__.update(locals())

    def dma(self, s):
        out = []
        for ct in range(3):
            out.append([f"s_add_u32 m0, s{self.s_ring}, {((s % self.RD)*3+ct)*1024}",
                        f"s_add_u32 s91, s{self.s_g}, {s*self.gstep + ct*64}",
                        f"buffer_load_dwordx4 v{self.vWo}, s[{self.SW}:{self.SW+3}], s91 offen lds"])
        return out

    def bl(self, s):
        out = []
        for rt in range(2):
            sb = self.s_b0 if rt == 0 else self.s_b1
            g = []
            if s % 4 == 0 and s:
                g.append(f"s_add_u32 s{sb}, s{sb}, 4096")
            g.append(f"buffer_load_dwordx4 {vr(self.BF+(s%self.RB)*8+rt*4,4)}, v{self.vB}, s[{self.SB}:{self.SB+3}], s{sb} offen offset:{(s%4)*1024}{self.bmods}")
            out.append(g)
        return out

    def emit(self, groups):
        for g in groups:
            for x in g:
                self.a(x)

    def reads(self, s):
        out = []
        for ct in range(3):
            o = ((s % self.RD) * 3 + ct) * 1024
            r = self.AF + (s & 1) * 12 + ct * 4
            out.append(f"ds_read_b64_tr_b16 {vr(r,2)}, v{self.vTr} offset:{o}")
            out.append(f"ds_read_b64_tr_b16 {vr(r+2,2)}, v{self.vTr} offset:{o+self.tr2}")
        return out

    def main(self, order):
        a, KS, RD, RB = self.a, self.KS, self.RD, self.RB
        order = list(order)

        def wait_for(s):
            last = max(i for i, o in enumerate(order) if o in (("d", s), ("b", s)))
            a(f"s_waitcnt vmcnt({min(63, len(order) - 1 - last)})")
        wait_for(0)
        for x in self.reads(0):
            a(x)
        for s in range(KS):
            if s + 1 < KS:
                wait_for(s + 1)
                for x in self.reads(s + 1):
                    a(x)
                a("s_waitcnt lgkmcnt(6)")
            else:
                a("s_waitcnt lgkmcnt(0)")
            dm = self.dma(s + RD) if s + RD < KS else []
            k = 0
            for ct in range(3):
                for rt in range(2):
                    mfma32(a, self.ACC + (rt * 3 + ct) * 16, self.AF + (s & 1) * 12 + ct * 4,
                           self.BF + (s % RB) * 8 + rt * 4, "0" if s == 0 else None)
                    if k % 2 == 0 and dm:
                        self.emit([dm.pop(0)])
                        order.append(("d", s + RD))
                    k += 1
            if s + RB < KS:
                self.emit(self.bl(s + RB))
                order += [("b", s + RB)] * 2


def lane_setup(a, T, vLane, vN, vH, s_w):
    a(f"v_and_b32 v{vLane}, 63, v0")
    a(f"v_lshrrev_b32 v{T}, 6, v0")
    a(f"v_readfirstlane_b32 s{s_w}, v{T}")
    a(f"v_and_b32 v{vN}, 31, v0")
    a(f"v_bfe_u32 v{vH}, v0, 5, 1")


def tr_base(a, vTr, T, vLane, vH, hshift):
    a(f"v_lshlrev_b32 v{vTr}, {hshift}, v{vH}")
    a(f"v_bfe_u32 v{T}, v{vLane}, 2, 2")
    a(f"v_lshl_add_u32 v{vTr}, v{T}, 6, v{vTr}")
    a(f"v_bfe_u32 v{T}, v{vLane}, 4, 1")
    a(f"v_lshl_add_u32 v{vTr}, v{T}, 5, v{vTr}")
    a(f"v_and_b32 v{T}, 3, v{vLane}")
    a(f"v_lshl_add_u32 v{vTr}, v{T}, 3, v{vTr}")


def gen_qkv():
    a = Asm()
    a.label("qkv_kernel")
    ST, MX = 0, 1024
    XI, SL = 8192, 21504
    WR = XI + 4 * SL
    s_w, s_rb, s_cb, s_tg = 32, 33, 34, 35
    SX, SW, SWS = 16, 20, 28
    vLane, vN, vH = 1, 2, 3
    vXg, vXr, vTr, vWo = 4, 5, 7, 8
    AC, AF, BF, ONE, T = 16, 64, 72, 88, 92
    a("s_cmp_ge_u32 s2, 256")
    a("s_cbranch_scc1 qkv_end")
    stamp_begin(a, "qkv")
    a("s_load_dwordx4 s[4:7], s[0:1], 0")
    a("s_load_dwordx4 s[8:11], s[0:1], 16")
    a("s_load_dwordx2 s[12:13], s[0:1], 88")
    a("s_load_dwordx4 s[56:59], s[0:1], 48")
    lane_setup(a, T, vLane, vN, vH, s_w)
    a("s_and_b32 s3, s2, 7")
    a("s_lshl_b32 s3, s3, 2")
    a("s_bfe_u32 s36, s2, 0x20003")
    a(f"s_add_u32 s{s_rb}, s3, s36")
    a(f"s_lshr_b32 s{s_cb}, s2, 5")
    a(f"v_mul_u32_u24 v{T}, 49, v{vLane}")
    a(f"v_lshrrev_b32 v{T}, 10, v{T}")
    a(f"v_mul_u32_u24 v{T+1}, 21, v{T}")
    a(f"v_sub_u32 v{T+1}, v{vLane}, v{T+1}")
    a(f"v_mul_u32_u24 v{vXg}, 1280, v{T}")
    a(f"v_lshl_add_u32 v{vXg}, v{T+1}, 4, v{vXg}")
    a(f"s_mul_i32 s37, s{s_w}, {SL}")
    a(f"s_add_u32 s37, s37, {XI}")
    a(f"s_mul_i32 s39, s{s_rb}, {64*1280}")
    a(f"s_mul_i32 s40, s{s_w}, 320")
    a("s_add_u32 s39, s39, s40")
    a("s_mov_b32 s52, -1")
    a("s_mov_b32 s53, 0x7fffffff")
    a("s_mov_b32 s41, 21")
    a("s_waitcnt lgkmcnt(0)")
    stamp(a, "qkv")
    srd(a, SX, 4, 2621440)
    a("s_mov_b64 exec, s[52:53]")
    a.label("qkv_xl")
    a("s_mov_b32 m0, s37")
    a("s_add_u32 s37, s37, 1008")
    a("s_sub_u32 s41, s41, 1")
    a(f"buffer_load_dwordx4 v{vXg}, s[{SX}:{SX+3}], s39 offen lds")
    a("s_add_u32 s39, s39, 3840")
    a("s_cmp_lg_u32 s41, 0")
    a("s_cbranch_scc1 qkv_xl")
    a("s_mov_b64 exec, 0x1fffff")
    a("s_mov_b32 m0, s37")
    a("s_nop 0")
    a(f"buffer_load_dwordx4 v{vXg}, s[{SX}:{SX+3}], s39 offen lds")
    a("s_mov_b64 exec, -1")
    srd(a, SWS, 12, WS_END)
    a(f"v_mul_u32_u24 v{vXr}, 336, v{vN}")
    a(f"v_lshl_add_u32 v{vXr}, v{vH}, 4, v{vXr}")
    a(f"v_add_u32 v{vXr}, {XI}, v{vXr}")
    a(f"s_cmp_eq_u32 s{s_w}, 3")
    a("s_cbranch_scc1 qkv_w3")
    a(f"s_mul_i32 s{s_tg}, s{s_cb}, 3")
    a(f"s_add_u32 s{s_tg}, s{s_tg}, s{s_w}")
    a(f"v_lshrrev_b32 v{T}, 2, v{vLane}")
    a(f"v_and_b32 v{T+1}, 3, v{vLane}")
    a(f"v_lshlrev_b32 v{T+1}, 4, v{T+1}")
    a(f"s_cmp_eq_u32 s{s_tg}, 21")
    a(f"s_cselect_b32 s{SW}, s10, s8")
    a(f"s_cselect_b32 s{SW+1}, s11, s9")
    a(f"s_cmp_lt_u32 s{s_tg}, 22")
    a(f"s_cselect_b32 s{SW+2}, 25600, 0")
    a(f"s_lshl_b32 s45, s{s_tg}, 6")
    a(f"s_cmp_lt_u32 s{s_tg}, 20")
    a(f"s_cselect_b32 s{SW}, s6, s{SW}")
    a(f"s_cselect_b32 s{SW+1}, s7, s{SW+1}")
    a(f"s_cselect_b32 s{SW+2}, 819200, s{SW+2}")
    a(f"s_mov_b32 s{SW+3}, 0x00020000")
    a("s_cselect_b32 s42, s45, 0")
    a("s_movk_i32 s38, 1280")
    a("s_cselect_b32 s38, s38, 40")
    a(f"s_and_b32 s{SW+1}, s{SW+1}, 0xffff")
    a(f"v_mad_u32_u24 v{vWo}, v{T}, s38, v{T+1}")
    a("s_lshl_b32 s43, s38, 4")
    a(f"s_mul_i32 s44, s{s_w}, 20480")
    a(f"s_add_u32 s44, s44, {WR}")
    a("s_mov_b32 s46, s44")
    a("s_mov_b32 s41, 20")
    a.label("qkv_wl")
    a("s_mov_b32 m0, s46")
    a("s_add_u32 s46, s46, 1024")
    a("s_sub_u32 s41, s41, 1")
    a(f"buffer_load_dwordx4 v{vWo}, s[{SW}:{SW+3}], s42 offen lds")
    a("s_add_u32 s42, s42, s43")
    a("s_cmp_lg_u32 s41, 0")
    a("s_cbranch_scc1 qkv_wl")
    tr_base(a, vTr, T, vLane, vH, 9)
    a(f"v_add_u32 v{vTr}, s44, v{vTr}")
    for e in range(4):
        a(f"v_mov_b32 v{ONE+e}, 0x3f803f80")
    for e in range(48):
        a(f"v_mov_b32 v{AC+e}, 0")
    stamp(a, "qkv")
    a("s_waitcnt vmcnt(20)")
    stamp(a, "qkv")
    a("s_barrier")
    stamp(a, "qkv")

    def rd(s, nxt):
        b = s & 1
        xa = vXr + 1 if nxt else vXr
        ta = vTr + 2 if nxt else vTr
        p = 0 if nxt else s
        a(f"ds_read_b64_tr_b16 {vr(AF+4*b,2)}, v{ta} offset:{p*1024}")
        a(f"ds_read_b64_tr_b16 {vr(AF+4*b+2,2)}, v{ta} offset:{p*1024+256}")
        a(f"ds_read_b128 {vr(BF+8*b,4)}, v{xa} offset:{p*32}")
        a(f"ds_read_b128 {vr(BF+8*b+4,4)}, v{xa} offset:{p*32+10752}")
    a("s_waitcnt vmcnt(19)")
    rd(0, False)
    a("s_mov_b32 s41, 4")
    a("s_mov_b32 s46, s44")
    a.label("qkv_loop")
    a(f"v_add_u32 v{vXr+1}, {SL}, v{vXr}")
    a("s_sub_u32 s47, s46, s44")
    a("s_xor_b32 s47, s47, 10240")
    a("s_sub_u32 s48, s44, s46")
    a("s_add_u32 s48, s48, s47")
    a(f"v_add_u32 v{vTr+2}, s48, v{vTr}")
    for sx in range(10):
        a("s_waitcnt vmcnt(18)")
        rd(sx + 1, sx == 9)
        a("s_waitcnt lgkmcnt(4)")
        a(f"s_add_u32 m0, s46, {sx*1024}")
        b = sx & 1
        mfma32(a, AC, AF + 4 * b, BF + 8 * b)
        a(f"buffer_load_dwordx4 v{vWo}, s[{SW}:{SW+3}], s42 offen lds")
        a("s_add_u32 s42, s42, s43")
        mfma32(a, AC + 16, AF + 4 * b, BF + 8 * b + 4)
        mfma32(a, AC + 32, AF + 4 * b, ONE)
    a(f"v_mov_b32 v{vXr}, v{vXr+1}")
    a(f"v_mov_b32 v{vTr}, v{vTr+2}")
    a("s_add_u32 s46, s44, s47")
    a("s_sub_u32 s41, s41, 1")
    a("s_cmp_lg_u32 s41, 0")
    a("s_cbranch_scc1 qkv_loop")
    stamp(a, "qkv")
    a("s_waitcnt lgkmcnt(0)")
    a("s_barrier")
    a(f"s_cmp_ge_u32 s{s_tg}, 22")
    a("s_cbranch_scc1 qkv_fin" if STAMP else "s_cbranch_scc1 qkv_end")
    a(f"v_lshlrev_b32 v{T}, 3, v{vN}")
    a(f"ds_read_b64 {vr(T+2,2)}, v{T} offset:{ST}")
    a(f"ds_read_b64 {vr(T+4,2)}, v{T} offset:{ST+256}")
    a(f"s_mov_b32 s45, {hx(f2u(QSCALE))}")
    a(f"s_cmp_lt_u32 s{s_tg}, 20")
    a("s_cselect_b32 s45, s45, 1.0")
    a("s_waitcnt lgkmcnt(0)")
    for rt in range(2):
        a(f"v_mul_f32 v{T+3+2*rt}, s45, v{T+3+2*rt}")
    for rt in range(2):
        for e in range(16):
            r = AC + 16 * rt + e
            a(f"v_fma_f32 v{r}, -v{T+2+2*rt}, v{AC+32+e}, v{r}")
            a(f"v_mul_f32 v{r}, v{r}, v{T+3+2*rt}")
    stamp(a, "qkv")
    vC0, vHead, vD0, vOff, vA = T + 6, T + 7, T + 8, T + 9, T + 10

    def frag_off():
        a(f"v_lshrrev_b32 v{vA}, 3, v{vD0}")
        a(f"v_lshlrev_b32 v{vA}, 9, v{vA}")
        a(f"v_lshl_add_u32 v{vA}, v{vN}, 4, v{vA}")
        a(f"v_and_b32 v{vA+1}, 4, v{vD0}")
        a(f"v_lshl_add_u32 v{vA}, v{vA+1}, 1, v{vA}")
        a(f"v_lshlrev_b32 v{vA+1}, 3, v{vN}")
        a(f"v_add_u32 v{vA+1}, 1024, v{vA+1}")
        a(f"v_cmp_gt_u32 vcc, 16, v{vD0}")
        a(f"v_cndmask_b32 v{vA}, v{vA+1}, v{vA}, vcc")
        a(f"v_add_u32 v{vOff}, v{vOff}, v{vA}")
    a(f"s_cmp_ge_u32 s{s_tg}, 20")
    a("s_cbranch_scc1 qkv_kv")
    a("s_mov_b32 s46, 3277")
    a(f"s_lshl_b32 s38, s{s_tg}, 5")
    a(f"s_mul_i32 s48, s{s_rb}, {2*32*1280}")
    a(f"s_add_u32 s48, s48, {QF}")
    a(f"s_add_u32 s49, s48, {32*1280}")
    for g in range(4):
        a(f"v_lshlrev_b32 v{vC0}, 2, v{vH}")
        a(f"v_add_u32 v{vC0}, s38, v{vC0}")
        if g:
            a(f"v_add_u32 v{vC0}, {8*g}, v{vC0}")
        a(f"v_mul_u32_u24 v{vHead}, s46, v{vC0}")
        a(f"v_lshrrev_b32 v{vHead}, 16, v{vHead}")
        a(f"v_mul_u32_u24 v{vD0}, 20, v{vHead}")
        a(f"v_sub_u32 v{vD0}, v{vC0}, v{vD0}")
        a(f"v_mul_u32_u24 v{vOff}, 1280, v{vHead}")
        frag_off()
        for rt in range(2):
            r = AC + 16 * rt + 4 * g
            a(f"v_cvt_pk_bf16_f32 v{r}, v{r}, v{r+1}")
            a(f"v_cvt_pk_bf16_f32 v{r+1}, v{r+2}, v{r+3}")
            a(f"buffer_store_dwordx2 {vr(r,2)}, v{vOff}, s[{SWS}:{SWS+3}], s{48+rt} offen")
    a("s_branch qkv_fin")
    a.label("qkv_kv")
    a(f"v_cmp_eq_u32 s[54:55], 0, v{vH}")
    for rt in range(2):
        q = T + 12 + rt
        r = AC + 16 * rt
        a(f"v_mul_f32 v{q}, v{r+8}, v{r+8}")
        for e in range(9, 12):
            a(f"v_fmac_f32 v{q}, v{r+e}, v{r+e}")
        a(f"v_cndmask_b32 v{q}, 0, v{q}, s[54:55]")
        for e in range(8):
            a(f"v_fmac_f32 v{q}, v{r+e}, v{r+e}")
        a(f"v_mov_b32 v{q+2}, v{q}")
        a(f"v_permlane32_swap_b32 v{q}, v{q+2}")
        a(f"v_add_f32 v{q}, v{q}, v{q+2}")
        for g in range(3):
            a(f"v_cvt_pk_bf16_f32 v{r+4*g}, v{r+4*g}, v{r+4*g+1}")
            a(f"v_cvt_pk_bf16_f32 v{r+4*g+1}, v{r+4*g+2}, v{r+4*g+3}")
    a(f"v_max_u32 v{T+12}, v{T+12}, v{T+13}")
    a(f"v_mov_b32 v{T+13}, 0")
    a(f"ds_max_u32 v{T+13}, v{T+12} offset:{MX}")
    a(f"s_cmp_eq_u32 s{s_tg}, 21")
    a("s_cbranch_scc1 qkv_v")
    a(f"s_mul_i32 s48, s{s_rb}, {2*KVS}")
    a(f"s_add_u32 s48, s48, {KF}")
    a(f"s_add_u32 s49, s48, {KVS}")
    for g in range(3):
        a(f"v_lshlrev_b32 v{vD0}, 2, v{vH}")
        if g:
            a(f"v_add_u32 v{vD0}, {8*g}, v{vD0}")
        a(f"v_mov_b32 v{vOff}, 0")
        frag_off()
        if g == 2:
            a("s_mov_b64 exec, 0xffffffff")
        for rt in range(2):
            a(f"buffer_store_dwordx2 {vr(AC+16*rt+4*g,2)}, v{vOff}, s[{SWS}:{SWS+3}], s{48+rt} offen")
    a("s_mov_b64 exec, -1")
    a("s_branch qkv_kn")
    a.label("qkv_v")
    a(f"s_mul_i32 s48, s{s_rb}, {2*KVS}")
    a(f"s_add_u32 s48, s48, {VF}")
    a(f"s_add_u32 s49, s48, {KVS}")
    a(f"v_lshrrev_b32 v{vA}, 4, v{vN}")
    a(f"v_lshlrev_b32 v{vA}, 1, v{vA}")
    a(f"v_bfe_u32 v{vA+1}, v{vN}, 2, 1")
    a(f"v_add_u32 v{vA}, v{vA}, v{vA+1}")
    a(f"v_mul_u32_u24 v{vA}, 21, v{vA}")
    a(f"v_lshl_add_u32 v{vA}, v{vH}, 2, v{vA}")
    a(f"v_lshlrev_b32 v{vOff}, 4, v{vA}")
    a(f"v_and_b32 v{vA}, 3, v{vN}")
    a(f"v_lshl_add_u32 v{vOff}, v{vA}, 1, v{vOff}")
    a(f"v_bfe_u32 v{vA}, v{vN}, 3, 1")
    a(f"v_lshl_add_u32 v{vOff}, v{vA}, 3, v{vOff}")
    for g in range(3):
        if g == 2:
            a("s_mov_b64 exec, 0xffffffff")
        for rt in range(2):
            r = AC + 16 * rt + 4 * g
            o = g * 128
            a(f"buffer_store_short v{r}, v{vOff}, s[{SWS}:{SWS+3}], s{48+rt} offen offset:{o}")
            a(f"buffer_store_short_d16_hi v{r}, v{vOff}, s[{SWS}:{SWS+3}], s{48+rt} offen offset:{o+16}")
            a(f"buffer_store_short v{r+1}, v{vOff}, s[{SWS}:{SWS+3}], s{48+rt} offen offset:{o+32}")
            a(f"buffer_store_short_d16_hi v{r+1}, v{vOff}, s[{SWS}:{SWS+3}], s{48+rt} offen offset:{o+48}")
    a("s_add_u32 s48, s48, 320")
    a(f"v_and_b32 v{vA}, 3, v{vLane}")
    a(f"v_mul_u32_u24 v{vOff}, 336, v{vA}")
    a(f"v_lshrrev_b32 v{vA}, 2, v{vLane}")
    a(f"v_mul_u32_u24 v{vA}, {KVS}, v{vA}")
    a(f"v_add_u32 v{vOff}, v{vOff}, v{vA}")
    a("s_mov_b64 exec, 0xff")
    a(f"buffer_store_dwordx4 {vr(ONE,4)}, v{vOff}, s[{SWS}:{SWS+3}], s48 offen")
    a("s_mov_b64 exec, -1")
    a.label("qkv_kn")
    a("s_waitcnt lgkmcnt(0)")
    a(f"ds_read_b32 v{T+12}, v{T+13} offset:{MX}")
    a(f"s_sub_u32 s48, s{s_tg}, 20")
    a("s_lshl_b32 s48, s48, 5")
    a(f"s_add_u32 s48, s48, s{s_rb}")
    a("s_lshl_b32 s48, s48, 2")
    a(f"s_add_u32 s48, s48, {KN}")
    a("s_waitcnt lgkmcnt(0)")
    a(f"buffer_store_dword v{T+12}, v{T+13}, s[{SWS}:{SWS+3}], s48 offen")
    a.label("qkv_fin")
    stamp_end(a, "qkv", SWS, s_w, 120)
    a("s_endpgm")
    _stamp_n["qkv"] = 2
    a.label("qkv_w3")
    X = AC
    a(f"v_mul_u32_u24 v{vTr}, 336, v{vLane}")
    a(f"v_add_u32 v{vTr}, {XI}, v{vTr}")
    a(f"v_mov_b32 v{T+8}, 0x3f803f80")
    for e in range(4):
        a(f"v_mov_b32 v{T+4+e}, 0")
    a(f"ds_write_b32 v{T+4}, v{T+4} offset:{MX}")
    stamp(a, "qkv")
    a("s_waitcnt vmcnt(0) lgkmcnt(0)")
    stamp(a, "qkv")
    a("s_barrier")
    stamp(a, "qkv")
    a("s_mov_b32 s41, 4")
    a.label("qkv_sl")
    for c in range(19):
        a(f"ds_read_b128 {vr(X+4*c,4)}, v{vTr} offset:{c*16}")
    a(f"ds_read_b128 {vr(T,4)}, v{vTr} offset:{19*16}")
    for c in range(20):
        a(f"s_waitcnt lgkmcnt({min(15, 19-c)})")
        for e in range(4):
            x = (X + 4 * c + e) if c < 19 else T + e
            b = T + 4 + (e & 1) * 2
            a(f"v_dot2_f32_bf16 v{b}, v{x}, v{T+8}, v{b}")
            a(f"v_dot2_f32_bf16 v{b+1}, v{x}, v{x}, v{b+1}")
    a(f"v_add_u32 v{vTr}, {SL}, v{vTr}")
    a("s_sub_u32 s41, s41, 1")
    a("s_cmp_lg_u32 s41, 0")
    a("s_cbranch_scc1 qkv_sl")
    a(f"s_mov_b32 s45, {hx(f2u(1.0/640))}")
    a(f"s_mov_b32 s46, {hx(f2u(1e-5))}")
    mu, sq, m_b, rr, t0 = T + 4, T + 5, T + 10, T + 11, T + 9
    a(f"v_pk_add_f32 {vr(mu,2)}, {vr(mu,2)}, {vr(mu+2,2)}")
    a(f"v_mul_f32 v{mu}, s45, v{mu}")
    a(f"v_mul_f32 v{sq}, s45, v{sq}")
    a(f"v_fma_f32 v{sq}, -v{mu}, v{mu}, v{sq}")
    a(f"v_max_f32 v{sq}, 0, v{sq}")
    a(f"v_cvt_pk_bf16_f32 v{m_b}, v{mu}, v{sq}")
    a(f"v_and_b32 v{t0}, 0xffff0000, v{m_b}")
    a(f"v_lshlrev_b32 v{m_b}, 16, v{m_b}")
    a(f"v_add_f32 v{t0}, s46, v{t0}")
    a(f"v_cvt_pk_bf16_f32 v{t0}, v{t0}, v{t0}")
    a(f"v_lshlrev_b32 v{t0}, 16, v{t0}")
    a(f"v_sqrt_f32 v{t0}, v{t0}")
    a(f"v_cvt_pk_bf16_f32 v{t0}, v{t0}, v{t0}")
    a(f"v_lshlrev_b32 v{t0}, 16, v{t0}")
    a(f"v_rcp_f32 v{rr}, v{t0}")
    a(f"v_lshlrev_b32 v{T}, 3, v{vLane}")
    a(f"ds_write_b64 v{T}, {vr(m_b,2)} offset:{ST}")
    a("s_waitcnt lgkmcnt(0)")
    stamp(a, "qkv")
    a("s_barrier")
    a(f"v_lshlrev_b32 v{T}, 3, v{vN}")
    a(f"ds_read_b64 {vr(T+2,2)}, v{T} offset:{ST}")
    a(f"ds_read_b64 {vr(T+4,2)}, v{T} offset:{ST+256}")
    for i in range(10):
        rt = i // 5
        a(f"s_add_u32 s41, s{s_cb}, {8*i - 40*rt}")
        a("s_mul_i32 s42, s41, 26")
        a("s_lshr_b32 s42, s42, 8")
        a(f"s_mul_i32 s43, s42, {SL - 320}")
        a("s_lshl_b32 s41, s41, 5")
        a("s_add_u32 s43, s43, s41")
        a(f"v_add_u32 v{T+6}, s43, v{vXr}")
        a(f"ds_read_b128 {vr(X+4*i,4)}, v{T+6} offset:{rt*10752}")
    a("s_waitcnt lgkmcnt(10)")
    PR = X + 40
    for rt in range(2):
        a(f"v_mov_b32 v{PR+4*rt}, v{T+3+2*rt}")
        a(f"v_mov_b32 v{PR+4*rt+1}, v{T+3+2*rt}")
        a(f"v_mul_f32_e64 v{PR+4*rt+2}, -v{T+2+2*rt}, v{T+3+2*rt}")
        a(f"v_mov_b32 v{PR+4*rt+3}, v{PR+4*rt+2}")
    a("s_mov_b32 s47, 0xffff0000")
    a(f"v_lshlrev_b32 v{T}, 4, v{vLane}")
    a(f"s_mul_i32 s39, s{s_rb}, 80")
    a(f"s_add_u32 s39, s39, s{s_cb}")
    a("s_lshl_b32 s39, s39, 10")
    if XF:
        a(f"s_add_u32 s39, s39, {XF}")
    for i in range(10):
        rt = i // 5
        a(f"s_waitcnt lgkmcnt({9-i})")
        for q in range(4):
            x = X + 4 * i + q
            u = X + 48 + q * 2
            a(f"v_lshlrev_b32 v{u}, 16, v{x}")
            a(f"v_and_b32 v{u+1}, s47, v{x}")
            a(f"v_pk_fma_f32 {vr(u,2)}, {vr(u,2)}, {vr(PR+4*rt,2)}, {vr(PR+4*rt+2,2)}")
            a(f"v_cvt_pk_bf16_f32 v{x}, v{u}, v{u+1}")
        a(f"buffer_store_dwordx4 {vr(X+4*i,4)}, v{T}, s[{SWS}:{SWS+3}], s39 offen")
        a("s_add_u32 s39, s39, 8192")
    if PREFETCH:
        srd(a, 60, 56, 1966080)
        srd(a, 64, 58, 1966080)
        a(f"v_mul_u32_u24 v{T+1}, 43, v{vLane}")
        a(f"v_lshrrev_b32 v{T+1}, 9, v{T+1}")
        a(f"v_mul_u32_u24 v{T+2}, 12, v{T+1}")
        a(f"v_sub_u32 v{T+2}, v{vLane}, v{T+2}")
        a(f"v_mul_u32_u24 v{T+1}, 3072, v{T+1}")
        a(f"v_lshl_add_u32 v{T+1}, v{T+2}, 6, v{T+1}")
        a("s_lshr_b32 s44, s2, 3")
        a(f"s_mul_i32 s44, s44, {20*3072}")
        a("s_bfe_u32 s38, s2, 0x20001")
        a("s_mul_i32 s38, s38, 768")
        a("s_add_u32 s44, s44, s38")
        a("s_mov_b32 s53, 0x0fffffff")
        a("s_mov_b64 exec, s[52:53]")
        for q in range(4):
            a(f"buffer_load_dword v{T+3}, v{T+1}, s[60:63], s44 offen")
            a(f"buffer_load_dword v{T+3}, v{T+1}, s[64:67], s44 offen")
            a(f"s_add_u32 s44, s44, {5*3072}")
        a("s_mov_b64 exec, -1")
    a("s_cmp_lg_u32 s2, 255")
    a("s_cbranch_scc1 qkv_noct")
    a(f"v_lshlrev_b32 v{T+4}, 8, v{vLane}")
    a(f"v_mov_b32 v{T+5}, 0")
    a(f"s_mov_b32 s44, {CT}")
    a("s_mov_b64 exec, 0xffff")
    a(f"buffer_store_dword v{T+5}, v{T+4}, s[{SWS}:{SWS+3}], s44 offen")
    a("s_mov_b64 exec, -1")
    a.label("qkv_noct")
    stamp(a, "qkv")
    stamp_end(a, "qkv", SWS, s_w, 120)
    a.label("qkv_end")
    a("s_endpgm")
    return a.finish(), ("qkv_kernel", 256, 256, WR + 61440, 256 if STAMP else 128)


A_Q, A_O, A_S, A_P, A_K, A_V, A_M = 16, 48, 112, 144, 160, 192, 224
A_T = 228
NSET = 4
OOB = 0x80000000


def gen_attn_body(a, pfx, s_wg):
    s_w, s_rt, s_kh, s_hd = 32, 33, 34, 35
    SWS = 28
    vLane, vN, vH = 1, 2, 3
    vK1, vK2, vV = 4, 5, 6
    T = A_T
    a("s_load_dwordx2 s[12:13], s[0:1], 88")
    a("s_load_dwordx2 s[14:15], s[0:1], 32")
    lane_setup(a, T, vLane, vN, vH, s_w)
    a(f"s_and_b32 s3, s{s_wg}, 7")
    a(f"s_lshr_b32 s36, s{s_wg}, 5")
    a("s_lshl_b32 s3, s3, 3")
    a(f"s_add_u32 s{s_rt}, s3, s36")
    a(f"s_bfe_u32 s3, s{s_wg}, 0x20003")
    a(f"s_and_b32 s{s_kh}, s{s_w}, 1")
    a(f"s_lshr_b32 s36, s{s_w}, 1")
    a("s_lshl_b32 s3, s3, 3")
    a("s_lshl_b32 s36, s36, 2")
    a(f"s_add_u32 s{s_hd}, s3, s36")
    a(f"v_lshlrev_b32 v{vK1}, 4, v{vLane}")
    a(f"v_lshlrev_b32 v{vK2}, 3, v{vN}")
    a(f"v_add_u32 v{vK2}, 1024, v{vK2}")
    a(f"v_mov_b32 v{T}, {hx(OOB)}")
    a(f"v_cmp_eq_u32 vcc, 0, v{vH}")
    a(f"v_cndmask_b32 v{vK2}, v{T}, v{vK2}, vcc")
    a(f"v_mul_u32_u24 v{vV}, 21, v{vH}")
    a(f"v_add_u32 v{vV}, v{vV}, v{vN}")
    a(f"v_lshlrev_b32 v{vV}, 4, v{vV}")
    a(f"v_cmp_gt_u32 vcc, 21, v{vN}")
    a(f"v_cndmask_b32 v{vV}, v{T}, v{vV}, vcc")
    a("s_waitcnt lgkmcnt(0)")
    srd(a, SWS, 12, WS_END)
    a(f"s_add_u32 s12, s12, {KN}")
    a("s_addc_u32 s13, s13, 0")
    a("s_load_dwordx16 s[64:79], s[12:13], 0")
    a("s_load_dwordx16 s[80:95], s[12:13], 64")
    a("s_load_dwordx16 s[44:59], s[12:13], 128")
    a(f"s_lshl_b32 s36, s{s_rt}, 5")
    a(f"s_add_u32 s36, s36, s{s_hd}")
    a("s_mul_i32 s36, s36, 1280")
    a(f"s_add_u32 s36, s36, {QF}")
    for i in range(4):
        a(f"buffer_load_dwordx4 {vr(A_Q+8*i,4)}, v{vK1}, s[{SWS}:{SWS+3}], s36 offen")
        a(f"buffer_load_dwordx2 {vr(A_Q+8*i+4,2)}, v{vK2}, s[{SWS}:{SWS+3}], s36 offen")
        if i < 3:
            a("s_add_u32 s36, s36, 1280")
    s_kp, s_vp = 37, 38
    a(f"s_mul_i32 s{s_kp}, s{s_kh}, {32*KVS}")
    a(f"s_add_u32 s{s_kp}, s{s_kp}, {KF}")
    a(f"s_add_u32 s{s_vp}, s{s_kp}, 1280")

    def loadK(st):
        a(f"buffer_load_dwordx4 {vr(A_K+8*st,4)}, v{vK1}, s[{SWS}:{SWS+3}], s{s_kp} offen")
        a(f"buffer_load_dwordx2 {vr(A_K+8*st+4,2)}, v{vK2}, s[{SWS}:{SWS+3}], s{s_kp} offen")
        a(f"s_add_u32 s{s_kp}, s{s_kp}, {KVS}")

    def loadV(st):
        a(f"buffer_load_dwordx4 {vr(A_V+8*st,4)}, v{vV}, s[{SWS}:{SWS+3}], s{s_vp} offen")
        a(f"buffer_load_dwordx4 {vr(A_V+8*st+4,4)}, v{vV}, s[{SWS}:{SWS+3}], s{s_vp} offen offset:672")
        a(f"s_add_u32 s{s_vp}, s{s_vp}, {KVS}")
    for st in range(NSET - 1):
        loadK(st)
        loadV(st)
    loadK(NSET - 1)
    for i in range(4):
        a(f"v_mov_b32 v{A_Q+8*i+6}, 0")
        a(f"v_mov_b32 v{A_Q+8*i+7}, 0")
    for st in range(NSET):
        a(f"v_mov_b32 v{A_K+8*st+6}, 0")
        a(f"v_mov_b32 v{A_K+8*st+7}, 0")
    for r in range(64):
        a(f"v_mov_b32 v{A_O+r}, 0")
    for r in range(16):
        a(f"v_mov_b32 v{A_P+r}, 0")
    for r in range(8):
        a(f"v_mov_b32 v{A_V+8*(NSET-1)+r}, 0")
    for r in range(4):
        a(f"v_mov_b32 v{A_M+r}, 0")
    a("s_waitcnt lgkmcnt(0)")
    for r in range(65, 96):
        a(f"s_max_u32 s64, s64, s{r}")
    for r in range(45, 60):
        a(f"s_max_u32 s44, s44, s{r}")
    a("s_load_dwordx16 s[80:95], s[12:13], 192")
    a("s_waitcnt lgkmcnt(0)")
    for r in range(80, 96):
        a(f"s_max_u32 s44, s44, s{r}")
    a(f"s_waitcnt vmcnt({4*NSET-2})")
    for i in range(4):
        a(f"v_mov_b32 v{T+i}, 0")
    for r in range(6):
        for i in range(4):
            a(f"v_dot2_f32_bf16 v{T+i}, v{A_Q+8*i+r}, v{A_Q+8*i+r}, v{T+i}")
    for i in range(4):
        a(f"v_mov_b32 v{T+4+i}, v{T+i}")
    for i in range(4):
        a(f"v_permlane32_swap_b32 v{T+i}, v{T+4+i}")
    for i in range(4):
        a(f"v_add_f32 v{T+i}, v{T+i}, v{T+4+i}")
    a(f"v_max3_f32 v{T}, v{T}, v{T+1}, v{T+2}")
    a(f"v_max_f32 v{T}, v{T}, v{T+3}")
    a(f"v_mul_f32 v{T}, s64, v{T}")
    a(f"v_mov_b32 v{T+1}, {hx(f2u(3600.0/1.05))}")
    a(f"v_cmp_nle_f32 vcc, v{T}, v{T+1}")
    a(f"s_cmp_gt_u32 s44, {hx(f2u(2.0**80))}")
    a(f"s_cbranch_scc1 {pfx}_slow")
    a(f"s_cbranch_vccnz {pfx}_slow")

    def qk(m, sb, ks, i):
        if m == 0:
            mfma32(a, A_S + 16 * sb, A_K + 8 * ks, A_Q + 8 * i, "0")
        else:
            mfma32(a, A_S + 16 * sb, A_K + 8 * ks + 4, A_Q + 8 * i + 4)

    def pv(m, pb, vs, i):
        mfma32(a, A_O + 16 * i, A_V + 8 * vs + 4 * m, A_P + 8 * pb + 4 * m)

    a(f"s_waitcnt vmcnt({4*NSET-4})")
    qk(0, 0, 0, 0)
    qk(1, 0, 0, 0)
    stamp(a, "attn")
    a(f"s_mov_b32 s39, {32//NSET}")
    a("s_nop 10")
    a.raw(".p2align 6")
    a.label(f"{pfx}_loop")
    for kk in range(NSET):
        for i in range(4):
            cur = i & 1
            S = A_S + 16 * cur
            P = A_P + 8 * cur
            nks, ni = (kk, i + 1) if i < 3 else ((kk + 1) % NSET, 0)
            pvs, pi = (kk, i - 1) if i > 0 else ((kk - 1) % NSET, 3)
            if i in (1, 3) and not os.environ.get("NOWAIT"):
                a(f"s_waitcnt vmcnt({4*NSET-6})")
            qk(0, cur ^ 1, nks, ni)
            for e in range(0, 4):
                a(f"v_exp_f32 v{S+e}, v{S+e}")
            qk(1, cur ^ 1, nks, ni)
            if i == 1 and not os.environ.get("NOKV"):
                loadV((kk - 1) % NSET)
            if i == 3 and not os.environ.get("NOKV"):
                loadK(kk)
            for e in range(4, 8):
                a(f"v_exp_f32 v{S+e}, v{S+e}")
            pv(0, cur ^ 1, pvs, pi)
            for e in range(8, 12):
                a(f"v_exp_f32 v{S+e}, v{S+e}")
            for j in range(0, 2):
                a(f"v_cvt_pk_bf16_f32 v{P+j}, v{S+2*j}, v{S+2*j+1}")
            pv(1, cur ^ 1, pvs, pi)
            for e in range(12, 16):
                a(f"v_exp_f32 v{S+e}, v{S+e}")
            for j in range(2, 8):
                a(f"v_cvt_pk_bf16_f32 v{P+j}, v{S+2*j}, v{S+2*j+1}")
    a("s_sub_u32 s39, s39, 1")
    a("s_cmp_lg_u32 s39, 0")
    a(f"s_cbranch_scc1 {pfx}_loop")
    pv(0, 1, NSET - 1, 3)
    pv(1, 1, NSET - 1, 3)
    stamp(a, "attn")
    a(f"s_branch {pfx}_epi")

    a.label(f"{pfx}_slow")
    for r in range(4):
        a(f"v_mov_b32 v{A_M+r}, {hx(f2u(-1e30))}")
    a("s_mov_b32 s39, 32")
    a(f"s_sub_u32 s{s_kp}, s{s_kp}, {KVS*(NSET-1)}")
    a(f"s_sub_u32 s{s_vp}, s{s_vp}, {KVS*(NSET-2)}")
    a.label(f"{pfx}_sloop")
    a("s_waitcnt vmcnt(0)")
    for i in range(4):
        S, P, M = A_S, A_P, A_M + i
        qk(0, 0, 0, i)
        qk(1, 0, 0, i)
        a(f"v_max3_f32 v{T}, v{S}, v{S+1}, v{S+2}")
        for e in range(3, 15, 2):
            a(f"v_max3_f32 v{T}, v{T}, v{S+e}, v{S+e+1}")
        a(f"v_max_f32 v{T}, v{T}, v{S+15}")
        a(f"v_mov_b32 v{T+1}, v{T}")
        a(f"v_permlane32_swap_b32 v{T}, v{T+1}")
        a(f"v_max3_f32 v{T}, v{T}, v{T+1}, v{M}")
        a(f"v_sub_f32 v{T+1}, v{M}, v{T}")
        a(f"v_exp_f32 v{T+1}, v{T+1}")
        a(f"v_mov_b32 v{M}, v{T}")
        for e in range(16):
            a(f"v_sub_f32 v{S+e}, v{S+e}, v{T}")
            a(f"v_exp_f32 v{S+e}, v{S+e}")
        for j in range(8):
            a(f"v_cvt_pk_bf16_f32 v{P+j}, v{S+2*j}, v{S+2*j+1}")
        for e in range(16):
            a(f"v_mul_f32 v{A_O+16*i+e}, v{A_O+16*i+e}, v{T+1}")
        pv(0, 0, 0, i)
        pv(1, 0, 0, i)
    loadK(0)
    loadV(0)
    a("s_sub_u32 s39, s39, 1")
    a("s_cmp_lg_u32 s39, 0")
    a(f"s_cbranch_scc1 {pfx}_sloop")

    a.label(f"{pfx}_epi")
    a("s_waitcnt vmcnt(0)")
    if PREFETCH:
        srd(a, 16, 14, 819200)
        a(f"s_lshr_b32 s40, s{s_wg}, 3")
        a("s_lshl_b32 s40, s40, 2")
        a(f"s_add_u32 s40, s40, s{s_w}")
        a("s_mul_i32 s40, s40, 6400")
        a(f"v_lshlrev_b32 v{T+14}, 6, v{vLane}")
        a(f"buffer_load_dword v{T+15}, v{T+14}, s[16:19], s40 offen")
        a("s_add_u32 s40, s40, 4096")
        a(f"buffer_load_dword v{T+15}, v{T+14}, s[16:19], s40 offen")
    vW, vR = T, T + 1
    a(f"s_mul_i32 s40, s{s_w}, 6656")
    a(f"s_xor_b32 s41, s{s_w}, 1")
    a("s_mul_i32 s41, s41, 6656")
    a(f"v_add_u32 v{vW}, s40, v{vK1}")
    a(f"v_add_u32 v{vR}, s41, v{vK1}")
    a(f"v_lshlrev_b32 v{T+2}, 2, v{vLane}")
    a(f"v_add_u32 v{T+3}, s41, v{T+2}")
    a(f"v_add_u32 v{T+2}, s40, v{T+2}")
    a(f"s_cmp_eq_u32 s{s_kh}, 0")
    a(f"s_cbranch_scc1 {pfx}_e0")
    for t in range(2):
        for q in range(3):
            a(f"ds_write_b128 v{vW}, {vr(A_O+16*t+4*q,4)} offset:{(t*3+q)*1024}")
        a(f"ds_write_b32 v{T+2}, v{A_M+t} offset:{6144+t*256}")
    a("s_waitcnt lgkmcnt(0)")
    for t in range(2):
        for e in range(12):
            a(f"v_mov_b32 v{A_O+16*t+e}, v{A_O+16*(t+2)+e}")
        a(f"v_mov_b32 v{A_M+t}, v{A_M+t+2}")
    a(f"s_add_u32 s{s_hd}, s{s_hd}, 2")
    a(f"s_branch {pfx}_e1")
    a.label(f"{pfx}_e0")
    for t in range(2):
        for q in range(3):
            a(f"ds_write_b128 v{vW}, {vr(A_O+16*(t+2)+4*q,4)} offset:{(t*3+q)*1024}")
        a(f"ds_write_b32 v{T+2}, v{A_M+t+2} offset:{6144+t*256}")
    a("s_waitcnt lgkmcnt(0)")
    a.label(f"{pfx}_e1")
    a("s_barrier")
    for t in range(2):
        for q in range(3):
            a(f"ds_read_b128 {vr(A_S+16*t+4*q,4)}, v{vR} offset:{(t*3+q)*1024}")
        a(f"ds_read_b32 v{A_M+2+t}, v{T+3} offset:{6144+t*256}")
    a("s_waitcnt lgkmcnt(0)")
    a(f"s_mul_i32 s40, s{s_rt}, {40*1024}")
    a(f"s_add_u32 s40, s40, {OF}")
    a(f"v_mov_b32 v{T+12}, {hx(OOB)}")
    a(f"v_cmp_eq_u32 s[42:43], 0, v{vH}")
    for t in range(2):
        O, Pz, Ma, Mp = A_O + 16 * t, A_S + 16 * t, A_M + t, A_M + 2 + t
        a(f"v_max_f32 v{T+4}, v{Ma}, v{Mp}")
        a(f"v_sub_f32 v{T+5}, v{Ma}, v{T+4}")
        a(f"v_sub_f32 v{T+6}, v{Mp}, v{T+4}")
        a(f"v_exp_f32 v{T+5}, v{T+5}")
        a(f"v_exp_f32 v{T+6}, v{T+6}")
        for e in range(12):
            a(f"v_mul_f32 v{O+e}, v{O+e}, v{T+5}")
            a(f"v_fmac_f32 v{O+e}, v{Pz+e}, v{T+6}")
        a(f"v_mov_b32 v{T+7}, v{O+8}")
        a(f"v_mov_b32 v{T+8}, v{O+8}")
        a(f"v_permlane32_swap_b32 v{T+7}, v{T+8}")
        a(f"v_rcp_f32 v{T+8}, v{T+8}")
        for e in range(12):
            a(f"v_mul_f32 v{O+e}, v{O+e}, v{T+8}")
        for q in range(3):
            a(f"v_cvt_pk_bf16_f32 v{O+4*q}, v{O+4*q}, v{O+4*q+1}")
            a(f"v_cvt_pk_bf16_f32 v{O+4*q+1}, v{O+4*q+2}, v{O+4*q+3}")
        a(f"s_add_u32 s41, s{s_hd}, {t}")
        a("s_mul_i32 s41, s41, 20")
        for q in range(3):
            k, off = T + 9, T + 10
            a(f"v_lshlrev_b32 v{k}, 2, v{vH}")
            a(f"v_add_u32 v{k}, s41, v{k}")
            if q:
                a(f"v_add_u32 v{k}, {8*q}, v{k}")
            a(f"v_lshrrev_b32 v{off}, 3, v{k}")
            a(f"v_lshlrev_b32 v{off}, 9, v{off}")
            a(f"v_lshl_add_u32 v{off}, v{vN}, 4, v{off}")
            a(f"v_and_b32 v{k}, 4, v{k}")
            a(f"v_lshl_add_u32 v{off}, v{k}, 1, v{off}")
            if q == 2:
                a(f"v_cndmask_b32 v{off}, v{T+12}, v{off}, s[42:43]")
            a(f"buffer_store_dwordx2 {vr(O+4*q,2)}, v{off}, s[{SWS}:{SWS+3}], s40 offen")


def gen_attn():
    a = Asm()
    a.label("attn_kernel")
    a("s_cmp_ge_u32 s2, 256")
    a("s_cbranch_scc1 attn_end")
    stamp_begin(a, "attn")
    gen_attn_body(a, "attn", 2)
    stamp_end(a, "attn", 28, 32, 250)
    a.label("attn_end")
    a("s_endpgm")
    return a.finish(), ("attn_kernel", 256, 256, 26624, 256 if STAMP else 248)


R_ACC, R_A, R_B, R_T = 16, 112, 160, 208


def zero_acc(a, acc, n, tmp):
    for e in range(4):
        a(f"v_mov_b32 v{tmp+e}, 0")
    for t in range(n):
        mfma32(a, acc + 16 * t, tmp, tmp, "0")


def typek_rolled(K, pfx):
    a, RD = K.a, K.RD
    assert K.RD == 6 and K.RB == 6 and K.KS % 6 == 0
    a("s_waitcnt vmcnt(10)")
    for x in K.reads(0):
        a(x)
    a(f"s_mov_b32 s59, {K.KS // 6}")
    a(f"s_add_u32 s{K.s_g}, s{K.s_g}, {6*K.gstep}")
    a.label(f"{pfx}_kl")
    for s in range(6):
        a(f"s_waitcnt vmcnt({min(22, 10 + 3*s)})")
        for x in K.reads(s + 1):
            a(x)
        a("s_waitcnt lgkmcnt(6)")
        k = 0
        for ct in range(3):
            for rt in range(2):
                mfma32(a, K.ACC + (rt * 3 + ct) * 16, K.AF + (s & 1) * 12 + ct * 4, K.BF + s * 8 + rt * 4)
                if k % 2 == 0:
                    c = k // 2
                    a(f"s_add_u32 m0, s{K.s_ring}, {(s*3+c)*1024}")
                    a(f"s_add_u32 s91, s{K.s_g}, {s*K.gstep + c*64}")
                    a(f"buffer_load_dwordx4 v{K.vWo}, s[{K.SW}:{K.SW+3}], s91 offen lds")
                k += 1
        for rt in range(2):
            sb = K.s_b0 if rt == 0 else K.s_b1
            a(f"s_add_u32 s91, s{sb}, {(s+6)*1024}")
            a(f"buffer_load_dwordx4 {vr(K.BF+s*8+rt*4,4)}, v{K.vB}, s[{K.SB}:{K.SB+3}], s91 offen{K.bmods}")
    a(f"s_add_u32 s{K.s_g}, s{K.s_g}, {6*K.gstep}")
    a(f"s_add_u32 s{K.s_b0}, s{K.s_b0}, 6144")
    a(f"s_add_u32 s{K.s_b1}, s{K.s_b1}, 6144")
    a("s_sub_u32 s59, s59, 1")
    a("s_cmp_lg_u32 s59, 0")
    a(f"s_cbranch_scc1 {pfx}_kl")
    a("s_waitcnt vmcnt(0) lgkmcnt(0)")


class TypeR:
    def __init__(self, a, pfx, NT, NS, vTr, vWo, vB, s_w, srd_of_tile, goff, s_bp, SWS, tr2, bmods=""):
        self.__dict__.update(locals())
        self.SLOT = 4 * NT * 1024
        self.sname = {"gu": "gateup", "dn": "down", "fi": "final"}[pfx[:2]]
        self.s_m = 60
        self.per = NT + 4

    def dma_ops(self, stage):
        slot = stage % 3
        s_g0, s_g1, gstep = self.goff
        out = []
        for t in range(self.NT):
            sr, grp, tt = self.srd_of_tile(t)
            out.append([f"s_add_u32 m0, s{self.s_m}, {slot*self.SLOT + t*1024}",
                        f"s_add_u32 s61, s{s_g0 if grp == 0 else s_g1}, {stage*gstep + tt*64}",
                        f"buffer_load_dwordx4 v{self.vWo}, s[{sr}:{sr+3}], s61 offen lds"])
        return out

    def b_ops(self, stage):
        slot = stage % 3
        bl = []
        for j in range(4):
            g = []
            if j == 0:
                g.append(f"s_add_u32 s62, s{self.s_bp}, {stage*4096}")
            g.append(f"buffer_load_dwordx4 {vr(R_B+slot*16+j*4,4)}, v{self.vB}, s[{self.SWS}:{self.SWS+3}], s62 offen offset:{j*1024}{self.bmods}")
            bl.append(g)
        return bl

    def vm_ops(self, stage):
        out, bl, res = self.dma_ops(stage), self.b_ops(stage), []
        while out or bl:
            if out:
                res.append(out.pop(0))
            if bl and len(res) > 1:
                res.append(bl.pop(0))
        return res

    def emit(self, groups):
        for g in groups:
            for x in g:
                self.a(x)

    def reads(self, stage, j):
        buf = (stage * 4 + j) & 1
        slot = stage % 3
        base = (slot & 1) * self.SLOT + j * self.NT * 1024
        va = self.vTr + (slot >> 1)
        out = []
        for t in range(self.NT):
            r = R_A + buf * 24 + t * 4
            out.append(f"ds_read_b64_tr_b16 {vr(r,2)}, v{va} offset:{base + t*1024}")
            out.append(f"ds_read_b64_tr_b16 {vr(r+2,2)}, v{va} offset:{base + t*1024 + self.tr2}")
        return out

    def mf(self, stage, j, t):
        buf = (stage * 4 + j) & 1
        first = stage == 0 and j == 0
        mfma32(self.a, R_ACC + 16 * t, R_A + buf * 24 + t * 4, R_B + (stage % 3) * 16 + j * 4, "0" if first else None)

    def setup(self):
        a = self.a
        a(f"s_mul_i32 s{self.s_m}, s{self.s_w}, {self.NT*1024}")
        a(f"v_add_u32 v{self.vTr+1}, {2*self.SLOT}, v{self.vTr}")

    def main(self, first_wait, extra_vm=None):
        a, NT, NS = self.a, self.NT, self.NS
        extra_vm = extra_vm or {}
        order = [0] * self.per + [1] * self.per
        stamp(a, self.sname)
        a(f"s_waitcnt vmcnt({first_wait})")
        a("s_barrier")
        stamp(a, self.sname)
        for x in self.reads(0, 0):
            a(x)
        for i in range(NS):
            if i in (1, 2, 4):
                stamp(a, self.sname)
            ops = self.vm_ops(i + 2) if i + 2 < NS else []
            order += [i + 2] * len(ops)
            ops = ops + extra_vm.get(i, [])
            order += [-1] * len(extra_vm.get(i, []))
            nslots = 3 * NT
            place = {}
            for k, g in enumerate(ops):
                place.setdefault((k * nslots) // len(ops), []).append(g)
            for j in range(3):
                rd = self.reads(i, j + 1)
                for t in range(NT):
                    a(f"s_waitcnt lgkmcnt({2*(NT-1)})")
                    self.mf(i, j, t)
                    a(rd[2 * t])
                    a(rd[2 * t + 1])
                    if j * NT + t in place:
                        self.emit(place[j * NT + t])
            last = i + 1 == NS
            H = NT if last else (NT + 1) // 2
            for t in range(H):
                a(f"s_waitcnt lgkmcnt({2*(NT-1-t)})")
                self.mf(i, 3, t)
            if not last:
                lastidx = max(k for k, o in enumerate(order) if o == i + 1)
                a(f"s_waitcnt vmcnt({len(order) - 1 - lastidx}) lgkmcnt(0)")
                a("s_barrier")
                rd = self.reads(i + 1, 0)
                n = NT - H
                for k, t in enumerate(range(H, NT)):
                    self.mf(i, 3, t)
                    for x in rd[(k * len(rd)) // n:((k + 1) * len(rd)) // n]:
                        a(x)


def typer_rolled(R, extra_vm=None):
    a, NT = R.a, R.NT
    assert R.NS == 10
    s_g0, s_g1, gstep = R.goff
    extra_vm = extra_vm or []
    a(f"s_waitcnt vmcnt({R.per})")
    a("s_barrier")
    stamp(a, R.sname)
    for x in R.reads(0, 0):
        a(x)
    a("s_mov_b32 s59, 3")
    a.label(f"{R.pfx}_rl")
    nx = len(extra_vm)

    def stage(i, ops, xtra, wait_n, last=False):
        ops = xtra + ops
        nslots = 3 * NT
        place = {}
        for k, g in enumerate(ops):
            place.setdefault((k * nslots) // len(ops), []).append(g)
        for j in range(3):
            rd = R.reads(i, j + 1)
            for t in range(NT):
                a(f"s_waitcnt lgkmcnt({2*(NT-1)})")
                R.mf(i + 3, j, t)
                a(rd[2 * t])
                a(rd[2 * t + 1])
                if j * NT + t in place:
                    R.emit(place[j * NT + t])
        H = NT if last else (NT + 1) // 2
        for t in range(H):
            a(f"s_waitcnt lgkmcnt({2*(NT-1-t)})")
            R.mf(i + 3, 3, t)
        if not last:
            a(f"s_waitcnt vmcnt({wait_n}) lgkmcnt(0)")
            a("s_barrier")
            rd = R.reads(i + 1, 0)
            n = NT - H
            for k, t in enumerate(range(H, NT)):
                R.mf(i + 3, 3, t)
                for x in rd[(k * len(rd)) // n:((k + 1) * len(rd)) // n]:
                    a(x)
    stage(0, R.vm_ops(2), extra_vm, R.per + nx)
    stage(1, R.vm_ops(3), [], R.per)
    stage(2, R.vm_ops(4), [], R.per)
    a(f"s_add_u32 s{s_g0}, s{s_g0}, {3*gstep}")
    if s_g1 != s_g0:
        a(f"s_add_u32 s{s_g1}, s{s_g1}, {3*gstep}")
    a(f"s_add_u32 s{R.s_bp}, s{R.s_bp}, {3*4096}")
    a("s_sub_u32 s59, s59, 1")
    a("s_cmp_lg_u32 s59, 0")
    a(f"s_cbranch_scc1 {R.pfx}_rl")
    stage(0, [], [], 0, last=True)


def gen_gateup_body(a, pfx, s_wg, mid_hook=None, smods='', extra_vm=None):
    s_w, s_rb, s_cb = 32, 33, 34
    SW1, SW3, SWS = 16, 20, 28
    vLane, vN, vH, vWo, vB, vTr = 1, 2, 3, 4, 5, 6
    T = R_T
    a("s_load_dwordx4 s[4:7], s[0:1], 48")
    a("s_load_dwordx2 s[12:13], s[0:1], 88")
    lane_setup(a, T, vLane, vN, vH, s_w)
    a(f"s_and_b32 s3, s{s_wg}, 7")
    a(f"s_lshr_b32 s35, s{s_wg}, 3")
    a("s_and_b32 s36, s3, 1")
    a("s_lshl_b32 s36, s36, 3")
    a("s_and_b32 s37, s35, 7")
    a(f"s_add_u32 s{s_rb}, s36, s37")
    a("s_lshr_b32 s36, s3, 1")
    a("s_lshl_b32 s36, s36, 2")
    a("s_lshr_b32 s37, s35, 3")
    a(f"s_add_u32 s{s_cb}, s36, s37")
    a(f"v_lshrrev_b32 v{T}, 2, v{vLane}")
    a(f"v_mul_u32_u24 v{vWo}, 3072, v{T}")
    a(f"v_and_b32 v{T}, 3, v{vLane}")
    a(f"v_lshl_add_u32 v{vWo}, v{T}, 4, v{vWo}")
    tr_base(a, vTr, T, vLane, vH, 9)
    a(f"v_lshlrev_b32 v{vB}, 4, v{vLane}")
    a(f"s_mul_i32 s40, s{s_w}, {16*3072}")
    a(f"s_mul_i32 s41, s{s_cb}, 192")
    a("s_add_u32 s40, s40, s41")
    a(f"s_lshl_b32 s42, s{s_rb}, 2")
    a(f"s_add_u32 s42, s42, s{s_w}")
    a(f"s_mul_i32 s43, s42, {40*1024}")
    if XF:
        a(f"s_add_u32 s43, s43, {XF}")
    a("s_waitcnt lgkmcnt(0)")
    srd(a, SW1, 4, 1966080)
    srd(a, SW3, 6, 1966080)
    srd(a, SWS, 12, WS_END)
    R = TypeR(a, pfx, 6, 10, vTr, vWo, vB, s_w,
              lambda t: (SW1, 0, t) if t < 3 else (SW3, 0, t - 3), (40, 40, 64 * 3072), 43, SWS, 256)
    R.setup()
    R.emit(R.vm_ops(0) + R.vm_ops(1))
    if ROLL:
        zero_acc(a, R_ACC, 6, R_A)
        typer_rolled(R, extra_vm)
    else:
        R.main(R.per, extra_vm)
    if mid_hook:
        mid_hook()
    stamp(a, "gateup")
    a(f"s_mov_b32 s44, {hx(f2u(-math.log2(math.e)))}")
    a(f"s_mul_i32 s45, s42, {96*1024}")
    a(f"s_mul_i32 s46, s{s_cb}, {6*1024}")
    a("s_add_u32 s45, s45, s46")
    a(f"s_add_u32 s45, s45, {HF}")
    a(f"v_mov_b32 v{T}, s44")
    a(f"v_mov_b32 v{T+1}, s44")
    a(f"v_mov_b32 v{T+2}, 1.0")
    a(f"v_mov_b32 v{T+3}, 1.0")
    for t in range(3):
        g, u = R_ACC + 16 * t, R_ACC + 16 * (t + 3)
        E = R_A
        for e in range(0, 16, 2):
            a(f"v_pk_mul_f32 {vr(E+e,2)}, {vr(g+e,2)}, {vr(T,2)}")
        for e in range(16):
            a(f"v_exp_f32 v{E+e}, v{E+e}")
        for e in range(0, 16, 2):
            a(f"v_pk_add_f32 {vr(E+e,2)}, {vr(E+e,2)}, {vr(T+2,2)}")
        for e in range(16):
            a(f"v_rcp_f32 v{E+e}, v{E+e}")
        for e in range(0, 16, 2):
            a(f"v_pk_mul_f32 {vr(g+e,2)}, {vr(g+e,2)}, {vr(u+e,2)}")
        for e in range(0, 16, 2):
            a(f"v_pk_mul_f32 {vr(g+e,2)}, {vr(g+e,2)}, {vr(E+e,2)}")
        for j in range(8):
            a(f"v_cvt_pk_bf16_f32 v{u+j}, v{g+2*j}, v{g+2*j+1}")
        for hf in range(2):
            o = (2 * t + hf) * 1024
            if o < 4096:
                a(f"buffer_store_dwordx4 {vr(u+4*hf,4)}, v{vB}, s[{SWS}:{SWS+3}], s45 offen offset:{o}{smods}")
            else:
                a(f"s_add_u32 s46, s45, {o}")
                a(f"buffer_store_dwordx4 {vr(u+4*hf,4)}, v{vB}, s[{SWS}:{SWS+3}], s46 offen{smods}")


def gen_gateup():
    a = Asm()
    a.label("gateup_kernel")
    a("s_cmp_ge_u32 s2, 256")
    a("s_cbranch_scc1 gateup_end")
    stamp_begin(a, "gateup")
    gen_gateup_body(a, "gu", 2)
    stamp_end(a, "gateup", 28, 32, 240)
    a.label("gateup_end")
    a("s_endpgm")
    return a.finish(), ("gateup_kernel", 256, 256, 73728, 256 if STAMP else 216)


D_AF, D_BF, D_RES, D_XR, D_T = 112, 136, 184, 212, 224
RING = 18432


def tile64_setup(a, s_wg, s_rb, s_cb):
    a(f"s_and_b32 s3, s{s_wg}, 7")
    a("s_lshl_b32 s3, s3, 2")
    a(f"s_bfe_u32 s36, s{s_wg}, 0x20003")
    a(f"s_add_u32 s{s_rb}, s3, s36")
    a(f"s_lshr_b32 s{s_cb}, s{s_wg}, 5")


def gen_down_setup(a, s_wg, standalone, bmods=""):
    s_w = 32
    s_rb, s_cb = 63, 64
    SW, SWS, SX = 24, 28, 76
    vLane, vN, vH, vWo, vB, vTr, vXo = 1, 2, 3, 8, 5, 9, 10
    T = D_T
    a("s_load_dwordx2 s[8:9], s[0:1], 64")
    a("s_load_dwordx2 s[14:15], s[0:1], 0")
    if standalone:
        a("s_load_dwordx2 s[12:13], s[0:1], 88")
        lane_setup(a, T, vLane, vN, vH, s_w)
        a(f"v_lshlrev_b32 v{vB}, 4, v{vLane}")
    tile64_setup(a, s_wg, s_rb, s_cb)
    a(f"v_lshrrev_b32 v{T}, 2, v{vLane}")
    a(f"v_mul_u32_u24 v{vWo}, 1280, v{T}")
    a(f"v_and_b32 v{T}, 3, v{vLane}")
    a(f"v_lshl_add_u32 v{vWo}, v{T}, 4, v{vWo}")
    tr_base(a, vTr, T, vLane, vH, 8)
    a(f"s_mul_i32 s67, s{s_w}, {RING}")
    a(f"v_add_u32 v{vTr}, s67, v{vTr}")
    a(f"v_mul_u32_u24 v{vXo}, 1280, v{vN}")
    a(f"v_lshl_add_u32 v{vXo}, v{vH}, 3, v{vXo}")
    a(f"s_mul_i32 s66, s{s_w}, {384*1280}")
    a(f"s_mul_i32 s37, s{s_cb}, 192")
    a("s_add_u32 s66, s66, s37")
    a(f"s_mul_i32 s68, s{s_rb}, {2*96*1024}")
    a(f"s_mul_i32 s36, s{s_w}, {24*1024}")
    a("s_add_u32 s68, s68, s36")
    a(f"s_add_u32 s68, s68, {HF}")
    a(f"s_add_u32 s65, s68, {96*1024}")
    a(f"s_mul_i32 s70, s{s_rb}, {64*1280}")
    a("s_add_u32 s70, s70, s37")
    a(f"s_lshl_b32 s36, s{s_w}, 4")
    a("s_add_u32 s70, s70, s36")
    a(f"s_add_u32 s71, s70, {32*1280}")
    a("s_waitcnt lgkmcnt(0)")
    srd(a, SW, 8, 1966080)
    srd(a, SX, 14, 2621440)
    if standalone:
        srd(a, SWS, 12, WS_END)
    K = TypeK(a, 24, 6, 6, R_ACC, D_AF, D_BF, vTr, 512, vWo, SW, 66, 16 * 1280, 67, vB, SWS, 68, 65, bmods)
    return K


def gen_down_issue(a, K):
    SX, vXo = 76, 10
    for rt in range(2):
        for ct in range(3):
            a(f"buffer_load_dwordx2 {vr(D_XR+(rt*3+ct)*2,2)}, v{vXo}, s[{SX}:{SX+3}], s{70+rt} offen offset:{ct*64}")
    order = [("x",)] * 6
    for s in range(6):
        K.emit(K.dma(s))
        order += [("d", s)] * 3
    return K, order


def gen_down_rest(a, K, order):
    s_w, s_rb, s_cb, SWS, vB, vLane = 32, 63, 64, 28, 5, 1
    T = D_T
    if ROLL:
        for s in range(6):
            for rt in range(2):
                sb = K.s_b0 if rt == 0 else K.s_b1
                a(f"s_add_u32 s91, s{sb}, {s*1024}")
                a(f"buffer_load_dwordx4 {vr(K.BF+s*8+rt*4,4)}, v{K.vB}, s[{K.SB}:{K.SB+3}], s91 offen{K.bmods}")
        zero_acc(a, R_ACC, 6, D_AF)
        typek_rolled(K, "dn")
    else:
        for s in range(6):
            K.emit(K.bl(s))
            order = order + [("b", s)] * 2
        K.main(order)
    stamp(a, "mffn")
    stamp(a, "down")
    a("s_setprio 2")
    reduce4(a, "dn", R_ACC, D_RES, R_ACC, vB, T, s_w, 67, 0, RING)
    a("s_mov_b32 s49, 0xffff0000")
    a(f"s_mul_i32 s45, s{s_rb}, 40")
    a(f"s_mul_i32 s46, s{s_cb}, 3")
    a("s_add_u32 s45, s45, s46")
    a("s_lshl_b32 s45, s45, 11")
    a(f"s_lshr_b32 s46, s{s_w}, 1")
    a("s_lshl_b32 s46, s46, 10")
    a("s_add_u32 s45, s45, s46")
    a(f"s_and_b32 s46, s{s_w}, 1")
    a("s_lshl_b32 s46, s46, 3")
    a("s_add_u32 s45, s45, s46")
    a(f"s_add_u32 s45, s45, {YF}")
    for ct in range(3):
        if ct == 2:
            a(f"s_cmp_eq_u32 s{s_cb}, 6")
            a("s_cbranch_scc1 dn_skip")
        for rt in range(2):
            r = D_RES + (rt * 3 + ct) * 4
            xr = D_XR + (rt * 3 + ct) * 2
            for e in range(2):
                a(f"v_lshlrev_b32 v{T}, 16, v{xr+e}")
                a(f"v_and_b32 v{T+1}, s49, v{xr+e}")
                a(f"v_pk_add_f32 {vr(r+2*e,2)}, {vr(r+2*e,2)}, {vr(T,2)}")
            a(f"v_cvt_pk_bf16_f32 v{r}, v{r}, v{r+1}")
            a(f"v_cvt_pk_bf16_f32 v{r+1}, v{r+2}, v{r+3}")
            a(f"s_add_u32 s46, s45, {(rt*20+ct)*2048}")
            a(f"buffer_store_dwordx2 {vr(r,2)}, v{vB}, s[{SWS}:{SWS+3}], s46 offen")
    a.label("dn_skip")


def gen_down():
    a = Asm()
    a.label("down_kernel")
    a("s_cmp_ge_u32 s2, 224")
    a("s_cbranch_scc1 down_end")
    stamp_begin(a, "down")
    K, order = gen_down_issue(a, gen_down_setup(a, 2, True))
    stamp(a, "down")
    gen_down_rest(a, K, order)
    stamp_end(a, "down", 28, 32, 240)
    a.label("down_end")
    a("s_endpgm")
    return a.finish(), ("down_kernel", 224, 256, 73728, 256 if STAMP else 232)


def gen_main():
    a = Asm()
    a.label("main_kernel")
    a("s_cmp_ge_u32 s2, 512")
    a("s_cbranch_scc1 main_end")
    a("s_cmp_ge_u32 s2, 256")
    a("s_cbranch_scc1 main_ffn")
    if PRIO_ATTN:
        a(f"s_setprio {PRIO_ATTN}")
    stamp_begin(a, "mattn")
    gen_attn_body(a, "ma", 2)
    stamp_end(a, "mattn", 28, 32, 250)
    a("s_endpgm")
    a.label("main_ffn")
    if PRIO_FFN:
        a(f"s_setprio {PRIO_FFN}")
    a("s_sub_u32 s69, s2, 256")
    stamp_begin(a, "mffn")
    st = {}
    K0 = gen_down_setup(a, 69, True, " sc1")
    xvm = {}
    if PREFETCH and PF0 >= 0:
        a("s_lshr_b32 s96, s69, 3")
        a("s_lshl_b32 s96, s96, 2")
        a("s_add_u32 s96, s96, s32")
        a("s_lshl_b32 s96, s96, 14")
        a(f"v_lshlrev_b32 v11, 6, v1")
        for q in range(4):
            xvm[PF0 + q] = [[f"s_add_u32 s97, s96, {q*4096}",
                             f"buffer_load_dword v12, v11, s[24:27], s97 offen"]]
        if ROLL:
            xvm = [["buffer_load_dword v12, v11, s[24:27], s96 offen", "s_add_u32 s96, s96, 2752"],
                   ["buffer_load_dword v12, v11, s[24:27], s96 offen", "s_add_u32 s96, s96, 2752"]]

    def mid():
        stamp(a, "mffn")
        a("s_barrier")
        a("s_cmp_ge_u32 s69, 224")
        a("s_cbranch_scc1 main_nodn")
        st["K"] = gen_down_issue(a, K0)
        a.label("main_nodn")
        a("s_setprio 2")
    gen_gateup_body(a, "gu", 69, mid, " sc1", xvm)
    K, order = st["K"]
    SD = 28
    a("s_setprio 0")
    a("s_lshl_b32 s92, s33, 8")
    a(f"s_add_u32 s92, s92, {CT}")
    a("s_lshr_b32 s93, s63, 1")
    a("s_lshl_b32 s93, s93, 8")
    a(f"s_add_u32 s93, s93, {CT}")
    a("s_waitcnt vmcnt(0)")
    a("s_barrier")
    stamp(a, "mffn")
    a("s_cmp_lg_u32 s32, 0")
    a("s_cbranch_scc1 main_polled")
    a(f"v_mov_b32 v{D_T}, 0")
    a(f"v_mov_b32 v{D_T+1}, 1")
    a("s_mov_b64 exec, 1")
    a(f"buffer_atomic_add v{D_T+1}, v{D_T}, s[{SD}:{SD+3}], s92 offen sc1")
    a("s_cmp_ge_u32 s69, 224")
    a("s_cbranch_scc1 main_pdone")
    a.label("main_poll")
    a(f"buffer_load_dword v{D_T+2}, v{D_T}, s[{SD}:{SD+3}], s93 offen sc1")
    a("s_waitcnt vmcnt(0)")
    a(f"v_readfirstlane_b32 s95, v{D_T+2}")
    a("s_cmp_ge_u32 s95, 16")
    a("s_cbranch_scc1 main_pdone")
    a(f"s_sleep {os.environ.get('SLEEP', '8')}")
    a("s_branch main_poll")
    a.label("main_pdone")
    a("s_mov_b64 exec, -1")
    a.label("main_polled")
    a("s_cmp_ge_u32 s69, 224")
    a("s_cbranch_scc1 main_end")
    a("s_barrier")
    stamp(a, "mffn")
    a(f"s_setprio {PRIO_FFN}")
    gen_down_rest(a, K, [("d", s) for s in range(6)])
    stamp_end(a, "mffn", 28, 32, 240, 69)
    a.label("main_end")
    a("s_endpgm")
    return a.finish(), ("main_kernel", 512, 256, 73728, 256 if STAMP else 248)


PREFETCH = int(os.environ.get("PREFETCH", "1"))
PF0 = int(os.environ.get("PF0", "6"))
CODEPF = 0
ORDER = []
ROLL = int(os.environ.get("ROLL", "0"))
PRIO_ATTN = int(os.environ.get("PRIO_ATTN", "0"))
PRIO_FFN = int(os.environ.get("PRIO_FFN", "0"))


def gen_final():
    a = Asm()
    a.label("final_kernel")
    s_w, s_rb, s_cb = 32, 33, 34
    SW, SO, SWS = 20, 24, 28
    vLane, vN, vH, vWo, vB, vTr, vXo = 1, 2, 3, 4, 5, 6, 8
    T = R_T
    YR = R_ACC + 32
    a("s_cmp_ge_u32 s2, 160")
    a("s_cbranch_scc1 final_end")
    stamp_begin(a, "final")
    a("s_load_dwordx2 s[6:7], s[0:1], 32")
    a("s_load_dwordx2 s[8:9], s[0:1], 72")
    a("s_load_dwordx2 s[12:13], s[0:1], 88")
    lane_setup(a, T, vLane, vN, vH, s_w)
    a("s_and_b32 s3, s2, 7")
    a("s_lshl_b32 s3, s3, 1")
    a("s_bfe_u32 s36, s2, 0x10003")
    a(f"s_add_u32 s{s_rb}, s3, s36")
    a(f"s_lshr_b32 s{s_cb}, s2, 4")
    a(f"v_lshlrev_b32 v{vB}, 4, v{vLane}")
    a(f"v_lshrrev_b32 v{T}, 2, v{vLane}")
    a(f"v_mul_u32_u24 v{vWo}, 1280, v{T}")
    a(f"v_and_b32 v{T}, 3, v{vLane}")
    a(f"v_lshl_add_u32 v{vWo}, v{T}, 4, v{vWo}")
    a(f"v_mul_u32_u24 v{vXo}, 1280, v{vN}")
    a(f"v_lshl_add_u32 v{vXo}, v{vH}, 4, v{vXo}")
    tr_base(a, vTr, T, vLane, vH, 9)
    a(f"s_mul_i32 s40, s{s_w}, {16*1280}")
    a(f"s_lshl_b32 s41, s{s_cb}, 7")
    a("s_add_u32 s40, s40, s41")
    a(f"s_lshl_b32 s42, s{s_rb}, 2")
    a(f"s_add_u32 s42, s42, s{s_w}")
    a(f"s_mul_i32 s43, s42, {40*1024}")
    a(f"s_add_u32 s43, s43, {OF}")
    a("s_mul_i32 s45, s42, 20")
    a(f"s_lshl_b32 s46, s{s_cb}, 1")
    a("s_add_u32 s45, s45, s46")
    a("s_lshl_b32 s45, s45, 11")
    a(f"s_add_u32 s45, s45, {YF}")
    a(f"s_mul_i32 s47, s42, {32*1280}")
    a("s_add_u32 s47, s47, s41")
    a("s_waitcnt lgkmcnt(0)")
    srd(a, SW, 6, 819200)
    srd(a, SO, 8, 2621440)
    srd(a, SWS, 12, WS_END)
    R = TypeR(a, "fi", 2, 10, vTr, vWo, vB, s_w, lambda t: (SW, 0, t), (40, 40, 64 * 1280), 43, SWS, 256)
    R.setup()
    R.emit(R.vm_ops(0) + R.vm_ops(1))
    yl = [[f"buffer_load_dwordx4 {vr(YR+4*q,4)}, v{vB}, s[{SWS}:{SWS+3}], s45 offen offset:{q*1024}"] for q in range(4)]
    R.main(R.per, {4: yl})
    stamp(a, "final")
    a("s_mov_b32 s49, 0xffff0000")
    a("s_waitcnt vmcnt(0)")
    for t in range(2):
        r = R_ACC + 16 * t
        for q in range(8):
            a(f"v_lshlrev_b32 v{T+2*(q&1)}, 16, v{YR+8*t+q}")
            a(f"v_and_b32 v{T+2*(q&1)+1}, s49, v{YR+8*t+q}")
            a(f"v_pk_add_f32 {vr(r+2*q,2)}, {vr(r+2*q,2)}, {vr(T+2*(q&1),2)}")
        for q in range(8):
            a(f"v_cvt_pk_bf16_f32 v{r+q}, v{r+2*q}, v{r+2*q+1}")
        for gp in range(2):
            b = r + 4 * gp
            a(f"v_permlane32_swap_b32 v{b}, v{b+2}")
            a(f"v_permlane32_swap_b32 v{b+1}, v{b+3}")
            a(f"buffer_store_dwordx4 {vr(b,4)}, v{vXo}, s[{SO}:{SO+3}], s47 offen offset:{t*64 + gp*32}")
    stamp_end(a, "final", SWS, s_w, 240)
    a.label("final_end")
    a("s_endpgm")
    return a.finish(), ("final_kernel", 160, 256, 24576, 256 if STAMP else 216)


def gen_empty():
    a = Asm()
    a.label("empty_kernel")
    a("s_endpgm")
    return a.finish(), ("empty_kernel", 256, 256, 65536, 256)


KERNELS = {"empty": gen_empty, "main": gen_main, "qkv": gen_qkv, "gateup": gen_gateup, "attn": gen_attn, "down": gen_down, "final": gen_final}
HEADER = open("parallel_sum__grouped_kv_mqa__glu_gated_swiglu__prompt.s.ref").read().split("; Override launch")[0] if False else ""


DEFAULT = ["qkv", "main", "final"]


def build(order):
    texts, launches = {}, []
    ORDER[:] = order
    for k in order:
        t, info = KERNELS[k]()
        texts[info[0]] = (t, info)
        launches.append(info)
    out = "; generated by dev/gen.py -- LN + MQA attention + SwiGLU block for gfx950\n"
    for name, grid, block, lds, vg in launches:
        out += f"; @launch kernel={name} grid=({grid},1,1) block=({block},1,1) lds={lds}\n"
    out += '.amdgcn_target "amdgcn-amd-amdhsa--gfx950"\n.text\n'
    for name, (t, info) in texts.items():
        out += kernel_header(name) + t
    out += "code_end:\n"
    out += '.section .rodata,"a"\n'
    for name, (t, info) in texts.items():
        out += kernel_desc(name, info[4])
    return out


if __name__ == "__main__":
    order = sys.argv[2].split(",") if len(sys.argv) > 2 else DEFAULT
    open(sys.argv[1], "w").write(build(order))
```

```python
import math
import struct
import sys

from asmlib import Asm

XF = 0x0
QF = 0x280000
KF = 0x500000
VF = KF + 1280
KVS = 2624
KN = 0x52A000
CT = 0x52C000
OF = 0x530000
HF = 0x800000
FP = 0x1000000
YF = 0x1000000
WS_END = 0x2500000
TS = 0x2400000
import os
STAMP = os.environ.get("STAMP", "")


_stamp_n = {}


def stamp(a, name, vreg=255):
    if name in STAMP.split(","):
        i = _stamp_n.get(name, 0)
        _stamp_n[name] = i + 1
        a("s_memtime s[100:101]")
        a("s_waitcnt lgkmcnt(0)")
        a(f"v_writelane_b32 v{vreg}, s100, {i}")


def stamp_begin(a, name, vreg=255):
    if name in STAMP.split(","):
        a("s_memrealtime s[98:99]")
        a("s_waitcnt lgkmcnt(0)")
        a(f"v_writelane_b32 v{vreg}, s98, 14")
    stamp(a, name, vreg)


def stamp_end(a, name, sws, s_w, vtmp, s_wg=2, vreg=255):
    if name in STAMP.split(","):
        a("s_waitcnt vmcnt(0) lgkmcnt(0)")
        stamp(a, name, vreg)
        a("s_memrealtime s[98:99]")
        a("s_waitcnt lgkmcnt(0)")
        a(f"v_writelane_b32 v{vreg}, s98, 15")
        a(f"s_lshl_b32 s94, s{s_wg}, 2")
        a(f"s_add_u32 s94, s94, s{s_w}")
        a("s_lshl_b32 s94, s94, 6")
        a(f"s_add_u32 s94, s94, {TS + STAMP.split(',').index(name) * 0x20000}")
        a(f"v_and_b32 v{vtmp}, 63, v0")
        a(f"v_lshlrev_b32 v{vtmp}, 2, v{vtmp}")
        a("s_mov_b64 s[98:99], exec")
        a("s_mov_b64 exec, 0xffff")
        a(f"buffer_store_dword v{vreg}, v{vtmp}, s[{sws}:{sws+3}], s94 offen")
        a("s_mov_b64 exec, s[98:99]")


QSCALE = (20 ** -0.5) * math.log2(math.e)


def f2u(x):
    return struct.unpack("<I", struct.pack("<f", x))[0]


def hx(x):
    return "0x%x" % x


def srd(a, d, base, size):
    a(f"s_mov_b32 s{d}, s{base}")
    a(f"s_and_b32 s{d+1}, s{base+1}, 0xffff")
    a(f"s_mov_b32 s{d+2}, {hx(size)}")
    a(f"s_mov_b32 s{d+3}, 0x00020000")


def vr(b, n=1):
    return f"v{b}" if n == 1 else f"v[{b}:{b+n-1}]"


def mfma32(a, d, x, y, c=None):
    cs = vr(d, 16) if c is None else c
    a(f"v_mfma_f32_32x32x16_bf16 {vr(d,16)}, {vr(x,4)}, {vr(y,4)}, {cs}")


def kernel_header(name):
    return f""".globl {name}
.p2align 8
.type {name},@function
"""


def kernel_desc(name, vgprs, sgprs=102):
    acc = (vgprs + 3) // 4 * 4
    return f""".p2align 6
.amdhsa_kernel {name}
  .amdhsa_next_free_vgpr {vgprs}
  .amdhsa_next_free_sgpr {sgprs}
  .amdhsa_accum_offset {acc}
  .amdhsa_group_segment_fixed_size 0
  .amdhsa_kernarg_size 96
  .amdhsa_user_sgpr_count 2
  .amdhsa_user_sgpr_kernarg_segment_ptr 1
  .amdhsa_system_sgpr_workgroup_id_x 1
.end_amdhsa_kernel
"""


K_X = 16
K_ACC = 96
K_A = 192
K_T = 216
WAVE_LDS = 30720
LDS_STG = 8192


K_R = K_A


def typek_mfma_phase(a, vtr, zero=True, vm_after=None, extra=None):
    def reads(s, buf):
        for ct in range(3):
            o = (3 * s + ct) * 1024
            r = K_A + buf * 12 + ct * 4
            a(f"ds_read_b64_tr_b16 {vr(r,2)}, v{vtr} offset:{o}")
            a(f"ds_read_b64_tr_b16 {vr(r+2,2)}, v{vtr} offset:{o+256}")
    if vm_after:
        a(f"s_waitcnt vmcnt({vm_after(0)})")
    reads(0, 0)
    for s in range(10):
        if s + 1 < 10:
            if vm_after:
                a(f"s_waitcnt vmcnt({vm_after(s+1)})")
            reads(s + 1, (s + 1) & 1)
            a("s_waitcnt lgkmcnt(6)")
        else:
            a("s_waitcnt lgkmcnt(0)")
        ex = list(extra(s)) if extra else []
        n = len(ex)
        k = 0
        for ct in range(3):
            for rt in range(2):
                d = K_ACC + (rt * 3 + ct) * 16
                mfma32(a, d, K_A + (s & 1) * 12 + ct * 4, K_X + rt * 40 + s * 4, "0" if (s == 0 and zero) else None)
                k += 1
                for x in ex[((k - 1) * n) // 6:(k * n) // 6]:
                    a(x)


def reduce4(a, pfx, ACC, RES, TMP, vL16, vT, s_w, s_base, base0, stride, pre_barrier=None, post_reads=None):
    for g in range(4):
        a(f"s_cmp_eq_u32 s{s_w}, {g}")
        a(f"s_cbranch_scc1 {pfx}_rw{g}")
        a(f"s_sub_u32 s90, {g+3}, s{s_w}")
        a("s_and_b32 s90, s90, 3")
        a("s_mul_i32 s90, s90, 6144")
        a(f"s_add_u32 s90, s90, s{s_base}")
        a(f"v_add_u32 v{vT}, s90, v{vL16}")
        for t in range(6):
            a(f"ds_write_b128 v{vT}, {vr(ACC+t*16+g*4,4)} offset:{t*1024}")
        a.label(f"{pfx}_rw{g}")
    if pre_barrier:
        pre_barrier()
    for jj in range(3):
        a(f"s_add_u32 s90, s{s_w}, {jj+1}")
        a("s_and_b32 s90, s90, 3")
        a(f"s_mul_i32 s90, s90, {stride}")
        a(f"s_add_u32 s90, s90, {base0 + (2-jj)*6144}")
        a(f"v_add_u32 v{vT+1+jj}, s90, v{vL16}")
    for g in range(4):
        a(f"s_cmp_lg_u32 s{s_w}, {g}")
        a(f"s_cbranch_scc1 {pfx}_ro{g}")
        for t in range(6):
            for e in range(4):
                a(f"v_mov_b32 v{RES+t*4+e}, v{ACC+t*16+g*4+e}")
        a.label(f"{pfx}_ro{g}")
    a("s_waitcnt lgkmcnt(0)")
    a("s_barrier")
    for jj in range(3):
        for t in range(6):
            a(f"ds_read_b128 {vr(TMP+(jj*6+t)*4,4)}, v{vT+1+jj} offset:{t*1024}")
    n_extra = post_reads() if post_reads else 0
    for jj in range(3):
        a(f"s_waitcnt lgkmcnt({min(15, (2-jj)*6 + n_extra)})")
        for e in range(0, 24, 2):
            a(f"v_pk_add_f32 {vr(RES+e,2)}, {vr(RES+e,2)}, {vr(TMP+jj*24+e,2)}")


class TypeK:
    def __init__(self, a, KS, RD, RB, ACC, AF, BF, vTr, tr2, vWo, SW, s_g, gstep, s_ring, vB, SB, s_b0, s_b1, bmods=""):
        self.__dict__.update(locals())

    def dma(self, s):
        out = []
        for ct in range(3):
            out.append([f"s_add_u32 m0, s{self.s_ring}, {((s % self.RD)*3+ct)*1024}",
                        f"s_add_u32 s91, s{self.s_g}, {s*self.gstep + ct*64}",
                        f"buffer_load_dwordx4 v{self.vWo}, s[{self.SW}:{self.SW+3}], s91 offen lds"])
        return out

    def bl(self, s):
        out = []
        for rt in range(2):
            sb = self.s_b0 if rt == 0 else self.s_b1
            g = []
            if s % 4 == 0 and s:
                g.append(f"s_add_u32 s{sb}, s{sb}, 4096")
            g.append(f"buffer_load_dwordx4 {vr(self.BF+(s%self.RB)*8+rt*4,4)}, v{self.vB}, s[{self.SB}:{self.SB+3}], s{sb} offen offset:{(s%4)*1024}{self.bmods}")
            out.append(g)
        return out

    def emit(self, groups):
        for g in groups:
            for x in g:
                self.a(x)

    def reads(self, s):
        out = []
        for ct in range(3):
            o = ((s % self.RD) * 3 + ct) * 1024
            r = self.AF + (s & 1) * 12 + ct * 4
            out.append(f"ds_read_b64_tr_b16 {vr(r,2)}, v{self.vTr} offset:{o}")
            out.append(f"ds_read_b64_tr_b16 {vr(r+2,2)}, v{self.vTr} offset:{o+self.tr2}")
        return out

    def main(self, order):
        a, KS, RD, RB = self.a, self.KS, self.RD, self.RB
        order = list(order)

        def wait_for(s):
            last = max(i for i, o in enumerate(order) if o in (("d", s), ("b", s)))
            a(f"s_waitcnt vmcnt({min(63, len(order) - 1 - last)})")
        wait_for(0)
        for x in self.reads(0):
            a(x)
        for s in range(KS):
            if s + 1 < KS:
                wait_for(s + 1)
                for x in self.reads(s + 1):
                    a(x)
                a("s_waitcnt lgkmcnt(6)")
            else:
                a("s_waitcnt lgkmcnt(0)")
            dm = self.dma(s + RD) if s + RD < KS else []
            k = 0
            for ct in range(3):
                for rt in range(2):
                    mfma32(a, self.ACC + (rt * 3 + ct) * 16, self.AF + (s & 1) * 12 + ct * 4,
                           self.BF + (s % RB) * 8 + rt * 4, "0" if s == 0 else None)
                    if k % 2 == 0 and dm:
                        self.emit([dm.pop(0)])
                        order.append(("d", s + RD))
                    k += 1
            if s + RB < KS:
                self.emit(self.bl(s + RB))
                order += [("b", s + RB)] * 2


def lane_setup(a, T, vLane, vN, vH, s_w):
    a(f"v_and_b32 v{vLane}, 63, v0")
    a(f"v_lshrrev_b32 v{T}, 6, v0")
    a(f"v_readfirstlane_b32 s{s_w}, v{T}")
    a(f"v_and_b32 v{vN}, 31, v0")
    a(f"v_bfe_u32 v{vH}, v0, 5, 1")


def tr_base(a, vTr, T, vLane, vH, hshift):
    a(f"v_lshlrev_b32 v{vTr}, {hshift}, v{vH}")
    a(f"v_bfe_u32 v{T}, v{vLane}, 2, 2")
    a(f"v_lshl_add_u32 v{vTr}, v{T}, 6, v{vTr}")
    a(f"v_bfe_u32 v{T}, v{vLane}, 4, 1")
    a(f"v_lshl_add_u32 v{vTr}, v{T}, 5, v{vTr}")
    a(f"v_and_b32 v{T}, 3, v{vLane}")
    a(f"v_lshl_add_u32 v{vTr}, v{T}, 3, v{vTr}")


def gen_qkv():
    a = Asm()
    a.label("qkv_kernel")
    ST, MX = 0, 1024
    XI, SL = 8192, 21504
    WR = XI + 4 * SL
    s_w, s_rb, s_cb, s_tg = 32, 33, 34, 35
    SX, SW, SWS = 16, 20, 28
    vLane, vN, vH = 1, 2, 3
    vXg, vXr, vTr, vWo = 4, 5, 7, 8
    AC, AF, BF, ONE, T = 16, 64, 72, 88, 92
    a("s_cmp_ge_u32 s2, 256")
    a("s_cbranch_scc1 qkv_end")
    stamp_begin(a, "qkv")
    a("s_load_dwordx4 s[4:7], s[0:1], 0")
    a("s_load_dwordx4 s[8:11], s[0:1], 16")
    a("s_load_dwordx2 s[12:13], s[0:1], 88")
    a("s_load_dwordx4 s[56:59], s[0:1], 48")
    lane_setup(a, T, vLane, vN, vH, s_w)
    a("s_and_b32 s3, s2, 7")
    a("s_lshl_b32 s3, s3, 2")
    a("s_bfe_u32 s36, s2, 0x20003")
    a(f"s_add_u32 s{s_rb}, s3, s36")
    a(f"s_lshr_b32 s{s_cb}, s2, 5")
    a(f"v_mul_u32_u24 v{T}, 49, v{vLane}")
    a(f"v_lshrrev_b32 v{T}, 10, v{T}")
    a(f"v_mul_u32_u24 v{T+1}, 21, v{T}")
    a(f"v_sub_u32 v{T+1}, v{vLane}, v{T+1}")
    a(f"v_mul_u32_u24 v{vXg}, 1280, v{T}")
    a(f"v_lshl_add_u32 v{vXg}, v{T+1}, 4, v{vXg}")
    a(f"s_mul_i32 s37, s{s_w}, {SL}")
    a(f"s_add_u32 s37, s37, {XI}")
    a(f"s_mul_i32 s39, s{s_rb}, {64*1280}")
    a(f"s_mul_i32 s40, s{s_w}, 320")
    a("s_add_u32 s39, s39, s40")
    a("s_mov_b32 s52, -1")
    a("s_mov_b32 s53, 0x7fffffff")
    a("s_mov_b32 s41, 21")
    a("s_waitcnt lgkmcnt(0)")
    stamp(a, "qkv")
    srd(a, SX, 4, 2621440)
    a("s_mov_b64 exec, s[52:53]")
    a.label("qkv_xl")
    a("s_mov_b32 m0, s37")
    a("s_add_u32 s37, s37, 1008")
    a("s_sub_u32 s41, s41, 1")
    a(f"buffer_load_dwordx4 v{vXg}, s[{SX}:{SX+3}], s39 offen lds")
    a("s_add_u32 s39, s39, 3840")
    a("s_cmp_lg_u32 s41, 0")
    a("s_cbranch_scc1 qkv_xl")
    a("s_mov_b64 exec, 0x1fffff")
    a("s_mov_b32 m0, s37")
    a("s_nop 0")
    a(f"buffer_load_dwordx4 v{vXg}, s[{SX}:{SX+3}], s39 offen lds")
    a("s_mov_b64 exec, -1")
    srd(a, SWS, 12, WS_END)
    a(f"v_mul_u32_u24 v{vXr}, 336, v{vN}")
    a(f"v_lshl_add_u32 v{vXr}, v{vH}, 4, v{vXr}")
    a(f"v_add_u32 v{vXr}, {XI}, v{vXr}")
    a(f"s_cmp_eq_u32 s{s_w}, 3")
    a("s_cbranch_scc1 qkv_w3")
    a(f"s_mul_i32 s{s_tg}, s{s_cb}, 3")
    a(f"s_add_u32 s{s_tg}, s{s_tg}, s{s_w}")
    a(f"v_lshrrev_b32 v{T}, 2, v{vLane}")
    a(f"v_and_b32 v{T+1}, 3, v{vLane}")
    a(f"v_lshlrev_b32 v{T+1}, 4, v{T+1}")
    a(f"s_cmp_eq_u32 s{s_tg}, 21")
    a(f"s_cselect_b32 s{SW}, s10, s8")
    a(f"s_cselect_b32 s{SW+1}, s11, s9")
    a(f"s_cmp_lt_u32 s{s_tg}, 22")
    a(f"s_cselect_b32 s{SW+2}, 25600, 0")
    a(f"s_lshl_b32 s45, s{s_tg}, 6")
    a(f"s_cmp_lt_u32 s{s_tg}, 20")
    a(f"s_cselect_b32 s{SW}, s6, s{SW}")
    a(f"s_cselect_b32 s{SW+1}, s7, s{SW+1}")
    a(f"s_cselect_b32 s{SW+2}, 819200, s{SW+2}")
    a(f"s_mov_b32 s{SW+3}, 0x00020000")
    a("s_cselect_b32 s42, s45, 0")
    a("s_movk_i32 s38, 1280")
    a("s_cselect_b32 s38, s38, 40")
    a(f"s_and_b32 s{SW+1}, s{SW+1}, 0xffff")
    a(f"v_mad_u32_u24 v{vWo}, v{T}, s38, v{T+1}")
    a("s_lshl_b32 s43, s38, 4")
    a(f"s_mul_i32 s44, s{s_w}, 20480")
    a(f"s_add_u32 s44, s44, {WR}")
    a("s_mov_b32 s46, s44")
    LA = int(os.environ.get("QLA", "12"))
    a(f"s_mov_b32 s41, {LA}")
    a.label("qkv_wl")
    a("s_mov_b32 m0, s46")
    a("s_add_u32 s46, s46, 1024")
    a("s_sub_u32 s41, s41, 1")
    a(f"buffer_load_dwordx4 v{vWo}, s[{SW}:{SW+3}], s42 offen lds")
    a("s_add_u32 s42, s42, s43")
    a("s_cmp_lg_u32 s41, 0")
    a("s_cbranch_scc1 qkv_wl")
    tr_base(a, vTr, T, vLane, vH, 9)
    a(f"v_add_u32 v{vTr}, s44, v{vTr}")
    for e in range(4):
        a(f"v_mov_b32 v{ONE+e}, 0x3f803f80")
    for e in range(48):
        a(f"v_mov_b32 v{AC+e}, 0")
    stamp(a, "qkv")
    a(f"s_waitcnt vmcnt({LA})")
    stamp(a, "qkv")
    a("s_barrier")
    stamp(a, "qkv")

    def rd(s, nxt):
        b = s & 1
        xa = vXr + 1 if nxt else vXr
        ta = vTr + 2 if nxt else vTr
        p = 0 if nxt else s
        a(f"ds_read_b64_tr_b16 {vr(AF+4*b,2)}, v{ta} offset:{p*1024}")
        a(f"ds_read_b64_tr_b16 {vr(AF+4*b+2,2)}, v{ta} offset:{p*1024+256}")
        a(f"ds_read_b128 {vr(BF+8*b,4)}, v{xa} offset:{p*32}")
        a(f"ds_read_b128 {vr(BF+8*b+4,4)}, v{xa} offset:{p*32+10752}")
    a(f"s_waitcnt vmcnt({LA-1})")
    rd(0, False)
    a("s_mov_b32 s41, 4")
    a("s_mov_b32 s46, s44")
    a.label("qkv_loop")
    a(f"v_add_u32 v{vXr+1}, {SL}, v{vXr}")
    a("s_sub_u32 s47, s46, s44")
    a("s_xor_b32 s47, s47, 10240")
    a("s_sub_u32 s48, s44, s46")
    a("s_add_u32 s48, s48, s47")
    a(f"v_add_u32 v{vTr+2}, s48, v{vTr}")
    a("s_add_u32 s49, s44, s47")
    for sx in range(10):
        a(f"s_waitcnt vmcnt({LA-2})")
        rd(sx + 1, sx == 9)
        p = sx + LA
        if p < 10 or p >= 20:
            a(f"s_add_u32 m0, s46, {(p % 20)*1024}")
        else:
            a(f"s_add_u32 m0, s49, {(p-10)*1024}")
        a("s_waitcnt lgkmcnt(4)")
        b = sx & 1
        mfma32(a, AC, AF + 4 * b, BF + 8 * b)
        a(f"buffer_load_dwordx4 v{vWo}, s[{SW}:{SW+3}], s42 offen lds")
        a("s_add_u32 s42, s42, s43")
        mfma32(a, AC + 16, AF + 4 * b, BF + 8 * b + 4)
        mfma32(a, AC + 32, AF + 4 * b, ONE)
    a(f"v_mov_b32 v{vXr}, v{vXr+1}")
    a(f"v_mov_b32 v{vTr}, v{vTr+2}")
    a("s_add_u32 s46, s44, s47")
    a("s_sub_u32 s41, s41, 1")
    a("s_cmp_lg_u32 s41, 0")
    a("s_cbranch_scc1 qkv_loop")
    stamp(a, "qkv")
    a("s_waitcnt lgkmcnt(0)")
    a("s_barrier")
    a(f"s_cmp_ge_u32 s{s_tg}, 22")
    a("s_cbranch_scc1 qkv_fin" if STAMP else "s_cbranch_scc1 qkv_end")
    a(f"v_lshlrev_b32 v{T}, 3, v{vN}")
    a(f"ds_read_b64 {vr(T+2,2)}, v{T} offset:{ST}")
    a(f"ds_read_b64 {vr(T+4,2)}, v{T} offset:{ST+256}")
    a(f"s_mov_b32 s45, {hx(f2u(QSCALE))}")
    a(f"s_cmp_lt_u32 s{s_tg}, 20")
    a("s_cselect_b32 s45, s45, 1.0")
    a("s_waitcnt lgkmcnt(0)")
    for rt in range(2):
        a(f"v_mul_f32 v{T+3+2*rt}, s45, v{T+3+2*rt}")
    for rt in range(2):
        for e in range(16):
            r = AC + 16 * rt + e
            a(f"v_fma_f32 v{r}, -v{T+2+2*rt}, v{AC+32+e}, v{r}")
            a(f"v_mul_f32 v{r}, v{r}, v{T+3+2*rt}")
    stamp(a, "qkv")
    vC0, vHead, vD0, vOff, vA = T + 6, T + 7, T + 8, T + 9, T + 10

    def frag_off():
        a(f"v_lshrrev_b32 v{vA}, 3, v{vD0}")
        a(f"v_lshlrev_b32 v{vA}, 9, v{vA}")
        a(f"v_lshl_add_u32 v{vA}, v{vN}, 4, v{vA}")
        a(f"v_and_b32 v{vA+1}, 4, v{vD0}")
        a(f"v_lshl_add_u32 v{vA}, v{vA+1}, 1, v{vA}")
        a(f"v_lshlrev_b32 v{vA+1}, 3, v{vN}")
        a(f"v_add_u32 v{vA+1}, 1024, v{vA+1}")
        a(f"v_cmp_gt_u32 vcc, 16, v{vD0}")
        a(f"v_cndmask_b32 v{vA}, v{vA+1}, v{vA}, vcc")
        a(f"v_add_u32 v{vOff}, v{vOff}, v{vA}")
    a(f"s_cmp_ge_u32 s{s_tg}, 20")
    a("s_cbranch_scc1 qkv_kv")
    a("s_mov_b32 s46, 3277")
    a(f"s_lshl_b32 s38, s{s_tg}, 5")
    a(f"s_mul_i32 s48, s{s_rb}, {2*32*1280}")
    a(f"s_add_u32 s48, s48, {QF}")
    a(f"s_add_u32 s49, s48, {32*1280}")
    for g in range(4):
        a(f"v_lshlrev_b32 v{vC0}, 2, v{vH}")
        a(f"v_add_u32 v{vC0}, s38, v{vC0}")
        if g:
            a(f"v_add_u32 v{vC0}, {8*g}, v{vC0}")
        a(f"v_mul_u32_u24 v{vHead}, s46, v{vC0}")
        a(f"v_lshrrev_b32 v{vHead}, 16, v{vHead}")
        a(f"v_mul_u32_u24 v{vD0}, 20, v{vHead}")
        a(f"v_sub_u32 v{vD0}, v{vC0}, v{vD0}")
        a(f"v_mul_u32_u24 v{vOff}, 1280, v{vHead}")
        frag_off()
        for rt in range(2):
            r = AC + 16 * rt + 4 * g
            a(f"v_cvt_pk_bf16_f32 v{r}, v{r}, v{r+1}")
            a(f"v_cvt_pk_bf16_f32 v{r+1}, v{r+2}, v{r+3}")
            a(f"buffer_store_dwordx2 {vr(r,2)}, v{vOff}, s[{SWS}:{SWS+3}], s{48+rt} offen")
    a("s_branch qkv_fin")
    a.label("qkv_kv")
    a(f"v_cmp_eq_u32 s[54:55], 0, v{vH}")
    for rt in range(2):
        q = T + 12 + rt
        r = AC + 16 * rt
        a(f"v_mul_f32 v{q}, v{r+8}, v{r+8}")
        for e in range(9, 12):
            a(f"v_fmac_f32 v{q}, v{r+e}, v{r+e}")
        a(f"v_cndmask_b32 v{q}, 0, v{q}, s[54:55]")
        for e in range(8):
            a(f"v_fmac_f32 v{q}, v{r+e}, v{r+e}")
        a(f"v_mov_b32 v{q+2}, v{q}")
        a(f"v_permlane32_swap_b32 v{q}, v{q+2}")
        a(f"v_add_f32 v{q}, v{q}, v{q+2}")
        for g in range(3):
            a(f"v_cvt_pk_bf16_f32 v{r+4*g}, v{r+4*g}, v{r+4*g+1}")
            a(f"v_cvt_pk_bf16_f32 v{r+4*g+1}, v{r+4*g+2}, v{r+4*g+3}")
    a(f"v_max_u32 v{T+12}, v{T+12}, v{T+13}")
    a(f"v_mov_b32 v{T+13}, 0")
    a(f"ds_max_u32 v{T+13}, v{T+12} offset:{MX}")
    a(f"s_cmp_eq_u32 s{s_tg}, 21")
    a("s_cbranch_scc1 qkv_v")
    a(f"s_mul_i32 s48, s{s_rb}, {2*KVS}")
    a(f"s_add_u32 s48, s48, {KF}")
    a(f"s_add_u32 s49, s48, {KVS}")
    for g in range(3):
        a(f"v_lshlrev_b32 v{vD0}, 2, v{vH}")
        if g:
            a(f"v_add_u32 v{vD0}, {8*g}, v{vD0}")
        a(f"v_mov_b32 v{vOff}, 0")
        frag_off()
        if g == 2:
            a("s_mov_b64 exec, 0xffffffff")
        for rt in range(2):
            a(f"buffer_store_dwordx2 {vr(AC+16*rt+4*g,2)}, v{vOff}, s[{SWS}:{SWS+3}], s{48+rt} offen")
    a("s_mov_b64 exec, -1")
    a("s_branch qkv_kn")
    a.label("qkv_v")
    a(f"s_mul_i32 s48, s{s_rb}, {2*KVS}")
    a(f"s_add_u32 s48, s48, {VF}")
    a(f"s_add_u32 s49, s48, {KVS}")
    a(f"v_lshrrev_b32 v{vA}, 4, v{vN}")
    a(f"v_lshlrev_b32 v{vA}, 1, v{vA}")
    a(f"v_bfe_u32 v{vA+1}, v{vN}, 2, 1")
    a(f"v_add_u32 v{vA}, v{vA}, v{vA+1}")
    a(f"v_mul_u32_u24 v{vA}, 21, v{vA}")
    a(f"v_lshl_add_u32 v{vA}, v{vH}, 2, v{vA}")
    a(f"v_lshlrev_b32 v{vOff}, 4, v{vA}")
    a(f"v_and_b32 v{vA}, 3, v{vN}")
    a(f"v_lshl_add_u32 v{vOff}, v{vA}, 1, v{vOff}")
    a(f"v_bfe_u32 v{vA}, v{vN}, 3, 1")
    a(f"v_lshl_add_u32 v{vOff}, v{vA}, 3, v{vOff}")
    for g in range(3):
        if g == 2:
            a("s_mov_b64 exec, 0xffffffff")
        for rt in range(2):
            r = AC + 16 * rt + 4 * g
            o = g * 128
            a(f"buffer_store_short v{r}, v{vOff}, s[{SWS}:{SWS+3}], s{48+rt} offen offset:{o}")
            a(f"buffer_store_short_d16_hi v{r}, v{vOff}, s[{SWS}:{SWS+3}], s{48+rt} offen offset:{o+16}")
            a(f"buffer_store_short v{r+1}, v{vOff}, s[{SWS}:{SWS+3}], s{48+rt} offen offset:{o+32}")
            a(f"buffer_store_short_d16_hi v{r+1}, v{vOff}, s[{SWS}:{SWS+3}], s{48+rt} offen offset:{o+48}")
    a("s_add_u32 s48, s48, 320")
    a(f"v_and_b32 v{vA}, 3, v{vLane}")
    a(f"v_mul_u32_u24 v{vOff}, 336, v{vA}")
    a(f"v_lshrrev_b32 v{vA}, 2, v{vLane}")
    a(f"v_mul_u32_u24 v{vA}, {KVS}, v{vA}")
    a(f"v_add_u32 v{vOff}, v{vOff}, v{vA}")
    a("s_mov_b64 exec, 0xff")
    a(f"buffer_store_dwordx4 {vr(ONE,4)}, v{vOff}, s[{SWS}:{SWS+3}], s48 offen")
    a("s_mov_b64 exec, -1")
    a.label("qkv_kn")
    a("s_waitcnt lgkmcnt(0)")
    a(f"ds_read_b32 v{T+12}, v{T+13} offset:{MX}")
    a(f"s_sub_u32 s48, s{s_tg}, 20")
    a("s_lshl_b32 s48, s48, 5")
    a(f"s_add_u32 s48, s48, s{s_rb}")
    a("s_lshl_b32 s48, s48, 2")
    a(f"s_add_u32 s48, s48, {KN}")
    a("s_waitcnt lgkmcnt(0)")
    a(f"buffer_store_dword v{T+12}, v{T+13}, s[{SWS}:{SWS+3}], s48 offen")
    a.label("qkv_fin")
    stamp_end(a, "qkv", SWS, s_w, 120)
    a("s_endpgm")
    _stamp_n["qkv"] = 2
    a.label("qkv_w3")
    X = AC
    a(f"v_mul_u32_u24 v{vTr}, 336, v{vLane}")
    a(f"v_add_u32 v{vTr}, {XI}, v{vTr}")
    a(f"v_mov_b32 v{T+8}, 0x3f803f80")
    for e in range(4):
        a(f"v_mov_b32 v{T+4+e}, 0")
    a(f"ds_write_b32 v{T+4}, v{T+4} offset:{MX}")
    stamp(a, "qkv")
    a("s_waitcnt vmcnt(0) lgkmcnt(0)")
    stamp(a, "qkv")
    a("s_barrier")
    stamp(a, "qkv")
    if PREFETCH:
        srd(a, 60, 56, 1966080)
        srd(a, 64, 58, 1966080)
        a(f"v_mul_u32_u24 v{T+12}, 43, v{vLane}")
        a(f"v_lshrrev_b32 v{T+12}, 9, v{T+12}")
        a(f"v_mul_u32_u24 v{T+13}, 12, v{T+12}")
        a(f"v_sub_u32 v{T+13}, v{vLane}, v{T+13}")
        a(f"v_mul_u32_u24 v{T+12}, 3072, v{T+12}")
        a(f"v_lshl_add_u32 v{T+12}, v{T+13}, 6, v{T+12}")
        a("s_lshr_b32 s44, s2, 3")
        a(f"s_mul_i32 s44, s44, {20*3072}")
        a("s_bfe_u32 s38, s2, 0x20001")
        a("s_mul_i32 s38, s38, 768")
        a("s_add_u32 s44, s44, s38")
        a("s_mov_b32 s53, 0x0fffffff")
        a("s_mov_b64 exec, s[52:53]")
        for q in range(4):
            a(f"buffer_load_dword v{T+14}, v{T+12}, s[60:63], s44 offen")
            a(f"buffer_load_dword v{T+14}, v{T+12}, s[64:67], s44 offen")
            a(f"s_add_u32 s44, s44, {5*3072}")
        a("s_mov_b64 exec, -1")
    a("s_mov_b32 s41, 4")
    a.label("qkv_sl")
    for c in range(19):
        a(f"ds_read_b128 {vr(X+4*c,4)}, v{vTr} offset:{c*16}")
    a(f"ds_read_b128 {vr(T,4)}, v{vTr} offset:{19*16}")
    for c in range(20):
        a(f"s_waitcnt lgkmcnt({min(15, 19-c)})")
        for e in range(4):
            x = (X + 4 * c + e) if c < 19 else T + e
            b = T + 4 + (e & 1) * 2
            a(f"v_dot2_f32_bf16 v{b}, v{x}, v{T+8}, v{b}")
            a(f"v_dot2_f32_bf16 v{b+1}, v{x}, v{x}, v{b+1}")
    a(f"v_add_u32 v{vTr}, {SL}, v{vTr}")
    a("s_sub_u32 s41, s41, 1")
    a("s_cmp_lg_u32 s41, 0")
    a("s_cbranch_scc1 qkv_sl")
    a(f"s_mov_b32 s45, {hx(f2u(1.0/640))}")
    a(f"s_mov_b32 s46, {hx(f2u(1e-5))}")
    mu, sq, m_b, rr, t0 = T + 4, T + 5, T + 10, T + 11, T + 9
    a(f"v_pk_add_f32 {vr(mu,2)}, {vr(mu,2)}, {vr(mu+2,2)}")
    a(f"v_mul_f32 v{mu}, s45, v{mu}")
    a(f"v_mul_f32 v{sq}, s45, v{sq}")
    a(f"v_fma_f32 v{sq}, -v{mu}, v{mu}, v{sq}")
    a(f"v_max_f32 v{sq}, 0, v{sq}")
    a(f"v_cvt_pk_bf16_f32 v{m_b}, v{mu}, v{sq}")
    a(f"v_and_b32 v{t0}, 0xffff0000, v{m_b}")
    a(f"v_lshlrev_b32 v{m_b}, 16, v{m_b}")
    a(f"v_add_f32 v{t0}, s46, v{t0}")
    a(f"v_cvt_pk_bf16_f32 v{t0}, v{t0}, v{t0}")
    a(f"v_lshlrev_b32 v{t0}, 16, v{t0}")
    a(f"v_sqrt_f32 v{t0}, v{t0}")
    a(f"v_cvt_pk_bf16_f32 v{t0}, v{t0}, v{t0}")
    a(f"v_lshlrev_b32 v{t0}, 16, v{t0}")
    a(f"v_rcp_f32 v{rr}, v{t0}")
    a(f"v_lshlrev_b32 v{T}, 3, v{vLane}")
    a(f"ds_write_b64 v{T}, {vr(m_b,2)} offset:{ST}")
    a("s_waitcnt lgkmcnt(0)")
    stamp(a, "qkv")
    a("s_barrier")
    a(f"v_lshlrev_b32 v{T}, 3, v{vN}")
    a(f"ds_read_b64 {vr(T+2,2)}, v{T} offset:{ST}")
    a(f"ds_read_b64 {vr(T+4,2)}, v{T} offset:{ST+256}")
    for i in range(10):
        rt = i // 5
        a(f"s_add_u32 s41, s{s_cb}, {8*i - 40*rt}")
        a("s_mul_i32 s42, s41, 26")
        a("s_lshr_b32 s42, s42, 8")
        a(f"s_mul_i32 s43, s42, {SL - 320}")
        a("s_lshl_b32 s41, s41, 5")
        a("s_add_u32 s43, s43, s41")
        a(f"v_add_u32 v{T+6}, s43, v{vXr}")
        a(f"ds_read_b128 {vr(X+4*i,4)}, v{T+6} offset:{rt*10752}")
    a("s_waitcnt lgkmcnt(10)")
    PR = X + 40
    for rt in range(2):
        a(f"v_mov_b32 v{PR+4*rt}, v{T+3+2*rt}")
        a(f"v_mov_b32 v{PR+4*rt+1}, v{T+3+2*rt}")
        a(f"v_mul_f32_e64 v{PR+4*rt+2}, -v{T+2+2*rt}, v{T+3+2*rt}")
        a(f"v_mov_b32 v{PR+4*rt+3}, v{PR+4*rt+2}")
    a("s_mov_b32 s47, 0xffff0000")
    a(f"v_lshlrev_b32 v{T}, 4, v{vLane}")
    a(f"s_mul_i32 s39, s{s_rb}, 80")
    a(f"s_add_u32 s39, s39, s{s_cb}")
    a("s_lshl_b32 s39, s39, 10")
    if XF:
        a(f"s_add_u32 s39, s39, {XF}")
    for i in range(10):
        rt = i // 5
        a(f"s_waitcnt lgkmcnt({9-i})")
        for q in range(4):
            x = X + 4 * i + q
            u = X + 48 + q * 2
            a(f"v_lshlrev_b32 v{u}, 16, v{x}")
            a(f"v_and_b32 v{u+1}, s47, v{x}")
            a(f"v_pk_fma_f32 {vr(u,2)}, {vr(u,2)}, {vr(PR+4*rt,2)}, {vr(PR+4*rt+2,2)}")
            a(f"v_cvt_pk_bf16_f32 v{x}, v{u}, v{u+1}")
        a(f"buffer_store_dwordx4 {vr(X+4*i,4)}, v{T}, s[{SWS}:{SWS+3}], s39 offen")
        a("s_add_u32 s39, s39, 8192")
    a("s_cmp_lg_u32 s2, 255")
    a("s_cbranch_scc1 qkv_noct")
    a(f"v_lshlrev_b32 v{T+4}, 8, v{vLane}")
    a(f"v_mov_b32 v{T+5}, 0")
    a(f"s_mov_b32 s44, {CT}")
    a("s_mov_b64 exec, 0xffff")
    a(f"buffer_store_dword v{T+5}, v{T+4}, s[{SWS}:{SWS+3}], s44 offen")
    a("s_mov_b64 exec, -1")
    a.label("qkv_noct")
    stamp(a, "qkv")
    stamp_end(a, "qkv", SWS, s_w, 120)
    a.label("qkv_end")
    a("s_endpgm")
    return a.finish(), ("qkv_kernel", 256, 256, WR + 61440, 256 if STAMP else 128)


A_Q, A_O, A_S, A_P, A_K, A_V, A_M = 16, 48, 112, 144, 160, 192, 224
A_T = 228
NSET = 4
OOB = 0x80000000


def gen_attn_body(a, pfx, s_wg):
    s_w, s_rt, s_kh, s_hd = 32, 33, 34, 35
    SWS = 28
    vLane, vN, vH = 1, 2, 3
    vK1, vK2, vV = 4, 5, 6
    T = A_T
    a("s_load_dwordx2 s[12:13], s[0:1], 88")
    a("s_load_dwordx2 s[14:15], s[0:1], 32")
    lane_setup(a, T, vLane, vN, vH, s_w)
    a(f"s_and_b32 s3, s{s_wg}, 7")
    a(f"s_lshr_b32 s36, s{s_wg}, 5")
    a("s_lshl_b32 s3, s3, 3")
    a(f"s_add_u32 s{s_rt}, s3, s36")
    a(f"s_bfe_u32 s3, s{s_wg}, 0x20003")
    a(f"s_and_b32 s{s_kh}, s{s_w}, 1")
    a(f"s_lshr_b32 s36, s{s_w}, 1")
    a("s_lshl_b32 s3, s3, 3")
    a("s_lshl_b32 s36, s36, 2")
    a(f"s_add_u32 s{s_hd}, s3, s36")
    a(f"v_lshlrev_b32 v{vK1}, 4, v{vLane}")
    a(f"v_lshlrev_b32 v{vK2}, 3, v{vN}")
    a(f"v_add_u32 v{vK2}, 1024, v{vK2}")
    a(f"v_mov_b32 v{T}, {hx(OOB)}")
    a(f"v_cmp_eq_u32 vcc, 0, v{vH}")
    a(f"v_cndmask_b32 v{vK2}, v{T}, v{vK2}, vcc")
    a(f"v_mul_u32_u24 v{vV}, 21, v{vH}")
    a(f"v_add_u32 v{vV}, v{vV}, v{vN}")
    a(f"v_lshlrev_b32 v{vV}, 4, v{vV}")
    a(f"v_cmp_gt_u32 vcc, 21, v{vN}")
    a(f"v_cndmask_b32 v{vV}, v{T}, v{vV}, vcc")
    a("s_waitcnt lgkmcnt(0)")
    srd(a, SWS, 12, WS_END)
    a(f"s_add_u32 s12, s12, {KN}")
    a("s_addc_u32 s13, s13, 0")
    a("s_load_dwordx16 s[64:79], s[12:13], 0")
    a("s_load_dwordx16 s[80:95], s[12:13], 64")
    a("s_load_dwordx16 s[44:59], s[12:13], 128")
    a(f"s_lshl_b32 s36, s{s_rt}, 5")
    a(f"s_add_u32 s36, s36, s{s_hd}")
    a("s_mul_i32 s36, s36, 1280")
    a(f"s_add_u32 s36, s36, {QF}")
    for i in range(4):
        a(f"buffer_load_dwordx4 {vr(A_Q+8*i,4)}, v{vK1}, s[{SWS}:{SWS+3}], s36 offen")
        a(f"buffer_load_dwordx2 {vr(A_Q+8*i+4,2)}, v{vK2}, s[{SWS}:{SWS+3}], s36 offen")
        if i < 3:
            a("s_add_u32 s36, s36, 1280")
    s_kp, s_vp = 37, 38
    a(f"s_mul_i32 s{s_kp}, s{s_kh}, {32*KVS}")
    a(f"s_add_u32 s{s_kp}, s{s_kp}, {KF}")
    a(f"s_add_u32 s{s_vp}, s{s_kp}, 1280")

    def loadK(st):
        a(f"buffer_load_dwordx4 {vr(A_K+8*st,4)}, v{vK1}, s[{SWS}:{SWS+3}], s{s_kp} offen")
        a(f"buffer_load_dwordx2 {vr(A_K+8*st+4,2)}, v{vK2}, s[{SWS}:{SWS+3}], s{s_kp} offen")
        a(f"s_add_u32 s{s_kp}, s{s_kp}, {KVS}")

    def loadV(st):
        a(f"buffer_load_dwordx4 {vr(A_V+8*st,4)}, v{vV}, s[{SWS}:{SWS+3}], s{s_vp} offen")
        a(f"buffer_load_dwordx4 {vr(A_V+8*st+4,4)}, v{vV}, s[{SWS}:{SWS+3}], s{s_vp} offen offset:672")
        a(f"s_add_u32 s{s_vp}, s{s_vp}, {KVS}")
    for st in range(NSET - 1):
        loadK(st)
        loadV(st)
    loadK(NSET - 1)
    for i in range(4):
        a(f"v_mov_b32 v{A_Q+8*i+6}, 0")
        a(f"v_mov_b32 v{A_Q+8*i+7}, 0")
    for st in range(NSET):
        a(f"v_mov_b32 v{A_K+8*st+6}, 0")
        a(f"v_mov_b32 v{A_K+8*st+7}, 0")
    for r in range(64):
        a(f"v_mov_b32 v{A_O+r}, 0")
    for r in range(16):
        a(f"v_mov_b32 v{A_P+r}, 0")
    for r in range(8):
        a(f"v_mov_b32 v{A_V+8*(NSET-1)+r}, 0")
    for r in range(4):
        a(f"v_mov_b32 v{A_M+r}, 0")
    a("s_waitcnt lgkmcnt(0)")
    for r in range(65, 96):
        a(f"s_max_u32 s64, s64, s{r}")
    for r in range(45, 60):
        a(f"s_max_u32 s44, s44, s{r}")
    a("s_load_dwordx16 s[80:95], s[12:13], 192")
    a("s_waitcnt lgkmcnt(0)")
    for r in range(80, 96):
        a(f"s_max_u32 s44, s44, s{r}")
    a(f"s_waitcnt vmcnt({4*NSET-2})")
    for i in range(4):
        a(f"v_mov_b32 v{T+i}, 0")
    for r in range(6):
        for i in range(4):
            a(f"v_dot2_f32_bf16 v{T+i}, v{A_Q+8*i+r}, v{A_Q+8*i+r}, v{T+i}")
    for i in range(4):
        a(f"v_mov_b32 v{T+4+i}, v{T+i}")
    for i in range(4):
        a(f"v_permlane32_swap_b32 v{T+i}, v{T+4+i}")
    for i in range(4):
        a(f"v_add_f32 v{T+i}, v{T+i}, v{T+4+i}")
    a(f"v_max3_f32 v{T}, v{T}, v{T+1}, v{T+2}")
    a(f"v_max_f32 v{T}, v{T}, v{T+3}")
    a(f"v_mul_f32 v{T}, s64, v{T}")
    a(f"v_mov_b32 v{T+1}, {hx(f2u(3600.0/1.05))}")
    a(f"v_cmp_nle_f32 vcc, v{T}, v{T+1}")
    a(f"s_cmp_gt_u32 s44, {hx(f2u(2.0**80))}")
    a(f"s_cbranch_scc1 {pfx}_slow")
    a(f"s_cbranch_vccnz {pfx}_slow")

    def qk(m, sb, ks, i):
        if m == 0:
            mfma32(a, A_S + 16 * sb, A_K + 8 * ks, A_Q + 8 * i, "0")
        else:
            mfma32(a, A_S + 16 * sb, A_K + 8 * ks + 4, A_Q + 8 * i + 4)

    def pv(m, pb, vs, i):
        mfma32(a, A_O + 16 * i, A_V + 8 * vs + 4 * m, A_P + 8 * pb + 4 * m)

    a(f"s_waitcnt vmcnt({4*NSET-4})")
    qk(0, 0, 0, 0)
    qk(1, 0, 0, 0)
    stamp(a, "attn")
    a(f"s_mov_b32 s39, {32//NSET}")
    a("s_nop 10")
    a.raw(".p2align 6")
    a.label(f"{pfx}_loop")
    for kk in range(NSET):
        for i in range(4):
            cur = i & 1
            S = A_S + 16 * cur
            P = A_P + 8 * cur
            nks, ni = (kk, i + 1) if i < 3 else ((kk + 1) % NSET, 0)
            pvs, pi = (kk, i - 1) if i > 0 else ((kk - 1) % NSET, 3)
            if i in (1, 3) and not os.environ.get("NOWAIT"):
                a(f"s_waitcnt vmcnt({4*NSET-6})")
            def ex(lo, hi):
                for e in range(lo, hi):
                    a(f"v_exp_f32 v{S+e}, v{S+e}")

            def cv(lo, hi):
                for jj in range(lo, hi):
                    a(f"v_cvt_pk_bf16_f32 v{P+jj}, v{S+2*jj}, v{S+2*jj+1}")
            if ORDER2:
                qk(0, cur ^ 1, nks, ni)
                ex(0, 5)
                qk(1, cur ^ 1, nks, ni)
                if i == 1:
                    loadV((kk - 1) % NSET)
                if i == 3:
                    loadK(kk)
                ex(5, 9)
                cv(0, 2)
                pv(0, cur ^ 1, pvs, pi)
                ex(9, 13)
                cv(2, 4)
                pv(1, cur ^ 1, pvs, pi)
                ex(13, 16)
                cv(4, 8)
            else:
                qk(0, cur ^ 1, nks, ni)
                ex(0, 4)
                qk(1, cur ^ 1, nks, ni)
                if i == 1:
                    loadV((kk - 1) % NSET)
                if i == 3:
                    loadK(kk)
                ex(4, 8)
                pv(0, cur ^ 1, pvs, pi)
                ex(8, 12)
                cv(0, 2)
                pv(1, cur ^ 1, pvs, pi)
                ex(12, 16)
                cv(2, 8)
    a("s_sub_u32 s39, s39, 1")
    a("s_cmp_lg_u32 s39, 0")
    a(f"s_cbranch_scc1 {pfx}_loop")
    pv(0, 1, NSET - 1, 3)
    pv(1, 1, NSET - 1, 3)
    stamp(a, "attn")
    a(f"s_branch {pfx}_epi")

    a.label(f"{pfx}_slow")
    for r in range(4):
        a(f"v_mov_b32 v{A_M+r}, {hx(f2u(-1e30))}")
    a("s_mov_b32 s39, 32")
    a(f"s_sub_u32 s{s_kp}, s{s_kp}, {KVS*(NSET-1)}")
    a(f"s_sub_u32 s{s_vp}, s{s_vp}, {KVS*(NSET-2)}")
    a.label(f"{pfx}_sloop")
    a("s_waitcnt vmcnt(0)")
    for i in range(4):
        S, P, M = A_S, A_P, A_M + i
        qk(0, 0, 0, i)
        qk(1, 0, 0, i)
        a(f"v_max3_f32 v{T}, v{S}, v{S+1}, v{S+2}")
        for e in range(3, 15, 2):
            a(f"v_max3_f32 v{T}, v{T}, v{S+e}, v{S+e+1}")
        a(f"v_max_f32 v{T}, v{T}, v{S+15}")
        a(f"v_mov_b32 v{T+1}, v{T}")
        a(f"v_permlane32_swap_b32 v{T}, v{T+1}")
        a(f"v_max3_f32 v{T}, v{T}, v{T+1}, v{M}")
        a(f"v_sub_f32 v{T+1}, v{M}, v{T}")
        a(f"v_exp_f32 v{T+1}, v{T+1}")
        a(f"v_mov_b32 v{M}, v{T}")
        for e in range(16):
            a(f"v_sub_f32 v{S+e}, v{S+e}, v{T}")
            a(f"v_exp_f32 v{S+e}, v{S+e}")
        for j in range(8):
            a(f"v_cvt_pk_bf16_f32 v{P+j}, v{S+2*j}, v{S+2*j+1}")
        for e in range(16):
            a(f"v_mul_f32 v{A_O+16*i+e}, v{A_O+16*i+e}, v{T+1}")
        pv(0, 0, 0, i)
        pv(1, 0, 0, i)
    loadK(0)
    loadV(0)
    a("s_sub_u32 s39, s39, 1")
    a("s_cmp_lg_u32 s39, 0")
    a(f"s_cbranch_scc1 {pfx}_sloop")

    a.label(f"{pfx}_epi")
    a("s_waitcnt vmcnt(0)")
    if PREFETCH:
        srd(a, 16, 14, 819200)
        a(f"s_lshr_b32 s40, s{s_wg}, 3")
        a("s_lshl_b32 s40, s40, 2")
        a(f"s_add_u32 s40, s40, s{s_w}")
        a("s_mul_i32 s40, s40, 6400")
        a(f"v_lshlrev_b32 v{T+14}, 6, v{vLane}")
        a(f"buffer_load_dword v{T+15}, v{T+14}, s[16:19], s40 offen")
        a("s_add_u32 s40, s40, 4096")
        a(f"buffer_load_dword v{T+15}, v{T+14}, s[16:19], s40 offen")
    vW, vR = T, T + 1
    a(f"s_mul_i32 s40, s{s_w}, 6656")
    a(f"s_xor_b32 s41, s{s_w}, 1")
    a("s_mul_i32 s41, s41, 6656")
    a(f"v_add_u32 v{vW}, s40, v{vK1}")
    a(f"v_add_u32 v{vR}, s41, v{vK1}")
    a(f"v_lshlrev_b32 v{T+2}, 2, v{vLane}")
    a(f"v_add_u32 v{T+3}, s41, v{T+2}")
    a(f"v_add_u32 v{T+2}, s40, v{T+2}")
    a(f"s_cmp_eq_u32 s{s_kh}, 0")
    a(f"s_cbranch_scc1 {pfx}_e0")
    for t in range(2):
        for q in range(3):
            a(f"ds_write_b128 v{vW}, {vr(A_O+16*t+4*q,4)} offset:{(t*3+q)*1024}")
        a(f"ds_write_b32 v{T+2}, v{A_M+t} offset:{6144+t*256}")
    a("s_waitcnt lgkmcnt(0)")
    for t in range(2):
        for e in range(12):
            a(f"v_mov_b32 v{A_O+16*t+e}, v{A_O+16*(t+2)+e}")
        a(f"v_mov_b32 v{A_M+t}, v{A_M+t+2}")
    a(f"s_add_u32 s{s_hd}, s{s_hd}, 2")
    a(f"s_branch {pfx}_e1")
    a.label(f"{pfx}_e0")
    for t in range(2):
        for q in range(3):
            a(f"ds_write_b128 v{vW}, {vr(A_O+16*(t+2)+4*q,4)} offset:{(t*3+q)*1024}")
        a(f"ds_write_b32 v{T+2}, v{A_M+t+2} offset:{6144+t*256}")
    a("s_waitcnt lgkmcnt(0)")
    a.label(f"{pfx}_e1")
    a("s_barrier")
    for t in range(2):
        for q in range(3):
            a(f"ds_read_b128 {vr(A_S+16*t+4*q,4)}, v{vR} offset:{(t*3+q)*1024}")
        a(f"ds_read_b32 v{A_M+2+t}, v{T+3} offset:{6144+t*256}")
    a("s_waitcnt lgkmcnt(0)")
    a(f"s_mul_i32 s40, s{s_rt}, {40*1024}")
    a(f"s_add_u32 s40, s40, {OF}")
    a(f"v_mov_b32 v{T+12}, {hx(OOB)}")
    a(f"v_cmp_eq_u32 s[42:43], 0, v{vH}")
    for t in range(2):
        O, Pz, Ma, Mp = A_O + 16 * t, A_S + 16 * t, A_M + t, A_M + 2 + t
        a(f"v_max_f32 v{T+4}, v{Ma}, v{Mp}")
        a(f"v_sub_f32 v{T+5}, v{Ma}, v{T+4}")
        a(f"v_sub_f32 v{T+6}, v{Mp}, v{T+4}")
        a(f"v_exp_f32 v{T+5}, v{T+5}")
        a(f"v_exp_f32 v{T+6}, v{T+6}")
        for e in range(12):
            a(f"v_mul_f32 v{O+e}, v{O+e}, v{T+5}")
            a(f"v_fmac_f32 v{O+e}, v{Pz+e}, v{T+6}")
        a(f"v_mov_b32 v{T+7}, v{O+8}")
        a(f"v_mov_b32 v{T+8}, v{O+8}")
        a(f"v_permlane32_swap_b32 v{T+7}, v{T+8}")
        a(f"v_rcp_f32 v{T+8}, v{T+8}")
        for e in range(12):
            a(f"v_mul_f32 v{O+e}, v{O+e}, v{T+8}")
        for q in range(3):
            a(f"v_cvt_pk_bf16_f32 v{O+4*q}, v{O+4*q}, v{O+4*q+1}")
            a(f"v_cvt_pk_bf16_f32 v{O+4*q+1}, v{O+4*q+2}, v{O+4*q+3}")
        a(f"s_add_u32 s41, s{s_hd}, {t}")
        a("s_mul_i32 s41, s41, 20")
        for q in range(3):
            k, off = T + 9, T + 10
            a(f"v_lshlrev_b32 v{k}, 2, v{vH}")
            a(f"v_add_u32 v{k}, s41, v{k}")
            if q:
                a(f"v_add_u32 v{k}, {8*q}, v{k}")
            a(f"v_lshrrev_b32 v{off}, 3, v{k}")
            a(f"v_lshlrev_b32 v{off}, 9, v{off}")
            a(f"v_lshl_add_u32 v{off}, v{vN}, 4, v{off}")
            a(f"v_and_b32 v{k}, 4, v{k}")
            a(f"v_lshl_add_u32 v{off}, v{k}, 1, v{off}")
            if q == 2:
                a(f"v_cndmask_b32 v{off}, v{T+12}, v{off}, s[42:43]")
            a(f"buffer_store_dwordx2 {vr(O+4*q,2)}, v{off}, s[{SWS}:{SWS+3}], s40 offen")


def gen_attn():
    a = Asm()
    a.label("attn_kernel")
    a("s_cmp_ge_u32 s2, 256")
    a("s_cbranch_scc1 attn_end")
    stamp_begin(a, "attn")
    gen_attn_body(a, "attn", 2)
    stamp_end(a, "attn", 28, 32, 250)
    a.label("attn_end")
    a("s_endpgm")
    return a.finish(), ("attn_kernel", 256, 256, 26624, 256 if STAMP else 248)


R_ACC, R_A, R_B, R_T = 16, 112, 160, 208


def zero_acc(a, acc, n, tmp):
    for e in range(4):
        a(f"v_mov_b32 v{tmp+e}, 0")
    for t in range(n):
        mfma32(a, acc + 16 * t, tmp, tmp, "0")


def typek_rolled(K, pfx):
    a, RD = K.a, K.RD
    assert K.RD == 6 and K.RB == 6 and K.KS % 6 == 0
    a("s_waitcnt vmcnt(10)")
    for x in K.reads(0):
        a(x)
    a(f"s_mov_b32 s59, {K.KS // 6}")
    a(f"s_add_u32 s{K.s_g}, s{K.s_g}, {6*K.gstep}")
    a.label(f"{pfx}_kl")
    for s in range(6):
        a(f"s_waitcnt vmcnt({min(22, 10 + 3*s)})")
        for x in K.reads(s + 1):
            a(x)
        a("s_waitcnt lgkmcnt(6)")
        k = 0
        for ct in range(3):
            for rt in range(2):
                mfma32(a, K.ACC + (rt * 3 + ct) * 16, K.AF + (s & 1) * 12 + ct * 4, K.BF + s * 8 + rt * 4)
                if k % 2 == 0:
                    c = k // 2
                    a(f"s_add_u32 m0, s{K.s_ring}, {(s*3+c)*1024}")
                    a(f"s_add_u32 s91, s{K.s_g}, {s*K.gstep + c*64}")
                    a(f"buffer_load_dwordx4 v{K.vWo}, s[{K.SW}:{K.SW+3}], s91 offen lds")
                k += 1
        for rt in range(2):
            sb = K.s_b0 if rt == 0 else K.s_b1
            a(f"s_add_u32 s91, s{sb}, {(s+6)*1024}")
            a(f"buffer_load_dwordx4 {vr(K.BF+s*8+rt*4,4)}, v{K.vB}, s[{K.SB}:{K.SB+3}], s91 offen{K.bmods}")
    a(f"s_add_u32 s{K.s_g}, s{K.s_g}, {6*K.gstep}")
    a(f"s_add_u32 s{K.s_b0}, s{K.s_b0}, 6144")
    a(f"s_add_u32 s{K.s_b1}, s{K.s_b1}, 6144")
    a("s_sub_u32 s59, s59, 1")
    a("s_cmp_lg_u32 s59, 0")
    a(f"s_cbranch_scc1 {pfx}_kl")
    a("s_waitcnt vmcnt(0) lgkmcnt(0)")


class TypeR:
    def __init__(self, a, pfx, NT, NS, vTr, vWo, vB, s_w, srd_of_tile, goff, s_bp, SWS, tr2, bmods=""):
        self.__dict__.update(locals())
        self.SLOT = 4 * NT * 1024
        self.sname = {"gu": "gateup", "dn": "down", "fi": "final"}[pfx[:2]]
        self.s_m = 60
        self.per = NT + 4

    def dma_ops(self, stage):
        slot = stage % 3
        s_g0, s_g1, gstep = self.goff
        out = []
        for t in range(self.NT):
            sr, grp, tt = self.srd_of_tile(t)
            out.append([f"s_add_u32 m0, s{self.s_m}, {slot*self.SLOT + t*1024}",
                        f"s_add_u32 s61, s{s_g0 if grp == 0 else s_g1}, {stage*gstep + tt*64}",
                        f"buffer_load_dwordx4 v{self.vWo}, s[{sr}:{sr+3}], s61 offen lds"])
        return out

    def b_ops(self, stage):
        slot = stage % 3
        bl = []
        for j in range(4):
            g = []
            if j == 0:
                g.append(f"s_add_u32 s62, s{self.s_bp}, {stage*4096}")
            g.append(f"buffer_load_dwordx4 {vr(R_B+slot*16+j*4,4)}, v{self.vB}, s[{self.SWS}:{self.SWS+3}], s62 offen offset:{j*1024}{self.bmods}")
            bl.append(g)
        return bl

    def vm_ops(self, stage):
        out, bl, res = self.dma_ops(stage), self.b_ops(stage), []
        while out or bl:
            if out:
                res.append(out.pop(0))
            if bl and len(res) > 1:
                res.append(bl.pop(0))
        return res

    def emit(self, groups):
        for g in groups:
            for x in g:
                self.a(x)

    def reads(self, stage, j):
        buf = (stage * 4 + j) & 1
        slot = stage % 3
        base = (slot & 1) * self.SLOT + j * self.NT * 1024
        va = self.vTr + (slot >> 1)
        out = []
        for t in range(self.NT):
            r = R_A + buf * 24 + t * 4
            out.append(f"ds_read_b64_tr_b16 {vr(r,2)}, v{va} offset:{base + t*1024}")
            out.append(f"ds_read_b64_tr_b16 {vr(r+2,2)}, v{va} offset:{base + t*1024 + self.tr2}")
        return out

    def mf(self, stage, j, t):
        buf = (stage * 4 + j) & 1
        first = stage == 0 and j == 0
        mfma32(self.a, R_ACC + 16 * t, R_A + buf * 24 + t * 4, R_B + (stage % 3) * 16 + j * 4, "0" if first else None)

    def setup(self):
        a = self.a
        a(f"s_mul_i32 s{self.s_m}, s{self.s_w}, {self.NT*1024}")
        a(f"v_add_u32 v{self.vTr+1}, {2*self.SLOT}, v{self.vTr}")

    def main(self, first_wait, extra_vm=None):
        a, NT, NS = self.a, self.NT, self.NS
        extra_vm = extra_vm or {}
        order = [0] * self.per + [1] * self.per
        stamp(a, self.sname)
        a(f"s_waitcnt vmcnt({first_wait})")
        a("s_barrier")
        stamp(a, self.sname)
        for x in self.reads(0, 0):
            a(x)
        for i in range(NS):
            if i in (1, 2, 4):
                stamp(a, self.sname)
            ops = self.vm_ops(i + 2) if i + 2 < NS else []
            order += [i + 2] * len(ops)
            ops = ops + extra_vm.get(i, [])
            order += [-1] * len(extra_vm.get(i, []))
            nslots = 3 * NT
            place = {}
            for k, g in enumerate(ops):
                place.setdefault((k * nslots) // len(ops), []).append(g)
            for j in range(3):
                rd = self.reads(i, j + 1)
                for t in range(NT):
                    a(f"s_waitcnt lgkmcnt({2*(NT-1)})")
                    self.mf(i, j, t)
                    a(rd[2 * t])
                    a(rd[2 * t + 1])
                    if j * NT + t in place:
                        self.emit(place[j * NT + t])
            last = i + 1 == NS
            H = NT if last else (NT + 1) // 2
            for t in range(H):
                a(f"s_waitcnt lgkmcnt({2*(NT-1-t)})")
                self.mf(i, 3, t)
            if not last:
                lastidx = max(k for k, o in enumerate(order) if o == i + 1)
                a(f"s_waitcnt vmcnt({len(order) - 1 - lastidx}) lgkmcnt(0)")
                a("s_barrier")
                rd = self.reads(i + 1, 0)
                n = NT - H
                for k, t in enumerate(range(H, NT)):
                    self.mf(i, 3, t)
                    for x in rd[(k * len(rd)) // n:((k + 1) * len(rd)) // n]:
                        a(x)


def typer_rolled(R, extra_vm=None):
    a, NT = R.a, R.NT
    assert R.NS == 10
    s_g0, s_g1, gstep = R.goff
    extra_vm = extra_vm or []
    a(f"s_waitcnt vmcnt({R.per})")
    a("s_barrier")
    stamp(a, R.sname)
    for x in R.reads(0, 0):
        a(x)
    a("s_mov_b32 s59, 3")
    a.label(f"{R.pfx}_rl")
    nx = len(extra_vm)

    def stage(i, ops, xtra, wait_n, last=False):
        ops = xtra + ops
        nslots = 3 * NT
        place = {}
        for k, g in enumerate(ops):
            place.setdefault((k * nslots) // len(ops), []).append(g)
        for j in range(3):
            rd = R.reads(i, j + 1)
            for t in range(NT):
                a(f"s_waitcnt lgkmcnt({2*(NT-1)})")
                R.mf(i + 3, j, t)
                a(rd[2 * t])
                a(rd[2 * t + 1])
                if j * NT + t in place:
                    R.emit(place[j * NT + t])
        H = NT if last else (NT + 1) // 2
        for t in range(H):
            a(f"s_waitcnt lgkmcnt({2*(NT-1-t)})")
            R.mf(i + 3, 3, t)
        if not last:
            a(f"s_waitcnt vmcnt({wait_n}) lgkmcnt(0)")
            a("s_barrier")
            rd = R.reads(i + 1, 0)
            n = NT - H
            for k, t in enumerate(range(H, NT)):
                R.mf(i + 3, 3, t)
                for x in rd[(k * len(rd)) // n:((k + 1) * len(rd)) // n]:
                    a(x)
    stage(0, R.vm_ops(2), extra_vm, R.per + nx)
    stage(1, R.vm_ops(3), [], R.per)
    stage(2, R.vm_ops(4), [], R.per)
    a(f"s_add_u32 s{s_g0}, s{s_g0}, {3*gstep}")
    if s_g1 != s_g0:
        a(f"s_add_u32 s{s_g1}, s{s_g1}, {3*gstep}")
    a(f"s_add_u32 s{R.s_bp}, s{R.s_bp}, {3*4096}")
    a("s_sub_u32 s59, s59, 1")
    a("s_cmp_lg_u32 s59, 0")
    a(f"s_cbranch_scc1 {R.pfx}_rl")
    stage(0, [], [], 0, last=True)


def gen_gateup_body(a, pfx, s_wg, mid_hook=None, smods='', extra_vm=None):
    s_w, s_rb, s_cb = 32, 33, 34
    SW1, SW3, SWS = 16, 20, 28
    vLane, vN, vH, vWo, vB, vTr = 1, 2, 3, 4, 5, 6
    T = R_T
    a("s_load_dwordx4 s[4:7], s[0:1], 48")
    a("s_load_dwordx2 s[12:13], s[0:1], 88")
    lane_setup(a, T, vLane, vN, vH, s_w)
    a(f"s_and_b32 s3, s{s_wg}, 7")
    a(f"s_lshr_b32 s35, s{s_wg}, 3")
    a("s_and_b32 s36, s3, 1")
    a("s_lshl_b32 s36, s36, 3")
    a("s_and_b32 s37, s35, 7")
    a(f"s_add_u32 s{s_rb}, s36, s37")
    a("s_lshr_b32 s36, s3, 1")
    a("s_lshl_b32 s36, s36, 2")
    a("s_lshr_b32 s37, s35, 3")
    a(f"s_add_u32 s{s_cb}, s36, s37")
    a(f"v_lshrrev_b32 v{T}, 2, v{vLane}")
    a(f"v_mul_u32_u24 v{vWo}, 3072, v{T}")
    a(f"v_and_b32 v{T}, 3, v{vLane}")
    a(f"v_lshl_add_u32 v{vWo}, v{T}, 4, v{vWo}")
    tr_base(a, vTr, T, vLane, vH, 9)
    a(f"v_lshlrev_b32 v{vB}, 4, v{vLane}")
    a(f"s_mul_i32 s40, s{s_w}, {16*3072}")
    a(f"s_mul_i32 s41, s{s_cb}, 192")
    a("s_add_u32 s40, s40, s41")
    a(f"s_lshl_b32 s42, s{s_rb}, 2")
    a(f"s_add_u32 s42, s42, s{s_w}")
    a(f"s_mul_i32 s43, s42, {40*1024}")
    if XF:
        a(f"s_add_u32 s43, s43, {XF}")
    a("s_waitcnt lgkmcnt(0)")
    srd(a, SW1, 4, 1966080)
    srd(a, SW3, 6, 1966080)
    srd(a, SWS, 12, WS_END)
    R = TypeR(a, pfx, 6, 10, vTr, vWo, vB, s_w,
              lambda t: (SW1, 0, t) if t < 3 else (SW3, 0, t - 3), (40, 40, 64 * 3072), 43, SWS, 256)
    R.setup()
    R.emit(R.vm_ops(0) + R.vm_ops(1))
    if ROLL:
        zero_acc(a, R_ACC, 6, R_A)
        typer_rolled(R, extra_vm)
    else:
        R.main(R.per, extra_vm)
    if mid_hook:
        mid_hook()
    stamp(a, "gateup")
    a(f"s_mov_b32 s44, {hx(f2u(-math.log2(math.e)))}")
    a(f"s_mul_i32 s45, s42, {96*1024}")
    a(f"s_mul_i32 s46, s{s_cb}, {6*1024}")
    a("s_add_u32 s45, s45, s46")
    a(f"s_add_u32 s45, s45, {HF}")
    a(f"v_mov_b32 v{T}, s44")
    a(f"v_mov_b32 v{T+1}, s44")
    a(f"v_mov_b32 v{T+2}, 1.0")
    a(f"v_mov_b32 v{T+3}, 1.0")
    for t in range(3):
        g, u = R_ACC + 16 * t, R_ACC + 16 * (t + 3)
        E = R_A
        for e in range(0, 16, 2):
            a(f"v_pk_mul_f32 {vr(E+e,2)}, {vr(g+e,2)}, {vr(T,2)}")
        for e in range(16):
            a(f"v_exp_f32 v{E+e}, v{E+e}")
        for e in range(0, 16, 2):
            a(f"v_pk_add_f32 {vr(E+e,2)}, {vr(E+e,2)}, {vr(T+2,2)}")
        for e in range(16):
            a(f"v_rcp_f32 v{E+e}, v{E+e}")
        for e in range(0, 16, 2):
            a(f"v_pk_mul_f32 {vr(g+e,2)}, {vr(g+e,2)}, {vr(u+e,2)}")
        for e in range(0, 16, 2):
            a(f"v_pk_mul_f32 {vr(g+e,2)}, {vr(g+e,2)}, {vr(E+e,2)}")
        for j in range(8):
            a(f"v_cvt_pk_bf16_f32 v{u+j}, v{g+2*j}, v{g+2*j+1}")
        for hf in range(2):
            o = (2 * t + hf) * 1024
            if o < 4096:
                a(f"buffer_store_dwordx4 {vr(u+4*hf,4)}, v{vB}, s[{SWS}:{SWS+3}], s45 offen offset:{o}{smods}")
            else:
                a(f"s_add_u32 s46, s45, {o}")
                a(f"buffer_store_dwordx4 {vr(u+4*hf,4)}, v{vB}, s[{SWS}:{SWS+3}], s46 offen{smods}")


def gen_gateup():
    a = Asm()
    a.label("gateup_kernel")
    a("s_cmp_ge_u32 s2, 256")
    a("s_cbranch_scc1 gateup_end")
    stamp_begin(a, "gateup")
    gen_gateup_body(a, "gu", 2)
    stamp_end(a, "gateup", 28, 32, 240)
    a.label("gateup_end")
    a("s_endpgm")
    return a.finish(), ("gateup_kernel", 256, 256, 73728, 256 if STAMP else 216)


D_AF, D_BF, D_RES, D_XR, D_T = 112, 136, 184, 212, 224
RING = 18432


def tile64_setup(a, s_wg, s_rb, s_cb):
    a(f"s_and_b32 s3, s{s_wg}, 7")
    a("s_lshl_b32 s3, s3, 2")
    a(f"s_bfe_u32 s36, s{s_wg}, 0x20003")
    a(f"s_add_u32 s{s_rb}, s3, s36")
    a(f"s_lshr_b32 s{s_cb}, s{s_wg}, 5")


def gen_down_setup(a, s_wg, standalone, bmods=""):
    s_w = 32
    s_rb, s_cb = 63, 64
    SW, SWS, SX = 24, 28, 76
    vLane, vN, vH, vWo, vB, vTr, vXo = 1, 2, 3, 8, 5, 9, 10
    T = D_T
    a("s_load_dwordx2 s[8:9], s[0:1], 64")
    a("s_load_dwordx2 s[14:15], s[0:1], 0")
    if standalone:
        a("s_load_dwordx2 s[12:13], s[0:1], 88")
        lane_setup(a, T, vLane, vN, vH, s_w)
        a(f"v_lshlrev_b32 v{vB}, 4, v{vLane}")
    tile64_setup(a, s_wg, s_rb, s_cb)
    a(f"v_lshrrev_b32 v{T}, 2, v{vLane}")
    a(f"v_mul_u32_u24 v{vWo}, 1280, v{T}")
    a(f"v_and_b32 v{T}, 3, v{vLane}")
    a(f"v_lshl_add_u32 v{vWo}, v{T}, 4, v{vWo}")
    tr_base(a, vTr, T, vLane, vH, 8)
    a(f"s_mul_i32 s67, s{s_w}, {RING}")
    a(f"v_add_u32 v{vTr}, s67, v{vTr}")
    a(f"v_mul_u32_u24 v{vXo}, 1280, v{vN}")
    a(f"v_lshl_add_u32 v{vXo}, v{vH}, 3, v{vXo}")
    a(f"s_mul_i32 s66, s{s_w}, {384*1280}")
    a(f"s_mul_i32 s37, s{s_cb}, 192")
    a("s_add_u32 s66, s66, s37")
    a(f"s_mul_i32 s68, s{s_rb}, {2*96*1024}")
    a(f"s_mul_i32 s36, s{s_w}, {24*1024}")
    a("s_add_u32 s68, s68, s36")
    a(f"s_add_u32 s68, s68, {HF}")
    a(f"s_add_u32 s65, s68, {96*1024}")
    a(f"s_mul_i32 s70, s{s_rb}, {64*1280}")
    a("s_add_u32 s70, s70, s37")
    a(f"s_lshl_b32 s36, s{s_w}, 4")
    a("s_add_u32 s70, s70, s36")
    a(f"s_add_u32 s71, s70, {32*1280}")
    a("s_waitcnt lgkmcnt(0)")
    srd(a, SW, 8, 1966080)
    srd(a, SX, 14, 2621440)
    if standalone:
        srd(a, SWS, 12, WS_END)
    K = TypeK(a, 24, 6, 6, R_ACC, D_AF, D_BF, vTr, 512, vWo, SW, 66, 16 * 1280, 67, vB, SWS, 68, 65, bmods)
    return K


def gen_down_issue(a, K):
    SX, vXo = 76, 10
    for rt in range(2):
        for ct in range(3):
            a(f"buffer_load_dwordx2 {vr(D_XR+(rt*3+ct)*2,2)}, v{vXo}, s[{SX}:{SX+3}], s{70+rt} offen offset:{ct*64}")
    order = [("x",)] * 6
    for s in range(6):
        K.emit(K.dma(s))
        order += [("d", s)] * 3
    return K, order


def gen_down_rest(a, K, order):
    s_w, s_rb, s_cb, SWS, vB, vLane = 32, 63, 64, 28, 5, 1
    T = D_T
    if ROLL:
        for s in range(6):
            for rt in range(2):
                sb = K.s_b0 if rt == 0 else K.s_b1
                a(f"s_add_u32 s91, s{sb}, {s*1024}")
                a(f"buffer_load_dwordx4 {vr(K.BF+s*8+rt*4,4)}, v{K.vB}, s[{K.SB}:{K.SB+3}], s91 offen{K.bmods}")
        zero_acc(a, R_ACC, 6, D_AF)
        typek_rolled(K, "dn")
    else:
        for s in range(6):
            K.emit(K.bl(s))
            order = order + [("b", s)] * 2
        K.main(order)
    stamp(a, "mffn")
    stamp(a, "down")
    a("s_setprio 2")
    reduce4(a, "dn", R_ACC, D_RES, R_ACC, vB, T, s_w, 67, 0, RING)
    a("s_mov_b32 s49, 0xffff0000")
    a(f"s_mul_i32 s45, s{s_rb}, 40")
    a(f"s_mul_i32 s46, s{s_cb}, 3")
    a("s_add_u32 s45, s45, s46")
    a("s_lshl_b32 s45, s45, 11")
    a(f"s_lshr_b32 s46, s{s_w}, 1")
    a("s_lshl_b32 s46, s46, 10")
    a("s_add_u32 s45, s45, s46")
    a(f"s_and_b32 s46, s{s_w}, 1")
    a("s_lshl_b32 s46, s46, 3")
    a("s_add_u32 s45, s45, s46")
    a(f"s_add_u32 s45, s45, {YF}")
    for ct in range(3):
        if ct == 2:
            a(f"s_cmp_eq_u32 s{s_cb}, 6")
            a("s_cbranch_scc1 dn_skip")
        for rt in range(2):
            r = D_RES + (rt * 3 + ct) * 4
            xr = D_XR + (rt * 3 + ct) * 2
            for e in range(2):
                a(f"v_lshlrev_b32 v{T}, 16, v{xr+e}")
                a(f"v_and_b32 v{T+1}, s49, v{xr+e}")
                a(f"v_pk_add_f32 {vr(r+2*e,2)}, {vr(r+2*e,2)}, {vr(T,2)}")
            a(f"v_cvt_pk_bf16_f32 v{r}, v{r}, v{r+1}")
            a(f"v_cvt_pk_bf16_f32 v{r+1}, v{r+2}, v{r+3}")
            a(f"s_add_u32 s46, s45, {(rt*20+ct)*2048}")
            a(f"buffer_store_dwordx2 {vr(r,2)}, v{vB}, s[{SWS}:{SWS+3}], s46 offen")
    a.label("dn_skip")


def gen_down():
    a = Asm()
    a.label("down_kernel")
    a("s_cmp_ge_u32 s2, 224")
    a("s_cbranch_scc1 down_end")
    stamp_begin(a, "down")
    K, order = gen_down_issue(a, gen_down_setup(a, 2, True))
    stamp(a, "down")
    gen_down_rest(a, K, order)
    stamp_end(a, "down", 28, 32, 240)
    a.label("down_end")
    a("s_endpgm")
    return a.finish(), ("down_kernel", 224, 256, 73728, 256 if STAMP else 232)


def gen_main():
    a = Asm()
    a.label("main_kernel")
    a("s_cmp_ge_u32 s2, 512")
    a("s_cbranch_scc1 main_end")
    a("s_cmp_ge_u32 s2, 256")
    a("s_cbranch_scc1 main_ffn")
    if PRIO_ATTN:
        a(f"s_setprio {PRIO_ATTN}")
    stamp_begin(a, "mattn")
    gen_attn_body(a, "ma", 2)
    stamp_end(a, "mattn", 28, 32, 250)
    a("s_endpgm")
    a.label("main_ffn")
    if PRIO_FFN:
        a(f"s_setprio {PRIO_FFN}")
    a("s_sub_u32 s69, s2, 256")
    stamp_begin(a, "mffn")
    st = {}
    K0 = gen_down_setup(a, 69, True, " sc1")
    xvm = {}
    if PREFETCH and PF0 >= 0:
        a("s_lshr_b32 s96, s69, 3")
        a("s_lshl_b32 s96, s96, 2")
        a("s_add_u32 s96, s96, s32")
        a("s_lshl_b32 s96, s96, 14")
        a(f"v_lshlrev_b32 v11, 6, v1")
        for q in range(4):
            xvm[PF0 + q] = [[f"s_add_u32 s97, s96, {q*4096}",
                             f"buffer_load_dword v12, v11, s[24:27], s97 offen"]]
        if ROLL:
            xvm = [["buffer_load_dword v12, v11, s[24:27], s96 offen", "s_add_u32 s96, s96, 2752"],
                   ["buffer_load_dword v12, v11, s[24:27], s96 offen", "s_add_u32 s96, s96, 2752"]]

    def mid():
        stamp(a, "mffn")
        a("s_setprio 2")
    gen_gateup_body(a, "gu", 69, mid, " sc1", xvm)
    SD = 28
    a("s_setprio 0")
    a("s_lshl_b32 s92, s33, 8")
    a(f"s_add_u32 s92, s92, {CT}")
    a("s_lshr_b32 s93, s63, 1")
    a("s_lshl_b32 s93, s93, 8")
    a(f"s_add_u32 s93, s93, {CT}")
    a("s_waitcnt vmcnt(0)")
    a("s_barrier")
    stamp(a, "mffn")
    a(f"v_mov_b32 v{D_T}, 0")
    a(f"v_mov_b32 v{D_T+1}, 1")
    a("s_cmp_lg_u32 s32, 0")
    a("s_cbranch_scc1 main_nosig")
    a("s_mov_b64 exec, 1")
    a(f"buffer_atomic_add v{D_T+1}, v{D_T}, s[{SD}:{SD+3}], s92 offen sc1")
    a("s_mov_b64 exec, -1")
    a.label("main_nosig")
    a("s_cmp_ge_u32 s69, 224")
    a("s_cbranch_scc1 main_end")
    K, order = gen_down_issue(a, K0)
    a("s_cmp_lg_u32 s32, 0")
    a("s_cbranch_scc1 main_polled")
    a("s_mov_b64 exec, 1")
    a.label("main_poll")
    a(f"buffer_load_dword v{D_T+2}, v{D_T}, s[{SD}:{SD+3}], s93 offen sc1")
    a("s_waitcnt vmcnt(0)")
    a(f"v_readfirstlane_b32 s95, v{D_T+2}")
    a("s_cmp_ge_u32 s95, 16")
    a("s_cbranch_scc1 main_pdone")
    a(f"s_sleep {os.environ.get('SLEEP', '8')}")
    a("s_branch main_poll")
    a.label("main_pdone")
    a("s_mov_b64 exec, -1")
    a.label("main_polled")
    a("s_barrier")
    stamp(a, "mffn")
    a(f"s_setprio {PRIO_DN}")
    gen_down_rest(a, K, order)
    stamp_end(a, "mffn", 28, 32, 240, 69)
    a.label("main_end")
    a("s_endpgm")
    return a.finish(), ("main_kernel", 512, 256, 73728, 256 if STAMP else 248)


PREFETCH = int(os.environ.get("PREFETCH", "1"))
PF0 = int(os.environ.get("PF0", "6"))
CODEPF = 0
ORDER = []
ROLL = int(os.environ.get("ROLL", "0"))
ORDER2 = int(os.environ.get("ORDER2", "1"))
PRIO_DN = int(os.environ.get("PRIO_DN", "0"))
PRIO_ATTN = int(os.environ.get("PRIO_ATTN", "0"))
PRIO_FFN = int(os.environ.get("PRIO_FFN", "0"))


def gen_final():
    a = Asm()
    a.label("final_kernel")
    s_w, s_rb, s_cb = 32, 33, 34
    SW, SO, SWS = 20, 24, 28
    vLane, vN, vH, vWo, vB, vTr, vXo = 1, 2, 3, 4, 5, 6, 8
    T = R_T
    YR = R_ACC + 32
    a("s_cmp_ge_u32 s2, 160")
    a("s_cbranch_scc1 final_end")
    stamp_begin(a, "final")
    a("s_load_dwordx2 s[6:7], s[0:1], 32")
    a("s_load_dwordx2 s[8:9], s[0:1], 72")
    a("s_load_dwordx2 s[12:13], s[0:1], 88")
    lane_setup(a, T, vLane, vN, vH, s_w)
    a("s_and_b32 s3, s2, 7")
    a("s_lshl_b32 s3, s3, 1")
    a("s_bfe_u32 s36, s2, 0x10003")
    a(f"s_add_u32 s{s_rb}, s3, s36")
    a(f"s_lshr_b32 s{s_cb}, s2, 4")
    a(f"v_lshlrev_b32 v{vB}, 4, v{vLane}")
    a(f"v_lshrrev_b32 v{T}, 2, v{vLane}")
    a(f"v_mul_u32_u24 v{vWo}, 1280, v{T}")
    a(f"v_and_b32 v{T}, 3, v{vLane}")
    a(f"v_lshl_add_u32 v{vWo}, v{T}, 4, v{vWo}")
    a(f"v_mul_u32_u24 v{vXo}, 1280, v{vN}")
    a(f"v_lshl_add_u32 v{vXo}, v{vH}, 4, v{vXo}")
    tr_base(a, vTr, T, vLane, vH, 9)
    a(f"s_mul_i32 s40, s{s_w}, {16*1280}")
    a(f"s_lshl_b32 s41, s{s_cb}, 7")
    a("s_add_u32 s40, s40, s41")
    a(f"s_lshl_b32 s42, s{s_rb}, 2")
    a(f"s_add_u32 s42, s42, s{s_w}")
    a(f"s_mul_i32 s43, s42, {40*1024}")
    a(f"s_add_u32 s43, s43, {OF}")
    a("s_mul_i32 s45, s42, 20")
    a(f"s_lshl_b32 s46, s{s_cb}, 1")
    a("s_add_u32 s45, s45, s46")
    a("s_lshl_b32 s45, s45, 11")
    a(f"s_add_u32 s45, s45, {YF}")
    a(f"s_mul_i32 s47, s42, {32*1280}")
    a("s_add_u32 s47, s47, s41")
    a("s_waitcnt lgkmcnt(0)")
    srd(a, SW, 6, 819200)
    srd(a, SO, 8, 2621440)
    srd(a, SWS, 12, WS_END)
    R = TypeR(a, "fi", 2, 10, vTr, vWo, vB, s_w, lambda t: (SW, 0, t), (40, 40, 64 * 1280), 43, SWS, 256)
    R.setup()
    R.emit(R.vm_ops(0) + R.vm_ops(1))
    yl = [[f"buffer_load_dwordx4 {vr(YR+4*q,4)}, v{vB}, s[{SWS}:{SWS+3}], s45 offen offset:{q*1024}"] for q in range(4)]
    R.main(R.per, {4: yl})
    stamp(a, "final")
    a("s_mov_b32 s49, 0xffff0000")
    a("s_waitcnt vmcnt(0)")
    for t in range(2):
        r = R_ACC + 16 * t
        for q in range(8):
            a(f"v_lshlrev_b32 v{T+2*(q&1)}, 16, v{YR+8*t+q}")
            a(f"v_and_b32 v{T+2*(q&1)+1}, s49, v{YR+8*t+q}")
            a(f"v_pk_add_f32 {vr(r+2*q,2)}, {vr(r+2*q,2)}, {vr(T+2*(q&1),2)}")
        for q in range(8):
            a(f"v_cvt_pk_bf16_f32 v{r+q}, v{r+2*q}, v{r+2*q+1}")
        for gp in range(2):
            b = r + 4 * gp
            a(f"v_permlane32_swap_b32 v{b}, v{b+2}")
            a(f"v_permlane32_swap_b32 v{b+1}, v{b+3}")
            a(f"buffer_store_dwordx4 {vr(b,4)}, v{vXo}, s[{SO}:{SO+3}], s47 offen offset:{t*64 + gp*32}")
    stamp_end(a, "final", SWS, s_w, 240)
    a.label("final_end")
    a("s_endpgm")
    return a.finish(), ("final_kernel", 160, 256, 24576, 256 if STAMP else 216)


def gen_empty():
    a = Asm()
    a.label("empty_kernel")
    a("s_endpgm")
    return a.finish(), ("empty_kernel", 256, 256, 65536, 256)


KERNELS = {"empty": gen_empty, "main": gen_main, "qkv": gen_qkv, "gateup": gen_gateup, "attn": gen_attn, "down": gen_down, "final": gen_final}
HEADER = open("parallel_sum__grouped_kv_mqa__glu_gated_swiglu__prompt.s.ref").read().split("; Override launch")[0] if False else ""


DEFAULT = ["qkv", "main", "final"]


def build(order):
    texts, launches = {}, []
    ORDER[:] = order
    for k in order:
        t, info = KERNELS[k]()
        texts[info[0]] = (t, info)
        launches.append(info)
    out = "; generated by dev/gen.py -- LN + MQA attention + SwiGLU block for gfx950\n"
    for name, grid, block, lds, vg in launches:
        out += f"; @launch kernel={name} grid=({grid},1,1) block=({block},1,1) lds={lds}\n"
    out += '.amdgcn_target "amdgcn-amd-amdhsa--gfx950"\n.text\n'
    for name, (t, info) in texts.items():
        out += kernel_header(name) + t
    out += "code_end:\n"
    out += '.section .rodata,"a"\n'
    for name, (t, info) in texts.items():
        out += kernel_desc(name, info[4])
    return out


if __name__ == "__main__":
    order = sys.argv[2].split(",") if len(sys.argv) > 2 else DEFAULT
    open(sys.argv[1], "w").write(build(order))
```

```python
import math
import struct
import sys

from asmlib import Asm

XF = 0x0
QF = 0x280000
KF = 0x500000
VF = KF + 1280
KVS = 2624
KN = 0x52A000
CT = 0x52C000
OF = 0x530000
HF = 0x800000
FP = 0x1000000
YF = 0x1000000
WS_END = 0x2500000
TS = 0x2400000
import os
STAMP = os.environ.get("STAMP", "")


_stamp_n = {}


def stamp(a, name, vreg=255):
    if name in STAMP.split(","):
        i = _stamp_n.get(name, 0)
        _stamp_n[name] = i + 1
        a("s_memtime s[100:101]")
        a("s_waitcnt lgkmcnt(0)")
        a(f"v_writelane_b32 v{vreg}, s100, {i}")


def stamp_begin(a, name, vreg=255):
    if name in STAMP.split(","):
        a("s_memrealtime s[98:99]")
        a("s_waitcnt lgkmcnt(0)")
        a(f"v_writelane_b32 v{vreg}, s98, 14")
    stamp(a, name, vreg)


def stamp_end(a, name, sws, s_w, vtmp, s_wg=2, vreg=255):
    if name in STAMP.split(","):
        a("s_waitcnt vmcnt(0) lgkmcnt(0)")
        stamp(a, name, vreg)
        a("s_memrealtime s[98:99]")
        a("s_waitcnt lgkmcnt(0)")
        a(f"v_writelane_b32 v{vreg}, s98, 15")
        a(f"s_lshl_b32 s94, s{s_wg}, 2")
        a(f"s_add_u32 s94, s94, s{s_w}")
        a("s_lshl_b32 s94, s94, 6")
        a(f"s_add_u32 s94, s94, {TS + STAMP.split(',').index(name) * 0x20000}")
        a(f"v_and_b32 v{vtmp}, 63, v0")
        a(f"v_lshlrev_b32 v{vtmp}, 2, v{vtmp}")
        a("s_mov_b64 s[98:99], exec")
        a("s_mov_b64 exec, 0xffff")
        a(f"buffer_store_dword v{vreg}, v{vtmp}, s[{sws}:{sws+3}], s94 offen")
        a("s_mov_b64 exec, s[98:99]")


QSCALE = (20 ** -0.5) * math.log2(math.e)


def f2u(x):
    return struct.unpack("<I", struct.pack("<f", x))[0]


def hx(x):
    return "0x%x" % x


def srd(a, d, base, size):
    a(f"s_mov_b32 s{d}, s{base}")
    a(f"s_and_b32 s{d+1}, s{base+1}, 0xffff")
    a(f"s_mov_b32 s{d+2}, {hx(size)}")
    a(f"s_mov_b32 s{d+3}, 0x00020000")


def vr(b, n=1):
    return f"v{b}" if n == 1 else f"v[{b}:{b+n-1}]"


def mfma32(a, d, x, y, c=None):
    cs = vr(d, 16) if c is None else c
    a(f"v_mfma_f32_32x32x16_bf16 {vr(d,16)}, {vr(x,4)}, {vr(y,4)}, {cs}")


def kernel_header(name):
    return f""".globl {name}
.p2align 8
.type {name},@function
"""


def kernel_desc(name, vgprs, sgprs=102):
    acc = (vgprs + 3) // 4 * 4
    return f""".p2align 6
.amdhsa_kernel {name}
  .amdhsa_next_free_vgpr {vgprs}
  .amdhsa_next_free_sgpr {sgprs}
  .amdhsa_accum_offset {acc}
  .amdhsa_group_segment_fixed_size 0
  .amdhsa_kernarg_size 96
  .amdhsa_user_sgpr_count 2
  .amdhsa_user_sgpr_kernarg_segment_ptr 1
  .amdhsa_system_sgpr_workgroup_id_x 1
.end_amdhsa_kernel
"""


K_X = 16
K_ACC = 96
K_A = 192
K_T = 216
WAVE_LDS = 30720
LDS_STG = 8192


K_R = K_A


def typek_mfma_phase(a, vtr, zero=True, vm_after=None, extra=None):
    def reads(s, buf):
        for ct in range(3):
            o = (3 * s + ct) * 1024
            r = K_A + buf * 12 + ct * 4
            a(f"ds_read_b64_tr_b16 {vr(r,2)}, v{vtr} offset:{o}")
            a(f"ds_read_b64_tr_b16 {vr(r+2,2)}, v{vtr} offset:{o+256}")
    if vm_after:
        a(f"s_waitcnt vmcnt({vm_after(0)})")
    reads(0, 0)
    for s in range(10):
        if s + 1 < 10:
            if vm_after:
                a(f"s_waitcnt vmcnt({vm_after(s+1)})")
            reads(s + 1, (s + 1) & 1)
            a("s_waitcnt lgkmcnt(6)")
        else:
            a("s_waitcnt lgkmcnt(0)")
        ex = list(extra(s)) if extra else []
        n = len(ex)
        k = 0
        for ct in range(3):
            for rt in range(2):
                d = K_ACC + (rt * 3 + ct) * 16
                mfma32(a, d, K_A + (s & 1) * 12 + ct * 4, K_X + rt * 40 + s * 4, "0" if (s == 0 and zero) else None)
                k += 1
                for x in ex[((k - 1) * n) // 6:(k * n) // 6]:
                    a(x)


def reduce4(a, pfx, ACC, RES, TMP, vL16, vT, s_w, s_base, base0, stride, pre_barrier=None, post_reads=None):
    for g in range(4):
        a(f"s_cmp_eq_u32 s{s_w}, {g}")
        a(f"s_cbranch_scc1 {pfx}_rw{g}")
        a(f"s_sub_u32 s90, {g+3}, s{s_w}")
        a("s_and_b32 s90, s90, 3")
        a("s_mul_i32 s90, s90, 6144")
        a(f"s_add_u32 s90, s90, s{s_base}")
        a(f"v_add_u32 v{vT}, s90, v{vL16}")
        for t in range(6):
            a(f"ds_write_b128 v{vT}, {vr(ACC+t*16+g*4,4)} offset:{t*1024}")
        a.label(f"{pfx}_rw{g}")
    if pre_barrier:
        pre_barrier()
    for jj in range(3):
        a(f"s_add_u32 s90, s{s_w}, {jj+1}")
        a("s_and_b32 s90, s90, 3")
        a(f"s_mul_i32 s90, s90, {stride}")
        a(f"s_add_u32 s90, s90, {base0 + (2-jj)*6144}")
        a(f"v_add_u32 v{vT+1+jj}, s90, v{vL16}")
    for g in range(4):
        a(f"s_cmp_lg_u32 s{s_w}, {g}")
        a(f"s_cbranch_scc1 {pfx}_ro{g}")
        for t in range(6):
            for e in range(4):
                a(f"v_mov_b32 v{RES+t*4+e}, v{ACC+t*16+g*4+e}")
        a.label(f"{pfx}_ro{g}")
    a("s_waitcnt lgkmcnt(0)")
    a("s_barrier")
    for jj in range(3):
        for t in range(6):
            a(f"ds_read_b128 {vr(TMP+(jj*6+t)*4,4)}, v{vT+1+jj} offset:{t*1024}")
    n_extra = post_reads() if post_reads else 0
    for jj in range(3):
        a(f"s_waitcnt lgkmcnt({min(15, (2-jj)*6 + n_extra)})")
        for e in range(0, 24, 2):
            a(f"v_pk_add_f32 {vr(RES+e,2)}, {vr(RES+e,2)}, {vr(TMP+jj*24+e,2)}")


class TypeK:
    def __init__(self, a, KS, RD, RB, ACC, AF, BF, vTr, tr2, vWo, SW, s_g, gstep, s_ring, vB, SB, s_b0, s_b1, bmods=""):
        self.__dict__.update(locals())

    def dma(self, s):
        out = []
        for ct in range(3):
            out.append([f"s_add_u32 m0, s{self.s_ring}, {((s % self.RD)*3+ct)*1024}",
                        f"s_add_u32 s91, s{self.s_g}, {s*self.gstep + ct*64}",
                        f"buffer_load_dwordx4 v{self.vWo}, s[{self.SW}:{self.SW+3}], s91 offen lds"])
        return out

    def bl(self, s):
        out = []
        for rt in range(2):
            sb = self.s_b0 if rt == 0 else self.s_b1
            g = []
            if s % 4 == 0 and s:
                g.append(f"s_add_u32 s{sb}, s{sb}, 4096")
            g.append(f"buffer_load_dwordx4 {vr(self.BF+(s%self.RB)*8+rt*4,4)}, v{self.vB}, s[{self.SB}:{self.SB+3}], s{sb} offen offset:{(s%4)*1024}{self.bmods}")
            out.append(g)
        return out

    def emit(self, groups):
        for g in groups:
            for x in g:
                self.a(x)

    def reads(self, s):
        out = []
        for ct in range(3):
            o = ((s % self.RD) * 3 + ct) * 1024
            r = self.AF + (s & 1) * 12 + ct * 4
            out.append(f"ds_read_b64_tr_b16 {vr(r,2)}, v{self.vTr} offset:{o}")
            out.append(f"ds_read_b64_tr_b16 {vr(r+2,2)}, v{self.vTr} offset:{o+self.tr2}")
        return out

    def main(self, order):
        a, KS, RD, RB = self.a, self.KS, self.RD, self.RB
        order = list(order)

        def wait_for(s):
            last = max(i for i, o in enumerate(order) if o in (("d", s), ("b", s)))
            a(f"s_waitcnt vmcnt({min(63, len(order) - 1 - last)})")
        wait_for(0)
        for x in self.reads(0):
            a(x)
        for s in range(KS):
            if s + 1 < KS:
                wait_for(s + 1)
                for x in self.reads(s + 1):
                    a(x)
                a("s_waitcnt lgkmcnt(6)")
            else:
                a("s_waitcnt lgkmcnt(0)")
            dm = self.dma(s + RD) if s + RD < KS else []
            k = 0
            for ct in range(3):
                for rt in range(2):
                    mfma32(a, self.ACC + (rt * 3 + ct) * 16, self.AF + (s & 1) * 12 + ct * 4,
                           self.BF + (s % RB) * 8 + rt * 4, "0" if s == 0 else None)
                    if k % 2 == 0 and dm:
                        self.emit([dm.pop(0)])
                        order.append(("d", s + RD))
                    k += 1
            if s + RB < KS:
                self.emit(self.bl(s + RB))
                order += [("b", s + RB)] * 2


def lane_setup(a, T, vLane, vN, vH, s_w):
    a(f"v_and_b32 v{vLane}, 63, v0")
    a(f"v_lshrrev_b32 v{T}, 6, v0")
    a(f"v_readfirstlane_b32 s{s_w}, v{T}")
    a(f"v_and_b32 v{vN}, 31, v0")
    a(f"v_bfe_u32 v{vH}, v0, 5, 1")


def tr_base(a, vTr, T, vLane, vH, hshift):
    a(f"v_lshlrev_b32 v{vTr}, {hshift}, v{vH}")
    a(f"v_bfe_u32 v{T}, v{vLane}, 2, 2")
    a(f"v_lshl_add_u32 v{vTr}, v{T}, 6, v{vTr}")
    a(f"v_bfe_u32 v{T}, v{vLane}, 4, 1")
    a(f"v_lshl_add_u32 v{vTr}, v{T}, 5, v{vTr}")
    a(f"v_and_b32 v{T}, 3, v{vLane}")
    a(f"v_lshl_add_u32 v{vTr}, v{T}, 3, v{vTr}")


def gen_qkv():
    a = Asm()
    a.label("qkv_kernel")
    ST, MX = 0, 1024
    XI, SL = 8192, 21504
    WR = XI + 4 * SL
    s_w, s_rb, s_cb, s_tg = 32, 33, 34, 35
    SX, SW, SWS = 16, 20, 28
    vLane, vN, vH = 1, 2, 3
    vXg, vXr, vTr, vWo = 4, 5, 7, 8
    AC, AF, BF, ONE, T = 16, 64, 72, 88, 92
    a("s_cmp_ge_u32 s2, 256")
    a("s_cbranch_scc1 qkv_end")
    stamp_begin(a, "qkv")
    a("s_load_dwordx4 s[4:7], s[0:1], 0")
    a("s_load_dwordx4 s[8:11], s[0:1], 16")
    a("s_load_dwordx2 s[12:13], s[0:1], 88")
    a("s_load_dwordx4 s[56:59], s[0:1], 48")
    lane_setup(a, T, vLane, vN, vH, s_w)
    a("s_and_b32 s3, s2, 7")
    a("s_lshl_b32 s3, s3, 2")
    a("s_bfe_u32 s36, s2, 0x20003")
    a(f"s_add_u32 s{s_rb}, s3, s36")
    a(f"s_lshr_b32 s{s_cb}, s2, 5")
    a(f"v_mul_u32_u24 v{T}, 49, v{vLane}")
    a(f"v_lshrrev_b32 v{T}, 10, v{T}")
    a(f"v_mul_u32_u24 v{T+1}, 21, v{T}")
    a(f"v_sub_u32 v{T+1}, v{vLane}, v{T+1}")
    a(f"v_mul_u32_u24 v{vXg}, 1280, v{T}")
    a(f"v_lshl_add_u32 v{vXg}, v{T+1}, 4, v{vXg}")
    a(f"s_mul_i32 s37, s{s_w}, {SL}")
    a(f"s_add_u32 s37, s37, {XI}")
    a(f"s_mul_i32 s39, s{s_rb}, {64*1280}")
    a(f"s_mul_i32 s40, s{s_w}, 320")
    a("s_add_u32 s39, s39, s40")
    a("s_mov_b32 s52, -1")
    a("s_mov_b32 s53, 0x7fffffff")
    a("s_mov_b32 s41, 21")
    a("s_waitcnt lgkmcnt(0)")
    stamp(a, "qkv")
    srd(a, SX, 4, 2621440)
    a("s_mov_b64 exec, s[52:53]")
    a.label("qkv_xl")
    a("s_mov_b32 m0, s37")
    a("s_add_u32 s37, s37, 1008")
    a("s_sub_u32 s41, s41, 1")
    a(f"buffer_load_dwordx4 v{vXg}, s[{SX}:{SX+3}], s39 offen lds")
    a("s_add_u32 s39, s39, 3840")
    a("s_cmp_lg_u32 s41, 0")
    a("s_cbranch_scc1 qkv_xl")
    a("s_mov_b64 exec, 0x1fffff")
    a("s_mov_b32 m0, s37")
    a("s_nop 0")
    a(f"buffer_load_dwordx4 v{vXg}, s[{SX}:{SX+3}], s39 offen lds")
    a("s_mov_b64 exec, -1")
    srd(a, SWS, 12, WS_END)
    a(f"v_mul_u32_u24 v{vXr}, 336, v{vN}")
    a(f"v_lshl_add_u32 v{vXr}, v{vH}, 4, v{vXr}")
    a(f"v_add_u32 v{vXr}, {XI}, v{vXr}")
    a(f"s_cmp_eq_u32 s{s_w}, 3")
    a("s_cbranch_scc1 qkv_w3")
    a(f"s_mul_i32 s{s_tg}, s{s_cb}, 3")
    a(f"s_add_u32 s{s_tg}, s{s_tg}, s{s_w}")
    a(f"v_lshrrev_b32 v{T}, 2, v{vLane}")
    a(f"v_and_b32 v{T+1}, 3, v{vLane}")
    a(f"v_lshlrev_b32 v{T+1}, 4, v{T+1}")
    a(f"s_cmp_eq_u32 s{s_tg}, 21")
    a(f"s_cselect_b32 s{SW}, s10, s8")
    a(f"s_cselect_b32 s{SW+1}, s11, s9")
    a(f"s_cmp_lt_u32 s{s_tg}, 22")
    a(f"s_cselect_b32 s{SW+2}, 25600, 0")
    a(f"s_lshl_b32 s45, s{s_tg}, 6")
    a(f"s_cmp_lt_u32 s{s_tg}, 20")
    a(f"s_cselect_b32 s{SW}, s6, s{SW}")
    a(f"s_cselect_b32 s{SW+1}, s7, s{SW+1}")
    a(f"s_cselect_b32 s{SW+2}, 819200, s{SW+2}")
    a(f"s_mov_b32 s{SW+3}, 0x00020000")
    a("s_cselect_b32 s42, s45, 0")
    a("s_movk_i32 s38, 1280")
    a("s_cselect_b32 s38, s38, 40")
    a(f"s_and_b32 s{SW+1}, s{SW+1}, 0xffff")
    a(f"v_mad_u32_u24 v{vWo}, v{T}, s38, v{T+1}")
    a("s_lshl_b32 s43, s38, 4")
    a(f"s_mul_i32 s44, s{s_w}, 20480")
    a(f"s_add_u32 s44, s44, {WR}")
    a("s_mov_b32 s46, s44")
    LA = int(os.environ.get("QLA", "12"))
    a(f"s_mov_b32 s41, {LA}")
    a.label("qkv_wl")
    a("s_mov_b32 m0, s46")
    a("s_add_u32 s46, s46, 1024")
    a("s_sub_u32 s41, s41, 1")
    a(f"buffer_load_dwordx4 v{vWo}, s[{SW}:{SW+3}], s42 offen lds")
    a("s_add_u32 s42, s42, s43")
    a("s_cmp_lg_u32 s41, 0")
    a("s_cbranch_scc1 qkv_wl")
    tr_base(a, vTr, T, vLane, vH, 9)
    a(f"v_add_u32 v{vTr}, s44, v{vTr}")
    for e in range(4):
        a(f"v_mov_b32 v{ONE+e}, 0x3f803f80")
    for e in range(48):
        a(f"v_mov_b32 v{AC+e}, 0")
    stamp(a, "qkv")
    a(f"s_waitcnt vmcnt({LA})")
    stamp(a, "qkv")
    a("s_barrier")
    stamp(a, "qkv")

    def rd(s, nxt):
        b = s & 1
        xa = vXr + 1 if nxt else vXr
        ta = vTr + 2 if nxt else vTr
        p = 0 if nxt else s
        a(f"ds_read_b64_tr_b16 {vr(AF+4*b,2)}, v{ta} offset:{p*1024}")
        a(f"ds_read_b64_tr_b16 {vr(AF+4*b+2,2)}, v{ta} offset:{p*1024+256}")
        a(f"ds_read_b128 {vr(BF+8*b,4)}, v{xa} offset:{p*32}")
        a(f"ds_read_b128 {vr(BF+8*b+4,4)}, v{xa} offset:{p*32+10752}")
    a(f"s_waitcnt vmcnt({LA-1})")
    rd(0, False)
    a("s_mov_b32 s41, 4")
    a("s_mov_b32 s46, s44")
    a.label("qkv_loop")
    a(f"v_add_u32 v{vXr+1}, {SL}, v{vXr}")
    a("s_sub_u32 s47, s46, s44")
    a("s_xor_b32 s47, s47, 10240")
    a("s_sub_u32 s48, s44, s46")
    a("s_add_u32 s48, s48, s47")
    a(f"v_add_u32 v{vTr+2}, s48, v{vTr}")
    a("s_add_u32 s49, s44, s47")
    for sx in range(10):
        a(f"s_waitcnt vmcnt({LA-2})")
        rd(sx + 1, sx == 9)
        p = sx + LA
        if p < 10 or p >= 20:
            a(f"s_add_u32 m0, s46, {(p % 20)*1024}")
        else:
            a(f"s_add_u32 m0, s49, {(p-10)*1024}")
        a("s_waitcnt lgkmcnt(4)")
        b = sx & 1
        mfma32(a, AC, AF + 4 * b, BF + 8 * b)
        a(f"buffer_load_dwordx4 v{vWo}, s[{SW}:{SW+3}], s42 offen lds")
        a("s_add_u32 s42, s42, s43")
        mfma32(a, AC + 16, AF + 4 * b, BF + 8 * b + 4)
        mfma32(a, AC + 32, AF + 4 * b, ONE)
    a(f"v_mov_b32 v{vXr}, v{vXr+1}")
    a(f"v_mov_b32 v{vTr}, v{vTr+2}")
    a("s_add_u32 s46, s44, s47")
    a("s_sub_u32 s41, s41, 1")
    a("s_cmp_lg_u32 s41, 0")
    a("s_cbranch_scc1 qkv_loop")
    stamp(a, "qkv")
    a("s_waitcnt lgkmcnt(0)")
    a("s_barrier")
    a(f"s_cmp_ge_u32 s{s_tg}, 22")
    a("s_cbranch_scc1 qkv_fin" if STAMP else "s_cbranch_scc1 qkv_end")
    a(f"v_lshlrev_b32 v{T}, 3, v{vN}")
    a(f"ds_read_b64 {vr(T+2,2)}, v{T} offset:{ST}")
    a(f"ds_read_b64 {vr(T+4,2)}, v{T} offset:{ST+256}")
    a(f"s_mov_b32 s45, {hx(f2u(QSCALE))}")
    a(f"s_cmp_lt_u32 s{s_tg}, 20")
    a("s_cselect_b32 s45, s45, 1.0")
    a("s_waitcnt lgkmcnt(0)")
    for rt in range(2):
        a(f"v_mul_f32 v{T+3+2*rt}, s45, v{T+3+2*rt}")
    for rt in range(2):
        for e in range(16):
            r = AC + 16 * rt + e
            a(f"v_fma_f32 v{r}, -v{T+2+2*rt}, v{AC+32+e}, v{r}")
            a(f"v_mul_f32 v{r}, v{r}, v{T+3+2*rt}")
    stamp(a, "qkv")
    vC0, vHead, vD0, vOff, vA = T + 6, T + 7, T + 8, T + 9, T + 10

    def frag_off():
        a(f"v_lshrrev_b32 v{vA}, 3, v{vD0}")
        a(f"v_lshlrev_b32 v{vA}, 9, v{vA}")
        a(f"v_lshl_add_u32 v{vA}, v{vN}, 4, v{vA}")
        a(f"v_and_b32 v{vA+1}, 4, v{vD0}")
        a(f"v_lshl_add_u32 v{vA}, v{vA+1}, 1, v{vA}")
        a(f"v_lshlrev_b32 v{vA+1}, 3, v{vN}")
        a(f"v_add_u32 v{vA+1}, 1024, v{vA+1}")
        a(f"v_cmp_gt_u32 vcc, 16, v{vD0}")
        a(f"v_cndmask_b32 v{vA}, v{vA+1}, v{vA}, vcc")
        a(f"v_add_u32 v{vOff}, v{vOff}, v{vA}")
    a(f"s_cmp_ge_u32 s{s_tg}, 20")
    a("s_cbranch_scc1 qkv_kv")
    a("s_mov_b32 s46, 3277")
    a(f"s_lshl_b32 s38, s{s_tg}, 5")
    a(f"s_mul_i32 s48, s{s_rb}, {2*32*1280}")
    a(f"s_add_u32 s48, s48, {QF}")
    a(f"s_add_u32 s49, s48, {32*1280}")
    for g in range(4):
        a(f"v_lshlrev_b32 v{vC0}, 2, v{vH}")
        a(f"v_add_u32 v{vC0}, s38, v{vC0}")
        if g:
            a(f"v_add_u32 v{vC0}, {8*g}, v{vC0}")
        a(f"v_mul_u32_u24 v{vHead}, s46, v{vC0}")
        a(f"v_lshrrev_b32 v{vHead}, 16, v{vHead}")
        a(f"v_mul_u32_u24 v{vD0}, 20, v{vHead}")
        a(f"v_sub_u32 v{vD0}, v{vC0}, v{vD0}")
        a(f"v_mul_u32_u24 v{vOff}, 1280, v{vHead}")
        frag_off()
        for rt in range(2):
            r = AC + 16 * rt + 4 * g
            a(f"v_cvt_pk_bf16_f32 v{r}, v{r}, v{r+1}")
            a(f"v_cvt_pk_bf16_f32 v{r+1}, v{r+2}, v{r+3}")
            a(f"buffer_store_dwordx2 {vr(r,2)}, v{vOff}, s[{SWS}:{SWS+3}], s{48+rt} offen{SM}")
    a("s_branch qkv_fin")
    a.label("qkv_kv")
    a(f"v_cmp_eq_u32 s[54:55], 0, v{vH}")
    for rt in range(2):
        q = T + 12 + rt
        r = AC + 16 * rt
        a(f"v_mul_f32 v{q}, v{r+8}, v{r+8}")
        for e in range(9, 12):
            a(f"v_fmac_f32 v{q}, v{r+e}, v{r+e}")
        a(f"v_cndmask_b32 v{q}, 0, v{q}, s[54:55]")
        for e in range(8):
            a(f"v_fmac_f32 v{q}, v{r+e}, v{r+e}")
        a(f"v_mov_b32 v{q+2}, v{q}")
        a(f"v_permlane32_swap_b32 v{q}, v{q+2}")
        a(f"v_add_f32 v{q}, v{q}, v{q+2}")
        for g in range(3):
            a(f"v_cvt_pk_bf16_f32 v{r+4*g}, v{r+4*g}, v{r+4*g+1}")
            a(f"v_cvt_pk_bf16_f32 v{r+4*g+1}, v{r+4*g+2}, v{r+4*g+3}")
    a(f"v_max_u32 v{T+12}, v{T+12}, v{T+13}")
    a(f"v_mov_b32 v{T+13}, 0")
    a(f"ds_max_u32 v{T+13}, v{T+12} offset:{MX}")
    a(f"s_cmp_eq_u32 s{s_tg}, 21")
    a("s_cbranch_scc1 qkv_v")
    a(f"s_mul_i32 s48, s{s_rb}, {2*KVS}")
    a(f"s_add_u32 s48, s48, {KF}")
    a(f"s_add_u32 s49, s48, {KVS}")
    for g in range(3):
        a(f"v_lshlrev_b32 v{vD0}, 2, v{vH}")
        if g:
            a(f"v_add_u32 v{vD0}, {8*g}, v{vD0}")
        a(f"v_mov_b32 v{vOff}, 0")
        frag_off()
        if g == 2:
            a("s_mov_b64 exec, 0xffffffff")
        for rt in range(2):
            a(f"buffer_store_dwordx2 {vr(AC+16*rt+4*g,2)}, v{vOff}, s[{SWS}:{SWS+3}], s{48+rt} offen")
    a("s_mov_b64 exec, -1")
    a("s_branch qkv_kn")
    a.label("qkv_v")
    a(f"s_mul_i32 s48, s{s_rb}, {2*KVS}")
    a(f"s_add_u32 s48, s48, {VF}")
    a(f"s_add_u32 s49, s48, {KVS}")
    a(f"v_lshrrev_b32 v{vA}, 4, v{vN}")
    a(f"v_lshlrev_b32 v{vA}, 1, v{vA}")
    a(f"v_bfe_u32 v{vA+1}, v{vN}, 2, 1")
    a(f"v_add_u32 v{vA}, v{vA}, v{vA+1}")
    a(f"v_mul_u32_u24 v{vA}, 21, v{vA}")
    a(f"v_lshl_add_u32 v{vA}, v{vH}, 2, v{vA}")
    a(f"v_lshlrev_b32 v{vOff}, 4, v{vA}")
    a(f"v_and_b32 v{vA}, 3, v{vN}")
    a(f"v_lshl_add_u32 v{vOff}, v{vA}, 1, v{vOff}")
    a(f"v_bfe_u32 v{vA}, v{vN}, 3, 1")
    a(f"v_lshl_add_u32 v{vOff}, v{vA}, 3, v{vOff}")
    for g in range(3):
        if g == 2:
            a("s_mov_b64 exec, 0xffffffff")
        for rt in range(2):
            r = AC + 16 * rt + 4 * g
            o = g * 128
            a(f"buffer_store_short v{r}, v{vOff}, s[{SWS}:{SWS+3}], s{48+rt} offen offset:{o}")
            a(f"buffer_store_short_d16_hi v{r}, v{vOff}, s[{SWS}:{SWS+3}], s{48+rt} offen offset:{o+16}")
            a(f"buffer_store_short v{r+1}, v{vOff}, s[{SWS}:{SWS+3}], s{48+rt} offen offset:{o+32}")
            a(f"buffer_store_short_d16_hi v{r+1}, v{vOff}, s[{SWS}:{SWS+3}], s{48+rt} offen offset:{o+48}")
    a("s_add_u32 s48, s48, 320")
    a(f"v_and_b32 v{vA}, 3, v{vLane}")
    a(f"v_mul_u32_u24 v{vOff}, 336, v{vA}")
    a(f"v_lshrrev_b32 v{vA}, 2, v{vLane}")
    a(f"v_mul_u32_u24 v{vA}, {KVS}, v{vA}")
    a(f"v_add_u32 v{vOff}, v{vOff}, v{vA}")
    a("s_mov_b64 exec, 0xff")
    a(f"buffer_store_dwordx4 {vr(ONE,4)}, v{vOff}, s[{SWS}:{SWS+3}], s48 offen")
    a("s_mov_b64 exec, -1")
    a.label("qkv_kn")
    a("s_waitcnt lgkmcnt(0)")
    a(f"ds_read_b32 v{T+12}, v{T+13} offset:{MX}")
    a(f"s_sub_u32 s48, s{s_tg}, 20")
    a("s_lshl_b32 s48, s48, 5")
    a(f"s_add_u32 s48, s48, s{s_rb}")
    a("s_lshl_b32 s48, s48, 2")
    a(f"s_add_u32 s48, s48, {KN}")
    a("s_waitcnt lgkmcnt(0)")
    a(f"buffer_store_dword v{T+12}, v{T+13}, s[{SWS}:{SWS+3}], s48 offen")
    a.label("qkv_fin")
    stamp_end(a, "qkv", SWS, s_w, 120)
    a("s_endpgm")
    _stamp_n["qkv"] = 2
    a.label("qkv_w3")
    X = AC
    a(f"v_mul_u32_u24 v{vTr}, 336, v{vLane}")
    a(f"v_add_u32 v{vTr}, {XI}, v{vTr}")
    a(f"v_mov_b32 v{T+8}, 0x3f803f80")
    for e in range(4):
        a(f"v_mov_b32 v{T+4+e}, 0")
    a(f"ds_write_b32 v{T+4}, v{T+4} offset:{MX}")
    stamp(a, "qkv")
    a("s_waitcnt vmcnt(0) lgkmcnt(0)")
    stamp(a, "qkv")
    a("s_barrier")
    stamp(a, "qkv")
    if PREFETCH:
        srd(a, 60, 56, 1966080)
        srd(a, 64, 58, 1966080)
        a(f"v_mul_u32_u24 v{T+12}, 43, v{vLane}")
        a(f"v_lshrrev_b32 v{T+12}, 9, v{T+12}")
        a(f"v_mul_u32_u24 v{T+13}, 12, v{T+12}")
        a(f"v_sub_u32 v{T+13}, v{vLane}, v{T+13}")
        a(f"v_mul_u32_u24 v{T+12}, 3072, v{T+12}")
        a(f"v_lshl_add_u32 v{T+12}, v{T+13}, 6, v{T+12}")
        a("s_lshr_b32 s44, s2, 3")
        a(f"s_mul_i32 s44, s44, {20*3072}")
        a("s_bfe_u32 s38, s2, 0x20001")
        a("s_mul_i32 s38, s38, 768")
        a("s_add_u32 s44, s44, s38")
        a("s_mov_b32 s53, 0x0fffffff")
        a("s_mov_b64 exec, s[52:53]")
        for q in range(4):
            a(f"buffer_load_dword v{T+14}, v{T+12}, s[60:63], s44 offen")
            a(f"buffer_load_dword v{T+14}, v{T+12}, s[64:67], s44 offen")
            a(f"s_add_u32 s44, s44, {5*3072}")
        a("s_mov_b64 exec, -1")
    a("s_mov_b32 s41, 4")
    a.label("qkv_sl")
    for c in range(19):
        a(f"ds_read_b128 {vr(X+4*c,4)}, v{vTr} offset:{c*16}")
    a(f"ds_read_b128 {vr(T,4)}, v{vTr} offset:{19*16}")
    for c in range(20):
        a(f"s_waitcnt lgkmcnt({min(15, 19-c)})")
        for e in range(4):
            x = (X + 4 * c + e) if c < 19 else T + e
            b = T + 4 + (e & 1) * 2
            a(f"v_dot2_f32_bf16 v{b}, v{x}, v{T+8}, v{b}")
            a(f"v_dot2_f32_bf16 v{b+1}, v{x}, v{x}, v{b+1}")
    a(f"v_add_u32 v{vTr}, {SL}, v{vTr}")
    a("s_sub_u32 s41, s41, 1")
    a("s_cmp_lg_u32 s41, 0")
    a("s_cbranch_scc1 qkv_sl")
    a(f"s_mov_b32 s45, {hx(f2u(1.0/640))}")
    a(f"s_mov_b32 s46, {hx(f2u(1e-5))}")
    mu, sq, m_b, rr, t0 = T + 4, T + 5, T + 10, T + 11, T + 9
    a(f"v_pk_add_f32 {vr(mu,2)}, {vr(mu,2)}, {vr(mu+2,2)}")
    a(f"v_mul_f32 v{mu}, s45, v{mu}")
    a(f"v_mul_f32 v{sq}, s45, v{sq}")
    a(f"v_fma_f32 v{sq}, -v{mu}, v{mu}, v{sq}")
    a(f"v_max_f32 v{sq}, 0, v{sq}")
    a(f"v_cvt_pk_bf16_f32 v{m_b}, v{mu}, v{sq}")
    a(f"v_and_b32 v{t0}, 0xffff0000, v{m_b}")
    a(f"v_lshlrev_b32 v{m_b}, 16, v{m_b}")
    a(f"v_add_f32 v{t0}, s46, v{t0}")
    a(f"v_cvt_pk_bf16_f32 v{t0}, v{t0}, v{t0}")
    a(f"v_lshlrev_b32 v{t0}, 16, v{t0}")
    a(f"v_sqrt_f32 v{t0}, v{t0}")
    a(f"v_cvt_pk_bf16_f32 v{t0}, v{t0}, v{t0}")
    a(f"v_lshlrev_b32 v{t0}, 16, v{t0}")
    a(f"v_rcp_f32 v{rr}, v{t0}")
    a(f"v_lshlrev_b32 v{T}, 3, v{vLane}")
    a(f"ds_write_b64 v{T}, {vr(m_b,2)} offset:{ST}")
    a("s_waitcnt lgkmcnt(0)")
    stamp(a, "qkv")
    a("s_barrier")
    a(f"v_lshlrev_b32 v{T}, 3, v{vN}")
    a(f"ds_read_b64 {vr(T+2,2)}, v{T} offset:{ST}")
    a(f"ds_read_b64 {vr(T+4,2)}, v{T} offset:{ST+256}")
    for i in range(10):
        rt = i // 5
        a(f"s_add_u32 s41, s{s_cb}, {8*i - 40*rt}")
        a("s_mul_i32 s42, s41, 26")
        a("s_lshr_b32 s42, s42, 8")
        a(f"s_mul_i32 s43, s42, {SL - 320}")
        a("s_lshl_b32 s41, s41, 5")
        a("s_add_u32 s43, s43, s41")
        a(f"v_add_u32 v{T+6}, s43, v{vXr}")
        a(f"ds_read_b128 {vr(X+4*i,4)}, v{T+6} offset:{rt*10752}")
    a("s_waitcnt lgkmcnt(10)")
    PR = X + 40
    for rt in range(2):
        a(f"v_mov_b32 v{PR+4*rt}, v{T+3+2*rt}")
        a(f"v_mov_b32 v{PR+4*rt+1}, v{T+3+2*rt}")
        a(f"v_mul_f32_e64 v{PR+4*rt+2}, -v{T+2+2*rt}, v{T+3+2*rt}")
        a(f"v_mov_b32 v{PR+4*rt+3}, v{PR+4*rt+2}")
    a("s_mov_b32 s47, 0xffff0000")
    a(f"v_lshlrev_b32 v{T}, 4, v{vLane}")
    a(f"s_mul_i32 s39, s{s_rb}, 80")
    a(f"s_add_u32 s39, s39, s{s_cb}")
    a("s_lshl_b32 s39, s39, 10")
    if XF:
        a(f"s_add_u32 s39, s39, {XF}")
    for i in range(10):
        rt = i // 5
        a(f"s_waitcnt lgkmcnt({9-i})")
        for q in range(4):
            x = X + 4 * i + q
            u = X + 48 + q * 2
            a(f"v_lshlrev_b32 v{u}, 16, v{x}")
            a(f"v_and_b32 v{u+1}, s47, v{x}")
            a(f"v_pk_fma_f32 {vr(u,2)}, {vr(u,2)}, {vr(PR+4*rt,2)}, {vr(PR+4*rt+2,2)}")
            a(f"v_cvt_pk_bf16_f32 v{x}, v{u}, v{u+1}")
        a(f"buffer_store_dwordx4 {vr(X+4*i,4)}, v{T}, s[{SWS}:{SWS+3}], s39 offen{SM}")
        a("s_add_u32 s39, s39, 8192")
    a("s_cmp_lg_u32 s2, 255")
    a("s_cbranch_scc1 qkv_noct")
    a(f"v_lshlrev_b32 v{T+4}, 8, v{vLane}")
    a(f"v_mov_b32 v{T+5}, 0")
    a(f"s_mov_b32 s44, {CT}")
    a("s_mov_b64 exec, 0xffff")
    a(f"buffer_store_dword v{T+5}, v{T+4}, s[{SWS}:{SWS+3}], s44 offen")
    a("s_mov_b64 exec, -1")
    a.label("qkv_noct")
    stamp(a, "qkv")
    stamp_end(a, "qkv", SWS, s_w, 120)
    a.label("qkv_end")
    a("s_endpgm")
    return a.finish(), ("qkv_kernel", 256, 256, WR + 61440, 256 if STAMP else 128)


A_Q, A_O, A_S, A_P, A_K, A_V, A_M = 16, 48, 112, 144, 160, 192, 224
A_T = 228
NSET = 4
OOB = 0x80000000


def gen_attn_body(a, pfx, s_wg):
    s_w, s_rt, s_kh, s_hd = 32, 33, 34, 35
    SWS = 28
    vLane, vN, vH = 1, 2, 3
    vK1, vK2, vV = 4, 5, 6
    T = A_T
    a("s_load_dwordx2 s[12:13], s[0:1], 88")
    a("s_load_dwordx2 s[14:15], s[0:1], 32")
    lane_setup(a, T, vLane, vN, vH, s_w)
    a(f"s_and_b32 s3, s{s_wg}, 7")
    a(f"s_lshr_b32 s36, s{s_wg}, 5")
    a("s_lshl_b32 s3, s3, 3")
    a(f"s_add_u32 s{s_rt}, s3, s36")
    a(f"s_bfe_u32 s3, s{s_wg}, 0x20003")
    a(f"s_and_b32 s{s_kh}, s{s_w}, 1")
    a(f"s_lshr_b32 s36, s{s_w}, 1")
    a("s_lshl_b32 s3, s3, 3")
    a("s_lshl_b32 s36, s36, 2")
    a(f"s_add_u32 s{s_hd}, s3, s36")
    a(f"v_lshlrev_b32 v{vK1}, 4, v{vLane}")
    a(f"v_lshlrev_b32 v{vK2}, 3, v{vN}")
    a(f"v_add_u32 v{vK2}, 1024, v{vK2}")
    a(f"v_mov_b32 v{T}, {hx(OOB)}")
    a(f"v_cmp_eq_u32 vcc, 0, v{vH}")
    a(f"v_cndmask_b32 v{vK2}, v{T}, v{vK2}, vcc")
    a(f"v_mul_u32_u24 v{vV}, 21, v{vH}")
    a(f"v_add_u32 v{vV}, v{vV}, v{vN}")
    a(f"v_lshlrev_b32 v{vV}, 4, v{vV}")
    a(f"v_cmp_gt_u32 vcc, 21, v{vN}")
    a(f"v_cndmask_b32 v{vV}, v{T}, v{vV}, vcc")
    a("s_waitcnt lgkmcnt(0)")
    srd(a, SWS, 12, WS_END)
    a(f"s_add_u32 s12, s12, {KN}")
    a("s_addc_u32 s13, s13, 0")
    a("s_load_dwordx16 s[64:79], s[12:13], 0")
    a("s_load_dwordx16 s[80:95], s[12:13], 64")
    a("s_load_dwordx16 s[44:59], s[12:13], 128")
    a(f"s_lshl_b32 s36, s{s_rt}, 5")
    a(f"s_add_u32 s36, s36, s{s_hd}")
    a("s_mul_i32 s36, s36, 1280")
    a(f"s_add_u32 s36, s36, {QF}")
    for i in range(4):
        a(f"buffer_load_dwordx4 {vr(A_Q+8*i,4)}, v{vK1}, s[{SWS}:{SWS+3}], s36 offen")
        a(f"buffer_load_dwordx2 {vr(A_Q+8*i+4,2)}, v{vK2}, s[{SWS}:{SWS+3}], s36 offen")
        if i < 3:
            a("s_add_u32 s36, s36, 1280")
    s_kp, s_vp = 37, 38
    a(f"s_mul_i32 s{s_kp}, s{s_kh}, {32*KVS}")
    a(f"s_add_u32 s{s_kp}, s{s_kp}, {KF}")
    a(f"s_add_u32 s{s_vp}, s{s_kp}, 1280")

    def loadK(st):
        a(f"buffer_load_dwordx4 {vr(A_K+8*st,4)}, v{vK1}, s[{SWS}:{SWS+3}], s{s_kp} offen")
        a(f"buffer_load_dwordx2 {vr(A_K+8*st+4,2)}, v{vK2}, s[{SWS}:{SWS+3}], s{s_kp} offen")
        a(f"s_add_u32 s{s_kp}, s{s_kp}, {KVS}")

    def loadV(st):
        a(f"buffer_load_dwordx4 {vr(A_V+8*st,4)}, v{vV}, s[{SWS}:{SWS+3}], s{s_vp} offen")
        a(f"buffer_load_dwordx4 {vr(A_V+8*st+4,4)}, v{vV}, s[{SWS}:{SWS+3}], s{s_vp} offen offset:672")
        a(f"s_add_u32 s{s_vp}, s{s_vp}, {KVS}")
    for st in range(NSET - 1):
        loadK(st)
        loadV(st)
    loadK(NSET - 1)
    for i in range(4):
        a(f"v_mov_b32 v{A_Q+8*i+6}, 0")
        a(f"v_mov_b32 v{A_Q+8*i+7}, 0")
    for st in range(NSET):
        a(f"v_mov_b32 v{A_K+8*st+6}, 0")
        a(f"v_mov_b32 v{A_K+8*st+7}, 0")
    for r in range(64):
        a(f"v_mov_b32 v{A_O+r}, 0")
    for r in range(16):
        a(f"v_mov_b32 v{A_P+r}, 0")
    for r in range(8):
        a(f"v_mov_b32 v{A_V+8*(NSET-1)+r}, 0")
    for r in range(4):
        a(f"v_mov_b32 v{A_M+r}, 0")
    a("s_waitcnt lgkmcnt(0)")
    for r in range(65, 96):
        a(f"s_max_u32 s64, s64, s{r}")
    for r in range(45, 60):
        a(f"s_max_u32 s44, s44, s{r}")
    a("s_load_dwordx16 s[80:95], s[12:13], 192")
    a("s_waitcnt lgkmcnt(0)")
    for r in range(80, 96):
        a(f"s_max_u32 s44, s44, s{r}")
    a(f"s_waitcnt vmcnt({4*NSET-2})")
    for i in range(4):
        a(f"v_mov_b32 v{T+i}, 0")
    for r in range(6):
        for i in range(4):
            a(f"v_dot2_f32_bf16 v{T+i}, v{A_Q+8*i+r}, v{A_Q+8*i+r}, v{T+i}")
    for i in range(4):
        a(f"v_mov_b32 v{T+4+i}, v{T+i}")
    for i in range(4):
        a(f"v_permlane32_swap_b32 v{T+i}, v{T+4+i}")
    for i in range(4):
        a(f"v_add_f32 v{T+i}, v{T+i}, v{T+4+i}")
    a(f"v_max3_f32 v{T}, v{T}, v{T+1}, v{T+2}")
    a(f"v_max_f32 v{T}, v{T}, v{T+3}")
    a(f"v_mul_f32 v{T}, s64, v{T}")
    a(f"v_mov_b32 v{T+1}, {hx(f2u(3600.0/1.05))}")
    a(f"v_cmp_nle_f32 vcc, v{T}, v{T+1}")
    a(f"s_cmp_gt_u32 s44, {hx(f2u(2.0**80))}")
    a(f"s_cbranch_scc1 {pfx}_slow")
    a(f"s_cbranch_vccnz {pfx}_slow")

    def qk(m, sb, ks, i):
        if m == 0:
            mfma32(a, A_S + 16 * sb, A_K + 8 * ks, A_Q + 8 * i, "0")
        else:
            mfma32(a, A_S + 16 * sb, A_K + 8 * ks + 4, A_Q + 8 * i + 4)

    def pv(m, pb, vs, i):
        mfma32(a, A_O + 16 * i, A_V + 8 * vs + 4 * m, A_P + 8 * pb + 4 * m)

    a(f"s_waitcnt vmcnt({4*NSET-4})")
    qk(0, 0, 0, 0)
    qk(1, 0, 0, 0)
    stamp(a, "attn")
    a(f"s_mov_b32 s39, {32//NSET}")
    a("s_nop 10")
    a.raw(".p2align 6")
    a.label(f"{pfx}_loop")
    for kk in range(NSET):
        for i in range(4):
            cur = i & 1
            S = A_S + 16 * cur
            P = A_P + 8 * cur
            nks, ni = (kk, i + 1) if i < 3 else ((kk + 1) % NSET, 0)
            pvs, pi = (kk, i - 1) if i > 0 else ((kk - 1) % NSET, 3)
            if i in (1, 3) and not os.environ.get("NOWAIT"):
                a(f"s_waitcnt vmcnt({4*NSET-6})")
            def ex(lo, hi):
                for e in range(lo, hi):
                    a(f"v_exp_f32 v{S+e}, v{S+e}")

            def cv(lo, hi):
                for jj in range(lo, hi):
                    a(f"v_cvt_pk_bf16_f32 v{P+jj}, v{S+2*jj}, v{S+2*jj+1}")
            if ORDER2:
                qk(0, cur ^ 1, nks, ni)
                ex(0, 5)
                qk(1, cur ^ 1, nks, ni)
                if i == 1:
                    loadV((kk - 1) % NSET)
                if i == 3:
                    loadK(kk)
                ex(5, 9)
                cv(0, 2)
                pv(0, cur ^ 1, pvs, pi)
                ex(9, 13)
                cv(2, 4)
                pv(1, cur ^ 1, pvs, pi)
                ex(13, 16)
                cv(4, 8)
            else:
                qk(0, cur ^ 1, nks, ni)
                ex(0, 4)
                qk(1, cur ^ 1, nks, ni)
                if i == 1:
                    loadV((kk - 1) % NSET)
                if i == 3:
                    loadK(kk)
                ex(4, 8)
                pv(0, cur ^ 1, pvs, pi)
                ex(8, 12)
                cv(0, 2)
                pv(1, cur ^ 1, pvs, pi)
                ex(12, 16)
                cv(2, 8)
    a("s_sub_u32 s39, s39, 1")
    a("s_cmp_lg_u32 s39, 0")
    a(f"s_cbranch_scc1 {pfx}_loop")
    pv(0, 1, NSET - 1, 3)
    pv(1, 1, NSET - 1, 3)
    stamp(a, "attn")
    a(f"s_branch {pfx}_epi")

    a.label(f"{pfx}_slow")
    for r in range(4):
        a(f"v_mov_b32 v{A_M+r}, {hx(f2u(-1e30))}")
    a("s_mov_b32 s39, 32")
    a(f"s_sub_u32 s{s_kp}, s{s_kp}, {KVS*(NSET-1)}")
    a(f"s_sub_u32 s{s_vp}, s{s_vp}, {KVS*(NSET-2)}")
    a.label(f"{pfx}_sloop")
    a("s_waitcnt vmcnt(0)")
    for i in range(4):
        S, P, M = A_S, A_P, A_M + i
        qk(0, 0, 0, i)
        qk(1, 0, 0, i)
        a(f"v_max3_f32 v{T}, v{S}, v{S+1}, v{S+2}")
        for e in range(3, 15, 2):
            a(f"v_max3_f32 v{T}, v{T}, v{S+e}, v{S+e+1}")
        a(f"v_max_f32 v{T}, v{T}, v{S+15}")
        a(f"v_mov_b32 v{T+1}, v{T}")
        a(f"v_permlane32_swap_b32 v{T}, v{T+1}")
        a(f"v_max3_f32 v{T}, v{T}, v{T+1}, v{M}")
        a(f"v_sub_f32 v{T+1}, v{M}, v{T}")
        a(f"v_exp_f32 v{T+1}, v{T+1}")
        a(f"v_mov_b32 v{M}, v{T}")
        for e in range(16):
            a(f"v_sub_f32 v{S+e}, v{S+e}, v{T}")
            a(f"v_exp_f32 v{S+e}, v{S+e}")
        for j in range(8):
            a(f"v_cvt_pk_bf16_f32 v{P+j}, v{S+2*j}, v{S+2*j+1}")
        for e in range(16):
            a(f"v_mul_f32 v{A_O+16*i+e}, v{A_O+16*i+e}, v{T+1}")
        pv(0, 0, 0, i)
        pv(1, 0, 0, i)
    loadK(0)
    loadV(0)
    a("s_sub_u32 s39, s39, 1")
    a("s_cmp_lg_u32 s39, 0")
    a(f"s_cbranch_scc1 {pfx}_sloop")

    a.label(f"{pfx}_epi")
    a("s_waitcnt vmcnt(0)")
    if PREFETCH:
        srd(a, 16, 14, 819200)
        a(f"s_lshr_b32 s40, s{s_wg}, 3")
        a("s_lshl_b32 s40, s40, 2")
        a(f"s_add_u32 s40, s40, s{s_w}")
        a("s_mul_i32 s40, s40, 6400")
        a(f"v_lshlrev_b32 v{T+14}, 6, v{vLane}")
        a(f"buffer_load_dword v{T+15}, v{T+14}, s[16:19], s40 offen")
        a("s_add_u32 s40, s40, 4096")
        a(f"buffer_load_dword v{T+15}, v{T+14}, s[16:19], s40 offen")
    vW, vR = T, T + 1
    a(f"s_mul_i32 s40, s{s_w}, 6656")
    a(f"s_xor_b32 s41, s{s_w}, 1")
    a("s_mul_i32 s41, s41, 6656")
    a(f"v_add_u32 v{vW}, s40, v{vK1}")
    a(f"v_add_u32 v{vR}, s41, v{vK1}")
    a(f"v_lshlrev_b32 v{T+2}, 2, v{vLane}")
    a(f"v_add_u32 v{T+3}, s41, v{T+2}")
    a(f"v_add_u32 v{T+2}, s40, v{T+2}")
    a(f"s_cmp_eq_u32 s{s_kh}, 0")
    a(f"s_cbranch_scc1 {pfx}_e0")
    for t in range(2):
        for q in range(3):
            a(f"ds_write_b128 v{vW}, {vr(A_O+16*t+4*q,4)} offset:{(t*3+q)*1024}")
        a(f"ds_write_b32 v{T+2}, v{A_M+t} offset:{6144+t*256}")
    a("s_waitcnt lgkmcnt(0)")
    for t in range(2):
        for e in range(12):
            a(f"v_mov_b32 v{A_O+16*t+e}, v{A_O+16*(t+2)+e}")
        a(f"v_mov_b32 v{A_M+t}, v{A_M+t+2}")
    a(f"s_add_u32 s{s_hd}, s{s_hd}, 2")
    a(f"s_branch {pfx}_e1")
    a.label(f"{pfx}_e0")
    for t in range(2):
        for q in range(3):
            a(f"ds_write_b128 v{vW}, {vr(A_O+16*(t+2)+4*q,4)} offset:{(t*3+q)*1024}")
        a(f"ds_write_b32 v{T+2}, v{A_M+t+2} offset:{6144+t*256}")
    a("s_waitcnt lgkmcnt(0)")
    a.label(f"{pfx}_e1")
    a("s_barrier")
    for t in range(2):
        for q in range(3):
            a(f"ds_read_b128 {vr(A_S+16*t+4*q,4)}, v{vR} offset:{(t*3+q)*1024}")
        a(f"ds_read_b32 v{A_M+2+t}, v{T+3} offset:{6144+t*256}")
    a("s_waitcnt lgkmcnt(0)")
    a(f"s_mul_i32 s40, s{s_rt}, {40*1024}")
    a(f"s_add_u32 s40, s40, {OF}")
    a(f"v_mov_b32 v{T+12}, {hx(OOB)}")
    a(f"v_cmp_eq_u32 s[42:43], 0, v{vH}")
    for t in range(2):
        O, Pz, Ma, Mp = A_O + 16 * t, A_S + 16 * t, A_M + t, A_M + 2 + t
        a(f"v_max_f32 v{T+4}, v{Ma}, v{Mp}")
        a(f"v_sub_f32 v{T+5}, v{Ma}, v{T+4}")
        a(f"v_sub_f32 v{T+6}, v{Mp}, v{T+4}")
        a(f"v_exp_f32 v{T+5}, v{T+5}")
        a(f"v_exp_f32 v{T+6}, v{T+6}")
        for e in range(12):
            a(f"v_mul_f32 v{O+e}, v{O+e}, v{T+5}")
            a(f"v_fmac_f32 v{O+e}, v{Pz+e}, v{T+6}")
        a(f"v_mov_b32 v{T+7}, v{O+8}")
        a(f"v_mov_b32 v{T+8}, v{O+8}")
        a(f"v_permlane32_swap_b32 v{T+7}, v{T+8}")
        a(f"v_rcp_f32 v{T+8}, v{T+8}")
        for e in range(12):
            a(f"v_mul_f32 v{O+e}, v{O+e}, v{T+8}")
        for q in range(3):
            a(f"v_cvt_pk_bf16_f32 v{O+4*q}, v{O+4*q}, v{O+4*q+1}")
            a(f"v_cvt_pk_bf16_f32 v{O+4*q+1}, v{O+4*q+2}, v{O+4*q+3}")
        a(f"s_add_u32 s41, s{s_hd}, {t}")
        a("s_mul_i32 s41, s41, 20")
        for q in range(3):
            k, off = T + 9, T + 10
            a(f"v_lshlrev_b32 v{k}, 2, v{vH}")
            a(f"v_add_u32 v{k}, s41, v{k}")
            if q:
                a(f"v_add_u32 v{k}, {8*q}, v{k}")
            a(f"v_lshrrev_b32 v{off}, 3, v{k}")
            a(f"v_lshlrev_b32 v{off}, 9, v{off}")
            a(f"v_lshl_add_u32 v{off}, v{vN}, 4, v{off}")
            a(f"v_and_b32 v{k}, 4, v{k}")
            a(f"v_lshl_add_u32 v{off}, v{k}, 1, v{off}")
            if q == 2:
                a(f"v_cndmask_b32 v{off}, v{T+12}, v{off}, s[42:43]")
            a(f"buffer_store_dwordx2 {vr(O+4*q,2)}, v{off}, s[{SWS}:{SWS+3}], s40 offen{SM}")


def gen_attn():
    a = Asm()
    a.label("attn_kernel")
    a("s_cmp_ge_u32 s2, 256")
    a("s_cbranch_scc1 attn_end")
    stamp_begin(a, "attn")
    gen_attn_body(a, "attn", 2)
    stamp_end(a, "attn", 28, 32, 250)
    a.label("attn_end")
    a("s_endpgm")
    return a.finish(), ("attn_kernel", 256, 256, 26624, 256 if STAMP else 248)


R_ACC, R_A, R_B, R_T = 16, 112, 160, 208


def zero_acc(a, acc, n, tmp):
    for e in range(4):
        a(f"v_mov_b32 v{tmp+e}, 0")
    for t in range(n):
        mfma32(a, acc + 16 * t, tmp, tmp, "0")


def typek_rolled(K, pfx):
    a, RD = K.a, K.RD
    assert K.RD == 6 and K.RB == 6 and K.KS % 6 == 0
    a("s_waitcnt vmcnt(10)")
    for x in K.reads(0):
        a(x)
    a(f"s_mov_b32 s59, {K.KS // 6}")
    a(f"s_add_u32 s{K.s_g}, s{K.s_g}, {6*K.gstep}")
    a.label(f"{pfx}_kl")
    for s in range(6):
        a(f"s_waitcnt vmcnt({min(22, 10 + 3*s)})")
        for x in K.reads(s + 1):
            a(x)
        a("s_waitcnt lgkmcnt(6)")
        k = 0
        for ct in range(3):
            for rt in range(2):
                mfma32(a, K.ACC + (rt * 3 + ct) * 16, K.AF + (s & 1) * 12 + ct * 4, K.BF + s * 8 + rt * 4)
                if k % 2 == 0:
                    c = k // 2
                    a(f"s_add_u32 m0, s{K.s_ring}, {(s*3+c)*1024}")
                    a(f"s_add_u32 s91, s{K.s_g}, {s*K.gstep + c*64}")
                    a(f"buffer_load_dwordx4 v{K.vWo}, s[{K.SW}:{K.SW+3}], s91 offen lds")
                k += 1
        for rt in range(2):
            sb = K.s_b0 if rt == 0 else K.s_b1
            a(f"s_add_u32 s91, s{sb}, {(s+6)*1024}")
            a(f"buffer_load_dwordx4 {vr(K.BF+s*8+rt*4,4)}, v{K.vB}, s[{K.SB}:{K.SB+3}], s91 offen{K.bmods}")
    a(f"s_add_u32 s{K.s_g}, s{K.s_g}, {6*K.gstep}")
    a(f"s_add_u32 s{K.s_b0}, s{K.s_b0}, 6144")
    a(f"s_add_u32 s{K.s_b1}, s{K.s_b1}, 6144")
    a("s_sub_u32 s59, s59, 1")
    a("s_cmp_lg_u32 s59, 0")
    a(f"s_cbranch_scc1 {pfx}_kl")
    a("s_waitcnt vmcnt(0) lgkmcnt(0)")


class TypeR:
    def __init__(self, a, pfx, NT, NS, vTr, vWo, vB, s_w, srd_of_tile, goff, s_bp, SWS, tr2, bmods=""):
        self.__dict__.update(locals())
        self.SLOT = 4 * NT * 1024
        self.sname = {"gu": "gateup", "dn": "down", "fi": "final"}[pfx[:2]]
        self.s_m = 60
        self.per = NT + 4

    def dma_ops(self, stage):
        slot = stage % 3
        s_g0, s_g1, gstep = self.goff
        out = []
        for t in range(self.NT):
            sr, grp, tt = self.srd_of_tile(t)
            out.append([f"s_add_u32 m0, s{self.s_m}, {slot*self.SLOT + t*1024}",
                        f"s_add_u32 s61, s{s_g0 if grp == 0 else s_g1}, {stage*gstep + tt*64}",
                        f"buffer_load_dwordx4 v{self.vWo}, s[{sr}:{sr+3}], s61 offen lds"])
        return out

    def b_ops(self, stage):
        slot = stage % 3
        bl = []
        for j in range(4):
            g = []
            if j == 0:
                g.append(f"s_add_u32 s62, s{self.s_bp}, {stage*4096}")
            g.append(f"buffer_load_dwordx4 {vr(R_B+slot*16+j*4,4)}, v{self.vB}, s[{self.SWS}:{self.SWS+3}], s62 offen offset:{j*1024}{self.bmods}")
            bl.append(g)
        return bl

    def vm_ops(self, stage):
        out, bl, res = self.dma_ops(stage), self.b_ops(stage), []
        while out or bl:
            if out:
                res.append(out.pop(0))
            if bl and len(res) > 1:
                res.append(bl.pop(0))
        return res

    def emit(self, groups):
        for g in groups:
            for x in g:
                self.a(x)

    def reads(self, stage, j):
        buf = (stage * 4 + j) & 1
        slot = stage % 3
        base = (slot & 1) * self.SLOT + j * self.NT * 1024
        va = self.vTr + (slot >> 1)
        out = []
        for t in range(self.NT):
            r = R_A + buf * 24 + t * 4
            out.append(f"ds_read_b64_tr_b16 {vr(r,2)}, v{va} offset:{base + t*1024}")
            out.append(f"ds_read_b64_tr_b16 {vr(r+2,2)}, v{va} offset:{base + t*1024 + self.tr2}")
        return out

    def mf(self, stage, j, t):
        buf = (stage * 4 + j) & 1
        first = stage == 0 and j == 0
        mfma32(self.a, R_ACC + 16 * t, R_A + buf * 24 + t * 4, R_B + (stage % 3) * 16 + j * 4, "0" if first else None)

    def setup(self):
        a = self.a
        a(f"s_mul_i32 s{self.s_m}, s{self.s_w}, {self.NT*1024}")
        a(f"v_add_u32 v{self.vTr+1}, {2*self.SLOT}, v{self.vTr}")

    def main(self, first_wait, extra_vm=None):
        a, NT, NS = self.a, self.NT, self.NS
        extra_vm = extra_vm or {}
        order = [0] * self.per + [1] * self.per
        stamp(a, self.sname)
        a(f"s_waitcnt vmcnt({first_wait})")
        a("s_barrier")
        stamp(a, self.sname)
        for x in self.reads(0, 0):
            a(x)
        for i in range(NS):
            if i in (1, 2, 4):
                stamp(a, self.sname)
            ops = self.vm_ops(i + 2) if i + 2 < NS else []
            order += [i + 2] * len(ops)
            ops = ops + extra_vm.get(i, [])
            order += [-1] * len(extra_vm.get(i, []))
            nslots = 3 * NT
            place = {}
            for k, g in enumerate(ops):
                place.setdefault((k * nslots) // len(ops), []).append(g)
            for j in range(3):
                rd = self.reads(i, j + 1)
                for t in range(NT):
                    a(f"s_waitcnt lgkmcnt({2*(NT-1)})")
                    self.mf(i, j, t)
                    a(rd[2 * t])
                    a(rd[2 * t + 1])
                    if j * NT + t in place:
                        self.emit(place[j * NT + t])
            last = i + 1 == NS
            H = NT if last else (NT + 1) // 2
            for t in range(H):
                a(f"s_waitcnt lgkmcnt({2*(NT-1-t)})")
                self.mf(i, 3, t)
            if not last:
                lastidx = max(k for k, o in enumerate(order) if o == i + 1)
                a(f"s_waitcnt vmcnt({len(order) - 1 - lastidx}) lgkmcnt(0)")
                a("s_barrier")
                rd = self.reads(i + 1, 0)
                n = NT - H
                for k, t in enumerate(range(H, NT)):
                    self.mf(i, 3, t)
                    for x in rd[(k * len(rd)) // n:((k + 1) * len(rd)) // n]:
                        a(x)


def typer_rolled(R, extra_vm=None):
    a, NT = R.a, R.NT
    assert R.NS == 10
    s_g0, s_g1, gstep = R.goff
    extra_vm = extra_vm or []
    a(f"s_waitcnt vmcnt({R.per})")
    a("s_barrier")
    stamp(a, R.sname)
    for x in R.reads(0, 0):
        a(x)
    a("s_mov_b32 s59, 3")
    a.label(f"{R.pfx}_rl")
    nx = len(extra_vm)

    def stage(i, ops, xtra, wait_n, last=False):
        ops = xtra + ops
        nslots = 3 * NT
        place = {}
        for k, g in enumerate(ops):
            place.setdefault((k * nslots) // len(ops), []).append(g)
        for j in range(3):
            rd = R.reads(i, j + 1)
            for t in range(NT):
                a(f"s_waitcnt lgkmcnt({2*(NT-1)})")
                R.mf(i + 3, j, t)
                a(rd[2 * t])
                a(rd[2 * t + 1])
                if j * NT + t in place:
                    R.emit(place[j * NT + t])
        H = NT if last else (NT + 1) // 2
        for t in range(H):
            a(f"s_waitcnt lgkmcnt({2*(NT-1-t)})")
            R.mf(i + 3, 3, t)
        if not last:
            a(f"s_waitcnt vmcnt({wait_n}) lgkmcnt(0)")
            a("s_barrier")
            rd = R.reads(i + 1, 0)
            n = NT - H
            for k, t in enumerate(range(H, NT)):
                R.mf(i + 3, 3, t)
                for x in rd[(k * len(rd)) // n:((k + 1) * len(rd)) // n]:
                    a(x)
    stage(0, R.vm_ops(2), extra_vm, R.per + nx)
    stage(1, R.vm_ops(3), [], R.per)
    stage(2, R.vm_ops(4), [], R.per)
    a(f"s_add_u32 s{s_g0}, s{s_g0}, {3*gstep}")
    if s_g1 != s_g0:
        a(f"s_add_u32 s{s_g1}, s{s_g1}, {3*gstep}")
    a(f"s_add_u32 s{R.s_bp}, s{R.s_bp}, {3*4096}")
    a("s_sub_u32 s59, s59, 1")
    a("s_cmp_lg_u32 s59, 0")
    a(f"s_cbranch_scc1 {R.pfx}_rl")
    stage(0, [], [], 0, last=True)


def gen_gateup_body(a, pfx, s_wg, mid_hook=None, smods='', extra_vm=None):
    s_w, s_rb, s_cb = 32, 33, 34
    SW1, SW3, SWS = 16, 20, 28
    vLane, vN, vH, vWo, vB, vTr = 1, 2, 3, 4, 5, 6
    T = R_T
    a("s_load_dwordx4 s[4:7], s[0:1], 48")
    a("s_load_dwordx2 s[12:13], s[0:1], 88")
    lane_setup(a, T, vLane, vN, vH, s_w)
    a(f"s_and_b32 s3, s{s_wg}, 7")
    a(f"s_lshr_b32 s35, s{s_wg}, 3")
    a("s_and_b32 s36, s3, 1")
    a("s_lshl_b32 s36, s36, 3")
    a("s_and_b32 s37, s35, 7")
    a(f"s_add_u32 s{s_rb}, s36, s37")
    a("s_lshr_b32 s36, s3, 1")
    a("s_lshl_b32 s36, s36, 2")
    a("s_lshr_b32 s37, s35, 3")
    a(f"s_add_u32 s{s_cb}, s36, s37")
    a(f"v_lshrrev_b32 v{T}, 2, v{vLane}")
    a(f"v_mul_u32_u24 v{vWo}, 3072, v{T}")
    a(f"v_and_b32 v{T}, 3, v{vLane}")
    a(f"v_lshl_add_u32 v{vWo}, v{T}, 4, v{vWo}")
    tr_base(a, vTr, T, vLane, vH, 9)
    a(f"v_lshlrev_b32 v{vB}, 4, v{vLane}")
    a(f"s_mul_i32 s40, s{s_w}, {16*3072}")
    a(f"s_mul_i32 s41, s{s_cb}, 192")
    a("s_add_u32 s40, s40, s41")
    a(f"s_lshl_b32 s42, s{s_rb}, 2")
    a(f"s_add_u32 s42, s42, s{s_w}")
    a(f"s_mul_i32 s43, s42, {40*1024}")
    if XF:
        a(f"s_add_u32 s43, s43, {XF}")
    a("s_waitcnt lgkmcnt(0)")
    srd(a, SW1, 4, 1966080)
    srd(a, SW3, 6, 1966080)
    srd(a, SWS, 12, WS_END)
    R = TypeR(a, pfx, 6, 10, vTr, vWo, vB, s_w,
              lambda t: (SW1, 0, t) if t < 3 else (SW3, 0, t - 3), (40, 40, 64 * 3072), 43, SWS, 256)
    R.setup()
    R.emit(R.vm_ops(0) + R.vm_ops(1))
    if ROLL:
        zero_acc(a, R_ACC, 6, R_A)
        typer_rolled(R, extra_vm)
    else:
        R.main(R.per, extra_vm)
    if mid_hook:
        mid_hook()
    stamp(a, "gateup")
    a(f"s_mov_b32 s44, {hx(f2u(-math.log2(math.e)))}")
    a(f"s_mul_i32 s45, s42, {96*1024}")
    a(f"s_mul_i32 s46, s{s_cb}, {6*1024}")
    a("s_add_u32 s45, s45, s46")
    a(f"s_add_u32 s45, s45, {HF}")
    a(f"v_mov_b32 v{T}, s44")
    a(f"v_mov_b32 v{T+1}, s44")
    a(f"v_mov_b32 v{T+2}, 1.0")
    a(f"v_mov_b32 v{T+3}, 1.0")
    for t in range(3):
        g, u = R_ACC + 16 * t, R_ACC + 16 * (t + 3)
        E = R_A
        for e in range(0, 16, 2):
            a(f"v_pk_mul_f32 {vr(E+e,2)}, {vr(g+e,2)}, {vr(T,2)}")
        for e in range(16):
            a(f"v_exp_f32 v{E+e}, v{E+e}")
        for e in range(0, 16, 2):
            a(f"v_pk_add_f32 {vr(E+e,2)}, {vr(E+e,2)}, {vr(T+2,2)}")
        for e in range(16):
            a(f"v_rcp_f32 v{E+e}, v{E+e}")
        for e in range(0, 16, 2):
            a(f"v_pk_mul_f32 {vr(g+e,2)}, {vr(g+e,2)}, {vr(u+e,2)}")
        for e in range(0, 16, 2):
            a(f"v_pk_mul_f32 {vr(g+e,2)}, {vr(g+e,2)}, {vr(E+e,2)}")
        for j in range(8):
            a(f"v_cvt_pk_bf16_f32 v{u+j}, v{g+2*j}, v{g+2*j+1}")
        for hf in range(2):
            o = (2 * t + hf) * 1024
            if o < 4096:
                a(f"buffer_store_dwordx4 {vr(u+4*hf,4)}, v{vB}, s[{SWS}:{SWS+3}], s45 offen offset:{o}{smods}")
            else:
                a(f"s_add_u32 s46, s45, {o}")
                a(f"buffer_store_dwordx4 {vr(u+4*hf,4)}, v{vB}, s[{SWS}:{SWS+3}], s46 offen{smods}")


def gen_gateup():
    a = Asm()
    a.label("gateup_kernel")
    a("s_cmp_ge_u32 s2, 256")
    a("s_cbranch_scc1 gateup_end")
    stamp_begin(a, "gateup")
    gen_gateup_body(a, "gu", 2)
    stamp_end(a, "gateup", 28, 32, 240)
    a.label("gateup_end")
    a("s_endpgm")
    return a.finish(), ("gateup_kernel", 256, 256, 73728, 256 if STAMP else 216)


D_AF, D_BF, D_RES, D_XR, D_T = 112, 136, 184, 212, 224
RING = 18432


def tile64_setup(a, s_wg, s_rb, s_cb):
    a(f"s_and_b32 s3, s{s_wg}, 7")
    a("s_lshl_b32 s3, s3, 2")
    a(f"s_bfe_u32 s36, s{s_wg}, 0x20003")
    a(f"s_add_u32 s{s_rb}, s3, s36")
    a(f"s_lshr_b32 s{s_cb}, s{s_wg}, 5")


def gen_down_setup(a, s_wg, standalone, bmods=""):
    s_w = 32
    s_rb, s_cb = 63, 64
    SW, SWS, SX = 24, 28, 76
    vLane, vN, vH, vWo, vB, vTr, vXo = 1, 2, 3, 8, 5, 9, 10
    T = D_T
    a("s_load_dwordx2 s[8:9], s[0:1], 64")
    a("s_load_dwordx2 s[14:15], s[0:1], 0")
    if standalone:
        a("s_load_dwordx2 s[12:13], s[0:1], 88")
        lane_setup(a, T, vLane, vN, vH, s_w)
        a(f"v_lshlrev_b32 v{vB}, 4, v{vLane}")
    tile64_setup(a, s_wg, s_rb, s_cb)
    a(f"v_lshrrev_b32 v{T}, 2, v{vLane}")
    a(f"v_mul_u32_u24 v{vWo}, 1280, v{T}")
    a(f"v_and_b32 v{T}, 3, v{vLane}")
    a(f"v_lshl_add_u32 v{vWo}, v{T}, 4, v{vWo}")
    tr_base(a, vTr, T, vLane, vH, 8)
    a(f"s_mul_i32 s67, s{s_w}, {RING}")
    a(f"v_add_u32 v{vTr}, s67, v{vTr}")
    a(f"v_mul_u32_u24 v{vXo}, 1280, v{vN}")
    a(f"v_lshl_add_u32 v{vXo}, v{vH}, 3, v{vXo}")
    a(f"s_mul_i32 s66, s{s_w}, {384*1280}")
    a(f"s_mul_i32 s37, s{s_cb}, 192")
    a("s_add_u32 s66, s66, s37")
    a(f"s_mul_i32 s68, s{s_rb}, {2*96*1024}")
    a(f"s_mul_i32 s36, s{s_w}, {24*1024}")
    a("s_add_u32 s68, s68, s36")
    a(f"s_add_u32 s68, s68, {HF}")
    a(f"s_add_u32 s65, s68, {96*1024}")
    a(f"s_mul_i32 s70, s{s_rb}, {64*1280}")
    a("s_add_u32 s70, s70, s37")
    a(f"s_lshl_b32 s36, s{s_w}, 4")
    a("s_add_u32 s70, s70, s36")
    a(f"s_add_u32 s71, s70, {32*1280}")
    a("s_waitcnt lgkmcnt(0)")
    srd(a, SW, 8, 1966080)
    srd(a, SX, 14, 2621440)
    if standalone:
        srd(a, SWS, 12, WS_END)
    K = TypeK(a, 24, 6, 6, R_ACC, D_AF, D_BF, vTr, 512, vWo, SW, 66, 16 * 1280, 67, vB, SWS, 68, 65, bmods)
    return K


def gen_down_issue(a, K):
    SX, vXo = 76, 10
    for rt in range(2):
        for ct in range(3):
            a(f"buffer_load_dwordx2 {vr(D_XR+(rt*3+ct)*2,2)}, v{vXo}, s[{SX}:{SX+3}], s{70+rt} offen offset:{ct*64}")
    order = [("x",)] * 6
    for s in range(6):
        K.emit(K.dma(s))
        order += [("d", s)] * 3
    return K, order


def gen_down_rest(a, K, order):
    s_w, s_rb, s_cb, SWS, vB, vLane = 32, 63, 64, 28, 5, 1
    T = D_T
    if ROLL:
        for s in range(6):
            for rt in range(2):
                sb = K.s_b0 if rt == 0 else K.s_b1
                a(f"s_add_u32 s91, s{sb}, {s*1024}")
                a(f"buffer_load_dwordx4 {vr(K.BF+s*8+rt*4,4)}, v{K.vB}, s[{K.SB}:{K.SB+3}], s91 offen{K.bmods}")
        zero_acc(a, R_ACC, 6, D_AF)
        typek_rolled(K, "dn")
    else:
        for s in range(6):
            K.emit(K.bl(s))
            order = order + [("b", s)] * 2
        K.main(order)
    stamp(a, "mffn")
    stamp(a, "down")
    a("s_setprio 2")
    reduce4(a, "dn", R_ACC, D_RES, R_ACC, vB, T, s_w, 67, 0, RING)
    a("s_mov_b32 s49, 0xffff0000")
    a(f"s_mul_i32 s45, s{s_rb}, 40")
    a(f"s_mul_i32 s46, s{s_cb}, 3")
    a("s_add_u32 s45, s45, s46")
    a("s_lshl_b32 s45, s45, 11")
    a(f"s_lshr_b32 s46, s{s_w}, 1")
    a("s_lshl_b32 s46, s46, 10")
    a("s_add_u32 s45, s45, s46")
    a(f"s_and_b32 s46, s{s_w}, 1")
    a("s_lshl_b32 s46, s46, 3")
    a("s_add_u32 s45, s45, s46")
    a(f"s_add_u32 s45, s45, {YF}")
    for ct in range(3):
        if ct == 2:
            a(f"s_cmp_eq_u32 s{s_cb}, 6")
            a("s_cbranch_scc1 dn_skip")
        for rt in range(2):
            r = D_RES + (rt * 3 + ct) * 4
            xr = D_XR + (rt * 3 + ct) * 2
            for e in range(2):
                a(f"v_lshlrev_b32 v{T}, 16, v{xr+e}")
                a(f"v_and_b32 v{T+1}, s49, v{xr+e}")
                a(f"v_pk_add_f32 {vr(r+2*e,2)}, {vr(r+2*e,2)}, {vr(T,2)}")
            a(f"v_cvt_pk_bf16_f32 v{r}, v{r}, v{r+1}")
            a(f"v_cvt_pk_bf16_f32 v{r+1}, v{r+2}, v{r+3}")
            a(f"s_add_u32 s46, s45, {(rt*20+ct)*2048}")
            a(f"buffer_store_dwordx2 {vr(r,2)}, v{vB}, s[{SWS}:{SWS+3}], s46 offen{SM}")
    a.label("dn_skip")


def gen_down():
    a = Asm()
    a.label("down_kernel")
    a("s_cmp_ge_u32 s2, 224")
    a("s_cbranch_scc1 down_end")
    stamp_begin(a, "down")
    K, order = gen_down_issue(a, gen_down_setup(a, 2, True))
    stamp(a, "down")
    gen_down_rest(a, K, order)
    stamp_end(a, "down", 28, 32, 240)
    a.label("down_end")
    a("s_endpgm")
    return a.finish(), ("down_kernel", 224, 256, 73728, 256 if STAMP else 232)


def gen_main():
    a = Asm()
    a.label("main_kernel")
    a("s_cmp_ge_u32 s2, 512")
    a("s_cbranch_scc1 main_end")
    a("s_cmp_ge_u32 s2, 256")
    a("s_cbranch_scc1 main_ffn")
    if PRIO_ATTN:
        a(f"s_setprio {PRIO_ATTN}")
    stamp_begin(a, "mattn")
    gen_attn_body(a, "ma", 2)
    stamp_end(a, "mattn", 28, 32, 250)
    a("s_endpgm")
    a.label("main_ffn")
    if PRIO_FFN:
        a(f"s_setprio {PRIO_FFN}")
    a("s_sub_u32 s69, s2, 256")
    stamp_begin(a, "mffn")
    st = {}
    K0 = gen_down_setup(a, 69, True, " sc1")
    xvm = {}
    if PREFETCH and PF0 >= 0:
        a("s_lshr_b32 s96, s69, 3")
        a("s_lshl_b32 s96, s96, 2")
        a("s_add_u32 s96, s96, s32")
        a("s_lshl_b32 s96, s96, 14")
        a(f"v_lshlrev_b32 v11, 6, v1")
        for q in range(4):
            xvm[PF0 + q] = [[f"s_add_u32 s97, s96, {q*4096}",
                             f"buffer_load_dword v12, v11, s[24:27], s97 offen"]]
        if ROLL:
            xvm = [["buffer_load_dword v12, v11, s[24:27], s96 offen", "s_add_u32 s96, s96, 2752"],
                   ["buffer_load_dword v12, v11, s[24:27], s96 offen", "s_add_u32 s96, s96, 2752"]]

    def mid():
        stamp(a, "mffn")
        a("s_setprio 2")
    gen_gateup_body(a, "gu", 69, mid, " sc1", xvm)
    SD = 28
    a("s_setprio 0")
    a("s_lshl_b32 s92, s33, 8")
    a(f"s_add_u32 s92, s92, {CT}")
    a("s_lshr_b32 s93, s63, 1")
    a("s_lshl_b32 s93, s93, 8")
    a(f"s_add_u32 s93, s93, {CT}")
    a("s_waitcnt vmcnt(0)")
    a("s_barrier")
    stamp(a, "mffn")
    a(f"v_mov_b32 v{D_T}, 0")
    a(f"v_mov_b32 v{D_T+1}, 1")
    a("s_cmp_lg_u32 s32, 0")
    a("s_cbranch_scc1 main_nosig")
    a("s_mov_b64 exec, 1")
    a(f"buffer_atomic_add v{D_T+1}, v{D_T}, s[{SD}:{SD+3}], s92 offen sc1")
    a("s_mov_b64 exec, -1")
    a.label("main_nosig")
    a("s_cmp_ge_u32 s69, 224")
    a("s_cbranch_scc1 main_end")
    K, order = gen_down_issue(a, K0)
    a("s_cmp_lg_u32 s32, 0")
    a("s_cbranch_scc1 main_polled")
    a("s_mov_b64 exec, 1")
    a.label("main_poll")
    a(f"buffer_load_dword v{D_T+2}, v{D_T}, s[{SD}:{SD+3}], s93 offen sc1")
    a("s_waitcnt vmcnt(0)")
    a(f"v_readfirstlane_b32 s95, v{D_T+2}")
    a("s_cmp_ge_u32 s95, 16")
    a("s_cbranch_scc1 main_pdone")
    a(f"s_sleep {os.environ.get('SLEEP', '8')}")
    a("s_branch main_poll")
    a.label("main_pdone")
    a("s_mov_b64 exec, -1")
    a.label("main_polled")
    a("s_barrier")
    stamp(a, "mffn")
    a(f"s_setprio {PRIO_DN}")
    gen_down_rest(a, K, order)
    stamp_end(a, "mffn", 28, 32, 240, 69)
    a.label("main_end")
    a("s_endpgm")
    return a.finish(), ("main_kernel", 512, 256, 73728, 256 if STAMP else 248)


PREFETCH = int(os.environ.get("PREFETCH", "1"))
PF0 = int(os.environ.get("PF0", "6"))
CODEPF = 0
ORDER = []
ROLL = int(os.environ.get("ROLL", "0"))
ORDER2 = int(os.environ.get("ORDER2", "1"))
PRIO_DN = int(os.environ.get("PRIO_DN", "0"))
SM = os.environ.get("SM", "")
SM = (" " + SM) if SM else ""
PRIO_ATTN = int(os.environ.get("PRIO_ATTN", "0"))
PRIO_FFN = int(os.environ.get("PRIO_FFN", "0"))


def gen_final():
    a = Asm()
    a.label("final_kernel")
    s_w, s_rb, s_cb = 32, 33, 34
    SW, SO, SWS = 20, 24, 28
    vLane, vN, vH, vWo, vB, vTr, vXo = 1, 2, 3, 4, 5, 6, 8
    T = R_T
    YR = R_ACC + 32
    a("s_cmp_ge_u32 s2, 160")
    a("s_cbranch_scc1 final_end")
    stamp_begin(a, "final")
    a("s_load_dwordx2 s[6:7], s[0:1], 32")
    a("s_load_dwordx2 s[8:9], s[0:1], 72")
    a("s_load_dwordx2 s[12:13], s[0:1], 88")
    lane_setup(a, T, vLane, vN, vH, s_w)
    a("s_and_b32 s3, s2, 7")
    a("s_lshl_b32 s3, s3, 1")
    a("s_bfe_u32 s36, s2, 0x10003")
    a(f"s_add_u32 s{s_rb}, s3, s36")
    a(f"s_lshr_b32 s{s_cb}, s2, 4")
    a(f"v_lshlrev_b32 v{vB}, 4, v{vLane}")
    a(f"v_lshrrev_b32 v{T}, 2, v{vLane}")
    a(f"v_mul_u32_u24 v{vWo}, 1280, v{T}")
    a(f"v_and_b32 v{T}, 3, v{vLane}")
    a(f"v_lshl_add_u32 v{vWo}, v{T}, 4, v{vWo}")
    a(f"v_mul_u32_u24 v{vXo}, 1280, v{vN}")
    a(f"v_lshl_add_u32 v{vXo}, v{vH}, 4, v{vXo}")
    tr_base(a, vTr, T, vLane, vH, 9)
    a(f"s_mul_i32 s40, s{s_w}, {16*1280}")
    a(f"s_lshl_b32 s41, s{s_cb}, 7")
    a("s_add_u32 s40, s40, s41")
    a(f"s_lshl_b32 s42, s{s_rb}, 2")
    a(f"s_add_u32 s42, s42, s{s_w}")
    a(f"s_mul_i32 s43, s42, {40*1024}")
    a(f"s_add_u32 s43, s43, {OF}")
    a("s_mul_i32 s45, s42, 20")
    a(f"s_lshl_b32 s46, s{s_cb}, 1")
    a("s_add_u32 s45, s45, s46")
    a("s_lshl_b32 s45, s45, 11")
    a(f"s_add_u32 s45, s45, {YF}")
    a(f"s_mul_i32 s47, s42, {32*1280}")
    a("s_add_u32 s47, s47, s41")
    a("s_waitcnt lgkmcnt(0)")
    srd(a, SW, 6, 819200)
    srd(a, SO, 8, 2621440)
    srd(a, SWS, 12, WS_END)
    R = TypeR(a, "fi", 2, 10, vTr, vWo, vB, s_w, lambda t: (SW, 0, t), (40, 40, 64 * 1280), 43, SWS, 256)
    R.setup()
    R.emit(R.vm_ops(0) + R.vm_ops(1))
    yl = [[f"buffer_load_dwordx4 {vr(YR+4*q,4)}, v{vB}, s[{SWS}:{SWS+3}], s45 offen offset:{q*1024}"] for q in range(4)]
    R.main(R.per, {4: yl})
    stamp(a, "final")
    a("s_mov_b32 s49, 0xffff0000")
    a("s_waitcnt vmcnt(0)")
    for t in range(2):
        r = R_ACC + 16 * t
        for q in range(8):
            a(f"v_lshlrev_b32 v{T+2*(q&1)}, 16, v{YR+8*t+q}")
            a(f"v_and_b32 v{T+2*(q&1)+1}, s49, v{YR+8*t+q}")
            a(f"v_pk_add_f32 {vr(r+2*q,2)}, {vr(r+2*q,2)}, {vr(T+2*(q&1),2)}")
        for q in range(8):
            a(f"v_cvt_pk_bf16_f32 v{r+q}, v{r+2*q}, v{r+2*q+1}")
        for gp in range(2):
            b = r + 4 * gp
            a(f"v_permlane32_swap_b32 v{b}, v{b+2}")
            a(f"v_permlane32_swap_b32 v{b+1}, v{b+3}")
            a(f"buffer_store_dwordx4 {vr(b,4)}, v{vXo}, s[{SO}:{SO+3}], s47 offen offset:{t*64 + gp*32}")
    stamp_end(a, "final", SWS, s_w, 240)
    a.label("final_end")
    a("s_endpgm")
    return a.finish(), ("final_kernel", 160, 256, 24576, 256 if STAMP else 216)


def gen_empty():
    a = Asm()
    a.label("empty_kernel")
    a("s_endpgm")
    return a.finish(), ("empty_kernel", 256, 256, 65536, 256)


KERNELS = {"empty": gen_empty, "main": gen_main, "qkv": gen_qkv, "gateup": gen_gateup, "attn": gen_attn, "down": gen_down, "final": gen_final}
HEADER = open("parallel_sum__grouped_kv_mqa__glu_gated_swiglu__prompt.s.ref").read().split("; Override launch")[0] if False else ""


DEFAULT = ["qkv", "main", "final"]


def build(order):
    texts, launches = {}, []
    ORDER[:] = order
    for k in order:
        t, info = KERNELS[k]()
        texts[info[0]] = (t, info)
        launches.append(info)
    out = "; generated by dev/gen.py -- LN + MQA attention + SwiGLU block for gfx950\n"
    for name, grid, block, lds, vg in launches:
        out += f"; @launch kernel={name} grid=({grid},1,1) block=({block},1,1) lds={lds}\n"
    out += '.amdgcn_target "amdgcn-amd-amdhsa--gfx950"\n.text\n'
    for name, (t, info) in texts.items():
        out += kernel_header(name) + t
    out += "code_end:\n"
    out += '.section .rodata,"a"\n'
    for name, (t, info) in texts.items():
        out += kernel_desc(name, info[4])
    return out


if __name__ == "__main__":
    order = sys.argv[2].split(",") if len(sys.argv) > 2 else DEFAULT
    open(sys.argv[1], "w").write(build(order))
```

```python
import math
import struct
import sys

from asmlib import Asm

XF = 0x0
QF = 0x280000
KF = 0x500000
VF = KF + 1280
KVS = 2624
KN = 0x52A000
CT = 0x52C000
OF = 0x530000
HF = 0x800000
FP = 0x1000000
YF = 0x1000000
WS_END = 0x2500000
TS = 0x2400000
import os
STAMP = os.environ.get("STAMP", "")


_stamp_n = {}


def stamp(a, name, vreg=255):
    if name in STAMP.split(","):
        i = _stamp_n.get(name, 0)
        _stamp_n[name] = i + 1
        a("s_memtime s[100:101]")
        a("s_waitcnt lgkmcnt(0)")
        a(f"v_writelane_b32 v{vreg}, s100, {i}")


def stamp_begin(a, name, vreg=255):
    if name in STAMP.split(","):
        a("s_memrealtime s[98:99]")
        a("s_waitcnt lgkmcnt(0)")
        a(f"v_writelane_b32 v{vreg}, s98, 14")
    stamp(a, name, vreg)


def stamp_end(a, name, sws, s_w, vtmp, s_wg=2, vreg=255):
    if name in STAMP.split(","):
        a("s_waitcnt vmcnt(0) lgkmcnt(0)")
        stamp(a, name, vreg)
        a("s_memrealtime s[98:99]")
        a("s_waitcnt lgkmcnt(0)")
        a(f"v_writelane_b32 v{vreg}, s98, 15")
        a(f"s_lshl_b32 s94, s{s_wg}, 2")
        a(f"s_add_u32 s94, s94, s{s_w}")
        a("s_lshl_b32 s94, s94, 6")
        a(f"s_add_u32 s94, s94, {TS + STAMP.split(',').index(name) * 0x20000}")
        a(f"v_and_b32 v{vtmp}, 63, v0")
        a(f"v_lshlrev_b32 v{vtmp}, 2, v{vtmp}")
        a("s_mov_b64 s[98:99], exec")
        a("s_mov_b64 exec, 0xffff")
        a(f"buffer_store_dword v{vreg}, v{vtmp}, s[{sws}:{sws+3}], s94 offen")
        a("s_mov_b64 exec, s[98:99]")


QSCALE = (20 ** -0.5) * math.log2(math.e)


def f2u(x):
    return struct.unpack("<I", struct.pack("<f", x))[0]


def hx(x):
    return "0x%x" % x


def srd(a, d, base, size):
    a(f"s_mov_b32 s{d}, s{base}")
    a(f"s_and_b32 s{d+1}, s{base+1}, 0xffff")
    a(f"s_mov_b32 s{d+2}, {hx(size)}")
    a(f"s_mov_b32 s{d+3}, 0x00020000")


def vr(b, n=1):
    return f"v{b}" if n == 1 else f"v[{b}:{b+n-1}]"


def mfma32(a, d, x, y, c=None):
    cs = vr(d, 16) if c is None else c
    a(f"v_mfma_f32_32x32x16_bf16 {vr(d,16)}, {vr(x,4)}, {vr(y,4)}, {cs}")


def kernel_header(name):
    return f""".globl {name}
.p2align 8
.type {name},@function
"""


def kernel_desc(name, vgprs, sgprs=102):
    acc = (vgprs + 3) // 4 * 4
    return f""".p2align 6
.amdhsa_kernel {name}
  .amdhsa_next_free_vgpr {vgprs}
  .amdhsa_next_free_sgpr {sgprs}
  .amdhsa_accum_offset {acc}
  .amdhsa_group_segment_fixed_size 0
  .amdhsa_kernarg_size 96
  .amdhsa_user_sgpr_count 2
  .amdhsa_user_sgpr_kernarg_segment_ptr 1
  .amdhsa_system_sgpr_workgroup_id_x 1
.end_amdhsa_kernel
"""


K_X = 16
K_ACC = 96
K_A = 192
K_T = 216
WAVE_LDS = 30720
LDS_STG = 8192


K_R = K_A


def typek_mfma_phase(a, vtr, zero=True, vm_after=None, extra=None):
    def reads(s, buf):
        for ct in range(3):
            o = (3 * s + ct) * 1024
            r = K_A + buf * 12 + ct * 4
            a(f"ds_read_b64_tr_b16 {vr(r,2)}, v{vtr} offset:{o}")
            a(f"ds_read_b64_tr_b16 {vr(r+2,2)}, v{vtr} offset:{o+256}")
    if vm_after:
        a(f"s_waitcnt vmcnt({vm_after(0)})")
    reads(0, 0)
    for s in range(10):
        if s + 1 < 10:
            if vm_after:
                a(f"s_waitcnt vmcnt({vm_after(s+1)})")
            reads(s + 1, (s + 1) & 1)
            a("s_waitcnt lgkmcnt(6)")
        else:
            a("s_waitcnt lgkmcnt(0)")
        ex = list(extra(s)) if extra else []
        n = len(ex)
        k = 0
        for ct in range(3):
            for rt in range(2):
                d = K_ACC + (rt * 3 + ct) * 16
                mfma32(a, d, K_A + (s & 1) * 12 + ct * 4, K_X + rt * 40 + s * 4, "0" if (s == 0 and zero) else None)
                k += 1
                for x in ex[((k - 1) * n) // 6:(k * n) // 6]:
                    a(x)


def reduce4(a, pfx, ACC, RES, TMP, vL16, vT, s_w, s_base, base0, stride, pre_barrier=None, post_reads=None):
    for g in range(4):
        a(f"s_cmp_eq_u32 s{s_w}, {g}")
        a(f"s_cbranch_scc1 {pfx}_rw{g}")
        a(f"s_sub_u32 s90, {g+3}, s{s_w}")
        a("s_and_b32 s90, s90, 3")
        a("s_mul_i32 s90, s90, 6144")
        a(f"s_add_u32 s90, s90, s{s_base}")
        a(f"v_add_u32 v{vT}, s90, v{vL16}")
        for t in range(6):
            a(f"ds_write_b128 v{vT}, {vr(ACC+t*16+g*4,4)} offset:{t*1024}")
        a.label(f"{pfx}_rw{g}")
    if pre_barrier:
        pre_barrier()
    for jj in range(3):
        a(f"s_add_u32 s90, s{s_w}, {jj+1}")
        a("s_and_b32 s90, s90, 3")
        a(f"s_mul_i32 s90, s90, {stride}")
        a(f"s_add_u32 s90, s90, {base0 + (2-jj)*6144}")
        a(f"v_add_u32 v{vT+1+jj}, s90, v{vL16}")
    for g in range(4):
        a(f"s_cmp_lg_u32 s{s_w}, {g}")
        a(f"s_cbranch_scc1 {pfx}_ro{g}")
        for t in range(6):
            for e in range(4):
                a(f"v_mov_b32 v{RES+t*4+e}, v{ACC+t*16+g*4+e}")
        a.label(f"{pfx}_ro{g}")
    a("s_waitcnt lgkmcnt(0)")
    a("s_barrier")
    for jj in range(3):
        for t in range(6):
            a(f"ds_read_b128 {vr(TMP+(jj*6+t)*4,4)}, v{vT+1+jj} offset:{t*1024}")
    n_extra = post_reads() if post_reads else 0
    for jj in range(3):
        a(f"s_waitcnt lgkmcnt({min(15, (2-jj)*6 + n_extra)})")
        for e in range(0, 24, 2):
            a(f"v_pk_add_f32 {vr(RES+e,2)}, {vr(RES+e,2)}, {vr(TMP+jj*24+e,2)}")


class TypeK:
    def __init__(self, a, KS, RD, RB, ACC, AF, BF, vTr, tr2, vWo, SW, s_g, gstep, s_ring, vB, SB, s_b0, s_b1, bmods=""):
        self.__dict__.update(locals())

    phase2 = None

    def dma(self, s):
        SW, s_g, s0 = self.SW, self.s_g, 0
        if self.phase2 and s >= self.phase2[0]:
            s0, SW, s_g = self.phase2[:3]
        out = []
        for ct in range(3):
            out.append([f"s_add_u32 m0, s{self.s_ring}, {((s % self.RD)*3+ct)*1024}",
                        f"s_add_u32 s91, s{s_g}, {(s-s0)*self.gstep + ct*64}",
                        f"buffer_load_dwordx4 v{self.vWo}, s[{SW}:{SW+3}], s91 offen lds"])
        return out

    def bl(self, s):
        b0, b1, s0 = self.s_b0, self.s_b1, 0
        if self.phase2 and s >= self.phase2[0]:
            s0, b0, b1 = self.phase2[0], self.phase2[3], self.phase2[4]
        out = []
        for rt in range(2):
            sb = b0 if rt == 0 else b1
            g = []
            if (s - s0) % 4 == 0 and s - s0:
                g.append(f"s_add_u32 s{sb}, s{sb}, 4096")
            g.append(f"buffer_load_dwordx4 {vr(self.BF+(s%self.RB)*8+rt*4,4)}, v{self.vB}, s[{self.SB}:{self.SB+3}], s{sb} offen offset:{((s-s0)%4)*1024}{self.bmods}")
            out.append(g)
        return out

    def emit(self, groups):
        for g in groups:
            for x in g:
                self.a(x)

    def reads(self, s):
        out = []
        for ct in range(3):
            o = ((s % self.RD) * 3 + ct) * 1024
            r = self.AF + (s & 1) * 12 + ct * 4
            out.append(f"ds_read_b64_tr_b16 {vr(r,2)}, v{self.vTr} offset:{o}")
            out.append(f"ds_read_b64_tr_b16 {vr(r+2,2)}, v{self.vTr} offset:{o+self.tr2}")
        return out

    def main(self, order, lo=0, hi=None, blimit=None):
        a, KS, RD, RB = self.a, self.KS, self.RD, self.RB
        hi = KS if hi is None else hi
        blimit = KS if blimit is None else blimit
        order = list(order)

        def wait_for(tags):
            last = max(i for i, o in enumerate(order) if o in tags)
            a(f"s_waitcnt vmcnt({min(63, len(order) - 1 - last)})")
        wait_for({("d", lo), ("b", lo)})
        for x in self.reads(lo):
            a(x)
        for s in range(lo, hi):
            if s + 1 < hi:
                wait_for({("d", s + 1), ("b", s + 1)})
                for x in self.reads(s + 1):
                    a(x)
                a("s_waitcnt lgkmcnt(6)")
            else:
                a("s_waitcnt lgkmcnt(0)")
            dm = self.dma(s + RD) if s + RD < KS else []
            k = 0
            for ct in range(3):
                for rt in range(2):
                    mfma32(a, self.ACC + (rt * 3 + ct) * 16, self.AF + (s & 1) * 12 + ct * 4,
                           self.BF + (s % RB) * 8 + rt * 4, "0" if s == 0 else None)
                    if k % 2 == 0 and dm:
                        self.emit([dm.pop(0)])
                        order.append(("d", s + RD))
                    k += 1
            if s + RB < blimit:
                self.emit(self.bl(s + RB))
                order += [("b", s + RB)] * 2
        return order


def lane_setup(a, T, vLane, vN, vH, s_w):
    a(f"v_and_b32 v{vLane}, 63, v0")
    a(f"v_lshrrev_b32 v{T}, 6, v0")
    a(f"v_readfirstlane_b32 s{s_w}, v{T}")
    a(f"v_and_b32 v{vN}, 31, v0")
    a(f"v_bfe_u32 v{vH}, v0, 5, 1")


def tr_base(a, vTr, T, vLane, vH, hshift):
    a(f"v_lshlrev_b32 v{vTr}, {hshift}, v{vH}")
    a(f"v_bfe_u32 v{T}, v{vLane}, 2, 2")
    a(f"v_lshl_add_u32 v{vTr}, v{T}, 6, v{vTr}")
    a(f"v_bfe_u32 v{T}, v{vLane}, 4, 1")
    a(f"v_lshl_add_u32 v{vTr}, v{T}, 5, v{vTr}")
    a(f"v_and_b32 v{T}, 3, v{vLane}")
    a(f"v_lshl_add_u32 v{vTr}, v{T}, 3, v{vTr}")


def gen_qkv():
    a = Asm()
    a.label("qkv_kernel")
    ST, MX = 0, 1024
    XI, SL = 8192, 21504
    WR = XI + 4 * SL
    s_w, s_rb, s_cb, s_tg = 32, 33, 34, 35
    SX, SW, SWS = 16, 20, 28
    vLane, vN, vH = 1, 2, 3
    vXg, vXr, vTr, vWo = 4, 5, 7, 8
    AC, AF, BF, ONE, T = 16, 64, 72, 88, 92
    a("s_cmp_ge_u32 s2, 256")
    a("s_cbranch_scc1 qkv_end")
    stamp_begin(a, "qkv")
    a("s_load_dwordx4 s[4:7], s[0:1], 0")
    a("s_load_dwordx4 s[8:11], s[0:1], 16")
    a("s_load_dwordx2 s[12:13], s[0:1], 88")
    a("s_load_dwordx4 s[56:59], s[0:1], 48")
    lane_setup(a, T, vLane, vN, vH, s_w)
    a("s_and_b32 s3, s2, 7")
    a("s_lshl_b32 s3, s3, 2")
    a("s_bfe_u32 s36, s2, 0x20003")
    a(f"s_add_u32 s{s_rb}, s3, s36")
    a(f"s_lshr_b32 s{s_cb}, s2, 5")
    a(f"v_mul_u32_u24 v{T}, 49, v{vLane}")
    a(f"v_lshrrev_b32 v{T}, 10, v{T}")
    a(f"v_mul_u32_u24 v{T+1}, 21, v{T}")
    a(f"v_sub_u32 v{T+1}, v{vLane}, v{T+1}")
    a(f"v_mul_u32_u24 v{vXg}, 1280, v{T}")
    a(f"v_lshl_add_u32 v{vXg}, v{T+1}, 4, v{vXg}")
    a(f"s_mul_i32 s37, s{s_w}, {SL}")
    a(f"s_add_u32 s37, s37, {XI}")
    a(f"s_mul_i32 s39, s{s_rb}, {64*1280}")
    a(f"s_mul_i32 s40, s{s_w}, 320")
    a("s_add_u32 s39, s39, s40")
    a("s_mov_b32 s52, -1")
    a("s_mov_b32 s53, 0x7fffffff")
    a("s_mov_b32 s41, 21")
    a("s_waitcnt lgkmcnt(0)")
    stamp(a, "qkv")
    srd(a, SX, 4, 2621440)
    a("s_mov_b64 exec, s[52:53]")
    a.label("qkv_xl")
    a("s_mov_b32 m0, s37")
    a("s_add_u32 s37, s37, 1008")
    a("s_sub_u32 s41, s41, 1")
    a(f"buffer_load_dwordx4 v{vXg}, s[{SX}:{SX+3}], s39 offen lds")
    a("s_add_u32 s39, s39, 3840")
    a("s_cmp_lg_u32 s41, 0")
    a("s_cbranch_scc1 qkv_xl")
    a("s_mov_b64 exec, 0x1fffff")
    a("s_mov_b32 m0, s37")
    a("s_nop 0")
    a(f"buffer_load_dwordx4 v{vXg}, s[{SX}:{SX+3}], s39 offen lds")
    a("s_mov_b64 exec, -1")
    srd(a, SWS, 12, WS_END)
    a(f"v_mul_u32_u24 v{vXr}, 336, v{vN}")
    a(f"v_lshl_add_u32 v{vXr}, v{vH}, 4, v{vXr}")
    a(f"v_add_u32 v{vXr}, {XI}, v{vXr}")
    a(f"s_cmp_eq_u32 s{s_w}, 3")
    a("s_cbranch_scc1 qkv_w3")
    a(f"s_mul_i32 s{s_tg}, s{s_cb}, 3")
    a(f"s_add_u32 s{s_tg}, s{s_tg}, s{s_w}")
    a(f"v_lshrrev_b32 v{T}, 2, v{vLane}")
    a(f"v_and_b32 v{T+1}, 3, v{vLane}")
    a(f"v_lshlrev_b32 v{T+1}, 4, v{T+1}")
    a(f"s_cmp_eq_u32 s{s_tg}, 21")
    a(f"s_cselect_b32 s{SW}, s10, s8")
    a(f"s_cselect_b32 s{SW+1}, s11, s9")
    a(f"s_cmp_lt_u32 s{s_tg}, 22")
    a(f"s_cselect_b32 s{SW+2}, 25600, 0")
    a(f"s_lshl_b32 s45, s{s_tg}, 6")
    a(f"s_cmp_lt_u32 s{s_tg}, 20")
    a(f"s_cselect_b32 s{SW}, s6, s{SW}")
    a(f"s_cselect_b32 s{SW+1}, s7, s{SW+1}")
    a(f"s_cselect_b32 s{SW+2}, 819200, s{SW+2}")
    a(f"s_mov_b32 s{SW+3}, 0x00020000")
    a("s_cselect_b32 s42, s45, 0")
    a("s_movk_i32 s38, 1280")
    a("s_cselect_b32 s38, s38, 40")
    a(f"s_and_b32 s{SW+1}, s{SW+1}, 0xffff")
    a(f"v_mad_u32_u24 v{vWo}, v{T}, s38, v{T+1}")
    a("s_lshl_b32 s43, s38, 4")
    a(f"s_mul_i32 s44, s{s_w}, 20480")
    a(f"s_add_u32 s44, s44, {WR}")
    a("s_mov_b32 s46, s44")
    LA = int(os.environ.get("QLA", "12"))
    a(f"s_mov_b32 s41, {LA}")
    a.label("qkv_wl")
    a("s_mov_b32 m0, s46")
    a("s_add_u32 s46, s46, 1024")
    a("s_sub_u32 s41, s41, 1")
    a(f"buffer_load_dwordx4 v{vWo}, s[{SW}:{SW+3}], s42 offen lds")
    a("s_add_u32 s42, s42, s43")
    a("s_cmp_lg_u32 s41, 0")
    a("s_cbranch_scc1 qkv_wl")
    tr_base(a, vTr, T, vLane, vH, 9)
    a(f"v_add_u32 v{vTr}, s44, v{vTr}")
    for e in range(4):
        a(f"v_mov_b32 v{ONE+e}, 0x3f803f80")
    for e in range(48):
        a(f"v_mov_b32 v{AC+e}, 0")
    stamp(a, "qkv")
    a(f"s_waitcnt vmcnt({LA})")
    stamp(a, "qkv")
    a("s_barrier")
    stamp(a, "qkv")

    def rd(s, nxt):
        b = s & 1
        xa = vXr + 1 if nxt else vXr
        ta = vTr + 2 if nxt else vTr
        p = 0 if nxt else s
        a(f"ds_read_b64_tr_b16 {vr(AF+4*b,2)}, v{ta} offset:{p*1024}")
        a(f"ds_read_b64_tr_b16 {vr(AF+4*b+2,2)}, v{ta} offset:{p*1024+256}")
        a(f"ds_read_b128 {vr(BF+8*b,4)}, v{xa} offset:{p*32}")
        a(f"ds_read_b128 {vr(BF+8*b+4,4)}, v{xa} offset:{p*32+10752}")
    a(f"s_waitcnt vmcnt({LA-1})")
    rd(0, False)
    a("s_mov_b32 s41, 4")
    a("s_mov_b32 s46, s44")
    a.label("qkv_loop")
    a(f"v_add_u32 v{vXr+1}, {SL}, v{vXr}")
    a("s_sub_u32 s47, s46, s44")
    a("s_xor_b32 s47, s47, 10240")
    a("s_sub_u32 s48, s44, s46")
    a("s_add_u32 s48, s48, s47")
    a(f"v_add_u32 v{vTr+2}, s48, v{vTr}")
    a("s_add_u32 s49, s44, s47")
    for sx in range(10):
        a(f"s_waitcnt vmcnt({LA-2})")
        rd(sx + 1, sx == 9)
        p = sx + LA
        if p < 10 or p >= 20:
            a(f"s_add_u32 m0, s46, {(p % 20)*1024}")
        else:
            a(f"s_add_u32 m0, s49, {(p-10)*1024}")
        a("s_waitcnt lgkmcnt(4)")
        b = sx & 1
        mfma32(a, AC, AF + 4 * b, BF + 8 * b)
        a(f"buffer_load_dwordx4 v{vWo}, s[{SW}:{SW+3}], s42 offen lds")
        a("s_add_u32 s42, s42, s43")
        mfma32(a, AC + 16, AF + 4 * b, BF + 8 * b + 4)
        mfma32(a, AC + 32, AF + 4 * b, ONE)
    a(f"v_mov_b32 v{vXr}, v{vXr+1}")
    a(f"v_mov_b32 v{vTr}, v{vTr+2}")
    a("s_add_u32 s46, s44, s47")
    a("s_sub_u32 s41, s41, 1")
    a("s_cmp_lg_u32 s41, 0")
    a("s_cbranch_scc1 qkv_loop")
    stamp(a, "qkv")
    a("s_waitcnt lgkmcnt(0)")
    a("s_barrier")
    a(f"s_cmp_ge_u32 s{s_tg}, 22")
    a("s_cbranch_scc1 qkv_fin" if STAMP else "s_cbranch_scc1 qkv_end")
    a(f"v_lshlrev_b32 v{T}, 3, v{vN}")
    a(f"ds_read_b64 {vr(T+2,2)}, v{T} offset:{ST}")
    a(f"ds_read_b64 {vr(T+4,2)}, v{T} offset:{ST+256}")
    a(f"s_mov_b32 s45, {hx(f2u(QSCALE))}")
    a(f"s_cmp_lt_u32 s{s_tg}, 20")
    a("s_cselect_b32 s45, s45, 1.0")
    a("s_waitcnt lgkmcnt(0)")
    for rt in range(2):
        a(f"v_mul_f32 v{T+3+2*rt}, s45, v{T+3+2*rt}")
    for rt in range(2):
        for e in range(16):
            r = AC + 16 * rt + e
            a(f"v_fma_f32 v{r}, -v{T+2+2*rt}, v{AC+32+e}, v{r}")
            a(f"v_mul_f32 v{r}, v{r}, v{T+3+2*rt}")
    stamp(a, "qkv")
    vC0, vHead, vD0, vOff, vA = T + 6, T + 7, T + 8, T + 9, T + 10

    def frag_off():
        a(f"v_lshrrev_b32 v{vA}, 3, v{vD0}")
        a(f"v_lshlrev_b32 v{vA}, 9, v{vA}")
        a(f"v_lshl_add_u32 v{vA}, v{vN}, 4, v{vA}")
        a(f"v_and_b32 v{vA+1}, 4, v{vD0}")
        a(f"v_lshl_add_u32 v{vA}, v{vA+1}, 1, v{vA}")
        a(f"v_lshlrev_b32 v{vA+1}, 3, v{vN}")
        a(f"v_add_u32 v{vA+1}, 1024, v{vA+1}")
        a(f"v_cmp_gt_u32 vcc, 16, v{vD0}")
        a(f"v_cndmask_b32 v{vA}, v{vA+1}, v{vA}, vcc")
        a(f"v_add_u32 v{vOff}, v{vOff}, v{vA}")
    a(f"s_cmp_ge_u32 s{s_tg}, 20")
    a("s_cbranch_scc1 qkv_kv")
    a("s_mov_b32 s46, 3277")
    a(f"s_lshl_b32 s38, s{s_tg}, 5")
    a(f"s_mul_i32 s48, s{s_rb}, {2*32*1280}")
    a(f"s_add_u32 s48, s48, {QF}")
    a(f"s_add_u32 s49, s48, {32*1280}")
    for g in range(4):
        a(f"v_lshlrev_b32 v{vC0}, 2, v{vH}")
        a(f"v_add_u32 v{vC0}, s38, v{vC0}")
        if g:
            a(f"v_add_u32 v{vC0}, {8*g}, v{vC0}")
        a(f"v_mul_u32_u24 v{vHead}, s46, v{vC0}")
        a(f"v_lshrrev_b32 v{vHead}, 16, v{vHead}")
        a(f"v_mul_u32_u24 v{vD0}, 20, v{vHead}")
        a(f"v_sub_u32 v{vD0}, v{vC0}, v{vD0}")
        a(f"v_mul_u32_u24 v{vOff}, 1280, v{vHead}")
        frag_off()
        for rt in range(2):
            r = AC + 16 * rt + 4 * g
            a(f"v_cvt_pk_bf16_f32 v{r}, v{r}, v{r+1}")
            a(f"v_cvt_pk_bf16_f32 v{r+1}, v{r+2}, v{r+3}")
            a(f"buffer_store_dwordx2 {vr(r,2)}, v{vOff}, s[{SWS}:{SWS+3}], s{48+rt} offen{SM}")
    a("s_branch qkv_fin")
    a.label("qkv_kv")
    a(f"v_cmp_eq_u32 s[54:55], 0, v{vH}")
    for rt in range(2):
        q = T + 12 + rt
        r = AC + 16 * rt
        a(f"v_mul_f32 v{q}, v{r+8}, v{r+8}")
        for e in range(9, 12):
            a(f"v_fmac_f32 v{q}, v{r+e}, v{r+e}")
        a(f"v_cndmask_b32 v{q}, 0, v{q}, s[54:55]")
        for e in range(8):
            a(f"v_fmac_f32 v{q}, v{r+e}, v{r+e}")
        a(f"v_mov_b32 v{q+2}, v{q}")
        a(f"v_permlane32_swap_b32 v{q}, v{q+2}")
        a(f"v_add_f32 v{q}, v{q}, v{q+2}")
        for g in range(3):
            a(f"v_cvt_pk_bf16_f32 v{r+4*g}, v{r+4*g}, v{r+4*g+1}")
            a(f"v_cvt_pk_bf16_f32 v{r+4*g+1}, v{r+4*g+2}, v{r+4*g+3}")
    a(f"v_max_u32 v{T+12}, v{T+12}, v{T+13}")
    a(f"v_mov_b32 v{T+13}, 0")
    a(f"ds_max_u32 v{T+13}, v{T+12} offset:{MX}")
    a(f"s_cmp_eq_u32 s{s_tg}, 21")
    a("s_cbranch_scc1 qkv_v")
    a(f"s_mul_i32 s48, s{s_rb}, {2*KVS}")
    a(f"s_add_u32 s48, s48, {KF}")
    a(f"s_add_u32 s49, s48, {KVS}")
    for g in range(3):
        a(f"v_lshlrev_b32 v{vD0}, 2, v{vH}")
        if g:
            a(f"v_add_u32 v{vD0}, {8*g}, v{vD0}")
        a(f"v_mov_b32 v{vOff}, 0")
        frag_off()
        if g == 2:
            a("s_mov_b64 exec, 0xffffffff")
        for rt in range(2):
            a(f"buffer_store_dwordx2 {vr(AC+16*rt+4*g,2)}, v{vOff}, s[{SWS}:{SWS+3}], s{48+rt} offen")
    a("s_mov_b64 exec, -1")
    a("s_branch qkv_kn")
    a.label("qkv_v")
    a(f"s_mul_i32 s48, s{s_rb}, {2*KVS}")
    a(f"s_add_u32 s48, s48, {VF}")
    a(f"s_add_u32 s49, s48, {KVS}")
    a(f"v_lshrrev_b32 v{vA}, 4, v{vN}")
    a(f"v_lshlrev_b32 v{vA}, 1, v{vA}")
    a(f"v_bfe_u32 v{vA+1}, v{vN}, 2, 1")
    a(f"v_add_u32 v{vA}, v{vA}, v{vA+1}")
    a(f"v_mul_u32_u24 v{vA}, 21, v{vA}")
    a(f"v_lshl_add_u32 v{vA}, v{vH}, 2, v{vA}")
    a(f"v_lshlrev_b32 v{vOff}, 4, v{vA}")
    a(f"v_and_b32 v{vA}, 3, v{vN}")
    a(f"v_lshl_add_u32 v{vOff}, v{vA}, 1, v{vOff}")
    a(f"v_bfe_u32 v{vA}, v{vN}, 3, 1")
    a(f"v_lshl_add_u32 v{vOff}, v{vA}, 3, v{vOff}")
    for g in range(3):
        if g == 2:
            a("s_mov_b64 exec, 0xffffffff")
        for rt in range(2):
            r = AC + 16 * rt + 4 * g
            o = g * 128
            a(f"buffer_store_short v{r}, v{vOff}, s[{SWS}:{SWS+3}], s{48+rt} offen offset:{o}")
            a(f"buffer_store_short_d16_hi v{r}, v{vOff}, s[{SWS}:{SWS+3}], s{48+rt} offen offset:{o+16}")
            a(f"buffer_store_short v{r+1}, v{vOff}, s[{SWS}:{SWS+3}], s{48+rt} offen offset:{o+32}")
            a(f"buffer_store_short_d16_hi v{r+1}, v{vOff}, s[{SWS}:{SWS+3}], s{48+rt} offen offset:{o+48}")
    a("s_add_u32 s48, s48, 320")
    a(f"v_and_b32 v{vA}, 3, v{vLane}")
    a(f"v_mul_u32_u24 v{vOff}, 336, v{vA}")
    a(f"v_lshrrev_b32 v{vA}, 2, v{vLane}")
    a(f"v_mul_u32_u24 v{vA}, {KVS}, v{vA}")
    a(f"v_add_u32 v{vOff}, v{vOff}, v{vA}")
    a("s_mov_b64 exec, 0xff")
    a(f"buffer_store_dwordx4 {vr(ONE,4)}, v{vOff}, s[{SWS}:{SWS+3}], s48 offen")
    a("s_mov_b64 exec, -1")
    a.label("qkv_kn")
    a("s_waitcnt lgkmcnt(0)")
    a(f"ds_read_b32 v{T+12}, v{T+13} offset:{MX}")
    a(f"s_sub_u32 s48, s{s_tg}, 20")
    a("s_lshl_b32 s48, s48, 5")
    a(f"s_add_u32 s48, s48, s{s_rb}")
    a("s_lshl_b32 s48, s48, 2")
    a(f"s_add_u32 s48, s48, {KN}")
    a("s_waitcnt lgkmcnt(0)")
    a(f"buffer_store_dword v{T+12}, v{T+13}, s[{SWS}:{SWS+3}], s48 offen")
    a.label("qkv_fin")
    stamp_end(a, "qkv", SWS, s_w, 120)
    a("s_endpgm")
    _stamp_n["qkv"] = 2
    a.label("qkv_w3")
    X = AC
    a(f"v_mul_u32_u24 v{vTr}, 336, v{vLane}")
    a(f"v_add_u32 v{vTr}, {XI}, v{vTr}")
    a(f"v_mov_b32 v{T+8}, 0x3f803f80")
    for e in range(4):
        a(f"v_mov_b32 v{T+4+e}, 0")
    a(f"ds_write_b32 v{T+4}, v{T+4} offset:{MX}")
    stamp(a, "qkv")
    a("s_waitcnt vmcnt(0) lgkmcnt(0)")
    stamp(a, "qkv")
    a("s_barrier")
    stamp(a, "qkv")
    if PREFETCH:
        srd(a, 60, 56, 1966080)
        srd(a, 64, 58, 1966080)
        a(f"v_mul_u32_u24 v{T+12}, 43, v{vLane}")
        a(f"v_lshrrev_b32 v{T+12}, 9, v{T+12}")
        a(f"v_mul_u32_u24 v{T+13}, 12, v{T+12}")
        a(f"v_sub_u32 v{T+13}, v{vLane}, v{T+13}")
        a(f"v_mul_u32_u24 v{T+12}, 3072, v{T+12}")
        a(f"v_lshl_add_u32 v{T+12}, v{T+13}, 6, v{T+12}")
        a("s_lshr_b32 s44, s2, 3")
        a(f"s_mul_i32 s44, s44, {20*3072}")
        a("s_bfe_u32 s38, s2, 0x20001")
        a("s_mul_i32 s38, s38, 768")
        a("s_add_u32 s44, s44, s38")
        a("s_mov_b32 s53, 0x0fffffff")
        a("s_mov_b64 exec, s[52:53]")
        for q in range(4):
            a(f"buffer_load_dword v{T+14}, v{T+12}, s[60:63], s44 offen")
            a(f"buffer_load_dword v{T+14}, v{T+12}, s[64:67], s44 offen")
            a(f"s_add_u32 s44, s44, {5*3072}")
        a("s_mov_b64 exec, -1")
    a("s_mov_b32 s41, 4")
    a.label("qkv_sl")
    for c in range(19):
        a(f"ds_read_b128 {vr(X+4*c,4)}, v{vTr} offset:{c*16}")
    a(f"ds_read_b128 {vr(T,4)}, v{vTr} offset:{19*16}")
    for c in range(20):
        a(f"s_waitcnt lgkmcnt({min(15, 19-c)})")
        for e in range(4):
            x = (X + 4 * c + e) if c < 19 else T + e
            b = T + 4 + (e & 1) * 2
            a(f"v_dot2_f32_bf16 v{b}, v{x}, v{T+8}, v{b}")
            a(f"v_dot2_f32_bf16 v{b+1}, v{x}, v{x}, v{b+1}")
    a(f"v_add_u32 v{vTr}, {SL}, v{vTr}")
    a("s_sub_u32 s41, s41, 1")
    a("s_cmp_lg_u32 s41, 0")
    a("s_cbranch_scc1 qkv_sl")
    a(f"s_mov_b32 s45, {hx(f2u(1.0/640))}")
    a(f"s_mov_b32 s46, {hx(f2u(1e-5))}")
    mu, sq, m_b, rr, t0 = T + 4, T + 5, T + 10, T + 11, T + 9
    a(f"v_pk_add_f32 {vr(mu,2)}, {vr(mu,2)}, {vr(mu+2,2)}")
    a(f"v_mul_f32 v{mu}, s45, v{mu}")
    a(f"v_mul_f32 v{sq}, s45, v{sq}")
    a(f"v_fma_f32 v{sq}, -v{mu}, v{mu}, v{sq}")
    a(f"v_max_f32 v{sq}, 0, v{sq}")
    a(f"v_cvt_pk_bf16_f32 v{m_b}, v{mu}, v{sq}")
    a(f"v_and_b32 v{t0}, 0xffff0000, v{m_b}")
    a(f"v_lshlrev_b32 v{m_b}, 16, v{m_b}")
    a(f"v_add_f32 v{t0}, s46, v{t0}")
    a(f"v_cvt_pk_bf16_f32 v{t0}, v{t0}, v{t0}")
    a(f"v_lshlrev_b32 v{t0}, 16, v{t0}")
    a(f"v_sqrt_f32 v{t0}, v{t0}")
    a(f"v_cvt_pk_bf16_f32 v{t0}, v{t0}, v{t0}")
    a(f"v_lshlrev_b32 v{t0}, 16, v{t0}")
    a(f"v_rcp_f32 v{rr}, v{t0}")
    a(f"v_lshlrev_b32 v{T}, 3, v{vLane}")
    a(f"ds_write_b64 v{T}, {vr(m_b,2)} offset:{ST}")
    a("s_waitcnt lgkmcnt(0)")
    stamp(a, "qkv")
    a("s_barrier")
    a(f"v_lshlrev_b32 v{T}, 3, v{vN}")
    a(f"ds_read_b64 {vr(T+2,2)}, v{T} offset:{ST}")
    a(f"ds_read_b64 {vr(T+4,2)}, v{T} offset:{ST+256}")
    for i in range(10):
        rt = i // 5
        a(f"s_add_u32 s41, s{s_cb}, {8*i - 40*rt}")
        a("s_mul_i32 s42, s41, 26")
        a("s_lshr_b32 s42, s42, 8")
        a(f"s_mul_i32 s43, s42, {SL - 320}")
        a("s_lshl_b32 s41, s41, 5")
        a("s_add_u32 s43, s43, s41")
        a(f"v_add_u32 v{T+6}, s43, v{vXr}")
        a(f"ds_read_b128 {vr(X+4*i,4)}, v{T+6} offset:{rt*10752}")
    a("s_waitcnt lgkmcnt(10)")
    PR = X + 40
    for rt in range(2):
        a(f"v_mov_b32 v{PR+4*rt}, v{T+3+2*rt}")
        a(f"v_mov_b32 v{PR+4*rt+1}, v{T+3+2*rt}")
        a(f"v_mul_f32_e64 v{PR+4*rt+2}, -v{T+2+2*rt}, v{T+3+2*rt}")
        a(f"v_mov_b32 v{PR+4*rt+3}, v{PR+4*rt+2}")
    a("s_mov_b32 s47, 0xffff0000")
    a(f"v_lshlrev_b32 v{T}, 4, v{vLane}")
    a(f"s_mul_i32 s39, s{s_rb}, 80")
    a(f"s_add_u32 s39, s39, s{s_cb}")
    a("s_lshl_b32 s39, s39, 10")
    if XF:
        a(f"s_add_u32 s39, s39, {XF}")
    for i in range(10):
        rt = i // 5
        a(f"s_waitcnt lgkmcnt({9-i})")
        for q in range(4):
            x = X + 4 * i + q
            u = X + 48 + q * 2
            a(f"v_lshlrev_b32 v{u}, 16, v{x}")
            a(f"v_and_b32 v{u+1}, s47, v{x}")
            a(f"v_pk_fma_f32 {vr(u,2)}, {vr(u,2)}, {vr(PR+4*rt,2)}, {vr(PR+4*rt+2,2)}")
            a(f"v_cvt_pk_bf16_f32 v{x}, v{u}, v{u+1}")
        a(f"buffer_store_dwordx4 {vr(X+4*i,4)}, v{T}, s[{SWS}:{SWS+3}], s39 offen{SM}")
        a("s_add_u32 s39, s39, 8192")
    a("s_cmp_lg_u32 s2, 255")
    a("s_cbranch_scc1 qkv_noct")
    a(f"v_lshlrev_b32 v{T+4}, 8, v{vLane}")
    a(f"v_mov_b32 v{T+5}, 0")
    a(f"s_mov_b32 s44, {CT}")
    a("s_mov_b32 s52, -1")
    a("s_mov_b32 s53, 0xffff")
    a("s_mov_b64 exec, s[52:53]")
    a(f"buffer_store_dword v{T+5}, v{T+4}, s[{SWS}:{SWS+3}], s44 offen")
    a("s_mov_b64 exec, -1")
    a.label("qkv_noct")
    stamp(a, "qkv")
    stamp_end(a, "qkv", SWS, s_w, 120)
    a.label("qkv_end")
    a("s_endpgm")
    return a.finish(), ("qkv_kernel", 256, 256, WR + 61440, 256 if STAMP else 128)


A_Q, A_O, A_S, A_P, A_K, A_V, A_M = 16, 48, 112, 144, 160, 192, 224
A_T = 228
NSET = 4
OOB = 0x80000000


def gen_attn_body(a, pfx, s_wg, fused=False):
    s_w, s_rt, s_kh, s_hd = 32, 33, 34, 35
    SWS = 28
    vLane, vN, vH = 1, 2, 3
    vK1, vK2, vV = 4, 5, 6
    T = A_T
    a("s_load_dwordx2 s[12:13], s[0:1], 88")
    a("s_load_dwordx2 s[14:15], s[0:1], 32")
    lane_setup(a, T, vLane, vN, vH, s_w)
    a(f"s_and_b32 s3, s{s_wg}, 7")
    a(f"s_lshr_b32 s36, s{s_wg}, 5")
    a("s_lshl_b32 s3, s3, 3")
    a(f"s_add_u32 s{s_rt}, s3, s36")
    a(f"s_bfe_u32 s3, s{s_wg}, 0x20003")
    a(f"s_and_b32 s{s_kh}, s{s_w}, 1")
    a(f"s_lshr_b32 s36, s{s_w}, 1")
    a("s_lshl_b32 s3, s3, 3")
    a("s_lshl_b32 s36, s36, 2")
    a(f"s_add_u32 s{s_hd}, s3, s36")
    a(f"v_lshlrev_b32 v{vK1}, 4, v{vLane}")
    a(f"v_lshlrev_b32 v{vK2}, 3, v{vN}")
    a(f"v_add_u32 v{vK2}, 1024, v{vK2}")
    a(f"v_mov_b32 v{T}, {hx(OOB)}")
    a(f"v_cmp_eq_u32 vcc, 0, v{vH}")
    a(f"v_cndmask_b32 v{vK2}, v{T}, v{vK2}, vcc")
    a(f"v_mul_u32_u24 v{vV}, 21, v{vH}")
    a(f"v_add_u32 v{vV}, v{vV}, v{vN}")
    a(f"v_lshlrev_b32 v{vV}, 4, v{vV}")
    a(f"v_cmp_gt_u32 vcc, 21, v{vN}")
    a(f"v_cndmask_b32 v{vV}, v{T}, v{vV}, vcc")
    a("s_waitcnt lgkmcnt(0)")
    srd(a, SWS, 12, WS_END)
    a(f"s_add_u32 s12, s12, {KN}")
    a("s_addc_u32 s13, s13, 0")
    a("s_load_dwordx16 s[64:79], s[12:13], 0")
    a("s_load_dwordx16 s[80:95], s[12:13], 64")
    a("s_load_dwordx16 s[44:59], s[12:13], 128")
    a(f"s_lshl_b32 s36, s{s_rt}, 5")
    a(f"s_add_u32 s36, s36, s{s_hd}")
    a("s_mul_i32 s36, s36, 1280")
    a(f"s_add_u32 s36, s36, {QF}")
    for i in range(4):
        a(f"buffer_load_dwordx4 {vr(A_Q+8*i,4)}, v{vK1}, s[{SWS}:{SWS+3}], s36 offen")
        a(f"buffer_load_dwordx2 {vr(A_Q+8*i+4,2)}, v{vK2}, s[{SWS}:{SWS+3}], s36 offen")
        if i < 3:
            a("s_add_u32 s36, s36, 1280")
    s_kp, s_vp = 37, 38
    a(f"s_mul_i32 s{s_kp}, s{s_kh}, {32*KVS}")
    a(f"s_add_u32 s{s_kp}, s{s_kp}, {KF}")
    a(f"s_add_u32 s{s_vp}, s{s_kp}, 1280")

    def loadK(st):
        a(f"buffer_load_dwordx4 {vr(A_K+8*st,4)}, v{vK1}, s[{SWS}:{SWS+3}], s{s_kp} offen")
        a(f"buffer_load_dwordx2 {vr(A_K+8*st+4,2)}, v{vK2}, s[{SWS}:{SWS+3}], s{s_kp} offen")
        a(f"s_add_u32 s{s_kp}, s{s_kp}, {KVS}")

    def loadV(st):
        a(f"buffer_load_dwordx4 {vr(A_V+8*st,4)}, v{vV}, s[{SWS}:{SWS+3}], s{s_vp} offen")
        a(f"buffer_load_dwordx4 {vr(A_V+8*st+4,4)}, v{vV}, s[{SWS}:{SWS+3}], s{s_vp} offen offset:672")
        a(f"s_add_u32 s{s_vp}, s{s_vp}, {KVS}")
    for st in range(NSET - 1):
        loadK(st)
        loadV(st)
    loadK(NSET - 1)
    for i in range(4):
        a(f"v_mov_b32 v{A_Q+8*i+6}, 0")
        a(f"v_mov_b32 v{A_Q+8*i+7}, 0")
    for st in range(NSET):
        a(f"v_mov_b32 v{A_K+8*st+6}, 0")
        a(f"v_mov_b32 v{A_K+8*st+7}, 0")
    for r in range(64):
        a(f"v_mov_b32 v{A_O+r}, 0")
    for r in range(16):
        a(f"v_mov_b32 v{A_P+r}, 0")
    for r in range(8):
        a(f"v_mov_b32 v{A_V+8*(NSET-1)+r}, 0")
    for r in range(4):
        a(f"v_mov_b32 v{A_M+r}, 0")
    a("s_waitcnt lgkmcnt(0)")
    for r in range(65, 96):
        a(f"s_max_u32 s64, s64, s{r}")
    for r in range(45, 60):
        a(f"s_max_u32 s44, s44, s{r}")
    a("s_load_dwordx16 s[80:95], s[12:13], 192")
    a("s_waitcnt lgkmcnt(0)")
    for r in range(80, 96):
        a(f"s_max_u32 s44, s44, s{r}")
    a(f"s_waitcnt vmcnt({4*NSET-2})")
    for i in range(4):
        a(f"v_mov_b32 v{T+i}, 0")
    for r in range(6):
        for i in range(4):
            a(f"v_dot2_f32_bf16 v{T+i}, v{A_Q+8*i+r}, v{A_Q+8*i+r}, v{T+i}")
    for i in range(4):
        a(f"v_mov_b32 v{T+4+i}, v{T+i}")
    for i in range(4):
        a(f"v_permlane32_swap_b32 v{T+i}, v{T+4+i}")
    for i in range(4):
        a(f"v_add_f32 v{T+i}, v{T+i}, v{T+4+i}")
    a(f"v_max3_f32 v{T}, v{T}, v{T+1}, v{T+2}")
    a(f"v_max_f32 v{T}, v{T}, v{T+3}")
    a(f"v_mul_f32 v{T}, s64, v{T}")
    a(f"v_mov_b32 v{T+1}, {hx(f2u(3600.0/1.05))}")
    a(f"v_cmp_nle_f32 vcc, v{T}, v{T+1}")
    a(f"s_cmp_gt_u32 s44, {hx(f2u(2.0**80))}")
    a(f"s_cbranch_scc1 {pfx}_slow")
    a(f"s_cbranch_vccnz {pfx}_slow")

    def qk(m, sb, ks, i):
        if m == 0:
            mfma32(a, A_S + 16 * sb, A_K + 8 * ks, A_Q + 8 * i, "0")
        else:
            mfma32(a, A_S + 16 * sb, A_K + 8 * ks + 4, A_Q + 8 * i + 4)

    def pv(m, pb, vs, i):
        mfma32(a, A_O + 16 * i, A_V + 8 * vs + 4 * m, A_P + 8 * pb + 4 * m)

    a(f"s_waitcnt vmcnt({4*NSET-4})")
    qk(0, 0, 0, 0)
    qk(1, 0, 0, 0)
    stamp(a, "attn")
    a(f"s_mov_b32 s39, {32//NSET}")
    a("s_nop 10")
    a.raw(".p2align 6")
    a.label(f"{pfx}_loop")
    for kk in range(NSET):
        for i in range(4):
            cur = i & 1
            S = A_S + 16 * cur
            P = A_P + 8 * cur
            nks, ni = (kk, i + 1) if i < 3 else ((kk + 1) % NSET, 0)
            pvs, pi = (kk, i - 1) if i > 0 else ((kk - 1) % NSET, 3)
            if i in (1, 3) and not os.environ.get("NOWAIT"):
                a(f"s_waitcnt vmcnt({4*NSET-6})")
            def ex(lo, hi):
                for e in range(lo, hi):
                    a(f"v_exp_f32 v{S+e}, v{S+e}")

            def cv(lo, hi):
                for jj in range(lo, hi):
                    a(f"v_cvt_pk_bf16_f32 v{P+jj}, v{S+2*jj}, v{S+2*jj+1}")
            if ORDER2:
                qk(0, cur ^ 1, nks, ni)
                ex(0, 5)
                qk(1, cur ^ 1, nks, ni)
                if i == 1:
                    loadV((kk - 1) % NSET)
                if i == 3:
                    loadK(kk)
                ex(5, 9)
                cv(0, 2)
                pv(0, cur ^ 1, pvs, pi)
                ex(9, 13)
                cv(2, 4)
                pv(1, cur ^ 1, pvs, pi)
                ex(13, 16)
                cv(4, 8)
            else:
                qk(0, cur ^ 1, nks, ni)
                ex(0, 4)
                qk(1, cur ^ 1, nks, ni)
                if i == 1:
                    loadV((kk - 1) % NSET)
                if i == 3:
                    loadK(kk)
                ex(4, 8)
                pv(0, cur ^ 1, pvs, pi)
                ex(8, 12)
                cv(0, 2)
                pv(1, cur ^ 1, pvs, pi)
                ex(12, 16)
                cv(2, 8)
    a("s_sub_u32 s39, s39, 1")
    a("s_cmp_lg_u32 s39, 0")
    a(f"s_cbranch_scc1 {pfx}_loop")
    pv(0, 1, NSET - 1, 3)
    pv(1, 1, NSET - 1, 3)
    stamp(a, "attn")
    a(f"s_branch {pfx}_epi")

    a.label(f"{pfx}_slow")
    for r in range(4):
        a(f"v_mov_b32 v{A_M+r}, {hx(f2u(-1e30))}")
    a("s_mov_b32 s39, 32")
    a(f"s_sub_u32 s{s_kp}, s{s_kp}, {KVS*(NSET-1)}")
    a(f"s_sub_u32 s{s_vp}, s{s_vp}, {KVS*(NSET-2)}")
    a.label(f"{pfx}_sloop")
    a("s_waitcnt vmcnt(0)")
    for i in range(4):
        S, P, M = A_S, A_P, A_M + i
        qk(0, 0, 0, i)
        qk(1, 0, 0, i)
        a(f"v_max3_f32 v{T}, v{S}, v{S+1}, v{S+2}")
        for e in range(3, 15, 2):
            a(f"v_max3_f32 v{T}, v{T}, v{S+e}, v{S+e+1}")
        a(f"v_max_f32 v{T}, v{T}, v{S+15}")
        a(f"v_mov_b32 v{T+1}, v{T}")
        a(f"v_permlane32_swap_b32 v{T}, v{T+1}")
        a(f"v_max3_f32 v{T}, v{T}, v{T+1}, v{M}")
        a(f"v_sub_f32 v{T+1}, v{M}, v{T}")
        a(f"v_exp_f32 v{T+1}, v{T+1}")
        a(f"v_mov_b32 v{M}, v{T}")
        for e in range(16):
            a(f"v_sub_f32 v{S+e}, v{S+e}, v{T}")
            a(f"v_exp_f32 v{S+e}, v{S+e}")
        for j in range(8):
            a(f"v_cvt_pk_bf16_f32 v{P+j}, v{S+2*j}, v{S+2*j+1}")
        for e in range(16):
            a(f"v_mul_f32 v{A_O+16*i+e}, v{A_O+16*i+e}, v{T+1}")
        pv(0, 0, 0, i)
        pv(1, 0, 0, i)
    loadK(0)
    loadV(0)
    a("s_sub_u32 s39, s39, 1")
    a("s_cmp_lg_u32 s39, 0")
    a(f"s_cbranch_scc1 {pfx}_sloop")

    a.label(f"{pfx}_epi")
    a("s_waitcnt vmcnt(0)")
    if PREFETCH and not fused:
        srd(a, 16, 14, 819200)
        a(f"s_lshr_b32 s40, s{s_wg}, 3")
        a("s_lshl_b32 s40, s40, 2")
        a(f"s_add_u32 s40, s40, s{s_w}")
        a("s_mul_i32 s40, s40, 6400")
        a(f"v_lshlrev_b32 v{T+14}, 6, v{vLane}")
        a(f"buffer_load_dword v{T+15}, v{T+14}, s[16:19], s40 offen")
        a("s_add_u32 s40, s40, 4096")
        a(f"buffer_load_dword v{T+15}, v{T+14}, s[16:19], s40 offen")
    vW, vR = T, T + 1
    a(f"s_mul_i32 s40, s{s_w}, 6656")
    a(f"s_xor_b32 s41, s{s_w}, 1")
    a("s_mul_i32 s41, s41, 6656")
    a(f"v_add_u32 v{vW}, s40, v{vK1}")
    a(f"v_add_u32 v{vR}, s41, v{vK1}")
    a(f"v_lshlrev_b32 v{T+2}, 2, v{vLane}")
    a(f"v_add_u32 v{T+3}, s41, v{T+2}")
    a(f"v_add_u32 v{T+2}, s40, v{T+2}")
    a(f"s_cmp_eq_u32 s{s_kh}, 0")
    a(f"s_cbranch_scc1 {pfx}_e0")
    for t in range(2):
        for q in range(3):
            a(f"ds_write_b128 v{vW}, {vr(A_O+16*t+4*q,4)} offset:{(t*3+q)*1024}")
        a(f"ds_write_b32 v{T+2}, v{A_M+t} offset:{6144+t*256}")
    a("s_waitcnt lgkmcnt(0)")
    for t in range(2):
        for e in range(12):
            a(f"v_mov_b32 v{A_O+16*t+e}, v{A_O+16*(t+2)+e}")
        a(f"v_mov_b32 v{A_M+t}, v{A_M+t+2}")
    a(f"s_add_u32 s{s_hd}, s{s_hd}, 2")
    a(f"s_branch {pfx}_e1")
    a.label(f"{pfx}_e0")
    for t in range(2):
        for q in range(3):
            a(f"ds_write_b128 v{vW}, {vr(A_O+16*(t+2)+4*q,4)} offset:{(t*3+q)*1024}")
        a(f"ds_write_b32 v{T+2}, v{A_M+t+2} offset:{6144+t*256}")
    a("s_waitcnt lgkmcnt(0)")
    a.label(f"{pfx}_e1")
    a("s_barrier")
    for t in range(2):
        for q in range(3):
            a(f"ds_read_b128 {vr(A_S+16*t+4*q,4)}, v{vR} offset:{(t*3+q)*1024}")
        a(f"ds_read_b32 v{A_M+2+t}, v{T+3} offset:{6144+t*256}")
    a("s_waitcnt lgkmcnt(0)")
    a(f"s_mul_i32 s40, s{s_rt}, {40*1024}")
    a(f"s_add_u32 s40, s40, {OF}")
    a(f"v_mov_b32 v{T+12}, {hx(OOB)}")
    a(f"v_cmp_eq_u32 s[42:43], 0, v{vH}")
    for t in range(2):
        O, Pz, Ma, Mp = A_O + 16 * t, A_S + 16 * t, A_M + t, A_M + 2 + t
        a(f"v_max_f32 v{T+4}, v{Ma}, v{Mp}")
        a(f"v_sub_f32 v{T+5}, v{Ma}, v{T+4}")
        a(f"v_sub_f32 v{T+6}, v{Mp}, v{T+4}")
        a(f"v_exp_f32 v{T+5}, v{T+5}")
        a(f"v_exp_f32 v{T+6}, v{T+6}")
        for e in range(12):
            a(f"v_mul_f32 v{O+e}, v{O+e}, v{T+5}")
            a(f"v_fmac_f32 v{O+e}, v{Pz+e}, v{T+6}")
        a(f"v_mov_b32 v{T+7}, v{O+8}")
        a(f"v_mov_b32 v{T+8}, v{O+8}")
        a(f"v_permlane32_swap_b32 v{T+7}, v{T+8}")
        a(f"v_rcp_f32 v{T+8}, v{T+8}")
        for e in range(12):
            a(f"v_mul_f32 v{O+e}, v{O+e}, v{T+8}")
        for q in range(3):
            a(f"v_cvt_pk_bf16_f32 v{O+4*q}, v{O+4*q}, v{O+4*q+1}")
            a(f"v_cvt_pk_bf16_f32 v{O+4*q+1}, v{O+4*q+2}, v{O+4*q+3}")
        a(f"s_add_u32 s41, s{s_hd}, {t}")
        a("s_mul_i32 s41, s41, 20")
        for q in range(3):
            k, off = T + 9, T + 10
            a(f"v_lshlrev_b32 v{k}, 2, v{vH}")
            a(f"v_add_u32 v{k}, s41, v{k}")
            if q:
                a(f"v_add_u32 v{k}, {8*q}, v{k}")
            if fused:
                a(f"v_lshrrev_b32 v{off}, 4, v{k}")
                a(f"v_lshlrev_b32 v{off}, 10, v{off}")
                a(f"v_lshl_add_u32 v{off}, v{vN}, 4, v{off}")
                a(f"v_and_b32 v{T+11}, 4, v{k}")
                a(f"v_lshl_add_u32 v{off}, v{T+11}, 7, v{off}")
                a(f"v_and_b32 v{k}, 8, v{k}")
                a(f"v_add_u32 v{off}, v{k}, v{off}")
            else:
                a(f"v_lshrrev_b32 v{off}, 3, v{k}")
                a(f"v_lshlrev_b32 v{off}, 9, v{off}")
                a(f"v_lshl_add_u32 v{off}, v{vN}, 4, v{off}")
                a(f"v_and_b32 v{k}, 4, v{k}")
                a(f"v_lshl_add_u32 v{off}, v{k}, 1, v{off}")
            if q == 2:
                a(f"v_cndmask_b32 v{off}, v{T+12}, v{off}, s[42:43]")
            a(f"buffer_store_dwordx2 {vr(O+4*q,2)}, v{off}, s[{SWS}:{SWS+3}], s40 offen{' sc1' if fused else SM}")
    if fused:
        a("s_waitcnt vmcnt(0)")
        a("s_barrier")
        a(f"s_cmp_lg_u32 s{s_w}, 0")
        a(f"s_cbranch_scc1 {pfx}_nosig")
        a(f"s_lshr_b32 s40, s{s_rt}, 1")
        a("s_lshl_b32 s40, s40, 8")
        a(f"s_add_u32 s40, s40, {CT + 4096}")
        a(f"v_mov_b32 v{T}, 0")
        a(f"v_mov_b32 v{T+1}, 1")
        a("s_mov_b64 exec, 1")
        a(f"buffer_atomic_add v{T+1}, v{T}, s[{SWS}:{SWS+3}], s40 offen sc1")
        a("s_mov_b64 exec, -1")
        a.label(f"{pfx}_nosig")


def gen_attn():
    a = Asm()
    a.label("attn_kernel")
    a("s_cmp_ge_u32 s2, 256")
    a("s_cbranch_scc1 attn_end")
    stamp_begin(a, "attn")
    gen_attn_body(a, "attn", 2)
    stamp_end(a, "attn", 28, 32, 250)
    a.label("attn_end")
    a("s_endpgm")
    return a.finish(), ("attn_kernel", 256, 256, 26624, 256 if STAMP else 248)


R_ACC, R_A, R_B, R_T = 16, 112, 160, 208


def zero_acc(a, acc, n, tmp):
    for e in range(4):
        a(f"v_mov_b32 v{tmp+e}, 0")
    for t in range(n):
        mfma32(a, acc + 16 * t, tmp, tmp, "0")


def typek_rolled(K, pfx):
    a, RD = K.a, K.RD
    assert K.RD == 6 and K.RB == 6 and K.KS % 6 == 0
    a("s_waitcnt vmcnt(10)")
    for x in K.reads(0):
        a(x)
    a(f"s_mov_b32 s59, {K.KS // 6}")
    a(f"s_add_u32 s{K.s_g}, s{K.s_g}, {6*K.gstep}")
    a.label(f"{pfx}_kl")
    for s in range(6):
        a(f"s_waitcnt vmcnt({min(22, 10 + 3*s)})")
        for x in K.reads(s + 1):
            a(x)
        a("s_waitcnt lgkmcnt(6)")
        k = 0
        for ct in range(3):
            for rt in range(2):
                mfma32(a, K.ACC + (rt * 3 + ct) * 16, K.AF + (s & 1) * 12 + ct * 4, K.BF + s * 8 + rt * 4)
                if k % 2 == 0:
                    c = k // 2
                    a(f"s_add_u32 m0, s{K.s_ring}, {(s*3+c)*1024}")
                    a(f"s_add_u32 s91, s{K.s_g}, {s*K.gstep + c*64}")
                    a(f"buffer_load_dwordx4 v{K.vWo}, s[{K.SW}:{K.SW+3}], s91 offen lds")
                k += 1
        for rt in range(2):
            sb = K.s_b0 if rt == 0 else K.s_b1
            a(f"s_add_u32 s91, s{sb}, {(s+6)*1024}")
            a(f"buffer_load_dwordx4 {vr(K.BF+s*8+rt*4,4)}, v{K.vB}, s[{K.SB}:{K.SB+3}], s91 offen{K.bmods}")
    a(f"s_add_u32 s{K.s_g}, s{K.s_g}, {6*K.gstep}")
    a(f"s_add_u32 s{K.s_b0}, s{K.s_b0}, 6144")
    a(f"s_add_u32 s{K.s_b1}, s{K.s_b1}, 6144")
    a("s_sub_u32 s59, s59, 1")
    a("s_cmp_lg_u32 s59, 0")
    a(f"s_cbranch_scc1 {pfx}_kl")
    a("s_waitcnt vmcnt(0) lgkmcnt(0)")


class TypeR:
    def __init__(self, a, pfx, NT, NS, vTr, vWo, vB, s_w, srd_of_tile, goff, s_bp, SWS, tr2, bmods=""):
        self.__dict__.update(locals())
        self.SLOT = 4 * NT * 1024
        self.sname = {"gu": "gateup", "dn": "down", "fi": "final"}[pfx[:2]]
        self.s_m = 60
        self.per = NT + 4

    def dma_ops(self, stage):
        slot = stage % 3
        s_g0, s_g1, gstep = self.goff
        out = []
        for t in range(self.NT):
            sr, grp, tt = self.srd_of_tile(t)
            out.append([f"s_add_u32 m0, s{self.s_m}, {slot*self.SLOT + t*1024}",
                        f"s_add_u32 s61, s{s_g0 if grp == 0 else s_g1}, {stage*gstep + tt*64}",
                        f"buffer_load_dwordx4 v{self.vWo}, s[{sr}:{sr+3}], s61 offen lds"])
        return out

    def b_ops(self, stage):
        slot = stage % 3
        bl = []
        for j in range(4):
            g = []
            if j == 0:
                g.append(f"s_add_u32 s62, s{self.s_bp}, {stage*4096}")
            g.append(f"buffer_load_dwordx4 {vr(R_B+slot*16+j*4,4)}, v{self.vB}, s[{self.SWS}:{self.SWS+3}], s62 offen offset:{j*1024}{self.bmods}")
            bl.append(g)
        return bl

    def vm_ops(self, stage):
        out, bl, res = self.dma_ops(stage), self.b_ops(stage), []
        while out or bl:
            if out:
                res.append(out.pop(0))
            if bl and len(res) > 1:
                res.append(bl.pop(0))
        return res

    def emit(self, groups):
        for g in groups:
            for x in g:
                self.a(x)

    def reads(self, stage, j):
        buf = (stage * 4 + j) & 1
        slot = stage % 3
        base = (slot & 1) * self.SLOT + j * self.NT * 1024
        va = self.vTr + (slot >> 1)
        out = []
        for t in range(self.NT):
            r = R_A + buf * 24 + t * 4
            out.append(f"ds_read_b64_tr_b16 {vr(r,2)}, v{va} offset:{base + t*1024}")
            out.append(f"ds_read_b64_tr_b16 {vr(r+2,2)}, v{va} offset:{base + t*1024 + self.tr2}")
        return out

    def mf(self, stage, j, t):
        buf = (stage * 4 + j) & 1
        first = stage == 0 and j == 0
        mfma32(self.a, R_ACC + 16 * t, R_A + buf * 24 + t * 4, R_B + (stage % 3) * 16 + j * 4, "0" if first else None)

    def setup(self):
        a = self.a
        a(f"s_mul_i32 s{self.s_m}, s{self.s_w}, {self.NT*1024}")
        a(f"v_add_u32 v{self.vTr+1}, {2*self.SLOT}, v{self.vTr}")

    def main(self, first_wait, extra_vm=None):
        a, NT, NS = self.a, self.NT, self.NS
        extra_vm = extra_vm or {}
        order = [0] * self.per + [1] * self.per
        stamp(a, self.sname)
        a(f"s_waitcnt vmcnt({first_wait})")
        a("s_barrier")
        stamp(a, self.sname)
        for x in self.reads(0, 0):
            a(x)
        for i in range(NS):
            if i in (1, 2, 4):
                stamp(a, self.sname)
            ops = self.vm_ops(i + 2) if i + 2 < NS else []
            order += [i + 2] * len(ops)
            ops = ops + extra_vm.get(i, [])
            order += [-1] * len(extra_vm.get(i, []))
            nslots = 3 * NT
            place = {}
            for k, g in enumerate(ops):
                place.setdefault((k * nslots) // len(ops), []).append(g)
            for j in range(3):
                rd = self.reads(i, j + 1)
                for t in range(NT):
                    a(f"s_waitcnt lgkmcnt({2*(NT-1)})")
                    self.mf(i, j, t)
                    a(rd[2 * t])
                    a(rd[2 * t + 1])
                    if j * NT + t in place:
                        self.emit(place[j * NT + t])
            last = i + 1 == NS
            H = NT if last else (NT + 1) // 2
            for t in range(H):
                a(f"s_waitcnt lgkmcnt({2*(NT-1-t)})")
                self.mf(i, 3, t)
            if not last:
                lastidx = max(k for k, o in enumerate(order) if o == i + 1)
                a(f"s_waitcnt vmcnt({len(order) - 1 - lastidx}) lgkmcnt(0)")
                a("s_barrier")
                rd = self.reads(i + 1, 0)
                n = NT - H
                for k, t in enumerate(range(H, NT)):
                    self.mf(i, 3, t)
                    for x in rd[(k * len(rd)) // n:((k + 1) * len(rd)) // n]:
                        a(x)


def typer_rolled(R, extra_vm=None):
    a, NT = R.a, R.NT
    assert R.NS == 10
    s_g0, s_g1, gstep = R.goff
    extra_vm = extra_vm or []
    a(f"s_waitcnt vmcnt({R.per})")
    a("s_barrier")
    stamp(a, R.sname)
    for x in R.reads(0, 0):
        a(x)
    a("s_mov_b32 s59, 3")
    a.label(f"{R.pfx}_rl")
    nx = len(extra_vm)

    def stage(i, ops, xtra, wait_n, last=False):
        ops = xtra + ops
        nslots = 3 * NT
        place = {}
        for k, g in enumerate(ops):
            place.setdefault((k * nslots) // len(ops), []).append(g)
        for j in range(3):
            rd = R.reads(i, j + 1)
            for t in range(NT):
                a(f"s_waitcnt lgkmcnt({2*(NT-1)})")
                R.mf(i + 3, j, t)
                a(rd[2 * t])
                a(rd[2 * t + 1])
                if j * NT + t in place:
                    R.emit(place[j * NT + t])
        H = NT if last else (NT + 1) // 2
        for t in range(H):
            a(f"s_waitcnt lgkmcnt({2*(NT-1-t)})")
            R.mf(i + 3, 3, t)
        if not last:
            a(f"s_waitcnt vmcnt({wait_n}) lgkmcnt(0)")
            a("s_barrier")
            rd = R.reads(i + 1, 0)
            n = NT - H
            for k, t in enumerate(range(H, NT)):
                R.mf(i + 3, 3, t)
                for x in rd[(k * len(rd)) // n:((k + 1) * len(rd)) // n]:
                    a(x)
    stage(0, R.vm_ops(2), extra_vm, R.per + nx)
    stage(1, R.vm_ops(3), [], R.per)
    stage(2, R.vm_ops(4), [], R.per)
    a(f"s_add_u32 s{s_g0}, s{s_g0}, {3*gstep}")
    if s_g1 != s_g0:
        a(f"s_add_u32 s{s_g1}, s{s_g1}, {3*gstep}")
    a(f"s_add_u32 s{R.s_bp}, s{R.s_bp}, {3*4096}")
    a("s_sub_u32 s59, s59, 1")
    a("s_cmp_lg_u32 s59, 0")
    a(f"s_cbranch_scc1 {R.pfx}_rl")
    stage(0, [], [], 0, last=True)


def gen_gateup_body(a, pfx, s_wg, mid_hook=None, smods='', extra_vm=None):
    s_w, s_rb, s_cb = 32, 33, 34
    SW1, SW3, SWS = 16, 20, 28
    vLane, vN, vH, vWo, vB, vTr = 1, 2, 3, 4, 5, 6
    T = R_T
    a("s_load_dwordx4 s[4:7], s[0:1], 48")
    a("s_load_dwordx2 s[12:13], s[0:1], 88")
    lane_setup(a, T, vLane, vN, vH, s_w)
    a(f"s_and_b32 s3, s{s_wg}, 7")
    a(f"s_lshr_b32 s35, s{s_wg}, 3")
    a("s_and_b32 s36, s3, 1")
    a("s_lshl_b32 s36, s36, 3")
    a("s_and_b32 s37, s35, 7")
    a(f"s_add_u32 s{s_rb}, s36, s37")
    a("s_lshr_b32 s36, s3, 1")
    a("s_lshl_b32 s36, s36, 2")
    a("s_lshr_b32 s37, s35, 3")
    a(f"s_add_u32 s{s_cb}, s36, s37")
    a(f"v_lshrrev_b32 v{T}, 2, v{vLane}")
    a(f"v_mul_u32_u24 v{vWo}, 3072, v{T}")
    a(f"v_and_b32 v{T}, 3, v{vLane}")
    a(f"v_lshl_add_u32 v{vWo}, v{T}, 4, v{vWo}")
    tr_base(a, vTr, T, vLane, vH, 9)
    a(f"v_lshlrev_b32 v{vB}, 4, v{vLane}")
    a(f"s_mul_i32 s40, s{s_w}, {16*3072}")
    a(f"s_mul_i32 s41, s{s_cb}, 192")
    a("s_add_u32 s40, s40, s41")
    a(f"s_lshl_b32 s42, s{s_rb}, 2")
    a(f"s_add_u32 s42, s42, s{s_w}")
    a(f"s_mul_i32 s43, s42, {40*1024}")
    if XF:
        a(f"s_add_u32 s43, s43, {XF}")
    a("s_waitcnt lgkmcnt(0)")
    srd(a, SW1, 4, 1966080)
    srd(a, SW3, 6, 1966080)
    srd(a, SWS, 12, WS_END)
    R = TypeR(a, pfx, 6, 10, vTr, vWo, vB, s_w,
              lambda t: (SW1, 0, t) if t < 3 else (SW3, 0, t - 3), (40, 40, 64 * 3072), 43, SWS, 256)
    R.setup()
    R.emit(R.vm_ops(0) + R.vm_ops(1))
    if ROLL:
        zero_acc(a, R_ACC, 6, R_A)
        typer_rolled(R, extra_vm)
    else:
        R.main(R.per, extra_vm)
    if mid_hook:
        mid_hook()
    stamp(a, "gateup")
    a(f"s_mov_b32 s44, {hx(f2u(-math.log2(math.e)))}")
    a(f"s_mul_i32 s45, s42, {96*1024}")
    a(f"s_mul_i32 s46, s{s_cb}, {6*1024}")
    a("s_add_u32 s45, s45, s46")
    a(f"s_add_u32 s45, s45, {HF}")
    a(f"v_mov_b32 v{T}, s44")
    a(f"v_mov_b32 v{T+1}, s44")
    a(f"v_mov_b32 v{T+2}, 1.0")
    a(f"v_mov_b32 v{T+3}, 1.0")
    for t in range(3):
        g, u = R_ACC + 16 * t, R_ACC + 16 * (t + 3)
        E = R_A
        for e in range(0, 16, 2):
            a(f"v_pk_mul_f32 {vr(E+e,2)}, {vr(g+e,2)}, {vr(T,2)}")
        for e in range(16):
            a(f"v_exp_f32 v{E+e}, v{E+e}")
        for e in range(0, 16, 2):
            a(f"v_pk_add_f32 {vr(E+e,2)}, {vr(E+e,2)}, {vr(T+2,2)}")
        for e in range(16):
            a(f"v_rcp_f32 v{E+e}, v{E+e}")
        for e in range(0, 16, 2):
            a(f"v_pk_mul_f32 {vr(g+e,2)}, {vr(g+e,2)}, {vr(u+e,2)}")
        for e in range(0, 16, 2):
            a(f"v_pk_mul_f32 {vr(g+e,2)}, {vr(g+e,2)}, {vr(E+e,2)}")
        for j in range(8):
            a(f"v_cvt_pk_bf16_f32 v{u+j}, v{g+2*j}, v{g+2*j+1}")
        for hf in range(2):
            o = (2 * t + hf) * 1024
            if o < 4096:
                a(f"buffer_store_dwordx4 {vr(u+4*hf,4)}, v{vB}, s[{SWS}:{SWS+3}], s45 offen offset:{o}{smods}")
            else:
                a(f"s_add_u32 s46, s45, {o}")
                a(f"buffer_store_dwordx4 {vr(u+4*hf,4)}, v{vB}, s[{SWS}:{SWS+3}], s46 offen{smods}")


def gen_gateup():
    a = Asm()
    a.label("gateup_kernel")
    a("s_cmp_ge_u32 s2, 256")
    a("s_cbranch_scc1 gateup_end")
    stamp_begin(a, "gateup")
    gen_gateup_body(a, "gu", 2)
    stamp_end(a, "gateup", 28, 32, 240)
    a.label("gateup_end")
    a("s_endpgm")
    return a.finish(), ("gateup_kernel", 256, 256, 73728, 256 if STAMP else 216)


D_AF, D_BF, D_RES, D_XR, D_T = 112, 136, 184, 212, 224
RING = 18432


def tile64_setup(a, s_wg, s_rb, s_cb):
    a(f"s_and_b32 s3, s{s_wg}, 7")
    a("s_lshl_b32 s3, s3, 2")
    a(f"s_bfe_u32 s36, s{s_wg}, 0x20003")
    a(f"s_add_u32 s{s_rb}, s3, s36")
    a(f"s_lshr_b32 s{s_cb}, s{s_wg}, 5")


def gen_down_setup(a, s_wg, standalone, bmods=""):
    s_w = 32
    s_rb, s_cb = 63, 64
    SW, SWS, SX = 24, 28, 76
    vLane, vN, vH, vWo, vB, vTr, vXo = 1, 2, 3, 8, 5, 9, 10
    T = D_T
    a("s_load_dwordx2 s[8:9], s[0:1], 64")
    a("s_load_dwordx2 s[14:15], s[0:1], 0")
    if FUSE:
        a("s_load_dwordx2 s[84:85], s[0:1], 32")
        a("s_load_dwordx2 s[86:87], s[0:1], 72")
    if standalone:
        a("s_load_dwordx2 s[12:13], s[0:1], 88")
        lane_setup(a, T, vLane, vN, vH, s_w)
        a(f"v_lshlrev_b32 v{vB}, 4, v{vLane}")
    tile64_setup(a, s_wg, s_rb, s_cb)
    a(f"v_lshrrev_b32 v{T}, 2, v{vLane}")
    a(f"v_mul_u32_u24 v{vWo}, 1280, v{T}")
    a(f"v_and_b32 v{T}, 3, v{vLane}")
    a(f"v_lshl_add_u32 v{vWo}, v{T}, 4, v{vWo}")
    tr_base(a, vTr, T, vLane, vH, 8)
    a(f"s_mul_i32 s67, s{s_w}, {RING}")
    a(f"v_add_u32 v{vTr}, s67, v{vTr}")
    a(f"v_mul_u32_u24 v{vXo}, 1280, v{vN}")
    a(f"v_lshl_add_u32 v{vXo}, v{vH}, 3, v{vXo}")
    a(f"s_mul_i32 s66, s{s_w}, {384*1280}")
    a(f"s_mul_i32 s37, s{s_cb}, 192")
    a("s_add_u32 s66, s66, s37")
    a(f"s_mul_i32 s68, s{s_rb}, {2*96*1024}")
    a(f"s_mul_i32 s36, s{s_w}, {24*1024}")
    a("s_add_u32 s68, s68, s36")
    a(f"s_add_u32 s68, s68, {HF}")
    a(f"s_add_u32 s65, s68, {96*1024}")
    a(f"s_mul_i32 s70, s{s_rb}, {64*1280}")
    a("s_add_u32 s70, s70, s37")
    a(f"s_lshl_b32 s36, s{s_w}, 4")
    a("s_add_u32 s70, s70, s36")
    a(f"s_add_u32 s71, s70, {32*1280}")
    if FUSE:
        a(f"s_mul_i32 s88, s{s_w}, {160*1280}")
        a("s_add_u32 s88, s88, s37")
        a(f"s_mul_i32 s89, s{s_rb}, {2*40*1024}")
        a(f"s_mul_i32 s36, s{s_w}, {10*1024}")
        a("s_add_u32 s89, s89, s36")
        a(f"s_add_u32 s89, s89, {OF}")
        a(f"s_add_u32 s90, s89, {40*1024}")
    a("s_waitcnt lgkmcnt(0)")
    srd(a, SW, 8, 1966080)
    srd(a, SX, 14, 2621440)
    if standalone:
        srd(a, SWS, 12, WS_END)
    K = TypeK(a, 34 if FUSE else 24, 6, 6, R_ACC, D_AF, D_BF, vTr, 512, vWo, SW, 66, 16 * 1280, 67, vB, SWS, 68, 65, bmods)
    if FUSE:
        srd(a, 80, 84, 819200)
        srd(a, 84, 86, 2621440)
        K.phase2 = (24, 80, 88, 89, 90)
    return K


def gen_down_issue(a, K):
    SX, vXo = 76, 10
    for rt in range(2):
        for ct in range(3):
            a(f"buffer_load_dwordx2 {vr(D_XR+(rt*3+ct)*2,2)}, v{vXo}, s[{SX}:{SX+3}], s{70+rt} offen offset:{ct*64}")
    order = [("x",)] * 6
    for s in range(6):
        K.emit(K.dma(s))
        order += [("d", s)] * 3
    return K, order


def gen_down_rest(a, K, order):
    s_w, s_rb, s_cb, SWS, vB, vLane, vXo = 32, 63, 64, 28, 5, 1, 10
    T = D_T
    for s in range(6):
        K.emit(K.bl(s))
        order = order + [("b", s)] * 2
    order = K.main(order, 0, 24, 24)
    stamp(a, "mffn")
    stamp(a, "down")
    if FUSE:
        a(f"v_mul_u32_u24 v{T+3}, 1280, v{vLane}")
        for q in range(3):
            a(f"s_add_u32 s91, s88, {6*16*1280 + q*64}")
            a(f"buffer_load_dword v{T+4}, v{T+3}, s[80:83], s91 offen")
        a(f"s_lshl_b32 s93, s{s_rb}, 8")
        a(f"s_add_u32 s93, s93, {CT + 4096}")
        a(f"s_cmp_lg_u32 s{s_w}, 0")
        a("s_cbranch_scc1 main_polled2")
        a(f"v_mov_b32 v{T}, 0")
        a("s_mov_b64 exec, 1")
        a.label("main_poll2")
        a(f"buffer_load_dword v{T+2}, v{T}, s[{SWS}:{SWS+3}], s93 offen sc1")
        a("s_waitcnt vmcnt(0)")
        a(f"v_readfirstlane_b32 s95, v{T+2}")
        a("s_cmp_ge_u32 s95, 8")
        a("s_cbranch_scc1 main_pdone2")
        a("s_sleep 4")
        a("s_branch main_poll2")
        a.label("main_pdone2")
        a("s_mov_b64 exec, -1")
        a.label("main_polled2")
        a("s_barrier")
        stamp(a, "mffn")
        order = order + [("x",)] * 3
        for s in range(24, 30):
            K.emit(K.bl(s))
            order = order + [("b", s)] * 2
        K.main(order, 24, 34)
        stamp(a, "mffn")
    a("s_setprio 2")
    reduce4(a, "dn", R_ACC, D_RES, R_ACC, vB, T, s_w, 67, 0, RING)
    a("s_mov_b32 s49, 0xffff0000")
    if not FUSE:
        a(f"s_mul_i32 s45, s{s_rb}, 40")
        a(f"s_mul_i32 s46, s{s_cb}, 3")
        a("s_add_u32 s45, s45, s46")
        a("s_lshl_b32 s45, s45, 11")
        a(f"s_lshr_b32 s46, s{s_w}, 1")
        a("s_lshl_b32 s46, s46, 10")
        a("s_add_u32 s45, s45, s46")
        a(f"s_and_b32 s46, s{s_w}, 1")
        a("s_lshl_b32 s46, s46, 3")
        a("s_add_u32 s45, s45, s46")
        a(f"s_add_u32 s45, s45, {YF}")
    for ct in range(3):
        if ct == 2:
            a(f"s_cmp_eq_u32 s{s_cb}, 6")
            a("s_cbranch_scc1 dn_skip")
        for rt in range(2):
            r = D_RES + (rt * 3 + ct) * 4
            xr = D_XR + (rt * 3 + ct) * 2
            for e in range(2):
                a(f"v_lshlrev_b32 v{T}, 16, v{xr+e}")
                a(f"v_and_b32 v{T+1}, s49, v{xr+e}")
                a(f"v_pk_add_f32 {vr(r+2*e,2)}, {vr(r+2*e,2)}, {vr(T,2)}")
            a(f"v_cvt_pk_bf16_f32 v{r}, v{r}, v{r+1}")
            a(f"v_cvt_pk_bf16_f32 v{r+1}, v{r+2}, v{r+3}")
            if FUSE:
                a(f"buffer_store_dwordx2 {vr(r,2)}, v{vXo}, s[84:87], s{70+rt} offen offset:{ct*64}")
            else:
                a(f"s_add_u32 s46, s45, {(rt*20+ct)*2048}")
                a(f"buffer_store_dwordx2 {vr(r,2)}, v{vB}, s[{SWS}:{SWS+3}], s46 offen{SM}")
    a.label("dn_skip")


def gen_down():
    a = Asm()
    a.label("down_kernel")
    a("s_cmp_ge_u32 s2, 224")
    a("s_cbranch_scc1 down_end")
    stamp_begin(a, "down")
    K, order = gen_down_issue(a, gen_down_setup(a, 2, True))
    stamp(a, "down")
    gen_down_rest(a, K, order)
    stamp_end(a, "down", 28, 32, 240)
    a.label("down_end")
    a("s_endpgm")
    return a.finish(), ("down_kernel", 224, 256, 73728, 256 if STAMP else 232)


def gen_main():
    a = Asm()
    a.label("main_kernel")
    a("s_cmp_ge_u32 s2, 512")
    a("s_cbranch_scc1 main_end")
    a("s_cmp_ge_u32 s2, 256")
    a("s_cbranch_scc1 main_ffn")
    if PRIO_ATTN:
        a(f"s_setprio {PRIO_ATTN}")
    stamp_begin(a, "mattn")
    gen_attn_body(a, "ma", 2, bool(FUSE))
    stamp_end(a, "mattn", 28, 32, 250)
    a("s_endpgm")
    a.label("main_ffn")
    if PRIO_FFN:
        a(f"s_setprio {PRIO_FFN}")
    a("s_sub_u32 s69, s2, 256")
    stamp_begin(a, "mffn")
    st = {}
    K0 = gen_down_setup(a, 69, True, " sc1")
    xvm = {}
    if PREFETCH and PF0 >= 0:
        a("s_lshr_b32 s96, s69, 3")
        a("s_lshl_b32 s96, s96, 2")
        a("s_add_u32 s96, s96, s32")
        a("s_lshl_b32 s96, s96, 14")
        a(f"v_lshlrev_b32 v11, 6, v1")
        for q in range(4):
            xvm[PF0 + q] = [[f"s_add_u32 s97, s96, {q*4096}",
                             f"buffer_load_dword v12, v11, s[24:27], s97 offen"]]
        if ROLL:
            xvm = [["buffer_load_dword v12, v11, s[24:27], s96 offen", "s_add_u32 s96, s96, 2752"],
                   ["buffer_load_dword v12, v11, s[24:27], s96 offen", "s_add_u32 s96, s96, 2752"]]

    def mid():
        stamp(a, "mffn")
        a("s_setprio 2")
    gen_gateup_body(a, "gu", 69, mid, " sc1", xvm)
    SD = 28
    a("s_setprio 0")
    a("s_lshl_b32 s92, s33, 8")
    a(f"s_add_u32 s92, s92, {CT}")
    a("s_lshr_b32 s93, s63, 1")
    a("s_lshl_b32 s93, s93, 8")
    a(f"s_add_u32 s93, s93, {CT}")
    a("s_waitcnt vmcnt(0)")
    a("s_barrier")
    stamp(a, "mffn")
    a(f"v_mov_b32 v{D_T}, 0")
    a(f"v_mov_b32 v{D_T+1}, 1")
    a("s_cmp_lg_u32 s32, 0")
    a("s_cbranch_scc1 main_nosig")
    a("s_mov_b64 exec, 1")
    a(f"buffer_atomic_add v{D_T+1}, v{D_T}, s[{SD}:{SD+3}], s92 offen sc1")
    a("s_mov_b64 exec, -1")
    a.label("main_nosig")
    a("s_cmp_ge_u32 s69, 224")
    a("s_cbranch_scc1 main_end")
    K, order = gen_down_issue(a, K0)
    a("s_cmp_lg_u32 s32, 0")
    a("s_cbranch_scc1 main_polled")
    a("s_mov_b64 exec, 1")
    a.label("main_poll")
    a(f"buffer_load_dword v{D_T+2}, v{D_T}, s[{SD}:{SD+3}], s93 offen sc1")
    a("s_waitcnt vmcnt(0)")
    a(f"v_readfirstlane_b32 s95, v{D_T+2}")
    a("s_cmp_ge_u32 s95, 16")
    a("s_cbranch_scc1 main_pdone")
    a(f"s_sleep {os.environ.get('SLEEP', '8')}")
    a("s_branch main_poll")
    a.label("main_pdone")
    a("s_mov_b64 exec, -1")
    a.label("main_polled")
    a("s_barrier")
    stamp(a, "mffn")
    a(f"s_setprio {PRIO_DN}")
    gen_down_rest(a, K, order)
    stamp_end(a, "mffn", 28, 32, 240, 69)
    a.label("main_end")
    a("s_endpgm")
    return a.finish(), ("main_kernel", 512, 256, 73728, 256 if STAMP else 248)


PREFETCH = int(os.environ.get("PREFETCH", "1"))
PF0 = int(os.environ.get("PF0", "6"))
CODEPF = 0
ORDER = []
ROLL = int(os.environ.get("ROLL", "0"))
ORDER2 = int(os.environ.get("ORDER2", "1"))
PRIO_DN = int(os.environ.get("PRIO_DN", "0"))
SM = os.environ.get("SM", "")
SM = (" " + SM) if SM else ""
FUSE = int(os.environ.get("FUSE", "1"))
PRIO_ATTN = int(os.environ.get("PRIO_ATTN", "0"))
PRIO_FFN = int(os.environ.get("PRIO_FFN", "0"))


def gen_final():
    a = Asm()
    a.label("final_kernel")
    s_w, s_rb, s_cb = 32, 33, 34
    SW, SO, SWS = 20, 24, 28
    vLane, vN, vH, vWo, vB, vTr, vXo = 1, 2, 3, 4, 5, 6, 8
    T = R_T
    YR = R_ACC + 32
    a("s_cmp_ge_u32 s2, 160")
    a("s_cbranch_scc1 final_end")
    stamp_begin(a, "final")
    a("s_load_dwordx2 s[6:7], s[0:1], 32")
    a("s_load_dwordx2 s[8:9], s[0:1], 72")
    a("s_load_dwordx2 s[12:13], s[0:1], 88")
    lane_setup(a, T, vLane, vN, vH, s_w)
    a("s_and_b32 s3, s2, 7")
    a("s_lshl_b32 s3, s3, 1")
    a("s_bfe_u32 s36, s2, 0x10003")
    a(f"s_add_u32 s{s_rb}, s3, s36")
    a(f"s_lshr_b32 s{s_cb}, s2, 4")
    a(f"v_lshlrev_b32 v{vB}, 4, v{vLane}")
    a(f"v_lshrrev_b32 v{T}, 2, v{vLane}")
    a(f"v_mul_u32_u24 v{vWo}, 1280, v{T}")
    a(f"v_and_b32 v{T}, 3, v{vLane}")
    a(f"v_lshl_add_u32 v{vWo}, v{T}, 4, v{vWo}")
    a(f"v_mul_u32_u24 v{vXo}, 1280, v{vN}")
    a(f"v_lshl_add_u32 v{vXo}, v{vH}, 4, v{vXo}")
    tr_base(a, vTr, T, vLane, vH, 9)
    a(f"s_mul_i32 s40, s{s_w}, {16*1280}")
    a(f"s_lshl_b32 s41, s{s_cb}, 7")
    a("s_add_u32 s40, s40, s41")
    a(f"s_lshl_b32 s42, s{s_rb}, 2")
    a(f"s_add_u32 s42, s42, s{s_w}")
    a(f"s_mul_i32 s43, s42, {40*1024}")
    a(f"s_add_u32 s43, s43, {OF}")
    a("s_mul_i32 s45, s42, 20")
    a(f"s_lshl_b32 s46, s{s_cb}, 1")
    a("s_add_u32 s45, s45, s46")
    a("s_lshl_b32 s45, s45, 11")
    a(f"s_add_u32 s45, s45, {YF}")
    a(f"s_mul_i32 s47, s42, {32*1280}")
    a("s_add_u32 s47, s47, s41")
    a("s_waitcnt lgkmcnt(0)")
    srd(a, SW, 6, 819200)
    srd(a, SO, 8, 2621440)
    srd(a, SWS, 12, WS_END)
    R = TypeR(a, "fi", 2, 10, vTr, vWo, vB, s_w, lambda t: (SW, 0, t), (40, 40, 64 * 1280), 43, SWS, 256)
    R.setup()
    R.emit(R.vm_ops(0) + R.vm_ops(1))
    yl = [[f"buffer_load_dwordx4 {vr(YR+4*q,4)}, v{vB}, s[{SWS}:{SWS+3}], s45 offen offset:{q*1024}"] for q in range(4)]
    R.main(R.per, {4: yl})
    stamp(a, "final")
    a("s_mov_b32 s49, 0xffff0000")
    a("s_waitcnt vmcnt(0)")
    for t in range(2):
        r = R_ACC + 16 * t
        for q in range(8):
            a(f"v_lshlrev_b32 v{T+2*(q&1)}, 16, v{YR+8*t+q}")
            a(f"v_and_b32 v{T+2*(q&1)+1}, s49, v{YR+8*t+q}")
            a(f"v_pk_add_f32 {vr(r+2*q,2)}, {vr(r+2*q,2)}, {vr(T+2*(q&1),2)}")
        for q in range(8):
            a(f"v_cvt_pk_bf16_f32 v{r+q}, v{r+2*q}, v{r+2*q+1}")
        for gp in range(2):
            b = r + 4 * gp
            a(f"v_permlane32_swap_b32 v{b}, v{b+2}")
            a(f"v_permlane32_swap_b32 v{b+1}, v{b+3}")
            a(f"buffer_store_dwordx4 {vr(b,4)}, v{vXo}, s[{SO}:{SO+3}], s47 offen offset:{t*64 + gp*32}")
    stamp_end(a, "final", SWS, s_w, 240)
    a.label("final_end")
    a("s_endpgm")
    return a.finish(), ("final_kernel", 160, 256, 24576, 256 if STAMP else 216)


def gen_empty():
    a = Asm()
    a.label("empty_kernel")
    a("s_endpgm")
    return a.finish(), ("empty_kernel", 256, 256, 65536, 256)


KERNELS = {"empty": gen_empty, "main": gen_main, "qkv": gen_qkv, "gateup": gen_gateup, "attn": gen_attn, "down": gen_down, "final": gen_final}
HEADER = open("parallel_sum__grouped_kv_mqa__glu_gated_swiglu__prompt.s.ref").read().split("; Override launch")[0] if False else ""


DEFAULT = ["qkv", "main"] if FUSE else ["qkv", "main", "final"]


def build(order):
    texts, launches = {}, []
    ORDER[:] = order
    for k in order:
        t, info = KERNELS[k]()
        texts[info[0]] = (t, info)
        launches.append(info)
    out = "; generated by dev/gen.py -- LN + MQA attention + SwiGLU block for gfx950\n"
    for name, grid, block, lds, vg in launches:
        out += f"; @launch kernel={name} grid=({grid},1,1) block=({block},1,1) lds={lds}\n"
    out += '.amdgcn_target "amdgcn-amd-amdhsa--gfx950"\n.text\n'
    for name, (t, info) in texts.items():
        out += kernel_header(name) + t
    out += "code_end:\n"
    out += '.section .rodata,"a"\n'
    for name, (t, info) in texts.items():
        out += kernel_desc(name, info[4])
    return out


if __name__ == "__main__":
    order = sys.argv[2].split(",") if len(sys.argv) > 2 else DEFAULT
    open(sys.argv[1], "w").write(build(order))
```

```python
import math
import struct
import sys

from asmlib import Asm

XF = 0x0
QF = 0x280000
KF = 0x500000
VF = KF + 1280
KVS = 2624
KN = 0x52A000
CT = 0x52C000
OF = 0x530000
HF = 0x800000
FP = 0x1000000
YF = 0x1000000
WS_END = 0x2500000
TS = 0x2400000
import os
STAMP = os.environ.get("STAMP", "")


_stamp_n = {}


def stamp(a, name, vreg=255):
    if name in STAMP.split(","):
        i = _stamp_n.get(name, 0)
        _stamp_n[name] = i + 1
        a("s_memtime s[100:101]")
        a("s_waitcnt lgkmcnt(0)")
        a(f"v_writelane_b32 v{vreg}, s100, {i}")


def stamp_begin(a, name, vreg=255):
    if name in STAMP.split(","):
        a("s_memrealtime s[98:99]")
        a("s_waitcnt lgkmcnt(0)")
        a(f"v_writelane_b32 v{vreg}, s98, 14")
    stamp(a, name, vreg)


def stamp_end(a, name, sws, s_w, vtmp, s_wg=2, vreg=255):
    if name in STAMP.split(","):
        a("s_waitcnt vmcnt(0) lgkmcnt(0)")
        stamp(a, name, vreg)
        a("s_memrealtime s[98:99]")
        a("s_waitcnt lgkmcnt(0)")
        a(f"v_writelane_b32 v{vreg}, s98, 15")
        a(f"s_lshl_b32 s94, s{s_wg}, 2")
        a(f"s_add_u32 s94, s94, s{s_w}")
        a("s_lshl_b32 s94, s94, 6")
        a(f"s_add_u32 s94, s94, {TS + STAMP.split(',').index(name) * 0x20000}")
        a(f"v_and_b32 v{vtmp}, 63, v0")
        a(f"v_lshlrev_b32 v{vtmp}, 2, v{vtmp}")
        a("s_mov_b64 s[98:99], exec")
        a("s_mov_b64 exec, 0xffff")
        a(f"buffer_store_dword v{vreg}, v{vtmp}, s[{sws}:{sws+3}], s94 offen")
        a("s_mov_b64 exec, s[98:99]")


QSCALE = (20 ** -0.5) * math.log2(math.e)


def f2u(x):
    return struct.unpack("<I", struct.pack("<f", x))[0]


def hx(x):
    return "0x%x" % x


def srd(a, d, base, size):
    a(f"s_mov_b32 s{d}, s{base}")
    a(f"s_and_b32 s{d+1}, s{base+1}, 0xffff")
    a(f"s_mov_b32 s{d+2}, {hx(size)}")
    a(f"s_mov_b32 s{d+3}, 0x00020000")


def vr(b, n=1):
    return f"v{b}" if n == 1 else f"v[{b}:{b+n-1}]"


def mfma32(a, d, x, y, c=None):
    cs = vr(d, 16) if c is None else c
    a(f"v_mfma_f32_32x32x16_bf16 {vr(d,16)}, {vr(x,4)}, {vr(y,4)}, {cs}")


def kernel_header(name):
    return f""".globl {name}
.p2align 8
.type {name},@function
"""


def kernel_desc(name, vgprs, sgprs=102):
    acc = (vgprs + 3) // 4 * 4
    return f""".p2align 6
.amdhsa_kernel {name}
  .amdhsa_next_free_vgpr {vgprs}
  .amdhsa_next_free_sgpr {sgprs}
  .amdhsa_accum_offset {acc}
  .amdhsa_group_segment_fixed_size 0
  .amdhsa_kernarg_size 96
  .amdhsa_user_sgpr_count 2
  .amdhsa_user_sgpr_kernarg_segment_ptr 1
  .amdhsa_system_sgpr_workgroup_id_x 1
.end_amdhsa_kernel
"""


K_X = 16
K_ACC = 96
K_A = 192
K_T = 216
WAVE_LDS = 30720
LDS_STG = 8192


K_R = K_A


def typek_mfma_phase(a, vtr, zero=True, vm_after=None, extra=None):
    def reads(s, buf):
        for ct in range(3):
            o = (3 * s + ct) * 1024
            r = K_A + buf * 12 + ct * 4
            a(f"ds_read_b64_tr_b16 {vr(r,2)}, v{vtr} offset:{o}")
            a(f"ds_read_b64_tr_b16 {vr(r+2,2)}, v{vtr} offset:{o+256}")
    if vm_after:
        a(f"s_waitcnt vmcnt({vm_after(0)})")
    reads(0, 0)
    for s in range(10):
        if s + 1 < 10:
            if vm_after:
                a(f"s_waitcnt vmcnt({vm_after(s+1)})")
            reads(s + 1, (s + 1) & 1)
            a("s_waitcnt lgkmcnt(6)")
        else:
            a("s_waitcnt lgkmcnt(0)")
        ex = list(extra(s)) if extra else []
        n = len(ex)
        k = 0
        for ct in range(3):
            for rt in range(2):
                d = K_ACC + (rt * 3 + ct) * 16
                mfma32(a, d, K_A + (s & 1) * 12 + ct * 4, K_X + rt * 40 + s * 4, "0" if (s == 0 and zero) else None)
                k += 1
                for x in ex[((k - 1) * n) // 6:(k * n) // 6]:
                    a(x)


def reduce4(a, pfx, ACC, RES, TMP, vL16, vT, s_w, s_base, base0, stride, pre_barrier=None, post_reads=None):
    for g in range(4):
        a(f"s_cmp_eq_u32 s{s_w}, {g}")
        a(f"s_cbranch_scc1 {pfx}_rw{g}")
        a(f"s_sub_u32 s90, {g+3}, s{s_w}")
        a("s_and_b32 s90, s90, 3")
        a("s_mul_i32 s90, s90, 6144")
        a(f"s_add_u32 s90, s90, s{s_base}")
        a(f"v_add_u32 v{vT}, s90, v{vL16}")
        for t in range(6):
            a(f"ds_write_b128 v{vT}, {vr(ACC+t*16+g*4,4)} offset:{t*1024}")
        a.label(f"{pfx}_rw{g}")
    if pre_barrier:
        pre_barrier()
    for jj in range(3):
        a(f"s_add_u32 s90, s{s_w}, {jj+1}")
        a("s_and_b32 s90, s90, 3")
        a(f"s_mul_i32 s90, s90, {stride}")
        a(f"s_add_u32 s90, s90, {base0 + (2-jj)*6144}")
        a(f"v_add_u32 v{vT+1+jj}, s90, v{vL16}")
    for g in range(4):
        a(f"s_cmp_lg_u32 s{s_w}, {g}")
        a(f"s_cbranch_scc1 {pfx}_ro{g}")
        for t in range(6):
            for e in range(4):
                a(f"v_mov_b32 v{RES+t*4+e}, v{ACC+t*16+g*4+e}")
        a.label(f"{pfx}_ro{g}")
    a("s_waitcnt lgkmcnt(0)")
    a("s_barrier")
    for jj in range(3):
        for t in range(6):
            a(f"ds_read_b128 {vr(TMP+(jj*6+t)*4,4)}, v{vT+1+jj} offset:{t*1024}")
    n_extra = post_reads() if post_reads else 0
    for jj in range(3):
        a(f"s_waitcnt lgkmcnt({min(15, (2-jj)*6 + n_extra)})")
        for e in range(0, 24, 2):
            a(f"v_pk_add_f32 {vr(RES+e,2)}, {vr(RES+e,2)}, {vr(TMP+jj*24+e,2)}")


class TypeK:
    def __init__(self, a, KS, RD, RB, ACC, AF, BF, vTr, tr2, vWo, SW, s_g, gstep, s_ring, vB, SB, s_b0, s_b1, bmods=""):
        self.__dict__.update(locals())

    phase2 = None

    def dma(self, s):
        SW, s_g, s0 = self.SW, self.s_g, 0
        if self.phase2 and s >= self.phase2[0]:
            s0, SW, s_g = self.phase2[:3]
        out = []
        for ct in range(3):
            out.append([f"s_add_u32 m0, s{self.s_ring}, {((s % self.RD)*3+ct)*1024}",
                        f"s_add_u32 s91, s{s_g}, {(s-s0)*self.gstep + ct*64}",
                        f"buffer_load_dwordx4 v{self.vWo}, s[{SW}:{SW+3}], s91 offen lds"])
        return out

    def bl(self, s):
        b0, b1, s0 = self.s_b0, self.s_b1, 0
        if self.phase2 and s >= self.phase2[0]:
            s0, b0, b1 = self.phase2[0], self.phase2[3], self.phase2[4]
        out = []
        for rt in range(2):
            sb = b0 if rt == 0 else b1
            g = []
            if (s - s0) % 4 == 0 and s - s0:
                g.append(f"s_add_u32 s{sb}, s{sb}, 4096")
            g.append(f"buffer_load_dwordx4 {vr(self.BF+(s%self.RB)*8+rt*4,4)}, v{self.vB}, s[{self.SB}:{self.SB+3}], s{sb} offen offset:{((s-s0)%4)*1024}{self.bmods}")
            out.append(g)
        return out

    def emit(self, groups):
        for g in groups:
            for x in g:
                self.a(x)

    def reads(self, s):
        out = []
        for ct in range(3):
            o = ((s % self.RD) * 3 + ct) * 1024
            r = self.AF + (s & 1) * 12 + ct * 4
            out.append(f"ds_read_b64_tr_b16 {vr(r,2)}, v{self.vTr} offset:{o}")
            out.append(f"ds_read_b64_tr_b16 {vr(r+2,2)}, v{self.vTr} offset:{o+self.tr2}")
        return out

    def main(self, order, lo=0, hi=None, blimit=None):
        a, KS, RD, RB = self.a, self.KS, self.RD, self.RB
        hi = KS if hi is None else hi
        blimit = KS if blimit is None else blimit
        order = list(order)

        def wait_for(tags):
            last = max(i for i, o in enumerate(order) if o in tags)
            a(f"s_waitcnt vmcnt({min(63, len(order) - 1 - last)})")
        wait_for({("d", lo), ("b", lo)})
        for x in self.reads(lo):
            a(x)
        for s in range(lo, hi):
            if s + 1 < hi:
                wait_for({("d", s + 1), ("b", s + 1)})
                for x in self.reads(s + 1):
                    a(x)
                a("s_waitcnt lgkmcnt(6)")
            else:
                a("s_waitcnt lgkmcnt(0)")
            dm = self.dma(s + RD) if s + RD < KS else []
            k = 0
            for ct in range(3):
                for rt in range(2):
                    mfma32(a, self.ACC + (rt * 3 + ct) * 16, self.AF + (s & 1) * 12 + ct * 4,
                           self.BF + (s % RB) * 8 + rt * 4, "0" if s == 0 else None)
                    if k % 2 == 0 and dm:
                        self.emit([dm.pop(0)])
                        order.append(("d", s + RD))
                    k += 1
            if s + RB < blimit:
                self.emit(self.bl(s + RB))
                order += [("b", s + RB)] * 2
        return order


def lane_setup(a, T, vLane, vN, vH, s_w):
    a(f"v_and_b32 v{vLane}, 63, v0")
    a(f"v_lshrrev_b32 v{T}, 6, v0")
    a(f"v_readfirstlane_b32 s{s_w}, v{T}")
    a(f"v_and_b32 v{vN}, 31, v0")
    a(f"v_bfe_u32 v{vH}, v0, 5, 1")


def tr_base(a, vTr, T, vLane, vH, hshift):
    a(f"v_lshlrev_b32 v{vTr}, {hshift}, v{vH}")
    a(f"v_bfe_u32 v{T}, v{vLane}, 2, 2")
    a(f"v_lshl_add_u32 v{vTr}, v{T}, 6, v{vTr}")
    a(f"v_bfe_u32 v{T}, v{vLane}, 4, 1")
    a(f"v_lshl_add_u32 v{vTr}, v{T}, 5, v{vTr}")
    a(f"v_and_b32 v{T}, 3, v{vLane}")
    a(f"v_lshl_add_u32 v{vTr}, v{T}, 3, v{vTr}")


def gen_qkv():
    a = Asm()
    a.label("qkv_kernel")
    ST, MX = 0, 1024
    XI, SL = 8192, 21504
    WR = XI + 4 * SL
    s_w, s_rb, s_cb, s_tg = 32, 33, 34, 35
    SX, SW, SWS = 16, 20, 28
    vLane, vN, vH = 1, 2, 3
    vXg, vXr, vTr, vWo = 4, 5, 7, 8
    AC, AF, BF, ONE, T = 16, 64, 72, 88, 92
    a("s_cmp_ge_u32 s2, 256")
    a("s_cbranch_scc1 qkv_end")
    stamp_begin(a, "qkv")
    a("s_load_dwordx4 s[4:7], s[0:1], 0")
    a("s_load_dwordx4 s[8:11], s[0:1], 16")
    a("s_load_dwordx2 s[12:13], s[0:1], 88")
    a("s_load_dwordx4 s[56:59], s[0:1], 48")
    lane_setup(a, T, vLane, vN, vH, s_w)
    a("s_and_b32 s3, s2, 7")
    a("s_lshl_b32 s3, s3, 2")
    a("s_bfe_u32 s36, s2, 0x20003")
    a(f"s_add_u32 s{s_rb}, s3, s36")
    a(f"s_lshr_b32 s{s_cb}, s2, 5")
    a(f"v_mul_u32_u24 v{T}, 49, v{vLane}")
    a(f"v_lshrrev_b32 v{T}, 10, v{T}")
    a(f"v_mul_u32_u24 v{T+1}, 21, v{T}")
    a(f"v_sub_u32 v{T+1}, v{vLane}, v{T+1}")
    a(f"v_mul_u32_u24 v{vXg}, 1280, v{T}")
    a(f"v_lshl_add_u32 v{vXg}, v{T+1}, 4, v{vXg}")
    a(f"s_mul_i32 s37, s{s_w}, {SL}")
    a(f"s_add_u32 s37, s37, {XI}")
    a(f"s_mul_i32 s39, s{s_rb}, {64*1280}")
    a(f"s_mul_i32 s40, s{s_w}, 320")
    a("s_add_u32 s39, s39, s40")
    a("s_mov_b32 s52, -1")
    a("s_mov_b32 s53, 0x7fffffff")
    a("s_mov_b32 s41, 21")
    a("s_waitcnt lgkmcnt(0)")
    stamp(a, "qkv")
    srd(a, SX, 4, 2621440)
    a("s_mov_b64 exec, s[52:53]")
    a.label("qkv_xl")
    a("s_mov_b32 m0, s37")
    a("s_add_u32 s37, s37, 1008")
    a("s_sub_u32 s41, s41, 1")
    a(f"buffer_load_dwordx4 v{vXg}, s[{SX}:{SX+3}], s39 offen lds")
    a("s_add_u32 s39, s39, 3840")
    a("s_cmp_lg_u32 s41, 0")
    a("s_cbranch_scc1 qkv_xl")
    a("s_mov_b64 exec, 0x1fffff")
    a("s_mov_b32 m0, s37")
    a("s_nop 0")
    a(f"buffer_load_dwordx4 v{vXg}, s[{SX}:{SX+3}], s39 offen lds")
    a("s_mov_b64 exec, -1")
    srd(a, SWS, 12, WS_END)
    a(f"v_mul_u32_u24 v{vXr}, 336, v{vN}")
    a(f"v_lshl_add_u32 v{vXr}, v{vH}, 4, v{vXr}")
    a(f"v_add_u32 v{vXr}, {XI}, v{vXr}")
    a(f"s_cmp_eq_u32 s{s_w}, 3")
    a("s_cbranch_scc1 qkv_w3")
    a(f"s_mul_i32 s{s_tg}, s{s_cb}, 3")
    a(f"s_add_u32 s{s_tg}, s{s_tg}, s{s_w}")
    a(f"v_lshrrev_b32 v{T}, 2, v{vLane}")
    a(f"v_and_b32 v{T+1}, 3, v{vLane}")
    a(f"v_lshlrev_b32 v{T+1}, 4, v{T+1}")
    a(f"s_cmp_eq_u32 s{s_tg}, 21")
    a(f"s_cselect_b32 s{SW}, s10, s8")
    a(f"s_cselect_b32 s{SW+1}, s11, s9")
    a(f"s_cmp_lt_u32 s{s_tg}, 22")
    a(f"s_cselect_b32 s{SW+2}, 25600, 0")
    a(f"s_lshl_b32 s45, s{s_tg}, 6")
    a(f"s_cmp_lt_u32 s{s_tg}, 20")
    a(f"s_cselect_b32 s{SW}, s6, s{SW}")
    a(f"s_cselect_b32 s{SW+1}, s7, s{SW+1}")
    a(f"s_cselect_b32 s{SW+2}, 819200, s{SW+2}")
    a(f"s_mov_b32 s{SW+3}, 0x00020000")
    a("s_cselect_b32 s42, s45, 0")
    a("s_movk_i32 s38, 1280")
    a("s_cselect_b32 s38, s38, 40")
    a(f"s_and_b32 s{SW+1}, s{SW+1}, 0xffff")
    a(f"v_mad_u32_u24 v{vWo}, v{T}, s38, v{T+1}")
    a("s_lshl_b32 s43, s38, 4")
    a(f"s_mul_i32 s44, s{s_w}, 20480")
    a(f"s_add_u32 s44, s44, {WR}")
    a("s_mov_b32 s46, s44")
    LA = int(os.environ.get("QLA", "12"))
    a(f"s_mov_b32 s41, {LA}")
    a.label("qkv_wl")
    a("s_mov_b32 m0, s46")
    a("s_add_u32 s46, s46, 1024")
    a("s_sub_u32 s41, s41, 1")
    a(f"buffer_load_dwordx4 v{vWo}, s[{SW}:{SW+3}], s42 offen lds")
    a("s_add_u32 s42, s42, s43")
    a("s_cmp_lg_u32 s41, 0")
    a("s_cbranch_scc1 qkv_wl")
    tr_base(a, vTr, T, vLane, vH, 9)
    a(f"v_add_u32 v{vTr}, s44, v{vTr}")
    for e in range(4):
        a(f"v_mov_b32 v{ONE+e}, 0x3f803f80")
    for e in range(48):
        a(f"v_mov_b32 v{AC+e}, 0")
    stamp(a, "qkv")
    a(f"s_waitcnt vmcnt({LA})")
    stamp(a, "qkv")
    a("s_barrier")
    stamp(a, "qkv")

    def rd(s, nxt):
        b = s & 1
        xa = vXr + 1 if nxt else vXr
        ta = vTr + 2 if nxt else vTr
        p = 0 if nxt else s
        a(f"ds_read_b64_tr_b16 {vr(AF+4*b,2)}, v{ta} offset:{p*1024}")
        a(f"ds_read_b64_tr_b16 {vr(AF+4*b+2,2)}, v{ta} offset:{p*1024+256}")
        a(f"ds_read_b128 {vr(BF+8*b,4)}, v{xa} offset:{p*32}")
        a(f"ds_read_b128 {vr(BF+8*b+4,4)}, v{xa} offset:{p*32+10752}")
    a(f"s_waitcnt vmcnt({LA-1})")
    rd(0, False)
    a("s_mov_b32 s41, 4")
    a("s_mov_b32 s46, s44")
    a.label("qkv_loop")
    a(f"v_add_u32 v{vXr+1}, {SL}, v{vXr}")
    a("s_sub_u32 s47, s46, s44")
    a("s_xor_b32 s47, s47, 10240")
    a("s_sub_u32 s48, s44, s46")
    a("s_add_u32 s48, s48, s47")
    a(f"v_add_u32 v{vTr+2}, s48, v{vTr}")
    a("s_add_u32 s49, s44, s47")
    for sx in range(10):
        a(f"s_waitcnt vmcnt({LA-2})")
        rd(sx + 1, sx == 9)
        p = sx + LA
        if p < 10 or p >= 20:
            a(f"s_add_u32 m0, s46, {(p % 20)*1024}")
        else:
            a(f"s_add_u32 m0, s49, {(p-10)*1024}")
        a("s_waitcnt lgkmcnt(4)")
        b = sx & 1
        mfma32(a, AC, AF + 4 * b, BF + 8 * b)
        a(f"buffer_load_dwordx4 v{vWo}, s[{SW}:{SW+3}], s42 offen lds")
        a("s_add_u32 s42, s42, s43")
        mfma32(a, AC + 16, AF + 4 * b, BF + 8 * b + 4)
        mfma32(a, AC + 32, AF + 4 * b, ONE)
    a(f"v_mov_b32 v{vXr}, v{vXr+1}")
    a(f"v_mov_b32 v{vTr}, v{vTr+2}")
    a("s_add_u32 s46, s44, s47")
    a("s_sub_u32 s41, s41, 1")
    a("s_cmp_lg_u32 s41, 0")
    a("s_cbranch_scc1 qkv_loop")
    stamp(a, "qkv")
    a("s_waitcnt lgkmcnt(0)")
    a("s_barrier")
    a(f"s_cmp_ge_u32 s{s_tg}, 22")
    a("s_cbranch_scc1 qkv_fin" if STAMP else "s_cbranch_scc1 qkv_end")
    a(f"v_lshlrev_b32 v{T}, 3, v{vN}")
    a(f"ds_read_b64 {vr(T+2,2)}, v{T} offset:{ST}")
    a(f"ds_read_b64 {vr(T+4,2)}, v{T} offset:{ST+256}")
    a(f"s_mov_b32 s45, {hx(f2u(QSCALE))}")
    a(f"s_cmp_lt_u32 s{s_tg}, 20")
    a("s_cselect_b32 s45, s45, 1.0")
    a("s_waitcnt lgkmcnt(0)")
    for rt in range(2):
        a(f"v_mul_f32 v{T+3+2*rt}, s45, v{T+3+2*rt}")
    for rt in range(2):
        for e in range(16):
            r = AC + 16 * rt + e
            a(f"v_fma_f32 v{r}, -v{T+2+2*rt}, v{AC+32+e}, v{r}")
            a(f"v_mul_f32 v{r}, v{r}, v{T+3+2*rt}")
    stamp(a, "qkv")
    vC0, vHead, vD0, vOff, vA = T + 6, T + 7, T + 8, T + 9, T + 10

    def frag_off():
        a(f"v_lshrrev_b32 v{vA}, 3, v{vD0}")
        a(f"v_lshlrev_b32 v{vA}, 9, v{vA}")
        a(f"v_lshl_add_u32 v{vA}, v{vN}, 4, v{vA}")
        a(f"v_and_b32 v{vA+1}, 4, v{vD0}")
        a(f"v_lshl_add_u32 v{vA}, v{vA+1}, 1, v{vA}")
        a(f"v_lshlrev_b32 v{vA+1}, 3, v{vN}")
        a(f"v_add_u32 v{vA+1}, 1024, v{vA+1}")
        a(f"v_cmp_gt_u32 vcc, 16, v{vD0}")
        a(f"v_cndmask_b32 v{vA}, v{vA+1}, v{vA}, vcc")
        a(f"v_add_u32 v{vOff}, v{vOff}, v{vA}")
    a(f"s_cmp_ge_u32 s{s_tg}, 20")
    a("s_cbranch_scc1 qkv_kv")
    a("s_mov_b32 s46, 3277")
    a(f"s_lshl_b32 s38, s{s_tg}, 5")
    a(f"s_mul_i32 s48, s{s_rb}, {2*32*1280}")
    a(f"s_add_u32 s48, s48, {QF}")
    a(f"s_add_u32 s49, s48, {32*1280}")
    for g in range(4):
        a(f"v_lshlrev_b32 v{vC0}, 2, v{vH}")
        a(f"v_add_u32 v{vC0}, s38, v{vC0}")
        if g:
            a(f"v_add_u32 v{vC0}, {8*g}, v{vC0}")
        a(f"v_mul_u32_u24 v{vHead}, s46, v{vC0}")
        a(f"v_lshrrev_b32 v{vHead}, 16, v{vHead}")
        a(f"v_mul_u32_u24 v{vD0}, 20, v{vHead}")
        a(f"v_sub_u32 v{vD0}, v{vC0}, v{vD0}")
        a(f"v_mul_u32_u24 v{vOff}, 1280, v{vHead}")
        frag_off()
        for rt in range(2):
            r = AC + 16 * rt + 4 * g
            a(f"v_cvt_pk_bf16_f32 v{r}, v{r}, v{r+1}")
            a(f"v_cvt_pk_bf16_f32 v{r+1}, v{r+2}, v{r+3}")
            a(f"buffer_store_dwordx2 {vr(r,2)}, v{vOff}, s[{SWS}:{SWS+3}], s{48+rt} offen{SM}")
    a("s_branch qkv_fin")
    a.label("qkv_kv")
    a(f"v_cmp_eq_u32 s[54:55], 0, v{vH}")
    for rt in range(2):
        q = T + 12 + rt
        r = AC + 16 * rt
        a(f"v_mul_f32 v{q}, v{r+8}, v{r+8}")
        for e in range(9, 12):
            a(f"v_fmac_f32 v{q}, v{r+e}, v{r+e}")
        a(f"v_cndmask_b32 v{q}, 0, v{q}, s[54:55]")
        for e in range(8):
            a(f"v_fmac_f32 v{q}, v{r+e}, v{r+e}")
        a(f"v_mov_b32 v{q+2}, v{q}")
        a(f"v_permlane32_swap_b32 v{q}, v{q+2}")
        a(f"v_add_f32 v{q}, v{q}, v{q+2}")
        for g in range(3):
            a(f"v_cvt_pk_bf16_f32 v{r+4*g}, v{r+4*g}, v{r+4*g+1}")
            a(f"v_cvt_pk_bf16_f32 v{r+4*g+1}, v{r+4*g+2}, v{r+4*g+3}")
    a(f"v_max_u32 v{T+12}, v{T+12}, v{T+13}")
    a(f"v_mov_b32 v{T+13}, 0")
    a(f"ds_max_u32 v{T+13}, v{T+12} offset:{MX}")
    a(f"s_cmp_eq_u32 s{s_tg}, 21")
    a("s_cbranch_scc1 qkv_v")
    a(f"s_mul_i32 s48, s{s_rb}, {2*KVS}")
    a(f"s_add_u32 s48, s48, {KF}")
    a(f"s_add_u32 s49, s48, {KVS}")
    for g in range(3):
        a(f"v_lshlrev_b32 v{vD0}, 2, v{vH}")
        if g:
            a(f"v_add_u32 v{vD0}, {8*g}, v{vD0}")
        a(f"v_mov_b32 v{vOff}, 0")
        frag_off()
        if g == 2:
            a("s_mov_b64 exec, 0xffffffff")
        for rt in range(2):
            a(f"buffer_store_dwordx2 {vr(AC+16*rt+4*g,2)}, v{vOff}, s[{SWS}:{SWS+3}], s{48+rt} offen")
    a("s_mov_b64 exec, -1")
    a("s_branch qkv_kn")
    a.label("qkv_v")
    a(f"s_mul_i32 s48, s{s_rb}, {2*KVS}")
    a(f"s_add_u32 s48, s48, {VF}")
    a(f"s_add_u32 s49, s48, {KVS}")
    a(f"v_lshrrev_b32 v{vA}, 4, v{vN}")
    a(f"v_lshlrev_b32 v{vA}, 1, v{vA}")
    a(f"v_bfe_u32 v{vA+1}, v{vN}, 2, 1")
    a(f"v_add_u32 v{vA}, v{vA}, v{vA+1}")
    a(f"v_mul_u32_u24 v{vA}, 21, v{vA}")
    a(f"v_lshl_add_u32 v{vA}, v{vH}, 2, v{vA}")
    a(f"v_lshlrev_b32 v{vOff}, 4, v{vA}")
    a(f"v_and_b32 v{vA}, 3, v{vN}")
    a(f"v_lshl_add_u32 v{vOff}, v{vA}, 1, v{vOff}")
    a(f"v_bfe_u32 v{vA}, v{vN}, 3, 1")
    a(f"v_lshl_add_u32 v{vOff}, v{vA}, 3, v{vOff}")
    for g in range(3):
        if g == 2:
            a("s_mov_b64 exec, 0xffffffff")
        for rt in range(2):
            r = AC + 16 * rt + 4 * g
            o = g * 128
            a(f"buffer_store_short v{r}, v{vOff}, s[{SWS}:{SWS+3}], s{48+rt} offen offset:{o}")
            a(f"buffer_store_short_d16_hi v{r}, v{vOff}, s[{SWS}:{SWS+3}], s{48+rt} offen offset:{o+16}")
            a(f"buffer_store_short v{r+1}, v{vOff}, s[{SWS}:{SWS+3}], s{48+rt} offen offset:{o+32}")
            a(f"buffer_store_short_d16_hi v{r+1}, v{vOff}, s[{SWS}:{SWS+3}], s{48+rt} offen offset:{o+48}")
    a("s_add_u32 s48, s48, 320")
    a(f"v_and_b32 v{vA}, 3, v{vLane}")
    a(f"v_mul_u32_u24 v{vOff}, 336, v{vA}")
    a(f"v_lshrrev_b32 v{vA}, 2, v{vLane}")
    a(f"v_mul_u32_u24 v{vA}, {KVS}, v{vA}")
    a(f"v_add_u32 v{vOff}, v{vOff}, v{vA}")
    a("s_mov_b64 exec, 0xff")
    a(f"buffer_store_dwordx4 {vr(ONE,4)}, v{vOff}, s[{SWS}:{SWS+3}], s48 offen")
    a("s_mov_b64 exec, -1")
    a.label("qkv_kn")
    a("s_waitcnt lgkmcnt(0)")
    a(f"ds_read_b32 v{T+12}, v{T+13} offset:{MX}")
    a(f"s_sub_u32 s48, s{s_tg}, 20")
    a("s_lshl_b32 s48, s48, 5")
    a(f"s_add_u32 s48, s48, s{s_rb}")
    a("s_lshl_b32 s48, s48, 2")
    a(f"s_add_u32 s48, s48, {KN}")
    a("s_waitcnt lgkmcnt(0)")
    a(f"buffer_store_dword v{T+12}, v{T+13}, s[{SWS}:{SWS+3}], s48 offen")
    a.label("qkv_fin")
    stamp_end(a, "qkv", SWS, s_w, 120)
    a("s_endpgm")
    _stamp_n["qkv"] = 2
    a.label("qkv_w3")
    X = AC
    a(f"v_mul_u32_u24 v{vTr}, 336, v{vLane}")
    a(f"v_add_u32 v{vTr}, {XI}, v{vTr}")
    a(f"v_mov_b32 v{T+8}, 0x3f803f80")
    for e in range(4):
        a(f"v_mov_b32 v{T+4+e}, 0")
    a(f"ds_write_b32 v{T+4}, v{T+4} offset:{MX}")
    stamp(a, "qkv")
    a("s_waitcnt vmcnt(0) lgkmcnt(0)")
    stamp(a, "qkv")
    a("s_barrier")
    stamp(a, "qkv")
    if PREFETCH:
        srd(a, 60, 56, 1966080)
        srd(a, 64, 58, 1966080)
        a(f"v_mul_u32_u24 v{T+12}, 43, v{vLane}")
        a(f"v_lshrrev_b32 v{T+12}, 9, v{T+12}")
        a(f"v_mul_u32_u24 v{T+13}, 12, v{T+12}")
        a(f"v_sub_u32 v{T+13}, v{vLane}, v{T+13}")
        a(f"v_mul_u32_u24 v{T+12}, 3072, v{T+12}")
        a(f"v_lshl_add_u32 v{T+12}, v{T+13}, 6, v{T+12}")
        a("s_lshr_b32 s44, s2, 3")
        a(f"s_mul_i32 s44, s44, {20*3072}")
        a("s_bfe_u32 s38, s2, 0x20001")
        a("s_mul_i32 s38, s38, 768")
        a("s_add_u32 s44, s44, s38")
        a("s_mov_b32 s53, 0x0fffffff")
        a("s_mov_b64 exec, s[52:53]")
        for q in range(4):
            a(f"buffer_load_dword v{T+14}, v{T+12}, s[60:63], s44 offen")
            a(f"buffer_load_dword v{T+14}, v{T+12}, s[64:67], s44 offen")
            a(f"s_add_u32 s44, s44, {5*3072}")
        a("s_mov_b64 exec, -1")
    a("s_mov_b32 s41, 4")
    a.label("qkv_sl")
    for c in range(19):
        a(f"ds_read_b128 {vr(X+4*c,4)}, v{vTr} offset:{c*16}")
    a(f"ds_read_b128 {vr(T,4)}, v{vTr} offset:{19*16}")
    for c in range(20):
        a(f"s_waitcnt lgkmcnt({min(15, 19-c)})")
        for e in range(4):
            x = (X + 4 * c + e) if c < 19 else T + e
            b = T + 4 + (e & 1) * 2
            a(f"v_dot2_f32_bf16 v{b}, v{x}, v{T+8}, v{b}")
            a(f"v_dot2_f32_bf16 v{b+1}, v{x}, v{x}, v{b+1}")
    a(f"v_add_u32 v{vTr}, {SL}, v{vTr}")
    a("s_sub_u32 s41, s41, 1")
    a("s_cmp_lg_u32 s41, 0")
    a("s_cbranch_scc1 qkv_sl")
    a(f"s_mov_b32 s45, {hx(f2u(1.0/640))}")
    a(f"s_mov_b32 s46, {hx(f2u(1e-5))}")
    mu, sq, m_b, rr, t0 = T + 4, T + 5, T + 10, T + 11, T + 9
    a(f"v_pk_add_f32 {vr(mu,2)}, {vr(mu,2)}, {vr(mu+2,2)}")
    a(f"v_mul_f32 v{mu}, s45, v{mu}")
    a(f"v_mul_f32 v{sq}, s45, v{sq}")
    a(f"v_fma_f32 v{sq}, -v{mu}, v{mu}, v{sq}")
    a(f"v_max_f32 v{sq}, 0, v{sq}")
    a(f"v_cvt_pk_bf16_f32 v{m_b}, v{mu}, v{sq}")
    a(f"v_and_b32 v{t0}, 0xffff0000, v{m_b}")
    a(f"v_lshlrev_b32 v{m_b}, 16, v{m_b}")
    a(f"v_add_f32 v{t0}, s46, v{t0}")
    a(f"v_cvt_pk_bf16_f32 v{t0}, v{t0}, v{t0}")
    a(f"v_lshlrev_b32 v{t0}, 16, v{t0}")
    a(f"v_sqrt_f32 v{t0}, v{t0}")
    a(f"v_cvt_pk_bf16_f32 v{t0}, v{t0}, v{t0}")
    a(f"v_lshlrev_b32 v{t0}, 16, v{t0}")
    a(f"v_rcp_f32 v{rr}, v{t0}")
    a(f"v_lshlrev_b32 v{T}, 3, v{vLane}")
    a(f"ds_write_b64 v{T}, {vr(m_b,2)} offset:{ST}")
    a("s_waitcnt lgkmcnt(0)")
    stamp(a, "qkv")
    a("s_barrier")
    a(f"v_lshlrev_b32 v{T}, 3, v{vN}")
    a(f"ds_read_b64 {vr(T+2,2)}, v{T} offset:{ST}")
    a(f"ds_read_b64 {vr(T+4,2)}, v{T} offset:{ST+256}")
    for i in range(10):
        rt = i // 5
        a(f"s_add_u32 s41, s{s_cb}, {8*i - 40*rt}")
        a("s_mul_i32 s42, s41, 26")
        a("s_lshr_b32 s42, s42, 8")
        a(f"s_mul_i32 s43, s42, {SL - 320}")
        a("s_lshl_b32 s41, s41, 5")
        a("s_add_u32 s43, s43, s41")
        a(f"v_add_u32 v{T+6}, s43, v{vXr}")
        a(f"ds_read_b128 {vr(X+4*i,4)}, v{T+6} offset:{rt*10752}")
    a("s_waitcnt lgkmcnt(10)")
    PR = X + 40
    for rt in range(2):
        a(f"v_mov_b32 v{PR+4*rt}, v{T+3+2*rt}")
        a(f"v_mov_b32 v{PR+4*rt+1}, v{T+3+2*rt}")
        a(f"v_mul_f32_e64 v{PR+4*rt+2}, -v{T+2+2*rt}, v{T+3+2*rt}")
        a(f"v_mov_b32 v{PR+4*rt+3}, v{PR+4*rt+2}")
    a("s_mov_b32 s47, 0xffff0000")
    a(f"v_lshlrev_b32 v{T}, 4, v{vLane}")
    a(f"s_mul_i32 s39, s{s_rb}, 80")
    a(f"s_add_u32 s39, s39, s{s_cb}")
    a("s_lshl_b32 s39, s39, 10")
    if XF:
        a(f"s_add_u32 s39, s39, {XF}")
    for i in range(10):
        rt = i // 5
        a(f"s_waitcnt lgkmcnt({9-i})")
        for q in range(4):
            x = X + 4 * i + q
            u = X + 48 + q * 2
            a(f"v_lshlrev_b32 v{u}, 16, v{x}")
            a(f"v_and_b32 v{u+1}, s47, v{x}")
            a(f"v_pk_fma_f32 {vr(u,2)}, {vr(u,2)}, {vr(PR+4*rt,2)}, {vr(PR+4*rt+2,2)}")
            a(f"v_cvt_pk_bf16_f32 v{x}, v{u}, v{u+1}")
        a(f"buffer_store_dwordx4 {vr(X+4*i,4)}, v{T}, s[{SWS}:{SWS+3}], s39 offen{SM}")
        a("s_add_u32 s39, s39, 8192")
    a("s_cmp_lg_u32 s2, 255")
    a("s_cbranch_scc1 qkv_noct")
    a(f"v_lshlrev_b32 v{T+4}, 8, v{vLane}")
    a(f"v_mov_b32 v{T+5}, 0")
    a(f"s_mov_b32 s44, {CT}")
    a("s_mov_b32 s52, -1")
    a("s_mov_b32 s53, 0xffff")
    a("s_mov_b64 exec, s[52:53]")
    a(f"buffer_store_dword v{T+5}, v{T+4}, s[{SWS}:{SWS+3}], s44 offen")
    a("s_mov_b64 exec, -1")
    a.label("qkv_noct")
    stamp(a, "qkv")
    stamp_end(a, "qkv", SWS, s_w, 120)
    a.label("qkv_end")
    a("s_endpgm")
    return a.finish(), ("qkv_kernel", 256, 256, WR + 61440, 256 if STAMP else 128)


A_Q, A_O, A_S, A_P, A_K, A_V, A_M = 16, 48, 112, 144, 160, 192, 224
A_T = 228
NSET = 4
OOB = 0x80000000


def gen_attn_body(a, pfx, s_wg, fused=False):
    s_w, s_rt, s_kh, s_hd = 32, 33, 34, 35
    SWS = 28
    vLane, vN, vH = 1, 2, 3
    vK1, vK2, vV = 4, 5, 6
    T = A_T
    a("s_load_dwordx2 s[12:13], s[0:1], 88")
    a("s_load_dwordx2 s[14:15], s[0:1], 32")
    lane_setup(a, T, vLane, vN, vH, s_w)
    a(f"s_and_b32 s3, s{s_wg}, 7")
    a(f"s_lshr_b32 s36, s{s_wg}, 5")
    a("s_lshl_b32 s3, s3, 3")
    a(f"s_add_u32 s{s_rt}, s3, s36")
    a(f"s_bfe_u32 s3, s{s_wg}, 0x20003")
    a(f"s_and_b32 s{s_kh}, s{s_w}, 1")
    a(f"s_lshr_b32 s36, s{s_w}, 1")
    a("s_lshl_b32 s3, s3, 3")
    a("s_lshl_b32 s36, s36, 2")
    a(f"s_add_u32 s{s_hd}, s3, s36")
    a(f"v_lshlrev_b32 v{vK1}, 4, v{vLane}")
    a(f"v_lshlrev_b32 v{vK2}, 3, v{vN}")
    a(f"v_add_u32 v{vK2}, 1024, v{vK2}")
    a(f"v_mov_b32 v{T}, {hx(OOB)}")
    a(f"v_cmp_eq_u32 vcc, 0, v{vH}")
    a(f"v_cndmask_b32 v{vK2}, v{T}, v{vK2}, vcc")
    a(f"v_mul_u32_u24 v{vV}, 21, v{vH}")
    a(f"v_add_u32 v{vV}, v{vV}, v{vN}")
    a(f"v_lshlrev_b32 v{vV}, 4, v{vV}")
    a(f"v_cmp_gt_u32 vcc, 21, v{vN}")
    a(f"v_cndmask_b32 v{vV}, v{T}, v{vV}, vcc")
    a("s_waitcnt lgkmcnt(0)")
    srd(a, SWS, 12, WS_END)
    a(f"s_add_u32 s12, s12, {KN}")
    a("s_addc_u32 s13, s13, 0")
    a("s_load_dwordx16 s[64:79], s[12:13], 0")
    a("s_load_dwordx16 s[80:95], s[12:13], 64")
    a("s_load_dwordx16 s[44:59], s[12:13], 128")
    a(f"s_lshl_b32 s36, s{s_rt}, 5")
    a(f"s_add_u32 s36, s36, s{s_hd}")
    a("s_mul_i32 s36, s36, 1280")
    a(f"s_add_u32 s36, s36, {QF}")
    for i in range(4):
        a(f"buffer_load_dwordx4 {vr(A_Q+8*i,4)}, v{vK1}, s[{SWS}:{SWS+3}], s36 offen")
        a(f"buffer_load_dwordx2 {vr(A_Q+8*i+4,2)}, v{vK2}, s[{SWS}:{SWS+3}], s36 offen")
        if i < 3:
            a("s_add_u32 s36, s36, 1280")
    s_kp, s_vp = 37, 38
    a(f"s_mul_i32 s{s_kp}, s{s_kh}, {32*KVS}")
    a(f"s_add_u32 s{s_kp}, s{s_kp}, {KF}")
    a(f"s_add_u32 s{s_vp}, s{s_kp}, 1280")

    def loadK(st):
        a(f"buffer_load_dwordx4 {vr(A_K+8*st,4)}, v{vK1}, s[{SWS}:{SWS+3}], s{s_kp} offen")
        a(f"buffer_load_dwordx2 {vr(A_K+8*st+4,2)}, v{vK2}, s[{SWS}:{SWS+3}], s{s_kp} offen")
        a(f"s_add_u32 s{s_kp}, s{s_kp}, {KVS}")

    def loadV(st):
        a(f"buffer_load_dwordx4 {vr(A_V+8*st,4)}, v{vV}, s[{SWS}:{SWS+3}], s{s_vp} offen")
        a(f"buffer_load_dwordx4 {vr(A_V+8*st+4,4)}, v{vV}, s[{SWS}:{SWS+3}], s{s_vp} offen offset:672")
        a(f"s_add_u32 s{s_vp}, s{s_vp}, {KVS}")
    for st in range(NSET - 1):
        loadK(st)
        loadV(st)
    loadK(NSET - 1)
    for i in range(4):
        a(f"v_mov_b32 v{A_Q+8*i+6}, 0")
        a(f"v_mov_b32 v{A_Q+8*i+7}, 0")
    for st in range(NSET):
        a(f"v_mov_b32 v{A_K+8*st+6}, 0")
        a(f"v_mov_b32 v{A_K+8*st+7}, 0")
    for r in range(64):
        a(f"v_mov_b32 v{A_O+r}, 0")
    for r in range(16):
        a(f"v_mov_b32 v{A_P+r}, 0")
    for r in range(8):
        a(f"v_mov_b32 v{A_V+8*(NSET-1)+r}, 0")
    for r in range(4):
        a(f"v_mov_b32 v{A_M+r}, 0")
    a("s_waitcnt lgkmcnt(0)")
    for r in range(65, 96):
        a(f"s_max_u32 s64, s64, s{r}")
    for r in range(45, 60):
        a(f"s_max_u32 s44, s44, s{r}")
    a("s_load_dwordx16 s[80:95], s[12:13], 192")
    a("s_waitcnt lgkmcnt(0)")
    for r in range(80, 96):
        a(f"s_max_u32 s44, s44, s{r}")
    a(f"s_waitcnt vmcnt({4*NSET-2})")
    for i in range(4):
        a(f"v_mov_b32 v{T+i}, 0")
    for r in range(6):
        for i in range(4):
            a(f"v_dot2_f32_bf16 v{T+i}, v{A_Q+8*i+r}, v{A_Q+8*i+r}, v{T+i}")
    for i in range(4):
        a(f"v_mov_b32 v{T+4+i}, v{T+i}")
    for i in range(4):
        a(f"v_permlane32_swap_b32 v{T+i}, v{T+4+i}")
    for i in range(4):
        a(f"v_add_f32 v{T+i}, v{T+i}, v{T+4+i}")
    a(f"v_max3_f32 v{T}, v{T}, v{T+1}, v{T+2}")
    a(f"v_max_f32 v{T}, v{T}, v{T+3}")
    a(f"v_mul_f32 v{T}, s64, v{T}")
    a(f"v_mov_b32 v{T+1}, {hx(f2u(3600.0/1.05))}")
    a(f"v_cmp_nle_f32 vcc, v{T}, v{T+1}")
    a(f"s_cmp_gt_u32 s44, {hx(f2u(2.0**80))}")
    a(f"s_cbranch_scc1 {pfx}_slow")
    a(f"s_cbranch_vccnz {pfx}_slow")

    def qk(m, sb, ks, i):
        if m == 0:
            mfma32(a, A_S + 16 * sb, A_K + 8 * ks, A_Q + 8 * i, "0")
        else:
            mfma32(a, A_S + 16 * sb, A_K + 8 * ks + 4, A_Q + 8 * i + 4)

    def pv(m, pb, vs, i):
        mfma32(a, A_O + 16 * i, A_V + 8 * vs + 4 * m, A_P + 8 * pb + 4 * m)

    a(f"s_waitcnt vmcnt({4*NSET-4})")
    qk(0, 0, 0, 0)
    qk(1, 0, 0, 0)
    stamp(a, "attn")
    a(f"s_mov_b32 s39, {32//NSET}")
    a("s_nop 10")
    a.raw(".p2align 6")
    a.label(f"{pfx}_loop")
    for kk in range(NSET):
        for i in range(4):
            cur = i & 1
            S = A_S + 16 * cur
            P = A_P + 8 * cur
            nks, ni = (kk, i + 1) if i < 3 else ((kk + 1) % NSET, 0)
            pvs, pi = (kk, i - 1) if i > 0 else ((kk - 1) % NSET, 3)
            if i in (1, 3) and not os.environ.get("NOWAIT"):
                a(f"s_waitcnt vmcnt({4*NSET-6})")
            def ex(lo, hi):
                for e in range(lo, hi):
                    a(f"v_exp_f32 v{S+e}, v{S+e}")

            def cv(lo, hi):
                for jj in range(lo, hi):
                    a(f"v_cvt_pk_bf16_f32 v{P+jj}, v{S+2*jj}, v{S+2*jj+1}")
            if ORDER2:
                qk(0, cur ^ 1, nks, ni)
                ex(0, 5)
                qk(1, cur ^ 1, nks, ni)
                if i == 1:
                    loadV((kk - 1) % NSET)
                if i == 3:
                    loadK(kk)
                ex(5, 9)
                cv(0, 2)
                pv(0, cur ^ 1, pvs, pi)
                ex(9, 13)
                cv(2, 4)
                pv(1, cur ^ 1, pvs, pi)
                ex(13, 16)
                cv(4, 8)
            else:
                qk(0, cur ^ 1, nks, ni)
                ex(0, 4)
                qk(1, cur ^ 1, nks, ni)
                if i == 1:
                    loadV((kk - 1) % NSET)
                if i == 3:
                    loadK(kk)
                ex(4, 8)
                pv(0, cur ^ 1, pvs, pi)
                ex(8, 12)
                cv(0, 2)
                pv(1, cur ^ 1, pvs, pi)
                ex(12, 16)
                cv(2, 8)
    a("s_sub_u32 s39, s39, 1")
    a("s_cmp_lg_u32 s39, 0")
    a(f"s_cbranch_scc1 {pfx}_loop")
    pv(0, 1, NSET - 1, 3)
    pv(1, 1, NSET - 1, 3)
    stamp(a, "attn")
    a(f"s_branch {pfx}_epi")

    a.label(f"{pfx}_slow")
    for r in range(4):
        a(f"v_mov_b32 v{A_M+r}, {hx(f2u(-1e30))}")
    a("s_mov_b32 s39, 32")
    a(f"s_sub_u32 s{s_kp}, s{s_kp}, {KVS*(NSET-1)}")
    a(f"s_sub_u32 s{s_vp}, s{s_vp}, {KVS*(NSET-2)}")
    a.label(f"{pfx}_sloop")
    a("s_waitcnt vmcnt(0)")
    for i in range(4):
        S, P, M = A_S, A_P, A_M + i
        qk(0, 0, 0, i)
        qk(1, 0, 0, i)
        a(f"v_max3_f32 v{T}, v{S}, v{S+1}, v{S+2}")
        for e in range(3, 15, 2):
            a(f"v_max3_f32 v{T}, v{T}, v{S+e}, v{S+e+1}")
        a(f"v_max_f32 v{T}, v{T}, v{S+15}")
        a(f"v_mov_b32 v{T+1}, v{T}")
        a(f"v_permlane32_swap_b32 v{T}, v{T+1}")
        a(f"v_max3_f32 v{T}, v{T}, v{T+1}, v{M}")
        a(f"v_sub_f32 v{T+1}, v{M}, v{T}")
        a(f"v_exp_f32 v{T+1}, v{T+1}")
        a(f"v_mov_b32 v{M}, v{T}")
        for e in range(16):
            a(f"v_sub_f32 v{S+e}, v{S+e}, v{T}")
            a(f"v_exp_f32 v{S+e}, v{S+e}")
        for j in range(8):
            a(f"v_cvt_pk_bf16_f32 v{P+j}, v{S+2*j}, v{S+2*j+1}")
        for e in range(16):
            a(f"v_mul_f32 v{A_O+16*i+e}, v{A_O+16*i+e}, v{T+1}")
        pv(0, 0, 0, i)
        pv(1, 0, 0, i)
    loadK(0)
    loadV(0)
    a("s_sub_u32 s39, s39, 1")
    a("s_cmp_lg_u32 s39, 0")
    a(f"s_cbranch_scc1 {pfx}_sloop")

    a.label(f"{pfx}_epi")
    a("s_waitcnt vmcnt(0)")
    if PREFETCH and not fused:
        srd(a, 16, 14, 819200)
        a(f"s_lshr_b32 s40, s{s_wg}, 3")
        a("s_lshl_b32 s40, s40, 2")
        a(f"s_add_u32 s40, s40, s{s_w}")
        a("s_mul_i32 s40, s40, 6400")
        a(f"v_lshlrev_b32 v{T+14}, 6, v{vLane}")
        a(f"buffer_load_dword v{T+15}, v{T+14}, s[16:19], s40 offen")
        a("s_add_u32 s40, s40, 4096")
        a(f"buffer_load_dword v{T+15}, v{T+14}, s[16:19], s40 offen")
    vW, vR = T, T + 1
    a(f"s_mul_i32 s40, s{s_w}, 6656")
    a(f"s_xor_b32 s41, s{s_w}, 1")
    a("s_mul_i32 s41, s41, 6656")
    a(f"v_add_u32 v{vW}, s40, v{vK1}")
    a(f"v_add_u32 v{vR}, s41, v{vK1}")
    a(f"v_lshlrev_b32 v{T+2}, 2, v{vLane}")
    a(f"v_add_u32 v{T+3}, s41, v{T+2}")
    a(f"v_add_u32 v{T+2}, s40, v{T+2}")
    a(f"s_cmp_eq_u32 s{s_kh}, 0")
    a(f"s_cbranch_scc1 {pfx}_e0")
    for t in range(2):
        for q in range(3):
            a(f"ds_write_b128 v{vW}, {vr(A_O+16*t+4*q,4)} offset:{(t*3+q)*1024}")
        a(f"ds_write_b32 v{T+2}, v{A_M+t} offset:{6144+t*256}")
    a("s_waitcnt lgkmcnt(0)")
    for t in range(2):
        for e in range(12):
            a(f"v_mov_b32 v{A_O+16*t+e}, v{A_O+16*(t+2)+e}")
        a(f"v_mov_b32 v{A_M+t}, v{A_M+t+2}")
    a(f"s_add_u32 s{s_hd}, s{s_hd}, 2")
    a(f"s_branch {pfx}_e1")
    a.label(f"{pfx}_e0")
    for t in range(2):
        for q in range(3):
            a(f"ds_write_b128 v{vW}, {vr(A_O+16*(t+2)+4*q,4)} offset:{(t*3+q)*1024}")
        a(f"ds_write_b32 v{T+2}, v{A_M+t+2} offset:{6144+t*256}")
    a("s_waitcnt lgkmcnt(0)")
    a.label(f"{pfx}_e1")
    a("s_barrier")
    for t in range(2):
        for q in range(3):
            a(f"ds_read_b128 {vr(A_S+16*t+4*q,4)}, v{vR} offset:{(t*3+q)*1024}")
        a(f"ds_read_b32 v{A_M+2+t}, v{T+3} offset:{6144+t*256}")
    a("s_waitcnt lgkmcnt(0)")
    a(f"s_mul_i32 s40, s{s_rt}, {40*1024}")
    a(f"s_add_u32 s40, s40, {OF}")
    a(f"v_mov_b32 v{T+12}, {hx(OOB)}")
    a(f"v_cmp_eq_u32 s[42:43], 0, v{vH}")
    for t in range(2):
        O, Pz, Ma, Mp = A_O + 16 * t, A_S + 16 * t, A_M + t, A_M + 2 + t
        a(f"v_max_f32 v{T+4}, v{Ma}, v{Mp}")
        a(f"v_sub_f32 v{T+5}, v{Ma}, v{T+4}")
        a(f"v_sub_f32 v{T+6}, v{Mp}, v{T+4}")
        a(f"v_exp_f32 v{T+5}, v{T+5}")
        a(f"v_exp_f32 v{T+6}, v{T+6}")
        for e in range(12):
            a(f"v_mul_f32 v{O+e}, v{O+e}, v{T+5}")
            a(f"v_fmac_f32 v{O+e}, v{Pz+e}, v{T+6}")
        a(f"v_mov_b32 v{T+7}, v{O+8}")
        a(f"v_mov_b32 v{T+8}, v{O+8}")
        a(f"v_permlane32_swap_b32 v{T+7}, v{T+8}")
        a(f"v_rcp_f32 v{T+8}, v{T+8}")
        for e in range(12):
            a(f"v_mul_f32 v{O+e}, v{O+e}, v{T+8}")
        for q in range(3):
            a(f"v_cvt_pk_bf16_f32 v{O+4*q}, v{O+4*q}, v{O+4*q+1}")
            a(f"v_cvt_pk_bf16_f32 v{O+4*q+1}, v{O+4*q+2}, v{O+4*q+3}")
        a(f"s_add_u32 s41, s{s_hd}, {t}")
        a("s_mul_i32 s41, s41, 20")
        for q in range(3):
            k, off = T + 9, T + 10
            a(f"v_lshlrev_b32 v{k}, 2, v{vH}")
            a(f"v_add_u32 v{k}, s41, v{k}")
            if q:
                a(f"v_add_u32 v{k}, {8*q}, v{k}")
            if fused:
                a(f"v_lshrrev_b32 v{off}, 4, v{k}")
                a(f"v_lshlrev_b32 v{off}, 10, v{off}")
                a(f"v_lshl_add_u32 v{off}, v{vN}, 4, v{off}")
                a(f"v_and_b32 v{T+11}, 4, v{k}")
                a(f"v_lshl_add_u32 v{off}, v{T+11}, 7, v{off}")
                a(f"v_and_b32 v{k}, 8, v{k}")
                a(f"v_add_u32 v{off}, v{k}, v{off}")
            else:
                a(f"v_lshrrev_b32 v{off}, 3, v{k}")
                a(f"v_lshlrev_b32 v{off}, 9, v{off}")
                a(f"v_lshl_add_u32 v{off}, v{vN}, 4, v{off}")
                a(f"v_and_b32 v{k}, 4, v{k}")
                a(f"v_lshl_add_u32 v{off}, v{k}, 1, v{off}")
            if q == 2:
                a(f"v_cndmask_b32 v{off}, v{T+12}, v{off}, s[42:43]")
            a(f"buffer_store_dwordx2 {vr(O+4*q,2)}, v{off}, s[{SWS}:{SWS+3}], s40 offen{' sc1' if fused else SM}")
    if fused:
        a("s_waitcnt vmcnt(0)")
        a("s_barrier")
        a(f"s_cmp_lg_u32 s{s_w}, 0")
        a(f"s_cbranch_scc1 {pfx}_nosig")
        a(f"s_lshr_b32 s40, s{s_rt}, 1")
        a("s_lshl_b32 s40, s40, 8")
        a(f"s_add_u32 s40, s40, {CT + 4096}")
        a(f"v_mov_b32 v{T}, 0")
        a(f"v_mov_b32 v{T+1}, 1")
        a("s_mov_b64 exec, 1")
        a(f"buffer_atomic_add v{T+1}, v{T}, s[{SWS}:{SWS+3}], s40 offen sc1")
        a("s_mov_b64 exec, -1")
        a.label(f"{pfx}_nosig")


def gen_attn():
    a = Asm()
    a.label("attn_kernel")
    a("s_cmp_ge_u32 s2, 256")
    a("s_cbranch_scc1 attn_end")
    stamp_begin(a, "attn")
    gen_attn_body(a, "attn", 2)
    stamp_end(a, "attn", 28, 32, 250)
    a.label("attn_end")
    a("s_endpgm")
    return a.finish(), ("attn_kernel", 256, 256, 26624, 256 if STAMP else 248)


R_ACC, R_A, R_B, R_T = 16, 112, 160, 208


def zero_acc(a, acc, n, tmp):
    for e in range(4):
        a(f"v_mov_b32 v{tmp+e}, 0")
    for t in range(n):
        mfma32(a, acc + 16 * t, tmp, tmp, "0")


def typek_rolled(K, pfx):
    a, RD = K.a, K.RD
    assert K.RD == 6 and K.RB == 6 and K.KS % 6 == 0
    a("s_waitcnt vmcnt(10)")
    for x in K.reads(0):
        a(x)
    a(f"s_mov_b32 s59, {K.KS // 6}")
    a(f"s_add_u32 s{K.s_g}, s{K.s_g}, {6*K.gstep}")
    a.label(f"{pfx}_kl")
    for s in range(6):
        a(f"s_waitcnt vmcnt({min(22, 10 + 3*s)})")
        for x in K.reads(s + 1):
            a(x)
        a("s_waitcnt lgkmcnt(6)")
        k = 0
        for ct in range(3):
            for rt in range(2):
                mfma32(a, K.ACC + (rt * 3 + ct) * 16, K.AF + (s & 1) * 12 + ct * 4, K.BF + s * 8 + rt * 4)
                if k % 2 == 0:
                    c = k // 2
                    a(f"s_add_u32 m0, s{K.s_ring}, {(s*3+c)*1024}")
                    a(f"s_add_u32 s91, s{K.s_g}, {s*K.gstep + c*64}")
                    a(f"buffer_load_dwordx4 v{K.vWo}, s[{K.SW}:{K.SW+3}], s91 offen lds")
                k += 1
        for rt in range(2):
            sb = K.s_b0 if rt == 0 else K.s_b1
            a(f"s_add_u32 s91, s{sb}, {(s+6)*1024}")
            a(f"buffer_load_dwordx4 {vr(K.BF+s*8+rt*4,4)}, v{K.vB}, s[{K.SB}:{K.SB+3}], s91 offen{K.bmods}")
    a(f"s_add_u32 s{K.s_g}, s{K.s_g}, {6*K.gstep}")
    a(f"s_add_u32 s{K.s_b0}, s{K.s_b0}, 6144")
    a(f"s_add_u32 s{K.s_b1}, s{K.s_b1}, 6144")
    a("s_sub_u32 s59, s59, 1")
    a("s_cmp_lg_u32 s59, 0")
    a(f"s_cbranch_scc1 {pfx}_kl")
    a("s_waitcnt vmcnt(0) lgkmcnt(0)")


class TypeR:
    def __init__(self, a, pfx, NT, NS, vTr, vWo, vB, s_w, srd_of_tile, goff, s_bp, SWS, tr2, bmods=""):
        self.__dict__.update(locals())
        self.SLOT = 4 * NT * 1024
        self.sname = {"gu": "gateup", "dn": "down", "fi": "final"}[pfx[:2]]
        self.s_m = 60
        self.per = NT + 4

    def dma_ops(self, stage):
        slot = stage % 3
        s_g0, s_g1, gstep = self.goff
        out = []
        for t in range(self.NT):
            sr, grp, tt = self.srd_of_tile(t)
            out.append([f"s_add_u32 m0, s{self.s_m}, {slot*self.SLOT + t*1024}",
                        f"s_add_u32 s61, s{s_g0 if grp == 0 else s_g1}, {stage*gstep + tt*64}",
                        f"buffer_load_dwordx4 v{self.vWo}, s[{sr}:{sr+3}], s61 offen lds"])
        return out

    def b_ops(self, stage):
        slot = stage % 3
        bl = []
        for j in range(4):
            g = []
            if j == 0:
                g.append(f"s_add_u32 s62, s{self.s_bp}, {stage*4096}")
            g.append(f"buffer_load_dwordx4 {vr(R_B+slot*16+j*4,4)}, v{self.vB}, s[{self.SWS}:{self.SWS+3}], s62 offen offset:{j*1024}{self.bmods}")
            bl.append(g)
        return bl

    def vm_ops(self, stage):
        out, bl, res = self.dma_ops(stage), self.b_ops(stage), []
        while out or bl:
            if out:
                res.append(out.pop(0))
            if bl and len(res) > 1:
                res.append(bl.pop(0))
        return res

    def emit(self, groups):
        for g in groups:
            for x in g:
                self.a(x)

    def reads(self, stage, j):
        buf = (stage * 4 + j) & 1
        slot = stage % 3
        base = (slot & 1) * self.SLOT + j * self.NT * 1024
        va = self.vTr + (slot >> 1)
        out = []
        for t in range(self.NT):
            r = R_A + buf * 24 + t * 4
            out.append(f"ds_read_b64_tr_b16 {vr(r,2)}, v{va} offset:{base + t*1024}")
            out.append(f"ds_read_b64_tr_b16 {vr(r+2,2)}, v{va} offset:{base + t*1024 + self.tr2}")
        return out

    def mf(self, stage, j, t):
        buf = (stage * 4 + j) & 1
        first = stage == 0 and j == 0
        mfma32(self.a, R_ACC + 16 * t, R_A + buf * 24 + t * 4, R_B + (stage % 3) * 16 + j * 4, "0" if first else None)

    def setup(self):
        a = self.a
        a(f"s_mul_i32 s{self.s_m}, s{self.s_w}, {self.NT*1024}")
        a(f"v_add_u32 v{self.vTr+1}, {2*self.SLOT}, v{self.vTr}")

    def main(self, first_wait, extra_vm=None):
        a, NT, NS = self.a, self.NT, self.NS
        extra_vm = extra_vm or {}
        order = [0] * self.per + [1] * self.per
        stamp(a, self.sname)
        a(f"s_waitcnt vmcnt({first_wait})")
        a("s_barrier")
        stamp(a, self.sname)
        for x in self.reads(0, 0):
            a(x)
        for i in range(NS):
            if i in (1, 2, 4):
                stamp(a, self.sname)
            ops = self.vm_ops(i + 2) if i + 2 < NS else []
            order += [i + 2] * len(ops)
            ops = ops + extra_vm.get(i, [])
            order += [-1] * len(extra_vm.get(i, []))
            nslots = 3 * NT
            place = {}
            for k, g in enumerate(ops):
                place.setdefault((k * nslots) // len(ops), []).append(g)
            for j in range(3):
                rd = self.reads(i, j + 1)
                for t in range(NT):
                    a(f"s_waitcnt lgkmcnt({2*(NT-1)})")
                    self.mf(i, j, t)
                    a(rd[2 * t])
                    a(rd[2 * t + 1])
                    if j * NT + t in place:
                        self.emit(place[j * NT + t])
            last = i + 1 == NS
            H = NT if last else (NT + 1) // 2
            for t in range(H):
                a(f"s_waitcnt lgkmcnt({2*(NT-1-t)})")
                self.mf(i, 3, t)
            if not last:
                lastidx = max(k for k, o in enumerate(order) if o == i + 1)
                a(f"s_waitcnt vmcnt({len(order) - 1 - lastidx}) lgkmcnt(0)")
                a("s_barrier")
                rd = self.reads(i + 1, 0)
                n = NT - H
                for k, t in enumerate(range(H, NT)):
                    self.mf(i, 3, t)
                    for x in rd[(k * len(rd)) // n:((k + 1) * len(rd)) // n]:
                        a(x)


def typer_rolled(R, extra_vm=None):
    a, NT = R.a, R.NT
    assert R.NS == 10
    s_g0, s_g1, gstep = R.goff
    extra_vm = extra_vm or []
    a(f"s_waitcnt vmcnt({R.per})")
    a("s_barrier")
    stamp(a, R.sname)
    for x in R.reads(0, 0):
        a(x)
    a("s_mov_b32 s59, 3")
    a.label(f"{R.pfx}_rl")
    nx = len(extra_vm)

    def stage(i, ops, xtra, wait_n, last=False):
        ops = xtra + ops
        nslots = 3 * NT
        place = {}
        for k, g in enumerate(ops):
            place.setdefault((k * nslots) // len(ops), []).append(g)
        for j in range(3):
            rd = R.reads(i, j + 1)
            for t in range(NT):
                a(f"s_waitcnt lgkmcnt({2*(NT-1)})")
                R.mf(i + 3, j, t)
                a(rd[2 * t])
                a(rd[2 * t + 1])
                if j * NT + t in place:
                    R.emit(place[j * NT + t])
        H = NT if last else (NT + 1) // 2
        for t in range(H):
            a(f"s_waitcnt lgkmcnt({2*(NT-1-t)})")
            R.mf(i + 3, 3, t)
        if not last:
            a(f"s_waitcnt vmcnt({wait_n}) lgkmcnt(0)")
            a("s_barrier")
            rd = R.reads(i + 1, 0)
            n = NT - H
            for k, t in enumerate(range(H, NT)):
                R.mf(i + 3, 3, t)
                for x in rd[(k * len(rd)) // n:((k + 1) * len(rd)) // n]:
                    a(x)
    stage(0, R.vm_ops(2), extra_vm, R.per + nx)
    stage(1, R.vm_ops(3), [], R.per)
    stage(2, R.vm_ops(4), [], R.per)
    a(f"s_add_u32 s{s_g0}, s{s_g0}, {3*gstep}")
    if s_g1 != s_g0:
        a(f"s_add_u32 s{s_g1}, s{s_g1}, {3*gstep}")
    a(f"s_add_u32 s{R.s_bp}, s{R.s_bp}, {3*4096}")
    a("s_sub_u32 s59, s59, 1")
    a("s_cmp_lg_u32 s59, 0")
    a(f"s_cbranch_scc1 {R.pfx}_rl")
    stage(0, [], [], 0, last=True)


def gen_gateup_body(a, pfx, s_wg, mid_hook=None, smods='', extra_vm=None):
    s_w, s_rb, s_cb = 32, 33, 34
    SW1, SW3, SWS = 16, 20, 28
    vLane, vN, vH, vWo, vB, vTr = 1, 2, 3, 4, 5, 6
    T = R_T
    a("s_load_dwordx4 s[4:7], s[0:1], 48")
    a("s_load_dwordx2 s[12:13], s[0:1], 88")
    lane_setup(a, T, vLane, vN, vH, s_w)
    a(f"s_and_b32 s3, s{s_wg}, 7")
    a(f"s_lshr_b32 s35, s{s_wg}, 3")
    a("s_and_b32 s36, s3, 1")
    a("s_lshl_b32 s36, s36, 3")
    a("s_and_b32 s37, s35, 7")
    a(f"s_add_u32 s{s_rb}, s36, s37")
    a("s_lshr_b32 s36, s3, 1")
    a("s_lshl_b32 s36, s36, 2")
    a("s_lshr_b32 s37, s35, 3")
    a(f"s_add_u32 s{s_cb}, s36, s37")
    a(f"v_lshrrev_b32 v{T}, 2, v{vLane}")
    a(f"v_mul_u32_u24 v{vWo}, 3072, v{T}")
    a(f"v_and_b32 v{T}, 3, v{vLane}")
    a(f"v_lshl_add_u32 v{vWo}, v{T}, 4, v{vWo}")
    tr_base(a, vTr, T, vLane, vH, 9)
    a(f"v_lshlrev_b32 v{vB}, 4, v{vLane}")
    a(f"s_mul_i32 s40, s{s_w}, {16*3072}")
    a(f"s_mul_i32 s41, s{s_cb}, 192")
    a("s_add_u32 s40, s40, s41")
    a(f"s_lshl_b32 s42, s{s_rb}, 2")
    a(f"s_add_u32 s42, s42, s{s_w}")
    a(f"s_mul_i32 s43, s42, {40*1024}")
    if XF:
        a(f"s_add_u32 s43, s43, {XF}")
    a("s_waitcnt lgkmcnt(0)")
    srd(a, SW1, 4, 1966080)
    srd(a, SW3, 6, 1966080)
    srd(a, SWS, 12, WS_END)
    R = TypeR(a, pfx, 6, 10, vTr, vWo, vB, s_w,
              lambda t: (SW1, 0, t) if t < 3 else (SW3, 0, t - 3), (40, 40, 64 * 3072), 43, SWS, 256)
    R.setup()
    R.emit(R.vm_ops(0) + R.vm_ops(1))
    if ROLL:
        zero_acc(a, R_ACC, 6, R_A)
        typer_rolled(R, extra_vm)
    else:
        R.main(R.per, extra_vm)
    if mid_hook:
        mid_hook()
    stamp(a, "gateup")
    a(f"s_mov_b32 s44, {hx(f2u(-math.log2(math.e)))}")
    a(f"s_mul_i32 s45, s42, {96*1024}")
    a(f"s_mul_i32 s46, s{s_cb}, {6*1024}")
    a("s_add_u32 s45, s45, s46")
    a(f"s_add_u32 s45, s45, {HF}")
    a(f"v_mov_b32 v{T}, s44")
    a(f"v_mov_b32 v{T+1}, s44")
    a(f"v_mov_b32 v{T+2}, 1.0")
    a(f"v_mov_b32 v{T+3}, 1.0")
    for t in range(3):
        g, u = R_ACC + 16 * t, R_ACC + 16 * (t + 3)
        E = R_A
        if mid_hook and t == int(os.environ.get("PSL", "9")):
            a("s_setprio 0")
        for e in range(0, 16, 2):
            a(f"v_pk_mul_f32 {vr(E+e,2)}, {vr(g+e,2)}, {vr(T,2)}")
        for e in range(16):
            a(f"v_exp_f32 v{E+e}, v{E+e}")
        for e in range(0, 16, 2):
            a(f"v_pk_add_f32 {vr(E+e,2)}, {vr(E+e,2)}, {vr(T+2,2)}")
        for e in range(16):
            a(f"v_rcp_f32 v{E+e}, v{E+e}")
        for e in range(0, 16, 2):
            a(f"v_pk_mul_f32 {vr(g+e,2)}, {vr(g+e,2)}, {vr(u+e,2)}")
        for e in range(0, 16, 2):
            a(f"v_pk_mul_f32 {vr(g+e,2)}, {vr(g+e,2)}, {vr(E+e,2)}")
        for j in range(8):
            a(f"v_cvt_pk_bf16_f32 v{u+j}, v{g+2*j}, v{g+2*j+1}")
        for hf in range(2):
            o = (2 * t + hf) * 1024
            if o < 4096:
                a(f"buffer_store_dwordx4 {vr(u+4*hf,4)}, v{vB}, s[{SWS}:{SWS+3}], s45 offen offset:{o}{smods}")
            else:
                a(f"s_add_u32 s46, s45, {o}")
                a(f"buffer_store_dwordx4 {vr(u+4*hf,4)}, v{vB}, s[{SWS}:{SWS+3}], s46 offen{smods}")


def gen_gateup():
    a = Asm()
    a.label("gateup_kernel")
    a("s_cmp_ge_u32 s2, 256")
    a("s_cbranch_scc1 gateup_end")
    stamp_begin(a, "gateup")
    gen_gateup_body(a, "gu", 2)
    stamp_end(a, "gateup", 28, 32, 240)
    a.label("gateup_end")
    a("s_endpgm")
    return a.finish(), ("gateup_kernel", 256, 256, 73728, 256 if STAMP else 216)


D_AF, D_BF, D_RES, D_XR, D_T = 112, 136, 184, 212, 224
RING = 18432


def tile64_setup(a, s_wg, s_rb, s_cb):
    a(f"s_and_b32 s3, s{s_wg}, 7")
    a("s_lshl_b32 s3, s3, 2")
    a(f"s_bfe_u32 s36, s{s_wg}, 0x20003")
    a(f"s_add_u32 s{s_rb}, s3, s36")
    a(f"s_lshr_b32 s{s_cb}, s{s_wg}, 5")


def gen_down_setup(a, s_wg, standalone, bmods=""):
    s_w = 32
    s_rb, s_cb = 63, 64
    SW, SWS, SX = 24, 28, 76
    vLane, vN, vH, vWo, vB, vTr, vXo = 1, 2, 3, 8, 5, 9, 10
    T = D_T
    a("s_load_dwordx2 s[8:9], s[0:1], 64")
    a("s_load_dwordx2 s[14:15], s[0:1], 0")
    if FUSE:
        a("s_load_dwordx2 s[84:85], s[0:1], 32")
        a("s_load_dwordx2 s[86:87], s[0:1], 72")
    if standalone:
        a("s_load_dwordx2 s[12:13], s[0:1], 88")
        lane_setup(a, T, vLane, vN, vH, s_w)
        a(f"v_lshlrev_b32 v{vB}, 4, v{vLane}")
    tile64_setup(a, s_wg, s_rb, s_cb)
    a(f"v_lshrrev_b32 v{T}, 2, v{vLane}")
    a(f"v_mul_u32_u24 v{vWo}, 1280, v{T}")
    a(f"v_and_b32 v{T}, 3, v{vLane}")
    a(f"v_lshl_add_u32 v{vWo}, v{T}, 4, v{vWo}")
    tr_base(a, vTr, T, vLane, vH, 8)
    a(f"s_mul_i32 s67, s{s_w}, {RING}")
    a(f"v_add_u32 v{vTr}, s67, v{vTr}")
    a(f"v_mul_u32_u24 v{vXo}, 1280, v{vN}")
    a(f"v_lshl_add_u32 v{vXo}, v{vH}, 3, v{vXo}")
    a(f"s_mul_i32 s66, s{s_w}, {384*1280}")
    a(f"s_mul_i32 s37, s{s_cb}, 192")
    a("s_add_u32 s66, s66, s37")
    a(f"s_mul_i32 s68, s{s_rb}, {2*96*1024}")
    a(f"s_mul_i32 s36, s{s_w}, {24*1024}")
    a("s_add_u32 s68, s68, s36")
    a(f"s_add_u32 s68, s68, {HF}")
    a(f"s_add_u32 s65, s68, {96*1024}")
    a(f"s_mul_i32 s70, s{s_rb}, {64*1280}")
    a("s_add_u32 s70, s70, s37")
    if FUSE == 2:
        a(f"s_and_b32 s36, s{s_w}, 1")
        a(f"s_mul_i32 s36, s36, {32*1280}")
        a("s_add_u32 s70, s70, s36")
        a(f"s_lshr_b32 s36, s{s_w}, 1")
        a("s_lshl_b32 s36, s36, 5")
        a("s_add_u32 s70, s70, s36")
    else:
        a(f"s_lshl_b32 s36, s{s_w}, 4")
        a("s_add_u32 s70, s70, s36")
        a(f"s_add_u32 s71, s70, {32*1280}")
    if FUSE:
        a(f"s_mul_i32 s88, s{s_w}, {160*1280}")
        a("s_add_u32 s88, s88, s37")
        a(f"s_mul_i32 s89, s{s_rb}, {2*40*1024}")
        a(f"s_mul_i32 s36, s{s_w}, {10*1024}")
        a("s_add_u32 s89, s89, s36")
        a(f"s_add_u32 s89, s89, {OF}")
        a(f"s_add_u32 s90, s89, {40*1024}")
    a("s_waitcnt lgkmcnt(0)")
    srd(a, SW, 8, 1966080)
    srd(a, SX, 14, 2621440)
    if standalone:
        srd(a, SWS, 12, WS_END)
    K = TypeK(a, 34 if FUSE == 1 else 24, 6, 6, R_ACC, D_AF, D_BF, vTr, 512, vWo, SW, 66, 16 * 1280, 67, vB, SWS, 68, 65, bmods)
    if FUSE:
        srd(a, 80, 84, 819200)
        srd(a, 84, 86, 2621440)
        K.phase2 = (24, 80, 88, 89, 90)
    return K


def gen_down_issue(a, K):
    SX, vXo = 76, 10
    for rt in range(2):
        for ct in range(3):
            if FUSE == 2:
                a(f"buffer_load_dwordx2 {vr(D_XR+(ct*2+rt)*2,2)}, v{vXo}, s[{SX}:{SX+3}], s70 offen offset:{ct*64+rt*16}")
            else:
                a(f"buffer_load_dwordx2 {vr(D_XR+(rt*3+ct)*2,2)}, v{vXo}, s[{SX}:{SX+3}], s{70+rt} offen offset:{ct*64}")
    order = [("x",)] * 6
    for s in range(6):
        K.emit(K.dma(s))
        order += [("d", s)] * 3
    return K, order


def gen_tail2(a, K):
    s_w, s_rb, s_cb, SWS, vB, vLane, vN, vH = 32, 63, 64, 28, 5, 1, 2, 3
    T, ACC, RES = D_T, R_ACC, D_RES
    vTr, vWo, vXo = 9, 8, 10
    AC2 = ACC
    OB = [ACC + 48 + 4 * k for k in range(12)] + [D_BF + 4 * k for k in range(8)]
    s_rt, s_gp = 45, 46
    a(f"s_and_b32 s{s_rt}, s{s_w}, 1")
    a(f"s_lshr_b32 s{s_gp}, s{s_w}, 1")

    def quads(tw):
        rt, gp = tw & 1, tw >> 1
        return [ACC + (rt * 3 + ct) * 16 + (2 * gp + e) * 4 for ct in range(3) for e in range(2)]
    a(f"s_setprio {os.environ.get('PT2', '2')}")
    for tw in range(4):
        a(f"s_cmp_eq_u32 s{s_w}, {tw}")
        a(f"s_cbranch_scc1 t2_w{tw}")
        a(f"s_sub_u32 s91, {tw+3}, s{s_w}")
        a("s_and_b32 s91, s91, 3")
        a("s_mul_i32 s91, s91, 6144")
        a("s_add_u32 s91, s91, s67")
        a(f"v_add_u32 v{T}, s91, v{vB}")
        for k, r in enumerate(quads(tw)):
            a(f"ds_write_b128 v{T}, {vr(r,4)} offset:{k*1024}")
        a.label(f"t2_w{tw}")
    for jj in range(3):
        a(f"s_add_u32 s91, s{s_w}, {jj+1}")
        a("s_and_b32 s91, s91, 3")
        a(f"s_mul_i32 s91, s91, {RING}")
        a(f"s_add_u32 s91, s91, {(2-jj)*6144}")
        a(f"v_add_u32 v{T+1+jj}, s91, v{vB}")
    for tw in range(4):
        a(f"s_cmp_lg_u32 s{s_w}, {tw}")
        a(f"s_cbranch_scc1 t2_o{tw}")
        for k, r in enumerate(quads(tw)):
            for e in range(4):
                a(f"v_mov_b32 v{RES+4*k+e}, v{r+e}")
        a.label(f"t2_o{tw}")
    a("s_waitcnt lgkmcnt(0)")
    a("s_barrier")
    for jj in range(3):
        for k in range(6):
            a(f"ds_read_b128 {vr(ACC+(jj*6+k)*4,4)}, v{T+1+jj} offset:{k*1024}")
    for jj in range(3):
        a(f"s_waitcnt lgkmcnt({(2-jj)*6})")
        for e in range(0, 24, 2):
            a(f"v_pk_add_f32 {vr(RES+e,2)}, {vr(RES+e,2)}, {vr(ACC+jj*24+e,2)}")
    a("s_mov_b32 s49, 0xffff0000")
    a("s_waitcnt vmcnt(0)")
    for k in range(6):
        xr = D_XR + 2 * k
        for e in range(2):
            a(f"v_lshlrev_b32 v{T}, 16, v{xr+e}")
            a(f"v_and_b32 v{T+1}, s49, v{xr+e}")
            a(f"v_pk_add_f32 {vr(RES+4*k+2*e,2)}, {vr(RES+4*k+2*e,2)}, {vr(T,2)}")
    for gp in range(2):
        a(f"s_cmp_lg_u32 s{s_gp}, {gp}")
        a(f"s_cbranch_scc1 t2_i{gp}")
        for ct in range(3):
            for e in range(8):
                a(f"v_mov_b32 v{AC2+16*ct+8*gp+e}, v{RES+8*ct+e}")
                a(f"v_mov_b32 v{AC2+16*ct+8*(1-gp)+e}, 0")
        a.label(f"t2_i{gp}")
    a("s_setprio 0")
    a("s_barrier")
    a(f"s_mul_i32 s47, s{s_gp}, {20*16*1280}")
    a(f"s_mul_i32 s48, s{s_rt}, {16*1280}")
    a("s_add_u32 s47, s47, s48")
    a(f"s_mul_i32 s48, s{s_cb}, 192")
    a("s_add_u32 s47, s47, s48")
    a(f"s_mul_i32 s48, s{s_gp}, {12*3072}")
    a(f"s_mul_i32 s50, s{s_rt}, 3072")
    a("s_add_u32 s50, s50, s48")

    def wdma(i):
        for ct in range(3):
            a(f"s_add_u32 m0, s50, {((2*i) % 12)*3072 + ct*1024}")
            a(f"s_add_u32 s91, s47, {2*i*16*1280 + ct*64}")
            a(f"buffer_load_dwordx4 v{vWo}, s[80:83], s91 offen lds")
    for i in range(6):
        wdma(i)
    a(f"v_lshrrev_b32 v{T+3}, 4, v{vLane}")
    a(f"v_mul_u32_u24 v{T+3}, {32*1280}, v{T+3}")
    a(f"v_and_b32 v{T+4}, 15, v{vLane}")
    a(f"v_mul_u32_u24 v{T+4}, 1280, v{T+4}")
    a(f"v_add_u32 v{T+3}, v{T+3}, v{T+4}")
    for q in range(3):
        a(f"s_add_u32 s91, s47, {12*16*1280 + q*64}")
        a(f"buffer_load_dword v{T+4}, v{T+3}, s[80:83], s91 offen")
    a(f"s_sub_u32 s91, s48, s67")
    a(f"v_add_u32 v{vTr}, s91, v{vTr}")
    a(f"s_lshl_b32 s89, s{s_rb}, 1")
    a(f"s_add_u32 s89, s89, s{s_rt}")
    a("s_mul_i32 s89, s89, 40")
    a(f"s_mul_i32 s91, s{s_gp}, 20")
    a("s_add_u32 s89, s89, s91")
    a("s_lshl_b32 s89, s89, 10")
    a(f"s_add_u32 s89, s89, {OF}")
    a(f"s_lshl_b32 s93, s{s_rb}, 8")
    a(f"s_add_u32 s93, s93, {CT + 4096}")
    a("s_waitcnt vmcnt(0)")
    a(f"s_cmp_lg_u32 s{s_w}, 0")
    a("s_cbranch_scc1 main_polled2")
    a(f"v_mov_b32 v{T}, 0")
    a("s_mov_b64 exec, 1")
    a.label("main_poll2")
    a(f"buffer_load_dword v{T+2}, v{T}, s[{SWS}:{SWS+3}], s93 offen sc1")
    a("s_waitcnt vmcnt(0)")
    a(f"v_readfirstlane_b32 s95, v{T+2}")
    a("s_cmp_ge_u32 s95, 8")
    a("s_cbranch_scc1 main_pdone2")
    a("s_sleep 4")
    a("s_branch main_poll2")
    a.label("main_pdone2")
    a("s_mov_b64 exec, -1")
    a.label("main_polled2")
    a("s_barrier")
    stamp(a, "mffn")
    order = []
    for k in range(20):
        if k % 4 == 0 and k:
            a("s_add_u32 s89, s89, 4096")
        a(f"buffer_load_dwordx4 {vr(OB[k],4)}, v{vB}, s[{SWS}:{SWS+3}], s89 offen offset:{(k%4)*1024} sc1")
        order.append(("b", k))

    def reads(sx):
        for ct in range(3):
            o = ((sx % 12) * 3 + ct) * 1024
            r = D_AF + (sx & 1) * 12 + ct * 4
            a(f"ds_read_b64_tr_b16 {vr(r,2)}, v{vTr} offset:{o}")
            a(f"ds_read_b64_tr_b16 {vr(r+2,2)}, v{vTr} offset:{o+512}")

    def wait(tag, extra=""):
        last = max(i for i, o in enumerate(order) if o == tag)
        a(f"s_waitcnt vmcnt({len(order) - 1 - last}){extra}")
    reads(0)
    for sx in range(20):
        if sx + 1 < 20:
            if sx + 1 in (12, 16):
                wait(("d", sx + 1))
                a("s_barrier")
            reads(sx + 1)
            wait(("b", sx), " lgkmcnt(6)")
        else:
            wait(("b", sx), " lgkmcnt(0)")
        for ct in range(3):
            mfma32(a, AC2 + 16 * ct, D_AF + (sx & 1) * 12 + ct * 4, OB[sx])
        if sx in (3, 7):
            a("s_barrier")
            for i in ((6, 7) if sx == 3 else (8, 9)):
                wdma(i)
                order += [("d", 12 if sx == 3 else 16)] * 3
    stamp(a, "mffn")
    a("s_setprio 2")
    a("s_barrier")
    a(f"v_add_u32 v{T}, s67, v{vB}")
    a(f"s_xor_b32 s91, s{s_w}, 2")
    a(f"s_mul_i32 s91, s91, {RING}")
    a(f"v_add_u32 v{T+1}, s91, v{vB}")
    for gp in range(2):
        a(f"s_cmp_lg_u32 s{s_gp}, {gp}")
        a(f"s_cbranch_scc1 t2_x{gp}")
        for ct in range(3):
            for e in range(2):
                a(f"ds_write_b128 v{T}, {vr(AC2+16*ct+8*(1-gp)+4*e,4)} offset:{(ct*2+e)*1024}")
        for ct in range(3):
            for e in range(8):
                a(f"v_mov_b32 v{RES+8*ct+e}, v{AC2+16*ct+8*gp+e}")
        a.label(f"t2_x{gp}")
    a("s_waitcnt lgkmcnt(0)")
    a("s_barrier")
    for k in range(6):
        a(f"ds_read_b128 {vr(ACC+4*k,4)}, v{T+1} offset:{k*1024}")
    a("s_waitcnt lgkmcnt(0)")
    for e in range(0, 24, 2):
        a(f"v_pk_add_f32 {vr(RES+e,2)}, {vr(RES+e,2)}, {vr(ACC+e,2)}")
    a(f"v_lshl_add_u32 v{T}, v{vH}, 3, v{vXo}")
    for ct in range(3):
        if ct == 2:
            a(f"s_cmp_eq_u32 s{s_cb}, 6")
            a("s_cbranch_scc1 dn_skip")
        r = RES + 8 * ct
        for q in range(4):
            a(f"v_cvt_pk_bf16_f32 v{r+q}, v{r+2*q}, v{r+2*q+1}")
        a(f"v_permlane32_swap_b32 v{r}, v{r+2}")
        a(f"v_permlane32_swap_b32 v{r+1}, v{r+3}")
        a(f"buffer_store_dwordx4 {vr(r,4)}, v{T}, s[84:87], s70 offen offset:{ct*64}")
    a.label("dn_skip")


def gen_down_rest(a, K, order):
    s_w, s_rb, s_cb, SWS, vB, vLane, vXo = 32, 63, 64, 28, 5, 1, 10
    T = D_T
    for s in range(6):
        K.emit(K.bl(s))
        order = order + [("b", s)] * 2
    order = K.main(order, 0, 24, 24)
    stamp(a, "mffn")
    stamp(a, "down")
    if FUSE == 2:
        gen_tail2(a, K)
        return
    if FUSE:
        a(f"v_mul_u32_u24 v{T+3}, 1280, v{vLane}")
        for q in range(3):
            a(f"s_add_u32 s91, s88, {6*16*1280 + q*64}")
            a(f"buffer_load_dword v{T+4}, v{T+3}, s[80:83], s91 offen")
        a(f"s_lshl_b32 s93, s{s_rb}, 8")
        a(f"s_add_u32 s93, s93, {CT + 4096}")
        a(f"s_cmp_lg_u32 s{s_w}, 0")
        a("s_cbranch_scc1 main_polled2")
        a(f"v_mov_b32 v{T}, 0")
        a("s_mov_b64 exec, 1")
        a.label("main_poll2")
        a(f"buffer_load_dword v{T+2}, v{T}, s[{SWS}:{SWS+3}], s93 offen sc1")
        a("s_waitcnt vmcnt(0)")
        a(f"v_readfirstlane_b32 s95, v{T+2}")
        a("s_cmp_ge_u32 s95, 8")
        a("s_cbranch_scc1 main_pdone2")
        a("s_sleep 4")
        a("s_branch main_poll2")
        a.label("main_pdone2")
        a("s_mov_b64 exec, -1")
        a.label("main_polled2")
        a("s_barrier")
        stamp(a, "mffn")
        order = order + [("x",)] * 3
        for s in range(24, 30):
            K.emit(K.bl(s))
            order = order + [("b", s)] * 2
        K.main(order, 24, 34)
        stamp(a, "mffn")
    a("s_setprio 2")
    reduce4(a, "dn", R_ACC, D_RES, R_ACC, vB, T, s_w, 67, 0, RING)
    a("s_mov_b32 s49, 0xffff0000")
    if not FUSE:
        a(f"s_mul_i32 s45, s{s_rb}, 40")
        a(f"s_mul_i32 s46, s{s_cb}, 3")
        a("s_add_u32 s45, s45, s46")
        a("s_lshl_b32 s45, s45, 11")
        a(f"s_lshr_b32 s46, s{s_w}, 1")
        a("s_lshl_b32 s46, s46, 10")
        a("s_add_u32 s45, s45, s46")
        a(f"s_and_b32 s46, s{s_w}, 1")
        a("s_lshl_b32 s46, s46, 3")
        a("s_add_u32 s45, s45, s46")
        a(f"s_add_u32 s45, s45, {YF}")
    for ct in range(3):
        if ct == 2:
            a(f"s_cmp_eq_u32 s{s_cb}, 6")
            a("s_cbranch_scc1 dn_skip")
        for rt in range(2):
            r = D_RES + (rt * 3 + ct) * 4
            xr = D_XR + (rt * 3 + ct) * 2
            for e in range(2):
                a(f"v_lshlrev_b32 v{T}, 16, v{xr+e}")
                a(f"v_and_b32 v{T+1}, s49, v{xr+e}")
                a(f"v_pk_add_f32 {vr(r+2*e,2)}, {vr(r+2*e,2)}, {vr(T,2)}")
            a(f"v_cvt_pk_bf16_f32 v{r}, v{r}, v{r+1}")
            a(f"v_cvt_pk_bf16_f32 v{r+1}, v{r+2}, v{r+3}")
            if FUSE:
                a(f"buffer_store_dwordx2 {vr(r,2)}, v{vXo}, s[84:87], s{70+rt} offen offset:{ct*64}")
            else:
                a(f"s_add_u32 s46, s45, {(rt*20+ct)*2048}")
                a(f"buffer_store_dwordx2 {vr(r,2)}, v{vB}, s[{SWS}:{SWS+3}], s46 offen{SM}")
    a.label("dn_skip")


def gen_down():
    a = Asm()
    a.label("down_kernel")
    a("s_cmp_ge_u32 s2, 224")
    a("s_cbranch_scc1 down_end")
    stamp_begin(a, "down")
    K, order = gen_down_issue(a, gen_down_setup(a, 2, True))
    stamp(a, "down")
    gen_down_rest(a, K, order)
    stamp_end(a, "down", 28, 32, 240)
    a.label("down_end")
    a("s_endpgm")
    return a.finish(), ("down_kernel", 224, 256, 73728, 256 if STAMP else 232)


def gen_main():
    a = Asm()
    a.label("main_kernel")
    a("s_cmp_ge_u32 s2, 512")
    a("s_cbranch_scc1 main_end")
    a("s_cmp_ge_u32 s2, 256")
    a("s_cbranch_scc1 main_ffn")
    if PRIO_ATTN:
        a(f"s_setprio {PRIO_ATTN}")
    stamp_begin(a, "mattn")
    gen_attn_body(a, "ma", 2, bool(FUSE))
    stamp_end(a, "mattn", 28, 32, 250)
    a("s_endpgm")
    a.label("main_ffn")
    if PRIO_FFN:
        a(f"s_setprio {PRIO_FFN}")
    a("s_sub_u32 s69, s2, 256")
    stamp_begin(a, "mffn")
    st = {}
    K0 = gen_down_setup(a, 69, True, " sc1")
    xvm = {}
    if PREFETCH and PF0 >= 0:
        a("s_lshr_b32 s96, s69, 3")
        a("s_lshl_b32 s96, s96, 2")
        a("s_add_u32 s96, s96, s32")
        a("s_lshl_b32 s96, s96, 14")
        a(f"v_lshlrev_b32 v11, 6, v1")
        for q in range(4):
            xvm[PF0 + q] = [[f"s_add_u32 s97, s96, {q*4096}",
                             f"buffer_load_dword v12, v11, s[24:27], s97 offen"]]
        if ROLL:
            xvm = [["buffer_load_dword v12, v11, s[24:27], s96 offen", "s_add_u32 s96, s96, 2752"],
                   ["buffer_load_dword v12, v11, s[24:27], s96 offen", "s_add_u32 s96, s96, 2752"]]

    def mid():
        stamp(a, "mffn")
        a("s_setprio 2")
    gen_gateup_body(a, "gu", 69, mid, " sc1", xvm)
    SD = 28
    a("s_setprio 0")
    a("s_lshl_b32 s92, s33, 8")
    a(f"s_add_u32 s92, s92, {CT}")
    a("s_lshr_b32 s93, s63, 1")
    a("s_lshl_b32 s93, s93, 8")
    a(f"s_add_u32 s93, s93, {CT}")
    a("s_waitcnt vmcnt(0)")
    a("s_barrier")
    stamp(a, "mffn")
    a(f"v_mov_b32 v{D_T}, 0")
    a(f"v_mov_b32 v{D_T+1}, 1")
    a("s_cmp_lg_u32 s32, 0")
    a("s_cbranch_scc1 main_nosig")
    a("s_mov_b64 exec, 1")
    a(f"buffer_atomic_add v{D_T+1}, v{D_T}, s[{SD}:{SD+3}], s92 offen sc1")
    a("s_mov_b64 exec, -1")
    a.label("main_nosig")
    a("s_cmp_ge_u32 s69, 224")
    a("s_cbranch_scc1 main_end")
    K, order = gen_down_issue(a, K0)
    a("s_cmp_lg_u32 s32, 0")
    a("s_cbranch_scc1 main_polled")
    a("s_mov_b64 exec, 1")
    a.label("main_poll")
    a(f"buffer_load_dword v{D_T+2}, v{D_T}, s[{SD}:{SD+3}], s93 offen sc1")
    a("s_waitcnt vmcnt(0)")
    a(f"v_readfirstlane_b32 s95, v{D_T+2}")
    a("s_cmp_ge_u32 s95, 16")
    a("s_cbranch_scc1 main_pdone")
    a(f"s_sleep {os.environ.get('SLEEP', '8')}")
    a("s_branch main_poll")
    a.label("main_pdone")
    a("s_mov_b64 exec, -1")
    a.label("main_polled")
    a("s_barrier")
    stamp(a, "mffn")
    a(f"s_setprio {PRIO_DN}")
    gen_down_rest(a, K, order)
    stamp_end(a, "mffn", 28, 32, 240, 69)
    a.label("main_end")
    a("s_endpgm")
    return a.finish(), ("main_kernel", 512, 256, 73728, 256 if STAMP else 248)


PREFETCH = int(os.environ.get("PREFETCH", "1"))
PF0 = int(os.environ.get("PF0", "6"))
CODEPF = 0
ORDER = []
ROLL = int(os.environ.get("ROLL", "0"))
ORDER2 = int(os.environ.get("ORDER2", "1"))
PRIO_DN = int(os.environ.get("PRIO_DN", "0"))
SM = os.environ.get("SM", "")
SM = (" " + SM) if SM else ""
FUSE = int(os.environ.get("FUSE", "2"))
PRIO_ATTN = int(os.environ.get("PRIO_ATTN", "0"))
PRIO_FFN = int(os.environ.get("PRIO_FFN", "0"))


def gen_final():
    a = Asm()
    a.label("final_kernel")
    s_w, s_rb, s_cb = 32, 33, 34
    SW, SO, SWS = 20, 24, 28
    vLane, vN, vH, vWo, vB, vTr, vXo = 1, 2, 3, 4, 5, 6, 8
    T = R_T
    YR = R_ACC + 32
    a("s_cmp_ge_u32 s2, 160")
    a("s_cbranch_scc1 final_end")
    stamp_begin(a, "final")
    a("s_load_dwordx2 s[6:7], s[0:1], 32")
    a("s_load_dwordx2 s[8:9], s[0:1], 72")
    a("s_load_dwordx2 s[12:13], s[0:1], 88")
    lane_setup(a, T, vLane, vN, vH, s_w)
    a("s_and_b32 s3, s2, 7")
    a("s_lshl_b32 s3, s3, 1")
    a("s_bfe_u32 s36, s2, 0x10003")
    a(f"s_add_u32 s{s_rb}, s3, s36")
    a(f"s_lshr_b32 s{s_cb}, s2, 4")
    a(f"v_lshlrev_b32 v{vB}, 4, v{vLane}")
    a(f"v_lshrrev_b32 v{T}, 2, v{vLane}")
    a(f"v_mul_u32_u24 v{vWo}, 1280, v{T}")
    a(f"v_and_b32 v{T}, 3, v{vLane}")
    a(f"v_lshl_add_u32 v{vWo}, v{T}, 4, v{vWo}")
    a(f"v_mul_u32_u24 v{vXo}, 1280, v{vN}")
    a(f"v_lshl_add_u32 v{vXo}, v{vH}, 4, v{vXo}")
    tr_base(a, vTr, T, vLane, vH, 9)
    a(f"s_mul_i32 s40, s{s_w}, {16*1280}")
    a(f"s_lshl_b32 s41, s{s_cb}, 7")
    a("s_add_u32 s40, s40, s41")
    a(f"s_lshl_b32 s42, s{s_rb}, 2")
    a(f"s_add_u32 s42, s42, s{s_w}")
    a(f"s_mul_i32 s43, s42, {40*1024}")
    a(f"s_add_u32 s43, s43, {OF}")
    a("s_mul_i32 s45, s42, 20")
    a(f"s_lshl_b32 s46, s{s_cb}, 1")
    a("s_add_u32 s45, s45, s46")
    a("s_lshl_b32 s45, s45, 11")
    a(f"s_add_u32 s45, s45, {YF}")
    a(f"s_mul_i32 s47, s42, {32*1280}")
    a("s_add_u32 s47, s47, s41")
    a("s_waitcnt lgkmcnt(0)")
    srd(a, SW, 6, 819200)
    srd(a, SO, 8, 2621440)
    srd(a, SWS, 12, WS_END)
    R = TypeR(a, "fi", 2, 10, vTr, vWo, vB, s_w, lambda t: (SW, 0, t), (40, 40, 64 * 1280), 43, SWS, 256)
    R.setup()
    R.emit(R.vm_ops(0) + R.vm_ops(1))
    yl = [[f"buffer_load_dwordx4 {vr(YR+4*q,4)}, v{vB}, s[{SWS}:{SWS+3}], s45 offen offset:{q*1024}"] for q in range(4)]
    R.main(R.per, {4: yl})
    stamp(a, "final")
    a("s_mov_b32 s49, 0xffff0000")
    a("s_waitcnt vmcnt(0)")
    for t in range(2):
        r = R_ACC + 16 * t
        for q in range(8):
            a(f"v_lshlrev_b32 v{T+2*(q&1)}, 16, v{YR+8*t+q}")
            a(f"v_and_b32 v{T+2*(q&1)+1}, s49, v{YR+8*t+q}")
            a(f"v_pk_add_f32 {vr(r+2*q,2)}, {vr(r+2*q,2)}, {vr(T+2*(q&1),2)}")
        for q in range(8):
            a(f"v_cvt_pk_bf16_f32 v{r+q}, v{r+2*q}, v{r+2*q+1}")
        for gp in range(2):
            b = r + 4 * gp
            a(f"v_permlane32_swap_b32 v{b}, v{b+2}")
            a(f"v_permlane32_swap_b32 v{b+1}, v{b+3}")
            a(f"buffer_store_dwordx4 {vr(b,4)}, v{vXo}, s[{SO}:{SO+3}], s47 offen offset:{t*64 + gp*32}")
    stamp_end(a, "final", SWS, s_w, 240)
    a.label("final_end")
    a("s_endpgm")
    return a.finish(), ("final_kernel", 160, 256, 24576, 256 if STAMP else 216)


def gen_empty():
    a = Asm()
    a.label("empty_kernel")
    a("s_endpgm")
    return a.finish(), ("empty_kernel", 256, 256, 65536, 256)


KERNELS = {"empty": gen_empty, "main": gen_main, "qkv": gen_qkv, "gateup": gen_gateup, "attn": gen_attn, "down": gen_down, "final": gen_final}
HEADER = open("parallel_sum__grouped_kv_mqa__glu_gated_swiglu__prompt.s.ref").read().split("; Override launch")[0] if False else ""


DEFAULT = ["qkv", "main"] if FUSE else ["qkv", "main", "final"]


def build(order):
    texts, launches = {}, []
    ORDER[:] = order
    for k in order:
        t, info = KERNELS[k]()
        texts[info[0]] = (t, info)
        launches.append(info)
    out = "; generated by dev/gen.py -- LN + MQA attention + SwiGLU block for gfx950\n"
    for name, grid, block, lds, vg in launches:
        out += f"; @launch kernel={name} grid=({grid},1,1) block=({block},1,1) lds={lds}\n"
    out += '.amdgcn_target "amdgcn-amd-amdhsa--gfx950"\n.text\n'
    for name, (t, info) in texts.items():
        out += kernel_header(name) + t
    out += "code_end:\n"
    out += '.section .rodata,"a"\n'
    for name, (t, info) in texts.items():
        out += kernel_desc(name, info[4])
    return out


if __name__ == "__main__":
    order = sys.argv[2].split(",") if len(sys.argv) > 2 else DEFAULT
    open(sys.argv[1], "w").write(build(order))
```

```python
import math
import struct
import sys

from asmlib import Asm

XF = 0x0
QF = 0x280000
KF = 0x500000
VF = KF + 1280
KVS = 2624
KN = 0x52A000
CT = 0x52C000
OF = 0x530000
HF = 0x800000
FP = 0x1000000
YF = 0x1000000
WS_END = 0x2500000
TS = 0x2400000
import os
STAMP = os.environ.get("STAMP", "")


_stamp_n = {}


def stamp(a, name, vreg=255):
    if name in STAMP.split(","):
        i = _stamp_n.get(name, 0)
        _stamp_n[name] = i + 1
        a("s_memtime s[100:101]")
        a("s_waitcnt lgkmcnt(0)")
        a(f"v_writelane_b32 v{vreg}, s100, {i}")


def stamp_begin(a, name, vreg=255):
    if name in STAMP.split(","):
        a("s_memrealtime s[98:99]")
        a("s_waitcnt lgkmcnt(0)")
        a(f"v_writelane_b32 v{vreg}, s98, 14")
    stamp(a, name, vreg)


def stamp_end(a, name, sws, s_w, vtmp, s_wg=2, vreg=255):
    if name in STAMP.split(","):
        a("s_waitcnt vmcnt(0) lgkmcnt(0)")
        stamp(a, name, vreg)
        a("s_memrealtime s[98:99]")
        a("s_waitcnt lgkmcnt(0)")
        a(f"v_writelane_b32 v{vreg}, s98, 15")
        a(f"s_lshl_b32 s94, s{s_wg}, 2")
        a(f"s_add_u32 s94, s94, s{s_w}")
        a("s_lshl_b32 s94, s94, 6")
        a(f"s_add_u32 s94, s94, {TS + STAMP.split(',').index(name) * 0x20000}")
        a(f"v_and_b32 v{vtmp}, 63, v0")
        a(f"v_lshlrev_b32 v{vtmp}, 2, v{vtmp}")
        a("s_mov_b64 s[98:99], exec")
        a("s_mov_b64 exec, 0xffff")
        a(f"buffer_store_dword v{vreg}, v{vtmp}, s[{sws}:{sws+3}], s94 offen")
        a("s_mov_b64 exec, s[98:99]")


QSCALE = (20 ** -0.5) * math.log2(math.e)


def f2u(x):
    return struct.unpack("<I", struct.pack("<f", x))[0]


def hx(x):
    return "0x%x" % x


def srd(a, d, base, size):
    a(f"s_mov_b32 s{d}, s{base}")
    a(f"s_and_b32 s{d+1}, s{base+1}, 0xffff")
    a(f"s_mov_b32 s{d+2}, {hx(size)}")
    a(f"s_mov_b32 s{d+3}, 0x00020000")


def vr(b, n=1):
    return f"v{b}" if n == 1 else f"v[{b}:{b+n-1}]"


def mfma32(a, d, x, y, c=None):
    cs = vr(d, 16) if c is None else c
    a(f"v_mfma_f32_32x32x16_bf16 {vr(d,16)}, {vr(x,4)}, {vr(y,4)}, {cs}")


def kernel_header(name):
    return f""".globl {name}
.p2align 8
.type {name},@function
"""


def kernel_desc(name, vgprs, sgprs=102):
    acc = (vgprs + 3) // 4 * 4
    return f""".p2align 6
.amdhsa_kernel {name}
  .amdhsa_next_free_vgpr {vgprs}
  .amdhsa_next_free_sgpr {sgprs}
  .amdhsa_accum_offset {acc}
  .amdhsa_group_segment_fixed_size 0
  .amdhsa_kernarg_size 96
  .amdhsa_user_sgpr_count 2
  .amdhsa_user_sgpr_kernarg_segment_ptr 1
  .amdhsa_system_sgpr_workgroup_id_x 1
.end_amdhsa_kernel
"""


K_X = 16
K_ACC = 96
K_A = 192
K_T = 216
WAVE_LDS = 30720
LDS_STG = 8192


K_R = K_A


def typek_mfma_phase(a, vtr, zero=True, vm_after=None, extra=None):
    def reads(s, buf):
        for ct in range(3):
            o = (3 * s + ct) * 1024
            r = K_A + buf * 12 + ct * 4
            a(f"ds_read_b64_tr_b16 {vr(r,2)}, v{vtr} offset:{o}")
            a(f"ds_read_b64_tr_b16 {vr(r+2,2)}, v{vtr} offset:{o+256}")
    if vm_after:
        a(f"s_waitcnt vmcnt({vm_after(0)})")
    reads(0, 0)
    for s in range(10):
        if s + 1 < 10:
            if vm_after:
                a(f"s_waitcnt vmcnt({vm_after(s+1)})")
            reads(s + 1, (s + 1) & 1)
            a("s_waitcnt lgkmcnt(6)")
        else:
            a("s_waitcnt lgkmcnt(0)")
        ex = list(extra(s)) if extra else []
        n = len(ex)
        k = 0
        for ct in range(3):
            for rt in range(2):
                d = K_ACC + (rt * 3 + ct) * 16
                mfma32(a, d, K_A + (s & 1) * 12 + ct * 4, K_X + rt * 40 + s * 4, "0" if (s == 0 and zero) else None)
                k += 1
                for x in ex[((k - 1) * n) // 6:(k * n) // 6]:
                    a(x)


def reduce4(a, pfx, ACC, RES, TMP, vL16, vT, s_w, s_base, base0, stride, pre_barrier=None, post_reads=None):
    for g in range(4):
        a(f"s_cmp_eq_u32 s{s_w}, {g}")
        a(f"s_cbranch_scc1 {pfx}_rw{g}")
        a(f"s_sub_u32 s90, {g+3}, s{s_w}")
        a("s_and_b32 s90, s90, 3")
        a("s_mul_i32 s90, s90, 6144")
        a(f"s_add_u32 s90, s90, s{s_base}")
        a(f"v_add_u32 v{vT}, s90, v{vL16}")
        for t in range(6):
            a(f"ds_write_b128 v{vT}, {vr(ACC+t*16+g*4,4)} offset:{t*1024}")
        a.label(f"{pfx}_rw{g}")
    if pre_barrier:
        pre_barrier()
    for jj in range(3):
        a(f"s_add_u32 s90, s{s_w}, {jj+1}")
        a("s_and_b32 s90, s90, 3")
        a(f"s_mul_i32 s90, s90, {stride}")
        a(f"s_add_u32 s90, s90, {base0 + (2-jj)*6144}")
        a(f"v_add_u32 v{vT+1+jj}, s90, v{vL16}")
    for g in range(4):
        a(f"s_cmp_lg_u32 s{s_w}, {g}")
        a(f"s_cbranch_scc1 {pfx}_ro{g}")
        for t in range(6):
            for e in range(4):
                a(f"v_mov_b32 v{RES+t*4+e}, v{ACC+t*16+g*4+e}")
        a.label(f"{pfx}_ro{g}")
    a("s_waitcnt lgkmcnt(0)")
    a("s_barrier")
    for jj in range(3):
        for t in range(6):
            a(f"ds_read_b128 {vr(TMP+(jj*6+t)*4,4)}, v{vT+1+jj} offset:{t*1024}")
    n_extra = post_reads() if post_reads else 0
    for jj in range(3):
        a(f"s_waitcnt lgkmcnt({min(15, (2-jj)*6 + n_extra)})")
        for e in range(0, 24, 2):
            a(f"v_pk_add_f32 {vr(RES+e,2)}, {vr(RES+e,2)}, {vr(TMP+jj*24+e,2)}")


class TypeK:
    def __init__(self, a, KS, RD, RB, ACC, AF, BF, vTr, tr2, vWo, SW, s_g, gstep, s_ring, vB, SB, s_b0, s_b1, bmods=""):
        self.__dict__.update(locals())

    phase2 = None

    def dma(self, s):
        SW, s_g, s0 = self.SW, self.s_g, 0
        if self.phase2 and s >= self.phase2[0]:
            s0, SW, s_g = self.phase2[:3]
        out = []
        for ct in range(3):
            out.append([f"s_add_u32 m0, s{self.s_ring}, {((s % self.RD)*3+ct)*1024}",
                        f"s_add_u32 s91, s{s_g}, {(s-s0)*self.gstep + ct*64}",
                        f"buffer_load_dwordx4 v{self.vWo}, s[{SW}:{SW+3}], s91 offen lds"])
        return out

    def bl(self, s):
        b0, b1, s0 = self.s_b0, self.s_b1, 0
        if self.phase2 and s >= self.phase2[0]:
            s0, b0, b1 = self.phase2[0], self.phase2[3], self.phase2[4]
        out = []
        for rt in range(2):
            sb = b0 if rt == 0 else b1
            g = []
            if (s - s0) % 4 == 0 and s - s0:
                g.append(f"s_add_u32 s{sb}, s{sb}, 4096")
            g.append(f"buffer_load_dwordx4 {vr(self.BF+(s%self.RB)*8+rt*4,4)}, v{self.vB}, s[{self.SB}:{self.SB+3}], s{sb} offen offset:{((s-s0)%4)*1024}{self.bmods}")
            out.append(g)
        return out

    def emit(self, groups):
        for g in groups:
            for x in g:
                self.a(x)

    def reads(self, s):
        out = []
        for ct in range(3):
            o = ((s % self.RD) * 3 + ct) * 1024
            r = self.AF + (s & 1) * 12 + ct * 4
            out.append(f"ds_read_b64_tr_b16 {vr(r,2)}, v{self.vTr} offset:{o}")
            out.append(f"ds_read_b64_tr_b16 {vr(r+2,2)}, v{self.vTr} offset:{o+self.tr2}")
        return out

    def main(self, order, lo=0, hi=None, blimit=None):
        a, KS, RD, RB = self.a, self.KS, self.RD, self.RB
        hi = KS if hi is None else hi
        blimit = KS if blimit is None else blimit
        order = list(order)

        def wait_for(tags):
            last = max(i for i, o in enumerate(order) if o in tags)
            a(f"s_waitcnt vmcnt({min(63, len(order) - 1 - last)})")
        wait_for({("d", lo), ("b", lo)})
        for x in self.reads(lo):
            a(x)
        for s in range(lo, hi):
            if s + 1 < hi:
                wait_for({("d", s + 1), ("b", s + 1)})
                for x in self.reads(s + 1):
                    a(x)
                a("s_waitcnt lgkmcnt(6)")
            else:
                a("s_waitcnt lgkmcnt(0)")
            dm = self.dma(s + RD) if s + RD < KS else []
            k = 0
            for ct in range(3):
                for rt in range(2):
                    mfma32(a, self.ACC + (rt * 3 + ct) * 16, self.AF + (s & 1) * 12 + ct * 4,
                           self.BF + (s % RB) * 8 + rt * 4, "0" if s == 0 else None)
                    if k % 2 == 0 and dm:
                        self.emit([dm.pop(0)])
                        order.append(("d", s + RD))
                    k += 1
            if s + RB < blimit:
                self.emit(self.bl(s + RB))
                order += [("b", s + RB)] * 2
        return order


def lane_setup(a, T, vLane, vN, vH, s_w):
    a(f"v_and_b32 v{vLane}, 63, v0")
    a(f"v_lshrrev_b32 v{T}, 6, v0")
    a(f"v_readfirstlane_b32 s{s_w}, v{T}")
    a(f"v_and_b32 v{vN}, 31, v0")
    a(f"v_bfe_u32 v{vH}, v0, 5, 1")


def tr_base(a, vTr, T, vLane, vH, hshift):
    a(f"v_lshlrev_b32 v{vTr}, {hshift}, v{vH}")
    a(f"v_bfe_u32 v{T}, v{vLane}, 2, 2")
    a(f"v_lshl_add_u32 v{vTr}, v{T}, 6, v{vTr}")
    a(f"v_bfe_u32 v{T}, v{vLane}, 4, 1")
    a(f"v_lshl_add_u32 v{vTr}, v{T}, 5, v{vTr}")
    a(f"v_and_b32 v{T}, 3, v{vLane}")
    a(f"v_lshl_add_u32 v{vTr}, v{T}, 3, v{vTr}")


def gen_qkv():
    a = Asm()
    a.label("qkv_kernel")
    ST, MX = 0, 1024
    XI, SL = 8192, 21504
    WR = XI + 4 * SL
    s_w, s_rb, s_cb, s_tg = 32, 33, 34, 35
    SX, SW, SWS = 16, 20, 28
    vLane, vN, vH = 1, 2, 3
    vXg, vXr, vTr, vWo = 4, 5, 7, 8
    AC, AF, BF, ONE, T = 16, 64, 72, 88, 92
    a("s_cmp_ge_u32 s2, 256")
    a("s_cbranch_scc1 qkv_end")
    stamp_begin(a, "qkv")
    a("s_load_dwordx4 s[4:7], s[0:1], 0")
    a("s_load_dwordx4 s[8:11], s[0:1], 16")
    a("s_load_dwordx2 s[12:13], s[0:1], 88")
    a("s_load_dwordx4 s[56:59], s[0:1], 48")
    lane_setup(a, T, vLane, vN, vH, s_w)
    a("s_and_b32 s3, s2, 7")
    a("s_lshl_b32 s3, s3, 2")
    a("s_bfe_u32 s36, s2, 0x20003")
    a(f"s_add_u32 s{s_rb}, s3, s36")
    a(f"s_lshr_b32 s{s_cb}, s2, 5")
    a(f"v_mul_u32_u24 v{T}, 49, v{vLane}")
    a(f"v_lshrrev_b32 v{T}, 10, v{T}")
    a(f"v_mul_u32_u24 v{T+1}, 21, v{T}")
    a(f"v_sub_u32 v{T+1}, v{vLane}, v{T+1}")
    a(f"v_mul_u32_u24 v{vXg}, 1280, v{T}")
    a(f"v_lshl_add_u32 v{vXg}, v{T+1}, 4, v{vXg}")
    a(f"s_mul_i32 s37, s{s_w}, {SL}")
    a(f"s_add_u32 s37, s37, {XI}")
    a(f"s_mul_i32 s39, s{s_rb}, {64*1280}")
    a(f"s_mul_i32 s40, s{s_w}, 320")
    a("s_add_u32 s39, s39, s40")
    a("s_mov_b32 s52, -1")
    a("s_mov_b32 s53, 0x7fffffff")
    a("s_mov_b32 s41, 21")
    a("s_waitcnt lgkmcnt(0)")
    stamp(a, "qkv")
    srd(a, SX, 4, 2621440)
    a("s_mov_b64 exec, s[52:53]")
    a.label("qkv_xl")
    a("s_mov_b32 m0, s37")
    a("s_add_u32 s37, s37, 1008")
    a("s_sub_u32 s41, s41, 1")
    a(f"buffer_load_dwordx4 v{vXg}, s[{SX}:{SX+3}], s39 offen lds")
    a("s_add_u32 s39, s39, 3840")
    a("s_cmp_lg_u32 s41, 0")
    a("s_cbranch_scc1 qkv_xl")
    a("s_mov_b64 exec, 0x1fffff")
    a("s_mov_b32 m0, s37")
    a("s_nop 0")
    a(f"buffer_load_dwordx4 v{vXg}, s[{SX}:{SX+3}], s39 offen lds")
    a("s_mov_b64 exec, -1")
    srd(a, SWS, 12, WS_END)
    a(f"v_mul_u32_u24 v{vXr}, 336, v{vN}")
    a(f"v_lshl_add_u32 v{vXr}, v{vH}, 4, v{vXr}")
    a(f"v_add_u32 v{vXr}, {XI}, v{vXr}")
    a(f"s_cmp_eq_u32 s{s_w}, 3")
    a("s_cbranch_scc1 qkv_w3")
    a(f"s_mul_i32 s{s_tg}, s{s_cb}, 3")
    a(f"s_add_u32 s{s_tg}, s{s_tg}, s{s_w}")
    a(f"v_lshrrev_b32 v{T}, 2, v{vLane}")
    a(f"v_and_b32 v{T+1}, 3, v{vLane}")
    a(f"v_lshlrev_b32 v{T+1}, 4, v{T+1}")
    a(f"s_cmp_eq_u32 s{s_tg}, 21")
    a(f"s_cselect_b32 s{SW}, s10, s8")
    a(f"s_cselect_b32 s{SW+1}, s11, s9")
    a(f"s_cmp_lt_u32 s{s_tg}, 22")
    a(f"s_cselect_b32 s{SW+2}, 25600, 0")
    a(f"s_lshl_b32 s45, s{s_tg}, 6")
    a(f"s_cmp_lt_u32 s{s_tg}, 20")
    a(f"s_cselect_b32 s{SW}, s6, s{SW}")
    a(f"s_cselect_b32 s{SW+1}, s7, s{SW+1}")
    a(f"s_cselect_b32 s{SW+2}, 819200, s{SW+2}")
    a(f"s_mov_b32 s{SW+3}, 0x00020000")
    a("s_cselect_b32 s42, s45, 0")
    a("s_movk_i32 s38, 1280")
    a("s_cselect_b32 s38, s38, 40")
    a(f"s_and_b32 s{SW+1}, s{SW+1}, 0xffff")
    a(f"v_mad_u32_u24 v{vWo}, v{T}, s38, v{T+1}")
    a("s_lshl_b32 s43, s38, 4")
    a(f"s_mul_i32 s44, s{s_w}, 20480")
    a(f"s_add_u32 s44, s44, {WR}")
    a("s_mov_b32 s46, s44")
    LA = int(os.environ.get("QLA", "12"))
    a(f"s_mov_b32 s41, {LA}")
    a.label("qkv_wl")
    a("s_mov_b32 m0, s46")
    a("s_add_u32 s46, s46, 1024")
    a("s_sub_u32 s41, s41, 1")
    a(f"buffer_load_dwordx4 v{vWo}, s[{SW}:{SW+3}], s42 offen lds")
    a("s_add_u32 s42, s42, s43")
    a("s_cmp_lg_u32 s41, 0")
    a("s_cbranch_scc1 qkv_wl")
    tr_base(a, vTr, T, vLane, vH, 9)
    a(f"v_add_u32 v{vTr}, s44, v{vTr}")
    for e in range(4):
        a(f"v_mov_b32 v{ONE+e}, 0x3f803f80")
    for e in range(48):
        a(f"v_mov_b32 v{AC+e}, 0")
    stamp(a, "qkv")
    a(f"s_waitcnt vmcnt({LA})")
    stamp(a, "qkv")
    a("s_barrier")
    stamp(a, "qkv")

    def rd(s, nxt):
        b = s & 1
        xa = vXr + 1 if nxt else vXr
        ta = vTr + 2 if nxt else vTr
        p = 0 if nxt else s
        a(f"ds_read_b64_tr_b16 {vr(AF+4*b,2)}, v{ta} offset:{p*1024}")
        a(f"ds_read_b64_tr_b16 {vr(AF+4*b+2,2)}, v{ta} offset:{p*1024+256}")
        a(f"ds_read_b128 {vr(BF+8*b,4)}, v{xa} offset:{p*32}")
        a(f"ds_read_b128 {vr(BF+8*b+4,4)}, v{xa} offset:{p*32+10752}")
    a(f"s_waitcnt vmcnt({LA-1})")
    rd(0, False)
    a("s_mov_b32 s41, 4")
    a("s_mov_b32 s46, s44")
    a.label("qkv_loop")
    a(f"v_add_u32 v{vXr+1}, {SL}, v{vXr}")
    a("s_sub_u32 s47, s46, s44")
    a("s_xor_b32 s47, s47, 10240")
    a("s_sub_u32 s48, s44, s46")
    a("s_add_u32 s48, s48, s47")
    a(f"v_add_u32 v{vTr+2}, s48, v{vTr}")
    a("s_add_u32 s49, s44, s47")
    for sx in range(10):
        a(f"s_waitcnt vmcnt({LA-2})")
        rd(sx + 1, sx == 9)
        p = sx + LA
        if p < 10 or p >= 20:
            a(f"s_add_u32 m0, s46, {(p % 20)*1024}")
        else:
            a(f"s_add_u32 m0, s49, {(p-10)*1024}")
        a("s_waitcnt lgkmcnt(4)")
        b = sx & 1
        mfma32(a, AC, AF + 4 * b, BF + 8 * b)
        a(f"buffer_load_dwordx4 v{vWo}, s[{SW}:{SW+3}], s42 offen lds")
        a("s_add_u32 s42, s42, s43")
        mfma32(a, AC + 16, AF + 4 * b, BF + 8 * b + 4)
        mfma32(a, AC + 32, AF + 4 * b, ONE)
    a(f"v_mov_b32 v{vXr}, v{vXr+1}")
    a(f"v_mov_b32 v{vTr}, v{vTr+2}")
    a("s_add_u32 s46, s44, s47")
    a("s_sub_u32 s41, s41, 1")
    a("s_cmp_lg_u32 s41, 0")
    a("s_cbranch_scc1 qkv_loop")
    stamp(a, "qkv")
    a("s_waitcnt lgkmcnt(0)")
    a("s_barrier")
    a(f"s_cmp_ge_u32 s{s_tg}, 22")
    a("s_cbranch_scc1 qkv_fin" if STAMP else "s_cbranch_scc1 qkv_end")
    a(f"v_lshlrev_b32 v{T}, 3, v{vN}")
    a(f"ds_read_b64 {vr(T+2,2)}, v{T} offset:{ST}")
    a(f"ds_read_b64 {vr(T+4,2)}, v{T} offset:{ST+256}")
    a(f"s_mov_b32 s45, {hx(f2u(QSCALE))}")
    a(f"s_cmp_lt_u32 s{s_tg}, 20")
    a("s_cselect_b32 s45, s45, 1.0")
    a("s_waitcnt lgkmcnt(0)")
    for rt in range(2):
        a(f"v_mul_f32 v{T+3+2*rt}, s45, v{T+3+2*rt}")
    for rt in range(2):
        for e in range(16):
            r = AC + 16 * rt + e
            a(f"v_fma_f32 v{r}, -v{T+2+2*rt}, v{AC+32+e}, v{r}")
            a(f"v_mul_f32 v{r}, v{r}, v{T+3+2*rt}")
    stamp(a, "qkv")
    vC0, vHead, vD0, vOff, vA = T + 6, T + 7, T + 8, T + 9, T + 10

    def frag_off():
        a(f"v_lshrrev_b32 v{vA}, 3, v{vD0}")
        a(f"v_lshlrev_b32 v{vA}, 9, v{vA}")
        a(f"v_lshl_add_u32 v{vA}, v{vN}, 4, v{vA}")
        a(f"v_and_b32 v{vA+1}, 4, v{vD0}")
        a(f"v_lshl_add_u32 v{vA}, v{vA+1}, 1, v{vA}")
        a(f"v_lshlrev_b32 v{vA+1}, 3, v{vN}")
        a(f"v_add_u32 v{vA+1}, 1024, v{vA+1}")
        a(f"v_cmp_gt_u32 vcc, 16, v{vD0}")
        a(f"v_cndmask_b32 v{vA}, v{vA+1}, v{vA}, vcc")
        a(f"v_add_u32 v{vOff}, v{vOff}, v{vA}")
    a(f"s_cmp_ge_u32 s{s_tg}, 20")
    a("s_cbranch_scc1 qkv_kv")
    a("s_mov_b32 s46, 3277")
    a(f"s_lshl_b32 s38, s{s_tg}, 5")
    a(f"s_mul_i32 s48, s{s_rb}, {2*32*1280}")
    a(f"s_add_u32 s48, s48, {QF}")
    a(f"s_add_u32 s49, s48, {32*1280}")
    for g in range(4):
        a(f"v_lshlrev_b32 v{vC0}, 2, v{vH}")
        a(f"v_add_u32 v{vC0}, s38, v{vC0}")
        if g:
            a(f"v_add_u32 v{vC0}, {8*g}, v{vC0}")
        a(f"v_mul_u32_u24 v{vHead}, s46, v{vC0}")
        a(f"v_lshrrev_b32 v{vHead}, 16, v{vHead}")
        a(f"v_mul_u32_u24 v{vD0}, 20, v{vHead}")
        a(f"v_sub_u32 v{vD0}, v{vC0}, v{vD0}")
        a(f"v_mul_u32_u24 v{vOff}, 1280, v{vHead}")
        frag_off()
        for rt in range(2):
            r = AC + 16 * rt + 4 * g
            a(f"v_cvt_pk_bf16_f32 v{r}, v{r}, v{r+1}")
            a(f"v_cvt_pk_bf16_f32 v{r+1}, v{r+2}, v{r+3}")
            a(f"buffer_store_dwordx2 {vr(r,2)}, v{vOff}, s[{SWS}:{SWS+3}], s{48+rt} offen{SM}")
    a("s_branch qkv_fin")
    a.label("qkv_kv")
    a(f"v_cmp_eq_u32 s[54:55], 0, v{vH}")
    for rt in range(2):
        q = T + 12 + rt
        r = AC + 16 * rt
        a(f"v_mul_f32 v{q}, v{r+8}, v{r+8}")
        for e in range(9, 12):
            a(f"v_fmac_f32 v{q}, v{r+e}, v{r+e}")
        a(f"v_cndmask_b32 v{q}, 0, v{q}, s[54:55]")
        for e in range(8):
            a(f"v_fmac_f32 v{q}, v{r+e}, v{r+e}")
        a(f"v_mov_b32 v{q+2}, v{q}")
        a(f"v_permlane32_swap_b32 v{q}, v{q+2}")
        a(f"v_add_f32 v{q}, v{q}, v{q+2}")
        for g in range(3):
            a(f"v_cvt_pk_bf16_f32 v{r+4*g}, v{r+4*g}, v{r+4*g+1}")
            a(f"v_cvt_pk_bf16_f32 v{r+4*g+1}, v{r+4*g+2}, v{r+4*g+3}")
    a(f"v_max_u32 v{T+12}, v{T+12}, v{T+13}")
    a(f"v_mov_b32 v{T+13}, 0")
    a(f"ds_max_u32 v{T+13}, v{T+12} offset:{MX}")
    a(f"s_cmp_eq_u32 s{s_tg}, 21")
    a("s_cbranch_scc1 qkv_v")
    a(f"s_mul_i32 s48, s{s_rb}, {2*KVS}")
    a(f"s_add_u32 s48, s48, {KF}")
    a(f"s_add_u32 s49, s48, {KVS}")
    for g in range(3):
        a(f"v_lshlrev_b32 v{vD0}, 2, v{vH}")
        if g:
            a(f"v_add_u32 v{vD0}, {8*g}, v{vD0}")
        a(f"v_mov_b32 v{vOff}, 0")
        frag_off()
        if g == 2:
            a("s_mov_b64 exec, 0xffffffff")
        for rt in range(2):
            a(f"buffer_store_dwordx2 {vr(AC+16*rt+4*g,2)}, v{vOff}, s[{SWS}:{SWS+3}], s{48+rt} offen")
    a("s_mov_b64 exec, -1")
    a("s_branch qkv_kn")
    a.label("qkv_v")
    a(f"s_mul_i32 s48, s{s_rb}, {2*KVS}")
    a(f"s_add_u32 s48, s48, {VF}")
    a(f"s_add_u32 s49, s48, {KVS}")
    a(f"v_lshrrev_b32 v{vA}, 4, v{vN}")
    a(f"v_lshlrev_b32 v{vA}, 1, v{vA}")
    a(f"v_bfe_u32 v{vA+1}, v{vN}, 2, 1")
    a(f"v_add_u32 v{vA}, v{vA}, v{vA+1}")
    a(f"v_mul_u32_u24 v{vA}, 21, v{vA}")
    a(f"v_lshl_add_u32 v{vA}, v{vH}, 2, v{vA}")
    a(f"v_lshlrev_b32 v{vOff}, 4, v{vA}")
    a(f"v_and_b32 v{vA}, 3, v{vN}")
    a(f"v_lshl_add_u32 v{vOff}, v{vA}, 1, v{vOff}")
    a(f"v_bfe_u32 v{vA}, v{vN}, 3, 1")
    a(f"v_lshl_add_u32 v{vOff}, v{vA}, 3, v{vOff}")
    for g in range(3):
        if g == 2:
            a("s_mov_b64 exec, 0xffffffff")
        for rt in range(2):
            r = AC + 16 * rt + 4 * g
            o = g * 128
            a(f"buffer_store_short v{r}, v{vOff}, s[{SWS}:{SWS+3}], s{48+rt} offen offset:{o}")
            a(f"buffer_store_short_d16_hi v{r}, v{vOff}, s[{SWS}:{SWS+3}], s{48+rt} offen offset:{o+16}")
            a(f"buffer_store_short v{r+1}, v{vOff}, s[{SWS}:{SWS+3}], s{48+rt} offen offset:{o+32}")
            a(f"buffer_store_short_d16_hi v{r+1}, v{vOff}, s[{SWS}:{SWS+3}], s{48+rt} offen offset:{o+48}")
    a("s_add_u32 s48, s48, 320")
    a(f"v_and_b32 v{vA}, 3, v{vLane}")
    a(f"v_mul_u32_u24 v{vOff}, 336, v{vA}")
    a(f"v_lshrrev_b32 v{vA}, 2, v{vLane}")
    a(f"v_mul_u32_u24 v{vA}, {KVS}, v{vA}")
    a(f"v_add_u32 v{vOff}, v{vOff}, v{vA}")
    a("s_mov_b64 exec, 0xff")
    a(f"buffer_store_dwordx4 {vr(ONE,4)}, v{vOff}, s[{SWS}:{SWS+3}], s48 offen")
    a("s_mov_b64 exec, -1")
    a.label("qkv_kn")
    a("s_waitcnt lgkmcnt(0)")
    a(f"ds_read_b32 v{T+12}, v{T+13} offset:{MX}")
    a(f"s_sub_u32 s48, s{s_tg}, 20")
    a("s_lshl_b32 s48, s48, 5")
    a(f"s_add_u32 s48, s48, s{s_rb}")
    a("s_lshl_b32 s48, s48, 2")
    a(f"s_add_u32 s48, s48, {KN}")
    a("s_waitcnt lgkmcnt(0)")
    a(f"buffer_store_dword v{T+12}, v{T+13}, s[{SWS}:{SWS+3}], s48 offen")
    a.label("qkv_fin")
    stamp_end(a, "qkv", SWS, s_w, 120)
    a("s_endpgm")
    _stamp_n["qkv"] = 2
    a.label("qkv_w3")
    X = AC
    a(f"v_mul_u32_u24 v{vTr}, 336, v{vLane}")
    a(f"v_add_u32 v{vTr}, {XI}, v{vTr}")
    a(f"v_mov_b32 v{T+8}, 0x3f803f80")
    for e in range(4):
        a(f"v_mov_b32 v{T+4+e}, 0")
    a(f"ds_write_b32 v{T+4}, v{T+4} offset:{MX}")
    stamp(a, "qkv")
    a("s_waitcnt vmcnt(0) lgkmcnt(0)")
    stamp(a, "qkv")
    a("s_barrier")
    stamp(a, "qkv")
    if PREFETCH:
        srd(a, 60, 56, 1966080)
        srd(a, 64, 58, 1966080)
        a(f"v_mul_u32_u24 v{T+12}, 43, v{vLane}")
        a(f"v_lshrrev_b32 v{T+12}, 9, v{T+12}")
        a(f"v_mul_u32_u24 v{T+13}, 12, v{T+12}")
        a(f"v_sub_u32 v{T+13}, v{vLane}, v{T+13}")
        a(f"v_mul_u32_u24 v{T+12}, 3072, v{T+12}")
        a(f"v_lshl_add_u32 v{T+12}, v{T+13}, 6, v{T+12}")
        a("s_lshr_b32 s44, s2, 3")
        a(f"s_mul_i32 s44, s44, {20*3072}")
        a("s_bfe_u32 s38, s2, 0x20001")
        a("s_mul_i32 s38, s38, 768")
        a("s_add_u32 s44, s44, s38")
        a("s_mov_b32 s53, 0x0fffffff")
        a("s_mov_b64 exec, s[52:53]")
        for q in range(4):
            a(f"buffer_load_dword v{T+14}, v{T+12}, s[60:63], s44 offen")
            a(f"buffer_load_dword v{T+14}, v{T+12}, s[64:67], s44 offen")
            a(f"s_add_u32 s44, s44, {5*3072}")
        a("s_mov_b64 exec, -1")
    a("s_mov_b32 s41, 4")
    a.label("qkv_sl")
    for c in range(19):
        a(f"ds_read_b128 {vr(X+4*c,4)}, v{vTr} offset:{c*16}")
    a(f"ds_read_b128 {vr(T,4)}, v{vTr} offset:{19*16}")
    for c in range(20):
        a(f"s_waitcnt lgkmcnt({min(15, 19-c)})")
        for e in range(4):
            x = (X + 4 * c + e) if c < 19 else T + e
            b = T + 4 + (e & 1) * 2
            a(f"v_dot2_f32_bf16 v{b}, v{x}, v{T+8}, v{b}")
            a(f"v_dot2_f32_bf16 v{b+1}, v{x}, v{x}, v{b+1}")
    a(f"v_add_u32 v{vTr}, {SL}, v{vTr}")
    a("s_sub_u32 s41, s41, 1")
    a("s_cmp_lg_u32 s41, 0")
    a("s_cbranch_scc1 qkv_sl")
    a(f"s_mov_b32 s45, {hx(f2u(1.0/640))}")
    a(f"s_mov_b32 s46, {hx(f2u(1e-5))}")
    mu, sq, m_b, rr, t0 = T + 4, T + 5, T + 10, T + 11, T + 9
    a(f"v_pk_add_f32 {vr(mu,2)}, {vr(mu,2)}, {vr(mu+2,2)}")
    a(f"v_mul_f32 v{mu}, s45, v{mu}")
    a(f"v_mul_f32 v{sq}, s45, v{sq}")
    a(f"v_fma_f32 v{sq}, -v{mu}, v{mu}, v{sq}")
    a(f"v_max_f32 v{sq}, 0, v{sq}")
    a(f"v_cvt_pk_bf16_f32 v{m_b}, v{mu}, v{sq}")
    a(f"v_and_b32 v{t0}, 0xffff0000, v{m_b}")
    a(f"v_lshlrev_b32 v{m_b}, 16, v{m_b}")
    a(f"v_add_f32 v{t0}, s46, v{t0}")
    a(f"v_cvt_pk_bf16_f32 v{t0}, v{t0}, v{t0}")
    a(f"v_lshlrev_b32 v{t0}, 16, v{t0}")
    a(f"v_sqrt_f32 v{t0}, v{t0}")
    a(f"v_cvt_pk_bf16_f32 v{t0}, v{t0}, v{t0}")
    a(f"v_lshlrev_b32 v{t0}, 16, v{t0}")
    a(f"v_rcp_f32 v{rr}, v{t0}")
    a(f"v_lshlrev_b32 v{T}, 3, v{vLane}")
    a(f"ds_write_b64 v{T}, {vr(m_b,2)} offset:{ST}")
    a("s_waitcnt lgkmcnt(0)")
    stamp(a, "qkv")
    a("s_barrier")
    a(f"v_lshlrev_b32 v{T}, 3, v{vN}")
    a(f"ds_read_b64 {vr(T+2,2)}, v{T} offset:{ST}")
    a(f"ds_read_b64 {vr(T+4,2)}, v{T} offset:{ST+256}")
    for i in range(10):
        rt = i // 5
        a(f"s_add_u32 s41, s{s_cb}, {8*i - 40*rt}")
        a("s_mul_i32 s42, s41, 26")
        a("s_lshr_b32 s42, s42, 8")
        a(f"s_mul_i32 s43, s42, {SL - 320}")
        a("s_lshl_b32 s41, s41, 5")
        a("s_add_u32 s43, s43, s41")
        a(f"v_add_u32 v{T+6}, s43, v{vXr}")
        a(f"ds_read_b128 {vr(X+4*i,4)}, v{T+6} offset:{rt*10752}")
    a("s_waitcnt lgkmcnt(10)")
    PR = X + 40
    for rt in range(2):
        a(f"v_mov_b32 v{PR+4*rt}, v{T+3+2*rt}")
        a(f"v_mov_b32 v{PR+4*rt+1}, v{T+3+2*rt}")
        a(f"v_mul_f32_e64 v{PR+4*rt+2}, -v{T+2+2*rt}, v{T+3+2*rt}")
        a(f"v_mov_b32 v{PR+4*rt+3}, v{PR+4*rt+2}")
    a("s_mov_b32 s47, 0xffff0000")
    a(f"v_lshlrev_b32 v{T}, 4, v{vLane}")
    a(f"s_mul_i32 s39, s{s_rb}, 80")
    a(f"s_add_u32 s39, s39, s{s_cb}")
    a("s_lshl_b32 s39, s39, 10")
    if XF:
        a(f"s_add_u32 s39, s39, {XF}")
    for i in range(10):
        rt = i // 5
        a(f"s_waitcnt lgkmcnt({9-i})")
        for q in range(4):
            x = X + 4 * i + q
            u = X + 48 + q * 2
            a(f"v_lshlrev_b32 v{u}, 16, v{x}")
            a(f"v_and_b32 v{u+1}, s47, v{x}")
            a(f"v_pk_fma_f32 {vr(u,2)}, {vr(u,2)}, {vr(PR+4*rt,2)}, {vr(PR+4*rt+2,2)}")
            a(f"v_cvt_pk_bf16_f32 v{x}, v{u}, v{u+1}")
        a(f"buffer_store_dwordx4 {vr(X+4*i,4)}, v{T}, s[{SWS}:{SWS+3}], s39 offen{SM}")
        a("s_add_u32 s39, s39, 8192")
    a("s_cmp_lg_u32 s2, 255")
    a("s_cbranch_scc1 qkv_noct")
    a(f"v_lshlrev_b32 v{T+4}, 8, v{vLane}")
    a(f"v_mov_b32 v{T+5}, 0")
    a(f"s_mov_b32 s44, {CT}")
    a("s_mov_b32 s52, -1")
    a("s_mov_b32 s53, 0xffff")
    a("s_mov_b64 exec, s[52:53]")
    a(f"buffer_store_dword v{T+5}, v{T+4}, s[{SWS}:{SWS+3}], s44 offen")
    a("s_mov_b64 exec, -1")
    a.label("qkv_noct")
    stamp(a, "qkv")
    stamp_end(a, "qkv", SWS, s_w, 120)
    a.label("qkv_end")
    a("s_endpgm")
    return a.finish(), ("qkv_kernel", 256, 256, WR + 61440, 256 if STAMP else 128)


A_Q, A_O, A_S, A_P, A_K, A_V, A_M = 16, 48, 112, 144, 160, 192, 224
A_T = 228
NSET = 4
OOB = 0x80000000


def gen_attn_body(a, pfx, s_wg, fused=False):
    s_w, s_rt, s_kh, s_hd = 32, 33, 34, 35
    SWS = 28
    vLane, vN, vH = 1, 2, 3
    vK1, vK2, vV = 4, 5, 6
    T = A_T
    a("s_load_dwordx2 s[12:13], s[0:1], 88")
    a("s_load_dwordx2 s[14:15], s[0:1], 32")
    lane_setup(a, T, vLane, vN, vH, s_w)
    a(f"s_and_b32 s3, s{s_wg}, 7")
    a(f"s_lshr_b32 s36, s{s_wg}, 5")
    a("s_lshl_b32 s3, s3, 3")
    a(f"s_add_u32 s{s_rt}, s3, s36")
    a(f"s_bfe_u32 s3, s{s_wg}, 0x20003")
    a(f"s_and_b32 s{s_kh}, s{s_w}, 1")
    a(f"s_lshr_b32 s36, s{s_w}, 1")
    a("s_lshl_b32 s3, s3, 3")
    a("s_lshl_b32 s36, s36, 2")
    a(f"s_add_u32 s{s_hd}, s3, s36")
    a(f"v_lshlrev_b32 v{vK1}, 4, v{vLane}")
    a(f"v_lshlrev_b32 v{vK2}, 3, v{vN}")
    a(f"v_add_u32 v{vK2}, 1024, v{vK2}")
    a(f"v_mov_b32 v{T}, {hx(OOB)}")
    a(f"v_cmp_eq_u32 vcc, 0, v{vH}")
    a(f"v_cndmask_b32 v{vK2}, v{T}, v{vK2}, vcc")
    a(f"v_mul_u32_u24 v{vV}, 21, v{vH}")
    a(f"v_add_u32 v{vV}, v{vV}, v{vN}")
    a(f"v_lshlrev_b32 v{vV}, 4, v{vV}")
    a(f"v_cmp_gt_u32 vcc, 21, v{vN}")
    a(f"v_cndmask_b32 v{vV}, v{T}, v{vV}, vcc")
    a("s_waitcnt lgkmcnt(0)")
    srd(a, SWS, 12, WS_END)
    a(f"s_add_u32 s12, s12, {KN}")
    a("s_addc_u32 s13, s13, 0")
    a("s_load_dwordx16 s[64:79], s[12:13], 0")
    a("s_load_dwordx16 s[80:95], s[12:13], 64")
    a("s_load_dwordx16 s[44:59], s[12:13], 128")
    a(f"s_lshl_b32 s36, s{s_rt}, 5")
    a(f"s_add_u32 s36, s36, s{s_hd}")
    a("s_mul_i32 s36, s36, 1280")
    a(f"s_add_u32 s36, s36, {QF}")
    for i in range(4):
        a(f"buffer_load_dwordx4 {vr(A_Q+8*i,4)}, v{vK1}, s[{SWS}:{SWS+3}], s36 offen")
        a(f"buffer_load_dwordx2 {vr(A_Q+8*i+4,2)}, v{vK2}, s[{SWS}:{SWS+3}], s36 offen")
        if i < 3:
            a("s_add_u32 s36, s36, 1280")
    s_kp, s_vp = 37, 38
    a(f"s_mul_i32 s{s_kp}, s{s_kh}, {32*KVS}")
    a(f"s_add_u32 s{s_kp}, s{s_kp}, {KF}")
    a(f"s_add_u32 s{s_vp}, s{s_kp}, 1280")

    def loadK(st):
        a(f"buffer_load_dwordx4 {vr(A_K+8*st,4)}, v{vK1}, s[{SWS}:{SWS+3}], s{s_kp} offen")
        a(f"buffer_load_dwordx2 {vr(A_K+8*st+4,2)}, v{vK2}, s[{SWS}:{SWS+3}], s{s_kp} offen")
        a(f"s_add_u32 s{s_kp}, s{s_kp}, {KVS}")

    def loadV(st):
        a(f"buffer_load_dwordx4 {vr(A_V+8*st,4)}, v{vV}, s[{SWS}:{SWS+3}], s{s_vp} offen")
        a(f"buffer_load_dwordx4 {vr(A_V+8*st+4,4)}, v{vV}, s[{SWS}:{SWS+3}], s{s_vp} offen offset:672")
        a(f"s_add_u32 s{s_vp}, s{s_vp}, {KVS}")
    for st in range(NSET - 1):
        loadK(st)
        loadV(st)
    loadK(NSET - 1)
    for i in range(4):
        a(f"v_mov_b32 v{A_Q+8*i+6}, 0")
        a(f"v_mov_b32 v{A_Q+8*i+7}, 0")
    for st in range(NSET):
        a(f"v_mov_b32 v{A_K+8*st+6}, 0")
        a(f"v_mov_b32 v{A_K+8*st+7}, 0")
    for r in range(64):
        a(f"v_mov_b32 v{A_O+r}, 0")
    for r in range(16):
        a(f"v_mov_b32 v{A_P+r}, 0")
    for r in range(8):
        a(f"v_mov_b32 v{A_V+8*(NSET-1)+r}, 0")
    for r in range(4):
        a(f"v_mov_b32 v{A_M+r}, 0")
    a("s_waitcnt lgkmcnt(0)")
    for r in range(65, 96):
        a(f"s_max_u32 s64, s64, s{r}")
    for r in range(45, 60):
        a(f"s_max_u32 s44, s44, s{r}")
    a("s_load_dwordx16 s[80:95], s[12:13], 192")
    a("s_waitcnt lgkmcnt(0)")
    for r in range(80, 96):
        a(f"s_max_u32 s44, s44, s{r}")
    a(f"s_waitcnt vmcnt({4*NSET-2})")
    for i in range(4):
        a(f"v_mov_b32 v{T+i}, 0")
    for r in range(6):
        for i in range(4):
            a(f"v_dot2_f32_bf16 v{T+i}, v{A_Q+8*i+r}, v{A_Q+8*i+r}, v{T+i}")
    for i in range(4):
        a(f"v_mov_b32 v{T+4+i}, v{T+i}")
    for i in range(4):
        a(f"v_permlane32_swap_b32 v{T+i}, v{T+4+i}")
    for i in range(4):
        a(f"v_add_f32 v{T+i}, v{T+i}, v{T+4+i}")
    a(f"v_max3_f32 v{T}, v{T}, v{T+1}, v{T+2}")
    a(f"v_max_f32 v{T}, v{T}, v{T+3}")
    a(f"v_mul_f32 v{T}, s64, v{T}")
    a(f"v_mov_b32 v{T+1}, {hx(f2u(3600.0/1.05))}")
    a(f"v_cmp_nle_f32 vcc, v{T}, v{T+1}")
    a(f"s_cmp_gt_u32 s44, {hx(f2u(2.0**80))}")
    a(f"s_cbranch_scc1 {pfx}_slow")
    a(f"s_cbranch_vccnz {pfx}_slow")

    def qk(m, sb, ks, i):
        if m == 0:
            mfma32(a, A_S + 16 * sb, A_K + 8 * ks, A_Q + 8 * i, "0")
        else:
            mfma32(a, A_S + 16 * sb, A_K + 8 * ks + 4, A_Q + 8 * i + 4)

    def pv(m, pb, vs, i):
        mfma32(a, A_O + 16 * i, A_V + 8 * vs + 4 * m, A_P + 8 * pb + 4 * m)

    a(f"s_waitcnt vmcnt({4*NSET-4})")
    qk(0, 0, 0, 0)
    qk(1, 0, 0, 0)
    stamp(a, "attn")
    a(f"s_mov_b32 s39, {32//NSET}")
    a("s_nop 10")
    a.raw(".p2align 6")
    a.label(f"{pfx}_loop")
    for kk in range(NSET):
        for i in range(4):
            cur = i & 1
            S = A_S + 16 * cur
            P = A_P + 8 * cur
            nks, ni = (kk, i + 1) if i < 3 else ((kk + 1) % NSET, 0)
            pvs, pi = (kk, i - 1) if i > 0 else ((kk - 1) % NSET, 3)
            if i in (1, 3) and not os.environ.get("NOWAIT"):
                a(f"s_waitcnt vmcnt({4*NSET-6})")
            def ex(lo, hi):
                for e in range(lo, hi):
                    a(f"v_exp_f32 v{S+e}, v{S+e}")

            def cv(lo, hi):
                for jj in range(lo, hi):
                    a(f"v_cvt_pk_bf16_f32 v{P+jj}, v{S+2*jj}, v{S+2*jj+1}")
            if ORDER2:
                qk(0, cur ^ 1, nks, ni)
                ex(0, 5)
                qk(1, cur ^ 1, nks, ni)
                if i == 1:
                    loadV((kk - 1) % NSET)
                if i == 3:
                    loadK(kk)
                ex(5, 9)
                cv(0, 2)
                pv(0, cur ^ 1, pvs, pi)
                ex(9, 13)
                cv(2, 4)
                pv(1, cur ^ 1, pvs, pi)
                ex(13, 16)
                cv(4, 8)
            else:
                qk(0, cur ^ 1, nks, ni)
                ex(0, 4)
                qk(1, cur ^ 1, nks, ni)
                if i == 1:
                    loadV((kk - 1) % NSET)
                if i == 3:
                    loadK(kk)
                ex(4, 8)
                pv(0, cur ^ 1, pvs, pi)
                ex(8, 12)
                cv(0, 2)
                pv(1, cur ^ 1, pvs, pi)
                ex(12, 16)
                cv(2, 8)
    a("s_sub_u32 s39, s39, 1")
    a("s_cmp_lg_u32 s39, 0")
    a(f"s_cbranch_scc1 {pfx}_loop")
    pv(0, 1, NSET - 1, 3)
    pv(1, 1, NSET - 1, 3)
    stamp(a, "attn")
    a(f"s_branch {pfx}_epi")

    a.label(f"{pfx}_slow")
    for r in range(4):
        a(f"v_mov_b32 v{A_M+r}, {hx(f2u(-1e30))}")
    a("s_mov_b32 s39, 32")
    a(f"s_sub_u32 s{s_kp}, s{s_kp}, {KVS*(NSET-1)}")
    a(f"s_sub_u32 s{s_vp}, s{s_vp}, {KVS*(NSET-2)}")
    a.label(f"{pfx}_sloop")
    a("s_waitcnt vmcnt(0)")
    for i in range(4):
        S, P, M = A_S, A_P, A_M + i
        qk(0, 0, 0, i)
        qk(1, 0, 0, i)
        a(f"v_max3_f32 v{T}, v{S}, v{S+1}, v{S+2}")
        for e in range(3, 15, 2):
            a(f"v_max3_f32 v{T}, v{T}, v{S+e}, v{S+e+1}")
        a(f"v_max_f32 v{T}, v{T}, v{S+15}")
        a(f"v_mov_b32 v{T+1}, v{T}")
        a(f"v_permlane32_swap_b32 v{T}, v{T+1}")
        a(f"v_max3_f32 v{T}, v{T}, v{T+1}, v{M}")
        a(f"v_sub_f32 v{T+1}, v{M}, v{T}")
        a(f"v_exp_f32 v{T+1}, v{T+1}")
        a(f"v_mov_b32 v{M}, v{T}")
        for e in range(16):
            a(f"v_sub_f32 v{S+e}, v{S+e}, v{T}")
            a(f"v_exp_f32 v{S+e}, v{S+e}")
        for j in range(8):
            a(f"v_cvt_pk_bf16_f32 v{P+j}, v{S+2*j}, v{S+2*j+1}")
        for e in range(16):
            a(f"v_mul_f32 v{A_O+16*i+e}, v{A_O+16*i+e}, v{T+1}")
        pv(0, 0, 0, i)
        pv(1, 0, 0, i)
    loadK(0)
    loadV(0)
    a("s_sub_u32 s39, s39, 1")
    a("s_cmp_lg_u32 s39, 0")
    a(f"s_cbranch_scc1 {pfx}_sloop")

    a.label(f"{pfx}_epi")
    a("s_waitcnt vmcnt(0)")
    if PREFETCH and not fused:
        srd(a, 16, 14, 819200)
        a(f"s_lshr_b32 s40, s{s_wg}, 3")
        a("s_lshl_b32 s40, s40, 2")
        a(f"s_add_u32 s40, s40, s{s_w}")
        a("s_mul_i32 s40, s40, 6400")
        a(f"v_lshlrev_b32 v{T+14}, 6, v{vLane}")
        a(f"buffer_load_dword v{T+15}, v{T+14}, s[16:19], s40 offen")
        a("s_add_u32 s40, s40, 4096")
        a(f"buffer_load_dword v{T+15}, v{T+14}, s[16:19], s40 offen")
    vW, vR = T, T + 1
    a(f"s_mul_i32 s40, s{s_w}, 6656")
    a(f"s_xor_b32 s41, s{s_w}, 1")
    a("s_mul_i32 s41, s41, 6656")
    a(f"v_add_u32 v{vW}, s40, v{vK1}")
    a(f"v_add_u32 v{vR}, s41, v{vK1}")
    a(f"v_lshlrev_b32 v{T+2}, 2, v{vLane}")
    a(f"v_add_u32 v{T+3}, s41, v{T+2}")
    a(f"v_add_u32 v{T+2}, s40, v{T+2}")
    a(f"s_cmp_eq_u32 s{s_kh}, 0")
    a(f"s_cbranch_scc1 {pfx}_e0")
    for t in range(2):
        for q in range(3):
            a(f"ds_write_b128 v{vW}, {vr(A_O+16*t+4*q,4)} offset:{(t*3+q)*1024}")
        a(f"ds_write_b32 v{T+2}, v{A_M+t} offset:{6144+t*256}")
    a("s_waitcnt lgkmcnt(0)")
    for t in range(2):
        for e in range(12):
            a(f"v_mov_b32 v{A_O+16*t+e}, v{A_O+16*(t+2)+e}")
        a(f"v_mov_b32 v{A_M+t}, v{A_M+t+2}")
    a(f"s_add_u32 s{s_hd}, s{s_hd}, 2")
    a(f"s_branch {pfx}_e1")
    a.label(f"{pfx}_e0")
    for t in range(2):
        for q in range(3):
            a(f"ds_write_b128 v{vW}, {vr(A_O+16*(t+2)+4*q,4)} offset:{(t*3+q)*1024}")
        a(f"ds_write_b32 v{T+2}, v{A_M+t+2} offset:{6144+t*256}")
    a("s_waitcnt lgkmcnt(0)")
    a.label(f"{pfx}_e1")
    a("s_barrier")
    for t in range(2):
        for q in range(3):
            a(f"ds_read_b128 {vr(A_S+16*t+4*q,4)}, v{vR} offset:{(t*3+q)*1024}")
        a(f"ds_read_b32 v{A_M+2+t}, v{T+3} offset:{6144+t*256}")
    a("s_waitcnt lgkmcnt(0)")
    a(f"s_mul_i32 s40, s{s_rt}, {40*1024}")
    a(f"s_add_u32 s40, s40, {OF}")
    a(f"v_mov_b32 v{T+12}, {hx(OOB)}")
    a(f"v_cmp_eq_u32 s[42:43], 0, v{vH}")
    for t in range(2):
        O, Pz, Ma, Mp = A_O + 16 * t, A_S + 16 * t, A_M + t, A_M + 2 + t
        a(f"v_max_f32 v{T+4}, v{Ma}, v{Mp}")
        a(f"v_sub_f32 v{T+5}, v{Ma}, v{T+4}")
        a(f"v_sub_f32 v{T+6}, v{Mp}, v{T+4}")
        a(f"v_exp_f32 v{T+5}, v{T+5}")
        a(f"v_exp_f32 v{T+6}, v{T+6}")
        for e in range(12):
            a(f"v_mul_f32 v{O+e}, v{O+e}, v{T+5}")
            a(f"v_fmac_f32 v{O+e}, v{Pz+e}, v{T+6}")
        a(f"v_mov_b32 v{T+7}, v{O+8}")
        a(f"v_mov_b32 v{T+8}, v{O+8}")
        a(f"v_permlane32_swap_b32 v{T+7}, v{T+8}")
        a(f"v_rcp_f32 v{T+8}, v{T+8}")
        for e in range(12):
            a(f"v_mul_f32 v{O+e}, v{O+e}, v{T+8}")
        for q in range(3):
            a(f"v_cvt_pk_bf16_f32 v{O+4*q}, v{O+4*q}, v{O+4*q+1}")
            a(f"v_cvt_pk_bf16_f32 v{O+4*q+1}, v{O+4*q+2}, v{O+4*q+3}")
        a(f"s_add_u32 s41, s{s_hd}, {t}")
        a("s_mul_i32 s41, s41, 20")
        for q in range(3):
            k, off = T + 9, T + 10
            a(f"v_lshlrev_b32 v{k}, 2, v{vH}")
            a(f"v_add_u32 v{k}, s41, v{k}")
            if q:
                a(f"v_add_u32 v{k}, {8*q}, v{k}")
            if fused:
                a(f"v_lshrrev_b32 v{off}, 4, v{k}")
                a(f"v_lshlrev_b32 v{off}, 10, v{off}")
                a(f"v_lshl_add_u32 v{off}, v{vN}, 4, v{off}")
                a(f"v_and_b32 v{T+11}, 4, v{k}")
                a(f"v_lshl_add_u32 v{off}, v{T+11}, 7, v{off}")
                a(f"v_and_b32 v{k}, 8, v{k}")
                a(f"v_add_u32 v{off}, v{k}, v{off}")
            else:
                a(f"v_lshrrev_b32 v{off}, 3, v{k}")
                a(f"v_lshlrev_b32 v{off}, 9, v{off}")
                a(f"v_lshl_add_u32 v{off}, v{vN}, 4, v{off}")
                a(f"v_and_b32 v{k}, 4, v{k}")
                a(f"v_lshl_add_u32 v{off}, v{k}, 1, v{off}")
            if q == 2:
                a(f"v_cndmask_b32 v{off}, v{T+12}, v{off}, s[42:43]")
            a(f"buffer_store_dwordx2 {vr(O+4*q,2)}, v{off}, s[{SWS}:{SWS+3}], s40 offen{' sc1' if fused else SM}")
    if fused:
        a("s_waitcnt vmcnt(0)")
        a("s_barrier")
        a(f"s_cmp_lg_u32 s{s_w}, 0")
        a(f"s_cbranch_scc1 {pfx}_nosig")
        a(f"s_lshr_b32 s40, s{s_rt}, 1")
        a("s_lshl_b32 s40, s40, 8")
        a(f"s_add_u32 s40, s40, {CT + 4096}")
        a(f"v_mov_b32 v{T}, 0")
        a(f"v_mov_b32 v{T+1}, 1")
        a("s_mov_b64 exec, 1")
        a(f"buffer_atomic_add v{T+1}, v{T}, s[{SWS}:{SWS+3}], s40 offen sc1")
        a("s_mov_b64 exec, -1")
        a.label(f"{pfx}_nosig")


def gen_attn():
    a = Asm()
    a.label("attn_kernel")
    a("s_cmp_ge_u32 s2, 256")
    a("s_cbranch_scc1 attn_end")
    stamp_begin(a, "attn")
    gen_attn_body(a, "attn", 2)
    stamp_end(a, "attn", 28, 32, 250)
    a.label("attn_end")
    a("s_endpgm")
    return a.finish(), ("attn_kernel", 256, 256, 26624, 256 if STAMP else 248)


R_ACC, R_A, R_B, R_T = 16, 112, 160, 208


def zero_acc(a, acc, n, tmp):
    for e in range(4):
        a(f"v_mov_b32 v{tmp+e}, 0")
    for t in range(n):
        mfma32(a, acc + 16 * t, tmp, tmp, "0")


def typek_rolled(K, pfx):
    a, RD = K.a, K.RD
    assert K.RD == 6 and K.RB == 6 and K.KS % 6 == 0
    a("s_waitcnt vmcnt(10)")
    for x in K.reads(0):
        a(x)
    a(f"s_mov_b32 s59, {K.KS // 6}")
    a(f"s_add_u32 s{K.s_g}, s{K.s_g}, {6*K.gstep}")
    a.label(f"{pfx}_kl")
    for s in range(6):
        a(f"s_waitcnt vmcnt({min(22, 10 + 3*s)})")
        for x in K.reads(s + 1):
            a(x)
        a("s_waitcnt lgkmcnt(6)")
        k = 0
        for ct in range(3):
            for rt in range(2):
                mfma32(a, K.ACC + (rt * 3 + ct) * 16, K.AF + (s & 1) * 12 + ct * 4, K.BF + s * 8 + rt * 4)
                if k % 2 == 0:
                    c = k // 2
                    a(f"s_add_u32 m0, s{K.s_ring}, {(s*3+c)*1024}")
                    a(f"s_add_u32 s91, s{K.s_g}, {s*K.gstep + c*64}")
                    a(f"buffer_load_dwordx4 v{K.vWo}, s[{K.SW}:{K.SW+3}], s91 offen lds")
                k += 1
        for rt in range(2):
            sb = K.s_b0 if rt == 0 else K.s_b1
            a(f"s_add_u32 s91, s{sb}, {(s+6)*1024}")
            a(f"buffer_load_dwordx4 {vr(K.BF+s*8+rt*4,4)}, v{K.vB}, s[{K.SB}:{K.SB+3}], s91 offen{K.bmods}")
    a(f"s_add_u32 s{K.s_g}, s{K.s_g}, {6*K.gstep}")
    a(f"s_add_u32 s{K.s_b0}, s{K.s_b0}, 6144")
    a(f"s_add_u32 s{K.s_b1}, s{K.s_b1}, 6144")
    a("s_sub_u32 s59, s59, 1")
    a("s_cmp_lg_u32 s59, 0")
    a(f"s_cbranch_scc1 {pfx}_kl")
    a("s_waitcnt vmcnt(0) lgkmcnt(0)")


class TypeR:
    def __init__(self, a, pfx, NT, NS, vTr, vWo, vB, s_w, srd_of_tile, goff, s_bp, SWS, tr2, bmods=""):
        self.__dict__.update(locals())
        self.SLOT = 4 * NT * 1024
        self.sname = {"gu": "gateup", "dn": "down", "fi": "final"}[pfx[:2]]
        self.s_m = 60
        self.per = NT + 4

    def dma_ops(self, stage):
        slot = stage % 3
        s_g0, s_g1, gstep = self.goff
        out = []
        for t in range(self.NT):
            sr, grp, tt = self.srd_of_tile(t)
            out.append([f"s_add_u32 m0, s{self.s_m}, {slot*self.SLOT + t*1024}",
                        f"s_add_u32 s61, s{s_g0 if grp == 0 else s_g1}, {stage*gstep + tt*64}",
                        f"buffer_load_dwordx4 v{self.vWo}, s[{sr}:{sr+3}], s61 offen lds"])
        return out

    def b_ops(self, stage):
        slot = stage % 3
        bl = []
        for j in range(4):
            g = []
            if j == 0:
                g.append(f"s_add_u32 s62, s{self.s_bp}, {stage*4096}")
            g.append(f"buffer_load_dwordx4 {vr(R_B+slot*16+j*4,4)}, v{self.vB}, s[{self.SWS}:{self.SWS+3}], s62 offen offset:{j*1024}{self.bmods}")
            bl.append(g)
        return bl

    def vm_ops(self, stage):
        out, bl, res = self.dma_ops(stage), self.b_ops(stage), []
        while out or bl:
            if out:
                res.append(out.pop(0))
            if bl and len(res) > 1:
                res.append(bl.pop(0))
        return res

    def emit(self, groups):
        for g in groups:
            for x in g:
                self.a(x)

    def reads(self, stage, j):
        buf = (stage * 4 + j) & 1
        slot = stage % 3
        base = (slot & 1) * self.SLOT + j * self.NT * 1024
        va = self.vTr + (slot >> 1)
        out = []
        for t in range(self.NT):
            r = R_A + buf * 24 + t * 4
            out.append(f"ds_read_b64_tr_b16 {vr(r,2)}, v{va} offset:{base + t*1024}")
            out.append(f"ds_read_b64_tr_b16 {vr(r+2,2)}, v{va} offset:{base + t*1024 + self.tr2}")
        return out

    def mf(self, stage, j, t):
        buf = (stage * 4 + j) & 1
        first = stage == 0 and j == 0
        mfma32(self.a, R_ACC + 16 * t, R_A + buf * 24 + t * 4, R_B + (stage % 3) * 16 + j * 4, "0" if first else None)

    def setup(self):
        a = self.a
        a(f"s_mul_i32 s{self.s_m}, s{self.s_w}, {self.NT*1024}")
        a(f"v_add_u32 v{self.vTr+1}, {2*self.SLOT}, v{self.vTr}")

    def main(self, first_wait, extra_vm=None):
        a, NT, NS = self.a, self.NT, self.NS
        extra_vm = extra_vm or {}
        order = [0] * self.per + [1] * self.per
        stamp(a, self.sname)
        a(f"s_waitcnt vmcnt({first_wait})")
        a("s_barrier")
        stamp(a, self.sname)
        for x in self.reads(0, 0):
            a(x)
        for i in range(NS):
            if i in (1, 2, 4):
                stamp(a, self.sname)
            ops = self.vm_ops(i + 2) if i + 2 < NS else []
            order += [i + 2] * len(ops)
            ops = ops + extra_vm.get(i, [])
            order += [-1] * len(extra_vm.get(i, []))
            nslots = 3 * NT
            place = {}
            for k, g in enumerate(ops):
                place.setdefault((k * nslots) // len(ops), []).append(g)
            for j in range(3):
                rd = self.reads(i, j + 1)
                for t in range(NT):
                    a(f"s_waitcnt lgkmcnt({2*(NT-1)})")
                    self.mf(i, j, t)
                    a(rd[2 * t])
                    a(rd[2 * t + 1])
                    if j * NT + t in place:
                        self.emit(place[j * NT + t])
            last = i + 1 == NS
            H = NT if last else (NT + 1) // 2
            for t in range(H):
                a(f"s_waitcnt lgkmcnt({2*(NT-1-t)})")
                self.mf(i, 3, t)
            if not last:
                lastidx = max(k for k, o in enumerate(order) if o == i + 1)
                a(f"s_waitcnt vmcnt({len(order) - 1 - lastidx}) lgkmcnt(0)")
                a("s_barrier")
                rd = self.reads(i + 1, 0)
                n = NT - H
                for k, t in enumerate(range(H, NT)):
                    self.mf(i, 3, t)
                    for x in rd[(k * len(rd)) // n:((k + 1) * len(rd)) // n]:
                        a(x)


def typer_rolled(R, extra_vm=None):
    a, NT = R.a, R.NT
    assert R.NS == 10
    s_g0, s_g1, gstep = R.goff
    extra_vm = extra_vm or []
    a(f"s_waitcnt vmcnt({R.per})")
    a("s_barrier")
    stamp(a, R.sname)
    for x in R.reads(0, 0):
        a(x)
    a("s_mov_b32 s59, 3")
    a.label(f"{R.pfx}_rl")
    nx = len(extra_vm)

    def stage(i, ops, xtra, wait_n, last=False):
        ops = xtra + ops
        nslots = 3 * NT
        place = {}
        for k, g in enumerate(ops):
            place.setdefault((k * nslots) // len(ops), []).append(g)
        for j in range(3):
            rd = R.reads(i, j + 1)
            for t in range(NT):
                a(f"s_waitcnt lgkmcnt({2*(NT-1)})")
                R.mf(i + 3, j, t)
                a(rd[2 * t])
                a(rd[2 * t + 1])
                if j * NT + t in place:
                    R.emit(place[j * NT + t])
        H = NT if last else (NT + 1) // 2
        for t in range(H):
            a(f"s_waitcnt lgkmcnt({2*(NT-1-t)})")
            R.mf(i + 3, 3, t)
        if not last:
            a(f"s_waitcnt vmcnt({wait_n}) lgkmcnt(0)")
            a("s_barrier")
            rd = R.reads(i + 1, 0)
            n = NT - H
            for k, t in enumerate(range(H, NT)):
                R.mf(i + 3, 3, t)
                for x in rd[(k * len(rd)) // n:((k + 1) * len(rd)) // n]:
                    a(x)
    stage(0, R.vm_ops(2), extra_vm, R.per + nx)
    stage(1, R.vm_ops(3), [], R.per)
    stage(2, R.vm_ops(4), [], R.per)
    a(f"s_add_u32 s{s_g0}, s{s_g0}, {3*gstep}")
    if s_g1 != s_g0:
        a(f"s_add_u32 s{s_g1}, s{s_g1}, {3*gstep}")
    a(f"s_add_u32 s{R.s_bp}, s{R.s_bp}, {3*4096}")
    a("s_sub_u32 s59, s59, 1")
    a("s_cmp_lg_u32 s59, 0")
    a(f"s_cbranch_scc1 {R.pfx}_rl")
    stage(0, [], [], 0, last=True)


def gen_gateup_body(a, pfx, s_wg, mid_hook=None, smods='', extra_vm=None):
    s_w, s_rb, s_cb = 32, 33, 34
    SW1, SW3, SWS = 16, 20, 28
    vLane, vN, vH, vWo, vB, vTr = 1, 2, 3, 4, 5, 6
    T = R_T
    a("s_load_dwordx4 s[4:7], s[0:1], 48")
    a("s_load_dwordx2 s[12:13], s[0:1], 88")
    lane_setup(a, T, vLane, vN, vH, s_w)
    a(f"s_and_b32 s3, s{s_wg}, 7")
    a(f"s_lshr_b32 s35, s{s_wg}, 3")
    a("s_and_b32 s36, s3, 1")
    a("s_lshl_b32 s36, s36, 3")
    a("s_and_b32 s37, s35, 7")
    a(f"s_add_u32 s{s_rb}, s36, s37")
    a("s_lshr_b32 s36, s3, 1")
    a("s_lshl_b32 s36, s36, 2")
    a("s_lshr_b32 s37, s35, 3")
    a(f"s_add_u32 s{s_cb}, s36, s37")
    a(f"v_lshrrev_b32 v{T}, 2, v{vLane}")
    a(f"v_mul_u32_u24 v{vWo}, 3072, v{T}")
    a(f"v_and_b32 v{T}, 3, v{vLane}")
    a(f"v_lshl_add_u32 v{vWo}, v{T}, 4, v{vWo}")
    tr_base(a, vTr, T, vLane, vH, 9)
    a(f"v_lshlrev_b32 v{vB}, 4, v{vLane}")
    a(f"s_mul_i32 s40, s{s_w}, {16*3072}")
    a(f"s_mul_i32 s41, s{s_cb}, 192")
    a("s_add_u32 s40, s40, s41")
    a(f"s_lshl_b32 s42, s{s_rb}, 2")
    a(f"s_add_u32 s42, s42, s{s_w}")
    a(f"s_mul_i32 s43, s42, {40*1024}")
    if XF:
        a(f"s_add_u32 s43, s43, {XF}")
    a("s_waitcnt lgkmcnt(0)")
    srd(a, SW1, 4, 1966080)
    srd(a, SW3, 6, 1966080)
    srd(a, SWS, 12, WS_END)
    R = TypeR(a, pfx, 6, 10, vTr, vWo, vB, s_w,
              lambda t: (SW1, 0, t) if t < 3 else (SW3, 0, t - 3), (40, 40, 64 * 3072), 43, SWS, 256)
    R.setup()
    R.emit(R.vm_ops(0) + R.vm_ops(1))
    if ROLL:
        zero_acc(a, R_ACC, 6, R_A)
        typer_rolled(R, extra_vm)
    else:
        R.main(R.per, extra_vm)
    if mid_hook:
        mid_hook()
    stamp(a, "gateup")
    a(f"s_mov_b32 s44, {hx(f2u(-math.log2(math.e)))}")
    a(f"s_mul_i32 s45, s42, {96*1024}")
    a(f"s_mul_i32 s46, s{s_cb}, {6*1024}")
    a("s_add_u32 s45, s45, s46")
    a(f"s_add_u32 s45, s45, {HF}")
    a(f"v_mov_b32 v{T}, s44")
    a(f"v_mov_b32 v{T+1}, s44")
    a(f"v_mov_b32 v{T+2}, 1.0")
    a(f"v_mov_b32 v{T+3}, 1.0")
    for t in range(3):
        g, u = R_ACC + 16 * t, R_ACC + 16 * (t + 3)
        E = R_A
        if mid_hook and t == int(os.environ.get("PSL", "9")):
            a("s_setprio 0")
        for e in range(0, 16, 2):
            a(f"v_pk_mul_f32 {vr(E+e,2)}, {vr(g+e,2)}, {vr(T,2)}")
        for e in range(16):
            a(f"v_exp_f32 v{E+e}, v{E+e}")
        for e in range(0, 16, 2):
            a(f"v_pk_add_f32 {vr(E+e,2)}, {vr(E+e,2)}, {vr(T+2,2)}")
        for e in range(16):
            a(f"v_rcp_f32 v{E+e}, v{E+e}")
        for e in range(0, 16, 2):
            a(f"v_pk_mul_f32 {vr(g+e,2)}, {vr(g+e,2)}, {vr(u+e,2)}")
        for e in range(0, 16, 2):
            a(f"v_pk_mul_f32 {vr(g+e,2)}, {vr(g+e,2)}, {vr(E+e,2)}")
        for j in range(8):
            a(f"v_cvt_pk_bf16_f32 v{u+j}, v{g+2*j}, v{g+2*j+1}")
        for hf in range(2):
            o = (2 * t + hf) * 1024
            if o < 4096:
                a(f"buffer_store_dwordx4 {vr(u+4*hf,4)}, v{vB}, s[{SWS}:{SWS+3}], s45 offen offset:{o}{smods}")
            else:
                a(f"s_add_u32 s46, s45, {o}")
                a(f"buffer_store_dwordx4 {vr(u+4*hf,4)}, v{vB}, s[{SWS}:{SWS+3}], s46 offen{smods}")


def gen_gateup():
    a = Asm()
    a.label("gateup_kernel")
    a("s_cmp_ge_u32 s2, 256")
    a("s_cbranch_scc1 gateup_end")
    stamp_begin(a, "gateup")
    gen_gateup_body(a, "gu", 2)
    stamp_end(a, "gateup", 28, 32, 240)
    a.label("gateup_end")
    a("s_endpgm")
    return a.finish(), ("gateup_kernel", 256, 256, 73728, 256 if STAMP else 216)


D_AF, D_BF, D_RES, D_XR, D_T = 112, 136, 184, 212, 224
RING = 18432


def tile64_setup(a, s_wg, s_rb, s_cb):
    a(f"s_and_b32 s3, s{s_wg}, 7")
    a("s_lshl_b32 s3, s3, 2")
    a(f"s_bfe_u32 s36, s{s_wg}, 0x20003")
    a(f"s_add_u32 s{s_rb}, s3, s36")
    a(f"s_lshr_b32 s{s_cb}, s{s_wg}, 5")


def gen_down_setup(a, s_wg, standalone, bmods=""):
    s_w = 32
    s_rb, s_cb = 63, 64
    SW, SWS, SX = 24, 28, 76
    vLane, vN, vH, vWo, vB, vTr, vXo = 1, 2, 3, 8, 5, 9, 10
    T = D_T
    a("s_load_dwordx2 s[8:9], s[0:1], 64")
    a("s_load_dwordx2 s[14:15], s[0:1], 0")
    if FUSE:
        a("s_load_dwordx2 s[84:85], s[0:1], 32")
        a("s_load_dwordx2 s[86:87], s[0:1], 72")
    if standalone:
        a("s_load_dwordx2 s[12:13], s[0:1], 88")
        lane_setup(a, T, vLane, vN, vH, s_w)
        a(f"v_lshlrev_b32 v{vB}, 4, v{vLane}")
    tile64_setup(a, s_wg, s_rb, s_cb)
    a(f"v_lshrrev_b32 v{T}, 2, v{vLane}")
    a(f"v_mul_u32_u24 v{vWo}, 1280, v{T}")
    a(f"v_and_b32 v{T}, 3, v{vLane}")
    a(f"v_lshl_add_u32 v{vWo}, v{T}, 4, v{vWo}")
    tr_base(a, vTr, T, vLane, vH, 8)
    a(f"s_mul_i32 s67, s{s_w}, {RING}")
    a(f"v_add_u32 v{vTr}, s67, v{vTr}")
    a(f"v_mul_u32_u24 v{vXo}, 1280, v{vN}")
    a(f"v_lshl_add_u32 v{vXo}, v{vH}, 3, v{vXo}")
    a(f"s_mul_i32 s66, s{s_w}, {384*1280}")
    a(f"s_mul_i32 s37, s{s_cb}, 192")
    a("s_add_u32 s66, s66, s37")
    a(f"s_mul_i32 s68, s{s_rb}, {2*96*1024}")
    a(f"s_mul_i32 s36, s{s_w}, {24*1024}")
    a("s_add_u32 s68, s68, s36")
    a(f"s_add_u32 s68, s68, {HF}")
    a(f"s_add_u32 s65, s68, {96*1024}")
    a(f"s_mul_i32 s70, s{s_rb}, {64*1280}")
    a("s_add_u32 s70, s70, s37")
    if FUSE == 2:
        a(f"s_and_b32 s36, s{s_w}, 1")
        a(f"s_mul_i32 s36, s36, {32*1280}")
        a("s_add_u32 s70, s70, s36")
        a(f"s_lshr_b32 s36, s{s_w}, 1")
        a("s_lshl_b32 s36, s36, 5")
        a("s_add_u32 s70, s70, s36")
    else:
        a(f"s_lshl_b32 s36, s{s_w}, 4")
        a("s_add_u32 s70, s70, s36")
        a(f"s_add_u32 s71, s70, {32*1280}")
    if FUSE:
        a(f"s_mul_i32 s88, s{s_w}, {160*1280}")
        a("s_add_u32 s88, s88, s37")
        a(f"s_mul_i32 s89, s{s_rb}, {2*40*1024}")
        a(f"s_mul_i32 s36, s{s_w}, {10*1024}")
        a("s_add_u32 s89, s89, s36")
        a(f"s_add_u32 s89, s89, {OF}")
        a(f"s_add_u32 s90, s89, {40*1024}")
    a("s_waitcnt lgkmcnt(0)")
    srd(a, SW, 8, 1966080)
    srd(a, SX, 14, 2621440)
    if standalone:
        srd(a, SWS, 12, WS_END)
    K = TypeK(a, 34 if FUSE == 1 else 24, 6, 6, R_ACC, D_AF, D_BF, vTr, 512, vWo, SW, 66, 16 * 1280, 67, vB, SWS, 68, 65, bmods)
    if FUSE:
        srd(a, 80, 84, 819200)
        srd(a, 84, 86, 2621440)
        K.phase2 = (24, 80, 88, 89, 90)
    return K


def gen_down_issue(a, K):
    SX, vXo = 76, 10
    for rt in range(2):
        for ct in range(3):
            if FUSE == 2:
                a(f"buffer_load_dwordx2 {vr(D_XR+(ct*2+rt)*2,2)}, v{vXo}, s[{SX}:{SX+3}], s70 offen offset:{ct*64+rt*16}")
            else:
                a(f"buffer_load_dwordx2 {vr(D_XR+(rt*3+ct)*2,2)}, v{vXo}, s[{SX}:{SX+3}], s{70+rt} offen offset:{ct*64}")
    order = [("x",)] * 6
    for s in range(6):
        K.emit(K.dma(s))
        order += [("d", s)] * 3
    if FUSE == 2 and PREFETCH:
        a("s_lshr_b32 s91, s69, 3")
        a("s_lshl_b32 s91, s91, 2")
        a("s_add_u32 s91, s91, s32")
        a("s_mul_i32 s91, s91, 7360")
        a("v_lshlrev_b32 v11, 6, v1")
        a("buffer_load_dword v12, v11, s[80:83], s91 offen")
        a("s_add_u32 s91, s91, 3264")
        a("buffer_load_dword v12, v11, s[80:83], s91 offen")
        order += [("x",)] * 2
    return K, order


def gen_tail2(a, K):
    s_w, s_rb, s_cb, SWS, vB, vLane, vN, vH = 32, 63, 64, 28, 5, 1, 2, 3
    T, ACC, RES = D_T, R_ACC, D_RES
    vTr, vWo, vXo = 9, 8, 10
    AC2 = ACC
    OB = [ACC + 48 + 4 * k for k in range(12)] + [D_BF + 4 * k for k in range(8)]
    s_rt, s_gp = 45, 46
    a(f"s_and_b32 s{s_rt}, s{s_w}, 1")
    a(f"s_lshr_b32 s{s_gp}, s{s_w}, 1")

    def quads(tw):
        rt, gp = tw & 1, tw >> 1
        return [ACC + (rt * 3 + ct) * 16 + (2 * gp + e) * 4 for ct in range(3) for e in range(2)]
    a(f"s_setprio {os.environ.get('PT2', '0')}")
    for tw in range(4):
        a(f"s_cmp_eq_u32 s{s_w}, {tw}")
        a(f"s_cbranch_scc1 t2_w{tw}")
        a(f"s_sub_u32 s91, {tw+3}, s{s_w}")
        a("s_and_b32 s91, s91, 3")
        a("s_mul_i32 s91, s91, 6144")
        a("s_add_u32 s91, s91, s67")
        a(f"v_add_u32 v{T}, s91, v{vB}")
        for k, r in enumerate(quads(tw)):
            a(f"ds_write_b128 v{T}, {vr(r,4)} offset:{k*1024}")
        a.label(f"t2_w{tw}")
    for jj in range(3):
        a(f"s_add_u32 s91, s{s_w}, {jj+1}")
        a("s_and_b32 s91, s91, 3")
        a(f"s_mul_i32 s91, s91, {RING}")
        a(f"s_add_u32 s91, s91, {(2-jj)*6144}")
        a(f"v_add_u32 v{T+1+jj}, s91, v{vB}")
    for tw in range(4):
        a(f"s_cmp_lg_u32 s{s_w}, {tw}")
        a(f"s_cbranch_scc1 t2_o{tw}")
        for k, r in enumerate(quads(tw)):
            for e in range(4):
                a(f"v_mov_b32 v{RES+4*k+e}, v{r+e}")
        a.label(f"t2_o{tw}")
    a("s_waitcnt lgkmcnt(0)")
    a("s_barrier")
    for jj in range(3):
        for k in range(6):
            a(f"ds_read_b128 {vr(ACC+(jj*6+k)*4,4)}, v{T+1+jj} offset:{k*1024}")
    for jj in range(3):
        a(f"s_waitcnt lgkmcnt({(2-jj)*6})")
        for e in range(0, 24, 2):
            a(f"v_pk_add_f32 {vr(RES+e,2)}, {vr(RES+e,2)}, {vr(ACC+jj*24+e,2)}")
    a("s_mov_b32 s49, 0xffff0000")
    a("s_waitcnt vmcnt(0)")
    for k in range(6):
        xr = D_XR + 2 * k
        for e in range(2):
            a(f"v_lshlrev_b32 v{T}, 16, v{xr+e}")
            a(f"v_and_b32 v{T+1}, s49, v{xr+e}")
            a(f"v_pk_add_f32 {vr(RES+4*k+2*e,2)}, {vr(RES+4*k+2*e,2)}, {vr(T,2)}")
    for gp in range(2):
        a(f"s_cmp_lg_u32 s{s_gp}, {gp}")
        a(f"s_cbranch_scc1 t2_i{gp}")
        for ct in range(3):
            for e in range(8):
                a(f"v_mov_b32 v{AC2+16*ct+8*gp+e}, v{RES+8*ct+e}")
                a(f"v_mov_b32 v{AC2+16*ct+8*(1-gp)+e}, 0")
        a.label(f"t2_i{gp}")
    a("s_setprio 0")
    a("s_barrier")
    a(f"s_mul_i32 s47, s{s_gp}, {20*16*1280}")
    a(f"s_mul_i32 s48, s{s_rt}, {16*1280}")
    a("s_add_u32 s47, s47, s48")
    a(f"s_mul_i32 s48, s{s_cb}, 192")
    a("s_add_u32 s47, s47, s48")
    a(f"s_mul_i32 s48, s{s_gp}, {12*3072}")
    a(f"s_mul_i32 s50, s{s_rt}, 3072")
    a("s_add_u32 s50, s50, s48")

    def wdma(i):
        for ct in range(3):
            a(f"s_add_u32 m0, s50, {((2*i) % 12)*3072 + ct*1024}")
            a(f"s_add_u32 s91, s47, {2*i*16*1280 + ct*64}")
            a(f"buffer_load_dwordx4 v{vWo}, s[80:83], s91 offen lds")
    for i in range(6):
        wdma(i)
    a(f"s_sub_u32 s91, s48, s67")
    a(f"v_add_u32 v{vTr}, s91, v{vTr}")
    a(f"s_lshl_b32 s89, s{s_rb}, 1")
    a(f"s_add_u32 s89, s89, s{s_rt}")
    a("s_mul_i32 s89, s89, 40")
    a(f"s_mul_i32 s91, s{s_gp}, 20")
    a("s_add_u32 s89, s89, s91")
    a("s_lshl_b32 s89, s89, 10")
    a(f"s_add_u32 s89, s89, {OF}")
    a(f"s_lshl_b32 s93, s{s_rb}, 8")
    a(f"s_add_u32 s93, s93, {CT + 4096}")
    a("s_waitcnt vmcnt(0)")
    a(f"s_cmp_lg_u32 s{s_w}, 0")
    a("s_cbranch_scc1 main_polled2")
    a(f"v_mov_b32 v{T}, 0")
    a("s_mov_b64 exec, 1")
    a.label("main_poll2")
    a(f"buffer_load_dword v{T+2}, v{T}, s[{SWS}:{SWS+3}], s93 offen sc1")
    a("s_waitcnt vmcnt(0)")
    a(f"v_readfirstlane_b32 s95, v{T+2}")
    a("s_cmp_ge_u32 s95, 8")
    a("s_cbranch_scc1 main_pdone2")
    a("s_sleep 4")
    a("s_branch main_poll2")
    a.label("main_pdone2")
    a("s_mov_b64 exec, -1")
    a.label("main_polled2")
    a("s_barrier")
    stamp(a, "mffn")
    order = []
    for k in range(20):
        if k % 4 == 0 and k:
            a("s_add_u32 s89, s89, 4096")
        a(f"buffer_load_dwordx4 {vr(OB[k],4)}, v{vB}, s[{SWS}:{SWS+3}], s89 offen offset:{(k%4)*1024} sc1")
        order.append(("b", k))

    def reads(sx):
        for ct in range(3):
            o = ((sx % 12) * 3 + ct) * 1024
            r = D_AF + (sx & 1) * 12 + ct * 4
            a(f"ds_read_b64_tr_b16 {vr(r,2)}, v{vTr} offset:{o}")
            a(f"ds_read_b64_tr_b16 {vr(r+2,2)}, v{vTr} offset:{o+512}")

    def wait(tag, extra=""):
        last = max(i for i, o in enumerate(order) if o == tag)
        a(f"s_waitcnt vmcnt({len(order) - 1 - last}){extra}")
    reads(0)
    for sx in range(20):
        if sx + 1 < 20:
            if sx + 1 in (12, 16):
                wait(("d", sx + 1))
                a("s_barrier")
            reads(sx + 1)
            wait(("b", sx), " lgkmcnt(6)")
        else:
            wait(("b", sx), " lgkmcnt(0)")
        for ct in range(3):
            mfma32(a, AC2 + 16 * ct, D_AF + (sx & 1) * 12 + ct * 4, OB[sx])
        if sx in (3, 7):
            a("s_barrier")
            for i in ((6, 7) if sx == 3 else (8, 9)):
                wdma(i)
                order += [("d", 12 if sx == 3 else 16)] * 3
    stamp(a, "mffn")
    a("s_setprio 2")
    a("s_barrier")
    a(f"v_add_u32 v{T}, s67, v{vB}")
    a(f"s_xor_b32 s91, s{s_w}, 2")
    a(f"s_mul_i32 s91, s91, {RING}")
    a(f"v_add_u32 v{T+1}, s91, v{vB}")
    for gp in range(2):
        a(f"s_cmp_lg_u32 s{s_gp}, {gp}")
        a(f"s_cbranch_scc1 t2_x{gp}")
        for ct in range(3):
            for e in range(2):
                a(f"ds_write_b128 v{T}, {vr(AC2+16*ct+8*(1-gp)+4*e,4)} offset:{(ct*2+e)*1024}")
        for ct in range(3):
            for e in range(8):
                a(f"v_mov_b32 v{RES+8*ct+e}, v{AC2+16*ct+8*gp+e}")
        a.label(f"t2_x{gp}")
    a("s_waitcnt lgkmcnt(0)")
    a("s_barrier")
    for k in range(6):
        a(f"ds_read_b128 {vr(ACC+4*k,4)}, v{T+1} offset:{k*1024}")
    a("s_waitcnt lgkmcnt(0)")
    for e in range(0, 24, 2):
        a(f"v_pk_add_f32 {vr(RES+e,2)}, {vr(RES+e,2)}, {vr(ACC+e,2)}")
    a(f"v_lshl_add_u32 v{T}, v{vH}, 3, v{vXo}")
    for ct in range(3):
        if ct == 2:
            a(f"s_cmp_eq_u32 s{s_cb}, 6")
            a("s_cbranch_scc1 dn_skip")
        r = RES + 8 * ct
        for q in range(4):
            a(f"v_cvt_pk_bf16_f32 v{r+q}, v{r+2*q}, v{r+2*q+1}")
        a(f"v_permlane32_swap_b32 v{r}, v{r+2}")
        a(f"v_permlane32_swap_b32 v{r+1}, v{r+3}")
        a(f"buffer_store_dwordx4 {vr(r,4)}, v{T}, s[84:87], s70 offen offset:{ct*64}")
    a.label("dn_skip")


def gen_down_rest(a, K, order):
    s_w, s_rb, s_cb, SWS, vB, vLane, vXo = 32, 63, 64, 28, 5, 1, 10
    T = D_T
    for s in range(6):
        K.emit(K.bl(s))
        order = order + [("b", s)] * 2
    order = K.main(order, 0, 24, 24)
    stamp(a, "mffn")
    stamp(a, "down")
    if FUSE == 2:
        gen_tail2(a, K)
        return
    if FUSE:
        a(f"v_mul_u32_u24 v{T+3}, 1280, v{vLane}")
        for q in range(3):
            a(f"s_add_u32 s91, s88, {6*16*1280 + q*64}")
            a(f"buffer_load_dword v{T+4}, v{T+3}, s[80:83], s91 offen")
        a(f"s_lshl_b32 s93, s{s_rb}, 8")
        a(f"s_add_u32 s93, s93, {CT + 4096}")
        a(f"s_cmp_lg_u32 s{s_w}, 0")
        a("s_cbranch_scc1 main_polled2")
        a(f"v_mov_b32 v{T}, 0")
        a("s_mov_b64 exec, 1")
        a.label("main_poll2")
        a(f"buffer_load_dword v{T+2}, v{T}, s[{SWS}:{SWS+3}], s93 offen sc1")
        a("s_waitcnt vmcnt(0)")
        a(f"v_readfirstlane_b32 s95, v{T+2}")
        a("s_cmp_ge_u32 s95, 8")
        a("s_cbranch_scc1 main_pdone2")
        a("s_sleep 4")
        a("s_branch main_poll2")
        a.label("main_pdone2")
        a("s_mov_b64 exec, -1")
        a.label("main_polled2")
        a("s_barrier")
        stamp(a, "mffn")
        order = order + [("x",)] * 3
        for s in range(24, 30):
            K.emit(K.bl(s))
            order = order + [("b", s)] * 2
        K.main(order, 24, 34)
        stamp(a, "mffn")
    a("s_setprio 2")
    reduce4(a, "dn", R_ACC, D_RES, R_ACC, vB, T, s_w, 67, 0, RING)
    a("s_mov_b32 s49, 0xffff0000")
    if not FUSE:
        a(f"s_mul_i32 s45, s{s_rb}, 40")
        a(f"s_mul_i32 s46, s{s_cb}, 3")
        a("s_add_u32 s45, s45, s46")
        a("s_lshl_b32 s45, s45, 11")
        a(f"s_lshr_b32 s46, s{s_w}, 1")
        a("s_lshl_b32 s46, s46, 10")
        a("s_add_u32 s45, s45, s46")
        a(f"s_and_b32 s46, s{s_w}, 1")
        a("s_lshl_b32 s46, s46, 3")
        a("s_add_u32 s45, s45, s46")
        a(f"s_add_u32 s45, s45, {YF}")
    for ct in range(3):
        if ct == 2:
            a(f"s_cmp_eq_u32 s{s_cb}, 6")
            a("s_cbranch_scc1 dn_skip")
        for rt in range(2):
            r = D_RES + (rt * 3 + ct) * 4
            xr = D_XR + (rt * 3 + ct) * 2
            for e in range(2):
                a(f"v_lshlrev_b32 v{T}, 16, v{xr+e}")
                a(f"v_and_b32 v{T+1}, s49, v{xr+e}")
                a(f"v_pk_add_f32 {vr(r+2*e,2)}, {vr(r+2*e,2)}, {vr(T,2)}")
            a(f"v_cvt_pk_bf16_f32 v{r}, v{r}, v{r+1}")
            a(f"v_cvt_pk_bf16_f32 v{r+1}, v{r+2}, v{r+3}")
            if FUSE:
                a(f"buffer_store_dwordx2 {vr(r,2)}, v{vXo}, s[84:87], s{70+rt} offen offset:{ct*64}")
            else:
                a(f"s_add_u32 s46, s45, {(rt*20+ct)*2048}")
                a(f"buffer_store_dwordx2 {vr(r,2)}, v{vB}, s[{SWS}:{SWS+3}], s46 offen{SM}")
    a.label("dn_skip")


def gen_down():
    a = Asm()
    a.label("down_kernel")
    a("s_cmp_ge_u32 s2, 224")
    a("s_cbranch_scc1 down_end")
    stamp_begin(a, "down")
    K, order = gen_down_issue(a, gen_down_setup(a, 2, True))
    stamp(a, "down")
    gen_down_rest(a, K, order)
    stamp_end(a, "down", 28, 32, 240)
    a.label("down_end")
    a("s_endpgm")
    return a.finish(), ("down_kernel", 224, 256, 73728, 256 if STAMP else 232)


def gen_main():
    a = Asm()
    a.label("main_kernel")
    a("s_cmp_ge_u32 s2, 512")
    a("s_cbranch_scc1 main_end")
    a("s_cmp_ge_u32 s2, 256")
    a("s_cbranch_scc1 main_ffn")
    if PRIO_ATTN:
        a(f"s_setprio {PRIO_ATTN}")
    stamp_begin(a, "mattn")
    gen_attn_body(a, "ma", 2, bool(FUSE))
    stamp_end(a, "mattn", 28, 32, 250)
    a("s_endpgm")
    a.label("main_ffn")
    if PRIO_FFN:
        a(f"s_setprio {PRIO_FFN}")
    a("s_sub_u32 s69, s2, 256")
    stamp_begin(a, "mffn")
    st = {}
    K0 = gen_down_setup(a, 69, True, " sc1")
    xvm = {}
    if PREFETCH and PF0 >= 0:
        a("s_lshr_b32 s96, s69, 3")
        a("s_lshl_b32 s96, s96, 2")
        a("s_add_u32 s96, s96, s32")
        a("s_lshl_b32 s96, s96, 14")
        a(f"v_lshlrev_b32 v11, 6, v1")
        for q in range(4):
            xvm[PF0 + q] = [[f"s_add_u32 s97, s96, {q*4096}",
                             f"buffer_load_dword v12, v11, s[24:27], s97 offen"]]
        if ROLL:
            xvm = [["buffer_load_dword v12, v11, s[24:27], s96 offen", "s_add_u32 s96, s96, 2752"],
                   ["buffer_load_dword v12, v11, s[24:27], s96 offen", "s_add_u32 s96, s96, 2752"]]

    def mid():
        stamp(a, "mffn")
        a("s_setprio 2")
    gen_gateup_body(a, "gu", 69, mid, " sc1", xvm)
    SD = 28
    a("s_setprio 0")
    a("s_lshl_b32 s92, s33, 8")
    a(f"s_add_u32 s92, s92, {CT}")
    a("s_lshr_b32 s93, s63, 1")
    a("s_lshl_b32 s93, s93, 8")
    a(f"s_add_u32 s93, s93, {CT}")
    a("s_waitcnt vmcnt(0)")
    a("s_barrier")
    stamp(a, "mffn")
    a(f"v_mov_b32 v{D_T}, 0")
    a(f"v_mov_b32 v{D_T+1}, 1")
    a("s_cmp_lg_u32 s32, 0")
    a("s_cbranch_scc1 main_nosig")
    a("s_mov_b64 exec, 1")
    a(f"buffer_atomic_add v{D_T+1}, v{D_T}, s[{SD}:{SD+3}], s92 offen sc1")
    a("s_mov_b64 exec, -1")
    a.label("main_nosig")
    a("s_cmp_ge_u32 s69, 224")
    a("s_cbranch_scc1 main_end")
    K, order = gen_down_issue(a, K0)
    a("s_cmp_lg_u32 s32, 0")
    a("s_cbranch_scc1 main_polled")
    a("s_mov_b64 exec, 1")
    a.label("main_poll")
    a(f"buffer_load_dword v{D_T+2}, v{D_T}, s[{SD}:{SD+3}], s93 offen sc1")
    a("s_waitcnt vmcnt(0)")
    a(f"v_readfirstlane_b32 s95, v{D_T+2}")
    a("s_cmp_ge_u32 s95, 16")
    a("s_cbranch_scc1 main_pdone")
    a(f"s_sleep {os.environ.get('SLEEP', '8')}")
    a("s_branch main_poll")
    a.label("main_pdone")
    a("s_mov_b64 exec, -1")
    a.label("main_polled")
    a("s_barrier")
    stamp(a, "mffn")
    a(f"s_setprio {PRIO_DN}")
    gen_down_rest(a, K, order)
    stamp_end(a, "mffn", 28, 32, 240, 69)
    a.label("main_end")
    a("s_endpgm")
    return a.finish(), ("main_kernel", 512, 256, 73728, 256 if STAMP else 248)


PREFETCH = int(os.environ.get("PREFETCH", "1"))
PF0 = int(os.environ.get("PF0", "6"))
CODEPF = 0
ORDER = []
ROLL = int(os.environ.get("ROLL", "0"))
ORDER2 = int(os.environ.get("ORDER2", "1"))
PRIO_DN = int(os.environ.get("PRIO_DN", "0"))
SM = os.environ.get("SM", "")
SM = (" " + SM) if SM else ""
FUSE = int(os.environ.get("FUSE", "2"))
PRIO_ATTN = int(os.environ.get("PRIO_ATTN", "0"))
PRIO_FFN = int(os.environ.get("PRIO_FFN", "0"))


def gen_final():
    a = Asm()
    a.label("final_kernel")
    s_w, s_rb, s_cb = 32, 33, 34
    SW, SO, SWS = 20, 24, 28
    vLane, vN, vH, vWo, vB, vTr, vXo = 1, 2, 3, 4, 5, 6, 8
    T = R_T
    YR = R_ACC + 32
    a("s_cmp_ge_u32 s2, 160")
    a("s_cbranch_scc1 final_end")
    stamp_begin(a, "final")
    a("s_load_dwordx2 s[6:7], s[0:1], 32")
    a("s_load_dwordx2 s[8:9], s[0:1], 72")
    a("s_load_dwordx2 s[12:13], s[0:1], 88")
    lane_setup(a, T, vLane, vN, vH, s_w)
    a("s_and_b32 s3, s2, 7")
    a("s_lshl_b32 s3, s3, 1")
    a("s_bfe_u32 s36, s2, 0x10003")
    a(f"s_add_u32 s{s_rb}, s3, s36")
    a(f"s_lshr_b32 s{s_cb}, s2, 4")
    a(f"v_lshlrev_b32 v{vB}, 4, v{vLane}")
    a(f"v_lshrrev_b32 v{T}, 2, v{vLane}")
    a(f"v_mul_u32_u24 v{vWo}, 1280, v{T}")
    a(f"v_and_b32 v{T}, 3, v{vLane}")
    a(f"v_lshl_add_u32 v{vWo}, v{T}, 4, v{vWo}")
    a(f"v_mul_u32_u24 v{vXo}, 1280, v{vN}")
    a(f"v_lshl_add_u32 v{vXo}, v{vH}, 4, v{vXo}")
    tr_base(a, vTr, T, vLane, vH, 9)
    a(f"s_mul_i32 s40, s{s_w}, {16*1280}")
    a(f"s_lshl_b32 s41, s{s_cb}, 7")
    a("s_add_u32 s40, s40, s41")
    a(f"s_lshl_b32 s42, s{s_rb}, 2")
    a(f"s_add_u32 s42, s42, s{s_w}")
    a(f"s_mul_i32 s43, s42, {40*1024}")
    a(f"s_add_u32 s43, s43, {OF}")
    a("s_mul_i32 s45, s42, 20")
    a(f"s_lshl_b32 s46, s{s_cb}, 1")
    a("s_add_u32 s45, s45, s46")
    a("s_lshl_b32 s45, s45, 11")
    a(f"s_add_u32 s45, s45, {YF}")
    a(f"s_mul_i32 s47, s42, {32*1280}")
    a("s_add_u32 s47, s47, s41")
    a("s_waitcnt lgkmcnt(0)")
    srd(a, SW, 6, 819200)
    srd(a, SO, 8, 2621440)
    srd(a, SWS, 12, WS_END)
    R = TypeR(a, "fi", 2, 10, vTr, vWo, vB, s_w, lambda t: (SW, 0, t), (40, 40, 64 * 1280), 43, SWS, 256)
    R.setup()
    R.emit(R.vm_ops(0) + R.vm_ops(1))
    yl = [[f"buffer_load_dwordx4 {vr(YR+4*q,4)}, v{vB}, s[{SWS}:{SWS+3}], s45 offen offset:{q*1024}"] for q in range(4)]
    R.main(R.per, {4: yl})
    stamp(a, "final")
    a("s_mov_b32 s49, 0xffff0000")
    a("s_waitcnt vmcnt(0)")
    for t in range(2):
        r = R_ACC + 16 * t
        for q in range(8):
            a(f"v_lshlrev_b32 v{T+2*(q&1)}, 16, v{YR+8*t+q}")
            a(f"v_and_b32 v{T+2*(q&1)+1}, s49, v{YR+8*t+q}")
            a(f"v_pk_add_f32 {vr(r+2*q,2)}, {vr(r+2*q,2)}, {vr(T+2*(q&1),2)}")
        for q in range(8):
            a(f"v_cvt_pk_bf16_f32 v{r+q}, v{r+2*q}, v{r+2*q+1}")
        for gp in range(2):
            b = r + 4 * gp
            a(f"v_permlane32_swap_b32 v{b}, v{b+2}")
            a(f"v_permlane32_swap_b32 v{b+1}, v{b+3}")
            a(f"buffer_store_dwordx4 {vr(b,4)}, v{vXo}, s[{SO}:{SO+3}], s47 offen offset:{t*64 + gp*32}")
    stamp_end(a, "final", SWS, s_w, 240)
    a.label("final_end")
    a("s_endpgm")
    return a.finish(), ("final_kernel", 160, 256, 24576, 256 if STAMP else 216)


def gen_empty():
    a = Asm()
    a.label("empty_kernel")
    a("s_endpgm")
    return a.finish(), ("empty_kernel", 256, 256, 65536, 256)


KERNELS = {"empty": gen_empty, "main": gen_main, "qkv": gen_qkv, "gateup": gen_gateup, "attn": gen_attn, "down": gen_down, "final": gen_final}
HEADER = open("parallel_sum__grouped_kv_mqa__glu_gated_swiglu__prompt.s.ref").read().split("; Override launch")[0] if False else ""


DEFAULT = ["qkv", "main"] if FUSE else ["qkv", "main", "final"]


def build(order):
    texts, launches = {}, []
    ORDER[:] = order
    for k in order:
        t, info = KERNELS[k]()
        texts[info[0]] = (t, info)
        launches.append(info)
    out = "; generated by dev/gen.py -- LN + MQA attention + SwiGLU block for gfx950\n"
    for name, grid, block, lds, vg in launches:
        out += f"; @launch kernel={name} grid=({grid},1,1) block=({block},1,1) lds={lds}\n"
    out += '.amdgcn_target "amdgcn-amd-amdhsa--gfx950"\n.text\n'
    for name, (t, info) in texts.items():
        out += kernel_header(name) + t
    out += "code_end:\n"
    out += '.section .rodata,"a"\n'
    for name, (t, info) in texts.items():
        out += kernel_desc(name, info[4])
    return out


if __name__ == "__main__":
    order = sys.argv[2].split(",") if len(sys.argv) > 2 else DEFAULT
    open(sys.argv[1], "w").write(build(order))
```

```python
import math
import struct
import sys

from asmlib import Asm

XF = 0x0
QF = 0x280000
KF = 0x500000
VF = KF + 1280
KVS = 2624
KN = 0x52A000
CT = 0x52C000
OF = 0x530000
HF = 0x800000
FP = 0x1000000
YF = 0x1000000
WS_END = 0x2500000
TS = 0x2400000
import os
STAMP = os.environ.get("STAMP", "")


_stamp_n = {}


def stamp(a, name, vreg=255):
    if name in STAMP.split(","):
        i = _stamp_n.get(name, 0)
        _stamp_n[name] = i + 1
        a("s_memtime s[100:101]")
        a("s_waitcnt lgkmcnt(0)")
        a(f"v_writelane_b32 v{vreg}, s100, {i}")


def stamp_begin(a, name, vreg=255):
    if name in STAMP.split(","):
        a("s_memrealtime s[98:99]")
        a("s_waitcnt lgkmcnt(0)")
        a(f"v_writelane_b32 v{vreg}, s98, 14")
    stamp(a, name, vreg)


def stamp_end(a, name, sws, s_w, vtmp, s_wg=2, vreg=255):
    if name in STAMP.split(","):
        a("s_waitcnt vmcnt(0) lgkmcnt(0)")
        stamp(a, name, vreg)
        a("s_memrealtime s[98:99]")
        a("s_waitcnt lgkmcnt(0)")
        a(f"v_writelane_b32 v{vreg}, s98, 15")
        a(f"s_lshl_b32 s94, s{s_wg}, 2")
        a(f"s_add_u32 s94, s94, s{s_w}")
        a("s_lshl_b32 s94, s94, 6")
        a(f"s_add_u32 s94, s94, {TS + STAMP.split(',').index(name) * 0x20000}")
        a(f"v_and_b32 v{vtmp}, 63, v0")
        a(f"v_lshlrev_b32 v{vtmp}, 2, v{vtmp}")
        a("s_mov_b64 s[98:99], exec")
        a("s_mov_b64 exec, 0xffff")
        a(f"buffer_store_dword v{vreg}, v{vtmp}, s[{sws}:{sws+3}], s94 offen")
        a("s_mov_b64 exec, s[98:99]")


QSCALE = (20 ** -0.5) * math.log2(math.e)


def f2u(x):
    return struct.unpack("<I", struct.pack("<f", x))[0]


def hx(x):
    return "0x%x" % x


def srd(a, d, base, size):
    a(f"s_mov_b32 s{d}, s{base}")
    a(f"s_and_b32 s{d+1}, s{base+1}, 0xffff")
    a(f"s_mov_b32 s{d+2}, {hx(size)}")
    a(f"s_mov_b32 s{d+3}, 0x00020000")


def vr(b, n=1):
    return f"v{b}" if n == 1 else f"v[{b}:{b+n-1}]"


def mfma32(a, d, x, y, c=None):
    cs = vr(d, 16) if c is None else c
    a(f"v_mfma_f32_32x32x16_bf16 {vr(d,16)}, {vr(x,4)}, {vr(y,4)}, {cs}")


def kernel_header(name):
    return f""".globl {name}
.p2align 8
.type {name},@function
"""


def kernel_desc(name, vgprs, sgprs=102):
    acc = (vgprs + 3) // 4 * 4
    return f""".p2align 6
.amdhsa_kernel {name}
  .amdhsa_next_free_vgpr {vgprs}
  .amdhsa_next_free_sgpr {sgprs}
  .amdhsa_accum_offset {acc}
  .amdhsa_group_segment_fixed_size 0
  .amdhsa_kernarg_size 96
  .amdhsa_user_sgpr_count 2
  .amdhsa_user_sgpr_kernarg_segment_ptr 1
  .amdhsa_system_sgpr_workgroup_id_x 1
.end_amdhsa_kernel
"""


K_X = 16
K_ACC = 96
K_A = 192
K_T = 216
WAVE_LDS = 30720
LDS_STG = 8192


K_R = K_A


def typek_mfma_phase(a, vtr, zero=True, vm_after=None, extra=None):
    def reads(s, buf):
        for ct in range(3):
            o = (3 * s + ct) * 1024
            r = K_A + buf * 12 + ct * 4
            a(f"ds_read_b64_tr_b16 {vr(r,2)}, v{vtr} offset:{o}")
            a(f"ds_read_b64_tr_b16 {vr(r+2,2)}, v{vtr} offset:{o+256}")
    if vm_after:
        a(f"s_waitcnt vmcnt({vm_after(0)})")
    reads(0, 0)
    for s in range(10):
        if s + 1 < 10:
            if vm_after:
                a(f"s_waitcnt vmcnt({vm_after(s+1)})")
            reads(s + 1, (s + 1) & 1)
            a("s_waitcnt lgkmcnt(6)")
        else:
            a("s_waitcnt lgkmcnt(0)")
        ex = list(extra(s)) if extra else []
        n = len(ex)
        k = 0
        for ct in range(3):
            for rt in range(2):
                d = K_ACC + (rt * 3 + ct) * 16
                mfma32(a, d, K_A + (s & 1) * 12 + ct * 4, K_X + rt * 40 + s * 4, "0" if (s == 0 and zero) else None)
                k += 1
                for x in ex[((k - 1) * n) // 6:(k * n) // 6]:
                    a(x)


def reduce4(a, pfx, ACC, RES, TMP, vL16, vT, s_w, s_base, base0, stride, pre_barrier=None, post_reads=None):
    for g in range(4):
        a(f"s_cmp_eq_u32 s{s_w}, {g}")
        a(f"s_cbranch_scc1 {pfx}_rw{g}")
        a(f"s_sub_u32 s90, {g+3}, s{s_w}")
        a("s_and_b32 s90, s90, 3")
        a("s_mul_i32 s90, s90, 6144")
        a(f"s_add_u32 s90, s90, s{s_base}")
        a(f"v_add_u32 v{vT}, s90, v{vL16}")
        for t in range(6):
            a(f"ds_write_b128 v{vT}, {vr(ACC+t*16+g*4,4)} offset:{t*1024}")
        a.label(f"{pfx}_rw{g}")
    if pre_barrier:
        pre_barrier()
    for jj in range(3):
        a(f"s_add_u32 s90, s{s_w}, {jj+1}")
        a("s_and_b32 s90, s90, 3")
        a(f"s_mul_i32 s90, s90, {stride}")
        a(f"s_add_u32 s90, s90, {base0 + (2-jj)*6144}")
        a(f"v_add_u32 v{vT+1+jj}, s90, v{vL16}")
    for g in range(4):
        a(f"s_cmp_lg_u32 s{s_w}, {g}")
        a(f"s_cbranch_scc1 {pfx}_ro{g}")
        for t in range(6):
            for e in range(4):
                a(f"v_mov_b32 v{RES+t*4+e}, v{ACC+t*16+g*4+e}")
        a.label(f"{pfx}_ro{g}")
    a("s_waitcnt lgkmcnt(0)")
    a("s_barrier")
    for jj in range(3):
        for t in range(6):
            a(f"ds_read_b128 {vr(TMP+(jj*6+t)*4,4)}, v{vT+1+jj} offset:{t*1024}")
    n_extra = post_reads() if post_reads else 0
    for jj in range(3):
        a(f"s_waitcnt lgkmcnt({min(15, (2-jj)*6 + n_extra)})")
        for e in range(0, 24, 2):
            a(f"v_pk_add_f32 {vr(RES+e,2)}, {vr(RES+e,2)}, {vr(TMP+jj*24+e,2)}")


class TypeK:
    def __init__(self, a, KS, RD, RB, ACC, AF, BF, vTr, tr2, vWo, SW, s_g, gstep, s_ring, vB, SB, s_b0, s_b1, bmods=""):
        self.__dict__.update(locals())

    phase2 = None

    def dma(self, s):
        SW, s_g, s0 = self.SW, self.s_g, 0
        if self.phase2 and s >= self.phase2[0]:
            s0, SW, s_g = self.phase2[:3]
        out = []
        for ct in range(3):
            out.append([f"s_add_u32 m0, s{self.s_ring}, {((s % self.RD)*3+ct)*1024}",
                        f"s_add_u32 s91, s{s_g}, {(s-s0)*self.gstep + ct*64}",
                        f"buffer_load_dwordx4 v{self.vWo}, s[{SW}:{SW+3}], s91 offen lds"])
        return out

    def bl(self, s):
        b0, b1, s0 = self.s_b0, self.s_b1, 0
        if self.phase2 and s >= self.phase2[0]:
            s0, b0, b1 = self.phase2[0], self.phase2[3], self.phase2[4]
        out = []
        for rt in range(2):
            sb = b0 if rt == 0 else b1
            g = []
            if (s - s0) % 4 == 0 and s - s0:
                g.append(f"s_add_u32 s{sb}, s{sb}, 4096")
            g.append(f"buffer_load_dwordx4 {vr(self.BF+(s%self.RB)*8+rt*4,4)}, v{self.vB}, s[{self.SB}:{self.SB+3}], s{sb} offen offset:{((s-s0)%4)*1024}{self.bmods}")
            out.append(g)
        return out

    def emit(self, groups):
        for g in groups:
            for x in g:
                self.a(x)

    def reads(self, s):
        out = []
        for ct in range(3):
            o = ((s % self.RD) * 3 + ct) * 1024
            r = self.AF + (s & 1) * 12 + ct * 4
            out.append(f"ds_read_b64_tr_b16 {vr(r,2)}, v{self.vTr} offset:{o}")
            out.append(f"ds_read_b64_tr_b16 {vr(r+2,2)}, v{self.vTr} offset:{o+self.tr2}")
        return out

    def main(self, order, lo=0, hi=None, blimit=None):
        a, KS, RD, RB = self.a, self.KS, self.RD, self.RB
        hi = KS if hi is None else hi
        blimit = KS if blimit is None else blimit
        order = list(order)

        def wait_for(tags):
            last = max(i for i, o in enumerate(order) if o in tags)
            a(f"s_waitcnt vmcnt({min(63, len(order) - 1 - last)})")
        wait_for({("d", lo), ("b", lo)})
        for x in self.reads(lo):
            a(x)
        for s in range(lo, hi):
            if s + 1 < hi:
                wait_for({("d", s + 1), ("b", s + 1)})
                for x in self.reads(s + 1):
                    a(x)
                a("s_waitcnt lgkmcnt(6)")
            else:
                a("s_waitcnt lgkmcnt(0)")
            dm = self.dma(s + RD) if s + RD < KS else []
            k = 0
            for ct in range(3):
                for rt in range(2):
                    mfma32(a, self.ACC + (rt * 3 + ct) * 16, self.AF + (s & 1) * 12 + ct * 4,
                           self.BF + (s % RB) * 8 + rt * 4, "0" if s == 0 else None)
                    if k % 2 == 0 and dm:
                        self.emit([dm.pop(0)])
                        order.append(("d", s + RD))
                    k += 1
            if s + RB < blimit:
                self.emit(self.bl(s + RB))
                order += [("b", s + RB)] * 2
        return order


def lane_setup(a, T, vLane, vN, vH, s_w):
    a(f"v_and_b32 v{vLane}, 63, v0")
    a(f"v_lshrrev_b32 v{T}, 6, v0")
    a(f"v_readfirstlane_b32 s{s_w}, v{T}")
    a(f"v_and_b32 v{vN}, 31, v0")
    a(f"v_bfe_u32 v{vH}, v0, 5, 1")


def tr_base(a, vTr, T, vLane, vH, hshift):
    a(f"v_lshlrev_b32 v{vTr}, {hshift}, v{vH}")
    a(f"v_bfe_u32 v{T}, v{vLane}, 2, 2")
    a(f"v_lshl_add_u32 v{vTr}, v{T}, 6, v{vTr}")
    a(f"v_bfe_u32 v{T}, v{vLane}, 4, 1")
    a(f"v_lshl_add_u32 v{vTr}, v{T}, 5, v{vTr}")
    a(f"v_and_b32 v{T}, 3, v{vLane}")
    a(f"v_lshl_add_u32 v{vTr}, v{T}, 3, v{vTr}")


def gen_qkv():
    a = Asm()
    a.label("qkv_kernel")
    ST, MX = 0, 1024
    XI, SL = 8192, 21504
    WR = XI + 4 * SL
    s_w, s_rb, s_cb, s_tg = 32, 33, 34, 35
    SX, SW, SWS = 16, 20, 28
    vLane, vN, vH = 1, 2, 3
    vXg, vXr, vTr, vWo = 4, 5, 7, 8
    AC, AF, BF, ONE, T = 16, 64, 72, 88, 92
    a("s_cmp_ge_u32 s2, 256")
    a("s_cbranch_scc1 qkv_end")
    stamp_begin(a, "qkv")
    a("s_load_dwordx4 s[4:7], s[0:1], 0")
    a("s_load_dwordx4 s[8:11], s[0:1], 16")
    a("s_load_dwordx2 s[12:13], s[0:1], 88")
    a("s_load_dwordx4 s[56:59], s[0:1], 48")
    lane_setup(a, T, vLane, vN, vH, s_w)
    a("s_and_b32 s3, s2, 7")
    a("s_lshl_b32 s3, s3, 2")
    a("s_bfe_u32 s36, s2, 0x20003")
    a(f"s_add_u32 s{s_rb}, s3, s36")
    a(f"s_lshr_b32 s{s_cb}, s2, 5")
    a(f"v_mul_u32_u24 v{T}, 49, v{vLane}")
    a(f"v_lshrrev_b32 v{T}, 10, v{T}")
    a(f"v_mul_u32_u24 v{T+1}, 21, v{T}")
    a(f"v_sub_u32 v{T+1}, v{vLane}, v{T+1}")
    a(f"v_mul_u32_u24 v{vXg}, 1280, v{T}")
    a(f"v_lshl_add_u32 v{vXg}, v{T+1}, 4, v{vXg}")
    a(f"s_mul_i32 s37, s{s_w}, {SL}")
    a(f"s_add_u32 s37, s37, {XI}")
    a(f"s_mul_i32 s39, s{s_rb}, {64*1280}")
    a(f"s_mul_i32 s40, s{s_w}, 320")
    a("s_add_u32 s39, s39, s40")
    a("s_mov_b32 s52, -1")
    a("s_mov_b32 s53, 0x7fffffff")
    a("s_mov_b32 s41, 21")
    a("s_waitcnt lgkmcnt(0)")
    stamp(a, "qkv")
    srd(a, SX, 4, 2621440)
    a("s_mov_b64 exec, s[52:53]")
    a.label("qkv_xl")
    a("s_mov_b32 m0, s37")
    a("s_add_u32 s37, s37, 1008")
    a("s_sub_u32 s41, s41, 1")
    a(f"buffer_load_dwordx4 v{vXg}, s[{SX}:{SX+3}], s39 offen lds")
    a("s_add_u32 s39, s39, 3840")
    a("s_cmp_lg_u32 s41, 0")
    a("s_cbranch_scc1 qkv_xl")
    a("s_mov_b64 exec, 0x1fffff")
    a("s_mov_b32 m0, s37")
    a("s_nop 0")
    a(f"buffer_load_dwordx4 v{vXg}, s[{SX}:{SX+3}], s39 offen lds")
    a("s_mov_b64 exec, -1")
    srd(a, SWS, 12, WS_END)
    a(f"v_mul_u32_u24 v{vXr}, 336, v{vN}")
    a(f"v_lshl_add_u32 v{vXr}, v{vH}, 4, v{vXr}")
    a(f"v_add_u32 v{vXr}, {XI}, v{vXr}")
    a(f"s_cmp_eq_u32 s{s_w}, 3")
    a("s_cbranch_scc1 qkv_w3")
    a(f"s_mul_i32 s{s_tg}, s{s_cb}, 3")
    a(f"s_add_u32 s{s_tg}, s{s_tg}, s{s_w}")
    a(f"v_lshrrev_b32 v{T}, 2, v{vLane}")
    a(f"v_and_b32 v{T+1}, 3, v{vLane}")
    a(f"v_lshlrev_b32 v{T+1}, 4, v{T+1}")
    a(f"s_cmp_eq_u32 s{s_tg}, 21")
    a(f"s_cselect_b32 s{SW}, s10, s8")
    a(f"s_cselect_b32 s{SW+1}, s11, s9")
    a(f"s_cmp_lt_u32 s{s_tg}, 22")
    a(f"s_cselect_b32 s{SW+2}, 25600, 0")
    a(f"s_lshl_b32 s45, s{s_tg}, 6")
    a(f"s_cmp_lt_u32 s{s_tg}, 20")
    a(f"s_cselect_b32 s{SW}, s6, s{SW}")
    a(f"s_cselect_b32 s{SW+1}, s7, s{SW+1}")
    a(f"s_cselect_b32 s{SW+2}, 819200, s{SW+2}")
    a(f"s_mov_b32 s{SW+3}, 0x00020000")
    a("s_cselect_b32 s42, s45, 0")
    a("s_movk_i32 s38, 1280")
    a("s_cselect_b32 s38, s38, 40")
    a(f"s_and_b32 s{SW+1}, s{SW+1}, 0xffff")
    a(f"v_mad_u32_u24 v{vWo}, v{T}, s38, v{T+1}")
    a("s_lshl_b32 s43, s38, 4")
    a(f"s_mul_i32 s44, s{s_w}, 20480")
    a(f"s_add_u32 s44, s44, {WR}")
    a("s_mov_b32 s46, s44")
    LA = int(os.environ.get("QLA", "12"))
    a(f"s_mov_b32 s41, {LA}")
    a.label("qkv_wl")
    a("s_mov_b32 m0, s46")
    a("s_add_u32 s46, s46, 1024")
    a("s_sub_u32 s41, s41, 1")
    a(f"buffer_load_dwordx4 v{vWo}, s[{SW}:{SW+3}], s42 offen lds")
    a("s_add_u32 s42, s42, s43")
    a("s_cmp_lg_u32 s41, 0")
    a("s_cbranch_scc1 qkv_wl")
    tr_base(a, vTr, T, vLane, vH, 9)
    a(f"v_add_u32 v{vTr}, s44, v{vTr}")
    for e in range(4):
        a(f"v_mov_b32 v{ONE+e}, 0x3f803f80")
    for e in range(48):
        a(f"v_mov_b32 v{AC+e}, 0")
    stamp(a, "qkv")
    a(f"s_waitcnt vmcnt({LA})")
    stamp(a, "qkv")
    a("s_barrier")
    stamp(a, "qkv")

    def rd(s, nxt):
        b = s & 1
        xa = vXr + 1 if nxt else vXr
        ta = vTr + 2 if nxt else vTr
        p = 0 if nxt else s
        a(f"ds_read_b64_tr_b16 {vr(AF+4*b,2)}, v{ta} offset:{p*1024}")
        a(f"ds_read_b64_tr_b16 {vr(AF+4*b+2,2)}, v{ta} offset:{p*1024+256}")
        a(f"ds_read_b128 {vr(BF+8*b,4)}, v{xa} offset:{p*32}")
        a(f"ds_read_b128 {vr(BF+8*b+4,4)}, v{xa} offset:{p*32+10752}")
    a(f"s_waitcnt vmcnt({LA-1})")
    rd(0, False)
    a("s_mov_b32 s41, 4")
    a("s_mov_b32 s46, s44")
    a.label("qkv_loop")
    a(f"v_add_u32 v{vXr+1}, {SL}, v{vXr}")
    a("s_sub_u32 s47, s46, s44")
    a("s_xor_b32 s47, s47, 10240")
    a("s_sub_u32 s48, s44, s46")
    a("s_add_u32 s48, s48, s47")
    a(f"v_add_u32 v{vTr+2}, s48, v{vTr}")
    a("s_add_u32 s49, s44, s47")
    for sx in range(10):
        a(f"s_waitcnt vmcnt({LA-2})")
        rd(sx + 1, sx == 9)
        p = sx + LA
        if p < 10 or p >= 20:
            a(f"s_add_u32 m0, s46, {(p % 20)*1024}")
        else:
            a(f"s_add_u32 m0, s49, {(p-10)*1024}")
        a("s_waitcnt lgkmcnt(4)")
        b = sx & 1
        mfma32(a, AC, AF + 4 * b, BF + 8 * b)
        a(f"buffer_load_dwordx4 v{vWo}, s[{SW}:{SW+3}], s42 offen lds")
        a("s_add_u32 s42, s42, s43")
        mfma32(a, AC + 16, AF + 4 * b, BF + 8 * b + 4)
        mfma32(a, AC + 32, AF + 4 * b, ONE)
    a(f"v_mov_b32 v{vXr}, v{vXr+1}")
    a(f"v_mov_b32 v{vTr}, v{vTr+2}")
    a("s_add_u32 s46, s44, s47")
    a("s_sub_u32 s41, s41, 1")
    a("s_cmp_lg_u32 s41, 0")
    a("s_cbranch_scc1 qkv_loop")
    stamp(a, "qkv")
    a("s_waitcnt lgkmcnt(0)")
    a("s_barrier")
    a(f"s_cmp_ge_u32 s{s_tg}, 22")
    a("s_cbranch_scc1 qkv_fin" if STAMP else "s_cbranch_scc1 qkv_end")
    a(f"v_lshlrev_b32 v{T}, 3, v{vN}")
    a(f"ds_read_b64 {vr(T+2,2)}, v{T} offset:{ST}")
    a(f"ds_read_b64 {vr(T+4,2)}, v{T} offset:{ST+256}")
    a(f"s_mov_b32 s45, {hx(f2u(QSCALE))}")
    a(f"s_cmp_lt_u32 s{s_tg}, 20")
    a("s_cselect_b32 s45, s45, 1.0")
    a("s_waitcnt lgkmcnt(0)")
    for rt in range(2):
        a(f"v_mul_f32 v{T+3+2*rt}, s45, v{T+3+2*rt}")
    for rt in range(2):
        for e in range(16):
            r = AC + 16 * rt + e
            a(f"v_fma_f32 v{r}, -v{T+2+2*rt}, v{AC+32+e}, v{r}")
            a(f"v_mul_f32 v{r}, v{r}, v{T+3+2*rt}")
    stamp(a, "qkv")
    vC0, vHead, vD0, vOff, vA = T + 6, T + 7, T + 8, T + 9, T + 10

    def frag_off():
        a(f"v_lshrrev_b32 v{vA}, 3, v{vD0}")
        a(f"v_lshlrev_b32 v{vA}, 9, v{vA}")
        a(f"v_lshl_add_u32 v{vA}, v{vN}, 4, v{vA}")
        a(f"v_and_b32 v{vA+1}, 4, v{vD0}")
        a(f"v_lshl_add_u32 v{vA}, v{vA+1}, 1, v{vA}")
        a(f"v_lshlrev_b32 v{vA+1}, 3, v{vN}")
        a(f"v_add_u32 v{vA+1}, 1024, v{vA+1}")
        a(f"v_cmp_gt_u32 vcc, 16, v{vD0}")
        a(f"v_cndmask_b32 v{vA}, v{vA+1}, v{vA}, vcc")
        a(f"v_add_u32 v{vOff}, v{vOff}, v{vA}")
    a(f"s_cmp_ge_u32 s{s_tg}, 20")
    a("s_cbranch_scc1 qkv_kv")
    a("s_mov_b32 s46, 3277")
    a(f"s_lshl_b32 s38, s{s_tg}, 5")
    a(f"s_mul_i32 s48, s{s_rb}, {2*32*1280}")
    a(f"s_add_u32 s48, s48, {QF}")
    a(f"s_add_u32 s49, s48, {32*1280}")
    for g in range(4):
        a(f"v_lshlrev_b32 v{vC0}, 2, v{vH}")
        a(f"v_add_u32 v{vC0}, s38, v{vC0}")
        if g:
            a(f"v_add_u32 v{vC0}, {8*g}, v{vC0}")
        a(f"v_mul_u32_u24 v{vHead}, s46, v{vC0}")
        a(f"v_lshrrev_b32 v{vHead}, 16, v{vHead}")
        a(f"v_mul_u32_u24 v{vD0}, 20, v{vHead}")
        a(f"v_sub_u32 v{vD0}, v{vC0}, v{vD0}")
        a(f"v_mul_u32_u24 v{vOff}, 1280, v{vHead}")
        frag_off()
        for rt in range(2):
            r = AC + 16 * rt + 4 * g
            a(f"v_cvt_pk_bf16_f32 v{r}, v{r}, v{r+1}")
            a(f"v_cvt_pk_bf16_f32 v{r+1}, v{r+2}, v{r+3}")
            a(f"buffer_store_dwordx2 {vr(r,2)}, v{vOff}, s[{SWS}:{SWS+3}], s{48+rt} offen{SM}")
    a("s_branch qkv_fin")
    a.label("qkv_kv")
    a(f"v_cmp_eq_u32 s[54:55], 0, v{vH}")
    for rt in range(2):
        q = T + 12 + rt
        r = AC + 16 * rt
        a(f"v_mul_f32 v{q}, v{r+8}, v{r+8}")
        for e in range(9, 12):
            a(f"v_fmac_f32 v{q}, v{r+e}, v{r+e}")
        a(f"v_cndmask_b32 v{q}, 0, v{q}, s[54:55]")
        for e in range(8):
            a(f"v_fmac_f32 v{q}, v{r+e}, v{r+e}")
        a(f"v_mov_b32 v{q+2}, v{q}")
        a(f"v_permlane32_swap_b32 v{q}, v{q+2}")
        a(f"v_add_f32 v{q}, v{q}, v{q+2}")
        for g in range(3):
            a(f"v_cvt_pk_bf16_f32 v{r+4*g}, v{r+4*g}, v{r+4*g+1}")
            a(f"v_cvt_pk_bf16_f32 v{r+4*g+1}, v{r+4*g+2}, v{r+4*g+3}")
    a(f"v_max_u32 v{T+12}, v{T+12}, v{T+13}")
    a(f"v_mov_b32 v{T+13}, 0")
    a(f"ds_max_u32 v{T+13}, v{T+12} offset:{MX}")
    a(f"s_cmp_eq_u32 s{s_tg}, 21")
    a("s_cbranch_scc1 qkv_v")
    a(f"s_mul_i32 s48, s{s_rb}, {2*KVS}")
    a(f"s_add_u32 s48, s48, {KF}")
    a(f"s_add_u32 s49, s48, {KVS}")
    for g in range(3):
        a(f"v_lshlrev_b32 v{vD0}, 2, v{vH}")
        if g:
            a(f"v_add_u32 v{vD0}, {8*g}, v{vD0}")
        a(f"v_mov_b32 v{vOff}, 0")
        frag_off()
        if g == 2:
            a("s_mov_b64 exec, 0xffffffff")
        for rt in range(2):
            a(f"buffer_store_dwordx2 {vr(AC+16*rt+4*g,2)}, v{vOff}, s[{SWS}:{SWS+3}], s{48+rt} offen")
    a("s_mov_b64 exec, -1")
    a("s_branch qkv_kn")
    a.label("qkv_v")
    a(f"s_mul_i32 s48, s{s_rb}, {2*KVS}")
    a(f"s_add_u32 s48, s48, {VF}")
    a(f"s_add_u32 s49, s48, {KVS}")
    a(f"v_lshrrev_b32 v{vA}, 4, v{vN}")
    a(f"v_lshlrev_b32 v{vA}, 1, v{vA}")
    a(f"v_bfe_u32 v{vA+1}, v{vN}, 2, 1")
    a(f"v_add_u32 v{vA}, v{vA}, v{vA+1}")
    a(f"v_mul_u32_u24 v{vA}, 21, v{vA}")
    a(f"v_lshl_add_u32 v{vA}, v{vH}, 2, v{vA}")
    a(f"v_lshlrev_b32 v{vOff}, 4, v{vA}")
    a(f"v_and_b32 v{vA}, 3, v{vN}")
    a(f"v_lshl_add_u32 v{vOff}, v{vA}, 1, v{vOff}")
    a(f"v_bfe_u32 v{vA}, v{vN}, 3, 1")
    a(f"v_lshl_add_u32 v{vOff}, v{vA}, 3, v{vOff}")
    for g in range(3):
        if g == 2:
            a("s_mov_b64 exec, 0xffffffff")
        for rt in range(2):
            r = AC + 16 * rt + 4 * g
            o = g * 128
            a(f"buffer_store_short v{r}, v{vOff}, s[{SWS}:{SWS+3}], s{48+rt} offen offset:{o}")
            a(f"buffer_store_short_d16_hi v{r}, v{vOff}, s[{SWS}:{SWS+3}], s{48+rt} offen offset:{o+16}")
            a(f"buffer_store_short v{r+1}, v{vOff}, s[{SWS}:{SWS+3}], s{48+rt} offen offset:{o+32}")
            a(f"buffer_store_short_d16_hi v{r+1}, v{vOff}, s[{SWS}:{SWS+3}], s{48+rt} offen offset:{o+48}")
    a("s_add_u32 s48, s48, 320")
    a(f"v_and_b32 v{vA}, 3, v{vLane}")
    a(f"v_mul_u32_u24 v{vOff}, 336, v{vA}")
    a(f"v_lshrrev_b32 v{vA}, 2, v{vLane}")
    a(f"v_mul_u32_u24 v{vA}, {KVS}, v{vA}")
    a(f"v_add_u32 v{vOff}, v{vOff}, v{vA}")
    a("s_mov_b64 exec, 0xff")
    a(f"buffer_store_dwordx4 {vr(ONE,4)}, v{vOff}, s[{SWS}:{SWS+3}], s48 offen")
    a("s_mov_b64 exec, -1")
    a.label("qkv_kn")
    a("s_waitcnt lgkmcnt(0)")
    a(f"ds_read_b32 v{T+12}, v{T+13} offset:{MX}")
    a(f"s_sub_u32 s48, s{s_tg}, 20")
    a("s_lshl_b32 s48, s48, 5")
    a(f"s_add_u32 s48, s48, s{s_rb}")
    a("s_lshl_b32 s48, s48, 2")
    a(f"s_add_u32 s48, s48, {KN}")
    a("s_waitcnt lgkmcnt(0)")
    a(f"buffer_store_dword v{T+12}, v{T+13}, s[{SWS}:{SWS+3}], s48 offen")
    a.label("qkv_fin")
    stamp_end(a, "qkv", SWS, s_w, 120)
    a("s_endpgm")
    _stamp_n["qkv"] = 2
    a.label("qkv_w3")
    X = AC
    a(f"v_mul_u32_u24 v{vTr}, 336, v{vLane}")
    a(f"v_add_u32 v{vTr}, {XI}, v{vTr}")
    a(f"v_mov_b32 v{T+8}, 0x3f803f80")
    for e in range(4):
        a(f"v_mov_b32 v{T+4+e}, 0")
    a(f"ds_write_b32 v{T+4}, v{T+4} offset:{MX}")
    stamp(a, "qkv")
    a("s_waitcnt vmcnt(0) lgkmcnt(0)")
    stamp(a, "qkv")
    a("s_barrier")
    stamp(a, "qkv")
    if PREFETCH:
        srd(a, 60, 56, 1966080)
        srd(a, 64, 58, 1966080)
        a(f"v_mul_u32_u24 v{T+12}, 43, v{vLane}")
        a(f"v_lshrrev_b32 v{T+12}, 9, v{T+12}")
        a(f"v_mul_u32_u24 v{T+13}, 12, v{T+12}")
        a(f"v_sub_u32 v{T+13}, v{vLane}, v{T+13}")
        a(f"v_mul_u32_u24 v{T+12}, 3072, v{T+12}")
        a(f"v_lshl_add_u32 v{T+12}, v{T+13}, 6, v{T+12}")
        a("s_lshr_b32 s44, s2, 3")
        a(f"s_mul_i32 s44, s44, {20*3072}")
        a("s_bfe_u32 s38, s2, 0x20001")
        a("s_mul_i32 s38, s38, 768")
        a("s_add_u32 s44, s44, s38")
        a("s_mov_b32 s53, 0x0fffffff")
        a("s_mov_b64 exec, s[52:53]")
        for q in range(4):
            a(f"buffer_load_dword v{T+14}, v{T+12}, s[60:63], s44 offen")
            a(f"buffer_load_dword v{T+14}, v{T+12}, s[64:67], s44 offen")
            a(f"s_add_u32 s44, s44, {5*3072}")
        a("s_mov_b64 exec, -1")
    a("s_mov_b32 s41, 4")
    a.label("qkv_sl")
    for c in range(19):
        a(f"ds_read_b128 {vr(X+4*c,4)}, v{vTr} offset:{c*16}")
    a(f"ds_read_b128 {vr(T,4)}, v{vTr} offset:{19*16}")
    for c in range(20):
        a(f"s_waitcnt lgkmcnt({min(15, 19-c)})")
        for e in range(4):
            x = (X + 4 * c + e) if c < 19 else T + e
            b = T + 4 + (e & 1) * 2
            a(f"v_dot2_f32_bf16 v{b}, v{x}, v{T+8}, v{b}")
            a(f"v_dot2_f32_bf16 v{b+1}, v{x}, v{x}, v{b+1}")
    a(f"v_add_u32 v{vTr}, {SL}, v{vTr}")
    a("s_sub_u32 s41, s41, 1")
    a("s_cmp_lg_u32 s41, 0")
    a("s_cbranch_scc1 qkv_sl")
    a(f"s_mov_b32 s45, {hx(f2u(1.0/640))}")
    a(f"s_mov_b32 s46, {hx(f2u(1e-5))}")
    mu, sq, m_b, rr, t0 = T + 4, T + 5, T + 10, T + 11, T + 9
    a(f"v_pk_add_f32 {vr(mu,2)}, {vr(mu,2)}, {vr(mu+2,2)}")
    a(f"v_mul_f32 v{mu}, s45, v{mu}")
    a(f"v_mul_f32 v{sq}, s45, v{sq}")
    a(f"v_fma_f32 v{sq}, -v{mu}, v{mu}, v{sq}")
    a(f"v_max_f32 v{sq}, 0, v{sq}")
    a(f"v_cvt_pk_bf16_f32 v{m_b}, v{mu}, v{sq}")
    a(f"v_and_b32 v{t0}, 0xffff0000, v{m_b}")
    a(f"v_lshlrev_b32 v{m_b}, 16, v{m_b}")
    a(f"v_add_f32 v{t0}, s46, v{t0}")
    a(f"v_cvt_pk_bf16_f32 v{t0}, v{t0}, v{t0}")
    a(f"v_lshlrev_b32 v{t0}, 16, v{t0}")
    a(f"v_sqrt_f32 v{t0}, v{t0}")
    a(f"v_cvt_pk_bf16_f32 v{t0}, v{t0}, v{t0}")
    a(f"v_lshlrev_b32 v{t0}, 16, v{t0}")
    a(f"v_rcp_f32 v{rr}, v{t0}")
    a(f"v_lshlrev_b32 v{T}, 3, v{vLane}")
    a(f"ds_write_b64 v{T}, {vr(m_b,2)} offset:{ST}")
    a("s_waitcnt lgkmcnt(0)")
    stamp(a, "qkv")
    a("s_barrier")
    a(f"v_lshlrev_b32 v{T}, 3, v{vN}")
    a(f"ds_read_b64 {vr(T+2,2)}, v{T} offset:{ST}")
    a(f"ds_read_b64 {vr(T+4,2)}, v{T} offset:{ST+256}")
    for i in range(10):
        rt = i // 5
        a(f"s_add_u32 s41, s{s_cb}, {8*i - 40*rt}")
        a("s_mul_i32 s42, s41, 26")
        a("s_lshr_b32 s42, s42, 8")
        a(f"s_mul_i32 s43, s42, {SL - 320}")
        a("s_lshl_b32 s41, s41, 5")
        a("s_add_u32 s43, s43, s41")
        a(f"v_add_u32 v{T+6}, s43, v{vXr}")
        a(f"ds_read_b128 {vr(X+4*i,4)}, v{T+6} offset:{rt*10752}")
    a("s_waitcnt lgkmcnt(10)")
    PR = X + 40
    for rt in range(2):
        a(f"v_mov_b32 v{PR+4*rt}, v{T+3+2*rt}")
        a(f"v_mov_b32 v{PR+4*rt+1}, v{T+3+2*rt}")
        a(f"v_mul_f32_e64 v{PR+4*rt+2}, -v{T+2+2*rt}, v{T+3+2*rt}")
        a(f"v_mov_b32 v{PR+4*rt+3}, v{PR+4*rt+2}")
    a("s_mov_b32 s47, 0xffff0000")
    a(f"v_lshlrev_b32 v{T}, 4, v{vLane}")
    a(f"s_mul_i32 s39, s{s_rb}, 80")
    a(f"s_add_u32 s39, s39, s{s_cb}")
    a("s_lshl_b32 s39, s39, 10")
    if XF:
        a(f"s_add_u32 s39, s39, {XF}")
    for i in range(10):
        rt = i // 5
        a(f"s_waitcnt lgkmcnt({9-i})")
        for q in range(4):
            x = X + 4 * i + q
            u = X + 48 + q * 2
            a(f"v_lshlrev_b32 v{u}, 16, v{x}")
            a(f"v_and_b32 v{u+1}, s47, v{x}")
            a(f"v_pk_fma_f32 {vr(u,2)}, {vr(u,2)}, {vr(PR+4*rt,2)}, {vr(PR+4*rt+2,2)}")
            a(f"v_cvt_pk_bf16_f32 v{x}, v{u}, v{u+1}")
        a(f"buffer_store_dwordx4 {vr(X+4*i,4)}, v{T}, s[{SWS}:{SWS+3}], s39 offen{SM}")
        a("s_add_u32 s39, s39, 8192")
    a("s_cmp_lg_u32 s2, 255")
    a("s_cbranch_scc1 qkv_noct")
    a(f"v_lshlrev_b32 v{T+4}, 8, v{vLane}")
    a(f"v_mov_b32 v{T+5}, 0")
    a(f"s_mov_b32 s44, {CT}")
    a("s_mov_b32 s52, -1")
    a("s_mov_b32 s53, 0xffff")
    a("s_mov_b64 exec, s[52:53]")
    a(f"buffer_store_dword v{T+5}, v{T+4}, s[{SWS}:{SWS+3}], s44 offen")
    a("s_mov_b64 exec, -1")
    a.label("qkv_noct")
    stamp(a, "qkv")
    stamp_end(a, "qkv", SWS, s_w, 120)
    a.label("qkv_end")
    a("s_endpgm")
    return a.finish(), ("qkv_kernel", 256, 256, WR + 61440, 256 if STAMP else 128)


A_Q, A_O, A_S, A_P, A_K, A_V, A_M = 16, 48, 112, 144, 160, 192, 224
A_T = 228
NSET = 4
OOB = 0x80000000


def gen_attn_body(a, pfx, s_wg, fused=False):
    s_w, s_rt, s_kh, s_hd = 32, 33, 34, 35
    SWS = 28
    vLane, vN, vH = 1, 2, 3
    vK1, vK2, vV = 4, 5, 6
    T = A_T
    a("s_load_dwordx2 s[12:13], s[0:1], 88")
    a("s_load_dwordx2 s[14:15], s[0:1], 32")
    lane_setup(a, T, vLane, vN, vH, s_w)
    a(f"s_and_b32 s3, s{s_wg}, 7")
    a(f"s_lshr_b32 s36, s{s_wg}, 5")
    a("s_lshl_b32 s3, s3, 3")
    a(f"s_add_u32 s{s_rt}, s3, s36")
    a(f"s_bfe_u32 s3, s{s_wg}, 0x20003")
    a(f"s_and_b32 s{s_kh}, s{s_w}, 1")
    a(f"s_lshr_b32 s36, s{s_w}, 1")
    a("s_lshl_b32 s3, s3, 3")
    a("s_lshl_b32 s36, s36, 2")
    a(f"s_add_u32 s{s_hd}, s3, s36")
    a(f"v_lshlrev_b32 v{vK1}, 4, v{vLane}")
    a(f"v_lshlrev_b32 v{vK2}, 3, v{vN}")
    a(f"v_add_u32 v{vK2}, 1024, v{vK2}")
    a(f"v_mov_b32 v{T}, {hx(OOB)}")
    a(f"v_cmp_eq_u32 vcc, 0, v{vH}")
    a(f"v_cndmask_b32 v{vK2}, v{T}, v{vK2}, vcc")
    a(f"v_mul_u32_u24 v{vV}, 21, v{vH}")
    a(f"v_add_u32 v{vV}, v{vV}, v{vN}")
    a(f"v_lshlrev_b32 v{vV}, 4, v{vV}")
    a(f"v_cmp_gt_u32 vcc, 21, v{vN}")
    a(f"v_cndmask_b32 v{vV}, v{T}, v{vV}, vcc")
    a("s_waitcnt lgkmcnt(0)")
    srd(a, SWS, 12, WS_END)
    a(f"v_lshlrev_b32 v{T+8}, 2, v{vLane}")
    a(f"s_mov_b32 s36, {KN}")
    a(f"buffer_load_dword v{T+9}, v{T+8}, s[{SWS}:{SWS+3}], s36 offen")
    a(f"s_lshl_b32 s36, s{s_rt}, 5")
    a(f"s_add_u32 s36, s36, s{s_hd}")
    a("s_mul_i32 s36, s36, 1280")
    a(f"s_add_u32 s36, s36, {QF}")
    for i in range(4):
        a(f"buffer_load_dwordx4 {vr(A_Q+8*i,4)}, v{vK1}, s[{SWS}:{SWS+3}], s36 offen")
        a(f"buffer_load_dwordx2 {vr(A_Q+8*i+4,2)}, v{vK2}, s[{SWS}:{SWS+3}], s36 offen")
        if i < 3:
            a("s_add_u32 s36, s36, 1280")
    s_kp, s_vp = 37, 38
    a(f"s_mul_i32 s{s_kp}, s{s_kh}, {32*KVS}")
    a(f"s_add_u32 s{s_kp}, s{s_kp}, {KF}")
    a(f"s_add_u32 s{s_vp}, s{s_kp}, 1280")

    def loadK(st):
        a(f"buffer_load_dwordx4 {vr(A_K+8*st,4)}, v{vK1}, s[{SWS}:{SWS+3}], s{s_kp} offen")
        a(f"buffer_load_dwordx2 {vr(A_K+8*st+4,2)}, v{vK2}, s[{SWS}:{SWS+3}], s{s_kp} offen")
        a(f"s_add_u32 s{s_kp}, s{s_kp}, {KVS}")

    def loadV(st):
        a(f"buffer_load_dwordx4 {vr(A_V+8*st,4)}, v{vV}, s[{SWS}:{SWS+3}], s{s_vp} offen")
        a(f"buffer_load_dwordx4 {vr(A_V+8*st+4,4)}, v{vV}, s[{SWS}:{SWS+3}], s{s_vp} offen offset:672")
        a(f"s_add_u32 s{s_vp}, s{s_vp}, {KVS}")
    for st in range(NSET - 1):
        loadK(st)
        loadV(st)
    loadK(NSET - 1)
    for i in range(4):
        a(f"v_mov_b32 v{A_Q+8*i+6}, 0")
        a(f"v_mov_b32 v{A_Q+8*i+7}, 0")
    for st in range(NSET):
        a(f"v_mov_b32 v{A_K+8*st+6}, 0")
        a(f"v_mov_b32 v{A_K+8*st+7}, 0")
    for r in range(16):
        a(f"v_mov_b32 v{A_P+r}, 0")
    for i in range(4):
        mfma32(a, A_O + 16 * i, A_P, A_P, "0")
    for r in range(8):
        a(f"v_mov_b32 v{A_V+8*(NSET-1)+r}, 0")
    for r in range(4):
        a(f"v_mov_b32 v{A_M+r}, 0")
    a(f"s_waitcnt vmcnt({4*NSET-2+8})")
    for sh in (1, 2, 4, 8):
        a(f"v_max_u32_dpp v{T+9}, v{T+9}, v{T+9} row_ror:{sh} row_mask:0xf bank_mask:0xf")
    a(f"v_readlane_b32 s64, v{T+9}, 0")
    a(f"v_readlane_b32 s65, v{T+9}, 16")
    a(f"v_readlane_b32 s44, v{T+9}, 32")
    a(f"v_readlane_b32 s45, v{T+9}, 48")
    a("s_max_u32 s64, s64, s65")
    a("s_max_u32 s44, s44, s45")
    a(f"s_waitcnt vmcnt({4*NSET-2})")
    for i in range(4):
        a(f"v_mov_b32 v{T+i}, 0")
    for r in range(6):
        for i in range(4):
            a(f"v_dot2_f32_bf16 v{T+i}, v{A_Q+8*i+r}, v{A_Q+8*i+r}, v{T+i}")
    for i in range(4):
        a(f"v_mov_b32 v{T+4+i}, v{T+i}")
    for i in range(4):
        a(f"v_permlane32_swap_b32 v{T+i}, v{T+4+i}")
    for i in range(4):
        a(f"v_add_f32 v{T+i}, v{T+i}, v{T+4+i}")
    a(f"v_max3_f32 v{T}, v{T}, v{T+1}, v{T+2}")
    a(f"v_max_f32 v{T}, v{T}, v{T+3}")
    a(f"v_mul_f32 v{T}, s64, v{T}")
    a(f"v_mov_b32 v{T+1}, {hx(f2u(3600.0/1.05))}")
    a(f"v_cmp_nle_f32 vcc, v{T}, v{T+1}")
    a(f"s_cmp_gt_u32 s44, {hx(f2u(2.0**80))}")
    a(f"s_cbranch_scc1 {pfx}_slow")
    a(f"s_cbranch_vccnz {pfx}_slow")

    def qk(m, sb, ks, i):
        if m == 0:
            mfma32(a, A_S + 16 * sb, A_K + 8 * ks, A_Q + 8 * i, "0")
        else:
            mfma32(a, A_S + 16 * sb, A_K + 8 * ks + 4, A_Q + 8 * i + 4)

    def pv(m, pb, vs, i):
        mfma32(a, A_O + 16 * i, A_V + 8 * vs + 4 * m, A_P + 8 * pb + 4 * m)

    a(f"s_waitcnt vmcnt({4*NSET-4})")
    qk(0, 0, 0, 0)
    qk(1, 0, 0, 0)
    stamp(a, "attn")
    a(f"s_mov_b32 s39, {32//NSET}")
    a("s_nop 10")
    a.raw(".p2align 6")
    a.label(f"{pfx}_loop")
    for kk in range(NSET):
        for i in range(4):
            cur = i & 1
            S = A_S + 16 * cur
            P = A_P + 8 * cur
            nks, ni = (kk, i + 1) if i < 3 else ((kk + 1) % NSET, 0)
            pvs, pi = (kk, i - 1) if i > 0 else ((kk - 1) % NSET, 3)
            if i in (1, 3) and not os.environ.get("NOWAIT"):
                a(f"s_waitcnt vmcnt({4*NSET-6})")
            def ex(lo, hi):
                for e in range(lo, hi):
                    a(f"v_exp_f32 v{S+e}, v{S+e}")

            def cv(lo, hi):
                for jj in range(lo, hi):
                    a(f"v_cvt_pk_bf16_f32 v{P+jj}, v{S+2*jj}, v{S+2*jj+1}")
            if ORDER2:
                qk(0, cur ^ 1, nks, ni)
                ex(0, 5)
                qk(1, cur ^ 1, nks, ni)
                if i == 1:
                    loadV((kk - 1) % NSET)
                if i == 3:
                    loadK(kk)
                ex(5, 9)
                cv(0, 2)
                pv(0, cur ^ 1, pvs, pi)
                ex(9, 13)
                cv(2, 4)
                pv(1, cur ^ 1, pvs, pi)
                ex(13, 16)
                cv(4, 8)
            else:
                qk(0, cur ^ 1, nks, ni)
                ex(0, 4)
                qk(1, cur ^ 1, nks, ni)
                if i == 1:
                    loadV((kk - 1) % NSET)
                if i == 3:
                    loadK(kk)
                ex(4, 8)
                pv(0, cur ^ 1, pvs, pi)
                ex(8, 12)
                cv(0, 2)
                pv(1, cur ^ 1, pvs, pi)
                ex(12, 16)
                cv(2, 8)
    a("s_sub_u32 s39, s39, 1")
    a("s_cmp_lg_u32 s39, 0")
    a(f"s_cbranch_scc1 {pfx}_loop")
    pv(0, 1, NSET - 1, 3)
    pv(1, 1, NSET - 1, 3)
    stamp(a, "attn")
    a(f"s_branch {pfx}_epi")

    a.label(f"{pfx}_slow")
    for r in range(4):
        a(f"v_mov_b32 v{A_M+r}, {hx(f2u(-1e30))}")
    a("s_mov_b32 s39, 32")
    a(f"s_sub_u32 s{s_kp}, s{s_kp}, {KVS*(NSET-1)}")
    a(f"s_sub_u32 s{s_vp}, s{s_vp}, {KVS*(NSET-2)}")
    a.label(f"{pfx}_sloop")
    a("s_waitcnt vmcnt(0)")
    for i in range(4):
        S, P, M = A_S, A_P, A_M + i
        qk(0, 0, 0, i)
        qk(1, 0, 0, i)
        a(f"v_max3_f32 v{T}, v{S}, v{S+1}, v{S+2}")
        for e in range(3, 15, 2):
            a(f"v_max3_f32 v{T}, v{T}, v{S+e}, v{S+e+1}")
        a(f"v_max_f32 v{T}, v{T}, v{S+15}")
        a(f"v_mov_b32 v{T+1}, v{T}")
        a(f"v_permlane32_swap_b32 v{T}, v{T+1}")
        a(f"v_max3_f32 v{T}, v{T}, v{T+1}, v{M}")
        a(f"v_sub_f32 v{T+1}, v{M}, v{T}")
        a(f"v_exp_f32 v{T+1}, v{T+1}")
        a(f"v_mov_b32 v{M}, v{T}")
        for e in range(16):
            a(f"v_sub_f32 v{S+e}, v{S+e}, v{T}")
            a(f"v_exp_f32 v{S+e}, v{S+e}")
        for j in range(8):
            a(f"v_cvt_pk_bf16_f32 v{P+j}, v{S+2*j}, v{S+2*j+1}")
        for e in range(16):
            a(f"v_mul_f32 v{A_O+16*i+e}, v{A_O+16*i+e}, v{T+1}")
        pv(0, 0, 0, i)
        pv(1, 0, 0, i)
    loadK(0)
    loadV(0)
    a("s_sub_u32 s39, s39, 1")
    a("s_cmp_lg_u32 s39, 0")
    a(f"s_cbranch_scc1 {pfx}_sloop")

    a.label(f"{pfx}_epi")
    a("s_waitcnt vmcnt(0)")
    if PREFETCH and not fused:
        srd(a, 16, 14, 819200)
        a(f"s_lshr_b32 s40, s{s_wg}, 3")
        a("s_lshl_b32 s40, s40, 2")
        a(f"s_add_u32 s40, s40, s{s_w}")
        a("s_mul_i32 s40, s40, 6400")
        a(f"v_lshlrev_b32 v{T+14}, 6, v{vLane}")
        a(f"buffer_load_dword v{T+15}, v{T+14}, s[16:19], s40 offen")
        a("s_add_u32 s40, s40, 4096")
        a(f"buffer_load_dword v{T+15}, v{T+14}, s[16:19], s40 offen")
    vW, vR = T, T + 1
    a(f"s_mul_i32 s40, s{s_w}, 6656")
    a(f"s_xor_b32 s41, s{s_w}, 1")
    a("s_mul_i32 s41, s41, 6656")
    a(f"v_add_u32 v{vW}, s40, v{vK1}")
    a(f"v_add_u32 v{vR}, s41, v{vK1}")
    a(f"v_lshlrev_b32 v{T+2}, 2, v{vLane}")
    a(f"v_add_u32 v{T+3}, s41, v{T+2}")
    a(f"v_add_u32 v{T+2}, s40, v{T+2}")
    a(f"s_cmp_eq_u32 s{s_kh}, 0")
    a(f"s_cbranch_scc1 {pfx}_e0")
    for t in range(2):
        for q in range(3):
            a(f"ds_write_b128 v{vW}, {vr(A_O+16*t+4*q,4)} offset:{(t*3+q)*1024}")
        a(f"ds_write_b32 v{T+2}, v{A_M+t} offset:{6144+t*256}")
    a("s_waitcnt lgkmcnt(0)")
    for t in range(2):
        for e in range(12):
            a(f"v_mov_b32 v{A_O+16*t+e}, v{A_O+16*(t+2)+e}")
        a(f"v_mov_b32 v{A_M+t}, v{A_M+t+2}")
    a(f"s_add_u32 s{s_hd}, s{s_hd}, 2")
    a(f"s_branch {pfx}_e1")
    a.label(f"{pfx}_e0")
    for t in range(2):
        for q in range(3):
            a(f"ds_write_b128 v{vW}, {vr(A_O+16*(t+2)+4*q,4)} offset:{(t*3+q)*1024}")
        a(f"ds_write_b32 v{T+2}, v{A_M+t+2} offset:{6144+t*256}")
    a("s_waitcnt lgkmcnt(0)")
    a.label(f"{pfx}_e1")
    a("s_barrier")
    for t in range(2):
        for q in range(3):
            a(f"ds_read_b128 {vr(A_S+16*t+4*q,4)}, v{vR} offset:{(t*3+q)*1024}")
        a(f"ds_read_b32 v{A_M+2+t}, v{T+3} offset:{6144+t*256}")
    a("s_waitcnt lgkmcnt(0)")
    a(f"s_mul_i32 s40, s{s_rt}, {40*1024}")
    a(f"s_add_u32 s40, s40, {OF}")
    a(f"v_mov_b32 v{T+12}, {hx(OOB)}")
    a(f"v_cmp_eq_u32 s[42:43], 0, v{vH}")
    for t in range(2):
        O, Pz, Ma, Mp = A_O + 16 * t, A_S + 16 * t, A_M + t, A_M + 2 + t
        a(f"v_max_f32 v{T+4}, v{Ma}, v{Mp}")
        a(f"v_sub_f32 v{T+5}, v{Ma}, v{T+4}")
        a(f"v_sub_f32 v{T+6}, v{Mp}, v{T+4}")
        a(f"v_exp_f32 v{T+5}, v{T+5}")
        a(f"v_exp_f32 v{T+6}, v{T+6}")
        for e in range(12):
            a(f"v_mul_f32 v{O+e}, v{O+e}, v{T+5}")
            a(f"v_fmac_f32 v{O+e}, v{Pz+e}, v{T+6}")
        a(f"v_mov_b32 v{T+7}, v{O+8}")
        a(f"v_mov_b32 v{T+8}, v{O+8}")
        a(f"v_permlane32_swap_b32 v{T+7}, v{T+8}")
        a(f"v_rcp_f32 v{T+8}, v{T+8}")
        for e in range(12):
            a(f"v_mul_f32 v{O+e}, v{O+e}, v{T+8}")
        for q in range(3):
            a(f"v_cvt_pk_bf16_f32 v{O+4*q}, v{O+4*q}, v{O+4*q+1}")
            a(f"v_cvt_pk_bf16_f32 v{O+4*q+1}, v{O+4*q+2}, v{O+4*q+3}")
        a(f"s_add_u32 s41, s{s_hd}, {t}")
        a("s_mul_i32 s41, s41, 20")
        for q in range(3):
            k, off = T + 9, T + 10
            a(f"v_lshlrev_b32 v{k}, 2, v{vH}")
            a(f"v_add_u32 v{k}, s41, v{k}")
            if q:
                a(f"v_add_u32 v{k}, {8*q}, v{k}")
            if fused:
                a(f"v_lshrrev_b32 v{off}, 4, v{k}")
                a(f"v_lshlrev_b32 v{off}, 10, v{off}")
                a(f"v_lshl_add_u32 v{off}, v{vN}, 4, v{off}")
                a(f"v_and_b32 v{T+11}, 4, v{k}")
                a(f"v_lshl_add_u32 v{off}, v{T+11}, 7, v{off}")
                a(f"v_and_b32 v{k}, 8, v{k}")
                a(f"v_add_u32 v{off}, v{k}, v{off}")
            else:
                a(f"v_lshrrev_b32 v{off}, 3, v{k}")
                a(f"v_lshlrev_b32 v{off}, 9, v{off}")
                a(f"v_lshl_add_u32 v{off}, v{vN}, 4, v{off}")
                a(f"v_and_b32 v{k}, 4, v{k}")
                a(f"v_lshl_add_u32 v{off}, v{k}, 1, v{off}")
            if q == 2:
                a(f"v_cndmask_b32 v{off}, v{T+12}, v{off}, s[42:43]")
            a(f"buffer_store_dwordx2 {vr(O+4*q,2)}, v{off}, s[{SWS}:{SWS+3}], s40 offen{' sc1' if fused else SM}")
    if fused:
        a("s_waitcnt vmcnt(0)")
        a("s_barrier")
        a(f"s_cmp_lg_u32 s{s_w}, 0")
        a(f"s_cbranch_scc1 {pfx}_nosig")
        a(f"s_lshr_b32 s40, s{s_rt}, 1")
        a("s_lshl_b32 s40, s40, 8")
        a(f"s_add_u32 s40, s40, {CT + 4096}")
        a(f"v_mov_b32 v{T}, 0")
        a(f"v_mov_b32 v{T+1}, 1")
        a("s_mov_b64 exec, 1")
        a(f"buffer_atomic_add v{T+1}, v{T}, s[{SWS}:{SWS+3}], s40 offen sc1")
        a("s_mov_b64 exec, -1")
        a.label(f"{pfx}_nosig")


def gen_attn():
    a = Asm()
    a.label("attn_kernel")
    a("s_cmp_ge_u32 s2, 256")
    a("s_cbranch_scc1 attn_end")
    stamp_begin(a, "attn")
    gen_attn_body(a, "attn", 2)
    stamp_end(a, "attn", 28, 32, 250)
    a.label("attn_end")
    a("s_endpgm")
    return a.finish(), ("attn_kernel", 256, 256, 26624, 256 if STAMP else 248)


R_ACC, R_A, R_B, R_T = 16, 112, 160, 208


def zero_acc(a, acc, n, tmp):
    for e in range(4):
        a(f"v_mov_b32 v{tmp+e}, 0")
    for t in range(n):
        mfma32(a, acc + 16 * t, tmp, tmp, "0")


def typek_rolled(K, pfx):
    a, RD = K.a, K.RD
    assert K.RD == 6 and K.RB == 6 and K.KS % 6 == 0
    a("s_waitcnt vmcnt(10)")
    for x in K.reads(0):
        a(x)
    a(f"s_mov_b32 s59, {K.KS // 6}")
    a(f"s_add_u32 s{K.s_g}, s{K.s_g}, {6*K.gstep}")
    a.label(f"{pfx}_kl")
    for s in range(6):
        a(f"s_waitcnt vmcnt({min(22, 10 + 3*s)})")
        for x in K.reads(s + 1):
            a(x)
        a("s_waitcnt lgkmcnt(6)")
        k = 0
        for ct in range(3):
            for rt in range(2):
                mfma32(a, K.ACC + (rt * 3 + ct) * 16, K.AF + (s & 1) * 12 + ct * 4, K.BF + s * 8 + rt * 4)
                if k % 2 == 0:
                    c = k // 2
                    a(f"s_add_u32 m0, s{K.s_ring}, {(s*3+c)*1024}")
                    a(f"s_add_u32 s91, s{K.s_g}, {s*K.gstep + c*64}")
                    a(f"buffer_load_dwordx4 v{K.vWo}, s[{K.SW}:{K.SW+3}], s91 offen lds")
                k += 1
        for rt in range(2):
            sb = K.s_b0 if rt == 0 else K.s_b1
            a(f"s_add_u32 s91, s{sb}, {(s+6)*1024}")
            a(f"buffer_load_dwordx4 {vr(K.BF+s*8+rt*4,4)}, v{K.vB}, s[{K.SB}:{K.SB+3}], s91 offen{K.bmods}")
    a(f"s_add_u32 s{K.s_g}, s{K.s_g}, {6*K.gstep}")
    a(f"s_add_u32 s{K.s_b0}, s{K.s_b0}, 6144")
    a(f"s_add_u32 s{K.s_b1}, s{K.s_b1}, 6144")
    a("s_sub_u32 s59, s59, 1")
    a("s_cmp_lg_u32 s59, 0")
    a(f"s_cbranch_scc1 {pfx}_kl")
    a("s_waitcnt vmcnt(0) lgkmcnt(0)")


class TypeR:
    def __init__(self, a, pfx, NT, NS, vTr, vWo, vB, s_w, srd_of_tile, goff, s_bp, SWS, tr2, bmods=""):
        self.__dict__.update(locals())
        self.SLOT = 4 * NT * 1024
        self.sname = {"gu": "gateup", "dn": "down", "fi": "final"}[pfx[:2]]
        self.s_m = 60
        self.per = NT + 4

    def dma_ops(self, stage):
        slot = stage % 3
        s_g0, s_g1, gstep = self.goff
        out = []
        for t in range(self.NT):
            sr, grp, tt = self.srd_of_tile(t)
            out.append([f"s_add_u32 m0, s{self.s_m}, {slot*self.SLOT + t*1024}",
                        f"s_add_u32 s61, s{s_g0 if grp == 0 else s_g1}, {stage*gstep + tt*64}",
                        f"buffer_load_dwordx4 v{self.vWo}, s[{sr}:{sr+3}], s61 offen lds"])
        return out

    def b_ops(self, stage):
        slot = stage % 3
        bl = []
        for j in range(4):
            g = []
            if j == 0:
                g.append(f"s_add_u32 s62, s{self.s_bp}, {stage*4096}")
            g.append(f"buffer_load_dwordx4 {vr(R_B+slot*16+j*4,4)}, v{self.vB}, s[{self.SWS}:{self.SWS+3}], s62 offen offset:{j*1024}{self.bmods}")
            bl.append(g)
        return bl

    def vm_ops(self, stage):
        out, bl, res = self.dma_ops(stage), self.b_ops(stage), []
        while out or bl:
            if out:
                res.append(out.pop(0))
            if bl and len(res) > 1:
                res.append(bl.pop(0))
        return res

    def emit(self, groups):
        for g in groups:
            for x in g:
                self.a(x)

    def reads(self, stage, j):
        buf = (stage * 4 + j) & 1
        slot = stage % 3
        base = (slot & 1) * self.SLOT + j * self.NT * 1024
        va = self.vTr + (slot >> 1)
        out = []
        for t in range(self.NT):
            r = R_A + buf * 24 + t * 4
            out.append(f"ds_read_b64_tr_b16 {vr(r,2)}, v{va} offset:{base + t*1024}")
            out.append(f"ds_read_b64_tr_b16 {vr(r+2,2)}, v{va} offset:{base + t*1024 + self.tr2}")
        return out

    def mf(self, stage, j, t):
        buf = (stage * 4 + j) & 1
        first = stage == 0 and j == 0
        mfma32(self.a, R_ACC + 16 * t, R_A + buf * 24 + t * 4, R_B + (stage % 3) * 16 + j * 4, "0" if first else None)

    def setup(self):
        a = self.a
        a(f"s_mul_i32 s{self.s_m}, s{self.s_w}, {self.NT*1024}")
        a(f"v_add_u32 v{self.vTr+1}, {2*self.SLOT}, v{self.vTr}")

    def main(self, first_wait, extra_vm=None):
        a, NT, NS = self.a, self.NT, self.NS
        extra_vm = extra_vm or {}
        order = [0] * self.per + [1] * self.per
        stamp(a, self.sname)
        a(f"s_waitcnt vmcnt({first_wait})")
        a("s_barrier")
        stamp(a, self.sname)
        for x in self.reads(0, 0):
            a(x)
        for i in range(NS):
            if i in (1, 2, 4):
                stamp(a, self.sname)
            ops = self.vm_ops(i + 2) if i + 2 < NS else []
            order += [i + 2] * len(ops)
            ops = ops + extra_vm.get(i, [])
            order += [-1] * len(extra_vm.get(i, []))
            nslots = 3 * NT
            place = {}
            for k, g in enumerate(ops):
                place.setdefault((k * nslots) // len(ops), []).append(g)
            for j in range(3):
                rd = self.reads(i, j + 1)
                for t in range(NT):
                    a(f"s_waitcnt lgkmcnt({2*(NT-1)})")
                    self.mf(i, j, t)
                    a(rd[2 * t])
                    a(rd[2 * t + 1])
                    if j * NT + t in place:
                        self.emit(place[j * NT + t])
            last = i + 1 == NS
            H = NT if last else (NT + 1) // 2
            for t in range(H):
                a(f"s_waitcnt lgkmcnt({2*(NT-1-t)})")
                self.mf(i, 3, t)
            if not last:
                lastidx = max(k for k, o in enumerate(order) if o == i + 1)
                a(f"s_waitcnt vmcnt({len(order) - 1 - lastidx}) lgkmcnt(0)")
                a("s_barrier")
                rd = self.reads(i + 1, 0)
                n = NT - H
                for k, t in enumerate(range(H, NT)):
                    self.mf(i, 3, t)
                    for x in rd[(k * len(rd)) // n:((k + 1) * len(rd)) // n]:
                        a(x)


def typer_rolled(R, extra_vm=None):
    a, NT = R.a, R.NT
    assert R.NS == 10
    s_g0, s_g1, gstep = R.goff
    extra_vm = extra_vm or []
    a(f"s_waitcnt vmcnt({R.per})")
    a("s_barrier")
    stamp(a, R.sname)
    for x in R.reads(0, 0):
        a(x)
    a("s_mov_b32 s59, 3")
    a.label(f"{R.pfx}_rl")
    nx = len(extra_vm)

    def stage(i, ops, xtra, wait_n, last=False):
        ops = xtra + ops
        nslots = 3 * NT
        place = {}
        for k, g in enumerate(ops):
            place.setdefault((k * nslots) // len(ops), []).append(g)
        for j in range(3):
            rd = R.reads(i, j + 1)
            for t in range(NT):
                a(f"s_waitcnt lgkmcnt({2*(NT-1)})")
                R.mf(i + 3, j, t)
                a(rd[2 * t])
                a(rd[2 * t + 1])
                if j * NT + t in place:
                    R.emit(place[j * NT + t])
        H = NT if last else (NT + 1) // 2
        for t in range(H):
            a(f"s_waitcnt lgkmcnt({2*(NT-1-t)})")
            R.mf(i + 3, 3, t)
        if not last:
            a(f"s_waitcnt vmcnt({wait_n}) lgkmcnt(0)")
            a("s_barrier")
            rd = R.reads(i + 1, 0)
            n = NT - H
            for k, t in enumerate(range(H, NT)):
                R.mf(i + 3, 3, t)
                for x in rd[(k * len(rd)) // n:((k + 1) * len(rd)) // n]:
                    a(x)
    stage(0, R.vm_ops(2), extra_vm, R.per + nx)
    stage(1, R.vm_ops(3), [], R.per)
    stage(2, R.vm_ops(4), [], R.per)
    a(f"s_add_u32 s{s_g0}, s{s_g0}, {3*gstep}")
    if s_g1 != s_g0:
        a(f"s_add_u32 s{s_g1}, s{s_g1}, {3*gstep}")
    a(f"s_add_u32 s{R.s_bp}, s{R.s_bp}, {3*4096}")
    a("s_sub_u32 s59, s59, 1")
    a("s_cmp_lg_u32 s59, 0")
    a(f"s_cbranch_scc1 {R.pfx}_rl")
    stage(0, [], [], 0, last=True)


def gen_gateup_body(a, pfx, s_wg, mid_hook=None, smods='', extra_vm=None):
    s_w, s_rb, s_cb = 32, 33, 34
    SW1, SW3, SWS = 16, 20, 28
    vLane, vN, vH, vWo, vB, vTr = 1, 2, 3, 4, 5, 6
    T = R_T
    a("s_load_dwordx4 s[4:7], s[0:1], 48")
    a("s_load_dwordx2 s[12:13], s[0:1], 88")
    lane_setup(a, T, vLane, vN, vH, s_w)
    a(f"s_and_b32 s3, s{s_wg}, 7")
    a(f"s_lshr_b32 s35, s{s_wg}, 3")
    a("s_and_b32 s36, s3, 1")
    a("s_lshl_b32 s36, s36, 3")
    a("s_and_b32 s37, s35, 7")
    a(f"s_add_u32 s{s_rb}, s36, s37")
    a("s_lshr_b32 s36, s3, 1")
    a("s_lshl_b32 s36, s36, 2")
    a("s_lshr_b32 s37, s35, 3")
    a(f"s_add_u32 s{s_cb}, s36, s37")
    a(f"v_lshrrev_b32 v{T}, 2, v{vLane}")
    a(f"v_mul_u32_u24 v{vWo}, 3072, v{T}")
    a(f"v_and_b32 v{T}, 3, v{vLane}")
    a(f"v_lshl_add_u32 v{vWo}, v{T}, 4, v{vWo}")
    tr_base(a, vTr, T, vLane, vH, 9)
    a(f"v_lshlrev_b32 v{vB}, 4, v{vLane}")
    a(f"s_mul_i32 s40, s{s_w}, {16*3072}")
    a(f"s_mul_i32 s41, s{s_cb}, 192")
    a("s_add_u32 s40, s40, s41")
    a(f"s_lshl_b32 s42, s{s_rb}, 2")
    a(f"s_add_u32 s42, s42, s{s_w}")
    a(f"s_mul_i32 s43, s42, {40*1024}")
    if XF:
        a(f"s_add_u32 s43, s43, {XF}")
    a("s_waitcnt lgkmcnt(0)")
    srd(a, SW1, 4, 1966080)
    srd(a, SW3, 6, 1966080)
    srd(a, SWS, 12, WS_END)
    R = TypeR(a, pfx, 6, 10, vTr, vWo, vB, s_w,
              lambda t: (SW1, 0, t) if t < 3 else (SW3, 0, t - 3), (40, 40, 64 * 3072), 43, SWS, 256)
    R.setup()
    R.emit(R.vm_ops(0) + R.vm_ops(1))
    if ROLL:
        zero_acc(a, R_ACC, 6, R_A)
        typer_rolled(R, extra_vm)
    else:
        R.main(R.per, extra_vm)
    if mid_hook:
        mid_hook()
    stamp(a, "gateup")
    a(f"s_mov_b32 s44, {hx(f2u(-math.log2(math.e)))}")
    a(f"s_mul_i32 s45, s42, {96*1024}")
    a(f"s_mul_i32 s46, s{s_cb}, {6*1024}")
    a("s_add_u32 s45, s45, s46")
    a(f"s_add_u32 s45, s45, {HF}")
    a(f"v_mov_b32 v{T}, s44")
    a(f"v_mov_b32 v{T+1}, s44")
    a(f"v_mov_b32 v{T+2}, 1.0")
    a(f"v_mov_b32 v{T+3}, 1.0")
    for t in range(3):
        g, u = R_ACC + 16 * t, R_ACC + 16 * (t + 3)
        E = R_A
        if mid_hook and t == int(os.environ.get("PSL", "9")):
            a("s_setprio 0")
        for e in range(0, 16, 2):
            a(f"v_pk_mul_f32 {vr(E+e,2)}, {vr(g+e,2)}, {vr(T,2)}")
        for e in range(16):
            a(f"v_exp_f32 v{E+e}, v{E+e}")
        for e in range(0, 16, 2):
            a(f"v_pk_add_f32 {vr(E+e,2)}, {vr(E+e,2)}, {vr(T+2,2)}")
        for e in range(16):
            a(f"v_rcp_f32 v{E+e}, v{E+e}")
        for e in range(0, 16, 2):
            a(f"v_pk_mul_f32 {vr(g+e,2)}, {vr(g+e,2)}, {vr(u+e,2)}")
        for e in range(0, 16, 2):
            a(f"v_pk_mul_f32 {vr(g+e,2)}, {vr(g+e,2)}, {vr(E+e,2)}")
        for j in range(8):
            a(f"v_cvt_pk_bf16_f32 v{u+j}, v{g+2*j}, v{g+2*j+1}")
        for hf in range(2):
            o = (2 * t + hf) * 1024
            if o < 4096:
                a(f"buffer_store_dwordx4 {vr(u+4*hf,4)}, v{vB}, s[{SWS}:{SWS+3}], s45 offen offset:{o}{smods}")
            else:
                a(f"s_add_u32 s46, s45, {o}")
                a(f"buffer_store_dwordx4 {vr(u+4*hf,4)}, v{vB}, s[{SWS}:{SWS+3}], s46 offen{smods}")


def gen_gateup():
    a = Asm()
    a.label("gateup_kernel")
    a("s_cmp_ge_u32 s2, 256")
    a("s_cbranch_scc1 gateup_end")
    stamp_begin(a, "gateup")
    gen_gateup_body(a, "gu", 2)
    stamp_end(a, "gateup", 28, 32, 240)
    a.label("gateup_end")
    a("s_endpgm")
    return a.finish(), ("gateup_kernel", 256, 256, 73728, 256 if STAMP else 216)


D_AF, D_BF, D_RES, D_XR, D_T = 112, 136, 184, 212, 224
RING = 18432


def tile64_setup(a, s_wg, s_rb, s_cb):
    a(f"s_and_b32 s3, s{s_wg}, 7")
    a("s_lshl_b32 s3, s3, 2")
    a(f"s_bfe_u32 s36, s{s_wg}, 0x20003")
    a(f"s_add_u32 s{s_rb}, s3, s36")
    a(f"s_lshr_b32 s{s_cb}, s{s_wg}, 5")


def gen_down_setup(a, s_wg, standalone, bmods=""):
    s_w = 32
    s_rb, s_cb = 63, 64
    SW, SWS, SX = 24, 28, 76
    vLane, vN, vH, vWo, vB, vTr, vXo = 1, 2, 3, 8, 5, 9, 10
    T = D_T
    a("s_load_dwordx2 s[8:9], s[0:1], 64")
    a("s_load_dwordx2 s[14:15], s[0:1], 0")
    if FUSE:
        a("s_load_dwordx2 s[84:85], s[0:1], 32")
        a("s_load_dwordx2 s[86:87], s[0:1], 72")
    if standalone:
        a("s_load_dwordx2 s[12:13], s[0:1], 88")
        lane_setup(a, T, vLane, vN, vH, s_w)
        a(f"v_lshlrev_b32 v{vB}, 4, v{vLane}")
    tile64_setup(a, s_wg, s_rb, s_cb)
    a(f"v_lshrrev_b32 v{T}, 2, v{vLane}")
    a(f"v_mul_u32_u24 v{vWo}, 1280, v{T}")
    a(f"v_and_b32 v{T}, 3, v{vLane}")
    a(f"v_lshl_add_u32 v{vWo}, v{T}, 4, v{vWo}")
    tr_base(a, vTr, T, vLane, vH, 8)
    a(f"s_mul_i32 s67, s{s_w}, {RING}")
    a(f"v_add_u32 v{vTr}, s67, v{vTr}")
    a(f"v_mul_u32_u24 v{vXo}, 1280, v{vN}")
    a(f"v_lshl_add_u32 v{vXo}, v{vH}, 3, v{vXo}")
    a(f"s_mul_i32 s66, s{s_w}, {384*1280}")
    a(f"s_mul_i32 s37, s{s_cb}, 192")
    a("s_add_u32 s66, s66, s37")
    a(f"s_mul_i32 s68, s{s_rb}, {2*96*1024}")
    a(f"s_mul_i32 s36, s{s_w}, {24*1024}")
    a("s_add_u32 s68, s68, s36")
    a(f"s_add_u32 s68, s68, {HF}")
    a(f"s_add_u32 s65, s68, {96*1024}")
    a(f"s_mul_i32 s70, s{s_rb}, {64*1280}")
    a("s_add_u32 s70, s70, s37")
    if FUSE == 2:
        a(f"s_and_b32 s36, s{s_w}, 1")
        a(f"s_mul_i32 s36, s36, {32*1280}")
        a("s_add_u32 s70, s70, s36")
        a(f"s_lshr_b32 s36, s{s_w}, 1")
        a("s_lshl_b32 s36, s36, 5")
        a("s_add_u32 s70, s70, s36")
    else:
        a(f"s_lshl_b32 s36, s{s_w}, 4")
        a("s_add_u32 s70, s70, s36")
        a(f"s_add_u32 s71, s70, {32*1280}")
    if FUSE:
        a(f"s_mul_i32 s88, s{s_w}, {160*1280}")
        a("s_add_u32 s88, s88, s37")
        a(f"s_mul_i32 s89, s{s_rb}, {2*40*1024}")
        a(f"s_mul_i32 s36, s{s_w}, {10*1024}")
        a("s_add_u32 s89, s89, s36")
        a(f"s_add_u32 s89, s89, {OF}")
        a(f"s_add_u32 s90, s89, {40*1024}")
    a("s_waitcnt lgkmcnt(0)")
    srd(a, SW, 8, 1966080)
    srd(a, SX, 14, 2621440)
    if standalone:
        srd(a, SWS, 12, WS_END)
    K = TypeK(a, 34 if FUSE == 1 else 24, 6, 6, R_ACC, D_AF, D_BF, vTr, 512, vWo, SW, 66, 16 * 1280, 67, vB, SWS, 68, 65, bmods)
    if FUSE:
        srd(a, 80, 84, 819200)
        srd(a, 84, 86, 2621440)
        K.phase2 = (24, 80, 88, 89, 90)
    return K


def gen_down_issue(a, K):
    SX, vXo = 76, 10
    for rt in range(2):
        for ct in range(3):
            if FUSE == 2:
                a(f"buffer_load_dwordx2 {vr(D_XR+(ct*2+rt)*2,2)}, v{vXo}, s[{SX}:{SX+3}], s70 offen offset:{ct*64+rt*16}")
            else:
                a(f"buffer_load_dwordx2 {vr(D_XR+(rt*3+ct)*2,2)}, v{vXo}, s[{SX}:{SX+3}], s{70+rt} offen offset:{ct*64}")
    order = [("x",)] * 6
    for s in range(6):
        K.emit(K.dma(s))
        order += [("d", s)] * 3
    if FUSE == 2 and PREFETCH:
        a("s_lshr_b32 s91, s69, 3")
        a("s_lshl_b32 s91, s91, 2")
        a("s_add_u32 s91, s91, s32")
        a("s_mul_i32 s91, s91, 7360")
        a("v_lshlrev_b32 v11, 6, v1")
        a("buffer_load_dword v12, v11, s[80:83], s91 offen")
        a("s_add_u32 s91, s91, 3264")
        a("buffer_load_dword v12, v11, s[80:83], s91 offen")
        order += [("x",)] * 2
    return K, order


def gen_tail2(a, K):
    s_w, s_rb, s_cb, SWS, vB, vLane, vN, vH = 32, 63, 64, 28, 5, 1, 2, 3
    T, ACC, RES = D_T, R_ACC, D_RES
    vTr, vWo, vXo = 9, 8, 10
    AC2 = ACC
    OB = [ACC + 48 + 4 * k for k in range(12)] + [D_BF + 4 * k for k in range(8)]
    s_rt, s_gp = 45, 46
    a(f"s_and_b32 s{s_rt}, s{s_w}, 1")
    a(f"s_lshr_b32 s{s_gp}, s{s_w}, 1")

    def quads(tw):
        rt, gp = tw & 1, tw >> 1
        return [ACC + (rt * 3 + ct) * 16 + (2 * gp + e) * 4 for ct in range(3) for e in range(2)]
    a(f"s_setprio {os.environ.get('PT2', '0')}")
    for tw in range(4):
        a(f"s_cmp_eq_u32 s{s_w}, {tw}")
        a(f"s_cbranch_scc1 t2_w{tw}")
        a(f"s_sub_u32 s91, {tw+3}, s{s_w}")
        a("s_and_b32 s91, s91, 3")
        a("s_mul_i32 s91, s91, 6144")
        a("s_add_u32 s91, s91, s67")
        a(f"v_add_u32 v{T}, s91, v{vB}")
        for k, r in enumerate(quads(tw)):
            a(f"ds_write_b128 v{T}, {vr(r,4)} offset:{k*1024}")
        a.label(f"t2_w{tw}")
    for jj in range(3):
        a(f"s_add_u32 s91, s{s_w}, {jj+1}")
        a("s_and_b32 s91, s91, 3")
        a(f"s_mul_i32 s91, s91, {RING}")
        a(f"s_add_u32 s91, s91, {(2-jj)*6144}")
        a(f"v_add_u32 v{T+1+jj}, s91, v{vB}")
    for tw in range(4):
        a(f"s_cmp_lg_u32 s{s_w}, {tw}")
        a(f"s_cbranch_scc1 t2_o{tw}")
        for k, r in enumerate(quads(tw)):
            for e in range(4):
                a(f"v_mov_b32 v{RES+4*k+e}, v{r+e}")
        a.label(f"t2_o{tw}")
    a("s_waitcnt lgkmcnt(0)")
    a("s_barrier")
    for jj in range(3):
        for k in range(6):
            a(f"ds_read_b128 {vr(ACC+(jj*6+k)*4,4)}, v{T+1+jj} offset:{k*1024}")
    for jj in range(3):
        a(f"s_waitcnt lgkmcnt({(2-jj)*6})")
        for e in range(0, 24, 2):
            a(f"v_pk_add_f32 {vr(RES+e,2)}, {vr(RES+e,2)}, {vr(ACC+jj*24+e,2)}")
    a("s_mov_b32 s49, 0xffff0000")
    a("s_waitcnt vmcnt(0)")
    for k in range(6):
        xr = D_XR + 2 * k
        for e in range(2):
            a(f"v_lshlrev_b32 v{T}, 16, v{xr+e}")
            a(f"v_and_b32 v{T+1}, s49, v{xr+e}")
            a(f"v_pk_add_f32 {vr(RES+4*k+2*e,2)}, {vr(RES+4*k+2*e,2)}, {vr(T,2)}")
    for gp in range(2):
        a(f"s_cmp_lg_u32 s{s_gp}, {gp}")
        a(f"s_cbranch_scc1 t2_i{gp}")
        for ct in range(3):
            for e in range(8):
                a(f"v_mov_b32 v{AC2+16*ct+8*gp+e}, v{RES+8*ct+e}")
                a(f"v_mov_b32 v{AC2+16*ct+8*(1-gp)+e}, 0")
        a.label(f"t2_i{gp}")
    a("s_setprio 0")
    a("s_barrier")
    a(f"s_mul_i32 s47, s{s_gp}, {20*16*1280}")
    a(f"s_mul_i32 s48, s{s_rt}, {16*1280}")
    a("s_add_u32 s47, s47, s48")
    a(f"s_mul_i32 s48, s{s_cb}, 192")
    a("s_add_u32 s47, s47, s48")
    a(f"s_mul_i32 s48, s{s_gp}, {12*3072}")
    a(f"s_mul_i32 s50, s{s_rt}, 3072")
    a("s_add_u32 s50, s50, s48")

    def wdma(i):
        for ct in range(3):
            a(f"s_add_u32 m0, s50, {((2*i) % 12)*3072 + ct*1024}")
            a(f"s_add_u32 s91, s47, {2*i*16*1280 + ct*64}")
            a(f"buffer_load_dwordx4 v{vWo}, s[80:83], s91 offen lds")
    for i in range(6):
        wdma(i)
    a(f"s_sub_u32 s91, s48, s67")
    a(f"v_add_u32 v{vTr}, s91, v{vTr}")
    a(f"s_lshl_b32 s89, s{s_rb}, 1")
    a(f"s_add_u32 s89, s89, s{s_rt}")
    a("s_mul_i32 s89, s89, 40")
    a(f"s_mul_i32 s91, s{s_gp}, 20")
    a("s_add_u32 s89, s89, s91")
    a("s_lshl_b32 s89, s89, 10")
    a(f"s_add_u32 s89, s89, {OF}")
    a(f"s_lshl_b32 s93, s{s_rb}, 8")
    a(f"s_add_u32 s93, s93, {CT + 4096}")
    a("s_waitcnt vmcnt(0)")
    a(f"s_cmp_lg_u32 s{s_w}, 0")
    a("s_cbranch_scc1 main_polled2")
    a(f"v_mov_b32 v{T}, 0")
    a("s_mov_b64 exec, 1")
    a.label("main_poll2")
    a(f"buffer_load_dword v{T+2}, v{T}, s[{SWS}:{SWS+3}], s93 offen sc1")
    a("s_waitcnt vmcnt(0)")
    a(f"v_readfirstlane_b32 s95, v{T+2}")
    a("s_cmp_ge_u32 s95, 8")
    a("s_cbranch_scc1 main_pdone2")
    a(f"s_sleep {os.environ.get('SLEEP2', '4')}")
    a("s_branch main_poll2")
    a.label("main_pdone2")
    a("s_mov_b64 exec, -1")
    a.label("main_polled2")
    a("s_barrier")
    stamp(a, "mffn")
    order = []
    for k in range(20):
        if k % 4 == 0 and k:
            a("s_add_u32 s89, s89, 4096")
        a(f"buffer_load_dwordx4 {vr(OB[k],4)}, v{vB}, s[{SWS}:{SWS+3}], s89 offen offset:{(k%4)*1024} sc1")
        order.append(("b", k))

    def reads(sx):
        for ct in range(3):
            o = ((sx % 12) * 3 + ct) * 1024
            r = D_AF + (sx & 1) * 12 + ct * 4
            a(f"ds_read_b64_tr_b16 {vr(r,2)}, v{vTr} offset:{o}")
            a(f"ds_read_b64_tr_b16 {vr(r+2,2)}, v{vTr} offset:{o+512}")

    def wait(tag, extra=""):
        last = max(i for i, o in enumerate(order) if o == tag)
        a(f"s_waitcnt vmcnt({len(order) - 1 - last}){extra}")
    reads(0)
    for sx in range(20):
        if sx + 1 < 20:
            if sx + 1 in (12, 16):
                wait(("d", sx + 1))
                a("s_barrier")
            reads(sx + 1)
            wait(("b", sx), " lgkmcnt(6)")
        else:
            wait(("b", sx), " lgkmcnt(0)")
        for ct in range(3):
            mfma32(a, AC2 + 16 * ct, D_AF + (sx & 1) * 12 + ct * 4, OB[sx])
        if sx in (3, 7):
            a("s_barrier")
            for i in ((6, 7) if sx == 3 else (8, 9)):
                wdma(i)
                order += [("d", 12 if sx == 3 else 16)] * 3
    stamp(a, "mffn")
    a("s_setprio 2")
    a("s_barrier")
    a(f"v_add_u32 v{T}, s67, v{vB}")
    a(f"s_xor_b32 s91, s{s_w}, 2")
    a(f"s_mul_i32 s91, s91, {RING}")
    a(f"v_add_u32 v{T+1}, s91, v{vB}")
    for gp in range(2):
        a(f"s_cmp_lg_u32 s{s_gp}, {gp}")
        a(f"s_cbranch_scc1 t2_x{gp}")
        for ct in range(3):
            for e in range(2):
                a(f"ds_write_b128 v{T}, {vr(AC2+16*ct+8*(1-gp)+4*e,4)} offset:{(ct*2+e)*1024}")
        for ct in range(3):
            for e in range(8):
                a(f"v_mov_b32 v{RES+8*ct+e}, v{AC2+16*ct+8*gp+e}")
        a.label(f"t2_x{gp}")
    a("s_waitcnt lgkmcnt(0)")
    a("s_barrier")
    for k in range(6):
        a(f"ds_read_b128 {vr(ACC+4*k,4)}, v{T+1} offset:{k*1024}")
    a("s_waitcnt lgkmcnt(0)")
    for e in range(0, 24, 2):
        a(f"v_pk_add_f32 {vr(RES+e,2)}, {vr(RES+e,2)}, {vr(ACC+e,2)}")
    a(f"v_lshl_add_u32 v{T}, v{vH}, 3, v{vXo}")
    for ct in range(3):
        if ct == 2:
            a(f"s_cmp_eq_u32 s{s_cb}, 6")
            a("s_cbranch_scc1 dn_skip")
        r = RES + 8 * ct
        for q in range(4):
            a(f"v_cvt_pk_bf16_f32 v{r+q}, v{r+2*q}, v{r+2*q+1}")
        a(f"v_permlane32_swap_b32 v{r}, v{r+2}")
        a(f"v_permlane32_swap_b32 v{r+1}, v{r+3}")
        a(f"buffer_store_dwordx4 {vr(r,4)}, v{T}, s[84:87], s70 offen offset:{ct*64}")
    a.label("dn_skip")


def gen_down_rest(a, K, order):
    s_w, s_rb, s_cb, SWS, vB, vLane, vXo = 32, 63, 64, 28, 5, 1, 10
    T = D_T
    for s in range(6):
        K.emit(K.bl(s))
        order = order + [("b", s)] * 2
    order = K.main(order, 0, 24, 24)
    stamp(a, "mffn")
    stamp(a, "down")
    if FUSE == 2:
        gen_tail2(a, K)
        return
    if FUSE:
        a(f"v_mul_u32_u24 v{T+3}, 1280, v{vLane}")
        for q in range(3):
            a(f"s_add_u32 s91, s88, {6*16*1280 + q*64}")
            a(f"buffer_load_dword v{T+4}, v{T+3}, s[80:83], s91 offen")
        a(f"s_lshl_b32 s93, s{s_rb}, 8")
        a(f"s_add_u32 s93, s93, {CT + 4096}")
        a(f"s_cmp_lg_u32 s{s_w}, 0")
        a("s_cbranch_scc1 main_polled2")
        a(f"v_mov_b32 v{T}, 0")
        a("s_mov_b64 exec, 1")
        a.label("main_poll2")
        a(f"buffer_load_dword v{T+2}, v{T}, s[{SWS}:{SWS+3}], s93 offen sc1")
        a("s_waitcnt vmcnt(0)")
        a(f"v_readfirstlane_b32 s95, v{T+2}")
        a("s_cmp_ge_u32 s95, 8")
        a("s_cbranch_scc1 main_pdone2")
        a("s_sleep 4")
        a("s_branch main_poll2")
        a.label("main_pdone2")
        a("s_mov_b64 exec, -1")
        a.label("main_polled2")
        a("s_barrier")
        stamp(a, "mffn")
        order = order + [("x",)] * 3
        for s in range(24, 30):
            K.emit(K.bl(s))
            order = order + [("b", s)] * 2
        K.main(order, 24, 34)
        stamp(a, "mffn")
    a("s_setprio 2")
    reduce4(a, "dn", R_ACC, D_RES, R_ACC, vB, T, s_w, 67, 0, RING)
    a("s_mov_b32 s49, 0xffff0000")
    if not FUSE:
        a(f"s_mul_i32 s45, s{s_rb}, 40")
        a(f"s_mul_i32 s46, s{s_cb}, 3")
        a("s_add_u32 s45, s45, s46")
        a("s_lshl_b32 s45, s45, 11")
        a(f"s_lshr_b32 s46, s{s_w}, 1")
        a("s_lshl_b32 s46, s46, 10")
        a("s_add_u32 s45, s45, s46")
        a(f"s_and_b32 s46, s{s_w}, 1")
        a("s_lshl_b32 s46, s46, 3")
        a("s_add_u32 s45, s45, s46")
        a(f"s_add_u32 s45, s45, {YF}")
    for ct in range(3):
        if ct == 2:
            a(f"s_cmp_eq_u32 s{s_cb}, 6")
            a("s_cbranch_scc1 dn_skip")
        for rt in range(2):
            r = D_RES + (rt * 3 + ct) * 4
            xr = D_XR + (rt * 3 + ct) * 2
            for e in range(2):
                a(f"v_lshlrev_b32 v{T}, 16, v{xr+e}")
                a(f"v_and_b32 v{T+1}, s49, v{xr+e}")
                a(f"v_pk_add_f32 {vr(r+2*e,2)}, {vr(r+2*e,2)}, {vr(T,2)}")
            a(f"v_cvt_pk_bf16_f32 v{r}, v{r}, v{r+1}")
            a(f"v_cvt_pk_bf16_f32 v{r+1}, v{r+2}, v{r+3}")
            if FUSE:
                a(f"buffer_store_dwordx2 {vr(r,2)}, v{vXo}, s[84:87], s{70+rt} offen offset:{ct*64}")
            else:
                a(f"s_add_u32 s46, s45, {(rt*20+ct)*2048}")
                a(f"buffer_store_dwordx2 {vr(r,2)}, v{vB}, s[{SWS}:{SWS+3}], s46 offen{SM}")
    a.label("dn_skip")


def gen_down():
    a = Asm()
    a.label("down_kernel")
    a("s_cmp_ge_u32 s2, 224")
    a("s_cbranch_scc1 down_end")
    stamp_begin(a, "down")
    K, order = gen_down_issue(a, gen_down_setup(a, 2, True))
    stamp(a, "down")
    gen_down_rest(a, K, order)
    stamp_end(a, "down", 28, 32, 240)
    a.label("down_end")
    a("s_endpgm")
    return a.finish(), ("down_kernel", 224, 256, 73728, 256 if STAMP else 232)


def gen_main():
    a = Asm()
    a.label("main_kernel")
    a("s_cmp_ge_u32 s2, 512")
    a("s_cbranch_scc1 main_end")
    a("s_cmp_ge_u32 s2, 256")
    a("s_cbranch_scc1 main_ffn")
    if PRIO_ATTN:
        a(f"s_setprio {PRIO_ATTN}")
    stamp_begin(a, "mattn")
    gen_attn_body(a, "ma", 2, bool(FUSE))
    stamp_end(a, "mattn", 28, 32, 250)
    a("s_endpgm")
    a.label("main_ffn")
    if PRIO_FFN:
        a(f"s_setprio {PRIO_FFN}")
    a("s_sub_u32 s69, s2, 256")
    stamp_begin(a, "mffn")
    st = {}
    K0 = gen_down_setup(a, 69, True, " sc1")
    xvm = {}
    if PREFETCH and PF0 >= 0:
        a("s_lshr_b32 s96, s69, 3")
        a("s_lshl_b32 s96, s96, 2")
        a("s_add_u32 s96, s96, s32")
        a("s_lshl_b32 s96, s96, 14")
        a(f"v_lshlrev_b32 v11, 6, v1")
        for q in range(4):
            xvm[PF0 + q] = [[f"s_add_u32 s97, s96, {q*4096}",
                             f"buffer_load_dword v12, v11, s[24:27], s97 offen"]]
        if ROLL:
            xvm = [["buffer_load_dword v12, v11, s[24:27], s96 offen", "s_add_u32 s96, s96, 2752"],
                   ["buffer_load_dword v12, v11, s[24:27], s96 offen", "s_add_u32 s96, s96, 2752"]]

    def mid():
        stamp(a, "mffn")
        a("s_setprio 2")
    gen_gateup_body(a, "gu", 69, mid, " sc1", xvm)
    SD = 28
    a("s_setprio 0")
    a("s_lshl_b32 s92, s33, 8")
    a(f"s_add_u32 s92, s92, {CT}")
    a("s_lshr_b32 s93, s63, 1")
    a("s_lshl_b32 s93, s93, 8")
    a(f"s_add_u32 s93, s93, {CT}")
    a("s_waitcnt vmcnt(0)")
    a("s_barrier")
    stamp(a, "mffn")
    a(f"v_mov_b32 v{D_T}, 0")
    a(f"v_mov_b32 v{D_T+1}, 1")
    a("s_cmp_lg_u32 s32, 0")
    a("s_cbranch_scc1 main_nosig")
    a("s_mov_b64 exec, 1")
    a(f"buffer_atomic_add v{D_T+1}, v{D_T}, s[{SD}:{SD+3}], s92 offen sc1")
    a("s_mov_b64 exec, -1")
    a.label("main_nosig")
    a("s_cmp_ge_u32 s69, 224")
    a("s_cbranch_scc1 main_end")
    K, order = gen_down_issue(a, K0)
    a("s_cmp_lg_u32 s32, 0")
    a("s_cbranch_scc1 main_polled")
    a("s_mov_b64 exec, 1")
    a.label("main_poll")
    a(f"buffer_load_dword v{D_T+2}, v{D_T}, s[{SD}:{SD+3}], s93 offen sc1")
    a("s_waitcnt vmcnt(0)")
    a(f"v_readfirstlane_b32 s95, v{D_T+2}")
    a("s_cmp_ge_u32 s95, 16")
    a("s_cbranch_scc1 main_pdone")
    a(f"s_sleep {os.environ.get('SLEEP', '8')}")
    a("s_branch main_poll")
    a.label("main_pdone")
    a("s_mov_b64 exec, -1")
    a.label("main_polled")
    a("s_barrier")
    stamp(a, "mffn")
    a(f"s_setprio {PRIO_DN}")
    gen_down_rest(a, K, order)
    stamp_end(a, "mffn", 28, 32, 240, 69)
    a.label("main_end")
    a("s_endpgm")
    return a.finish(), ("main_kernel", 512, 256, 73728, 256 if STAMP else 248)


PREFETCH = int(os.environ.get("PREFETCH", "1"))
PF0 = int(os.environ.get("PF0", "6"))
CODEPF = 0
ORDER = []
ROLL = int(os.environ.get("ROLL", "0"))
ORDER2 = int(os.environ.get("ORDER2", "1"))
PRIO_DN = int(os.environ.get("PRIO_DN", "0"))
SM = os.environ.get("SM", "")
SM = (" " + SM) if SM else ""
FUSE = int(os.environ.get("FUSE", "2"))
PRIO_ATTN = int(os.environ.get("PRIO_ATTN", "0"))
PRIO_FFN = int(os.environ.get("PRIO_FFN", "0"))


def gen_final():
    a = Asm()
    a.label("final_kernel")
    s_w, s_rb, s_cb = 32, 33, 34
    SW, SO, SWS = 20, 24, 28
    vLane, vN, vH, vWo, vB, vTr, vXo = 1, 2, 3, 4, 5, 6, 8
    T = R_T
    YR = R_ACC + 32
    a("s_cmp_ge_u32 s2, 160")
    a("s_cbranch_scc1 final_end")
    stamp_begin(a, "final")
    a("s_load_dwordx2 s[6:7], s[0:1], 32")
    a("s_load_dwordx2 s[8:9], s[0:1], 72")
    a("s_load_dwordx2 s[12:13], s[0:1], 88")
    lane_setup(a, T, vLane, vN, vH, s_w)
    a("s_and_b32 s3, s2, 7")
    a("s_lshl_b32 s3, s3, 1")
    a("s_bfe_u32 s36, s2, 0x10003")
    a(f"s_add_u32 s{s_rb}, s3, s36")
    a(f"s_lshr_b32 s{s_cb}, s2, 4")
    a(f"v_lshlrev_b32 v{vB}, 4, v{vLane}")
    a(f"v_lshrrev_b32 v{T}, 2, v{vLane}")
    a(f"v_mul_u32_u24 v{vWo}, 1280, v{T}")
    a(f"v_and_b32 v{T}, 3, v{vLane}")
    a(f"v_lshl_add_u32 v{vWo}, v{T}, 4, v{vWo}")
    a(f"v_mul_u32_u24 v{vXo}, 1280, v{vN}")
    a(f"v_lshl_add_u32 v{vXo}, v{vH}, 4, v{vXo}")
    tr_base(a, vTr, T, vLane, vH, 9)
    a(f"s_mul_i32 s40, s{s_w}, {16*1280}")
    a(f"s_lshl_b32 s41, s{s_cb}, 7")
    a("s_add_u32 s40, s40, s41")
    a(f"s_lshl_b32 s42, s{s_rb}, 2")
    a(f"s_add_u32 s42, s42, s{s_w}")
    a(f"s_mul_i32 s43, s42, {40*1024}")
    a(f"s_add_u32 s43, s43, {OF}")
    a("s_mul_i32 s45, s42, 20")
    a(f"s_lshl_b32 s46, s{s_cb}, 1")
    a("s_add_u32 s45, s45, s46")
    a("s_lshl_b32 s45, s45, 11")
    a(f"s_add_u32 s45, s45, {YF}")
    a(f"s_mul_i32 s47, s42, {32*1280}")
    a("s_add_u32 s47, s47, s41")
    a("s_waitcnt lgkmcnt(0)")
    srd(a, SW, 6, 819200)
    srd(a, SO, 8, 2621440)
    srd(a, SWS, 12, WS_END)
    R = TypeR(a, "fi", 2, 10, vTr, vWo, vB, s_w, lambda t: (SW, 0, t), (40, 40, 64 * 1280), 43, SWS, 256)
    R.setup()
    R.emit(R.vm_ops(0) + R.vm_ops(1))
    yl = [[f"buffer_load_dwordx4 {vr(YR+4*q,4)}, v{vB}, s[{SWS}:{SWS+3}], s45 offen offset:{q*1024}"] for q in range(4)]
    R.main(R.per, {4: yl})
    stamp(a, "final")
    a("s_mov_b32 s49, 0xffff0000")
    a("s_waitcnt vmcnt(0)")
    for t in range(2):
        r = R_ACC + 16 * t
        for q in range(8):
            a(f"v_lshlrev_b32 v{T+2*(q&1)}, 16, v{YR+8*t+q}")
            a(f"v_and_b32 v{T+2*(q&1)+1}, s49, v{YR+8*t+q}")
            a(f"v_pk_add_f32 {vr(r+2*q,2)}, {vr(r+2*q,2)}, {vr(T+2*(q&1),2)}")
        for q in range(8):
            a(f"v_cvt_pk_bf16_f32 v{r+q}, v{r+2*q}, v{r+2*q+1}")
        for gp in range(2):
            b = r + 4 * gp
            a(f"v_permlane32_swap_b32 v{b}, v{b+2}")
            a(f"v_permlane32_swap_b32 v{b+1}, v{b+3}")
            a(f"buffer_store_dwordx4 {vr(b,4)}, v{vXo}, s[{SO}:{SO+3}], s47 offen offset:{t*64 + gp*32}")
    stamp_end(a, "final", SWS, s_w, 240)
    a.label("final_end")
    a("s_endpgm")
    return a.finish(), ("final_kernel", 160, 256, 24576, 256 if STAMP else 216)


def gen_empty():
    a = Asm()
    a.label("empty_kernel")
    a("s_endpgm")
    return a.finish(), ("empty_kernel", 256, 256, 65536, 256)


KERNELS = {"empty": gen_empty, "main": gen_main, "qkv": gen_qkv, "gateup": gen_gateup, "attn": gen_attn, "down": gen_down, "final": gen_final}
HEADER = open("parallel_sum__grouped_kv_mqa__glu_gated_swiglu__prompt.s.ref").read().split("; Override launch")[0] if False else ""


DEFAULT = ["qkv", "main"] if FUSE else ["qkv", "main", "final"]


def build(order):
    texts, launches = {}, []
    ORDER[:] = order
    for k in order:
        t, info = KERNELS[k]()
        texts[info[0]] = (t, info)
        launches.append(info)
    out = "; generated by dev/gen.py -- LN + MQA attention + SwiGLU block for gfx950\n"
    for name, grid, block, lds, vg in launches:
        out += f"; @launch kernel={name} grid=({grid},1,1) block=({block},1,1) lds={lds}\n"
    out += '.amdgcn_target "amdgcn-amd-amdhsa--gfx950"\n.text\n'
    for name, (t, info) in texts.items():
        out += kernel_header(name) + t
    out += "code_end:\n"
    out += '.section .rodata,"a"\n'
    for name, (t, info) in texts.items():
        out += kernel_desc(name, info[4])
    return out


if __name__ == "__main__":
    order = sys.argv[2].split(",") if len(sys.argv) > 2 else DEFAULT
    open(sys.argv[1], "w").write(build(order))
```
